```python
import torch

def _softmax(x, axis=-1):
    return torch.softmax(x, dim=axis)
def _gelu(x):
    return torch.nn.functional.gelu(x, approximate="tanh")
def _silu(x):
    return torch.nn.functional.silu(x)
def _sigmoid(x):
    return torch.sigmoid(x)
def _layernorm(x, axis=-1, eps=1e-5):
    m = x.mean(dim=axis, keepdim=True)
    v = x.var(dim=axis, keepdim=True, unbiased=False)
    return (x - m) / torch.sqrt(v + eps)
def _scatter_add(tgt, idx, src, axis=0):
    return tgt.clone().index_add_(axis, idx, src)
def _segment_sum(src, seg, n):
    out = torch.zeros((n,) + src.shape[1:], dtype=src.dtype)
    return out.index_add_(0, seg, src)
def _pad(x, pw):
    flat = tuple(v for pair in reversed(pw) for v in pair)
    return torch.nn.functional.pad(x, flat)

kernel_name = 'sequential_preLN__gqa_block_cached__dense_activation_silu__decode'

def setup_inputs():

    _w = (lambda a: (lambda t: t.to(torch.bfloat16) if t.is_floating_point() else t)(torch.as_tensor(a)))
    def _A_setup():
        B, Sq, D = 2, 1, 448
        Hq, Hkv, Sk, Dh = 16, 8, 32768, 256
        assert Hq % Hkv == 0, (Hq, Hkv)
        return {
            "x": _w((lambda *s: torch.randn(*s, dtype=torch.bfloat16) * 0.1)(B, Sq, D)),
            "k_cache": _w((lambda *s: torch.randn(*s, dtype=torch.bfloat16) * 1.6)(B, Hkv, Sk, Dh)),
            "v_cache": _w((lambda *s: torch.randn(*s, dtype=torch.bfloat16) * 1.6)(B, Hkv, Sk, Dh)),
            "wq": _w((lambda *s: torch.randn(*s, dtype=torch.bfloat16) * 1.6)(D, Hq * Dh) * (D ** -0.5)),
            "wo": _w((lambda *s: torch.randn(*s, dtype=torch.bfloat16) * 1.6)(Hq * Dh, D) * ((Hq * Dh) ** -0.5)),
        }
    _A_in = _A_setup()

    def _B_setup():
        B, S, D, F = 2, 1, 448, 1792
        return {
            "x": _w((lambda *s: torch.randn(*s, dtype=torch.bfloat16) * 0.1)(B, S, D)),
            "w1": _w((lambda *s: torch.randn(*s, dtype=torch.bfloat16) * 3.2)(D, F) * (D ** -0.5)),
            "w2": _w((lambda *s: torch.randn(*s, dtype=torch.bfloat16) * 3.2)(F, D) * (F ** -0.5)),
        }
    _B_in = _B_setup()

    return {
        "A_x": _A_in["x"],
        "A_k_cache": _A_in["k_cache"],
        "A_v_cache": _A_in["v_cache"],
        "A_wq": _A_in["wq"],
        "A_wo": _A_in["wo"],
        "B_x": _B_in["x"],
        "B_w1": _B_in["w1"],
        "B_w2": _B_in["w2"],
    }

def reference(A_x, A_k_cache, A_v_cache, A_wq, A_wo, B_x, B_w1, B_w2):
    def _A_ref(x, k_cache, v_cache, wq, wo):
        B, Sq, D = x.shape
        Hq, Dh = 16, 256
        Hkv = k_cache.shape[1]
        rep = Hq // Hkv
        q = (lambda x, *d: x.permute(*d))((x @ wq).reshape(B, Sq, Hq, Dh), 0, 2, 1, 3)
        k = (lambda x, n, axis: torch.repeat_interleave(x, n, dim=axis))(k_cache, rep, axis=1)
        v = (lambda x, n, axis: torch.repeat_interleave(x, n, dim=axis))(v_cache, rep, axis=1)
        scores = torch.einsum("bhqd,bhkd->bhqk", q, k) * (Dh ** -0.5)
        p = _softmax(scores, axis=-1)
        o = torch.einsum("bhqk,bhkd->bhqd", p, v)
        return (lambda x, *d: x.permute(*d))(o, 0, 2, 1, 3).reshape(B, Sq, Hq * Dh) @ wo

    def _B_ref(x, w1, w2):
        h = torch.einsum("bsd,df->bsf", x, w1)
        h = _silu(h)
        out = torch.einsum("bsf,fd->bsd", h, w2)
        return out

    x = A_x
    h = x + _A_ref(_layernorm(x, axis=-1), A_k_cache, A_v_cache, A_wq, A_wo)
    h2 = h + _B_ref(_layernorm(h, axis=-1), B_w1, B_w2)
    return h2
```

```python
import re

TRANS = ("v_exp_f32","v_log_f32","v_rcp_f32","v_rsq_f32","v_sqrt_f32","v_sin_f32","v_cos_f32")

def regs_of(op):
    op = op.strip()
    op = op.lstrip("-")
    if op.startswith("abs(") or op.startswith("|"):
        op = op.replace("abs(", "").replace(")", "").replace("|", "")
    m = re.fullmatch(r"([vsa])\[(\d+):(\d+)\]", op)
    if m: return {(m.group(1), i) for i in range(int(m.group(2)), int(m.group(3))+1)}
    m = re.fullmatch(r"([vsa])(\d+)", op)
    if m: return {(m.group(1), int(m.group(2)))}
    if op in ("vcc","vcc_lo","vcc_hi"): return {("vcc",0)}
    if op == "m0": return {("m0",0)}
    if op in ("exec","exec_lo","exec_hi"): return {("exec",0)}
    return set()

class Ins:
    def __init__(self, text):
        self.text = text
        t = text.split(";")[0].strip()
        self.label = None
        if not t:
            self.label = "\0comment"; self.mn = None; return
        if t.startswith("."):
            self.label = "\0directive"; self.mn = None; return
        if t.endswith(":"):
            self.label = t[:-1]; self.mn = None; return
        parts = t.split(None, 1)
        self.mn = parts[0]
        rest = parts[1] if len(parts) > 1 else ""
        ops = []; depth = 0; cur = ""
        for ch in rest:
            if ch in "[(": depth += 1
            if ch in "])": depth -= 1
            if ch == "," and depth == 0: ops.append(cur.strip()); cur = ""
            else: cur += ch
        if cur.strip(): ops.append(cur.strip())
        self.mods = ""
        if ops:
            last = ops[-1].split(None, 1)
            ops[-1] = last[0]
            self.mods = last[1] if len(last) > 1 else ""
        self.ops = ops
        mn = self.mn
        R = [regs_of(o) for o in ops]
        self.w = set(); self.r = set()
        self.kind = "other"
        self.srcC = set(); self.srcAB = set(); self.stdata = set()
        U = lambda l: set().union(*l) if l else set()
        if mn.startswith("v_mfma"):
            self.kind = "mfma"; self.w = R[0]; self.srcAB = R[1] | R[2]; self.srcC = R[3]; self.r = self.srcAB | self.srcC
        elif mn.startswith("v_permlane") and "swap" in mn:
            self.kind = "valu"; self.w = R[0] | R[1]; self.r = R[0] | R[1]
        elif mn.startswith("v_cmp"):
            self.kind = "valu"; self.w = R[0]; self.r = U(R[1:])
        elif mn.startswith("v_"):
            self.kind = "valu"; self.w = R[0]; self.r = U(R[1:])
            if mn.startswith(("v_fmac","v_dot2c","v_pk_fmac","v_writelane")) or "_dpp" in mn: self.r |= R[0]
            if mn.startswith(("v_add_co","v_sub_co","v_addc_co")): self.w |= R[1]
            if mn == "v_nop": self.w = set(); self.r = set()
        elif mn.startswith("ds_read") or mn.startswith("ds_bpermute") or mn.startswith("ds_swizzle"):
            self.kind = "ds"; self.w = R[0]; self.r = U(R[1:])
        elif mn.startswith("ds_"):
            self.kind = "ds"; self.r = U(R)
        elif mn.startswith("buffer_load") and re.search(r"\blds\b", self.mods):
            self.kind = "vmem"; self.r = U(R) | {("m0",0)}; self.dma = True
        elif mn.startswith(("buffer_load","global_load")) and not mn.startswith("global_load_lds"):
            self.kind = "vmem"; self.w = R[0]; self.r = U(R[1:])
        elif mn.startswith("global_store"):
            self.kind = "vmem"; self.r = U(R)
            if mn.endswith(("x3","x4")): self.stdata = R[1]
        elif mn.startswith("buffer_store"):
            self.kind = "vmem"; self.r = U(R)
            if mn.endswith(("x3","x4")): self.stdata = R[0]
        elif mn.startswith(("global_atomic","buffer_atomic","buffer_inv","buffer_wbl2")):
            self.kind = "vmem"; self.r = U(R)
            if "sc0" in self.mods and R: self.w = R[0]
        elif mn.startswith("s_"):
            self.kind = "salu"
            if mn.startswith(("s_getpc",)):
                self.w = R[0]
            elif mn.startswith(("s_cmp","s_bitcmp","s_cbranch","s_branch","s_waitcnt","s_nop","s_sleep","s_barrier","s_endpgm","s_setprio")):
                self.r = U(R)
            else:
                self.w = R[0] if R else set(); self.r = U(R[1:])
        else:
            raise ValueError("unknown instruction: " + text)
        self.dpp = "_dpp" in mn
        self.trans = mn in TRANS or mn.replace("_e32","").replace("_e64","") in TRANS
        self.swap = mn.startswith("v_permlane")
        self.rdlane = mn.startswith(("v_readlane","v_readfirstlane"))
        self.states = 1
        if mn == "s_nop": self.states = int(ops[0], 0) + 1
        self.target = ops[0] if mn.startswith(("s_cbranch","s_branch")) else None
        self.falls = mn not in ("s_branch","s_endpgm")

def need(p, c):
    n = 0
    V = lambda s: {x for x in s if x[0] in "va" and x[0] != "vcc"}
    S = lambda s: {x for x in s if x[0] in ("s","vcc")}
    if p.kind == "valu":
        pw = V(p.w)
        if c.kind == "mfma" and pw & c.r: n = max(n, 2)
        if c.kind == "valu":
            if c.dpp and pw & c.r: n = max(n, 2)
            if c.swap and pw & c.r: n = max(n, 2)
            if c.rdlane and pw & c.r: n = max(n, 1)
        if p.trans and pw & c.r and not c.trans: n = max(n, 1)
        ps = S(p.w)
        if ps:
            if c.kind == "valu" and ps & c.r: n = max(n, 4 if c.mn.startswith(("v_readlane","v_writelane")) else 2)
            if c.kind == "vmem" and ps & c.r: n = max(n, 5)
    if p.kind == "mfma":
        big = "32x32" in p.mn
        full = 12 if big else 8
        if c.kind == "mfma":
            if p.w & c.srcAB: n = max(n, full)
            if p.w & c.srcC and p.w != c.srcC: n = max(n, 10 if big else 6)
            if p.w & c.w and p.w != c.srcC: n = max(n, full)
        elif c.kind in ("valu","ds","vmem"):
            if p.w & (c.r | c.w): n = max(n, full)
            if c.kind == "valu" and p.srcC & c.w: n = max(n, 7 if big else 3)
    if p.kind == "salu" and ("m0",0) in p.w and getattr(c, "dma", False): n = max(n, 1)
    if p.stdata and (p.stdata & c.w): n = max(n, 2)
    return n

class Emitter:
    def __init__(self):
        self.lines = []
    def __call__(self, text):
        for t in text.split("\n"):
            t = t.strip()
            if t and not t.startswith(";"): self.lines.append(t)
    def label(self, name): self.lines.append(name + ":")
    def note(self, text): self.lines.append("; " + text)
    def finish(self):
        ins = [Ins(t) for t in self.lines]
        MAXD = 12
        out = []
        def run(ins):
            srcs = {}
            for i, x in enumerate(ins):
                if x.label is None and x.target: srcs.setdefault(x.target, []).append(i)
            pads = {}
            def back(i, dist, c, seen):
                worst = 0
                j = i - 1
                while j >= 0 and dist < MAXD:
                    x = ins[j]
                    if x.label is not None:
                        for s in srcs.get(x.label, []):
                            if (s, dist) not in seen:
                                seen.add((s, dist))
                                b = ins[s]
                                worst = max(worst, need(b, c) - dist, back(s, dist + b.states + 0, c, seen))
                        j -= 1
                        k = j
                        while k >= 0 and ins[k].label is not None: k -= 1
                        if k >= 0 and not ins[k].falls:
                            while j >= 0 and ins[j].label is not None:
                                for s in srcs.get(ins[j].label, []):
                                    if (s, dist) not in seen:
                                        seen.add((s, dist)); b = ins[s]
                                        worst = max(worst, need(b, c) - dist, back(s, dist + b.states, c, seen))
                                j -= 1
                            return worst
                        continue
                    worst = max(worst, need(x, c) - dist)
                    dist += x.states + pads.get(j, 0)
                    j -= 1
                return worst
            for i, c in enumerate(ins):
                if c.label is not None: continue
                e = back(i, 0, c, set())
                if e > 0: pads[i] = e
            return pads
        pads = run(ins)
        self.npad = sum(pads.values())
        txt = []
        for i, x in enumerate(ins):
            if i in pads:
                n = pads[i]
                while n > 0:
                    k = min(n, 16); txt.append(f"  s_nop {k-1}"); n -= k
            txt.append(x.text if x.label is not None else "  " + x.text)
        return "\n".join(txt) + "\n"
```

```python
import sys, json, struct
from emit import Emitter

NAME = "sequential_preLN__gqa_block_cached__dense_activation_silu__decode_kernel"

def f2u(x): return struct.unpack("<I", struct.pack("<f", x))[0]

def gen(W=20, NS=48, C_WO=6, C_FFN=10, diag=False, pol="nt", polv=None, polw=None, hilo=False, spin=1<<22, enc=None):
    E = Emitter(); A = E
    if polv is None: polv = pol
    if polw is None: polw = pol
    NSLOT = 9; SLOT = 16384; RING = NSLOT*SLOT
    L_LANDED = RING; L_CONS = RING+16; L_RED = RING+256; L_ACT = RING+512; L_QW = RING+1024; L_LN = RING+5120
    LDS = 163840
    WS_E = 0; WS_CNT = 0x1000; WS_H = 0x3000; WS_Q = 0x8000; WS_D = 0x40000; WS_A = 0x100000; WS_B = 0x200000; WS_ST = 0x400000
    T = 1024
    C_SCALE = f2u(1.4426950408889634/16.0)
    LOG2E = f2u(1.4426950408889634)
    INV448 = f2u(1.0/448.0)
    EPS = f2u(1e-5)
    sWG="s2"; sWAVE="s3"
    pX="s[4:5]"; pK=(6,7); pV=(8,9); pWQ=(10,11); pWO=(12,13); pW1=(16,17); pW2=(18,19); pOUT="s[20:21]"; pWS="s[24:25]"
    sG="s26"; sJ="s27"; sROLE="s28"; sB="s29"; sHKV="s30"; sN="s31"; sSLOT="s32"; sKNOWN="s33"; sT0="s34"; sT1="s35"; sT2="s36"
    sCI="s37"; sSPIN="s38"; sIDX="s39"
    uid=[0]
    def lab(p): uid[0]+=1; return f"L_{p}_{uid[0]}"
    def stamp(k):
        if not diag and not (enc and k in (0, enc[0], enc[1])): return
        A(f"s_memrealtime s[{70+2*k}:{71+2*k}]")
    def slot_advance():
        A(f"s_add_u32 {sN}, {sN}, 1")
        A(f"s_add_u32 {sSLOT}, {sSLOT}, {SLOT}")
        A(f"s_cmp_eq_u32 {sSLOT}, {RING}")
        A(f"s_cselect_b32 {sSLOT}, 0, {sSLOT}")

    A(f"s_cmp_ge_u32 {sWG}, 256")
    A("s_cbranch_scc1 L_end")
    stamp(0)
    A("s_load_dwordx16 s[4:19], s[0:1], 0")
    A("s_load_dwordx4 s[20:23], s[0:1], 64")
    A("s_load_dwordx2 s[24:25], s[0:1], 80")
    A("v_lshrrev_b32 v1, 6, v0")
    A("v_and_b32 v0, 63, v0")
    A(f"v_readfirstlane_b32 {sWAVE}, v1")
    A(f"s_lshr_b32 {sG}, {sWG}, 4")
    A(f"s_and_b32 {sJ}, {sWG}, 15")
    A(f"s_sub_u32 {sROLE}, {sJ}, {sG}")
    A(f"s_and_b32 {sROLE}, {sROLE}, 15")
    A(f"s_lshr_b32 {sB}, {sG}, 3")
    A(f"s_and_b32 {sHKV}, {sG}, 7")
    A(f"s_mov_b32 {sN}, 0"); A(f"s_mov_b32 {sSLOT}, 0"); A(f"s_mov_b32 {sKNOWN}, 0"); A(f"s_mov_b32 {sCI}, 0")
    A(f"s_mov_b32 {sSPIN}, {spin}")
    A(f"s_sub_u32 {sT0}, {sROLE}, 8")
    A(f"s_lshl_b32 {sIDX}, {sG}, 1")
    A(f"s_add_u32 {sIDX}, {sIDX}, {sT0}")
    A(f"s_cmp_lt_u32 {sT0}, 2")
    A(f"s_cselect_b32 {sIDX}, {sIDX}, 99")
    A(f"v_lshlrev_b32 v1, 2, v0"); A(f"v_add_u32 v1, {L_LANDED}, v1"); A("v_mov_b32 v2, 0")
    A("s_mov_b64 exec, 0xff"); A("ds_write_b32 v1, v2"); A("s_mov_b64 exec, -1")
    A(f"s_cmp_lg_u32 {sWAVE}, 0")
    A("s_cbranch_scc1 L_consumer")

    vK=[4+i for i in range(8)]; vV=[12+i for i in range(4)]; vLIN=16; vTQ=[17,18]; vT1=[19,20]; vFL=21; vTMP=22; vC=24
    srdK="s[40:43]"; srdV="s[44:47]"; srdW="s[48:51]"; srdZ="s[52:55]"
    sCUR="s56"; sGB="s57"; sOFF="s58"; sCLM="s59"; sCOFF="s60"; sBASE="s61"
    A("s_setprio 3")
    A("v_lshrrev_b32 v1, 5, v0")
    A("v_and_b32 v2, 31, v0")
    A("v_xor_b32 v3, v2, v1")
    A("v_lshlrev_b32 v3, 4, v3")
    A("v_lshl_or_b32 v3, v1, 9, v3")
    for i in range(8): A(f"v_xor_b32 v{vK[i]}, {i*32}, v3")
    A("v_lshlrev_b32 v3, 1, v1"); A("v_xor_b32 v3, v2, v3"); A("v_lshlrev_b32 v3, 4, v3"); A("v_lshl_or_b32 v3, v1, 9, v3")
    for i in range(4): A(f"v_xor_b32 v{vV[i]}, {i*64}, v3")
    A(f"v_lshlrev_b32 v{vLIN}, 4, v0")
    A("v_lshrrev_b32 v1, 3, v0"); A("v_and_b32 v2, 7, v0"); A("v_lshrrev_b32 v3, 3, v0"); A("v_and_b32 v3, 2, v3"); A("v_xor_b32 v2, v2, v3")
    A("v_lshlrev_b32 v2, 4, v2")
    A(f"v_lshl_or_b32 v{vTQ[0]}, v1, 13, v2"); A(f"v_xor_b32 v{vTQ[1]}, 64, v{vTQ[0]}")
    A(f"v_mul_u32_u24 v3, 3584, v1")
    A(f"v_add_u32 v{vT1[0]}, v3, v2"); A("v_xor_b32 v2, 64, v2"); A(f"v_add_u32 v{vT1[1]}, v3, v2")
    A(f"v_mov_b32 v{vFL}, {L_LANDED}")
    A(f"s_lshl_b32 {sGB}, {sG}, 24")
    A(f"s_mul_i32 {sCUR}, {sJ}, {NS}")
    A(f"s_lshl_b32 {sCOFF}, {sG}, 8"); A(f"s_add_u32 {sCOFF}, {sCOFF}, {WS_CNT}")
    A("s_waitcnt lgkmcnt(0)")
    A(f"s_mov_b32 s40, s{pK[0]}"); A(f"s_mov_b32 s41, s{pK[1]}"); A("s_mov_b32 s42, 0x10000000"); A("s_mov_b32 s43, 0x20000")
    A(f"s_mov_b32 s44, s{pV[0]}"); A(f"s_mov_b32 s45, s{pV[1]}"); A("s_mov_b32 s46, 0x10000000"); A("s_mov_b32 s47, 0x20000")
    A(f"s_mov_b32 s52, s{pK[0]}"); A(f"s_mov_b32 s53, s{pK[1]}"); A("s_mov_b32 s54, 0"); A("s_mov_b32 s55, 0x20000")
    A("s_mov_b32 s51, 0x20000")
    A("s_barrier")
    pubgrp = (W-16)//4 - 1
    assert W in (20,24,28,32)
    def publish_prev():
        A(f"s_sub_u32 {sT0}, {sN}, 1"); A(f"s_max_i32 {sT0}, {sT0}, 0")
        A(f"v_mov_b32 v{vTMP}, {sT0}")
        A("s_mov_b64 exec, 1"); A(f"ds_write_b32 v{vFL}, v{vTMP}"); A("s_mov_b64 exec, -1")
    def throttle(i):
        if i % 4 == 3:
            A(f"s_waitcnt vmcnt({W})")
            if i//4 == pubgrp: publish_prev()
    def tile_kv(srd, voffs, pol):
        for i in range(16):
            if i % 4 == 0:
                A(f"s_add_u32 m0, {sSLOT}, {i*1024}" if i else f"s_mov_b32 m0, {sSLOT}")
                A(f"s_add_u32 {sOFF}, {sBASE}, {i*1024}")
            A(f"buffer_load_dwordx4 v{voffs[i % len(voffs)]}, {srd}, {sOFF} offen offset:{(i%4)*1024} {pol} lds")
            throttle(i)
        slot_advance()
    def tile_tall(voffs, rowstride, t, nvalid):
        for i in range(16):
            A(f"s_add_u32 m0, {sSLOT}, {i*1024}" if i else f"s_mov_b32 m0, {sSLOT}")
            A(f"s_add_u32 {sOFF}, {sBASE}, {(t*128+i*8)*rowstride}")
            A(f"buffer_load_dwordx4 v{voffs[i&1]}, {srdW if i < nvalid else srdZ}, {sOFF} offen {polw} lds")
            throttle(i)
        slot_advance()
    def tile_wide(t):
        for i in range(16):
            if i % 4 == 0:
                A(f"s_add_u32 m0, {sSLOT}, {i*1024}" if i else f"s_mov_b32 m0, {sSLOT}")
                A(f"s_add_u32 {sOFF}, {sBASE}, {t*14336+i*1024}")
            A(f"buffer_load_dwordx4 v{vLIN}, {srdW if i < 14 else srdZ}, {sOFF} offen offset:{(i%4)*1024} {polw} lds")
            throttle(i)
        slot_advance()
    def freecheck():
        ok = lab("free"); lp = lab("freepoll")
        A(f"s_add_u32 {sT1}, {sN}, 2")
        A(f"s_add_u32 {sT0}, {sKNOWN}, {NSLOT}")
        A(f"s_cmp_ge_u32 {sT0}, {sT1}"); A(f"s_cbranch_scc1 {ok}")
        E.label(lp)
        A(f"ds_read_b128 v[{vC}:{vC+3}], v{vFL} offset:16")
        A(f"s_sub_u32 {sSPIN}, {sSPIN}, 1"); A("s_cbranch_scc1 L_end")
        A("s_waitcnt lgkmcnt(0)")
        A(f"v_min3_u32 v{vC}, v{vC}, v{vC+1}, v{vC+2}"); A(f"v_min_u32 v{vC}, v{vC}, v{vC+3}")
        A(f"v_readfirstlane_b32 {sKNOWN}, v{vC}")
        A(f"s_add_u32 {sT0}, {sKNOWN}, {NSLOT}")
        A(f"s_cmp_ge_u32 {sT0}, {sT1}"); A(f"s_cbranch_scc1 {ok}")
        A("s_sleep 1")
        A(f"s_branch {lp}")
        E.label(ok)
    def setW(p, nbytes):
        A(f"s_mov_b32 s48, s{p[0]}"); A(f"s_mov_b32 s49, s{p[1]}"); A(f"s_mov_b32 s50, {nbytes}")
    A(f"s_cmp_ge_u32 {sROLE}, 4"); A("s_cbranch_scc1 L_ld_loop")
    setW(pWQ, 448*4096*2)
    A(f"s_lshl_b32 {sBASE}, {sHKV}, 10"); A(f"s_lshl_b32 {sT0}, {sB}, 2"); A(f"s_add_u32 {sT0}, {sT0}, {sROLE}"); A(f"s_lshl_b32 {sT0}, {sT0}, 7")
    A(f"s_add_u32 {sBASE}, {sBASE}, {sT0}")
    for t in range(4): tile_tall(vTQ, 8192, t, 16 if t < 3 else 8)
    E.label("L_ld_loop")
    A(f"s_cmp_lg_u32 {sCI}, {C_WO}"); A("s_cbranch_scc1 L_ld_nowo")
    setW(pWO, 4096*448*2)
    A(f"s_lshl_b32 {sT0}, {sHKV}, 4"); A(f"s_add_u32 {sT0}, {sT0}, {sJ}"); A(f"s_mul_i32 {sBASE}, {sT0}, {32*896}")
    freecheck()
    for t in range(2): tile_wide(t)
    E.label("L_ld_nowo")
    A(f"s_cmp_lg_u32 {sCI}, {C_FFN}"); A("s_cbranch_scc1 L_ld_noffn")
    A(f"s_cmp_ge_u32 {sIDX}, 28"); A("s_cbranch_scc1 L_ld_noffn")
    setW(pW1, 448*1792*2)
    A(f"s_lshl_b32 {sBASE}, {sIDX}, 7")
    for t in range(4):
        if t % 2 == 0: freecheck()
        tile_tall(vT1, 3584, t, 16 if t < 3 else 8)
    setW(pW2, 1792*448*2)
    A(f"s_mul_i32 {sBASE}, {sIDX}, {64*896}")
    for t in range(4):
        if t % 2 == 0: freecheck()
        tile_wide(t)
    E.label("L_ld_noffn")
    freecheck()
    A(f"s_add_u32 {sCI}, {sCI}, 1")
    A(f"s_cmp_lt_u32 {sCI}, {NS}"); A("s_cbranch_scc1 L_ld_noclaim")
    A(f"s_mov_b32 {sCLM}, 1"); A(f"s_atomic_add {sCLM}, {pWS}, {sCOFF} glc")
    E.label("L_ld_noclaim")
    A(f"s_lshl_b32 {sBASE}, {sCUR}, 14"); A(f"s_add_u32 {sBASE}, {sBASE}, {sGB}")
    tile_kv(srdK, vK, pol)
    tile_kv(srdV, vV, polv)
    A(f"s_add_u32 {sCUR}, {sCUR}, 1")
    A(f"s_cmp_lt_u32 {sCI}, {NS}"); A("s_cbranch_scc1 L_ld_loop")
    A("s_waitcnt lgkmcnt(0)")
    A(f"s_add_u32 {sCUR}, {sCLM}, {16*NS}")
    A(f"s_cmp_lt_u32 {sCUR}, {T}"); A("s_cbranch_scc1 L_ld_loop")
    A("s_waitcnt vmcnt(16)")
    publish_prev()
    A(f"s_or_b32 {sT0}, {sN}, 0x80000000"); A(f"v_mov_b32 v{vTMP}, {sT0}")
    A("s_waitcnt vmcnt(0)")
    A("s_mov_b64 exec, 1"); A(f"ds_write_b32 v{vFL}, v{vTMP}")
    A("s_waitcnt lgkmcnt(0)")
    A("s_endpgm")

    E.label("L_consumer")
    sW="s40"; sTAG="s41"; sM1="s[42:43]"; sM2="s[44:45]"; sC="s46"; sE="s47"; sRR="s48"; sCK=["s[50:51]","s[52:53]","s[54:55]","s[56:57]","s[58:59]","s[60:61]","s[62:63]"]
    vLANE=0; vN=1; vG4=2; vFLG=3; vCONS=4; vTM=5; vTM2=6; vTM3=7
    vM=8; vMC=9; vL=10; vMX=11
    vKB=[12,13,14,15]; vVB=[16,17,18,19]; vAD=[20,21,22,23]
    vS=24
    vP=32
    vO=36
    vQ=52
    vF=84
    NF=6
    vWO=108
    vW1=136
    vW2=192
    vX=248
    def SEL4(dst, a, b, c, d, t):
        A(f"v_cndmask_b32 v{dst}, v{a}, v{b}, {sM1}"); A(f"v_cndmask_b32 v{t}, v{c}, v{d}, {sM1}"); A(f"v_cndmask_b32 v{dst}, v{dst}, v{t}, {sM2}")
    def xrow(op, regs, tmps):
        for sw in ("v_permlane16_swap_b32","v_permlane32_swap_b32"):
            for r,t in zip(regs,tmps): A(f"v_mov_b32 v{t}, v{r}")
            for r,t in zip(regs,tmps): A(f"{sw} v{r}, v{t}")
            for r,t in zip(regs,tmps): A(f"{op} v{r}, v{r}, v{t}")
    def round_bf(dst, src):
        A(f"v_cvt_pk_bf16_f32 v{dst}, v{src}, v{src}"); A(f"v_and_b32 v{dst}, 0xffff0000, v{dst}")
    def pub_cons(adv=True):
        slot_advance()
        A(f"v_mov_b32 v{vTM}, {sN}")
        A("s_mov_b64 exec, 1"); A(f"ds_write_b32 v{vCONS}, v{vTM}"); A("s_mov_b64 exec, -1")
    def wait_tile(fin=None):
        ok = lab("have"); lp = lab("poll")
        A(f"s_cmp_gt_u32 {sKNOWN}, {sN}"); A(f"s_cbranch_scc1 {ok}")
        E.label(lp)
        A(f"ds_read_b32 v{vTM}, v{vFLG}")
        A(f"s_sub_u32 {sSPIN}, {sSPIN}, 1"); A("s_cbranch_scc1 L_end")
        A("s_waitcnt lgkmcnt(0)")
        A(f"v_readfirstlane_b32 {sT0}, v{vTM}")
        A(f"s_and_b32 {sKNOWN}, {sT0}, 0x7fffffff")
        A(f"s_cmp_gt_u32 {sKNOWN}, {sN}"); A(f"s_cbranch_scc1 {ok}")
        if fin:
            A(f"s_bitcmp1_b32 {sT0}, 31"); A(f"s_cbranch_scc1 {fin}")
        A("s_sleep 1")
        A(f"s_branch {lp}")
        E.label(ok)
    def poll(loads, tags, pre=None):
        lp = lab("gpoll")
        E.label(lp)
        for l in loads: A(l)
        A(f"s_sub_u32 {sSPIN}, {sSPIN}, 1"); A("s_cbranch_scc1 L_end")
        A("s_waitcnt vmcnt(0)")
        if pre: pre()
        k = 0; first = True
        for i in range(0, len(tags), 7):
            grp = tags[i:i+7]
            for q,t in enumerate(grp): A(f"v_cmp_ne_u32 {sCK[q]}, {sTAG}, v{t}")
            for q in range(len(grp)):
                if first: A(f"s_or_b64 vcc, {sCK[q]}, {sCK[q]}"); first = False
                else: A(f"s_or_b64 vcc, vcc, {sCK[q]}")
        A(f"s_cbranch_scc1 {lp}")
    def layernorm(xr, f, lnbase):
        s1=vTM; t=vTM2; mu=vX
        for u in range(7):
            A(f"v_lshlrev_b32 v{f+2*u}, 16, v{xr+u}"); A(f"v_and_b32 v{f+2*u+1}, 0xffff0000, v{xr+u}")
        def P(r): return f"v[{r}:{r+1}]"
        a=vX+2; b=vX+4
        A(f"v_pk_add_f32 {P(a)}, {P(f)}, {P(f+2)}"); A(f"v_pk_add_f32 {P(b)}, {P(f+4)}, {P(f+6)}")
        A(f"v_pk_add_f32 {P(a)}, {P(a)}, {P(f+8)}"); A(f"v_pk_add_f32 {P(b)}, {P(b)}, {P(f+10)}")
        A(f"v_pk_add_f32 {P(a)}, {P(a)}, {P(f+12)}"); A(f"v_pk_add_f32 {P(a)}, {P(a)}, {P(b)}")
        A(f"v_add_f32 v{s1}, v{a}, v{a+1}")
        def red32(r):
            for k in (8,4,2,1): A(f"v_add_f32_dpp v{r}, v{r}, v{r} row_ror:{k} row_mask:0xf bank_mask:0xf")
            A(f"v_mov_b32 v{t}, v{r}"); A(f"v_permlane16_swap_b32 v{r}, v{t}"); A(f"v_add_f32 v{r}, v{r}, v{t}")
        red32(s1)
        A(f"v_mul_f32 v{mu}, {INV448:#x}, v{s1}")
        A(f"v_pk_add_f32 {P(b)}, {P(f)}, {P(mu)} op_sel_hi:[1,0] neg_lo:[0,1] neg_hi:[0,1]")
        A(f"v_pk_mul_f32 {P(a)}, {P(b)}, {P(b)}")
        for u in range(1,7):
            A(f"v_pk_add_f32 {P(b)}, {P(f+2*u)}, {P(mu)} op_sel_hi:[1,0] neg_lo:[0,1] neg_hi:[0,1]")
            A(f"v_pk_fma_f32 {P(a)}, {P(b)}, {P(b)}, {P(a)}")
        A(f"v_add_f32 v{s1}, v{a}, v{a+1}")
        round_bf(mu, mu)
        red32(s1)
        for u in range(7):
            A(f"v_pk_add_f32 {P(f+2*u)}, {P(f+2*u)}, {P(mu)} op_sel_hi:[1,0] neg_lo:[0,1] neg_hi:[0,1]")
        A(f"v_mul_f32 v{s1}, {INV448:#x}, v{s1}")
        round_bf(s1, s1)
        A(f"v_add_f32 v{s1}, {EPS:#x}, v{s1}")
        round_bf(s1, s1)
        A(f"v_sqrt_f32 v{s1}, v{s1}")
        for u in range(7): A(f"v_cvt_pk_bf16_f32 v{xr+u}, v{f+2*u}, v{f+2*u+1}")
        round_bf(s1, s1)
        A(f"v_rcp_f32 v{a}, v{s1}")
        for u in range(7):
            A(f"v_lshlrev_b32 v{f+2*u}, 16, v{xr+u}"); A(f"v_and_b32 v{f+2*u+1}, 0xffff0000, v{xr+u}")
        for u in range(7): A(f"v_pk_mul_f32 {P(f+2*u)}, {P(f+2*u)}, {P(a)} op_sel_hi:[1,0]")
        for u in range(7):
            A(f"v_cvt_pk_bf16_f32 v{xr+u}, v{f+2*u}, v{f+2*u+1}")
            A(f"ds_write_b32 v{lnbase}, v{xr+u} offset:{u*128}")
    def ln_addrs(wr, rd):
        A(f"s_lshl_b32 {sT0}, {sW}, 11"); A(f"s_add_u32 {sT0}, {sT0}, {L_LN}")
        A(f"v_lshrrev_b32 v{wr}, 5, v{vLANE}"); A(f"v_mul_u32_u24 v{wr}, 896, v{wr}")
        A(f"v_and_b32 v{vTM}, 31, v{vLANE}"); A(f"v_lshl_add_u32 v{wr}, v{vTM}, 2, v{wr}"); A(f"v_add_u32 v{wr}, {sT0}, v{wr}")
        A(f"v_and_b32 v{rd}, 1, v{vLANE}"); A(f"v_mul_u32_u24 v{rd}, 896, v{rd}")
        A(f"v_lshl_add_u32 v{rd}, v{vG4}, 4, v{rd}"); A(f"v_add_u32 v{rd}, {sT0}, v{rd}")
    def tall_addr(dst):
        A(f"v_lshrrev_b32 v{vTM}, 3, v{vN}")
        A(f"v_and_b32 v{vTM2}, 1, v{vG4}"); A(f"v_lshl_or_b32 v{vTM}, v{vTM2}, 1, v{vTM}")
        A(f"v_xor_b32 v{vTM}, {sW}, v{vTM}"); A(f"v_lshlrev_b32 v{vTM}, 5, v{vTM}")
        A(f"v_and_b32 v{vTM2}, 3, v{vN}"); A(f"v_lshl_or_b32 v{vTM}, v{vTM2}, 3, v{vTM}")
        A(f"v_lshrrev_b32 v{vTM2}, 2, v{vN}"); A(f"v_lshl_or_b32 v{vTM}, v{vTM2}, 7, v{vTM}")
        A(f"v_lshl_or_b32 v{dst}, v{vG4}, 10, v{vTM}")
    def wide_addr(dst):
        A(f"v_lshrrev_b32 v{vTM}, 2, v{vN}"); A(f"v_lshl_add_u32 v{vTM}, v{vG4}, 2, v{vTM}"); A(f"v_mul_u32_u24 v{vTM}, 896, v{vTM}")
        A(f"v_and_b32 v{vTM2}, 3, v{vN}"); A(f"v_lshl_add_u32 v{vTM}, v{vTM2}, 3, v{vTM}")
        A(f"s_mul_i32 {sT0}, {sW}, 224"); A(f"v_add_u32 v{dst}, {sT0}, v{vTM}")
    def read_tall_tile(base, dstreg, t):
        wait_tile()
        A(f"v_add_u32 v{vAD[0]}, {sSLOT}, v{base}")
        for s in range(4 if t < 3 else 2):
            for h2 in range(2):
                r = dstreg + 4*(4*t+s) + 2*h2
                A(f"ds_read_b64_tr_b16 v[{r}:{r+1}], v{vAD[0]} offset:{s*4096+h2*512}")
        A("s_waitcnt lgkmcnt(0)")
        pub_cons()
    def read_wide_tile(base, dstreg, half):
        wait_tile()
        A(f"v_add_u32 v{vAD[0]}, {sSLOT}, v{base}")
        for tt in range(7):
            r = dstreg + 4*tt + 2*half
            A(f"ds_read_b64_tr_b16 v[{r}:{r+1}], v{vAD[0]} offset:{tt*32}")
        A("s_waitcnt lgkmcnt(0)")
        pub_cons()

    A(f"s_sub_u32 {sW}, {sWAVE}, 1")
    A(f"v_and_b32 v{vN}, 15, v{vLANE}"); A(f"v_lshrrev_b32 v{vG4}, 4, v{vLANE}")
    A(f"v_mov_b32 v{vFLG}, {L_LANDED}")
    A(f"s_lshl_b32 {sT0}, {sW}, 2"); A(f"s_add_u32 {sT0}, {sT0}, {L_CONS}"); A(f"v_mov_b32 v{vCONS}, {sT0}")
    A("s_mov_b32 s42, 0xffff0000"); A("s_mov_b32 s43, 0xffff0000"); A("s_mov_b32 s44, 0"); A("s_mov_b32 s45, -1")
    A(f"s_mov_b32 {sC}, {C_SCALE:#x}")
    if hilo: A("s_mov_b32 s64, 0xcccccccc"); A("s_mov_b32 s65, 0xcccccccc")
    A("s_waitcnt lgkmcnt(0)")
    A(f"s_load_dword {sE}, {pWS}, {WS_E}")
    A("s_barrier")
    A(f"v_xor_b32 v{vTM}, v{vG4}, v{vN}"); A(f"v_lshlrev_b32 v{vTM}, 4, v{vTM}"); A(f"v_lshl_or_b32 v{vTM}, v{vN}, 9, v{vTM}")
    for s in range(4): A(f"v_xor_b32 v{vKB[s]}, {s*64}, v{vTM}")
    A(f"v_lshrrev_b32 v{vTM}, 2, v{vN}"); A(f"v_lshl_add_u32 v{vTM}, v{vG4}, 2, v{vTM}")
    A(f"v_and_b32 v{vTM2}, 7, v{vTM}")
    A(f"s_lshl_b32 {sT0}, {sW}, 2"); A(f"v_xor_b32 v{vTM2}, {sT0}, v{vTM2}"); A(f"v_lshlrev_b32 v{vTM2}, 5, v{vTM2}")
    A(f"v_lshl_or_b32 v{vTM}, v{vTM}, 9, v{vTM2}")
    A(f"v_and_b32 v{vTM2}, 3, v{vN}"); A(f"v_lshl_or_b32 v{vTM}, v{vTM2}, 3, v{vTM}")
    for e in range(4): A(f"v_xor_b32 v{vVB[e]}, {e*32}, v{vTM}")
    A(f"v_mov_b32 v{vM}, 0xff800000"); A(f"v_mov_b32 v{vMC}, 0xff800000"); A(f"v_mov_b32 v{vL}, 0")
    for i in range(16): A(f"v_mov_b32 v{vO+i}, 0")
    A(f"s_cmp_ge_u32 {sROLE}, 4")
    A("s_cbranch_scc1 L_q_wait")
    xr = vWO; f14 = vWO+8; vLW = vWO+24; vLR = vWO+25; vTA = vWO+26
    A(f"v_lshrrev_b32 v{vTM}, 5, v{vLANE}"); A(f"v_mul_u32_u24 v{vTM}, 896, v{vTM}")
    A(f"v_and_b32 v{vTM2}, 31, v{vLANE}"); A(f"v_lshl_add_u32 v{vTM}, v{vTM2}, 2, v{vTM}")
    for u in range(7): A(f"global_load_dword v{xr+u}, v{vTM}, {pX} offset:{u*128}")
    A(f"s_or_b32 {sT0}, {sROLE}, {sW}"); A(f"s_cmp_lg_u32 {sT0}, 0"); A("s_cbranch_scc1 L_noinit")
    A(f"s_lshl_b32 {sT0}, {sG}, 8"); A(f"s_add_u32 {sT0}, {sT0}, {WS_CNT}")
    A(f"v_mov_b32 v{vTM2}, {sT0}"); A(f"v_mov_b32 v{vTM3}, 0")
    A("s_mov_b64 exec, 1"); A(f"global_store_dword v{vTM2}, v{vTM3}, {pWS} sc1"); A("s_mov_b64 exec, -1")
    E.label("L_noinit")
    ln_addrs(vLW, vLR)
    tall_addr(vTA)
    A("s_waitcnt vmcnt(0) lgkmcnt(0)")
    layernorm(xr, f14, vLW)
    A("s_waitcnt lgkmcnt(0)")
    for s in range(14): A(f"ds_read_b128 v[{vW2+4*s}:{vW2+4*s+3}], v{vLR} offset:{s*64}")
    for t in range(4):
        read_tall_tile(vTA, vW1, t)
        for s in range(4*t, min(4*t+4, 14)):
            A(f"v_mfma_f32_16x16x32_bf16 v[{vS}:{vS+3}], v[{vW2+4*s}:{vW2+4*s+3}], v[{vW1+4*s}:{vW1+4*s+3}], {'0' if s==0 else f'v[{vS}:{vS+3}]'}")
    A(f"s_lshl_b32 {sT0}, {sB}, 2"); A(f"s_add_u32 {sT0}, {sT0}, {sROLE}"); A(f"s_lshl_b32 {sT0}, {sT0}, 2"); A(f"s_add_u32 {sT0}, {sT0}, {sW}")
    A(f"s_lshl_b32 {sT0}, {sT0}, 6"); A(f"s_lshl_b32 {sT1}, {sHKV}, 11"); A(f"s_add_u32 {sT0}, {sT0}, {sT1}"); A(f"s_add_u32 {sT0}, {sT0}, {WS_Q}")
    A(f"v_lshlrev_b32 v{vTM3}, 2, v{vN}"); A(f"v_lshl_add_u32 v{vTM3}, v{vG4}, 14, v{vTM3}"); A(f"v_add_u32 v{vTM3}, {sT0}, v{vTM3}")
    A(f"s_mul_i32 {sTAG}, {sE}, 0x9e3779b1"); A(f"s_add_u32 {sTAG}, {sTAG}, 0x7f4a7c15")
    A(f"v_cndmask_b32 v{vTM}, v{vS}, v{vS+1}, {sM1}")
    A(f"v_mov_b32_dpp v{vTM2}, v{vTM} quad_perm:[1,0,3,2] row_mask:0xf bank_mask:0xf")
    A(f"v_mov_b32 v{vX+1}, {sTAG}")
    A(f"v_cvt_pk_bf16_f32 v{vX}, v{vTM}, v{vTM2}")
    A("s_mov_b64 exec, 0x55555555")
    A(f"global_store_dwordx2 v{vTM3}, v[{vX}:{vX+1}], {pWS} sc1")
    A("s_mov_b64 exec, -1")
    stamp(1)
    E.label("L_q_wait")
    A("s_waitcnt lgkmcnt(0)")
    A(f"s_mul_i32 {sTAG}, {sE}, 0x9e3779b1"); A(f"s_add_u32 {sTAG}, {sTAG}, 0x7f4a7c15")
    A(f"s_lshl_b32 {sT0}, {sG}, 11"); A(f"s_add_u32 {sT0}, {sT0}, {WS_Q}")
    A(f"v_lshlrev_b32 v{vTM3}, 4, v{vLANE}"); A(f"v_add_u32 v{vTM3}, {sT0}, v{vTM3}")
    poll([f"global_load_dwordx4 v[{vF}:{vF+3}], v{vTM3}, {pWS} sc1", f"global_load_dwordx4 v[{vF+4}:{vF+7}], v{vTM3}, {pWS} offset:1024 sc1"],
         [vF+1, vF+3, vF+5, vF+7])
    A(f"s_lshl_b32 {sT0}, {sW}, 10"); A(f"s_add_u32 {sT0}, {sT0}, {L_QW}")
    A(f"v_mov_b32 v{vF+1}, v{vF+2}"); A(f"v_mov_b32 v{vF+5}, v{vF+6}")
    A(f"v_lshlrev_b32 v{vTM}, 3, v{vLANE}"); A(f"v_add_u32 v{vTM}, {sT0}, v{vTM}")
    A(f"ds_write_b64 v{vTM}, v[{vF}:{vF+1}]"); A(f"ds_write_b64 v{vTM}, v[{vF+4}:{vF+5}] offset:512")
    A(f"v_and_b32 v{vTM2}, 1, v{vLANE}"); A(f"v_lshlrev_b32 v{vTM2}, 9, v{vTM2}"); A(f"v_lshl_add_u32 v{vTM2}, v{vG4}, 4, v{vTM2}"); A(f"v_add_u32 v{vTM2}, {sT0}, v{vTM2}")
    A("s_waitcnt lgkmcnt(0)")
    for s in range(8): A(f"ds_read_b128 v[{vQ+4*s}:{vQ+4*s+3}], v{vTM2} offset:{s*64}")
    stamp(2)
    A("s_waitcnt lgkmcnt(0)")
    E.label("L_loop")
    A(f"s_cmp_lg_u32 {sCI}, {C_WO}"); A("s_cbranch_scc1 L_nowo")
    wide_addr(vX)
    for h in range(2): read_wide_tile(vX, vWO, h)
    E.label("L_nowo")
    A(f"s_cmp_lg_u32 {sCI}, {C_FFN}"); A("s_cbranch_scc1 L_noffn")
    A(f"s_cmp_ge_u32 {sIDX}, 28"); A("s_cbranch_scc1 L_noffn")
    tall_addr(vX)
    for t in range(4): read_tall_tile(vX, vW1, t)
    wide_addr(vX)
    for t in range(4): read_wide_tile(vX, vW2 + 28*(t>>1), t & 1)
    E.label("L_noffn")
    A(f"s_add_u32 {sCI}, {sCI}, 1")
    wait_tile("L_fin")
    for s in range(4): A(f"v_add_u32 v{vAD[s]}, {sSLOT}, v{vKB[s]}")
    seq = [(t,s) for s in range(8) for t in range(2)]
    def kread(i):
        t,s = seq[i]; r = vF + 4*(i % NF)
        A(f"ds_read_b128 v[{r}:{r+3}], v{vAD[s&3]} offset:{(s>>2)*256 + t*8192}")
    for i in range(NF): kread(i)
    for i in range(16):
        t,s = seq[i]; r = vF + 4*(i % NF)
        A(f"s_waitcnt lgkmcnt({min(NF-1, 15-i)})")
        d = f"v[{vS+4*t}:{vS+4*t+3}]"
        A(f"v_mfma_f32_16x16x32_bf16 {d}, v[{r}:{r+3}], v[{vQ+4*s}:{vQ+4*s+3}], {'0' if s==0 else d}")
        if i + NF < 16: kread(i+NF)
    pub_cons()
    for i in range(4): A(f"v_cvt_pk_bf16_f32 v{vP+i}, v{vS+2*i}, v{vS+2*i+1}")
    for i in range(4):
        A(f"v_lshlrev_b32 v{vS+2*i}, 16, v{vP+i}"); A(f"v_and_b32 v{vS+2*i+1}, 0xffff0000, v{vP+i}")
    A(f"v_max3_f32 v{vMX}, v{vS}, v{vS+1}, v{vS+2}"); A(f"v_max3_f32 v{vTM}, v{vS+3}, v{vS+4}, v{vS+5}")
    A(f"v_max3_f32 v{vMX}, v{vMX}, v{vS+6}, v{vS+7}"); A(f"v_max_f32 v{vMX}, v{vMX}, v{vTM}")
    xrow("v_max_f32", [vMX], [vTM])
    A(f"v_cmp_gt_f32 vcc, v{vMX}, v{vM}")
    A("s_cmp_lg_u64 vcc, 0"); A("s_cbranch_scc1 L_rescale")
    E.label("L_rescaled")
    for i in range(8): A(f"v_fma_f32 v{vS+i}, v{vS+i}, {sC}, -v{vMC}")
    for i in range(8): A(f"v_exp_f32 v{vS+i}, v{vS+i}")
    for i in range(4): A(f"v_cvt_pk_bf16_f32 v{vP+i}, v{vS+2*i}, v{vS+2*i+1}")
    if hilo:
        for i in range(4):
            A(f"v_lshlrev_b32 v{vF+16}, 16, v{vP+i}"); A(f"v_and_b32 v{vF+17}, 0xffff0000, v{vP+i}")
            A(f"v_sub_f32 v{vF+16}, v{vS+2*i}, v{vF+16}"); A(f"v_sub_f32 v{vF+17}, v{vS+2*i+1}, v{vF+17}")
            A(f"v_cvt_pk_bf16_f32 v{vF+16}, v{vF+16}, v{vF+17}")
            A(f"v_cndmask_b32 v{vP+i}, v{vP+i}, v{vF+16}, s[64:65]")
    A(f"v_add_f32 v{vTM}, v{vS}, v{vS+1}"); A(f"v_add_f32 v{vTM2}, v{vS+2}, v{vS+3}")
    A(f"v_add_f32 v{vTM3}, v{vS+4}, v{vS+5}"); A(f"v_add_f32 v{vMX}, v{vS+6}, v{vS+7}")
    A(f"v_add_f32 v{vTM}, v{vTM}, v{vTM2}"); A(f"v_add_f32 v{vTM3}, v{vTM3}, v{vMX}")
    A(f"v_add_f32 v{vL}, v{vL}, v{vTM}"); A(f"v_add_f32 v{vL}, v{vL}, v{vTM3}")
    wait_tile()
    for e in range(4): A(f"v_add_u32 v{vAD[e]}, {sSLOT}, v{vVB[e]}")
    for e in range(4):
        for h2 in range(2):
            r = vF + 4*e + 2*h2
            A(f"ds_read_b64_tr_b16 v[{r}:{r+1}], v{vAD[e]} offset:{h2*8192}")
    for e in range(4):
        A(f"s_waitcnt lgkmcnt({6-2*e})")
        A(f"v_mfma_f32_16x16x32_bf16 v[{vO+4*e}:{vO+4*e+3}], v[{vP}:{vP+3}], v[{vF+4*e}:{vF+4*e+3}], v[{vO+4*e}:{vO+4*e+3}]")
    pub_cons()
    A("s_branch L_loop")
    E.label("L_rescale")
    A(f"v_max_f32 v{vM}, v{vM}, v{vMX}")
    A(f"v_mul_f32 v{vTM}, {sC}, v{vM}")
    A(f"v_sub_f32 v{vTM2}, v{vMC}, v{vTM}")
    A(f"v_mov_b32 v{vMC}, v{vTM}")
    A(f"v_exp_f32 v{vTM2}, v{vTM2}")
    A(f"v_mul_f32 v{vL}, v{vL}, v{vTM2}")
    A(f"v_mov_b32_dpp v{vTM}, v{vTM2} quad_perm:[0,0,2,2] row_mask:0xf bank_mask:0xf")
    A(f"v_mov_b32_dpp v{vTM3}, v{vTM2} quad_perm:[1,1,3,3] row_mask:0xf bank_mask:0xf")
    for i in range(16): A(f"v_mul_f32 v{vO+i}, v{vO+i}, v{vTM if i%2==0 else vTM3}")
    A("s_branch L_rescaled")

    E.label("L_fin")
    stamp(3)
    vG=vF; vI=vF+4
    vAA=vQ; vAI=vQ+1; vBA=vQ+2; vBA2=vQ+3; vXH=vQ+4; vA=vQ+8; vD=vQ+12
    vD=vW1 if False else None
    xrow("v_add_f32", [vL], [vTM])
    if hilo:
        for e in range(4):
            for h in range(2): A(f"v_add_f32 v{vO+4*e+h}, v{vO+4*e+h}, v{vO+4*e+2+h}")
    A(f"s_lshl_b32 {sT0}, {sG}, 4"); A(f"s_lshl_b32 {sT1}, {sW}, 1"); A(f"s_add_u32 {sT0}, {sT0}, {sT1}"); A(f"s_lshl_b32 {sT0}, {sT0}, 4")
    A(f"s_add_u32 {sT0}, {sT0}, {sJ}"); A(f"s_lshl_b32 {sT0}, {sT0}, 8"); A(f"s_add_u32 {sT0}, {sT0}, {WS_A}")
    A(f"v_log_f32 v{vTM2}, v{vL}"); A(f"v_rcp_f32 v{vTM3}, v{vL}")
    A(f"v_lshrrev_b32 v{vAA}, 1, v{vG4}"); A(f"v_lshlrev_b32 v{vAA}, 15, v{vAA}")
    A(f"v_and_b32 v{vTM}, 1, v{vG4}"); A(f"v_lshl_or_b32 v{vAA}, v{vTM}, 12, v{vAA}"); A(f"v_lshl_or_b32 v{vAA}, v{vN}, 4, v{vAA}")
    A(f"v_add_u32 v{vAA}, {sT0}, v{vAA}")
    A(f"v_add_f32 v{vTM2}, v{vMC}, v{vTM2}")
    SEL4(vG, vO+0, vO+8, vO+1, vO+9, vMX)
    SEL4(vG+1, vO+4, vO+12, vO+5, vO+13, vMX)
    A(f"v_mov_b32_dpp v{vTM}, v{vTM3} quad_perm:[0,0,2,2] row_mask:0x3 bank_mask:0xf")
    A(f"v_mov_b32_dpp v{vG+2}, v{vTM2} quad_perm:[0,0,2,2] row_mask:0x3 bank_mask:0xf")
    A(f"v_mov_b32 v{vG+3}, {sTAG}")
    A(f"v_mov_b32_dpp v{vTM}, v{vTM3} quad_perm:[1,1,3,3] row_mask:0xc bank_mask:0xf")
    A(f"v_mov_b32_dpp v{vG+2}, v{vTM2} quad_perm:[1,1,3,3] row_mask:0xc bank_mask:0xf")
    A(f"v_mul_f32 v{vG}, v{vG}, v{vTM}"); A(f"v_mul_f32 v{vG+1}, v{vG+1}, v{vTM}")
    A(f"global_store_dwordx4 v{vAA}, v[{vG}:{vG+3}], {pWS} sc1")
    stamp(4)
    A(f"s_lshl_b32 {sT0}, {sWG}, 12"); A(f"s_add_u32 {sT0}, {sT0}, {WS_A}")
    A(f"v_lshlrev_b32 v{vAI}, 4, v{vN}"); A(f"v_lshl_or_b32 v{vAI}, v{vG4}, 10, v{vAI}"); A(f"v_add_u32 v{vAI}, {sT0}, v{vAI}")
    A(f"s_mul_i32 {sT0}, {sB}, 28"); A(f"s_mul_i32 {sT1}, {sW}, 7"); A(f"s_add_u32 {sT0}, {sT0}, {sT1}"); A(f"s_lshl_b32 {sT0}, {sT0}, 7")
    A(f"s_and_b32 {sT1}, {sWG}, 127"); A(f"s_add_u32 {sT0}, {sT0}, {sT1}"); A(f"s_lshl_b32 {sT0}, {sT0}, 7"); A(f"s_add_u32 {sT0}, {sT0}, {WS_B}")
    A(f"v_lshlrev_b32 v{vBA}, 3, v{vN}"); A(f"v_lshl_or_b32 v{vBA}, v{vG4}, 14, v{vBA}"); A(f"v_add_u32 v{vBA}, {sT0}, v{vBA}")
    A(f"v_add_u32 v{vBA2}, 0x10000, v{vBA}")
    A(f"s_sub_u32 {sT0}, {sROLE}, 4"); A(f"s_lshl_b32 {sRR}, {sG}, 2"); A(f"s_add_u32 {sRR}, {sRR}, {sT0}")
    A(f"s_cmp_lt_u32 {sT0}, 4"); A(f"s_cselect_b32 {sRR}, {sRR}, 99")
    A(f"s_min_u32 {sT0}, {sRR}, 55"); A(f"s_lshl_b32 {sT0}, {sT0}, 5")
    A(f"v_and_b32 v{vTM}, 7, v{vLANE}"); A(f"v_lshl_add_u32 v{vTM}, v{vTM}, 2, {sT0}")
    A(f"global_load_dword v{vXH}, v{vTM}, {pX}")
    poll([f"global_load_dwordx4 v[{vI+4*i}:{vI+4*i+3}], v{vAI}, {pWS} offset:{i*256} sc1" for i in range(4)], [vI+4*i+3 for i in range(4)])
    stamp(5)
    A(f"v_max3_f32 v{vMX}, v{vI+2}, v{vI+6}, v{vI+10}"); A(f"v_max_f32 v{vMX}, v{vMX}, v{vI+14}")
    xrow("v_max_f32", [vMX], [vTM])
    for i in range(4): A(f"v_sub_f32 v{vI+4*i+2}, v{vI+4*i+2}, v{vMX}")
    for i in range(4): A(f"v_exp_f32 v{vI+4*i+2}, v{vI+4*i+2}")
    sa=vS; sb=vS+1; sw=vS+2
    A(f"v_mul_f32 v{sa}, v{vI}, v{vI+2}"); A(f"v_mul_f32 v{sb}, v{vI+1}, v{vI+2}"); A(f"v_add_f32 v{sw}, v{vI+2}, v{vI+6}")
    for i in range(1,4):
        A(f"v_fmac_f32 v{sa}, v{vI+4*i}, v{vI+4*i+2}"); A(f"v_fmac_f32 v{sb}, v{vI+4*i+1}, v{vI+4*i+2}")
        if i > 1: A(f"v_add_f32 v{sw}, v{sw}, v{vI+4*i+2}")
    xrow("v_add_f32", [sw, sa, sb], [vS+3, vS+4, vS+5])
    A(f"v_rcp_f32 v{sw}, v{sw}")
    A(f"v_mul_f32 v{sa}, v{sa}, v{sw}"); A(f"v_mul_f32 v{sb}, v{sb}, v{sw}")
    A(f"v_mov_b32_dpp v{vS+3}, v{sa} quad_perm:[1,0,3,2] row_mask:0xf bank_mask:0xf")
    A(f"v_mov_b32_dpp v{vS+4}, v{sb} quad_perm:[1,0,3,2] row_mask:0xf bank_mask:0xf")
    A(f"v_cvt_pk_bf16_f32 v{sa}, v{sa}, v{vS+3}"); A(f"v_cvt_pk_bf16_f32 v{sb}, v{sb}, v{vS+4}")
    for g in range(4):
        for i in range(4):
            A(f"v_mov_b32_dpp v{vA+i}, v{sa if i < 2 else sb} row_newbcast:{4*g + 2*(i&1)} row_mask:{1<<g:#x} bank_mask:0xf")
    vY = vO
    yreg = [vO, vO+4, vO+8, vO+12, vQ+12, vQ+16, vQ+20]
    for t in range(7):
        A(f"v_mfma_f32_16x16x32_bf16 v[{yreg[t]}:{yreg[t]+3}], v[{vA}:{vA+3}], v[{vWO+4*t}:{vWO+4*t+3}], 0")
    A(f"v_mov_b32 v{vG+1}, {sTAG}"); A(f"v_mov_b32 v{vG+3}, {sTAG}")
    SEL4(vG, yreg[0], yreg[1], yreg[2], yreg[3], vMX)
    A(f"global_store_dwordx2 v{vBA}, v[{vG}:{vG+1}], {pWS} sc1")
    A(f"v_cndmask_b32 v{vG+2}, v{yreg[4]}, v{yreg[5]}, {sM1}"); A(f"v_cndmask_b32 v{vG+2}, v{vG+2}, v{yreg[6]}, {sM2}")
    A("s_mov_b32 exec_hi, 0xffff")
    A(f"global_store_dwordx2 v{vBA2}, v[{vG+2}:{vG+3}], {pWS} sc1")
    A("s_mov_b64 exec, -1")
    stamp(6)
    A(f"s_cmp_lt_u32 {sIDX}, 28"); A("s_cbranch_scc1 L_ffn")
    A(f"s_cmp_ge_u32 {sRR}, 56"); A("s_cbranch_scc1 L_done")
    A(f"s_lshl_b32 {sT0}, {sRR}, 14"); A(f"s_lshl_b32 {sT1}, {sW}, 12"); A(f"s_add_u32 {sT0}, {sT0}, {sT1}"); A(f"s_add_u32 {sT0}, {sT0}, {WS_B}")
    A(f"v_lshl_add_u32 v{vAI}, v{vLANE}, 4, {sT0}")
    A(f"s_lshl_b32 {sT0}, {sW}, 6"); A(f"s_add_u32 {sT0}, {sT0}, {L_RED}")
    A(f"v_and_b32 v{vTM}, 7, v{vLANE}"); A(f"v_lshl_add_u32 v{vAA}, v{vTM}, 3, {sT0}")
    A(f"v_lshlrev_b32 v{vBA}, 3, v{vTM}"); A(f"v_add_u32 v{vBA2}, {L_RED}, v{vBA}")
    A(f"s_lshl_b32 {sT0}, {sRR}, 6"); A(f"s_add_u32 {sT0}, {sT0}, {WS_H}"); A(f"v_add_u32 v{vBA}, {sT0}, v{vBA}")
    def red_inbox(nld, lastmask=None):
        loads=[]
        for i in range(nld):
            l = f"global_load_dwordx4 v[{vI+4*i}:{vI+4*i+3}], v{vAI}, {pWS} offset:{i*1024} sc1"
            loads.append(l)
        return loads
    def sum_inbox():
        A(f"v_add_f32 v{sa}, v{vI}, v{vI+4}"); A(f"v_add_f32 v{sb}, v{vI+2}, v{vI+6}")
        A(f"v_add_f32 v{vS+2}, v{vI+8}, v{vI+12}"); A(f"v_add_f32 v{vS+3}, v{vI+10}, v{vI+14}")
        A(f"v_add_f32 v{sa}, v{sa}, v{vS+2}"); A(f"v_add_f32 v{sb}, v{sb}, v{vS+3}")
        A(f"v_add_f32_dpp v{sa}, v{sa}, v{sa} row_ror:8 row_mask:0xf bank_mask:0xf")
        A(f"v_add_f32_dpp v{sb}, v{sb}, v{sb} row_ror:8 row_mask:0xf bank_mask:0xf")
        xrow("v_add_f32", [sa, sb], [vS+2, vS+3])
    poll(red_inbox(4), [vI+4*i+k for i in range(4) for k in (1,3)])
    stamp(7)
    sum_inbox()
    A("s_mov_b64 exec, 0xff"); A(f"ds_write_b64 v{vAA}, v[{sa}:{sb}]"); A("s_mov_b64 exec, -1")
    A("s_waitcnt lgkmcnt(0)"); A("s_barrier")
    A(f"s_cmp_lg_u32 {sW}, 0"); A("s_cbranch_scc1 L_done")
    for i in range(4): A(f"ds_read_b64 v[{vI+2*i}:{vI+2*i+1}], v{vBA2} offset:{i*64}")
    A(f"v_lshlrev_b32 v{vTM2}, 16, v{vXH}"); A(f"v_and_b32 v{vTM3}, 0xffff0000, v{vXH}")
    A(f"v_mov_b32 v{vG+1}, {sTAG}")
    A("s_waitcnt lgkmcnt(0)")
    A(f"v_pk_add_f32 v[{vI}:{vI+1}], v[{vI}:{vI+1}], v[{vI+2}:{vI+3}]"); A(f"v_pk_add_f32 v[{vI+4}:{vI+5}], v[{vI+4}:{vI+5}], v[{vI+6}:{vI+7}]")
    A(f"v_pk_add_f32 v[{vI}:{vI+1}], v[{vI}:{vI+1}], v[{vI+4}:{vI+5}]")
    A(f"v_cvt_pk_bf16_f32 v{vTM}, v{vI}, v{vI+1}")
    A(f"v_lshlrev_b32 v{vI}, 16, v{vTM}"); A(f"v_and_b32 v{vI+1}, 0xffff0000, v{vTM}")
    A(f"v_add_f32 v{vI}, v{vI}, v{vTM2}"); A(f"v_add_f32 v{vI+1}, v{vI+1}, v{vTM3}")
    A(f"v_cvt_pk_bf16_f32 v{vG}, v{vI}, v{vI+1}")
    A("s_mov_b64 exec, 0xff"); A(f"global_store_dwordx2 v{vBA}, v[{vG}:{vG+1}], {pWS} sc1"); A("s_mov_b64 exec, -1")
    stamp(8)
    A(f"s_lshl_b32 {sT0}, {sRR}, 12"); A(f"s_add_u32 {sT0}, {sT0}, {WS_D}")
    A(f"v_lshl_add_u32 v{vAI}, v{vLANE}, 4, {sT0}")
    A(f"v_lshlrev_b32 v{vTM2}, 16, v{vG}"); A(f"v_and_b32 v{vTM3}, 0xffff0000, v{vG}")
    A(f"v_mov_b32 v{vI+12}, 0"); A(f"v_mov_b32 v{vI+13}, {sTAG}"); A(f"v_mov_b32 v{vI+14}, 0"); A(f"v_mov_b32 v{vI+15}, {sTAG}")
    A(f"s_lshl_b32 {sT0}, {sRR}, 5"); A(f"v_and_b32 v{vTM}, 7, v{vLANE}"); A(f"v_lshl_add_u32 v{vAA}, v{vTM}, 2, {sT0}")
    ld = red_inbox(4)
    ld[3] = "s_mov_b32 exec_hi, 0\n" + ld[3] + "\ns_mov_b32 exec_hi, -1"
    poll(ld, [vI+4*i+k for i in range(4) for k in (1,3)])
    stamp(9)
    sum_inbox()
    A(f"v_cvt_pk_bf16_f32 v{vTM}, v{sa}, v{sb}")
    A(f"v_lshlrev_b32 v{sa}, 16, v{vTM}"); A(f"v_and_b32 v{sb}, 0xffff0000, v{vTM}")
    A(f"v_add_f32 v{sa}, v{sa}, v{vTM2}"); A(f"v_add_f32 v{sb}, v{sb}, v{vTM3}")
    A(f"v_cvt_pk_bf16_f32 v{vTM}, v{sa}, v{sb}")
    A("s_mov_b64 exec, 0xff"); A(f"global_store_dword v{vAA}, v{vTM}, {pOUT}")
    A(f"s_cmp_lg_u32 {sRR}, 0"); A("s_cbranch_scc1 L_done")
    A(f"s_add_u32 {sT0}, {sE}, 1"); A(f"v_mov_b32 v{vTM2}, {sT0}"); A(f"v_mov_b32 v{vTM3}, {WS_E}")
    A("s_mov_b64 exec, 1"); A(f"global_store_dword v{vTM3}, v{vTM2}, {pWS} sc1")
    if enc:
        A("s_memrealtime s[90:91]"); A("s_waitcnt lgkmcnt(0)")
        A(f"s_sub_u32 {sT0}, s{70+2*enc[1]}, s{70+2*enc[0]}"); A(f"s_lshl_b32 {sT0}, {sT0}, 2"); A(f"s_min_u32 {sT0}, {sT0}, 100000")
        E.label("L_enc")
        A("s_memrealtime s[94:95]"); A("s_waitcnt lgkmcnt(0)")
        A(f"s_sub_u32 {sT1}, s94, s90"); A(f"s_cmp_lt_u32 {sT1}, {sT0}"); A("s_cbranch_scc1 L_enc")
    A("s_branch L_done")
    E.label("L_ffn")
    hr = vQ+24; f14 = vO; vLW = vQ; vLR = vQ+1; vAW = vQ+2; vAR = vQ+3; vDA = vQ+5
    ln_addrs(vLW, vLR)
    A(f"v_lshrrev_b32 v{vAI+5}, 5, v{vLANE}"); A(f"v_mul_u32_u24 v{vAI+5}, 1792, v{vAI+5}")
    A(f"v_and_b32 v{vTM}, 31, v{vLANE}"); A(f"v_lshl_add_u32 v{vAI+5}, v{vTM}, 3, v{vAI+5}"); A(f"v_add_u32 v{vAI+5}, {WS_H}, v{vAI+5}")
    vHA = vAI+5
    A(f"s_lshl_b32 {sT0}, {sW}, 5"); A(f"s_add_u32 {sT0}, {sT0}, {L_ACT}")
    A(f"v_lshlrev_b32 v{vAW}, 7, v{vG4}"); A(f"v_lshl_add_u32 v{vAW}, v{vN}, 1, v{vAW}"); A(f"v_add_u32 v{vAW}, {sT0}, v{vAW}")
    A(f"v_and_b32 v{vAR}, 1, v{vLANE}"); A(f"v_lshlrev_b32 v{vAR}, 7, v{vAR}"); A(f"v_lshl_add_u32 v{vAR}, v{vG4}, 3, v{vAR}"); A(f"v_add_u32 v{vAR}, {L_ACT}, v{vAR}")
    A(f"s_mul_i32 {sT0}, {sW}, 7"); A(f"s_lshl_b32 {sT0}, {sT0}, 5"); A(f"s_add_u32 {sT0}, {sT0}, {sIDX}"); A(f"s_lshl_b32 {sT0}, {sT0}, 7"); A(f"s_add_u32 {sT0}, {sT0}, {WS_D}")
    A(f"v_and_b32 v{vTM}, 1, v{vG4}"); A(f"v_mul_u32_u24 v{vTM}, 28, v{vTM}"); A(f"v_lshrrev_b32 v{vTM2}, 1, v{vG4}"); A(f"v_add_u32 v{vTM}, v{vTM}, v{vTM2}")
    A(f"v_lshlrev_b32 v{vTM}, 12, v{vTM}"); A(f"v_lshl_add_u32 v{vTM}, v{vN}, 3, v{vTM}"); A(f"v_add_u32 v{vDA}, {sT0}, v{vTM}")
    poll([f"global_load_dwordx2 v[{vF+2*u}:{vF+2*u+1}], v{vHA}, {pWS} offset:{u*256} sc1" for u in range(7)], [vF+2*u+1 for u in range(7)])
    stamp(7)
    for u in range(7): A(f"v_mov_b32 v{hr+u}, v{vF+2*u}")
    layernorm(hr, f14, vLW)
    A("s_waitcnt lgkmcnt(0)")
    seq = list(range(14))
    def aread(i):
        r = vF + 4*(i % NF); A(f"ds_read_b128 v[{r}:{r+3}], v{vLR} offset:{i*64}")
    for i in range(NF): aread(i)
    for i in range(14):
        r = vF + 4*(i % NF)
        A(f"s_waitcnt lgkmcnt({min(NF-1, 13-i)})")
        A(f"v_mfma_f32_16x16x32_bf16 v[{vS}:{vS+3}], v[{r}:{r+3}], v[{vW1+4*i}:{vW1+4*i+3}], {'0' if i==0 else f'v[{vS}:{vS+3}]'}")
        if i + NF < 14: aread(i+NF)
    A(f"v_cndmask_b32 v{vTM}, v{vS}, v{vS+1}, {sM1}")
    round_bf(vTM, vTM)
    A(f"v_mul_f32 v{vTM2}, {(LOG2E | 0x80000000):#x}, v{vTM}")
    A(f"v_exp_f32 v{vTM2}, v{vTM2}")
    A(f"v_add_f32 v{vTM2}, 1.0, v{vTM2}")
    A(f"v_rcp_f32 v{vTM2}, v{vTM2}")
    A(f"v_mul_f32 v{vTM}, v{vTM}, v{vTM2}")
    A(f"v_cvt_pk_bf16_f32 v{vTM}, v{vTM}, v{vTM}")
    A("s_mov_b32 exec_hi, 0"); A(f"ds_write_b16 v{vAW}, v{vTM}"); A("s_mov_b32 exec_hi, -1")
    A("s_waitcnt lgkmcnt(0)"); A("s_barrier")
    for ks in range(2):
        for h2 in range(2):
            r = vF + 4*ks + 2*h2
            A(f"ds_read_b64 v[{r}:{r+1}], v{vAR} offset:{ks*64+h2*32}")
    zreg = [vW1+4*t for t in range(7)]
    for ks in range(2):
        A(f"s_waitcnt lgkmcnt({2-2*ks})")
        for t in range(7):
            d = f"v[{zreg[t]}:{zreg[t]+3}]"
            A(f"v_mfma_f32_16x16x32_bf16 {d}, v[{vF+4*ks}:{vF+4*ks+3}], v[{vW2+28*ks+4*t}:{vW2+28*ks+4*t+3}], {'0' if ks==0 else d}")
    for u in range(4):
        A(f"v_mov_b32 v{vO+2*u+1}, {sTAG}")
        if u: A(f"v_add_u32 v{vDA+u}, {u*8192}, v{vDA}")
    for u in range(4):
        if u < 3: SEL4(vO+2*u, zreg[2*u], zreg[2*u]+1, zreg[2*u+1], zreg[2*u+1]+1, vMX)
        else:
            A(f"v_cndmask_b32 v{vO+2*u}, v{zreg[6]}, v{zreg[6]+1}, {sM1}"); A("s_mov_b32 exec_hi, 0")
        A(f"global_store_dwordx2 v{vDA+u}, v[{vO+2*u}:{vO+2*u+1}], {pWS} sc1")
    stamp(8)
    E.label("L_done")
    if diag:
        stamp(10)
        A("s_mov_b64 exec, -1")
        A(f"s_lshl_b32 {sT0}, {sWG}, 2"); A(f"s_add_u32 {sT0}, {sT0}, {sW}"); A(f"s_lshl_b32 {sT0}, {sT0}, 7"); A(f"s_add_u32 {sT0}, {sT0}, {WS_ST}")
        A("s_getreg_b32 s92, hwreg(HW_REG_XCC_ID)")
        A("s_waitcnt lgkmcnt(0)")
        A(f"v_mov_b32 v{vTM}, {sT0}")
        A("s_mov_b64 exec, 1")
        for k in range(11):
            A(f"v_mov_b32 v{vF+k}, s{70+2*k}")
        A(f"v_mov_b32 v{vF+11}, s92"); A(f"v_mov_b32 v{vF+12}, {sN}"); A(f"v_mov_b32 v{vF+13}, {sROLE}"); A(f"v_mov_b32 v{vF+14}, {sSPIN}"); A(f"v_mov_b32 v{vF+15}, {sIDX}")
        for q in range(4): A(f"global_store_dwordx4 v{vTM}, v[{vF+4*q}:{vF+4*q+3}], {pWS} offset:{q*16}")
        if diag == 2:
            A(f"v_mov_b32 v{vTM2}, 0")
            for slot,(k,inv) in enumerate([(0,1),(0,0),(2,0),(3,1),(3,0),(5,0),(6,0),(10,0)]):
                A(f"s_not_b32 {sT1}, s{70+2*k}" if inv else f"s_mov_b32 {sT1}, s{70+2*k}")
                A(f"v_mov_b32 v{vTM3}, {sT1}")
                A(f"global_atomic_umax v{vTM2}, v{vTM3}, s[22:23] offset:{slot*4}")
    E.label("L_end")
    A("s_endpgm")

    body = E.finish()
    head = open("sequential_preLN__gqa_block_cached__dense_activation_silu__decode.s.ref").read().split("; Override launch")[0]
    src = head + f"""; One persistent launch: 256 workgroups (one per CU), wave 0 streams K/V into an LDS ring, waves 1-4 compute.
; @launch grid=(256,1,1) block=(320,1,1) lds={LDS}
.amdgcn_target "amdgcn-amd-amdhsa--gfx950"
.text
.globl {NAME}
.p2align 8
.type {NAME},@function
{NAME}:
{body}.section .rodata,"a"
.p2align 6
.amdhsa_kernel {NAME}
  .amdhsa_next_free_vgpr 256
  .amdhsa_next_free_sgpr 102
  .amdhsa_accum_offset 256
  .amdhsa_group_segment_fixed_size 0
  .amdhsa_kernarg_size 88
  .amdhsa_user_sgpr_count 2
  .amdhsa_user_sgpr_kernarg_segment_ptr 1
  .amdhsa_system_sgpr_workgroup_id_x 1
.end_amdhsa_kernel
"""
    return src, E.npad

if __name__ == "__main__":
    out = sys.argv[1]
    kw = json.loads(sys.argv[2]) if len(sys.argv) > 2 else {}
    src, npad = gen(**kw)
    open(out, "w").write(src)
    print("wrote", out, "lines", src.count("\n"), "pad states", npad)
```

```python
import sys, json, struct
from emit import Emitter

NAME = "sequential_preLN__gqa_block_cached__dense_activation_silu__decode_kernel"

def f2u(x): return struct.unpack("<I", struct.pack("<f", x))[0]

def gen(W=20, NS=48, C_WO=6, C_FFN=10, diag=False, pol="nt", polv=None, polw=None, hilo=False, spin=1<<22, enc=None, psleep=0, stf="sc1", ldf="sc1", pfcode=0, one=1, warm=0):
    E = Emitter(); A = E
    if polv is None: polv = pol
    if polw is None: polw = pol
    NSLOT = 9; SLOT = 16384; RING = NSLOT*SLOT
    L_LANDED = RING; L_CONS = RING+16; L_RED = RING+256; L_ACT = RING+512; L_ACT2 = RING+768; L_QW = RING+1024; L_LN = RING+5120
    LDS = 163840
    WS_E = 0; WS_CNT = 0x1000; WS_H = 0x3000; WS_Q = 0x8000; WS_D = 0x40000; WS_A = 0x100000; WS_B = 0x200000; WS_ST = 0x400000
    T = 1024
    C_SCALE = f2u(1.4426950408889634/16.0)
    LOG2E = f2u(1.4426950408889634)
    INV448 = f2u(1.0/448.0)
    EPS = f2u(1e-5)
    sWG="s2"; sWAVE="s3"
    pX="s[4:5]"; pK=(6,7); pV=(8,9); pWQ=(10,11); pWO=(12,13); pW1=(16,17); pW2=(18,19); pOUT="s[20:21]"; pWS="s[24:25]"
    sG="s26"; sJ="s27"; sROLE="s28"; sB="s29"; sHKV="s30"; sN="s31"; sSLOT="s32"; sKNOWN="s33"; sT0="s34"; sT1="s35"; sT2="s36"
    sCI="s37"; sSPIN="s38"; sIDX="s39"
    uid=[0]
    def lab(p): uid[0]+=1; return f"L_{p}_{uid[0]}"
    def stamp(k):
        if not diag and not (enc and k in (0, enc[0], enc[1])): return
        A(f"s_memrealtime s[{70+2*k}:{71+2*k}]")
    def slot_advance():
        A(f"s_add_u32 {sN}, {sN}, 1")
        A(f"s_add_u32 {sSLOT}, {sSLOT}, {SLOT}")
        A(f"s_cmp_eq_u32 {sSLOT}, {RING}")
        A(f"s_cselect_b32 {sSLOT}, 0, {sSLOT}")

    A(f"s_cmp_ge_u32 {sWG}, 256")
    A("s_cbranch_scc1 L_end")
    stamp(0)
    A("s_load_dwordx16 s[4:19], s[0:1], 0")
    A("s_load_dwordx4 s[20:23], s[0:1], 64")
    A("s_load_dwordx2 s[24:25], s[0:1], 80")
    A("v_lshrrev_b32 v1, 6, v0")
    A("v_and_b32 v0, 63, v0")
    A(f"v_readfirstlane_b32 {sWAVE}, v1")
    A(f"s_lshr_b32 {sG}, {sWG}, 4")
    A(f"s_and_b32 {sJ}, {sWG}, 15")
    A(f"s_sub_u32 {sROLE}, {sJ}, {sG}")
    A(f"s_and_b32 {sROLE}, {sROLE}, 15")
    A(f"s_lshr_b32 {sB}, {sG}, 3")
    A(f"s_and_b32 {sHKV}, {sG}, 7")
    A(f"s_mov_b32 {sN}, 0"); A(f"s_mov_b32 {sSLOT}, 0"); A(f"s_mov_b32 {sKNOWN}, 0"); A(f"s_mov_b32 {sCI}, 0")
    A(f"s_mov_b32 {sSPIN}, {spin}")
    A(f"s_sub_u32 {sT0}, {sROLE}, 8")
    A(f"s_lshl_b32 {sIDX}, {sG}, 1")
    A(f"s_add_u32 {sIDX}, {sIDX}, {sT0}")
    A(f"s_cmp_lt_u32 {sT0}, 2")
    A(f"s_cselect_b32 {sIDX}, {sIDX}, 99")
    A(f"v_lshlrev_b32 v1, 2, v0"); A(f"v_add_u32 v1, {L_LANDED}, v1"); A("v_mov_b32 v2, 0")
    A("s_mov_b64 exec, 0xff"); A("ds_write_b32 v1, v2"); A("s_mov_b64 exec, -1")
    A(f"s_cmp_lg_u32 {sWAVE}, 0")
    A("s_cbranch_scc1 L_consumer")

    vK=[4+i for i in range(8)]; vV=[12+i for i in range(4)]; vLIN=16; vTQ=[17,18]; vT1=[19,20]; vFL=21; vTMP=22; vC=24
    srdK="s[40:43]"; srdV="s[44:47]"; srdW="s[48:51]"; srdZ="s[52:55]"
    sCUR="s56"; sGB="s57"; sOFF="s58"; sCLM="s59"; sCOFF="s60"; sBASE="s61"; sFLOOR="s62"
    A("s_setprio 3")
    A("v_lshrrev_b32 v1, 5, v0")
    A("v_and_b32 v2, 31, v0")
    A("v_xor_b32 v3, v2, v1")
    A("v_lshlrev_b32 v3, 4, v3")
    A("v_lshl_or_b32 v3, v1, 9, v3")
    for i in range(8): A(f"v_xor_b32 v{vK[i]}, {i*32}, v3")
    A("v_lshlrev_b32 v3, 1, v1"); A("v_xor_b32 v3, v2, v3"); A("v_lshlrev_b32 v3, 4, v3"); A("v_lshl_or_b32 v3, v1, 9, v3")
    for i in range(4): A(f"v_xor_b32 v{vV[i]}, {i*64}, v3")
    A(f"v_lshlrev_b32 v{vLIN}, 4, v0")
    A("v_lshrrev_b32 v1, 3, v0"); A("v_and_b32 v2, 7, v0"); A("v_lshrrev_b32 v3, 3, v0"); A("v_and_b32 v3, 2, v3"); A("v_xor_b32 v2, v2, v3")
    A("v_lshlrev_b32 v2, 4, v2")
    A(f"v_lshl_or_b32 v{vTQ[0]}, v1, 13, v2"); A(f"v_xor_b32 v{vTQ[1]}, 64, v{vTQ[0]}")
    A(f"v_mul_u32_u24 v3, 3584, v1")
    A(f"v_add_u32 v{vT1[0]}, v3, v2"); A("v_xor_b32 v2, 64, v2"); A(f"v_add_u32 v{vT1[1]}, v3, v2")
    A(f"v_mov_b32 v{vFL}, {L_LANDED}")
    A(f"s_lshl_b32 {sGB}, {sG}, 24"); A(f"s_mov_b32 {sFLOOR}, 0")
    A(f"s_mul_i32 {sCUR}, {sJ}, {NS}")
    A(f"s_lshl_b32 {sCOFF}, {sG}, 8"); A(f"s_add_u32 {sCOFF}, {sCOFF}, {WS_CNT}")
    A("s_waitcnt lgkmcnt(0)")
    A(f"s_mov_b32 s40, s{pK[0]}"); A(f"s_mov_b32 s41, s{pK[1]}"); A("s_mov_b32 s42, 0x10000000"); A("s_mov_b32 s43, 0x20000")
    A(f"s_mov_b32 s44, s{pV[0]}"); A(f"s_mov_b32 s45, s{pV[1]}"); A("s_mov_b32 s46, 0x10000000"); A("s_mov_b32 s47, 0x20000")
    A(f"s_mov_b32 s52, s{pK[0]}"); A(f"s_mov_b32 s53, s{pK[1]}"); A("s_mov_b32 s54, 0"); A("s_mov_b32 s55, 0x20000")
    A("s_mov_b32 s51, 0x20000")
    A("s_barrier")
    pubgrp = (W-16)//4 - 1
    assert W in (20,24,28,32)
    def publish_prev():
        A(f"s_sub_u32 {sT0}, {sN}, 1"); A(f"s_max_i32 {sT0}, {sT0}, {sFLOOR}")
        A(f"v_mov_b32 v{vTMP}, {sT0}")
        A("s_mov_b64 exec, 1"); A(f"ds_write_b32 v{vFL}, v{vTMP}"); A("s_mov_b64 exec, -1")
    def throttle(i):
        if i % 4 == 3:
            A(f"s_waitcnt vmcnt({W})")
            if i//4 == pubgrp: publish_prev()
    def tile_kv(srd, voffs, pol):
        for i in range(16):
            if i % 4 == 0:
                A(f"s_add_u32 m0, {sSLOT}, {i*1024}" if i else f"s_mov_b32 m0, {sSLOT}")
                A(f"s_add_u32 {sOFF}, {sBASE}, {i*1024}")
            A(f"buffer_load_dwordx4 v{voffs[i % len(voffs)]}, {srd}, {sOFF} offen offset:{(i%4)*1024} {pol} lds")
            throttle(i)
        slot_advance()
    def tile_tall(voffs, rowstride, t, nvalid):
        for i in range(16):
            A(f"s_add_u32 m0, {sSLOT}, {i*1024}" if i else f"s_mov_b32 m0, {sSLOT}")
            A(f"s_add_u32 {sOFF}, {sBASE}, {(t*128+i*8)*rowstride}")
            A(f"buffer_load_dwordx4 v{voffs[i&1]}, {srdW if i < nvalid else srdZ}, {sOFF} offen {polw} lds")
            throttle(i)
        slot_advance()
    def tile_wide(t):
        for i in range(16):
            if i % 4 == 0:
                A(f"s_add_u32 m0, {sSLOT}, {i*1024}" if i else f"s_mov_b32 m0, {sSLOT}")
                A(f"s_add_u32 {sOFF}, {sBASE}, {t*14336+i*1024}")
            A(f"buffer_load_dwordx4 v{vLIN}, {srdW if i < 14 else srdZ}, {sOFF} offen offset:{(i%4)*1024} {polw} lds")
            throttle(i)
        slot_advance()
    def freecheck():
        ok = lab("free"); lp = lab("freepoll")
        A(f"s_add_u32 {sT1}, {sN}, 2")
        A(f"s_add_u32 {sT0}, {sKNOWN}, {NSLOT}")
        A(f"s_cmp_ge_u32 {sT0}, {sT1}"); A(f"s_cbranch_scc1 {ok}")
        E.label(lp)
        A(f"ds_read_b128 v[{vC}:{vC+3}], v{vFL} offset:16")
        A(f"s_sub_u32 {sSPIN}, {sSPIN}, 1"); A("s_cbranch_scc1 L_end")
        A("s_waitcnt lgkmcnt(0)")
        A(f"v_min3_u32 v{vC}, v{vC}, v{vC+1}, v{vC+2}"); A(f"v_min_u32 v{vC}, v{vC}, v{vC+3}")
        A(f"v_readfirstlane_b32 {sKNOWN}, v{vC}")
        A(f"s_add_u32 {sT0}, {sKNOWN}, {NSLOT}")
        A(f"s_cmp_ge_u32 {sT0}, {sT1}"); A(f"s_cbranch_scc1 {ok}")
        A("s_sleep 1")
        A(f"s_branch {lp}")
        E.label(ok)
    def setW(p, nbytes):
        A(f"s_mov_b32 s48, s{p[0]}"); A(f"s_mov_b32 s49, s{p[1]}"); A(f"s_mov_b32 s50, {nbytes}")
    def pub_const(c):
        A(f"v_mov_b32 v{vTMP}, {c}")
        A("s_mov_b64 exec, 1"); A(f"ds_write_b32 v{vFL}, v{vTMP}"); A("s_mov_b64 exec, -1")
    A(f"s_cmp_ge_u32 {sROLE}, 4"); A("s_cbranch_scc1 L_ld_noq")
    setW(pWQ, 448*4096*2)
    A(f"s_lshl_b32 {sBASE}, {sHKV}, 10"); A(f"s_lshl_b32 {sT0}, {sB}, 2"); A(f"s_add_u32 {sT0}, {sT0}, {sROLE}"); A(f"s_lshl_b32 {sT0}, {sT0}, 7")
    A(f"s_add_u32 {sBASE}, {sBASE}, {sT0}")
    for i in range(56):
        A(f"s_mov_b32 m0, {i*1024}")
        A(f"s_add_u32 {sOFF}, {sBASE}, {i*8*8192}")
        A(f"buffer_load_dwordx4 v{vTQ[i&1]}, {srdW}, {sOFF} offen {polw} lds")
    for k,c in enumerate((40,24,8,0)):
        A(f"s_waitcnt vmcnt({c})"); pub_const(k+1)
    A(f"s_mov_b32 {sN}, 4"); A(f"s_mov_b32 {sSLOT}, {4*SLOT}"); A(f"s_mov_b32 {sFLOOR}, 4")
    E.label("L_ld_noq")
    def ld_wo():
        setW(pWO, 4096*448*2)
        A(f"s_lshl_b32 {sT0}, {sHKV}, 4"); A(f"s_add_u32 {sT0}, {sT0}, {sJ}"); A(f"s_mul_i32 {sBASE}, {sT0}, {32*896}")
        freecheck()
        for t in range(2): tile_wide(t)
    def ld_ffn(lbl):
        A(f"s_cmp_ge_u32 {sIDX}, 28"); A(f"s_cbranch_scc1 {lbl}")
        setW(pW1, 448*1792*2)
        A(f"s_lshl_b32 {sBASE}, {sIDX}, 7")
        for t in range(4):
            if t % 2 == 0: freecheck()
            tile_tall(vT1, 3584, t, 16 if t < 3 else 8)
        setW(pW2, 1792*448*2)
        A(f"s_mul_i32 {sBASE}, {sIDX}, {64*896}")
        for t in range(4):
            if t % 2 == 0: freecheck()
            tile_wide(t)
        E.label(lbl)
    ld_wo()
    ld_ffn("L_ld_noffn0")
    if pfcode:
        A("s_getpc_b64 s[64:65]")
        E.label("L_pc")
        A("s_add_u32 s64, s64, L_fin-L_pc"); A("s_addc_u32 s65, s65, 0")
        A(f"v_lshlrev_b32 v25, 6, v0")
    E.label("L_ld_loop")
    if pfcode:
        A(f"s_cmp_lg_u32 {sCI}, {pfcode}"); A("s_cbranch_scc1 L_nopf")
        A("global_load_dword v26, v25, s[64:65]")
        A("v_add_u32 v27, 4096, v25"); A("v_min_u32 v27, L_end-L_fin, v27")
        A("global_load_dword v28, v27, s[64:65]")
        E.label("L_nopf")
    if diag:
        for k,c in enumerate((0,2,3,4,6,8,16,32,47)):
            sk=lab("ls"); A(f"s_cmp_lg_u32 {sCI}, {c}"); A(f"s_cbranch_scc1 {sk}"); A(f"s_memrealtime s[{72+2*k}:{73+2*k}]"); A("s_waitcnt lgkmcnt(0)"); E.label(sk)
    freecheck()
    A(f"s_add_u32 {sCI}, {sCI}, 1")
    A(f"s_cmp_lt_u32 {sCI}, {NS}"); A("s_cbranch_scc1 L_ld_noclaim")
    A(f"s_mov_b32 {sCLM}, 1"); A(f"s_atomic_add {sCLM}, {pWS}, {sCOFF} glc")
    E.label("L_ld_noclaim")
    A(f"s_lshl_b32 {sBASE}, {sCUR}, 14"); A(f"s_add_u32 {sBASE}, {sBASE}, {sGB}")
    tile_kv(srdK, vK, pol)
    tile_kv(srdV, vV, polv)
    A(f"s_add_u32 {sCUR}, {sCUR}, 1")
    A(f"s_cmp_lt_u32 {sCI}, {NS}"); A("s_cbranch_scc1 L_ld_loop")
    A("s_waitcnt lgkmcnt(0)")
    A(f"s_add_u32 {sCUR}, {sCLM}, {16*NS}")
    A(f"s_cmp_lt_u32 {sCUR}, {T}"); A("s_cbranch_scc1 L_ld_loop")
    A("s_waitcnt vmcnt(16)")
    publish_prev()
    A(f"s_or_b32 {sT0}, {sN}, 0x80000000"); A(f"v_mov_b32 v{vTMP}, {sT0}")
    A("s_waitcnt vmcnt(0)")
    A("s_mov_b64 exec, 1"); A(f"ds_write_b32 v{vFL}, v{vTMP}")
    if diag:
        A("s_memrealtime s[90:91]")
        A(f"s_lshl_b32 {sT0}, {sWG}, 6"); A(f"s_add_u32 {sT0}, {sT0}, {WS_ST+0x40000}"); A(f"v_mov_b32 v30, {sT0}")
        A("s_waitcnt lgkmcnt(0)")
        for k in range(11): A(f"v_mov_b32 v{32+k}, s{70+2*k}")
        A(f"v_mov_b32 v43, {sSPIN}")
        for q in range(3): A(f"global_store_dwordx4 v30, v[{32+4*q}:{35+4*q}], {pWS} offset:{q*16}")
    A("s_waitcnt lgkmcnt(0)")
    A("s_endpgm")

    E.label("L_consumer")
    sW="s40"; sTAG="s41"; sM1="s[42:43]"; sM2="s[44:45]"; sC="s46"; sE="s47"; sRR="s48"; sCK=["s[50:51]","s[52:53]","s[54:55]","s[56:57]","s[58:59]","s[60:61]","s[62:63]"]
    vLANE=0; vN=1; vG4=2; vFLG=3; vCONS=4; vTM=5; vTM2=6; vTM3=7
    vM=8; vMC=9; vL=10; vMX=11
    vKB=[12,13,14,15]; vVB=[16,17,18,19]; vAD=[20,21,22,23]
    vS=24
    vP=32
    vO=36
    vQ=52
    vF=84
    NF=6
    vWO=108
    vW1=136
    vW2=192
    vX=248
    vXH0=254
    def SEL4(dst, a, b, c, d, t):
        A(f"v_cndmask_b32 v{dst}, v{a}, v{b}, {sM1}"); A(f"v_cndmask_b32 v{t}, v{c}, v{d}, {sM1}"); A(f"v_cndmask_b32 v{dst}, v{dst}, v{t}, {sM2}")
    def xrow(op, regs, tmps):
        for sw in ("v_permlane16_swap_b32","v_permlane32_swap_b32"):
            for r,t in zip(regs,tmps): A(f"v_mov_b32 v{t}, v{r}")
            for r,t in zip(regs,tmps): A(f"{sw} v{r}, v{t}")
            for r,t in zip(regs,tmps): A(f"{op} v{r}, v{r}, v{t}")
    def round_bf(dst, src):
        A(f"v_cvt_pk_bf16_f32 v{dst}, v{src}, v{src}"); A(f"v_and_b32 v{dst}, 0xffff0000, v{dst}")
    def pub_cons(adv=True):
        slot_advance()
        A(f"v_mov_b32 v{vTM}, {sN}")
        A("s_mov_b64 exec, 1"); A(f"ds_write_b32 v{vCONS}, v{vTM}"); A("s_mov_b64 exec, -1")
    def wait_tile(fin=None):
        ok = lab("have"); lp = lab("poll")
        A(f"s_cmp_gt_u32 {sKNOWN}, {sN}"); A(f"s_cbranch_scc1 {ok}")
        E.label(lp)
        A(f"ds_read_b32 v{vTM}, v{vFLG}")
        A(f"s_sub_u32 {sSPIN}, {sSPIN}, 1"); A("s_cbranch_scc1 L_end")
        A("s_waitcnt lgkmcnt(0)")
        A(f"v_readfirstlane_b32 {sT0}, v{vTM}")
        A(f"s_and_b32 {sKNOWN}, {sT0}, 0x7fffffff")
        A(f"s_cmp_gt_u32 {sKNOWN}, {sN}"); A(f"s_cbranch_scc1 {ok}")
        if fin:
            A(f"s_bitcmp1_b32 {sT0}, 31"); A(f"s_cbranch_scc1 {fin}")
        A("s_sleep 1")
        A(f"s_branch {lp}")
        E.label(ok)
    def poll(loads, tags, first_mask=None):
        lp = lab("gpoll"); n = len(loads)
        for i in range(n):
            A(f"s_mov_b64 {sCK[i]}, {first_mask[i] if first_mask else -1}")
        E.label(lp)
        for i,l in enumerate(loads):
            sk = lab("sk")
            A(f"s_mov_b64 exec, {sCK[i]}"); A(f"s_cbranch_execz {sk}"); A(l); E.label(sk)
        A("s_mov_b64 exec, -1")
        A(f"s_sub_u32 {sSPIN}, {sSPIN}, 1"); A("s_cbranch_scc1 L_end")
        A("s_waitcnt vmcnt(0)")
        for i in range(n):
            A(f"v_cmp_ne_u32 {sCK[i]}, {sTAG}, v{tags[i][0]}")
            for t in tags[i][1:]:
                A(f"v_cmp_ne_u32 vcc, {sTAG}, v{t}"); A(f"s_or_b64 {sCK[i]}, {sCK[i]}, vcc")
        A(f"s_or_b64 vcc, {sCK[0]}, {sCK[min(1,n-1)]}")
        for i in range(2, n): A(f"s_or_b64 vcc, vcc, {sCK[i]}")
        if psleep:
            dn = lab("pdone"); A(f"s_cbranch_scc0 {dn}"); A(f"s_sleep {psleep}"); A(f"s_branch {lp}"); E.label(dn)
        else:
            A(f"s_cbranch_scc1 {lp}")
    def layernorm(xr, f, lnbase):
        s1=vTM; t=vTM2; mu=vX
        for u in range(7):
            A(f"v_lshlrev_b32 v{f+2*u}, 16, v{xr+u}"); A(f"v_and_b32 v{f+2*u+1}, 0xffff0000, v{xr+u}")
        def P(r): return f"v[{r}:{r+1}]"
        a=vX+2; b=vX+4
        A(f"v_pk_add_f32 {P(a)}, {P(f)}, {P(f+2)}"); A(f"v_pk_add_f32 {P(b)}, {P(f+4)}, {P(f+6)}")
        A(f"v_pk_add_f32 {P(a)}, {P(a)}, {P(f+8)}"); A(f"v_pk_add_f32 {P(b)}, {P(b)}, {P(f+10)}")
        A(f"v_pk_add_f32 {P(a)}, {P(a)}, {P(f+12)}"); A(f"v_pk_add_f32 {P(a)}, {P(a)}, {P(b)}")
        A(f"v_add_f32 v{s1}, v{a}, v{a+1}")
        def red32(r):
            for k in (8,4,2,1): A(f"v_add_f32_dpp v{r}, v{r}, v{r} row_ror:{k} row_mask:0xf bank_mask:0xf")
            A(f"v_mov_b32 v{t}, v{r}"); A(f"v_permlane16_swap_b32 v{r}, v{t}"); A(f"v_add_f32 v{r}, v{r}, v{t}")
        red32(s1)
        A(f"v_mul_f32 v{mu}, {INV448:#x}, v{s1}")
        A(f"v_pk_add_f32 {P(b)}, {P(f)}, {P(mu)} op_sel_hi:[1,0] neg_lo:[0,1] neg_hi:[0,1]")
        A(f"v_pk_mul_f32 {P(a)}, {P(b)}, {P(b)}")
        for u in range(1,7):
            A(f"v_pk_add_f32 {P(b)}, {P(f+2*u)}, {P(mu)} op_sel_hi:[1,0] neg_lo:[0,1] neg_hi:[0,1]")
            A(f"v_pk_fma_f32 {P(a)}, {P(b)}, {P(b)}, {P(a)}")
        A(f"v_add_f32 v{s1}, v{a}, v{a+1}")
        round_bf(mu, mu)
        red32(s1)
        for u in range(7):
            A(f"v_pk_add_f32 {P(f+2*u)}, {P(f+2*u)}, {P(mu)} op_sel_hi:[1,0] neg_lo:[0,1] neg_hi:[0,1]")
        A(f"v_mul_f32 v{s1}, {INV448:#x}, v{s1}")
        round_bf(s1, s1)
        A(f"v_add_f32 v{s1}, {EPS:#x}, v{s1}")
        round_bf(s1, s1)
        A(f"v_sqrt_f32 v{s1}, v{s1}")
        for u in range(7): A(f"v_cvt_pk_bf16_f32 v{xr+u}, v{f+2*u}, v{f+2*u+1}")
        round_bf(s1, s1)
        A(f"v_rcp_f32 v{a}, v{s1}")
        for u in range(7):
            A(f"v_lshlrev_b32 v{f+2*u}, 16, v{xr+u}"); A(f"v_and_b32 v{f+2*u+1}, 0xffff0000, v{xr+u}")
        for u in range(7): A(f"v_pk_mul_f32 {P(f+2*u)}, {P(f+2*u)}, {P(a)} op_sel_hi:[1,0]")
        for u in range(7):
            A(f"v_cvt_pk_bf16_f32 v{xr+u}, v{f+2*u}, v{f+2*u+1}")
            A(f"ds_write_b32 v{lnbase}, v{xr+u} offset:{u*128}")
    def ln_addrs(wr, rd, shared=False):
        if shared: A(f"s_mov_b32 {sT0}, {L_LN}")
        else: A(f"s_lshl_b32 {sT0}, {sW}, 11"); A(f"s_add_u32 {sT0}, {sT0}, {L_LN}")
        A(f"v_lshrrev_b32 v{wr}, 5, v{vLANE}"); A(f"v_mul_u32_u24 v{wr}, 896, v{wr}")
        A(f"v_and_b32 v{vTM}, 31, v{vLANE}"); A(f"v_lshl_add_u32 v{wr}, v{vTM}, 2, v{wr}"); A(f"v_add_u32 v{wr}, {sT0}, v{wr}")
        A(f"v_and_b32 v{rd}, 1, v{vLANE}"); A(f"v_mul_u32_u24 v{rd}, 896, v{rd}")
        A(f"v_lshl_add_u32 v{rd}, v{vG4}, 4, v{rd}"); A(f"v_add_u32 v{rd}, {sT0}, v{rd}")
    def tall_addr(dst):
        A(f"v_lshrrev_b32 v{vTM}, 3, v{vN}")
        A(f"v_and_b32 v{vTM2}, 1, v{vG4}"); A(f"v_lshl_or_b32 v{vTM}, v{vTM2}, 1, v{vTM}")
        A(f"v_xor_b32 v{vTM}, {sW}, v{vTM}"); A(f"v_lshlrev_b32 v{vTM}, 5, v{vTM}")
        A(f"v_and_b32 v{vTM2}, 3, v{vN}"); A(f"v_lshl_or_b32 v{vTM}, v{vTM2}, 3, v{vTM}")
        A(f"v_lshrrev_b32 v{vTM2}, 2, v{vN}"); A(f"v_lshl_or_b32 v{vTM}, v{vTM2}, 7, v{vTM}")
        A(f"v_lshl_or_b32 v{dst}, v{vG4}, 10, v{vTM}")
    def wide_addr(dst):
        A(f"v_lshrrev_b32 v{vTM}, 2, v{vN}"); A(f"v_lshl_add_u32 v{vTM}, v{vG4}, 2, v{vTM}"); A(f"v_mul_u32_u24 v{vTM}, 896, v{vTM}")
        A(f"v_and_b32 v{vTM2}, 3, v{vN}"); A(f"v_lshl_add_u32 v{vTM}, v{vTM2}, 3, v{vTM}")
        A(f"s_mul_i32 {sT0}, {sW}, 224"); A(f"v_add_u32 v{dst}, {sT0}, v{vTM}")
    def read_tall_tile(base, dstreg, t):
        wait_tile()
        A(f"v_add_u32 v{vAD[0]}, {sSLOT}, v{base}")
        for s in range(4 if t < 3 else 2):
            for h2 in range(2):
                r = dstreg + 4*(4*t+s) + 2*h2
                A(f"ds_read_b64_tr_b16 v[{r}:{r+1}], v{vAD[0]} offset:{s*4096+h2*512}")
        A("s_waitcnt lgkmcnt(0)")
        pub_cons()
    def read_wide_tile(base, dstreg, half):
        wait_tile()
        A(f"v_add_u32 v{vAD[0]}, {sSLOT}, v{base}")
        for tt in range(7):
            r = dstreg + 4*tt + 2*half
            A(f"ds_read_b64_tr_b16 v[{r}:{r+1}], v{vAD[0]} offset:{tt*32}")
        A("s_waitcnt lgkmcnt(0)")
        pub_cons()

    A(f"s_sub_u32 {sW}, {sWAVE}, 1")
    A(f"v_and_b32 v{vN}, 15, v{vLANE}"); A(f"v_lshrrev_b32 v{vG4}, 4, v{vLANE}")
    A(f"v_mov_b32 v{vFLG}, {L_LANDED}")
    A(f"s_lshl_b32 {sT0}, {sW}, 2"); A(f"s_add_u32 {sT0}, {sT0}, {L_CONS}"); A(f"v_mov_b32 v{vCONS}, {sT0}")
    A("s_mov_b32 s42, 0xffff0000"); A("s_mov_b32 s43, 0xffff0000"); A("s_mov_b32 s44, 0"); A("s_mov_b32 s45, -1")
    A(f"s_mov_b32 {sC}, {C_SCALE:#x}"); A("s_mov_b32 s66, -1"); A("s_mov_b32 s67, 0")
    if hilo: A("s_mov_b32 s64, 0xcccccccc"); A("s_mov_b32 s65, 0xcccccccc")
    A("s_waitcnt lgkmcnt(0)")
    A(f"s_load_dword {sE}, {pWS}, {WS_E}")
    A("s_barrier")
    stamp(11)
    A(f"s_sub_u32 {sT0}, {sROLE}, 4"); A(f"s_lshl_b32 {sRR}, {sG}, 2"); A(f"s_add_u32 {sRR}, {sRR}, {sT0}")
    A(f"s_cmp_lt_u32 {sT0}, 4"); A(f"s_cselect_b32 {sRR}, {sRR}, 99")
    A(f"s_min_u32 {sT0}, {sRR}, 55"); A(f"s_lshl_b32 {sT0}, {sT0}, 5")
    A(f"v_and_b32 v{vTM}, 7, v{vLANE}"); A(f"v_lshl_add_u32 v{vTM}, v{vTM}, 2, {sT0}")
    A(f"global_load_dword v{vXH0}, v{vTM}, {pX}")
    A(f"v_xor_b32 v{vTM}, v{vG4}, v{vN}"); A(f"v_lshlrev_b32 v{vTM}, 4, v{vTM}"); A(f"v_lshl_or_b32 v{vTM}, v{vN}, 9, v{vTM}")
    for s in range(4): A(f"v_xor_b32 v{vKB[s]}, {s*64}, v{vTM}")
    A(f"v_lshrrev_b32 v{vTM}, 2, v{vN}"); A(f"v_lshl_add_u32 v{vTM}, v{vG4}, 2, v{vTM}")
    A(f"v_and_b32 v{vTM2}, 7, v{vTM}")
    A(f"s_lshl_b32 {sT0}, {sW}, 2"); A(f"v_xor_b32 v{vTM2}, {sT0}, v{vTM2}"); A(f"v_lshlrev_b32 v{vTM2}, 5, v{vTM2}")
    A(f"v_lshl_or_b32 v{vTM}, v{vTM}, 9, v{vTM2}")
    A(f"v_and_b32 v{vTM2}, 3, v{vN}"); A(f"v_lshl_or_b32 v{vTM}, v{vTM2}, 3, v{vTM}")
    for e in range(4): A(f"v_xor_b32 v{vVB[e]}, {e*32}, v{vTM}")
    A(f"v_mov_b32 v{vM}, 0xff800000"); A(f"v_mov_b32 v{vMC}, 0xff800000"); A(f"v_mov_b32 v{vL}, 0")
    for i in range(16): A(f"v_mov_b32 v{vO+i}, 0")
    A(f"s_cmp_ge_u32 {sROLE}, 4")
    A("s_cbranch_scc1 L_q_wait")
    xr = vWO; f14 = vWO+8; vLW = vWO+24; vLR = vWO+25; vTA = vWO+26
    A(f"v_lshrrev_b32 v{vTM}, 5, v{vLANE}"); A(f"v_mul_u32_u24 v{vTM}, 896, v{vTM}")
    A(f"v_and_b32 v{vTM2}, 31, v{vLANE}"); A(f"v_lshl_add_u32 v{vTM}, v{vTM2}, 2, v{vTM}")
    for u in range(7): A(f"global_load_dword v{xr+u}, v{vTM}, {pX} offset:{u*128}")
    A(f"s_or_b32 {sT0}, {sROLE}, {sW}"); A(f"s_cmp_lg_u32 {sT0}, 0"); A("s_cbranch_scc1 L_noinit")
    A(f"s_lshl_b32 {sT0}, {sG}, 8"); A(f"s_add_u32 {sT0}, {sT0}, {WS_CNT}")
    A(f"v_mov_b32 v{vTM2}, {sT0}"); A(f"v_mov_b32 v{vTM3}, 0")
    A("s_mov_b64 exec, 1"); A(f"global_store_dword v{vTM2}, v{vTM3}, {pWS} {stf}"); A("s_mov_b64 exec, -1")
    E.label("L_noinit")
    ln_addrs(vLW, vLR)
    tall_addr(vTA)
    A("s_waitcnt vmcnt(0) lgkmcnt(0)")
    stamp(12)
    layernorm(xr, f14, vLW)
    A("s_waitcnt lgkmcnt(0)")
    stamp(13)
    for s in range(14): A(f"ds_read_b128 v[{vW2+4*s}:{vW2+4*s+3}], v{vLR} offset:{s*64}")
    for t in range(4):
        read_tall_tile(vTA, vW1, t)
        if t == 0: stamp(14)
        for s in range(4*t, min(4*t+4, 14)):
            A(f"v_mfma_f32_16x16x32_bf16 v[{vS}:{vS+3}], v[{vW2+4*s}:{vW2+4*s+3}], v[{vW1+4*s}:{vW1+4*s+3}], {'0' if s==0 else f'v[{vS}:{vS+3}]'}")
    A(f"s_lshl_b32 {sT0}, {sB}, 2"); A(f"s_add_u32 {sT0}, {sT0}, {sROLE}"); A(f"s_lshl_b32 {sT0}, {sT0}, 2"); A(f"s_add_u32 {sT0}, {sT0}, {sW}")
    A(f"s_lshl_b32 {sT0}, {sT0}, 6"); A(f"s_lshl_b32 {sT1}, {sHKV}, 11"); A(f"s_add_u32 {sT0}, {sT0}, {sT1}"); A(f"s_add_u32 {sT0}, {sT0}, {WS_Q}")
    A(f"v_lshlrev_b32 v{vTM3}, 2, v{vN}"); A(f"v_lshl_add_u32 v{vTM3}, v{vG4}, 14, v{vTM3}"); A(f"v_add_u32 v{vTM3}, {sT0}, v{vTM3}")
    A(f"s_mul_i32 {sTAG}, {sE}, 0x9e3779b1"); A(f"s_add_u32 {sTAG}, {sTAG}, 0x7f4a7c15")
    A(f"v_cndmask_b32 v{vTM}, v{vS}, v{vS+1}, {sM1}")
    A(f"v_mov_b32_dpp v{vTM2}, v{vTM} quad_perm:[1,0,3,2] row_mask:0xf bank_mask:0xf")
    A(f"v_mov_b32 v{vX+1}, {sTAG}")
    A(f"v_cvt_pk_bf16_f32 v{vX}, v{vTM}, v{vTM2}")
    A("s_mov_b64 exec, 0x55555555")
    A(f"global_store_dwordx2 v{vTM3}, v[{vX}:{vX+1}], {pWS} {stf}")
    A("s_mov_b64 exec, -1")
    stamp(1)
    E.label("L_q_wait")
    wide_addr(vX)
    for h in range(2): read_wide_tile(vX, vWO, h)
    A(f"s_cmp_ge_u32 {sIDX}, 28"); A("s_cbranch_scc1 L_noffn")
    tall_addr(vX+1)
    for t in range(4): read_tall_tile(vX+1, vW1, t)
    for t in range(4): read_wide_tile(vX, vW2 + 28*(t>>1), t & 1)
    E.label("L_noffn")
    A("s_waitcnt lgkmcnt(0)")
    A(f"s_mul_i32 {sTAG}, {sE}, 0x9e3779b1"); A(f"s_add_u32 {sTAG}, {sTAG}, 0x7f4a7c15")
    A(f"s_lshl_b32 {sT0}, {sG}, 11"); A(f"s_add_u32 {sT0}, {sT0}, {WS_Q}")
    A(f"v_lshlrev_b32 v{vTM3}, 4, v{vLANE}"); A(f"v_add_u32 v{vTM3}, {sT0}, v{vTM3}")
    poll([f"global_load_dwordx4 v[{vF}:{vF+3}], v{vTM3}, {pWS} {ldf}", f"global_load_dwordx4 v[{vF+4}:{vF+7}], v{vTM3}, {pWS} offset:1024 {ldf}"],
         [[vF+1, vF+3], [vF+5, vF+7]])
    A(f"s_lshl_b32 {sT0}, {sW}, 10"); A(f"s_add_u32 {sT0}, {sT0}, {L_QW}")
    A(f"v_mov_b32 v{vF+1}, v{vF+2}"); A(f"v_mov_b32 v{vF+5}, v{vF+6}")
    A(f"v_lshlrev_b32 v{vTM}, 3, v{vLANE}"); A(f"v_add_u32 v{vTM}, {sT0}, v{vTM}")
    A(f"ds_write_b64 v{vTM}, v[{vF}:{vF+1}]"); A(f"ds_write_b64 v{vTM}, v[{vF+4}:{vF+5}] offset:512")
    A(f"v_and_b32 v{vTM2}, 1, v{vLANE}"); A(f"v_lshlrev_b32 v{vTM2}, 9, v{vTM2}"); A(f"v_lshl_add_u32 v{vTM2}, v{vG4}, 4, v{vTM2}"); A(f"v_add_u32 v{vTM2}, {sT0}, v{vTM2}")
    A("s_waitcnt lgkmcnt(0)")
    for s in range(8): A(f"ds_read_b128 v[{vQ+4*s}:{vQ+4*s+3}], v{vTM2} offset:{s*64}")
    stamp(2)
    A("s_waitcnt lgkmcnt(0)")
    if warm:
        A(f"s_lshl_b32 {sT0}, {sWG}, 12"); A(f"s_lshl_b32 {sT1}, {sW}, 10"); A(f"s_add_u32 {sT0}, {sT0}, {sT1}"); A(f"s_add_u32 {sT0}, {sT0}, {WS_A}")
        A(f"v_lshl_add_u32 v{vTM}, v{vLANE}, 4, {sT0}")
        A(f"global_load_dwordx4 v[{vF}:{vF+3}], v{vTM}, {pWS} {ldf}")
        A(f"s_cmp_ge_u32 {sRR}, 56"); A("s_cbranch_scc1 L_nowarm")
        A(f"s_lshl_b32 {sT0}, {sRR}, 14"); A(f"s_lshl_b32 {sT1}, {sW}, 12"); A(f"s_add_u32 {sT0}, {sT0}, {sT1}"); A(f"s_add_u32 {sT0}, {sT0}, {WS_B}")
        A(f"v_lshl_add_u32 v{vTM}, v{vLANE}, 4, {sT0}")
        for i in range(4): A(f"global_load_dwordx4 v[{vF+4+4*i}:{vF+7+4*i}], v{vTM}, {pWS} offset:{i*1024} {ldf}")
        A(f"s_lshl_b32 {sT0}, {sRR}, 12"); A(f"s_lshl_b32 {sT1}, {sW}, 10"); A(f"s_add_u32 {sT0}, {sT0}, {sT1}"); A(f"s_add_u32 {sT0}, {sT0}, {WS_D}")
        A(f"v_lshl_add_u32 v{vTM}, v{vLANE}, 4, {sT0}")
        A(f"global_load_dwordx4 v[{vF+20}:{vF+23}], v{vTM}, {pWS} {ldf}")
        A(f"s_lshl_b32 {sT0}, {sRR}, 6"); A(f"s_add_u32 {sT0}, {sT0}, {WS_H}"); A(f"v_mov_b32 v{vTM}, {sT0}")
        A(f"global_load_dword v{vTM2}, v{vTM}, {pWS} {ldf}")
        E.label("L_nowarm")
        A("s_waitcnt vmcnt(0)")
    E.label("L_loop")
    wait_tile("L_fin")
    for s in range(4): A(f"v_add_u32 v{vAD[s]}, {sSLOT}, v{vKB[s]}")
    seq = [(t,s) for s in range(8) for t in range(2)]
    def kread(i):
        t,s = seq[i]; r = vF + 4*(i % NF)
        A(f"ds_read_b128 v[{r}:{r+3}], v{vAD[s&3]} offset:{(s>>2)*256 + t*8192}")
    for i in range(NF): kread(i)
    for i in range(16):
        t,s = seq[i]; r = vF + 4*(i % NF)
        A(f"s_waitcnt lgkmcnt({min(NF-1, 15-i)})")
        d = f"v[{vS+4*t}:{vS+4*t+3}]"
        A(f"v_mfma_f32_16x16x32_bf16 {d}, v[{r}:{r+3}], v[{vQ+4*s}:{vQ+4*s+3}], {'0' if s==0 else d}")
        if i + NF < 16: kread(i+NF)
    pub_cons()
    for i in range(4): A(f"v_cvt_pk_bf16_f32 v{vP+i}, v{vS+2*i}, v{vS+2*i+1}")
    for i in range(4):
        A(f"v_lshlrev_b32 v{vS+2*i}, 16, v{vP+i}"); A(f"v_and_b32 v{vS+2*i+1}, 0xffff0000, v{vP+i}")
    A(f"v_max3_f32 v{vMX}, v{vS}, v{vS+1}, v{vS+2}"); A(f"v_max3_f32 v{vTM}, v{vS+3}, v{vS+4}, v{vS+5}")
    A(f"v_max3_f32 v{vMX}, v{vMX}, v{vS+6}, v{vS+7}"); A(f"v_max_f32 v{vMX}, v{vMX}, v{vTM}")
    xrow("v_max_f32", [vMX], [vTM])
    A(f"v_cmp_gt_f32 vcc, v{vMX}, v{vM}")
    A("s_cmp_lg_u64 vcc, 0"); A("s_cbranch_scc1 L_rescale")
    E.label("L_rescaled")
    for i in range(8): A(f"v_fma_f32 v{vS+i}, v{vS+i}, {sC}, -v{vMC}")
    for i in range(8): A(f"v_exp_f32 v{vS+i}, v{vS+i}")
    for i in range(4): A(f"v_cvt_pk_bf16_f32 v{vP+i}, v{vS+2*i}, v{vS+2*i+1}")
    if hilo:
        for i in range(4):
            A(f"v_lshlrev_b32 v{vF+16}, 16, v{vP+i}"); A(f"v_and_b32 v{vF+17}, 0xffff0000, v{vP+i}")
            A(f"v_sub_f32 v{vF+16}, v{vS+2*i}, v{vF+16}"); A(f"v_sub_f32 v{vF+17}, v{vS+2*i+1}, v{vF+17}")
            A(f"v_cvt_pk_bf16_f32 v{vF+16}, v{vF+16}, v{vF+17}")
            A(f"v_cndmask_b32 v{vP+i}, v{vP+i}, v{vF+16}, s[64:65]")
    A(f"v_add_f32 v{vTM}, v{vS}, v{vS+1}"); A(f"v_add_f32 v{vTM2}, v{vS+2}, v{vS+3}")
    A(f"v_add_f32 v{vTM3}, v{vS+4}, v{vS+5}"); A(f"v_add_f32 v{vMX}, v{vS+6}, v{vS+7}")
    A(f"v_add_f32 v{vTM}, v{vTM}, v{vTM2}"); A(f"v_add_f32 v{vTM3}, v{vTM3}, v{vMX}")
    A(f"v_add_f32 v{vL}, v{vL}, v{vTM}"); A(f"v_add_f32 v{vL}, v{vL}, v{vTM3}")
    wait_tile()
    for e in range(4): A(f"v_add_u32 v{vAD[e]}, {sSLOT}, v{vVB[e]}")
    for e in range(4):
        for h2 in range(2):
            r = vF + 4*e + 2*h2
            A(f"ds_read_b64_tr_b16 v[{r}:{r+1}], v{vAD[e]} offset:{h2*8192}")
    for e in range(4):
        A(f"s_waitcnt lgkmcnt({6-2*e})")
        A(f"v_mfma_f32_16x16x32_bf16 v[{vO+4*e}:{vO+4*e+3}], v[{vP}:{vP+3}], v[{vF+4*e}:{vF+4*e+3}], v[{vO+4*e}:{vO+4*e+3}]")
    pub_cons()
    A("s_branch L_loop")
    E.label("L_rescale")
    A(f"v_max_f32 v{vM}, v{vM}, v{vMX}")
    A(f"v_mul_f32 v{vTM}, {sC}, v{vM}")
    A(f"v_sub_f32 v{vTM2}, v{vMC}, v{vTM}")
    A(f"v_mov_b32 v{vMC}, v{vTM}")
    A(f"v_exp_f32 v{vTM2}, v{vTM2}")
    A(f"v_mul_f32 v{vL}, v{vL}, v{vTM2}")
    A(f"v_mov_b32_dpp v{vTM}, v{vTM2} quad_perm:[0,0,2,2] row_mask:0xf bank_mask:0xf")
    A(f"v_mov_b32_dpp v{vTM3}, v{vTM2} quad_perm:[1,1,3,3] row_mask:0xf bank_mask:0xf")
    for i in range(16): A(f"v_mul_f32 v{vO+i}, v{vO+i}, v{vTM if i%2==0 else vTM3}")
    A("s_branch L_rescaled")

    E.label("L_fin")
    stamp(3)
    vG=vF; vI=vF+4
    vAA=vQ; vAI=vQ+1; vBA=vQ+2; vBA2=vQ+3; vXH=vXH0; vA=vQ+8; vD=vQ+12
    vD=vW1 if False else None
    xrow("v_add_f32", [vL], [vTM])
    if hilo:
        for e in range(4):
            for h in range(2): A(f"v_add_f32 v{vO+4*e+h}, v{vO+4*e+h}, v{vO+4*e+2+h}")
    A(f"s_lshl_b32 {sT0}, {sG}, 4"); A(f"s_lshl_b32 {sT1}, {sW}, 1"); A(f"s_add_u32 {sT0}, {sT0}, {sT1}"); A(f"s_lshl_b32 {sT0}, {sT0}, 4")
    A(f"s_add_u32 {sT0}, {sT0}, {sJ}"); A(f"s_lshl_b32 {sT0}, {sT0}, 8"); A(f"s_add_u32 {sT0}, {sT0}, {WS_A}")
    A(f"v_log_f32 v{vTM2}, v{vL}"); A(f"v_rcp_f32 v{vTM3}, v{vL}")
    A(f"v_lshrrev_b32 v{vAA}, 1, v{vG4}"); A(f"v_lshlrev_b32 v{vAA}, 15, v{vAA}")
    A(f"v_and_b32 v{vTM}, 1, v{vG4}"); A(f"v_lshl_or_b32 v{vAA}, v{vTM}, 12, v{vAA}"); A(f"v_lshl_or_b32 v{vAA}, v{vN}, 4, v{vAA}")
    A(f"v_add_u32 v{vAA}, {sT0}, v{vAA}")
    A(f"v_add_f32 v{vTM2}, v{vMC}, v{vTM2}")
    SEL4(vG, vO+0, vO+8, vO+1, vO+9, vMX)
    SEL4(vG+1, vO+4, vO+12, vO+5, vO+13, vMX)
    A(f"v_mov_b32_dpp v{vTM}, v{vTM3} quad_perm:[0,0,2,2] row_mask:0x3 bank_mask:0xf")
    A(f"v_mov_b32_dpp v{vG+2}, v{vTM2} quad_perm:[0,0,2,2] row_mask:0x3 bank_mask:0xf")
    A(f"v_mov_b32 v{vG+3}, {sTAG}")
    A(f"v_mov_b32_dpp v{vTM}, v{vTM3} quad_perm:[1,1,3,3] row_mask:0xc bank_mask:0xf")
    A(f"v_mov_b32_dpp v{vG+2}, v{vTM2} quad_perm:[1,1,3,3] row_mask:0xc bank_mask:0xf")
    A(f"v_mul_f32 v{vG}, v{vG}, v{vTM}"); A(f"v_mul_f32 v{vG+1}, v{vG+1}, v{vTM}")
    A(f"global_store_dwordx4 v{vAA}, v[{vG}:{vG+3}], {pWS} {stf}")
    stamp(4)
    A(f"s_lshl_b32 {sT0}, {sWG}, 12"); A(f"s_add_u32 {sT0}, {sT0}, {WS_A}")
    A(f"v_lshlrev_b32 v{vAI}, 4, v{vN}"); A(f"v_lshl_or_b32 v{vAI}, v{vG4}, 10, v{vAI}"); A(f"v_add_u32 v{vAI}, {sT0}, v{vAI}")
    A(f"s_mul_i32 {sT0}, {sB}, 28"); A(f"s_mul_i32 {sT1}, {sW}, 7"); A(f"s_add_u32 {sT0}, {sT0}, {sT1}"); A(f"s_lshl_b32 {sT0}, {sT0}, 7")
    A(f"s_and_b32 {sT1}, {sWG}, 127"); A(f"s_add_u32 {sT0}, {sT0}, {sT1}"); A(f"s_lshl_b32 {sT0}, {sT0}, 7"); A(f"s_add_u32 {sT0}, {sT0}, {WS_B}")
    A(f"v_lshlrev_b32 v{vBA}, 3, v{vN}"); A(f"v_lshl_or_b32 v{vBA}, v{vG4}, 14, v{vBA}"); A(f"v_add_u32 v{vBA}, {sT0}, v{vBA}")
    A(f"v_add_u32 v{vBA2}, 0x10000, v{vBA}")
    if one:
        A(f"v_lshlrev_b32 v{vA+4}, 3, v{vG4}"); A(f"v_add_u32 v{vA+4}, {L_ACT}, v{vA+4}")
        A(f"v_lshlrev_b32 v{vA+5}, 1, v{vN}"); A(f"v_add_u32 v{vA+5}, {L_ACT}, v{vA+5}")
        A(f"s_cmp_lg_u32 {sW}, 0"); A("s_cbranch_scc1 L_a_join")
    poll([f"global_load_dwordx4 v[{vI+4*i}:{vI+4*i+3}], v{vAI}, {pWS} offset:{i*256} {ldf}" for i in range(4)], [[vI+4*i+3] for i in range(4)])
    stamp(5)
    A(f"v_max3_f32 v{vMX}, v{vI+2}, v{vI+6}, v{vI+10}"); A(f"v_max_f32 v{vMX}, v{vMX}, v{vI+14}")
    xrow("v_max_f32", [vMX], [vTM])
    for i in range(4): A(f"v_sub_f32 v{vI+4*i+2}, v{vI+4*i+2}, v{vMX}")
    for i in range(4): A(f"v_exp_f32 v{vI+4*i+2}, v{vI+4*i+2}")
    sa=vS; sb=vS+1; sw=vS+2
    A(f"v_mul_f32 v{sa}, v{vI}, v{vI+2}"); A(f"v_mul_f32 v{sb}, v{vI+1}, v{vI+2}"); A(f"v_add_f32 v{sw}, v{vI+2}, v{vI+6}")
    for i in range(1,4):
        A(f"v_fmac_f32 v{sa}, v{vI+4*i}, v{vI+4*i+2}"); A(f"v_fmac_f32 v{sb}, v{vI+4*i+1}, v{vI+4*i+2}")
        if i > 1: A(f"v_add_f32 v{sw}, v{sw}, v{vI+4*i+2}")
    xrow("v_add_f32", [sw, sa, sb], [vS+3, vS+4, vS+5])
    A(f"v_rcp_f32 v{sw}, v{sw}")
    A(f"v_mul_f32 v{sa}, v{sa}, v{sw}"); A(f"v_mul_f32 v{sb}, v{sb}, v{sw}")
    A(f"v_mov_b32_dpp v{vS+3}, v{sa} quad_perm:[1,0,3,2] row_mask:0xf bank_mask:0xf")
    A(f"v_mov_b32_dpp v{vS+4}, v{sb} quad_perm:[1,0,3,2] row_mask:0xf bank_mask:0xf")
    A(f"v_cvt_pk_bf16_f32 v{sa}, v{sa}, v{vS+3}"); A(f"v_cvt_pk_bf16_f32 v{sb}, v{sb}, v{vS+4}")
    if one:
        A("s_mov_b64 exec, 0x5555"); A(f"ds_write_b32 v{vA+5}, v{sa}"); A(f"ds_write_b32 v{vA+5}, v{sb} offset:32"); A("s_mov_b64 exec, -1")
        A("s_waitcnt lgkmcnt(0)")
        E.label("L_a_join")
        A("s_barrier")
        A(f"ds_read_b64 v[{vA}:{vA+1}], v{vA+4}"); A(f"ds_read_b64 v[{vA+2}:{vA+3}], v{vA+4} offset:32")
        A("s_waitcnt lgkmcnt(0)")
    else:
      for g in range(4):
        for i in range(4):
            A(f"v_mov_b32_dpp v{vA+i}, v{sa if i < 2 else sb} row_newbcast:{4*g + 2*(i&1)} row_mask:{1<<g:#x} bank_mask:0xf")
    vY = vO
    yreg = [vO, vO+4, vO+8, vO+12, vQ+16, vQ+20, vQ+24]
    for t in range(7):
        A(f"v_mfma_f32_16x16x32_bf16 v[{yreg[t]}:{yreg[t]+3}], v[{vA}:{vA+3}], v[{vWO+4*t}:{vWO+4*t+3}], 0")
    A(f"v_mov_b32 v{vG+1}, {sTAG}"); A(f"v_mov_b32 v{vG+3}, {sTAG}")
    SEL4(vG, yreg[0], yreg[1], yreg[2], yreg[3], vMX)
    A(f"global_store_dwordx2 v{vBA}, v[{vG}:{vG+1}], {pWS} {stf}")
    A(f"v_cndmask_b32 v{vG+2}, v{yreg[4]}, v{yreg[5]}, {sM1}"); A(f"v_cndmask_b32 v{vG+2}, v{vG+2}, v{yreg[6]}, {sM2}")
    A("s_mov_b32 exec_hi, 0xffff")
    A(f"global_store_dwordx2 v{vBA2}, v[{vG+2}:{vG+3}], {pWS} {stf}")
    A("s_mov_b64 exec, -1")
    stamp(6)
    A(f"s_cmp_lt_u32 {sIDX}, 28"); A("s_cbranch_scc1 L_ffn")
    A(f"s_cmp_ge_u32 {sRR}, 56"); A("s_cbranch_scc1 L_done")
    A(f"s_lshl_b32 {sT0}, {sRR}, 14"); A(f"s_lshl_b32 {sT1}, {sW}, 12"); A(f"s_add_u32 {sT0}, {sT0}, {sT1}"); A(f"s_add_u32 {sT0}, {sT0}, {WS_B}")
    A(f"v_lshl_add_u32 v{vAI}, v{vLANE}, 4, {sT0}")
    A(f"s_lshl_b32 {sT0}, {sW}, 6"); A(f"s_add_u32 {sT0}, {sT0}, {L_RED}")
    A(f"v_and_b32 v{vTM}, 7, v{vLANE}"); A(f"v_lshl_add_u32 v{vAA}, v{vTM}, 3, {sT0}")
    A(f"v_lshlrev_b32 v{vBA}, 3, v{vTM}"); A(f"v_add_u32 v{vBA2}, {L_RED}, v{vBA}")
    A(f"s_lshl_b32 {sT0}, {sRR}, 6"); A(f"s_add_u32 {sT0}, {sT0}, {WS_H}"); A(f"v_add_u32 v{vBA}, {sT0}, v{vBA}")
    def red_inbox(nld, lastmask=None):
        loads=[]
        for i in range(nld):
            l = f"global_load_dwordx4 v[{vI+4*i}:{vI+4*i+3}], v{vAI}, {pWS} offset:{i*1024} {ldf}"
            loads.append(l)
        return loads
    def sum_inbox():
        A(f"v_add_f32 v{sa}, v{vI}, v{vI+4}"); A(f"v_add_f32 v{sb}, v{vI+2}, v{vI+6}")
        A(f"v_add_f32 v{vS+2}, v{vI+8}, v{vI+12}"); A(f"v_add_f32 v{vS+3}, v{vI+10}, v{vI+14}")
        A(f"v_add_f32 v{sa}, v{sa}, v{vS+2}"); A(f"v_add_f32 v{sb}, v{sb}, v{vS+3}")
        A(f"v_add_f32_dpp v{sa}, v{sa}, v{sa} row_ror:8 row_mask:0xf bank_mask:0xf")
        A(f"v_add_f32_dpp v{sb}, v{sb}, v{sb} row_ror:8 row_mask:0xf bank_mask:0xf")
        xrow("v_add_f32", [sa, sb], [vS+2, vS+3])
    poll(red_inbox(4), [[vI+4*i+1, vI+4*i+3] for i in range(4)])
    stamp(7)
    sum_inbox()
    A("s_mov_b64 exec, 0xff"); A(f"ds_write_b64 v{vAA}, v[{sa}:{sb}]"); A("s_mov_b64 exec, -1")
    A("s_waitcnt lgkmcnt(0)"); A("s_barrier")
    A(f"s_cmp_lg_u32 {sW}, 0"); A("s_cbranch_scc1 L_done")
    for i in range(4): A(f"ds_read_b64 v[{vI+2*i}:{vI+2*i+1}], v{vBA2} offset:{i*64}")
    A(f"v_lshlrev_b32 v{vTM2}, 16, v{vXH}"); A(f"v_and_b32 v{vTM3}, 0xffff0000, v{vXH}")
    A(f"v_mov_b32 v{vG+1}, {sTAG}")
    A("s_waitcnt lgkmcnt(0)")
    A(f"v_pk_add_f32 v[{vI}:{vI+1}], v[{vI}:{vI+1}], v[{vI+2}:{vI+3}]"); A(f"v_pk_add_f32 v[{vI+4}:{vI+5}], v[{vI+4}:{vI+5}], v[{vI+6}:{vI+7}]")
    A(f"v_pk_add_f32 v[{vI}:{vI+1}], v[{vI}:{vI+1}], v[{vI+4}:{vI+5}]")
    A(f"v_cvt_pk_bf16_f32 v{vTM}, v{vI}, v{vI+1}")
    A(f"v_lshlrev_b32 v{vI}, 16, v{vTM}"); A(f"v_and_b32 v{vI+1}, 0xffff0000, v{vTM}")
    A(f"v_add_f32 v{vI}, v{vI}, v{vTM2}"); A(f"v_add_f32 v{vI+1}, v{vI+1}, v{vTM3}")
    A(f"v_cvt_pk_bf16_f32 v{vG}, v{vI}, v{vI+1}")
    A("s_mov_b64 exec, 0xff"); A(f"global_store_dwordx2 v{vBA}, v[{vG}:{vG+1}], {pWS} {stf}"); A("s_mov_b64 exec, -1")
    stamp(8)
    A(f"s_lshl_b32 {sT0}, {sRR}, 12"); A(f"s_add_u32 {sT0}, {sT0}, {WS_D}")
    A(f"v_lshl_add_u32 v{vAI}, v{vLANE}, 4, {sT0}")
    A(f"v_lshlrev_b32 v{vTM2}, 16, v{vG}"); A(f"v_and_b32 v{vTM3}, 0xffff0000, v{vG}")
    A(f"v_mov_b32 v{vI+12}, 0"); A(f"v_mov_b32 v{vI+13}, {sTAG}"); A(f"v_mov_b32 v{vI+14}, 0"); A(f"v_mov_b32 v{vI+15}, {sTAG}")
    A(f"s_lshl_b32 {sT0}, {sRR}, 5"); A(f"v_and_b32 v{vTM}, 7, v{vLANE}"); A(f"v_lshl_add_u32 v{vAA}, v{vTM}, 2, {sT0}")
    poll(red_inbox(4), [[vI+4*i+1, vI+4*i+3] for i in range(4)], first_mask=[-1,-1,-1,"s[66:67]"])
    stamp(9)
    sum_inbox()
    A(f"v_cvt_pk_bf16_f32 v{vTM}, v{sa}, v{sb}")
    A(f"v_lshlrev_b32 v{sa}, 16, v{vTM}"); A(f"v_and_b32 v{sb}, 0xffff0000, v{vTM}")
    A(f"v_add_f32 v{sa}, v{sa}, v{vTM2}"); A(f"v_add_f32 v{sb}, v{sb}, v{vTM3}")
    A(f"v_cvt_pk_bf16_f32 v{vTM}, v{sa}, v{sb}")
    A("s_mov_b64 exec, 0xff"); A(f"global_store_dword v{vAA}, v{vTM}, {pOUT}")
    A(f"s_cmp_lg_u32 {sRR}, 0"); A("s_cbranch_scc1 L_done")
    A(f"s_add_u32 {sT0}, {sE}, 1"); A(f"v_mov_b32 v{vTM2}, {sT0}"); A(f"v_mov_b32 v{vTM3}, {WS_E}")
    A("s_mov_b64 exec, 1"); A(f"global_store_dword v{vTM3}, v{vTM2}, {pWS} {stf}")
    if enc:
        A("s_memrealtime s[90:91]"); A("s_waitcnt lgkmcnt(0)")
        A(f"s_sub_u32 {sT0}, s{70+2*enc[1]}, s{70+2*enc[0]}"); A(f"s_lshl_b32 {sT0}, {sT0}, 2"); A(f"s_min_u32 {sT0}, {sT0}, 100000")
        E.label("L_enc")
        A("s_memrealtime s[94:95]"); A("s_waitcnt lgkmcnt(0)")
        A(f"s_sub_u32 {sT1}, s94, s90"); A(f"s_cmp_lt_u32 {sT1}, {sT0}"); A("s_cbranch_scc1 L_enc")
    A("s_branch L_done")
    E.label("L_ffn")
    hr = vQ+24; f14 = vO; vLW = vQ; vLR = vQ+1; vAW = vQ+2; vAR = vQ+3; vDA = vQ+5
    ln_addrs(vLW, vLR, shared=bool(one))
    A(f"v_lshrrev_b32 v{vAI+5}, 5, v{vLANE}"); A(f"v_mul_u32_u24 v{vAI+5}, 1792, v{vAI+5}")
    A(f"v_and_b32 v{vTM}, 31, v{vLANE}"); A(f"v_lshl_add_u32 v{vAI+5}, v{vTM}, 3, v{vAI+5}"); A(f"v_add_u32 v{vAI+5}, {WS_H}, v{vAI+5}")
    vHA = vAI+5
    A(f"s_lshl_b32 {sT0}, {sW}, 5"); A(f"s_add_u32 {sT0}, {sT0}, {L_ACT2}")
    A(f"v_lshlrev_b32 v{vAW}, 7, v{vG4}"); A(f"v_lshl_add_u32 v{vAW}, v{vN}, 1, v{vAW}"); A(f"v_add_u32 v{vAW}, {sT0}, v{vAW}")
    A(f"v_and_b32 v{vAR}, 1, v{vLANE}"); A(f"v_lshlrev_b32 v{vAR}, 7, v{vAR}"); A(f"v_lshl_add_u32 v{vAR}, v{vG4}, 3, v{vAR}"); A(f"v_add_u32 v{vAR}, {L_ACT2}, v{vAR}")
    A(f"s_mul_i32 {sT0}, {sW}, 7"); A(f"s_lshl_b32 {sT0}, {sT0}, 5"); A(f"s_add_u32 {sT0}, {sT0}, {sIDX}"); A(f"s_lshl_b32 {sT0}, {sT0}, 7"); A(f"s_add_u32 {sT0}, {sT0}, {WS_D}")
    A(f"v_and_b32 v{vTM}, 1, v{vG4}"); A(f"v_mul_u32_u24 v{vTM}, 28, v{vTM}"); A(f"v_lshrrev_b32 v{vTM2}, 1, v{vG4}"); A(f"v_add_u32 v{vTM}, v{vTM}, v{vTM2}")
    A(f"v_lshlrev_b32 v{vTM}, 12, v{vTM}"); A(f"v_lshl_add_u32 v{vTM}, v{vN}, 3, v{vTM}"); A(f"v_add_u32 v{vDA}, {sT0}, v{vTM}")
    if one: A(f"s_cmp_lg_u32 {sW}, 0"); A("s_cbranch_scc1 L_c_join")
    poll([f"global_load_dwordx2 v[{vF+2*u}:{vF+2*u+1}], v{vHA}, {pWS} offset:{u*256} {ldf}" for u in range(7)], [[vF+2*u+1] for u in range(7)])
    stamp(7)
    for u in range(7): A(f"v_mov_b32 v{hr+u}, v{vF+2*u}")
    layernorm(hr, f14, vLW)
    A("s_waitcnt lgkmcnt(0)")
    if one:
        E.label("L_c_join"); A("s_barrier")
    seq = list(range(14))
    def aread(i):
        r = vF + 4*(i % NF); A(f"ds_read_b128 v[{r}:{r+3}], v{vLR} offset:{i*64}")
    for i in range(NF): aread(i)
    for i in range(14):
        r = vF + 4*(i % NF)
        A(f"s_waitcnt lgkmcnt({min(NF-1, 13-i)})")
        A(f"v_mfma_f32_16x16x32_bf16 v[{vS}:{vS+3}], v[{r}:{r+3}], v[{vW1+4*i}:{vW1+4*i+3}], {'0' if i==0 else f'v[{vS}:{vS+3}]'}")
        if i + NF < 14: aread(i+NF)
    A(f"v_cndmask_b32 v{vTM}, v{vS}, v{vS+1}, {sM1}")
    round_bf(vTM, vTM)
    A(f"v_mul_f32 v{vTM2}, {(LOG2E | 0x80000000):#x}, v{vTM}")
    A(f"v_exp_f32 v{vTM2}, v{vTM2}")
    A(f"v_add_f32 v{vTM2}, 1.0, v{vTM2}")
    A(f"v_rcp_f32 v{vTM2}, v{vTM2}")
    A(f"v_mul_f32 v{vTM}, v{vTM}, v{vTM2}")
    A(f"v_cvt_pk_bf16_f32 v{vTM}, v{vTM}, v{vTM}")
    A("s_mov_b32 exec_hi, 0"); A(f"ds_write_b16 v{vAW}, v{vTM}"); A("s_mov_b32 exec_hi, -1")
    A("s_waitcnt lgkmcnt(0)"); A("s_barrier")
    for ks in range(2):
        for h2 in range(2):
            r = vF + 4*ks + 2*h2
            A(f"ds_read_b64 v[{r}:{r+1}], v{vAR} offset:{ks*64+h2*32}")
    zreg = [vW1+4*t for t in range(7)]
    for ks in range(2):
        A(f"s_waitcnt lgkmcnt({2-2*ks})")
        for t in range(7):
            d = f"v[{zreg[t]}:{zreg[t]+3}]"
            A(f"v_mfma_f32_16x16x32_bf16 {d}, v[{vF+4*ks}:{vF+4*ks+3}], v[{vW2+28*ks+4*t}:{vW2+28*ks+4*t+3}], {'0' if ks==0 else d}")
    for u in range(4):
        A(f"v_mov_b32 v{vO+2*u+1}, {sTAG}")
        if u: A(f"v_add_u32 v{vDA+u}, {u*8192}, v{vDA}")
    for u in range(4):
        if u < 3: SEL4(vO+2*u, zreg[2*u], zreg[2*u]+1, zreg[2*u+1], zreg[2*u+1]+1, vMX)
        else:
            A(f"v_cndmask_b32 v{vO+2*u}, v{zreg[6]}, v{zreg[6]+1}, {sM1}"); A("s_mov_b32 exec_hi, 0")
        A(f"global_store_dwordx2 v{vDA+u}, v[{vO+2*u}:{vO+2*u+1}], {pWS} {stf}")
    stamp(8)
    E.label("L_done")
    if diag:
        stamp(10)
        A("s_mov_b64 exec, -1")
        A(f"s_lshl_b32 {sT0}, {sWG}, 2"); A(f"s_add_u32 {sT0}, {sT0}, {sW}"); A(f"s_lshl_b32 {sT0}, {sT0}, 7"); A(f"s_add_u32 {sT0}, {sT0}, {WS_ST}")
        A("s_getreg_b32 s100, hwreg(HW_REG_XCC_ID)")
        A("s_waitcnt lgkmcnt(0)")
        A(f"v_mov_b32 v{vTM}, {sT0}")
        A("s_mov_b64 exec, 1")
        for k in range(11):
            A(f"v_mov_b32 v{vF+k}, s{70+2*k}")
        A(f"v_mov_b32 v{vF+11}, s100"); A(f"v_mov_b32 v{vF+12}, {sN}"); A(f"v_mov_b32 v{vF+13}, {sROLE}"); A(f"v_mov_b32 v{vF+14}, {sSPIN}"); A(f"v_mov_b32 v{vF+15}, {sIDX}")
        for k in range(4): A(f"v_mov_b32 v{vF+16+k}, s{92+2*k}")
        for q in range(5): A(f"global_store_dwordx4 v{vTM}, v[{vF+4*q}:{vF+4*q+3}], {pWS} offset:{q*16}")
        if diag == 2:
            A(f"v_mov_b32 v{vTM2}, 0")
            for slot,(k,inv) in enumerate([(0,1),(0,0),(2,0),(3,1),(3,0),(5,0),(6,0),(10,0)]):
                A(f"s_not_b32 {sT1}, s{70+2*k}" if inv else f"s_mov_b32 {sT1}, s{70+2*k}")
                A(f"v_mov_b32 v{vTM3}, {sT1}")
                A(f"global_atomic_umax v{vTM2}, v{vTM3}, s[22:23] offset:{slot*4}")
    E.label("L_end")
    A("s_endpgm")

    body = E.finish()
    head = open("sequential_preLN__gqa_block_cached__dense_activation_silu__decode.s.ref").read().split("; Override launch")[0]
    src = head + f"""; One persistent launch: 256 workgroups (one per CU), wave 0 streams K/V into an LDS ring, waves 1-4 compute.
; @launch grid=(256,1,1) block=(320,1,1) lds={LDS}
.amdgcn_target "amdgcn-amd-amdhsa--gfx950"
.text
.globl {NAME}
.p2align 8
.type {NAME},@function
{NAME}:
{body}.section .rodata,"a"
.p2align 6
.amdhsa_kernel {NAME}
  .amdhsa_next_free_vgpr 256
  .amdhsa_next_free_sgpr 102
  .amdhsa_accum_offset 256
  .amdhsa_group_segment_fixed_size 0
  .amdhsa_kernarg_size 88
  .amdhsa_user_sgpr_count 2
  .amdhsa_user_sgpr_kernarg_segment_ptr 1
  .amdhsa_system_sgpr_workgroup_id_x 1
.end_amdhsa_kernel
"""
    return src, E.npad

if __name__ == "__main__":
    out = sys.argv[1]
    kw = json.loads(sys.argv[2]) if len(sys.argv) > 2 else {}
    src, npad = gen(**kw)
    open(out, "w").write(src)
    print("wrote", out, "lines", src.count("\n"), "pad states", npad)
```

```python
import sys, json, struct
from emit import Emitter

NAME = "sequential_preLN__gqa_block_cached__dense_activation_silu__decode_kernel"
def f2u(x): return struct.unpack("<I", struct.pack("<f", x))[0]

def gen(W=20, NS=48, diag=False, pol="nt", hilo=False, spin=1<<22, enc=None, warm=1, pfcode=1, wo_end=0, WD=None, NF=5, M=128):
    E = Emitter(); A = E
    if WD is None: WD = W
    NSLOT = 9; SLOT = 16384; RING = NSLOT*SLOT
    L_LANDED = RING; L_CONS = RING+16; L_RED = RING+256; L_OP = RING+512; L_ACT = RING+768; L_QW = RING+1024; L_LN = RING+5120
    LDS = 163840
    WS_E = 0; WS_CNT = 0x1000; WS_H = 0x3000; WS_Q = 0x8000; WS_D = 0x40000; WS_A = 0x100000; WS_B = 0x200000; WS_ST = 0x400000
    C_SCALE = f2u(1.4426950408889634/16.0); LOG2E = f2u(1.4426950408889634); INV448 = f2u(1.0/448.0); EPS = f2u(1e-5)
    stf = ldf = "sc1"
    sWG="s2"; sWAVE="s3"
    pX="s[4:5]"; pK=(6,7); pV=(8,9); pWQ=(10,11); pWO=(12,13); pW1=(16,17); pW2=(18,19); pOUT="s[20:21]"; pWS="s[24:25]"
    sG="s26"; sJ="s27"; sROLE="s28"; sB="s29"; sHKV="s30"; sN="s31"; sSLOT="s32"; sKNOWN="s33"; sT0="s34"; sT1="s35"; sT2="s36"
    sCI="s37"; sSPIN="s38"; sIDX="s39"
    uid=[0]
    def lab(p): uid[0]+=1; return f"L_{p}_{uid[0]}"
    def stamp(k):
        if not diag and not (enc and k in (0, enc[0], enc[1])): return
        A(f"s_memrealtime s[{70+2*k}:{71+2*k}]")
    def slot_advance():
        A(f"s_add_u32 {sN}, {sN}, 1")
        A(f"s_add_u32 {sSLOT}, {sSLOT}, {SLOT}")
        A(f"s_cmp_eq_u32 {sSLOT}, {RING}")
        A(f"s_cselect_b32 {sSLOT}, 0, {sSLOT}")

    A(f"s_cmp_ge_u32 {sWG}, 256")
    A("s_cbranch_scc1 L_end")
    stamp(0)
    A("s_load_dwordx16 s[4:19], s[0:1], 0")
    A("s_load_dwordx4 s[20:23], s[0:1], 64")
    A("s_load_dwordx2 s[24:25], s[0:1], 80")
    A("v_lshrrev_b32 v1, 6, v0")
    A("v_and_b32 v0, 63, v0")
    A(f"v_readfirstlane_b32 {sWAVE}, v1")
    A(f"s_lshr_b32 {sG}, {sWG}, 4")
    A(f"s_and_b32 {sJ}, {sWG}, 15")
    A(f"s_sub_u32 {sROLE}, {sJ}, {sG}")
    A(f"s_and_b32 {sROLE}, {sROLE}, 15")
    A(f"s_lshr_b32 {sB}, {sG}, 3")
    A(f"s_and_b32 {sHKV}, {sG}, 7")
    A(f"s_mov_b32 {sN}, 0"); A(f"s_mov_b32 {sSLOT}, 0"); A(f"s_mov_b32 {sKNOWN}, 0"); A(f"s_mov_b32 {sCI}, 0")
    A(f"s_mov_b32 {sSPIN}, {spin}")
    A(f"s_sub_u32 {sT0}, {sROLE}, 8")
    A(f"s_lshl_b32 {sIDX}, {sG}, 1")
    A(f"s_add_u32 {sIDX}, {sIDX}, {sT0}")
    A(f"s_cmp_lt_u32 {sT0}, 2")
    A(f"s_cselect_b32 {sIDX}, {sIDX}, 99")
    A(f"v_lshlrev_b32 v1, 2, v0"); A(f"v_add_u32 v1, {L_LANDED}, v1"); A("v_mov_b32 v2, 0")
    A("s_mov_b64 exec, 6"); A("v_mov_b32 v2, 0x7fffffff")
    A("s_mov_b64 exec, 0xff"); A("ds_write_b32 v1, v2"); A("s_mov_b64 exec, -1")
    A(f"s_cmp_lg_u32 {sWAVE}, 0")
    A("s_cbranch_scc1 L_consumer")

    vK=[4+i for i in range(8)]; vV=[12+i for i in range(4)]; vLIN=16; vTQ=[17,18]; vT1=[19,20]; vFL=21; vTMP=22; vC=24
    srdK="s[40:43]"; srdV="s[44:47]"; srdW="s[48:51]"; srdZ="s[52:55]"
    sCUR="s56"; sGB="s57"; sOFF="s58"; sCLM="s59"; sCOFF="s60"; sBASE="s61"; sFLOOR="s62"
    A("s_setprio 3")
    A("v_lshrrev_b32 v1, 5, v0"); A("v_and_b32 v2, 31, v0")
    A("v_xor_b32 v3, v2, v1"); A("v_lshlrev_b32 v3, 4, v3"); A("v_lshl_or_b32 v3, v1, 9, v3")
    for i in range(8): A(f"v_xor_b32 v{vK[i]}, {i*32}, v3")
    A("v_lshlrev_b32 v3, 1, v1"); A("v_xor_b32 v3, v2, v3"); A("v_lshlrev_b32 v3, 4, v3"); A("v_lshl_or_b32 v3, v1, 9, v3")
    for i in range(4): A(f"v_xor_b32 v{vV[i]}, {i*64}, v3")
    A(f"v_lshlrev_b32 v{vLIN}, 4, v0")
    A("v_lshrrev_b32 v1, 3, v0"); A("v_and_b32 v2, 7, v0"); A("v_lshrrev_b32 v3, 3, v0"); A("v_and_b32 v3, 2, v3"); A("v_xor_b32 v2, v2, v3")
    A("v_lshlrev_b32 v2, 4, v2")
    A(f"v_lshl_or_b32 v{vTQ[0]}, v1, 13, v2"); A(f"v_xor_b32 v{vTQ[1]}, 64, v{vTQ[0]}")
    A(f"v_mul_u32_u24 v3, 3584, v1")
    A(f"v_add_u32 v{vT1[0]}, v3, v2"); A("v_xor_b32 v2, 64, v2"); A(f"v_add_u32 v{vT1[1]}, v3, v2")
    A(f"v_mov_b32 v{vFL}, {L_LANDED}")
    A(f"s_lshl_b32 {sGB}, {sG}, 24"); A(f"s_mov_b32 {sFLOOR}, 0")
    A(f"s_mul_i32 {sCUR}, {sJ}, {2*NS}")
    A(f"s_lshl_b32 {sCOFF}, {sG}, 8"); A(f"s_add_u32 {sCOFF}, {sCOFF}, {WS_CNT}")
    A("s_waitcnt lgkmcnt(0)")
    A(f"s_mov_b32 s40, s{pK[0]}"); A(f"s_mov_b32 s41, s{pK[1]}"); A("s_mov_b32 s42, 0x10000000"); A("s_mov_b32 s43, 0x20000")
    A(f"s_mov_b32 s44, s{pV[0]}"); A(f"s_mov_b32 s45, s{pV[1]}"); A("s_mov_b32 s46, 0x10000000"); A("s_mov_b32 s47, 0x20000")
    A(f"s_mov_b32 s52, s{pK[0]}"); A(f"s_mov_b32 s53, s{pK[1]}"); A("s_mov_b32 s54, 0"); A("s_mov_b32 s55, 0x20000")
    A("s_mov_b32 s51, 0x20000")
    A("s_barrier")
    def pub_reg():
        A("s_mov_b64 exec, 1"); A(f"ds_write_b32 v{vFL}, v{vTMP}"); A("s_mov_b64 exec, -1")
    def publish(back):
        A(f"s_sub_u32 {sT0}, {sN}, {back}"); A(f"s_max_i32 {sT0}, {sT0}, {sFLOOR}")
        A(f"v_mov_b32 v{vTMP}, {sT0}"); pub_reg()
    def throttle(i, w):
        assert w in (16,20,24,28,32)
        if i % 4 == 3:
            A(f"s_waitcnt vmcnt({w})")
            if w == 16:
                if i == 15: publish(0)
            elif i//4 == (w-16)//4 - 1: publish(1)
    def tile_rows(specs, w):
        for i,(srd,vo,so) in enumerate(specs):
            if i % 4 == 0:
                A(f"s_add_u32 m0, {sSLOT}, {i*1024}" if i else f"s_mov_b32 m0, {sSLOT}")
                A(f"s_add_u32 {sOFF}, {sBASE}, {so}")
            A(f"buffer_load_dwordx4 v{vo}, {srd}, {sOFF} offen offset:{(i%4)*1024} {pol} lds")
            throttle(i, w)
        slot_advance()
    def tile_tall(voffs, rowstride, t, nvalid):
        for i in range(16):
            A(f"s_add_u32 m0, {sSLOT}, {i*1024}" if i else f"s_mov_b32 m0, {sSLOT}")
            A(f"s_add_u32 {sOFF}, {sBASE}, {(t*128+i*8)*rowstride}")
            A(f"buffer_load_dwordx4 v{voffs[i&1]}, {srdW if i < nvalid else srdZ}, {sOFF} offen {pol} lds")
            throttle(i, W)
        slot_advance()
    def tile_wide(t, w=W): tile_rows([(srdW if i < 14 else srdZ, vLIN, t*14336+i*1024) for i in range(16)], w)
    def freecheck(k):
        ok = lab("free"); lp = lab("freepoll")
        A(f"s_add_u32 {sT1}, {sN}, {k}")
        A(f"s_add_u32 {sT0}, {sKNOWN}, {NSLOT}")
        A(f"s_cmp_ge_u32 {sT0}, {sT1}"); A(f"s_cbranch_scc1 {ok}")
        E.label(lp)
        A(f"ds_read_b128 v[{vC}:{vC+3}], v{vFL} offset:16")
        A(f"s_sub_u32 {sSPIN}, {sSPIN}, 1"); A("s_cbranch_scc1 L_end")
        A("s_waitcnt lgkmcnt(0)")
        A(f"v_min3_u32 v{vC}, v{vC}, v{vC+1}, v{vC+2}"); A(f"v_min_u32 v{vC}, v{vC}, v{vC+3}")
        A(f"v_readfirstlane_b32 {sKNOWN}, v{vC}")
        A(f"s_add_u32 {sT0}, {sKNOWN}, {NSLOT}")
        A(f"s_cmp_ge_u32 {sT0}, {sT1}"); A(f"s_cbranch_scc1 {ok}")
        A("s_sleep 1")
        A(f"s_branch {lp}")
        E.label(ok)
    def setW(p, nbytes):
        A(f"s_mov_b32 s48, s{p[0]}"); A(f"s_mov_b32 s49, s{p[1]}"); A(f"s_mov_b32 s50, {nbytes}")
    A(f"s_cmp_ge_u32 {sROLE}, 4"); A("s_cbranch_scc1 L_ld_noq")
    setW(pWQ, 448*4096*2)
    A(f"s_lshl_b32 {sBASE}, {sHKV}, 10"); A(f"s_lshl_b32 {sT0}, {sB}, 2"); A(f"s_add_u32 {sT0}, {sT0}, {sROLE}"); A(f"s_lshl_b32 {sT0}, {sT0}, 7")
    A(f"s_add_u32 {sBASE}, {sBASE}, {sT0}")
    for i in range(56):
        A(f"s_mov_b32 m0, {i*1024}")
        A(f"s_add_u32 {sOFF}, {sBASE}, {i*8*8192}")
        A(f"buffer_load_dwordx4 v{vTQ[i&1]}, {srdW}, {sOFF} offen {pol} lds")
    for k,c in enumerate((40,24,8,0)):
        A(f"s_waitcnt vmcnt({c})"); A(f"v_mov_b32 v{vTMP}, {k+1}"); pub_reg()
    A(f"s_mov_b32 {sN}, 4"); A(f"s_mov_b32 {sSLOT}, {4*SLOT}"); A(f"s_mov_b32 {sFLOOR}, 4")
    E.label("L_ld_noq")
    def wo_base():
        setW(pWO, 4096*448*2)
        A(f"s_lshl_b32 {sT0}, {sHKV}, 4"); A(f"s_add_u32 {sT0}, {sT0}, {sJ}"); A(f"s_mul_i32 {sBASE}, {sT0}, {32*896}")
    if not wo_end:
        wo_base()
        for t in range(2): tile_wide(t)
    A(f"s_cmp_ge_u32 {sIDX}, 28"); A(f"s_cbranch_scc1 L_ld_noffn")
    setW(pW1, 448*1792*2)
    A(f"s_lshl_b32 {sBASE}, {sIDX}, 7")
    for t in range(4):
        if t % 2 == 0: freecheck(2)
        tile_tall(vT1, 3584, t, 16 if t < 3 else 8)
    setW(pW2, 1792*448*2)
    A(f"s_mul_i32 {sBASE}, {sIDX}, {64*896}")
    for t in range(4):
        if t % 2 == 0: freecheck(2)
        tile_wide(t)
    E.label("L_ld_noffn")
    def claim():
        A(f"s_mov_b32 {sCLM}, 1"); A(f"s_atomic_add {sCLM}, {pWS}, {sCOFF} glc")
    vCA=28; vONE=29; vCL=[30,31]
    def vclaim_issue(p):
        A("s_mov_b64 exec, 1"); A(f"global_atomic_add v{vCL[p]}, v{vCA}, v{vONE}, {pWS} sc0"); A("s_mov_b64 exec, -1")
    A(f"v_mov_b32 v{vCA}, {sCOFF}"); A(f"v_mov_b32 v{vONE}, 1")
    POOL = 2048-32*NS; TH = max(POOL-M, 0); sLAST="s63"; vTWO=23
    assert WD <= 32 and W <= 32
    A(f"v_mov_b32 v{vTWO}, 2"); A(f"s_mov_b32 {sLAST}, {1 if TH == 0 else 0}")
    def pub_word(off, sreg):
        A(f"v_mov_b32 v{vTMP}, {sreg}")
        A("s_mov_b64 exec, 1"); A(f"ds_write_b32 v{vFL}, v{vTMP} offset:{off}"); A("s_mov_b64 exec, -1")
    E.label("L_ld_loop")
    if diag:
        for k,c in enumerate((0,2,3,4,6,8,16,32,NS-1)):
            sk=lab("ls"); A(f"s_cmp_lg_u32 {sCI}, {c}"); A(f"s_cbranch_scc1 {sk}"); A(f"s_memrealtime s[{72+2*k}:{73+2*k}]"); A("s_waitcnt lgkmcnt(0)"); E.label(sk)
    freecheck(2)
    A(f"s_add_u32 {sCI}, {sCI}, 1")
    A(f"s_cmp_lt_u32 {sCI}, {NS}"); A("s_cbranch_scc1 L_ld_noclaim")
    A(f"s_cmp_eq_u32 {sLAST}, 0"); A("s_cbranch_scc0 L_ld_last")
    A("s_mov_b64 exec, 1"); A(f"global_atomic_add v{vCL[0]}, v{vCA}, v{vTWO}, {pWS} sc0"); A("s_mov_b64 exec, -1")
    A("s_branch L_ld_noclaim")
    E.label("L_ld_last")
    A(f"s_add_u32 {sT0}, {sN}, 2"); pub_word(8, sT0)
    vclaim_issue(0)
    E.label("L_ld_noclaim")
    A(f"s_lshl_b32 {sBASE}, {sCUR}, 13"); A(f"s_add_u32 {sBASE}, {sBASE}, {sGB}")
    tile_rows([(srdK, vK[i%8], i*1024) for i in range(16)], W)
    A(f"s_cmp_lt_u32 {sCI}, {NS}"); A("s_cbranch_scc1 L_ld_noclaim2")
    A(f"s_cmp_eq_u32 {sLAST}, 0"); A("s_cbranch_scc1 L_ld_noclaim2")
    vclaim_issue(1)
    E.label("L_ld_noclaim2")
    tile_rows([(srdV, vV[i%4], i*1024) for i in range(16)], W)
    A(f"s_add_u32 {sCUR}, {sCUR}, 2")
    A(f"s_cmp_lt_u32 {sCI}, {NS}"); A("s_cbranch_scc1 L_ld_loop")
    A(f"s_cmp_eq_u32 {sLAST}, 0"); A("s_cbranch_scc0 L_ld_mini")
    A(f"v_readfirstlane_b32 {sCLM}, v{vCL[0]}")
    A(f"s_add_u32 {sCUR}, {sCLM}, {32*NS}")
    A(f"s_cmp_ge_u32 {sCLM}, {TH}"); A(f"s_cselect_b32 {sLAST}, 1, 0")
    A(f"s_cmp_lt_u32 {sCLM}, {POOL-1}"); A("s_cbranch_scc1 L_ld_loop")
    pub_word(8, sN)
    A(f"v_mov_b32 v{vCL[1]}, {POOL}")
    E.label("L_ld_mini")
    if pfcode:
        A("s_getpc_b64 s[64:65]")
        E.label("L_pc")
        A("s_add_u32 s64, s64, L_fin-L_pc"); A("s_addc_u32 s65, s65, 0")
        A(f"v_lshlrev_b32 v47, 6, v0"); A("v_min_u32 v47, L_end-L_fin, v47")
        A("global_load_dword v48, v47, s[64:65]")
    E.label("L_ld_dyn")
    for p in range(2):
        A(f"v_readfirstlane_b32 {sCLM}, v{vCL[p]}")
        A(f"s_cmp_ge_u32 {sCLM}, {POOL}"); A("s_cbranch_scc1 L_ld_dyn_done")
        A(f"s_add_u32 {sCUR}, {sCLM}, {32*NS}")
        freecheck(1)
        vclaim_issue(p)
        A(f"s_lshl_b32 {sBASE}, {sCUR}, 13"); A(f"s_add_u32 {sBASE}, {sBASE}, {sGB}")
        tile_rows([(srdK, vK[i], i*1024) for i in range(8)] + [(srdV, vV[i%4], i*1024) for i in range(8)], WD)
    A("s_branch L_ld_dyn")
    E.label("L_ld_dyn_done")
    A(f"v_mov_b32 v{vTMP}, {sN}")
    A("s_mov_b64 exec, 1"); A(f"ds_write_b32 v{vFL}, v{vTMP} offset:4"); A("s_mov_b64 exec, -1")
    if wo_end:
        wo_base(); freecheck(2)
        for t in range(2):
            for i in range(14):
                if i % 4 == 0:
                    A(f"s_add_u32 m0, {sSLOT}, {i*1024}" if i else f"s_mov_b32 m0, {sSLOT}")
                    A(f"s_add_u32 {sOFF}, {sBASE}, {t*14336+i*1024}")
                A(f"buffer_load_dwordx4 v{vLIN}, {srdW}, {sOFF} offen offset:{(i%4)*1024} {pol} lds")
            slot_advance()
        for c,back in ((44,3),(28,2),(14,1),(0,0)):
            A(f"s_waitcnt vmcnt({c})"); publish(back)
    else:
        for c,back in ((16,1),(0,0)):
            A(f"s_waitcnt vmcnt({c})"); publish(back)
    if diag:
        A("s_mov_b64 exec, 1")
        A("s_memrealtime s[90:91]")
        A(f"s_lshl_b32 {sT0}, {sWG}, 6"); A(f"s_add_u32 {sT0}, {sT0}, {WS_ST+0x40000}"); A(f"v_mov_b32 v46, {sT0}")
        A("s_waitcnt lgkmcnt(0)")
        for k in range(11): A(f"v_mov_b32 v{32+k}, s{70+2*k}")
        A(f"v_mov_b32 v43, {sSPIN}")
        for q in range(3): A(f"global_store_dwordx4 v46, v[{32+4*q}:{35+4*q}], {pWS} offset:{q*16}")
    A("s_waitcnt lgkmcnt(0)")
    A("s_endpgm")

    E.label("L_consumer")
    sW="s40"; sTAG="s41"; sM1="s[42:43]"; sM2="s[44:45]"; sC="s46"; sE="s47"; sRR="s48"; sTOT="s49"
    sCK=["s[50:51]","s[52:53]","s[54:55]","s[56:57]"]; sCOL="s58"; sGP="s59"; sSWI="s60"
    vLANE=0; vN=1; vG4=2; vFLG=3; vCONS=4; vTM=5; vTM2=6; vTM3=7
    vM=8; vMC=9; vL=10; vMX=11
    vKB=[12,13,14,15]; vVB=[16,17,18,19]; vAD=[20,21,22,23]
    vS=24; vP=32; vO=36; vQ=52; vF=84
    vAA=104; vAI=105; vBA=106; vPOLL=None
    assert NF <= 5
    vWO=108; vW1=136; vW2=192; vX=248; vXH=254
    def P(r): return f"v[{r}:{r+1}]"
    def Q4(r): return f"v[{r}:{r+3}]"
    def SEL4(dst, a, b, c, d, t):
        A(f"v_cndmask_b32 v{dst}, v{a}, v{b}, {sM1}"); A(f"v_cndmask_b32 v{t}, v{c}, v{d}, {sM1}"); A(f"v_cndmask_b32 v{dst}, v{dst}, v{t}, {sM2}")
    def xrow(op, regs, tmps):
        for sw in ("v_permlane16_swap_b32","v_permlane32_swap_b32"):
            for r,t in zip(regs,tmps): A(f"v_mov_b32 v{t}, v{r}")
            for r,t in zip(regs,tmps): A(f"{sw} v{r}, v{t}")
            for r,t in zip(regs,tmps): A(f"{op} v{r}, v{r}, v{t}")
    def round_bf(dst, src):
        A(f"v_cvt_pk_bf16_f32 v{dst}, v{src}, v{src}"); A(f"v_and_b32 v{dst}, 0xffff0000, v{dst}")
    def unpack(lo, hi, src):
        A(f"v_lshlrev_b32 v{lo}, 16, v{src}"); A(f"v_and_b32 v{hi}, 0xffff0000, v{src}")
    def pub_cons():
        slot_advance()
        A(f"v_mov_b32 v{vTM}, {sN}")
        A("s_mov_b64 exec, 1"); A(f"ds_write_b32 v{vCONS}, v{vTM}"); A("s_mov_b64 exec, -1")
    def wait_tile(fin=None, lim=None):
        ok = lab("have"); lp = lab("poll")
        if fin: A(f"s_cmp_eq_u32 {lim}, {sN}"); A(f"s_cbranch_scc1 {fin}")
        A(f"s_cmp_gt_u32 {sKNOWN}, {sN}"); A(f"s_cbranch_scc1 {ok}")
        E.label(lp)
        A(f"ds_read_b128 {Q4(vAD[0])}, v{vFLG}")
        A(f"s_sub_u32 {sSPIN}, {sSPIN}, 1"); A("s_cbranch_scc1 L_end")
        A("s_waitcnt lgkmcnt(0)")
        A(f"v_readfirstlane_b32 {sKNOWN}, v{vAD[0]}"); A(f"v_readfirstlane_b32 {sTOT}, v{vAD[1]}"); A(f"v_readfirstlane_b32 {sSWI}, v{vAD[2]}")
        if fin: A(f"s_cmp_eq_u32 {lim}, {sN}"); A(f"s_cbranch_scc1 {fin}")
        A(f"s_cmp_gt_u32 {sKNOWN}, {sN}"); A(f"s_cbranch_scc1 {ok}")
        A("s_sleep 1")
        A(f"s_branch {lp}")
        E.label(ok)
    def poll(loads, tags, first_mask=None):
        lp = lab("gpoll"); n = len(loads)
        for i in range(n): A(f"s_mov_b64 {sCK[i]}, {first_mask[i] if first_mask else -1}")
        E.label(lp)
        for i,l in enumerate(loads):
            sk = lab("sk")
            A(f"s_mov_b64 exec, {sCK[i]}"); A(f"s_cbranch_execz {sk}"); A(l); E.label(sk)
        A("s_mov_b64 exec, -1")
        A(f"s_sub_u32 {sSPIN}, {sSPIN}, 1"); A("s_cbranch_scc1 L_end")
        A("s_waitcnt vmcnt(0)")
        for i in range(n):
            A(f"v_cmp_ne_u32 {sCK[i]}, {sTAG}, v{tags[i][0]}")
            for t in tags[i][1:]:
                A(f"v_cmp_ne_u32 vcc, {sTAG}, v{t}"); A(f"s_or_b64 {sCK[i]}, {sCK[i]}, vcc")
        A(f"s_or_b64 vcc, {sCK[0]}, {sCK[min(1,n-1)]}")
        for i in range(2, n): A(f"s_or_b64 vcc, vcc, {sCK[i]}")
        A(f"s_cbranch_scc1 {lp}")
    def layernorm(xr, f, lnbase, stride):
        s1=vTM; t=vTM2; mu=vX; a=vX+2; b=vX+4
        for u in range(7): unpack(f+2*u, f+2*u+1, xr[u])
        A(f"v_pk_add_f32 {P(a)}, {P(f)}, {P(f+2)}"); A(f"v_pk_add_f32 {P(b)}, {P(f+4)}, {P(f+6)}")
        A(f"v_pk_add_f32 {P(a)}, {P(a)}, {P(f+8)}"); A(f"v_pk_add_f32 {P(b)}, {P(b)}, {P(f+10)}")
        A(f"v_pk_add_f32 {P(a)}, {P(a)}, {P(f+12)}"); A(f"v_pk_add_f32 {P(a)}, {P(a)}, {P(b)}")
        A(f"v_add_f32 v{s1}, v{a}, v{a+1}")
        def red32(r):
            for k in (8,4,2,1): A(f"v_add_f32_dpp v{r}, v{r}, v{r} row_ror:{k} row_mask:0xf bank_mask:0xf")
            A(f"v_mov_b32 v{t}, v{r}"); A(f"v_permlane16_swap_b32 v{r}, v{t}"); A(f"v_add_f32 v{r}, v{r}, v{t}")
        red32(s1)
        A(f"v_mul_f32 v{mu}, {INV448:#x}, v{s1}")
        NEG = "op_sel_hi:[1,0] neg_lo:[0,1] neg_hi:[0,1]"
        A(f"v_pk_add_f32 {P(b)}, {P(f)}, {P(mu)} {NEG}")
        A(f"v_pk_mul_f32 {P(a)}, {P(b)}, {P(b)}")
        for u in range(1,7):
            A(f"v_pk_add_f32 {P(b)}, {P(f+2*u)}, {P(mu)} {NEG}")
            A(f"v_pk_fma_f32 {P(a)}, {P(b)}, {P(b)}, {P(a)}")
        A(f"v_add_f32 v{s1}, v{a}, v{a+1}")
        round_bf(mu, mu)
        fill = [f"v_pk_add_f32 {P(f+2*u)}, {P(f+2*u)}, {P(mu)} {NEG}" for u in range(7)] + [f"v_cvt_pk_bf16_f32 v{xr[u]}, v{f+2*u}, v{f+2*u+1}" for u in range(7)]
        for u in range(7): fill += [f"v_lshlrev_b32 v{f+2*u}, 16, v{xr[u]}", f"v_and_b32 v{f+2*u+1}, 0xffff0000, v{xr[u]}"]
        chain = [f"v_add_f32_dpp v{s1}, v{s1}, v{s1} row_ror:{k} row_mask:0xf bank_mask:0xf" for k in (8,4,2,1)]
        chain += [f"v_mov_b32 v{t}, v{s1}", f"v_permlane16_swap_b32 v{s1}, v{t}", f"v_add_f32 v{s1}, v{s1}, v{t}",
                  f"v_mul_f32 v{s1}, {INV448:#x}, v{s1}", f"v_cvt_pk_bf16_f32 v{s1}, v{s1}, v{s1}", f"v_and_b32 v{s1}, 0xffff0000, v{s1}",
                  f"v_add_f32 v{s1}, {EPS:#x}, v{s1}", f"v_cvt_pk_bf16_f32 v{s1}, v{s1}, v{s1}", f"v_and_b32 v{s1}, 0xffff0000, v{s1}",
                  f"v_sqrt_f32 v{s1}, v{s1}", f"v_cvt_pk_bf16_f32 v{s1}, v{s1}, v{s1}", f"v_and_b32 v{s1}, 0xffff0000, v{s1}", f"v_rcp_f32 v{a}, v{s1}"]
        while chain or fill:
            for _ in range(2):
                if fill: A(fill.pop(0))
            if chain: A(chain.pop(0))
        for u in range(7): A(f"v_pk_mul_f32 {P(f+2*u)}, {P(f+2*u)}, {P(a)} op_sel_hi:[1,0]")
        for u in range(7):
            A(f"v_cvt_pk_bf16_f32 v{xr[u]}, v{f+2*u}, v{f+2*u+1}")
            A(f"ds_write_b32 v{lnbase}, v{xr[u]} offset:{u*stride}")
    def ln_read_addr(rd, base):
        A(f"v_and_b32 v{rd}, 1, v{vLANE}"); A(f"v_mul_u32_u24 v{rd}, 896, v{rd}")
        A(f"v_lshl_add_u32 v{rd}, v{vG4}, 4, v{rd}"); A(f"v_add_u32 v{rd}, {base}, v{rd}")
    def tall_addr(dst):
        A(f"v_lshrrev_b32 v{vTM}, 3, v{vN}")
        A(f"v_and_b32 v{vTM2}, 1, v{vG4}"); A(f"v_lshl_or_b32 v{vTM}, v{vTM2}, 1, v{vTM}")
        A(f"v_xor_b32 v{vTM}, {sW}, v{vTM}"); A(f"v_lshlrev_b32 v{vTM}, 5, v{vTM}")
        A(f"v_and_b32 v{vTM2}, 3, v{vN}"); A(f"v_lshl_or_b32 v{vTM}, v{vTM2}, 3, v{vTM}")
        A(f"v_lshrrev_b32 v{vTM2}, 2, v{vN}"); A(f"v_lshl_or_b32 v{vTM}, v{vTM2}, 7, v{vTM}")
        A(f"v_lshl_or_b32 v{dst}, v{vG4}, 10, v{vTM}")
    def wide_addr(dst):
        A(f"v_lshrrev_b32 v{vTM}, 2, v{vN}"); A(f"v_lshl_add_u32 v{vTM}, v{vG4}, 2, v{vTM}"); A(f"v_mul_u32_u24 v{vTM}, 896, v{vTM}")
        A(f"v_and_b32 v{vTM2}, 3, v{vN}"); A(f"v_lshl_add_u32 v{vTM}, v{vTM2}, 3, v{vTM}")
        A(f"s_mul_i32 {sT0}, {sW}, 224"); A(f"v_add_u32 v{dst}, {sT0}, v{vTM}")
    def read_tall_tile(base, dstreg, t):
        wait_tile()
        A(f"v_add_u32 v{vAD[0]}, {sSLOT}, v{base}")
        for s in range(4 if t < 3 else 2):
            for h2 in range(2):
                A(f"ds_read_b64_tr_b16 {P(dstreg + 4*(4*t+s) + 2*h2)}, v{vAD[0]} offset:{s*4096+h2*512}")
        A("s_waitcnt lgkmcnt(0)")
        pub_cons()
    def read_wide_tile(base, dstreg, half):
        wait_tile()
        A(f"v_add_u32 v{vAD[0]}, {sSLOT}, v{base}")
        for tt in range(7): A(f"ds_read_b64_tr_b16 {P(dstreg + 4*tt + 2*half)}, v{vAD[0]} offset:{tt*32}")
        A("s_waitcnt lgkmcnt(0)")
        pub_cons()
    def msg_lane_addr(dst, per_rr_shift):
        A(f"v_lshrrev_b32 v{vTM}, 3, v{vLANE}"); A(f"v_lshlrev_b32 v{vTM}, {per_rr_shift}, v{vTM}")
        A(f"v_and_b32 v{vTM2}, 7, v{vLANE}"); A(f"v_lshl_or_b32 v{dst}, v{vTM2}, 4, v{vTM}")

    A(f"s_sub_u32 {sW}, {sWAVE}, 1")
    A(f"v_and_b32 v{vN}, 15, v{vLANE}"); A(f"v_lshrrev_b32 v{vG4}, 4, v{vLANE}")
    A(f"v_mov_b32 v{vFLG}, {L_LANDED}")
    A(f"s_lshl_b32 {sT0}, {sW}, 2"); A(f"s_add_u32 {sT0}, {sT0}, {L_CONS}"); A(f"v_mov_b32 v{vCONS}, {sT0}")
    A("s_mov_b32 s42, 0xffff0000"); A("s_mov_b32 s43, 0xffff0000"); A("s_mov_b32 s44, 0"); A("s_mov_b32 s45, -1")
    A(f"s_mov_b32 {sC}, {C_SCALE:#x}"); A("s_mov_b32 s66, -1"); A("s_mov_b32 s67, 0"); A(f"s_mov_b32 {sTOT}, 0x7fffffff"); A(f"s_mov_b32 {sSWI}, 0x7fffffff")
    if hilo: A("s_mov_b32 s64, 0xcccccccc"); A("s_mov_b32 s65, 0xcccccccc")
    A(f"s_sub_u32 {sT0}, {sROLE}, 4"); A(f"s_lshl_b32 {sRR}, {sG}, 2"); A(f"s_add_u32 {sRR}, {sRR}, {sT0}")
    A(f"s_cmp_lt_u32 {sT0}, 4"); A(f"s_cselect_b32 {sRR}, {sRR}, 99")
    A(f"s_bfe_u32 {sT0}, {sRR}, 0x20003"); A(f"s_mul_i32 {sCOL}, {sT0}, 224")
    A(f"s_bfe_u32 {sGP}, {sRR}, 0x20001"); A(f"s_lshl_b32 {sT0}, {sGP}, 6"); A(f"s_add_u32 {sCOL}, {sCOL}, {sT0}")
    A(f"s_and_b32 {sT0}, {sRR}, 1"); A(f"s_lshl_b32 {sT0}, {sT0}, 4"); A(f"s_add_u32 {sCOL}, {sCOL}, {sT0}")
    A(f"s_bfe_u32 {sT0}, {sRR}, 0x10005"); A(f"s_mul_i32 {sT0}, {sT0}, 896"); A(f"s_add_u32 {sCOL}, {sCOL}, {sT0}")
    A("s_waitcnt lgkmcnt(0)")
    A(f"s_load_dword {sE}, {pWS}, {WS_E}")
    A("s_barrier")
    stamp(11)
    A(f"s_cmp_ge_u32 {sRR}, 64"); A("s_cbranch_scc1 L_nox")
    A(f"v_and_b32 v{vTM}, 6, v{vLANE}"); A(f"v_lshl_add_u32 v{vTM}, v{vTM}, 1, {sCOL}")
    A(f"global_load_dword v{vXH}, v{vTM}, {pX}")
    A(f"v_mov_b32 v{vXH+1}, 0")
    A(f"s_cmp_eq_u32 {sGP}, 3"); A("s_cbranch_scc1 L_nox")
    A(f"global_load_dword v{vXH+1}, v{vTM}, {pX} offset:32")
    E.label("L_nox")
    A(f"v_xor_b32 v{vTM}, v{vG4}, v{vN}"); A(f"v_lshlrev_b32 v{vTM}, 4, v{vTM}"); A(f"v_lshl_or_b32 v{vTM}, v{vN}, 9, v{vTM}")
    for s in range(4): A(f"v_xor_b32 v{vKB[s]}, {s*64}, v{vTM}")
    A(f"v_lshrrev_b32 v{vTM}, 2, v{vN}"); A(f"v_lshl_add_u32 v{vTM}, v{vG4}, 2, v{vTM}")
    A(f"v_and_b32 v{vTM2}, 7, v{vTM}")
    A(f"s_lshl_b32 {sT0}, {sW}, 2"); A(f"v_xor_b32 v{vTM2}, {sT0}, v{vTM2}"); A(f"v_lshlrev_b32 v{vTM2}, 5, v{vTM2}")
    A(f"v_lshl_or_b32 v{vTM}, v{vTM}, 9, v{vTM2}")
    A(f"v_and_b32 v{vTM2}, 3, v{vN}"); A(f"v_lshl_or_b32 v{vTM}, v{vTM2}, 3, v{vTM}")
    for e in range(4): A(f"v_xor_b32 v{vVB[e]}, {e*32}, v{vTM}")
    A(f"v_mov_b32 v{vM}, 0xff800000"); A(f"v_mov_b32 v{vMC}, 0xff800000"); A(f"v_mov_b32 v{vL}, 0")
    for i in range(16): A(f"v_mov_b32 v{vO+i}, 0")
    A(f"s_lshl_b32 {sT0}, {sG}, 4"); A(f"s_lshl_b32 {sT1}, {sW}, 1"); A(f"s_add_u32 {sT0}, {sT0}, {sT1}"); A(f"s_lshl_b32 {sT0}, {sT0}, 4")
    A(f"s_add_u32 {sT0}, {sT0}, {sJ}"); A(f"s_lshl_b32 {sT0}, {sT0}, 8"); A(f"s_add_u32 {sT0}, {sT0}, {WS_A}")
    A(f"v_lshrrev_b32 v{vAA}, 1, v{vG4}"); A(f"v_lshlrev_b32 v{vAA}, 15, v{vAA}")
    A(f"v_and_b32 v{vTM}, 1, v{vG4}"); A(f"v_lshl_or_b32 v{vAA}, v{vTM}, 12, v{vAA}"); A(f"v_lshl_or_b32 v{vAA}, v{vN}, 4, v{vAA}")
    A(f"v_add_u32 v{vAA}, {sT0}, v{vAA}")
    A(f"s_lshl_b32 {sT0}, {sWG}, 12"); A(f"s_add_u32 {sT0}, {sT0}, {WS_A}")
    A(f"v_lshlrev_b32 v{vAI}, 4, v{vN}"); A(f"v_lshl_or_b32 v{vAI}, v{vG4}, 10, v{vAI}"); A(f"v_add_u32 v{vAI}, {sT0}, v{vAI}")
    A(f"s_lshl_b32 {sT0}, {sB}, 2"); A(f"s_add_u32 {sT0}, {sT0}, {sW}"); A(f"s_lshl_b32 {sT0}, {sT0}, 10")
    A(f"s_and_b32 {sT1}, {sWG}, 127"); A(f"s_add_u32 {sT0}, {sT0}, {sT1}"); A(f"s_lshl_b32 {sT0}, {sT0}, 7"); A(f"s_add_u32 {sT0}, {sT0}, {WS_B}")
    msg_lane_addr(vBA, 14); A(f"v_add_u32 v{vBA}, {sT0}, v{vBA}")
    A(f"s_cmp_ge_u32 {sROLE}, 4")
    A("s_cbranch_scc1 L_q_wait")
    xr = [vWO+u for u in range(7)]; f14 = vWO+8; vLW = vWO+24; vLR = vWO+25; vTA = vWO+26
    A(f"v_lshrrev_b32 v{vLW}, 5, v{vLANE}"); A(f"v_mul_u32_u24 v{vLW}, 896, v{vLW}")
    A(f"v_and_b32 v{vTM2}, 31, v{vLANE}"); A(f"v_lshl_add_u32 v{vLW}, v{vTM2}, 2, v{vLW}")
    for u in range(7): A(f"global_load_dword v{xr[u]}, v{vLW}, {pX} offset:{u*128}")
    A(f"s_or_b32 {sT0}, {sROLE}, {sW}"); A(f"s_cmp_lg_u32 {sT0}, 0"); A("s_cbranch_scc1 L_noinit")
    A(f"s_lshl_b32 {sT0}, {sG}, 8"); A(f"s_add_u32 {sT0}, {sT0}, {WS_CNT}")
    A(f"v_mov_b32 v{vTM2}, {sT0}"); A(f"v_mov_b32 v{vTM3}, 0")
    A("s_mov_b64 exec, 1"); A(f"global_store_dword v{vTM2}, v{vTM3}, {pWS} {stf}"); A("s_mov_b64 exec, -1")
    E.label("L_noinit")
    A(f"s_lshl_b32 {sT2}, {sW}, 11"); A(f"s_add_u32 {sT2}, {sT2}, {L_LN}")
    A(f"v_add_u32 v{vLW}, {sT2}, v{vLW}")
    ln_read_addr(vLR, sT2)
    tall_addr(vTA)
    A("s_waitcnt vmcnt(0) lgkmcnt(0)")
    stamp(12)
    layernorm(xr, f14, vLW, 128)
    A("s_waitcnt lgkmcnt(0)")
    stamp(13)
    for s in range(14): A(f"ds_read_b128 {Q4(vW2+4*s)}, v{vLR} offset:{s*64}")
    for t in range(4):
        read_tall_tile(vTA, vW1, t)
        if t == 0: stamp(14)
        for s in range(4*t, min(4*t+4, 14)):
            A(f"v_mfma_f32_16x16x32_bf16 {Q4(vS)}, {Q4(vW2+4*s)}, {Q4(vW1+4*s)}, {'0' if s==0 else Q4(vS)}")
    A(f"s_lshl_b32 {sT0}, {sB}, 2"); A(f"s_add_u32 {sT0}, {sT0}, {sROLE}"); A(f"s_lshl_b32 {sT0}, {sT0}, 2"); A(f"s_add_u32 {sT0}, {sT0}, {sW}")
    A(f"s_lshl_b32 {sT0}, {sT0}, 6"); A(f"s_lshl_b32 {sT1}, {sHKV}, 11"); A(f"s_add_u32 {sT0}, {sT0}, {sT1}"); A(f"s_add_u32 {sT0}, {sT0}, {WS_Q}")
    A(f"v_lshlrev_b32 v{vTM3}, 2, v{vN}"); A(f"v_lshl_add_u32 v{vTM3}, v{vG4}, 14, v{vTM3}"); A(f"v_add_u32 v{vTM3}, {sT0}, v{vTM3}")
    A(f"s_mul_i32 {sTAG}, {sE}, 0x9e3779b1"); A(f"s_add_u32 {sTAG}, {sTAG}, 0x7f4a7c15")
    A(f"v_cndmask_b32 v{vTM}, v{vS}, v{vS+1}, {sM1}")
    A(f"v_mov_b32_dpp v{vTM2}, v{vTM} quad_perm:[1,0,3,2] row_mask:0xf bank_mask:0xf")
    A(f"v_mov_b32 v{vX+1}, {sTAG}")
    A(f"v_cvt_pk_bf16_f32 v{vX}, v{vTM}, v{vTM2}")
    A("s_mov_b64 exec, 0x55555555")
    A(f"global_store_dwordx2 v{vTM3}, {P(vX)}, {pWS} {stf}")
    A("s_mov_b64 exec, -1")
    stamp(1)
    E.label("L_q_wait")
    wide_addr(vX)
    if not wo_end:
        for h in range(2): read_wide_tile(vX, vWO, h)
    A(f"s_cmp_ge_u32 {sIDX}, 28"); A("s_cbranch_scc1 L_noffn")
    tall_addr(vX+1)
    for t in range(4): read_tall_tile(vX+1, vW1, t)
    for t in range(4): read_wide_tile(vX, vW2 + 28*(t>>1), t & 1)
    E.label("L_noffn")
    A("s_waitcnt lgkmcnt(0)")
    A(f"s_mul_i32 {sTAG}, {sE}, 0x9e3779b1"); A(f"s_add_u32 {sTAG}, {sTAG}, 0x7f4a7c15")
    A(f"s_lshl_b32 {sT0}, {sG}, 11"); A(f"s_add_u32 {sT0}, {sT0}, {WS_Q}")
    A(f"v_lshl_add_u32 v{vTM3}, v{vLANE}, 4, {sT0}")
    poll([f"global_load_dwordx4 {Q4(vF)}, v{vTM3}, {pWS} {ldf}", f"global_load_dwordx4 {Q4(vF+4)}, v{vTM3}, {pWS} offset:1024 {ldf}"],
         [[vF+1, vF+3], [vF+5, vF+7]])
    A(f"s_lshl_b32 {sT0}, {sW}, 10"); A(f"s_add_u32 {sT0}, {sT0}, {L_QW}")
    A(f"v_mov_b32 v{vF+1}, v{vF+2}"); A(f"v_mov_b32 v{vF+5}, v{vF+6}")
    A(f"v_lshl_add_u32 v{vTM}, v{vLANE}, 3, {sT0}")
    A(f"ds_write_b64 v{vTM}, {P(vF)}"); A(f"ds_write_b64 v{vTM}, {P(vF+4)} offset:512")
    A(f"v_and_b32 v{vTM2}, 1, v{vLANE}"); A(f"v_lshlrev_b32 v{vTM2}, 9, v{vTM2}"); A(f"v_lshl_add_u32 v{vTM2}, v{vG4}, 4, v{vTM2}"); A(f"v_add_u32 v{vTM2}, {sT0}, v{vTM2}")
    A("s_waitcnt lgkmcnt(0)")
    for s in range(8): A(f"ds_read_b128 {Q4(vQ+4*s)}, v{vTM2} offset:{s*64}")
    stamp(2)
    if warm:
        A(f"s_lshl_b32 {sT0}, {sWG}, 12"); A(f"s_lshl_b32 {sT1}, {sW}, 10"); A(f"s_add_u32 {sT0}, {sT0}, {sT1}"); A(f"s_add_u32 {sT0}, {sT0}, {WS_A}")
        A(f"v_lshl_add_u32 v{vTM}, v{vLANE}, 4, {sT0}")
        A(f"global_load_dword v{vX+2}, v{vTM}, {pWS} {ldf}")
        A(f"s_cmp_ge_u32 {sRR}, 64"); A("s_cbranch_scc1 L_nowarm")
        A(f"s_lshl_b32 {sT0}, {sRR}, 14"); A(f"s_lshl_b32 {sT1}, {sW}, 12"); A(f"s_add_u32 {sT0}, {sT0}, {sT1}"); A(f"s_add_u32 {sT0}, {sT0}, {WS_B}")
        A(f"v_lshl_add_u32 v{vTM}, v{vLANE}, 6, {sT0}")
        A(f"global_load_dword v{vX+3}, v{vTM}, {pWS} {ldf}")
        A(f"s_lshl_b32 {sT0}, {sRR}, 12"); A(f"s_lshl_b32 {sT1}, {sW}, 10"); A(f"s_add_u32 {sT0}, {sT0}, {sT1}"); A(f"s_add_u32 {sT0}, {sT0}, {WS_D}")
        A(f"v_lshl_add_u32 v{vTM}, v{vLANE}, 4, {sT0}")
        A(f"global_load_dword v{vX+4}, v{vTM}, {pWS} {ldf}")
        A(f"s_lshl_b32 {sT0}, {sRR}, 6"); A(f"s_add_u32 {sT0}, {sT0}, {WS_H}"); A(f"v_mov_b32 v{vTM}, {sT0}")
        A(f"global_load_dword v{vX+5}, v{vTM}, {pWS} {ldf}")
        E.label("L_nowarm")
    A("s_waitcnt lgkmcnt(0)")

    def qk(nt):
        for s in range(4): A(f"v_add_u32 v{vAD[s]}, {sSLOT}, v{vKB[s]}")
        seq = [(t,s) for s in range(8) for t in range(nt)]; n = len(seq)
        def kread(i):
            t,s = seq[i]; A(f"ds_read_b128 {Q4(vF + 4*(i % NF))}, v{vAD[s&3]} offset:{(s>>2)*256 + t*8192}")
        for i in range(NF): kread(i)
        for i in range(n):
            t,s = seq[i]
            A(f"s_waitcnt lgkmcnt({min(NF-1, n-1-i)})")
            d = Q4(vS+4*t)
            A(f"v_mfma_f32_16x16x32_bf16 {d}, {Q4(vF + 4*(i % NF))}, {Q4(vQ+4*s)}, {'0' if s==0 else d}")
            if i + NF < n: kread(i+NF)
    def softmax(nt, tag):
        n = 4*nt
        for i in range(n//2): A(f"v_cvt_pk_bf16_f32 v{vP+i}, v{vS+2*i}, v{vS+2*i+1}")
        for i in range(n//2): unpack(vS+2*i, vS+2*i+1, vP+i)
        if nt == 2:
            A(f"v_max3_f32 v{vMX}, v{vS}, v{vS+1}, v{vS+2}"); A(f"v_max3_f32 v{vTM}, v{vS+3}, v{vS+4}, v{vS+5}")
            A(f"v_max3_f32 v{vMX}, v{vMX}, v{vS+6}, v{vS+7}"); A(f"v_max_f32 v{vMX}, v{vMX}, v{vTM}")
        else:
            A(f"v_max3_f32 v{vMX}, v{vS}, v{vS+1}, v{vS+2}"); A(f"v_max_f32 v{vMX}, v{vMX}, v{vS+3}")
        xrow("v_max_f32", [vMX], [vTM])
        A(f"v_cmp_gt_f32 vcc, v{vMX}, v{vM}")
        A("s_cmp_lg_u64 vcc, 0"); A(f"s_cbranch_scc1 L_rescale{tag}")
        E.label(f"L_rescaled{tag}")
        for i in range(n): A(f"v_fma_f32 v{vS+i}, v{vS+i}, {sC}, -v{vMC}")
        for i in range(n): A(f"v_exp_f32 v{vS+i}, v{vS+i}")
        for i in range(n//2): A(f"v_cvt_pk_bf16_f32 v{vP+i}, v{vS+2*i}, v{vS+2*i+1}")
        if hilo:
            for i in range(n//2):
                unpack(vF+16, vF+17, vP+i)
                A(f"v_sub_f32 v{vF+16}, v{vS+2*i}, v{vF+16}"); A(f"v_sub_f32 v{vF+17}, v{vS+2*i+1}, v{vF+17}")
                A(f"v_cvt_pk_bf16_f32 v{vF+16}, v{vF+16}, v{vF+17}")
                A(f"v_cndmask_b32 v{vP+i}, v{vP+i}, v{vF+16}, s[64:65]")
        A(f"v_add_f32 v{vTM}, v{vS}, v{vS+1}"); A(f"v_add_f32 v{vMX}, v{vS+2}, v{vS+3}")
        if nt == 2:
            A(f"v_add_f32 v{vS+4}, v{vS+4}, v{vS+5}"); A(f"v_add_f32 v{vS+6}, v{vS+6}, v{vS+7}")
            A(f"v_add_f32 v{vTM}, v{vTM}, v{vS+4}"); A(f"v_add_f32 v{vMX}, v{vMX}, v{vS+6}")
        A(f"v_add_f32 v{vL}, v{vL}, v{vTM}"); A(f"v_add_f32 v{vL}, v{vL}, v{vMX}")
    def rescale(tag):
        E.label(f"L_rescale{tag}")
        A(f"v_max_f32 v{vM}, v{vM}, v{vMX}")
        A(f"v_mul_f32 v{vTM}, {sC}, v{vM}")
        A(f"v_sub_f32 v{vTM2}, v{vMC}, v{vTM}")
        A(f"v_mov_b32 v{vMC}, v{vTM}")
        A(f"v_exp_f32 v{vTM2}, v{vTM2}")
        A(f"v_mul_f32 v{vL}, v{vL}, v{vTM2}")
        A(f"v_mov_b32_dpp v{vTM}, v{vTM2} quad_perm:[0,0,2,2] row_mask:0xf bank_mask:0xf")
        A(f"v_mov_b32_dpp v{vTM3}, v{vTM2} quad_perm:[1,1,3,3] row_mask:0xf bank_mask:0xf")
        for i in range(16): A(f"v_mul_f32 v{vO+i}, v{vO+i}, v{vTM if i%2==0 else vTM3}")
        A(f"s_branch L_rescaled{tag}")
    E.label("L_loop")
    wait_tile("L_mini", sSWI)
    qk(2)
    pub_cons()
    softmax(2, "a")
    wait_tile()
    for e in range(4): A(f"v_add_u32 v{vAD[e]}, {sSLOT}, v{vVB[e]}")
    for e in range(4):
        for h2 in range(2): A(f"ds_read_b64_tr_b16 {P(vF + 4*e + 2*h2)}, v{vAD[e]} offset:{h2*8192}")
    for e in range(4):
        A(f"s_waitcnt lgkmcnt({6-2*e})")
        A(f"v_mfma_f32_16x16x32_bf16 {Q4(vO+4*e)}, {Q4(vP)}, {Q4(vF+4*e)}, {Q4(vO+4*e)}")
    pub_cons()
    if True:
        A("s_branch L_loop")
        E.label("L_mini")
        wait_tile("L_fin", sTOT)
        qk(1)
        for e in range(4): A(f"v_add_u32 v{vAD[e]}, {sSLOT}, v{vVB[e]}")
        for e in range(4): A(f"ds_read_b64_tr_b16 {P(vF + 2*e)}, v{vAD[e]} offset:8192")
        softmax(1, "b")
        A("s_waitcnt lgkmcnt(0)")
        for e in range(4):
            A(f"v_mfma_f32_16x16x16_bf16 {Q4(vO+4*e)}, {P(vP)}, {P(vF+2*e)}, {Q4(vO+4*e)}")
        pub_cons()
        A("s_branch L_mini")
        rescale("b")
    rescale("a")

    E.label("L_fin")
    stamp(3)
    vG=vF; vI=vF+4; sa=vS; sb=vS+1; sw=vS+2
    vA=vQ; vOPR=vQ+4; vOPW=vQ+5; vR0=vQ+6; vR1=vQ+7; vR2=vQ+8; vR3=vQ+9; vR4=vQ+10; vR5=vQ+11; vZ=vQ+12
    yreg = [vO, vO+4, vO+8, vO+12, vQ+16, vQ+20, vQ+24]
    xrow("v_add_f32", [vL], [vTM])
    if hilo:
        for e in range(4):
            for h in range(2): A(f"v_add_f32 v{vO+4*e+h}, v{vO+4*e+h}, v{vO+4*e+2+h}")
    A(f"v_log_f32 v{vTM2}, v{vL}"); A(f"v_rcp_f32 v{vTM3}, v{vL}")
    A(f"v_mov_b32 v{vG+3}, {sTAG}")
    A(f"v_add_f32 v{vTM2}, v{vMC}, v{vTM2}")
    SEL4(vG, vO+0, vO+8, vO+1, vO+9, vMX)
    A(f"v_mov_b32_dpp v{vTM}, v{vTM3} quad_perm:[0,0,2,2] row_mask:0x3 bank_mask:0xf")
    A(f"v_mov_b32_dpp v{vG+2}, v{vTM2} quad_perm:[0,0,2,2] row_mask:0x3 bank_mask:0xf")
    SEL4(vG+1, vO+4, vO+12, vO+5, vO+13, vMX)
    A(f"v_mov_b32_dpp v{vTM}, v{vTM3} quad_perm:[1,1,3,3] row_mask:0xc bank_mask:0xf")
    A(f"v_mov_b32_dpp v{vG+2}, v{vTM2} quad_perm:[1,1,3,3] row_mask:0xc bank_mask:0xf")
    A(f"v_mul_f32 v{vG}, v{vG}, v{vTM}"); A(f"v_mul_f32 v{vG+1}, v{vG+1}, v{vTM}")
    A(f"global_store_dwordx4 v{vAA}, {Q4(vG)}, {pWS} {stf}")
    stamp(4)
    A(f"v_lshlrev_b32 v{vOPR}, 3, v{vG4}"); A(f"v_add_u32 v{vOPR}, {L_OP}, v{vOPR}")
    A(f"v_lshlrev_b32 v{vOPW}, 1, v{vN}"); A(f"v_add_u32 v{vOPW}, {L_OP}, v{vOPW}")
    A(f"v_mov_b32 v{vZ}, 0")
    A(f"s_cmp_lt_u32 {sIDX}, 28"); A("s_cbranch_scc1 L_ffn_addr")
    A(f"s_lshl_b32 {sT0}, {sRR}, 14"); A(f"s_lshl_b32 {sT1}, {sW}, 12"); A(f"s_add_u32 {sT0}, {sT0}, {sT1}"); A(f"s_add_u32 {sT0}, {sT0}, {WS_B}")
    A(f"v_lshl_add_u32 v{vR0}, v{vLANE}, 4, {sT0}")
    A(f"s_lshl_b32 {sT0}, {sW}, 6"); A(f"s_add_u32 {sT0}, {sT0}, {L_RED}")
    A(f"v_and_b32 v{vTM}, 7, v{vLANE}"); A(f"v_lshl_add_u32 v{vR1}, v{vTM}, 2, {sT0}")
    A(f"v_and_b32 v{vTM}, 6, v{vLANE}"); A(f"v_lshlrev_b32 v{vR2}, 2, v{vTM}"); A(f"v_add_u32 v{vR2}, {L_RED}, v{vR2}")
    A(f"s_lshl_b32 {sT0}, {sRR}, 6"); A(f"s_add_u32 {sT0}, {sT0}, {WS_H}"); A(f"v_lshl_add_u32 v{vR3}, v{vTM}, 3, {sT0}")
    A(f"s_lshl_b32 {sT0}, {sRR}, 12"); A(f"s_add_u32 {sT0}, {sT0}, {WS_D}"); A(f"v_lshl_add_u32 v{vR4}, v{vLANE}, 4, {sT0}")
    A(f"v_lshl_add_u32 v{vR5}, v{vTM}, 1, {sCOL}")
    A("s_branch L_addr_done")
    E.label("L_ffn_addr")
    A(f"v_lshrrev_b32 v{vTM}, 3, v{vLANE}"); A(f"v_and_b32 v{vTM2}, 7, v{vLANE}")
    A(f"v_lshlrev_b32 v{vR0}, 9, v{vTM}"); A(f"v_lshl_or_b32 v{vR0}, v{vTM2}, 4, v{vR0}"); A(f"v_add_u32 v{vR0}, {WS_H}, v{vR0}")
    A(f"v_mul_u32_u24 v{vR1}, 224, v{vTM}"); A(f"v_lshl_add_u32 v{vR1}, v{vTM2}, 2, v{vR1}"); A(f"v_add_u32 v{vR1}, {L_LN}, v{vR1}")
    ln_read_addr(vR2, L_LN)
    A(f"s_lshl_b32 {sT0}, {sW}, 5"); A(f"s_add_u32 {sT0}, {sT0}, {L_ACT}")
    A(f"v_lshlrev_b32 v{vR3}, 7, v{vG4}"); A(f"v_lshl_add_u32 v{vR3}, v{vN}, 1, v{vR3}"); A(f"v_add_u32 v{vR3}, {sT0}, v{vR3}")
    A(f"v_and_b32 v{vR4}, 1, v{vLANE}"); A(f"v_lshlrev_b32 v{vR4}, 7, v{vR4}"); A(f"v_lshl_add_u32 v{vR4}, v{vG4}, 3, v{vR4}"); A(f"v_add_u32 v{vR4}, {L_ACT}, v{vR4}")
    A(f"s_lshl_b32 {sT0}, {sW}, 8"); A(f"s_add_u32 {sT0}, {sT0}, {sIDX}"); A(f"s_lshl_b32 {sT0}, {sT0}, 7"); A(f"s_add_u32 {sT0}, {sT0}, {WS_D}")
    msg_lane_addr(vR5, 12); A(f"v_add_u32 v{vR5}, {sT0}, v{vR5}")
    E.label("L_addr_done")
    if wo_end:
        wide_addr(vX)
        for h in range(2): read_wide_tile(vX, vWO, h)
    A(f"s_cmp_lg_u32 {sW}, 0"); A("s_cbranch_scc1 L_a_join")
    poll([f"global_load_dwordx4 {Q4(vI+4*i)}, v{vAI}, {pWS} offset:{i*256} {ldf}" for i in range(4)], [[vI+4*i+3] for i in range(4)])
    stamp(5)
    A(f"v_max3_f32 v{vMX}, v{vI+2}, v{vI+6}, v{vI+10}"); A(f"v_max_f32 v{vMX}, v{vMX}, v{vI+14}")
    xrow("v_max_f32", [vMX], [vTM])
    for i in range(4): A(f"v_sub_f32 v{vI+4*i+2}, v{vI+4*i+2}, v{vMX}")
    for i in range(4): A(f"v_exp_f32 v{vI+4*i+2}, v{vI+4*i+2}")
    A(f"v_mul_f32 v{sa}, v{vI}, v{vI+2}"); A(f"v_mul_f32 v{sb}, v{vI+1}, v{vI+2}"); A(f"v_add_f32 v{sw}, v{vI+2}, v{vI+6}")
    for i in range(1,4):
        A(f"v_fmac_f32 v{sa}, v{vI+4*i}, v{vI+4*i+2}"); A(f"v_fmac_f32 v{sb}, v{vI+4*i+1}, v{vI+4*i+2}")
        if i > 1: A(f"v_add_f32 v{sw}, v{sw}, v{vI+4*i+2}")
    xrow("v_add_f32", [sw, sa, sb], [vS+3, vS+4, vS+5])
    A(f"v_rcp_f32 v{sw}, v{sw}")
    A(f"v_mul_f32 v{sa}, v{sa}, v{sw}"); A(f"v_mul_f32 v{sb}, v{sb}, v{sw}")
    A(f"v_mov_b32_dpp v{vS+3}, v{sa} quad_perm:[1,0,3,2] row_mask:0xf bank_mask:0xf")
    A(f"v_mov_b32_dpp v{vS+4}, v{sb} quad_perm:[1,0,3,2] row_mask:0xf bank_mask:0xf")
    A(f"v_cvt_pk_bf16_f32 v{sa}, v{sa}, v{vS+3}"); A(f"v_cvt_pk_bf16_f32 v{sb}, v{sb}, v{vS+4}")
    A("s_mov_b64 exec, 0x5555"); A(f"ds_write2_b32 v{vOPW}, v{sa}, v{sb} offset0:0 offset1:8"); A("s_mov_b64 exec, -1")
    A("s_waitcnt lgkmcnt(0)")
    E.label("L_a_join")
    A("s_barrier")
    A(f"ds_read2_b64 {Q4(vA)}, v{vOPR} offset0:0 offset1:4")
    A(f"v_mov_b32 v{vG+1}, {sTAG}")
    A("s_waitcnt lgkmcnt(0)")
    for t in (0,2,4,6,1,3,5):
        A(f"v_mfma_f32_16x16x32_bf16 {Q4(yreg[t])}, {Q4(vA)}, {Q4(vWO+4*t)}, 0")
    SEL4(vG, yreg[0], yreg[2], yreg[4], yreg[6], vMX)
    SEL4(vG+2, yreg[1], yreg[3], yreg[5], vZ, vTM)
    A(f"global_store_dwordx4 v{vBA}, {Q4(vG)}, {pWS} {stf}")
    stamp(6)
    A(f"s_cmp_lt_u32 {sIDX}, 28"); A("s_cbranch_scc1 L_ffn")
    A(f"s_cmp_ge_u32 {sRR}, 64"); A("s_cbranch_scc1 L_done")
    def inbox(addr): return [f"global_load_dwordx4 {Q4(vI+4*i)}, v{addr}, {pWS} offset:{i*1024} {ldf}" for i in range(4)]
    tags2 = [[vI+4*i+1, vI+4*i+3] for i in range(4)]
    def sum_inbox():
        A(f"v_add_f32 v{sa}, v{vI}, v{vI+4}"); A(f"v_add_f32 v{sb}, v{vI+2}, v{vI+6}")
        A(f"v_add_f32 v{vS+2}, v{vI+8}, v{vI+12}"); A(f"v_add_f32 v{vS+3}, v{vI+10}, v{vI+14}")
        A(f"v_add_f32 v{sa}, v{sa}, v{vS+2}"); A(f"v_add_f32 v{sb}, v{sb}, v{vS+3}")
        A(f"v_add_f32_dpp v{sa}, v{sa}, v{sa} row_ror:8 row_mask:0xf bank_mask:0xf")
        A(f"v_add_f32_dpp v{sb}, v{sb}, v{sb} row_ror:8 row_mask:0xf bank_mask:0xf")
        xrow("v_add_f32", [sa, sb], [vS+2, vS+3])
    vXF = vO
    unpack(vXF, vXF+1, vXH); unpack(vXF+2, vXF+3, vXH+1)
    poll(inbox(vR0), tags2)
    stamp(7)
    sum_inbox()
    A("s_mov_b64 exec, 0xff"); A(f"ds_write2_b32 v{vR1}, v{sa}, v{sb} offset0:0 offset1:8"); A("s_mov_b64 exec, -1")
    A("s_waitcnt lgkmcnt(0)"); A("s_barrier")
    A(f"s_cmp_lg_u32 {sW}, 0"); A("s_cbranch_scc1 L_done")
    for i in range(4): A(f"ds_read2_b64 {Q4(vI+4*i)}, v{vR2} offset0:{i*8} offset1:{i*8+4}")
    def add_resid(y, dst):
        A(f"v_cvt_pk_bf16_f32 v{dst}, v{y}, v{y+1}"); A(f"v_cvt_pk_bf16_f32 v{dst+2}, v{y+2}, v{y+3}")
        unpack(y, y+1, dst); unpack(y+2, y+3, dst+2)
        A(f"v_pk_add_f32 {P(y)}, {P(y)}, {P(vXF)}"); A(f"v_pk_add_f32 {P(y+2)}, {P(y+2)}, {P(vXF+2)}")
        A(f"v_cvt_pk_bf16_f32 v{dst}, v{y}, v{y+1}"); A(f"v_cvt_pk_bf16_f32 v{dst+2}, v{y+2}, v{y+3}")
    A("s_waitcnt lgkmcnt(2)")
    A(f"v_pk_add_f32 {P(vI)}, {P(vI)}, {P(vI+4)}"); A(f"v_pk_add_f32 {P(vI+2)}, {P(vI+2)}, {P(vI+6)}")
    A("s_waitcnt lgkmcnt(0)")
    A(f"v_pk_add_f32 {P(vI+8)}, {P(vI+8)}, {P(vI+12)}"); A(f"v_pk_add_f32 {P(vI+10)}, {P(vI+10)}, {P(vI+14)}")
    A(f"v_pk_add_f32 {P(vI)}, {P(vI)}, {P(vI+8)}"); A(f"v_pk_add_f32 {P(vI+2)}, {P(vI+2)}, {P(vI+10)}")
    add_resid(vI, vG)
    A("s_mov_b64 exec, 0x55"); A(f"global_store_dwordx4 v{vR3}, {Q4(vG)}, {pWS} {stf}"); A("s_mov_b64 exec, -1")
    stamp(8)
    unpack(vXF, vXF+1, vG); unpack(vXF+2, vXF+3, vG+2)
    A(f"v_mov_b32 v{vI+12}, 0"); A(f"v_mov_b32 v{vI+13}, {sTAG}"); A(f"v_mov_b32 v{vI+14}, 0"); A(f"v_mov_b32 v{vI+15}, {sTAG}")
    poll(inbox(vR4), tags2, first_mask=[-1,-1,-1,"s[66:67]"])
    stamp(9)
    sum_inbox()
    A(f"v_mov_b32_dpp v{vI}, v{sa} quad_perm:[0,0,2,2] row_mask:0xf bank_mask:0xf"); A(f"v_mov_b32_dpp v{vI+1}, v{sa} quad_perm:[1,1,3,3] row_mask:0xf bank_mask:0xf")
    A(f"v_mov_b32_dpp v{vI+2}, v{sb} quad_perm:[0,0,2,2] row_mask:0xf bank_mask:0xf"); A(f"v_mov_b32_dpp v{vI+3}, v{sb} quad_perm:[1,1,3,3] row_mask:0xf bank_mask:0xf")
    add_resid(vI, vI+4)
    A("s_mov_b64 exec, 0x55"); A(f"global_store_dword v{vR5}, v{vI+4}, {pOUT}")
    A(f"s_cmp_eq_u32 {sGP}, 3"); A("s_cbranch_scc1 L_done")
    A(f"global_store_dword v{vR5}, v{vI+6}, {pOUT} offset:32")
    A(f"s_cmp_lg_u32 {sRR}, 0"); A("s_cbranch_scc1 L_done")
    A(f"s_add_u32 {sT0}, {sE}, 1"); A(f"v_mov_b32 v{vTM2}, {sT0}"); A(f"v_mov_b32 v{vTM3}, {WS_E}")
    A("s_mov_b64 exec, 1"); A(f"global_store_dword v{vTM3}, v{vTM2}, {pWS} {stf}")
    if enc:
        A("s_memrealtime s[90:91]"); A("s_waitcnt lgkmcnt(0)")
        A(f"s_sub_u32 {sT0}, s{70+2*enc[1]}, s{70+2*enc[0]}"); A(f"s_lshl_b32 {sT0}, {sT0}, 2"); A(f"s_min_u32 {sT0}, {sT0}, 100000")
        E.label("L_enc")
        A("s_memrealtime s[94:95]"); A("s_waitcnt lgkmcnt(0)")
        A(f"s_sub_u32 {sT1}, s94, s90"); A(f"s_cmp_lt_u32 {sT1}, {sT0}"); A("s_cbranch_scc1 L_enc")
    A("s_branch L_done")
    E.label("L_ffn")
    A(f"s_cmp_lg_u32 {sW}, 0"); A("s_cbranch_scc1 L_c_join")
    poll([f"global_load_dwordx4 {Q4(vI+4*u)}, v{vR0}, {pWS} offset:{u*128} {ldf}" for u in range(4)], tags2)
    stamp(7)
    layernorm([vI+2*u for u in range(7)], vO, vR1, 32)
    A("s_waitcnt lgkmcnt(0)")
    E.label("L_c_join")
    A("s_barrier")
    def aread(i): A(f"ds_read_b128 {Q4(vF + 4*(i % NF))}, v{vR2} offset:{i*64}")
    for i in range(NF): aread(i)
    for i in range(14):
        A(f"s_waitcnt lgkmcnt({min(NF-1, 13-i)})")
        A(f"v_mfma_f32_16x16x32_bf16 {Q4(vS)}, {Q4(vF + 4*(i % NF))}, {Q4(vW1+4*i)}, {'0' if i==0 else Q4(vS)}")
        if i + NF < 14: aread(i+NF)
    for b in range(2): A(f"v_mov_b32 v{vO+4*b+1}, {sTAG}"); A(f"v_mov_b32 v{vO+4*b+3}, {sTAG}")
    A(f"v_add_u32 v{vR0}, {32*4096}, v{vR5}")
    A(f"v_cndmask_b32 v{vTM}, v{vS}, v{vS+1}, {sM1}")
    round_bf(vTM, vTM)
    A(f"v_mul_f32 v{vTM2}, {(LOG2E | 0x80000000):#x}, v{vTM}")
    A(f"v_exp_f32 v{vTM2}, v{vTM2}")
    A(f"v_add_f32 v{vTM2}, 1.0, v{vTM2}")
    A(f"v_rcp_f32 v{vTM2}, v{vTM2}")
    A(f"v_mul_f32 v{vTM}, v{vTM}, v{vTM2}")
    A(f"v_cvt_pk_bf16_f32 v{vTM}, v{vTM}, v{vTM}")
    A("s_mov_b32 exec_hi, 0"); A(f"ds_write_b16 v{vR3}, v{vTM}"); A("s_mov_b32 exec_hi, -1")
    A("s_waitcnt lgkmcnt(0)"); A("s_barrier")
    for ks in range(2): A(f"ds_read2_b64 {Q4(vF+4*ks)}, v{vR4} offset0:{ks*8} offset1:{ks*8+4}")
    zreg = [vW1+4*t for t in range(7)]
    for ks in range(2):
        A(f"s_waitcnt lgkmcnt({1-ks})")
        for t in (0,2,4,6,1,3,5):
            A(f"v_mfma_f32_16x16x32_bf16 {Q4(zreg[t])}, {Q4(vF+4*ks)}, {Q4(vW2+28*ks+4*t)}, {'0' if ks==0 else Q4(zreg[t])}")
    for b in range(2): SEL4(vO+4*b, zreg[0]+b, zreg[2]+b, zreg[4]+b, zreg[6]+b, vMX)
    for b in range(2):
        SEL4(vO+4*b+2, zreg[1]+b, zreg[3]+b, zreg[5]+b, vZ, vMX)
        A(f"global_store_dwordx4 v{vR5 if b == 0 else vR0}, {Q4(vO+4*b)}, {pWS} {stf}")
    stamp(8)
    E.label("L_done")
    if diag:
        stamp(10)
        A("s_mov_b64 exec, -1")
        A(f"s_lshl_b32 {sT0}, {sWG}, 2"); A(f"s_add_u32 {sT0}, {sT0}, {sW}"); A(f"s_lshl_b32 {sT0}, {sT0}, 7"); A(f"s_add_u32 {sT0}, {sT0}, {WS_ST}")
        A("s_getreg_b32 s100, hwreg(HW_REG_XCC_ID)")
        A("s_waitcnt lgkmcnt(0)")
        A(f"v_mov_b32 v{vTM}, {sT0}")
        A("s_mov_b64 exec, 1")
        for k in range(11): A(f"v_mov_b32 v{vW1+k}, s{70+2*k}")
        A(f"v_mov_b32 v{vW1+11}, s100"); A(f"v_mov_b32 v{vW1+12}, {sN}"); A(f"v_mov_b32 v{vW1+13}, {sROLE}"); A(f"v_mov_b32 v{vW1+14}, {sSPIN}"); A(f"v_mov_b32 v{vW1+15}, {sIDX}")
        for k in range(4): A(f"v_mov_b32 v{vW1+16+k}, s{92+2*k}")
        for q in range(5): A(f"global_store_dwordx4 v{vTM}, {Q4(vW1+4*q)}, {pWS} offset:{q*16}")
    E.label("L_end")
    A("s_endpgm")

    body = E.finish()
    head = open("sequential_preLN__gqa_block_cached__dense_activation_silu__decode.s.ref").read().split("; Override launch")[0]
    src = head + f"""; One persistent launch: 256 workgroups (one per CU); wave 0 streams K/V into an LDS ring, waves 1-4 compute.
; @launch grid=(256,1,1) block=(320,1,1) lds={LDS}
.amdgcn_target "amdgcn-amd-amdhsa--gfx950"
.text
.globl {NAME}
.p2align 8
.type {NAME},@function
{NAME}:
{body}.section .rodata,"a"
.p2align 6
.amdhsa_kernel {NAME}
  .amdhsa_next_free_vgpr 256
  .amdhsa_next_free_sgpr 102
  .amdhsa_accum_offset 256
  .amdhsa_group_segment_fixed_size 0
  .amdhsa_kernarg_size 88
  .amdhsa_user_sgpr_count 2
  .amdhsa_user_sgpr_kernarg_segment_ptr 1
  .amdhsa_system_sgpr_workgroup_id_x 1
.end_amdhsa_kernel
"""
    return src, E.npad

if __name__ == "__main__":
    out = sys.argv[1]
    kw = json.loads(sys.argv[2]) if len(sys.argv) > 2 else {}
    src, npad = gen(**kw)
    open(out, "w").write(src)
    print("wrote", out, "lines", src.count("\n"), "pad states", npad)
```

```python
import sys, json, struct
from emit import Emitter

NAME = "sequential_preLN__gqa_block_cached__dense_activation_silu__decode_kernel"
def f2u(x): return struct.unpack("<I", struct.pack("<f", x))[0]

def gen(W=20, NS=48, diag=False, pol="nt", hilo=False, spin=1<<22, enc=None, warm=1, pfcode=1, wo_end=0, WD=None, NF=5, M=128, enc2=0, enc3=0):
    E = Emitter(); A = E
    if WD is None: WD = W
    NSLOT = 9; SLOT = 16384; RING = NSLOT*SLOT
    L_LANDED = RING; L_CONS = RING+16; L_RED = RING+256; L_OP = RING+512; L_ACT = RING+768; L_QW = RING+1024; L_LN = RING+5120
    LDS = 163840
    WS_E = 0; WS_CNT = 0x1000; WS_H = 0x3000; WS_Q = 0x8000; WS_D = 0x40000; WS_A = 0x100000; WS_B = 0x200000; WS_ST = 0x400000
    C_SCALE = f2u(1.4426950408889634/16.0); LOG2E = f2u(1.4426950408889634); INV448 = f2u(1.0/448.0); EPS = f2u(1e-5)
    stf = ldf = "sc1"
    sWG="s2"; sWAVE="s3"
    pX="s[4:5]"; pK=(6,7); pV=(8,9); pWQ=(10,11); pWO=(12,13); pW1=(16,17); pW2=(18,19); pOUT="s[20:21]"; pWS="s[24:25]"
    sG="s26"; sJ="s27"; sROLE="s28"; sB="s29"; sHKV="s30"; sN="s31"; sSLOT="s32"; sKNOWN="s33"; sT0="s34"; sT1="s35"; sT2="s36"
    sCI="s37"; sSPIN="s38"; sIDX="s39"
    uid=[0]
    def lab(p): uid[0]+=1; return f"L_{p}_{uid[0]}"
    def stamp(k):
        if not diag and not (enc and k in (0, enc[0], enc[1])): return
        A(f"s_memrealtime s[{70+2*k}:{71+2*k}]")
    def slot_advance():
        A(f"s_add_u32 {sN}, {sN}, 1")
        A(f"s_add_u32 {sSLOT}, {sSLOT}, {SLOT}")
        A(f"s_cmp_eq_u32 {sSLOT}, {RING}")
        A(f"s_cselect_b32 {sSLOT}, 0, {sSLOT}")

    A(f"s_cmp_ge_u32 {sWG}, 256")
    A("s_cbranch_scc1 L_end")
    stamp(0)
    A("s_load_dwordx16 s[4:19], s[0:1], 0")
    A("s_load_dwordx4 s[20:23], s[0:1], 64")
    A("s_load_dwordx2 s[24:25], s[0:1], 80")
    A("v_lshrrev_b32 v1, 6, v0")
    A("v_and_b32 v0, 63, v0")
    A(f"v_readfirstlane_b32 {sWAVE}, v1")
    A(f"s_lshr_b32 {sG}, {sWG}, 4")
    A(f"s_and_b32 {sJ}, {sWG}, 15")
    A(f"s_sub_u32 {sROLE}, {sJ}, {sG}")
    A(f"s_and_b32 {sROLE}, {sROLE}, 15")
    A(f"s_lshr_b32 {sB}, {sG}, 3")
    A(f"s_and_b32 {sHKV}, {sG}, 7")
    A(f"s_mov_b32 {sN}, 0"); A(f"s_mov_b32 {sSLOT}, 0"); A(f"s_mov_b32 {sKNOWN}, 0"); A(f"s_mov_b32 {sCI}, 0")
    A(f"s_mov_b32 {sSPIN}, {spin}")
    A(f"s_sub_u32 {sT0}, {sROLE}, 8")
    A(f"s_lshl_b32 {sIDX}, {sG}, 1")
    A(f"s_add_u32 {sIDX}, {sIDX}, {sT0}")
    A(f"s_cmp_lt_u32 {sT0}, 2")
    A(f"s_cselect_b32 {sIDX}, {sIDX}, 99")
    A(f"v_lshlrev_b32 v1, 2, v0"); A(f"v_add_u32 v1, {L_LANDED}, v1"); A("v_mov_b32 v2, 0")
    A("s_mov_b64 exec, 6"); A("v_mov_b32 v2, 0x7fffffff")
    A("s_mov_b64 exec, 0xff"); A("ds_write_b32 v1, v2"); A("s_mov_b64 exec, -1")
    A(f"s_cmp_lg_u32 {sWAVE}, 0")
    A("s_cbranch_scc1 L_consumer")

    vK=[4+i for i in range(8)]; vV=[12+i for i in range(4)]; vLIN=16; vTQ=[17,18]; vT1=[19,20]; vFL=21; vTMP=22; vC=24
    srdK="s[40:43]"; srdV="s[44:47]"; srdW="s[48:51]"; srdZ="s[52:55]"
    sCUR="s56"; sGB="s57"; sOFF="s58"; sCLM="s59"; sCOFF="s60"; sBASE="s61"; sFLOOR="s62"
    A("s_setprio 3")
    A("v_lshrrev_b32 v1, 5, v0"); A("v_and_b32 v2, 31, v0")
    A("v_xor_b32 v3, v2, v1"); A("v_lshlrev_b32 v3, 4, v3"); A("v_lshl_or_b32 v3, v1, 9, v3")
    for i in range(8): A(f"v_xor_b32 v{vK[i]}, {i*32}, v3")
    A("v_lshlrev_b32 v3, 1, v1"); A("v_xor_b32 v3, v2, v3"); A("v_lshlrev_b32 v3, 4, v3"); A("v_lshl_or_b32 v3, v1, 9, v3")
    for i in range(4): A(f"v_xor_b32 v{vV[i]}, {i*64}, v3")
    A(f"v_lshlrev_b32 v{vLIN}, 4, v0")
    A("v_lshrrev_b32 v1, 3, v0"); A("v_and_b32 v2, 7, v0"); A("v_lshrrev_b32 v3, 3, v0"); A("v_and_b32 v3, 2, v3"); A("v_xor_b32 v2, v2, v3")
    A("v_lshlrev_b32 v2, 4, v2")
    A(f"v_lshl_or_b32 v{vTQ[0]}, v1, 13, v2"); A(f"v_xor_b32 v{vTQ[1]}, 64, v{vTQ[0]}")
    A(f"v_mul_u32_u24 v3, 3584, v1")
    A(f"v_add_u32 v{vT1[0]}, v3, v2"); A("v_xor_b32 v2, 64, v2"); A(f"v_add_u32 v{vT1[1]}, v3, v2")
    A(f"v_mov_b32 v{vFL}, {L_LANDED}")
    A(f"s_lshl_b32 {sGB}, {sG}, 24"); A(f"s_mov_b32 {sFLOOR}, 0")
    A(f"s_mul_i32 {sCUR}, {sJ}, {2*NS}")
    A(f"s_lshl_b32 {sCOFF}, {sG}, 8"); A(f"s_add_u32 {sCOFF}, {sCOFF}, {WS_CNT}")
    A("s_waitcnt lgkmcnt(0)")
    A(f"s_mov_b32 s40, s{pK[0]}"); A(f"s_mov_b32 s41, s{pK[1]}"); A("s_mov_b32 s42, 0x10000000"); A("s_mov_b32 s43, 0x20000")
    A(f"s_mov_b32 s44, s{pV[0]}"); A(f"s_mov_b32 s45, s{pV[1]}"); A("s_mov_b32 s46, 0x10000000"); A("s_mov_b32 s47, 0x20000")
    A(f"s_mov_b32 s52, s{pK[0]}"); A(f"s_mov_b32 s53, s{pK[1]}"); A("s_mov_b32 s54, 0"); A("s_mov_b32 s55, 0x20000")
    A("s_mov_b32 s51, 0x20000")
    A("s_barrier")
    def pub_reg():
        A("s_mov_b64 exec, 1"); A(f"ds_write_b32 v{vFL}, v{vTMP}"); A("s_mov_b64 exec, -1")
    def publish(back):
        A(f"s_sub_u32 {sT0}, {sN}, {back}"); A(f"s_max_i32 {sT0}, {sT0}, {sFLOOR}")
        A(f"v_mov_b32 v{vTMP}, {sT0}"); pub_reg()
    def throttle(i, w):
        assert w in (16,20,24,28,32)
        if i % 4 == 3:
            A(f"s_waitcnt vmcnt({w})")
            if w == 16:
                if i == 15: publish(0)
            elif i//4 == (w-16)//4 - 1: publish(1)
    def tile_rows(specs, w):
        for i,(srd,vo,so) in enumerate(specs):
            if i % 4 == 0:
                A(f"s_add_u32 m0, {sSLOT}, {i*1024}" if i else f"s_mov_b32 m0, {sSLOT}")
                A(f"s_add_u32 {sOFF}, {sBASE}, {so}")
            A(f"buffer_load_dwordx4 v{vo}, {srd}, {sOFF} offen offset:{(i%4)*1024} {pol} lds")
            throttle(i, w)
        slot_advance()
    def tile_tall(voffs, rowstride, t, nvalid):
        for i in range(16):
            A(f"s_add_u32 m0, {sSLOT}, {i*1024}" if i else f"s_mov_b32 m0, {sSLOT}")
            A(f"s_add_u32 {sOFF}, {sBASE}, {(t*128+i*8)*rowstride}")
            A(f"buffer_load_dwordx4 v{voffs[i&1]}, {srdW if i < nvalid else srdZ}, {sOFF} offen {pol} lds")
            throttle(i, W)
        slot_advance()
    def tile_wide(t, w=W): tile_rows([(srdW if i < 14 else srdZ, vLIN, t*14336+i*1024) for i in range(16)], w)
    def freecheck(k):
        ok = lab("free"); lp = lab("freepoll")
        A(f"s_add_u32 {sT1}, {sN}, {k}")
        A(f"s_add_u32 {sT0}, {sKNOWN}, {NSLOT}")
        A(f"s_cmp_ge_u32 {sT0}, {sT1}"); A(f"s_cbranch_scc1 {ok}")
        E.label(lp)
        A(f"ds_read_b128 v[{vC}:{vC+3}], v{vFL} offset:16")
        A(f"s_sub_u32 {sSPIN}, {sSPIN}, 1"); A("s_cbranch_scc1 L_end")
        A("s_waitcnt lgkmcnt(0)")
        A(f"v_min3_u32 v{vC}, v{vC}, v{vC+1}, v{vC+2}"); A(f"v_min_u32 v{vC}, v{vC}, v{vC+3}")
        A(f"v_readfirstlane_b32 {sKNOWN}, v{vC}")
        A(f"s_add_u32 {sT0}, {sKNOWN}, {NSLOT}")
        A(f"s_cmp_ge_u32 {sT0}, {sT1}"); A(f"s_cbranch_scc1 {ok}")
        A("s_sleep 1")
        A(f"s_branch {lp}")
        E.label(ok)
    def setW(p, nbytes):
        A(f"s_mov_b32 s48, s{p[0]}"); A(f"s_mov_b32 s49, s{p[1]}"); A(f"s_mov_b32 s50, {nbytes}")
    A(f"s_cmp_ge_u32 {sROLE}, 4"); A("s_cbranch_scc1 L_ld_noq")
    setW(pWQ, 448*4096*2)
    A(f"s_lshl_b32 {sBASE}, {sHKV}, 10"); A(f"s_lshl_b32 {sT0}, {sB}, 2"); A(f"s_add_u32 {sT0}, {sT0}, {sROLE}"); A(f"s_lshl_b32 {sT0}, {sT0}, 7")
    A(f"s_add_u32 {sBASE}, {sBASE}, {sT0}")
    for i in range(56):
        A(f"s_mov_b32 m0, {i*1024}")
        A(f"s_add_u32 {sOFF}, {sBASE}, {i*8*8192}")
        A(f"buffer_load_dwordx4 v{vTQ[i&1]}, {srdW}, {sOFF} offen {pol} lds")
    for k,c in enumerate((40,24,8,0)):
        A(f"s_waitcnt vmcnt({c})"); A(f"v_mov_b32 v{vTMP}, {k+1}"); pub_reg()
    A(f"s_mov_b32 {sN}, 4"); A(f"s_mov_b32 {sSLOT}, {4*SLOT}"); A(f"s_mov_b32 {sFLOOR}, 4")
    E.label("L_ld_noq")
    def wo_base():
        setW(pWO, 4096*448*2)
        A(f"s_lshl_b32 {sT0}, {sHKV}, 4"); A(f"s_add_u32 {sT0}, {sT0}, {sJ}"); A(f"s_mul_i32 {sBASE}, {sT0}, {32*896}")
    if not wo_end:
        wo_base()
        for t in range(2): tile_wide(t)
    A(f"s_cmp_ge_u32 {sIDX}, 28"); A(f"s_cbranch_scc1 L_ld_noffn")
    setW(pW1, 448*1792*2)
    A(f"s_lshl_b32 {sBASE}, {sIDX}, 7")
    for t in range(4):
        if t % 2 == 0: freecheck(2)
        tile_tall(vT1, 3584, t, 16 if t < 3 else 8)
    setW(pW2, 1792*448*2)
    A(f"s_mul_i32 {sBASE}, {sIDX}, {64*896}")
    for t in range(4):
        if t % 2 == 0: freecheck(2)
        tile_wide(t)
    E.label("L_ld_noffn")
    def claim():
        A(f"s_mov_b32 {sCLM}, 1"); A(f"s_atomic_add {sCLM}, {pWS}, {sCOFF} glc")
    vCA=28; vONE=29; vCL=[30,31]
    def vclaim_issue(p):
        A("s_mov_b64 exec, 1"); A(f"global_atomic_add v{vCL[p]}, v{vCA}, v{vONE}, {pWS} sc0"); A("s_mov_b64 exec, -1")
    A(f"v_mov_b32 v{vCA}, {sCOFF}"); A(f"v_mov_b32 v{vONE}, 1")
    POOL = 2048-32*NS; TH = max(POOL-M, 0); sLAST="s63"; vTWO=23
    assert WD <= 32 and W <= 32
    A(f"v_mov_b32 v{vTWO}, 2"); A(f"s_mov_b32 {sLAST}, {1 if TH == 0 else 0}")
    def pub_word(off, sreg):
        A(f"v_mov_b32 v{vTMP}, {sreg}")
        A("s_mov_b64 exec, 1"); A(f"ds_write_b32 v{vFL}, v{vTMP} offset:{off}"); A("s_mov_b64 exec, -1")
    E.label("L_ld_loop")
    if diag:
        for k,c in enumerate((0,2,3,4,6,8,16,32,NS-1)):
            sk=lab("ls"); A(f"s_cmp_lg_u32 {sCI}, {c}"); A(f"s_cbranch_scc1 {sk}"); A(f"s_memrealtime s[{72+2*k}:{73+2*k}]"); A("s_waitcnt lgkmcnt(0)"); E.label(sk)
    freecheck(2)
    A(f"s_add_u32 {sCI}, {sCI}, 1")
    A(f"s_cmp_lt_u32 {sCI}, {NS}"); A("s_cbranch_scc1 L_ld_noclaim")
    A(f"s_cmp_eq_u32 {sLAST}, 0"); A("s_cbranch_scc0 L_ld_last")
    A("s_mov_b64 exec, 1"); A(f"global_atomic_add v{vCL[0]}, v{vCA}, v{vTWO}, {pWS} sc0"); A("s_mov_b64 exec, -1")
    A("s_branch L_ld_noclaim")
    E.label("L_ld_last")
    A(f"s_add_u32 {sT0}, {sN}, 2"); pub_word(8, sT0)
    vclaim_issue(0)
    E.label("L_ld_noclaim")
    A(f"s_lshl_b32 {sBASE}, {sCUR}, 13"); A(f"s_add_u32 {sBASE}, {sBASE}, {sGB}")
    tile_rows([(srdK, vK[i%8], i*1024) for i in range(16)], W)
    A(f"s_cmp_lt_u32 {sCI}, {NS}"); A("s_cbranch_scc1 L_ld_noclaim2")
    A(f"s_cmp_eq_u32 {sLAST}, 0"); A("s_cbranch_scc1 L_ld_noclaim2")
    vclaim_issue(1)
    E.label("L_ld_noclaim2")
    tile_rows([(srdV, vV[i%4], i*1024) for i in range(16)], W)
    A(f"s_add_u32 {sCUR}, {sCUR}, 2")
    A(f"s_cmp_lt_u32 {sCI}, {NS}"); A("s_cbranch_scc1 L_ld_loop")
    A(f"s_cmp_eq_u32 {sLAST}, 0"); A("s_cbranch_scc0 L_ld_mini")
    A(f"v_readfirstlane_b32 {sCLM}, v{vCL[0]}")
    A(f"s_add_u32 {sCUR}, {sCLM}, {32*NS}")
    A(f"s_cmp_ge_u32 {sCLM}, {TH}"); A(f"s_cselect_b32 {sLAST}, 1, 0")
    A(f"s_cmp_lt_u32 {sCLM}, {POOL-1}"); A("s_cbranch_scc1 L_ld_loop")
    pub_word(8, sN)
    A(f"v_mov_b32 v{vCL[1]}, {POOL}")
    E.label("L_ld_mini")
    if pfcode:
        A("s_getpc_b64 s[64:65]")
        E.label("L_pc")
        A("s_add_u32 s64, s64, L_fin-L_pc"); A("s_addc_u32 s65, s65, 0")
        A(f"v_lshlrev_b32 v47, 6, v0"); A("v_min_u32 v47, L_end-L_fin, v47")
        A("global_load_dword v48, v47, s[64:65]")
    E.label("L_ld_dyn")
    for p in range(2):
        A(f"v_readfirstlane_b32 {sCLM}, v{vCL[p]}")
        A(f"s_cmp_ge_u32 {sCLM}, {POOL}"); A("s_cbranch_scc1 L_ld_dyn_done")
        A(f"s_add_u32 {sCUR}, {sCLM}, {32*NS}")
        freecheck(1)
        vclaim_issue(p)
        A(f"s_lshl_b32 {sBASE}, {sCUR}, 13"); A(f"s_add_u32 {sBASE}, {sBASE}, {sGB}")
        tile_rows([(srdK, vK[i], i*1024) for i in range(8)] + [(srdV, vV[i%4], i*1024) for i in range(8)], WD)
    A("s_branch L_ld_dyn")
    E.label("L_ld_dyn_done")
    A(f"v_mov_b32 v{vTMP}, {sN}")
    A("s_mov_b64 exec, 1"); A(f"ds_write_b32 v{vFL}, v{vTMP} offset:4"); A("s_mov_b64 exec, -1")
    if wo_end:
        wo_base(); freecheck(2)
        for t in range(2):
            for i in range(14):
                if i % 4 == 0:
                    A(f"s_add_u32 m0, {sSLOT}, {i*1024}" if i else f"s_mov_b32 m0, {sSLOT}")
                    A(f"s_add_u32 {sOFF}, {sBASE}, {t*14336+i*1024}")
                A(f"buffer_load_dwordx4 v{vLIN}, {srdW}, {sOFF} offen offset:{(i%4)*1024} {pol} lds")
            slot_advance()
        for c,back in ((44,3),(28,2),(14,1),(0,0)):
            A(f"s_waitcnt vmcnt({c})"); publish(back)
    else:
        for c,back in ((16,1),(0,0)):
            A(f"s_waitcnt vmcnt({c})"); publish(back)
    if diag:
        A("s_mov_b64 exec, 1")
        A("s_memrealtime s[90:91]")
        A(f"s_lshl_b32 {sT0}, {sWG}, 6"); A(f"s_add_u32 {sT0}, {sT0}, {WS_ST+0x40000}"); A(f"v_mov_b32 v46, {sT0}")
        A("s_waitcnt lgkmcnt(0)")
        for k in range(11): A(f"v_mov_b32 v{32+k}, s{70+2*k}")
        A(f"v_mov_b32 v43, {sSPIN}")
        for q in range(3): A(f"global_store_dwordx4 v46, v[{32+4*q}:{35+4*q}], {pWS} offset:{q*16}")
    A("s_waitcnt lgkmcnt(0)")
    A("s_endpgm")

    E.label("L_consumer")
    sW="s40"; sTAG="s41"; sM1="s[42:43]"; sM2="s[44:45]"; sC="s46"; sE="s47"; sRR="s48"; sTOT="s49"
    sCK=["s[50:51]","s[52:53]","s[54:55]","s[56:57]"]; sCOL="s58"; sGP="s59"; sSWI="s60"
    vLANE=0; vN=1; vG4=2; vFLG=3; vCONS=4; vTM=5; vTM2=6; vTM3=7
    vM=8; vMC=9; vL=10; vMX=11
    vKB=[12,13,14,15]; vVB=[16,17,18,19]; vAD=[20,21,22,23]
    vS=24; vP=32; vO=36; vQ=52; vF=84
    vAA=104; vAI=105; vBA=106; vPOLL=None
    assert NF <= 5
    vWO=108; vW1=136; vW2=192; vX=248; vXH=254
    def P(r): return f"v[{r}:{r+1}]"
    def Q4(r): return f"v[{r}:{r+3}]"
    def SEL4(dst, a, b, c, d, t):
        A(f"v_cndmask_b32 v{dst}, v{a}, v{b}, {sM1}"); A(f"v_cndmask_b32 v{t}, v{c}, v{d}, {sM1}"); A(f"v_cndmask_b32 v{dst}, v{dst}, v{t}, {sM2}")
    def xrow(op, regs, tmps):
        for sw in ("v_permlane16_swap_b32","v_permlane32_swap_b32"):
            for r,t in zip(regs,tmps): A(f"v_mov_b32 v{t}, v{r}")
            for r,t in zip(regs,tmps): A(f"{sw} v{r}, v{t}")
            for r,t in zip(regs,tmps): A(f"{op} v{r}, v{r}, v{t}")
    def round_bf(dst, src):
        A(f"v_cvt_pk_bf16_f32 v{dst}, v{src}, v{src}"); A(f"v_and_b32 v{dst}, 0xffff0000, v{dst}")
    def unpack(lo, hi, src):
        A(f"v_lshlrev_b32 v{lo}, 16, v{src}"); A(f"v_and_b32 v{hi}, 0xffff0000, v{src}")
    def pub_cons():
        slot_advance()
        A(f"v_mov_b32 v{vTM}, {sN}")
        A("s_mov_b64 exec, 1"); A(f"ds_write_b32 v{vCONS}, v{vTM}"); A("s_mov_b64 exec, -1")
    def wait_tile(fin=None, lim=None):
        ok = lab("have"); lp = lab("poll")
        if fin: A(f"s_cmp_eq_u32 {lim}, {sN}"); A(f"s_cbranch_scc1 {fin}")
        A(f"s_cmp_gt_u32 {sKNOWN}, {sN}"); A(f"s_cbranch_scc1 {ok}")
        E.label(lp)
        A(f"ds_read_b128 {Q4(vAD[0])}, v{vFLG}")
        A(f"s_sub_u32 {sSPIN}, {sSPIN}, 1"); A("s_cbranch_scc1 L_end")
        A("s_waitcnt lgkmcnt(0)")
        A(f"v_readfirstlane_b32 {sKNOWN}, v{vAD[0]}"); A(f"v_readfirstlane_b32 {sTOT}, v{vAD[1]}"); A(f"v_readfirstlane_b32 {sSWI}, v{vAD[2]}")
        if fin: A(f"s_cmp_eq_u32 {lim}, {sN}"); A(f"s_cbranch_scc1 {fin}")
        A(f"s_cmp_gt_u32 {sKNOWN}, {sN}"); A(f"s_cbranch_scc1 {ok}")
        A("s_sleep 1")
        A(f"s_branch {lp}")
        E.label(ok)
    def poll(loads, tags, first_mask=None):
        lp = lab("gpoll"); n = len(loads)
        for i in range(n): A(f"s_mov_b64 {sCK[i]}, {first_mask[i] if first_mask else -1}")
        E.label(lp)
        for i,l in enumerate(loads):
            sk = lab("sk")
            A(f"s_mov_b64 exec, {sCK[i]}"); A(f"s_cbranch_execz {sk}"); A(l); E.label(sk)
        A("s_mov_b64 exec, -1")
        A(f"s_sub_u32 {sSPIN}, {sSPIN}, 1"); A("s_cbranch_scc1 L_end")
        A("s_waitcnt vmcnt(0)")
        for i in range(n):
            A(f"v_cmp_ne_u32 {sCK[i]}, {sTAG}, v{tags[i][0]}")
            for t in tags[i][1:]:
                A(f"v_cmp_ne_u32 vcc, {sTAG}, v{t}"); A(f"s_or_b64 {sCK[i]}, {sCK[i]}, vcc")
        A(f"s_or_b64 vcc, {sCK[0]}, {sCK[min(1,n-1)]}")
        for i in range(2, n): A(f"s_or_b64 vcc, vcc, {sCK[i]}")
        A(f"s_cbranch_scc1 {lp}")
    def layernorm(xr, f, lnbase, stride):
        s1=vTM; t=vTM2; mu=vX; a=vX+2; b=vX+4
        for u in range(7): unpack(f+2*u, f+2*u+1, xr[u])
        A(f"v_pk_add_f32 {P(a)}, {P(f)}, {P(f+2)}"); A(f"v_pk_add_f32 {P(b)}, {P(f+4)}, {P(f+6)}")
        A(f"v_pk_add_f32 {P(a)}, {P(a)}, {P(f+8)}"); A(f"v_pk_add_f32 {P(b)}, {P(b)}, {P(f+10)}")
        A(f"v_pk_add_f32 {P(a)}, {P(a)}, {P(f+12)}"); A(f"v_pk_add_f32 {P(a)}, {P(a)}, {P(b)}")
        A(f"v_add_f32 v{s1}, v{a}, v{a+1}")
        def red32(r):
            for k in (8,4,2,1): A(f"v_add_f32_dpp v{r}, v{r}, v{r} row_ror:{k} row_mask:0xf bank_mask:0xf")
            A(f"v_mov_b32 v{t}, v{r}"); A(f"v_permlane16_swap_b32 v{r}, v{t}"); A(f"v_add_f32 v{r}, v{r}, v{t}")
        red32(s1)
        A(f"v_mul_f32 v{mu}, {INV448:#x}, v{s1}")
        NEG = "op_sel_hi:[1,0] neg_lo:[0,1] neg_hi:[0,1]"
        A(f"v_pk_add_f32 {P(b)}, {P(f)}, {P(mu)} {NEG}")
        A(f"v_pk_mul_f32 {P(a)}, {P(b)}, {P(b)}")
        for u in range(1,7):
            A(f"v_pk_add_f32 {P(b)}, {P(f+2*u)}, {P(mu)} {NEG}")
            A(f"v_pk_fma_f32 {P(a)}, {P(b)}, {P(b)}, {P(a)}")
        A(f"v_add_f32 v{s1}, v{a}, v{a+1}")
        round_bf(mu, mu)
        fill = [f"v_pk_add_f32 {P(f+2*u)}, {P(f+2*u)}, {P(mu)} {NEG}" for u in range(7)] + [f"v_cvt_pk_bf16_f32 v{xr[u]}, v{f+2*u}, v{f+2*u+1}" for u in range(7)]
        for u in range(7): fill += [f"v_lshlrev_b32 v{f+2*u}, 16, v{xr[u]}", f"v_and_b32 v{f+2*u+1}, 0xffff0000, v{xr[u]}"]
        chain = [f"v_add_f32_dpp v{s1}, v{s1}, v{s1} row_ror:{k} row_mask:0xf bank_mask:0xf" for k in (8,4,2,1)]
        chain += [f"v_mov_b32 v{t}, v{s1}", f"v_permlane16_swap_b32 v{s1}, v{t}", f"v_add_f32 v{s1}, v{s1}, v{t}",
                  f"v_mul_f32 v{s1}, {INV448:#x}, v{s1}", f"v_cvt_pk_bf16_f32 v{s1}, v{s1}, v{s1}", f"v_and_b32 v{s1}, 0xffff0000, v{s1}",
                  f"v_add_f32 v{s1}, {EPS:#x}, v{s1}", f"v_cvt_pk_bf16_f32 v{s1}, v{s1}, v{s1}", f"v_and_b32 v{s1}, 0xffff0000, v{s1}",
                  f"v_sqrt_f32 v{s1}, v{s1}", f"v_cvt_pk_bf16_f32 v{s1}, v{s1}, v{s1}", f"v_and_b32 v{s1}, 0xffff0000, v{s1}", f"v_rcp_f32 v{a}, v{s1}"]
        while chain or fill:
            for _ in range(2):
                if fill: A(fill.pop(0))
            if chain: A(chain.pop(0))
        for u in range(7): A(f"v_pk_mul_f32 {P(f+2*u)}, {P(f+2*u)}, {P(a)} op_sel_hi:[1,0]")
        for u in range(7):
            A(f"v_cvt_pk_bf16_f32 v{xr[u]}, v{f+2*u}, v{f+2*u+1}")
            A(f"ds_write_b32 v{lnbase}, v{xr[u]} offset:{u*stride}")
    def ln_read_addr(rd, base):
        A(f"v_and_b32 v{rd}, 1, v{vLANE}"); A(f"v_mul_u32_u24 v{rd}, 896, v{rd}")
        A(f"v_lshl_add_u32 v{rd}, v{vG4}, 4, v{rd}"); A(f"v_add_u32 v{rd}, {base}, v{rd}")
    def tall_addr(dst):
        A(f"v_lshrrev_b32 v{vTM}, 3, v{vN}")
        A(f"v_and_b32 v{vTM2}, 1, v{vG4}"); A(f"v_lshl_or_b32 v{vTM}, v{vTM2}, 1, v{vTM}")
        A(f"v_xor_b32 v{vTM}, {sW}, v{vTM}"); A(f"v_lshlrev_b32 v{vTM}, 5, v{vTM}")
        A(f"v_and_b32 v{vTM2}, 3, v{vN}"); A(f"v_lshl_or_b32 v{vTM}, v{vTM2}, 3, v{vTM}")
        A(f"v_lshrrev_b32 v{vTM2}, 2, v{vN}"); A(f"v_lshl_or_b32 v{vTM}, v{vTM2}, 7, v{vTM}")
        A(f"v_lshl_or_b32 v{dst}, v{vG4}, 10, v{vTM}")
    def wide_addr(dst):
        A(f"v_lshrrev_b32 v{vTM}, 2, v{vN}"); A(f"v_lshl_add_u32 v{vTM}, v{vG4}, 2, v{vTM}"); A(f"v_mul_u32_u24 v{vTM}, 896, v{vTM}")
        A(f"v_and_b32 v{vTM2}, 3, v{vN}"); A(f"v_lshl_add_u32 v{vTM}, v{vTM2}, 3, v{vTM}")
        A(f"s_mul_i32 {sT0}, {sW}, 224"); A(f"v_add_u32 v{dst}, {sT0}, v{vTM}")
    def read_tall_tile(base, dstreg, t):
        wait_tile()
        A(f"v_add_u32 v{vAD[0]}, {sSLOT}, v{base}")
        for s in range(4 if t < 3 else 2):
            for h2 in range(2):
                A(f"ds_read_b64_tr_b16 {P(dstreg + 4*(4*t+s) + 2*h2)}, v{vAD[0]} offset:{s*4096+h2*512}")
        A("s_waitcnt lgkmcnt(0)")
        pub_cons()
    def read_wide_tile(base, dstreg, half):
        wait_tile()
        A(f"v_add_u32 v{vAD[0]}, {sSLOT}, v{base}")
        for tt in range(7): A(f"ds_read_b64_tr_b16 {P(dstreg + 4*tt + 2*half)}, v{vAD[0]} offset:{tt*32}")
        A("s_waitcnt lgkmcnt(0)")
        pub_cons()
    def msg_lane_addr(dst, per_rr_shift):
        A(f"v_lshrrev_b32 v{vTM}, 3, v{vLANE}"); A(f"v_lshlrev_b32 v{vTM}, {per_rr_shift}, v{vTM}")
        A(f"v_and_b32 v{vTM2}, 7, v{vLANE}"); A(f"v_lshl_or_b32 v{dst}, v{vTM2}, 4, v{vTM}")

    A(f"s_sub_u32 {sW}, {sWAVE}, 1")
    A(f"v_and_b32 v{vN}, 15, v{vLANE}"); A(f"v_lshrrev_b32 v{vG4}, 4, v{vLANE}")
    A(f"v_mov_b32 v{vFLG}, {L_LANDED}")
    A(f"s_lshl_b32 {sT0}, {sW}, 2"); A(f"s_add_u32 {sT0}, {sT0}, {L_CONS}"); A(f"v_mov_b32 v{vCONS}, {sT0}")
    A("s_mov_b32 s42, 0xffff0000"); A("s_mov_b32 s43, 0xffff0000"); A("s_mov_b32 s44, 0"); A("s_mov_b32 s45, -1")
    A(f"s_mov_b32 {sC}, {C_SCALE:#x}"); A("s_mov_b32 s66, -1"); A("s_mov_b32 s67, 0"); A(f"s_mov_b32 {sTOT}, 0x7fffffff"); A(f"s_mov_b32 {sSWI}, 0x7fffffff")
    if hilo: A("s_mov_b32 s64, 0xcccccccc"); A("s_mov_b32 s65, 0xcccccccc")
    A(f"s_sub_u32 {sT0}, {sROLE}, 4"); A(f"s_lshl_b32 {sRR}, {sG}, 2"); A(f"s_add_u32 {sRR}, {sRR}, {sT0}")
    A(f"s_cmp_lt_u32 {sT0}, 4"); A(f"s_cselect_b32 {sRR}, {sRR}, 99")
    A(f"s_bfe_u32 {sT0}, {sRR}, 0x20003"); A(f"s_mul_i32 {sCOL}, {sT0}, 224")
    A(f"s_bfe_u32 {sGP}, {sRR}, 0x20001"); A(f"s_lshl_b32 {sT0}, {sGP}, 6"); A(f"s_add_u32 {sCOL}, {sCOL}, {sT0}")
    A(f"s_and_b32 {sT0}, {sRR}, 1"); A(f"s_lshl_b32 {sT0}, {sT0}, 4"); A(f"s_add_u32 {sCOL}, {sCOL}, {sT0}")
    A(f"s_bfe_u32 {sT0}, {sRR}, 0x10005"); A(f"s_mul_i32 {sT0}, {sT0}, 896"); A(f"s_add_u32 {sCOL}, {sCOL}, {sT0}")
    A("s_waitcnt lgkmcnt(0)")
    A(f"s_load_dword {sE}, {pWS}, {WS_E}")
    A("s_barrier")
    stamp(11)
    A(f"s_cmp_ge_u32 {sRR}, 64"); A("s_cbranch_scc1 L_nox")
    A(f"v_and_b32 v{vTM}, 6, v{vLANE}"); A(f"v_lshl_add_u32 v{vTM}, v{vTM}, 1, {sCOL}")
    A(f"global_load_dword v{vXH}, v{vTM}, {pX}")
    A(f"v_mov_b32 v{vXH+1}, 0")
    A(f"s_cmp_eq_u32 {sGP}, 3"); A("s_cbranch_scc1 L_nox")
    A(f"global_load_dword v{vXH+1}, v{vTM}, {pX} offset:32")
    E.label("L_nox")
    A(f"v_xor_b32 v{vTM}, v{vG4}, v{vN}"); A(f"v_lshlrev_b32 v{vTM}, 4, v{vTM}"); A(f"v_lshl_or_b32 v{vTM}, v{vN}, 9, v{vTM}")
    for s in range(4): A(f"v_xor_b32 v{vKB[s]}, {s*64}, v{vTM}")
    A(f"v_lshrrev_b32 v{vTM}, 2, v{vN}"); A(f"v_lshl_add_u32 v{vTM}, v{vG4}, 2, v{vTM}")
    A(f"v_and_b32 v{vTM2}, 7, v{vTM}")
    A(f"s_lshl_b32 {sT0}, {sW}, 2"); A(f"v_xor_b32 v{vTM2}, {sT0}, v{vTM2}"); A(f"v_lshlrev_b32 v{vTM2}, 5, v{vTM2}")
    A(f"v_lshl_or_b32 v{vTM}, v{vTM}, 9, v{vTM2}")
    A(f"v_and_b32 v{vTM2}, 3, v{vN}"); A(f"v_lshl_or_b32 v{vTM}, v{vTM2}, 3, v{vTM}")
    for e in range(4): A(f"v_xor_b32 v{vVB[e]}, {e*32}, v{vTM}")
    A(f"v_mov_b32 v{vM}, 0xff800000"); A(f"v_mov_b32 v{vMC}, 0xff800000"); A(f"v_mov_b32 v{vL}, 0")
    for i in range(16): A(f"v_mov_b32 v{vO+i}, 0")
    A(f"s_lshl_b32 {sT0}, {sG}, 4"); A(f"s_lshl_b32 {sT1}, {sW}, 1"); A(f"s_add_u32 {sT0}, {sT0}, {sT1}"); A(f"s_lshl_b32 {sT0}, {sT0}, 4")
    A(f"s_add_u32 {sT0}, {sT0}, {sJ}"); A(f"s_lshl_b32 {sT0}, {sT0}, 8"); A(f"s_add_u32 {sT0}, {sT0}, {WS_A}")
    A(f"v_lshrrev_b32 v{vAA}, 1, v{vG4}"); A(f"v_lshlrev_b32 v{vAA}, 15, v{vAA}")
    A(f"v_and_b32 v{vTM}, 1, v{vG4}"); A(f"v_lshl_or_b32 v{vAA}, v{vTM}, 12, v{vAA}"); A(f"v_lshl_or_b32 v{vAA}, v{vN}, 4, v{vAA}")
    A(f"v_add_u32 v{vAA}, {sT0}, v{vAA}")
    A(f"s_lshl_b32 {sT0}, {sWG}, 12"); A(f"s_add_u32 {sT0}, {sT0}, {WS_A}")
    A(f"v_lshlrev_b32 v{vAI}, 4, v{vN}"); A(f"v_lshl_or_b32 v{vAI}, v{vG4}, 10, v{vAI}"); A(f"v_add_u32 v{vAI}, {sT0}, v{vAI}")
    A(f"s_lshl_b32 {sT0}, {sB}, 2"); A(f"s_add_u32 {sT0}, {sT0}, {sW}"); A(f"s_lshl_b32 {sT0}, {sT0}, 10")
    A(f"s_and_b32 {sT1}, {sWG}, 127"); A(f"s_add_u32 {sT0}, {sT0}, {sT1}"); A(f"s_lshl_b32 {sT0}, {sT0}, 7"); A(f"s_add_u32 {sT0}, {sT0}, {WS_B}")
    msg_lane_addr(vBA, 14); A(f"v_add_u32 v{vBA}, {sT0}, v{vBA}")
    A(f"s_cmp_ge_u32 {sROLE}, 4")
    A("s_cbranch_scc1 L_q_wait")
    xr = [vWO+u for u in range(7)]; f14 = vWO+8; vLW = vWO+24; vLR = vWO+25; vTA = vWO+26
    A(f"v_lshrrev_b32 v{vLW}, 5, v{vLANE}"); A(f"v_mul_u32_u24 v{vLW}, 896, v{vLW}")
    A(f"v_and_b32 v{vTM2}, 31, v{vLANE}"); A(f"v_lshl_add_u32 v{vLW}, v{vTM2}, 2, v{vLW}")
    for u in range(7): A(f"global_load_dword v{xr[u]}, v{vLW}, {pX} offset:{u*128}")
    A(f"s_or_b32 {sT0}, {sROLE}, {sW}"); A(f"s_cmp_lg_u32 {sT0}, 0"); A("s_cbranch_scc1 L_noinit")
    A(f"s_lshl_b32 {sT0}, {sG}, 8"); A(f"s_add_u32 {sT0}, {sT0}, {WS_CNT}")
    A(f"v_mov_b32 v{vTM2}, {sT0}"); A(f"v_mov_b32 v{vTM3}, 0")
    A("s_mov_b64 exec, 1"); A(f"global_store_dword v{vTM2}, v{vTM3}, {pWS} {stf}"); A("s_mov_b64 exec, -1")
    E.label("L_noinit")
    A(f"s_lshl_b32 {sT2}, {sW}, 11"); A(f"s_add_u32 {sT2}, {sT2}, {L_LN}")
    A(f"v_add_u32 v{vLW}, {sT2}, v{vLW}")
    ln_read_addr(vLR, sT2)
    tall_addr(vTA)
    A("s_waitcnt vmcnt(0) lgkmcnt(0)")
    stamp(12)
    layernorm(xr, f14, vLW, 128)
    A("s_waitcnt lgkmcnt(0)")
    stamp(13)
    for s in range(14): A(f"ds_read_b128 {Q4(vW2+4*s)}, v{vLR} offset:{s*64}")
    for t in range(4):
        read_tall_tile(vTA, vW1, t)
        if t == 0: stamp(14)
        for s in range(4*t, min(4*t+4, 14)):
            A(f"v_mfma_f32_16x16x32_bf16 {Q4(vS)}, {Q4(vW2+4*s)}, {Q4(vW1+4*s)}, {'0' if s==0 else Q4(vS)}")
    A(f"s_lshl_b32 {sT0}, {sB}, 2"); A(f"s_add_u32 {sT0}, {sT0}, {sROLE}"); A(f"s_lshl_b32 {sT0}, {sT0}, 2"); A(f"s_add_u32 {sT0}, {sT0}, {sW}")
    A(f"s_lshl_b32 {sT0}, {sT0}, 6"); A(f"s_lshl_b32 {sT1}, {sHKV}, 11"); A(f"s_add_u32 {sT0}, {sT0}, {sT1}"); A(f"s_add_u32 {sT0}, {sT0}, {WS_Q}")
    A(f"v_lshlrev_b32 v{vTM3}, 2, v{vN}"); A(f"v_lshl_add_u32 v{vTM3}, v{vG4}, 14, v{vTM3}"); A(f"v_add_u32 v{vTM3}, {sT0}, v{vTM3}")
    A(f"s_mul_i32 {sTAG}, {sE}, 0x9e3779b1"); A(f"s_add_u32 {sTAG}, {sTAG}, 0x7f4a7c15")
    A(f"v_cndmask_b32 v{vTM}, v{vS}, v{vS+1}, {sM1}")
    A(f"v_mov_b32_dpp v{vTM2}, v{vTM} quad_perm:[1,0,3,2] row_mask:0xf bank_mask:0xf")
    A(f"v_mov_b32 v{vX+1}, {sTAG}")
    A(f"v_cvt_pk_bf16_f32 v{vX}, v{vTM}, v{vTM2}")
    A("s_mov_b64 exec, 0x55555555")
    A(f"global_store_dwordx2 v{vTM3}, {P(vX)}, {pWS} {stf}")
    A("s_mov_b64 exec, -1")
    stamp(1)
    E.label("L_q_wait")
    wide_addr(vX)
    if not wo_end:
        for h in range(2): read_wide_tile(vX, vWO, h)
    A(f"s_cmp_ge_u32 {sIDX}, 28"); A("s_cbranch_scc1 L_noffn")
    tall_addr(vX+1)
    for t in range(4): read_tall_tile(vX+1, vW1, t)
    for t in range(4): read_wide_tile(vX, vW2 + 28*(t>>1), t & 1)
    E.label("L_noffn")
    A("s_waitcnt lgkmcnt(0)")
    A(f"s_mul_i32 {sTAG}, {sE}, 0x9e3779b1"); A(f"s_add_u32 {sTAG}, {sTAG}, 0x7f4a7c15")
    A(f"s_lshl_b32 {sT0}, {sG}, 11"); A(f"s_add_u32 {sT0}, {sT0}, {WS_Q}")
    A(f"v_lshl_add_u32 v{vTM3}, v{vLANE}, 4, {sT0}")
    poll([f"global_load_dwordx4 {Q4(vF)}, v{vTM3}, {pWS} {ldf}", f"global_load_dwordx4 {Q4(vF+4)}, v{vTM3}, {pWS} offset:1024 {ldf}"],
         [[vF+1, vF+3], [vF+5, vF+7]])
    A(f"s_lshl_b32 {sT0}, {sW}, 10"); A(f"s_add_u32 {sT0}, {sT0}, {L_QW}")
    A(f"v_mov_b32 v{vF+1}, v{vF+2}"); A(f"v_mov_b32 v{vF+5}, v{vF+6}")
    A(f"v_lshl_add_u32 v{vTM}, v{vLANE}, 3, {sT0}")
    A(f"ds_write_b64 v{vTM}, {P(vF)}"); A(f"ds_write_b64 v{vTM}, {P(vF+4)} offset:512")
    A(f"v_and_b32 v{vTM2}, 1, v{vLANE}"); A(f"v_lshlrev_b32 v{vTM2}, 9, v{vTM2}"); A(f"v_lshl_add_u32 v{vTM2}, v{vG4}, 4, v{vTM2}"); A(f"v_add_u32 v{vTM2}, {sT0}, v{vTM2}")
    A("s_waitcnt lgkmcnt(0)")
    for s in range(8): A(f"ds_read_b128 {Q4(vQ+4*s)}, v{vTM2} offset:{s*64}")
    stamp(2)
    if warm:
        A(f"s_lshl_b32 {sT0}, {sWG}, 12"); A(f"s_lshl_b32 {sT1}, {sW}, 10"); A(f"s_add_u32 {sT0}, {sT0}, {sT1}"); A(f"s_add_u32 {sT0}, {sT0}, {WS_A}")
        A(f"v_lshl_add_u32 v{vTM}, v{vLANE}, 4, {sT0}")
        A(f"global_load_dword v{vX+2}, v{vTM}, {pWS} {ldf}")
        A(f"s_cmp_ge_u32 {sRR}, 64"); A("s_cbranch_scc1 L_nowarm")
        A(f"s_lshl_b32 {sT0}, {sRR}, 14"); A(f"s_lshl_b32 {sT1}, {sW}, 12"); A(f"s_add_u32 {sT0}, {sT0}, {sT1}"); A(f"s_add_u32 {sT0}, {sT0}, {WS_B}")
        A(f"v_lshl_add_u32 v{vTM}, v{vLANE}, 6, {sT0}")
        A(f"global_load_dword v{vX+3}, v{vTM}, {pWS} {ldf}")
        A(f"s_lshl_b32 {sT0}, {sRR}, 12"); A(f"s_lshl_b32 {sT1}, {sW}, 10"); A(f"s_add_u32 {sT0}, {sT0}, {sT1}"); A(f"s_add_u32 {sT0}, {sT0}, {WS_D}")
        A(f"v_lshl_add_u32 v{vTM}, v{vLANE}, 4, {sT0}")
        A(f"global_load_dword v{vX+4}, v{vTM}, {pWS} {ldf}")
        A(f"s_lshl_b32 {sT0}, {sRR}, 6"); A(f"s_add_u32 {sT0}, {sT0}, {WS_H}"); A(f"v_mov_b32 v{vTM}, {sT0}")
        A(f"global_load_dword v{vX+5}, v{vTM}, {pWS} {ldf}")
        E.label("L_nowarm")
    A("s_waitcnt lgkmcnt(0)")

    def qk(nt):
        for s in range(4): A(f"v_add_u32 v{vAD[s]}, {sSLOT}, v{vKB[s]}")
        seq = [(t,s) for s in range(8) for t in range(nt)]; n = len(seq)
        def kread(i):
            t,s = seq[i]; A(f"ds_read_b128 {Q4(vF + 4*(i % NF))}, v{vAD[s&3]} offset:{(s>>2)*256 + t*8192}")
        for i in range(NF): kread(i)
        for i in range(n):
            t,s = seq[i]
            A(f"s_waitcnt lgkmcnt({min(NF-1, n-1-i)})")
            d = Q4(vS+4*t)
            A(f"v_mfma_f32_16x16x32_bf16 {d}, {Q4(vF + 4*(i % NF))}, {Q4(vQ+4*s)}, {'0' if s==0 else d}")
            if i + NF < n: kread(i+NF)
    def softmax(nt, tag):
        n = 4*nt
        for i in range(n//2): A(f"v_cvt_pk_bf16_f32 v{vP+i}, v{vS+2*i}, v{vS+2*i+1}")
        for i in range(n//2): unpack(vS+2*i, vS+2*i+1, vP+i)
        if nt == 2:
            A(f"v_max3_f32 v{vMX}, v{vS}, v{vS+1}, v{vS+2}"); A(f"v_max3_f32 v{vTM}, v{vS+3}, v{vS+4}, v{vS+5}")
            A(f"v_max3_f32 v{vMX}, v{vMX}, v{vS+6}, v{vS+7}"); A(f"v_max_f32 v{vMX}, v{vMX}, v{vTM}")
        else:
            A(f"v_max3_f32 v{vMX}, v{vS}, v{vS+1}, v{vS+2}"); A(f"v_max_f32 v{vMX}, v{vMX}, v{vS+3}")
        xrow("v_max_f32", [vMX], [vTM])
        A(f"v_cmp_gt_f32 vcc, v{vMX}, v{vM}")
        A("s_cmp_lg_u64 vcc, 0"); A(f"s_cbranch_scc1 L_rescale{tag}")
        E.label(f"L_rescaled{tag}")
        for i in range(n): A(f"v_fma_f32 v{vS+i}, v{vS+i}, {sC}, -v{vMC}")
        for i in range(n): A(f"v_exp_f32 v{vS+i}, v{vS+i}")
        for i in range(n//2): A(f"v_cvt_pk_bf16_f32 v{vP+i}, v{vS+2*i}, v{vS+2*i+1}")
        if hilo:
            for i in range(n//2):
                unpack(vF+16, vF+17, vP+i)
                A(f"v_sub_f32 v{vF+16}, v{vS+2*i}, v{vF+16}"); A(f"v_sub_f32 v{vF+17}, v{vS+2*i+1}, v{vF+17}")
                A(f"v_cvt_pk_bf16_f32 v{vF+16}, v{vF+16}, v{vF+17}")
                A(f"v_cndmask_b32 v{vP+i}, v{vP+i}, v{vF+16}, s[64:65]")
        A(f"v_add_f32 v{vTM}, v{vS}, v{vS+1}"); A(f"v_add_f32 v{vMX}, v{vS+2}, v{vS+3}")
        if nt == 2:
            A(f"v_add_f32 v{vS+4}, v{vS+4}, v{vS+5}"); A(f"v_add_f32 v{vS+6}, v{vS+6}, v{vS+7}")
            A(f"v_add_f32 v{vTM}, v{vTM}, v{vS+4}"); A(f"v_add_f32 v{vMX}, v{vMX}, v{vS+6}")
        A(f"v_add_f32 v{vL}, v{vL}, v{vTM}"); A(f"v_add_f32 v{vL}, v{vL}, v{vMX}")
    def rescale(tag):
        E.label(f"L_rescale{tag}")
        A(f"v_max_f32 v{vM}, v{vM}, v{vMX}")
        A(f"v_mul_f32 v{vTM}, {sC}, v{vM}")
        A(f"v_sub_f32 v{vTM2}, v{vMC}, v{vTM}")
        A(f"v_mov_b32 v{vMC}, v{vTM}")
        A(f"v_exp_f32 v{vTM2}, v{vTM2}")
        A(f"v_mul_f32 v{vL}, v{vL}, v{vTM2}")
        A(f"v_mov_b32_dpp v{vTM}, v{vTM2} quad_perm:[0,0,2,2] row_mask:0xf bank_mask:0xf")
        A(f"v_mov_b32_dpp v{vTM3}, v{vTM2} quad_perm:[1,1,3,3] row_mask:0xf bank_mask:0xf")
        for i in range(16): A(f"v_mul_f32 v{vO+i}, v{vO+i}, v{vTM if i%2==0 else vTM3}")
        A(f"s_branch L_rescaled{tag}")
    E.label("L_loop")
    wait_tile("L_mini", sSWI)
    qk(2)
    pub_cons()
    softmax(2, "a")
    wait_tile()
    for e in range(4): A(f"v_add_u32 v{vAD[e]}, {sSLOT}, v{vVB[e]}")
    for e in range(4):
        for h2 in range(2): A(f"ds_read_b64_tr_b16 {P(vF + 4*e + 2*h2)}, v{vAD[e]} offset:{h2*8192}")
    for e in range(4):
        A(f"s_waitcnt lgkmcnt({6-2*e})")
        A(f"v_mfma_f32_16x16x32_bf16 {Q4(vO+4*e)}, {Q4(vP)}, {Q4(vF+4*e)}, {Q4(vO+4*e)}")
    pub_cons()
    if True:
        A("s_branch L_loop")
        E.label("L_mini")
        wait_tile("L_fin", sTOT)
        qk(1)
        for e in range(4): A(f"v_add_u32 v{vAD[e]}, {sSLOT}, v{vVB[e]}")
        for e in range(4): A(f"ds_read_b64_tr_b16 {P(vF + 2*e)}, v{vAD[e]} offset:8192")
        softmax(1, "b")
        A("s_waitcnt lgkmcnt(0)")
        for e in range(4):
            A(f"v_mfma_f32_16x16x16_bf16 {Q4(vO+4*e)}, {P(vP)}, {P(vF+2*e)}, {Q4(vO+4*e)}")
        pub_cons()
        A("s_branch L_mini")
        rescale("b")
    rescale("a")

    E.label("L_fin")
    stamp(3)
    if enc2:
        A("s_memrealtime s[76:77]"); A(f"s_lshl_b32 {sT0}, {sWG}, 2"); A(f"s_add_u32 {sT0}, {sT0}, {WS_ST}"); A(f"v_mov_b32 v{vTM2}, {sT0}")
        A("s_waitcnt lgkmcnt(0)"); A(f"v_mov_b32 v{vTM3}, s76")
        A("s_mov_b64 exec, 1"); A(f"global_store_dword v{vTM2}, v{vTM3}, {pWS} sc1"); A("s_mov_b64 exec, -1")
    vG=vF; vI=vF+4; sa=vS; sb=vS+1; sw=vS+2
    vA=vQ; vOPR=vQ+4; vOPW=vQ+5; vR0=vQ+6; vR1=vQ+7; vR2=vQ+8; vR3=vQ+9; vR4=vQ+10; vR5=vQ+11; vZ=vQ+12
    yreg = [vO, vO+4, vO+8, vO+12, vQ+16, vQ+20, vQ+24]
    xrow("v_add_f32", [vL], [vTM])
    if hilo:
        for e in range(4):
            for h in range(2): A(f"v_add_f32 v{vO+4*e+h}, v{vO+4*e+h}, v{vO+4*e+2+h}")
    A(f"v_log_f32 v{vTM2}, v{vL}"); A(f"v_rcp_f32 v{vTM3}, v{vL}")
    A(f"v_mov_b32 v{vG+3}, {sTAG}")
    A(f"v_add_f32 v{vTM2}, v{vMC}, v{vTM2}")
    SEL4(vG, vO+0, vO+8, vO+1, vO+9, vMX)
    A(f"v_mov_b32_dpp v{vTM}, v{vTM3} quad_perm:[0,0,2,2] row_mask:0x3 bank_mask:0xf")
    A(f"v_mov_b32_dpp v{vG+2}, v{vTM2} quad_perm:[0,0,2,2] row_mask:0x3 bank_mask:0xf")
    SEL4(vG+1, vO+4, vO+12, vO+5, vO+13, vMX)
    A(f"v_mov_b32_dpp v{vTM}, v{vTM3} quad_perm:[1,1,3,3] row_mask:0xc bank_mask:0xf")
    A(f"v_mov_b32_dpp v{vG+2}, v{vTM2} quad_perm:[1,1,3,3] row_mask:0xc bank_mask:0xf")
    A(f"v_mul_f32 v{vG}, v{vG}, v{vTM}"); A(f"v_mul_f32 v{vG+1}, v{vG+1}, v{vTM}")
    A(f"global_store_dwordx4 v{vAA}, {Q4(vG)}, {pWS} {stf}")
    stamp(4)
    A(f"v_lshlrev_b32 v{vOPR}, 3, v{vG4}"); A(f"v_add_u32 v{vOPR}, {L_OP}, v{vOPR}")
    A(f"v_lshlrev_b32 v{vOPW}, 1, v{vN}"); A(f"v_add_u32 v{vOPW}, {L_OP}, v{vOPW}")
    A(f"v_mov_b32 v{vZ}, 0")
    A(f"s_cmp_lt_u32 {sIDX}, 28"); A("s_cbranch_scc1 L_ffn_addr")
    A(f"s_lshl_b32 {sT0}, {sRR}, 14"); A(f"s_lshl_b32 {sT1}, {sW}, 12"); A(f"s_add_u32 {sT0}, {sT0}, {sT1}"); A(f"s_add_u32 {sT0}, {sT0}, {WS_B}")
    A(f"v_lshl_add_u32 v{vR0}, v{vLANE}, 4, {sT0}")
    A(f"s_lshl_b32 {sT0}, {sW}, 6"); A(f"s_add_u32 {sT0}, {sT0}, {L_RED}")
    A(f"v_and_b32 v{vTM}, 7, v{vLANE}"); A(f"v_lshl_add_u32 v{vR1}, v{vTM}, 2, {sT0}")
    A(f"v_and_b32 v{vTM}, 6, v{vLANE}"); A(f"v_lshlrev_b32 v{vR2}, 2, v{vTM}"); A(f"v_add_u32 v{vR2}, {L_RED}, v{vR2}")
    A(f"s_lshl_b32 {sT0}, {sRR}, 6"); A(f"s_add_u32 {sT0}, {sT0}, {WS_H}"); A(f"v_lshl_add_u32 v{vR3}, v{vTM}, 3, {sT0}")
    A(f"s_lshl_b32 {sT0}, {sRR}, 12"); A(f"s_add_u32 {sT0}, {sT0}, {WS_D}"); A(f"v_lshl_add_u32 v{vR4}, v{vLANE}, 4, {sT0}")
    A(f"v_lshl_add_u32 v{vR5}, v{vTM}, 1, {sCOL}")
    A("s_branch L_addr_done")
    E.label("L_ffn_addr")
    A(f"v_lshrrev_b32 v{vTM}, 3, v{vLANE}"); A(f"v_and_b32 v{vTM2}, 7, v{vLANE}")
    A(f"v_lshlrev_b32 v{vR0}, 9, v{vTM}"); A(f"v_lshl_or_b32 v{vR0}, v{vTM2}, 4, v{vR0}"); A(f"v_add_u32 v{vR0}, {WS_H}, v{vR0}")
    A(f"v_mul_u32_u24 v{vR1}, 224, v{vTM}"); A(f"v_lshl_add_u32 v{vR1}, v{vTM2}, 2, v{vR1}"); A(f"v_add_u32 v{vR1}, {L_LN}, v{vR1}")
    ln_read_addr(vR2, L_LN)
    A(f"s_lshl_b32 {sT0}, {sW}, 5"); A(f"s_add_u32 {sT0}, {sT0}, {L_ACT}")
    A(f"v_lshlrev_b32 v{vR3}, 7, v{vG4}"); A(f"v_lshl_add_u32 v{vR3}, v{vN}, 1, v{vR3}"); A(f"v_add_u32 v{vR3}, {sT0}, v{vR3}")
    A(f"v_and_b32 v{vR4}, 1, v{vLANE}"); A(f"v_lshlrev_b32 v{vR4}, 7, v{vR4}"); A(f"v_lshl_add_u32 v{vR4}, v{vG4}, 3, v{vR4}"); A(f"v_add_u32 v{vR4}, {L_ACT}, v{vR4}")
    A(f"s_lshl_b32 {sT0}, {sW}, 8"); A(f"s_add_u32 {sT0}, {sT0}, {sIDX}"); A(f"s_lshl_b32 {sT0}, {sT0}, 7"); A(f"s_add_u32 {sT0}, {sT0}, {WS_D}")
    msg_lane_addr(vR5, 12); A(f"v_add_u32 v{vR5}, {sT0}, v{vR5}")
    E.label("L_addr_done")
    if wo_end:
        wide_addr(vX)
        for h in range(2): read_wide_tile(vX, vWO, h)
    A(f"s_cmp_lg_u32 {sW}, 0"); A("s_cbranch_scc1 L_a_join")
    poll([f"global_load_dwordx4 {Q4(vI+4*i)}, v{vAI}, {pWS} offset:{i*256} {ldf}" for i in range(4)], [[vI+4*i+3] for i in range(4)])
    stamp(5)
    A(f"v_max3_f32 v{vMX}, v{vI+2}, v{vI+6}, v{vI+10}"); A(f"v_max_f32 v{vMX}, v{vMX}, v{vI+14}")
    xrow("v_max_f32", [vMX], [vTM])
    for i in range(4): A(f"v_sub_f32 v{vI+4*i+2}, v{vI+4*i+2}, v{vMX}")
    for i in range(4): A(f"v_exp_f32 v{vI+4*i+2}, v{vI+4*i+2}")
    A(f"v_mul_f32 v{sa}, v{vI}, v{vI+2}"); A(f"v_mul_f32 v{sb}, v{vI+1}, v{vI+2}"); A(f"v_add_f32 v{sw}, v{vI+2}, v{vI+6}")
    for i in range(1,4):
        A(f"v_fmac_f32 v{sa}, v{vI+4*i}, v{vI+4*i+2}"); A(f"v_fmac_f32 v{sb}, v{vI+4*i+1}, v{vI+4*i+2}")
        if i > 1: A(f"v_add_f32 v{sw}, v{sw}, v{vI+4*i+2}")
    xrow("v_add_f32", [sw, sa, sb], [vS+3, vS+4, vS+5])
    A(f"v_rcp_f32 v{sw}, v{sw}")
    A(f"v_mul_f32 v{sa}, v{sa}, v{sw}"); A(f"v_mul_f32 v{sb}, v{sb}, v{sw}")
    A(f"v_mov_b32_dpp v{vS+3}, v{sa} quad_perm:[1,0,3,2] row_mask:0xf bank_mask:0xf")
    A(f"v_mov_b32_dpp v{vS+4}, v{sb} quad_perm:[1,0,3,2] row_mask:0xf bank_mask:0xf")
    A(f"v_cvt_pk_bf16_f32 v{sa}, v{sa}, v{vS+3}"); A(f"v_cvt_pk_bf16_f32 v{sb}, v{sb}, v{vS+4}")
    A("s_mov_b64 exec, 0x5555"); A(f"ds_write2_b32 v{vOPW}, v{sa}, v{sb} offset0:0 offset1:8"); A("s_mov_b64 exec, -1")
    A("s_waitcnt lgkmcnt(0)")
    E.label("L_a_join")
    A("s_barrier")
    A(f"ds_read2_b64 {Q4(vA)}, v{vOPR} offset0:0 offset1:4")
    A(f"v_mov_b32 v{vG+1}, {sTAG}")
    A("s_waitcnt lgkmcnt(0)")
    for t in (0,2,4,6,1,3,5):
        A(f"v_mfma_f32_16x16x32_bf16 {Q4(yreg[t])}, {Q4(vA)}, {Q4(vWO+4*t)}, 0")
    SEL4(vG, yreg[0], yreg[2], yreg[4], yreg[6], vMX)
    SEL4(vG+2, yreg[1], yreg[3], yreg[5], vZ, vTM)
    A(f"global_store_dwordx4 v{vBA}, {Q4(vG)}, {pWS} {stf}")
    stamp(6)
    A(f"s_cmp_lt_u32 {sIDX}, 28"); A("s_cbranch_scc1 L_ffn")
    A(f"s_cmp_ge_u32 {sRR}, 64"); A("s_cbranch_scc1 L_done")
    def inbox(addr): return [f"global_load_dwordx4 {Q4(vI+4*i)}, v{addr}, {pWS} offset:{i*1024} {ldf}" for i in range(4)]
    tags2 = [[vI+4*i+1, vI+4*i+3] for i in range(4)]
    def sum_inbox():
        A(f"v_add_f32 v{sa}, v{vI}, v{vI+4}"); A(f"v_add_f32 v{sb}, v{vI+2}, v{vI+6}")
        A(f"v_add_f32 v{vS+2}, v{vI+8}, v{vI+12}"); A(f"v_add_f32 v{vS+3}, v{vI+10}, v{vI+14}")
        A(f"v_add_f32 v{sa}, v{sa}, v{vS+2}"); A(f"v_add_f32 v{sb}, v{sb}, v{vS+3}")
        A(f"v_add_f32_dpp v{sa}, v{sa}, v{sa} row_ror:8 row_mask:0xf bank_mask:0xf")
        A(f"v_add_f32_dpp v{sb}, v{sb}, v{sb} row_ror:8 row_mask:0xf bank_mask:0xf")
        xrow("v_add_f32", [sa, sb], [vS+2, vS+3])
    vXF = vO
    unpack(vXF, vXF+1, vXH); unpack(vXF+2, vXF+3, vXH+1)
    poll(inbox(vR0), tags2)
    stamp(7)
    sum_inbox()
    A("s_mov_b64 exec, 0xff"); A(f"ds_write2_b32 v{vR1}, v{sa}, v{sb} offset0:0 offset1:8"); A("s_mov_b64 exec, -1")
    A("s_waitcnt lgkmcnt(0)"); A("s_barrier")
    A(f"s_cmp_lg_u32 {sW}, 0"); A("s_cbranch_scc1 L_done")
    for i in range(4): A(f"ds_read2_b64 {Q4(vI+4*i)}, v{vR2} offset0:{i*8} offset1:{i*8+4}")
    def add_resid(y, dst):
        A(f"v_cvt_pk_bf16_f32 v{dst}, v{y}, v{y+1}"); A(f"v_cvt_pk_bf16_f32 v{dst+2}, v{y+2}, v{y+3}")
        unpack(y, y+1, dst); unpack(y+2, y+3, dst+2)
        A(f"v_pk_add_f32 {P(y)}, {P(y)}, {P(vXF)}"); A(f"v_pk_add_f32 {P(y+2)}, {P(y+2)}, {P(vXF+2)}")
        A(f"v_cvt_pk_bf16_f32 v{dst}, v{y}, v{y+1}"); A(f"v_cvt_pk_bf16_f32 v{dst+2}, v{y+2}, v{y+3}")
    A("s_waitcnt lgkmcnt(2)")
    A(f"v_pk_add_f32 {P(vI)}, {P(vI)}, {P(vI+4)}"); A(f"v_pk_add_f32 {P(vI+2)}, {P(vI+2)}, {P(vI+6)}")
    A("s_waitcnt lgkmcnt(0)")
    A(f"v_pk_add_f32 {P(vI+8)}, {P(vI+8)}, {P(vI+12)}"); A(f"v_pk_add_f32 {P(vI+10)}, {P(vI+10)}, {P(vI+14)}")
    A(f"v_pk_add_f32 {P(vI)}, {P(vI)}, {P(vI+8)}"); A(f"v_pk_add_f32 {P(vI+2)}, {P(vI+2)}, {P(vI+10)}")
    add_resid(vI, vG)
    A("s_mov_b64 exec, 0x55"); A(f"global_store_dwordx4 v{vR3}, {Q4(vG)}, {pWS} {stf}"); A("s_mov_b64 exec, -1")
    stamp(8)
    unpack(vXF, vXF+1, vG); unpack(vXF+2, vXF+3, vG+2)
    A(f"v_mov_b32 v{vI+12}, 0"); A(f"v_mov_b32 v{vI+13}, {sTAG}"); A(f"v_mov_b32 v{vI+14}, 0"); A(f"v_mov_b32 v{vI+15}, {sTAG}")
    poll(inbox(vR4), tags2, first_mask=[-1,-1,-1,"s[66:67]"])
    stamp(9)
    sum_inbox()
    A(f"v_mov_b32_dpp v{vI}, v{sa} quad_perm:[0,0,2,2] row_mask:0xf bank_mask:0xf"); A(f"v_mov_b32_dpp v{vI+1}, v{sa} quad_perm:[1,1,3,3] row_mask:0xf bank_mask:0xf")
    A(f"v_mov_b32_dpp v{vI+2}, v{sb} quad_perm:[0,0,2,2] row_mask:0xf bank_mask:0xf"); A(f"v_mov_b32_dpp v{vI+3}, v{sb} quad_perm:[1,1,3,3] row_mask:0xf bank_mask:0xf")
    add_resid(vI, vI+4)
    A("s_mov_b64 exec, 0x55"); A(f"global_store_dword v{vR5}, v{vI+4}, {pOUT}")
    A(f"s_cmp_eq_u32 {sGP}, 3"); A("s_cbranch_scc1 L_done")
    A(f"global_store_dword v{vR5}, v{vI+6}, {pOUT} offset:32")
    A(f"s_cmp_lg_u32 {sRR}, 0"); A("s_cbranch_scc1 L_done")
    A(f"s_add_u32 {sT0}, {sE}, 1"); A(f"v_mov_b32 v{vTM2}, {sT0}"); A(f"v_mov_b32 v{vTM3}, {WS_E}")
    A("s_mov_b64 exec, 1"); A(f"global_store_dword v{vTM3}, v{vTM2}, {pWS} {stf}")
    if enc2:
        A("s_mov_b64 exec, -1")
        A(f"v_lshlrev_b32 v{vTM}, 4, v{vLANE}"); A(f"v_add_u32 v{vTM}, {WS_ST}, v{vTM}")
        A(f"global_load_dwordx4 {Q4(vI)}, v{vTM}, {pWS} sc1"); A("s_waitcnt vmcnt(0)")
        for k in range(4): A(f"v_subrev_u32 v{vI+k}, s76, v{vI+k}");
        for k in range(4): A(f"v_add_u32 v{vI+k}, 0x100000, v{vI+k}")
        A(f"v_max3_u32 v{vS}, v{vI}, v{vI+1}, v{vI+2}"); A(f"v_max_u32 v{vS}, v{vS}, v{vI+3}")
        A(f"v_min3_u32 v{vS+1}, v{vI}, v{vI+1}, v{vI+2}"); A(f"v_min_u32 v{vS+1}, v{vS+1}, v{vI+3}")
        A(f"v_lshlrev_b32 v{vS}, 6, v{vS}"); A(f"v_or_b32 v{vS}, v{vS}, v{vLANE}")
        A("s_mov_b32 s80, 0"); A("s_mov_b32 s81, -1")
        for l in range(64):
            A(f"v_readlane_b32 s82, v{vS}, {l}"); A(f"v_readlane_b32 s83, v{vS+1}, {l}"); A("s_max_u32 s80, s80, s82"); A("s_min_u32 s81, s81, s83")
        A("s_and_b32 s82, s80, 63"); A("s_lshr_b32 s82, s82, 2"); A("s_lshr_b32 s80, s80, 6"); A(f"s_sub_u32 {sT0}, s80, s81")
        if enc2 == 2:
            A(f"s_cmp_gt_u32 {sT0}, 400"); A("s_cselect_b32 s83, 1, 0"); A("s_add_u32 s82, s82, 1"); A("s_mul_i32 s82, s82, s83"); A("s_mul_i32 s82, s82, 20000")
        else: A("s_mov_b32 s82, 0")
        A(f"s_lshl_b32 {sT0}, {sT0}, 3"); A(f"s_add_u32 {sT0}, {sT0}, s82"); A(f"s_min_u32 {sT0}, {sT0}, 400000")
        A("s_memrealtime s[90:91]"); A("s_waitcnt lgkmcnt(0)")
        E.label("L_enc2")
        A("s_memrealtime s[94:95]"); A("s_waitcnt lgkmcnt(0)")
        A(f"s_sub_u32 {sT1}, s94, s90"); A(f"s_cmp_lt_u32 {sT1}, {sT0}"); A("s_cbranch_scc1 L_enc2")
    if enc3:
        A("s_memrealtime s[90:91]"); A("s_waitcnt lgkmcnt(0)")
        A(f"s_and_b32 {sT1}, s90, 127"); A(f"s_cmp_lt_u32 {sT1}, {enc3}"); A(f"s_cselect_b32 {sT0}, 20000, 0")
        E.label("L_enc3")
        A("s_memrealtime s[94:95]"); A("s_waitcnt lgkmcnt(0)")
        A(f"s_sub_u32 {sT1}, s94, s90"); A(f"s_cmp_lt_u32 {sT1}, {sT0}"); A("s_cbranch_scc1 L_enc3")
    if enc:
        A("s_memrealtime s[90:91]"); A("s_waitcnt lgkmcnt(0)")
        A(f"s_sub_u32 {sT0}, s{70+2*enc[1]}, s{70+2*enc[0]}"); A(f"s_lshl_b32 {sT0}, {sT0}, 2"); A(f"s_min_u32 {sT0}, {sT0}, 100000")
        E.label("L_enc")
        A("s_memrealtime s[94:95]"); A("s_waitcnt lgkmcnt(0)")
        A(f"s_sub_u32 {sT1}, s94, s90"); A(f"s_cmp_lt_u32 {sT1}, {sT0}"); A("s_cbranch_scc1 L_enc")
    A("s_branch L_done")
    E.label("L_ffn")
    A(f"s_cmp_lg_u32 {sW}, 0"); A("s_cbranch_scc1 L_c_join")
    poll([f"global_load_dwordx4 {Q4(vI+4*u)}, v{vR0}, {pWS} offset:{u*128} {ldf}" for u in range(4)], tags2)
    stamp(7)
    layernorm([vI+2*u for u in range(7)], vO, vR1, 32)
    A("s_waitcnt lgkmcnt(0)")
    E.label("L_c_join")
    A("s_barrier")
    def aread(i): A(f"ds_read_b128 {Q4(vF + 4*(i % NF))}, v{vR2} offset:{i*64}")
    for i in range(NF): aread(i)
    for i in range(14):
        A(f"s_waitcnt lgkmcnt({min(NF-1, 13-i)})")
        A(f"v_mfma_f32_16x16x32_bf16 {Q4(vS)}, {Q4(vF + 4*(i % NF))}, {Q4(vW1+4*i)}, {'0' if i==0 else Q4(vS)}")
        if i + NF < 14: aread(i+NF)
    for b in range(2): A(f"v_mov_b32 v{vO+4*b+1}, {sTAG}"); A(f"v_mov_b32 v{vO+4*b+3}, {sTAG}")
    A(f"v_add_u32 v{vR0}, {32*4096}, v{vR5}")
    A(f"v_cndmask_b32 v{vTM}, v{vS}, v{vS+1}, {sM1}")
    round_bf(vTM, vTM)
    A(f"v_mul_f32 v{vTM2}, {(LOG2E | 0x80000000):#x}, v{vTM}")
    A(f"v_exp_f32 v{vTM2}, v{vTM2}")
    A(f"v_add_f32 v{vTM2}, 1.0, v{vTM2}")
    A(f"v_rcp_f32 v{vTM2}, v{vTM2}")
    A(f"v_mul_f32 v{vTM}, v{vTM}, v{vTM2}")
    A(f"v_cvt_pk_bf16_f32 v{vTM}, v{vTM}, v{vTM}")
    A("s_mov_b32 exec_hi, 0"); A(f"ds_write_b16 v{vR3}, v{vTM}"); A("s_mov_b32 exec_hi, -1")
    A("s_waitcnt lgkmcnt(0)"); A("s_barrier")
    for ks in range(2): A(f"ds_read2_b64 {Q4(vF+4*ks)}, v{vR4} offset0:{ks*8} offset1:{ks*8+4}")
    zreg = [vW1+4*t for t in range(7)]
    for ks in range(2):
        A(f"s_waitcnt lgkmcnt({1-ks})")
        for t in (0,2,4,6,1,3,5):
            A(f"v_mfma_f32_16x16x32_bf16 {Q4(zreg[t])}, {Q4(vF+4*ks)}, {Q4(vW2+28*ks+4*t)}, {'0' if ks==0 else Q4(zreg[t])}")
    for b in range(2): SEL4(vO+4*b, zreg[0]+b, zreg[2]+b, zreg[4]+b, zreg[6]+b, vMX)
    for b in range(2):
        SEL4(vO+4*b+2, zreg[1]+b, zreg[3]+b, zreg[5]+b, vZ, vMX)
        A(f"global_store_dwordx4 v{vR5 if b == 0 else vR0}, {Q4(vO+4*b)}, {pWS} {stf}")
    stamp(8)
    E.label("L_done")
    if diag:
        stamp(10)
        A("s_mov_b64 exec, -1")
        A(f"s_lshl_b32 {sT0}, {sWG}, 2"); A(f"s_add_u32 {sT0}, {sT0}, {sW}"); A(f"s_lshl_b32 {sT0}, {sT0}, 7"); A(f"s_add_u32 {sT0}, {sT0}, {WS_ST}")
        A("s_getreg_b32 s100, hwreg(HW_REG_XCC_ID)")
        A("s_waitcnt lgkmcnt(0)")
        A(f"v_mov_b32 v{vTM}, {sT0}")
        A("s_mov_b64 exec, 1")
        for k in range(11): A(f"v_mov_b32 v{vW1+k}, s{70+2*k}")
        A(f"v_mov_b32 v{vW1+11}, s100"); A(f"v_mov_b32 v{vW1+12}, {sN}"); A(f"v_mov_b32 v{vW1+13}, {sROLE}"); A(f"v_mov_b32 v{vW1+14}, {sSPIN}"); A(f"v_mov_b32 v{vW1+15}, {sIDX}")
        for k in range(4): A(f"v_mov_b32 v{vW1+16+k}, s{92+2*k}")
        for q in range(5): A(f"global_store_dwordx4 v{vTM}, {Q4(vW1+4*q)}, {pWS} offset:{q*16}")
    E.label("L_end")
    A("s_endpgm")

    body = E.finish()
    head = open("sequential_preLN__gqa_block_cached__dense_activation_silu__decode.s.ref").read().split("; Override launch")[0]
    src = head + f"""; One persistent launch: 256 workgroups (one per CU); wave 0 streams K/V into an LDS ring, waves 1-4 compute.
; @launch grid=(256,1,1) block=(320,1,1) lds={LDS}
.amdgcn_target "amdgcn-amd-amdhsa--gfx950"
.text
.globl {NAME}
.p2align 8
.type {NAME},@function
{NAME}:
{body}.section .rodata,"a"
.p2align 6
.amdhsa_kernel {NAME}
  .amdhsa_next_free_vgpr 256
  .amdhsa_next_free_sgpr 102
  .amdhsa_accum_offset 256
  .amdhsa_group_segment_fixed_size 0
  .amdhsa_kernarg_size 88
  .amdhsa_user_sgpr_count 2
  .amdhsa_user_sgpr_kernarg_segment_ptr 1
  .amdhsa_system_sgpr_workgroup_id_x 1
.end_amdhsa_kernel
"""
    return src, E.npad

if __name__ == "__main__":
    out = sys.argv[1]
    kw = json.loads(sys.argv[2]) if len(sys.argv) > 2 else {}
    src, npad = gen(**kw)
    open(out, "w").write(src)
    print("wrote", out, "lines", src.count("\n"), "pad states", npad)
```

```python
import sys, json, struct
from emit import Emitter

NAME = "sequential_preLN__gqa_block_cached__dense_activation_silu__decode_kernel"
def f2u(x): return struct.unpack("<I", struct.pack("<f", x))[0]

def gen(W=20, NS=48, diag=False, pol="nt", hilo=False, spin=1<<22, enc=None, warm=1, pfcode=1, wo_end=0, WD=None, NF=5, M=128, enc2=0, enc3=0, ticket=1, force_ov=0):
    E = Emitter(); A = E
    if WD is None: WD = W
    NSLOT = 9; SLOT = 16384; RING = NSLOT*SLOT
    L_LANDED = RING; L_CONS = RING+16; L_RED = RING+256; L_OP = RING+512; L_ACT = RING+768; L_QW = RING+1024; L_LN = RING+5120
    LDS = 163840
    WS_E = 0; WS_CNT = 0x1000; WS_H = 0x3000; WS_Q = 0x8000; WS_D = 0x40000; WS_A = 0x100000; WS_B = 0x200000; WS_ST = 0x400000
    C_SCALE = f2u(1.4426950408889634/16.0); LOG2E = f2u(1.4426950408889634); INV448 = f2u(1.0/448.0); EPS = f2u(1e-5)
    stf = ldf = "sc1"
    sWG="s2"; sWAVE="s3"
    pX="s[4:5]"; pK=(6,7); pV=(8,9); pWQ=(10,11); pWO=(12,13); pW1=(16,17); pW2=(18,19); pOUT="s[20:21]"; pWS="s[24:25]"
    sG="s26"; sJ="s27"; sROLE="s28"; sB="s29"; sHKV="s30"; sN="s31"; sSLOT="s32"; sKNOWN="s33"; sT0="s34"; sT1="s35"; sT2="s36"
    sCI="s37"; sSPIN="s38"; sIDX="s39"
    uid=[0]
    def lab(p): uid[0]+=1; return f"L_{p}_{uid[0]}"
    def stamp(k):
        if not diag and not (enc and k in (0, enc[0], enc[1])): return
        A(f"s_memrealtime s[{70+2*k}:{71+2*k}]")
    def slot_advance():
        A(f"s_add_u32 {sN}, {sN}, 1")
        A(f"s_add_u32 {sSLOT}, {sSLOT}, {SLOT}")
        A(f"s_cmp_eq_u32 {sSLOT}, {RING}")
        A(f"s_cselect_b32 {sSLOT}, 0, {sSLOT}")

    A(f"s_cmp_ge_u32 {sWG}, 256")
    A("s_cbranch_scc1 L_end")
    stamp(0)
    A("s_load_dwordx16 s[4:19], s[0:1], 0")
    A("s_load_dwordx4 s[20:23], s[0:1], 64")
    A("s_load_dwordx2 s[24:25], s[0:1], 80")
    A("v_lshrrev_b32 v1, 6, v0")
    A("v_and_b32 v0, 63, v0")
    A(f"v_readfirstlane_b32 {sWAVE}, v1")
    A(f"s_lshr_b32 {sG}, {sWG}, 4")
    A(f"s_and_b32 {sJ}, {sWG}, 15")
    A(f"s_sub_u32 {sROLE}, {sJ}, {sG}")
    A(f"s_and_b32 {sROLE}, {sROLE}, 15")
    A(f"s_lshr_b32 {sB}, {sG}, 3")
    A(f"s_and_b32 {sHKV}, {sG}, 7")
    A(f"s_mov_b32 {sN}, 0"); A(f"s_mov_b32 {sSLOT}, 0"); A(f"s_mov_b32 {sKNOWN}, 0"); A(f"s_mov_b32 {sCI}, 0")
    A(f"s_mov_b32 {sSPIN}, {spin}")
    A(f"s_sub_u32 {sT0}, {sROLE}, 8")
    A(f"s_lshl_b32 {sIDX}, {sG}, 1")
    A(f"s_add_u32 {sIDX}, {sIDX}, {sT0}")
    A(f"s_cmp_lt_u32 {sT0}, 2")
    A(f"s_cselect_b32 {sIDX}, {sIDX}, 99")
    A(f"v_lshlrev_b32 v1, 2, v0"); A(f"v_add_u32 v1, {L_LANDED}, v1"); A("v_mov_b32 v2, 0")
    A("s_mov_b64 exec, 14"); A("v_mov_b32 v2, 0x7fffffff")
    A("s_mov_b64 exec, 0xff"); A("ds_write_b32 v1, v2"); A("s_mov_b64 exec, -1")
    A(f"s_cmp_lg_u32 {sWAVE}, 0")
    A("s_cbranch_scc1 L_consumer")

    vK=[4+i for i in range(8)]; vV=[12+i for i in range(4)]; vLIN=16; vTQ=[17,18]; vT1=[19,20]; vFL=21; vTMP=22; vC=24
    srdK="s[40:43]"; srdV="s[44:47]"; srdW="s[48:51]"; srdZ="s[52:55]"
    sCUR="s56"; sGB="s57"; sOFF="s58"; sCLM="s59"; sCOFF="s60"; sBASE="s61"; sFLOOR="s62"; sJ2="s68"
    A("s_setprio 3")
    A("v_lshrrev_b32 v1, 5, v0"); A("v_and_b32 v2, 31, v0")
    A("v_xor_b32 v3, v2, v1"); A("v_lshlrev_b32 v3, 4, v3"); A("v_lshl_or_b32 v3, v1, 9, v3")
    for i in range(8): A(f"v_xor_b32 v{vK[i]}, {i*32}, v3")
    A("v_lshlrev_b32 v3, 1, v1"); A("v_xor_b32 v3, v2, v3"); A("v_lshlrev_b32 v3, 4, v3"); A("v_lshl_or_b32 v3, v1, 9, v3")
    for i in range(4): A(f"v_xor_b32 v{vV[i]}, {i*64}, v3")
    A(f"v_lshlrev_b32 v{vLIN}, 4, v0")
    A("v_lshrrev_b32 v1, 3, v0"); A("v_and_b32 v2, 7, v0"); A("v_lshrrev_b32 v3, 3, v0"); A("v_and_b32 v3, 2, v3"); A("v_xor_b32 v2, v2, v3")
    A("v_lshlrev_b32 v2, 4, v2")
    A(f"v_lshl_or_b32 v{vTQ[0]}, v1, 13, v2"); A(f"v_xor_b32 v{vTQ[1]}, 64, v{vTQ[0]}")
    A(f"v_mul_u32_u24 v3, 3584, v1")
    A(f"v_add_u32 v{vT1[0]}, v3, v2"); A("v_xor_b32 v2, 64, v2"); A(f"v_add_u32 v{vT1[1]}, v3, v2")
    A(f"v_mov_b32 v{vFL}, {L_LANDED}")
    A(f"s_mov_b32 {sFLOOR}, 0")
    sXC="s66"; sTK="s67"
    A(f"s_getreg_b32 {sXC}, hwreg(HW_REG_XCC_ID)"); A(f"s_and_b32 {sXC}, {sXC}, {7 & ~force_ov}")
    A(f"s_lshl_b32 {sT0}, {sXC}, 5"); A(f"s_mov_b32 {sTK}, 1")
    A("s_waitcnt lgkmcnt(0)")
    if ticket: A(f"s_atomic_add {sTK}, s[22:23], {sT0} glc")
    A(f"s_mov_b32 s40, s{pK[0]}"); A(f"s_mov_b32 s41, s{pK[1]}"); A("s_mov_b32 s42, 0x10000000"); A("s_mov_b32 s43, 0x20000")
    A(f"s_mov_b32 s44, s{pV[0]}"); A(f"s_mov_b32 s45, s{pV[1]}"); A("s_mov_b32 s46, 0x10000000"); A("s_mov_b32 s47, 0x20000")
    A(f"s_mov_b32 s52, s{pK[0]}"); A(f"s_mov_b32 s53, s{pK[1]}"); A("s_mov_b32 s54, 0"); A("s_mov_b32 s55, 0x20000")
    A("s_mov_b32 s51, 0x20000")
    A("s_barrier")
    def pub_reg():
        A("s_mov_b64 exec, 1"); A(f"ds_write_b32 v{vFL}, v{vTMP}"); A("s_mov_b64 exec, -1")
    def publish(back):
        A(f"s_sub_u32 {sT0}, {sN}, {back}"); A(f"s_max_i32 {sT0}, {sT0}, {sFLOOR}")
        A(f"v_mov_b32 v{vTMP}, {sT0}"); pub_reg()
    def throttle(i, w):
        assert w in (16,20,24,28,32)
        if i % 4 == 3:
            A(f"s_waitcnt vmcnt({w})")
            if w == 16:
                if i == 15: publish(0)
            elif i//4 == (w-16)//4 - 1: publish(1)
    def tile_rows(specs, w):
        for i,(srd,vo,so) in enumerate(specs):
            if i % 4 == 0:
                A(f"s_add_u32 m0, {sSLOT}, {i*1024}" if i else f"s_mov_b32 m0, {sSLOT}")
                A(f"s_add_u32 {sOFF}, {sBASE}, {so}")
            A(f"buffer_load_dwordx4 v{vo}, {srd}, {sOFF} offen offset:{(i%4)*1024} {pol} lds")
            throttle(i, w)
        slot_advance()
    def tile_tall(voffs, rowstride, t, nvalid):
        for i in range(16):
            A(f"s_add_u32 m0, {sSLOT}, {i*1024}" if i else f"s_mov_b32 m0, {sSLOT}")
            A(f"s_add_u32 {sOFF}, {sBASE}, {(t*128+i*8)*rowstride}")
            A(f"buffer_load_dwordx4 v{voffs[i&1]}, {srdW if i < nvalid else srdZ}, {sOFF} offen {pol} lds")
            throttle(i, W)
        slot_advance()
    def tile_wide(t, w=W): tile_rows([(srdW if i < 14 else srdZ, vLIN, t*14336+i*1024) for i in range(16)], w)
    def freecheck(k):
        ok = lab("free"); lp = lab("freepoll")
        A(f"s_add_u32 {sT1}, {sN}, {k}")
        A(f"s_add_u32 {sT0}, {sKNOWN}, {NSLOT}")
        A(f"s_cmp_ge_u32 {sT0}, {sT1}"); A(f"s_cbranch_scc1 {ok}")
        E.label(lp)
        A(f"ds_read_b128 v[{vC}:{vC+3}], v{vFL} offset:16")
        A(f"s_sub_u32 {sSPIN}, {sSPIN}, 1"); A("s_cbranch_scc1 L_end")
        A("s_waitcnt lgkmcnt(0)")
        A(f"v_min3_u32 v{vC}, v{vC}, v{vC+1}, v{vC+2}"); A(f"v_min_u32 v{vC}, v{vC}, v{vC+3}")
        A(f"v_readfirstlane_b32 {sKNOWN}, v{vC}")
        A(f"s_add_u32 {sT0}, {sKNOWN}, {NSLOT}")
        A(f"s_cmp_ge_u32 {sT0}, {sT1}"); A(f"s_cbranch_scc1 {ok}")
        A("s_sleep 1")
        A(f"s_branch {lp}")
        E.label(ok)
    def setW(p, nbytes):
        A(f"s_mov_b32 s48, s{p[0]}"); A(f"s_mov_b32 s49, s{p[1]}"); A(f"s_mov_b32 s50, {nbytes}")
    A(f"s_cmp_ge_u32 {sROLE}, 4"); A("s_cbranch_scc1 L_ld_noq")
    setW(pWQ, 448*4096*2)
    A(f"s_lshl_b32 {sBASE}, {sHKV}, 10"); A(f"s_lshl_b32 {sT0}, {sB}, 2"); A(f"s_add_u32 {sT0}, {sT0}, {sROLE}"); A(f"s_lshl_b32 {sT0}, {sT0}, 7")
    A(f"s_add_u32 {sBASE}, {sBASE}, {sT0}")
    for i in range(56):
        A(f"s_mov_b32 m0, {i*1024}")
        A(f"s_add_u32 {sOFF}, {sBASE}, {i*8*8192}")
        A(f"buffer_load_dwordx4 v{vTQ[i&1]}, {srdW}, {sOFF} offen {pol} lds")
    for k,c in enumerate((40,24,8,0)):
        A(f"s_waitcnt vmcnt({c})"); A(f"v_mov_b32 v{vTMP}, {k+1}"); pub_reg()
    A(f"s_mov_b32 {sN}, 4"); A(f"s_mov_b32 {sSLOT}, {4*SLOT}"); A(f"s_mov_b32 {sFLOOR}, 4")
    E.label("L_ld_noq")
    def wo_base():
        setW(pWO, 4096*448*2)
        A(f"s_lshl_b32 {sT0}, {sHKV}, 4"); A(f"s_add_u32 {sT0}, {sT0}, {sJ}"); A(f"s_mul_i32 {sBASE}, {sT0}, {32*896}")
    if not wo_end:
        wo_base()
        for t in range(2): tile_wide(t)
    A(f"s_cmp_ge_u32 {sIDX}, 28"); A(f"s_cbranch_scc1 L_ld_noffn")
    setW(pW1, 448*1792*2)
    A(f"s_lshl_b32 {sBASE}, {sIDX}, 7")
    for t in range(4):
        if t % 2 == 0: freecheck(2)
        tile_tall(vT1, 3584, t, 16 if t < 3 else 8)
    setW(pW2, 1792*448*2)
    A(f"s_mul_i32 {sBASE}, {sIDX}, {64*896}")
    for t in range(4):
        if t % 2 == 0: freecheck(2)
        tile_wide(t)
    E.label("L_ld_noffn")
    if ticket:
        A("s_waitcnt lgkmcnt(0)")
        A(f"s_cmp_lt_u32 {sTK}, 32"); A("s_cbranch_scc1 L_id_ok")
        A(f"s_mov_b32 {sT2}, 1"); A(f"s_atomic_add {sT2}, s[22:23], 4 glc")
        E.label("L_id_spin")
        for x in range(8): A(f"s_mov_b32 s{72+x}, 0")
        for x in range(8): A(f"s_atomic_add s{72+x}, s[22:23], {32*x} glc")
        A(f"s_sub_u32 {sSPIN}, {sSPIN}, 1"); A("s_cbranch_scc1 L_end")
        A("s_waitcnt lgkmcnt(0)")
        A(f"s_add_u32 {sT0}, s72, s73")
        for x in range(2,8): A(f"s_add_u32 {sT0}, {sT0}, s{72+x}")
        A(f"s_cmp_lg_u32 {sT0}, 256"); A("s_cbranch_scc1 L_id_spin")
        for x in range(8):
            A(f"s_mov_b32 {sXC}, {x}"); A(f"s_add_u32 {sTK}, s{72+x}, {sT2}")
            A(f"s_cmp_lt_u32 {sTK}, 32"); A("s_cbranch_scc1 L_id_ok")
            A(f"s_min_u32 {sT0}, s{72+x}, 32"); A(f"s_sub_u32 {sT0}, 32, {sT0}"); A(f"s_sub_u32 {sT2}, {sT2}, {sT0}")
        A("s_branch L_end")
        E.label("L_id_ok")
        A(f"s_lshr_b32 {sG}, {sTK}, 1"); A(f"s_and_b32 {sJ2}, {sTK}, 1"); A(f"s_lshl_b32 {sJ2}, {sJ2}, 3"); A(f"s_add_u32 {sJ2}, {sJ2}, {sXC}")
    else:
        A(f"s_mov_b32 {sJ2}, {sJ}")
    A(f"s_lshl_b32 {sT0}, {sG}, 4"); A(f"s_add_u32 {sT0}, {sT0}, {sJ2}")
    A(f"v_mov_b32 v{vTMP}, {sT0}")
    A("s_mov_b64 exec, 1"); A(f"ds_write_b32 v{vFL}, v{vTMP} offset:12"); A("s_mov_b64 exec, -1")
    A(f"s_lshl_b32 {sGB}, {sG}, 24")
    A(f"s_mul_i32 {sCUR}, {sJ2}, {2*NS}")
    A(f"s_lshl_b32 {sCOFF}, {sG}, 8"); A(f"s_add_u32 {sCOFF}, {sCOFF}, {WS_CNT}")
    vCA=28; vONE=29; vCL=[30,31]
    def vclaim_issue(p):
        A("s_mov_b64 exec, 1"); A(f"global_atomic_add v{vCL[p]}, v{vCA}, v{vONE}, {pWS} sc0"); A("s_mov_b64 exec, -1")
    A(f"v_mov_b32 v{vCA}, {sCOFF}"); A(f"v_mov_b32 v{vONE}, 1")
    POOL = 2048-32*NS; TH = max(POOL-M, 0); sLAST="s63"; vTWO=23
    assert WD <= 32 and W <= 32
    A(f"v_mov_b32 v{vTWO}, 2"); A(f"s_mov_b32 {sLAST}, {1 if TH == 0 else 0}")
    def pub_word(off, sreg):
        A(f"v_mov_b32 v{vTMP}, {sreg}")
        A("s_mov_b64 exec, 1"); A(f"ds_write_b32 v{vFL}, v{vTMP} offset:{off}"); A("s_mov_b64 exec, -1")
    E.label("L_ld_loop")
    if diag:
        for k,c in enumerate((0,2,3,4,6,8,16,32,NS-1)):
            sk=lab("ls"); A(f"s_cmp_lg_u32 {sCI}, {c}"); A(f"s_cbranch_scc1 {sk}"); A(f"s_memrealtime s[{72+2*k}:{73+2*k}]"); A("s_waitcnt lgkmcnt(0)"); E.label(sk)
    freecheck(2)
    A(f"s_add_u32 {sCI}, {sCI}, 1")
    A(f"s_cmp_lt_u32 {sCI}, {NS}"); A("s_cbranch_scc1 L_ld_noclaim")
    A(f"s_cmp_eq_u32 {sLAST}, 0"); A("s_cbranch_scc0 L_ld_last")
    A("s_mov_b64 exec, 1"); A(f"global_atomic_add v{vCL[0]}, v{vCA}, v{vTWO}, {pWS} sc0"); A("s_mov_b64 exec, -1")
    A("s_branch L_ld_noclaim")
    E.label("L_ld_last")
    A(f"s_add_u32 {sT0}, {sN}, 2"); pub_word(8, sT0)
    vclaim_issue(0)
    E.label("L_ld_noclaim")
    A(f"s_lshl_b32 {sBASE}, {sCUR}, 13"); A(f"s_add_u32 {sBASE}, {sBASE}, {sGB}")
    tile_rows([(srdK, vK[i%8], i*1024) for i in range(16)], W)
    A(f"s_cmp_lt_u32 {sCI}, {NS}"); A("s_cbranch_scc1 L_ld_noclaim2")
    A(f"s_cmp_eq_u32 {sLAST}, 0"); A("s_cbranch_scc1 L_ld_noclaim2")
    vclaim_issue(1)
    E.label("L_ld_noclaim2")
    tile_rows([(srdV, vV[i%4], i*1024) for i in range(16)], W)
    A(f"s_add_u32 {sCUR}, {sCUR}, 2")
    A(f"s_cmp_lt_u32 {sCI}, {NS}"); A("s_cbranch_scc1 L_ld_loop")
    A(f"s_cmp_eq_u32 {sLAST}, 0"); A("s_cbranch_scc0 L_ld_mini")
    A(f"v_readfirstlane_b32 {sCLM}, v{vCL[0]}")
    A(f"s_add_u32 {sCUR}, {sCLM}, {32*NS}")
    A(f"s_cmp_ge_u32 {sCLM}, {TH}"); A(f"s_cselect_b32 {sLAST}, 1, 0")
    A(f"s_cmp_lt_u32 {sCLM}, {POOL-1}"); A("s_cbranch_scc1 L_ld_loop")
    pub_word(8, sN)
    A(f"v_mov_b32 v{vCL[1]}, {POOL}")
    E.label("L_ld_mini")
    if pfcode:
        A("s_getpc_b64 s[64:65]")
        E.label("L_pc")
        A("s_add_u32 s64, s64, L_fin-L_pc"); A("s_addc_u32 s65, s65, 0")
        A(f"v_lshlrev_b32 v47, 6, v0"); A("v_min_u32 v47, L_end-L_fin, v47")
        A("global_load_dword v48, v47, s[64:65]")
    E.label("L_ld_dyn")
    for p in range(2):
        A(f"v_readfirstlane_b32 {sCLM}, v{vCL[p]}")
        A(f"s_cmp_ge_u32 {sCLM}, {POOL}"); A("s_cbranch_scc1 L_ld_dyn_done")
        A(f"s_add_u32 {sCUR}, {sCLM}, {32*NS}")
        freecheck(1)
        vclaim_issue(p)
        A(f"s_lshl_b32 {sBASE}, {sCUR}, 13"); A(f"s_add_u32 {sBASE}, {sBASE}, {sGB}")
        tile_rows([(srdK, vK[i], i*1024) for i in range(8)] + [(srdV, vV[i%4], i*1024) for i in range(8)], WD)
    A("s_branch L_ld_dyn")
    E.label("L_ld_dyn_done")
    A(f"v_mov_b32 v{vTMP}, {sN}")
    A("s_mov_b64 exec, 1"); A(f"ds_write_b32 v{vFL}, v{vTMP} offset:4"); A("s_mov_b64 exec, -1")
    if wo_end:
        wo_base(); freecheck(2)
        for t in range(2):
            for i in range(14):
                if i % 4 == 0:
                    A(f"s_add_u32 m0, {sSLOT}, {i*1024}" if i else f"s_mov_b32 m0, {sSLOT}")
                    A(f"s_add_u32 {sOFF}, {sBASE}, {t*14336+i*1024}")
                A(f"buffer_load_dwordx4 v{vLIN}, {srdW}, {sOFF} offen offset:{(i%4)*1024} {pol} lds")
            slot_advance()
        for c,back in ((44,3),(28,2),(14,1),(0,0)):
            A(f"s_waitcnt vmcnt({c})"); publish(back)
    else:
        for c,back in ((16,1),(0,0)):
            A(f"s_waitcnt vmcnt({c})"); publish(back)
    if diag:
        A("s_mov_b64 exec, 1")
        A("s_memrealtime s[90:91]")
        A(f"s_lshl_b32 {sT0}, {sWG}, 6"); A(f"s_add_u32 {sT0}, {sT0}, {WS_ST+0x40000}"); A(f"v_mov_b32 v46, {sT0}")
        A("s_waitcnt lgkmcnt(0)")
        for k in range(11): A(f"v_mov_b32 v{32+k}, s{70+2*k}")
        A(f"v_mov_b32 v43, {sSPIN}")
        for q in range(3): A(f"global_store_dwordx4 v46, v[{32+4*q}:{35+4*q}], {pWS} offset:{q*16}")
    A("s_waitcnt lgkmcnt(0)")
    A("s_endpgm")

    E.label("L_consumer")
    sW="s40"; sTAG="s41"; sM1="s[42:43]"; sM2="s[44:45]"; sC="s46"; sE="s47"; sRR="s48"; sTOT="s49"
    sCK=["s[50:51]","s[52:53]","s[54:55]","s[56:57]"]; sCOL="s58"; sGP="s59"; sSWI="s60"; sID="s61"
    vLANE=0; vN=1; vG4=2; vFLG=3; vCONS=4; vTM=5; vTM2=6; vTM3=7
    vM=8; vMC=9; vL=10; vMX=11
    vKB=[12,13,14,15]; vVB=[16,17,18,19]; vAD=[20,21,22,23]
    vS=24; vP=32; vO=36; vQ=52; vF=84
    vAA=104; vAI=105; vBA=106; vPOLL=None
    assert NF <= 5
    vWO=108; vW1=136; vW2=192; vX=248; vXH=254
    def P(r): return f"v[{r}:{r+1}]"
    def Q4(r): return f"v[{r}:{r+3}]"
    def SEL4(dst, a, b, c, d, t):
        A(f"v_cndmask_b32 v{dst}, v{a}, v{b}, {sM1}"); A(f"v_cndmask_b32 v{t}, v{c}, v{d}, {sM1}"); A(f"v_cndmask_b32 v{dst}, v{dst}, v{t}, {sM2}")
    def xrow(op, regs, tmps):
        for sw in ("v_permlane16_swap_b32","v_permlane32_swap_b32"):
            for r,t in zip(regs,tmps): A(f"v_mov_b32 v{t}, v{r}")
            for r,t in zip(regs,tmps): A(f"{sw} v{r}, v{t}")
            for r,t in zip(regs,tmps): A(f"{op} v{r}, v{r}, v{t}")
    def round_bf(dst, src):
        A(f"v_cvt_pk_bf16_f32 v{dst}, v{src}, v{src}"); A(f"v_and_b32 v{dst}, 0xffff0000, v{dst}")
    def unpack(lo, hi, src):
        A(f"v_lshlrev_b32 v{lo}, 16, v{src}"); A(f"v_and_b32 v{hi}, 0xffff0000, v{src}")
    def pub_cons():
        slot_advance()
        A(f"v_mov_b32 v{vTM}, {sN}")
        A("s_mov_b64 exec, 1"); A(f"ds_write_b32 v{vCONS}, v{vTM}"); A("s_mov_b64 exec, -1")
    def wait_tile(fin=None, lim=None):
        ok = lab("have"); lp = lab("poll")
        if fin: A(f"s_cmp_eq_u32 {lim}, {sN}"); A(f"s_cbranch_scc1 {fin}")
        A(f"s_cmp_gt_u32 {sKNOWN}, {sN}"); A(f"s_cbranch_scc1 {ok}")
        E.label(lp)
        A(f"ds_read_b128 {Q4(vAD[0])}, v{vFLG}")
        A(f"s_sub_u32 {sSPIN}, {sSPIN}, 1"); A("s_cbranch_scc1 L_end")
        A("s_waitcnt lgkmcnt(0)")
        A(f"v_readfirstlane_b32 {sKNOWN}, v{vAD[0]}"); A(f"v_readfirstlane_b32 {sTOT}, v{vAD[1]}"); A(f"v_readfirstlane_b32 {sSWI}, v{vAD[2]}")
        if fin: A(f"s_cmp_eq_u32 {lim}, {sN}"); A(f"s_cbranch_scc1 {fin}")
        A(f"s_cmp_gt_u32 {sKNOWN}, {sN}"); A(f"s_cbranch_scc1 {ok}")
        A("s_sleep 1")
        A(f"s_branch {lp}")
        E.label(ok)
    def poll(loads, tags, first_mask=None):
        lp = lab("gpoll"); n = len(loads)
        for i in range(n): A(f"s_mov_b64 {sCK[i]}, {first_mask[i] if first_mask else -1}")
        E.label(lp)
        for i,l in enumerate(loads):
            sk = lab("sk")
            A(f"s_mov_b64 exec, {sCK[i]}"); A(f"s_cbranch_execz {sk}"); A(l); E.label(sk)
        A("s_mov_b64 exec, -1")
        A(f"s_sub_u32 {sSPIN}, {sSPIN}, 1"); A("s_cbranch_scc1 L_end")
        A("s_waitcnt vmcnt(0)")
        for i in range(n):
            A(f"v_cmp_ne_u32 {sCK[i]}, {sTAG}, v{tags[i][0]}")
            for t in tags[i][1:]:
                A(f"v_cmp_ne_u32 vcc, {sTAG}, v{t}"); A(f"s_or_b64 {sCK[i]}, {sCK[i]}, vcc")
        A(f"s_or_b64 vcc, {sCK[0]}, {sCK[min(1,n-1)]}")
        for i in range(2, n): A(f"s_or_b64 vcc, vcc, {sCK[i]}")
        A(f"s_cbranch_scc1 {lp}")
    def layernorm(xr, f, lnbase, stride):
        s1=vTM; t=vTM2; mu=vX; a=vX+2; b=vX+4
        for u in range(7): unpack(f+2*u, f+2*u+1, xr[u])
        A(f"v_pk_add_f32 {P(a)}, {P(f)}, {P(f+2)}"); A(f"v_pk_add_f32 {P(b)}, {P(f+4)}, {P(f+6)}")
        A(f"v_pk_add_f32 {P(a)}, {P(a)}, {P(f+8)}"); A(f"v_pk_add_f32 {P(b)}, {P(b)}, {P(f+10)}")
        A(f"v_pk_add_f32 {P(a)}, {P(a)}, {P(f+12)}"); A(f"v_pk_add_f32 {P(a)}, {P(a)}, {P(b)}")
        A(f"v_add_f32 v{s1}, v{a}, v{a+1}")
        def red32(r):
            for k in (8,4,2,1): A(f"v_add_f32_dpp v{r}, v{r}, v{r} row_ror:{k} row_mask:0xf bank_mask:0xf")
            A(f"v_mov_b32 v{t}, v{r}"); A(f"v_permlane16_swap_b32 v{r}, v{t}"); A(f"v_add_f32 v{r}, v{r}, v{t}")
        red32(s1)
        A(f"v_mul_f32 v{mu}, {INV448:#x}, v{s1}")
        NEG = "op_sel_hi:[1,0] neg_lo:[0,1] neg_hi:[0,1]"
        A(f"v_pk_add_f32 {P(b)}, {P(f)}, {P(mu)} {NEG}")
        A(f"v_pk_mul_f32 {P(a)}, {P(b)}, {P(b)}")
        for u in range(1,7):
            A(f"v_pk_add_f32 {P(b)}, {P(f+2*u)}, {P(mu)} {NEG}")
            A(f"v_pk_fma_f32 {P(a)}, {P(b)}, {P(b)}, {P(a)}")
        A(f"v_add_f32 v{s1}, v{a}, v{a+1}")
        round_bf(mu, mu)
        fill = [f"v_pk_add_f32 {P(f+2*u)}, {P(f+2*u)}, {P(mu)} {NEG}" for u in range(7)] + [f"v_cvt_pk_bf16_f32 v{xr[u]}, v{f+2*u}, v{f+2*u+1}" for u in range(7)]
        for u in range(7): fill += [f"v_lshlrev_b32 v{f+2*u}, 16, v{xr[u]}", f"v_and_b32 v{f+2*u+1}, 0xffff0000, v{xr[u]}"]
        chain = [f"v_add_f32_dpp v{s1}, v{s1}, v{s1} row_ror:{k} row_mask:0xf bank_mask:0xf" for k in (8,4,2,1)]
        chain += [f"v_mov_b32 v{t}, v{s1}", f"v_permlane16_swap_b32 v{s1}, v{t}", f"v_add_f32 v{s1}, v{s1}, v{t}",
                  f"v_mul_f32 v{s1}, {INV448:#x}, v{s1}", f"v_cvt_pk_bf16_f32 v{s1}, v{s1}, v{s1}", f"v_and_b32 v{s1}, 0xffff0000, v{s1}",
                  f"v_add_f32 v{s1}, {EPS:#x}, v{s1}", f"v_cvt_pk_bf16_f32 v{s1}, v{s1}, v{s1}", f"v_and_b32 v{s1}, 0xffff0000, v{s1}",
                  f"v_sqrt_f32 v{s1}, v{s1}", f"v_cvt_pk_bf16_f32 v{s1}, v{s1}, v{s1}", f"v_and_b32 v{s1}, 0xffff0000, v{s1}", f"v_rcp_f32 v{a}, v{s1}"]
        while chain or fill:
            for _ in range(2):
                if fill: A(fill.pop(0))
            if chain: A(chain.pop(0))
        for u in range(7): A(f"v_pk_mul_f32 {P(f+2*u)}, {P(f+2*u)}, {P(a)} op_sel_hi:[1,0]")
        for u in range(7):
            A(f"v_cvt_pk_bf16_f32 v{xr[u]}, v{f+2*u}, v{f+2*u+1}")
            A(f"ds_write_b32 v{lnbase}, v{xr[u]} offset:{u*stride}")
    def ln_read_addr(rd, base):
        A(f"v_and_b32 v{rd}, 1, v{vLANE}"); A(f"v_mul_u32_u24 v{rd}, 896, v{rd}")
        A(f"v_lshl_add_u32 v{rd}, v{vG4}, 4, v{rd}"); A(f"v_add_u32 v{rd}, {base}, v{rd}")
    def tall_addr(dst):
        A(f"v_lshrrev_b32 v{vTM}, 3, v{vN}")
        A(f"v_and_b32 v{vTM2}, 1, v{vG4}"); A(f"v_lshl_or_b32 v{vTM}, v{vTM2}, 1, v{vTM}")
        A(f"v_xor_b32 v{vTM}, {sW}, v{vTM}"); A(f"v_lshlrev_b32 v{vTM}, 5, v{vTM}")
        A(f"v_and_b32 v{vTM2}, 3, v{vN}"); A(f"v_lshl_or_b32 v{vTM}, v{vTM2}, 3, v{vTM}")
        A(f"v_lshrrev_b32 v{vTM2}, 2, v{vN}"); A(f"v_lshl_or_b32 v{vTM}, v{vTM2}, 7, v{vTM}")
        A(f"v_lshl_or_b32 v{dst}, v{vG4}, 10, v{vTM}")
    def wide_addr(dst):
        A(f"v_lshrrev_b32 v{vTM}, 2, v{vN}"); A(f"v_lshl_add_u32 v{vTM}, v{vG4}, 2, v{vTM}"); A(f"v_mul_u32_u24 v{vTM}, 896, v{vTM}")
        A(f"v_and_b32 v{vTM2}, 3, v{vN}"); A(f"v_lshl_add_u32 v{vTM}, v{vTM2}, 3, v{vTM}")
        A(f"s_mul_i32 {sT0}, {sW}, 224"); A(f"v_add_u32 v{dst}, {sT0}, v{vTM}")
    def read_tall_tile(base, dstreg, t):
        wait_tile()
        A(f"v_add_u32 v{vAD[0]}, {sSLOT}, v{base}")
        for s in range(4 if t < 3 else 2):
            for h2 in range(2):
                A(f"ds_read_b64_tr_b16 {P(dstreg + 4*(4*t+s) + 2*h2)}, v{vAD[0]} offset:{s*4096+h2*512}")
        A("s_waitcnt lgkmcnt(0)")
        pub_cons()
    def read_wide_tile(base, dstreg, half):
        wait_tile()
        A(f"v_add_u32 v{vAD[0]}, {sSLOT}, v{base}")
        for tt in range(7): A(f"ds_read_b64_tr_b16 {P(dstreg + 4*tt + 2*half)}, v{vAD[0]} offset:{tt*32}")
        A("s_waitcnt lgkmcnt(0)")
        pub_cons()
    def msg_lane_addr(dst, per_rr_shift):
        A(f"v_lshrrev_b32 v{vTM}, 3, v{vLANE}"); A(f"v_lshlrev_b32 v{vTM}, {per_rr_shift}, v{vTM}")
        A(f"v_and_b32 v{vTM2}, 7, v{vLANE}"); A(f"v_lshl_or_b32 v{dst}, v{vTM2}, 4, v{vTM}")

    A(f"s_sub_u32 {sW}, {sWAVE}, 1")
    A(f"v_and_b32 v{vN}, 15, v{vLANE}"); A(f"v_lshrrev_b32 v{vG4}, 4, v{vLANE}")
    A(f"v_mov_b32 v{vFLG}, {L_LANDED}")
    A(f"s_lshl_b32 {sT0}, {sW}, 2"); A(f"s_add_u32 {sT0}, {sT0}, {L_CONS}"); A(f"v_mov_b32 v{vCONS}, {sT0}")
    A("s_mov_b32 s42, 0xffff0000"); A("s_mov_b32 s43, 0xffff0000"); A("s_mov_b32 s44, 0"); A("s_mov_b32 s45, -1")
    A(f"s_mov_b32 {sC}, {C_SCALE:#x}"); A("s_mov_b32 s66, -1"); A("s_mov_b32 s67, 0"); A(f"s_mov_b32 {sTOT}, 0x7fffffff"); A(f"s_mov_b32 {sSWI}, 0x7fffffff")
    if hilo: A("s_mov_b32 s64, 0xcccccccc"); A("s_mov_b32 s65, 0xcccccccc")
    A(f"s_sub_u32 {sT0}, {sROLE}, 4"); A(f"s_lshl_b32 {sRR}, {sG}, 2"); A(f"s_add_u32 {sRR}, {sRR}, {sT0}")
    A(f"s_cmp_lt_u32 {sT0}, 4"); A(f"s_cselect_b32 {sRR}, {sRR}, 99")
    A(f"s_bfe_u32 {sT0}, {sRR}, 0x20003"); A(f"s_mul_i32 {sCOL}, {sT0}, 224")
    A(f"s_bfe_u32 {sGP}, {sRR}, 0x20001"); A(f"s_lshl_b32 {sT0}, {sGP}, 6"); A(f"s_add_u32 {sCOL}, {sCOL}, {sT0}")
    A(f"s_and_b32 {sT0}, {sRR}, 1"); A(f"s_lshl_b32 {sT0}, {sT0}, 4"); A(f"s_add_u32 {sCOL}, {sCOL}, {sT0}")
    A(f"s_bfe_u32 {sT0}, {sRR}, 0x10005"); A(f"s_mul_i32 {sT0}, {sT0}, 896"); A(f"s_add_u32 {sCOL}, {sCOL}, {sT0}")
    A("s_waitcnt lgkmcnt(0)")
    A(f"s_load_dword {sE}, {pWS}, {WS_E}")
    A("s_barrier")
    stamp(11)
    A(f"s_cmp_ge_u32 {sRR}, 64"); A("s_cbranch_scc1 L_nox")
    A(f"v_and_b32 v{vTM}, 6, v{vLANE}"); A(f"v_lshl_add_u32 v{vTM}, v{vTM}, 1, {sCOL}")
    A(f"global_load_dword v{vXH}, v{vTM}, {pX}")
    A(f"v_mov_b32 v{vXH+1}, 0")
    A(f"s_cmp_eq_u32 {sGP}, 3"); A("s_cbranch_scc1 L_nox")
    A(f"global_load_dword v{vXH+1}, v{vTM}, {pX} offset:32")
    E.label("L_nox")
    A(f"v_xor_b32 v{vTM}, v{vG4}, v{vN}"); A(f"v_lshlrev_b32 v{vTM}, 4, v{vTM}"); A(f"v_lshl_or_b32 v{vTM}, v{vN}, 9, v{vTM}")
    for s in range(4): A(f"v_xor_b32 v{vKB[s]}, {s*64}, v{vTM}")
    A(f"v_lshrrev_b32 v{vTM}, 2, v{vN}"); A(f"v_lshl_add_u32 v{vTM}, v{vG4}, 2, v{vTM}")
    A(f"v_and_b32 v{vTM2}, 7, v{vTM}")
    A(f"s_lshl_b32 {sT0}, {sW}, 2"); A(f"v_xor_b32 v{vTM2}, {sT0}, v{vTM2}"); A(f"v_lshlrev_b32 v{vTM2}, 5, v{vTM2}")
    A(f"v_lshl_or_b32 v{vTM}, v{vTM}, 9, v{vTM2}")
    A(f"v_and_b32 v{vTM2}, 3, v{vN}"); A(f"v_lshl_or_b32 v{vTM}, v{vTM2}, 3, v{vTM}")
    for e in range(4): A(f"v_xor_b32 v{vVB[e]}, {e*32}, v{vTM}")
    A(f"v_mov_b32 v{vM}, 0xff800000"); A(f"v_mov_b32 v{vMC}, 0xff800000"); A(f"v_mov_b32 v{vL}, 0")
    for i in range(16): A(f"v_mov_b32 v{vO+i}, 0")
    A(f"s_lshl_b32 {sT0}, {sWG}, 12"); A(f"s_add_u32 {sT0}, {sT0}, {WS_A}")
    A(f"v_lshlrev_b32 v{vAI}, 4, v{vN}"); A(f"v_lshl_or_b32 v{vAI}, v{vG4}, 10, v{vAI}"); A(f"v_add_u32 v{vAI}, {sT0}, v{vAI}")
    A(f"s_lshl_b32 {sT0}, {sB}, 2"); A(f"s_add_u32 {sT0}, {sT0}, {sW}"); A(f"s_lshl_b32 {sT0}, {sT0}, 10")
    A(f"s_and_b32 {sT1}, {sWG}, 127"); A(f"s_add_u32 {sT0}, {sT0}, {sT1}"); A(f"s_lshl_b32 {sT0}, {sT0}, 7"); A(f"s_add_u32 {sT0}, {sT0}, {WS_B}")
    msg_lane_addr(vBA, 14); A(f"v_add_u32 v{vBA}, {sT0}, v{vBA}")
    A(f"s_cmp_ge_u32 {sROLE}, 4")
    A("s_cbranch_scc1 L_q_wait")
    xr = [vWO+u for u in range(7)]; f14 = vWO+8; vLW = vWO+24; vLR = vWO+25; vTA = vWO+26
    A(f"v_lshrrev_b32 v{vLW}, 5, v{vLANE}"); A(f"v_mul_u32_u24 v{vLW}, 896, v{vLW}")
    A(f"v_and_b32 v{vTM2}, 31, v{vLANE}"); A(f"v_lshl_add_u32 v{vLW}, v{vTM2}, 2, v{vLW}")
    for u in range(7): A(f"global_load_dword v{xr[u]}, v{vLW}, {pX} offset:{u*128}")
    A(f"s_or_b32 {sT0}, {sROLE}, {sW}"); A(f"s_cmp_lg_u32 {sT0}, 0"); A("s_cbranch_scc1 L_noinit")
    A(f"s_lshl_b32 {sT0}, {sG}, 8"); A(f"s_add_u32 {sT0}, {sT0}, {WS_CNT}")
    A(f"v_mov_b32 v{vTM2}, {sT0}"); A(f"v_mov_b32 v{vTM3}, 0")
    A("s_mov_b64 exec, 1"); A(f"global_store_dword v{vTM2}, v{vTM3}, {pWS} {stf}"); A("s_mov_b64 exec, -1")
    E.label("L_noinit")
    A(f"s_lshl_b32 {sT2}, {sW}, 11"); A(f"s_add_u32 {sT2}, {sT2}, {L_LN}")
    A(f"v_add_u32 v{vLW}, {sT2}, v{vLW}")
    ln_read_addr(vLR, sT2)
    tall_addr(vTA)
    A("s_waitcnt vmcnt(0) lgkmcnt(0)")
    stamp(12)
    layernorm(xr, f14, vLW, 128)
    A("s_waitcnt lgkmcnt(0)")
    stamp(13)
    for s in range(14): A(f"ds_read_b128 {Q4(vW2+4*s)}, v{vLR} offset:{s*64}")
    for t in range(4):
        read_tall_tile(vTA, vW1, t)
        if t == 0: stamp(14)
        for s in range(4*t, min(4*t+4, 14)):
            A(f"v_mfma_f32_16x16x32_bf16 {Q4(vS)}, {Q4(vW2+4*s)}, {Q4(vW1+4*s)}, {'0' if s==0 else Q4(vS)}")
    A(f"s_lshl_b32 {sT0}, {sB}, 2"); A(f"s_add_u32 {sT0}, {sT0}, {sROLE}"); A(f"s_lshl_b32 {sT0}, {sT0}, 2"); A(f"s_add_u32 {sT0}, {sT0}, {sW}")
    A(f"s_lshl_b32 {sT0}, {sT0}, 6"); A(f"s_lshl_b32 {sT1}, {sHKV}, 11"); A(f"s_add_u32 {sT0}, {sT0}, {sT1}"); A(f"s_add_u32 {sT0}, {sT0}, {WS_Q}")
    A(f"v_lshlrev_b32 v{vTM3}, 2, v{vN}"); A(f"v_lshl_add_u32 v{vTM3}, v{vG4}, 14, v{vTM3}"); A(f"v_add_u32 v{vTM3}, {sT0}, v{vTM3}")
    A(f"s_mul_i32 {sTAG}, {sE}, 0x9e3779b1"); A(f"s_add_u32 {sTAG}, {sTAG}, 0x7f4a7c15")
    A(f"v_cndmask_b32 v{vTM}, v{vS}, v{vS+1}, {sM1}")
    A(f"v_mov_b32_dpp v{vTM2}, v{vTM} quad_perm:[1,0,3,2] row_mask:0xf bank_mask:0xf")
    A(f"v_mov_b32 v{vX+1}, {sTAG}")
    A(f"v_cvt_pk_bf16_f32 v{vX}, v{vTM}, v{vTM2}")
    A("s_mov_b64 exec, 0x55555555")
    A(f"global_store_dwordx2 v{vTM3}, {P(vX)}, {pWS} {stf}")
    A("s_mov_b64 exec, -1")
    stamp(1)
    E.label("L_q_wait")
    wide_addr(vX)
    if not wo_end:
        for h in range(2): read_wide_tile(vX, vWO, h)
    A(f"s_cmp_ge_u32 {sIDX}, 28"); A("s_cbranch_scc1 L_noffn")
    tall_addr(vX+1)
    for t in range(4): read_tall_tile(vX+1, vW1, t)
    for t in range(4): read_wide_tile(vX, vW2 + 28*(t>>1), t & 1)
    E.label("L_noffn")
    E.label("L_idwait")
    A(f"ds_read_b32 v{vTM}, v{vFLG} offset:12")
    A(f"s_sub_u32 {sSPIN}, {sSPIN}, 1"); A("s_cbranch_scc1 L_end")
    A("s_waitcnt lgkmcnt(0)")
    A(f"v_readfirstlane_b32 {sID}, v{vTM}")
    A(f"s_cmp_ge_u32 {sID}, 256"); A("s_cbranch_scc1 L_idwait")
    A(f"s_and_b32 {sT0}, {sID}, 0xf0"); A(f"s_lshl_b32 {sT1}, {sW}, 1"); A(f"s_add_u32 {sT0}, {sT0}, {sT1}"); A(f"s_lshl_b32 {sT0}, {sT0}, 4")
    A(f"s_and_b32 {sT1}, {sID}, 15"); A(f"s_add_u32 {sT0}, {sT0}, {sT1}"); A(f"s_lshl_b32 {sT0}, {sT0}, 8"); A(f"s_add_u32 {sT0}, {sT0}, {WS_A}")
    A(f"v_lshrrev_b32 v{vAA}, 1, v{vG4}"); A(f"v_lshlrev_b32 v{vAA}, 15, v{vAA}")
    A(f"v_and_b32 v{vTM}, 1, v{vG4}"); A(f"v_lshl_or_b32 v{vAA}, v{vTM}, 12, v{vAA}"); A(f"v_lshl_or_b32 v{vAA}, v{vN}, 4, v{vAA}")
    A(f"v_add_u32 v{vAA}, {sT0}, v{vAA}")
    A(f"s_mul_i32 {sTAG}, {sE}, 0x9e3779b1"); A(f"s_add_u32 {sTAG}, {sTAG}, 0x7f4a7c15")
    A(f"s_lshr_b32 {sT0}, {sID}, 4"); A(f"s_lshl_b32 {sT0}, {sT0}, 11"); A(f"s_add_u32 {sT0}, {sT0}, {WS_Q}")
    A(f"v_lshl_add_u32 v{vTM3}, v{vLANE}, 4, {sT0}")
    poll([f"global_load_dwordx4 {Q4(vF)}, v{vTM3}, {pWS} {ldf}", f"global_load_dwordx4 {Q4(vF+4)}, v{vTM3}, {pWS} offset:1024 {ldf}"],
         [[vF+1, vF+3], [vF+5, vF+7]])
    A(f"s_lshl_b32 {sT0}, {sW}, 10"); A(f"s_add_u32 {sT0}, {sT0}, {L_QW}")
    A(f"v_mov_b32 v{vF+1}, v{vF+2}"); A(f"v_mov_b32 v{vF+5}, v{vF+6}")
    A(f"v_lshl_add_u32 v{vTM}, v{vLANE}, 3, {sT0}")
    A(f"ds_write_b64 v{vTM}, {P(vF)}"); A(f"ds_write_b64 v{vTM}, {P(vF+4)} offset:512")
    A(f"v_and_b32 v{vTM2}, 1, v{vLANE}"); A(f"v_lshlrev_b32 v{vTM2}, 9, v{vTM2}"); A(f"v_lshl_add_u32 v{vTM2}, v{vG4}, 4, v{vTM2}"); A(f"v_add_u32 v{vTM2}, {sT0}, v{vTM2}")
    A("s_waitcnt lgkmcnt(0)")
    for s in range(8): A(f"ds_read_b128 {Q4(vQ+4*s)}, v{vTM2} offset:{s*64}")
    stamp(2)
    if warm:
        A(f"s_lshl_b32 {sT0}, {sWG}, 12"); A(f"s_lshl_b32 {sT1}, {sW}, 10"); A(f"s_add_u32 {sT0}, {sT0}, {sT1}"); A(f"s_add_u32 {sT0}, {sT0}, {WS_A}")
        A(f"v_lshl_add_u32 v{vTM}, v{vLANE}, 4, {sT0}")
        A(f"global_load_dword v{vX+2}, v{vTM}, {pWS} {ldf}")
        A(f"s_cmp_ge_u32 {sRR}, 64"); A("s_cbranch_scc1 L_nowarm")
        A(f"s_lshl_b32 {sT0}, {sRR}, 14"); A(f"s_lshl_b32 {sT1}, {sW}, 12"); A(f"s_add_u32 {sT0}, {sT0}, {sT1}"); A(f"s_add_u32 {sT0}, {sT0}, {WS_B}")
        A(f"v_lshl_add_u32 v{vTM}, v{vLANE}, 6, {sT0}")
        A(f"global_load_dword v{vX+3}, v{vTM}, {pWS} {ldf}")
        A(f"s_lshl_b32 {sT0}, {sRR}, 12"); A(f"s_lshl_b32 {sT1}, {sW}, 10"); A(f"s_add_u32 {sT0}, {sT0}, {sT1}"); A(f"s_add_u32 {sT0}, {sT0}, {WS_D}")
        A(f"v_lshl_add_u32 v{vTM}, v{vLANE}, 4, {sT0}")
        A(f"global_load_dword v{vX+4}, v{vTM}, {pWS} {ldf}")
        A(f"s_lshl_b32 {sT0}, {sRR}, 6"); A(f"s_add_u32 {sT0}, {sT0}, {WS_H}"); A(f"v_mov_b32 v{vTM}, {sT0}")
        A(f"global_load_dword v{vX+5}, v{vTM}, {pWS} {ldf}")
        E.label("L_nowarm")
    A("s_waitcnt lgkmcnt(0)")

    def qk(nt):
        for s in range(4): A(f"v_add_u32 v{vAD[s]}, {sSLOT}, v{vKB[s]}")
        seq = [(t,s) for s in range(8) for t in range(nt)]; n = len(seq)
        def kread(i):
            t,s = seq[i]; A(f"ds_read_b128 {Q4(vF + 4*(i % NF))}, v{vAD[s&3]} offset:{(s>>2)*256 + t*8192}")
        for i in range(NF): kread(i)
        for i in range(n):
            t,s = seq[i]
            A(f"s_waitcnt lgkmcnt({min(NF-1, n-1-i)})")
            d = Q4(vS+4*t)
            A(f"v_mfma_f32_16x16x32_bf16 {d}, {Q4(vF + 4*(i % NF))}, {Q4(vQ+4*s)}, {'0' if s==0 else d}")
            if i + NF < n: kread(i+NF)
    def softmax(nt, tag):
        n = 4*nt
        for i in range(n//2): A(f"v_cvt_pk_bf16_f32 v{vP+i}, v{vS+2*i}, v{vS+2*i+1}")
        for i in range(n//2): unpack(vS+2*i, vS+2*i+1, vP+i)
        if nt == 2:
            A(f"v_max3_f32 v{vMX}, v{vS}, v{vS+1}, v{vS+2}"); A(f"v_max3_f32 v{vTM}, v{vS+3}, v{vS+4}, v{vS+5}")
            A(f"v_max3_f32 v{vMX}, v{vMX}, v{vS+6}, v{vS+7}"); A(f"v_max_f32 v{vMX}, v{vMX}, v{vTM}")
        else:
            A(f"v_max3_f32 v{vMX}, v{vS}, v{vS+1}, v{vS+2}"); A(f"v_max_f32 v{vMX}, v{vMX}, v{vS+3}")
        xrow("v_max_f32", [vMX], [vTM])
        A(f"v_cmp_gt_f32 vcc, v{vMX}, v{vM}")
        A("s_cmp_lg_u64 vcc, 0"); A(f"s_cbranch_scc1 L_rescale{tag}")
        E.label(f"L_rescaled{tag}")
        for i in range(n): A(f"v_fma_f32 v{vS+i}, v{vS+i}, {sC}, -v{vMC}")
        for i in range(n): A(f"v_exp_f32 v{vS+i}, v{vS+i}")
        for i in range(n//2): A(f"v_cvt_pk_bf16_f32 v{vP+i}, v{vS+2*i}, v{vS+2*i+1}")
        if hilo:
            for i in range(n//2):
                unpack(vF+16, vF+17, vP+i)
                A(f"v_sub_f32 v{vF+16}, v{vS+2*i}, v{vF+16}"); A(f"v_sub_f32 v{vF+17}, v{vS+2*i+1}, v{vF+17}")
                A(f"v_cvt_pk_bf16_f32 v{vF+16}, v{vF+16}, v{vF+17}")
                A(f"v_cndmask_b32 v{vP+i}, v{vP+i}, v{vF+16}, s[64:65]")
        A(f"v_add_f32 v{vTM}, v{vS}, v{vS+1}"); A(f"v_add_f32 v{vMX}, v{vS+2}, v{vS+3}")
        if nt == 2:
            A(f"v_add_f32 v{vS+4}, v{vS+4}, v{vS+5}"); A(f"v_add_f32 v{vS+6}, v{vS+6}, v{vS+7}")
            A(f"v_add_f32 v{vTM}, v{vTM}, v{vS+4}"); A(f"v_add_f32 v{vMX}, v{vMX}, v{vS+6}")
        A(f"v_add_f32 v{vL}, v{vL}, v{vTM}"); A(f"v_add_f32 v{vL}, v{vL}, v{vMX}")
    def rescale(tag):
        E.label(f"L_rescale{tag}")
        A(f"v_max_f32 v{vM}, v{vM}, v{vMX}")
        A(f"v_mul_f32 v{vTM}, {sC}, v{vM}")
        A(f"v_sub_f32 v{vTM2}, v{vMC}, v{vTM}")
        A(f"v_mov_b32 v{vMC}, v{vTM}")
        A(f"v_exp_f32 v{vTM2}, v{vTM2}")
        A(f"v_mul_f32 v{vL}, v{vL}, v{vTM2}")
        A(f"v_mov_b32_dpp v{vTM}, v{vTM2} quad_perm:[0,0,2,2] row_mask:0xf bank_mask:0xf")
        A(f"v_mov_b32_dpp v{vTM3}, v{vTM2} quad_perm:[1,1,3,3] row_mask:0xf bank_mask:0xf")
        for i in range(16): A(f"v_mul_f32 v{vO+i}, v{vO+i}, v{vTM if i%2==0 else vTM3}")
        A(f"s_branch L_rescaled{tag}")
    E.label("L_loop")
    wait_tile("L_mini", sSWI)
    qk(2)
    pub_cons()
    softmax(2, "a")
    wait_tile()
    for e in range(4): A(f"v_add_u32 v{vAD[e]}, {sSLOT}, v{vVB[e]}")
    for e in range(4):
        for h2 in range(2): A(f"ds_read_b64_tr_b16 {P(vF + 4*e + 2*h2)}, v{vAD[e]} offset:{h2*8192}")
    for e in range(4):
        A(f"s_waitcnt lgkmcnt({6-2*e})")
        A(f"v_mfma_f32_16x16x32_bf16 {Q4(vO+4*e)}, {Q4(vP)}, {Q4(vF+4*e)}, {Q4(vO+4*e)}")
    pub_cons()
    if True:
        A("s_branch L_loop")
        E.label("L_mini")
        wait_tile("L_fin", sTOT)
        qk(1)
        for e in range(4): A(f"v_add_u32 v{vAD[e]}, {sSLOT}, v{vVB[e]}")
        for e in range(4): A(f"ds_read_b64_tr_b16 {P(vF + 2*e)}, v{vAD[e]} offset:8192")
        softmax(1, "b")
        A("s_waitcnt lgkmcnt(0)")
        for e in range(4):
            A(f"v_mfma_f32_16x16x16_bf16 {Q4(vO+4*e)}, {P(vP)}, {P(vF+2*e)}, {Q4(vO+4*e)}")
        pub_cons()
        A("s_branch L_mini")
        rescale("b")
    rescale("a")

    E.label("L_fin")
    stamp(3)
    if enc2:
        A("s_memrealtime s[76:77]"); A(f"s_lshl_b32 {sT0}, {sWG}, 2"); A(f"s_add_u32 {sT0}, {sT0}, {WS_ST}"); A(f"v_mov_b32 v{vTM2}, {sT0}")
        A("s_waitcnt lgkmcnt(0)"); A(f"v_mov_b32 v{vTM3}, s76")
        A("s_mov_b64 exec, 1"); A(f"global_store_dword v{vTM2}, v{vTM3}, {pWS} sc1"); A("s_mov_b64 exec, -1")
    vG=vF; vI=vF+4; sa=vS; sb=vS+1; sw=vS+2
    vA=vQ; vOPR=vQ+4; vOPW=vQ+5; vR0=vQ+6; vR1=vQ+7; vR2=vQ+8; vR3=vQ+9; vR4=vQ+10; vR5=vQ+11; vZ=vQ+12
    yreg = [vO, vO+4, vO+8, vO+12, vQ+16, vQ+20, vQ+24]
    xrow("v_add_f32", [vL], [vTM])
    if hilo:
        for e in range(4):
            for h in range(2): A(f"v_add_f32 v{vO+4*e+h}, v{vO+4*e+h}, v{vO+4*e+2+h}")
    A(f"v_log_f32 v{vTM2}, v{vL}"); A(f"v_rcp_f32 v{vTM3}, v{vL}")
    A(f"v_mov_b32 v{vG+3}, {sTAG}")
    A(f"v_add_f32 v{vTM2}, v{vMC}, v{vTM2}")
    SEL4(vG, vO+0, vO+8, vO+1, vO+9, vMX)
    A(f"v_mov_b32_dpp v{vTM}, v{vTM3} quad_perm:[0,0,2,2] row_mask:0x3 bank_mask:0xf")
    A(f"v_mov_b32_dpp v{vG+2}, v{vTM2} quad_perm:[0,0,2,2] row_mask:0x3 bank_mask:0xf")
    SEL4(vG+1, vO+4, vO+12, vO+5, vO+13, vMX)
    A(f"v_mov_b32_dpp v{vTM}, v{vTM3} quad_perm:[1,1,3,3] row_mask:0xc bank_mask:0xf")
    A(f"v_mov_b32_dpp v{vG+2}, v{vTM2} quad_perm:[1,1,3,3] row_mask:0xc bank_mask:0xf")
    A(f"v_mul_f32 v{vG}, v{vG}, v{vTM}"); A(f"v_mul_f32 v{vG+1}, v{vG+1}, v{vTM}")
    A(f"global_store_dwordx4 v{vAA}, {Q4(vG)}, {pWS} {stf}")
    stamp(4)
    A(f"v_lshlrev_b32 v{vOPR}, 3, v{vG4}"); A(f"v_add_u32 v{vOPR}, {L_OP}, v{vOPR}")
    A(f"v_lshlrev_b32 v{vOPW}, 1, v{vN}"); A(f"v_add_u32 v{vOPW}, {L_OP}, v{vOPW}")
    A(f"v_mov_b32 v{vZ}, 0")
    A(f"s_cmp_lt_u32 {sIDX}, 28"); A("s_cbranch_scc1 L_ffn_addr")
    A(f"s_lshl_b32 {sT0}, {sRR}, 14"); A(f"s_lshl_b32 {sT1}, {sW}, 12"); A(f"s_add_u32 {sT0}, {sT0}, {sT1}"); A(f"s_add_u32 {sT0}, {sT0}, {WS_B}")
    A(f"v_lshl_add_u32 v{vR0}, v{vLANE}, 4, {sT0}")
    A(f"s_lshl_b32 {sT0}, {sW}, 6"); A(f"s_add_u32 {sT0}, {sT0}, {L_RED}")
    A(f"v_and_b32 v{vTM}, 7, v{vLANE}"); A(f"v_lshl_add_u32 v{vR1}, v{vTM}, 2, {sT0}")
    A(f"v_and_b32 v{vTM}, 6, v{vLANE}"); A(f"v_lshlrev_b32 v{vR2}, 2, v{vTM}"); A(f"v_add_u32 v{vR2}, {L_RED}, v{vR2}")
    A(f"s_lshl_b32 {sT0}, {sRR}, 6"); A(f"s_add_u32 {sT0}, {sT0}, {WS_H}"); A(f"v_lshl_add_u32 v{vR3}, v{vTM}, 3, {sT0}")
    A(f"s_lshl_b32 {sT0}, {sRR}, 12"); A(f"s_add_u32 {sT0}, {sT0}, {WS_D}"); A(f"v_lshl_add_u32 v{vR4}, v{vLANE}, 4, {sT0}")
    A(f"v_lshl_add_u32 v{vR5}, v{vTM}, 1, {sCOL}")
    A("s_branch L_addr_done")
    E.label("L_ffn_addr")
    A(f"v_lshrrev_b32 v{vTM}, 3, v{vLANE}"); A(f"v_and_b32 v{vTM2}, 7, v{vLANE}")
    A(f"v_lshlrev_b32 v{vR0}, 9, v{vTM}"); A(f"v_lshl_or_b32 v{vR0}, v{vTM2}, 4, v{vR0}"); A(f"v_add_u32 v{vR0}, {WS_H}, v{vR0}")
    A(f"v_mul_u32_u24 v{vR1}, 224, v{vTM}"); A(f"v_lshl_add_u32 v{vR1}, v{vTM2}, 2, v{vR1}"); A(f"v_add_u32 v{vR1}, {L_LN}, v{vR1}")
    ln_read_addr(vR2, L_LN)
    A(f"s_lshl_b32 {sT0}, {sW}, 5"); A(f"s_add_u32 {sT0}, {sT0}, {L_ACT}")
    A(f"v_lshlrev_b32 v{vR3}, 7, v{vG4}"); A(f"v_lshl_add_u32 v{vR3}, v{vN}, 1, v{vR3}"); A(f"v_add_u32 v{vR3}, {sT0}, v{vR3}")
    A(f"v_and_b32 v{vR4}, 1, v{vLANE}"); A(f"v_lshlrev_b32 v{vR4}, 7, v{vR4}"); A(f"v_lshl_add_u32 v{vR4}, v{vG4}, 3, v{vR4}"); A(f"v_add_u32 v{vR4}, {L_ACT}, v{vR4}")
    A(f"s_lshl_b32 {sT0}, {sW}, 8"); A(f"s_add_u32 {sT0}, {sT0}, {sIDX}"); A(f"s_lshl_b32 {sT0}, {sT0}, 7"); A(f"s_add_u32 {sT0}, {sT0}, {WS_D}")
    msg_lane_addr(vR5, 12); A(f"v_add_u32 v{vR5}, {sT0}, v{vR5}")
    E.label("L_addr_done")
    if wo_end:
        wide_addr(vX)
        for h in range(2): read_wide_tile(vX, vWO, h)
    A(f"s_cmp_lg_u32 {sW}, 0"); A("s_cbranch_scc1 L_a_join")
    poll([f"global_load_dwordx4 {Q4(vI+4*i)}, v{vAI}, {pWS} offset:{i*256} {ldf}" for i in range(4)], [[vI+4*i+3] for i in range(4)])
    stamp(5)
    A(f"v_max3_f32 v{vMX}, v{vI+2}, v{vI+6}, v{vI+10}"); A(f"v_max_f32 v{vMX}, v{vMX}, v{vI+14}")
    xrow("v_max_f32", [vMX], [vTM])
    for i in range(4): A(f"v_sub_f32 v{vI+4*i+2}, v{vI+4*i+2}, v{vMX}")
    for i in range(4): A(f"v_exp_f32 v{vI+4*i+2}, v{vI+4*i+2}")
    A(f"v_mul_f32 v{sa}, v{vI}, v{vI+2}"); A(f"v_mul_f32 v{sb}, v{vI+1}, v{vI+2}"); A(f"v_add_f32 v{sw}, v{vI+2}, v{vI+6}")
    for i in range(1,4):
        A(f"v_fmac_f32 v{sa}, v{vI+4*i}, v{vI+4*i+2}"); A(f"v_fmac_f32 v{sb}, v{vI+4*i+1}, v{vI+4*i+2}")
        if i > 1: A(f"v_add_f32 v{sw}, v{sw}, v{vI+4*i+2}")
    xrow("v_add_f32", [sw, sa, sb], [vS+3, vS+4, vS+5])
    A(f"v_rcp_f32 v{sw}, v{sw}")
    A(f"v_mul_f32 v{sa}, v{sa}, v{sw}"); A(f"v_mul_f32 v{sb}, v{sb}, v{sw}")
    A(f"v_mov_b32_dpp v{vS+3}, v{sa} quad_perm:[1,0,3,2] row_mask:0xf bank_mask:0xf")
    A(f"v_mov_b32_dpp v{vS+4}, v{sb} quad_perm:[1,0,3,2] row_mask:0xf bank_mask:0xf")
    A(f"v_cvt_pk_bf16_f32 v{sa}, v{sa}, v{vS+3}"); A(f"v_cvt_pk_bf16_f32 v{sb}, v{sb}, v{vS+4}")
    A("s_mov_b64 exec, 0x5555"); A(f"ds_write2_b32 v{vOPW}, v{sa}, v{sb} offset0:0 offset1:8"); A("s_mov_b64 exec, -1")
    A("s_waitcnt lgkmcnt(0)")
    E.label("L_a_join")
    A("s_barrier")
    A(f"ds_read2_b64 {Q4(vA)}, v{vOPR} offset0:0 offset1:4")
    A(f"v_mov_b32 v{vG+1}, {sTAG}")
    A("s_waitcnt lgkmcnt(0)")
    for t in (0,2,4,6,1,3,5):
        A(f"v_mfma_f32_16x16x32_bf16 {Q4(yreg[t])}, {Q4(vA)}, {Q4(vWO+4*t)}, 0")
    SEL4(vG, yreg[0], yreg[2], yreg[4], yreg[6], vMX)
    SEL4(vG+2, yreg[1], yreg[3], yreg[5], vZ, vTM)
    A(f"global_store_dwordx4 v{vBA}, {Q4(vG)}, {pWS} {stf}")
    stamp(6)
    A(f"s_cmp_lt_u32 {sIDX}, 28"); A("s_cbranch_scc1 L_ffn")
    A(f"s_cmp_ge_u32 {sRR}, 64"); A("s_cbranch_scc1 L_done")
    def inbox(addr): return [f"global_load_dwordx4 {Q4(vI+4*i)}, v{addr}, {pWS} offset:{i*1024} {ldf}" for i in range(4)]
    tags2 = [[vI+4*i+1, vI+4*i+3] for i in range(4)]
    def sum_inbox():
        A(f"v_add_f32 v{sa}, v{vI}, v{vI+4}"); A(f"v_add_f32 v{sb}, v{vI+2}, v{vI+6}")
        A(f"v_add_f32 v{vS+2}, v{vI+8}, v{vI+12}"); A(f"v_add_f32 v{vS+3}, v{vI+10}, v{vI+14}")
        A(f"v_add_f32 v{sa}, v{sa}, v{vS+2}"); A(f"v_add_f32 v{sb}, v{sb}, v{vS+3}")
        A(f"v_add_f32_dpp v{sa}, v{sa}, v{sa} row_ror:8 row_mask:0xf bank_mask:0xf")
        A(f"v_add_f32_dpp v{sb}, v{sb}, v{sb} row_ror:8 row_mask:0xf bank_mask:0xf")
        xrow("v_add_f32", [sa, sb], [vS+2, vS+3])
    vXF = vO
    unpack(vXF, vXF+1, vXH); unpack(vXF+2, vXF+3, vXH+1)
    poll(inbox(vR0), tags2)
    stamp(7)
    sum_inbox()
    A("s_mov_b64 exec, 0xff"); A(f"ds_write2_b32 v{vR1}, v{sa}, v{sb} offset0:0 offset1:8"); A("s_mov_b64 exec, -1")
    A("s_waitcnt lgkmcnt(0)"); A("s_barrier")
    A(f"s_cmp_lg_u32 {sW}, 0"); A("s_cbranch_scc1 L_done")
    for i in range(4): A(f"ds_read2_b64 {Q4(vI+4*i)}, v{vR2} offset0:{i*8} offset1:{i*8+4}")
    def add_resid(y, dst):
        A(f"v_cvt_pk_bf16_f32 v{dst}, v{y}, v{y+1}"); A(f"v_cvt_pk_bf16_f32 v{dst+2}, v{y+2}, v{y+3}")
        unpack(y, y+1, dst); unpack(y+2, y+3, dst+2)
        A(f"v_pk_add_f32 {P(y)}, {P(y)}, {P(vXF)}"); A(f"v_pk_add_f32 {P(y+2)}, {P(y+2)}, {P(vXF+2)}")
        A(f"v_cvt_pk_bf16_f32 v{dst}, v{y}, v{y+1}"); A(f"v_cvt_pk_bf16_f32 v{dst+2}, v{y+2}, v{y+3}")
    A("s_waitcnt lgkmcnt(2)")
    A(f"v_pk_add_f32 {P(vI)}, {P(vI)}, {P(vI+4)}"); A(f"v_pk_add_f32 {P(vI+2)}, {P(vI+2)}, {P(vI+6)}")
    A("s_waitcnt lgkmcnt(0)")
    A(f"v_pk_add_f32 {P(vI+8)}, {P(vI+8)}, {P(vI+12)}"); A(f"v_pk_add_f32 {P(vI+10)}, {P(vI+10)}, {P(vI+14)}")
    A(f"v_pk_add_f32 {P(vI)}, {P(vI)}, {P(vI+8)}"); A(f"v_pk_add_f32 {P(vI+2)}, {P(vI+2)}, {P(vI+10)}")
    add_resid(vI, vG)
    A("s_mov_b64 exec, 0x55"); A(f"global_store_dwordx4 v{vR3}, {Q4(vG)}, {pWS} {stf}"); A("s_mov_b64 exec, -1")
    stamp(8)
    unpack(vXF, vXF+1, vG); unpack(vXF+2, vXF+3, vG+2)
    A(f"v_mov_b32 v{vI+12}, 0"); A(f"v_mov_b32 v{vI+13}, {sTAG}"); A(f"v_mov_b32 v{vI+14}, 0"); A(f"v_mov_b32 v{vI+15}, {sTAG}")
    poll(inbox(vR4), tags2, first_mask=[-1,-1,-1,"s[66:67]"])
    stamp(9)
    sum_inbox()
    A(f"v_mov_b32_dpp v{vI}, v{sa} quad_perm:[0,0,2,2] row_mask:0xf bank_mask:0xf"); A(f"v_mov_b32_dpp v{vI+1}, v{sa} quad_perm:[1,1,3,3] row_mask:0xf bank_mask:0xf")
    A(f"v_mov_b32_dpp v{vI+2}, v{sb} quad_perm:[0,0,2,2] row_mask:0xf bank_mask:0xf"); A(f"v_mov_b32_dpp v{vI+3}, v{sb} quad_perm:[1,1,3,3] row_mask:0xf bank_mask:0xf")
    add_resid(vI, vI+4)
    A("s_mov_b64 exec, 0x55"); A(f"global_store_dword v{vR5}, v{vI+4}, {pOUT}")
    A(f"s_cmp_eq_u32 {sGP}, 3"); A("s_cbranch_scc1 L_done")
    A(f"global_store_dword v{vR5}, v{vI+6}, {pOUT} offset:32")
    A(f"s_cmp_lg_u32 {sRR}, 0"); A("s_cbranch_scc1 L_done")
    A(f"s_add_u32 {sT0}, {sE}, 1"); A(f"v_mov_b32 v{vTM2}, {sT0}"); A(f"v_mov_b32 v{vTM3}, {WS_E}")
    A("s_mov_b64 exec, 1"); A(f"global_store_dword v{vTM3}, v{vTM2}, {pWS} {stf}")
    if enc2:
        A("s_mov_b64 exec, -1")
        A(f"v_lshlrev_b32 v{vTM}, 4, v{vLANE}"); A(f"v_add_u32 v{vTM}, {WS_ST}, v{vTM}")
        A(f"global_load_dwordx4 {Q4(vI)}, v{vTM}, {pWS} sc1"); A("s_waitcnt vmcnt(0)")
        for k in range(4): A(f"v_subrev_u32 v{vI+k}, s76, v{vI+k}");
        for k in range(4): A(f"v_add_u32 v{vI+k}, 0x100000, v{vI+k}")
        A(f"v_max3_u32 v{vS}, v{vI}, v{vI+1}, v{vI+2}"); A(f"v_max_u32 v{vS}, v{vS}, v{vI+3}")
        A(f"v_min3_u32 v{vS+1}, v{vI}, v{vI+1}, v{vI+2}"); A(f"v_min_u32 v{vS+1}, v{vS+1}, v{vI+3}")
        A(f"v_lshlrev_b32 v{vS}, 6, v{vS}"); A(f"v_or_b32 v{vS}, v{vS}, v{vLANE}")
        A("s_mov_b32 s80, 0"); A("s_mov_b32 s81, -1")
        for l in range(64):
            A(f"v_readlane_b32 s82, v{vS}, {l}"); A(f"v_readlane_b32 s83, v{vS+1}, {l}"); A("s_max_u32 s80, s80, s82"); A("s_min_u32 s81, s81, s83")
        A("s_and_b32 s82, s80, 63"); A("s_lshr_b32 s82, s82, 2"); A("s_lshr_b32 s80, s80, 6"); A(f"s_sub_u32 {sT0}, s80, s81")
        if enc2 == 2:
            A(f"s_cmp_gt_u32 {sT0}, 400"); A("s_cselect_b32 s83, 1, 0"); A("s_add_u32 s82, s82, 1"); A("s_mul_i32 s82, s82, s83"); A("s_mul_i32 s82, s82, 20000")
        else: A("s_mov_b32 s82, 0")
        A(f"s_lshl_b32 {sT0}, {sT0}, 3"); A(f"s_add_u32 {sT0}, {sT0}, s82"); A(f"s_min_u32 {sT0}, {sT0}, 400000")
        A("s_memrealtime s[90:91]"); A("s_waitcnt lgkmcnt(0)")
        E.label("L_enc2")
        A("s_memrealtime s[94:95]"); A("s_waitcnt lgkmcnt(0)")
        A(f"s_sub_u32 {sT1}, s94, s90"); A(f"s_cmp_lt_u32 {sT1}, {sT0}"); A("s_cbranch_scc1 L_enc2")
    if enc3:
        A("s_memrealtime s[90:91]"); A("s_waitcnt lgkmcnt(0)")
        A(f"s_and_b32 {sT1}, s90, 127"); A(f"s_cmp_lt_u32 {sT1}, {enc3}"); A(f"s_cselect_b32 {sT0}, 20000, 0")
        E.label("L_enc3")
        A("s_memrealtime s[94:95]"); A("s_waitcnt lgkmcnt(0)")
        A(f"s_sub_u32 {sT1}, s94, s90"); A(f"s_cmp_lt_u32 {sT1}, {sT0}"); A("s_cbranch_scc1 L_enc3")
    if enc:
        A("s_memrealtime s[90:91]"); A("s_waitcnt lgkmcnt(0)")
        A(f"s_sub_u32 {sT0}, s{70+2*enc[1]}, s{70+2*enc[0]}"); A(f"s_lshl_b32 {sT0}, {sT0}, 2"); A(f"s_min_u32 {sT0}, {sT0}, 100000")
        E.label("L_enc")
        A("s_memrealtime s[94:95]"); A("s_waitcnt lgkmcnt(0)")
        A(f"s_sub_u32 {sT1}, s94, s90"); A(f"s_cmp_lt_u32 {sT1}, {sT0}"); A("s_cbranch_scc1 L_enc")
    A("s_branch L_done")
    E.label("L_ffn")
    A(f"s_cmp_lg_u32 {sW}, 0"); A("s_cbranch_scc1 L_c_join")
    poll([f"global_load_dwordx4 {Q4(vI+4*u)}, v{vR0}, {pWS} offset:{u*128} {ldf}" for u in range(4)], tags2)
    stamp(7)
    layernorm([vI+2*u for u in range(7)], vO, vR1, 32)
    A("s_waitcnt lgkmcnt(0)")
    E.label("L_c_join")
    A("s_barrier")
    def aread(i): A(f"ds_read_b128 {Q4(vF + 4*(i % NF))}, v{vR2} offset:{i*64}")
    for i in range(NF): aread(i)
    for i in range(14):
        A(f"s_waitcnt lgkmcnt({min(NF-1, 13-i)})")
        A(f"v_mfma_f32_16x16x32_bf16 {Q4(vS)}, {Q4(vF + 4*(i % NF))}, {Q4(vW1+4*i)}, {'0' if i==0 else Q4(vS)}")
        if i + NF < 14: aread(i+NF)
    for b in range(2): A(f"v_mov_b32 v{vO+4*b+1}, {sTAG}"); A(f"v_mov_b32 v{vO+4*b+3}, {sTAG}")
    A(f"v_add_u32 v{vR0}, {32*4096}, v{vR5}")
    A(f"v_cndmask_b32 v{vTM}, v{vS}, v{vS+1}, {sM1}")
    round_bf(vTM, vTM)
    A(f"v_mul_f32 v{vTM2}, {(LOG2E | 0x80000000):#x}, v{vTM}")
    A(f"v_exp_f32 v{vTM2}, v{vTM2}")
    A(f"v_add_f32 v{vTM2}, 1.0, v{vTM2}")
    A(f"v_rcp_f32 v{vTM2}, v{vTM2}")
    A(f"v_mul_f32 v{vTM}, v{vTM}, v{vTM2}")
    A(f"v_cvt_pk_bf16_f32 v{vTM}, v{vTM}, v{vTM}")
    A("s_mov_b32 exec_hi, 0"); A(f"ds_write_b16 v{vR3}, v{vTM}"); A("s_mov_b32 exec_hi, -1")
    A("s_waitcnt lgkmcnt(0)"); A("s_barrier")
    for ks in range(2): A(f"ds_read2_b64 {Q4(vF+4*ks)}, v{vR4} offset0:{ks*8} offset1:{ks*8+4}")
    zreg = [vW1+4*t for t in range(7)]
    for ks in range(2):
        A(f"s_waitcnt lgkmcnt({1-ks})")
        for t in (0,2,4,6,1,3,5):
            A(f"v_mfma_f32_16x16x32_bf16 {Q4(zreg[t])}, {Q4(vF+4*ks)}, {Q4(vW2+28*ks+4*t)}, {'0' if ks==0 else Q4(zreg[t])}")
    for b in range(2): SEL4(vO+4*b, zreg[0]+b, zreg[2]+b, zreg[4]+b, zreg[6]+b, vMX)
    for b in range(2):
        SEL4(vO+4*b+2, zreg[1]+b, zreg[3]+b, zreg[5]+b, vZ, vMX)
        A(f"global_store_dwordx4 v{vR5 if b == 0 else vR0}, {Q4(vO+4*b)}, {pWS} {stf}")
    stamp(8)
    E.label("L_done")
    if diag:
        stamp(10)
        A("s_mov_b64 exec, -1")
        A(f"s_lshl_b32 {sT0}, {sWG}, 2"); A(f"s_add_u32 {sT0}, {sT0}, {sW}"); A(f"s_lshl_b32 {sT0}, {sT0}, 7"); A(f"s_add_u32 {sT0}, {sT0}, {WS_ST}")
        A("s_getreg_b32 s100, hwreg(HW_REG_XCC_ID)")
        A("s_waitcnt lgkmcnt(0)")
        A(f"v_mov_b32 v{vTM}, {sT0}")
        A("s_mov_b64 exec, 1")
        for k in range(11): A(f"v_mov_b32 v{vW1+k}, s{70+2*k}")
        A(f"v_mov_b32 v{vW1+11}, s100"); A(f"v_mov_b32 v{vW1+12}, {sN}"); A(f"v_mov_b32 v{vW1+13}, {sROLE}"); A(f"v_mov_b32 v{vW1+14}, {sID}"); A(f"v_mov_b32 v{vW1+15}, {sIDX}")
        for k in range(4): A(f"v_mov_b32 v{vW1+16+k}, s{92+2*k}")
        for q in range(5): A(f"global_store_dwordx4 v{vTM}, {Q4(vW1+4*q)}, {pWS} offset:{q*16}")
    E.label("L_end")
    A("s_endpgm")

    body = E.finish()
    head = open("sequential_preLN__gqa_block_cached__dense_activation_silu__decode.s.ref").read().split("; Override launch")[0]
    src = head + f"""; One persistent launch: 256 workgroups (one per CU); wave 0 streams K/V into an LDS ring, waves 1-4 compute.
; @launch grid=(256,1,1) block=(320,1,1) lds={LDS}
.amdgcn_target "amdgcn-amd-amdhsa--gfx950"
.text
.globl {NAME}
.p2align 8
.type {NAME},@function
{NAME}:
{body}.section .rodata,"a"
.p2align 6
.amdhsa_kernel {NAME}
  .amdhsa_next_free_vgpr 256
  .amdhsa_next_free_sgpr 102
  .amdhsa_accum_offset 256
  .amdhsa_group_segment_fixed_size 0
  .amdhsa_kernarg_size 88
  .amdhsa_user_sgpr_count 2
  .amdhsa_user_sgpr_kernarg_segment_ptr 1
  .amdhsa_system_sgpr_workgroup_id_x 1
.end_amdhsa_kernel
"""
    return src, E.npad

if __name__ == "__main__":
    out = sys.argv[1]
    kw = json.loads(sys.argv[2]) if len(sys.argv) > 2 else {}
    src, npad = gen(**kw)
    open(out, "w").write(src)
    print("wrote", out, "lines", src.count("\n"), "pad states", npad)
```

```python
import sys, json, struct
from emit import Emitter

NAME = "sequential_preLN__gqa_block_cached__dense_activation_silu__decode_kernel"
def f2u(x): return struct.unpack("<I", struct.pack("<f", x))[0]

def gen(W=20, NS=58, diag=False, pol="nt", hilo=False, spin=1<<20, enc=None, warm=0, pfcode=0, wo_end=0, WD=None, NF=5, M=192, enc2=0, enc3=0, ticket=0, force_ov=0, lay=4, tkdiag=0, enc4=0, fc1=1, qdepth=1, polwo='', ldst=None, warmat=0, qsleep=0, qwait=2, prew=0, prewf='sc1', prewn=2, khalf=0, outf='', nap=1):
    E = Emitter(); A = E
    if WD is None: WD = W
    if polwo is None: polwo = pol
    NSLOT = 9; SLOT = 16384; RING = NSLOT*SLOT
    L_LANDED = RING; L_CONS = RING+16; L_RED = RING+256; L_OP = RING+512; L_ACT = RING+768; L_QW = RING+1024; L_LN = RING+5120
    LDS = 163840
    WS_E = 0; WS_CNT = 0x1000; WS_H = 0x3000; WS_Q = 0x8000; WS_D = 0x40000; WS_A = 0x100000; WS_B = 0x200000; WS_ST = 0x400000
    C_SCALE = f2u(1.4426950408889634/16.0); LOG2E = f2u(1.4426950408889634); INV448 = f2u(1.0/448.0); EPS = f2u(1e-5)
    stf = ldf = "sc1"
    sWG="s2"; sWAVE="s3"
    pX="s[4:5]"; pK=(6,7); pV=(8,9); pWQ=(10,11); pWO=(12,13); pW1=(16,17); pW2=(18,19); pOUT="s[20:21]"; pWS="s[24:25]"
    sG="s26"; sJ="s27"; sROLE="s28"; sB="s29"; sHKV="s30"; sN="s31"; sSLOT="s32"; sKNOWN="s33"; sT0="s34"; sT1="s35"; sT2="s36"
    sCI="s37"; sSPIN="s38"; sIDX="s39"
    uid=[0]
    def lab(p): uid[0]+=1; return f"L_{p}_{uid[0]}"
    def stamp(k):
        if not diag and not (enc and k in (0, enc[0], enc[1])): return
        A(f"s_memrealtime s[{70+2*k}:{71+2*k}]")
    def slot_advance():
        A(f"s_add_u32 {sN}, {sN}, 1")
        A(f"s_add_u32 {sSLOT}, {sSLOT}, {SLOT}")
        A(f"s_cmp_eq_u32 {sSLOT}, {RING}")
        A(f"s_cselect_b32 {sSLOT}, 0, {sSLOT}")

    A(f"s_cmp_ge_u32 {sWG}, 256")
    A("s_cbranch_scc1 L_end")
    stamp(0)
    A("s_load_dwordx16 s[4:19], s[0:1], 0")
    A("s_load_dwordx4 s[20:23], s[0:1], 64")
    A("s_load_dwordx2 s[24:25], s[0:1], 80")
    A("v_lshrrev_b32 v1, 6, v0")
    A("v_and_b32 v0, 63, v0")
    A(f"v_readfirstlane_b32 {sWAVE}, v1")
    A(f"s_lshr_b32 {sG}, {sWG}, 4")
    A(f"s_and_b32 {sJ}, {sWG}, 15")
    A(f"s_sub_u32 {sROLE}, {sJ}, {sG}")
    A(f"s_and_b32 {sROLE}, {sROLE}, 15")
    A(f"s_lshr_b32 {sB}, {sG}, 3")
    A(f"s_and_b32 {sHKV}, {sG}, 7")
    A(f"s_mov_b32 {sN}, 0"); A(f"s_mov_b32 {sSLOT}, 0"); A(f"s_mov_b32 {sKNOWN}, 0"); A(f"s_mov_b32 {sCI}, 0")
    A(f"s_mov_b32 {sSPIN}, {spin}")
    A(f"s_sub_u32 {sT0}, {sROLE}, 8")
    A(f"s_lshl_b32 {sIDX}, {sG}, 1")
    A(f"s_add_u32 {sIDX}, {sIDX}, {sT0}")
    A(f"s_cmp_lt_u32 {sT0}, 2")
    A(f"s_cselect_b32 {sIDX}, {sIDX}, 99")
    A(f"v_lshlrev_b32 v1, 2, v0"); A(f"v_add_u32 v1, {L_LANDED}, v1"); A("v_mov_b32 v2, 0")
    A(f"s_mov_b64 exec, {14 if ticket else 6}"); A("v_mov_b32 v2, 0x7fffffff")
    A("s_mov_b64 exec, 0x1ff"); A("ds_write_b32 v1, v2"); A("s_mov_b64 exec, -1")
    A(f"s_cmp_lg_u32 {sWAVE}, 0")
    A("s_cbranch_scc1 L_consumer")

    vK=[4+i for i in range(8)]; vV=[12+i for i in range(4)]; vLIN=16; vTQ=[17,18]; vT1=[19,20]; vFL=21; vTMP=22; vC=24
    srdK="s[40:43]"; srdV="s[44:47]"; srdW="s[48:51]"; srdZ="s[52:55]"
    sCUR="s56"; sGB="s57"; sOFF="s58"; sCLM="s59"; sCOFF="s60"; sBASE="s61"; sFLOOR="s62"; sJ2="s68"
    A("s_setprio 3")
    A("v_lshrrev_b32 v1, 5, v0"); A("v_and_b32 v2, 31, v0")
    A("v_xor_b32 v3, v2, v1"); A("v_lshlrev_b32 v3, 4, v3"); A("v_lshl_or_b32 v3, v1, 9, v3")
    for i in range(8): A(f"v_xor_b32 v{vK[i]}, {i*32}, v3")
    A("v_lshlrev_b32 v3, 1, v1"); A("v_xor_b32 v3, v2, v3"); A("v_lshlrev_b32 v3, 4, v3"); A("v_lshl_or_b32 v3, v1, 9, v3")
    for i in range(4): A(f"v_xor_b32 v{vV[i]}, {i*64}, v3")
    A(f"v_lshlrev_b32 v{vLIN}, 4, v0")
    A("v_lshrrev_b32 v1, 3, v0"); A("v_and_b32 v2, 7, v0"); A("v_lshrrev_b32 v3, 3, v0"); A("v_and_b32 v3, 2, v3"); A("v_xor_b32 v2, v2, v3")
    A("v_lshlrev_b32 v2, 4, v2")
    A(f"v_lshl_or_b32 v{vTQ[0]}, v1, 13, v2"); A(f"v_xor_b32 v{vTQ[1]}, 64, v{vTQ[0]}")
    A(f"v_mul_u32_u24 v3, 3584, v1")
    A(f"v_add_u32 v{vT1[0]}, v3, v2"); A("v_xor_b32 v2, 64, v2"); A(f"v_add_u32 v{vT1[1]}, v3, v2")
    A(f"v_mov_b32 v{vFL}, {L_LANDED}")
    A(f"s_mov_b32 {sFLOOR}, 0")
    sXC="s66"; sTK="s67"
    A(f"s_getreg_b32 {sXC}, hwreg(HW_REG_XCC_ID)"); A(f"s_and_b32 {sXC}, {sXC}, {7 & ~force_ov}")
    A(f"s_lshl_b32 {sT0}, {sXC}, 5"); A(f"s_mov_b32 {sTK}, 1")
    A("s_waitcnt lgkmcnt(0)")
    if tkdiag: A("s_memrealtime s[92:93]"); A("s_waitcnt lgkmcnt(0)")
    if ticket: A(f"s_atomic_add {sTK}, s[22:23], {sT0} glc")
    if tkdiag: A("s_waitcnt lgkmcnt(0)"); A("s_memrealtime s[94:95]"); A("s_waitcnt lgkmcnt(0)"); A("s_sub_u32 s94, s94, s92"); A("s_sub_u32 s92, s92, s70")
    A(f"s_mov_b32 s40, s{pK[0]}"); A(f"s_mov_b32 s41, s{pK[1]}"); A("s_mov_b32 s42, 0x10000000"); A("s_mov_b32 s43, 0x20000")
    A(f"s_mov_b32 s44, s{pV[0]}"); A(f"s_mov_b32 s45, s{pV[1]}"); A("s_mov_b32 s46, 0x10000000"); A("s_mov_b32 s47, 0x20000")
    A(f"s_mov_b32 s52, s{pK[0]}"); A(f"s_mov_b32 s53, s{pK[1]}"); A("s_mov_b32 s54, 0"); A("s_mov_b32 s55, 0x20000")
    A("s_mov_b32 s51, 0x20000")
    A("s_barrier")
    def pub_reg():
        A("s_mov_b64 exec, 1"); A(f"ds_write_b32 v{vFL}, v{vTMP}"); A("s_mov_b64 exec, -1")
    def publish(back):
        A(f"s_sub_u32 {sT0}, {sN}, {back}"); A(f"s_max_i32 {sT0}, {sT0}, {sFLOOR}")
        A(f"v_mov_b32 v{vTMP}, {sT0}"); pub_reg()
    def throttle(i, w):
        assert w in (16,20,24,28,32)
        if i % 4 == 3:
            A(f"s_waitcnt vmcnt({w})")
            if w == 16:
                if i == 15: publish(0)
            elif i//4 == (w-16)//4 - 1: publish(1)
    def tile_rows(specs, w, pol=pol):
        for i,(srd,vo,so) in enumerate(specs):
            if i % 4 == 0:
                A(f"s_add_u32 m0, {sSLOT}, {i*1024}" if i else f"s_mov_b32 m0, {sSLOT}")
                A(f"s_add_u32 {sOFF}, {sBASE}, {so}")
            A(f"buffer_load_dwordx4 v{vo}, {srd}, {sOFF} offen offset:{(i%4)*1024} {pol} lds")
            throttle(i, w)
        slot_advance()
    def tile_tall(voffs, rowstride, t, nvalid):
        for i in range(16):
            A(f"s_add_u32 m0, {sSLOT}, {i*1024}" if i else f"s_mov_b32 m0, {sSLOT}")
            A(f"s_add_u32 {sOFF}, {sBASE}, {(t*128+i*8)*rowstride}")
            A(f"buffer_load_dwordx4 v{voffs[i&1]}, {srdW if i < nvalid else srdZ}, {sOFF} offen {pol} lds")
            throttle(i, W)
        slot_advance()
    def tile_wide(t, w=W, pol=pol): tile_rows([(srdW if i < 14 else srdZ, vLIN, t*14336+i*1024) for i in range(16)], w, pol)
    def freecheck(k):
        ok = lab("free"); lp = lab("freepoll")
        A(f"s_add_u32 {sT1}, {sN}, {k}")
        A(f"s_add_u32 {sT0}, {sKNOWN}, {NSLOT}")
        A(f"s_cmp_ge_u32 {sT0}, {sT1}"); A(f"s_cbranch_scc1 {ok}")
        E.label(lp)
        A(f"ds_read_b128 v[{vC}:{vC+3}], v{vFL} offset:16")
        A(f"s_sub_u32 {sSPIN}, {sSPIN}, 1"); A("s_cbranch_scc1 L_end")
        A("s_waitcnt lgkmcnt(0)")
        A(f"v_min3_u32 v{vC}, v{vC}, v{vC+1}, v{vC+2}"); A(f"v_min_u32 v{vC}, v{vC}, v{vC+3}")
        A(f"v_readfirstlane_b32 {sKNOWN}, v{vC}")
        A(f"s_add_u32 {sT0}, {sKNOWN}, {NSLOT}")
        A(f"s_cmp_ge_u32 {sT0}, {sT1}"); A(f"s_cbranch_scc1 {ok}")
        A("s_sleep 1")
        A(f"s_branch {lp}")
        E.label(ok)
    def setW(p, nbytes):
        A(f"s_mov_b32 s48, s{p[0]}"); A(f"s_mov_b32 s49, s{p[1]}"); A(f"s_mov_b32 s50, {nbytes}")
    A(f"s_cmp_ge_u32 {sROLE}, 4"); A("s_cbranch_scc1 L_ld_noq")
    setW(pWQ, 448*4096*2)
    A(f"s_lshl_b32 {sBASE}, {sHKV}, 10"); A(f"s_lshl_b32 {sT0}, {sB}, 2"); A(f"s_add_u32 {sT0}, {sT0}, {sROLE}"); A(f"s_lshl_b32 {sT0}, {sT0}, 7")
    A(f"s_add_u32 {sBASE}, {sBASE}, {sT0}")
    for i in range(56):
        A(f"s_mov_b32 m0, {i*1024}")
        A(f"s_add_u32 {sOFF}, {sBASE}, {i*8*8192}")
        A(f"buffer_load_dwordx4 v{vTQ[i&1]}, {srdW}, {sOFF} offen {pol} lds")
    for k,c in enumerate((40,24,8,0)):
        A(f"s_waitcnt vmcnt({c})"); A(f"v_mov_b32 v{vTMP}, {k+1}"); pub_reg()
    A(f"s_mov_b32 {sN}, 4"); A(f"s_mov_b32 {sSLOT}, {4*SLOT}"); A(f"s_mov_b32 {sFLOOR}, 4")
    E.label("L_ld_noq")
    def wo_base():
        setW(pWO, 4096*448*2)
        A(f"s_lshl_b32 {sT0}, {sHKV}, 4"); A(f"s_add_u32 {sT0}, {sT0}, {sJ}"); A(f"s_mul_i32 {sBASE}, {sT0}, {32*896}")
    if not wo_end:
        wo_base()
        for t in range(2): tile_wide(t, pol=polwo)
    A(f"s_cmp_ge_u32 {sIDX}, 28"); A(f"s_cbranch_scc1 L_ld_noffn")
    setW(pW1, 448*1792*2)
    A(f"s_lshl_b32 {sBASE}, {sIDX}, 7")
    for t in range(4):
        if t % 2 == 0: freecheck(2)
        tile_tall(vT1, 3584, t, 16 if t < 3 else 8)
    setW(pW2, 1792*448*2)
    A(f"s_mul_i32 {sBASE}, {sIDX}, {64*896}")
    for t in range(4):
        if t % 2 == 0: freecheck(2)
        tile_wide(t)
    E.label("L_ld_noffn")
    if ticket:
        A("s_waitcnt lgkmcnt(0)")
        A(f"s_cmp_lt_u32 {sTK}, 32"); A("s_cbranch_scc1 L_id_ok")
        A(f"s_mov_b32 {sT2}, 1"); A(f"s_atomic_add {sT2}, s[22:23], 4 glc")
        E.label("L_id_spin")
        for x in range(8): A(f"s_mov_b32 s{72+x}, 0")
        for x in range(8): A(f"s_atomic_add s{72+x}, s[22:23], {32*x} glc")
        A(f"s_sub_u32 {sSPIN}, {sSPIN}, 1"); A("s_cbranch_scc1 L_end")
        A("s_waitcnt lgkmcnt(0)")
        A(f"s_add_u32 {sT0}, s72, s73")
        for x in range(2,8): A(f"s_add_u32 {sT0}, {sT0}, s{72+x}")
        A(f"s_cmp_lg_u32 {sT0}, 256"); A("s_cbranch_scc1 L_id_spin")
        for x in range(8):
            A(f"s_mov_b32 {sXC}, {x}"); A(f"s_add_u32 {sTK}, s{72+x}, {sT2}")
            A(f"s_cmp_lt_u32 {sTK}, 32"); A("s_cbranch_scc1 L_id_ok")
            A(f"s_min_u32 {sT0}, s{72+x}, 32"); A(f"s_sub_u32 {sT0}, 32, {sT0}"); A(f"s_sub_u32 {sT2}, {sT2}, {sT0}")
        A("s_branch L_end")
        E.label("L_id_ok")
        A(f"s_lshr_b32 {sG}, {sTK}, 1"); A(f"s_and_b32 {sJ2}, {sTK}, 1"); A(f"s_lshl_b32 {sJ2}, {sJ2}, 3"); A(f"s_add_u32 {sJ2}, {sJ2}, {sXC}")
    else:
        A(f"s_mov_b32 {sJ2}, {sJ}")
    assert not (ticket and khalf) and not (wo_end and khalf)
    if ticket:
        A(f"s_lshl_b32 {sT0}, {sG}, 4"); A(f"s_add_u32 {sT0}, {sT0}, {sJ2}")
        A(f"v_mov_b32 v{vTMP}, {sT0}")
        A("s_mov_b64 exec, 1"); A(f"ds_write_b32 v{vFL}, v{vTMP} offset:12"); A("s_mov_b64 exec, -1")
    A(f"s_lshl_b32 {sGB}, {sG}, 24")
    if lay == 0: A(f"s_mul_i32 {sCUR}, {sJ2}, {2*NS}")
    elif lay in (1,3,4): A(f"s_lshl_b32 {sCUR}, {sJ2}, 7")
    else: A(f"s_lshl_b32 {sCUR}, {sJ2}, 1")
    A(f"s_lshl_b32 {sCOFF}, {sG}, 8"); A(f"s_add_u32 {sCOFF}, {sCOFF}, {WS_CNT}")
    vCA=28; vONE=29; vCL=[30,31]
    def vclaim_issue(p):
        A("s_mov_b64 exec, 1"); A(f"global_atomic_add v{vCL[p]}, v{vCA}, v{vONE}, {pWS} sc0"); A("s_mov_b64 exec, -1")
    A(f"v_mov_b32 v{vCA}, {sCOFF}"); A(f"v_mov_b32 v{vONE}, 1")
    POOL = 2048-32*NS; TH = max(POOL-M, 0); sLAST="s63"; vTWO=23
    assert WD <= 32 and W <= 32
    A(f"v_mov_b32 v{vTWO}, 2"); A(f"s_mov_b32 {sLAST}, {1 if TH == 0 else 0}")
    def pub_word(off, sreg):
        A(f"v_mov_b32 v{vTMP}, {sreg}")
        A("s_mov_b64 exec, 1"); A(f"ds_write_b32 v{vFL}, v{vTMP} offset:{off}"); A("s_mov_b64 exec, -1")
    E.label("L_ld_loop")
    if diag:
        for k,c in enumerate(ldst or (0,2,3,4,6,8,16,32,NS-1)):
            sk=lab("ls"); A(f"s_cmp_lg_u32 {sCI}, {c}"); A(f"s_cbranch_scc1 {sk}"); A(f"s_memrealtime s[{72+2*k}:{73+2*k}]"); A("s_waitcnt lgkmcnt(0)"); E.label(sk)
    freecheck(1 if fc1 else 2)
    A(f"s_add_u32 {sCI}, {sCI}, 1")
    A(f"s_cmp_lt_u32 {sCI}, {NS}"); A("s_cbranch_scc1 L_ld_noclaim")
    A(f"s_cmp_eq_u32 {sLAST}, 0"); A("s_cbranch_scc0 L_ld_last")
    A("s_mov_b64 exec, 1"); A(f"global_atomic_add v{vCL[0]}, v{vCA}, v{vTWO}, {pWS} sc0"); A("s_mov_b64 exec, -1")
    A("s_branch L_ld_noclaim")
    E.label("L_ld_last")
    A(f"s_add_u32 {sT0}, {sN}, 2"); pub_word(8, sT0)
    vclaim_issue(0)
    E.label("L_ld_noclaim")
    A(f"s_lshl_b32 {sBASE}, {sCUR}, 13"); A(f"s_add_u32 {sBASE}, {sBASE}, {sGB}")
    tile_rows([(srdK, vK[i%8], i*1024) for i in range(16)], W)
    A(f"s_cmp_lt_u32 {sCI}, {NS}"); A("s_cbranch_scc1 L_ld_noclaim2")
    A(f"s_cmp_eq_u32 {sLAST}, 0"); A("s_cbranch_scc1 L_ld_noclaim2")
    vclaim_issue(1)
    E.label("L_ld_noclaim2")
    if fc1: freecheck(1)
    tile_rows([(srdV, vV[i%4], i*1024) for i in range(16)], W)
    if lay == 2:
        A(f"s_add_u32 {sT0}, {sJ2}, {sCI}"); A(f"s_and_b32 {sT0}, {sT0}, 15"); A(f"s_lshl_b32 {sCUR}, {sCI}, 4"); A(f"s_add_u32 {sCUR}, {sCUR}, {sT0}"); A(f"s_lshl_b32 {sCUR}, {sCUR}, 1")
    else: A(f"s_add_u32 {sCUR}, {sCUR}, 2")
    A(f"s_cmp_lt_u32 {sCI}, {NS}"); A("s_cbranch_scc1 L_ld_loop")
    A(f"s_cmp_eq_u32 {sLAST}, 0"); A("s_cbranch_scc0 L_ld_mini")
    A(f"v_readfirstlane_b32 {sCLM}, v{vCL[0]}")
    A(f"s_add_u32 {sCUR}, {sCLM}, {32*NS}")
    A(f"s_cmp_ge_u32 {sCLM}, {TH}"); A(f"s_cselect_b32 {sLAST}, 1, 0")
    A(f"s_cmp_lt_u32 {sCLM}, {POOL-1}"); A("s_cbranch_scc1 L_ld_loop")
    pub_word(8, sN)
    A(f"v_mov_b32 v{vCL[1]}, {POOL}")
    E.label("L_ld_mini")
    if pfcode:
        A("s_getpc_b64 s[64:65]")
        E.label("L_pc")
        A("s_add_u32 s64, s64, L_fin-L_pc"); A("s_addc_u32 s65, s65, 0")
        A(f"v_lshlrev_b32 v47, 6, v0"); A("v_min_u32 v47, L_end-L_fin, v47")
        A("global_load_dword v48, v47, s[64:65]")
    E.label("L_ld_dyn")
    for p in range(2):
        A(f"v_readfirstlane_b32 {sCLM}, v{vCL[p]}")
        A(f"s_cmp_ge_u32 {sCLM}, {POOL}"); A("s_cbranch_scc1 L_ld_dyn_done")
        if lay == 1:
            assert TH == 0
            A(f"s_and_b32 {sCUR}, {sCLM}, 15"); A(f"s_lshl_b32 {sCUR}, {sCUR}, 7"); A(f"s_lshr_b32 {sT0}, {sCLM}, 4"); A(f"s_add_u32 {sCUR}, {sCUR}, {sT0}"); A(f"s_add_u32 {sCUR}, {sCUR}, {2*NS}")
        elif lay == 3:
            assert TH == 0
            A(f"s_bfe_u32 {sCUR}, {sCLM}, 0x40001"); A(f"s_lshl_b32 {sCUR}, {sCUR}, 7"); A(f"s_lshr_b32 {sT0}, {sCLM}, 5"); A(f"s_lshl_b32 {sT0}, {sT0}, 1"); A(f"s_add_u32 {sCUR}, {sCUR}, {sT0}")
            A(f"s_and_b32 {sT0}, {sCLM}, 1"); A(f"s_add_u32 {sCUR}, {sCUR}, {sT0}"); A(f"s_add_u32 {sCUR}, {sCUR}, {2*NS}")
        elif lay == 4:
            assert TH == 0
            TL = 128-2*NS
            A(f"s_mul_hi_u32 {sT0}, {sCLM}, {-(-(1<<32)//TL)}"); A(f"s_mul_i32 {sT0}, {sT0}, {2*NS}"); A(f"s_add_u32 {sCUR}, {sCLM}, {sT0}"); A(f"s_add_u32 {sCUR}, {sCUR}, {2*NS}")
        else: A(f"s_add_u32 {sCUR}, {sCLM}, {32*NS}")
        freecheck(1)
        vclaim_issue(p)
        A(f"s_lshl_b32 {sBASE}, {sCUR}, 13"); A(f"s_add_u32 {sBASE}, {sBASE}, {sGB}")
        tile_rows([(srdK, vK[i], i*1024) for i in range(8)] + [(srdV, vV[i%4], i*1024) for i in range(8)], WD)
    A("s_branch L_ld_dyn")
    E.label("L_ld_dyn_done")
    A(f"v_mov_b32 v{vTMP}, {sN}")
    A("s_mov_b64 exec, 1"); A(f"ds_write_b32 v{vFL}, v{vTMP} offset:4"); A("s_mov_b64 exec, -1")
    if wo_end:
        wo_base(); freecheck(2)
        for t in range(2):
            for i in range(14):
                if i % 4 == 0:
                    A(f"s_add_u32 m0, {sSLOT}, {i*1024}" if i else f"s_mov_b32 m0, {sSLOT}")
                    A(f"s_add_u32 {sOFF}, {sBASE}, {t*14336+i*1024}")
                A(f"buffer_load_dwordx4 v{vLIN}, {srdW}, {sOFF} offen offset:{(i%4)*1024} {pol} lds")
            slot_advance()
        for c,back in ((44,3),(28,2),(14,1),(0,0)):
            A(f"s_waitcnt vmcnt({c})"); publish(back)
    else:
        A("s_waitcnt vmcnt(16)"); publish(1)
        if khalf:
            A("s_waitcnt vmcnt(8)"); pub_word(12, sN)
        A("s_waitcnt vmcnt(0)"); publish(0)
    if diag:
        A("s_mov_b64 exec, 1")
        A("s_memrealtime s[90:91]")
        A(f"s_lshl_b32 {sT0}, {sWG}, 6"); A(f"s_add_u32 {sT0}, {sT0}, {WS_ST+0x40000}"); A(f"v_mov_b32 v46, {sT0}")
        A("s_waitcnt lgkmcnt(0)")
        for k in range(11): A(f"v_mov_b32 v{32+k}, s{70+2*k}")
        A(f"v_mov_b32 v43, {sSPIN}")
        if tkdiag:
            A("v_mov_b32 v44, s92"); A("v_mov_b32 v45, s94"); A(f"global_store_dwordx2 v46, v[44:45], {pWS} offset:48")
        for q in range(3): A(f"global_store_dwordx4 v46, v[{32+4*q}:{35+4*q}], {pWS} offset:{q*16}")
    A("s_waitcnt lgkmcnt(0)")
    A("s_endpgm")

    E.label("L_consumer")
    sW="s40"; sTAG="s41"; sM1="s[42:43]"; sM2="s[44:45]"; sC="s46"; sE="s47"; sRR="s48"; sTOT="s49"
    sCK=["s[50:51]","s[52:53]","s[54:55]","s[56:57]"]; sCOL="s58"; sGP="s59"; sSWI="s60"; sID="s61"
    vLANE=0; vN=1; vG4=2; vFLG=3; vCONS=4; vTM=5; vTM2=6; vTM3=7
    vM=8; vMC=9; vL=10; vMX=11
    vKB=[12,13,14,15]; vVB=[16,17,18,19]; vAD=[20,21,22,23]
    vS=24; vP=32; vO=36; vQ=52; vF=84
    vAA=104; vAI=105; vBA=106; vPOLL=None
    assert NF <= 5
    vWO=108; vW1=136; vW2=192; vX=248; vXH=254
    def P(r): return f"v[{r}:{r+1}]"
    def Q4(r): return f"v[{r}:{r+3}]"
    def SEL4(dst, a, b, c, d, t):
        A(f"v_cndmask_b32 v{dst}, v{a}, v{b}, {sM1}"); A(f"v_cndmask_b32 v{t}, v{c}, v{d}, {sM1}"); A(f"v_cndmask_b32 v{dst}, v{dst}, v{t}, {sM2}")
    def xrow(op, regs, tmps):
        for sw in ("v_permlane16_swap_b32","v_permlane32_swap_b32"):
            for r,t in zip(regs,tmps): A(f"v_mov_b32 v{t}, v{r}")
            for r,t in zip(regs,tmps): A(f"{sw} v{r}, v{t}")
            for r,t in zip(regs,tmps): A(f"{op} v{r}, v{r}, v{t}")
    def round_bf(dst, src):
        A(f"v_cvt_pk_bf16_f32 v{dst}, v{src}, v{src}"); A(f"v_and_b32 v{dst}, 0xffff0000, v{dst}")
    def unpack(lo, hi, src):
        A(f"v_lshlrev_b32 v{lo}, 16, v{src}"); A(f"v_and_b32 v{hi}, 0xffff0000, v{src}")
    def pub_cons():
        slot_advance()
        A(f"v_mov_b32 v{vTM}, {sN}")
        A("s_mov_b64 exec, 1"); A(f"ds_write_b32 v{vCONS}, v{vTM}"); A("s_mov_b64 exec, -1")
    def wait_tile(fin=None, lim=None, half=False, nap=True):
        ok = lab("have"); lp = lab("poll")
        if fin: A(f"s_cmp_eq_u32 {lim}, {sN}"); A(f"s_cbranch_scc1 {fin}")
        A(f"s_cmp_gt_u32 {sKNOWN}, {sN}"); A(f"s_cbranch_scc1 {ok}")
        E.label(lp)
        A(f"ds_read_b128 {Q4(vAD[0])}, v{vFLG}")
        A(f"s_sub_u32 {sSPIN}, {sSPIN}, 1"); A("s_cbranch_scc1 L_end")
        A("s_waitcnt lgkmcnt(0)")
        A(f"v_readfirstlane_b32 {sKNOWN}, v{vAD[0]}"); A(f"v_readfirstlane_b32 {sTOT}, v{vAD[1]}"); A(f"v_readfirstlane_b32 {sSWI}, v{vAD[2]}")
        if fin: A(f"s_cmp_eq_u32 {lim}, {sN}"); A(f"s_cbranch_scc1 {fin}")
        A(f"s_cmp_gt_u32 {sKNOWN}, {sN}"); A(f"s_cbranch_scc1 {ok}")
        if half:
            A(f"v_readfirstlane_b32 {sT0}, v{vAD[3]}"); A(f"s_cmp_gt_u32 {sT0}, {sN}"); A(f"s_cbranch_scc1 {ok}")
        if nap: A("s_sleep 1")
        A(f"s_branch {lp}")
        E.label(ok)
    def poll(loads, tags, first_mask=None):
        lp = lab("gpoll"); n = len(loads)
        for i in range(n): A(f"s_mov_b64 {sCK[i]}, {first_mask[i] if first_mask else -1}")
        E.label(lp)
        for i,l in enumerate(loads):
            sk = lab("sk")
            A(f"s_mov_b64 exec, {sCK[i]}"); A(f"s_cbranch_execz {sk}"); A(l); E.label(sk)
        A("s_mov_b64 exec, -1")
        A(f"s_sub_u32 {sSPIN}, {sSPIN}, 1"); A("s_cbranch_scc1 L_end")
        A("s_waitcnt vmcnt(0)")
        for i in range(n):
            A(f"v_cmp_ne_u32 {sCK[i]}, {sTAG}, v{tags[i][0]}")
            for t in tags[i][1:]:
                A(f"v_cmp_ne_u32 vcc, {sTAG}, v{t}"); A(f"s_or_b64 {sCK[i]}, {sCK[i]}, vcc")
        A(f"s_or_b64 vcc, {sCK[0]}, {sCK[min(1,n-1)]}")
        for i in range(2, n): A(f"s_or_b64 vcc, vcc, {sCK[i]}")
        A(f"s_cbranch_scc1 {lp}")
    def layernorm(xr, f, lnbase, stride):
        s1=vTM; t=vTM2; mu=vX; a=vX+2; b=vX+4
        for u in range(7): unpack(f+2*u, f+2*u+1, xr[u])
        A(f"v_pk_add_f32 {P(a)}, {P(f)}, {P(f+2)}"); A(f"v_pk_add_f32 {P(b)}, {P(f+4)}, {P(f+6)}")
        A(f"v_pk_add_f32 {P(a)}, {P(a)}, {P(f+8)}"); A(f"v_pk_add_f32 {P(b)}, {P(b)}, {P(f+10)}")
        A(f"v_pk_add_f32 {P(a)}, {P(a)}, {P(f+12)}"); A(f"v_pk_add_f32 {P(a)}, {P(a)}, {P(b)}")
        A(f"v_add_f32 v{s1}, v{a}, v{a+1}")
        def red32(r):
            for k in (8,4,2,1): A(f"v_add_f32_dpp v{r}, v{r}, v{r} row_ror:{k} row_mask:0xf bank_mask:0xf")
            A(f"v_mov_b32 v{t}, v{r}"); A(f"v_permlane16_swap_b32 v{r}, v{t}"); A(f"v_add_f32 v{r}, v{r}, v{t}")
        red32(s1)
        A(f"v_mul_f32 v{mu}, {INV448:#x}, v{s1}")
        NEG = "op_sel_hi:[1,0] neg_lo:[0,1] neg_hi:[0,1]"
        A(f"v_pk_add_f32 {P(b)}, {P(f)}, {P(mu)} {NEG}")
        A(f"v_pk_mul_f32 {P(a)}, {P(b)}, {P(b)}")
        for u in range(1,7):
            A(f"v_pk_add_f32 {P(b)}, {P(f+2*u)}, {P(mu)} {NEG}")
            A(f"v_pk_fma_f32 {P(a)}, {P(b)}, {P(b)}, {P(a)}")
        A(f"v_add_f32 v{s1}, v{a}, v{a+1}")
        round_bf(mu, mu)
        fill = [f"v_pk_add_f32 {P(f+2*u)}, {P(f+2*u)}, {P(mu)} {NEG}" for u in range(7)] + [f"v_cvt_pk_bf16_f32 v{xr[u]}, v{f+2*u}, v{f+2*u+1}" for u in range(7)]
        for u in range(7): fill += [f"v_lshlrev_b32 v{f+2*u}, 16, v{xr[u]}", f"v_and_b32 v{f+2*u+1}, 0xffff0000, v{xr[u]}"]
        chain = [f"v_add_f32_dpp v{s1}, v{s1}, v{s1} row_ror:{k} row_mask:0xf bank_mask:0xf" for k in (8,4,2,1)]
        chain += [f"v_mov_b32 v{t}, v{s1}", f"v_permlane16_swap_b32 v{s1}, v{t}", f"v_add_f32 v{s1}, v{s1}, v{t}",
                  f"v_mul_f32 v{s1}, {INV448:#x}, v{s1}", f"v_cvt_pk_bf16_f32 v{s1}, v{s1}, v{s1}", f"v_and_b32 v{s1}, 0xffff0000, v{s1}",
                  f"v_add_f32 v{s1}, {EPS:#x}, v{s1}", f"v_cvt_pk_bf16_f32 v{s1}, v{s1}, v{s1}", f"v_and_b32 v{s1}, 0xffff0000, v{s1}",
                  f"v_sqrt_f32 v{s1}, v{s1}", f"v_cvt_pk_bf16_f32 v{s1}, v{s1}, v{s1}", f"v_and_b32 v{s1}, 0xffff0000, v{s1}", f"v_rcp_f32 v{a}, v{s1}"]
        while chain or fill:
            for _ in range(2):
                if fill: A(fill.pop(0))
            if chain: A(chain.pop(0))
        for u in range(7): A(f"v_pk_mul_f32 {P(f+2*u)}, {P(f+2*u)}, {P(a)} op_sel_hi:[1,0]")
        for u in range(7):
            A(f"v_cvt_pk_bf16_f32 v{xr[u]}, v{f+2*u}, v{f+2*u+1}")
            A(f"ds_write_b32 v{lnbase}, v{xr[u]} offset:{u*stride}")
    def ln_read_addr(rd, base):
        A(f"v_and_b32 v{rd}, 1, v{vLANE}"); A(f"v_mul_u32_u24 v{rd}, 896, v{rd}")
        A(f"v_lshl_add_u32 v{rd}, v{vG4}, 4, v{rd}"); A(f"v_add_u32 v{rd}, {base}, v{rd}")
    def tall_addr(dst):
        A(f"v_lshrrev_b32 v{vTM}, 3, v{vN}")
        A(f"v_and_b32 v{vTM2}, 1, v{vG4}"); A(f"v_lshl_or_b32 v{vTM}, v{vTM2}, 1, v{vTM}")
        A(f"v_xor_b32 v{vTM}, {sW}, v{vTM}"); A(f"v_lshlrev_b32 v{vTM}, 5, v{vTM}")
        A(f"v_and_b32 v{vTM2}, 3, v{vN}"); A(f"v_lshl_or_b32 v{vTM}, v{vTM2}, 3, v{vTM}")
        A(f"v_lshrrev_b32 v{vTM2}, 2, v{vN}"); A(f"v_lshl_or_b32 v{vTM}, v{vTM2}, 7, v{vTM}")
        A(f"v_lshl_or_b32 v{dst}, v{vG4}, 10, v{vTM}")
    def wide_addr(dst):
        A(f"v_lshrrev_b32 v{vTM}, 2, v{vN}"); A(f"v_lshl_add_u32 v{vTM}, v{vG4}, 2, v{vTM}"); A(f"v_mul_u32_u24 v{vTM}, 896, v{vTM}")
        A(f"v_and_b32 v{vTM2}, 3, v{vN}"); A(f"v_lshl_add_u32 v{vTM}, v{vTM2}, 3, v{vTM}")
        A(f"s_mul_i32 {sT0}, {sW}, 224"); A(f"v_add_u32 v{dst}, {sT0}, v{vTM}")
    def read_tall_tile(base, dstreg, t):
        wait_tile()
        A(f"v_add_u32 v{vAD[0]}, {sSLOT}, v{base}")
        for s in range(4 if t < 3 else 2):
            for h2 in range(2):
                A(f"ds_read_b64_tr_b16 {P(dstreg + 4*(4*t+s) + 2*h2)}, v{vAD[0]} offset:{s*4096+h2*512}")
        A("s_waitcnt lgkmcnt(0)")
        pub_cons()
    def read_wide_tile(base, dstreg, half):
        wait_tile()
        A(f"v_add_u32 v{vAD[0]}, {sSLOT}, v{base}")
        for tt in range(7): A(f"ds_read_b64_tr_b16 {P(dstreg + 4*tt + 2*half)}, v{vAD[0]} offset:{tt*32}")
        A("s_waitcnt lgkmcnt(0)")
        pub_cons()
    def msg_lane_addr(dst, per_rr_shift):
        A(f"v_lshrrev_b32 v{vTM}, 3, v{vLANE}"); A(f"v_lshlrev_b32 v{vTM}, {per_rr_shift}, v{vTM}")
        A(f"v_and_b32 v{vTM2}, 7, v{vLANE}"); A(f"v_lshl_or_b32 v{dst}, v{vTM2}, 4, v{vTM}")

    A(f"s_sub_u32 {sW}, {sWAVE}, 1")
    A(f"v_and_b32 v{vN}, 15, v{vLANE}"); A(f"v_lshrrev_b32 v{vG4}, 4, v{vLANE}")
    A(f"v_mov_b32 v{vFLG}, {L_LANDED}")
    A(f"s_lshl_b32 {sT0}, {sW}, 2"); A(f"s_add_u32 {sT0}, {sT0}, {L_CONS}"); A(f"v_mov_b32 v{vCONS}, {sT0}")
    A("s_mov_b32 s42, 0xffff0000"); A("s_mov_b32 s43, 0xffff0000"); A("s_mov_b32 s44, 0"); A("s_mov_b32 s45, -1")
    A(f"s_mov_b32 {sC}, {C_SCALE:#x}"); A("s_mov_b32 s66, -1"); A("s_mov_b32 s67, 0"); A(f"s_mov_b32 {sTOT}, 0x7fffffff"); A(f"s_mov_b32 {sSWI}, 0x7fffffff")
    if hilo: A("s_mov_b32 s64, 0xcccccccc"); A("s_mov_b32 s65, 0xcccccccc")
    A(f"s_sub_u32 {sT0}, {sROLE}, 4"); A(f"s_lshl_b32 {sRR}, {sG}, 2"); A(f"s_add_u32 {sRR}, {sRR}, {sT0}")
    A(f"s_cmp_lt_u32 {sT0}, 4"); A(f"s_cselect_b32 {sRR}, {sRR}, 99")
    A(f"s_bfe_u32 {sT0}, {sRR}, 0x20003"); A(f"s_mul_i32 {sCOL}, {sT0}, 224")
    A(f"s_bfe_u32 {sGP}, {sRR}, 0x20001"); A(f"s_lshl_b32 {sT0}, {sGP}, 6"); A(f"s_add_u32 {sCOL}, {sCOL}, {sT0}")
    A(f"s_and_b32 {sT0}, {sRR}, 1"); A(f"s_lshl_b32 {sT0}, {sT0}, 4"); A(f"s_add_u32 {sCOL}, {sCOL}, {sT0}")
    A(f"s_bfe_u32 {sT0}, {sRR}, 0x10005"); A(f"s_mul_i32 {sT0}, {sT0}, 896"); A(f"s_add_u32 {sCOL}, {sCOL}, {sT0}")
    A("s_waitcnt lgkmcnt(0)")
    A(f"s_load_dword {sE}, {pWS}, {WS_E}")
    A("s_barrier")
    stamp(11)
    A(f"s_cmp_ge_u32 {sRR}, 64"); A("s_cbranch_scc1 L_nox")
    A(f"v_and_b32 v{vTM}, 6, v{vLANE}"); A(f"v_lshl_add_u32 v{vTM}, v{vTM}, 1, {sCOL}")
    A(f"global_load_dword v{vXH}, v{vTM}, {pX}")
    A(f"v_mov_b32 v{vXH+1}, 0")
    A(f"s_cmp_eq_u32 {sGP}, 3"); A("s_cbranch_scc1 L_nox")
    A(f"global_load_dword v{vXH+1}, v{vTM}, {pX} offset:32")
    E.label("L_nox")
    A(f"v_xor_b32 v{vTM}, v{vG4}, v{vN}"); A(f"v_lshlrev_b32 v{vTM}, 4, v{vTM}"); A(f"v_lshl_or_b32 v{vTM}, v{vN}, 9, v{vTM}")
    for s in range(4): A(f"v_xor_b32 v{vKB[s]}, {s*64}, v{vTM}")
    A(f"v_lshrrev_b32 v{vTM}, 2, v{vN}"); A(f"v_lshl_add_u32 v{vTM}, v{vG4}, 2, v{vTM}")
    A(f"v_and_b32 v{vTM2}, 7, v{vTM}")
    A(f"s_lshl_b32 {sT0}, {sW}, 2"); A(f"v_xor_b32 v{vTM2}, {sT0}, v{vTM2}"); A(f"v_lshlrev_b32 v{vTM2}, 5, v{vTM2}")
    A(f"v_lshl_or_b32 v{vTM}, v{vTM}, 9, v{vTM2}")
    A(f"v_and_b32 v{vTM2}, 3, v{vN}"); A(f"v_lshl_or_b32 v{vTM}, v{vTM2}, 3, v{vTM}")
    for e in range(4): A(f"v_xor_b32 v{vVB[e]}, {e*32}, v{vTM}")
    A(f"v_mov_b32 v{vM}, 0xff800000"); A(f"v_mov_b32 v{vMC}, 0xff800000"); A(f"v_mov_b32 v{vL}, 0")
    for i in range(16): A(f"v_mov_b32 v{vO+i}, 0")
    A(f"s_lshl_b32 {sT0}, {sWG}, 12"); A(f"s_add_u32 {sT0}, {sT0}, {WS_A}")
    A(f"v_lshlrev_b32 v{vAI}, 4, v{vN}"); A(f"v_lshl_or_b32 v{vAI}, v{vG4}, 10, v{vAI}"); A(f"v_add_u32 v{vAI}, {sT0}, v{vAI}")
    A(f"s_lshl_b32 {sT0}, {sB}, 2"); A(f"s_add_u32 {sT0}, {sT0}, {sW}"); A(f"s_lshl_b32 {sT0}, {sT0}, 10")
    A(f"s_and_b32 {sT1}, {sWG}, 127"); A(f"s_add_u32 {sT0}, {sT0}, {sT1}"); A(f"s_lshl_b32 {sT0}, {sT0}, 7"); A(f"s_add_u32 {sT0}, {sT0}, {WS_B}")
    msg_lane_addr(vBA, 14); A(f"v_add_u32 v{vBA}, {sT0}, v{vBA}")
    A(f"s_cmp_ge_u32 {sROLE}, 4")
    A("s_cbranch_scc1 L_q_wait")
    xr = [vWO+u for u in range(7)]; f14 = vWO+8; vLW = vWO+24; vLR = vWO+25; vTA = vWO+26
    A(f"v_lshrrev_b32 v{vLW}, 5, v{vLANE}"); A(f"v_mul_u32_u24 v{vLW}, 896, v{vLW}")
    A(f"v_and_b32 v{vTM2}, 31, v{vLANE}"); A(f"v_lshl_add_u32 v{vLW}, v{vTM2}, 2, v{vLW}")
    for u in range(7): A(f"global_load_dword v{xr[u]}, v{vLW}, {pX} offset:{u*128}")
    A(f"s_or_b32 {sT0}, {sROLE}, {sW}"); A(f"s_cmp_lg_u32 {sT0}, 0"); A("s_cbranch_scc1 L_noinit")
    A(f"s_lshl_b32 {sT0}, {sG}, 8"); A(f"s_add_u32 {sT0}, {sT0}, {WS_CNT}")
    A(f"v_mov_b32 v{vTM2}, {sT0}"); A(f"v_mov_b32 v{vTM3}, 0")
    A("s_mov_b64 exec, 1"); A(f"global_store_dword v{vTM2}, v{vTM3}, {pWS} {stf}"); A("s_mov_b64 exec, -1")
    E.label("L_noinit")
    A(f"s_lshl_b32 {sT2}, {sW}, 11"); A(f"s_add_u32 {sT2}, {sT2}, {L_LN}")
    A(f"v_add_u32 v{vLW}, {sT2}, v{vLW}")
    ln_read_addr(vLR, sT2)
    tall_addr(vTA)
    A("s_waitcnt vmcnt(0) lgkmcnt(0)")
    stamp(12)
    layernorm(xr, f14, vLW, 128)
    A("s_waitcnt lgkmcnt(0)")
    stamp(13)
    for s in range(14): A(f"ds_read_b128 {Q4(vW2+4*s)}, v{vLR} offset:{s*64}")
    for t in range(4):
        read_tall_tile(vTA, vW1, t)
        if t == 0: stamp(14)
        for s in range(4*t, min(4*t+4, 14)):
            A(f"v_mfma_f32_16x16x32_bf16 {Q4(vS)}, {Q4(vW2+4*s)}, {Q4(vW1+4*s)}, {'0' if s==0 else Q4(vS)}")
    A(f"s_lshl_b32 {sT0}, {sB}, 2"); A(f"s_add_u32 {sT0}, {sT0}, {sROLE}"); A(f"s_lshl_b32 {sT0}, {sT0}, 2"); A(f"s_add_u32 {sT0}, {sT0}, {sW}")
    A(f"s_lshl_b32 {sT0}, {sT0}, 6"); A(f"s_lshl_b32 {sT1}, {sHKV}, 11"); A(f"s_add_u32 {sT0}, {sT0}, {sT1}"); A(f"s_add_u32 {sT0}, {sT0}, {WS_Q}")
    A(f"v_lshlrev_b32 v{vTM3}, 2, v{vN}"); A(f"v_lshl_add_u32 v{vTM3}, v{vG4}, 14, v{vTM3}"); A(f"v_add_u32 v{vTM3}, {sT0}, v{vTM3}")
    A(f"s_mul_i32 {sTAG}, {sE}, 0x9e3779b1"); A(f"s_add_u32 {sTAG}, {sTAG}, 0x7f4a7c15")
    A(f"v_cndmask_b32 v{vTM}, v{vS}, v{vS+1}, {sM1}")
    A(f"v_mov_b32_dpp v{vTM2}, v{vTM} quad_perm:[1,0,3,2] row_mask:0xf bank_mask:0xf")
    A(f"v_mov_b32 v{vX+1}, {sTAG}")
    A(f"v_cvt_pk_bf16_f32 v{vX}, v{vTM}, v{vTM2}")
    A("s_mov_b64 exec, 0x55555555")
    A(f"global_store_dwordx2 v{vTM3}, {P(vX)}, {pWS} {stf}")
    A("s_mov_b64 exec, -1")
    stamp(1)
    E.label("L_q_wait")
    wide_addr(vX)
    if not wo_end:
        for h in range(2): read_wide_tile(vX, vWO, h)
    A(f"s_cmp_ge_u32 {sIDX}, 28"); A("s_cbranch_scc1 L_noffn")
    tall_addr(vX+1)
    for t in range(4): read_tall_tile(vX+1, vW1, t)
    for t in range(4): read_wide_tile(vX, vW2 + 28*(t>>1), t & 1)
    E.label("L_noffn")
    if ticket:
        E.label("L_idwait")
        A(f"ds_read_b32 v{vTM}, v{vFLG} offset:12")
        A(f"s_sub_u32 {sSPIN}, {sSPIN}, 1"); A("s_cbranch_scc1 L_end")
        A("s_waitcnt lgkmcnt(0)")
        A(f"v_readfirstlane_b32 {sID}, v{vTM}")
        A(f"s_cmp_ge_u32 {sID}, 256"); A("s_cbranch_scc1 L_idwait")
    else:
        A("s_waitcnt lgkmcnt(0)"); A(f"s_mov_b32 {sID}, {sWG}")
    A(f"s_and_b32 {sT0}, {sID}, 0xf0"); A(f"s_lshl_b32 {sT1}, {sW}, 1"); A(f"s_add_u32 {sT0}, {sT0}, {sT1}"); A(f"s_lshl_b32 {sT0}, {sT0}, 4")
    A(f"s_and_b32 {sT1}, {sID}, 15"); A(f"s_add_u32 {sT0}, {sT0}, {sT1}"); A(f"s_lshl_b32 {sT0}, {sT0}, 8"); A(f"s_add_u32 {sT0}, {sT0}, {WS_A}")
    A(f"v_lshrrev_b32 v{vAA}, 1, v{vG4}"); A(f"v_lshlrev_b32 v{vAA}, 15, v{vAA}")
    A(f"v_and_b32 v{vTM}, 1, v{vG4}"); A(f"v_lshl_or_b32 v{vAA}, v{vTM}, 12, v{vAA}"); A(f"v_lshl_or_b32 v{vAA}, v{vN}, 4, v{vAA}")
    A(f"v_add_u32 v{vAA}, {sT0}, v{vAA}")
    A(f"s_mul_i32 {sTAG}, {sE}, 0x9e3779b1"); A(f"s_add_u32 {sTAG}, {sTAG}, 0x7f4a7c15")
    A(f"s_lshr_b32 {sT0}, {sID}, 4"); A(f"s_lshl_b32 {sT0}, {sT0}, 11"); A(f"s_add_u32 {sT0}, {sT0}, {WS_Q}")
    A(f"v_lshl_add_u32 v{vTM3}, v{vLANE}, 4, {sT0}")
    if qdepth: A(f"s_cmp_ge_u32 {sIDX}, 28"); A("s_cbranch_scc1 L_q_fast")
    if True:
        poll([f"global_load_dwordx4 {Q4(vF)}, v{vTM3}, {pWS} {ldf}", f"global_load_dwordx4 {Q4(vF+4)}, v{vTM3}, {pWS} offset:1024 {ldf}"],
             [[vF+1, vF+3], [vF+5, vF+7]])
        A(f"s_lshl_b32 {sT0}, {sW}, 10"); A(f"s_add_u32 {sT0}, {sT0}, {L_QW}")
        A(f"v_mov_b32 v{vF+1}, v{vF+2}"); A(f"v_mov_b32 v{vF+5}, v{vF+6}")
        A(f"v_lshl_add_u32 v{vTM}, v{vLANE}, 3, {sT0}")
        A(f"ds_write_b64 v{vTM}, {P(vF)}"); A(f"ds_write_b64 v{vTM}, {P(vF+4)} offset:512")
        A(f"v_and_b32 v{vTM2}, 1, v{vLANE}"); A(f"v_lshlrev_b32 v{vTM2}, 9, v{vTM2}"); A(f"v_lshl_add_u32 v{vTM2}, v{vG4}, 4, v{vTM2}"); A(f"v_add_u32 v{vTM2}, {sT0}, v{vTM2}")
        A("s_waitcnt lgkmcnt(0)")
    if qdepth:
        A("s_branch L_q_read")
        E.label("L_q_fast")
        vQP = vW1
        A(f"s_cmp_lg_u32 {sW}, 0"); A("s_cbranch_scc1 L_q_flag")
        def qissue(st):
            A(f"global_load_dwordx4 {Q4(vQP+8*st)}, v{vTM3}, {pWS} {ldf}"); A(f"global_load_dwordx4 {Q4(vQP+8*st+4)}, v{vTM3}, {pWS} offset:1024 {ldf}")
        if qsleep: A(f"s_sleep {qsleep}")
        if qwait:
            A(f"s_add_u32 {sN}, {sN}, {qwait-1}"); wait_tile(); A(f"s_sub_u32 {sN}, {sN}, {qwait-1}")
        for st in range(qdepth-1): qissue(st); A("s_sleep 12")
        E.label("L_q_poll")
        for st in range(qdepth):
            qissue((st+qdepth-1) % qdepth)
            A(f"s_sub_u32 {sSPIN}, {sSPIN}, 1"); A("s_cbranch_scc1 L_end")
            A(f"s_waitcnt vmcnt({2*(qdepth-1)})")
            for k in range(4): A(f"v_cmp_ne_u32 {sCK[k]}, {sTAG}, v{vQP+8*st+2*k+1}")
            A(f"s_or_b64 vcc, {sCK[0]}, {sCK[1]}"); A(f"s_or_b64 vcc, vcc, {sCK[2]}"); A(f"s_or_b64 vcc, vcc, {sCK[3]}")
            A(f"s_cbranch_scc0 L_q_got{st}")
        A("s_branch L_q_poll")
        for st in range(qdepth):
            E.label(f"L_q_got{st}")
            for k in range(4): A(f"v_mov_b32 v{vF+k}, v{vQP+8*st+2*k}")
            if st < qdepth-1: A("s_branch L_q_put")
        E.label("L_q_put")
        A(f"v_lshlrev_b32 v{vTM}, 3, v{vLANE}"); A(f"v_add_u32 v{vTM}, {L_QW}, v{vTM}")
        A(f"ds_write_b64 v{vTM}, {P(vF)}"); A(f"ds_write_b64 v{vTM}, {P(vF+2)} offset:512")
        A(f"v_mov_b32 v{vTM}, 1")
        A("s_mov_b64 exec, 1"); A(f"ds_write_b32 v{vFLG}, v{vTM} offset:32"); A("s_mov_b64 exec, -1")
        E.label("L_q_flag")
        A(f"ds_read_b32 v{vTM}, v{vFLG} offset:32")
        A(f"s_sub_u32 {sSPIN}, {sSPIN}, 1"); A("s_cbranch_scc1 L_end")
        A("s_waitcnt lgkmcnt(0)")
        A(f"v_readfirstlane_b32 {sT0}, v{vTM}")
        A(f"s_cmp_eq_u32 {sT0}, 1"); A("s_cbranch_scc1 L_q_have")
        A("s_sleep 1"); A("s_branch L_q_flag")
        E.label("L_q_have")
        A(f"v_and_b32 v{vTM2}, 1, v{vLANE}"); A(f"v_lshlrev_b32 v{vTM2}, 9, v{vTM2}"); A(f"v_lshl_add_u32 v{vTM2}, v{vG4}, 4, v{vTM2}"); A(f"v_add_u32 v{vTM2}, {L_QW}, v{vTM2}")
        E.label("L_q_read")
    for s in range(8): A(f"ds_read_b128 {Q4(vQ+4*s)}, v{vTM2} offset:{s*64}")
    stamp(2)
    def warm_reads():
        A(f"s_lshl_b32 {sT0}, {sWG}, 12"); A(f"s_lshl_b32 {sT1}, {sW}, 10"); A(f"s_add_u32 {sT0}, {sT0}, {sT1}"); A(f"s_add_u32 {sT0}, {sT0}, {WS_A}")
        A(f"v_lshl_add_u32 v{vTM}, v{vLANE}, 4, {sT0}")
        A(f"global_load_dword v{vX+2}, v{vTM}, {pWS} {ldf}")
        A(f"s_cmp_ge_u32 {sRR}, 64"); A("s_cbranch_scc1 L_nowarm")
        A(f"s_lshl_b32 {sT0}, {sRR}, 14"); A(f"s_lshl_b32 {sT1}, {sW}, 12"); A(f"s_add_u32 {sT0}, {sT0}, {sT1}"); A(f"s_add_u32 {sT0}, {sT0}, {WS_B}")
        A(f"v_lshl_add_u32 v{vTM}, v{vLANE}, 6, {sT0}")
        A(f"global_load_dword v{vX+3}, v{vTM}, {pWS} {ldf}")
        A(f"s_lshl_b32 {sT0}, {sRR}, 12"); A(f"s_lshl_b32 {sT1}, {sW}, 10"); A(f"s_add_u32 {sT0}, {sT0}, {sT1}"); A(f"s_add_u32 {sT0}, {sT0}, {WS_D}")
        A(f"v_lshl_add_u32 v{vTM}, v{vLANE}, 4, {sT0}")
        A(f"global_load_dword v{vX+4}, v{vTM}, {pWS} {ldf}")
        A(f"s_lshl_b32 {sT0}, {sRR}, 6"); A(f"s_add_u32 {sT0}, {sT0}, {WS_H}"); A(f"v_mov_b32 v{vTM}, {sT0}")
        A(f"global_load_dword v{vX+5}, v{vTM}, {pWS} {ldf}")
        E.label("L_nowarm")
    if warm and not warmat: warm_reads()
    A("s_waitcnt lgkmcnt(0)")

    def qk(nt):
        for s in range(4): A(f"v_add_u32 v{vAD[s]}, {sSLOT}, v{vKB[s]}")
        seq = [(t,s) for s in range(8) for t in range(nt)]; n = len(seq)
        def kread(i):
            t,s = seq[i]; A(f"ds_read_b128 {Q4(vF + 4*(i % NF))}, v{vAD[s&3]} offset:{(s>>2)*256 + t*8192}")
        for i in range(NF): kread(i)
        for i in range(n):
            t,s = seq[i]
            A(f"s_waitcnt lgkmcnt({min(NF-1, n-1-i)})")
            d = Q4(vS+4*t)
            A(f"v_mfma_f32_16x16x32_bf16 {d}, {Q4(vF + 4*(i % NF))}, {Q4(vQ+4*s)}, {'0' if s==0 else d}")
            if i + NF < n: kread(i+NF)
    def softmax(nt, tag):
        n = 4*nt
        for i in range(n//2): A(f"v_cvt_pk_bf16_f32 v{vP+i}, v{vS+2*i}, v{vS+2*i+1}")
        for i in range(n//2): unpack(vS+2*i, vS+2*i+1, vP+i)
        if nt == 2:
            A(f"v_max3_f32 v{vMX}, v{vS}, v{vS+1}, v{vS+2}"); A(f"v_max3_f32 v{vTM}, v{vS+3}, v{vS+4}, v{vS+5}")
            A(f"v_max3_f32 v{vMX}, v{vMX}, v{vS+6}, v{vS+7}"); A(f"v_max_f32 v{vMX}, v{vMX}, v{vTM}")
        else:
            A(f"v_max3_f32 v{vMX}, v{vS}, v{vS+1}, v{vS+2}"); A(f"v_max_f32 v{vMX}, v{vMX}, v{vS+3}")
        xrow("v_max_f32", [vMX], [vTM])
        A(f"v_cmp_gt_f32 vcc, v{vMX}, v{vM}")
        A("s_cmp_lg_u64 vcc, 0"); A(f"s_cbranch_scc1 L_rescale{tag}")
        E.label(f"L_rescaled{tag}")
        for i in range(n): A(f"v_fma_f32 v{vS+i}, v{vS+i}, {sC}, -v{vMC}")
        for i in range(n): A(f"v_exp_f32 v{vS+i}, v{vS+i}")
        for i in range(n//2): A(f"v_cvt_pk_bf16_f32 v{vP+i}, v{vS+2*i}, v{vS+2*i+1}")
        if hilo:
            for i in range(n//2):
                unpack(vF+16, vF+17, vP+i)
                A(f"v_sub_f32 v{vF+16}, v{vS+2*i}, v{vF+16}"); A(f"v_sub_f32 v{vF+17}, v{vS+2*i+1}, v{vF+17}")
                A(f"v_cvt_pk_bf16_f32 v{vF+16}, v{vF+16}, v{vF+17}")
                A(f"v_cndmask_b32 v{vP+i}, v{vP+i}, v{vF+16}, s[64:65]")
        A(f"v_add_f32 v{vTM}, v{vS}, v{vS+1}"); A(f"v_add_f32 v{vMX}, v{vS+2}, v{vS+3}")
        if nt == 2:
            A(f"v_add_f32 v{vS+4}, v{vS+4}, v{vS+5}"); A(f"v_add_f32 v{vS+6}, v{vS+6}, v{vS+7}")
            A(f"v_add_f32 v{vTM}, v{vTM}, v{vS+4}"); A(f"v_add_f32 v{vMX}, v{vMX}, v{vS+6}")
        A(f"v_add_f32 v{vL}, v{vL}, v{vTM}"); A(f"v_add_f32 v{vL}, v{vL}, v{vMX}")
    def rescale(tag):
        E.label(f"L_rescale{tag}")
        A(f"v_max_f32 v{vM}, v{vM}, v{vMX}")
        A(f"v_mul_f32 v{vTM}, {sC}, v{vM}")
        A(f"v_sub_f32 v{vTM2}, v{vMC}, v{vTM}")
        A(f"v_mov_b32 v{vMC}, v{vTM}")
        A(f"v_exp_f32 v{vTM2}, v{vTM2}")
        A(f"v_mul_f32 v{vL}, v{vL}, v{vTM2}")
        A(f"v_mov_b32_dpp v{vTM}, v{vTM2} quad_perm:[0,0,2,2] row_mask:0xf bank_mask:0xf")
        A(f"v_mov_b32_dpp v{vTM3}, v{vTM2} quad_perm:[1,1,3,3] row_mask:0xf bank_mask:0xf")
        for i in range(16): A(f"v_mul_f32 v{vO+i}, v{vO+i}, v{vTM if i%2==0 else vTM3}")
        A(f"s_branch L_rescaled{tag}")
    E.label("L_loop")
    if prew:
        A(f"s_add_u32 {sCI}, {sCI}, 1"); A(f"s_cmp_lg_u32 {sCI}, {prew}"); A("s_cbranch_scc1 L_noprew")
        A(f"s_xor_b32 {sT0}, {sTAG}, 1")
        for k in range(4): A(f"v_mov_b32 v{vX+k}, {sT0}")
        A(f"global_store_dwordx4 v{vAA}, {Q4(vX)}, {pWS} {prewf}")
        if prewn > 1: A(f"global_store_dwordx4 v{vBA}, {Q4(vX)}, {pWS} {prewf}")
        A("s_waitcnt vmcnt(0)")
        E.label("L_noprew")
    if warm and warmat:
        A(f"s_add_u32 {sCI}, {sCI}, 1"); A(f"s_cmp_lg_u32 {sCI}, {warmat}"); A("s_cbranch_scc1 L_nowarm2")
        warm_reads()
        E.label("L_nowarm2")
    wait_tile("L_mini", sSWI)
    qk(2)
    pub_cons()
    softmax(2, "a")
    wait_tile()
    for e in range(4): A(f"v_add_u32 v{vAD[e]}, {sSLOT}, v{vVB[e]}")
    for e in range(4):
        for h2 in range(2): A(f"ds_read_b64_tr_b16 {P(vF + 4*e + 2*h2)}, v{vAD[e]} offset:{h2*8192}")
    for e in range(4):
        A(f"s_waitcnt lgkmcnt({6-2*e})")
        A(f"v_mfma_f32_16x16x32_bf16 {Q4(vO+4*e)}, {Q4(vP)}, {Q4(vF+4*e)}, {Q4(vO+4*e)}")
    pub_cons()
    if True:
        A("s_branch L_loop")
        E.label("L_mini")
        wait_tile("L_fin", sTOT, half=bool(khalf), nap=bool(nap) and not khalf)
        qk(1)
        def vreads():
            for e in range(4): A(f"v_add_u32 v{vAD[e]}, {sSLOT}, v{vVB[e]}")
            for e in range(4): A(f"ds_read_b64_tr_b16 {P(vF + 2*e)}, v{vAD[e]} offset:8192")
        if not khalf: vreads()
        softmax(1, "b")
        if khalf: wait_tile(nap=False); vreads()
        A("s_waitcnt lgkmcnt(0)")
        for e in range(4):
            A(f"v_mfma_f32_16x16x16_bf16 {Q4(vO+4*e)}, {P(vP)}, {P(vF+2*e)}, {Q4(vO+4*e)}")
        pub_cons()
        A("s_branch L_mini")
        rescale("b")
    rescale("a")

    E.label("L_fin")
    stamp(3)
    if enc4:
        A("s_getreg_b32 s76, hwreg(HW_REG_XCC_ID)"); A(f"s_sub_u32 s76, s76, {sWG}"); A("s_and_b32 s76, s76, 7")
        A(f"s_lshl_b32 {sT0}, {sWG}, 2"); A(f"s_add_u32 {sT0}, {sT0}, {WS_ST}"); A(f"v_mov_b32 v{vTM2}, {sT0}"); A(f"v_mov_b32 v{vTM3}, s76")
        A("s_mov_b64 exec, 1"); A(f"global_store_dword v{vTM2}, v{vTM3}, {pWS} sc1"); A("s_mov_b64 exec, -1")
    if enc2:
        A("s_memrealtime s[76:77]"); A(f"s_lshl_b32 {sT0}, {sWG}, 2"); A(f"s_add_u32 {sT0}, {sT0}, {WS_ST}"); A(f"v_mov_b32 v{vTM2}, {sT0}")
        A("s_waitcnt lgkmcnt(0)"); A(f"v_mov_b32 v{vTM3}, s76")
        A("s_mov_b64 exec, 1"); A(f"global_store_dword v{vTM2}, v{vTM3}, {pWS} sc1"); A("s_mov_b64 exec, -1")
    vG=vF; vI=vF+4; sa=vS; sb=vS+1; sw=vS+2
    vA=vQ; vOPR=vQ+4; vOPW=vQ+5; vR0=vQ+6; vR1=vQ+7; vR2=vQ+8; vR3=vQ+9; vR4=vQ+10; vR5=vQ+11; vZ=vQ+12
    yreg = [vO, vO+4, vO+8, vO+12, vQ+16, vQ+20, vQ+24]
    xrow("v_add_f32", [vL], [vTM])
    if hilo:
        for e in range(4):
            for h in range(2): A(f"v_add_f32 v{vO+4*e+h}, v{vO+4*e+h}, v{vO+4*e+2+h}")
    A(f"v_log_f32 v{vTM2}, v{vL}"); A(f"v_rcp_f32 v{vTM3}, v{vL}")
    A(f"v_mov_b32 v{vG+3}, {sTAG}")
    A(f"v_add_f32 v{vTM2}, v{vMC}, v{vTM2}")
    SEL4(vG, vO+0, vO+8, vO+1, vO+9, vMX)
    A(f"v_mov_b32_dpp v{vTM}, v{vTM3} quad_perm:[0,0,2,2] row_mask:0x3 bank_mask:0xf")
    A(f"v_mov_b32_dpp v{vG+2}, v{vTM2} quad_perm:[0,0,2,2] row_mask:0x3 bank_mask:0xf")
    SEL4(vG+1, vO+4, vO+12, vO+5, vO+13, vMX)
    A(f"v_mov_b32_dpp v{vTM}, v{vTM3} quad_perm:[1,1,3,3] row_mask:0xc bank_mask:0xf")
    A(f"v_mov_b32_dpp v{vG+2}, v{vTM2} quad_perm:[1,1,3,3] row_mask:0xc bank_mask:0xf")
    A(f"v_mul_f32 v{vG}, v{vG}, v{vTM}"); A(f"v_mul_f32 v{vG+1}, v{vG+1}, v{vTM}")
    A(f"global_store_dwordx4 v{vAA}, {Q4(vG)}, {pWS} {stf}")
    stamp(4)
    A(f"v_lshlrev_b32 v{vOPR}, 3, v{vG4}"); A(f"v_add_u32 v{vOPR}, {L_OP}, v{vOPR}")
    A(f"v_lshlrev_b32 v{vOPW}, 1, v{vN}"); A(f"v_add_u32 v{vOPW}, {L_OP}, v{vOPW}")
    A(f"v_mov_b32 v{vZ}, 0")
    A(f"s_cmp_lt_u32 {sIDX}, 28"); A("s_cbranch_scc1 L_ffn_addr")
    A(f"s_lshl_b32 {sT0}, {sRR}, 14"); A(f"s_lshl_b32 {sT1}, {sW}, 12"); A(f"s_add_u32 {sT0}, {sT0}, {sT1}"); A(f"s_add_u32 {sT0}, {sT0}, {WS_B}")
    A(f"v_lshl_add_u32 v{vR0}, v{vLANE}, 4, {sT0}")
    A(f"s_lshl_b32 {sT0}, {sW}, 6"); A(f"s_add_u32 {sT0}, {sT0}, {L_RED}")
    A(f"v_and_b32 v{vTM}, 7, v{vLANE}"); A(f"v_lshl_add_u32 v{vR1}, v{vTM}, 2, {sT0}")
    A(f"v_and_b32 v{vTM}, 6, v{vLANE}"); A(f"v_lshlrev_b32 v{vR2}, 2, v{vTM}"); A(f"v_add_u32 v{vR2}, {L_RED}, v{vR2}")
    A(f"s_lshl_b32 {sT0}, {sRR}, 6"); A(f"s_add_u32 {sT0}, {sT0}, {WS_H}"); A(f"v_lshl_add_u32 v{vR3}, v{vTM}, 3, {sT0}")
    A(f"s_lshl_b32 {sT0}, {sRR}, 12"); A(f"s_add_u32 {sT0}, {sT0}, {WS_D}"); A(f"v_lshl_add_u32 v{vR4}, v{vLANE}, 4, {sT0}")
    A(f"v_lshl_add_u32 v{vR5}, v{vTM}, 1, {sCOL}")
    A("s_branch L_addr_done")
    E.label("L_ffn_addr")
    A(f"v_lshrrev_b32 v{vTM}, 3, v{vLANE}"); A(f"v_and_b32 v{vTM2}, 7, v{vLANE}")
    A(f"v_lshlrev_b32 v{vR0}, 9, v{vTM}"); A(f"v_lshl_or_b32 v{vR0}, v{vTM2}, 4, v{vR0}"); A(f"v_add_u32 v{vR0}, {WS_H}, v{vR0}")
    A(f"v_mul_u32_u24 v{vR1}, 224, v{vTM}"); A(f"v_lshl_add_u32 v{vR1}, v{vTM2}, 2, v{vR1}"); A(f"v_add_u32 v{vR1}, {L_LN}, v{vR1}")
    ln_read_addr(vR2, L_LN)
    A(f"s_lshl_b32 {sT0}, {sW}, 5"); A(f"s_add_u32 {sT0}, {sT0}, {L_ACT}")
    A(f"v_lshlrev_b32 v{vR3}, 7, v{vG4}"); A(f"v_lshl_add_u32 v{vR3}, v{vN}, 1, v{vR3}"); A(f"v_add_u32 v{vR3}, {sT0}, v{vR3}")
    A(f"v_and_b32 v{vR4}, 1, v{vLANE}"); A(f"v_lshlrev_b32 v{vR4}, 7, v{vR4}"); A(f"v_lshl_add_u32 v{vR4}, v{vG4}, 3, v{vR4}"); A(f"v_add_u32 v{vR4}, {L_ACT}, v{vR4}")
    A(f"s_lshl_b32 {sT0}, {sW}, 8"); A(f"s_add_u32 {sT0}, {sT0}, {sIDX}"); A(f"s_lshl_b32 {sT0}, {sT0}, 7"); A(f"s_add_u32 {sT0}, {sT0}, {WS_D}")
    msg_lane_addr(vR5, 12); A(f"v_add_u32 v{vR5}, {sT0}, v{vR5}")
    E.label("L_addr_done")
    if wo_end:
        wide_addr(vX)
        for h in range(2): read_wide_tile(vX, vWO, h)
    A(f"s_cmp_lg_u32 {sW}, 0"); A("s_cbranch_scc1 L_a_join")
    poll([f"global_load_dwordx4 {Q4(vI+4*i)}, v{vAI}, {pWS} offset:{i*256} {ldf}" for i in range(4)], [[vI+4*i+3] for i in range(4)])
    stamp(5)
    A(f"v_max3_f32 v{vMX}, v{vI+2}, v{vI+6}, v{vI+10}"); A(f"v_max_f32 v{vMX}, v{vMX}, v{vI+14}")
    xrow("v_max_f32", [vMX], [vTM])
    for i in range(4): A(f"v_sub_f32 v{vI+4*i+2}, v{vI+4*i+2}, v{vMX}")
    for i in range(4): A(f"v_exp_f32 v{vI+4*i+2}, v{vI+4*i+2}")
    A(f"v_mul_f32 v{sa}, v{vI}, v{vI+2}"); A(f"v_mul_f32 v{sb}, v{vI+1}, v{vI+2}"); A(f"v_add_f32 v{sw}, v{vI+2}, v{vI+6}")
    for i in range(1,4):
        A(f"v_fmac_f32 v{sa}, v{vI+4*i}, v{vI+4*i+2}"); A(f"v_fmac_f32 v{sb}, v{vI+4*i+1}, v{vI+4*i+2}")
        if i > 1: A(f"v_add_f32 v{sw}, v{sw}, v{vI+4*i+2}")
    xrow("v_add_f32", [sw, sa, sb], [vS+3, vS+4, vS+5])
    A(f"v_rcp_f32 v{sw}, v{sw}")
    A(f"v_mul_f32 v{sa}, v{sa}, v{sw}"); A(f"v_mul_f32 v{sb}, v{sb}, v{sw}")
    A(f"v_mov_b32_dpp v{vS+3}, v{sa} quad_perm:[1,0,3,2] row_mask:0xf bank_mask:0xf")
    A(f"v_mov_b32_dpp v{vS+4}, v{sb} quad_perm:[1,0,3,2] row_mask:0xf bank_mask:0xf")
    A(f"v_cvt_pk_bf16_f32 v{sa}, v{sa}, v{vS+3}"); A(f"v_cvt_pk_bf16_f32 v{sb}, v{sb}, v{vS+4}")
    A("s_mov_b64 exec, 0x5555"); A(f"ds_write2_b32 v{vOPW}, v{sa}, v{sb} offset0:0 offset1:8"); A("s_mov_b64 exec, -1")
    A("s_waitcnt lgkmcnt(0)")
    E.label("L_a_join")
    A("s_barrier")
    A(f"ds_read2_b64 {Q4(vA)}, v{vOPR} offset0:0 offset1:4")
    A(f"v_mov_b32 v{vG+1}, {sTAG}")
    A("s_waitcnt lgkmcnt(0)")
    for t in (0,2,4,6,1,3,5):
        A(f"v_mfma_f32_16x16x32_bf16 {Q4(yreg[t])}, {Q4(vA)}, {Q4(vWO+4*t)}, 0")
    SEL4(vG, yreg[0], yreg[2], yreg[4], yreg[6], vMX)
    SEL4(vG+2, yreg[1], yreg[3], yreg[5], vZ, vTM)
    A(f"global_store_dwordx4 v{vBA}, {Q4(vG)}, {pWS} {stf}")
    stamp(6)
    A(f"s_cmp_lt_u32 {sIDX}, 28"); A("s_cbranch_scc1 L_ffn")
    A(f"s_cmp_ge_u32 {sRR}, 64"); A("s_cbranch_scc1 L_done")
    def inbox(addr): return [f"global_load_dwordx4 {Q4(vI+4*i)}, v{addr}, {pWS} offset:{i*1024} {ldf}" for i in range(4)]
    tags2 = [[vI+4*i+1, vI+4*i+3] for i in range(4)]
    def sum_inbox():
        A(f"v_add_f32 v{sa}, v{vI}, v{vI+4}"); A(f"v_add_f32 v{sb}, v{vI+2}, v{vI+6}")
        A(f"v_add_f32 v{vS+2}, v{vI+8}, v{vI+12}"); A(f"v_add_f32 v{vS+3}, v{vI+10}, v{vI+14}")
        A(f"v_add_f32 v{sa}, v{sa}, v{vS+2}"); A(f"v_add_f32 v{sb}, v{sb}, v{vS+3}")
        A(f"v_add_f32_dpp v{sa}, v{sa}, v{sa} row_ror:8 row_mask:0xf bank_mask:0xf")
        A(f"v_add_f32_dpp v{sb}, v{sb}, v{sb} row_ror:8 row_mask:0xf bank_mask:0xf")
        xrow("v_add_f32", [sa, sb], [vS+2, vS+3])
    vXF = vO
    unpack(vXF, vXF+1, vXH); unpack(vXF+2, vXF+3, vXH+1)
    poll(inbox(vR0), tags2)
    stamp(7)
    sum_inbox()
    A("s_mov_b64 exec, 0xff"); A(f"ds_write2_b32 v{vR1}, v{sa}, v{sb} offset0:0 offset1:8"); A("s_mov_b64 exec, -1")
    A("s_waitcnt lgkmcnt(0)"); A("s_barrier")
    A(f"s_cmp_lg_u32 {sW}, 0"); A("s_cbranch_scc1 L_done")
    for i in range(4): A(f"ds_read2_b64 {Q4(vI+4*i)}, v{vR2} offset0:{i*8} offset1:{i*8+4}")
    def add_resid(y, dst):
        A(f"v_cvt_pk_bf16_f32 v{dst}, v{y}, v{y+1}"); A(f"v_cvt_pk_bf16_f32 v{dst+2}, v{y+2}, v{y+3}")
        unpack(y, y+1, dst); unpack(y+2, y+3, dst+2)
        A(f"v_pk_add_f32 {P(y)}, {P(y)}, {P(vXF)}"); A(f"v_pk_add_f32 {P(y+2)}, {P(y+2)}, {P(vXF+2)}")
        A(f"v_cvt_pk_bf16_f32 v{dst}, v{y}, v{y+1}"); A(f"v_cvt_pk_bf16_f32 v{dst+2}, v{y+2}, v{y+3}")
    A("s_waitcnt lgkmcnt(2)")
    A(f"v_pk_add_f32 {P(vI)}, {P(vI)}, {P(vI+4)}"); A(f"v_pk_add_f32 {P(vI+2)}, {P(vI+2)}, {P(vI+6)}")
    A("s_waitcnt lgkmcnt(0)")
    A(f"v_pk_add_f32 {P(vI+8)}, {P(vI+8)}, {P(vI+12)}"); A(f"v_pk_add_f32 {P(vI+10)}, {P(vI+10)}, {P(vI+14)}")
    A(f"v_pk_add_f32 {P(vI)}, {P(vI)}, {P(vI+8)}"); A(f"v_pk_add_f32 {P(vI+2)}, {P(vI+2)}, {P(vI+10)}")
    add_resid(vI, vG)
    A("s_mov_b64 exec, 0x55"); A(f"global_store_dwordx4 v{vR3}, {Q4(vG)}, {pWS} {stf}"); A("s_mov_b64 exec, -1")
    stamp(8)
    unpack(vXF, vXF+1, vG); unpack(vXF+2, vXF+3, vG+2)
    A(f"v_mov_b32 v{vI+12}, 0"); A(f"v_mov_b32 v{vI+13}, {sTAG}"); A(f"v_mov_b32 v{vI+14}, 0"); A(f"v_mov_b32 v{vI+15}, {sTAG}")
    poll(inbox(vR4), tags2, first_mask=[-1,-1,-1,"s[66:67]"])
    stamp(9)
    sum_inbox()
    A(f"v_mov_b32_dpp v{vI}, v{sa} quad_perm:[0,0,2,2] row_mask:0xf bank_mask:0xf"); A(f"v_mov_b32_dpp v{vI+1}, v{sa} quad_perm:[1,1,3,3] row_mask:0xf bank_mask:0xf")
    A(f"v_mov_b32_dpp v{vI+2}, v{sb} quad_perm:[0,0,2,2] row_mask:0xf bank_mask:0xf"); A(f"v_mov_b32_dpp v{vI+3}, v{sb} quad_perm:[1,1,3,3] row_mask:0xf bank_mask:0xf")
    add_resid(vI, vI+4)
    A("s_mov_b64 exec, 0x55"); A(f"global_store_dword v{vR5}, v{vI+4}, {pOUT} {outf}")
    A(f"s_cmp_eq_u32 {sGP}, 3"); A("s_cbranch_scc1 L_done")
    A(f"global_store_dword v{vR5}, v{vI+6}, {pOUT} offset:32 {outf}")
    A(f"s_cmp_lg_u32 {sRR}, 0"); A("s_cbranch_scc1 L_done")
    A(f"s_add_u32 {sT0}, {sE}, 1"); A(f"v_mov_b32 v{vTM2}, {sT0}"); A(f"v_mov_b32 v{vTM3}, {WS_E}")
    A("s_mov_b64 exec, 1"); A(f"global_store_dword v{vTM3}, v{vTM2}, {pWS} {stf}")
    if ticket:
        A("s_mov_b64 exec, -1"); A(f"v_lshlrev_b32 v{vTM}, 2, v{vLANE}")
        A(f"global_store_dword v{vTM}, v{vZ}, s[22:23] {stf}")
    if enc2:
        A("s_mov_b64 exec, -1")
        A(f"v_lshlrev_b32 v{vTM}, 4, v{vLANE}"); A(f"v_add_u32 v{vTM}, {WS_ST}, v{vTM}")
        A(f"global_load_dwordx4 {Q4(vI)}, v{vTM}, {pWS} sc1"); A("s_waitcnt vmcnt(0)")
        for k in range(4): A(f"v_subrev_u32 v{vI+k}, s76, v{vI+k}");
        for k in range(4): A(f"v_add_u32 v{vI+k}, 0x100000, v{vI+k}")
        A(f"v_max3_u32 v{vS}, v{vI}, v{vI+1}, v{vI+2}"); A(f"v_max_u32 v{vS}, v{vS}, v{vI+3}")
        A(f"v_min3_u32 v{vS+1}, v{vI}, v{vI+1}, v{vI+2}"); A(f"v_min_u32 v{vS+1}, v{vS+1}, v{vI+3}")
        A(f"v_lshlrev_b32 v{vS}, 6, v{vS}"); A(f"v_or_b32 v{vS}, v{vS}, v{vLANE}")
        A("s_mov_b32 s80, 0"); A("s_mov_b32 s81, -1")
        for l in range(64):
            A(f"v_readlane_b32 s82, v{vS}, {l}"); A(f"v_readlane_b32 s83, v{vS+1}, {l}"); A("s_max_u32 s80, s80, s82"); A("s_min_u32 s81, s81, s83")
        A("s_and_b32 s82, s80, 63"); A("s_lshr_b32 s82, s82, 2"); A("s_lshr_b32 s80, s80, 6"); A(f"s_sub_u32 {sT0}, s80, s81")
        if enc2 == 2:
            A(f"s_cmp_gt_u32 {sT0}, 400"); A("s_cselect_b32 s83, 1, 0"); A("s_add_u32 s82, s82, 1"); A("s_mul_i32 s82, s82, s83"); A("s_mul_i32 s82, s82, 20000")
        else: A("s_mov_b32 s82, 0")
        A(f"s_lshl_b32 {sT0}, {sT0}, 3"); A(f"s_add_u32 {sT0}, {sT0}, s82"); A(f"s_min_u32 {sT0}, {sT0}, 400000")
        A("s_memrealtime s[90:91]"); A("s_waitcnt lgkmcnt(0)")
        E.label("L_enc2")
        A("s_memrealtime s[94:95]"); A("s_waitcnt lgkmcnt(0)")
        A(f"s_sub_u32 {sT1}, s94, s90"); A(f"s_cmp_lt_u32 {sT1}, {sT0}"); A("s_cbranch_scc1 L_enc2")
    if enc4:
        A("s_mov_b64 exec, -1")
        A(f"v_lshlrev_b32 v{vTM}, 4, v{vLANE}"); A(f"v_add_u32 v{vTM}, {WS_ST}, v{vTM}")
        A(f"global_load_dwordx4 {Q4(vI)}, v{vTM}, {pWS} sc1"); A("s_waitcnt vmcnt(0)")
        for k in range(4): A(f"v_cmp_ne_u32 {sCK[k]}, s76, v{vI+k}")
        A(f"s_or_b64 vcc, {sCK[0]}, {sCK[1]}"); A(f"s_or_b64 vcc, vcc, {sCK[2]}"); A(f"s_or_b64 vcc, vcc, {sCK[3]}")
        A(f"s_cselect_b32 {sT0}, 20000, 0")
        A("s_memrealtime s[90:91]"); A("s_waitcnt lgkmcnt(0)")
        E.label("L_enc4")
        A("s_memrealtime s[94:95]"); A("s_waitcnt lgkmcnt(0)")
        A(f"s_sub_u32 {sT1}, s94, s90"); A(f"s_cmp_lt_u32 {sT1}, {sT0}"); A("s_cbranch_scc1 L_enc4")
    if enc3:
        A("s_memrealtime s[90:91]"); A("s_waitcnt lgkmcnt(0)")
        A(f"s_and_b32 {sT1}, s90, 127"); A(f"s_cmp_lt_u32 {sT1}, {enc3}"); A(f"s_cselect_b32 {sT0}, 20000, 0")
        E.label("L_enc3")
        A("s_memrealtime s[94:95]"); A("s_waitcnt lgkmcnt(0)")
        A(f"s_sub_u32 {sT1}, s94, s90"); A(f"s_cmp_lt_u32 {sT1}, {sT0}"); A("s_cbranch_scc1 L_enc3")
    if enc:
        A("s_memrealtime s[90:91]"); A("s_waitcnt lgkmcnt(0)")
        A(f"s_sub_u32 {sT0}, s{70+2*enc[1]}, s{70+2*enc[0]}"); A(f"s_lshl_b32 {sT0}, {sT0}, 2"); A(f"s_min_u32 {sT0}, {sT0}, 100000")
        E.label("L_enc")
        A("s_memrealtime s[94:95]"); A("s_waitcnt lgkmcnt(0)")
        A(f"s_sub_u32 {sT1}, s94, s90"); A(f"s_cmp_lt_u32 {sT1}, {sT0}"); A("s_cbranch_scc1 L_enc")
    A("s_branch L_done")
    E.label("L_ffn")
    A(f"s_cmp_lg_u32 {sW}, 0"); A("s_cbranch_scc1 L_c_join")
    poll([f"global_load_dwordx4 {Q4(vI+4*u)}, v{vR0}, {pWS} offset:{u*128} {ldf}" for u in range(4)], tags2)
    stamp(7)
    layernorm([vI+2*u for u in range(7)], vO, vR1, 32)
    A("s_waitcnt lgkmcnt(0)")
    E.label("L_c_join")
    A("s_barrier")
    def aread(i): A(f"ds_read_b128 {Q4(vF + 4*(i % NF))}, v{vR2} offset:{i*64}")
    for i in range(NF): aread(i)
    for i in range(14):
        A(f"s_waitcnt lgkmcnt({min(NF-1, 13-i)})")
        A(f"v_mfma_f32_16x16x32_bf16 {Q4(vS)}, {Q4(vF + 4*(i % NF))}, {Q4(vW1+4*i)}, {'0' if i==0 else Q4(vS)}")
        if i + NF < 14: aread(i+NF)
    for b in range(2): A(f"v_mov_b32 v{vO+4*b+1}, {sTAG}"); A(f"v_mov_b32 v{vO+4*b+3}, {sTAG}")
    A(f"v_add_u32 v{vR0}, {32*4096}, v{vR5}")
    A(f"v_cndmask_b32 v{vTM}, v{vS}, v{vS+1}, {sM1}")
    round_bf(vTM, vTM)
    A(f"v_mul_f32 v{vTM2}, {(LOG2E | 0x80000000):#x}, v{vTM}")
    A(f"v_exp_f32 v{vTM2}, v{vTM2}")
    A(f"v_add_f32 v{vTM2}, 1.0, v{vTM2}")
    A(f"v_rcp_f32 v{vTM2}, v{vTM2}")
    A(f"v_mul_f32 v{vTM}, v{vTM}, v{vTM2}")
    A(f"v_cvt_pk_bf16_f32 v{vTM}, v{vTM}, v{vTM}")
    A("s_mov_b32 exec_hi, 0"); A(f"ds_write_b16 v{vR3}, v{vTM}"); A("s_mov_b32 exec_hi, -1")
    A("s_waitcnt lgkmcnt(0)"); A("s_barrier")
    for ks in range(2): A(f"ds_read2_b64 {Q4(vF+4*ks)}, v{vR4} offset0:{ks*8} offset1:{ks*8+4}")
    zreg = [vW1+4*t for t in range(7)]
    for ks in range(2):
        A(f"s_waitcnt lgkmcnt({1-ks})")
        for t in (0,2,4,6,1,3,5):
            A(f"v_mfma_f32_16x16x32_bf16 {Q4(zreg[t])}, {Q4(vF+4*ks)}, {Q4(vW2+28*ks+4*t)}, {'0' if ks==0 else Q4(zreg[t])}")
    for b in range(2): SEL4(vO+4*b, zreg[0]+b, zreg[2]+b, zreg[4]+b, zreg[6]+b, vMX)
    for b in range(2):
        SEL4(vO+4*b+2, zreg[1]+b, zreg[3]+b, zreg[5]+b, vZ, vMX)
        A(f"global_store_dwordx4 v{vR5 if b == 0 else vR0}, {Q4(vO+4*b)}, {pWS} {stf}")
    stamp(8)
    E.label("L_done")
    if diag:
        stamp(10)
        A("s_mov_b64 exec, -1")
        A(f"s_lshl_b32 {sT0}, {sWG}, 2"); A(f"s_add_u32 {sT0}, {sT0}, {sW}"); A(f"s_lshl_b32 {sT0}, {sT0}, 7"); A(f"s_add_u32 {sT0}, {sT0}, {WS_ST}")
        A("s_getreg_b32 s100, hwreg(HW_REG_XCC_ID)")
        A("s_waitcnt lgkmcnt(0)")
        A(f"v_mov_b32 v{vTM}, {sT0}")
        A("s_mov_b64 exec, 1")
        for k in range(11): A(f"v_mov_b32 v{vW1+k}, s{70+2*k}")
        A(f"v_mov_b32 v{vW1+11}, s100"); A(f"v_mov_b32 v{vW1+12}, {sN}"); A(f"v_mov_b32 v{vW1+13}, {sROLE}"); A(f"v_mov_b32 v{vW1+14}, {sID}"); A(f"v_mov_b32 v{vW1+15}, {sIDX}")
        for k in range(4): A(f"v_mov_b32 v{vW1+16+k}, s{92+2*k}")
        for q in range(5): A(f"global_store_dwordx4 v{vTM}, {Q4(vW1+4*q)}, {pWS} offset:{q*16}")
    E.label("L_end")
    A("s_endpgm")

    body = E.finish()
    head = open("sequential_preLN__gqa_block_cached__dense_activation_silu__decode.s.ref").read().split("; Override launch")[0]
    src = head + f"""; One persistent launch: 256 workgroups (one per CU); wave 0 streams K/V into an LDS ring, waves 1-4 compute.
; @launch grid=(256,1,1) block=(320,1,1) lds={LDS}
.amdgcn_target "amdgcn-amd-amdhsa--gfx950"
.text
.globl {NAME}
.p2align 8
.type {NAME},@function
{NAME}:
{body}.section .rodata,"a"
.p2align 6
.amdhsa_kernel {NAME}
  .amdhsa_next_free_vgpr 256
  .amdhsa_next_free_sgpr 102
  .amdhsa_accum_offset 256
  .amdhsa_group_segment_fixed_size 0
  .amdhsa_kernarg_size 88
  .amdhsa_user_sgpr_count 2
  .amdhsa_user_sgpr_kernarg_segment_ptr 1
  .amdhsa_system_sgpr_workgroup_id_x 1
.end_amdhsa_kernel
"""
    return src, E.npad

if __name__ == "__main__":
    out = sys.argv[1]
    kw = json.loads(sys.argv[2]) if len(sys.argv) > 2 else {}
    src, npad = gen(**kw)
    open(out, "w").write(src)
    print("wrote", out, "lines", src.count("\n"), "pad states", npad)
```

```python
import sys, json, struct
from emit import Emitter

NAME = "sequential_preLN__gqa_block_cached__dense_activation_silu__decode_kernel"
def f2u(x): return struct.unpack("<I", struct.pack("<f", x))[0]

def gen(W=20, NS=56, diag=False, pol="nt", hilo=False, spin=1<<20, enc=None, NF=5, polwo='', ldst=None, qwait=2, iod=1, forcepar=None, nprobe=3, outf='', qside=1, oldroles=0, lwarm=2, awarm=1, bfin=0, splitu=1, shed=1, sprobe=0, clip=2000):
    E = Emitter(); A = E
    WD = W
    NSLOT = 9; SLOT = 16384; RING = NSLOT*SLOT
    L_LANDED = RING; L_CONS = RING+16; L_RED = RING+256; L_OP = RING+512; L_ACT = RING+768; L_QW = RING+1024; L_LN = RING+5120
    LDS = 163840
    WS_E = 0; WS_PAR = 0x800; WS_CNT = 0x1000; WS_H = 0x4000; WS_Q = 0x8000; WS_PRB = 0x10000; WS_D = 0x80000; WS_A = 0x100000; WS_B = 0x200000; WS_ST = 0x400000
    C_SCALE = f2u(1.4426950408889634/16.0); LOG2E = f2u(1.4426950408889634); INV448 = f2u(1.0/448.0); EPS = f2u(1e-5)
    stf = ldf = "sc1"
    sWG="s2"; sWAVE="s3"
    pX="s[4:5]"; pK=(6,7); pV=(8,9); pWQ=(10,11); pWO=(12,13); pW1=(16,17); pW2=(18,19); pOUT="s[20:21]"; pWS="s[24:25]"
    sG="s26"; sJ="s27"; sROLE="s28"; sB="s29"; sHKV="s30"; sN="s31"; sSLOT="s32"; sKNOWN="s33"; sT0="s34"; sT1="s35"; sT2="s36"
    sCI="s37"; sSPIN="s38"; sIDX="s39"; sNS="s63"
    uid=[0]
    def lab(p): uid[0]+=1; return f"L_{p}_{uid[0]}"
    def stamp(k):
        if not diag and not (enc and k in (0, enc[0], enc[1])): return
        A(f"s_memrealtime s[{70+2*k}:{71+2*k}]")
    def slot_advance():
        A(f"s_add_u32 {sN}, {sN}, 1")
        A(f"s_add_u32 {sSLOT}, {sSLOT}, {SLOT}")
        A(f"s_cmp_eq_u32 {sSLOT}, {RING}")
        A(f"s_cselect_b32 {sSLOT}, 0, {sSLOT}")

    A(f"s_cmp_ge_u32 {sWG}, 256")
    A("s_cbranch_scc1 L_end")
    stamp(0)
    A("s_load_dwordx16 s[4:19], s[0:1], 0")
    A("s_load_dwordx4 s[20:23], s[0:1], 64")
    A("s_load_dwordx2 s[24:25], s[0:1], 80")
    A("v_lshrrev_b32 v1, 6, v0")
    A("v_and_b32 v0, 63, v0")
    A(f"v_readfirstlane_b32 {sWAVE}, v1")
    A(f"s_lshr_b32 {sG}, {sWG}, 4")
    A(f"s_and_b32 {sJ}, {sWG}, 15")
    A(f"s_lshr_b32 {sT0}, {sJ}, 3"); A(f"s_lshl_b32 {sT0}, {sT0}, 2"); A(f"s_and_b32 {sROLE}, {sJ}, 3"); A(f"s_add_u32 {sROLE}, {sROLE}, {sT0}")
    A(f"s_sub_u32 {sROLE}, {sROLE}, {sG}"); A(f"s_and_b32 {sROLE}, {sROLE}, 7")
    if qside:
        A(f"s_add_u32 {sT0}, {sROLE}, 4"); A(f"s_add_u32 {sT1}, {sROLE}, 8"); A(f"s_cmp_lt_u32 {sROLE}, 4"); A(f"s_cselect_b32 {sROLE}, {sROLE}, {sT1}")
    else:
        A(f"s_add_u32 {sT0}, {sROLE}, 4"); A(f"s_sub_u32 {sT1}, {sROLE}, 6"); A(f"s_cmp_lt_u32 {sROLE}, 6"); A(f"s_cselect_b32 {sT0}, {sT0}, {sT1}")
        A(f"s_add_u32 {sT1}, {sROLE}, 2"); A(f"s_cmp_lt_u32 {sROLE}, 2"); A(f"s_cselect_b32 {sROLE}, {sT1}, 15")
    A(f"s_bitcmp1_b32 {sJ}, 2"); A(f"s_cselect_b32 {sROLE}, {sROLE}, {sT0}")
    if oldroles: A(f"s_sub_u32 {sROLE}, {sJ}, {sG}"); A(f"s_and_b32 {sROLE}, {sROLE}, 15")
    A(f"s_lshr_b32 {sB}, {sG}, 3")
    A(f"s_and_b32 {sHKV}, {sG}, 7")
    A(f"s_mov_b32 {sN}, 0"); A(f"s_mov_b32 {sSLOT}, 0"); A(f"s_mov_b32 {sKNOWN}, 0"); A(f"s_mov_b32 {sCI}, 0")
    A(f"s_mov_b32 {sSPIN}, {spin}")
    A(f"s_sub_u32 {sT0}, {sROLE}, 8")
    A(f"s_lshl_b32 {sIDX}, {sG}, 1")
    A(f"s_add_u32 {sIDX}, {sIDX}, {sT0}")
    A(f"s_cmp_lt_u32 {sT0}, 2")
    A(f"s_cselect_b32 {sIDX}, {sIDX}, 99")
    A(f"s_mov_b32 {sNS}, {NS}")
    if shed:
        assert qside
        A(f"s_cselect_b32 {sNS}, {NS-4}, {sNS}"); A(f"s_cmp_lt_u32 {sROLE}, 4"); A(f"s_cselect_b32 {sNS}, {NS-2}, {sNS}")
    A(f"v_lshlrev_b32 v1, 2, v0"); A(f"v_add_u32 v1, {L_LANDED}, v1"); A("v_mov_b32 v2, 0")
    A("s_mov_b64 exec, 2"); A("v_mov_b32 v2, 0x7fffffff")
    A("s_mov_b64 exec, 0x1ff"); A("ds_write_b32 v1, v2"); A("s_mov_b64 exec, -1")
    A(f"v_lshlrev_b32 v16, 4, v0")
    A(f"s_and_b32 s61, {sWG}, 127"); A(f"s_mul_i32 s61, s61, {32*896}")
    A("s_mov_b32 s50, 3670016"); A("s_mov_b32 s51, 0x20000"); A("s_mov_b32 s54, 0"); A("s_mov_b32 s55, 0x20000")
    A("s_waitcnt lgkmcnt(0)")
    A("s_barrier")
    A(f"s_cmp_lg_u32 {sWAVE}, 0")
    A("s_cbranch_scc1 L_consumer")

    vK=[4+i for i in range(8)]; vV=[12+i for i in range(4)]; vLIN=16; vTQ=[17,18]; vT1=[19,20]; vFL=21; vTMP=22; vC=24
    srdK="s[40:43]"; srdV="s[44:47]"; srdW="s[48:51]"; srdZ="s[52:55]"
    sCUR="s56"; sGB="s57"; sOFF="s58"; sCLM="s59"; sCOFF="s60"; sBASE="s61"; sFLOOR="s62"
    A("s_setprio 3")
    A(f"v_mov_b32 v{vFL}, {L_LANDED}"); A(f"s_mov_b32 {sFLOOR}, 0")
    A(f"s_mov_b32 s52, s{pK[0]}"); A(f"s_mov_b32 s53, s{pK[1]}")
    def pub_reg():
        A("s_mov_b64 exec, 1"); A(f"ds_write_b32 v{vFL}, v{vTMP}"); A("s_mov_b64 exec, -1")
    def publish(back):
        A(f"s_sub_u32 {sT0}, {sN}, {back}"); A(f"s_max_i32 {sT0}, {sT0}, {sFLOOR}")
        A(f"v_mov_b32 v{vTMP}, {sT0}"); pub_reg()
    def throttle(i, w):
        assert w in (16,20,24,28,32)
        if i % 4 == 3:
            A(f"s_waitcnt vmcnt({w})")
            if w == 16:
                if i == 15: publish(0)
            elif i//4 == (w-16)//4 - 1: publish(1)
    def tile_rows(specs, w, pol=pol):
        for i,(srd,vo,so) in enumerate(specs):
            if i % 4 == 0:
                A(f"s_add_u32 m0, {sSLOT}, {i*1024}" if i else f"s_mov_b32 m0, {sSLOT}")
                A(f"s_add_u32 {sOFF}, {sBASE}, {so}")
            A(f"buffer_load_dwordx4 v{vo}, {srd}, {sOFF} offen offset:{(i%4)*1024} {pol} lds")
            throttle(i, w)
        slot_advance()
    def tile_tall(voffs, rowstride, t, nvalid):
        for i in range(16):
            A(f"s_add_u32 m0, {sSLOT}, {i*1024}" if i else f"s_mov_b32 m0, {sSLOT}")
            A(f"s_add_u32 {sOFF}, {sBASE}, {(t*128+i*8)*rowstride}")
            A(f"buffer_load_dwordx4 v{voffs[i&1]}, {srdW if i < nvalid else srdZ}, {sOFF} offen {pol} lds")
            throttle(i, W)
        slot_advance()
    def tile_wide(t, w=W, pol=pol): tile_rows([(srdW if i < 14 else srdZ, vLIN, t*14336+i*1024) for i in range(16)], w, pol)
    def freecheck(k):
        ok = lab("free"); lp = lab("freepoll")
        A(f"s_add_u32 {sT1}, {sN}, {k}")
        A(f"s_add_u32 {sT0}, {sKNOWN}, {NSLOT}")
        A(f"s_cmp_ge_u32 {sT0}, {sT1}"); A(f"s_cbranch_scc1 {ok}")
        E.label(lp)
        A(f"ds_read_b128 v[{vC}:{vC+3}], v{vFL} offset:16")
        A(f"s_sub_u32 {sSPIN}, {sSPIN}, 1"); A("s_cbranch_scc1 L_end")
        A("s_waitcnt lgkmcnt(0)")
        A(f"v_min3_u32 v{vC}, v{vC}, v{vC+1}, v{vC+2}"); A(f"v_min_u32 v{vC}, v{vC}, v{vC+3}")
        A(f"v_readfirstlane_b32 {sKNOWN}, v{vC}")
        A(f"s_add_u32 {sT0}, {sKNOWN}, {NSLOT}")
        A(f"s_cmp_ge_u32 {sT0}, {sT1}"); A(f"s_cbranch_scc1 {ok}")
        A("s_sleep 1")
        A(f"s_branch {lp}")
        E.label(ok)
    def setW(p, nbytes):
        A(f"s_mov_b32 s48, s{p[0]}"); A(f"s_mov_b32 s49, s{p[1]}"); A(f"s_mov_b32 s50, {nbytes}")
    A(f"s_cmp_lt_u32 {sROLE}, 4"); A("s_cbranch_scc1 L_ld_q")
    if iod and forcepar is None:
        A(f"s_cmp_eq_u32 {sWG}, {15*16 + 3}"); A("s_cbranch_scc1 L_probe")
    E.label("L_ld_wo")
    A(f"s_mov_b32 s48, s{pWO[0]}"); A(f"s_mov_b32 s49, s{pWO[1]}")
    for t in range(2): tile_wide(t, pol=polwo)
    A("v_lshrrev_b32 v1, 5, v0"); A("v_and_b32 v2, 31, v0")
    A("v_xor_b32 v3, v2, v1"); A("v_lshlrev_b32 v3, 4, v3"); A("v_lshl_or_b32 v3, v1, 9, v3")
    for i in range(8): A(f"v_xor_b32 v{vK[i]}, {i*32}, v3")
    A("v_lshlrev_b32 v3, 1, v1"); A("v_xor_b32 v3, v2, v3"); A("v_lshlrev_b32 v3, 4, v3"); A("v_lshl_or_b32 v3, v1, 9, v3")
    for i in range(4): A(f"v_xor_b32 v{vV[i]}, {i*64}, v3")
    A(f"s_lshl_b32 {sGB}, {sG}, 24")
    A(f"s_lshl_b32 {sCUR}, {sJ}, 7")
    A(f"s_lshl_b32 {sCOFF}, {sG}, 8"); A(f"s_add_u32 {sCOFF}, {sCOFF}, {WS_CNT}")
    A(f"s_mov_b32 s40, s{pK[0]}"); A(f"s_mov_b32 s41, s{pK[1]}"); A("s_mov_b32 s42, 0x10000000"); A("s_mov_b32 s43, 0x20000")
    A(f"s_mov_b32 s44, s{pV[0]}"); A(f"s_mov_b32 s45, s{pV[1]}"); A("s_mov_b32 s46, 0x10000000"); A("s_mov_b32 s47, 0x20000")
    A(f"s_cmp_lt_u32 {sIDX}, 28"); A(f"s_cbranch_scc1 L_ld_ffn")
    E.label("L_ld_noffn")
    vCA=28; vONE=29; vCL=[30,31]
    def vclaim_issue(p):
        A("s_mov_b64 exec, 1"); A(f"global_atomic_add v{vCL[p]}, v{vCA}, v{vONE}, {pWS} sc0"); A("s_mov_b64 exec, -1")
    A(f"v_mov_b32 v{vCA}, {sCOFF}"); A(f"v_mov_b32 v{vONE}, 1")
    EXTRA = 32 if shed else 0; POOL = 2048-32*NS+EXTRA; TL = 128-2*NS
    assert W <= 32
    def pub_word(off, sreg):
        A(f"v_mov_b32 v{vTMP}, {sreg}")
        A("s_mov_b64 exec, 1"); A(f"ds_write_b32 v{vFL}, v{vTMP} offset:{off}"); A("s_mov_b64 exec, -1")
    E.label("L_ld_loop")
    if diag:
        for k,c in enumerate(ldst or (0,2,3,4,6,8,16,32,NS-5)):
            sk=lab("ls"); A(f"s_cmp_lg_u32 {sCI}, {c}"); A(f"s_cbranch_scc1 {sk}"); A(f"s_memrealtime s[{72+2*k}:{73+2*k}]"); A("s_waitcnt lgkmcnt(0)"); E.label(sk)
    A(f"s_add_u32 {sCI}, {sCI}, 1")
    A(f"s_lshl_b32 {sBASE}, {sCUR}, 13"); A(f"s_add_u32 {sBASE}, {sBASE}, {sGB}")
    for p,(srd,vo) in enumerate(((srdK,vK),(srdV,vV))):
        freecheck(1)
        sk = lab("nocl"); A(f"s_cmp_lt_u32 {sCI}, {sNS}"); A(f"s_cbranch_scc1 {sk}")
        vclaim_issue(p)
        E.label(sk)
        tile_rows([(srd, vo[i%len(vo)], i*1024) for i in range(16)], W)
    A(f"s_add_u32 {sCUR}, {sCUR}, 2")
    A(f"s_cmp_lt_u32 {sCI}, {sNS}"); A("s_cbranch_scc1 L_ld_loop")
    E.label("L_ld_dyn")
    for p in range(2):
        A(f"v_readfirstlane_b32 {sCLM}, v{vCL[p]}")
        A(f"s_cmp_ge_u32 {sCLM}, {POOL}"); A("s_cbranch_scc1 L_ld_dyn_done")
        if shed:
            A(f"s_cmp_lt_u32 {sCLM}, {EXTRA}"); A(f"s_cbranch_scc1 L_ld_shed{p}")
            A(f"s_sub_u32 {sCLM}, {sCLM}, {EXTRA}")
        A(f"s_mul_hi_u32 {sT0}, {sCLM}, {-(-(1<<32)//TL)}"); A(f"s_mul_i32 {sT0}, {sT0}, {2*NS}"); A(f"s_add_u32 {sCUR}, {sCLM}, {sT0}"); A(f"s_add_u32 {sCUR}, {sCUR}, {2*NS}")
        E.label(f"L_ld_unit{p}")
        freecheck(1)
        vclaim_issue(p)
        if splitu:
            A(f"s_lshr_b32 {sBASE}, {sCUR}, 1"); A(f"s_lshl_b32 {sBASE}, {sBASE}, 14"); A(f"s_and_b32 {sT0}, {sCUR}, 1"); A(f"s_lshl_b32 {sT0}, {sT0}, 12"); A(f"s_add_u32 {sBASE}, {sBASE}, {sT0}")
        else: A(f"s_lshl_b32 {sBASE}, {sCUR}, 13")
        A(f"s_add_u32 {sBASE}, {sBASE}, {sGB}")
        st = 2048 if splitu else 1024
        tile_rows([(srdK, vK[i], i*st) for i in range(8)] + [(srdV, vV[i%4], i*st) for i in range(8)], WD)
    A("s_branch L_ld_dyn")
    for p in range(2 if shed else 0):
        E.label(f"L_ld_shed{p}")
        A(f"s_lshr_b32 {sT0}, {sCLM}, 3"); A(f"s_add_u32 {sT0}, {sT0}, 4"); A(f"s_and_b32 {sT1}, {sCLM}, 7"); A(f"s_add_u32 {sT1}, {sT1}, {2*(NS-4)}")
        A(f"s_bfe_u32 {sT2}, {sCLM}, 0x20002"); A(f"s_and_b32 {sCUR}, {sCLM}, 3"); A(f"s_add_u32 {sCUR}, {sCUR}, {2*(NS-2)+4*128}")
        A(f"s_cmp_lt_u32 {sCLM}, 16"); A(f"s_cselect_b32 {sT0}, {sT0}, {sT2}"); A(f"s_cselect_b32 {sCUR}, {sT1}, {sCUR}")
        A(f"s_add_u32 {sT0}, {sT0}, {sG}"); A(f"s_and_b32 {sT1}, {sT0}, 3"); A(f"s_bfe_u32 {sT0}, {sT0}, 0x10002"); A(f"s_lshl_b32 {sT0}, {sT0}, 3"); A(f"s_add_u32 {sT0}, {sT0}, {sT1}")
        A(f"s_lshl_b32 {sT0}, {sT0}, 7"); A(f"s_add_u32 {sCUR}, {sCUR}, {sT0}")
        A(f"s_branch L_ld_unit{p}")
    E.label("L_ld_dyn_done")
    pub_word(4, sN)
    for c,back in ((16,1),(0,0)):
        A(f"s_waitcnt vmcnt({c})"); publish(back)
    if diag:
        A("s_mov_b64 exec, 1")
        A("s_memrealtime s[90:91]")
        A(f"s_lshl_b32 {sT0}, {sWG}, 6"); A(f"s_add_u32 {sT0}, {sT0}, {WS_ST+0x40000}"); A(f"v_mov_b32 v46, {sT0}")
        A("s_waitcnt lgkmcnt(0)")
        for k in range(11): A(f"v_mov_b32 v{32+k}, s{70+2*k}")
        A(f"v_mov_b32 v43, {sSPIN}")
        for q in range(3): A(f"global_store_dwordx4 v46, v[{32+4*q}:{35+4*q}], {pWS} offset:{q*16}")
    A("s_waitcnt lgkmcnt(0)")
    A("s_endpgm")

    def tall_voffs(dst, stride):
        A("v_lshrrev_b32 v1, 3, v0"); A("v_and_b32 v2, 7, v0"); A("v_and_b32 v3, 2, v1"); A("v_xor_b32 v2, v2, v3"); A("v_lshlrev_b32 v2, 4, v2")
        A(f"v_mul_u32_u24 v3, {stride}, v1"); A(f"v_add_u32 v{dst[0]}, v3, v2"); A("v_xor_b32 v2, 64, v2"); A(f"v_add_u32 v{dst[1]}, v3, v2")
    E.label("L_ld_q")
    tall_voffs(vTQ, 8192)
    A(f"s_mov_b32 s48, s{pWQ[0]}"); A(f"s_mov_b32 s49, s{pWQ[1]}")
    A(f"s_lshl_b32 {sT1}, {sHKV}, 10"); A(f"s_lshl_b32 {sT0}, {sB}, 2"); A(f"s_add_u32 {sT0}, {sT0}, {sROLE}"); A(f"s_lshl_b32 {sT0}, {sT0}, 7")
    A(f"s_add_u32 {sT1}, {sT1}, {sT0}")
    for i in range(56):
        A(f"s_mov_b32 m0, {i*1024}")
        A(f"s_add_u32 {sOFF}, {sT1}, {i*8*8192}")
        A(f"buffer_load_dwordx4 v{vTQ[i&1]}, {srdW}, {sOFF} offen {pol} lds")
    for k,c in enumerate((40,24,8,0)):
        A(f"s_waitcnt vmcnt({c})"); A(f"v_mov_b32 v{vTMP}, {k+1}"); pub_reg()
    A(f"s_mov_b32 {sN}, 4"); A(f"s_mov_b32 {sSLOT}, {4*SLOT}"); A(f"s_mov_b32 {sFLOOR}, 4")
    A("s_branch L_ld_wo")
    if iod and forcepar is None:
        E.label("L_probe")
        A(f"s_load_dword s69, {pWS}, {WS_E}")
        A("s_mov_b64 exec, 1")
        for k,off in enumerate((WS_PRB, WS_PRB+8192, WS_B, WS_B+8192)):
            A(f"v_mov_b32 v{32+k}, {off}"); A(f"s_mov_b32 s{92+k}, 0"); A(f"s_mov_b32 s{96+k}, {off}")
        A("v_mov_b32 v36, 0"); A(f"s_mov_b32 {sCI}, {nprobe}")
        for k in range(4): A(f"global_atomic_add v37, v{32+k}, v36, {pWS} sc0")
        A("s_waitcnt vmcnt(0)")
        E.label("L_probe_loop")
        for k in range(4):
            A("s_memtime s[64:65]"); A("s_waitcnt lgkmcnt(0)")
            if sprobe: A("s_mov_b32 s68, 0"); A(f"s_atomic_add s68, {pWS}, s{96+k} glc"); A("s_waitcnt lgkmcnt(0)")
            else: A(f"global_atomic_add v37, v{32+k}, v36, {pWS} sc0"); A("s_waitcnt vmcnt(0)")
            A("s_memtime s[66:67]"); A("s_waitcnt lgkmcnt(0)")
            A("s_sub_u32 s66, s66, s64"); A(f"s_min_u32 s66, s66, {clip}"); A(f"s_add_u32 s{92+k}, s{92+k}, s66")
            if diag == 3:
                A(f"s_lshl_b32 {sT0}, {sCI}, 4"); A(f"s_add_u32 {sT0}, {sT0}, {WS_ST+0x50000+4*k}"); A(f"v_mov_b32 v38, {sT0}"); A("v_mov_b32 v39, s66")
                A(f"global_store_dword v38, v39, {pWS}"); A("s_waitcnt vmcnt(0)")
        A(f"s_sub_u32 {sCI}, {sCI}, 1"); A(f"s_cmp_lg_u32 {sCI}, 0"); A("s_cbranch_scc1 L_probe_loop")
        A("s_cmp_gt_u32 s92, s93"); A(f"s_cselect_b32 {sT0}, 8192, 0")
        A("s_cmp_gt_u32 s94, s95"); A(f"s_cselect_b32 {sT1}, 8192, 0")
        A(f"s_mul_i32 {sT2}, s69, 0x9e3779b1"); A(f"s_add_u32 {sT2}, {sT2}, 0x7f4a7c15")
        A(f"v_mov_b32 v32, {sT0}"); A(f"v_mov_b32 v33, {sT2}"); A(f"v_mov_b32 v34, {sT1}"); A(f"v_mov_b32 v35, {sT2}"); A(f"v_mov_b32 v36, {WS_PAR}")
        A(f"global_store_dwordx4 v36, v[32:35], {pWS} {stf}")
        A("s_mov_b64 exec, -1")
        A("s_branch L_ld_wo")
    E.label("L_ld_ffn")
    tall_voffs(vT1, 3584)
    setW(pW1, 448*1792*2)
    A(f"s_lshl_b32 {sBASE}, {sIDX}, 7")
    for t in range(4):
        if t % 2 == 0: freecheck(2)
        tile_tall(vT1, 3584, t, 16 if t < 3 else 8)
    setW(pW2, 1792*448*2)
    A(f"s_mul_i32 {sBASE}, {sIDX}, {64*896}")
    for t in range(4):
        if t % 2 == 0: freecheck(2)
        tile_wide(t)
    A("s_branch L_ld_noffn")

    E.label("L_consumer")
    sW="s40"; sTAG="s41"; sM1="s[42:43]"; sM2="s[44:45]"; sC="s46"; sE="s47"; sRR="s48"; sTOT="s49"
    sCK=["s[50:51]","s[52:53]","s[54:55]","s[56:57]"]; sCOL="s58"; sGP="s59"; sP0="s60"; sP1="s61"; sWRM="s62"
    vLANE=0; vN=1; vG4=2; vFLG=3; vCONS=4; vTM=5; vTM2=6; vTM3=7
    vM=8; vMC=9; vL=10; vMX=11
    vKB=[12,13,14,15]; vVB=[16,17,18,19]; vAD=[20,21,22,23]
    vS=24; vP=32; vO=36; vQ=52; vF=84
    vAA=104; vAI=105; vBA=106; vPOLL=None
    assert NF <= 5
    vWO=108; vW1=136; vW2=192; vX=248; vXH=254
    def P(r): return f"v[{r}:{r+1}]"
    def Q4(r): return f"v[{r}:{r+3}]"
    def SEL4(dst, a, b, c, d, t):
        A(f"v_cndmask_b32 v{dst}, v{a}, v{b}, {sM1}"); A(f"v_cndmask_b32 v{t}, v{c}, v{d}, {sM1}"); A(f"v_cndmask_b32 v{dst}, v{dst}, v{t}, {sM2}")
    def xrow(op, regs, tmps):
        for sw in ("v_permlane16_swap_b32","v_permlane32_swap_b32"):
            for r,t in zip(regs,tmps): A(f"v_mov_b32 v{t}, v{r}")
            for r,t in zip(regs,tmps): A(f"{sw} v{r}, v{t}")
            for r,t in zip(regs,tmps): A(f"{op} v{r}, v{r}, v{t}")
    def round_bf(dst, src):
        A(f"v_cvt_pk_bf16_f32 v{dst}, v{src}, v{src}"); A(f"v_and_b32 v{dst}, 0xffff0000, v{dst}")
    def unpack(lo, hi, src):
        A(f"v_lshlrev_b32 v{lo}, 16, v{src}"); A(f"v_and_b32 v{hi}, 0xffff0000, v{src}")
    def pub_cons():
        slot_advance()
        A(f"v_mov_b32 v{vTM}, {sN}")
        A("s_mov_b64 exec, 1"); A(f"ds_write_b32 v{vCONS}, v{vTM}"); A("s_mov_b64 exec, -1")
    def wait_tile(fin=None, lim=None):
        ok = lab("have"); lp = lab("poll")
        if fin: A(f"s_cmp_eq_u32 {lim}, {sN}"); A(f"s_cbranch_scc1 {fin}")
        A(f"s_cmp_gt_u32 {sKNOWN}, {sN}"); A(f"s_cbranch_scc1 {ok}")
        E.label(lp)
        A(f"ds_read_b64 {P(vAD[0])}, v{vFLG}")
        A(f"s_sub_u32 {sSPIN}, {sSPIN}, 1"); A("s_cbranch_scc1 L_end")
        A("s_waitcnt lgkmcnt(0)")
        A(f"v_readfirstlane_b32 {sKNOWN}, v{vAD[0]}"); A(f"v_readfirstlane_b32 {sTOT}, v{vAD[1]}")
        if fin and lwarm:
            nw = lab("nw")
            A(f"s_cmp_ge_u32 {sTOT}, {sWRM}"); A(f"s_cbranch_scc1 {nw}")
            A(f"s_mov_b32 {sWRM}, 0")
            A(f"global_load_dword v{vX+2}, v{vX+3}, {pWS} {ldf}")
            E.label(nw)
        if fin: A(f"s_cmp_eq_u32 {lim}, {sN}"); A(f"s_cbranch_scc1 {fin}")
        A(f"s_cmp_gt_u32 {sKNOWN}, {sN}"); A(f"s_cbranch_scc1 {ok}")
        A("s_sleep 1")
        A(f"s_branch {lp}")
        E.label(ok)
    def poll(loads, tags, first_mask=None):
        lp = lab("gpoll"); n = len(loads)
        for i in range(n): A(f"s_mov_b64 {sCK[i]}, {first_mask[i] if first_mask else -1}")
        E.label(lp)
        for i,l in enumerate(loads):
            sk = lab("sk")
            A(f"s_mov_b64 exec, {sCK[i]}"); A(f"s_cbranch_execz {sk}"); A(l); E.label(sk)
        A("s_mov_b64 exec, -1")
        A(f"s_sub_u32 {sSPIN}, {sSPIN}, 1"); A("s_cbranch_scc1 L_end")
        A("s_waitcnt vmcnt(0)")
        for i in range(n):
            A(f"v_cmp_ne_u32 {sCK[i]}, {sTAG}, v{tags[i][0]}")
            for t in tags[i][1:]:
                A(f"v_cmp_ne_u32 vcc, {sTAG}, v{t}"); A(f"s_or_b64 {sCK[i]}, {sCK[i]}, vcc")
        A(f"s_or_b64 vcc, {sCK[0]}, {sCK[min(1,n-1)]}")
        for i in range(2, n): A(f"s_or_b64 vcc, vcc, {sCK[i]}")
        A(f"s_cbranch_scc1 {lp}")
    def layernorm(xr, f, lnbase, stride):
        s1=vTM; t=vTM2; mu=vX; a=vX+2; b=vX+4
        for u in range(7): unpack(f+2*u, f+2*u+1, xr[u])
        A(f"v_pk_add_f32 {P(a)}, {P(f)}, {P(f+2)}"); A(f"v_pk_add_f32 {P(b)}, {P(f+4)}, {P(f+6)}")
        A(f"v_pk_add_f32 {P(a)}, {P(a)}, {P(f+8)}"); A(f"v_pk_add_f32 {P(b)}, {P(b)}, {P(f+10)}")
        A(f"v_pk_add_f32 {P(a)}, {P(a)}, {P(f+12)}"); A(f"v_pk_add_f32 {P(a)}, {P(a)}, {P(b)}")
        A(f"v_add_f32 v{s1}, v{a}, v{a+1}")
        def red32(r):
            for k in (8,4,2,1): A(f"v_add_f32_dpp v{r}, v{r}, v{r} row_ror:{k} row_mask:0xf bank_mask:0xf")
            A(f"v_mov_b32 v{t}, v{r}"); A(f"v_permlane16_swap_b32 v{r}, v{t}"); A(f"v_add_f32 v{r}, v{r}, v{t}")
        red32(s1)
        A(f"v_mul_f32 v{mu}, {INV448:#x}, v{s1}")
        NEG = "op_sel_hi:[1,0] neg_lo:[0,1] neg_hi:[0,1]"
        A(f"v_pk_add_f32 {P(b)}, {P(f)}, {P(mu)} {NEG}")
        A(f"v_pk_mul_f32 {P(a)}, {P(b)}, {P(b)}")
        for u in range(1,7):
            A(f"v_pk_add_f32 {P(b)}, {P(f+2*u)}, {P(mu)} {NEG}")
            A(f"v_pk_fma_f32 {P(a)}, {P(b)}, {P(b)}, {P(a)}")
        A(f"v_add_f32 v{s1}, v{a}, v{a+1}")
        round_bf(mu, mu)
        fill = [f"v_pk_add_f32 {P(f+2*u)}, {P(f+2*u)}, {P(mu)} {NEG}" for u in range(7)] + [f"v_cvt_pk_bf16_f32 v{xr[u]}, v{f+2*u}, v{f+2*u+1}" for u in range(7)]
        for u in range(7): fill += [f"v_lshlrev_b32 v{f+2*u}, 16, v{xr[u]}", f"v_and_b32 v{f+2*u+1}, 0xffff0000, v{xr[u]}"]
        chain = [f"v_add_f32_dpp v{s1}, v{s1}, v{s1} row_ror:{k} row_mask:0xf bank_mask:0xf" for k in (8,4,2,1)]
        chain += [f"v_mov_b32 v{t}, v{s1}", f"v_permlane16_swap_b32 v{s1}, v{t}", f"v_add_f32 v{s1}, v{s1}, v{t}",
                  f"v_mul_f32 v{s1}, {INV448:#x}, v{s1}", f"v_cvt_pk_bf16_f32 v{s1}, v{s1}, v{s1}", f"v_and_b32 v{s1}, 0xffff0000, v{s1}",
                  f"v_add_f32 v{s1}, {EPS:#x}, v{s1}", f"v_cvt_pk_bf16_f32 v{s1}, v{s1}, v{s1}", f"v_and_b32 v{s1}, 0xffff0000, v{s1}",
                  f"v_sqrt_f32 v{s1}, v{s1}", f"v_cvt_pk_bf16_f32 v{s1}, v{s1}, v{s1}", f"v_and_b32 v{s1}, 0xffff0000, v{s1}", f"v_rcp_f32 v{a}, v{s1}"]
        while chain or fill:
            for _ in range(2):
                if fill: A(fill.pop(0))
            if chain: A(chain.pop(0))
        for u in range(7): A(f"v_pk_mul_f32 {P(f+2*u)}, {P(f+2*u)}, {P(a)} op_sel_hi:[1,0]")
        for u in range(7):
            A(f"v_cvt_pk_bf16_f32 v{xr[u]}, v{f+2*u}, v{f+2*u+1}")
            A(f"ds_write_b32 v{lnbase}, v{xr[u]} offset:{u*stride}")
    def ln_read_addr(rd, base):
        A(f"v_and_b32 v{rd}, 1, v{vLANE}"); A(f"v_mul_u32_u24 v{rd}, 896, v{rd}")
        A(f"v_lshl_add_u32 v{rd}, v{vG4}, 4, v{rd}"); A(f"v_add_u32 v{rd}, {base}, v{rd}")
    def tall_addr(dst):
        A(f"v_lshrrev_b32 v{vTM}, 3, v{vN}")
        A(f"v_and_b32 v{vTM2}, 1, v{vG4}"); A(f"v_lshl_or_b32 v{vTM}, v{vTM2}, 1, v{vTM}")
        A(f"v_xor_b32 v{vTM}, {sW}, v{vTM}"); A(f"v_lshlrev_b32 v{vTM}, 5, v{vTM}")
        A(f"v_and_b32 v{vTM2}, 3, v{vN}"); A(f"v_lshl_or_b32 v{vTM}, v{vTM2}, 3, v{vTM}")
        A(f"v_lshrrev_b32 v{vTM2}, 2, v{vN}"); A(f"v_lshl_or_b32 v{vTM}, v{vTM2}, 7, v{vTM}")
        A(f"v_lshl_or_b32 v{dst}, v{vG4}, 10, v{vTM}")
    def wide_addr(dst):
        A(f"v_lshrrev_b32 v{vTM}, 2, v{vN}"); A(f"v_lshl_add_u32 v{vTM}, v{vG4}, 2, v{vTM}"); A(f"v_mul_u32_u24 v{vTM}, 896, v{vTM}")
        A(f"v_and_b32 v{vTM2}, 3, v{vN}"); A(f"v_lshl_add_u32 v{vTM}, v{vTM2}, 3, v{vTM}")
        A(f"s_mul_i32 {sT0}, {sW}, 224"); A(f"v_add_u32 v{dst}, {sT0}, v{vTM}")
    def read_tall_tile(base, dstreg, t):
        wait_tile()
        A(f"v_add_u32 v{vAD[0]}, {sSLOT}, v{base}")
        for s in range(4 if t < 3 else 2):
            for h2 in range(2):
                A(f"ds_read_b64_tr_b16 {P(dstreg + 4*(4*t+s) + 2*h2)}, v{vAD[0]} offset:{s*4096+h2*512}")
        A("s_waitcnt lgkmcnt(0)")
        pub_cons()
    def read_wide_tile(base, dstreg, half):
        wait_tile()
        A(f"v_add_u32 v{vAD[0]}, {sSLOT}, v{base}")
        for tt in range(7): A(f"ds_read_b64_tr_b16 {P(dstreg + 4*tt + 2*half)}, v{vAD[0]} offset:{tt*32}")
        A("s_waitcnt lgkmcnt(0)")
        pub_cons()
    def msg_lane_addr(dst, per_rr_shift):
        A(f"v_lshrrev_b32 v{vTM}, 3, v{vLANE}"); A(f"v_lshlrev_b32 v{vTM}, {per_rr_shift}, v{vTM}")
        A(f"v_and_b32 v{vTM2}, 7, v{vLANE}"); A(f"v_lshl_or_b32 v{dst}, v{vTM2}, 4, v{vTM}")

    A(f"s_sub_u32 {sW}, {sWAVE}, 1")
    A(f"v_and_b32 v{vN}, 15, v{vLANE}"); A(f"v_lshrrev_b32 v{vG4}, 4, v{vLANE}")
    A(f"v_mov_b32 v{vFLG}, {L_LANDED}")
    A(f"s_lshl_b32 {sT0}, {sW}, 2"); A(f"s_add_u32 {sT0}, {sT0}, {L_CONS}"); A(f"v_mov_b32 v{vCONS}, {sT0}")
    A("s_mov_b32 s42, 0xffff0000"); A("s_mov_b32 s43, 0xffff0000"); A("s_mov_b32 s44, 0"); A("s_mov_b32 s45, -1")
    A(f"s_mov_b32 {sC}, {C_SCALE:#x}"); A("s_mov_b32 s66, -1"); A("s_mov_b32 s67, 0"); A(f"s_mov_b32 {sTOT}, 0x7fffffff")
    if hilo: A("s_mov_b32 s64, 0xcccccccc"); A("s_mov_b32 s65, 0xcccccccc")
    A(f"s_sub_u32 {sT0}, {sROLE}, 4"); A(f"s_lshl_b32 {sRR}, {sG}, 2"); A(f"s_add_u32 {sRR}, {sRR}, {sT0}")
    A(f"s_cmp_lt_u32 {sT0}, 4"); A(f"s_cselect_b32 {sRR}, {sRR}, 99")
    A(f"s_bfe_u32 {sT0}, {sRR}, 0x20003"); A(f"s_mul_i32 {sCOL}, {sT0}, 224")
    A(f"s_bfe_u32 {sGP}, {sRR}, 0x20001"); A(f"s_lshl_b32 {sT0}, {sGP}, 6"); A(f"s_add_u32 {sCOL}, {sCOL}, {sT0}")
    A(f"s_and_b32 {sT0}, {sRR}, 1"); A(f"s_lshl_b32 {sT0}, {sT0}, 4"); A(f"s_add_u32 {sCOL}, {sCOL}, {sT0}")
    A(f"s_bfe_u32 {sT0}, {sRR}, 0x10005"); A(f"s_mul_i32 {sT0}, {sT0}, 896"); A(f"s_add_u32 {sCOL}, {sCOL}, {sT0}")
    A(f"s_load_dword {sE}, {pWS}, {WS_E}")
    stamp(11)
    A(f"s_cmp_ge_u32 {sRR}, 64"); A("s_cbranch_scc1 L_nox")
    A(f"v_and_b32 v{vTM}, 6, v{vLANE}"); A(f"v_lshl_add_u32 v{vTM}, v{vTM}, 1, {sCOL}")
    A(f"global_load_dword v{vXH}, v{vTM}, {pX}")
    A(f"v_mov_b32 v{vXH+1}, 0")
    A(f"s_cmp_eq_u32 {sGP}, 3"); A("s_cbranch_scc1 L_nox")
    A(f"global_load_dword v{vXH+1}, v{vTM}, {pX} offset:32")
    E.label("L_nox")
    A(f"v_xor_b32 v{vTM}, v{vG4}, v{vN}"); A(f"v_lshlrev_b32 v{vTM}, 4, v{vTM}"); A(f"v_lshl_or_b32 v{vTM}, v{vN}, 9, v{vTM}")
    for s in range(4): A(f"v_xor_b32 v{vKB[s]}, {s*64}, v{vTM}")
    A(f"v_lshrrev_b32 v{vTM}, 2, v{vN}"); A(f"v_lshl_add_u32 v{vTM}, v{vG4}, 2, v{vTM}")
    A(f"v_and_b32 v{vTM2}, 7, v{vTM}")
    A(f"s_lshl_b32 {sT0}, {sW}, 2"); A(f"v_xor_b32 v{vTM2}, {sT0}, v{vTM2}"); A(f"v_lshlrev_b32 v{vTM2}, 5, v{vTM2}")
    A(f"v_lshl_or_b32 v{vTM}, v{vTM}, 9, v{vTM2}")
    A(f"v_and_b32 v{vTM2}, 3, v{vN}"); A(f"v_lshl_or_b32 v{vTM}, v{vTM2}, 3, v{vTM}")
    for e in range(4): A(f"v_xor_b32 v{vVB[e]}, {e*32}, v{vTM}")
    A(f"v_mov_b32 v{vM}, 0xff800000"); A(f"v_mov_b32 v{vMC}, 0xff800000"); A(f"v_mov_b32 v{vL}, 0")
    for i in range(16): A(f"v_mov_b32 v{vO+i}, 0")
    A(f"s_cmp_ge_u32 {sROLE}, 4")
    A("s_cbranch_scc1 L_q_wait")
    xr = [vWO+u for u in range(7)]; f14 = vWO+8; vLW = vWO+24; vLR = vWO+25; vTA = vWO+26
    A(f"v_lshrrev_b32 v{vLW}, 5, v{vLANE}"); A(f"v_mul_u32_u24 v{vLW}, 896, v{vLW}")
    A(f"v_and_b32 v{vTM2}, 31, v{vLANE}"); A(f"v_lshl_add_u32 v{vLW}, v{vTM2}, 2, v{vLW}")
    for u in range(7): A(f"global_load_dword v{xr[u]}, v{vLW}, {pX} offset:{u*128}")
    A(f"s_or_b32 {sT0}, {sROLE}, {sW}"); A(f"s_cmp_lg_u32 {sT0}, 0"); A("s_cbranch_scc1 L_noinit")
    A(f"s_lshl_b32 {sT0}, {sG}, 8"); A(f"s_add_u32 {sT0}, {sT0}, {WS_CNT}")
    A(f"v_mov_b32 v{vTM2}, {sT0}"); A(f"v_mov_b32 v{vTM3}, 0")
    A("s_mov_b64 exec, 1"); A(f"global_store_dword v{vTM2}, v{vTM3}, {pWS} {stf}"); A("s_mov_b64 exec, -1")
    E.label("L_noinit")
    A(f"s_lshl_b32 {sT2}, {sW}, 11"); A(f"s_add_u32 {sT2}, {sT2}, {L_LN}")
    A(f"v_add_u32 v{vLW}, {sT2}, v{vLW}")
    ln_read_addr(vLR, sT2)
    tall_addr(vTA)
    A("s_waitcnt vmcnt(0) lgkmcnt(0)")
    stamp(12)
    layernorm(xr, f14, vLW, 128)
    A("s_waitcnt lgkmcnt(0)")
    stamp(13)
    for s in range(14): A(f"ds_read_b128 {Q4(vW2+4*s)}, v{vLR} offset:{s*64}")
    for t in range(4):
        read_tall_tile(vTA, vW1, t)
        if t == 0: stamp(14)
        for s in range(4*t, min(4*t+4, 14)):
            A(f"v_mfma_f32_16x16x32_bf16 {Q4(vS)}, {Q4(vW2+4*s)}, {Q4(vW1+4*s)}, {'0' if s==0 else Q4(vS)}")
    A(f"s_lshl_b32 {sT0}, {sB}, 2"); A(f"s_add_u32 {sT0}, {sT0}, {sROLE}"); A(f"s_lshl_b32 {sT0}, {sT0}, 2"); A(f"s_add_u32 {sT0}, {sT0}, {sW}")
    A(f"s_lshl_b32 {sT0}, {sT0}, 6"); A(f"s_lshl_b32 {sT1}, {sHKV}, 11"); A(f"s_add_u32 {sT0}, {sT0}, {sT1}"); A(f"s_add_u32 {sT0}, {sT0}, {WS_Q}")
    A(f"v_lshlrev_b32 v{vTM3}, 2, v{vN}"); A(f"v_lshl_add_u32 v{vTM3}, v{vG4}, 14, v{vTM3}"); A(f"v_add_u32 v{vTM3}, {sT0}, v{vTM3}")
    A(f"s_mul_i32 {sTAG}, {sE}, 0x9e3779b1"); A(f"s_add_u32 {sTAG}, {sTAG}, 0x7f4a7c15")
    A(f"v_cndmask_b32 v{vTM}, v{vS}, v{vS+1}, {sM1}")
    A(f"v_mov_b32_dpp v{vTM2}, v{vTM} quad_perm:[1,0,3,2] row_mask:0xf bank_mask:0xf")
    A(f"v_mov_b32 v{vX+1}, {sTAG}")
    A(f"v_cvt_pk_bf16_f32 v{vX}, v{vTM}, v{vTM2}")
    A("s_mov_b64 exec, 0x55555555")
    A(f"global_store_dwordx2 v{vTM3}, {P(vX)}, {pWS} {stf}")
    A("s_mov_b64 exec, -1")
    stamp(1)
    E.label("L_q_wait")
    wide_addr(vX)
    for h in range(2): read_wide_tile(vX, vWO, h)
    A(f"s_cmp_ge_u32 {sIDX}, 28"); A("s_cbranch_scc1 L_noffn")
    tall_addr(vX+1)
    for t in range(4): read_tall_tile(vX+1, vW1, t)
    for t in range(4): read_wide_tile(vX, vW2 + 28*(t>>1), t & 1)
    E.label("L_noffn")
    A("s_waitcnt lgkmcnt(0)")
    A(f"s_mul_i32 {sTAG}, {sE}, 0x9e3779b1"); A(f"s_add_u32 {sTAG}, {sTAG}, 0x7f4a7c15")
    A(f"s_lshl_b32 {sT0}, {sG}, 11"); A(f"s_add_u32 {sT0}, {sT0}, {WS_Q}")
    A(f"v_lshl_add_u32 v{vTM3}, v{vLANE}, 4, {sT0}")
    qdepth = 1
    if qdepth: A(f"s_cmp_ge_u32 {sIDX}, 28"); A("s_cbranch_scc1 L_q_fast")
    if True:
        poll([f"global_load_dwordx4 {Q4(vF)}, v{vTM3}, {pWS} {ldf}", f"global_load_dwordx4 {Q4(vF+4)}, v{vTM3}, {pWS} offset:1024 {ldf}"],
             [[vF+1, vF+3], [vF+5, vF+7]])
        A(f"s_lshl_b32 {sT0}, {sW}, 10"); A(f"s_add_u32 {sT0}, {sT0}, {L_QW}")
        A(f"v_mov_b32 v{vF+1}, v{vF+2}"); A(f"v_mov_b32 v{vF+5}, v{vF+6}")
        A(f"v_lshl_add_u32 v{vTM}, v{vLANE}, 3, {sT0}")
        A(f"ds_write_b64 v{vTM}, {P(vF)}"); A(f"ds_write_b64 v{vTM}, {P(vF+4)} offset:512")
        A(f"v_and_b32 v{vTM2}, 1, v{vLANE}"); A(f"v_lshlrev_b32 v{vTM2}, 9, v{vTM2}"); A(f"v_lshl_add_u32 v{vTM2}, v{vG4}, 4, v{vTM2}"); A(f"v_add_u32 v{vTM2}, {sT0}, v{vTM2}")
        A("s_waitcnt lgkmcnt(0)")
    if qdepth:
        A("s_branch L_q_read")
        E.label("L_q_fast")
        vQP = vW1
        A(f"s_cmp_lg_u32 {sW}, 0"); A("s_cbranch_scc1 L_q_flag")
        def qissue(st):
            A(f"global_load_dwordx4 {Q4(vQP+8*st)}, v{vTM3}, {pWS} {ldf}"); A(f"global_load_dwordx4 {Q4(vQP+8*st+4)}, v{vTM3}, {pWS} offset:1024 {ldf}")
        if qwait:
            A(f"s_add_u32 {sN}, {sN}, {qwait-1}"); wait_tile(); A(f"s_sub_u32 {sN}, {sN}, {qwait-1}")
        for st in range(qdepth-1): qissue(st); A("s_sleep 12")
        E.label("L_q_poll")
        for st in range(qdepth):
            qissue((st+qdepth-1) % qdepth)
            A(f"s_sub_u32 {sSPIN}, {sSPIN}, 1"); A("s_cbranch_scc1 L_end")
            A(f"s_waitcnt vmcnt({2*(qdepth-1)})")
            for k in range(4): A(f"v_cmp_ne_u32 {sCK[k]}, {sTAG}, v{vQP+8*st+2*k+1}")
            A(f"s_or_b64 vcc, {sCK[0]}, {sCK[1]}"); A(f"s_or_b64 vcc, vcc, {sCK[2]}"); A(f"s_or_b64 vcc, vcc, {sCK[3]}")
            A(f"s_cbranch_scc0 L_q_got{st}")
        A("s_branch L_q_poll")
        for st in range(qdepth):
            E.label(f"L_q_got{st}")
            for k in range(4): A(f"v_mov_b32 v{vF+k}, v{vQP+8*st+2*k}")
            if st < qdepth-1: A("s_branch L_q_put")
        E.label("L_q_put")
        A(f"v_lshlrev_b32 v{vTM}, 3, v{vLANE}"); A(f"v_add_u32 v{vTM}, {L_QW}, v{vTM}")
        A(f"ds_write_b64 v{vTM}, {P(vF)}"); A(f"ds_write_b64 v{vTM}, {P(vF+2)} offset:512")
        A(f"v_mov_b32 v{vTM}, 1")
        A("s_mov_b64 exec, 1"); A(f"ds_write_b32 v{vFLG}, v{vTM} offset:32"); A("s_mov_b64 exec, -1")
        E.label("L_q_flag")
        A(f"ds_read_b32 v{vTM}, v{vFLG} offset:32")
        A(f"s_sub_u32 {sSPIN}, {sSPIN}, 1"); A("s_cbranch_scc1 L_end")
        A("s_waitcnt lgkmcnt(0)")
        A(f"v_readfirstlane_b32 {sT0}, v{vTM}")
        A(f"s_cmp_eq_u32 {sT0}, 1"); A("s_cbranch_scc1 L_q_have")
        A("s_sleep 1"); A("s_branch L_q_flag")
        E.label("L_q_have")
        A(f"v_and_b32 v{vTM2}, 1, v{vLANE}"); A(f"v_lshlrev_b32 v{vTM2}, 9, v{vTM2}"); A(f"v_lshl_add_u32 v{vTM2}, v{vG4}, 4, v{vTM2}"); A(f"v_add_u32 v{vTM2}, {L_QW}, v{vTM2}")
        E.label("L_q_read")
    for s in range(8): A(f"ds_read_b128 {Q4(vQ+4*s)}, v{vTM2} offset:{s*64}")
    stamp(2)
    A("s_waitcnt lgkmcnt(0)")

    def qk(nt):
        for s in range(4): A(f"v_add_u32 v{vAD[s]}, {sSLOT}, v{vKB[s]}")
        seq = [(t,s) for s in range(8) for t in range(nt)]; n = len(seq)
        def kread(i):
            t,s = seq[i]; A(f"ds_read_b128 {Q4(vF + 4*(i % NF))}, v{vAD[s&3]} offset:{(s>>2)*256 + t*8192}")
        for i in range(NF): kread(i)
        for i in range(n):
            t,s = seq[i]
            A(f"s_waitcnt lgkmcnt({min(NF-1, n-1-i)})")
            d = Q4(vS+4*t)
            A(f"v_mfma_f32_16x16x32_bf16 {d}, {Q4(vF + 4*(i % NF))}, {Q4(vQ+4*s)}, {'0' if s==0 else d}")
            if i + NF < n: kread(i+NF)
    def softmax(nt, tag):
        n = 4*nt
        for i in range(n//2): A(f"v_cvt_pk_bf16_f32 v{vP+i}, v{vS+2*i}, v{vS+2*i+1}")
        for i in range(n//2): unpack(vS+2*i, vS+2*i+1, vP+i)
        if nt == 2:
            A(f"v_max3_f32 v{vMX}, v{vS}, v{vS+1}, v{vS+2}"); A(f"v_max3_f32 v{vTM}, v{vS+3}, v{vS+4}, v{vS+5}")
            A(f"v_max3_f32 v{vMX}, v{vMX}, v{vS+6}, v{vS+7}"); A(f"v_max_f32 v{vMX}, v{vMX}, v{vTM}")
        else:
            A(f"v_max3_f32 v{vMX}, v{vS}, v{vS+1}, v{vS+2}"); A(f"v_max_f32 v{vMX}, v{vMX}, v{vS+3}")
        xrow("v_max_f32", [vMX], [vTM])
        A(f"v_cmp_gt_f32 vcc, v{vMX}, v{vM}")
        A("s_cmp_lg_u64 vcc, 0"); A(f"s_cbranch_scc1 L_rescale{tag}")
        E.label(f"L_rescaled{tag}")
        for i in range(n): A(f"v_fma_f32 v{vS+i}, v{vS+i}, {sC}, -v{vMC}")
        for i in range(n): A(f"v_exp_f32 v{vS+i}, v{vS+i}")
        for i in range(n//2): A(f"v_cvt_pk_bf16_f32 v{vP+i}, v{vS+2*i}, v{vS+2*i+1}")
        if hilo:
            for i in range(n//2):
                unpack(vF+16, vF+17, vP+i)
                A(f"v_sub_f32 v{vF+16}, v{vS+2*i}, v{vF+16}"); A(f"v_sub_f32 v{vF+17}, v{vS+2*i+1}, v{vF+17}")
                A(f"v_cvt_pk_bf16_f32 v{vF+16}, v{vF+16}, v{vF+17}")
                A(f"v_cndmask_b32 v{vP+i}, v{vP+i}, v{vF+16}, s[64:65]")
        A(f"v_add_f32 v{vTM}, v{vS}, v{vS+1}"); A(f"v_add_f32 v{vMX}, v{vS+2}, v{vS+3}")
        if nt == 2:
            A(f"v_add_f32 v{vS+4}, v{vS+4}, v{vS+5}"); A(f"v_add_f32 v{vS+6}, v{vS+6}, v{vS+7}")
            A(f"v_add_f32 v{vTM}, v{vTM}, v{vS+4}"); A(f"v_add_f32 v{vMX}, v{vMX}, v{vS+6}")
        A(f"v_add_f32 v{vL}, v{vL}, v{vTM}"); A(f"v_add_f32 v{vL}, v{vL}, v{vMX}")
    def rescale(tag):
        E.label(f"L_rescale{tag}")
        A(f"v_max_f32 v{vM}, v{vM}, v{vMX}")
        A(f"v_mul_f32 v{vTM}, {sC}, v{vM}")
        A(f"v_sub_f32 v{vTM2}, v{vMC}, v{vTM}")
        A(f"v_mov_b32 v{vMC}, v{vTM}")
        A(f"v_exp_f32 v{vTM2}, v{vTM2}")
        A(f"v_mul_f32 v{vL}, v{vL}, v{vTM2}")
        A(f"v_mov_b32_dpp v{vTM}, v{vTM2} quad_perm:[0,0,2,2] row_mask:0xf bank_mask:0xf")
        A(f"v_mov_b32_dpp v{vTM3}, v{vTM2} quad_perm:[1,1,3,3] row_mask:0xf bank_mask:0xf")
        for i in range(16): A(f"v_mul_f32 v{vO+i}, v{vO+i}, v{vTM if i%2==0 else vTM3}")
        A(f"s_branch L_rescaled{tag}")
    E.label("L_loop")
    wait_tile()
    qk(2)
    pub_cons()
    softmax(2, "a")
    wait_tile()
    for e in range(4): A(f"v_add_u32 v{vAD[e]}, {sSLOT}, v{vVB[e]}")
    for e in range(4):
        for h2 in range(2): A(f"ds_read_b64_tr_b16 {P(vF + 4*e + 2*h2)}, v{vAD[e]} offset:{h2*8192}")
    for e in range(4):
        A(f"s_waitcnt lgkmcnt({6-2*e})")
        A(f"v_mfma_f32_16x16x32_bf16 {Q4(vO+4*e)}, {Q4(vP)}, {Q4(vF+4*e)}, {Q4(vO+4*e)}")
    pub_cons()
    if True:
        A(f"s_add_u32 {sCI}, {sCI}, 1"); A(f"s_cmp_lt_u32 {sCI}, {sNS}"); A("s_cbranch_scc1 L_loop")
        if iod and forcepar is None:
            A(f"v_mov_b32 v{vTM}, {WS_PAR}")
            poll([f"global_load_dwordx4 {Q4(vF)}, v{vTM}, {pWS} {ldf}"], [[vF+1, vF+3]])
            A(f"v_readfirstlane_b32 {sP0}, v{vF}"); A(f"v_readfirstlane_b32 {sP1}, v{vF+2}")
        else:
            fp = forcepar or (0,0)
            A(f"s_mov_b32 {sP0}, {fp[0]*8192}"); A(f"s_mov_b32 {sP1}, {fp[1]*8192}")
        A(f"s_lshl_b32 {sT0}, {sG}, 2"); A(f"s_and_b32 {sT1}, {sW}, 1"); A(f"s_add_u32 {sT0}, {sT0}, {sT1}"); A(f"s_lshl_b32 {sT0}, {sT0}, 14")
        A(f"s_lshr_b32 {sT1}, {sW}, 1"); A(f"s_lshl_b32 {sT1}, {sT1}, 13"); A(f"s_xor_b32 {sT1}, {sT1}, {sP0}"); A(f"s_add_u32 {sT0}, {sT0}, {sT1}")
        A(f"s_lshl_b32 {sT1}, {sJ}, 8"); A(f"s_add_u32 {sT0}, {sT0}, {sT1}"); A(f"s_add_u32 {sT0}, {sT0}, {WS_A}")
        A(f"v_lshrrev_b32 v{vAA}, 1, v{vG4}"); A(f"v_lshlrev_b32 v{vAA}, 15, v{vAA}")
        A(f"v_and_b32 v{vTM}, 1, v{vG4}"); A(f"v_lshl_or_b32 v{vAA}, v{vTM}, 12, v{vAA}"); A(f"v_lshl_or_b32 v{vAA}, v{vN}, 4, v{vAA}")
        A(f"v_add_u32 v{vAA}, {sT0}, v{vAA}")
        A(f"s_lshr_b32 {sT0}, {sWG}, 3"); A(f"s_lshl_b32 {sT0}, {sT0}, 1"); A(f"s_bfe_u32 {sT1}, {sWG}, 0x10001"); A(f"s_add_u32 {sT0}, {sT0}, {sT1}"); A(f"s_lshl_b32 {sT0}, {sT0}, 14")
        A(f"s_bfe_u32 {sT1}, {sWG}, 0x10002"); A(f"s_lshl_b32 {sT1}, {sT1}, 13"); A(f"s_xor_b32 {sT1}, {sT1}, {sP0}"); A(f"s_add_u32 {sT0}, {sT0}, {sT1}")
        A(f"s_and_b32 {sT1}, {sWG}, 1"); A(f"s_lshl_b32 {sT1}, {sT1}, 12"); A(f"s_add_u32 {sT0}, {sT0}, {sT1}"); A(f"s_add_u32 {sT0}, {sT0}, {WS_A}")
        A(f"v_lshlrev_b32 v{vAI}, 4, v{vN}"); A(f"v_lshl_or_b32 v{vAI}, v{vG4}, 10, v{vAI}"); A(f"v_add_u32 v{vAI}, {sT0}, v{vAI}")
        if lwarm:
            A(f"v_lshl_add_u32 v{vX+3}, v{vLANE}, 6, {sT0}")
            A(f"s_cmp_eq_u32 {sW}, 0"); A(f"s_cselect_b32 {sWRM}, {0x7fffffff if awarm else 0}, 0")
            if lwarm > 1:
                nr = lab("nr")
                A(f"s_cmp_ge_u32 {sRR}, 64"); A(f"s_cbranch_scc1 {nr}"); A(f"s_sub_u32 {sT0}, {sW}, 1"); A(f"s_cmp_ge_u32 {sT0}, 2"); A(f"s_cbranch_scc1 {nr}")
                A(f"s_lshl_b32 {sT0}, {sRR}, 15"); A(f"s_add_u32 {sT0}, {sT0}, {sP1}"); A(f"s_add_u32 {sT0}, {sT0}, {WS_B}")
                A(f"s_and_b32 {sT1}, {sW}, 1"); A(f"s_lshl_b32 {sT1}, {sT1}, 14"); A(f"s_add_u32 {sT0}, {sT0}, {sT1}")
                A(f"v_lshl_add_u32 v{vX+3}, v{vLANE}, 7, {sT0}"); A(f"s_mov_b32 {sWRM}, {1 if bfin else 0x7fffffff}")
                E.label(nr)
        A(f"s_lshl_b32 {sT0}, {sB}, 2"); A(f"s_add_u32 {sT0}, {sT0}, {sW}"); A(f"s_lshl_b32 {sT0}, {sT0}, 18")
        A(f"s_bfe_u32 {sT1}, {sWG}, 0x10006"); A(f"s_lshl_b32 {sT1}, {sT1}, 14"); A(f"s_add_u32 {sT0}, {sT0}, {sT1}"); A(f"s_add_u32 {sT0}, {sT0}, {sP1}")
        A(f"s_and_b32 {sT1}, {sWG}, 63"); A(f"s_lshl_b32 {sT1}, {sT1}, 7"); A(f"s_add_u32 {sT0}, {sT0}, {sT1}"); A(f"s_add_u32 {sT0}, {sT0}, {WS_B}")
        msg_lane_addr(vBA, 15); A(f"v_add_u32 v{vBA}, {sT0}, v{vBA}")
        E.label("L_mini")
        wait_tile("L_fin", sTOT)
        qk(1)
        def vreads():
            for e in range(4): A(f"v_add_u32 v{vAD[e]}, {sSLOT}, v{vVB[e]}")
            for e in range(4): A(f"ds_read_b64_tr_b16 {P(vF + 2*e)}, v{vAD[e]} offset:8192")
        vreads()
        softmax(1, "b")
        A("s_waitcnt lgkmcnt(0)")
        for e in range(4):
            A(f"v_mfma_f32_16x16x16_bf16 {Q4(vO+4*e)}, {P(vP)}, {P(vF+2*e)}, {Q4(vO+4*e)}")
        pub_cons()
        A("s_branch L_mini")
        rescale("b")
    rescale("a")

    E.label("L_fin")
    stamp(3)
    vG=vF; vI=vF+4; sa=vS; sb=vS+1; sw=vS+2
    vA=vQ; vOPR=vQ+4; vOPW=vQ+5; vR0=vQ+6; vR1=vQ+7; vR2=vQ+8; vR3=vQ+9; vR4=vQ+10; vR5=vQ+11; vZ=vQ+12
    yreg = [vO, vO+4, vO+8, vO+12, vQ+16, vQ+20, vQ+24]
    xrow("v_add_f32", [vL], [vTM])
    if hilo:
        for e in range(4):
            for h in range(2): A(f"v_add_f32 v{vO+4*e+h}, v{vO+4*e+h}, v{vO+4*e+2+h}")
    A(f"v_log_f32 v{vTM2}, v{vL}"); A(f"v_rcp_f32 v{vTM3}, v{vL}")
    A(f"v_mov_b32 v{vG+3}, {sTAG}")
    A(f"v_add_f32 v{vTM2}, v{vMC}, v{vTM2}")
    SEL4(vG, vO+0, vO+8, vO+1, vO+9, vMX)
    A(f"v_mov_b32_dpp v{vTM}, v{vTM3} quad_perm:[0,0,2,2] row_mask:0x3 bank_mask:0xf")
    A(f"v_mov_b32_dpp v{vG+2}, v{vTM2} quad_perm:[0,0,2,2] row_mask:0x3 bank_mask:0xf")
    SEL4(vG+1, vO+4, vO+12, vO+5, vO+13, vMX)
    A(f"v_mov_b32_dpp v{vTM}, v{vTM3} quad_perm:[1,1,3,3] row_mask:0xc bank_mask:0xf")
    A(f"v_mov_b32_dpp v{vG+2}, v{vTM2} quad_perm:[1,1,3,3] row_mask:0xc bank_mask:0xf")
    A(f"v_mul_f32 v{vG}, v{vG}, v{vTM}"); A(f"v_mul_f32 v{vG+1}, v{vG+1}, v{vTM}")
    A(f"global_store_dwordx4 v{vAA}, {Q4(vG)}, {pWS} {stf}")
    stamp(4)
    if bfin:
        A(f"s_cmp_lg_u32 {sWRM}, 1"); A("s_cbranch_scc1 L_nobw")
        A(f"global_load_dword v{vX+2}, v{vX+3}, {pWS} {ldf}")
        E.label("L_nobw")
    A(f"v_lshlrev_b32 v{vOPR}, 3, v{vG4}"); A(f"v_add_u32 v{vOPR}, {L_OP}, v{vOPR}")
    A(f"v_lshlrev_b32 v{vOPW}, 1, v{vN}"); A(f"v_add_u32 v{vOPW}, {L_OP}, v{vOPW}")
    A(f"v_mov_b32 v{vZ}, 0")
    A(f"s_cmp_lt_u32 {sIDX}, 28"); A("s_cbranch_scc1 L_ffn_addr")
    A(f"s_lshl_b32 {sT0}, {sRR}, 15"); A(f"s_lshr_b32 {sT1}, {sW}, 1"); A(f"s_lshl_b32 {sT1}, {sT1}, 14"); A(f"s_add_u32 {sT0}, {sT0}, {sT1}")
    A(f"s_and_b32 {sT1}, {sW}, 1"); A(f"s_lshl_b32 {sT1}, {sT1}, 12"); A(f"s_add_u32 {sT0}, {sT0}, {sT1}"); A(f"s_add_u32 {sT0}, {sT0}, {sP1}"); A(f"s_add_u32 {sT0}, {sT0}, {WS_B}")
    A(f"v_lshl_add_u32 v{vR0}, v{vLANE}, 4, {sT0}")
    A(f"s_lshl_b32 {sT0}, {sW}, 6"); A(f"s_add_u32 {sT0}, {sT0}, {L_RED}")
    A(f"v_and_b32 v{vTM}, 7, v{vLANE}"); A(f"v_lshl_add_u32 v{vR1}, v{vTM}, 2, {sT0}")
    A(f"v_and_b32 v{vTM}, 6, v{vLANE}"); A(f"v_lshlrev_b32 v{vR2}, 2, v{vTM}"); A(f"v_add_u32 v{vR2}, {L_RED}, v{vR2}")
    A(f"s_lshl_b32 {sT0}, {sRR}, 6"); A(f"s_add_u32 {sT0}, {sT0}, {sP0}"); A(f"s_add_u32 {sT0}, {sT0}, {WS_H}"); A(f"v_lshl_add_u32 v{vR3}, v{vTM}, 3, {sT0}")
    A(f"s_lshr_b32 {sT0}, {sRR}, 1"); A(f"s_lshl_b32 {sT0}, {sT0}, 14"); A(f"s_and_b32 {sT1}, {sRR}, 1"); A(f"s_lshl_b32 {sT1}, {sT1}, 12"); A(f"s_add_u32 {sT0}, {sT0}, {sT1}")
    A(f"s_add_u32 {sT0}, {sT0}, {sP0}"); A(f"s_add_u32 {sT0}, {sT0}, {WS_D}"); A(f"v_lshl_add_u32 v{vR4}, v{vLANE}, 4, {sT0}")
    A(f"v_lshl_add_u32 v{vR5}, v{vTM}, 1, {sCOL}")
    A("s_branch L_addr_done")
    E.label("L_ffn_addr")
    A(f"v_lshrrev_b32 v{vTM}, 3, v{vLANE}"); A(f"v_and_b32 v{vTM2}, 7, v{vLANE}")
    A(f"v_lshlrev_b32 v{vR0}, 9, v{vTM}"); A(f"v_lshl_or_b32 v{vR0}, v{vTM2}, 4, v{vR0}"); A(f"s_add_u32 {sT0}, {sP0}, {WS_H}"); A(f"v_add_u32 v{vR0}, {sT0}, v{vR0}")
    A(f"v_mul_u32_u24 v{vR1}, 224, v{vTM}"); A(f"v_lshl_add_u32 v{vR1}, v{vTM2}, 2, v{vR1}"); A(f"v_add_u32 v{vR1}, {L_LN}, v{vR1}")
    ln_read_addr(vR2, L_LN)
    A(f"s_lshl_b32 {sT0}, {sW}, 5"); A(f"s_add_u32 {sT0}, {sT0}, {L_ACT}")
    A(f"v_lshlrev_b32 v{vR3}, 7, v{vG4}"); A(f"v_lshl_add_u32 v{vR3}, v{vN}, 1, v{vR3}"); A(f"v_add_u32 v{vR3}, {sT0}, v{vR3}")
    A(f"v_and_b32 v{vR4}, 1, v{vLANE}"); A(f"v_lshlrev_b32 v{vR4}, 7, v{vR4}"); A(f"v_lshl_add_u32 v{vR4}, v{vG4}, 3, v{vR4}"); A(f"v_add_u32 v{vR4}, {L_ACT}, v{vR4}")
    A(f"s_lshl_b32 {sT0}, {sW}, 16"); A(f"s_lshl_b32 {sT1}, {sIDX}, 7"); A(f"s_add_u32 {sT0}, {sT0}, {sT1}"); A(f"s_add_u32 {sT0}, {sT0}, {sP0}"); A(f"s_add_u32 {sT0}, {sT0}, {WS_D}")
    A(f"v_lshrrev_b32 v{vTM}, 3, v{vN}"); A(f"v_lshlrev_b32 v{vTM}, 12, v{vTM}"); A(f"v_lshl_or_b32 v{vTM}, v{vG4}, 14, v{vTM}")
    A(f"v_and_b32 v{vTM2}, 7, v{vLANE}"); A(f"v_lshl_or_b32 v{vTM}, v{vTM2}, 4, v{vTM}"); A(f"v_add_u32 v{vR5}, {sT0}, v{vTM}")
    E.label("L_addr_done")
    A(f"s_cmp_lg_u32 {sW}, 0"); A("s_cbranch_scc1 L_a_join")
    poll([f"global_load_dwordx4 {Q4(vI+4*i)}, v{vAI}, {pWS} offset:{i*256} {ldf}" for i in range(4)], [[vI+4*i+3] for i in range(4)])
    stamp(5)
    A(f"v_max3_f32 v{vMX}, v{vI+2}, v{vI+6}, v{vI+10}"); A(f"v_max_f32 v{vMX}, v{vMX}, v{vI+14}")
    xrow("v_max_f32", [vMX], [vTM])
    for i in range(4): A(f"v_sub_f32 v{vI+4*i+2}, v{vI+4*i+2}, v{vMX}")
    for i in range(4): A(f"v_exp_f32 v{vI+4*i+2}, v{vI+4*i+2}")
    A(f"v_mul_f32 v{sa}, v{vI}, v{vI+2}"); A(f"v_mul_f32 v{sb}, v{vI+1}, v{vI+2}"); A(f"v_add_f32 v{sw}, v{vI+2}, v{vI+6}")
    for i in range(1,4):
        A(f"v_fmac_f32 v{sa}, v{vI+4*i}, v{vI+4*i+2}"); A(f"v_fmac_f32 v{sb}, v{vI+4*i+1}, v{vI+4*i+2}")
        if i > 1: A(f"v_add_f32 v{sw}, v{sw}, v{vI+4*i+2}")
    xrow("v_add_f32", [sw, sa, sb], [vS+3, vS+4, vS+5])
    A(f"v_rcp_f32 v{sw}, v{sw}")
    A(f"v_mul_f32 v{sa}, v{sa}, v{sw}"); A(f"v_mul_f32 v{sb}, v{sb}, v{sw}")
    A(f"v_mov_b32_dpp v{vS+3}, v{sa} quad_perm:[1,0,3,2] row_mask:0xf bank_mask:0xf")
    A(f"v_mov_b32_dpp v{vS+4}, v{sb} quad_perm:[1,0,3,2] row_mask:0xf bank_mask:0xf")
    A(f"v_cvt_pk_bf16_f32 v{sa}, v{sa}, v{vS+3}"); A(f"v_cvt_pk_bf16_f32 v{sb}, v{sb}, v{vS+4}")
    A("s_mov_b64 exec, 0x5555"); A(f"ds_write2_b32 v{vOPW}, v{sa}, v{sb} offset0:0 offset1:8"); A("s_mov_b64 exec, -1")
    A("s_waitcnt lgkmcnt(0)")
    E.label("L_a_join")
    A("s_barrier")
    A(f"ds_read2_b64 {Q4(vA)}, v{vOPR} offset0:0 offset1:4")
    A(f"v_mov_b32 v{vG+1}, {sTAG}")
    A("s_waitcnt lgkmcnt(0)")
    for t in (0,2,4,6,1,3,5):
        A(f"v_mfma_f32_16x16x32_bf16 {Q4(yreg[t])}, {Q4(vA)}, {Q4(vWO+4*t)}, 0")
    SEL4(vG, yreg[0], yreg[2], yreg[4], yreg[6], vMX)
    SEL4(vG+2, yreg[1], yreg[3], yreg[5], vZ, vTM)
    A(f"global_store_dwordx4 v{vBA}, {Q4(vG)}, {pWS} {stf}")
    stamp(6)
    A(f"s_cmp_lt_u32 {sIDX}, 28"); A("s_cbranch_scc1 L_ffn")
    A(f"s_cmp_ge_u32 {sRR}, 64"); A("s_cbranch_scc1 L_done")
    def inbox(addr): return [f"global_load_dwordx4 {Q4(vI+4*i)}, v{addr}, {pWS} offset:{i*1024} {ldf}" for i in range(4)]
    tags2 = [[vI+4*i+1, vI+4*i+3] for i in range(4)]
    def sum_inbox():
        A(f"v_add_f32 v{sa}, v{vI}, v{vI+4}"); A(f"v_add_f32 v{sb}, v{vI+2}, v{vI+6}")
        A(f"v_add_f32 v{vS+2}, v{vI+8}, v{vI+12}"); A(f"v_add_f32 v{vS+3}, v{vI+10}, v{vI+14}")
        A(f"v_add_f32 v{sa}, v{sa}, v{vS+2}"); A(f"v_add_f32 v{sb}, v{sb}, v{vS+3}")
        A(f"v_add_f32_dpp v{sa}, v{sa}, v{sa} row_ror:8 row_mask:0xf bank_mask:0xf")
        A(f"v_add_f32_dpp v{sb}, v{sb}, v{sb} row_ror:8 row_mask:0xf bank_mask:0xf")
        xrow("v_add_f32", [sa, sb], [vS+2, vS+3])
    vXF = vO
    unpack(vXF, vXF+1, vXH); unpack(vXF+2, vXF+3, vXH+1)
    poll(inbox(vR0), tags2)
    stamp(7)
    sum_inbox()
    A("s_mov_b64 exec, 0xff"); A(f"ds_write2_b32 v{vR1}, v{sa}, v{sb} offset0:0 offset1:8"); A("s_mov_b64 exec, -1")
    A("s_waitcnt lgkmcnt(0)"); A("s_barrier")
    A(f"s_cmp_lg_u32 {sW}, 0"); A("s_cbranch_scc1 L_done")
    for i in range(4): A(f"ds_read2_b64 {Q4(vI+4*i)}, v{vR2} offset0:{i*8} offset1:{i*8+4}")
    def add_resid(y, dst):
        A(f"v_cvt_pk_bf16_f32 v{dst}, v{y}, v{y+1}"); A(f"v_cvt_pk_bf16_f32 v{dst+2}, v{y+2}, v{y+3}")
        unpack(y, y+1, dst); unpack(y+2, y+3, dst+2)
        A(f"v_pk_add_f32 {P(y)}, {P(y)}, {P(vXF)}"); A(f"v_pk_add_f32 {P(y+2)}, {P(y+2)}, {P(vXF+2)}")
        A(f"v_cvt_pk_bf16_f32 v{dst}, v{y}, v{y+1}"); A(f"v_cvt_pk_bf16_f32 v{dst+2}, v{y+2}, v{y+3}")
    A("s_waitcnt lgkmcnt(2)")
    A(f"v_pk_add_f32 {P(vI)}, {P(vI)}, {P(vI+4)}"); A(f"v_pk_add_f32 {P(vI+2)}, {P(vI+2)}, {P(vI+6)}")
    A("s_waitcnt lgkmcnt(0)")
    A(f"v_pk_add_f32 {P(vI+8)}, {P(vI+8)}, {P(vI+12)}"); A(f"v_pk_add_f32 {P(vI+10)}, {P(vI+10)}, {P(vI+14)}")
    A(f"v_pk_add_f32 {P(vI)}, {P(vI)}, {P(vI+8)}"); A(f"v_pk_add_f32 {P(vI+2)}, {P(vI+2)}, {P(vI+10)}")
    add_resid(vI, vG)
    A("s_mov_b64 exec, 0x55"); A(f"global_store_dwordx4 v{vR3}, {Q4(vG)}, {pWS} {stf}"); A("s_mov_b64 exec, -1")
    stamp(8)
    unpack(vXF, vXF+1, vG); unpack(vXF+2, vXF+3, vG+2)
    A(f"v_mov_b32 v{vI+12}, 0"); A(f"v_mov_b32 v{vI+13}, {sTAG}"); A(f"v_mov_b32 v{vI+14}, 0"); A(f"v_mov_b32 v{vI+15}, {sTAG}")
    poll(inbox(vR4), tags2, first_mask=[-1,-1,-1,"s[66:67]"])
    stamp(9)
    sum_inbox()
    A(f"v_mov_b32_dpp v{vI}, v{sa} quad_perm:[0,0,2,2] row_mask:0xf bank_mask:0xf"); A(f"v_mov_b32_dpp v{vI+1}, v{sa} quad_perm:[1,1,3,3] row_mask:0xf bank_mask:0xf")
    A(f"v_mov_b32_dpp v{vI+2}, v{sb} quad_perm:[0,0,2,2] row_mask:0xf bank_mask:0xf"); A(f"v_mov_b32_dpp v{vI+3}, v{sb} quad_perm:[1,1,3,3] row_mask:0xf bank_mask:0xf")
    add_resid(vI, vI+4)
    A("s_mov_b64 exec, 0x55"); A(f"global_store_dword v{vR5}, v{vI+4}, {pOUT} {outf}")
    A(f"s_cmp_eq_u32 {sGP}, 3"); A("s_cbranch_scc1 L_done")
    A(f"global_store_dword v{vR5}, v{vI+6}, {pOUT} offset:32 {outf}")
    A(f"s_cmp_lg_u32 {sRR}, 0"); A("s_cbranch_scc1 L_done")
    A(f"s_add_u32 {sT0}, {sE}, 1"); A(f"v_mov_b32 v{vTM2}, {sT0}"); A(f"v_mov_b32 v{vTM3}, {WS_E}")
    A("s_mov_b64 exec, 1"); A(f"global_store_dword v{vTM3}, v{vTM2}, {pWS} {stf}")
    if enc:
        A("s_memrealtime s[90:91]"); A("s_waitcnt lgkmcnt(0)")
        A(f"s_sub_u32 {sT0}, s{70+2*enc[1]}, s{70+2*enc[0]}"); A(f"s_lshl_b32 {sT0}, {sT0}, 2"); A(f"s_min_u32 {sT0}, {sT0}, 100000")
        E.label("L_enc")
        A("s_memrealtime s[94:95]"); A("s_waitcnt lgkmcnt(0)")
        A(f"s_sub_u32 {sT1}, s94, s90"); A(f"s_cmp_lt_u32 {sT1}, {sT0}"); A("s_cbranch_scc1 L_enc")
    A("s_branch L_done")
    E.label("L_ffn")
    A(f"s_cmp_lg_u32 {sW}, 0"); A("s_cbranch_scc1 L_c_join")
    poll([f"global_load_dwordx4 {Q4(vI+4*u)}, v{vR0}, {pWS} offset:{u*128} {ldf}" for u in range(4)], tags2)
    stamp(7)
    layernorm([vI+2*u for u in range(7)], vO, vR1, 32)
    A("s_waitcnt lgkmcnt(0)")
    E.label("L_c_join")
    A("s_barrier")
    def aread(i): A(f"ds_read_b128 {Q4(vF + 4*(i % NF))}, v{vR2} offset:{i*64}")
    for i in range(NF): aread(i)
    for i in range(14):
        A(f"s_waitcnt lgkmcnt({min(NF-1, 13-i)})")
        A(f"v_mfma_f32_16x16x32_bf16 {Q4(vS)}, {Q4(vF + 4*(i % NF))}, {Q4(vW1+4*i)}, {'0' if i==0 else Q4(vS)}")
        if i + NF < 14: aread(i+NF)
    for b in range(2): A(f"v_mov_b32 v{vO+4*b+1}, {sTAG}"); A(f"v_mov_b32 v{vO+4*b+3}, {sTAG}")
    A(f"v_add_u32 v{vR0}, {16*16384}, v{vR5}")
    A(f"v_cndmask_b32 v{vTM}, v{vS}, v{vS+1}, {sM1}")
    round_bf(vTM, vTM)
    A(f"v_mul_f32 v{vTM2}, {(LOG2E | 0x80000000):#x}, v{vTM}")
    A(f"v_exp_f32 v{vTM2}, v{vTM2}")
    A(f"v_add_f32 v{vTM2}, 1.0, v{vTM2}")
    A(f"v_rcp_f32 v{vTM2}, v{vTM2}")
    A(f"v_mul_f32 v{vTM}, v{vTM}, v{vTM2}")
    A(f"v_cvt_pk_bf16_f32 v{vTM}, v{vTM}, v{vTM}")
    A("s_mov_b32 exec_hi, 0"); A(f"ds_write_b16 v{vR3}, v{vTM}"); A("s_mov_b32 exec_hi, -1")
    A("s_waitcnt lgkmcnt(0)"); A("s_barrier")
    for ks in range(2): A(f"ds_read2_b64 {Q4(vF+4*ks)}, v{vR4} offset0:{ks*8} offset1:{ks*8+4}")
    zreg = [vW1+4*t for t in range(7)]
    for ks in range(2):
        A(f"s_waitcnt lgkmcnt({1-ks})")
        for t in (0,2,4,6,1,3,5):
            A(f"v_mfma_f32_16x16x32_bf16 {Q4(zreg[t])}, {Q4(vF+4*ks)}, {Q4(vW2+28*ks+4*t)}, {'0' if ks==0 else Q4(zreg[t])}")
    for b in range(2): SEL4(vO+4*b, zreg[0]+b, zreg[2]+b, zreg[4]+b, zreg[6]+b, vMX)
    for b in range(2):
        SEL4(vO+4*b+2, zreg[1]+b, zreg[3]+b, zreg[5]+b, vZ, vMX)
        A(f"global_store_dwordx4 v{vR5 if b == 0 else vR0}, {Q4(vO+4*b)}, {pWS} {stf}")
    stamp(8)
    E.label("L_done")
    if diag:
        stamp(10)
        A("s_mov_b64 exec, -1")
        A(f"s_lshl_b32 {sT0}, {sWG}, 2"); A(f"s_add_u32 {sT0}, {sT0}, {sW}"); A(f"s_lshl_b32 {sT0}, {sT0}, 7"); A(f"s_add_u32 {sT0}, {sT0}, {WS_ST}")
        A("s_getreg_b32 s100, hwreg(HW_REG_XCC_ID)")
        A("s_waitcnt lgkmcnt(0)")
        A(f"v_mov_b32 v{vTM}, {sT0}")
        A("s_mov_b64 exec, 1")
        for k in range(11): A(f"v_mov_b32 v{vW1+k}, s{70+2*k}")
        A(f"v_mov_b32 v{vW1+11}, s100"); A(f"v_mov_b32 v{vW1+12}, {sN}"); A(f"v_mov_b32 v{vW1+13}, {sROLE}"); A(f"v_mov_b32 v{vW1+14}, {sWG}"); A(f"v_mov_b32 v{vW1+15}, {sIDX}")
        for k in range(4): A(f"v_mov_b32 v{vW1+16+k}, s{92+2*k}")
        for q in range(5): A(f"global_store_dwordx4 v{vTM}, {Q4(vW1+4*q)}, {pWS} offset:{q*16}")
    E.label("L_end")
    A("s_endpgm")

    body = E.finish()
    head = open("sequential_preLN__gqa_block_cached__dense_activation_silu__decode.s.ref").read().split("; Override launch")[0]
    src = head + f"""; One persistent launch: 256 workgroups (one per CU); wave 0 streams K/V into an LDS ring, waves 1-4 compute.
; @launch grid=(256,1,1) block=(320,1,1) lds={LDS}
.amdgcn_target "amdgcn-amd-amdhsa--gfx950"
.text
.globl {NAME}
.p2align 8
.type {NAME},@function
{NAME}:
{body}.section .rodata,"a"
.p2align 6
.amdhsa_kernel {NAME}
  .amdhsa_next_free_vgpr 256
  .amdhsa_next_free_sgpr 102
  .amdhsa_accum_offset 256
  .amdhsa_group_segment_fixed_size 0
  .amdhsa_kernarg_size 88
  .amdhsa_user_sgpr_count 2
  .amdhsa_user_sgpr_kernarg_segment_ptr 1
  .amdhsa_system_sgpr_workgroup_id_x 1
.end_amdhsa_kernel
"""
    return src, E.npad

if __name__ == "__main__":
    out = sys.argv[1]
    kw = json.loads(sys.argv[2]) if len(sys.argv) > 2 else {}
    src, npad = gen(**kw)
    open(out, "w").write(src)
    print("wrote", out, "lines", src.count("\n"), "pad states", npad)
```

```python
import sys, json, struct
from emit import Emitter

NAME = "sequential_preLN__gqa_block_cached__dense_activation_silu__decode_kernel"
def f2u(x): return struct.unpack("<I", struct.pack("<f", x))[0]

def gen(W=20, NS=59, diag=False, hilo=True, spin=1<<20, enc=None, NF=5, ldst=None, qwait=2, forcepar=None, nprobe=3, clip=2000,
        touch=0, qtouch=1, lastfast=1, outf='sc1'):
    E = Emitter(); A = E
    pol = "nt"; stf = ldf = "sc1"
    NSLOT = 9; SLOT = 16384; RING = NSLOT*SLOT; LDS = 163840
    L_FLAG = RING; L_CONS = RING+16; L_RED = RING+256; L_OP = RING+512; L_ACT = RING+768; L_QW = RING+1024; L_LN = RING+5120
    WS_E = 0; WS_PAR = 0x800; WS_CNT = 0x1000; WS_H = 0x4000; WS_Q = 0x8000; WS_PRB = 0x10000; WS_D = 0x80000; WS_A = 0x100000; WS_B = 0x200000; WS_ST = 0x400000
    C_SCALE = f2u(1.4426950408889634/16.0); LOG2E = f2u(1.4426950408889634); INV448 = f2u(1.0/448.0); EPS = f2u(1e-5)
    EXTRA = 32; POOL = 2048-32*NS+EXTRA; TL = 128-2*NS
    assert W in (20,24,28,32) and NF <= 5
    sWG="s2"; sWAVE="s3"
    pX="s[4:5]"; pK=(6,7); pV=(8,9); pWQ=(10,11); pWO=(12,13); pW1=(16,17); pW2=(18,19); pOUT="s[20:21]"; pWS="s[24:25]"
    sG="s26"; sJ="s27"; sROLE="s28"; sN="s31"; sSLOT="s32"; sKNOWN="s33"; sT0="s34"; sT1="s35"; sT2="s36"
    sCI="s37"; sSPIN="s38"; sIDX="s39"; sNS="s63"
    vK=[4+i for i in range(8)]; vV=[12+i for i in range(4)]; vLIN=16; vT=[17,18]; vFL=21; vTMP=22; vC=24; vCA=28; vONE=29; vCL=[30,31]
    srdK="s[40:43]"; srdV="s[44:47]"; srdW="s[48:51]"; srdZ="s[52:55]"
    sCUR="s56"; sGB="s57"; sOFF="s58"; sCLM="s59"; sBASE="s61"; sFLOOR="s62"
    sB="s29"; sHKV="s30"; sW="s40"; sTAG="s41"; sM1="s[42:43]"; sM2="s[44:45]"; sC="s46"; sE="s47"; sRR="s48"; sTOT="s49"
    sCK=["s[50:51]","s[52:53]","s[54:55]","s[56:57]"]; sCOL="s58"; sGP="s59"; sP0="s60"; sP1="s61"; sWRM="s62"
    vLANE=0; vN=1; vG4=2; vFLG=3; vCONS=4; vTM=5; vTM2=6; vTM3=7
    vM=8; vMC=9; vL=10; vMX=11
    vKB=[12,13,14,15]; vVB=[16,17,18,19]; vAD=[20,21,22,23]
    vS=24; vP=32; vO=36; vQ=52; vF=84; vAA=104; vAI=105; vBA=106
    vWO=108; vW1=136; vW2=192; vX=248; vXH=254
    xr1 = [vWO+u for u in range(7)]; vLW1 = vWO+24

    uid=[0]
    def lab(p): uid[0]+=1; return f"L_{p}_{uid[0]}"
    def P(r): return f"v[{r}:{r+1}]"
    def Q4(r): return f"v[{r}:{r+3}]"
    def stamp(k):
        if not diag and not (enc and k in (0, enc[0], enc[1])): return
        A(f"s_memrealtime s[{70+2*k}:{71+2*k}]")
    def slot_advance():
        A(f"s_add_u32 {sN}, {sN}, 1"); A(f"s_add_u32 {sSLOT}, {sSLOT}, {SLOT}")
        A(f"s_cmp_eq_u32 {sSLOT}, {RING}"); A(f"s_cselect_b32 {sSLOT}, 0, {sSLOT}")
    def spin_guard(): A(f"s_sub_u32 {sSPIN}, {sSPIN}, 1"); A("s_cbranch_scc1 L_end")
    def one_lane(ins): A("s_mov_b64 exec, 1"); A(ins); A("s_mov_b64 exec, -1")
    def share_consts():
        A(f"s_sub_u32 {sT0}, {sROLE}, 8"); A(f"s_lshl_b32 {sIDX}, {sG}, 1"); A(f"s_add_u32 {sIDX}, {sIDX}, {sT0}")
        A(f"s_cmp_lt_u32 {sT0}, 2"); A(f"s_cselect_b32 {sIDX}, {sIDX}, 99")
        A(f"s_cselect_b32 {sNS}, {NS-4}, {NS}"); A(f"s_cmp_lt_u32 {sROLE}, 4"); A(f"s_cselect_b32 {sNS}, {NS-2}, {sNS}")
    def make_tag(dst, e): A(f"s_mul_i32 {dst}, {e}, 0x9e3779b1"); A(f"s_add_u32 {dst}, {dst}, 0x7f4a7c15")
    pads = []
    def pad(name):
        sk = lab("padskip"); A(f"s_branch {sk}"); E.label(f"L_pad_{name}"); A(f"s_branch L_ret_{name}"); E.label(sk)
    def touch_pad(name): A(f"s_branch L_pad_{name}"); E.label(f"L_ret_{name}")

    A(f"s_cmp_ge_u32 {sWG}, 256"); A("s_cbranch_scc1 L_end")
    stamp(0)
    A("s_load_dwordx16 s[4:19], s[0:1], 0"); A("s_load_dwordx4 s[20:23], s[0:1], 64"); A("s_load_dwordx2 s[24:25], s[0:1], 80")
    A("v_lshrrev_b32 v1, 6, v0"); A("v_and_b32 v0, 63, v0"); A(f"v_readfirstlane_b32 {sWAVE}, v1")
    A(f"s_lshr_b32 {sG}, {sWG}, 4"); A(f"s_and_b32 {sJ}, {sWG}, 15")
    A(f"s_lshr_b32 {sT0}, {sJ}, 1"); A(f"s_and_b32 {sT0}, {sT0}, 4"); A(f"s_and_b32 {sROLE}, {sJ}, 3"); A(f"s_add_u32 {sROLE}, {sROLE}, {sT0}")
    A(f"s_sub_u32 {sROLE}, {sROLE}, {sG}"); A(f"s_and_b32 {sROLE}, {sROLE}, 7")
    A(f"s_add_u32 {sT0}, {sROLE}, 4"); A(f"s_add_u32 {sT1}, {sROLE}, 8"); A(f"s_cmp_lt_u32 {sROLE}, 4"); A(f"s_cselect_b32 {sROLE}, {sROLE}, {sT1}")
    A(f"s_bitcmp1_b32 {sJ}, 2"); A(f"s_cselect_b32 {sROLE}, {sROLE}, {sT0}")
    A(f"s_mov_b32 {sN}, 0"); A(f"s_mov_b64 s[32:33], 0"); A(f"s_mov_b32 {sCI}, 0"); A(f"s_mov_b32 {sSPIN}, {spin}")
    A(f"v_mov_b32 v3, {L_FLAG}"); A(f"v_lshl_add_u32 v1, v0, 2, v3"); A("v_mov_b32 v2, 0")
    A("s_mov_b64 exec, 2"); A("v_bfrev_b32 v2, -2"); A("s_mov_b64 exec, 0x1ff"); A("ds_write_b32 v1, v2"); A("s_mov_b64 exec, -1")
    A(f"v_lshrrev_b32 v1, 5, v0"); A(f"v_mul_u32_u24 v1, 896, v1"); A(f"v_and_b32 v2, 31, v0"); A(f"v_lshl_add_u32 v{vLW1}, v2, 2, v1")
    A("s_waitcnt lgkmcnt(0)")
    A("s_barrier")
    A(f"s_cmp_eq_u32 {sWAVE}, 0"); A("s_cbranch_scc1 L_loader")
    A(f"s_load_dword {sE}, {pWS}, {WS_E}")
    A(f"s_cmp_ge_u32 {sROLE}, 4"); A("s_cbranch_scc1 L_consumer")
    for u in range(7): A(f"global_load_dword v{xr1[u]}, v{vLW1}, {pX} offset:{u*128}")
    A("s_branch L_qprod")

    def publish(back):
        A(f"s_sub_u32 {sT0}, {sN}, {back}"); A(f"s_max_i32 {sT0}, {sT0}, {sFLOOR}")
        A(f"v_mov_b32 v{vTMP}, {sT0}"); one_lane(f"ds_write_b32 v{vFL}, v{vTMP}")
    def throttle(i):
        if i % 4 == 3:
            A(f"s_waitcnt vmcnt({W})")
            if i//4 == (W-16)//4 - 1: publish(1)
    def tile_rows(specs, pol=pol):
        for i,(srd,vo,so) in enumerate(specs):
            if i % 4 == 0:
                A(f"s_add_u32 m0, {sSLOT}, {i*1024}" if i else f"s_mov_b32 m0, {sSLOT}")
                A(f"s_add_u32 {sOFF}, {sBASE}, {so}" if so else f"s_mov_b32 {sOFF}, {sBASE}")
            A(f"buffer_load_dwordx4 v{vo}, {srd}, {sOFF} offen offset:{(i%4)*1024} {pol} lds")
            throttle(i)
        slot_advance()
    def tile_tall(rowstride, t, nvalid):
        for i in range(16):
            A(f"s_add_u32 m0, {sSLOT}, {i*1024}" if i else f"s_mov_b32 m0, {sSLOT}")
            A(f"s_add_u32 {sOFF}, {sBASE}, {(t*128+i*8)*rowstride}")
            A(f"buffer_load_dwordx4 v{vT[i&1]}, {srdW if i < nvalid else srdZ}, {sOFF} offen {pol} lds")
            throttle(i)
        slot_advance()
    def tile_wide(pol=pol):
        tile_rows([(srdW if i < 14 else srdZ, vLIN, i*1024) for i in range(16)], pol)
        A(f"s_add_u32 {sBASE}, {sBASE}, 14336")
    def tall_voffs(stride):
        A("v_lshrrev_b32 v1, 3, v0"); A("v_and_b32 v2, 7, v0"); A("v_and_b32 v3, 2, v1"); A("v_xor_b32 v2, v2, v3"); A("v_lshlrev_b32 v2, 4, v2")
        A(f"v_mul_u32_u24 v3, {stride}, v1"); A(f"v_add_u32 v{vT[0]}, v3, v2"); A("v_xor_b32 v2, 64, v2"); A(f"v_add_u32 v{vT[1]}, v3, v2")
    def freecheck(k):
        ok = lab("free"); lp = lab("freepoll")
        A(f"s_add_u32 {sT0}, {sKNOWN}, {NSLOT-k}"); A(f"s_cmp_ge_u32 {sT0}, {sN}"); A(f"s_cbranch_scc1 {ok}")
        E.label(lp)
        A(f"ds_read_b128 {Q4(vC)}, v{vFL} offset:16")
        spin_guard()
        A("s_waitcnt lgkmcnt(0)")
        A(f"v_min3_u32 v{vC}, v{vC}, v{vC+1}, v{vC+2}"); A(f"v_min_u32 v{vC}, v{vC}, v{vC+3}")
        A(f"v_readfirstlane_b32 {sKNOWN}, v{vC}")
        A(f"s_add_u32 {sT0}, {sKNOWN}, {NSLOT-k}"); A(f"s_cmp_ge_u32 {sT0}, {sN}"); A(f"s_cbranch_scc1 {ok}")
        A("s_sleep 1"); A(f"s_branch {lp}")
        E.label(ok)
    def claim(p): one_lane(f"global_atomic_add v{vCL[p]}, v{vCA}, v{vONE}, {pWS} sc0")

    E.label("L_loader")
    A("s_setprio 3")
    A(f"v_mov_b32 v{vFL}, v3"); A(f"v_lshlrev_b32 v{vLIN}, 4, v0"); A(f"s_mov_b32 {sFLOOR}, 0")
    A("s_mov_b32 s50, 3670016"); A("s_mov_b32 s51, 0x20000")
    A(f"s_mov_b64 s[52:53], s[{pK[0]}:{pK[1]}]"); A("s_mov_b32 s54, 0"); A("s_mov_b32 s55, 0x20000")
    A(f"s_cmp_ge_u32 {sROLE}, 4"); A("s_cbranch_scc1 L_ld_noq")
    tall_voffs(8192)
    A(f"s_mov_b64 s[48:49], s[{pWQ[0]}:{pWQ[1]}]")
    A(f"s_and_b32 {sOFF}, {sG}, 7"); A(f"s_lshl_b32 {sOFF}, {sOFF}, 3"); A(f"s_lshr_b32 {sT0}, {sG}, 3"); A(f"s_lshl_b32 {sT0}, {sT0}, 2")
    A(f"s_add_u32 {sOFF}, {sOFF}, {sT0}"); A(f"s_add_u32 {sOFF}, {sOFF}, {sROLE}"); A(f"s_lshl_b32 {sOFF}, {sOFF}, 7")
    A("s_mov_b32 m0, 0")
    E.label("L_ld_q")
    for i in range(2):
        A(f"buffer_load_dwordx4 v{vT[i]}, {srdW}, {sOFF} offen {pol} lds")
        A(f"s_add_u32 {sOFF}, {sOFF}, {8*8192}"); A("s_add_u32 m0, m0, 1024")
    A(f"s_cmp_lt_u32 m0, {56*1024}"); A("s_cbranch_scc1 L_ld_q")
    A(f"s_mov_b32 {sN}, 4"); A(f"s_mov_b32 {sSLOT}, {4*SLOT}"); A(f"s_mov_b32 {sFLOOR}, 4")
    A(f"v_mov_b32 v{vTMP}, 4"); A("s_waitcnt vmcnt(0)"); one_lane(f"ds_write_b32 v{vFL}, v{vTMP}")
    E.label("L_ld_noq")
    if forcepar is None:
        A(f"s_cmp_eq_u32 {sWG}, {15*16 + 3}"); A("s_cbranch_scc1 L_probe")
    E.label("L_ld_wo")
    A(f"s_mov_b64 s[48:49], s[{pWO[0]}:{pWO[1]}]")
    A(f"s_and_b32 {sBASE}, {sWG}, 127"); A(f"s_mul_i32 {sBASE}, {sBASE}, {32*896}")
    E.label("L_ld_wo2")
    tile_wide(pol="")
    A(f"s_bitcmp1_b32 {sN}, 0"); A("s_cbranch_scc1 L_ld_wo2")
    A("v_lshrrev_b32 v1, 5, v0"); A("v_and_b32 v2, 31, v0")
    A("v_xor_b32 v3, v2, v1"); A("v_lshlrev_b32 v3, 4, v3"); A("v_lshl_or_b32 v3, v1, 9, v3")
    for i in range(8): A(f"v_xor_b32 v{vK[i]}, {i*32}, v3")
    A("v_lshlrev_b32 v3, 1, v1"); A("v_xor_b32 v3, v2, v3"); A("v_lshlrev_b32 v3, 4, v3"); A("v_lshl_or_b32 v3, v1, 9, v3")
    for i in range(4): A(f"v_xor_b32 v{vV[i]}, {i*64}, v3")
    share_consts()
    A(f"s_lshl_b32 {sGB}, {sG}, 24")
    A(f"s_lshl_b32 {sCUR}, {sJ}, 7")
    A(f"s_lshl_b32 {sT0}, {sG}, 8"); A(f"s_add_u32 {sT0}, {sT0}, {WS_CNT}"); A(f"v_mov_b32 v{vCA}, {sT0}"); A(f"v_mov_b32 v{vONE}, 1")
    A(f"s_mov_b64 s[40:41], s[{pK[0]}:{pK[1]}]"); A("s_mov_b32 s42, 0x10000000"); A("s_mov_b32 s43, 0x20000")
    A(f"s_mov_b64 s[44:45], s[{pV[0]}:{pV[1]}]"); A("s_mov_b32 s46, 0x10000000"); A("s_mov_b32 s47, 0x20000")
    A(f"s_cmp_lt_u32 {sIDX}, 28"); A(f"s_cbranch_scc1 L_ld_ffn")
    E.label("L_ld_loop")
    if diag:
        for k,c in enumerate(ldst or (0,2,3,4,6,8,16,32,NS-5)):
            sk=lab("ls"); A(f"s_cmp_lg_u32 {sCI}, {c}"); A(f"s_cbranch_scc1 {sk}"); A(f"s_memrealtime s[{72+2*k}:{73+2*k}]"); A("s_waitcnt lgkmcnt(0)"); E.label(sk)
    A(f"s_add_u32 {sCI}, {sCI}, 1")
    A(f"s_lshl_b32 {sBASE}, {sCUR}, 13"); A(f"s_add_u32 {sBASE}, {sBASE}, {sGB}")
    for p,(srd,vo) in enumerate(((srdK,vK),(srdV,vV))):
        freecheck(1)
        sk = lab("nocl"); A(f"s_cmp_lt_u32 {sCI}, {sNS}"); A(f"s_cbranch_scc1 {sk}")
        claim(p)
        E.label(sk)
        tile_rows([(srd, vo[i%len(vo)], i*1024) for i in range(16)])
    A(f"s_add_u32 {sCUR}, {sCUR}, 2")
    A(f"s_cmp_lt_u32 {sCI}, {sNS}"); A("s_cbranch_scc1 L_ld_loop")
    E.label("L_ld_dyn")
    for p in range(2):
        A(f"v_readfirstlane_b32 {sCLM}, v{vCL[p]}")
        A(f"s_cmp_ge_u32 {sCLM}, {POOL}"); A("s_cbranch_scc1 L_ld_dyn_done")
        A(f"s_cmp_lt_u32 {sCLM}, {EXTRA}"); A(f"s_cbranch_scc1 L_ld_shed{p}")
        A(f"s_sub_u32 {sCLM}, {sCLM}, {EXTRA}")
        A(f"s_mul_hi_u32 {sT0}, {sCLM}, {-(-(1<<32)//TL)}"); A(f"s_mul_i32 {sT0}, {sT0}, {2*NS}"); A(f"s_add_u32 {sCUR}, {sCLM}, {sT0}"); A(f"s_add_u32 {sCUR}, {sCUR}, {2*NS}")
        E.label(f"L_ld_unit{p}")
        freecheck(1)
        claim(p)
        A(f"s_lshr_b32 {sBASE}, {sCUR}, 1"); A(f"s_lshl_b32 {sBASE}, {sBASE}, 14"); A(f"s_and_b32 {sT0}, {sCUR}, 1"); A(f"s_lshl_b32 {sT0}, {sT0}, 12")
        A(f"s_add_u32 {sBASE}, {sBASE}, {sT0}"); A(f"s_add_u32 {sBASE}, {sBASE}, {sGB}")
        tile_rows([(srdK, vK[i], i*2048) for i in range(8)] + [(srdV, vV[i%4], i*2048) for i in range(8)])
    A("s_branch L_ld_dyn")
    E.label("L_ld_dyn_done")
    A(f"v_mov_b32 v{vTMP}, {sN}"); one_lane(f"ds_write_b32 v{vFL}, v{vTMP} offset:4")
    for c,back in ((16,1),(0,0)):
        A(f"s_waitcnt vmcnt({c})"); publish(back)
    if diag:
        A("s_mov_b64 exec, 1"); A("s_memrealtime s[90:91]")
        A(f"s_lshl_b32 {sT0}, {sWG}, 6"); A(f"s_add_u32 {sT0}, {sT0}, {WS_ST+0x40000}"); A(f"v_mov_b32 v46, {sT0}")
        A("s_waitcnt lgkmcnt(0)")
        for k in range(11): A(f"v_mov_b32 v{32+k}, s{70+2*k}")
        A(f"v_mov_b32 v43, {sSPIN}")
        for q in range(3): A(f"global_store_dwordx4 v46, v[{32+4*q}:{35+4*q}], {pWS} offset:{q*16}")
    A("s_waitcnt lgkmcnt(0)")
    A("s_endpgm")
    for p in range(2):
        E.label(f"L_ld_shed{p}")
        A(f"s_lshr_b32 {sT0}, {sCLM}, 3"); A(f"s_add_u32 {sT0}, {sT0}, 4"); A(f"s_and_b32 {sT1}, {sCLM}, 7"); A(f"s_add_u32 {sT1}, {sT1}, {2*(NS-4)}")
        A(f"s_bfe_u32 {sT2}, {sCLM}, 0x20002"); A(f"s_and_b32 {sCUR}, {sCLM}, 3"); A(f"s_add_u32 {sCUR}, {sCUR}, {2*(NS-2)+4*128}")
        A(f"s_cmp_lt_u32 {sCLM}, 16"); A(f"s_cselect_b32 {sT0}, {sT0}, {sT2}"); A(f"s_cselect_b32 {sCUR}, {sT1}, {sCUR}")
        A(f"s_add_u32 {sT0}, {sT0}, {sG}"); A(f"s_and_b32 {sT1}, {sT0}, 3"); A(f"s_bfe_u32 {sT0}, {sT0}, 0x10002"); A(f"s_lshl_b32 {sT0}, {sT0}, 3"); A(f"s_add_u32 {sT0}, {sT0}, {sT1}")
        A(f"s_lshl_b32 {sT0}, {sT0}, 7"); A(f"s_add_u32 {sCUR}, {sCUR}, {sT0}")
        A(f"s_branch L_ld_unit{p}")

    def SEL4(dst, a, b, c, d, t):
        A(f"v_cndmask_b32 v{dst}, v{a}, v{b}, {sM1}"); A(f"v_cndmask_b32 v{t}, v{c}, v{d}, {sM1}"); A(f"v_cndmask_b32 v{dst}, v{dst}, v{t}, {sM2}")
    def xrow(op, regs, tmps):
        for sw in ("v_permlane16_swap_b32","v_permlane32_swap_b32"):
            for r,t in zip(regs,tmps): A(f"v_mov_b32 v{t}, v{r}")
            for r,t in zip(regs,tmps): A(f"{sw} v{r}, v{t}")
            for r,t in zip(regs,tmps): A(f"{op} v{r}, v{r}, v{t}")
    def round_bf(dst, src): A(f"v_cvt_pk_bf16_f32 v{dst}, v{src}, v{src}"); A(f"v_and_b32 v{dst}, 0xffff0000, v{dst}")
    def unpack(lo, hi, src): A(f"v_lshlrev_b32 v{lo}, 16, v{src}"); A(f"v_and_b32 v{hi}, 0xffff0000, v{src}")
    def pub_cons():
        slot_advance()
        A(f"v_mov_b32 v{vTM}, {sN}"); one_lane(f"ds_write_b32 v{vCONS}, v{vTM}")
    def wait_tile(fin=None):
        ok = lab("have"); lp = lab("poll")
        if fin: A(f"s_cmp_eq_u32 {sTOT}, {sN}"); A(f"s_cbranch_scc1 {fin}")
        A(f"s_cmp_gt_u32 {sKNOWN}, {sN}"); A(f"s_cbranch_scc1 {ok}")
        E.label(lp)
        A(f"ds_read_b64 {P(vAD[0])}, v{vFLG}")
        spin_guard()
        A("s_waitcnt lgkmcnt(0)")
        A(f"v_readfirstlane_b32 {sKNOWN}, v{vAD[0]}")
        if fin:
            A(f"v_readfirstlane_b32 {sTOT}, v{vAD[1]}")
            nw = lab("nw")
            A(f"s_cmp_ge_u32 {sTOT}, {sWRM}"); A(f"s_cbranch_scc1 {nw}")
            A(f"s_mov_b32 {sWRM}, 0"); A(f"global_load_dword v{vX+2}, v{vX+3}, {pWS} {ldf}")
            E.label(nw)
            A(f"s_cmp_eq_u32 {sTOT}, {sN}"); A(f"s_cbranch_scc1 {fin}")
        A(f"s_cmp_gt_u32 {sKNOWN}, {sN}"); A(f"s_cbranch_scc1 {ok}")
        A("s_sleep 1"); A(f"s_branch {lp}")
        E.label(ok)
    def poll(loads, tags, first_mask=None):
        lp = lab("gpoll"); n = len(loads)
        for i in range(n): A(f"s_mov_b64 {sCK[i]}, {first_mask[i] if first_mask else -1}")
        E.label(lp)
        for i,l in enumerate(loads):
            sk = lab("sk")
            A(f"s_mov_b64 exec, {sCK[i]}"); A(f"s_cbranch_execz {sk}"); A(l); E.label(sk)
        A("s_mov_b64 exec, -1")
        spin_guard()
        A("s_waitcnt vmcnt(0)")
        for i in range(n):
            A(f"v_cmp_ne_u32 {sCK[i]}, {sTAG}, v{tags[i][0]}")
            for t in tags[i][1:]:
                A(f"v_cmp_ne_u32 vcc, {sTAG}, v{t}"); A(f"s_or_b64 {sCK[i]}, {sCK[i]}, vcc")
        A(f"s_or_b64 vcc, {sCK[0]}, {sCK[min(1,n-1)]}")
        for i in range(2, n): A(f"s_or_b64 vcc, vcc, {sCK[i]}")
        A(f"s_cbranch_scc1 {lp}")
    def layernorm(xr, f, lnbase, stride, mid=None):
        s1=vTM; t=vTM2; mu=vX; a=vX+2; b=vX+4
        for u in range(7): unpack(f+2*u, f+2*u+1, xr[u])
        A(f"v_pk_add_f32 {P(a)}, {P(f)}, {P(f+2)}"); A(f"v_pk_add_f32 {P(b)}, {P(f+4)}, {P(f+6)}")
        A(f"v_pk_add_f32 {P(a)}, {P(a)}, {P(f+8)}"); A(f"v_pk_add_f32 {P(b)}, {P(b)}, {P(f+10)}")
        A(f"v_pk_add_f32 {P(a)}, {P(a)}, {P(f+12)}"); A(f"v_pk_add_f32 {P(a)}, {P(a)}, {P(b)}")
        A(f"v_add_f32 v{s1}, v{a}, v{a+1}")
        red32 = [f"v_add_f32_dpp v{s1}, v{s1}, v{s1} row_ror:{k} row_mask:0xf bank_mask:0xf" for k in (8,4,2,1)]
        red32 += [f"v_mov_b32 v{t}, v{s1}", f"v_permlane16_swap_b32 v{s1}, v{t}", f"v_add_f32 v{s1}, v{s1}, v{t}"]
        for l in red32: A(l)
        A(f"v_mul_f32 v{mu}, {INV448:#x}, v{s1}")
        NEG = "op_sel_hi:[1,0] neg_lo:[0,1] neg_hi:[0,1]"
        A(f"v_pk_add_f32 {P(b)}, {P(f)}, {P(mu)} {NEG}")
        A(f"v_pk_mul_f32 {P(a)}, {P(b)}, {P(b)}")
        for u in range(1,7):
            A(f"v_pk_add_f32 {P(b)}, {P(f+2*u)}, {P(mu)} {NEG}")
            A(f"v_pk_fma_f32 {P(a)}, {P(b)}, {P(b)}, {P(a)}")
        A(f"v_add_f32 v{s1}, v{a}, v{a+1}")
        round_bf(mu, mu)
        fill = [f"v_pk_add_f32 {P(f+2*u)}, {P(f+2*u)}, {P(mu)} {NEG}" for u in range(7)] + [f"v_cvt_pk_bf16_f32 v{xr[u]}, v{f+2*u}, v{f+2*u+1}" for u in range(7)]
        for u in range(7): fill += [f"v_lshlrev_b32 v{f+2*u}, 16, v{xr[u]}", f"v_and_b32 v{f+2*u+1}, 0xffff0000, v{xr[u]}"]
        rb = [f"v_cvt_pk_bf16_f32 v{s1}, v{s1}, v{s1}", f"v_and_b32 v{s1}, 0xffff0000, v{s1}"]
        chain = red32 + [f"v_mul_f32 v{s1}, {INV448:#x}, v{s1}"] + rb + [f"v_add_f32 v{s1}, {EPS:#x}, v{s1}"] + rb + [f"v_sqrt_f32 v{s1}, v{s1}"] + rb + [f"v_rcp_f32 v{a}, v{s1}"]
        while chain or fill:
            for _ in range(2):
                if fill: A(fill.pop(0))
            if chain: A(chain.pop(0))
        if mid: mid()
        for u in range(7): A(f"v_pk_mul_f32 {P(f+2*u)}, {P(f+2*u)}, {P(a)} op_sel_hi:[1,0]")
        for u in range(7):
            A(f"v_cvt_pk_bf16_f32 v{xr[u]}, v{f+2*u}, v{f+2*u+1}")
            A(f"ds_write_b32 v{lnbase}, v{xr[u]} offset:{u*stride}")
    def ln_read_addr(rd, base):
        A(f"v_and_b32 v{rd}, 1, v{vLANE}"); A(f"v_mul_u32_u24 v{rd}, 896, v{rd}")
        A(f"v_lshl_add_u32 v{rd}, v{vG4}, 4, v{rd}"); A(f"v_add_u32 v{rd}, {base}, v{rd}")
    def tall_addr(dst):
        A(f"v_lshrrev_b32 v{vTM}, 3, v{vN}")
        A(f"v_and_b32 v{vTM2}, 1, v{vG4}"); A(f"v_lshl_or_b32 v{vTM}, v{vTM2}, 1, v{vTM}")
        A(f"v_xor_b32 v{vTM}, {sW}, v{vTM}"); A(f"v_lshlrev_b32 v{vTM}, 5, v{vTM}")
        A(f"v_and_b32 v{vTM2}, 3, v{vN}"); A(f"v_lshl_or_b32 v{vTM}, v{vTM2}, 3, v{vTM}")
        A(f"v_lshrrev_b32 v{vTM2}, 2, v{vN}"); A(f"v_lshl_or_b32 v{vTM}, v{vTM2}, 7, v{vTM}")
        A(f"v_lshl_or_b32 v{dst}, v{vG4}, 10, v{vTM}")
    def wide_addr(dst):
        A(f"v_lshrrev_b32 v{vTM}, 2, v{vN}"); A(f"v_lshl_add_u32 v{vTM}, v{vG4}, 2, v{vTM}"); A(f"v_mul_u32_u24 v{vTM}, 896, v{vTM}")
        A(f"v_and_b32 v{vTM2}, 3, v{vN}"); A(f"v_lshl_add_u32 v{vTM}, v{vTM2}, 3, v{vTM}")
        A(f"s_mul_i32 {sT0}, {sW}, 224"); A(f"v_add_u32 v{dst}, {sT0}, v{vTM}")
    def read_tall_tile(base, dstreg, t):
        wait_tile()
        A(f"v_add_u32 v{vAD[0]}, {sSLOT}, v{base}")
        for s in range(4 if t < 3 else 2):
            for h2 in range(2):
                A(f"ds_read_b64_tr_b16 {P(dstreg + 4*(4*t+s) + 2*h2)}, v{vAD[0]} offset:{s*4096+h2*512}")
        A("s_waitcnt lgkmcnt(0)")
        pub_cons()
    def read_wide_tile(base, dstreg, half):
        wait_tile()
        A(f"v_add_u32 v{vAD[0]}, {sSLOT}, v{base}")
        for tt in range(7): A(f"ds_read_b64_tr_b16 {P(dstreg + 4*tt + 2*half)}, v{vAD[0]} offset:{tt*32}")
        A("s_waitcnt lgkmcnt(0)")
        pub_cons()
    def basic_setup():
        A(f"s_sub_u32 {sW}, {sWAVE}, 1"); A(f"s_lshr_b32 {sB}, {sG}, 3"); A(f"s_and_b32 {sHKV}, {sG}, 7")
        A(f"v_and_b32 v{vN}, 15, v{vLANE}"); A(f"v_lshrrev_b32 v{vG4}, 4, v{vLANE}")
        A(f"s_lshl_b32 {sT0}, {sW}, 2"); A(f"s_add_u32 {sT0}, {sT0}, {L_CONS}"); A(f"v_mov_b32 v{vCONS}, {sT0}")
        A("s_mov_b32 s42, 0xffff0000"); A("s_mov_b32 s43, s42")

    E.label("L_qprod")
    f14 = vWO+8; vLR = vWO+25; vTA = vWO+26; vQA = vWO+27
    basic_setup()
    A(f"s_or_b32 {sT0}, {sROLE}, {sW}"); A(f"s_cmp_lg_u32 {sT0}, 0"); A("s_cbranch_scc1 L_noinit")
    A(f"s_lshl_b32 {sT0}, {sG}, 8"); A(f"s_add_u32 {sT0}, {sT0}, {WS_CNT}")
    A(f"v_mov_b32 v{vTM2}, {sT0}"); A(f"v_mov_b32 v{vTM3}, 0")
    one_lane(f"global_store_dword v{vTM2}, v{vTM3}, {pWS} {stf}")
    E.label("L_noinit")
    A(f"s_lshl_b32 {sT2}, {sW}, 11"); A(f"s_add_u32 {sT2}, {sT2}, {L_LN}")
    A(f"v_add_u32 v{vLW1}, {sT2}, v{vLW1}")
    ln_read_addr(vLR, sT2)
    tall_addr(vTA)
    A(f"s_lshl_b32 {sT0}, {sB}, 2"); A(f"s_add_u32 {sT0}, {sT0}, {sROLE}"); A(f"s_lshl_b32 {sT0}, {sT0}, 2"); A(f"s_add_u32 {sT0}, {sT0}, {sW}")
    A(f"s_lshl_b32 {sT0}, {sT0}, 6"); A(f"s_lshl_b32 {sT1}, {sHKV}, 11"); A(f"s_add_u32 {sT0}, {sT0}, {sT1}"); A(f"s_add_u32 {sT0}, {sT0}, {WS_Q}")
    A(f"v_lshlrev_b32 v{vQA}, 2, v{vN}"); A(f"v_lshl_add_u32 v{vQA}, v{vG4}, 14, v{vQA}"); A(f"v_add_u32 v{vQA}, {sT0}, v{vQA}")
    if qtouch: touch_pad("q")
    A("s_waitcnt vmcnt(0) lgkmcnt(0)")
    stamp(12)
    layernorm(xr1, f14, vLW1, 128, mid=(lambda: pad("q")) if qtouch else None)
    make_tag(sTAG, sE); A(f"v_mov_b32 v{vX+1}, {sTAG}")
    A("s_waitcnt lgkmcnt(0)")
    stamp(13)
    for s in range(14): A(f"ds_read_b128 {Q4(vW2+4*s)}, v{vLR} offset:{s*64}")
    A(f"s_mov_b32 {sN}, 3"); wait_tile()
    stamp(14)
    for s in range(14):
        for h2 in range(2): A(f"ds_read_b64_tr_b16 {P(vW1 + 4*s + 2*h2)}, v{vTA} offset:{s*4096+h2*512}")
        if s % 4 == 3 or s == 13:
            A(f"s_waitcnt lgkmcnt(0)")
            for k in range(s - s % 4, s+1):
                A(f"v_mfma_f32_16x16x32_bf16 {Q4(vS)}, {Q4(vW2+4*k)}, {Q4(vW1+4*k)}, {'0' if k==0 else Q4(vS)}")
    A(f"s_mov_b32 {sSLOT}, {3*SLOT}"); pub_cons()
    A(f"v_cndmask_b32 v{vTM}, v{vS}, v{vS+1}, {sM1}")
    A(f"v_mov_b32_dpp v{vTM2}, v{vTM} quad_perm:[1,0,3,2] row_mask:0xf bank_mask:0xf")
    A(f"v_cvt_pk_bf16_f32 v{vX}, v{vTM}, v{vTM2}")
    A("s_mov_b64 exec, 0x55555555")
    A(f"global_store_dwordx2 v{vQA}, {P(vX)}, {pWS} {stf}")
    A("s_mov_b64 exec, -1")
    stamp(1)

    E.label("L_consumer")
    basic_setup()
    share_consts()
    A("s_mov_b32 s44, 0"); A("s_mov_b32 s45, -1"); A(f"s_mov_b32 {sC}, {C_SCALE:#x}"); A("s_mov_b32 s66, -1"); A("s_mov_b32 s67, 0"); A(f"s_mov_b32 {sTOT}, 0x7fffffff")
    if hilo: A("s_mov_b32 s64, 0xcccccccc"); A("s_mov_b32 s65, 0xcccccccc")
    stamp(11)
    A(f"s_sub_u32 {sT0}, {sROLE}, 4"); A(f"s_lshl_b32 {sRR}, {sG}, 2"); A(f"s_add_u32 {sRR}, {sRR}, {sT0}")
    A(f"s_cmp_lt_u32 {sT0}, 4"); A(f"s_cselect_b32 {sRR}, {sRR}, 99"); A("s_cbranch_scc0 L_nox")
    A(f"s_bfe_u32 {sT0}, {sRR}, 0x20003"); A(f"s_mul_i32 {sCOL}, {sT0}, 224")
    A(f"s_bfe_u32 {sGP}, {sRR}, 0x20001"); A(f"s_lshl_b32 {sT0}, {sGP}, 6"); A(f"s_add_u32 {sCOL}, {sCOL}, {sT0}")
    A(f"s_and_b32 {sT0}, {sRR}, 1"); A(f"s_lshl_b32 {sT0}, {sT0}, 4"); A(f"s_add_u32 {sCOL}, {sCOL}, {sT0}")
    A(f"s_bfe_u32 {sT0}, {sRR}, 0x10005"); A(f"s_mul_i32 {sT0}, {sT0}, 896"); A(f"s_add_u32 {sCOL}, {sCOL}, {sT0}")
    A(f"v_and_b32 v{vTM}, 6, v{vLANE}"); A(f"v_lshl_add_u32 v{vTM}, v{vTM}, 1, {sCOL}")
    A(f"global_load_dword v{vXH}, v{vTM}, {pX}")
    A(f"v_mov_b32 v{vXH+1}, 0")
    A(f"s_cmp_eq_u32 {sGP}, 3"); A("s_cbranch_scc1 L_nox")
    A(f"global_load_dword v{vXH+1}, v{vTM}, {pX} offset:32")
    E.label("L_nox")
    A(f"v_xor_b32 v{vTM}, v{vG4}, v{vN}"); A(f"v_lshlrev_b32 v{vTM}, 4, v{vTM}"); A(f"v_lshl_or_b32 v{vTM}, v{vN}, 9, v{vTM}")
    for s in range(4): A(f"v_xor_b32 v{vKB[s]}, {s*64}, v{vTM}")
    A(f"v_lshrrev_b32 v{vTM}, 2, v{vN}"); A(f"v_lshl_add_u32 v{vTM}, v{vG4}, 2, v{vTM}")
    A(f"v_and_b32 v{vTM2}, 7, v{vTM}")
    A(f"s_lshl_b32 {sT0}, {sW}, 2"); A(f"v_xor_b32 v{vTM2}, {sT0}, v{vTM2}"); A(f"v_lshlrev_b32 v{vTM2}, 5, v{vTM2}")
    A(f"v_lshl_or_b32 v{vTM}, v{vTM}, 9, v{vTM2}")
    A(f"v_and_b32 v{vTM2}, 3, v{vN}"); A(f"v_lshl_or_b32 v{vTM}, v{vTM2}, 3, v{vTM}")
    for e in range(4): A(f"v_xor_b32 v{vVB[e]}, {e*32}, v{vTM}")
    A(f"v_mov_b32 v{vM}, 0xff800000"); A(f"v_mov_b32 v{vMC}, v{vM}"); A(f"v_mov_b32 v{vL}, 0")
    for i in range(16): A(f"v_mov_b32 v{vO+i}, 0")
    wide_addr(vX)
    for h in range(2): read_wide_tile(vX, vWO, h)
    A(f"s_cmp_lt_u32 {sIDX}, 28"); A("s_cbranch_scc1 L_ffn_w")
    E.label("L_ffn_w_done")
    make_tag(sTAG, sE)
    A(f"s_cmp_lg_u32 {sW}, 0"); A("s_cbranch_scc1 L_q_flag")
    if qwait:
        A(f"s_add_u32 {sN}, {sN}, {qwait-1}"); wait_tile(); A(f"s_sub_u32 {sN}, {sN}, {qwait-1}")
    A(f"s_lshl_b32 {sT0}, {sG}, 11"); A(f"s_add_u32 {sT0}, {sT0}, {WS_Q}")
    A(f"v_lshl_add_u32 v{vTM3}, v{vLANE}, 4, {sT0}")
    poll([f"global_load_dwordx4 {Q4(vF)}, v{vTM3}, {pWS} {ldf}", f"global_load_dwordx4 {Q4(vF+4)}, v{vTM3}, {pWS} offset:1024 {ldf}"],
         [[vF+1, vF+3], [vF+5, vF+7]])
    A(f"v_lshlrev_b32 v{vTM}, 3, v{vLANE}"); A(f"v_add_u32 v{vTM}, {L_QW}, v{vTM}"); A(f"v_mov_b32 v{vTM2}, 1")
    A(f"ds_write2_b32 v{vTM}, v{vF}, v{vF+2} offset0:0 offset1:1"); A(f"ds_write2_b32 v{vTM}, v{vF+4}, v{vF+6} offset0:128 offset1:129")
    one_lane(f"ds_write_b32 v{vFLG}, v{vTM2} offset:32")
    E.label("L_q_flag")
    A(f"ds_read_b32 v{vTM}, v{vFLG} offset:32")
    spin_guard()
    A("s_waitcnt lgkmcnt(0)")
    A(f"v_readfirstlane_b32 {sT0}, v{vTM}")
    A(f"s_cmp_eq_u32 {sT0}, 1"); A("s_cbranch_scc1 L_q_have")
    A("s_sleep 1"); A("s_branch L_q_flag")
    E.label("L_q_have")
    A(f"v_and_b32 v{vTM2}, 1, v{vLANE}"); A(f"v_lshlrev_b32 v{vTM2}, 9, v{vTM2}"); A(f"v_lshl_add_u32 v{vTM2}, v{vG4}, 4, v{vTM2}"); A(f"v_add_u32 v{vTM2}, {L_QW}, v{vTM2}")
    for s in range(8): A(f"ds_read_b128 {Q4(vQ+4*s)}, v{vTM2} offset:{s*64}")
    stamp(2)
    A("s_waitcnt lgkmcnt(0)")

    def qk(nt):
        for s in range(4): A(f"v_add_u32 v{vAD[s]}, {sSLOT}, v{vKB[s]}")
        seq = [(t,s) for s in range(8) for t in range(nt)]; n = len(seq)
        def kread(i):
            t,s = seq[i]; A(f"ds_read_b128 {Q4(vF + 4*(i % NF))}, v{vAD[s&3]} offset:{(s>>2)*256 + t*8192}")
        for i in range(NF): kread(i)
        for i in range(n):
            t,s = seq[i]
            A(f"s_waitcnt lgkmcnt({min(NF-1, n-1-i)})")
            d = Q4(vS+4*t)
            A(f"v_mfma_f32_16x16x32_bf16 {d}, {Q4(vF + 4*(i % NF))}, {Q4(vQ+4*s)}, {'0' if s==0 else d}")
            if i + NF < n: kread(i+NF)
    def softmax(nt, tag):
        n = 4*nt
        for i in range(n//2): A(f"v_cvt_pk_bf16_f32 v{vP+i}, v{vS+2*i}, v{vS+2*i+1}")
        for i in range(n//2): unpack(vS+2*i, vS+2*i+1, vP+i)
        if nt == 2:
            A(f"v_max3_f32 v{vMX}, v{vS}, v{vS+1}, v{vS+2}"); A(f"v_max3_f32 v{vTM}, v{vS+3}, v{vS+4}, v{vS+5}")
            A(f"v_max3_f32 v{vMX}, v{vMX}, v{vS+6}, v{vS+7}"); A(f"v_max_f32 v{vMX}, v{vMX}, v{vTM}")
        else:
            A(f"v_max3_f32 v{vMX}, v{vS}, v{vS+1}, v{vS+2}"); A(f"v_max_f32 v{vMX}, v{vMX}, v{vS+3}")
        xrow("v_max_f32", [vMX], [vTM])
        A(f"v_cmp_gt_f32 vcc, v{vMX}, v{vM}")
        A("s_cmp_lg_u64 vcc, 0"); A(f"s_cbranch_scc1 L_rescale{tag}")
        E.label(f"L_rescaled{tag}")
        for i in range(n): A(f"v_fma_f32 v{vS+i}, v{vS+i}, {sC}, -v{vMC}")
        for i in range(n): A(f"v_exp_f32 v{vS+i}, v{vS+i}")
        for i in range(n//2): A(f"v_cvt_pk_bf16_f32 v{vP+i}, v{vS+2*i}, v{vS+2*i+1}")
        if hilo:
            for i in range(n//2):
                t = vF+16+2*(i&1)
                unpack(t, t+1, vP+i)
                A(f"v_pk_add_f32 {P(t)}, {P(vS+2*i)}, {P(t)} neg_lo:[0,1] neg_hi:[0,1]")
                A(f"v_cvt_pk_bf16_f32 v{t}, v{t}, v{t+1}")
                A(f"v_cndmask_b32 v{vP+i}, v{vP+i}, v{t}, s[64:65]")
    def add_l(nt):
        A(f"v_add_f32 v{vTM}, v{vS}, v{vS+1}"); A(f"v_add_f32 v{vMX}, v{vS+2}, v{vS+3}")
        if nt == 2:
            A(f"v_add_f32 v{vS+4}, v{vS+4}, v{vS+5}"); A(f"v_add_f32 v{vS+6}, v{vS+6}, v{vS+7}")
            A(f"v_add_f32 v{vTM}, v{vTM}, v{vS+4}"); A(f"v_add_f32 v{vMX}, v{vMX}, v{vS+6}")
        A(f"v_add_f32 v{vL}, v{vL}, v{vTM}"); A(f"v_add_f32 v{vL}, v{vL}, v{vMX}")
    def rescale(tag):
        E.label(f"L_rescale{tag}")
        A(f"v_max_f32 v{vM}, v{vM}, v{vMX}")
        A(f"v_mul_f32 v{vTM}, {sC}, v{vM}")
        A(f"v_sub_f32 v{vTM2}, v{vMC}, v{vTM}")
        A(f"v_mov_b32 v{vMC}, v{vTM}")
        A(f"v_exp_f32 v{vTM2}, v{vTM2}")
        A(f"v_mul_f32 v{vL}, v{vL}, v{vTM2}")
        A(f"v_mov_b32_dpp v{vTM}, v{vTM2} quad_perm:[0,0,2,2] row_mask:0xf bank_mask:0xf")
        A(f"v_mov_b32_dpp v{vTM3}, v{vTM2} quad_perm:[1,1,3,3] row_mask:0xf bank_mask:0xf")
        for i in range(16): A(f"v_mul_f32 v{vO+i}, v{vO+i}, v{vTM if i%2==0 else vTM3}")
        A(f"s_branch L_rescaled{tag}")
    E.label("L_loop")
    wait_tile()
    qk(2)
    pub_cons()
    softmax(2, "a"); add_l(2)
    wait_tile()
    for e in range(4): A(f"v_add_u32 v{vAD[e]}, {sSLOT}, v{vVB[e]}")
    for e in range(4):
        for h2 in range(2): A(f"ds_read_b64_tr_b16 {P(vF + 4*e + 2*h2)}, v{vAD[e]} offset:{h2*8192}")
    for e in range(4):
        A(f"s_waitcnt lgkmcnt({6-2*e})")
        A(f"v_mfma_f32_16x16x32_bf16 {Q4(vO+4*e)}, {Q4(vP)}, {Q4(vF+4*e)}, {Q4(vO+4*e)}")
    pub_cons()
    A(f"s_add_u32 {sCI}, {sCI}, 1"); A(f"s_cmp_lt_u32 {sCI}, {sNS}"); A("s_cbranch_scc1 L_loop")
    if touch:
        for nm in ("fin","red","ffn","ffn2"): touch_pad(nm)
    if forcepar is None:
        A(f"v_mov_b32 v{vTM}, {WS_PAR}")
        poll([f"global_load_dwordx4 {Q4(vF)}, v{vTM}, {pWS} {ldf}"], [[vF+1, vF+3]])
        A(f"v_readfirstlane_b32 {sP0}, v{vF}"); A(f"v_readfirstlane_b32 {sP1}, v{vF+2}")
    else:
        A(f"s_mov_b32 {sP0}, {forcepar[0]*8192}"); A(f"s_mov_b32 {sP1}, {forcepar[1]*8192}")
    A(f"s_lshl_b32 {sT0}, {sG}, 2"); A(f"s_and_b32 {sT1}, {sW}, 1"); A(f"s_add_u32 {sT0}, {sT0}, {sT1}"); A(f"s_lshl_b32 {sT0}, {sT0}, 14")
    A(f"s_lshr_b32 {sT1}, {sW}, 1"); A(f"s_lshl_b32 {sT1}, {sT1}, 13"); A(f"s_xor_b32 {sT1}, {sT1}, {sP0}"); A(f"s_add_u32 {sT0}, {sT0}, {sT1}")
    A(f"s_lshl_b32 {sT1}, {sJ}, 8"); A(f"s_add_u32 {sT0}, {sT0}, {sT1}"); A(f"s_add_u32 {sT0}, {sT0}, {WS_A}")
    A(f"v_lshrrev_b32 v{vAA}, 1, v{vG4}"); A(f"v_lshlrev_b32 v{vAA}, 15, v{vAA}")
    A(f"v_and_b32 v{vTM}, 1, v{vG4}"); A(f"v_lshl_or_b32 v{vAA}, v{vTM}, 12, v{vAA}"); A(f"v_lshl_or_b32 v{vAA}, v{vN}, 4, v{vAA}")
    A(f"v_add_u32 v{vAA}, {sT0}, v{vAA}")
    A(f"s_lshr_b32 {sT0}, {sWG}, 3"); A(f"s_lshl_b32 {sT0}, {sT0}, 1"); A(f"s_bfe_u32 {sT1}, {sWG}, 0x10001"); A(f"s_add_u32 {sT0}, {sT0}, {sT1}"); A(f"s_lshl_b32 {sT0}, {sT0}, 14")
    A(f"s_bfe_u32 {sT1}, {sWG}, 0x10002"); A(f"s_lshl_b32 {sT1}, {sT1}, 13"); A(f"s_xor_b32 {sT1}, {sT1}, {sP0}"); A(f"s_add_u32 {sT0}, {sT0}, {sT1}")
    A(f"s_and_b32 {sT1}, {sWG}, 1"); A(f"s_lshl_b32 {sT1}, {sT1}, 12"); A(f"s_add_u32 {sT0}, {sT0}, {sT1}"); A(f"s_add_u32 {sT0}, {sT0}, {WS_A}")
    A(f"v_lshlrev_b32 v{vAI}, 4, v{vN}"); A(f"v_lshl_or_b32 v{vAI}, v{vG4}, 10, v{vAI}"); A(f"v_add_u32 v{vAI}, {sT0}, v{vAI}")
    A(f"v_lshl_add_u32 v{vX+3}, v{vLANE}, 6, {sT0}")
    A(f"s_cmp_eq_u32 {sW}, 0"); A(f"s_cselect_b32 {sWRM}, 0x7fffffff, 0")
    A(f"s_cmp_ge_u32 {sRR}, 64"); A(f"s_cbranch_scc1 L_nored"); A(f"s_sub_u32 {sT0}, {sW}, 1"); A(f"s_cmp_ge_u32 {sT0}, 2"); A(f"s_cbranch_scc1 L_nored")
    A(f"s_lshl_b32 {sT0}, {sT0}, 14"); A(f"s_lshl_b32 {sT1}, {sRR}, 15"); A(f"s_add_u32 {sT0}, {sT0}, {sT1}"); A(f"s_add_u32 {sT0}, {sT0}, {sP1}"); A(f"s_add_u32 {sT0}, {sT0}, {WS_B}")
    A(f"v_lshl_add_u32 v{vX+3}, v{vLANE}, 7, {sT0}"); A(f"s_mov_b32 {sWRM}, 0x7fffffff")
    E.label("L_nored")
    A(f"s_lshl_b32 {sT0}, {sB}, 2"); A(f"s_add_u32 {sT0}, {sT0}, {sW}"); A(f"s_lshl_b32 {sT0}, {sT0}, 18")
    A(f"s_bfe_u32 {sT1}, {sWG}, 0x10006"); A(f"s_lshl_b32 {sT1}, {sT1}, 14"); A(f"s_add_u32 {sT0}, {sT0}, {sT1}"); A(f"s_add_u32 {sT0}, {sT0}, {sP1}")
    A(f"s_and_b32 {sT1}, {sWG}, 63"); A(f"s_lshl_b32 {sT1}, {sT1}, 7"); A(f"s_add_u32 {sT0}, {sT0}, {sT1}"); A(f"s_add_u32 {sT0}, {sT0}, {WS_B}")
    A(f"v_lshrrev_b32 v{vTM}, 3, v{vLANE}"); A(f"v_lshlrev_b32 v{vTM}, 15, v{vTM}")
    A(f"v_and_b32 v{vTM2}, 7, v{vLANE}"); A(f"v_lshl_or_b32 v{vBA}, v{vTM2}, 4, v{vTM}"); A(f"v_add_u32 v{vBA}, {sT0}, v{vBA}")
    E.label("L_mini")
    wait_tile("L_fin")
    qk(1)
    for e in range(4): A(f"v_add_u32 v{vAD[e]}, {sSLOT}, v{vVB[e]}")
    for e in range(4): A(f"ds_read_b64_tr_b16 {P(vF + 2*e)}, v{vAD[e]} offset:8192")
    softmax(1, "b")
    A("s_waitcnt lgkmcnt(0)")
    for e in range(4): A(f"v_mfma_f32_16x16x16_bf16 {Q4(vO+4*e)}, {P(vP)}, {P(vF+2*e)}, {Q4(vO+4*e)}")
    add_l(1)
    if lastfast:
        A(f"s_add_u32 {sT0}, {sN}, 1"); A(f"s_cmp_eq_u32 {sT0}, {sTOT}"); A("s_cbranch_scc1 L_fin")
    pub_cons()
    A("s_branch L_mini")
    rescale("b"); rescale("a")

    if touch: E.label("L_pad_fin"); A("s_branch L_ret_fin")
    E.label("L_fin")
    stamp(3)
    vG=vF; vI=vF+4; sa=vS; sb=vS+1; sw=vS+2
    vA=vQ; vOPR=vQ+4; vOPW=vQ+5; vR0=vQ+6; vR1=vQ+7; vR2=vQ+8; vR3=vQ+9; vR4=vQ+10; vR5=vQ+11; vZ=vQ+12
    yreg = [vO, vO+4, vO+8, vO+12, vQ+16, vQ+20, vQ+24]
    xrow("v_add_f32", [vL], [vTM])
    if hilo:
        for e in range(4): A(f"v_pk_add_f32 {P(vO+4*e)}, {P(vO+4*e)}, {P(vO+4*e+2)}")
    A(f"v_log_f32 v{vTM2}, v{vL}"); A(f"v_rcp_f32 v{vTM3}, v{vL}")
    A(f"v_mov_b32 v{vG+3}, {sTAG}")
    A(f"v_add_f32 v{vTM2}, v{vMC}, v{vTM2}")
    SEL4(vG, vO+0, vO+8, vO+1, vO+9, vMX)
    A(f"v_mov_b32_dpp v{vTM}, v{vTM3} quad_perm:[0,0,2,2] row_mask:0x3 bank_mask:0xf")
    A(f"v_mov_b32_dpp v{vG+2}, v{vTM2} quad_perm:[0,0,2,2] row_mask:0x3 bank_mask:0xf")
    SEL4(vG+1, vO+4, vO+12, vO+5, vO+13, vMX)
    A(f"v_mov_b32_dpp v{vTM}, v{vTM3} quad_perm:[1,1,3,3] row_mask:0xc bank_mask:0xf")
    A(f"v_mov_b32_dpp v{vG+2}, v{vTM2} quad_perm:[1,1,3,3] row_mask:0xc bank_mask:0xf")
    A(f"v_mul_f32 v{vG}, v{vG}, v{vTM}"); A(f"v_mul_f32 v{vG+1}, v{vG+1}, v{vTM}")
    A(f"global_store_dwordx4 v{vAA}, {Q4(vG)}, {pWS} {stf}")
    stamp(4)
    A(f"v_lshlrev_b32 v{vOPR}, 3, v{vG4}"); A(f"v_add_u32 v{vOPR}, {L_OP}, v{vOPR}")
    A(f"v_lshlrev_b32 v{vOPW}, 1, v{vN}"); A(f"v_add_u32 v{vOPW}, {L_OP}, v{vOPW}")
    A(f"v_mov_b32 v{vZ}, 0")
    A(f"s_cmp_lt_u32 {sIDX}, 28"); A("s_cbranch_scc1 L_ffn_addr")
    A(f"s_cmp_ge_u32 {sRR}, 64"); A("s_cbranch_scc1 L_addr_done")
    A(f"s_lshl_b32 {sT0}, {sRR}, 15"); A(f"s_lshr_b32 {sT1}, {sW}, 1"); A(f"s_lshl_b32 {sT1}, {sT1}, 14"); A(f"s_add_u32 {sT0}, {sT0}, {sT1}")
    A(f"s_and_b32 {sT1}, {sW}, 1"); A(f"s_lshl_b32 {sT1}, {sT1}, 12"); A(f"s_add_u32 {sT0}, {sT0}, {sT1}"); A(f"s_add_u32 {sT0}, {sT0}, {sP1}"); A(f"s_add_u32 {sT0}, {sT0}, {WS_B}")
    A(f"v_lshl_add_u32 v{vR0}, v{vLANE}, 4, {sT0}")
    A(f"s_lshl_b32 {sT0}, {sW}, 6"); A(f"s_add_u32 {sT0}, {sT0}, {L_RED}")
    A(f"v_and_b32 v{vTM}, 7, v{vLANE}"); A(f"v_lshl_add_u32 v{vR1}, v{vTM}, 2, {sT0}")
    A(f"v_and_b32 v{vTM}, 6, v{vLANE}"); A(f"v_lshlrev_b32 v{vR2}, 2, v{vTM}"); A(f"v_add_u32 v{vR2}, {L_RED}, v{vR2}")
    A(f"s_lshl_b32 {sT0}, {sRR}, 6"); A(f"s_add_u32 {sT0}, {sT0}, {sP0}"); A(f"s_add_u32 {sT0}, {sT0}, {WS_H}"); A(f"v_lshl_add_u32 v{vR3}, v{vTM}, 3, {sT0}")
    A(f"s_lshr_b32 {sT0}, {sRR}, 1"); A(f"s_lshl_b32 {sT0}, {sT0}, 14"); A(f"s_and_b32 {sT1}, {sRR}, 1"); A(f"s_lshl_b32 {sT1}, {sT1}, 12"); A(f"s_add_u32 {sT0}, {sT0}, {sT1}")
    A(f"s_add_u32 {sT0}, {sT0}, {sP0}"); A(f"s_add_u32 {sT0}, {sT0}, {WS_D}"); A(f"v_lshl_add_u32 v{vR4}, v{vLANE}, 4, {sT0}")
    A(f"v_lshl_add_u32 v{vR5}, v{vTM}, 1, {sCOL}")
    E.label("L_addr_done")
    A(f"s_cmp_lg_u32 {sW}, 0"); A("s_cbranch_scc1 L_a_join")
    poll([f"global_load_dwordx4 {Q4(vI+4*i)}, v{vAI}, {pWS} offset:{i*256} {ldf}" for i in range(4)], [[vI+4*i+3] for i in range(4)])
    stamp(5)
    A(f"v_max3_f32 v{vMX}, v{vI+2}, v{vI+6}, v{vI+10}"); A(f"v_max_f32 v{vMX}, v{vMX}, v{vI+14}")
    xrow("v_max_f32", [vMX], [vTM])
    for i in range(4): A(f"v_sub_f32 v{vI+4*i+2}, v{vI+4*i+2}, v{vMX}")
    for i in range(4): A(f"v_exp_f32 v{vI+4*i+2}, v{vI+4*i+2}")
    A(f"v_mul_f32 v{sa}, v{vI}, v{vI+2}"); A(f"v_mul_f32 v{sb}, v{vI+1}, v{vI+2}"); A(f"v_add_f32 v{sw}, v{vI+2}, v{vI+6}")
    for i in range(1,4):
        A(f"v_fmac_f32 v{sa}, v{vI+4*i}, v{vI+4*i+2}"); A(f"v_fmac_f32 v{sb}, v{vI+4*i+1}, v{vI+4*i+2}")
        if i > 1: A(f"v_add_f32 v{sw}, v{sw}, v{vI+4*i+2}")
    xrow("v_add_f32", [sw, sa, sb], [vS+3, vS+4, vS+5])
    A(f"v_rcp_f32 v{sw}, v{sw}")
    A(f"v_mul_f32 v{sa}, v{sa}, v{sw}"); A(f"v_mul_f32 v{sb}, v{sb}, v{sw}")
    A(f"v_mov_b32_dpp v{vS+3}, v{sa} quad_perm:[1,0,3,2] row_mask:0xf bank_mask:0xf")
    A(f"v_mov_b32_dpp v{vS+4}, v{sb} quad_perm:[1,0,3,2] row_mask:0xf bank_mask:0xf")
    A(f"v_cvt_pk_bf16_f32 v{sa}, v{sa}, v{vS+3}"); A(f"v_cvt_pk_bf16_f32 v{sb}, v{sb}, v{vS+4}")
    A("s_mov_b64 exec, 0x5555"); A(f"ds_write2_b32 v{vOPW}, v{sa}, v{sb} offset0:0 offset1:8"); A("s_mov_b64 exec, -1")
    A("s_waitcnt lgkmcnt(0)")
    E.label("L_a_join")
    A("s_barrier")
    A(f"ds_read2_b64 {Q4(vA)}, v{vOPR} offset0:0 offset1:4")
    A(f"v_mov_b32 v{vG+1}, {sTAG}")
    A("s_waitcnt lgkmcnt(0)")
    for t in (0,2,4,6,1,3,5):
        A(f"v_mfma_f32_16x16x32_bf16 {Q4(yreg[t])}, {Q4(vA)}, {Q4(vWO+4*t)}, 0")
    SEL4(vG, yreg[0], yreg[2], yreg[4], yreg[6], vMX)
    SEL4(vG+2, yreg[1], yreg[3], yreg[5], vZ, vTM)
    A(f"global_store_dwordx4 v{vBA}, {Q4(vG)}, {pWS} {stf}")
    stamp(6)
    A(f"s_cmp_lt_u32 {sIDX}, 28"); A("s_cbranch_scc1 L_ffn")
    A(f"s_cmp_ge_u32 {sRR}, 64"); A("s_cbranch_scc1 L_done")
    def inbox(addr): return [f"global_load_dwordx4 {Q4(vI+4*i)}, v{addr}, {pWS} offset:{i*1024} {ldf}" for i in range(4)]
    tags2 = [[vI+4*i+1, vI+4*i+3] for i in range(4)]
    def sum_inbox():
        A(f"v_add_f32 v{sa}, v{vI}, v{vI+4}"); A(f"v_add_f32 v{sb}, v{vI+2}, v{vI+6}")
        A(f"v_add_f32 v{vS+2}, v{vI+8}, v{vI+12}"); A(f"v_add_f32 v{vS+3}, v{vI+10}, v{vI+14}")
        A(f"v_add_f32 v{sa}, v{sa}, v{vS+2}"); A(f"v_add_f32 v{sb}, v{sb}, v{vS+3}")
        A(f"v_add_f32_dpp v{sa}, v{sa}, v{sa} row_ror:8 row_mask:0xf bank_mask:0xf")
        A(f"v_add_f32_dpp v{sb}, v{sb}, v{sb} row_ror:8 row_mask:0xf bank_mask:0xf")
        xrow("v_add_f32", [sa, sb], [vS+2, vS+3])
    vXF = vO
    unpack(vXF, vXF+1, vXH); unpack(vXF+2, vXF+3, vXH+1)
    if touch: pad("red")
    poll(inbox(vR0), tags2)
    stamp(7)
    sum_inbox()
    A("s_mov_b64 exec, 0xff"); A(f"ds_write2_b32 v{vR1}, v{sa}, v{sb} offset0:0 offset1:8"); A("s_mov_b64 exec, -1")
    A("s_waitcnt lgkmcnt(0)"); A("s_barrier")
    A(f"s_cmp_lg_u32 {sW}, 0"); A("s_cbranch_scc1 L_done")
    for i in range(4): A(f"ds_read2_b64 {Q4(vI+4*i)}, v{vR2} offset0:{i*8} offset1:{i*8+4}")
    def add_resid(y, dst):
        A(f"v_cvt_pk_bf16_f32 v{dst}, v{y}, v{y+1}"); A(f"v_cvt_pk_bf16_f32 v{dst+2}, v{y+2}, v{y+3}")
        unpack(y, y+1, dst); unpack(y+2, y+3, dst+2)
        A(f"v_pk_add_f32 {P(y)}, {P(y)}, {P(vXF)}"); A(f"v_pk_add_f32 {P(y+2)}, {P(y+2)}, {P(vXF+2)}")
        A(f"v_cvt_pk_bf16_f32 v{dst}, v{y}, v{y+1}"); A(f"v_cvt_pk_bf16_f32 v{dst+2}, v{y+2}, v{y+3}")
    A("s_waitcnt lgkmcnt(2)")
    A(f"v_pk_add_f32 {P(vI)}, {P(vI)}, {P(vI+4)}"); A(f"v_pk_add_f32 {P(vI+2)}, {P(vI+2)}, {P(vI+6)}")
    A("s_waitcnt lgkmcnt(0)")
    A(f"v_pk_add_f32 {P(vI+8)}, {P(vI+8)}, {P(vI+12)}"); A(f"v_pk_add_f32 {P(vI+10)}, {P(vI+10)}, {P(vI+14)}")
    A(f"v_pk_add_f32 {P(vI)}, {P(vI)}, {P(vI+8)}"); A(f"v_pk_add_f32 {P(vI+2)}, {P(vI+2)}, {P(vI+10)}")
    add_resid(vI, vG)
    A("s_mov_b64 exec, 0x55"); A(f"global_store_dwordx4 v{vR3}, {Q4(vG)}, {pWS} {stf}"); A("s_mov_b64 exec, -1")
    stamp(8)
    unpack(vXF, vXF+1, vG); unpack(vXF+2, vXF+3, vG+2)
    A(f"v_mov_b32 v{vI+12}, 0"); A(f"v_mov_b32 v{vI+13}, {sTAG}"); A(f"v_mov_b32 v{vI+14}, 0"); A(f"v_mov_b32 v{vI+15}, {sTAG}")
    poll(inbox(vR4), tags2, first_mask=[-1,-1,-1,"s[66:67]"])
    stamp(9)
    sum_inbox()
    A(f"v_mov_b32_dpp v{vI}, v{sa} quad_perm:[0,0,2,2] row_mask:0xf bank_mask:0xf"); A(f"v_mov_b32_dpp v{vI+1}, v{sa} quad_perm:[1,1,3,3] row_mask:0xf bank_mask:0xf")
    A(f"v_mov_b32_dpp v{vI+2}, v{sb} quad_perm:[0,0,2,2] row_mask:0xf bank_mask:0xf"); A(f"v_mov_b32_dpp v{vI+3}, v{sb} quad_perm:[1,1,3,3] row_mask:0xf bank_mask:0xf")
    add_resid(vI, vI+4)
    A("s_mov_b64 exec, 0x55"); A(f"global_store_dword v{vR5}, v{vI+4}, {pOUT} {outf}")
    A(f"s_cmp_eq_u32 {sGP}, 3"); A("s_cbranch_scc1 L_done")
    A(f"global_store_dword v{vR5}, v{vI+6}, {pOUT} offset:32 {outf}")
    A(f"s_cmp_lg_u32 {sRR}, 0"); A("s_cbranch_scc1 L_done")
    A(f"s_add_u32 {sT0}, {sE}, 1"); A(f"v_mov_b32 v{vTM2}, {sT0}"); A(f"v_mov_b32 v{vTM3}, {WS_E}")
    A("s_mov_b64 exec, 1"); A(f"global_store_dword v{vTM3}, v{vTM2}, {pWS} {stf}")
    if enc:
        A("s_memrealtime s[90:91]"); A("s_waitcnt lgkmcnt(0)")
        A(f"s_sub_u32 {sT0}, s{70+2*enc[1]}, s{70+2*enc[0]}"); A(f"s_lshl_b32 {sT0}, {sT0}, 2"); A(f"s_min_u32 {sT0}, {sT0}, 100000")
        E.label("L_enc")
        A("s_memrealtime s[94:95]"); A("s_waitcnt lgkmcnt(0)")
        A(f"s_sub_u32 {sT1}, s94, s90"); A(f"s_cmp_lt_u32 {sT1}, {sT0}"); A("s_cbranch_scc1 L_enc")
    A("s_branch L_done")
    E.label("L_ffn_addr")
    A(f"v_lshrrev_b32 v{vTM}, 3, v{vLANE}"); A(f"v_and_b32 v{vTM2}, 7, v{vLANE}")
    A(f"v_lshlrev_b32 v{vR0}, 9, v{vTM}"); A(f"v_lshl_or_b32 v{vR0}, v{vTM2}, 4, v{vR0}"); A(f"s_add_u32 {sT0}, {sP0}, {WS_H}"); A(f"v_add_u32 v{vR0}, {sT0}, v{vR0}")
    A(f"v_mul_u32_u24 v{vR1}, 224, v{vTM}"); A(f"v_lshl_add_u32 v{vR1}, v{vTM2}, 2, v{vR1}"); A(f"v_add_u32 v{vR1}, {L_LN}, v{vR1}")
    ln_read_addr(vR2, L_LN)
    A(f"s_lshl_b32 {sT0}, {sW}, 5"); A(f"s_add_u32 {sT0}, {sT0}, {L_ACT}")
    A(f"v_lshlrev_b32 v{vR3}, 7, v{vG4}"); A(f"v_lshl_add_u32 v{vR3}, v{vN}, 1, v{vR3}"); A(f"v_add_u32 v{vR3}, {sT0}, v{vR3}")
    A(f"v_and_b32 v{vR4}, 1, v{vLANE}"); A(f"v_lshlrev_b32 v{vR4}, 7, v{vR4}"); A(f"v_lshl_add_u32 v{vR4}, v{vG4}, 3, v{vR4}"); A(f"v_add_u32 v{vR4}, {L_ACT}, v{vR4}")
    A(f"s_lshl_b32 {sT0}, {sW}, 16"); A(f"s_lshl_b32 {sT1}, {sIDX}, 7"); A(f"s_add_u32 {sT0}, {sT0}, {sT1}"); A(f"s_add_u32 {sT0}, {sT0}, {sP0}"); A(f"s_add_u32 {sT0}, {sT0}, {WS_D}")
    A(f"v_lshrrev_b32 v{vTM}, 3, v{vN}"); A(f"v_lshlrev_b32 v{vTM}, 12, v{vTM}"); A(f"v_lshl_or_b32 v{vTM}, v{vG4}, 14, v{vTM}")
    A(f"v_lshl_or_b32 v{vTM}, v{vTM2}, 4, v{vTM}"); A(f"v_add_u32 v{vR5}, {sT0}, v{vTM}")
    A("s_branch L_addr_done")
    if touch: E.label("L_pad_ffn"); A("s_branch L_ret_ffn")
    E.label("L_ffn")
    A(f"s_cmp_lg_u32 {sW}, 0"); A("s_cbranch_scc1 L_c_join")
    poll([f"global_load_dwordx4 {Q4(vI+4*u)}, v{vR0}, {pWS} offset:{u*128} {ldf}" for u in range(4)], tags2)
    stamp(7)
    layernorm([vI+2*u for u in range(7)], vO, vR1, 32, mid=(lambda: pad("ffn2")) if touch else None)
    A("s_waitcnt lgkmcnt(0)")
    E.label("L_c_join")
    A("s_barrier")
    def aread(i): A(f"ds_read_b128 {Q4(vF + 4*(i % NF))}, v{vR2} offset:{i*64}")
    for i in range(NF): aread(i)
    for i in range(14):
        A(f"s_waitcnt lgkmcnt({min(NF-1, 13-i)})")
        A(f"v_mfma_f32_16x16x32_bf16 {Q4(vS)}, {Q4(vF + 4*(i % NF))}, {Q4(vW1+4*i)}, {'0' if i==0 else Q4(vS)}")
        if i + NF < 14: aread(i+NF)
    for b in range(2): A(f"v_mov_b32 v{vO+4*b+1}, {sTAG}"); A(f"v_mov_b32 v{vO+4*b+3}, {sTAG}")
    A(f"v_add_u32 v{vR0}, {16*16384}, v{vR5}")
    A(f"v_cndmask_b32 v{vTM}, v{vS}, v{vS+1}, {sM1}")
    round_bf(vTM, vTM)
    A(f"v_mul_f32 v{vTM2}, {(LOG2E | 0x80000000):#x}, v{vTM}")
    A(f"v_exp_f32 v{vTM2}, v{vTM2}")
    A(f"v_add_f32 v{vTM2}, 1.0, v{vTM2}")
    A(f"v_rcp_f32 v{vTM2}, v{vTM2}")
    A(f"v_mul_f32 v{vTM}, v{vTM}, v{vTM2}")
    A(f"v_cvt_pk_bf16_f32 v{vTM}, v{vTM}, v{vTM}")
    A("s_mov_b32 exec_hi, 0"); A(f"ds_write_b16 v{vR3}, v{vTM}"); A("s_mov_b32 exec_hi, -1")
    A("s_waitcnt lgkmcnt(0)"); A("s_barrier")
    for ks in range(2): A(f"ds_read2_b64 {Q4(vF+4*ks)}, v{vR4} offset0:{ks*8} offset1:{ks*8+4}")
    zreg = [vW1+4*t for t in range(7)]
    for ks in range(2):
        A(f"s_waitcnt lgkmcnt({1-ks})")
        for t in (0,2,4,6,1,3,5):
            A(f"v_mfma_f32_16x16x32_bf16 {Q4(zreg[t])}, {Q4(vF+4*ks)}, {Q4(vW2+28*ks+4*t)}, {'0' if ks==0 else Q4(zreg[t])}")
    for b in range(2): SEL4(vO+4*b, zreg[0]+b, zreg[2]+b, zreg[4]+b, zreg[6]+b, vMX)
    for b in range(2):
        SEL4(vO+4*b+2, zreg[1]+b, zreg[3]+b, zreg[5]+b, vZ, vMX)
        A(f"global_store_dwordx4 v{vR5 if b == 0 else vR0}, {Q4(vO+4*b)}, {pWS} {stf}")
    stamp(8)
    E.label("L_done")
    if diag:
        stamp(10)
        A("s_mov_b64 exec, -1")
        A(f"s_lshl_b32 {sT0}, {sWG}, 2"); A(f"s_add_u32 {sT0}, {sT0}, {sW}"); A(f"s_lshl_b32 {sT0}, {sT0}, 7"); A(f"s_add_u32 {sT0}, {sT0}, {WS_ST}")
        A("s_getreg_b32 s100, hwreg(HW_REG_XCC_ID)")
        A("s_waitcnt lgkmcnt(0)")
        A(f"v_mov_b32 v{vTM}, {sT0}")
        A("s_mov_b64 exec, 1")
        for k in range(11): A(f"v_mov_b32 v{vW1+k}, s{70+2*k}")
        A(f"v_mov_b32 v{vW1+11}, s100"); A(f"v_mov_b32 v{vW1+12}, {sN}"); A(f"v_mov_b32 v{vW1+13}, {sROLE}"); A(f"v_mov_b32 v{vW1+14}, {sWG}"); A(f"v_mov_b32 v{vW1+15}, {sIDX}")
        for k in range(4): A(f"v_mov_b32 v{vW1+16+k}, s{92+2*k}")
        for q in range(5): A(f"global_store_dwordx4 v{vTM}, {Q4(vW1+4*q)}, {pWS} offset:{q*16}")
    E.label("L_end")
    A("s_endpgm")

    E.label("L_ffn_w")
    tall_addr(vX+1)
    for t in range(4): read_tall_tile(vX+1, vW1, t)
    for t in range(4): read_wide_tile(vX, vW2 + 28*(t>>1), t & 1)
    A("s_branch L_ffn_w_done")
    E.label("L_ld_ffn")
    tall_voffs(3584)
    A(f"s_mov_b64 s[48:49], s[{pW1[0]}:{pW1[1]}]"); A(f"s_mov_b32 s50, {448*1792*2}")
    A(f"s_lshl_b32 {sBASE}, {sIDX}, 7")
    for t in range(4):
        if t % 2 == 0: freecheck(2)
        tile_tall(3584, t, 16 if t < 3 else 8)
    A(f"s_mov_b64 s[48:49], s[{pW2[0]}:{pW2[1]}]")
    A(f"s_mul_i32 {sBASE}, {sIDX}, {64*896}"); A(f"s_add_u32 {sT2}, {sN}, 4")
    E.label("L_ld_w2")
    freecheck(1)
    tile_wide()
    A(f"s_cmp_lt_u32 {sN}, {sT2}"); A("s_cbranch_scc1 L_ld_w2")
    A("s_branch L_ld_loop")
    if forcepar is None:
        E.label("L_probe")
        A(f"s_load_dword s69, {pWS}, {WS_E}")
        A("s_mov_b64 exec, 1")
        for k,off in enumerate((WS_PRB, WS_PRB+8192, WS_B, WS_B+8192)):
            A(f"v_mov_b32 v{32+k}, {off}"); A(f"s_mov_b32 s{92+k}, 0")
        A("v_mov_b32 v36, 0"); A(f"s_mov_b32 {sCI}, {nprobe}")
        for k in range(4): A(f"global_atomic_add v37, v{32+k}, v36, {pWS} sc0")
        A("s_waitcnt vmcnt(0)")
        E.label("L_probe_loop")
        for k in range(4):
            A("s_memtime s[64:65]"); A("s_waitcnt lgkmcnt(0)")
            A(f"global_atomic_add v37, v{32+k}, v36, {pWS} sc0"); A("s_waitcnt vmcnt(0)")
            A("s_memtime s[66:67]"); A("s_waitcnt lgkmcnt(0)")
            A("s_sub_u32 s66, s66, s64"); A(f"s_min_u32 s66, s66, {clip}"); A(f"s_add_u32 s{92+k}, s{92+k}, s66")
        A(f"s_sub_u32 {sCI}, {sCI}, 1"); A(f"s_cmp_lg_u32 {sCI}, 0"); A("s_cbranch_scc1 L_probe_loop")
        A("s_cmp_gt_u32 s92, s93"); A(f"s_cselect_b32 {sT0}, 8192, 0")
        A("s_cmp_gt_u32 s94, s95"); A(f"s_cselect_b32 {sT1}, 8192, 0")
        make_tag(sT2, "s69")
        A(f"v_mov_b32 v32, {sT0}"); A(f"v_mov_b32 v33, {sT2}"); A(f"v_mov_b32 v34, {sT1}"); A(f"v_mov_b32 v35, {sT2}"); A(f"v_mov_b32 v36, {WS_PAR}")
        A(f"global_store_dwordx4 v36, v[32:35], {pWS} {stf}")
        A("s_mov_b64 exec, -1")
        A("s_branch L_ld_wo")

    body = E.finish()
    head = open("sequential_preLN__gqa_block_cached__dense_activation_silu__decode.s.ref").read().split("; Override launch")[0]
    src = head + f"""; One persistent launch: 256 workgroups (one per CU); wave 0 streams K/V into an LDS ring, waves 1-4 compute.
; @launch grid=(256,1,1) block=(320,1,1) lds={LDS}
.amdgcn_target "amdgcn-amd-amdhsa--gfx950"
.text
.globl {NAME}
.p2align 8
.type {NAME},@function
{NAME}:
{body}.section .rodata,"a"
.p2align 6
.amdhsa_kernel {NAME}
  .amdhsa_next_free_vgpr 256
  .amdhsa_next_free_sgpr 102
  .amdhsa_accum_offset 256
  .amdhsa_group_segment_fixed_size 0
  .amdhsa_kernarg_size 88
  .amdhsa_user_sgpr_count 2
  .amdhsa_user_sgpr_kernarg_segment_ptr 1
  .amdhsa_system_sgpr_workgroup_id_x 1
.end_amdhsa_kernel
"""
    return src, E.npad

if __name__ == "__main__":
    out = sys.argv[1]
    kw = json.loads(sys.argv[2]) if len(sys.argv) > 2 else {}
    src, npad = gen(**kw)
    open(out, "w").write(src)
    print("wrote", out, "lines", src.count("\n"), "pad states", npad)
```

```python
import sys, json, struct
from emit import Emitter

NAME = "sequential_preLN__gqa_block_cached__dense_activation_silu__decode_kernel"
def f2u(x): return struct.unpack("<I", struct.pack("<f", x))[0]

def gen(W=19, NS=59, diag=False, hilo=True, spin=1<<20, enc=None, NF=5, ldst=None, qwait=2, forcepar=None, nprobe=3, clip=2000,
        touch=0, qtouch=1, lastfast=1, outf='sc1', onetag=1, nap=0, grp=4):
    E = Emitter(); A = E
    pol = "nt"; stf = ldf = "sc1"
    NSLOT = 9; SLOT = 16384; RING = NSLOT*SLOT; LDS = 163840
    L_FLAG = RING; L_CONS = RING+16; L_RED = RING+256; L_OP = RING+512; L_ACT = RING+768; L_QW = RING+1024; L_LN = RING+5120
    WS_E = 0; WS_PAR = 0x800; WS_CNT = 0x1000; WS_H = 0x4000; WS_Q = 0x8000; WS_PRB = 0x10000; WS_D = 0x80000; WS_A = 0x100000; WS_B = 0x200000; WS_ST = 0x400000
    C_SCALE = f2u(1.4426950408889634/16.0); LOG2E = f2u(1.4426950408889634); INV448 = f2u(1.0/448.0); EPS = f2u(1e-5)
    EXTRA = 32; POOL = 2048-32*NS+EXTRA; TL = 128-2*NS
    assert 12 <= W <= 32 and NF <= 5
    sWG="s2"; sWAVE="s3"
    pX="s[4:5]"; pK=(6,7); pV=(8,9); pWQ=(10,11); pWO=(12,13); pW1=(16,17); pW2=(18,19); pOUT="s[20:21]"; pWS="s[24:25]"
    sG="s26"; sJ="s27"; sROLE="s28"; sN="s31"; sSLOT="s32"; sKNOWN="s33"; sT0="s34"; sT1="s35"; sT2="s36"
    sCI="s37"; sSPIN="s38"; sIDX="s39"; sNS="s63"
    vK=[4+i for i in range(8)]; vV=[12+i for i in range(4)]; vLIN=16; vT=[17,18]; vFL=21; vTMP=22; vC=24; vCA=28; vONE=29; vCL=[30,31]
    srdK="s[40:43]"; srdV="s[44:47]"; srdW="s[48:51]"; srdZ="s[52:55]"
    sCUR="s56"; sGB="s57"; sOFF="s58"; sCLM="s59"; sBASE="s61"; sFLOOR="s62"
    sB="s29"; sHKV="s30"; sW="s40"; sTAG="s41"; sM1="s[42:43]"; sM2="s[44:45]"; sC="s46"; sE="s47"; sRR="s48"; sTOT="s49"
    sCK=["s[50:51]","s[52:53]","s[54:55]","s[56:57]"]; sCOL="s58"; sGP="s59"; sP0="s60"; sP1="s61"; sWRM="s62"
    vLANE=0; vN=1; vG4=2; vFLG=3; vCONS=4; vTM=5; vTM2=6; vTM3=7
    vM=8; vMC=9; vL=10; vMX=11
    vKB=[12,13,14,15]; vVB=[16,17,18,19]; vAD=[20,21,22,23]
    vS=24; vP=32; vO=36; vQ=52; vF=84; vAA=104; vAI=105; vBA=106
    vWO=108; vW1=136; vW2=192; vX=248; vXH=254
    xr1 = [vWO+u for u in range(7)]; vLW1 = vWO+24

    uid=[0]
    def lab(p): uid[0]+=1; return f"L_{p}_{uid[0]}"
    def P(r): return f"v[{r}:{r+1}]"
    def Q4(r): return f"v[{r}:{r+3}]"
    def stamp(k):
        if not diag and not (enc and k in (0, enc[0], enc[1])): return
        A(f"s_memrealtime s[{70+2*k}:{71+2*k}]")
    def slot_advance():
        A(f"s_add_u32 {sN}, {sN}, 1"); A(f"s_add_u32 {sSLOT}, {sSLOT}, {SLOT}")
        A(f"s_cmp_eq_u32 {sSLOT}, {RING}"); A(f"s_cselect_b32 {sSLOT}, 0, {sSLOT}")
    def spin_guard(): A(f"s_sub_u32 {sSPIN}, {sSPIN}, 1"); A("s_cbranch_scc1 L_end")
    def one_lane(ins): A("s_mov_b64 exec, 1"); A(ins); A("s_mov_b64 exec, -1")
    def share_consts():
        A(f"s_sub_u32 {sT0}, {sROLE}, 8"); A(f"s_lshl_b32 {sIDX}, {sG}, 1"); A(f"s_add_u32 {sIDX}, {sIDX}, {sT0}")
        A(f"s_cmp_lt_u32 {sT0}, 2"); A(f"s_cselect_b32 {sIDX}, {sIDX}, 99")
        A(f"s_cselect_b32 {sNS}, {NS-4}, {NS}"); A(f"s_cmp_lt_u32 {sROLE}, 4"); A(f"s_cselect_b32 {sNS}, {NS-2}, {sNS}")
    def make_tag(dst, e): A(f"s_mul_i32 {dst}, {e}, 0x9e3779b1"); A(f"s_add_u32 {dst}, {dst}, 0x7f4a7c15")
    pads = []
    def pad(name):
        sk = lab("padskip"); A(f"s_branch {sk}"); E.label(f"L_pad_{name}"); A(f"s_branch L_ret_{name}"); E.label(sk)
    def touch_pad(name): A(f"s_branch L_pad_{name}"); E.label(f"L_ret_{name}")

    A(f"s_cmp_ge_u32 {sWG}, 256"); A("s_cbranch_scc1 L_end")
    stamp(0)
    A("s_load_dwordx16 s[4:19], s[0:1], 0"); A("s_load_dwordx4 s[20:23], s[0:1], 64"); A("s_load_dwordx2 s[24:25], s[0:1], 80")
    A("v_lshrrev_b32 v1, 6, v0"); A("v_and_b32 v0, 63, v0"); A(f"v_readfirstlane_b32 {sWAVE}, v1")
    A(f"s_lshr_b32 {sG}, {sWG}, 4"); A(f"s_and_b32 {sJ}, {sWG}, 15")
    A(f"s_lshr_b32 {sT0}, {sJ}, 1"); A(f"s_and_b32 {sT0}, {sT0}, 4"); A(f"s_and_b32 {sROLE}, {sJ}, 3"); A(f"s_add_u32 {sROLE}, {sROLE}, {sT0}")
    A(f"s_sub_u32 {sROLE}, {sROLE}, {sG}"); A(f"s_and_b32 {sROLE}, {sROLE}, 7")
    A(f"s_add_u32 {sT0}, {sROLE}, 4"); A(f"s_add_u32 {sT1}, {sROLE}, 8"); A(f"s_cmp_lt_u32 {sROLE}, 4"); A(f"s_cselect_b32 {sROLE}, {sROLE}, {sT1}")
    A(f"s_bitcmp1_b32 {sJ}, 2"); A(f"s_cselect_b32 {sROLE}, {sROLE}, {sT0}")
    A(f"s_mov_b32 {sN}, 0"); A(f"s_mov_b64 s[32:33], 0"); A(f"s_mov_b32 {sCI}, 0"); A(f"s_mov_b32 {sSPIN}, {spin}")
    A(f"v_mov_b32 v3, {L_FLAG}"); A(f"v_lshl_add_u32 v1, v0, 2, v3"); A("v_mov_b32 v2, 0")
    A("s_mov_b64 exec, 2"); A("v_bfrev_b32 v2, -2"); A("s_mov_b64 exec, 0x1ff"); A("ds_write_b32 v1, v2"); A("s_mov_b64 exec, -1")
    A(f"v_lshrrev_b32 v1, 5, v0"); A(f"v_mul_u32_u24 v1, 896, v1"); A(f"v_and_b32 v2, 31, v0"); A(f"v_lshl_add_u32 v{vLW1}, v2, 2, v1")
    A("s_waitcnt lgkmcnt(0)")
    A("s_barrier")
    A(f"s_cmp_eq_u32 {sWAVE}, 0"); A("s_cbranch_scc1 L_loader")
    A(f"s_load_dword {sE}, {pWS}, {WS_E}")
    A(f"s_cmp_ge_u32 {sROLE}, 4"); A("s_cbranch_scc1 L_consumer")
    for u in range(7): A(f"global_load_dword v{xr1[u]}, v{vLW1}, {pX} offset:{u*128}")
    A("s_branch L_qprod")

    def publish(back):
        A(f"s_sub_u32 {sT0}, {sN}, {back}"); A(f"s_max_i32 {sT0}, {sT0}, {sFLOOR}")
        A(f"v_mov_b32 v{vTMP}, {sT0}"); one_lane(f"ds_write_b32 v{vFL}, v{vTMP}")
    def throttle(i):
        if i % grp == grp-1:
            A(f"s_waitcnt vmcnt({W})")
            if i+1+16 >= W and (i+1-grp+16 < W or i < grp): publish(1)
    def tile_rows(specs, pol=pol):
        for i,(srd,vo,so) in enumerate(specs):
            if i % 4 == 0:
                A(f"s_add_u32 m0, {sSLOT}, {i*1024}" if i else f"s_mov_b32 m0, {sSLOT}")
                A(f"s_add_u32 {sOFF}, {sBASE}, {so}" if so else f"s_mov_b32 {sOFF}, {sBASE}")
            A(f"buffer_load_dwordx4 v{vo}, {srd}, {sOFF} offen offset:{(i%4)*1024} {pol} lds")
            throttle(i)
        slot_advance()
    def tile_tall(rowstride, t, nvalid):
        for i in range(16):
            A(f"s_add_u32 m0, {sSLOT}, {i*1024}" if i else f"s_mov_b32 m0, {sSLOT}")
            A(f"s_add_u32 {sOFF}, {sBASE}, {(t*128+i*8)*rowstride}")
            A(f"buffer_load_dwordx4 v{vT[i&1]}, {srdW if i < nvalid else srdZ}, {sOFF} offen {pol} lds")
            throttle(i)
        slot_advance()
    def tile_wide(pol=pol):
        tile_rows([(srdW if i < 14 else srdZ, vLIN, i*1024) for i in range(16)], pol)
        A(f"s_add_u32 {sBASE}, {sBASE}, 14336")
    def tall_voffs(stride):
        A("v_lshrrev_b32 v1, 3, v0"); A("v_and_b32 v2, 7, v0"); A("v_and_b32 v3, 2, v1"); A("v_xor_b32 v2, v2, v3"); A("v_lshlrev_b32 v2, 4, v2")
        A(f"v_mul_u32_u24 v3, {stride}, v1"); A(f"v_add_u32 v{vT[0]}, v3, v2"); A("v_xor_b32 v2, 64, v2"); A(f"v_add_u32 v{vT[1]}, v3, v2")
    def freecheck(k):
        ok = lab("free"); lp = lab("freepoll")
        A(f"s_add_u32 {sT0}, {sKNOWN}, {NSLOT-k}"); A(f"s_cmp_ge_u32 {sT0}, {sN}"); A(f"s_cbranch_scc1 {ok}")
        E.label(lp)
        A(f"ds_read_b128 {Q4(vC)}, v{vFL} offset:16")
        spin_guard()
        A("s_waitcnt lgkmcnt(0)")
        A(f"v_min3_u32 v{vC}, v{vC}, v{vC+1}, v{vC+2}"); A(f"v_min_u32 v{vC}, v{vC}, v{vC+3}")
        A(f"v_readfirstlane_b32 {sKNOWN}, v{vC}")
        A(f"s_add_u32 {sT0}, {sKNOWN}, {NSLOT-k}"); A(f"s_cmp_ge_u32 {sT0}, {sN}"); A(f"s_cbranch_scc1 {ok}")
        A("s_sleep 1"); A(f"s_branch {lp}")
        E.label(ok)
    def claim(p): one_lane(f"global_atomic_add v{vCL[p]}, v{vCA}, v{vONE}, {pWS} sc0")

    E.label("L_loader")
    A("s_setprio 3")
    A(f"v_mov_b32 v{vFL}, v3"); A(f"v_lshlrev_b32 v{vLIN}, 4, v0"); A(f"s_mov_b32 {sFLOOR}, 0")
    A("s_mov_b32 s50, 3670016"); A("s_mov_b32 s51, 0x20000")
    A(f"s_mov_b64 s[52:53], s[{pK[0]}:{pK[1]}]"); A("s_mov_b32 s54, 0"); A("s_mov_b32 s55, 0x20000")
    A(f"s_cmp_ge_u32 {sROLE}, 4"); A("s_cbranch_scc1 L_ld_noq")
    tall_voffs(8192)
    A(f"s_mov_b64 s[48:49], s[{pWQ[0]}:{pWQ[1]}]")
    A(f"s_and_b32 {sOFF}, {sG}, 7"); A(f"s_lshl_b32 {sOFF}, {sOFF}, 3"); A(f"s_lshr_b32 {sT0}, {sG}, 3"); A(f"s_lshl_b32 {sT0}, {sT0}, 2")
    A(f"s_add_u32 {sOFF}, {sOFF}, {sT0}"); A(f"s_add_u32 {sOFF}, {sOFF}, {sROLE}"); A(f"s_lshl_b32 {sOFF}, {sOFF}, 7")
    A("s_mov_b32 m0, 0")
    E.label("L_ld_q")
    for i in range(2):
        A(f"buffer_load_dwordx4 v{vT[i]}, {srdW}, {sOFF} offen {pol} lds")
        A(f"s_add_u32 {sOFF}, {sOFF}, {8*8192}"); A("s_add_u32 m0, m0, 1024")
    A(f"s_cmp_lt_u32 m0, {56*1024}"); A("s_cbranch_scc1 L_ld_q")
    A(f"s_mov_b32 {sN}, 4"); A(f"s_mov_b32 {sSLOT}, {4*SLOT}"); A(f"s_mov_b32 {sFLOOR}, 4")
    A(f"v_mov_b32 v{vTMP}, 4"); A("s_waitcnt vmcnt(0)"); one_lane(f"ds_write_b32 v{vFL}, v{vTMP}")
    E.label("L_ld_noq")
    if forcepar is None:
        A(f"s_cmp_eq_u32 {sWG}, {15*16 + 3}"); A("s_cbranch_scc1 L_probe")
    E.label("L_ld_wo")
    A(f"s_mov_b64 s[48:49], s[{pWO[0]}:{pWO[1]}]")
    A(f"s_and_b32 {sBASE}, {sWG}, 127"); A(f"s_mul_i32 {sBASE}, {sBASE}, {32*896}")
    E.label("L_ld_wo2")
    tile_wide(pol="")
    A(f"s_bitcmp1_b32 {sN}, 0"); A("s_cbranch_scc1 L_ld_wo2")
    A("v_lshrrev_b32 v1, 5, v0"); A("v_and_b32 v2, 31, v0")
    A("v_xor_b32 v3, v2, v1"); A("v_lshlrev_b32 v3, 4, v3"); A("v_lshl_or_b32 v3, v1, 9, v3")
    for i in range(8): A(f"v_xor_b32 v{vK[i]}, {i*32}, v3")
    A("v_lshlrev_b32 v3, 1, v1"); A("v_xor_b32 v3, v2, v3"); A("v_lshlrev_b32 v3, 4, v3"); A("v_lshl_or_b32 v3, v1, 9, v3")
    for i in range(4): A(f"v_xor_b32 v{vV[i]}, {i*64}, v3")
    share_consts()
    A(f"s_lshl_b32 {sGB}, {sG}, 24")
    A(f"s_lshl_b32 {sCUR}, {sJ}, 7")
    A(f"s_lshl_b32 {sT0}, {sG}, 8"); A(f"s_add_u32 {sT0}, {sT0}, {WS_CNT}"); A(f"v_mov_b32 v{vCA}, {sT0}"); A(f"v_mov_b32 v{vONE}, 1")
    A(f"s_mov_b64 s[40:41], s[{pK[0]}:{pK[1]}]"); A("s_mov_b32 s42, 0x10000000"); A("s_mov_b32 s43, 0x20000")
    A(f"s_mov_b64 s[44:45], s[{pV[0]}:{pV[1]}]"); A("s_mov_b32 s46, 0x10000000"); A("s_mov_b32 s47, 0x20000")
    A(f"s_cmp_lt_u32 {sIDX}, 28"); A(f"s_cbranch_scc1 L_ld_ffn")
    E.label("L_ld_loop")
    if diag:
        for k,c in enumerate(ldst or (0,2,3,4,6,8,16,32,NS-5)):
            sk=lab("ls"); A(f"s_cmp_lg_u32 {sCI}, {c}"); A(f"s_cbranch_scc1 {sk}"); A(f"s_memrealtime s[{72+2*k}:{73+2*k}]"); A("s_waitcnt lgkmcnt(0)"); E.label(sk)
    A(f"s_add_u32 {sCI}, {sCI}, 1")
    A(f"s_lshl_b32 {sBASE}, {sCUR}, 13"); A(f"s_add_u32 {sBASE}, {sBASE}, {sGB}")
    for p,(srd,vo) in enumerate(((srdK,vK),(srdV,vV))):
        freecheck(1)
        sk = lab("nocl"); A(f"s_cmp_lt_u32 {sCI}, {sNS}"); A(f"s_cbranch_scc1 {sk}")
        claim(p)
        E.label(sk)
        tile_rows([(srd, vo[i%len(vo)], i*1024) for i in range(16)])
    A(f"s_add_u32 {sCUR}, {sCUR}, 2")
    A(f"s_cmp_lt_u32 {sCI}, {sNS}"); A("s_cbranch_scc1 L_ld_loop")
    E.label("L_ld_dyn")
    for p in range(2):
        A(f"v_readfirstlane_b32 {sCLM}, v{vCL[p]}")
        A(f"s_cmp_ge_u32 {sCLM}, {POOL}"); A("s_cbranch_scc1 L_ld_dyn_done")
        A(f"s_cmp_lt_u32 {sCLM}, {EXTRA}"); A(f"s_cbranch_scc1 L_ld_shed{p}")
        A(f"s_sub_u32 {sCLM}, {sCLM}, {EXTRA}")
        A(f"s_mul_hi_u32 {sT0}, {sCLM}, {-(-(1<<32)//TL)}"); A(f"s_mul_i32 {sT0}, {sT0}, {2*NS}"); A(f"s_add_u32 {sCUR}, {sCLM}, {sT0}"); A(f"s_add_u32 {sCUR}, {sCUR}, {2*NS}")
        E.label(f"L_ld_unit{p}")
        freecheck(1)
        claim(p)
        A(f"s_lshr_b32 {sBASE}, {sCUR}, 1"); A(f"s_lshl_b32 {sBASE}, {sBASE}, 14"); A(f"s_and_b32 {sT0}, {sCUR}, 1"); A(f"s_lshl_b32 {sT0}, {sT0}, 12")
        A(f"s_add_u32 {sBASE}, {sBASE}, {sT0}"); A(f"s_add_u32 {sBASE}, {sBASE}, {sGB}")
        tile_rows([(srdK, vK[i], i*2048) for i in range(8)] + [(srdV, vV[i%4], i*2048) for i in range(8)])
    A("s_branch L_ld_dyn")
    E.label("L_ld_dyn_done")
    A(f"v_mov_b32 v{vTMP}, {sN}"); one_lane(f"ds_write_b32 v{vFL}, v{vTMP} offset:4")
    for c,back in ((16,1),(0,0)):
        A(f"s_waitcnt vmcnt({c})"); publish(back)
    if diag:
        A("s_mov_b64 exec, 1"); A("s_memrealtime s[90:91]")
        A(f"s_lshl_b32 {sT0}, {sWG}, 6"); A(f"s_add_u32 {sT0}, {sT0}, {WS_ST+0x40000}"); A(f"v_mov_b32 v46, {sT0}")
        A("s_waitcnt lgkmcnt(0)")
        for k in range(11): A(f"v_mov_b32 v{32+k}, s{70+2*k}")
        A(f"v_mov_b32 v43, {sSPIN}")
        for q in range(3): A(f"global_store_dwordx4 v46, v[{32+4*q}:{35+4*q}], {pWS} offset:{q*16}")
    A("s_waitcnt lgkmcnt(0)")
    A("s_endpgm")
    for p in range(2):
        E.label(f"L_ld_shed{p}")
        A(f"s_lshr_b32 {sT0}, {sCLM}, 3"); A(f"s_add_u32 {sT0}, {sT0}, 4"); A(f"s_and_b32 {sT1}, {sCLM}, 7"); A(f"s_add_u32 {sT1}, {sT1}, {2*(NS-4)}")
        A(f"s_bfe_u32 {sT2}, {sCLM}, 0x20002"); A(f"s_and_b32 {sCUR}, {sCLM}, 3"); A(f"s_add_u32 {sCUR}, {sCUR}, {2*(NS-2)+4*128}")
        A(f"s_cmp_lt_u32 {sCLM}, 16"); A(f"s_cselect_b32 {sT0}, {sT0}, {sT2}"); A(f"s_cselect_b32 {sCUR}, {sT1}, {sCUR}")
        A(f"s_add_u32 {sT0}, {sT0}, {sG}"); A(f"s_and_b32 {sT1}, {sT0}, 3"); A(f"s_bfe_u32 {sT0}, {sT0}, 0x10002"); A(f"s_lshl_b32 {sT0}, {sT0}, 3"); A(f"s_add_u32 {sT0}, {sT0}, {sT1}")
        A(f"s_lshl_b32 {sT0}, {sT0}, 7"); A(f"s_add_u32 {sCUR}, {sCUR}, {sT0}")
        A(f"s_branch L_ld_unit{p}")

    def SEL4(dst, a, b, c, d, t):
        A(f"v_cndmask_b32 v{dst}, v{a}, v{b}, {sM1}"); A(f"v_cndmask_b32 v{t}, v{c}, v{d}, {sM1}"); A(f"v_cndmask_b32 v{dst}, v{dst}, v{t}, {sM2}")
    def xrow(op, regs, tmps):
        for sw in ("v_permlane16_swap_b32","v_permlane32_swap_b32"):
            for r,t in zip(regs,tmps): A(f"v_mov_b32 v{t}, v{r}")
            for r,t in zip(regs,tmps): A(f"{sw} v{r}, v{t}")
            for r,t in zip(regs,tmps): A(f"{op} v{r}, v{r}, v{t}")
    def round_bf(dst, src): A(f"v_cvt_pk_bf16_f32 v{dst}, v{src}, v{src}"); A(f"v_and_b32 v{dst}, 0xffff0000, v{dst}")
    def unpack(lo, hi, src): A(f"v_lshlrev_b32 v{lo}, 16, v{src}"); A(f"v_and_b32 v{hi}, 0xffff0000, v{src}")
    def pub_cons():
        slot_advance()
        A(f"v_mov_b32 v{vTM}, {sN}"); one_lane(f"ds_write_b32 v{vCONS}, v{vTM}")
    def wait_tile(fin=None):
        ok = lab("have"); lp = lab("poll")
        if fin: A(f"s_cmp_eq_u32 {sTOT}, {sN}"); A(f"s_cbranch_scc1 {fin}")
        A(f"s_cmp_gt_u32 {sKNOWN}, {sN}"); A(f"s_cbranch_scc1 {ok}")
        E.label(lp)
        A(f"ds_read_b64 {P(vAD[0])}, v{vFLG}")
        spin_guard()
        A("s_waitcnt lgkmcnt(0)")
        A(f"v_readfirstlane_b32 {sKNOWN}, v{vAD[0]}")
        if fin:
            A(f"v_readfirstlane_b32 {sTOT}, v{vAD[1]}")
            nw = lab("nw")
            A(f"s_cmp_ge_u32 {sTOT}, {sWRM}"); A(f"s_cbranch_scc1 {nw}")
            A(f"s_mov_b32 {sWRM}, 0"); A(f"global_load_dword v{vX+2}, v{vX+3}, {pWS} {ldf}")
            E.label(nw)
            A(f"s_cmp_eq_u32 {sTOT}, {sN}"); A(f"s_cbranch_scc1 {fin}")
        A(f"s_cmp_gt_u32 {sKNOWN}, {sN}"); A(f"s_cbranch_scc1 {ok}")
        if nap or not fin: A("s_sleep 1")
        A(f"s_branch {lp}")
        E.label(ok)
    def poll(loads, tags, first_mask=None):
        lp = lab("gpoll"); n = len(loads)
        for i in range(n): A(f"s_mov_b64 {sCK[i]}, {first_mask[i] if first_mask else -1}")
        E.label(lp)
        for i,l in enumerate(loads):
            sk = lab("sk")
            A(f"s_mov_b64 exec, {sCK[i]}"); A(f"s_cbranch_execz {sk}"); A(l); E.label(sk)
        A("s_mov_b64 exec, -1")
        spin_guard()
        A("s_waitcnt vmcnt(0)")
        for i in range(n):
            A(f"v_cmp_ne_u32 {sCK[i]}, {sTAG}, v{tags[i][0]}")
            for t in tags[i][1:]:
                A(f"v_cmp_ne_u32 vcc, {sTAG}, v{t}"); A(f"s_or_b64 {sCK[i]}, {sCK[i]}, vcc")
        A(f"s_or_b64 vcc, {sCK[0]}, {sCK[min(1,n-1)]}")
        for i in range(2, n): A(f"s_or_b64 vcc, vcc, {sCK[i]}")
        A(f"s_cbranch_scc1 {lp}")
    def layernorm(xr, f, lnbase, stride, mid=None):
        s1=vTM; t=vTM2; mu=vX; a=vX+2; b=vX+4
        for u in range(7): unpack(f+2*u, f+2*u+1, xr[u])
        A(f"v_pk_add_f32 {P(a)}, {P(f)}, {P(f+2)}"); A(f"v_pk_add_f32 {P(b)}, {P(f+4)}, {P(f+6)}")
        A(f"v_pk_add_f32 {P(a)}, {P(a)}, {P(f+8)}"); A(f"v_pk_add_f32 {P(b)}, {P(b)}, {P(f+10)}")
        A(f"v_pk_add_f32 {P(a)}, {P(a)}, {P(f+12)}"); A(f"v_pk_add_f32 {P(a)}, {P(a)}, {P(b)}")
        A(f"v_add_f32 v{s1}, v{a}, v{a+1}")
        red32 = [f"v_add_f32_dpp v{s1}, v{s1}, v{s1} row_ror:{k} row_mask:0xf bank_mask:0xf" for k in (8,4,2,1)]
        red32 += [f"v_mov_b32 v{t}, v{s1}", f"v_permlane16_swap_b32 v{s1}, v{t}", f"v_add_f32 v{s1}, v{s1}, v{t}"]
        for l in red32: A(l)
        A(f"v_mul_f32 v{mu}, {INV448:#x}, v{s1}")
        NEG = "op_sel_hi:[1,0] neg_lo:[0,1] neg_hi:[0,1]"
        A(f"v_pk_add_f32 {P(b)}, {P(f)}, {P(mu)} {NEG}")
        A(f"v_pk_mul_f32 {P(a)}, {P(b)}, {P(b)}")
        for u in range(1,7):
            A(f"v_pk_add_f32 {P(b)}, {P(f+2*u)}, {P(mu)} {NEG}")
            A(f"v_pk_fma_f32 {P(a)}, {P(b)}, {P(b)}, {P(a)}")
        A(f"v_add_f32 v{s1}, v{a}, v{a+1}")
        round_bf(mu, mu)
        fill = [f"v_pk_add_f32 {P(f+2*u)}, {P(f+2*u)}, {P(mu)} {NEG}" for u in range(7)] + [f"v_cvt_pk_bf16_f32 v{xr[u]}, v{f+2*u}, v{f+2*u+1}" for u in range(7)]
        for u in range(7): fill += [f"v_lshlrev_b32 v{f+2*u}, 16, v{xr[u]}", f"v_and_b32 v{f+2*u+1}, 0xffff0000, v{xr[u]}"]
        rb = [f"v_cvt_pk_bf16_f32 v{s1}, v{s1}, v{s1}", f"v_and_b32 v{s1}, 0xffff0000, v{s1}"]
        chain = red32 + [f"v_mul_f32 v{s1}, {INV448:#x}, v{s1}"] + rb + [f"v_add_f32 v{s1}, {EPS:#x}, v{s1}"] + rb + [f"v_sqrt_f32 v{s1}, v{s1}"] + rb + [f"v_rcp_f32 v{a}, v{s1}"]
        while chain or fill:
            for _ in range(2):
                if fill: A(fill.pop(0))
            if chain: A(chain.pop(0))
        if mid: mid()
        for u in range(7): A(f"v_pk_mul_f32 {P(f+2*u)}, {P(f+2*u)}, {P(a)} op_sel_hi:[1,0]")
        for u in range(7):
            A(f"v_cvt_pk_bf16_f32 v{xr[u]}, v{f+2*u}, v{f+2*u+1}")
            A(f"ds_write_b32 v{lnbase}, v{xr[u]} offset:{u*stride}")
    def ln_read_addr(rd, base):
        A(f"v_and_b32 v{rd}, 1, v{vLANE}"); A(f"v_mul_u32_u24 v{rd}, 896, v{rd}")
        A(f"v_lshl_add_u32 v{rd}, v{vG4}, 4, v{rd}"); A(f"v_add_u32 v{rd}, {base}, v{rd}")
    def tall_addr(dst):
        A(f"v_lshrrev_b32 v{vTM}, 3, v{vN}")
        A(f"v_and_b32 v{vTM2}, 1, v{vG4}"); A(f"v_lshl_or_b32 v{vTM}, v{vTM2}, 1, v{vTM}")
        A(f"v_xor_b32 v{vTM}, {sW}, v{vTM}"); A(f"v_lshlrev_b32 v{vTM}, 5, v{vTM}")
        A(f"v_and_b32 v{vTM2}, 3, v{vN}"); A(f"v_lshl_or_b32 v{vTM}, v{vTM2}, 3, v{vTM}")
        A(f"v_lshrrev_b32 v{vTM2}, 2, v{vN}"); A(f"v_lshl_or_b32 v{vTM}, v{vTM2}, 7, v{vTM}")
        A(f"v_lshl_or_b32 v{dst}, v{vG4}, 10, v{vTM}")
    def wide_addr(dst):
        A(f"v_lshrrev_b32 v{vTM}, 2, v{vN}"); A(f"v_lshl_add_u32 v{vTM}, v{vG4}, 2, v{vTM}"); A(f"v_mul_u32_u24 v{vTM}, 896, v{vTM}")
        A(f"v_and_b32 v{vTM2}, 3, v{vN}"); A(f"v_lshl_add_u32 v{vTM}, v{vTM2}, 3, v{vTM}")
        A(f"s_mul_i32 {sT0}, {sW}, 224"); A(f"v_add_u32 v{dst}, {sT0}, v{vTM}")
    def read_tall_tile(base, dstreg, t):
        wait_tile()
        A(f"v_add_u32 v{vAD[0]}, {sSLOT}, v{base}")
        for s in range(4 if t < 3 else 2):
            for h2 in range(2):
                A(f"ds_read_b64_tr_b16 {P(dstreg + 4*(4*t+s) + 2*h2)}, v{vAD[0]} offset:{s*4096+h2*512}")
        A("s_waitcnt lgkmcnt(0)")
        pub_cons()
    def read_wide_tile(base, dstreg, half):
        wait_tile()
        A(f"v_add_u32 v{vAD[0]}, {sSLOT}, v{base}")
        for tt in range(7): A(f"ds_read_b64_tr_b16 {P(dstreg + 4*tt + 2*half)}, v{vAD[0]} offset:{tt*32}")
        A("s_waitcnt lgkmcnt(0)")
        pub_cons()
    def basic_setup():
        A(f"s_sub_u32 {sW}, {sWAVE}, 1"); A(f"s_lshr_b32 {sB}, {sG}, 3"); A(f"s_and_b32 {sHKV}, {sG}, 7")
        A(f"v_and_b32 v{vN}, 15, v{vLANE}"); A(f"v_lshrrev_b32 v{vG4}, 4, v{vLANE}")
        A(f"s_lshl_b32 {sT0}, {sW}, 2"); A(f"s_add_u32 {sT0}, {sT0}, {L_CONS}"); A(f"v_mov_b32 v{vCONS}, {sT0}")
        A("s_mov_b32 s42, 0xffff0000"); A("s_mov_b32 s43, s42")

    E.label("L_qprod")
    f14 = vWO+8; vLR = vWO+25; vTA = vWO+26; vQA = vWO+27
    basic_setup()
    A(f"s_or_b32 {sT0}, {sROLE}, {sW}"); A(f"s_cmp_lg_u32 {sT0}, 0"); A("s_cbranch_scc1 L_noinit")
    A(f"s_lshl_b32 {sT0}, {sG}, 8"); A(f"s_add_u32 {sT0}, {sT0}, {WS_CNT}")
    A(f"v_mov_b32 v{vTM2}, {sT0}"); A(f"v_mov_b32 v{vTM3}, 0")
    one_lane(f"global_store_dword v{vTM2}, v{vTM3}, {pWS} {stf}")
    E.label("L_noinit")
    A(f"s_lshl_b32 {sT2}, {sW}, 11"); A(f"s_add_u32 {sT2}, {sT2}, {L_LN}")
    A(f"v_add_u32 v{vLW1}, {sT2}, v{vLW1}")
    ln_read_addr(vLR, sT2)
    tall_addr(vTA)
    A(f"s_lshl_b32 {sT0}, {sB}, 2"); A(f"s_add_u32 {sT0}, {sT0}, {sROLE}"); A(f"s_lshl_b32 {sT0}, {sT0}, 2"); A(f"s_add_u32 {sT0}, {sT0}, {sW}")
    A(f"s_lshl_b32 {sT0}, {sT0}, 6"); A(f"s_lshl_b32 {sT1}, {sHKV}, 11"); A(f"s_add_u32 {sT0}, {sT0}, {sT1}"); A(f"s_add_u32 {sT0}, {sT0}, {WS_Q}")
    A(f"v_lshlrev_b32 v{vQA}, 2, v{vN}"); A(f"v_lshl_add_u32 v{vQA}, v{vG4}, 14, v{vQA}"); A(f"v_add_u32 v{vQA}, {sT0}, v{vQA}")
    if qtouch: touch_pad("q")
    A("s_waitcnt vmcnt(0) lgkmcnt(0)")
    stamp(12)
    layernorm(xr1, f14, vLW1, 128, mid=(lambda: pad("q")) if qtouch else None)
    make_tag(sTAG, sE); A(f"v_mov_b32 v{vX+1}, {sTAG}")
    A("s_waitcnt lgkmcnt(0)")
    stamp(13)
    for s in range(14): A(f"ds_read_b128 {Q4(vW2+4*s)}, v{vLR} offset:{s*64}")
    A(f"s_mov_b32 {sN}, 3"); wait_tile()
    stamp(14)
    for s in range(14):
        for h2 in range(2): A(f"ds_read_b64_tr_b16 {P(vW1 + 4*s + 2*h2)}, v{vTA} offset:{s*4096+h2*512}")
        if s % 4 == 3 or s == 13:
            A(f"s_waitcnt lgkmcnt(0)")
            for k in range(s - s % 4, s+1):
                A(f"v_mfma_f32_16x16x32_bf16 {Q4(vS)}, {Q4(vW2+4*k)}, {Q4(vW1+4*k)}, {'0' if k==0 else Q4(vS)}")
    A(f"s_mov_b32 {sSLOT}, {3*SLOT}"); pub_cons()
    A(f"v_cndmask_b32 v{vTM}, v{vS}, v{vS+1}, {sM1}")
    A(f"v_mov_b32_dpp v{vTM2}, v{vTM} quad_perm:[1,0,3,2] row_mask:0xf bank_mask:0xf")
    A(f"v_cvt_pk_bf16_f32 v{vX}, v{vTM}, v{vTM2}")
    A("s_mov_b64 exec, 0x55555555")
    A(f"global_store_dwordx2 v{vQA}, {P(vX)}, {pWS} {stf}")
    A("s_mov_b64 exec, -1")
    stamp(1)

    E.label("L_consumer")
    basic_setup()
    share_consts()
    A("s_mov_b32 s44, 0"); A("s_mov_b32 s45, -1"); A(f"s_mov_b32 {sC}, {C_SCALE:#x}"); A("s_mov_b32 s66, -1"); A("s_mov_b32 s67, 0"); A(f"s_mov_b32 {sTOT}, 0x7fffffff")
    if hilo: A("s_mov_b32 s64, 0xcccccccc"); A("s_mov_b32 s65, 0xcccccccc")
    stamp(11)
    A(f"s_sub_u32 {sT0}, {sROLE}, 4"); A(f"s_lshl_b32 {sRR}, {sG}, 2"); A(f"s_add_u32 {sRR}, {sRR}, {sT0}")
    A(f"s_cmp_lt_u32 {sT0}, 4"); A(f"s_cselect_b32 {sRR}, {sRR}, 99"); A("s_cbranch_scc0 L_nox")
    A(f"s_bfe_u32 {sT0}, {sRR}, 0x20003"); A(f"s_mul_i32 {sCOL}, {sT0}, 224")
    A(f"s_bfe_u32 {sGP}, {sRR}, 0x20001"); A(f"s_lshl_b32 {sT0}, {sGP}, 6"); A(f"s_add_u32 {sCOL}, {sCOL}, {sT0}")
    A(f"s_and_b32 {sT0}, {sRR}, 1"); A(f"s_lshl_b32 {sT0}, {sT0}, 4"); A(f"s_add_u32 {sCOL}, {sCOL}, {sT0}")
    A(f"s_bfe_u32 {sT0}, {sRR}, 0x10005"); A(f"s_mul_i32 {sT0}, {sT0}, 896"); A(f"s_add_u32 {sCOL}, {sCOL}, {sT0}")
    A(f"v_and_b32 v{vTM}, 6, v{vLANE}"); A(f"v_lshl_add_u32 v{vTM}, v{vTM}, 1, {sCOL}")
    A(f"global_load_dword v{vXH}, v{vTM}, {pX}")
    A(f"v_mov_b32 v{vXH+1}, 0")
    A(f"s_cmp_eq_u32 {sGP}, 3"); A("s_cbranch_scc1 L_nox")
    A(f"global_load_dword v{vXH+1}, v{vTM}, {pX} offset:32")
    E.label("L_nox")
    A(f"v_xor_b32 v{vTM}, v{vG4}, v{vN}"); A(f"v_lshlrev_b32 v{vTM}, 4, v{vTM}"); A(f"v_lshl_or_b32 v{vTM}, v{vN}, 9, v{vTM}")
    for s in range(4): A(f"v_xor_b32 v{vKB[s]}, {s*64}, v{vTM}")
    A(f"v_lshrrev_b32 v{vTM}, 2, v{vN}"); A(f"v_lshl_add_u32 v{vTM}, v{vG4}, 2, v{vTM}")
    A(f"v_and_b32 v{vTM2}, 7, v{vTM}")
    A(f"s_lshl_b32 {sT0}, {sW}, 2"); A(f"v_xor_b32 v{vTM2}, {sT0}, v{vTM2}"); A(f"v_lshlrev_b32 v{vTM2}, 5, v{vTM2}")
    A(f"v_lshl_or_b32 v{vTM}, v{vTM}, 9, v{vTM2}")
    A(f"v_and_b32 v{vTM2}, 3, v{vN}"); A(f"v_lshl_or_b32 v{vTM}, v{vTM2}, 3, v{vTM}")
    for e in range(4): A(f"v_xor_b32 v{vVB[e]}, {e*32}, v{vTM}")
    A(f"v_mov_b32 v{vM}, 0xff800000"); A(f"v_mov_b32 v{vMC}, v{vM}"); A(f"v_mov_b32 v{vL}, 0")
    for i in range(16): A(f"v_mov_b32 v{vO+i}, 0")
    wide_addr(vX)
    for h in range(2): read_wide_tile(vX, vWO, h)
    A(f"s_cmp_lt_u32 {sIDX}, 28"); A("s_cbranch_scc1 L_ffn_w")
    E.label("L_ffn_w_done")
    make_tag(sTAG, sE)
    A(f"s_cmp_lg_u32 {sW}, 0"); A("s_cbranch_scc1 L_q_flag")
    if qwait:
        A(f"s_add_u32 {sN}, {sN}, {qwait-1}"); wait_tile(); A(f"s_sub_u32 {sN}, {sN}, {qwait-1}")
    A(f"s_lshl_b32 {sT0}, {sG}, 11"); A(f"s_add_u32 {sT0}, {sT0}, {WS_Q}")
    A(f"v_lshl_add_u32 v{vTM3}, v{vLANE}, 4, {sT0}")
    poll([f"global_load_dwordx4 {Q4(vF)}, v{vTM3}, {pWS} {ldf}", f"global_load_dwordx4 {Q4(vF+4)}, v{vTM3}, {pWS} offset:1024 {ldf}"],
         [[vF+1, vF+3], [vF+5, vF+7]])
    A(f"v_lshlrev_b32 v{vTM}, 3, v{vLANE}"); A(f"v_add_u32 v{vTM}, {L_QW}, v{vTM}"); A(f"v_mov_b32 v{vTM2}, 1")
    A(f"ds_write2_b32 v{vTM}, v{vF}, v{vF+2} offset0:0 offset1:1"); A(f"ds_write2_b32 v{vTM}, v{vF+4}, v{vF+6} offset0:128 offset1:129")
    one_lane(f"ds_write_b32 v{vFLG}, v{vTM2} offset:32")
    E.label("L_q_flag")
    A(f"ds_read_b32 v{vTM}, v{vFLG} offset:32")
    spin_guard()
    A("s_waitcnt lgkmcnt(0)")
    A(f"v_readfirstlane_b32 {sT0}, v{vTM}")
    A(f"s_cmp_eq_u32 {sT0}, 1"); A("s_cbranch_scc1 L_q_have")
    A("s_sleep 1"); A("s_branch L_q_flag")
    E.label("L_q_have")
    A(f"v_and_b32 v{vTM2}, 1, v{vLANE}"); A(f"v_lshlrev_b32 v{vTM2}, 9, v{vTM2}"); A(f"v_lshl_add_u32 v{vTM2}, v{vG4}, 4, v{vTM2}"); A(f"v_add_u32 v{vTM2}, {L_QW}, v{vTM2}")
    for s in range(8): A(f"ds_read_b128 {Q4(vQ+4*s)}, v{vTM2} offset:{s*64}")
    stamp(2)
    A("s_waitcnt lgkmcnt(0)")

    def qk(nt):
        for s in range(4): A(f"v_add_u32 v{vAD[s]}, {sSLOT}, v{vKB[s]}")
        seq = [(t,s) for s in range(8) for t in range(nt)]; n = len(seq)
        def kread(i):
            t,s = seq[i]; A(f"ds_read_b128 {Q4(vF + 4*(i % NF))}, v{vAD[s&3]} offset:{(s>>2)*256 + t*8192}")
        for i in range(NF): kread(i)
        for i in range(n):
            t,s = seq[i]
            A(f"s_waitcnt lgkmcnt({min(NF-1, n-1-i)})")
            d = Q4(vS+4*t)
            A(f"v_mfma_f32_16x16x32_bf16 {d}, {Q4(vF + 4*(i % NF))}, {Q4(vQ+4*s)}, {'0' if s==0 else d}")
            if i + NF < n: kread(i+NF)
    def softmax(nt, tag):
        n = 4*nt
        for i in range(n//2): A(f"v_cvt_pk_bf16_f32 v{vP+i}, v{vS+2*i}, v{vS+2*i+1}")
        for i in range(n//2): unpack(vS+2*i, vS+2*i+1, vP+i)
        if nt == 2:
            A(f"v_max3_f32 v{vMX}, v{vS}, v{vS+1}, v{vS+2}"); A(f"v_max3_f32 v{vTM}, v{vS+3}, v{vS+4}, v{vS+5}")
            A(f"v_max3_f32 v{vMX}, v{vMX}, v{vS+6}, v{vS+7}"); A(f"v_max_f32 v{vMX}, v{vMX}, v{vTM}")
        else:
            A(f"v_max3_f32 v{vMX}, v{vS}, v{vS+1}, v{vS+2}"); A(f"v_max_f32 v{vMX}, v{vMX}, v{vS+3}")
        xrow("v_max_f32", [vMX], [vTM])
        A(f"v_cmp_gt_f32 vcc, v{vMX}, v{vM}")
        A("s_cmp_lg_u64 vcc, 0"); A(f"s_cbranch_scc1 L_rescale{tag}")
        E.label(f"L_rescaled{tag}")
        for i in range(n): A(f"v_fma_f32 v{vS+i}, v{vS+i}, {sC}, -v{vMC}")
        for i in range(n): A(f"v_exp_f32 v{vS+i}, v{vS+i}")
        for i in range(n//2): A(f"v_cvt_pk_bf16_f32 v{vP+i}, v{vS+2*i}, v{vS+2*i+1}")
        if hilo:
            for i in range(n//2):
                t = vF+16+2*(i&1)
                unpack(t, t+1, vP+i)
                A(f"v_pk_add_f32 {P(t)}, {P(vS+2*i)}, {P(t)} neg_lo:[0,1] neg_hi:[0,1]")
                A(f"v_cvt_pk_bf16_f32 v{t}, v{t}, v{t+1}")
                A(f"v_cndmask_b32 v{vP+i}, v{vP+i}, v{t}, s[64:65]")
    def add_l(nt):
        A(f"v_add_f32 v{vTM}, v{vS}, v{vS+1}"); A(f"v_add_f32 v{vMX}, v{vS+2}, v{vS+3}")
        if nt == 2:
            A(f"v_add_f32 v{vS+4}, v{vS+4}, v{vS+5}"); A(f"v_add_f32 v{vS+6}, v{vS+6}, v{vS+7}")
            A(f"v_add_f32 v{vTM}, v{vTM}, v{vS+4}"); A(f"v_add_f32 v{vMX}, v{vMX}, v{vS+6}")
        A(f"v_add_f32 v{vL}, v{vL}, v{vTM}"); A(f"v_add_f32 v{vL}, v{vL}, v{vMX}")
    def rescale(tag):
        E.label(f"L_rescale{tag}")
        A(f"v_max_f32 v{vM}, v{vM}, v{vMX}")
        A(f"v_mul_f32 v{vTM}, {sC}, v{vM}")
        A(f"v_sub_f32 v{vTM2}, v{vMC}, v{vTM}")
        A(f"v_mov_b32 v{vMC}, v{vTM}")
        A(f"v_exp_f32 v{vTM2}, v{vTM2}")
        A(f"v_mul_f32 v{vL}, v{vL}, v{vTM2}")
        A(f"v_mov_b32_dpp v{vTM}, v{vTM2} quad_perm:[0,0,2,2] row_mask:0xf bank_mask:0xf")
        A(f"v_mov_b32_dpp v{vTM3}, v{vTM2} quad_perm:[1,1,3,3] row_mask:0xf bank_mask:0xf")
        for i in range(16): A(f"v_mul_f32 v{vO+i}, v{vO+i}, v{vTM if i%2==0 else vTM3}")
        A(f"s_branch L_rescaled{tag}")
    E.label("L_loop")
    wait_tile()
    qk(2)
    pub_cons()
    softmax(2, "a"); add_l(2)
    wait_tile()
    for e in range(4): A(f"v_add_u32 v{vAD[e]}, {sSLOT}, v{vVB[e]}")
    for e in range(4):
        for h2 in range(2): A(f"ds_read_b64_tr_b16 {P(vF + 4*e + 2*h2)}, v{vAD[e]} offset:{h2*8192}")
    for e in range(4):
        A(f"s_waitcnt lgkmcnt({6-2*e})")
        A(f"v_mfma_f32_16x16x32_bf16 {Q4(vO+4*e)}, {Q4(vP)}, {Q4(vF+4*e)}, {Q4(vO+4*e)}")
    pub_cons()
    A(f"s_add_u32 {sCI}, {sCI}, 1"); A(f"s_cmp_lt_u32 {sCI}, {sNS}"); A("s_cbranch_scc1 L_loop")
    if touch:
        for nm in ("fin","red","ffn","ffn2"): touch_pad(nm)
    if forcepar is None:
        A(f"v_mov_b32 v{vTM}, {WS_PAR}")
        poll([f"global_load_dwordx4 {Q4(vF)}, v{vTM}, {pWS} {ldf}"], [[vF+1, vF+3]])
        A(f"v_readfirstlane_b32 {sP0}, v{vF}"); A(f"v_readfirstlane_b32 {sP1}, v{vF+2}")
    else:
        A(f"s_mov_b32 {sP0}, {forcepar[0]*8192}"); A(f"s_mov_b32 {sP1}, {forcepar[1]*8192}")
    A(f"s_lshl_b32 {sT0}, {sG}, 2"); A(f"s_and_b32 {sT1}, {sW}, 1"); A(f"s_add_u32 {sT0}, {sT0}, {sT1}"); A(f"s_lshl_b32 {sT0}, {sT0}, 14")
    A(f"s_lshr_b32 {sT1}, {sW}, 1"); A(f"s_lshl_b32 {sT1}, {sT1}, 13"); A(f"s_xor_b32 {sT1}, {sT1}, {sP0}"); A(f"s_add_u32 {sT0}, {sT0}, {sT1}")
    A(f"s_lshl_b32 {sT1}, {sJ}, 8"); A(f"s_add_u32 {sT0}, {sT0}, {sT1}"); A(f"s_add_u32 {sT0}, {sT0}, {WS_A}")
    A(f"v_lshrrev_b32 v{vAA}, 1, v{vG4}"); A(f"v_lshlrev_b32 v{vAA}, 15, v{vAA}")
    A(f"v_and_b32 v{vTM}, 1, v{vG4}"); A(f"v_lshl_or_b32 v{vAA}, v{vTM}, 12, v{vAA}"); A(f"v_lshl_or_b32 v{vAA}, v{vN}, 4, v{vAA}")
    A(f"v_add_u32 v{vAA}, {sT0}, v{vAA}")
    A(f"s_lshr_b32 {sT0}, {sWG}, 3"); A(f"s_lshl_b32 {sT0}, {sT0}, 1"); A(f"s_bfe_u32 {sT1}, {sWG}, 0x10001"); A(f"s_add_u32 {sT0}, {sT0}, {sT1}"); A(f"s_lshl_b32 {sT0}, {sT0}, 14")
    A(f"s_bfe_u32 {sT1}, {sWG}, 0x10002"); A(f"s_lshl_b32 {sT1}, {sT1}, 13"); A(f"s_xor_b32 {sT1}, {sT1}, {sP0}"); A(f"s_add_u32 {sT0}, {sT0}, {sT1}")
    A(f"s_and_b32 {sT1}, {sWG}, 1"); A(f"s_lshl_b32 {sT1}, {sT1}, 12"); A(f"s_add_u32 {sT0}, {sT0}, {sT1}"); A(f"s_add_u32 {sT0}, {sT0}, {WS_A}")
    A(f"v_lshlrev_b32 v{vAI}, 4, v{vN}"); A(f"v_lshl_or_b32 v{vAI}, v{vG4}, 10, v{vAI}"); A(f"v_add_u32 v{vAI}, {sT0}, v{vAI}")
    A(f"v_lshl_add_u32 v{vX+3}, v{vLANE}, 6, {sT0}")
    A(f"s_cmp_eq_u32 {sW}, 0"); A(f"s_cselect_b32 {sWRM}, 0x7fffffff, 0")
    A(f"s_cmp_ge_u32 {sRR}, 64"); A(f"s_cbranch_scc1 L_nored"); A(f"s_sub_u32 {sT0}, {sW}, 1"); A(f"s_cmp_ge_u32 {sT0}, 2"); A(f"s_cbranch_scc1 L_nored")
    A(f"s_lshl_b32 {sT0}, {sT0}, 14"); A(f"s_lshl_b32 {sT1}, {sRR}, 15"); A(f"s_add_u32 {sT0}, {sT0}, {sT1}"); A(f"s_add_u32 {sT0}, {sT0}, {sP1}"); A(f"s_add_u32 {sT0}, {sT0}, {WS_B}")
    A(f"v_lshl_add_u32 v{vX+3}, v{vLANE}, 7, {sT0}"); A(f"s_mov_b32 {sWRM}, 0x7fffffff")
    E.label("L_nored")
    A(f"s_lshl_b32 {sT0}, {sB}, 2"); A(f"s_add_u32 {sT0}, {sT0}, {sW}"); A(f"s_lshl_b32 {sT0}, {sT0}, 18")
    A(f"s_bfe_u32 {sT1}, {sWG}, 0x10006"); A(f"s_lshl_b32 {sT1}, {sT1}, 14"); A(f"s_add_u32 {sT0}, {sT0}, {sT1}"); A(f"s_add_u32 {sT0}, {sT0}, {sP1}")
    A(f"s_and_b32 {sT1}, {sWG}, 63"); A(f"s_lshl_b32 {sT1}, {sT1}, 7"); A(f"s_add_u32 {sT0}, {sT0}, {sT1}"); A(f"s_add_u32 {sT0}, {sT0}, {WS_B}")
    A(f"v_lshrrev_b32 v{vTM}, 3, v{vLANE}"); A(f"v_lshlrev_b32 v{vTM}, 15, v{vTM}")
    A(f"v_and_b32 v{vTM2}, 7, v{vLANE}"); A(f"v_lshl_or_b32 v{vBA}, v{vTM2}, 4, v{vTM}"); A(f"v_add_u32 v{vBA}, {sT0}, v{vBA}")
    E.label("L_mini")
    wait_tile("L_fin")
    qk(1)
    for e in range(4): A(f"v_add_u32 v{vAD[e]}, {sSLOT}, v{vVB[e]}")
    for e in range(4): A(f"ds_read_b64_tr_b16 {P(vF + 2*e)}, v{vAD[e]} offset:8192")
    softmax(1, "b")
    A("s_waitcnt lgkmcnt(0)")
    for e in range(4): A(f"v_mfma_f32_16x16x16_bf16 {Q4(vO+4*e)}, {P(vP)}, {P(vF+2*e)}, {Q4(vO+4*e)}")
    add_l(1)
    if lastfast:
        A(f"s_add_u32 {sT0}, {sN}, 1"); A(f"s_cmp_eq_u32 {sT0}, {sTOT}"); A("s_cbranch_scc1 L_fin")
    pub_cons()
    A("s_branch L_mini")
    rescale("b"); rescale("a")

    if touch: E.label("L_pad_fin"); A("s_branch L_ret_fin")
    E.label("L_fin")
    stamp(3)
    vG=vF; vI=vF+4; sa=vS; sb=vS+1; sw=vS+2
    vA=vQ; vOPR=vQ+4; vOPW=vQ+5; vR0=vQ+6; vR1=vQ+7; vR2=vQ+8; vR3=vQ+9; vR4=vQ+10; vR5=vQ+11; vZ=vQ+12
    yreg = [vO, vO+4, vO+8, vO+12, vQ+16, vQ+20, vQ+24]
    xrow("v_add_f32", [vL], [vTM])
    if hilo:
        for e in range(4): A(f"v_pk_add_f32 {P(vO+4*e)}, {P(vO+4*e)}, {P(vO+4*e+2)}")
    A(f"v_log_f32 v{vTM2}, v{vL}"); A(f"v_rcp_f32 v{vTM3}, v{vL}")
    A(f"v_mov_b32 v{vG+3}, {sTAG}")
    A(f"v_add_f32 v{vTM2}, v{vMC}, v{vTM2}")
    SEL4(vG, vO+0, vO+8, vO+1, vO+9, vMX)
    A(f"v_mov_b32_dpp v{vTM}, v{vTM3} quad_perm:[0,0,2,2] row_mask:0x3 bank_mask:0xf")
    A(f"v_mov_b32_dpp v{vG+2}, v{vTM2} quad_perm:[0,0,2,2] row_mask:0x3 bank_mask:0xf")
    SEL4(vG+1, vO+4, vO+12, vO+5, vO+13, vMX)
    A(f"v_mov_b32_dpp v{vTM}, v{vTM3} quad_perm:[1,1,3,3] row_mask:0xc bank_mask:0xf")
    A(f"v_mov_b32_dpp v{vG+2}, v{vTM2} quad_perm:[1,1,3,3] row_mask:0xc bank_mask:0xf")
    A(f"v_mul_f32 v{vG}, v{vG}, v{vTM}"); A(f"v_mul_f32 v{vG+1}, v{vG+1}, v{vTM}")
    A(f"global_store_dwordx4 v{vAA}, {Q4(vG)}, {pWS} {stf}")
    stamp(4)
    A(f"v_lshlrev_b32 v{vOPR}, 3, v{vG4}"); A(f"v_add_u32 v{vOPR}, {L_OP}, v{vOPR}")
    A(f"v_lshlrev_b32 v{vOPW}, 1, v{vN}"); A(f"v_add_u32 v{vOPW}, {L_OP}, v{vOPW}")
    A(f"v_mov_b32 v{vZ}, 0")
    A(f"s_cmp_lt_u32 {sIDX}, 28"); A("s_cbranch_scc1 L_ffn_addr")
    A(f"s_cmp_ge_u32 {sRR}, 64"); A("s_cbranch_scc1 L_addr_done")
    A(f"s_lshl_b32 {sT0}, {sRR}, 15"); A(f"s_lshr_b32 {sT1}, {sW}, 1"); A(f"s_lshl_b32 {sT1}, {sT1}, 14"); A(f"s_add_u32 {sT0}, {sT0}, {sT1}")
    A(f"s_and_b32 {sT1}, {sW}, 1"); A(f"s_lshl_b32 {sT1}, {sT1}, 12"); A(f"s_add_u32 {sT0}, {sT0}, {sT1}"); A(f"s_add_u32 {sT0}, {sT0}, {sP1}"); A(f"s_add_u32 {sT0}, {sT0}, {WS_B}")
    A(f"v_lshl_add_u32 v{vR0}, v{vLANE}, 4, {sT0}")
    A(f"s_lshl_b32 {sT0}, {sW}, 6"); A(f"s_add_u32 {sT0}, {sT0}, {L_RED}")
    A(f"v_and_b32 v{vTM}, 7, v{vLANE}"); A(f"v_lshl_add_u32 v{vR1}, v{vTM}, 2, {sT0}")
    A(f"v_and_b32 v{vTM}, 6, v{vLANE}"); A(f"v_lshlrev_b32 v{vR2}, 2, v{vTM}"); A(f"v_add_u32 v{vR2}, {L_RED}, v{vR2}")
    A(f"s_lshl_b32 {sT0}, {sRR}, 6"); A(f"s_add_u32 {sT0}, {sT0}, {sP0}"); A(f"s_add_u32 {sT0}, {sT0}, {WS_H}"); A(f"v_lshl_add_u32 v{vR3}, v{vTM}, 3, {sT0}")
    A(f"s_lshr_b32 {sT0}, {sRR}, 1"); A(f"s_lshl_b32 {sT0}, {sT0}, 14"); A(f"s_and_b32 {sT1}, {sRR}, 1"); A(f"s_lshl_b32 {sT1}, {sT1}, 12"); A(f"s_add_u32 {sT0}, {sT0}, {sT1}")
    A(f"s_add_u32 {sT0}, {sT0}, {sP0}"); A(f"s_add_u32 {sT0}, {sT0}, {WS_D}"); A(f"v_lshl_add_u32 v{vR4}, v{vLANE}, 4, {sT0}")
    A(f"v_lshl_add_u32 v{vR5}, v{vTM}, 1, {sCOL}")
    E.label("L_addr_done")
    A(f"s_cmp_lg_u32 {sW}, 0"); A("s_cbranch_scc1 L_a_join")
    poll([f"global_load_dwordx4 {Q4(vI+4*i)}, v{vAI}, {pWS} offset:{i*256} {ldf}" for i in range(4)], [[vI+4*i+3] for i in range(4)])
    stamp(5)
    A(f"v_max3_f32 v{vMX}, v{vI+2}, v{vI+6}, v{vI+10}"); A(f"v_max_f32 v{vMX}, v{vMX}, v{vI+14}")
    xrow("v_max_f32", [vMX], [vTM])
    for i in range(4): A(f"v_sub_f32 v{vI+4*i+2}, v{vI+4*i+2}, v{vMX}")
    for i in range(4): A(f"v_exp_f32 v{vI+4*i+2}, v{vI+4*i+2}")
    A(f"v_mul_f32 v{sa}, v{vI}, v{vI+2}"); A(f"v_mul_f32 v{sb}, v{vI+1}, v{vI+2}"); A(f"v_add_f32 v{sw}, v{vI+2}, v{vI+6}")
    for i in range(1,4):
        A(f"v_fmac_f32 v{sa}, v{vI+4*i}, v{vI+4*i+2}"); A(f"v_fmac_f32 v{sb}, v{vI+4*i+1}, v{vI+4*i+2}")
        if i > 1: A(f"v_add_f32 v{sw}, v{sw}, v{vI+4*i+2}")
    xrow("v_add_f32", [sw, sa, sb], [vS+3, vS+4, vS+5])
    A(f"v_rcp_f32 v{sw}, v{sw}")
    A(f"v_mul_f32 v{sa}, v{sa}, v{sw}"); A(f"v_mul_f32 v{sb}, v{sb}, v{sw}")
    A(f"v_mov_b32_dpp v{vS+3}, v{sa} quad_perm:[1,0,3,2] row_mask:0xf bank_mask:0xf")
    A(f"v_mov_b32_dpp v{vS+4}, v{sb} quad_perm:[1,0,3,2] row_mask:0xf bank_mask:0xf")
    A(f"v_cvt_pk_bf16_f32 v{sa}, v{sa}, v{vS+3}"); A(f"v_cvt_pk_bf16_f32 v{sb}, v{sb}, v{vS+4}")
    A("s_mov_b64 exec, 0x5555"); A(f"ds_write2_b32 v{vOPW}, v{sa}, v{sb} offset0:0 offset1:8"); A("s_mov_b64 exec, -1")
    A("s_waitcnt lgkmcnt(0)")
    E.label("L_a_join")
    A("s_barrier")
    A(f"ds_read2_b64 {Q4(vA)}, v{vOPR} offset0:0 offset1:4")
    A(f"v_mov_b32 v{vG+1}, {sTAG}")
    A("s_waitcnt lgkmcnt(0)")
    for t in (0,2,4,6,1,3,5):
        A(f"v_mfma_f32_16x16x32_bf16 {Q4(yreg[t])}, {Q4(vA)}, {Q4(vWO+4*t)}, 0")
    SEL4(vG, yreg[0], yreg[2], yreg[4], yreg[6], vMX)
    SEL4(vG+2, yreg[1], yreg[3], yreg[5], vZ, vTM)
    A(f"global_store_dwordx4 v{vBA}, {Q4(vG)}, {pWS} {stf}")
    stamp(6)
    A(f"s_cmp_lt_u32 {sIDX}, 28"); A("s_cbranch_scc1 L_ffn")
    A(f"s_cmp_ge_u32 {sRR}, 64"); A("s_cbranch_scc1 L_done")
    def inbox(addr): return [f"global_load_dwordx4 {Q4(vI+4*i)}, v{addr}, {pWS} offset:{i*1024} {ldf}" for i in range(4)]
    tags2 = [[vI+4*i+3] if onetag else [vI+4*i+1, vI+4*i+3] for i in range(4)]
    def sum_inbox():
        A(f"v_add_f32 v{sa}, v{vI}, v{vI+4}"); A(f"v_add_f32 v{sb}, v{vI+2}, v{vI+6}")
        A(f"v_add_f32 v{vS+2}, v{vI+8}, v{vI+12}"); A(f"v_add_f32 v{vS+3}, v{vI+10}, v{vI+14}")
        A(f"v_add_f32 v{sa}, v{sa}, v{vS+2}"); A(f"v_add_f32 v{sb}, v{sb}, v{vS+3}")
        A(f"v_add_f32_dpp v{sa}, v{sa}, v{sa} row_ror:8 row_mask:0xf bank_mask:0xf")
        A(f"v_add_f32_dpp v{sb}, v{sb}, v{sb} row_ror:8 row_mask:0xf bank_mask:0xf")
        xrow("v_add_f32", [sa, sb], [vS+2, vS+3])
    vXF = vO
    unpack(vXF, vXF+1, vXH); unpack(vXF+2, vXF+3, vXH+1)
    if touch: pad("red")
    poll(inbox(vR0), tags2)
    stamp(7)
    sum_inbox()
    A("s_mov_b64 exec, 0xff"); A(f"ds_write2_b32 v{vR1}, v{sa}, v{sb} offset0:0 offset1:8"); A("s_mov_b64 exec, -1")
    A("s_waitcnt lgkmcnt(0)"); A("s_barrier")
    A(f"s_cmp_lg_u32 {sW}, 0"); A("s_cbranch_scc1 L_done")
    for i in range(4): A(f"ds_read2_b64 {Q4(vI+4*i)}, v{vR2} offset0:{i*8} offset1:{i*8+4}")
    def add_resid(y, dst):
        A(f"v_cvt_pk_bf16_f32 v{dst}, v{y}, v{y+1}"); A(f"v_cvt_pk_bf16_f32 v{dst+2}, v{y+2}, v{y+3}")
        unpack(y, y+1, dst); unpack(y+2, y+3, dst+2)
        A(f"v_pk_add_f32 {P(y)}, {P(y)}, {P(vXF)}"); A(f"v_pk_add_f32 {P(y+2)}, {P(y+2)}, {P(vXF+2)}")
        A(f"v_cvt_pk_bf16_f32 v{dst}, v{y}, v{y+1}"); A(f"v_cvt_pk_bf16_f32 v{dst+2}, v{y+2}, v{y+3}")
    A("s_waitcnt lgkmcnt(2)")
    A(f"v_pk_add_f32 {P(vI)}, {P(vI)}, {P(vI+4)}"); A(f"v_pk_add_f32 {P(vI+2)}, {P(vI+2)}, {P(vI+6)}")
    A("s_waitcnt lgkmcnt(0)")
    A(f"v_pk_add_f32 {P(vI+8)}, {P(vI+8)}, {P(vI+12)}"); A(f"v_pk_add_f32 {P(vI+10)}, {P(vI+10)}, {P(vI+14)}")
    A(f"v_pk_add_f32 {P(vI)}, {P(vI)}, {P(vI+8)}"); A(f"v_pk_add_f32 {P(vI+2)}, {P(vI+2)}, {P(vI+10)}")
    add_resid(vI, vG)
    A("s_mov_b64 exec, 0x55"); A(f"global_store_dwordx4 v{vR3}, {Q4(vG)}, {pWS} {stf}"); A("s_mov_b64 exec, -1")
    stamp(8)
    unpack(vXF, vXF+1, vG); unpack(vXF+2, vXF+3, vG+2)
    A(f"v_mov_b32 v{vI+12}, 0"); A(f"v_mov_b32 v{vI+13}, {sTAG}"); A(f"v_mov_b32 v{vI+14}, 0"); A(f"v_mov_b32 v{vI+15}, {sTAG}")
    poll(inbox(vR4), tags2, first_mask=[-1,-1,-1,"s[66:67]"])
    stamp(9)
    sum_inbox()
    A(f"v_mov_b32_dpp v{vI}, v{sa} quad_perm:[0,0,2,2] row_mask:0xf bank_mask:0xf"); A(f"v_mov_b32_dpp v{vI+1}, v{sa} quad_perm:[1,1,3,3] row_mask:0xf bank_mask:0xf")
    A(f"v_mov_b32_dpp v{vI+2}, v{sb} quad_perm:[0,0,2,2] row_mask:0xf bank_mask:0xf"); A(f"v_mov_b32_dpp v{vI+3}, v{sb} quad_perm:[1,1,3,3] row_mask:0xf bank_mask:0xf")
    add_resid(vI, vI+4)
    A("s_mov_b64 exec, 0x55"); A(f"global_store_dword v{vR5}, v{vI+4}, {pOUT} {outf}")
    A(f"s_cmp_eq_u32 {sGP}, 3"); A("s_cbranch_scc1 L_done")
    A(f"global_store_dword v{vR5}, v{vI+6}, {pOUT} offset:32 {outf}")
    A(f"s_cmp_lg_u32 {sRR}, 0"); A("s_cbranch_scc1 L_done")
    A(f"s_add_u32 {sT0}, {sE}, 1"); A(f"v_mov_b32 v{vTM2}, {sT0}"); A(f"v_mov_b32 v{vTM3}, {WS_E}")
    A("s_mov_b64 exec, 1"); A(f"global_store_dword v{vTM3}, v{vTM2}, {pWS} {stf}")
    if enc:
        A("s_memrealtime s[90:91]"); A("s_waitcnt lgkmcnt(0)")
        A(f"s_sub_u32 {sT0}, s{70+2*enc[1]}, s{70+2*enc[0]}"); A(f"s_lshl_b32 {sT0}, {sT0}, 2"); A(f"s_min_u32 {sT0}, {sT0}, 100000")
        E.label("L_enc")
        A("s_memrealtime s[94:95]"); A("s_waitcnt lgkmcnt(0)")
        A(f"s_sub_u32 {sT1}, s94, s90"); A(f"s_cmp_lt_u32 {sT1}, {sT0}"); A("s_cbranch_scc1 L_enc")
    A("s_branch L_done")
    E.label("L_ffn_addr")
    A(f"v_lshrrev_b32 v{vTM}, 3, v{vLANE}"); A(f"v_and_b32 v{vTM2}, 7, v{vLANE}")
    A(f"v_lshlrev_b32 v{vR0}, 9, v{vTM}"); A(f"v_lshl_or_b32 v{vR0}, v{vTM2}, 4, v{vR0}"); A(f"s_add_u32 {sT0}, {sP0}, {WS_H}"); A(f"v_add_u32 v{vR0}, {sT0}, v{vR0}")
    A(f"v_mul_u32_u24 v{vR1}, 224, v{vTM}"); A(f"v_lshl_add_u32 v{vR1}, v{vTM2}, 2, v{vR1}"); A(f"v_add_u32 v{vR1}, {L_LN}, v{vR1}")
    ln_read_addr(vR2, L_LN)
    A(f"s_lshl_b32 {sT0}, {sW}, 5"); A(f"s_add_u32 {sT0}, {sT0}, {L_ACT}")
    A(f"v_lshlrev_b32 v{vR3}, 7, v{vG4}"); A(f"v_lshl_add_u32 v{vR3}, v{vN}, 1, v{vR3}"); A(f"v_add_u32 v{vR3}, {sT0}, v{vR3}")
    A(f"v_and_b32 v{vR4}, 1, v{vLANE}"); A(f"v_lshlrev_b32 v{vR4}, 7, v{vR4}"); A(f"v_lshl_add_u32 v{vR4}, v{vG4}, 3, v{vR4}"); A(f"v_add_u32 v{vR4}, {L_ACT}, v{vR4}")
    A(f"s_lshl_b32 {sT0}, {sW}, 16"); A(f"s_lshl_b32 {sT1}, {sIDX}, 7"); A(f"s_add_u32 {sT0}, {sT0}, {sT1}"); A(f"s_add_u32 {sT0}, {sT0}, {sP0}"); A(f"s_add_u32 {sT0}, {sT0}, {WS_D}")
    A(f"v_lshrrev_b32 v{vTM}, 3, v{vN}"); A(f"v_lshlrev_b32 v{vTM}, 12, v{vTM}"); A(f"v_lshl_or_b32 v{vTM}, v{vG4}, 14, v{vTM}")
    A(f"v_lshl_or_b32 v{vTM}, v{vTM2}, 4, v{vTM}"); A(f"v_add_u32 v{vR5}, {sT0}, v{vTM}")
    A("s_branch L_addr_done")
    if touch: E.label("L_pad_ffn"); A("s_branch L_ret_ffn")
    E.label("L_ffn")
    A(f"s_cmp_lg_u32 {sW}, 0"); A("s_cbranch_scc1 L_c_join")
    poll([f"global_load_dwordx4 {Q4(vI+4*u)}, v{vR0}, {pWS} offset:{u*128} {ldf}" for u in range(4)], tags2)
    stamp(7)
    layernorm([vI+2*u for u in range(7)], vO, vR1, 32, mid=(lambda: pad("ffn2")) if touch else None)
    A("s_waitcnt lgkmcnt(0)")
    E.label("L_c_join")
    A("s_barrier")
    def aread(i): A(f"ds_read_b128 {Q4(vF + 4*(i % NF))}, v{vR2} offset:{i*64}")
    for i in range(NF): aread(i)
    for i in range(14):
        A(f"s_waitcnt lgkmcnt({min(NF-1, 13-i)})")
        A(f"v_mfma_f32_16x16x32_bf16 {Q4(vS)}, {Q4(vF + 4*(i % NF))}, {Q4(vW1+4*i)}, {'0' if i==0 else Q4(vS)}")
        if i + NF < 14: aread(i+NF)
    for b in range(2): A(f"v_mov_b32 v{vO+4*b+1}, {sTAG}"); A(f"v_mov_b32 v{vO+4*b+3}, {sTAG}")
    A(f"v_add_u32 v{vR0}, {16*16384}, v{vR5}")
    A(f"v_cndmask_b32 v{vTM}, v{vS}, v{vS+1}, {sM1}")
    round_bf(vTM, vTM)
    A(f"v_mul_f32 v{vTM2}, {(LOG2E | 0x80000000):#x}, v{vTM}")
    A(f"v_exp_f32 v{vTM2}, v{vTM2}")
    A(f"v_add_f32 v{vTM2}, 1.0, v{vTM2}")
    A(f"v_rcp_f32 v{vTM2}, v{vTM2}")
    A(f"v_mul_f32 v{vTM}, v{vTM}, v{vTM2}")
    A(f"v_cvt_pk_bf16_f32 v{vTM}, v{vTM}, v{vTM}")
    A("s_mov_b32 exec_hi, 0"); A(f"ds_write_b16 v{vR3}, v{vTM}"); A("s_mov_b32 exec_hi, -1")
    A("s_waitcnt lgkmcnt(0)"); A("s_barrier")
    for ks in range(2): A(f"ds_read2_b64 {Q4(vF+4*ks)}, v{vR4} offset0:{ks*8} offset1:{ks*8+4}")
    zreg = [vW1+4*t for t in range(7)]
    for ks in range(2):
        A(f"s_waitcnt lgkmcnt({1-ks})")
        for t in (0,2,4,6,1,3,5):
            A(f"v_mfma_f32_16x16x32_bf16 {Q4(zreg[t])}, {Q4(vF+4*ks)}, {Q4(vW2+28*ks+4*t)}, {'0' if ks==0 else Q4(zreg[t])}")
    for b in range(2): SEL4(vO+4*b, zreg[0]+b, zreg[2]+b, zreg[4]+b, zreg[6]+b, vMX)
    for b in range(2):
        SEL4(vO+4*b+2, zreg[1]+b, zreg[3]+b, zreg[5]+b, vZ, vMX)
        A(f"global_store_dwordx4 v{vR5 if b == 0 else vR0}, {Q4(vO+4*b)}, {pWS} {stf}")
    stamp(8)
    E.label("L_done")
    if diag:
        stamp(10)
        A("s_mov_b64 exec, -1")
        A(f"s_lshl_b32 {sT0}, {sWG}, 2"); A(f"s_add_u32 {sT0}, {sT0}, {sW}"); A(f"s_lshl_b32 {sT0}, {sT0}, 7"); A(f"s_add_u32 {sT0}, {sT0}, {WS_ST}")
        A("s_getreg_b32 s100, hwreg(HW_REG_XCC_ID)")
        A("s_waitcnt lgkmcnt(0)")
        A(f"v_mov_b32 v{vTM}, {sT0}")
        A("s_mov_b64 exec, 1")
        for k in range(11): A(f"v_mov_b32 v{vW1+k}, s{70+2*k}")
        A(f"v_mov_b32 v{vW1+11}, s100"); A(f"v_mov_b32 v{vW1+12}, {sN}"); A(f"v_mov_b32 v{vW1+13}, {sROLE}"); A(f"v_mov_b32 v{vW1+14}, {sWG}"); A(f"v_mov_b32 v{vW1+15}, {sIDX}")
        for k in range(4): A(f"v_mov_b32 v{vW1+16+k}, s{92+2*k}")
        for q in range(5): A(f"global_store_dwordx4 v{vTM}, {Q4(vW1+4*q)}, {pWS} offset:{q*16}")
    E.label("L_end")
    A("s_endpgm")

    E.label("L_ffn_w")
    tall_addr(vX+1)
    for t in range(4): read_tall_tile(vX+1, vW1, t)
    for t in range(4): read_wide_tile(vX, vW2 + 28*(t>>1), t & 1)
    A("s_branch L_ffn_w_done")
    E.label("L_ld_ffn")
    tall_voffs(3584)
    A(f"s_mov_b64 s[48:49], s[{pW1[0]}:{pW1[1]}]"); A(f"s_mov_b32 s50, {448*1792*2}")
    A(f"s_lshl_b32 {sBASE}, {sIDX}, 7")
    for t in range(4):
        if t % 2 == 0: freecheck(2)
        tile_tall(3584, t, 16 if t < 3 else 8)
    A(f"s_mov_b64 s[48:49], s[{pW2[0]}:{pW2[1]}]")
    A(f"s_mul_i32 {sBASE}, {sIDX}, {64*896}"); A(f"s_add_u32 {sT2}, {sN}, 4")
    E.label("L_ld_w2")
    freecheck(1)
    tile_wide()
    A(f"s_cmp_lt_u32 {sN}, {sT2}"); A("s_cbranch_scc1 L_ld_w2")
    A("s_branch L_ld_loop")
    if forcepar is None:
        E.label("L_probe")
        A(f"s_load_dword s69, {pWS}, {WS_E}")
        A("s_mov_b64 exec, 1")
        for k,off in enumerate((WS_PRB, WS_PRB+8192, WS_B, WS_B+8192)):
            A(f"v_mov_b32 v{32+k}, {off}"); A(f"s_mov_b32 s{92+k}, 0")
        A("v_mov_b32 v36, 0"); A(f"s_mov_b32 {sCI}, {nprobe}")
        for k in range(4): A(f"global_atomic_add v37, v{32+k}, v36, {pWS} sc0")
        A("s_waitcnt vmcnt(0)")
        E.label("L_probe_loop")
        for k in range(4):
            A("s_memtime s[64:65]"); A("s_waitcnt lgkmcnt(0)")
            A(f"global_atomic_add v37, v{32+k}, v36, {pWS} sc0"); A("s_waitcnt vmcnt(0)")
            A("s_memtime s[66:67]"); A("s_waitcnt lgkmcnt(0)")
            A("s_sub_u32 s66, s66, s64"); A(f"s_min_u32 s66, s66, {clip}"); A(f"s_add_u32 s{92+k}, s{92+k}, s66")
        A(f"s_sub_u32 {sCI}, {sCI}, 1"); A(f"s_cmp_lg_u32 {sCI}, 0"); A("s_cbranch_scc1 L_probe_loop")
        A("s_cmp_gt_u32 s92, s93"); A(f"s_cselect_b32 {sT0}, 8192, 0")
        A("s_cmp_gt_u32 s94, s95"); A(f"s_cselect_b32 {sT1}, 8192, 0")
        make_tag(sT2, "s69")
        A(f"v_mov_b32 v32, {sT0}"); A(f"v_mov_b32 v33, {sT2}"); A(f"v_mov_b32 v34, {sT1}"); A(f"v_mov_b32 v35, {sT2}"); A(f"v_mov_b32 v36, {WS_PAR}")
        A(f"global_store_dwordx4 v36, v[32:35], {pWS} {stf}")
        A("s_mov_b64 exec, -1")
        A("s_branch L_ld_wo")

    body = E.finish()
    head = open("sequential_preLN__gqa_block_cached__dense_activation_silu__decode.s.ref").read().split("; Override launch")[0]
    src = head + f"""; One persistent launch: 256 workgroups (one per CU); wave 0 streams K/V into an LDS ring, waves 1-4 compute.
; @launch grid=(256,1,1) block=(320,1,1) lds={LDS}
.amdgcn_target "amdgcn-amd-amdhsa--gfx950"
.text
.globl {NAME}
.p2align 8
.type {NAME},@function
{NAME}:
{body}.section .rodata,"a"
.p2align 6
.amdhsa_kernel {NAME}
  .amdhsa_next_free_vgpr 256
  .amdhsa_next_free_sgpr 102
  .amdhsa_accum_offset 256
  .amdhsa_group_segment_fixed_size 0
  .amdhsa_kernarg_size 88
  .amdhsa_user_sgpr_count 2
  .amdhsa_user_sgpr_kernarg_segment_ptr 1
  .amdhsa_system_sgpr_workgroup_id_x 1
.end_amdhsa_kernel
"""
    return src, E.npad

if __name__ == "__main__":
    out = sys.argv[1]
    kw = json.loads(sys.argv[2]) if len(sys.argv) > 2 else {}
    src, npad = gen(**kw)
    open(out, "w").write(src)
    print("wrote", out, "lines", src.count("\n"), "pad states", npad)
```

```python
import sys, json, struct
from emit import Emitter

NAME = "sequential_preLN__gqa_block_cached__dense_activation_silu__decode_kernel"
def f2u(x): return struct.unpack("<I", struct.pack("<f", x))[0]

def gen(W=19, NS=59, diag=False, hilo=True, spin=1<<20, enc=None, NF=5, ldst=None, qwait=2, forcepar=None, nprobe=3, clip=2000,
        touch=0, qtouch=1, lastfast=1, outf='sc1', onetag=1, nap=0, grp=4, align=1):
    E = Emitter(); A = E
    pol = "nt"; stf = ldf = "sc1"
    NSLOT = 9; SLOT = 16384; RING = NSLOT*SLOT; LDS = 163840
    L_FLAG = RING; L_CONS = RING+16; L_RED = RING+256; L_OP = RING+512; L_ACT = RING+768; L_QW = RING+1024; L_LN = RING+5120
    WS_E = 0; WS_PAR = 0x800; WS_CNT = 0x1000; WS_H = 0x4000; WS_Q = 0x8000; WS_PRB = 0x10000; WS_D = 0x80000; WS_A = 0x100000; WS_B = 0x200000; WS_ST = 0x400000
    C_SCALE = f2u(1.4426950408889634/16.0); LOG2E = f2u(1.4426950408889634); INV448 = f2u(1.0/448.0); EPS = f2u(1e-5)
    EXTRA = 32; POOL = 2048-32*NS+EXTRA; TL = 128-2*NS
    assert 12 <= W <= 32 and NF <= 5
    sWG="s2"; sWAVE="s3"
    pX="s[4:5]"; pK=(6,7); pV=(8,9); pWQ=(10,11); pWO=(12,13); pW1=(16,17); pW2=(18,19); pOUT="s[20:21]"; pWS="s[24:25]"
    sG="s26"; sJ="s27"; sROLE="s28"; sN="s31"; sSLOT="s32"; sKNOWN="s33"; sT0="s34"; sT1="s35"; sT2="s36"
    sCI="s37"; sSPIN="s38"; sIDX="s39"; sNS="s63"
    vK=[4+i for i in range(8)]; vV=[12+i for i in range(4)]; vLIN=16; vT=[17,18]; vFL=21; vTMP=22; vC=24; vCA=28; vONE=29; vCL=[30,31]
    srdK="s[40:43]"; srdV="s[44:47]"; srdW="s[48:51]"; srdZ="s[52:55]"
    sCUR="s56"; sGB="s57"; sOFF="s58"; sCLM="s59"; sBASE="s61"; sFLOOR="s62"
    sB="s29"; sHKV="s30"; sW="s40"; sTAG="s41"; sM1="s[42:43]"; sM2="s[44:45]"; sC="s46"; sE="s47"; sRR="s48"; sTOT="s49"
    sCK=["s[50:51]","s[52:53]","s[54:55]","s[56:57]"]; sCOL="s58"; sGP="s59"; sP0="s60"; sP1="s61"; sWRM="s62"
    vLANE=0; vN=1; vG4=2; vFLG=3; vCONS=4; vTM=5; vTM2=6; vTM3=7
    vM=8; vMC=9; vL=10; vMX=11
    vKB=[12,13,14,15]; vVB=[16,17,18,19]; vAD=[20,21,22,23]
    vS=24; vP=32; vO=36; vQ=52; vF=84; vAA=104; vAI=105; vBA=106
    vWO=108; vW1=136; vW2=192; vX=248; vXH=254
    xr1 = [vWO+u for u in range(7)]; vLW1 = vWO+24

    uid=[0]
    def lab(p): uid[0]+=1; return f"L_{p}_{uid[0]}"
    def P(r): return f"v[{r}:{r+1}]"
    def Q4(r): return f"v[{r}:{r+3}]"
    def stamp(k):
        if not diag and not (enc and k in (0, enc[0], enc[1])): return
        A(f"s_memrealtime s[{70+2*k}:{71+2*k}]")
    def slot_advance():
        A(f"s_add_u32 {sN}, {sN}, 1"); A(f"s_add_u32 {sSLOT}, {sSLOT}, {SLOT}")
        A(f"s_cmp_eq_u32 {sSLOT}, {RING}"); A(f"s_cselect_b32 {sSLOT}, 0, {sSLOT}")
    def spin_guard(): A(f"s_sub_u32 {sSPIN}, {sSPIN}, 1"); A("s_cbranch_scc1 L_end")
    def one_lane(ins): A("s_mov_b64 exec, 1"); A(ins); A("s_mov_b64 exec, -1")
    def share_consts():
        A(f"s_sub_u32 {sT0}, {sROLE}, 8"); A(f"s_lshl_b32 {sIDX}, {sG}, 1"); A(f"s_add_u32 {sIDX}, {sIDX}, {sT0}")
        A(f"s_cmp_lt_u32 {sT0}, 2"); A(f"s_cselect_b32 {sIDX}, {sIDX}, 99")
        A(f"s_cselect_b32 {sNS}, {NS-4}, {NS}"); A(f"s_cmp_lt_u32 {sROLE}, 4"); A(f"s_cselect_b32 {sNS}, {NS-2}, {sNS}")
    def make_tag(dst, e): A(f"s_mul_i32 {dst}, {e}, 0x9e3779b1"); A(f"s_add_u32 {dst}, {dst}, 0x7f4a7c15")
    pads = []
    def pad(name):
        sk = lab("padskip"); A(f"s_branch {sk}"); E.label(f"L_pad_{name}"); A(f"s_branch L_ret_{name}"); E.label(sk)
    def touch_pad(name): A(f"s_branch L_pad_{name}"); E.label(f"L_ret_{name}")

    A(f"s_cmp_ge_u32 {sWG}, 256"); A("s_cbranch_scc1 L_end")
    stamp(0)
    A("s_load_dwordx16 s[4:19], s[0:1], 0"); A("s_load_dwordx4 s[20:23], s[0:1], 64"); A("s_load_dwordx2 s[24:25], s[0:1], 80")
    A("v_lshrrev_b32 v1, 6, v0"); A("v_and_b32 v0, 63, v0"); A(f"v_readfirstlane_b32 {sWAVE}, v1")
    A(f"s_lshr_b32 {sG}, {sWG}, 4"); A(f"s_and_b32 {sJ}, {sWG}, 15")
    A(f"s_lshr_b32 {sT0}, {sJ}, 1"); A(f"s_and_b32 {sT0}, {sT0}, 4"); A(f"s_and_b32 {sROLE}, {sJ}, 3"); A(f"s_add_u32 {sROLE}, {sROLE}, {sT0}")
    A(f"s_sub_u32 {sROLE}, {sROLE}, {sG}"); A(f"s_and_b32 {sROLE}, {sROLE}, 7")
    A(f"s_add_u32 {sT0}, {sROLE}, 4"); A(f"s_add_u32 {sT1}, {sROLE}, 8"); A(f"s_cmp_lt_u32 {sROLE}, 4"); A(f"s_cselect_b32 {sROLE}, {sROLE}, {sT1}")
    A(f"s_bitcmp1_b32 {sJ}, 2"); A(f"s_cselect_b32 {sROLE}, {sROLE}, {sT0}")
    A(f"s_mov_b32 {sN}, 0"); A(f"s_mov_b64 s[32:33], 0"); A(f"s_mov_b32 {sCI}, 0"); A(f"s_mov_b32 {sSPIN}, {spin}")
    A(f"v_mov_b32 v3, {L_FLAG}"); A(f"v_lshl_add_u32 v1, v0, 2, v3"); A("v_mov_b32 v2, 0")
    A("s_mov_b64 exec, 2"); A("v_bfrev_b32 v2, -2"); A("s_mov_b64 exec, 0x1ff"); A("ds_write_b32 v1, v2"); A("s_mov_b64 exec, -1")
    A(f"v_lshrrev_b32 v1, 5, v0"); A(f"v_mul_u32_u24 v1, 896, v1"); A(f"v_and_b32 v2, 31, v0"); A(f"v_lshl_add_u32 v{vLW1}, v2, 2, v1")
    A("s_waitcnt lgkmcnt(0)")
    A("s_barrier")
    A(f"s_cmp_eq_u32 {sWAVE}, 0"); A("s_cbranch_scc1 L_loader")
    A(f"s_load_dword {sE}, {pWS}, {WS_E}")
    A(f"s_cmp_ge_u32 {sROLE}, 4"); A("s_cbranch_scc1 L_consumer")
    for u in range(7): A(f"global_load_dword v{xr1[u]}, v{vLW1}, {pX} offset:{u*128}")
    A("s_branch L_qprod")

    def publish(back):
        A(f"s_sub_u32 {sT0}, {sN}, {back}"); A(f"s_max_i32 {sT0}, {sT0}, {sFLOOR}")
        A(f"v_mov_b32 v{vTMP}, {sT0}"); one_lane(f"ds_write_b32 v{vFL}, v{vTMP}")
    def throttle(i):
        if i % grp == grp-1:
            A(f"s_waitcnt vmcnt({W})")
            if i+1+16 >= W and (i+1-grp+16 < W or i < grp): publish(1)
    def tile_rows(specs, pol=pol):
        for i,(srd,vo,so) in enumerate(specs):
            if i % 4 == 0:
                A(f"s_add_u32 m0, {sSLOT}, {i*1024}" if i else f"s_mov_b32 m0, {sSLOT}")
                A(f"s_add_u32 {sOFF}, {sBASE}, {so}" if so else f"s_mov_b32 {sOFF}, {sBASE}")
            A(f"buffer_load_dwordx4 v{vo}, {srd}, {sOFF} offen offset:{(i%4)*1024} {pol} lds")
            throttle(i)
        slot_advance()
    def tile_tall(rowstride, t, nvalid):
        for i in range(16):
            A(f"s_add_u32 m0, {sSLOT}, {i*1024}" if i else f"s_mov_b32 m0, {sSLOT}")
            A(f"s_add_u32 {sOFF}, {sBASE}, {(t*128+i*8)*rowstride}")
            A(f"buffer_load_dwordx4 v{vT[i&1]}, {srdW if i < nvalid else srdZ}, {sOFF} offen {pol} lds")
            throttle(i)
        slot_advance()
    def tile_wide(pol=pol):
        tile_rows([(srdW if i < 14 else srdZ, vLIN, i*1024) for i in range(16)], pol)
        A(f"s_add_u32 {sBASE}, {sBASE}, 14336")
    def tall_voffs(stride):
        A("v_lshrrev_b32 v1, 3, v0"); A("v_and_b32 v2, 7, v0"); A("v_and_b32 v3, 2, v1"); A("v_xor_b32 v2, v2, v3"); A("v_lshlrev_b32 v2, 4, v2")
        A(f"v_mul_u32_u24 v3, {stride}, v1"); A(f"v_add_u32 v{vT[0]}, v3, v2"); A("v_xor_b32 v2, 64, v2"); A(f"v_add_u32 v{vT[1]}, v3, v2")
    def freecheck(k):
        ok = lab("free"); lp = lab("freepoll")
        A(f"s_add_u32 {sT0}, {sKNOWN}, {NSLOT-k}"); A(f"s_cmp_ge_u32 {sT0}, {sN}"); A(f"s_cbranch_scc1 {ok}")
        E.label(lp)
        A(f"ds_read_b128 {Q4(vC)}, v{vFL} offset:16")
        spin_guard()
        A("s_waitcnt lgkmcnt(0)")
        A(f"v_min3_u32 v{vC}, v{vC}, v{vC+1}, v{vC+2}"); A(f"v_min_u32 v{vC}, v{vC}, v{vC+3}")
        A(f"v_readfirstlane_b32 {sKNOWN}, v{vC}")
        A(f"s_add_u32 {sT0}, {sKNOWN}, {NSLOT-k}"); A(f"s_cmp_ge_u32 {sT0}, {sN}"); A(f"s_cbranch_scc1 {ok}")
        A("s_sleep 1"); A(f"s_branch {lp}")
        E.label(ok)
    def claim(p): one_lane(f"global_atomic_add v{vCL[p]}, v{vCA}, v{vONE}, {pWS} sc0")

    E.label("L_loader")
    A("s_setprio 3")
    A(f"v_mov_b32 v{vFL}, v3"); A(f"v_lshlrev_b32 v{vLIN}, 4, v0"); A(f"s_mov_b32 {sFLOOR}, 0")
    A("s_mov_b32 s50, 3670016"); A("s_mov_b32 s51, 0x20000")
    A(f"s_mov_b64 s[52:53], s[{pK[0]}:{pK[1]}]"); A("s_mov_b32 s54, 0"); A("s_mov_b32 s55, 0x20000")
    A(f"s_cmp_ge_u32 {sROLE}, 4"); A("s_cbranch_scc1 L_ld_noq")
    tall_voffs(8192)
    A(f"s_mov_b64 s[48:49], s[{pWQ[0]}:{pWQ[1]}]")
    A(f"s_and_b32 {sOFF}, {sG}, 7"); A(f"s_lshl_b32 {sOFF}, {sOFF}, 3"); A(f"s_lshr_b32 {sT0}, {sG}, 3"); A(f"s_lshl_b32 {sT0}, {sT0}, 2")
    A(f"s_add_u32 {sOFF}, {sOFF}, {sT0}"); A(f"s_add_u32 {sOFF}, {sOFF}, {sROLE}"); A(f"s_lshl_b32 {sOFF}, {sOFF}, 7")
    A("s_mov_b32 m0, 0")
    E.label("L_ld_q")
    for i in range(2):
        A(f"buffer_load_dwordx4 v{vT[i]}, {srdW}, {sOFF} offen {pol} lds")
        A(f"s_add_u32 {sOFF}, {sOFF}, {8*8192}"); A("s_add_u32 m0, m0, 1024")
    A(f"s_cmp_lt_u32 m0, {56*1024}"); A("s_cbranch_scc1 L_ld_q")
    A(f"s_mov_b32 {sN}, 4"); A(f"s_mov_b32 {sSLOT}, {4*SLOT}"); A(f"s_mov_b32 {sFLOOR}, 4")
    A(f"v_mov_b32 v{vTMP}, 4"); A("s_waitcnt vmcnt(0)"); one_lane(f"ds_write_b32 v{vFL}, v{vTMP}")
    E.label("L_ld_noq")
    if forcepar is None:
        A(f"s_cmp_eq_u32 {sWG}, {15*16 + 3}"); A("s_cbranch_scc1 L_probe")
    E.label("L_ld_wo")
    A(f"s_mov_b64 s[48:49], s[{pWO[0]}:{pWO[1]}]")
    A(f"s_and_b32 {sBASE}, {sWG}, 127"); A(f"s_mul_i32 {sBASE}, {sBASE}, {32*896}")
    E.label("L_ld_wo2")
    tile_wide(pol="")
    A(f"s_bitcmp1_b32 {sN}, 0"); A("s_cbranch_scc1 L_ld_wo2")
    A("v_lshrrev_b32 v1, 5, v0"); A("v_and_b32 v2, 31, v0")
    A("v_xor_b32 v3, v2, v1"); A("v_lshlrev_b32 v3, 4, v3"); A("v_lshl_or_b32 v3, v1, 9, v3")
    for i in range(8): A(f"v_xor_b32 v{vK[i]}, {i*32}, v3")
    A("v_lshlrev_b32 v3, 1, v1"); A("v_xor_b32 v3, v2, v3"); A("v_lshlrev_b32 v3, 4, v3"); A("v_lshl_or_b32 v3, v1, 9, v3")
    for i in range(4): A(f"v_xor_b32 v{vV[i]}, {i*64}, v3")
    share_consts()
    A(f"s_lshl_b32 {sGB}, {sG}, 24")
    A(f"s_lshl_b32 {sCUR}, {sJ}, 7")
    A(f"s_lshl_b32 {sT0}, {sG}, 8"); A(f"s_add_u32 {sT0}, {sT0}, {WS_CNT}"); A(f"v_mov_b32 v{vCA}, {sT0}"); A(f"v_mov_b32 v{vONE}, 1")
    A(f"s_mov_b64 s[40:41], s[{pK[0]}:{pK[1]}]"); A("s_mov_b32 s42, 0x10000000"); A("s_mov_b32 s43, 0x20000")
    A(f"s_mov_b64 s[44:45], s[{pV[0]}:{pV[1]}]"); A("s_mov_b32 s46, 0x10000000"); A("s_mov_b32 s47, 0x20000")
    A(f"s_cmp_lt_u32 {sIDX}, 28"); A(f"s_cbranch_scc1 L_ld_ffn")
    E.label("L_ld_loop")
    if diag:
        for k,c in enumerate(ldst or (0,2,3,4,6,8,16,32,NS-5)):
            sk=lab("ls"); A(f"s_cmp_lg_u32 {sCI}, {c}"); A(f"s_cbranch_scc1 {sk}"); A(f"s_memrealtime s[{72+2*k}:{73+2*k}]"); A("s_waitcnt lgkmcnt(0)"); E.label(sk)
    A(f"s_add_u32 {sCI}, {sCI}, 1")
    A(f"s_lshl_b32 {sBASE}, {sCUR}, 13"); A(f"s_add_u32 {sBASE}, {sBASE}, {sGB}")
    for p,(srd,vo) in enumerate(((srdK,vK),(srdV,vV))):
        freecheck(1)
        sk = lab("nocl"); A(f"s_cmp_lt_u32 {sCI}, {sNS}"); A(f"s_cbranch_scc1 {sk}")
        claim(p)
        E.label(sk)
        tile_rows([(srd, vo[i%len(vo)], i*1024) for i in range(16)])
    A(f"s_add_u32 {sCUR}, {sCUR}, 2")
    A(f"s_cmp_lt_u32 {sCI}, {sNS}"); A("s_cbranch_scc1 L_ld_loop")
    E.label("L_ld_dyn")
    for p in range(2):
        A(f"v_readfirstlane_b32 {sCLM}, v{vCL[p]}")
        A(f"s_cmp_ge_u32 {sCLM}, {POOL}"); A("s_cbranch_scc1 L_ld_dyn_done")
        A(f"s_cmp_lt_u32 {sCLM}, {EXTRA}"); A(f"s_cbranch_scc1 L_ld_shed{p}")
        A(f"s_sub_u32 {sCLM}, {sCLM}, {EXTRA}")
        A(f"s_mul_hi_u32 {sT0}, {sCLM}, {-(-(1<<32)//TL)}"); A(f"s_mul_i32 {sT0}, {sT0}, {2*NS}"); A(f"s_add_u32 {sCUR}, {sCLM}, {sT0}"); A(f"s_add_u32 {sCUR}, {sCUR}, {2*NS}")
        E.label(f"L_ld_unit{p}")
        freecheck(1)
        claim(p)
        A(f"s_lshr_b32 {sBASE}, {sCUR}, 1"); A(f"s_lshl_b32 {sBASE}, {sBASE}, 14"); A(f"s_and_b32 {sT0}, {sCUR}, 1"); A(f"s_lshl_b32 {sT0}, {sT0}, 12")
        A(f"s_add_u32 {sBASE}, {sBASE}, {sT0}"); A(f"s_add_u32 {sBASE}, {sBASE}, {sGB}")
        tile_rows([(srdK, vK[i], i*2048) for i in range(8)] + [(srdV, vV[i%4], i*2048) for i in range(8)])
    A("s_branch L_ld_dyn")
    E.label("L_ld_dyn_done")
    A(f"v_mov_b32 v{vTMP}, {sN}"); one_lane(f"ds_write_b32 v{vFL}, v{vTMP} offset:4")
    for c,back in ((16,1),(0,0)):
        A(f"s_waitcnt vmcnt({c})"); publish(back)
    if diag:
        A("s_mov_b64 exec, 1"); A("s_memrealtime s[90:91]")
        A(f"s_lshl_b32 {sT0}, {sWG}, 6"); A(f"s_add_u32 {sT0}, {sT0}, {WS_ST+0x40000}"); A(f"v_mov_b32 v46, {sT0}")
        A("s_waitcnt lgkmcnt(0)")
        for k in range(11): A(f"v_mov_b32 v{32+k}, s{70+2*k}")
        A(f"v_mov_b32 v43, {sSPIN}")
        for q in range(3): A(f"global_store_dwordx4 v46, v[{32+4*q}:{35+4*q}], {pWS} offset:{q*16}")
    A("s_waitcnt lgkmcnt(0)")
    A("s_endpgm")
    for p in range(2):
        E.label(f"L_ld_shed{p}")
        A(f"s_lshr_b32 {sT0}, {sCLM}, 3"); A(f"s_add_u32 {sT0}, {sT0}, 4"); A(f"s_and_b32 {sT1}, {sCLM}, 7"); A(f"s_add_u32 {sT1}, {sT1}, {2*(NS-4)}")
        A(f"s_bfe_u32 {sT2}, {sCLM}, 0x20002"); A(f"s_and_b32 {sCUR}, {sCLM}, 3"); A(f"s_add_u32 {sCUR}, {sCUR}, {2*(NS-2)+4*128}")
        A(f"s_cmp_lt_u32 {sCLM}, 16"); A(f"s_cselect_b32 {sT0}, {sT0}, {sT2}"); A(f"s_cselect_b32 {sCUR}, {sT1}, {sCUR}")
        A(f"s_add_u32 {sT0}, {sT0}, {sG}"); A(f"s_and_b32 {sT1}, {sT0}, 3"); A(f"s_bfe_u32 {sT0}, {sT0}, 0x10002"); A(f"s_lshl_b32 {sT0}, {sT0}, 3"); A(f"s_add_u32 {sT0}, {sT0}, {sT1}")
        A(f"s_lshl_b32 {sT0}, {sT0}, 7"); A(f"s_add_u32 {sCUR}, {sCUR}, {sT0}")
        A(f"s_branch L_ld_unit{p}")

    def SEL4(dst, a, b, c, d, t):
        A(f"v_cndmask_b32 v{dst}, v{a}, v{b}, {sM1}"); A(f"v_cndmask_b32 v{t}, v{c}, v{d}, {sM1}"); A(f"v_cndmask_b32 v{dst}, v{dst}, v{t}, {sM2}")
    def xrow(op, regs, tmps):
        for sw in ("v_permlane16_swap_b32","v_permlane32_swap_b32"):
            for r,t in zip(regs,tmps): A(f"v_mov_b32 v{t}, v{r}")
            for r,t in zip(regs,tmps): A(f"{sw} v{r}, v{t}")
            for r,t in zip(regs,tmps): A(f"{op} v{r}, v{r}, v{t}")
    def round_bf(dst, src): A(f"v_cvt_pk_bf16_f32 v{dst}, v{src}, v{src}"); A(f"v_and_b32 v{dst}, 0xffff0000, v{dst}")
    def unpack(lo, hi, src): A(f"v_lshlrev_b32 v{lo}, 16, v{src}"); A(f"v_and_b32 v{hi}, 0xffff0000, v{src}")
    def pub_cons():
        slot_advance()
        A(f"v_mov_b32 v{vTM}, {sN}"); one_lane(f"ds_write_b32 v{vCONS}, v{vTM}")
    def wait_tile(fin=None):
        ok = lab("have"); lp = lab("poll")
        if fin: A(f"s_cmp_eq_u32 {sTOT}, {sN}"); A(f"s_cbranch_scc1 {fin}")
        A(f"s_cmp_gt_u32 {sKNOWN}, {sN}"); A(f"s_cbranch_scc1 {ok}")
        E.label(lp)
        A(f"ds_read_b64 {P(vAD[0])}, v{vFLG}")
        spin_guard()
        A("s_waitcnt lgkmcnt(0)")
        A(f"v_readfirstlane_b32 {sKNOWN}, v{vAD[0]}")
        if fin:
            A(f"v_readfirstlane_b32 {sTOT}, v{vAD[1]}")
            nw = lab("nw")
            A(f"s_cmp_ge_u32 {sTOT}, {sWRM}"); A(f"s_cbranch_scc1 {nw}")
            A(f"s_mov_b32 {sWRM}, 0"); A(f"global_load_dword v{vX+2}, v{vX+3}, {pWS} {ldf}")
            E.label(nw)
            A(f"s_cmp_eq_u32 {sTOT}, {sN}"); A(f"s_cbranch_scc1 {fin}")
        A(f"s_cmp_gt_u32 {sKNOWN}, {sN}"); A(f"s_cbranch_scc1 {ok}")
        if nap or not fin: A("s_sleep 1")
        A(f"s_branch {lp}")
        E.label(ok)
    def poll(loads, tags, first_mask=None):
        lp = lab("gpoll"); n = len(loads)
        for i in range(n): A(f"s_mov_b64 {sCK[i]}, {first_mask[i] if first_mask else -1}")
        E.label(lp)
        for i,l in enumerate(loads):
            sk = lab("sk")
            A(f"s_mov_b64 exec, {sCK[i]}"); A(f"s_cbranch_execz {sk}"); A(l); E.label(sk)
        A("s_mov_b64 exec, -1")
        spin_guard()
        A("s_waitcnt vmcnt(0)")
        for i in range(n):
            A(f"v_cmp_ne_u32 {sCK[i]}, {sTAG}, v{tags[i][0]}")
            for t in tags[i][1:]:
                A(f"v_cmp_ne_u32 vcc, {sTAG}, v{t}"); A(f"s_or_b64 {sCK[i]}, {sCK[i]}, vcc")
        A(f"s_or_b64 vcc, {sCK[0]}, {sCK[min(1,n-1)]}")
        for i in range(2, n): A(f"s_or_b64 vcc, vcc, {sCK[i]}")
        A(f"s_cbranch_scc1 {lp}")
    def layernorm(xr, f, lnbase, stride, mid=None):
        s1=vTM; t=vTM2; mu=vX; a=vX+2; b=vX+4
        for u in range(7): unpack(f+2*u, f+2*u+1, xr[u])
        A(f"v_pk_add_f32 {P(a)}, {P(f)}, {P(f+2)}"); A(f"v_pk_add_f32 {P(b)}, {P(f+4)}, {P(f+6)}")
        A(f"v_pk_add_f32 {P(a)}, {P(a)}, {P(f+8)}"); A(f"v_pk_add_f32 {P(b)}, {P(b)}, {P(f+10)}")
        A(f"v_pk_add_f32 {P(a)}, {P(a)}, {P(f+12)}"); A(f"v_pk_add_f32 {P(a)}, {P(a)}, {P(b)}")
        A(f"v_add_f32 v{s1}, v{a}, v{a+1}")
        red32 = [f"v_add_f32_dpp v{s1}, v{s1}, v{s1} row_ror:{k} row_mask:0xf bank_mask:0xf" for k in (8,4,2,1)]
        red32 += [f"v_mov_b32 v{t}, v{s1}", f"v_permlane16_swap_b32 v{s1}, v{t}", f"v_add_f32 v{s1}, v{s1}, v{t}"]
        for l in red32: A(l)
        A(f"v_mul_f32 v{mu}, {INV448:#x}, v{s1}")
        NEG = "op_sel_hi:[1,0] neg_lo:[0,1] neg_hi:[0,1]"
        A(f"v_pk_add_f32 {P(b)}, {P(f)}, {P(mu)} {NEG}")
        A(f"v_pk_mul_f32 {P(a)}, {P(b)}, {P(b)}")
        for u in range(1,7):
            A(f"v_pk_add_f32 {P(b)}, {P(f+2*u)}, {P(mu)} {NEG}")
            A(f"v_pk_fma_f32 {P(a)}, {P(b)}, {P(b)}, {P(a)}")
        A(f"v_add_f32 v{s1}, v{a}, v{a+1}")
        round_bf(mu, mu)
        fill = [f"v_pk_add_f32 {P(f+2*u)}, {P(f+2*u)}, {P(mu)} {NEG}" for u in range(7)] + [f"v_cvt_pk_bf16_f32 v{xr[u]}, v{f+2*u}, v{f+2*u+1}" for u in range(7)]
        for u in range(7): fill += [f"v_lshlrev_b32 v{f+2*u}, 16, v{xr[u]}", f"v_and_b32 v{f+2*u+1}, 0xffff0000, v{xr[u]}"]
        rb = [f"v_cvt_pk_bf16_f32 v{s1}, v{s1}, v{s1}", f"v_and_b32 v{s1}, 0xffff0000, v{s1}"]
        chain = red32 + [f"v_mul_f32 v{s1}, {INV448:#x}, v{s1}"] + rb + [f"v_add_f32 v{s1}, {EPS:#x}, v{s1}"] + rb + [f"v_sqrt_f32 v{s1}, v{s1}"] + rb + [f"v_rcp_f32 v{a}, v{s1}"]
        while chain or fill:
            for _ in range(2):
                if fill: A(fill.pop(0))
            if chain: A(chain.pop(0))
        if mid: mid()
        for u in range(7): A(f"v_pk_mul_f32 {P(f+2*u)}, {P(f+2*u)}, {P(a)} op_sel_hi:[1,0]")
        for u in range(7):
            A(f"v_cvt_pk_bf16_f32 v{xr[u]}, v{f+2*u}, v{f+2*u+1}")
            A(f"ds_write_b32 v{lnbase}, v{xr[u]} offset:{u*stride}")
    def ln_read_addr(rd, base):
        A(f"v_and_b32 v{rd}, 1, v{vLANE}"); A(f"v_mul_u32_u24 v{rd}, 896, v{rd}")
        A(f"v_lshl_add_u32 v{rd}, v{vG4}, 4, v{rd}"); A(f"v_add_u32 v{rd}, {base}, v{rd}")
    def tall_addr(dst):
        A(f"v_lshrrev_b32 v{vTM}, 3, v{vN}")
        A(f"v_and_b32 v{vTM2}, 1, v{vG4}"); A(f"v_lshl_or_b32 v{vTM}, v{vTM2}, 1, v{vTM}")
        A(f"v_xor_b32 v{vTM}, {sW}, v{vTM}"); A(f"v_lshlrev_b32 v{vTM}, 5, v{vTM}")
        A(f"v_and_b32 v{vTM2}, 3, v{vN}"); A(f"v_lshl_or_b32 v{vTM}, v{vTM2}, 3, v{vTM}")
        A(f"v_lshrrev_b32 v{vTM2}, 2, v{vN}"); A(f"v_lshl_or_b32 v{vTM}, v{vTM2}, 7, v{vTM}")
        A(f"v_lshl_or_b32 v{dst}, v{vG4}, 10, v{vTM}")
    def wide_addr(dst):
        A(f"v_lshrrev_b32 v{vTM}, 2, v{vN}"); A(f"v_lshl_add_u32 v{vTM}, v{vG4}, 2, v{vTM}"); A(f"v_mul_u32_u24 v{vTM}, 896, v{vTM}")
        A(f"v_and_b32 v{vTM2}, 3, v{vN}"); A(f"v_lshl_add_u32 v{vTM}, v{vTM2}, 3, v{vTM}")
        A(f"s_mul_i32 {sT0}, {sW}, 224"); A(f"v_add_u32 v{dst}, {sT0}, v{vTM}")
    def read_tall_tile(base, dstreg, t):
        wait_tile()
        A(f"v_add_u32 v{vAD[0]}, {sSLOT}, v{base}")
        for s in range(4 if t < 3 else 2):
            for h2 in range(2):
                A(f"ds_read_b64_tr_b16 {P(dstreg + 4*(4*t+s) + 2*h2)}, v{vAD[0]} offset:{s*4096+h2*512}")
        A("s_waitcnt lgkmcnt(0)")
        pub_cons()
    def read_wide_tile(base, dstreg, half):
        wait_tile()
        A(f"v_add_u32 v{vAD[0]}, {sSLOT}, v{base}")
        for tt in range(7): A(f"ds_read_b64_tr_b16 {P(dstreg + 4*tt + 2*half)}, v{vAD[0]} offset:{tt*32}")
        A("s_waitcnt lgkmcnt(0)")
        pub_cons()
    def basic_setup():
        A(f"s_sub_u32 {sW}, {sWAVE}, 1"); A(f"s_lshr_b32 {sB}, {sG}, 3"); A(f"s_and_b32 {sHKV}, {sG}, 7")
        A(f"v_and_b32 v{vN}, 15, v{vLANE}"); A(f"v_lshrrev_b32 v{vG4}, 4, v{vLANE}")
        A(f"s_lshl_b32 {sT0}, {sW}, 2"); A(f"s_add_u32 {sT0}, {sT0}, {L_CONS}"); A(f"v_mov_b32 v{vCONS}, {sT0}")
        A("s_mov_b32 s42, 0xffff0000"); A("s_mov_b32 s43, s42")

    E.label("L_qprod")
    f14 = vWO+8; vLR = vWO+25; vTA = vWO+26; vQA = vWO+27
    basic_setup()
    A(f"s_or_b32 {sT0}, {sROLE}, {sW}"); A(f"s_cmp_lg_u32 {sT0}, 0"); A("s_cbranch_scc1 L_noinit")
    A(f"s_lshl_b32 {sT0}, {sG}, 8"); A(f"s_add_u32 {sT0}, {sT0}, {WS_CNT}")
    A(f"v_mov_b32 v{vTM2}, {sT0}"); A(f"v_mov_b32 v{vTM3}, 0")
    one_lane(f"global_store_dword v{vTM2}, v{vTM3}, {pWS} {stf}")
    E.label("L_noinit")
    A(f"s_lshl_b32 {sT2}, {sW}, 11"); A(f"s_add_u32 {sT2}, {sT2}, {L_LN}")
    A(f"v_add_u32 v{vLW1}, {sT2}, v{vLW1}")
    ln_read_addr(vLR, sT2)
    tall_addr(vTA)
    A(f"s_lshl_b32 {sT0}, {sB}, 2"); A(f"s_add_u32 {sT0}, {sT0}, {sROLE}"); A(f"s_lshl_b32 {sT0}, {sT0}, 2"); A(f"s_add_u32 {sT0}, {sT0}, {sW}")
    A(f"s_lshl_b32 {sT0}, {sT0}, 6"); A(f"s_lshl_b32 {sT1}, {sHKV}, 11"); A(f"s_add_u32 {sT0}, {sT0}, {sT1}"); A(f"s_add_u32 {sT0}, {sT0}, {WS_Q}")
    A(f"v_lshlrev_b32 v{vQA}, 2, v{vN}"); A(f"v_lshl_add_u32 v{vQA}, v{vG4}, 14, v{vQA}"); A(f"v_add_u32 v{vQA}, {sT0}, v{vQA}")
    if qtouch: touch_pad("q")
    A("s_waitcnt vmcnt(0) lgkmcnt(0)")
    stamp(12)
    layernorm(xr1, f14, vLW1, 128, mid=(lambda: pad("q")) if qtouch else None)
    make_tag(sTAG, sE); A(f"v_mov_b32 v{vX+1}, {sTAG}")
    A("s_waitcnt lgkmcnt(0)")
    stamp(13)
    for s in range(14): A(f"ds_read_b128 {Q4(vW2+4*s)}, v{vLR} offset:{s*64}")
    A(f"s_mov_b32 {sN}, 3"); wait_tile()
    stamp(14)
    for s in range(14):
        for h2 in range(2): A(f"ds_read_b64_tr_b16 {P(vW1 + 4*s + 2*h2)}, v{vTA} offset:{s*4096+h2*512}")
        if s % 4 == 3 or s == 13:
            A(f"s_waitcnt lgkmcnt(0)")
            for k in range(s - s % 4, s+1):
                A(f"v_mfma_f32_16x16x32_bf16 {Q4(vS)}, {Q4(vW2+4*k)}, {Q4(vW1+4*k)}, {'0' if k==0 else Q4(vS)}")
    A(f"s_mov_b32 {sSLOT}, {3*SLOT}"); pub_cons()
    A(f"v_cndmask_b32 v{vTM}, v{vS}, v{vS+1}, {sM1}")
    A(f"v_mov_b32_dpp v{vTM2}, v{vTM} quad_perm:[1,0,3,2] row_mask:0xf bank_mask:0xf")
    A(f"v_cvt_pk_bf16_f32 v{vX}, v{vTM}, v{vTM2}")
    A("s_mov_b64 exec, 0x55555555")
    A(f"global_store_dwordx2 v{vQA}, {P(vX)}, {pWS} {stf}")
    A("s_mov_b64 exec, -1")
    stamp(1)

    E.label("L_consumer")
    basic_setup()
    share_consts()
    A("s_mov_b32 s44, 0"); A("s_mov_b32 s45, -1"); A(f"s_mov_b32 {sC}, {C_SCALE:#x}"); A("s_mov_b32 s66, -1"); A("s_mov_b32 s67, 0"); A(f"s_mov_b32 {sTOT}, 0x7fffffff")
    if hilo: A("s_mov_b32 s64, 0xcccccccc"); A("s_mov_b32 s65, 0xcccccccc")
    stamp(11)
    A(f"s_sub_u32 {sT0}, {sROLE}, 4"); A(f"s_lshl_b32 {sRR}, {sG}, 2"); A(f"s_add_u32 {sRR}, {sRR}, {sT0}")
    A(f"s_cmp_lt_u32 {sT0}, 4"); A(f"s_cselect_b32 {sRR}, {sRR}, 99"); A("s_cbranch_scc0 L_nox")
    A(f"s_bfe_u32 {sT0}, {sRR}, 0x20003"); A(f"s_mul_i32 {sCOL}, {sT0}, 224")
    A(f"s_bfe_u32 {sGP}, {sRR}, 0x20001"); A(f"s_lshl_b32 {sT0}, {sGP}, 6"); A(f"s_add_u32 {sCOL}, {sCOL}, {sT0}")
    A(f"s_and_b32 {sT0}, {sRR}, 1"); A(f"s_lshl_b32 {sT0}, {sT0}, 4"); A(f"s_add_u32 {sCOL}, {sCOL}, {sT0}")
    A(f"s_bfe_u32 {sT0}, {sRR}, 0x10005"); A(f"s_mul_i32 {sT0}, {sT0}, 896"); A(f"s_add_u32 {sCOL}, {sCOL}, {sT0}")
    A(f"v_and_b32 v{vTM}, 6, v{vLANE}"); A(f"v_lshl_add_u32 v{vTM}, v{vTM}, 1, {sCOL}")
    A(f"global_load_dword v{vXH}, v{vTM}, {pX}")
    A(f"v_mov_b32 v{vXH+1}, 0")
    A(f"s_cmp_eq_u32 {sGP}, 3"); A("s_cbranch_scc1 L_nox")
    A(f"global_load_dword v{vXH+1}, v{vTM}, {pX} offset:32")
    E.label("L_nox")
    A(f"v_xor_b32 v{vTM}, v{vG4}, v{vN}"); A(f"v_lshlrev_b32 v{vTM}, 4, v{vTM}"); A(f"v_lshl_or_b32 v{vTM}, v{vN}, 9, v{vTM}")
    for s in range(4): A(f"v_xor_b32 v{vKB[s]}, {s*64}, v{vTM}")
    A(f"v_lshrrev_b32 v{vTM}, 2, v{vN}"); A(f"v_lshl_add_u32 v{vTM}, v{vG4}, 2, v{vTM}")
    A(f"v_and_b32 v{vTM2}, 7, v{vTM}")
    A(f"s_lshl_b32 {sT0}, {sW}, 2"); A(f"v_xor_b32 v{vTM2}, {sT0}, v{vTM2}"); A(f"v_lshlrev_b32 v{vTM2}, 5, v{vTM2}")
    A(f"v_lshl_or_b32 v{vTM}, v{vTM}, 9, v{vTM2}")
    A(f"v_and_b32 v{vTM2}, 3, v{vN}"); A(f"v_lshl_or_b32 v{vTM}, v{vTM2}, 3, v{vTM}")
    for e in range(4): A(f"v_xor_b32 v{vVB[e]}, {e*32}, v{vTM}")
    A(f"v_mov_b32 v{vM}, 0xff800000"); A(f"v_mov_b32 v{vMC}, v{vM}"); A(f"v_mov_b32 v{vL}, 0")
    for i in range(16): A(f"v_mov_b32 v{vO+i}, 0")
    wide_addr(vX)
    for h in range(2): read_wide_tile(vX, vWO, h)
    A(f"s_cmp_lt_u32 {sIDX}, 28"); A("s_cbranch_scc1 L_ffn_w")
    E.label("L_ffn_w_done")
    make_tag(sTAG, sE)
    A(f"s_cmp_lg_u32 {sW}, 0"); A("s_cbranch_scc1 L_q_flag")
    if qwait:
        A(f"s_add_u32 {sN}, {sN}, {qwait-1}"); wait_tile(); A(f"s_sub_u32 {sN}, {sN}, {qwait-1}")
    A(f"s_lshl_b32 {sT0}, {sG}, 11"); A(f"s_add_u32 {sT0}, {sT0}, {WS_Q}")
    A(f"v_lshl_add_u32 v{vTM3}, v{vLANE}, 4, {sT0}")
    poll([f"global_load_dwordx4 {Q4(vF)}, v{vTM3}, {pWS} {ldf}", f"global_load_dwordx4 {Q4(vF+4)}, v{vTM3}, {pWS} offset:1024 {ldf}"],
         [[vF+1, vF+3], [vF+5, vF+7]])
    A(f"v_lshlrev_b32 v{vTM}, 3, v{vLANE}"); A(f"v_add_u32 v{vTM}, {L_QW}, v{vTM}"); A(f"v_mov_b32 v{vTM2}, 1")
    A(f"ds_write2_b32 v{vTM}, v{vF}, v{vF+2} offset0:0 offset1:1"); A(f"ds_write2_b32 v{vTM}, v{vF+4}, v{vF+6} offset0:128 offset1:129")
    one_lane(f"ds_write_b32 v{vFLG}, v{vTM2} offset:32")
    E.label("L_q_flag")
    A(f"ds_read_b32 v{vTM}, v{vFLG} offset:32")
    spin_guard()
    A("s_waitcnt lgkmcnt(0)")
    A(f"v_readfirstlane_b32 {sT0}, v{vTM}")
    A(f"s_cmp_eq_u32 {sT0}, 1"); A("s_cbranch_scc1 L_q_have")
    A("s_sleep 1"); A("s_branch L_q_flag")
    E.label("L_q_have")
    A(f"v_and_b32 v{vTM2}, 1, v{vLANE}"); A(f"v_lshlrev_b32 v{vTM2}, 9, v{vTM2}"); A(f"v_lshl_add_u32 v{vTM2}, v{vG4}, 4, v{vTM2}"); A(f"v_add_u32 v{vTM2}, {L_QW}, v{vTM2}")
    for s in range(8): A(f"ds_read_b128 {Q4(vQ+4*s)}, v{vTM2} offset:{s*64}")
    stamp(2)
    A("s_waitcnt lgkmcnt(0)")

    def qk(nt):
        for s in range(4): A(f"v_add_u32 v{vAD[s]}, {sSLOT}, v{vKB[s]}")
        seq = [(t,s) for s in range(8) for t in range(nt)]; n = len(seq)
        def kread(i):
            t,s = seq[i]; A(f"ds_read_b128 {Q4(vF + 4*(i % NF))}, v{vAD[s&3]} offset:{(s>>2)*256 + t*8192}")
        for i in range(NF): kread(i)
        for i in range(n):
            t,s = seq[i]
            A(f"s_waitcnt lgkmcnt({min(NF-1, n-1-i)})")
            d = Q4(vS+4*t)
            A(f"v_mfma_f32_16x16x32_bf16 {d}, {Q4(vF + 4*(i % NF))}, {Q4(vQ+4*s)}, {'0' if s==0 else d}")
            if i + NF < n: kread(i+NF)
    def softmax(nt, tag):
        n = 4*nt
        for i in range(n//2): A(f"v_cvt_pk_bf16_f32 v{vP+i}, v{vS+2*i}, v{vS+2*i+1}")
        for i in range(n//2): unpack(vS+2*i, vS+2*i+1, vP+i)
        if nt == 2:
            A(f"v_max3_f32 v{vMX}, v{vS}, v{vS+1}, v{vS+2}"); A(f"v_max3_f32 v{vTM}, v{vS+3}, v{vS+4}, v{vS+5}")
            A(f"v_max3_f32 v{vMX}, v{vMX}, v{vS+6}, v{vS+7}"); A(f"v_max_f32 v{vMX}, v{vMX}, v{vTM}")
        else:
            A(f"v_max3_f32 v{vMX}, v{vS}, v{vS+1}, v{vS+2}"); A(f"v_max_f32 v{vMX}, v{vMX}, v{vS+3}")
        xrow("v_max_f32", [vMX], [vTM])
        A(f"v_cmp_gt_f32 vcc, v{vMX}, v{vM}")
        A("s_cmp_lg_u64 vcc, 0"); A(f"s_cbranch_scc1 L_rescale{tag}")
        E.label(f"L_rescaled{tag}")
        for i in range(n): A(f"v_fma_f32 v{vS+i}, v{vS+i}, {sC}, -v{vMC}")
        for i in range(n): A(f"v_exp_f32 v{vS+i}, v{vS+i}")
        for i in range(n//2): A(f"v_cvt_pk_bf16_f32 v{vP+i}, v{vS+2*i}, v{vS+2*i+1}")
        if hilo:
            for i in range(n//2):
                t = vF+16+2*(i&1)
                unpack(t, t+1, vP+i)
                A(f"v_pk_add_f32 {P(t)}, {P(vS+2*i)}, {P(t)} neg_lo:[0,1] neg_hi:[0,1]")
                A(f"v_cvt_pk_bf16_f32 v{t}, v{t}, v{t+1}")
                A(f"v_cndmask_b32 v{vP+i}, v{vP+i}, v{t}, s[64:65]")
    def add_l(nt):
        A(f"v_add_f32 v{vTM}, v{vS}, v{vS+1}"); A(f"v_add_f32 v{vMX}, v{vS+2}, v{vS+3}")
        if nt == 2:
            A(f"v_add_f32 v{vS+4}, v{vS+4}, v{vS+5}"); A(f"v_add_f32 v{vS+6}, v{vS+6}, v{vS+7}")
            A(f"v_add_f32 v{vTM}, v{vTM}, v{vS+4}"); A(f"v_add_f32 v{vMX}, v{vMX}, v{vS+6}")
        A(f"v_add_f32 v{vL}, v{vL}, v{vTM}"); A(f"v_add_f32 v{vL}, v{vL}, v{vMX}")
    def rescale(tag):
        E.label(f"L_rescale{tag}")
        A(f"v_max_f32 v{vM}, v{vM}, v{vMX}")
        A(f"v_mul_f32 v{vTM}, {sC}, v{vM}")
        A(f"v_sub_f32 v{vTM2}, v{vMC}, v{vTM}")
        A(f"v_mov_b32 v{vMC}, v{vTM}")
        A(f"v_exp_f32 v{vTM2}, v{vTM2}")
        A(f"v_mul_f32 v{vL}, v{vL}, v{vTM2}")
        A(f"v_mov_b32_dpp v{vTM}, v{vTM2} quad_perm:[0,0,2,2] row_mask:0xf bank_mask:0xf")
        A(f"v_mov_b32_dpp v{vTM3}, v{vTM2} quad_perm:[1,1,3,3] row_mask:0xf bank_mask:0xf")
        for i in range(16): A(f"v_mul_f32 v{vO+i}, v{vO+i}, v{vTM if i%2==0 else vTM3}")
        A(f"s_branch L_rescaled{tag}")
    E.label("L_loop")
    wait_tile()
    qk(2)
    pub_cons()
    softmax(2, "a"); add_l(2)
    wait_tile()
    for e in range(4): A(f"v_add_u32 v{vAD[e]}, {sSLOT}, v{vVB[e]}")
    for e in range(4):
        for h2 in range(2): A(f"ds_read_b64_tr_b16 {P(vF + 4*e + 2*h2)}, v{vAD[e]} offset:{h2*8192}")
    for e in range(4):
        A(f"s_waitcnt lgkmcnt({6-2*e})")
        A(f"v_mfma_f32_16x16x32_bf16 {Q4(vO+4*e)}, {Q4(vP)}, {Q4(vF+4*e)}, {Q4(vO+4*e)}")
    pub_cons()
    A(f"s_add_u32 {sCI}, {sCI}, 1"); A(f"s_cmp_lt_u32 {sCI}, {sNS}"); A("s_cbranch_scc1 L_loop")
    if touch:
        for nm in ("fin","red","ffn","ffn2"): touch_pad(nm)
    if forcepar is None:
        A(f"v_mov_b32 v{vTM}, {WS_PAR}")
        poll([f"global_load_dwordx4 {Q4(vF)}, v{vTM}, {pWS} {ldf}"], [[vF+1, vF+3]])
        A(f"v_readfirstlane_b32 {sP0}, v{vF}"); A(f"v_readfirstlane_b32 {sP1}, v{vF+2}")
    else:
        A(f"s_mov_b32 {sP0}, {forcepar[0]*8192}"); A(f"s_mov_b32 {sP1}, {forcepar[1]*8192}")
    A(f"s_lshl_b32 {sT0}, {sG}, 2"); A(f"s_and_b32 {sT1}, {sW}, 1"); A(f"s_add_u32 {sT0}, {sT0}, {sT1}"); A(f"s_lshl_b32 {sT0}, {sT0}, 14")
    A(f"s_lshr_b32 {sT1}, {sW}, 1"); A(f"s_lshl_b32 {sT1}, {sT1}, 13"); A(f"s_xor_b32 {sT1}, {sT1}, {sP0}"); A(f"s_add_u32 {sT0}, {sT0}, {sT1}")
    A(f"s_lshl_b32 {sT1}, {sJ}, 8"); A(f"s_add_u32 {sT0}, {sT0}, {sT1}"); A(f"s_add_u32 {sT0}, {sT0}, {WS_A}")
    A(f"v_lshrrev_b32 v{vAA}, 1, v{vG4}"); A(f"v_lshlrev_b32 v{vAA}, 15, v{vAA}")
    A(f"v_and_b32 v{vTM}, 1, v{vG4}"); A(f"v_lshl_or_b32 v{vAA}, v{vTM}, 12, v{vAA}"); A(f"v_lshl_or_b32 v{vAA}, v{vN}, 4, v{vAA}")
    A(f"v_add_u32 v{vAA}, {sT0}, v{vAA}")
    A(f"s_lshr_b32 {sT0}, {sWG}, 3"); A(f"s_lshl_b32 {sT0}, {sT0}, 1"); A(f"s_bfe_u32 {sT1}, {sWG}, 0x10001"); A(f"s_add_u32 {sT0}, {sT0}, {sT1}"); A(f"s_lshl_b32 {sT0}, {sT0}, 14")
    A(f"s_bfe_u32 {sT1}, {sWG}, 0x10002"); A(f"s_lshl_b32 {sT1}, {sT1}, 13"); A(f"s_xor_b32 {sT1}, {sT1}, {sP0}"); A(f"s_add_u32 {sT0}, {sT0}, {sT1}")
    A(f"s_and_b32 {sT1}, {sWG}, 1"); A(f"s_lshl_b32 {sT1}, {sT1}, 12"); A(f"s_add_u32 {sT0}, {sT0}, {sT1}"); A(f"s_add_u32 {sT0}, {sT0}, {WS_A}")
    A(f"v_lshlrev_b32 v{vAI}, 4, v{vN}"); A(f"v_lshl_or_b32 v{vAI}, v{vG4}, 10, v{vAI}"); A(f"v_add_u32 v{vAI}, {sT0}, v{vAI}")
    A(f"v_lshl_add_u32 v{vX+3}, v{vLANE}, 6, {sT0}")
    A(f"s_cmp_eq_u32 {sW}, 0"); A(f"s_cselect_b32 {sWRM}, 0x7fffffff, 0")
    A(f"s_cmp_ge_u32 {sRR}, 64"); A(f"s_cbranch_scc1 L_nored"); A(f"s_sub_u32 {sT0}, {sW}, 1"); A(f"s_cmp_ge_u32 {sT0}, 2"); A(f"s_cbranch_scc1 L_nored")
    A(f"s_lshl_b32 {sT0}, {sT0}, 14"); A(f"s_lshl_b32 {sT1}, {sRR}, 15"); A(f"s_add_u32 {sT0}, {sT0}, {sT1}"); A(f"s_add_u32 {sT0}, {sT0}, {sP1}"); A(f"s_add_u32 {sT0}, {sT0}, {WS_B}")
    A(f"v_lshl_add_u32 v{vX+3}, v{vLANE}, 7, {sT0}"); A(f"s_mov_b32 {sWRM}, 0x7fffffff")
    E.label("L_nored")
    A(f"s_lshl_b32 {sT0}, {sB}, 2"); A(f"s_add_u32 {sT0}, {sT0}, {sW}"); A(f"s_lshl_b32 {sT0}, {sT0}, 18")
    A(f"s_bfe_u32 {sT1}, {sWG}, 0x10006"); A(f"s_lshl_b32 {sT1}, {sT1}, 14"); A(f"s_add_u32 {sT0}, {sT0}, {sT1}"); A(f"s_add_u32 {sT0}, {sT0}, {sP1}")
    A(f"s_and_b32 {sT1}, {sWG}, 63"); A(f"s_lshl_b32 {sT1}, {sT1}, 7"); A(f"s_add_u32 {sT0}, {sT0}, {sT1}"); A(f"s_add_u32 {sT0}, {sT0}, {WS_B}")
    A(f"v_lshrrev_b32 v{vTM}, 3, v{vLANE}"); A(f"v_lshlrev_b32 v{vTM}, 15, v{vTM}")
    A(f"v_and_b32 v{vTM2}, 7, v{vLANE}"); A(f"v_lshl_or_b32 v{vBA}, v{vTM2}, 4, v{vTM}"); A(f"v_add_u32 v{vBA}, {sT0}, v{vBA}")
    E.label("L_mini")
    wait_tile("L_fin")
    qk(1)
    for e in range(4): A(f"v_add_u32 v{vAD[e]}, {sSLOT}, v{vVB[e]}")
    for e in range(4): A(f"ds_read_b64_tr_b16 {P(vF + 2*e)}, v{vAD[e]} offset:8192")
    softmax(1, "b")
    A("s_waitcnt lgkmcnt(0)")
    for e in range(4): A(f"v_mfma_f32_16x16x16_bf16 {Q4(vO+4*e)}, {P(vP)}, {P(vF+2*e)}, {Q4(vO+4*e)}")
    add_l(1)
    if lastfast:
        A(f"s_add_u32 {sT0}, {sN}, 1"); A(f"s_cmp_eq_u32 {sT0}, {sTOT}"); A("s_cbranch_scc1 L_fin")
    pub_cons()
    A("s_branch L_mini")
    rescale("b"); rescale("a")

    vG=vF; vI=vF+4; sa=vS; sb=vS+1; sw=vS+2
    vA=vQ; vOPR=vQ+4; vOPW=vQ+5; vR0=vQ+6; vR1=vQ+7; vR2=vQ+8; vR3=vQ+9; vR4=vQ+10; vR5=vQ+11; vZ=vQ+12
    E.label("L_ffn_addr")
    A(f"v_lshrrev_b32 v{vTM}, 3, v{vLANE}"); A(f"v_and_b32 v{vTM2}, 7, v{vLANE}")
    A(f"v_lshlrev_b32 v{vR0}, 9, v{vTM}"); A(f"v_lshl_or_b32 v{vR0}, v{vTM2}, 4, v{vR0}"); A(f"s_add_u32 {sT0}, {sP0}, {WS_H}"); A(f"v_add_u32 v{vR0}, {sT0}, v{vR0}")
    A(f"v_mul_u32_u24 v{vR1}, 224, v{vTM}"); A(f"v_lshl_add_u32 v{vR1}, v{vTM2}, 2, v{vR1}"); A(f"v_add_u32 v{vR1}, {L_LN}, v{vR1}")
    ln_read_addr(vR2, L_LN)
    A(f"s_lshl_b32 {sT0}, {sW}, 5"); A(f"s_add_u32 {sT0}, {sT0}, {L_ACT}")
    A(f"v_lshlrev_b32 v{vR3}, 7, v{vG4}"); A(f"v_lshl_add_u32 v{vR3}, v{vN}, 1, v{vR3}"); A(f"v_add_u32 v{vR3}, {sT0}, v{vR3}")
    A(f"v_and_b32 v{vR4}, 1, v{vLANE}"); A(f"v_lshlrev_b32 v{vR4}, 7, v{vR4}"); A(f"v_lshl_add_u32 v{vR4}, v{vG4}, 3, v{vR4}"); A(f"v_add_u32 v{vR4}, {L_ACT}, v{vR4}")
    A(f"s_lshl_b32 {sT0}, {sW}, 16"); A(f"s_lshl_b32 {sT1}, {sIDX}, 7"); A(f"s_add_u32 {sT0}, {sT0}, {sT1}"); A(f"s_add_u32 {sT0}, {sT0}, {sP0}"); A(f"s_add_u32 {sT0}, {sT0}, {WS_D}")
    A(f"v_lshrrev_b32 v{vTM}, 3, v{vN}"); A(f"v_lshlrev_b32 v{vTM}, 12, v{vTM}"); A(f"v_lshl_or_b32 v{vTM}, v{vG4}, 14, v{vTM}")
    A(f"v_lshl_or_b32 v{vTM}, v{vTM2}, 4, v{vTM}"); A(f"v_add_u32 v{vR5}, {sT0}, v{vTM}")
    A("s_branch L_addr_done")
    if align: A(".p2align 12")
    if touch: E.label("L_pad_fin"); A("s_branch L_ret_fin")
    E.label("L_fin")
    stamp(3)
    yreg = [vO, vO+4, vO+8, vO+12, vQ+16, vQ+20, vQ+24]
    xrow("v_add_f32", [vL], [vTM])
    if hilo:
        for e in range(4): A(f"v_pk_add_f32 {P(vO+4*e)}, {P(vO+4*e)}, {P(vO+4*e+2)}")
    A(f"v_log_f32 v{vTM2}, v{vL}"); A(f"v_rcp_f32 v{vTM3}, v{vL}")
    A(f"v_mov_b32 v{vG+3}, {sTAG}")
    A(f"v_add_f32 v{vTM2}, v{vMC}, v{vTM2}")
    SEL4(vG, vO+0, vO+8, vO+1, vO+9, vMX)
    A(f"v_mov_b32_dpp v{vTM}, v{vTM3} quad_perm:[0,0,2,2] row_mask:0x3 bank_mask:0xf")
    A(f"v_mov_b32_dpp v{vG+2}, v{vTM2} quad_perm:[0,0,2,2] row_mask:0x3 bank_mask:0xf")
    SEL4(vG+1, vO+4, vO+12, vO+5, vO+13, vMX)
    A(f"v_mov_b32_dpp v{vTM}, v{vTM3} quad_perm:[1,1,3,3] row_mask:0xc bank_mask:0xf")
    A(f"v_mov_b32_dpp v{vG+2}, v{vTM2} quad_perm:[1,1,3,3] row_mask:0xc bank_mask:0xf")
    A(f"v_mul_f32 v{vG}, v{vG}, v{vTM}"); A(f"v_mul_f32 v{vG+1}, v{vG+1}, v{vTM}")
    A(f"global_store_dwordx4 v{vAA}, {Q4(vG)}, {pWS} {stf}")
    stamp(4)
    A(f"v_lshlrev_b32 v{vOPR}, 3, v{vG4}"); A(f"v_add_u32 v{vOPR}, {L_OP}, v{vOPR}")
    A(f"v_lshlrev_b32 v{vOPW}, 1, v{vN}"); A(f"v_add_u32 v{vOPW}, {L_OP}, v{vOPW}")
    A(f"v_mov_b32 v{vZ}, 0")
    A(f"s_cmp_lt_u32 {sIDX}, 28"); A("s_cbranch_scc1 L_ffn_addr")
    A(f"s_cmp_ge_u32 {sRR}, 64"); A("s_cbranch_scc1 L_addr_done")
    A(f"s_lshl_b32 {sT0}, {sRR}, 15"); A(f"s_lshr_b32 {sT1}, {sW}, 1"); A(f"s_lshl_b32 {sT1}, {sT1}, 14"); A(f"s_add_u32 {sT0}, {sT0}, {sT1}")
    A(f"s_and_b32 {sT1}, {sW}, 1"); A(f"s_lshl_b32 {sT1}, {sT1}, 12"); A(f"s_add_u32 {sT0}, {sT0}, {sT1}"); A(f"s_add_u32 {sT0}, {sT0}, {sP1}"); A(f"s_add_u32 {sT0}, {sT0}, {WS_B}")
    A(f"v_lshl_add_u32 v{vR0}, v{vLANE}, 4, {sT0}")
    A(f"s_lshl_b32 {sT0}, {sW}, 6"); A(f"s_add_u32 {sT0}, {sT0}, {L_RED}")
    A(f"v_and_b32 v{vTM}, 7, v{vLANE}"); A(f"v_lshl_add_u32 v{vR1}, v{vTM}, 2, {sT0}")
    A(f"v_and_b32 v{vTM}, 6, v{vLANE}"); A(f"v_lshlrev_b32 v{vR2}, 2, v{vTM}"); A(f"v_add_u32 v{vR2}, {L_RED}, v{vR2}")
    A(f"s_lshl_b32 {sT0}, {sRR}, 6"); A(f"s_add_u32 {sT0}, {sT0}, {sP0}"); A(f"s_add_u32 {sT0}, {sT0}, {WS_H}"); A(f"v_lshl_add_u32 v{vR3}, v{vTM}, 3, {sT0}")
    A(f"s_lshr_b32 {sT0}, {sRR}, 1"); A(f"s_lshl_b32 {sT0}, {sT0}, 14"); A(f"s_and_b32 {sT1}, {sRR}, 1"); A(f"s_lshl_b32 {sT1}, {sT1}, 12"); A(f"s_add_u32 {sT0}, {sT0}, {sT1}")
    A(f"s_add_u32 {sT0}, {sT0}, {sP0}"); A(f"s_add_u32 {sT0}, {sT0}, {WS_D}"); A(f"v_lshl_add_u32 v{vR4}, v{vLANE}, 4, {sT0}")
    A(f"v_lshl_add_u32 v{vR5}, v{vTM}, 1, {sCOL}")
    E.label("L_addr_done")
    A(f"s_cmp_lg_u32 {sW}, 0"); A("s_cbranch_scc1 L_a_join")
    poll([f"global_load_dwordx4 {Q4(vI+4*i)}, v{vAI}, {pWS} offset:{i*256} {ldf}" for i in range(4)], [[vI+4*i+3] for i in range(4)])
    stamp(5)
    A(f"v_max3_f32 v{vMX}, v{vI+2}, v{vI+6}, v{vI+10}"); A(f"v_max_f32 v{vMX}, v{vMX}, v{vI+14}")
    xrow("v_max_f32", [vMX], [vTM])
    for i in range(4): A(f"v_sub_f32 v{vI+4*i+2}, v{vI+4*i+2}, v{vMX}")
    for i in range(4): A(f"v_exp_f32 v{vI+4*i+2}, v{vI+4*i+2}")
    A(f"v_mul_f32 v{sa}, v{vI}, v{vI+2}"); A(f"v_mul_f32 v{sb}, v{vI+1}, v{vI+2}"); A(f"v_add_f32 v{sw}, v{vI+2}, v{vI+6}")
    for i in range(1,4):
        A(f"v_fmac_f32 v{sa}, v{vI+4*i}, v{vI+4*i+2}"); A(f"v_fmac_f32 v{sb}, v{vI+4*i+1}, v{vI+4*i+2}")
        if i > 1: A(f"v_add_f32 v{sw}, v{sw}, v{vI+4*i+2}")
    xrow("v_add_f32", [sw, sa, sb], [vS+3, vS+4, vS+5])
    A(f"v_rcp_f32 v{sw}, v{sw}")
    A(f"v_mul_f32 v{sa}, v{sa}, v{sw}"); A(f"v_mul_f32 v{sb}, v{sb}, v{sw}")
    A(f"v_mov_b32_dpp v{vS+3}, v{sa} quad_perm:[1,0,3,2] row_mask:0xf bank_mask:0xf")
    A(f"v_mov_b32_dpp v{vS+4}, v{sb} quad_perm:[1,0,3,2] row_mask:0xf bank_mask:0xf")
    A(f"v_cvt_pk_bf16_f32 v{sa}, v{sa}, v{vS+3}"); A(f"v_cvt_pk_bf16_f32 v{sb}, v{sb}, v{vS+4}")
    A("s_mov_b64 exec, 0x5555"); A(f"ds_write2_b32 v{vOPW}, v{sa}, v{sb} offset0:0 offset1:8"); A("s_mov_b64 exec, -1")
    A("s_waitcnt lgkmcnt(0)")
    E.label("L_a_join")
    A("s_barrier")
    A(f"ds_read2_b64 {Q4(vA)}, v{vOPR} offset0:0 offset1:4")
    A(f"v_mov_b32 v{vG+1}, {sTAG}")
    A("s_waitcnt lgkmcnt(0)")
    for t in (0,2,4,6,1,3,5):
        A(f"v_mfma_f32_16x16x32_bf16 {Q4(yreg[t])}, {Q4(vA)}, {Q4(vWO+4*t)}, 0")
    SEL4(vG, yreg[0], yreg[2], yreg[4], yreg[6], vMX)
    SEL4(vG+2, yreg[1], yreg[3], yreg[5], vZ, vTM)
    A(f"global_store_dwordx4 v{vBA}, {Q4(vG)}, {pWS} {stf}")
    stamp(6)
    A(f"s_cmp_lt_u32 {sIDX}, 28"); A("s_cbranch_scc1 L_ffn")
    A(f"s_cmp_ge_u32 {sRR}, 64"); A("s_cbranch_scc1 L_done")
    def inbox(addr): return [f"global_load_dwordx4 {Q4(vI+4*i)}, v{addr}, {pWS} offset:{i*1024} {ldf}" for i in range(4)]
    tags2 = [[vI+4*i+3] if onetag else [vI+4*i+1, vI+4*i+3] for i in range(4)]
    def sum_inbox():
        A(f"v_add_f32 v{sa}, v{vI}, v{vI+4}"); A(f"v_add_f32 v{sb}, v{vI+2}, v{vI+6}")
        A(f"v_add_f32 v{vS+2}, v{vI+8}, v{vI+12}"); A(f"v_add_f32 v{vS+3}, v{vI+10}, v{vI+14}")
        A(f"v_add_f32 v{sa}, v{sa}, v{vS+2}"); A(f"v_add_f32 v{sb}, v{sb}, v{vS+3}")
        A(f"v_add_f32_dpp v{sa}, v{sa}, v{sa} row_ror:8 row_mask:0xf bank_mask:0xf")
        A(f"v_add_f32_dpp v{sb}, v{sb}, v{sb} row_ror:8 row_mask:0xf bank_mask:0xf")
        xrow("v_add_f32", [sa, sb], [vS+2, vS+3])
    vXF = vO
    unpack(vXF, vXF+1, vXH); unpack(vXF+2, vXF+3, vXH+1)
    if touch: pad("red")
    poll(inbox(vR0), tags2)
    stamp(7)
    sum_inbox()
    A("s_mov_b64 exec, 0xff"); A(f"ds_write2_b32 v{vR1}, v{sa}, v{sb} offset0:0 offset1:8"); A("s_mov_b64 exec, -1")
    A("s_waitcnt lgkmcnt(0)"); A("s_barrier")
    A(f"s_cmp_lg_u32 {sW}, 0"); A("s_cbranch_scc1 L_done")
    for i in range(4): A(f"ds_read2_b64 {Q4(vI+4*i)}, v{vR2} offset0:{i*8} offset1:{i*8+4}")
    def add_resid(y, dst):
        A(f"v_cvt_pk_bf16_f32 v{dst}, v{y}, v{y+1}"); A(f"v_cvt_pk_bf16_f32 v{dst+2}, v{y+2}, v{y+3}")
        unpack(y, y+1, dst); unpack(y+2, y+3, dst+2)
        A(f"v_pk_add_f32 {P(y)}, {P(y)}, {P(vXF)}"); A(f"v_pk_add_f32 {P(y+2)}, {P(y+2)}, {P(vXF+2)}")
        A(f"v_cvt_pk_bf16_f32 v{dst}, v{y}, v{y+1}"); A(f"v_cvt_pk_bf16_f32 v{dst+2}, v{y+2}, v{y+3}")
    A("s_waitcnt lgkmcnt(2)")
    A(f"v_pk_add_f32 {P(vI)}, {P(vI)}, {P(vI+4)}"); A(f"v_pk_add_f32 {P(vI+2)}, {P(vI+2)}, {P(vI+6)}")
    A("s_waitcnt lgkmcnt(0)")
    A(f"v_pk_add_f32 {P(vI+8)}, {P(vI+8)}, {P(vI+12)}"); A(f"v_pk_add_f32 {P(vI+10)}, {P(vI+10)}, {P(vI+14)}")
    A(f"v_pk_add_f32 {P(vI)}, {P(vI)}, {P(vI+8)}"); A(f"v_pk_add_f32 {P(vI+2)}, {P(vI+2)}, {P(vI+10)}")
    add_resid(vI, vG)
    A("s_mov_b64 exec, 0x55"); A(f"global_store_dwordx4 v{vR3}, {Q4(vG)}, {pWS} {stf}"); A("s_mov_b64 exec, -1")
    stamp(8)
    unpack(vXF, vXF+1, vG); unpack(vXF+2, vXF+3, vG+2)
    A(f"v_mov_b32 v{vI+12}, 0"); A(f"v_mov_b32 v{vI+13}, {sTAG}"); A(f"v_mov_b32 v{vI+14}, 0"); A(f"v_mov_b32 v{vI+15}, {sTAG}")
    poll(inbox(vR4), tags2, first_mask=[-1,-1,-1,"s[66:67]"])
    stamp(9)
    sum_inbox()
    A(f"v_mov_b32_dpp v{vI}, v{sa} quad_perm:[0,0,2,2] row_mask:0xf bank_mask:0xf"); A(f"v_mov_b32_dpp v{vI+1}, v{sa} quad_perm:[1,1,3,3] row_mask:0xf bank_mask:0xf")
    A(f"v_mov_b32_dpp v{vI+2}, v{sb} quad_perm:[0,0,2,2] row_mask:0xf bank_mask:0xf"); A(f"v_mov_b32_dpp v{vI+3}, v{sb} quad_perm:[1,1,3,3] row_mask:0xf bank_mask:0xf")
    add_resid(vI, vI+4)
    A("s_mov_b64 exec, 0x55"); A(f"global_store_dword v{vR5}, v{vI+4}, {pOUT} {outf}")
    A(f"s_cmp_eq_u32 {sGP}, 3"); A("s_cbranch_scc1 L_done")
    A(f"global_store_dword v{vR5}, v{vI+6}, {pOUT} offset:32 {outf}")
    A(f"s_cmp_lg_u32 {sRR}, 0"); A("s_cbranch_scc1 L_done")
    A(f"s_add_u32 {sT0}, {sE}, 1"); A(f"v_mov_b32 v{vTM2}, {sT0}"); A(f"v_mov_b32 v{vTM3}, {WS_E}")
    A("s_mov_b64 exec, 1"); A(f"global_store_dword v{vTM3}, v{vTM2}, {pWS} {stf}")
    if enc:
        A("s_memrealtime s[90:91]"); A("s_waitcnt lgkmcnt(0)")
        A(f"s_sub_u32 {sT0}, s{70+2*enc[1]}, s{70+2*enc[0]}"); A(f"s_lshl_b32 {sT0}, {sT0}, 2"); A(f"s_min_u32 {sT0}, {sT0}, 100000")
        E.label("L_enc")
        A("s_memrealtime s[94:95]"); A("s_waitcnt lgkmcnt(0)")
        A(f"s_sub_u32 {sT1}, s94, s90"); A(f"s_cmp_lt_u32 {sT1}, {sT0}"); A("s_cbranch_scc1 L_enc")
    A("s_branch L_done")
    if touch: E.label("L_pad_ffn"); A("s_branch L_ret_ffn")
    E.label("L_ffn")
    A(f"s_cmp_lg_u32 {sW}, 0"); A("s_cbranch_scc1 L_c_join")
    poll([f"global_load_dwordx4 {Q4(vI+4*u)}, v{vR0}, {pWS} offset:{u*128} {ldf}" for u in range(4)], tags2)
    stamp(7)
    layernorm([vI+2*u for u in range(7)], vO, vR1, 32, mid=(lambda: pad("ffn2")) if touch else None)
    A("s_waitcnt lgkmcnt(0)")
    E.label("L_c_join")
    A("s_barrier")
    def aread(i): A(f"ds_read_b128 {Q4(vF + 4*(i % NF))}, v{vR2} offset:{i*64}")
    for i in range(NF): aread(i)
    for i in range(14):
        A(f"s_waitcnt lgkmcnt({min(NF-1, 13-i)})")
        A(f"v_mfma_f32_16x16x32_bf16 {Q4(vS)}, {Q4(vF + 4*(i % NF))}, {Q4(vW1+4*i)}, {'0' if i==0 else Q4(vS)}")
        if i + NF < 14: aread(i+NF)
    for b in range(2): A(f"v_mov_b32 v{vO+4*b+1}, {sTAG}"); A(f"v_mov_b32 v{vO+4*b+3}, {sTAG}")
    A(f"v_add_u32 v{vR0}, {16*16384}, v{vR5}")
    A(f"v_cndmask_b32 v{vTM}, v{vS}, v{vS+1}, {sM1}")
    round_bf(vTM, vTM)
    A(f"v_mul_f32 v{vTM2}, {(LOG2E | 0x80000000):#x}, v{vTM}")
    A(f"v_exp_f32 v{vTM2}, v{vTM2}")
    A(f"v_add_f32 v{vTM2}, 1.0, v{vTM2}")
    A(f"v_rcp_f32 v{vTM2}, v{vTM2}")
    A(f"v_mul_f32 v{vTM}, v{vTM}, v{vTM2}")
    A(f"v_cvt_pk_bf16_f32 v{vTM}, v{vTM}, v{vTM}")
    A("s_mov_b32 exec_hi, 0"); A(f"ds_write_b16 v{vR3}, v{vTM}"); A("s_mov_b32 exec_hi, -1")
    A("s_waitcnt lgkmcnt(0)"); A("s_barrier")
    for ks in range(2): A(f"ds_read2_b64 {Q4(vF+4*ks)}, v{vR4} offset0:{ks*8} offset1:{ks*8+4}")
    zreg = [vW1+4*t for t in range(7)]
    for ks in range(2):
        A(f"s_waitcnt lgkmcnt({1-ks})")
        for t in (0,2,4,6,1,3,5):
            A(f"v_mfma_f32_16x16x32_bf16 {Q4(zreg[t])}, {Q4(vF+4*ks)}, {Q4(vW2+28*ks+4*t)}, {'0' if ks==0 else Q4(zreg[t])}")
    for b in range(2): SEL4(vO+4*b, zreg[0]+b, zreg[2]+b, zreg[4]+b, zreg[6]+b, vMX)
    for b in range(2):
        SEL4(vO+4*b+2, zreg[1]+b, zreg[3]+b, zreg[5]+b, vZ, vMX)
        A(f"global_store_dwordx4 v{vR5 if b == 0 else vR0}, {Q4(vO+4*b)}, {pWS} {stf}")
    stamp(8)
    E.label("L_done")
    if diag:
        stamp(10)
        A("s_mov_b64 exec, -1")
        A(f"s_lshl_b32 {sT0}, {sWG}, 2"); A(f"s_add_u32 {sT0}, {sT0}, {sW}"); A(f"s_lshl_b32 {sT0}, {sT0}, 7"); A(f"s_add_u32 {sT0}, {sT0}, {WS_ST}")
        A("s_getreg_b32 s100, hwreg(HW_REG_XCC_ID)")
        A("s_waitcnt lgkmcnt(0)")
        A(f"v_mov_b32 v{vTM}, {sT0}")
        A("s_mov_b64 exec, 1")
        for k in range(11): A(f"v_mov_b32 v{vW1+k}, s{70+2*k}")
        A(f"v_mov_b32 v{vW1+11}, s100"); A(f"v_mov_b32 v{vW1+12}, {sN}"); A(f"v_mov_b32 v{vW1+13}, {sROLE}"); A(f"v_mov_b32 v{vW1+14}, {sWG}"); A(f"v_mov_b32 v{vW1+15}, {sIDX}")
        for k in range(4): A(f"v_mov_b32 v{vW1+16+k}, s{92+2*k}")
        for q in range(5): A(f"global_store_dwordx4 v{vTM}, {Q4(vW1+4*q)}, {pWS} offset:{q*16}")
    E.label("L_end")
    A("s_endpgm")

    E.label("L_ffn_w")
    tall_addr(vX+1)
    for t in range(4): read_tall_tile(vX+1, vW1, t)
    for t in range(4): read_wide_tile(vX, vW2 + 28*(t>>1), t & 1)
    A("s_branch L_ffn_w_done")
    E.label("L_ld_ffn")
    tall_voffs(3584)
    A(f"s_mov_b64 s[48:49], s[{pW1[0]}:{pW1[1]}]"); A(f"s_mov_b32 s50, {448*1792*2}")
    A(f"s_lshl_b32 {sBASE}, {sIDX}, 7")
    for t in range(4):
        if t % 2 == 0: freecheck(2)
        tile_tall(3584, t, 16 if t < 3 else 8)
    A(f"s_mov_b64 s[48:49], s[{pW2[0]}:{pW2[1]}]")
    A(f"s_mul_i32 {sBASE}, {sIDX}, {64*896}"); A(f"s_add_u32 {sT2}, {sN}, 4")
    E.label("L_ld_w2")
    freecheck(1)
    tile_wide()
    A(f"s_cmp_lt_u32 {sN}, {sT2}"); A("s_cbranch_scc1 L_ld_w2")
    A("s_branch L_ld_loop")
    if forcepar is None:
        E.label("L_probe")
        A(f"s_load_dword s69, {pWS}, {WS_E}")
        A("s_mov_b64 exec, 1")
        for k,off in enumerate((WS_PRB, WS_PRB+8192, WS_B, WS_B+8192)):
            A(f"v_mov_b32 v{32+k}, {off}"); A(f"s_mov_b32 s{92+k}, 0")
        A("v_mov_b32 v36, 0"); A(f"s_mov_b32 {sCI}, {nprobe}")
        for k in range(4): A(f"global_atomic_add v37, v{32+k}, v36, {pWS} sc0")
        A("s_waitcnt vmcnt(0)")
        E.label("L_probe_loop")
        for k in range(4):
            A("s_memtime s[64:65]"); A("s_waitcnt lgkmcnt(0)")
            A(f"global_atomic_add v37, v{32+k}, v36, {pWS} sc0"); A("s_waitcnt vmcnt(0)")
            A("s_memtime s[66:67]"); A("s_waitcnt lgkmcnt(0)")
            A("s_sub_u32 s66, s66, s64"); A(f"s_min_u32 s66, s66, {clip}"); A(f"s_add_u32 s{92+k}, s{92+k}, s66")
        A(f"s_sub_u32 {sCI}, {sCI}, 1"); A(f"s_cmp_lg_u32 {sCI}, 0"); A("s_cbranch_scc1 L_probe_loop")
        A("s_cmp_gt_u32 s92, s93"); A(f"s_cselect_b32 {sT0}, 8192, 0")
        A("s_cmp_gt_u32 s94, s95"); A(f"s_cselect_b32 {sT1}, 8192, 0")
        make_tag(sT2, "s69")
        A(f"v_mov_b32 v32, {sT0}"); A(f"v_mov_b32 v33, {sT2}"); A(f"v_mov_b32 v34, {sT1}"); A(f"v_mov_b32 v35, {sT2}"); A(f"v_mov_b32 v36, {WS_PAR}")
        A(f"global_store_dwordx4 v36, v[32:35], {pWS} {stf}")
        A("s_mov_b64 exec, -1")
        A("s_branch L_ld_wo")

    body = E.finish()
    head = open("sequential_preLN__gqa_block_cached__dense_activation_silu__decode.s.ref").read().split("; Override launch")[0]
    src = head + f"""; One persistent launch: 256 workgroups (one per CU); wave 0 streams K/V into an LDS ring, waves 1-4 compute.
; @launch grid=(256,1,1) block=(320,1,1) lds={LDS}
.amdgcn_target "amdgcn-amd-amdhsa--gfx950"
.text
.globl {NAME}
{'.p2align 12' if align else ''}
.p2align 8
.type {NAME},@function
{NAME}:
{body}.section .rodata,"a"
.p2align 6
.amdhsa_kernel {NAME}
  .amdhsa_next_free_vgpr 256
  .amdhsa_next_free_sgpr 102
  .amdhsa_accum_offset 256
  .amdhsa_group_segment_fixed_size 0
  .amdhsa_kernarg_size 88
  .amdhsa_user_sgpr_count 2
  .amdhsa_user_sgpr_kernarg_segment_ptr 1
  .amdhsa_system_sgpr_workgroup_id_x 1
.end_amdhsa_kernel
"""
    return src, E.npad

if __name__ == "__main__":
    out = sys.argv[1]
    kw = json.loads(sys.argv[2]) if len(sys.argv) > 2 else {}
    src, npad = gen(**kw)
    open(out, "w").write(src)
    print("wrote", out, "lines", src.count("\n"), "pad states", npad)
```

```python
import sys, json, struct
from emit import Emitter

NAME = "sequential_preLN__gqa_block_cached__dense_activation_silu__decode_kernel"
def f2u(x): return struct.unpack("<I", struct.pack("<f", x))[0]

def gen(W=19, NS=59, diag=False, hilo=True, spin=1<<20, enc=None, NF=5, ldst=None, qwait=2, forcepar=None, nprobe=3, clip=2000,
        touch=0, qtouch=1, lastfast=1, outf='sc1', onetag=1, nap=0, grp=4, align=1, park=4, ltouch=0, wpre=(2,4)):
    E = Emitter(); A = E
    pol = "nt"; stf = ldf = "sc1"
    NSLOT = 9; SLOT = 16384; RING = NSLOT*SLOT; LDS = 163840
    L_FLAG = RING; L_CONS = RING+16; L_RED = RING+256; L_OP = RING+512; L_ACT = RING+768; L_QW = RING+1024; L_LN = RING+5120
    WS_E = 0; WS_PAR = 0x800; WS_CNT = 0x1000; WS_H = 0x4000; WS_Q = 0x8000; WS_PRB = 0x10000; WS_D = 0x80000; WS_A = 0x100000; WS_B = 0x200000; WS_ST = 0x400000
    C_SCALE = f2u(1.4426950408889634/16.0); LOG2E = f2u(1.4426950408889634); INV448 = f2u(1.0/448.0); EPS = f2u(1e-5)
    EXTRA = 32; POOL = 2048-32*NS+EXTRA; TL = 128-2*NS
    assert 12 <= W <= 32 and NF <= 5
    sWG="s2"; sWAVE="s3"
    pX="s[4:5]"; pK=(6,7); pV=(8,9); pWQ=(10,11); pWO=(12,13); pW1=(16,17); pW2=(18,19); pOUT="s[20:21]"; pWS="s[24:25]"
    sG="s26"; sJ="s27"; sROLE="s28"; sN="s31"; sSLOT="s32"; sKNOWN="s33"; sT0="s34"; sT1="s35"; sT2="s36"
    sCI="s37"; sSPIN="s38"; sIDX="s39"; sNS="s63"; sPK="s68"
    vK=[4+i for i in range(8)]; vV=[12+i for i in range(4)]; vLIN=16; vT=[17,18]; vFL=21; vTMP=22; vC=24; vCA=28; vONE=29; vCL=[30,31]
    srdK="s[40:43]"; srdV="s[44:47]"; srdW="s[48:51]"; srdZ="s[52:55]"
    sCUR="s56"; sGB="s57"; sOFF="s58"; sCLM="s59"; sBASE="s61"; sFLOOR="s62"
    sB="s29"; sHKV="s30"; sW="s40"; sTAG="s41"; sM1="s[42:43]"; sM2="s[44:45]"; sC="s46"; sE="s47"; sRR="s48"; sTOT="s49"
    sCK=["s[50:51]","s[52:53]","s[54:55]","s[56:57]"]; sCOL="s58"; sGP="s59"; sP0="s60"; sP1="s61"; sWRM="s62"
    vLANE=0; vN=1; vG4=2; vFLG=3; vCONS=4; vTM=5; vTM2=6; vTM3=7
    vM=8; vMC=9; vL=10; vMX=11
    vKB=[12,13,14,15]; vVB=[16,17,18,19]; vAD=[20,21,22,23]
    vS=24; vP=32; vO=36; vQ=52; vF=84; vAA=104; vAI=105; vBA=106
    vWO=108; vW1=136; vW2=192; vX=248; vXH=254
    xr1 = [vWO+u for u in range(7)]; vLW1 = vWO+24

    uid=[0]
    def lab(p): uid[0]+=1; return f"L_{p}_{uid[0]}"
    def P(r): return f"v[{r}:{r+1}]"
    def Q4(r): return f"v[{r}:{r+3}]"
    def stamp(k):
        if not diag and not (enc and k in (0, enc[0], enc[1])): return
        A(f"s_memrealtime s[{70+2*k}:{71+2*k}]")
    def slot_advance():
        A(f"s_add_u32 {sN}, {sN}, 1"); A(f"s_add_u32 {sSLOT}, {sSLOT}, {SLOT}")
        A(f"s_cmp_eq_u32 {sSLOT}, {RING}"); A(f"s_cselect_b32 {sSLOT}, 0, {sSLOT}")
    def spin_guard(): A(f"s_sub_u32 {sSPIN}, {sSPIN}, 1"); A("s_cbranch_scc1 L_end")
    def one_lane(ins): A("s_mov_b64 exec, 1"); A(ins); A("s_mov_b64 exec, -1")
    def share_consts():
        A(f"s_sub_u32 {sT0}, {sROLE}, 8"); A(f"s_lshl_b32 {sIDX}, {sG}, 1"); A(f"s_add_u32 {sIDX}, {sIDX}, {sT0}")
        A(f"s_cmp_lt_u32 {sT0}, 2"); A(f"s_cselect_b32 {sIDX}, {sIDX}, 99")
        A(f"s_cselect_b32 {sNS}, {NS-4}, {NS}"); A(f"s_cmp_lt_u32 {sROLE}, 4"); A(f"s_cselect_b32 {sNS}, {NS-2}, {sNS}")
        A(f"s_cmp_lt_u32 {sIDX}, 28"); A(f"s_cselect_b32 {sPK}, 0, {park}")
    def make_tag(dst, e): A(f"s_mul_i32 {dst}, {e}, 0x9e3779b1"); A(f"s_add_u32 {dst}, {dst}, 0x7f4a7c15")
    pads = []
    def pad(name):
        sk = lab("padskip"); A(f"s_branch {sk}"); E.label(f"L_pad_{name}"); A(f"s_branch L_ret_{name}"); E.label(sk)
    def touch_pad(name): A(f"s_branch L_pad_{name}"); E.label(f"L_ret_{name}")

    A(f"s_cmp_ge_u32 {sWG}, 256"); A("s_cbranch_scc1 L_end")
    stamp(0)
    A("s_load_dwordx16 s[4:19], s[0:1], 0"); A("s_load_dwordx4 s[20:23], s[0:1], 64"); A("s_load_dwordx2 s[24:25], s[0:1], 80")
    A("v_lshrrev_b32 v1, 6, v0"); A("v_and_b32 v0, 63, v0"); A(f"v_readfirstlane_b32 {sWAVE}, v1")
    A(f"s_lshr_b32 {sG}, {sWG}, 4"); A(f"s_and_b32 {sJ}, {sWG}, 15")
    A(f"s_lshr_b32 {sT0}, {sJ}, 1"); A(f"s_and_b32 {sT0}, {sT0}, 4"); A(f"s_and_b32 {sROLE}, {sJ}, 3"); A(f"s_add_u32 {sROLE}, {sROLE}, {sT0}")
    A(f"s_sub_u32 {sROLE}, {sROLE}, {sG}"); A(f"s_and_b32 {sROLE}, {sROLE}, 7")
    A(f"s_add_u32 {sT0}, {sROLE}, 4"); A(f"s_add_u32 {sT1}, {sROLE}, 8"); A(f"s_cmp_lt_u32 {sROLE}, 4"); A(f"s_cselect_b32 {sROLE}, {sROLE}, {sT1}")
    A(f"s_bitcmp1_b32 {sJ}, 2"); A(f"s_cselect_b32 {sROLE}, {sROLE}, {sT0}")
    A(f"s_mov_b32 {sN}, 0"); A(f"s_mov_b64 s[32:33], 0"); A(f"s_mov_b32 {sCI}, 0"); A(f"s_mov_b32 {sSPIN}, {spin}")
    A(f"v_mov_b32 v3, {L_FLAG}"); A(f"v_lshl_add_u32 v1, v0, 2, v3"); A("v_mov_b32 v2, 0")
    A("s_mov_b64 exec, 2"); A("v_bfrev_b32 v2, -2"); A("s_mov_b64 exec, 0x1ff"); A("ds_write_b32 v1, v2"); A("s_mov_b64 exec, -1")
    A(f"v_lshrrev_b32 v1, 5, v0"); A(f"v_mul_u32_u24 v1, 896, v1"); A(f"v_and_b32 v2, 31, v0"); A(f"v_lshl_add_u32 v{vLW1}, v2, 2, v1")
    A("s_waitcnt lgkmcnt(0)")
    A("s_barrier")
    A(f"s_cmp_eq_u32 {sWAVE}, 0"); A("s_cbranch_scc1 L_loader")
    A(f"s_load_dword {sE}, {pWS}, {WS_E}")
    A(f"s_cmp_ge_u32 {sROLE}, 4"); A("s_cbranch_scc1 L_consumer")
    for u in range(7): A(f"global_load_dword v{xr1[u]}, v{vLW1}, {pX} offset:{u*128}")
    A("s_branch L_qprod")

    def publish(back):
        A(f"s_sub_u32 {sT0}, {sN}, {back}"); A(f"s_max_i32 {sT0}, {sT0}, {sFLOOR}")
        A(f"v_mov_b32 v{vTMP}, {sT0}"); one_lane(f"ds_write_b32 v{vFL}, v{vTMP}")
    def throttle(i):
        if i % grp == grp-1:
            A(f"s_waitcnt vmcnt({W})")
            if i+1+16 >= W and (i+1-grp+16 < W or i < grp): publish(1)
    def tile_rows(specs, pol=pol):
        for i,(srd,vo,so) in enumerate(specs):
            if i % 4 == 0:
                A(f"s_add_u32 m0, {sSLOT}, {i*1024}" if i else f"s_mov_b32 m0, {sSLOT}")
                A(f"s_add_u32 {sOFF}, {sBASE}, {so}" if so else f"s_mov_b32 {sOFF}, {sBASE}")
            A(f"buffer_load_dwordx4 v{vo}, {srd}, {sOFF} offen offset:{(i%4)*1024} {pol} lds")
            throttle(i)
        slot_advance()
    def tile_tall(rowstride, t, nvalid):
        for i in range(16):
            A(f"s_add_u32 m0, {sSLOT}, {i*1024}" if i else f"s_mov_b32 m0, {sSLOT}")
            A(f"s_add_u32 {sOFF}, {sBASE}, {(t*128+i*8)*rowstride}")
            A(f"buffer_load_dwordx4 v{vT[i&1]}, {srdW if i < nvalid else srdZ}, {sOFF} offen {pol} lds")
            throttle(i)
        slot_advance()
    def tile_wide(pol=pol):
        tile_rows([(srdW if i < 14 else srdZ, vLIN, i*1024) for i in range(16)], pol)
        A(f"s_add_u32 {sBASE}, {sBASE}, 14336")
    def tall_voffs(stride):
        A("v_lshrrev_b32 v1, 3, v0"); A("v_and_b32 v2, 7, v0"); A("v_and_b32 v3, 2, v1"); A("v_xor_b32 v2, v2, v3"); A("v_lshlrev_b32 v2, 4, v2")
        A(f"v_mul_u32_u24 v3, {stride}, v1"); A(f"v_add_u32 v{vT[0]}, v3, v2"); A("v_xor_b32 v2, 64, v2"); A(f"v_add_u32 v{vT[1]}, v3, v2")
    def freecheck(k):
        ok = lab("free"); lp = lab("freepoll")
        A(f"s_add_u32 {sT0}, {sKNOWN}, {NSLOT-k}"); A(f"s_cmp_ge_u32 {sT0}, {sN}"); A(f"s_cbranch_scc1 {ok}")
        E.label(lp)
        A(f"ds_read_b128 {Q4(vC)}, v{vFL} offset:16")
        spin_guard()
        A("s_waitcnt lgkmcnt(0)")
        A(f"v_min3_u32 v{vC}, v{vC}, v{vC+1}, v{vC+2}"); A(f"v_min_u32 v{vC}, v{vC}, v{vC+3}")
        A(f"v_readfirstlane_b32 {sKNOWN}, v{vC}")
        A(f"s_add_u32 {sT0}, {sKNOWN}, {NSLOT-k}"); A(f"s_cmp_ge_u32 {sT0}, {sN}"); A(f"s_cbranch_scc1 {ok}")
        A("s_sleep 1"); A(f"s_branch {lp}")
        E.label(ok)
    def claim(p): one_lane(f"global_atomic_add v{vCL[p]}, v{vCA}, v{vONE}, {pWS} sc0")

    E.label("L_loader")
    A("s_setprio 3")
    A(f"v_mov_b32 v{vFL}, v3"); A(f"v_lshlrev_b32 v{vLIN}, 4, v0"); A(f"s_mov_b32 {sFLOOR}, 0")
    A("s_mov_b32 s50, 3670016"); A("s_mov_b32 s51, 0x20000")
    A(f"s_mov_b64 s[52:53], s[{pK[0]}:{pK[1]}]"); A("s_mov_b32 s54, 0"); A("s_mov_b32 s55, 0x20000")
    A(f"s_cmp_ge_u32 {sROLE}, 4"); A("s_cbranch_scc1 L_ld_noq")
    tall_voffs(8192)
    A(f"s_mov_b64 s[48:49], s[{pWQ[0]}:{pWQ[1]}]")
    A(f"s_and_b32 {sOFF}, {sG}, 7"); A(f"s_lshl_b32 {sOFF}, {sOFF}, 3"); A(f"s_lshr_b32 {sT0}, {sG}, 3"); A(f"s_lshl_b32 {sT0}, {sT0}, 2")
    A(f"s_add_u32 {sOFF}, {sOFF}, {sT0}"); A(f"s_add_u32 {sOFF}, {sOFF}, {sROLE}"); A(f"s_lshl_b32 {sOFF}, {sOFF}, 7")
    A("s_mov_b32 m0, 0")
    E.label("L_ld_q")
    for i in range(2):
        A(f"buffer_load_dwordx4 v{vT[i]}, {srdW}, {sOFF} offen {pol} lds")
        A(f"s_add_u32 {sOFF}, {sOFF}, {8*8192}"); A("s_add_u32 m0, m0, 1024")
    A(f"s_cmp_lt_u32 m0, {56*1024}"); A("s_cbranch_scc1 L_ld_q")
    A(f"s_mov_b32 {sN}, 4"); A(f"s_mov_b32 {sSLOT}, {4*SLOT}"); A(f"s_mov_b32 {sFLOOR}, 4")
    A(f"v_mov_b32 v{vTMP}, 4"); A("s_waitcnt vmcnt(0)"); one_lane(f"ds_write_b32 v{vFL}, v{vTMP}")
    E.label("L_ld_noq")
    if forcepar is None:
        A(f"s_cmp_eq_u32 {sWG}, {15*16 + 3}"); A("s_cbranch_scc1 L_probe")
    E.label("L_ld_wo")
    A("v_lshrrev_b32 v1, 5, v0"); A("v_and_b32 v2, 31, v0")
    A("v_lshlrev_b32 v3, 1, v1"); A("v_xor_b32 v3, v2, v3"); A("v_lshlrev_b32 v3, 4, v3"); A("v_lshl_or_b32 v3, v1, 9, v3")
    for i in range(4): A(f"v_xor_b32 v{vV[i]}, {i*64}, v3")
    A(f"s_mov_b64 s[44:45], s[{pV[0]}:{pV[1]}]"); A("s_mov_b32 s46, 0x10000000"); A("s_mov_b32 s47, 0x20000")
    A(f"s_lshl_b32 {sGB}, {sWG}, 20")
    share_consts()
    A(f"s_cmp_lt_u32 {sIDX}, 28"); A(f"s_cbranch_scc1 L_ld_ffn")
    A(f"s_mov_b32 {sBASE}, {sGB}"); A(f"s_add_u32 {sT2}, {sN}, {park}")
    E.label("L_ld_pv")
    tile_rows([(srdV, vV[i%4], i*1024) for i in range(16)])
    A(f"s_add_u32 {sBASE}, {sBASE}, 16384")
    if ltouch: touch_pad("ld")
    A(f"s_cmp_lt_u32 {sN}, {sT2}"); A("s_cbranch_scc1 L_ld_pv")
    E.label("L_ld_head_done")
    A("v_lshrrev_b32 v1, 5, v0"); A("v_and_b32 v2, 31, v0")
    A("v_xor_b32 v3, v2, v1"); A("v_lshlrev_b32 v3, 4, v3"); A("v_lshl_or_b32 v3, v1, 9, v3")
    for i in range(8): A(f"v_xor_b32 v{vK[i]}, {i*32}, v3")
    A(f"s_lshl_b32 {sGB}, {sG}, 24"); A(f"s_lshl_b32 {sCUR}, {sJ}, 7")
    A(f"s_lshl_b32 {sT0}, {sG}, 8"); A(f"s_add_u32 {sT0}, {sT0}, {WS_CNT}"); A(f"v_mov_b32 v{vCA}, {sT0}"); A(f"v_mov_b32 v{vONE}, 1")
    A(f"s_mov_b64 s[40:41], s[{pK[0]}:{pK[1]}]"); A("s_mov_b32 s42, 0x10000000"); A("s_mov_b32 s43, 0x20000")
    if ltouch: pad("ld")
    E.label("L_ld_loop")
    if diag:
        for k,c in enumerate(ldst or (0,2,3,4,6,8,16,32,NS-5)):
            sk=lab("ls"); A(f"s_cmp_lg_u32 {sCI}, {c}"); A(f"s_cbranch_scc1 {sk}"); A(f"s_memrealtime s[{72+2*k}:{73+2*k}]"); A("s_waitcnt lgkmcnt(0)"); E.label(sk)
    A(f"s_add_u32 {sCI}, {sCI}, 1")
    A(f"s_lshl_b32 {sBASE}, {sCUR}, 13"); A(f"s_add_u32 {sBASE}, {sBASE}, {sGB}")
    for p,(srd,vo) in enumerate(((srdK,vK),(srdV,vV))):
        if p: A(f"s_cmp_le_u32 {sCI}, {sPK}"); A("s_cbranch_scc1 L_ld_nov")
        freecheck(1)
        sk = lab("nocl"); A(f"s_cmp_lt_u32 {sCI}, {sNS}"); A(f"s_cbranch_scc1 {sk}")
        claim(p)
        E.label(sk)
        tile_rows([(srd, vo[i%len(vo)], i*1024) for i in range(16)])
    E.label("L_ld_nov")
    A(f"s_add_u32 {sCUR}, {sCUR}, 2")
    A(f"s_cmp_lt_u32 {sCI}, {sNS}"); A("s_cbranch_scc1 L_ld_loop")
    E.label("L_ld_dyn")
    for p in range(2):
        A(f"v_readfirstlane_b32 {sCLM}, v{vCL[p]}")
        A(f"s_cmp_ge_u32 {sCLM}, {POOL}"); A("s_cbranch_scc1 L_ld_dyn_done")
        A(f"s_cmp_lt_u32 {sCLM}, {EXTRA}"); A(f"s_cbranch_scc1 L_ld_shed{p}")
        A(f"s_sub_u32 {sCLM}, {sCLM}, {EXTRA}")
        A(f"s_mul_hi_u32 {sT0}, {sCLM}, {-(-(1<<32)//TL)}"); A(f"s_mul_i32 {sT0}, {sT0}, {2*NS}"); A(f"s_add_u32 {sCUR}, {sCLM}, {sT0}"); A(f"s_add_u32 {sCUR}, {sCUR}, {2*NS}")
        E.label(f"L_ld_unit{p}")
        freecheck(1)
        claim(p)
        A(f"s_lshr_b32 {sBASE}, {sCUR}, 1"); A(f"s_lshl_b32 {sBASE}, {sBASE}, 14"); A(f"s_and_b32 {sT0}, {sCUR}, 1"); A(f"s_lshl_b32 {sT0}, {sT0}, 12")
        A(f"s_add_u32 {sBASE}, {sBASE}, {sT0}"); A(f"s_add_u32 {sBASE}, {sBASE}, {sGB}")
        tile_rows([(srdK, vK[i], i*2048) for i in range(8)] + [(srdV, vV[i%4], i*2048) for i in range(8)])
    A("s_branch L_ld_dyn")
    E.label("L_ld_dyn_done")
    A(f"v_mov_b32 v{vTMP}, {sN}"); one_lane(f"ds_write_b32 v{vFL}, v{vTMP} offset:4")
    A(f"s_mov_b64 s[48:49], s[{pWO[0]}:{pWO[1]}]"); A("s_mov_b32 s50, 3670016")
    A(f"s_and_b32 {sBASE}, {sWG}, 127"); A(f"s_mul_i32 {sBASE}, {sBASE}, {32*896}")
    freecheck(2)
    k = 0
    for t in range(2):
        for i in range(14):
            if i % 4 == 0:
                A(f"s_add_u32 m0, {sSLOT}, {i*1024}" if i else f"s_mov_b32 m0, {sSLOT}")
                A(f"s_add_u32 {sOFF}, {sBASE}, {t*14336+i*1024}")
            if k == wpre[0]: A(f"s_waitcnt vmcnt({16+k})"); publish(1+t)
            if k == wpre[1]: A(f"s_waitcnt vmcnt({k})"); publish(t)
            A(f"buffer_load_dwordx4 v{vLIN}, {srdW}, {sOFF} offen offset:{(i%4)*1024} lds")
            k += 1
        slot_advance()
    for c,back in ((14,1),(0,0)):
        A(f"s_waitcnt vmcnt({c})"); publish(back)
    if diag:
        A("s_mov_b64 exec, 1"); A("s_memrealtime s[90:91]")
        A(f"s_lshl_b32 {sT0}, {sWG}, 6"); A(f"s_add_u32 {sT0}, {sT0}, {WS_ST+0x40000}"); A(f"v_mov_b32 v46, {sT0}")
        A("s_waitcnt lgkmcnt(0)")
        for k in range(11): A(f"v_mov_b32 v{32+k}, s{70+2*k}")
        A(f"v_mov_b32 v43, {sSPIN}")
        for q in range(3): A(f"global_store_dwordx4 v46, v[{32+4*q}:{35+4*q}], {pWS} offset:{q*16}")
    A("s_waitcnt lgkmcnt(0)")
    A("s_endpgm")
    for p in range(2):
        E.label(f"L_ld_shed{p}")
        A(f"s_lshr_b32 {sT0}, {sCLM}, 3"); A(f"s_add_u32 {sT0}, {sT0}, 4"); A(f"s_and_b32 {sT1}, {sCLM}, 7"); A(f"s_add_u32 {sT1}, {sT1}, {2*(NS-4)}")
        A(f"s_bfe_u32 {sT2}, {sCLM}, 0x20002"); A(f"s_and_b32 {sCUR}, {sCLM}, 3"); A(f"s_add_u32 {sCUR}, {sCUR}, {2*(NS-2)+4*128}")
        A(f"s_cmp_lt_u32 {sCLM}, 16"); A(f"s_cselect_b32 {sT0}, {sT0}, {sT2}"); A(f"s_cselect_b32 {sCUR}, {sT1}, {sCUR}")
        A(f"s_add_u32 {sT0}, {sT0}, {sG}"); A(f"s_and_b32 {sT1}, {sT0}, 3"); A(f"s_bfe_u32 {sT0}, {sT0}, 0x10002"); A(f"s_lshl_b32 {sT0}, {sT0}, 3"); A(f"s_add_u32 {sT0}, {sT0}, {sT1}")
        A(f"s_lshl_b32 {sT0}, {sT0}, 7"); A(f"s_add_u32 {sCUR}, {sCUR}, {sT0}")
        A(f"s_branch L_ld_unit{p}")

    def SEL4(dst, a, b, c, d, t):
        A(f"v_cndmask_b32 v{dst}, v{a}, v{b}, {sM1}"); A(f"v_cndmask_b32 v{t}, v{c}, v{d}, {sM1}"); A(f"v_cndmask_b32 v{dst}, v{dst}, v{t}, {sM2}")
    def xrow(op, regs, tmps):
        for sw in ("v_permlane16_swap_b32","v_permlane32_swap_b32"):
            for r,t in zip(regs,tmps): A(f"v_mov_b32 v{t}, v{r}")
            for r,t in zip(regs,tmps): A(f"{sw} v{r}, v{t}")
            for r,t in zip(regs,tmps): A(f"{op} v{r}, v{r}, v{t}")
    def round_bf(dst, src): A(f"v_cvt_pk_bf16_f32 v{dst}, v{src}, v{src}"); A(f"v_and_b32 v{dst}, 0xffff0000, v{dst}")
    def unpack(lo, hi, src): A(f"v_lshlrev_b32 v{lo}, 16, v{src}"); A(f"v_and_b32 v{hi}, 0xffff0000, v{src}")
    def pub_cons():
        slot_advance()
        A(f"v_mov_b32 v{vTM}, {sN}"); one_lane(f"ds_write_b32 v{vCONS}, v{vTM}")
    def wait_tile(fin=None):
        ok = lab("have"); lp = lab("poll")
        if fin: A(f"s_cmp_eq_u32 {sTOT}, {sN}"); A(f"s_cbranch_scc1 {fin}")
        A(f"s_cmp_gt_u32 {sKNOWN}, {sN}"); A(f"s_cbranch_scc1 {ok}")
        E.label(lp)
        A(f"ds_read_b64 {P(vAD[0])}, v{vFLG}")
        spin_guard()
        A("s_waitcnt lgkmcnt(0)")
        A(f"v_readfirstlane_b32 {sKNOWN}, v{vAD[0]}"); A(f"v_readfirstlane_b32 {sTOT}, v{vAD[1]}")
        if fin:
            nw = lab("nw")
            A(f"s_cmp_ge_u32 {sTOT}, {sWRM}"); A(f"s_cbranch_scc1 {nw}")
            A(f"s_mov_b32 {sWRM}, 0"); A(f"global_load_dword v{vX+2}, v{vX+3}, {pWS} {ldf}")
            E.label(nw)
            A(f"s_cmp_eq_u32 {sTOT}, {sN}"); A(f"s_cbranch_scc1 {fin}")
        A(f"s_cmp_gt_u32 {sKNOWN}, {sN}"); A(f"s_cbranch_scc1 {ok}")
        if nap or not fin: A("s_sleep 1")
        A(f"s_branch {lp}")
        E.label(ok)
    def poll(loads, tags, first_mask=None, issued=False):
        lp = lab("gpoll"); n = len(loads)
        chk = lab("gchk")
        if issued: A(f"s_branch {chk}")
        else:
            for i in range(n): A(f"s_mov_b64 {sCK[i]}, {first_mask[i] if first_mask else -1}")
        E.label(lp)
        for i,l in enumerate(loads):
            sk = lab("sk")
            A(f"s_mov_b64 exec, {sCK[i]}"); A(f"s_cbranch_execz {sk}"); A(l); E.label(sk)
        A("s_mov_b64 exec, -1")
        spin_guard()
        if issued: E.label(chk)
        A("s_waitcnt vmcnt(0)")
        for i in range(n):
            A(f"v_cmp_ne_u32 {sCK[i]}, {sTAG}, v{tags[i][0]}")
            for t in tags[i][1:]:
                A(f"v_cmp_ne_u32 vcc, {sTAG}, v{t}"); A(f"s_or_b64 {sCK[i]}, {sCK[i]}, vcc")
        A(f"s_or_b64 vcc, {sCK[0]}, {sCK[min(1,n-1)]}")
        for i in range(2, n): A(f"s_or_b64 vcc, vcc, {sCK[i]}")
        A(f"s_cbranch_scc1 {lp}")
    def layernorm(xr, f, lnbase, stride, mid=None):
        s1=vTM; t=vTM2; mu=vX; a=vX+2; b=vX+4
        for u in range(7): unpack(f+2*u, f+2*u+1, xr[u])
        A(f"v_pk_add_f32 {P(a)}, {P(f)}, {P(f+2)}"); A(f"v_pk_add_f32 {P(b)}, {P(f+4)}, {P(f+6)}")
        A(f"v_pk_add_f32 {P(a)}, {P(a)}, {P(f+8)}"); A(f"v_pk_add_f32 {P(b)}, {P(b)}, {P(f+10)}")
        A(f"v_pk_add_f32 {P(a)}, {P(a)}, {P(f+12)}"); A(f"v_pk_add_f32 {P(a)}, {P(a)}, {P(b)}")
        A(f"v_add_f32 v{s1}, v{a}, v{a+1}")
        red32 = [f"v_add_f32_dpp v{s1}, v{s1}, v{s1} row_ror:{k} row_mask:0xf bank_mask:0xf" for k in (8,4,2,1)]
        red32 += [f"v_mov_b32 v{t}, v{s1}", f"v_permlane16_swap_b32 v{s1}, v{t}", f"v_add_f32 v{s1}, v{s1}, v{t}"]
        for l in red32: A(l)
        A(f"v_mul_f32 v{mu}, {INV448:#x}, v{s1}")
        NEG = "op_sel_hi:[1,0] neg_lo:[0,1] neg_hi:[0,1]"
        A(f"v_pk_add_f32 {P(b)}, {P(f)}, {P(mu)} {NEG}")
        A(f"v_pk_mul_f32 {P(a)}, {P(b)}, {P(b)}")
        for u in range(1,7):
            A(f"v_pk_add_f32 {P(b)}, {P(f+2*u)}, {P(mu)} {NEG}")
            A(f"v_pk_fma_f32 {P(a)}, {P(b)}, {P(b)}, {P(a)}")
        A(f"v_add_f32 v{s1}, v{a}, v{a+1}")
        round_bf(mu, mu)
        fill = [f"v_pk_add_f32 {P(f+2*u)}, {P(f+2*u)}, {P(mu)} {NEG}" for u in range(7)] + [f"v_cvt_pk_bf16_f32 v{xr[u]}, v{f+2*u}, v{f+2*u+1}" for u in range(7)]
        for u in range(7): fill += [f"v_lshlrev_b32 v{f+2*u}, 16, v{xr[u]}", f"v_and_b32 v{f+2*u+1}, 0xffff0000, v{xr[u]}"]
        rb = [f"v_cvt_pk_bf16_f32 v{s1}, v{s1}, v{s1}", f"v_and_b32 v{s1}, 0xffff0000, v{s1}"]
        chain = red32 + [f"v_mul_f32 v{s1}, {INV448:#x}, v{s1}"] + rb + [f"v_add_f32 v{s1}, {EPS:#x}, v{s1}"] + rb + [f"v_sqrt_f32 v{s1}, v{s1}"] + rb + [f"v_rcp_f32 v{a}, v{s1}"]
        while chain or fill:
            for _ in range(2):
                if fill: A(fill.pop(0))
            if chain: A(chain.pop(0))
        if mid: mid()
        for u in range(7): A(f"v_pk_mul_f32 {P(f+2*u)}, {P(f+2*u)}, {P(a)} op_sel_hi:[1,0]")
        for u in range(7):
            A(f"v_cvt_pk_bf16_f32 v{xr[u]}, v{f+2*u}, v{f+2*u+1}")
            A(f"ds_write_b32 v{lnbase}, v{xr[u]} offset:{u*stride}")
    def ln_read_addr(rd, base):
        A(f"v_and_b32 v{rd}, 1, v{vLANE}"); A(f"v_mul_u32_u24 v{rd}, 896, v{rd}")
        A(f"v_lshl_add_u32 v{rd}, v{vG4}, 4, v{rd}"); A(f"v_add_u32 v{rd}, {base}, v{rd}")
    def tall_addr(dst):
        A(f"v_lshrrev_b32 v{vTM}, 3, v{vN}")
        A(f"v_and_b32 v{vTM2}, 1, v{vG4}"); A(f"v_lshl_or_b32 v{vTM}, v{vTM2}, 1, v{vTM}")
        A(f"v_xor_b32 v{vTM}, {sW}, v{vTM}"); A(f"v_lshlrev_b32 v{vTM}, 5, v{vTM}")
        A(f"v_and_b32 v{vTM2}, 3, v{vN}"); A(f"v_lshl_or_b32 v{vTM}, v{vTM2}, 3, v{vTM}")
        A(f"v_lshrrev_b32 v{vTM2}, 2, v{vN}"); A(f"v_lshl_or_b32 v{vTM}, v{vTM2}, 7, v{vTM}")
        A(f"v_lshl_or_b32 v{dst}, v{vG4}, 10, v{vTM}")
    def wide_addr(dst):
        A(f"v_lshrrev_b32 v{vTM}, 2, v{vN}"); A(f"v_lshl_add_u32 v{vTM}, v{vG4}, 2, v{vTM}"); A(f"v_mul_u32_u24 v{vTM}, 896, v{vTM}")
        A(f"v_and_b32 v{vTM2}, 3, v{vN}"); A(f"v_lshl_add_u32 v{vTM}, v{vTM2}, 3, v{vTM}")
        A(f"s_mul_i32 {sT0}, {sW}, 224"); A(f"v_add_u32 v{dst}, {sT0}, v{vTM}")
    def read_tall_tile(base, dstreg, t):
        wait_tile()
        A(f"v_add_u32 v{vAD[0]}, {sSLOT}, v{base}")
        for s in range(4 if t < 3 else 2):
            for h2 in range(2):
                A(f"ds_read_b64_tr_b16 {P(dstreg + 4*(4*t+s) + 2*h2)}, v{vAD[0]} offset:{s*4096+h2*512}")
        A("s_waitcnt lgkmcnt(0)")
        pub_cons()
    def read_wide_tile(base, dstreg, half):
        wait_tile()
        A(f"v_add_u32 v{vAD[0]}, {sSLOT}, v{base}")
        for tt in range(7): A(f"ds_read_b64_tr_b16 {P(dstreg + 4*tt + 2*half)}, v{vAD[0]} offset:{tt*32}")
        A("s_waitcnt lgkmcnt(0)")
        pub_cons()
    def basic_setup():
        A(f"s_sub_u32 {sW}, {sWAVE}, 1"); A(f"s_lshr_b32 {sB}, {sG}, 3"); A(f"s_and_b32 {sHKV}, {sG}, 7")
        A(f"v_and_b32 v{vN}, 15, v{vLANE}"); A(f"v_lshrrev_b32 v{vG4}, 4, v{vLANE}")
        A(f"s_lshl_b32 {sT0}, {sW}, 2"); A(f"s_add_u32 {sT0}, {sT0}, {L_CONS}"); A(f"v_mov_b32 v{vCONS}, {sT0}")
        A("s_mov_b32 s42, 0xffff0000"); A("s_mov_b32 s43, s42")

    if align: A(".p2align 12")
    E.label("L_qprod")
    f14 = vWO+8; vLR = vWO+25; vTA = vWO+26; vQA = vWO+27
    basic_setup()
    A(f"s_or_b32 {sT0}, {sROLE}, {sW}"); A(f"s_cmp_lg_u32 {sT0}, 0"); A("s_cbranch_scc1 L_noinit")
    A(f"s_lshl_b32 {sT0}, {sG}, 8"); A(f"s_add_u32 {sT0}, {sT0}, {WS_CNT}")
    A(f"v_mov_b32 v{vTM2}, {sT0}"); A(f"v_mov_b32 v{vTM3}, 0")
    one_lane(f"global_store_dword v{vTM2}, v{vTM3}, {pWS} {stf}")
    E.label("L_noinit")
    A(f"s_lshl_b32 {sT2}, {sW}, 11"); A(f"s_add_u32 {sT2}, {sT2}, {L_LN}")
    A(f"v_add_u32 v{vLW1}, {sT2}, v{vLW1}")
    ln_read_addr(vLR, sT2)
    tall_addr(vTA)
    A(f"s_lshl_b32 {sT0}, {sB}, 2"); A(f"s_add_u32 {sT0}, {sT0}, {sROLE}"); A(f"s_lshl_b32 {sT0}, {sT0}, 2"); A(f"s_add_u32 {sT0}, {sT0}, {sW}")
    A(f"s_lshl_b32 {sT0}, {sT0}, 6"); A(f"s_lshl_b32 {sT1}, {sHKV}, 11"); A(f"s_add_u32 {sT0}, {sT0}, {sT1}"); A(f"s_add_u32 {sT0}, {sT0}, {WS_Q}")
    A(f"v_lshlrev_b32 v{vQA}, 2, v{vN}"); A(f"v_lshl_add_u32 v{vQA}, v{vG4}, 14, v{vQA}"); A(f"v_add_u32 v{vQA}, {sT0}, v{vQA}")
    if qtouch: touch_pad("q")
    A("s_waitcnt vmcnt(0) lgkmcnt(0)")
    stamp(12)
    layernorm(xr1, f14, vLW1, 128, mid=(lambda: pad("q")) if qtouch else None)
    make_tag(sTAG, sE); A(f"v_mov_b32 v{vX+1}, {sTAG}")
    A("s_waitcnt lgkmcnt(0)")
    stamp(13)
    for s in range(14): A(f"ds_read_b128 {Q4(vW2+4*s)}, v{vLR} offset:{s*64}")
    A(f"s_mov_b32 {sN}, 3"); wait_tile()
    stamp(14)
    for s in range(14):
        for h2 in range(2): A(f"ds_read_b64_tr_b16 {P(vW1 + 4*s + 2*h2)}, v{vTA} offset:{s*4096+h2*512}")
        if s % 4 == 3 or s == 13:
            A(f"s_waitcnt lgkmcnt(0)")
            for k in range(s - s % 4, s+1):
                A(f"v_mfma_f32_16x16x32_bf16 {Q4(vS)}, {Q4(vW2+4*k)}, {Q4(vW1+4*k)}, {'0' if k==0 else Q4(vS)}")
    A(f"s_mov_b32 {sSLOT}, {3*SLOT}"); pub_cons()
    A(f"v_cndmask_b32 v{vTM}, v{vS}, v{vS+1}, {sM1}")
    A(f"v_mov_b32_dpp v{vTM2}, v{vTM} quad_perm:[1,0,3,2] row_mask:0xf bank_mask:0xf")
    A(f"v_cvt_pk_bf16_f32 v{vX}, v{vTM}, v{vTM2}")
    A("s_mov_b64 exec, 0x55555555")
    A(f"global_store_dwordx2 v{vQA}, {P(vX)}, {pWS} {stf}")
    A("s_mov_b64 exec, -1")
    stamp(1)

    E.label("L_consumer")
    basic_setup()
    share_consts()
    A("s_mov_b32 s44, 0"); A("s_mov_b32 s45, -1"); A(f"s_mov_b32 {sC}, {C_SCALE:#x}"); A("s_mov_b32 s66, -1"); A("s_mov_b32 s67, 0"); A(f"s_mov_b32 {sTOT}, 0x7fffffff"); A(f"s_mov_b32 {sKNOWN}, 0")
    if hilo: A("s_mov_b32 s64, 0xcccccccc"); A("s_mov_b32 s65, 0xcccccccc")
    stamp(11)
    A(f"s_sub_u32 {sT0}, {sROLE}, 4"); A(f"s_lshl_b32 {sRR}, {sG}, 2"); A(f"s_add_u32 {sRR}, {sRR}, {sT0}")
    A(f"s_cmp_lt_u32 {sT0}, 4"); A(f"s_cselect_b32 {sRR}, {sRR}, 99"); A("s_cbranch_scc0 L_nox")
    A(f"s_bfe_u32 {sT0}, {sRR}, 0x20003"); A(f"s_mul_i32 {sCOL}, {sT0}, 224")
    A(f"s_bfe_u32 {sGP}, {sRR}, 0x20001"); A(f"s_lshl_b32 {sT0}, {sGP}, 6"); A(f"s_add_u32 {sCOL}, {sCOL}, {sT0}")
    A(f"s_and_b32 {sT0}, {sRR}, 1"); A(f"s_lshl_b32 {sT0}, {sT0}, 4"); A(f"s_add_u32 {sCOL}, {sCOL}, {sT0}")
    A(f"s_bfe_u32 {sT0}, {sRR}, 0x10005"); A(f"s_mul_i32 {sT0}, {sT0}, 896"); A(f"s_add_u32 {sCOL}, {sCOL}, {sT0}")
    A(f"v_and_b32 v{vTM}, 6, v{vLANE}"); A(f"v_lshl_add_u32 v{vTM}, v{vTM}, 1, {sCOL}")
    A(f"global_load_dword v{vXH}, v{vTM}, {pX}")
    A(f"v_mov_b32 v{vXH+1}, 0")
    A(f"s_cmp_eq_u32 {sGP}, 3"); A("s_cbranch_scc1 L_nox")
    A(f"global_load_dword v{vXH+1}, v{vTM}, {pX} offset:32")
    E.label("L_nox")
    A(f"v_xor_b32 v{vTM}, v{vG4}, v{vN}"); A(f"v_lshlrev_b32 v{vTM}, 4, v{vTM}"); A(f"v_lshl_or_b32 v{vTM}, v{vN}, 9, v{vTM}")
    for s in range(4): A(f"v_xor_b32 v{vKB[s]}, {s*64}, v{vTM}")
    A(f"v_lshrrev_b32 v{vTM}, 2, v{vN}"); A(f"v_lshl_add_u32 v{vTM}, v{vG4}, 2, v{vTM}")
    A(f"v_and_b32 v{vTM2}, 7, v{vTM}")
    A(f"s_lshl_b32 {sT0}, {sW}, 2"); A(f"v_xor_b32 v{vTM2}, {sT0}, v{vTM2}"); A(f"v_lshlrev_b32 v{vTM2}, 5, v{vTM2}")
    A(f"v_lshl_or_b32 v{vTM}, v{vTM}, 9, v{vTM2}")
    A(f"v_and_b32 v{vTM2}, 3, v{vN}"); A(f"v_lshl_or_b32 v{vTM}, v{vTM2}, 3, v{vTM}")
    for e in range(4): A(f"v_xor_b32 v{vVB[e]}, {e*32}, v{vTM}")
    A(f"v_mov_b32 v{vM}, 0xff800000"); A(f"v_mov_b32 v{vMC}, v{vM}"); A(f"v_mov_b32 v{vL}, 0")
    for i in range(16): A(f"v_mov_b32 v{vO+i}, 0")
    A(f"s_cmp_lt_u32 {sIDX}, 28"); A("s_cbranch_scc1 L_ffn_w")
    def vtile_read(dst):
        for e in range(4): A(f"v_add_u32 v{vAD[e]}, {sSLOT}, v{vVB[e]}")
        for e in range(4):
            for h2 in range(2): A(f"ds_read_b64_tr_b16 {P(dst + 4*e + 2*h2)}, v{vAD[e]} offset:{h2*8192}")
    for p in range(park):
        wait_tile(); vtile_read(vW1+16*p); A("s_waitcnt lgkmcnt(0)"); pub_cons()
    E.label("L_ffn_w_done")
    make_tag(sTAG, sE)
    A(f"s_cmp_lg_u32 {sW}, 0"); A("s_cbranch_scc1 L_q_flag")
    if qwait:
        A(f"s_add_u32 {sN}, {sN}, {qwait-1}"); wait_tile(); A(f"s_sub_u32 {sN}, {sN}, {qwait-1}")
    A(f"s_lshl_b32 {sT0}, {sG}, 11"); A(f"s_add_u32 {sT0}, {sT0}, {WS_Q}")
    A(f"v_lshl_add_u32 v{vTM3}, v{vLANE}, 4, {sT0}")
    poll([f"global_load_dwordx4 {Q4(vF)}, v{vTM3}, {pWS} {ldf}", f"global_load_dwordx4 {Q4(vF+4)}, v{vTM3}, {pWS} offset:1024 {ldf}"],
         [[vF+1, vF+3], [vF+5, vF+7]])
    A(f"v_lshlrev_b32 v{vTM}, 3, v{vLANE}"); A(f"v_add_u32 v{vTM}, {L_QW}, v{vTM}"); A(f"v_mov_b32 v{vTM2}, 1")
    A(f"ds_write2_b32 v{vTM}, v{vF}, v{vF+2} offset0:0 offset1:1"); A(f"ds_write2_b32 v{vTM}, v{vF+4}, v{vF+6} offset0:128 offset1:129")
    one_lane(f"ds_write_b32 v{vFLG}, v{vTM2} offset:32")
    E.label("L_q_flag")
    A(f"ds_read_b32 v{vTM}, v{vFLG} offset:32")
    spin_guard()
    A("s_waitcnt lgkmcnt(0)")
    A(f"v_readfirstlane_b32 {sT0}, v{vTM}")
    A(f"s_cmp_eq_u32 {sT0}, 1"); A("s_cbranch_scc1 L_q_have")
    A("s_sleep 1"); A("s_branch L_q_flag")
    E.label("L_q_have")
    A(f"v_and_b32 v{vTM2}, 1, v{vLANE}"); A(f"v_lshlrev_b32 v{vTM2}, 9, v{vTM2}"); A(f"v_lshl_add_u32 v{vTM2}, v{vG4}, 4, v{vTM2}"); A(f"v_add_u32 v{vTM2}, {L_QW}, v{vTM2}")
    for s in range(8): A(f"ds_read_b128 {Q4(vQ+4*s)}, v{vTM2} offset:{s*64}")
    stamp(2)
    A("s_waitcnt lgkmcnt(0)")

    def qk(nt):
        for s in range(4): A(f"v_add_u32 v{vAD[s]}, {sSLOT}, v{vKB[s]}")
        seq = [(t,s) for s in range(8) for t in range(nt)]; n = len(seq)
        def kread(i):
            t,s = seq[i]; A(f"ds_read_b128 {Q4(vF + 4*(i % NF))}, v{vAD[s&3]} offset:{(s>>2)*256 + t*8192}")
        for i in range(NF): kread(i)
        for i in range(n):
            t,s = seq[i]
            A(f"s_waitcnt lgkmcnt({min(NF-1, n-1-i)})")
            d = Q4(vS+4*t)
            A(f"v_mfma_f32_16x16x32_bf16 {d}, {Q4(vF + 4*(i % NF))}, {Q4(vQ+4*s)}, {'0' if s==0 else d}")
            if i + NF < n: kread(i+NF)
    def softmax(nt, tag):
        n = 4*nt
        for i in range(n//2): A(f"v_cvt_pk_bf16_f32 v{vP+i}, v{vS+2*i}, v{vS+2*i+1}")
        for i in range(n//2): unpack(vS+2*i, vS+2*i+1, vP+i)
        if nt == 2:
            A(f"v_max3_f32 v{vMX}, v{vS}, v{vS+1}, v{vS+2}"); A(f"v_max3_f32 v{vTM}, v{vS+3}, v{vS+4}, v{vS+5}")
            A(f"v_max3_f32 v{vMX}, v{vMX}, v{vS+6}, v{vS+7}"); A(f"v_max_f32 v{vMX}, v{vMX}, v{vTM}")
        else:
            A(f"v_max3_f32 v{vMX}, v{vS}, v{vS+1}, v{vS+2}"); A(f"v_max_f32 v{vMX}, v{vMX}, v{vS+3}")
        xrow("v_max_f32", [vMX], [vTM])
        A(f"v_cmp_gt_f32 vcc, v{vMX}, v{vM}")
        A("s_cmp_lg_u64 vcc, 0"); A(f"s_cbranch_scc1 L_rescale{tag}")
        E.label(f"L_rescaled{tag}")
        for i in range(n): A(f"v_fma_f32 v{vS+i}, v{vS+i}, {sC}, -v{vMC}")
        for i in range(n): A(f"v_exp_f32 v{vS+i}, v{vS+i}")
        for i in range(n//2): A(f"v_cvt_pk_bf16_f32 v{vP+i}, v{vS+2*i}, v{vS+2*i+1}")
        if hilo:
            for i in range(n//2):
                t = vF+16+2*(i&1)
                unpack(t, t+1, vP+i)
                A(f"v_pk_add_f32 {P(t)}, {P(vS+2*i)}, {P(t)} neg_lo:[0,1] neg_hi:[0,1]")
                A(f"v_cvt_pk_bf16_f32 v{t}, v{t}, v{t+1}")
                A(f"v_cndmask_b32 v{vP+i}, v{vP+i}, v{t}, s[64:65]")
    def add_l(nt):
        A(f"v_add_f32 v{vTM}, v{vS}, v{vS+1}"); A(f"v_add_f32 v{vMX}, v{vS+2}, v{vS+3}")
        if nt == 2:
            A(f"v_add_f32 v{vS+4}, v{vS+4}, v{vS+5}"); A(f"v_add_f32 v{vS+6}, v{vS+6}, v{vS+7}")
            A(f"v_add_f32 v{vTM}, v{vTM}, v{vS+4}"); A(f"v_add_f32 v{vMX}, v{vMX}, v{vS+6}")
        A(f"v_add_f32 v{vL}, v{vL}, v{vTM}"); A(f"v_add_f32 v{vL}, v{vL}, v{vMX}")
    def rescale(tag):
        E.label(f"L_rescale{tag}")
        A(f"v_max_f32 v{vM}, v{vM}, v{vMX}")
        A(f"v_mul_f32 v{vTM}, {sC}, v{vM}")
        A(f"v_sub_f32 v{vTM2}, v{vMC}, v{vTM}")
        A(f"v_mov_b32 v{vMC}, v{vTM}")
        A(f"v_exp_f32 v{vTM2}, v{vTM2}")
        A(f"v_mul_f32 v{vL}, v{vL}, v{vTM2}")
        A(f"v_mov_b32_dpp v{vTM}, v{vTM2} quad_perm:[0,0,2,2] row_mask:0xf bank_mask:0xf")
        A(f"v_mov_b32_dpp v{vTM3}, v{vTM2} quad_perm:[1,1,3,3] row_mask:0xf bank_mask:0xf")
        for i in range(16): A(f"v_mul_f32 v{vO+i}, v{vO+i}, v{vTM if i%2==0 else vTM3}")
        A(f"s_branch L_rescaled{tag}")
    E.label("L_loop")
    wait_tile()
    qk(2)
    pub_cons()
    softmax(2, "a"); add_l(2)
    A(f"s_cmp_lt_u32 {sCI}, {sPK}"); A("s_cbranch_scc1 L_pv_park")
    wait_tile()
    vtile_read(vF)
    for e in range(4):
        A(f"s_waitcnt lgkmcnt({6-2*e})")
        A(f"v_mfma_f32_16x16x32_bf16 {Q4(vO+4*e)}, {Q4(vP)}, {Q4(vF+4*e)}, {Q4(vO+4*e)}")
    pub_cons()
    E.label("L_pv_done")
    A(f"s_add_u32 {sCI}, {sCI}, 1"); A(f"s_cmp_lt_u32 {sCI}, {sNS}"); A("s_cbranch_scc1 L_loop")
    if touch:
        for nm in ("fin","red","ffn","ffn2"): touch_pad(nm)
    if forcepar is None:
        A(f"v_mov_b32 v{vTM}, {WS_PAR}")
        poll([f"global_load_dwordx4 {Q4(vF)}, v{vTM}, {pWS} {ldf}"], [[vF+1, vF+3]])
        A(f"v_readfirstlane_b32 {sP0}, v{vF}"); A(f"v_readfirstlane_b32 {sP1}, v{vF+2}")
    else:
        A(f"s_mov_b32 {sP0}, {forcepar[0]*8192}"); A(f"s_mov_b32 {sP1}, {forcepar[1]*8192}")
    A(f"s_lshl_b32 {sT0}, {sG}, 2"); A(f"s_and_b32 {sT1}, {sW}, 1"); A(f"s_add_u32 {sT0}, {sT0}, {sT1}"); A(f"s_lshl_b32 {sT0}, {sT0}, 14")
    A(f"s_lshr_b32 {sT1}, {sW}, 1"); A(f"s_lshl_b32 {sT1}, {sT1}, 13"); A(f"s_xor_b32 {sT1}, {sT1}, {sP0}"); A(f"s_add_u32 {sT0}, {sT0}, {sT1}")
    A(f"s_lshl_b32 {sT1}, {sJ}, 8"); A(f"s_add_u32 {sT0}, {sT0}, {sT1}"); A(f"s_add_u32 {sT0}, {sT0}, {WS_A}")
    A(f"v_lshrrev_b32 v{vAA}, 1, v{vG4}"); A(f"v_lshlrev_b32 v{vAA}, 15, v{vAA}")
    A(f"v_and_b32 v{vTM}, 1, v{vG4}"); A(f"v_lshl_or_b32 v{vAA}, v{vTM}, 12, v{vAA}"); A(f"v_lshl_or_b32 v{vAA}, v{vN}, 4, v{vAA}")
    A(f"v_add_u32 v{vAA}, {sT0}, v{vAA}")
    A(f"s_lshr_b32 {sT0}, {sWG}, 3"); A(f"s_lshl_b32 {sT0}, {sT0}, 1"); A(f"s_bfe_u32 {sT1}, {sWG}, 0x10001"); A(f"s_add_u32 {sT0}, {sT0}, {sT1}"); A(f"s_lshl_b32 {sT0}, {sT0}, 14")
    A(f"s_bfe_u32 {sT1}, {sWG}, 0x10002"); A(f"s_lshl_b32 {sT1}, {sT1}, 13"); A(f"s_xor_b32 {sT1}, {sT1}, {sP0}"); A(f"s_add_u32 {sT0}, {sT0}, {sT1}")
    A(f"s_and_b32 {sT1}, {sWG}, 1"); A(f"s_lshl_b32 {sT1}, {sT1}, 12"); A(f"s_add_u32 {sT0}, {sT0}, {sT1}"); A(f"s_add_u32 {sT0}, {sT0}, {WS_A}")
    A(f"v_lshlrev_b32 v{vAI}, 4, v{vN}"); A(f"v_lshl_or_b32 v{vAI}, v{vG4}, 10, v{vAI}"); A(f"v_add_u32 v{vAI}, {sT0}, v{vAI}")
    A(f"v_lshl_add_u32 v{vX+3}, v{vLANE}, 6, {sT0}")
    A(f"s_cmp_eq_u32 {sW}, 0"); A(f"s_cselect_b32 {sWRM}, 0x7fffffff, 0")
    A(f"s_cmp_ge_u32 {sRR}, 64"); A(f"s_cbranch_scc1 L_nored"); A(f"s_sub_u32 {sT0}, {sW}, 1"); A(f"s_cmp_ge_u32 {sT0}, 2"); A(f"s_cbranch_scc1 L_nored")
    A(f"s_lshl_b32 {sT0}, {sT0}, 14"); A(f"s_lshl_b32 {sT1}, {sRR}, 15"); A(f"s_add_u32 {sT0}, {sT0}, {sT1}"); A(f"s_add_u32 {sT0}, {sT0}, {sP1}"); A(f"s_add_u32 {sT0}, {sT0}, {WS_B}")
    A(f"v_lshl_add_u32 v{vX+3}, v{vLANE}, 7, {sT0}"); A(f"s_mov_b32 {sWRM}, 0x7fffffff")
    E.label("L_nored")
    A(f"s_lshl_b32 {sT0}, {sB}, 2"); A(f"s_add_u32 {sT0}, {sT0}, {sW}"); A(f"s_lshl_b32 {sT0}, {sT0}, 18")
    A(f"s_bfe_u32 {sT1}, {sWG}, 0x10006"); A(f"s_lshl_b32 {sT1}, {sT1}, 14"); A(f"s_add_u32 {sT0}, {sT0}, {sT1}"); A(f"s_add_u32 {sT0}, {sT0}, {sP1}")
    A(f"s_and_b32 {sT1}, {sWG}, 63"); A(f"s_lshl_b32 {sT1}, {sT1}, 7"); A(f"s_add_u32 {sT0}, {sT0}, {sT1}"); A(f"s_add_u32 {sT0}, {sT0}, {WS_B}")
    A(f"v_lshrrev_b32 v{vTM}, 3, v{vLANE}"); A(f"v_lshlrev_b32 v{vTM}, 15, v{vTM}")
    A(f"v_and_b32 v{vTM2}, 7, v{vLANE}"); A(f"v_lshl_or_b32 v{vBA}, v{vTM2}, 4, v{vTM}"); A(f"v_add_u32 v{vBA}, {sT0}, v{vBA}")
    E.label("L_mini")
    wait_tile("L_fin")
    qk(1)
    for e in range(4): A(f"v_add_u32 v{vAD[e]}, {sSLOT}, v{vVB[e]}")
    for e in range(4): A(f"ds_read_b64_tr_b16 {P(vF + 2*e)}, v{vAD[e]} offset:8192")
    softmax(1, "b")
    A("s_waitcnt lgkmcnt(0)")
    for e in range(4): A(f"v_mfma_f32_16x16x16_bf16 {Q4(vO+4*e)}, {P(vP)}, {P(vF+2*e)}, {Q4(vO+4*e)}")
    add_l(1)
    slot_advance()
    A(f"s_cmp_eq_u32 {sN}, {sTOT}"); A("s_cbranch_scc1 L_fin")
    A(f"v_mov_b32 v{vTM}, {sN}"); one_lane(f"ds_write_b32 v{vCONS}, v{vTM}")
    A("s_branch L_mini")
    rescale("b"); rescale("a")
    E.label("L_pv_park")
    for p in range(park):
        if p < park-1: nx = lab("pk"); A(f"s_cmp_lg_u32 {sCI}, {p}"); A(f"s_cbranch_scc1 {nx}")
        for e in range(4): A(f"v_mfma_f32_16x16x32_bf16 {Q4(vO+4*e)}, {Q4(vP)}, {Q4(vW1+16*p+4*e)}, {Q4(vO+4*e)}")
        A("s_branch L_pv_done")
        if p < park-1: E.label(nx)

    vG=vF; vI=vF+4; sa=vS; sb=vS+1; sw=vS+2
    vA=vQ; vOPR=vQ+4; vOPW=vQ+5; vR0=vQ+6; vR1=vQ+7; vR2=vQ+8; vR3=vQ+9; vR4=vQ+10; vR5=vQ+11; vZ=vQ+12
    E.label("L_ffn_addr")
    A(f"v_lshrrev_b32 v{vTM}, 3, v{vLANE}"); A(f"v_and_b32 v{vTM2}, 7, v{vLANE}")
    A(f"v_lshlrev_b32 v{vR0}, 9, v{vTM}"); A(f"v_lshl_or_b32 v{vR0}, v{vTM2}, 4, v{vR0}"); A(f"s_add_u32 {sT0}, {sP0}, {WS_H}"); A(f"v_add_u32 v{vR0}, {sT0}, v{vR0}")
    A(f"v_mul_u32_u24 v{vR1}, 224, v{vTM}"); A(f"v_lshl_add_u32 v{vR1}, v{vTM2}, 2, v{vR1}"); A(f"v_add_u32 v{vR1}, {L_LN}, v{vR1}")
    ln_read_addr(vR2, L_LN)
    A(f"s_lshl_b32 {sT0}, {sW}, 5"); A(f"s_add_u32 {sT0}, {sT0}, {L_ACT}")
    A(f"v_lshlrev_b32 v{vR3}, 7, v{vG4}"); A(f"v_lshl_add_u32 v{vR3}, v{vN}, 1, v{vR3}"); A(f"v_add_u32 v{vR3}, {sT0}, v{vR3}")
    A(f"v_and_b32 v{vR4}, 1, v{vLANE}"); A(f"v_lshlrev_b32 v{vR4}, 7, v{vR4}"); A(f"v_lshl_add_u32 v{vR4}, v{vG4}, 3, v{vR4}"); A(f"v_add_u32 v{vR4}, {L_ACT}, v{vR4}")
    A(f"s_lshl_b32 {sT0}, {sW}, 16"); A(f"s_lshl_b32 {sT1}, {sIDX}, 7"); A(f"s_add_u32 {sT0}, {sT0}, {sT1}"); A(f"s_add_u32 {sT0}, {sT0}, {sP0}"); A(f"s_add_u32 {sT0}, {sT0}, {WS_D}")
    A(f"v_lshrrev_b32 v{vTM}, 3, v{vN}"); A(f"v_lshlrev_b32 v{vTM}, 12, v{vTM}"); A(f"v_lshl_or_b32 v{vTM}, v{vG4}, 14, v{vTM}")
    A(f"v_lshl_or_b32 v{vTM}, v{vTM2}, 4, v{vTM}"); A(f"v_add_u32 v{vR5}, {sT0}, v{vTM}")
    A("s_branch L_addr_done")
    if align: A(".p2align 12")
    if touch: E.label("L_pad_fin"); A("s_branch L_ret_fin")
    E.label("L_fin")
    stamp(3)
    yreg = [vO, vO+4, vO+8, vO+12, vQ+16, vQ+20, vQ+24]
    xrow("v_add_f32", [vL], [vTM])
    if hilo:
        for e in range(4): A(f"v_pk_add_f32 {P(vO+4*e)}, {P(vO+4*e)}, {P(vO+4*e+2)}")
    A(f"v_log_f32 v{vTM2}, v{vL}"); A(f"v_rcp_f32 v{vTM3}, v{vL}")
    A(f"v_mov_b32 v{vG+3}, {sTAG}")
    A(f"v_add_f32 v{vTM2}, v{vMC}, v{vTM2}")
    SEL4(vG, vO+0, vO+8, vO+1, vO+9, vMX)
    A(f"v_mov_b32_dpp v{vTM}, v{vTM3} quad_perm:[0,0,2,2] row_mask:0x3 bank_mask:0xf")
    A(f"v_mov_b32_dpp v{vG+2}, v{vTM2} quad_perm:[0,0,2,2] row_mask:0x3 bank_mask:0xf")
    SEL4(vG+1, vO+4, vO+12, vO+5, vO+13, vMX)
    A(f"v_mov_b32_dpp v{vTM}, v{vTM3} quad_perm:[1,1,3,3] row_mask:0xc bank_mask:0xf")
    A(f"v_mov_b32_dpp v{vG+2}, v{vTM2} quad_perm:[1,1,3,3] row_mask:0xc bank_mask:0xf")
    A(f"v_mul_f32 v{vG}, v{vG}, v{vTM}"); A(f"v_mul_f32 v{vG+1}, v{vG+1}, v{vTM}")
    A(f"global_store_dwordx4 v{vAA}, {Q4(vG)}, {pWS} {stf}")
    stamp(4)
    A(f"v_lshlrev_b32 v{vOPR}, 3, v{vG4}"); A(f"v_add_u32 v{vOPR}, {L_OP}, v{vOPR}")
    A(f"v_lshlrev_b32 v{vOPW}, 1, v{vN}"); A(f"v_add_u32 v{vOPW}, {L_OP}, v{vOPW}")
    A(f"v_mov_b32 v{vZ}, 0")
    A(f"s_cmp_lt_u32 {sIDX}, 28"); A("s_cbranch_scc1 L_ffn_addr")
    A(f"s_cmp_ge_u32 {sRR}, 64"); A("s_cbranch_scc1 L_addr_done")
    A(f"s_lshl_b32 {sT0}, {sRR}, 15"); A(f"s_lshr_b32 {sT1}, {sW}, 1"); A(f"s_lshl_b32 {sT1}, {sT1}, 14"); A(f"s_add_u32 {sT0}, {sT0}, {sT1}")
    A(f"s_and_b32 {sT1}, {sW}, 1"); A(f"s_lshl_b32 {sT1}, {sT1}, 12"); A(f"s_add_u32 {sT0}, {sT0}, {sT1}"); A(f"s_add_u32 {sT0}, {sT0}, {sP1}"); A(f"s_add_u32 {sT0}, {sT0}, {WS_B}")
    A(f"v_lshl_add_u32 v{vR0}, v{vLANE}, 4, {sT0}")
    A(f"s_lshl_b32 {sT0}, {sW}, 6"); A(f"s_add_u32 {sT0}, {sT0}, {L_RED}")
    A(f"v_and_b32 v{vTM}, 7, v{vLANE}"); A(f"v_lshl_add_u32 v{vR1}, v{vTM}, 2, {sT0}")
    A(f"v_and_b32 v{vTM}, 6, v{vLANE}"); A(f"v_lshlrev_b32 v{vR2}, 2, v{vTM}"); A(f"v_add_u32 v{vR2}, {L_RED}, v{vR2}")
    A(f"s_lshl_b32 {sT0}, {sRR}, 6"); A(f"s_add_u32 {sT0}, {sT0}, {sP0}"); A(f"s_add_u32 {sT0}, {sT0}, {WS_H}"); A(f"v_lshl_add_u32 v{vR3}, v{vTM}, 3, {sT0}")
    A(f"s_lshr_b32 {sT0}, {sRR}, 1"); A(f"s_lshl_b32 {sT0}, {sT0}, 14"); A(f"s_and_b32 {sT1}, {sRR}, 1"); A(f"s_lshl_b32 {sT1}, {sT1}, 12"); A(f"s_add_u32 {sT0}, {sT0}, {sT1}")
    A(f"s_add_u32 {sT0}, {sT0}, {sP0}"); A(f"s_add_u32 {sT0}, {sT0}, {WS_D}"); A(f"v_lshl_add_u32 v{vR4}, v{vLANE}, 4, {sT0}")
    A(f"v_lshl_add_u32 v{vR5}, v{vTM}, 1, {sCOL}")
    E.label("L_addr_done")
    aloads = [f"global_load_dwordx4 {Q4(vI+4*i)}, v{vAI}, {pWS} offset:{i*256} {ldf}" for i in range(4)]
    A(f"s_cmp_lg_u32 {sW}, 0"); A("s_cbranch_scc1 L_a_nopoll")
    for l in aloads: A(l)
    E.label("L_a_nopoll")
    wide_addr(vX)
    for h in range(2): read_wide_tile(vX, vWO, h)
    A(f"s_cmp_lg_u32 {sW}, 0"); A("s_cbranch_scc1 L_a_join")
    poll(aloads, [[vI+4*i+3] for i in range(4)], issued=True)
    stamp(5)
    A(f"v_max3_f32 v{vMX}, v{vI+2}, v{vI+6}, v{vI+10}"); A(f"v_max_f32 v{vMX}, v{vMX}, v{vI+14}")
    xrow("v_max_f32", [vMX], [vTM])
    for i in range(4): A(f"v_sub_f32 v{vI+4*i+2}, v{vI+4*i+2}, v{vMX}")
    for i in range(4): A(f"v_exp_f32 v{vI+4*i+2}, v{vI+4*i+2}")
    A(f"v_mul_f32 v{sa}, v{vI}, v{vI+2}"); A(f"v_mul_f32 v{sb}, v{vI+1}, v{vI+2}"); A(f"v_add_f32 v{sw}, v{vI+2}, v{vI+6}")
    for i in range(1,4):
        A(f"v_fmac_f32 v{sa}, v{vI+4*i}, v{vI+4*i+2}"); A(f"v_fmac_f32 v{sb}, v{vI+4*i+1}, v{vI+4*i+2}")
        if i > 1: A(f"v_add_f32 v{sw}, v{sw}, v{vI+4*i+2}")
    xrow("v_add_f32", [sw, sa, sb], [vS+3, vS+4, vS+5])
    A(f"v_rcp_f32 v{sw}, v{sw}")
    A(f"v_mul_f32 v{sa}, v{sa}, v{sw}"); A(f"v_mul_f32 v{sb}, v{sb}, v{sw}")
    A(f"v_mov_b32_dpp v{vS+3}, v{sa} quad_perm:[1,0,3,2] row_mask:0xf bank_mask:0xf")
    A(f"v_mov_b32_dpp v{vS+4}, v{sb} quad_perm:[1,0,3,2] row_mask:0xf bank_mask:0xf")
    A(f"v_cvt_pk_bf16_f32 v{sa}, v{sa}, v{vS+3}"); A(f"v_cvt_pk_bf16_f32 v{sb}, v{sb}, v{vS+4}")
    A("s_mov_b64 exec, 0x5555"); A(f"ds_write2_b32 v{vOPW}, v{sa}, v{sb} offset0:0 offset1:8"); A("s_mov_b64 exec, -1")
    A("s_waitcnt lgkmcnt(0)")
    E.label("L_a_join")
    A("s_barrier")
    A(f"ds_read2_b64 {Q4(vA)}, v{vOPR} offset0:0 offset1:4")
    A(f"v_mov_b32 v{vG+1}, {sTAG}")
    A("s_waitcnt lgkmcnt(0)")
    for t in (0,2,4,6,1,3,5):
        A(f"v_mfma_f32_16x16x32_bf16 {Q4(yreg[t])}, {Q4(vA)}, {Q4(vWO+4*t)}, 0")
    SEL4(vG, yreg[0], yreg[2], yreg[4], yreg[6], vMX)
    SEL4(vG+2, yreg[1], yreg[3], yreg[5], vZ, vTM)
    A(f"global_store_dwordx4 v{vBA}, {Q4(vG)}, {pWS} {stf}")
    stamp(6)
    A(f"s_cmp_lt_u32 {sIDX}, 28"); A("s_cbranch_scc1 L_ffn")
    A(f"s_cmp_ge_u32 {sRR}, 64"); A("s_cbranch_scc1 L_done")
    def inbox(addr): return [f"global_load_dwordx4 {Q4(vI+4*i)}, v{addr}, {pWS} offset:{i*1024} {ldf}" for i in range(4)]
    tags2 = [[vI+4*i+3] if onetag else [vI+4*i+1, vI+4*i+3] for i in range(4)]
    def sum_inbox():
        A(f"v_add_f32 v{sa}, v{vI}, v{vI+4}"); A(f"v_add_f32 v{sb}, v{vI+2}, v{vI+6}")
        A(f"v_add_f32 v{vS+2}, v{vI+8}, v{vI+12}"); A(f"v_add_f32 v{vS+3}, v{vI+10}, v{vI+14}")
        A(f"v_add_f32 v{sa}, v{sa}, v{vS+2}"); A(f"v_add_f32 v{sb}, v{sb}, v{vS+3}")
        A(f"v_add_f32_dpp v{sa}, v{sa}, v{sa} row_ror:8 row_mask:0xf bank_mask:0xf")
        A(f"v_add_f32_dpp v{sb}, v{sb}, v{sb} row_ror:8 row_mask:0xf bank_mask:0xf")
        xrow("v_add_f32", [sa, sb], [vS+2, vS+3])
    vXF = vO
    unpack(vXF, vXF+1, vXH); unpack(vXF+2, vXF+3, vXH+1)
    if touch: pad("red")
    poll(inbox(vR0), tags2)
    stamp(7)
    sum_inbox()
    A("s_mov_b64 exec, 0xff"); A(f"ds_write2_b32 v{vR1}, v{sa}, v{sb} offset0:0 offset1:8"); A("s_mov_b64 exec, -1")
    A("s_waitcnt lgkmcnt(0)"); A("s_barrier")
    A(f"s_cmp_lg_u32 {sW}, 0"); A("s_cbranch_scc1 L_done")
    for i in range(4): A(f"ds_read2_b64 {Q4(vI+4*i)}, v{vR2} offset0:{i*8} offset1:{i*8+4}")
    def add_resid(y, dst):
        A(f"v_cvt_pk_bf16_f32 v{dst}, v{y}, v{y+1}"); A(f"v_cvt_pk_bf16_f32 v{dst+2}, v{y+2}, v{y+3}")
        unpack(y, y+1, dst); unpack(y+2, y+3, dst+2)
        A(f"v_pk_add_f32 {P(y)}, {P(y)}, {P(vXF)}"); A(f"v_pk_add_f32 {P(y+2)}, {P(y+2)}, {P(vXF+2)}")
        A(f"v_cvt_pk_bf16_f32 v{dst}, v{y}, v{y+1}"); A(f"v_cvt_pk_bf16_f32 v{dst+2}, v{y+2}, v{y+3}")
    A("s_waitcnt lgkmcnt(2)")
    A(f"v_pk_add_f32 {P(vI)}, {P(vI)}, {P(vI+4)}"); A(f"v_pk_add_f32 {P(vI+2)}, {P(vI+2)}, {P(vI+6)}")
    A("s_waitcnt lgkmcnt(0)")
    A(f"v_pk_add_f32 {P(vI+8)}, {P(vI+8)}, {P(vI+12)}"); A(f"v_pk_add_f32 {P(vI+10)}, {P(vI+10)}, {P(vI+14)}")
    A(f"v_pk_add_f32 {P(vI)}, {P(vI)}, {P(vI+8)}"); A(f"v_pk_add_f32 {P(vI+2)}, {P(vI+2)}, {P(vI+10)}")
    add_resid(vI, vG)
    A("s_mov_b64 exec, 0x55"); A(f"global_store_dwordx4 v{vR3}, {Q4(vG)}, {pWS} {stf}"); A("s_mov_b64 exec, -1")
    stamp(8)
    unpack(vXF, vXF+1, vG); unpack(vXF+2, vXF+3, vG+2)
    A(f"v_mov_b32 v{vI+12}, 0"); A(f"v_mov_b32 v{vI+13}, {sTAG}"); A(f"v_mov_b32 v{vI+14}, 0"); A(f"v_mov_b32 v{vI+15}, {sTAG}")
    poll(inbox(vR4), tags2, first_mask=[-1,-1,-1,"s[66:67]"])
    stamp(9)
    sum_inbox()
    A(f"v_mov_b32_dpp v{vI}, v{sa} quad_perm:[0,0,2,2] row_mask:0xf bank_mask:0xf"); A(f"v_mov_b32_dpp v{vI+1}, v{sa} quad_perm:[1,1,3,3] row_mask:0xf bank_mask:0xf")
    A(f"v_mov_b32_dpp v{vI+2}, v{sb} quad_perm:[0,0,2,2] row_mask:0xf bank_mask:0xf"); A(f"v_mov_b32_dpp v{vI+3}, v{sb} quad_perm:[1,1,3,3] row_mask:0xf bank_mask:0xf")
    add_resid(vI, vI+4)
    A("s_mov_b64 exec, 0x55"); A(f"global_store_dword v{vR5}, v{vI+4}, {pOUT} {outf}")
    A(f"s_cmp_eq_u32 {sGP}, 3"); A("s_cbranch_scc1 L_done")
    A(f"global_store_dword v{vR5}, v{vI+6}, {pOUT} offset:32 {outf}")
    A(f"s_cmp_lg_u32 {sRR}, 0"); A("s_cbranch_scc1 L_done")
    A(f"s_add_u32 {sT0}, {sE}, 1"); A(f"v_mov_b32 v{vTM2}, {sT0}"); A(f"v_mov_b32 v{vTM3}, {WS_E}")
    A("s_mov_b64 exec, 1"); A(f"global_store_dword v{vTM3}, v{vTM2}, {pWS} {stf}")
    if enc:
        A("s_memrealtime s[90:91]"); A("s_waitcnt lgkmcnt(0)")
        A(f"s_sub_u32 {sT0}, s{70+2*enc[1]}, s{70+2*enc[0]}"); A(f"s_lshl_b32 {sT0}, {sT0}, 2"); A(f"s_min_u32 {sT0}, {sT0}, 100000")
        E.label("L_enc")
        A("s_memrealtime s[94:95]"); A("s_waitcnt lgkmcnt(0)")
        A(f"s_sub_u32 {sT1}, s94, s90"); A(f"s_cmp_lt_u32 {sT1}, {sT0}"); A("s_cbranch_scc1 L_enc")
    A("s_branch L_done")
    if touch: E.label("L_pad_ffn"); A("s_branch L_ret_ffn")
    E.label("L_ffn")
    A(f"s_cmp_lg_u32 {sW}, 0"); A("s_cbranch_scc1 L_c_join")
    poll([f"global_load_dwordx4 {Q4(vI+4*u)}, v{vR0}, {pWS} offset:{u*128} {ldf}" for u in range(4)], tags2)
    stamp(7)
    layernorm([vI+2*u for u in range(7)], vO, vR1, 32, mid=(lambda: pad("ffn2")) if touch else None)
    A("s_waitcnt lgkmcnt(0)")
    E.label("L_c_join")
    A("s_barrier")
    def aread(i): A(f"ds_read_b128 {Q4(vF + 4*(i % NF))}, v{vR2} offset:{i*64}")
    for i in range(NF): aread(i)
    for i in range(14):
        A(f"s_waitcnt lgkmcnt({min(NF-1, 13-i)})")
        A(f"v_mfma_f32_16x16x32_bf16 {Q4(vS)}, {Q4(vF + 4*(i % NF))}, {Q4(vW1+4*i)}, {'0' if i==0 else Q4(vS)}")
        if i + NF < 14: aread(i+NF)
    for b in range(2): A(f"v_mov_b32 v{vO+4*b+1}, {sTAG}"); A(f"v_mov_b32 v{vO+4*b+3}, {sTAG}")
    A(f"v_add_u32 v{vR0}, {16*16384}, v{vR5}")
    A(f"v_cndmask_b32 v{vTM}, v{vS}, v{vS+1}, {sM1}")
    round_bf(vTM, vTM)
    A(f"v_mul_f32 v{vTM2}, {(LOG2E | 0x80000000):#x}, v{vTM}")
    A(f"v_exp_f32 v{vTM2}, v{vTM2}")
    A(f"v_add_f32 v{vTM2}, 1.0, v{vTM2}")
    A(f"v_rcp_f32 v{vTM2}, v{vTM2}")
    A(f"v_mul_f32 v{vTM}, v{vTM}, v{vTM2}")
    A(f"v_cvt_pk_bf16_f32 v{vTM}, v{vTM}, v{vTM}")
    A("s_mov_b32 exec_hi, 0"); A(f"ds_write_b16 v{vR3}, v{vTM}"); A("s_mov_b32 exec_hi, -1")
    A("s_waitcnt lgkmcnt(0)"); A("s_barrier")
    for ks in range(2): A(f"ds_read2_b64 {Q4(vF+4*ks)}, v{vR4} offset0:{ks*8} offset1:{ks*8+4}")
    zreg = [vW1+4*t for t in range(7)]
    for ks in range(2):
        A(f"s_waitcnt lgkmcnt({1-ks})")
        for t in (0,2,4,6,1,3,5):
            A(f"v_mfma_f32_16x16x32_bf16 {Q4(zreg[t])}, {Q4(vF+4*ks)}, {Q4(vW2+28*ks+4*t)}, {'0' if ks==0 else Q4(zreg[t])}")
    for b in range(2): SEL4(vO+4*b, zreg[0]+b, zreg[2]+b, zreg[4]+b, zreg[6]+b, vMX)
    for b in range(2):
        SEL4(vO+4*b+2, zreg[1]+b, zreg[3]+b, zreg[5]+b, vZ, vMX)
        A(f"global_store_dwordx4 v{vR5 if b == 0 else vR0}, {Q4(vO+4*b)}, {pWS} {stf}")
    stamp(8)
    E.label("L_done")
    if diag:
        stamp(10)
        A("s_mov_b64 exec, -1")
        A(f"s_lshl_b32 {sT0}, {sWG}, 2"); A(f"s_add_u32 {sT0}, {sT0}, {sW}"); A(f"s_lshl_b32 {sT0}, {sT0}, 7"); A(f"s_add_u32 {sT0}, {sT0}, {WS_ST}")
        A("s_getreg_b32 s100, hwreg(HW_REG_XCC_ID)")
        A("s_waitcnt lgkmcnt(0)")
        A(f"v_mov_b32 v{vTM}, {sT0}")
        A("s_mov_b64 exec, 1")
        for k in range(11): A(f"v_mov_b32 v{vW1+k}, s{70+2*k}")
        A(f"v_mov_b32 v{vW1+11}, s100"); A(f"v_mov_b32 v{vW1+12}, {sN}"); A(f"v_mov_b32 v{vW1+13}, {sROLE}"); A(f"v_mov_b32 v{vW1+14}, {sWG}"); A(f"v_mov_b32 v{vW1+15}, {sIDX}")
        for k in range(4): A(f"v_mov_b32 v{vW1+16+k}, s{92+2*k}")
        for q in range(5): A(f"global_store_dwordx4 v{vTM}, {Q4(vW1+4*q)}, {pWS} offset:{q*16}")
    E.label("L_end")
    A("s_endpgm")

    E.label("L_ffn_w")
    wide_addr(vX); tall_addr(vX+1)
    for t in range(4): read_tall_tile(vX+1, vW1, t)
    for t in range(4): read_wide_tile(vX, vW2 + 28*(t>>1), t & 1)
    A("s_branch L_ffn_w_done")
    E.label("L_ld_ffn")
    tall_voffs(3584)
    A(f"s_mov_b64 s[48:49], s[{pW1[0]}:{pW1[1]}]"); A(f"s_mov_b32 s50, {448*1792*2}")
    A(f"s_lshl_b32 {sBASE}, {sIDX}, 7")
    for t in range(4):
        if t % 2 == 0: freecheck(2)
        tile_tall(3584, t, 16 if t < 3 else 8)
    A(f"s_mov_b64 s[48:49], s[{pW2[0]}:{pW2[1]}]")
    A(f"s_mul_i32 {sBASE}, {sIDX}, {64*896}"); A(f"s_add_u32 {sT2}, {sN}, 4")
    E.label("L_ld_w2")
    freecheck(1)
    tile_wide()
    A(f"s_cmp_lt_u32 {sN}, {sT2}"); A("s_cbranch_scc1 L_ld_w2")
    A("s_branch L_ld_head_done")
    if forcepar is None:
        E.label("L_probe")
        A(f"s_load_dword s69, {pWS}, {WS_E}")
        A("s_mov_b64 exec, 1")
        for k,off in enumerate((WS_PRB, WS_PRB+8192, WS_B, WS_B+8192)):
            A(f"v_mov_b32 v{32+k}, {off}"); A(f"s_mov_b32 s{92+k}, 0")
        A("v_mov_b32 v36, 0"); A(f"s_mov_b32 {sCI}, {nprobe}")
        for k in range(4): A(f"global_atomic_add v37, v{32+k}, v36, {pWS} sc0")
        A("s_waitcnt vmcnt(0)")
        E.label("L_probe_loop")
        for k in range(4):
            A("s_memtime s[64:65]"); A("s_waitcnt lgkmcnt(0)")
            A(f"global_atomic_add v37, v{32+k}, v36, {pWS} sc0"); A("s_waitcnt vmcnt(0)")
            A("s_memtime s[66:67]"); A("s_waitcnt lgkmcnt(0)")
            A("s_sub_u32 s66, s66, s64"); A(f"s_min_u32 s66, s66, {clip}"); A(f"s_add_u32 s{92+k}, s{92+k}, s66")
        A(f"s_sub_u32 {sCI}, {sCI}, 1"); A(f"s_cmp_lg_u32 {sCI}, 0"); A("s_cbranch_scc1 L_probe_loop")
        A("s_cmp_gt_u32 s92, s93"); A(f"s_cselect_b32 {sT0}, 8192, 0")
        A("s_cmp_gt_u32 s94, s95"); A(f"s_cselect_b32 {sT1}, 8192, 0")
        make_tag(sT2, "s69")
        A(f"v_mov_b32 v32, {sT0}"); A(f"v_mov_b32 v33, {sT2}"); A(f"v_mov_b32 v34, {sT1}"); A(f"v_mov_b32 v35, {sT2}"); A(f"v_mov_b32 v36, {WS_PAR}")
        A(f"global_store_dwordx4 v36, v[32:35], {pWS} {stf}")
        A("s_mov_b64 exec, -1")
        A("s_branch L_ld_wo")

    body = E.finish()
    head = open("sequential_preLN__gqa_block_cached__dense_activation_silu__decode.s.ref").read().split("; Override launch")[0]
    src = head + f"""; One persistent launch: 256 workgroups (one per CU); wave 0 streams K/V into an LDS ring, waves 1-4 compute.
; @launch grid=(256,1,1) block=(320,1,1) lds={LDS}
.amdgcn_target "amdgcn-amd-amdhsa--gfx950"
.text
.globl {NAME}
{'.p2align 12' if align else ''}
.p2align 8
.type {NAME},@function
{NAME}:
{body}.section .rodata,"a"
.p2align 6
.amdhsa_kernel {NAME}
  .amdhsa_next_free_vgpr 256
  .amdhsa_next_free_sgpr 102
  .amdhsa_accum_offset 256
  .amdhsa_group_segment_fixed_size 0
  .amdhsa_kernarg_size 88
  .amdhsa_user_sgpr_count 2
  .amdhsa_user_sgpr_kernarg_segment_ptr 1
  .amdhsa_system_sgpr_workgroup_id_x 1
.end_amdhsa_kernel
"""
    return src, E.npad

if __name__ == "__main__":
    out = sys.argv[1]
    kw = json.loads(sys.argv[2]) if len(sys.argv) > 2 else {}
    src, npad = gen(**kw)
    open(out, "w").write(src)
    print("wrote", out, "lines", src.count("\n"), "pad states", npad)
```

```python
import sys, json, struct
from emit import Emitter

NAME = "sequential_preLN__gqa_block_cached__dense_activation_silu__decode_kernel"
def f2u(x): return struct.unpack("<I", struct.pack("<f", x))[0]

def gen(W=19, NS=59, diag=False, hilo=True, spin=1<<20, enc=None, NF=5, ldst=None, qwait=2, forcepar=None, nprobe=3, clip=2000,
        touch=0, qtouch=1, lastfast=1, outf='sc1', onetag=1, nap=0, grp=4, align=1, park=4, ltouch=0, wpre=(2,4), awarm=1, bwarm=3):
    E = Emitter(); A = E
    pol = "nt"; stf = ldf = "sc1"
    NSLOT = 9; SLOT = 16384; RING = NSLOT*SLOT; LDS = 163840
    L_FLAG = RING; L_CONS = RING+16; L_RED = RING+256; L_OP = RING+512; L_ACT = RING+768; L_QW = RING+1024; L_LN = RING+5120
    WS_E = 0; WS_PAR = 0x800; WS_CNT = 0x1000; WS_H = 0x4000; WS_Q = 0x8000; WS_PRB = 0x10000; WS_D = 0x80000; WS_A = 0x100000; WS_B = 0x200000; WS_ST = 0x400000
    C_SCALE = f2u(1.4426950408889634/16.0); LOG2E = f2u(1.4426950408889634); INV448 = f2u(1.0/448.0); EPS = f2u(1e-5)
    EXTRA = 32; POOL = 2048-32*NS+EXTRA; TL = 128-2*NS
    assert 12 <= W <= 32 and NF <= 5
    sWG="s2"; sWAVE="s3"
    pX="s[4:5]"; pK=(6,7); pV=(8,9); pWQ=(10,11); pWO=(12,13); pW1=(16,17); pW2=(18,19); pOUT="s[20:21]"; pWS="s[24:25]"
    sG="s26"; sJ="s27"; sROLE="s28"; sN="s31"; sSLOT="s32"; sKNOWN="s33"; sT0="s34"; sT1="s35"; sT2="s36"
    sCI="s37"; sSPIN="s38"; sIDX="s39"; sNS="s63"; sPK="s68"
    vK=[4+i for i in range(8)]; vV=[12+i for i in range(4)]; vLIN=16; vT=[17,18]; vFL=21; vTMP=22; vC=24; vCA=28; vONE=29; vCL=[30,31]
    srdK="s[40:43]"; srdV="s[44:47]"; srdW="s[48:51]"; srdZ="s[52:55]"
    sCUR="s56"; sGB="s57"; sOFF="s58"; sCLM="s59"; sBASE="s61"; sFLOOR="s62"
    sB="s29"; sHKV="s30"; sW="s40"; sTAG="s41"; sM1="s[42:43]"; sM2="s[44:45]"; sC="s46"; sE="s47"; sRR="s48"; sTOT="s49"
    sCK=["s[50:51]","s[52:53]","s[54:55]","s[56:57]"]; sCOL="s58"; sGP="s59"; sP0="s60"; sP1="s61"; sWRM="s62"
    vLANE=0; vN=1; vG4=2; vFLG=3; vCONS=4; vTM=5; vTM2=6; vTM3=7
    vM=8; vMC=9; vL=10; vMX=11
    vKB=[12,13,14,15]; vVB=[16,17,18,19]; vAD=[20,21,22,23]
    vS=24; vP=32; vO=36; vQ=52; vF=84; vAA=104; vAI=105; vBA=106
    vWO=108; vW1=136; vW2=192; vX=248; vXH=254
    xr1 = [vWO+u for u in range(7)]; vLW1 = vWO+24

    uid=[0]
    def lab(p): uid[0]+=1; return f"L_{p}_{uid[0]}"
    def P(r): return f"v[{r}:{r+1}]"
    def Q4(r): return f"v[{r}:{r+3}]"
    def stamp(k):
        if not diag and not (enc and k in (0, enc[0], enc[1])): return
        A(f"s_memrealtime s[{70+2*k}:{71+2*k}]")
    def slot_advance():
        A(f"s_add_u32 {sN}, {sN}, 1"); A(f"s_add_u32 {sSLOT}, {sSLOT}, {SLOT}")
        A(f"s_cmp_eq_u32 {sSLOT}, {RING}"); A(f"s_cselect_b32 {sSLOT}, 0, {sSLOT}")
    def spin_guard(): A(f"s_sub_u32 {sSPIN}, {sSPIN}, 1"); A("s_cbranch_scc1 L_end")
    def one_lane(ins): A("s_mov_b64 exec, 1"); A(ins); A("s_mov_b64 exec, -1")
    def share_consts():
        A(f"s_sub_u32 {sT0}, {sROLE}, 8"); A(f"s_lshl_b32 {sIDX}, {sG}, 1"); A(f"s_add_u32 {sIDX}, {sIDX}, {sT0}")
        A(f"s_cmp_lt_u32 {sT0}, 2"); A(f"s_cselect_b32 {sIDX}, {sIDX}, 99")
        A(f"s_cselect_b32 {sNS}, {NS-4}, {NS}"); A(f"s_cmp_lt_u32 {sROLE}, 4"); A(f"s_cselect_b32 {sNS}, {NS-2}, {sNS}")
        A(f"s_cmp_lt_u32 {sIDX}, 28"); A(f"s_cselect_b32 {sPK}, 0, {park}")
    def make_tag(dst, e): A(f"s_mul_i32 {dst}, {e}, 0x9e3779b1"); A(f"s_add_u32 {dst}, {dst}, 0x7f4a7c15")
    pads = []
    def pad(name):
        sk = lab("padskip"); A(f"s_branch {sk}"); E.label(f"L_pad_{name}"); A(f"s_branch L_ret_{name}"); E.label(sk)
    def touch_pad(name): A(f"s_branch L_pad_{name}"); E.label(f"L_ret_{name}")

    A(f"s_cmp_ge_u32 {sWG}, 256"); A("s_cbranch_scc1 L_end")
    stamp(0)
    A("s_load_dwordx16 s[4:19], s[0:1], 0"); A("s_load_dwordx4 s[20:23], s[0:1], 64"); A("s_load_dwordx2 s[24:25], s[0:1], 80")
    A("v_lshrrev_b32 v1, 6, v0"); A("v_and_b32 v0, 63, v0"); A(f"v_readfirstlane_b32 {sWAVE}, v1")
    A(f"s_lshr_b32 {sG}, {sWG}, 4"); A(f"s_and_b32 {sJ}, {sWG}, 15")
    A(f"s_lshr_b32 {sT0}, {sJ}, 1"); A(f"s_and_b32 {sT0}, {sT0}, 4"); A(f"s_and_b32 {sROLE}, {sJ}, 3"); A(f"s_add_u32 {sROLE}, {sROLE}, {sT0}")
    A(f"s_sub_u32 {sROLE}, {sROLE}, {sG}"); A(f"s_and_b32 {sROLE}, {sROLE}, 7")
    A(f"s_add_u32 {sT0}, {sROLE}, 4"); A(f"s_add_u32 {sT1}, {sROLE}, 8"); A(f"s_cmp_lt_u32 {sROLE}, 4"); A(f"s_cselect_b32 {sROLE}, {sROLE}, {sT1}")
    A(f"s_bitcmp1_b32 {sJ}, 2"); A(f"s_cselect_b32 {sROLE}, {sROLE}, {sT0}")
    A(f"s_mov_b32 {sN}, 0"); A(f"s_mov_b64 s[32:33], 0"); A(f"s_mov_b32 {sCI}, 0"); A(f"s_mov_b32 {sSPIN}, {spin}")
    A(f"v_mov_b32 v3, {L_FLAG}"); A(f"v_lshl_add_u32 v1, v0, 2, v3"); A("v_mov_b32 v2, 0")
    A("s_mov_b64 exec, 2"); A("v_bfrev_b32 v2, -2"); A("s_mov_b64 exec, 0x1ff"); A("ds_write_b32 v1, v2"); A("s_mov_b64 exec, -1")
    A(f"v_lshrrev_b32 v1, 5, v0"); A(f"v_mul_u32_u24 v1, 896, v1"); A(f"v_and_b32 v2, 31, v0"); A(f"v_lshl_add_u32 v{vLW1}, v2, 2, v1")
    A("s_waitcnt lgkmcnt(0)")
    A("s_barrier")
    A(f"s_cmp_eq_u32 {sWAVE}, 0"); A("s_cbranch_scc1 L_loader")
    A(f"s_load_dword {sE}, {pWS}, {WS_E}")
    A(f"s_cmp_ge_u32 {sROLE}, 4"); A("s_cbranch_scc1 L_consumer")
    for u in range(7): A(f"global_load_dword v{xr1[u]}, v{vLW1}, {pX} offset:{u*128}")
    A("s_branch L_qprod")

    def publish(back):
        A(f"s_sub_u32 {sT0}, {sN}, {back}"); A(f"s_max_i32 {sT0}, {sT0}, {sFLOOR}")
        A(f"v_mov_b32 v{vTMP}, {sT0}"); one_lane(f"ds_write_b32 v{vFL}, v{vTMP}")
    def throttle(i):
        if i % grp == grp-1:
            A(f"s_waitcnt vmcnt({W})")
            if i+1+16 >= W and (i+1-grp+16 < W or i < grp): publish(1)
    def tile_rows(specs, pol=pol):
        for i,(srd,vo,so) in enumerate(specs):
            if i % 4 == 0:
                A(f"s_add_u32 m0, {sSLOT}, {i*1024}" if i else f"s_mov_b32 m0, {sSLOT}")
                A(f"s_add_u32 {sOFF}, {sBASE}, {so}" if so else f"s_mov_b32 {sOFF}, {sBASE}")
            A(f"buffer_load_dwordx4 v{vo}, {srd}, {sOFF} offen offset:{(i%4)*1024} {pol} lds")
            throttle(i)
        slot_advance()
    def tile_tall(rowstride, t, nvalid):
        for i in range(16):
            A(f"s_add_u32 m0, {sSLOT}, {i*1024}" if i else f"s_mov_b32 m0, {sSLOT}")
            A(f"s_add_u32 {sOFF}, {sBASE}, {(t*128+i*8)*rowstride}")
            A(f"buffer_load_dwordx4 v{vT[i&1]}, {srdW if i < nvalid else srdZ}, {sOFF} offen {pol} lds")
            throttle(i)
        slot_advance()
    def tile_wide(pol=pol):
        tile_rows([(srdW if i < 14 else srdZ, vLIN, i*1024) for i in range(16)], pol)
        A(f"s_add_u32 {sBASE}, {sBASE}, 14336")
    def tall_voffs(stride):
        A("v_lshrrev_b32 v1, 3, v0"); A("v_and_b32 v2, 7, v0"); A("v_and_b32 v3, 2, v1"); A("v_xor_b32 v2, v2, v3"); A("v_lshlrev_b32 v2, 4, v2")
        A(f"v_mul_u32_u24 v3, {stride}, v1"); A(f"v_add_u32 v{vT[0]}, v3, v2"); A("v_xor_b32 v2, 64, v2"); A(f"v_add_u32 v{vT[1]}, v3, v2")
    def freecheck(k):
        ok = lab("free"); lp = lab("freepoll")
        A(f"s_add_u32 {sT0}, {sKNOWN}, {NSLOT-k}"); A(f"s_cmp_ge_u32 {sT0}, {sN}"); A(f"s_cbranch_scc1 {ok}")
        E.label(lp)
        A(f"ds_read_b128 {Q4(vC)}, v{vFL} offset:16")
        spin_guard()
        A("s_waitcnt lgkmcnt(0)")
        A(f"v_min3_u32 v{vC}, v{vC}, v{vC+1}, v{vC+2}"); A(f"v_min_u32 v{vC}, v{vC}, v{vC+3}")
        A(f"v_readfirstlane_b32 {sKNOWN}, v{vC}")
        A(f"s_add_u32 {sT0}, {sKNOWN}, {NSLOT-k}"); A(f"s_cmp_ge_u32 {sT0}, {sN}"); A(f"s_cbranch_scc1 {ok}")
        A("s_sleep 1"); A(f"s_branch {lp}")
        E.label(ok)
    def claim(p): one_lane(f"global_atomic_add v{vCL[p]}, v{vCA}, v{vONE}, {pWS} sc0")

    E.label("L_loader")
    A("s_setprio 3")
    A(f"v_mov_b32 v{vFL}, v3"); A(f"v_lshlrev_b32 v{vLIN}, 4, v0"); A(f"s_mov_b32 {sFLOOR}, 0")
    A("s_mov_b32 s50, 3670016"); A("s_mov_b32 s51, 0x20000")
    A(f"s_mov_b64 s[52:53], s[{pK[0]}:{pK[1]}]"); A("s_mov_b32 s54, 0"); A("s_mov_b32 s55, 0x20000")
    A(f"s_cmp_ge_u32 {sROLE}, 4"); A("s_cbranch_scc1 L_ld_noq")
    tall_voffs(8192)
    A(f"s_mov_b64 s[48:49], s[{pWQ[0]}:{pWQ[1]}]")
    A(f"s_and_b32 {sOFF}, {sG}, 7"); A(f"s_lshl_b32 {sOFF}, {sOFF}, 3"); A(f"s_lshr_b32 {sT0}, {sG}, 3"); A(f"s_lshl_b32 {sT0}, {sT0}, 2")
    A(f"s_add_u32 {sOFF}, {sOFF}, {sT0}"); A(f"s_add_u32 {sOFF}, {sOFF}, {sROLE}"); A(f"s_lshl_b32 {sOFF}, {sOFF}, 7")
    A("s_mov_b32 m0, 0")
    E.label("L_ld_q")
    for i in range(2):
        A(f"buffer_load_dwordx4 v{vT[i]}, {srdW}, {sOFF} offen {pol} lds")
        A(f"s_add_u32 {sOFF}, {sOFF}, {8*8192}"); A("s_add_u32 m0, m0, 1024")
    A(f"s_cmp_lt_u32 m0, {56*1024}"); A("s_cbranch_scc1 L_ld_q")
    A(f"s_mov_b32 {sN}, 4"); A(f"s_mov_b32 {sSLOT}, {4*SLOT}"); A(f"s_mov_b32 {sFLOOR}, 4")
    A(f"v_mov_b32 v{vTMP}, 4"); A("s_waitcnt vmcnt(0)"); one_lane(f"ds_write_b32 v{vFL}, v{vTMP}")
    E.label("L_ld_noq")
    if forcepar is None:
        A(f"s_cmp_eq_u32 {sWG}, {15*16 + 3}"); A("s_cbranch_scc1 L_probe")
    E.label("L_ld_wo")
    A("v_lshrrev_b32 v1, 5, v0"); A("v_and_b32 v2, 31, v0")
    A("v_lshlrev_b32 v3, 1, v1"); A("v_xor_b32 v3, v2, v3"); A("v_lshlrev_b32 v3, 4, v3"); A("v_lshl_or_b32 v3, v1, 9, v3")
    for i in range(4): A(f"v_xor_b32 v{vV[i]}, {i*64}, v3")
    A(f"s_mov_b64 s[44:45], s[{pV[0]}:{pV[1]}]"); A("s_mov_b32 s46, 0x10000000"); A("s_mov_b32 s47, 0x20000")
    A(f"s_lshl_b32 {sGB}, {sWG}, 20")
    share_consts()
    A(f"s_cmp_lt_u32 {sIDX}, 28"); A(f"s_cbranch_scc1 L_ld_ffn")
    A(f"s_mov_b32 {sBASE}, {sGB}"); A(f"s_add_u32 {sT2}, {sN}, {park}")
    E.label("L_ld_pv")
    tile_rows([(srdV, vV[i%4], i*1024) for i in range(16)])
    A(f"s_add_u32 {sBASE}, {sBASE}, 16384")
    if ltouch: touch_pad("ld")
    A(f"s_cmp_lt_u32 {sN}, {sT2}"); A("s_cbranch_scc1 L_ld_pv")
    E.label("L_ld_head_done")
    A("v_lshrrev_b32 v1, 5, v0"); A("v_and_b32 v2, 31, v0")
    A("v_xor_b32 v3, v2, v1"); A("v_lshlrev_b32 v3, 4, v3"); A("v_lshl_or_b32 v3, v1, 9, v3")
    for i in range(8): A(f"v_xor_b32 v{vK[i]}, {i*32}, v3")
    A(f"s_lshl_b32 {sGB}, {sG}, 24"); A(f"s_lshl_b32 {sCUR}, {sJ}, 7")
    A(f"s_lshl_b32 {sT0}, {sG}, 8"); A(f"s_add_u32 {sT0}, {sT0}, {WS_CNT}"); A(f"v_mov_b32 v{vCA}, {sT0}"); A(f"v_mov_b32 v{vONE}, 1")
    A(f"s_mov_b64 s[40:41], s[{pK[0]}:{pK[1]}]"); A("s_mov_b32 s42, 0x10000000"); A("s_mov_b32 s43, 0x20000")
    if ltouch: pad("ld")
    E.label("L_ld_loop")
    if diag:
        for k,c in enumerate(ldst or (0,2,3,4,6,8,16,32,NS-5)):
            sk=lab("ls"); A(f"s_cmp_lg_u32 {sCI}, {c}"); A(f"s_cbranch_scc1 {sk}"); A(f"s_memrealtime s[{72+2*k}:{73+2*k}]"); A("s_waitcnt lgkmcnt(0)"); E.label(sk)
    A(f"s_add_u32 {sCI}, {sCI}, 1")
    A(f"s_lshl_b32 {sBASE}, {sCUR}, 13"); A(f"s_add_u32 {sBASE}, {sBASE}, {sGB}")
    for p,(srd,vo) in enumerate(((srdK,vK),(srdV,vV))):
        if p: A(f"s_cmp_le_u32 {sCI}, {sPK}"); A("s_cbranch_scc1 L_ld_nov")
        freecheck(1)
        sk = lab("nocl"); A(f"s_cmp_lt_u32 {sCI}, {sNS}"); A(f"s_cbranch_scc1 {sk}")
        claim(p)
        E.label(sk)
        tile_rows([(srd, vo[i%len(vo)], i*1024) for i in range(16)])
    E.label("L_ld_nov")
    A(f"s_add_u32 {sCUR}, {sCUR}, 2")
    A(f"s_cmp_lt_u32 {sCI}, {sNS}"); A("s_cbranch_scc1 L_ld_loop")
    E.label("L_ld_dyn")
    for p in range(2):
        A(f"v_readfirstlane_b32 {sCLM}, v{vCL[p]}")
        A(f"s_cmp_ge_u32 {sCLM}, {POOL}"); A("s_cbranch_scc1 L_ld_dyn_done")
        A(f"s_cmp_lt_u32 {sCLM}, {EXTRA}"); A(f"s_cbranch_scc1 L_ld_shed{p}")
        A(f"s_sub_u32 {sCLM}, {sCLM}, {EXTRA}")
        A(f"s_mul_hi_u32 {sT0}, {sCLM}, {-(-(1<<32)//TL)}"); A(f"s_mul_i32 {sT0}, {sT0}, {2*NS}"); A(f"s_add_u32 {sCUR}, {sCLM}, {sT0}"); A(f"s_add_u32 {sCUR}, {sCUR}, {2*NS}")
        E.label(f"L_ld_unit{p}")
        freecheck(1)
        claim(p)
        A(f"s_lshr_b32 {sBASE}, {sCUR}, 1"); A(f"s_lshl_b32 {sBASE}, {sBASE}, 14"); A(f"s_and_b32 {sT0}, {sCUR}, 1"); A(f"s_lshl_b32 {sT0}, {sT0}, 12")
        A(f"s_add_u32 {sBASE}, {sBASE}, {sT0}"); A(f"s_add_u32 {sBASE}, {sBASE}, {sGB}")
        tile_rows([(srdK, vK[i], i*2048) for i in range(8)] + [(srdV, vV[i%4], i*2048) for i in range(8)])
    A("s_branch L_ld_dyn")
    E.label("L_ld_dyn_done")
    A(f"v_mov_b32 v{vTMP}, {sN}"); one_lane(f"ds_write_b32 v{vFL}, v{vTMP} offset:4")
    A(f"s_mov_b64 s[48:49], s[{pWO[0]}:{pWO[1]}]"); A("s_mov_b32 s50, 3670016")
    A(f"s_and_b32 {sBASE}, {sWG}, 127"); A(f"s_mul_i32 {sBASE}, {sBASE}, {32*896}")
    freecheck(2)
    k = 0
    for t in range(2):
        for i in range(14):
            if i % 4 == 0:
                A(f"s_add_u32 m0, {sSLOT}, {i*1024}" if i else f"s_mov_b32 m0, {sSLOT}")
                A(f"s_add_u32 {sOFF}, {sBASE}, {t*14336+i*1024}")
            if k == wpre[0]: A(f"s_waitcnt vmcnt({16+k})"); publish(1+t)
            if k == wpre[1]: A(f"s_waitcnt vmcnt({k})"); publish(t)
            A(f"buffer_load_dwordx4 v{vLIN}, {srdW}, {sOFF} offen offset:{(i%4)*1024} lds")
            k += 1
        slot_advance()
    for c,back in ((14,1),(0,0)):
        A(f"s_waitcnt vmcnt({c})"); publish(back)
    if diag:
        A("s_mov_b64 exec, 1"); A("s_memrealtime s[90:91]")
        A(f"s_lshl_b32 {sT0}, {sWG}, 6"); A(f"s_add_u32 {sT0}, {sT0}, {WS_ST+0x40000}"); A(f"v_mov_b32 v46, {sT0}")
        A("s_waitcnt lgkmcnt(0)")
        for k in range(11): A(f"v_mov_b32 v{32+k}, s{70+2*k}")
        A(f"v_mov_b32 v43, {sSPIN}")
        for q in range(3): A(f"global_store_dwordx4 v46, v[{32+4*q}:{35+4*q}], {pWS} offset:{q*16}")
    A("s_waitcnt lgkmcnt(0)")
    A("s_endpgm")
    for p in range(2):
        E.label(f"L_ld_shed{p}")
        A(f"s_lshr_b32 {sT0}, {sCLM}, 3"); A(f"s_add_u32 {sT0}, {sT0}, 4"); A(f"s_and_b32 {sT1}, {sCLM}, 7"); A(f"s_add_u32 {sT1}, {sT1}, {2*(NS-4)}")
        A(f"s_bfe_u32 {sT2}, {sCLM}, 0x20002"); A(f"s_and_b32 {sCUR}, {sCLM}, 3"); A(f"s_add_u32 {sCUR}, {sCUR}, {2*(NS-2)+4*128}")
        A(f"s_cmp_lt_u32 {sCLM}, 16"); A(f"s_cselect_b32 {sT0}, {sT0}, {sT2}"); A(f"s_cselect_b32 {sCUR}, {sT1}, {sCUR}")
        A(f"s_add_u32 {sT0}, {sT0}, {sG}"); A(f"s_and_b32 {sT1}, {sT0}, 3"); A(f"s_bfe_u32 {sT0}, {sT0}, 0x10002"); A(f"s_lshl_b32 {sT0}, {sT0}, 3"); A(f"s_add_u32 {sT0}, {sT0}, {sT1}")
        A(f"s_lshl_b32 {sT0}, {sT0}, 7"); A(f"s_add_u32 {sCUR}, {sCUR}, {sT0}")
        A(f"s_branch L_ld_unit{p}")

    def SEL4(dst, a, b, c, d, t):
        A(f"v_cndmask_b32 v{dst}, v{a}, v{b}, {sM1}"); A(f"v_cndmask_b32 v{t}, v{c}, v{d}, {sM1}"); A(f"v_cndmask_b32 v{dst}, v{dst}, v{t}, {sM2}")
    def xrow(op, regs, tmps):
        for sw in ("v_permlane16_swap_b32","v_permlane32_swap_b32"):
            for r,t in zip(regs,tmps): A(f"v_mov_b32 v{t}, v{r}")
            for r,t in zip(regs,tmps): A(f"{sw} v{r}, v{t}")
            for r,t in zip(regs,tmps): A(f"{op} v{r}, v{r}, v{t}")
    def round_bf(dst, src): A(f"v_cvt_pk_bf16_f32 v{dst}, v{src}, v{src}"); A(f"v_and_b32 v{dst}, 0xffff0000, v{dst}")
    def unpack(lo, hi, src): A(f"v_lshlrev_b32 v{lo}, 16, v{src}"); A(f"v_and_b32 v{hi}, 0xffff0000, v{src}")
    def pub_cons():
        slot_advance()
        A(f"v_mov_b32 v{vTM}, {sN}"); one_lane(f"ds_write_b32 v{vCONS}, v{vTM}")
    def wait_tile(fin=None):
        ok = lab("have"); lp = lab("poll")
        if fin: A(f"s_cmp_eq_u32 {sTOT}, {sN}"); A(f"s_cbranch_scc1 {fin}")
        A(f"s_cmp_gt_u32 {sKNOWN}, {sN}"); A(f"s_cbranch_scc1 {ok}")
        E.label(lp)
        A(f"ds_read_b64 {P(vAD[0])}, v{vFLG}")
        spin_guard()
        A("s_waitcnt lgkmcnt(0)")
        A(f"v_readfirstlane_b32 {sKNOWN}, v{vAD[0]}"); A(f"v_readfirstlane_b32 {sTOT}, v{vAD[1]}")
        if fin:
            nw = lab("nw")
            A(f"s_cmp_ge_u32 {sTOT}, {sWRM}"); A(f"s_cbranch_scc1 {nw}")
            A(f"s_mov_b32 {sWRM}, 0"); A(f"global_load_dword v{vX+2}, v{vX+3}, {pWS} {ldf}")
            E.label(nw)
            A(f"s_cmp_eq_u32 {sTOT}, {sN}"); A(f"s_cbranch_scc1 {fin}")
        A(f"s_cmp_gt_u32 {sKNOWN}, {sN}"); A(f"s_cbranch_scc1 {ok}")
        if nap or not fin: A("s_sleep 1")
        A(f"s_branch {lp}")
        E.label(ok)
    def poll(loads, tags, first_mask=None, issued=False):
        lp = lab("gpoll"); n = len(loads)
        chk = lab("gchk")
        if issued: A(f"s_branch {chk}")
        else:
            for i in range(n): A(f"s_mov_b64 {sCK[i]}, {first_mask[i] if first_mask else -1}")
        E.label(lp)
        for i,l in enumerate(loads):
            sk = lab("sk")
            A(f"s_mov_b64 exec, {sCK[i]}"); A(f"s_cbranch_execz {sk}"); A(l); E.label(sk)
        A("s_mov_b64 exec, -1")
        spin_guard()
        if issued: E.label(chk)
        A("s_waitcnt vmcnt(0)")
        for i in range(n):
            A(f"v_cmp_ne_u32 {sCK[i]}, {sTAG}, v{tags[i][0]}")
            for t in tags[i][1:]:
                A(f"v_cmp_ne_u32 vcc, {sTAG}, v{t}"); A(f"s_or_b64 {sCK[i]}, {sCK[i]}, vcc")
        A(f"s_or_b64 vcc, {sCK[0]}, {sCK[min(1,n-1)]}")
        for i in range(2, n): A(f"s_or_b64 vcc, vcc, {sCK[i]}")
        A(f"s_cbranch_scc1 {lp}")
    def layernorm(xr, f, lnbase, stride, mid=None):
        s1=vTM; t=vTM2; mu=vX; a=vX+2; b=vX+4
        for u in range(7): unpack(f+2*u, f+2*u+1, xr[u])
        A(f"v_pk_add_f32 {P(a)}, {P(f)}, {P(f+2)}"); A(f"v_pk_add_f32 {P(b)}, {P(f+4)}, {P(f+6)}")
        A(f"v_pk_add_f32 {P(a)}, {P(a)}, {P(f+8)}"); A(f"v_pk_add_f32 {P(b)}, {P(b)}, {P(f+10)}")
        A(f"v_pk_add_f32 {P(a)}, {P(a)}, {P(f+12)}"); A(f"v_pk_add_f32 {P(a)}, {P(a)}, {P(b)}")
        A(f"v_add_f32 v{s1}, v{a}, v{a+1}")
        red32 = [f"v_add_f32_dpp v{s1}, v{s1}, v{s1} row_ror:{k} row_mask:0xf bank_mask:0xf" for k in (8,4,2,1)]
        red32 += [f"v_mov_b32 v{t}, v{s1}", f"v_permlane16_swap_b32 v{s1}, v{t}", f"v_add_f32 v{s1}, v{s1}, v{t}"]
        for l in red32: A(l)
        A(f"v_mul_f32 v{mu}, {INV448:#x}, v{s1}")
        NEG = "op_sel_hi:[1,0] neg_lo:[0,1] neg_hi:[0,1]"
        A(f"v_pk_add_f32 {P(b)}, {P(f)}, {P(mu)} {NEG}")
        A(f"v_pk_mul_f32 {P(a)}, {P(b)}, {P(b)}")
        for u in range(1,7):
            A(f"v_pk_add_f32 {P(b)}, {P(f+2*u)}, {P(mu)} {NEG}")
            A(f"v_pk_fma_f32 {P(a)}, {P(b)}, {P(b)}, {P(a)}")
        A(f"v_add_f32 v{s1}, v{a}, v{a+1}")
        round_bf(mu, mu)
        fill = [f"v_pk_add_f32 {P(f+2*u)}, {P(f+2*u)}, {P(mu)} {NEG}" for u in range(7)] + [f"v_cvt_pk_bf16_f32 v{xr[u]}, v{f+2*u}, v{f+2*u+1}" for u in range(7)]
        for u in range(7): fill += [f"v_lshlrev_b32 v{f+2*u}, 16, v{xr[u]}", f"v_and_b32 v{f+2*u+1}, 0xffff0000, v{xr[u]}"]
        rb = [f"v_cvt_pk_bf16_f32 v{s1}, v{s1}, v{s1}", f"v_and_b32 v{s1}, 0xffff0000, v{s1}"]
        chain = red32 + [f"v_mul_f32 v{s1}, {INV448:#x}, v{s1}"] + rb + [f"v_add_f32 v{s1}, {EPS:#x}, v{s1}"] + rb + [f"v_sqrt_f32 v{s1}, v{s1}"] + rb + [f"v_rcp_f32 v{a}, v{s1}"]
        while chain or fill:
            for _ in range(2):
                if fill: A(fill.pop(0))
            if chain: A(chain.pop(0))
        if mid: mid()
        for u in range(7): A(f"v_pk_mul_f32 {P(f+2*u)}, {P(f+2*u)}, {P(a)} op_sel_hi:[1,0]")
        for u in range(7):
            A(f"v_cvt_pk_bf16_f32 v{xr[u]}, v{f+2*u}, v{f+2*u+1}")
            A(f"ds_write_b32 v{lnbase}, v{xr[u]} offset:{u*stride}")
    def ln_read_addr(rd, base):
        A(f"v_and_b32 v{rd}, 1, v{vLANE}"); A(f"v_mul_u32_u24 v{rd}, 896, v{rd}")
        A(f"v_lshl_add_u32 v{rd}, v{vG4}, 4, v{rd}"); A(f"v_add_u32 v{rd}, {base}, v{rd}")
    def tall_addr(dst):
        A(f"v_lshrrev_b32 v{vTM}, 3, v{vN}")
        A(f"v_and_b32 v{vTM2}, 1, v{vG4}"); A(f"v_lshl_or_b32 v{vTM}, v{vTM2}, 1, v{vTM}")
        A(f"v_xor_b32 v{vTM}, {sW}, v{vTM}"); A(f"v_lshlrev_b32 v{vTM}, 5, v{vTM}")
        A(f"v_and_b32 v{vTM2}, 3, v{vN}"); A(f"v_lshl_or_b32 v{vTM}, v{vTM2}, 3, v{vTM}")
        A(f"v_lshrrev_b32 v{vTM2}, 2, v{vN}"); A(f"v_lshl_or_b32 v{vTM}, v{vTM2}, 7, v{vTM}")
        A(f"v_lshl_or_b32 v{dst}, v{vG4}, 10, v{vTM}")
    def wide_addr(dst):
        A(f"v_lshrrev_b32 v{vTM}, 2, v{vN}"); A(f"v_lshl_add_u32 v{vTM}, v{vG4}, 2, v{vTM}"); A(f"v_mul_u32_u24 v{vTM}, 896, v{vTM}")
        A(f"v_and_b32 v{vTM2}, 3, v{vN}"); A(f"v_lshl_add_u32 v{vTM}, v{vTM2}, 3, v{vTM}")
        A(f"s_mul_i32 {sT0}, {sW}, 224"); A(f"v_add_u32 v{dst}, {sT0}, v{vTM}")
    def read_tall_tile(base, dstreg, t):
        wait_tile()
        A(f"v_add_u32 v{vAD[0]}, {sSLOT}, v{base}")
        for s in range(4 if t < 3 else 2):
            for h2 in range(2):
                A(f"ds_read_b64_tr_b16 {P(dstreg + 4*(4*t+s) + 2*h2)}, v{vAD[0]} offset:{s*4096+h2*512}")
        A("s_waitcnt lgkmcnt(0)")
        pub_cons()
    def read_wide_tile(base, dstreg, half):
        wait_tile()
        A(f"v_add_u32 v{vAD[0]}, {sSLOT}, v{base}")
        for tt in range(7): A(f"ds_read_b64_tr_b16 {P(dstreg + 4*tt + 2*half)}, v{vAD[0]} offset:{tt*32}")
        A("s_waitcnt lgkmcnt(0)")
        pub_cons()
    def basic_setup():
        A(f"s_sub_u32 {sW}, {sWAVE}, 1"); A(f"s_lshr_b32 {sB}, {sG}, 3"); A(f"s_and_b32 {sHKV}, {sG}, 7")
        A(f"v_and_b32 v{vN}, 15, v{vLANE}"); A(f"v_lshrrev_b32 v{vG4}, 4, v{vLANE}")
        A(f"s_lshl_b32 {sT0}, {sW}, 2"); A(f"s_add_u32 {sT0}, {sT0}, {L_CONS}"); A(f"v_mov_b32 v{vCONS}, {sT0}")
        A("s_mov_b32 s42, 0xffff0000"); A("s_mov_b32 s43, s42")

    if align: A(".p2align 12")
    E.label("L_qprod")
    f14 = vWO+8; vLR = vWO+25; vTA = vWO+26; vQA = vWO+27
    basic_setup()
    A(f"s_or_b32 {sT0}, {sROLE}, {sW}"); A(f"s_cmp_lg_u32 {sT0}, 0"); A("s_cbranch_scc1 L_noinit")
    A(f"s_lshl_b32 {sT0}, {sG}, 8"); A(f"s_add_u32 {sT0}, {sT0}, {WS_CNT}")
    A(f"v_mov_b32 v{vTM2}, {sT0}"); A(f"v_mov_b32 v{vTM3}, 0")
    one_lane(f"global_store_dword v{vTM2}, v{vTM3}, {pWS} {stf}")
    E.label("L_noinit")
    A(f"s_lshl_b32 {sT2}, {sW}, 11"); A(f"s_add_u32 {sT2}, {sT2}, {L_LN}")
    A(f"v_add_u32 v{vLW1}, {sT2}, v{vLW1}")
    ln_read_addr(vLR, sT2)
    tall_addr(vTA)
    A(f"s_lshl_b32 {sT0}, {sB}, 2"); A(f"s_add_u32 {sT0}, {sT0}, {sROLE}"); A(f"s_lshl_b32 {sT0}, {sT0}, 2"); A(f"s_add_u32 {sT0}, {sT0}, {sW}")
    A(f"s_lshl_b32 {sT0}, {sT0}, 6"); A(f"s_lshl_b32 {sT1}, {sHKV}, 11"); A(f"s_add_u32 {sT0}, {sT0}, {sT1}"); A(f"s_add_u32 {sT0}, {sT0}, {WS_Q}")
    A(f"v_lshlrev_b32 v{vQA}, 2, v{vN}"); A(f"v_lshl_add_u32 v{vQA}, v{vG4}, 14, v{vQA}"); A(f"v_add_u32 v{vQA}, {sT0}, v{vQA}")
    if qtouch: touch_pad("q")
    A("s_waitcnt vmcnt(0) lgkmcnt(0)")
    stamp(12)
    layernorm(xr1, f14, vLW1, 128, mid=(lambda: pad("q")) if qtouch else None)
    make_tag(sTAG, sE); A(f"v_mov_b32 v{vX+1}, {sTAG}")
    A("s_waitcnt lgkmcnt(0)")
    stamp(13)
    for s in range(14): A(f"ds_read_b128 {Q4(vW2+4*s)}, v{vLR} offset:{s*64}")
    A(f"s_mov_b32 {sN}, 3"); wait_tile()
    stamp(14)
    for s in range(14):
        for h2 in range(2): A(f"ds_read_b64_tr_b16 {P(vW1 + 4*s + 2*h2)}, v{vTA} offset:{s*4096+h2*512}")
        if s % 4 == 3 or s == 13:
            A(f"s_waitcnt lgkmcnt(0)")
            for k in range(s - s % 4, s+1):
                A(f"v_mfma_f32_16x16x32_bf16 {Q4(vS)}, {Q4(vW2+4*k)}, {Q4(vW1+4*k)}, {'0' if k==0 else Q4(vS)}")
    A(f"s_mov_b32 {sSLOT}, {3*SLOT}"); pub_cons()
    A(f"v_cndmask_b32 v{vTM}, v{vS}, v{vS+1}, {sM1}")
    A(f"v_mov_b32_dpp v{vTM2}, v{vTM} quad_perm:[1,0,3,2] row_mask:0xf bank_mask:0xf")
    A(f"v_cvt_pk_bf16_f32 v{vX}, v{vTM}, v{vTM2}")
    A("s_mov_b64 exec, 0x55555555")
    A(f"global_store_dwordx2 v{vQA}, {P(vX)}, {pWS} {stf}")
    A("s_mov_b64 exec, -1")
    stamp(1)

    E.label("L_consumer")
    basic_setup()
    share_consts()
    A("s_mov_b32 s44, 0"); A("s_mov_b32 s45, -1"); A(f"s_mov_b32 {sC}, {C_SCALE:#x}"); A("s_mov_b32 s66, -1"); A("s_mov_b32 s67, 0"); A(f"s_mov_b32 {sTOT}, 0x7fffffff"); A(f"s_mov_b32 {sKNOWN}, 0")
    if hilo: A("s_mov_b32 s64, 0xcccccccc"); A("s_mov_b32 s65, 0xcccccccc")
    stamp(11)
    A(f"s_sub_u32 {sT0}, {sROLE}, 4"); A(f"s_lshl_b32 {sRR}, {sG}, 2"); A(f"s_add_u32 {sRR}, {sRR}, {sT0}")
    A(f"s_cmp_lt_u32 {sT0}, 4"); A(f"s_cselect_b32 {sRR}, {sRR}, 99"); A("s_cbranch_scc0 L_nox")
    A(f"s_bfe_u32 {sT0}, {sRR}, 0x20003"); A(f"s_mul_i32 {sCOL}, {sT0}, 224")
    A(f"s_bfe_u32 {sGP}, {sRR}, 0x20001"); A(f"s_lshl_b32 {sT0}, {sGP}, 6"); A(f"s_add_u32 {sCOL}, {sCOL}, {sT0}")
    A(f"s_and_b32 {sT0}, {sRR}, 1"); A(f"s_lshl_b32 {sT0}, {sT0}, 4"); A(f"s_add_u32 {sCOL}, {sCOL}, {sT0}")
    A(f"s_bfe_u32 {sT0}, {sRR}, 0x10005"); A(f"s_mul_i32 {sT0}, {sT0}, 896"); A(f"s_add_u32 {sCOL}, {sCOL}, {sT0}")
    A(f"v_and_b32 v{vTM}, 6, v{vLANE}"); A(f"v_lshl_add_u32 v{vTM}, v{vTM}, 1, {sCOL}")
    A(f"global_load_dword v{vXH}, v{vTM}, {pX}")
    A(f"v_mov_b32 v{vXH+1}, 0")
    A(f"s_cmp_eq_u32 {sGP}, 3"); A("s_cbranch_scc1 L_nox")
    A(f"global_load_dword v{vXH+1}, v{vTM}, {pX} offset:32")
    E.label("L_nox")
    A(f"v_xor_b32 v{vTM}, v{vG4}, v{vN}"); A(f"v_lshlrev_b32 v{vTM}, 4, v{vTM}"); A(f"v_lshl_or_b32 v{vTM}, v{vN}, 9, v{vTM}")
    for s in range(4): A(f"v_xor_b32 v{vKB[s]}, {s*64}, v{vTM}")
    A(f"v_lshrrev_b32 v{vTM}, 2, v{vN}"); A(f"v_lshl_add_u32 v{vTM}, v{vG4}, 2, v{vTM}")
    A(f"v_and_b32 v{vTM2}, 7, v{vTM}")
    A(f"s_lshl_b32 {sT0}, {sW}, 2"); A(f"v_xor_b32 v{vTM2}, {sT0}, v{vTM2}"); A(f"v_lshlrev_b32 v{vTM2}, 5, v{vTM2}")
    A(f"v_lshl_or_b32 v{vTM}, v{vTM}, 9, v{vTM2}")
    A(f"v_and_b32 v{vTM2}, 3, v{vN}"); A(f"v_lshl_or_b32 v{vTM}, v{vTM2}, 3, v{vTM}")
    for e in range(4): A(f"v_xor_b32 v{vVB[e]}, {e*32}, v{vTM}")
    A(f"v_mov_b32 v{vM}, 0xff800000"); A(f"v_mov_b32 v{vMC}, v{vM}"); A(f"v_mov_b32 v{vL}, 0")
    for i in range(16): A(f"v_mov_b32 v{vO+i}, 0")
    A(f"s_cmp_lt_u32 {sIDX}, 28"); A("s_cbranch_scc1 L_ffn_w")
    def vtile_read(dst):
        for e in range(4): A(f"v_add_u32 v{vAD[e]}, {sSLOT}, v{vVB[e]}")
        for e in range(4):
            for h2 in range(2): A(f"ds_read_b64_tr_b16 {P(dst + 4*e + 2*h2)}, v{vAD[e]} offset:{h2*8192}")
    for p in range(park):
        wait_tile(); vtile_read(vW1+16*p); A("s_waitcnt lgkmcnt(0)"); pub_cons()
    E.label("L_ffn_w_done")
    make_tag(sTAG, sE)
    A(f"s_cmp_lg_u32 {sW}, 0"); A("s_cbranch_scc1 L_q_flag")
    if qwait:
        A(f"s_add_u32 {sN}, {sN}, {qwait-1}"); wait_tile(); A(f"s_sub_u32 {sN}, {sN}, {qwait-1}")
    A(f"s_lshl_b32 {sT0}, {sG}, 11"); A(f"s_add_u32 {sT0}, {sT0}, {WS_Q}")
    A(f"v_lshl_add_u32 v{vTM3}, v{vLANE}, 4, {sT0}")
    poll([f"global_load_dwordx4 {Q4(vF)}, v{vTM3}, {pWS} {ldf}", f"global_load_dwordx4 {Q4(vF+4)}, v{vTM3}, {pWS} offset:1024 {ldf}"],
         [[vF+1, vF+3], [vF+5, vF+7]])
    A(f"v_lshlrev_b32 v{vTM}, 3, v{vLANE}"); A(f"v_add_u32 v{vTM}, {L_QW}, v{vTM}"); A(f"v_mov_b32 v{vTM2}, 1")
    A(f"ds_write2_b32 v{vTM}, v{vF}, v{vF+2} offset0:0 offset1:1"); A(f"ds_write2_b32 v{vTM}, v{vF+4}, v{vF+6} offset0:128 offset1:129")
    one_lane(f"ds_write_b32 v{vFLG}, v{vTM2} offset:32")
    E.label("L_q_flag")
    A(f"ds_read_b32 v{vTM}, v{vFLG} offset:32")
    spin_guard()
    A("s_waitcnt lgkmcnt(0)")
    A(f"v_readfirstlane_b32 {sT0}, v{vTM}")
    A(f"s_cmp_eq_u32 {sT0}, 1"); A("s_cbranch_scc1 L_q_have")
    A("s_sleep 1"); A("s_branch L_q_flag")
    E.label("L_q_have")
    A(f"v_and_b32 v{vTM2}, 1, v{vLANE}"); A(f"v_lshlrev_b32 v{vTM2}, 9, v{vTM2}"); A(f"v_lshl_add_u32 v{vTM2}, v{vG4}, 4, v{vTM2}"); A(f"v_add_u32 v{vTM2}, {L_QW}, v{vTM2}")
    for s in range(8): A(f"ds_read_b128 {Q4(vQ+4*s)}, v{vTM2} offset:{s*64}")
    stamp(2)
    A("s_waitcnt lgkmcnt(0)")

    def qk(nt):
        for s in range(4): A(f"v_add_u32 v{vAD[s]}, {sSLOT}, v{vKB[s]}")
        seq = [(t,s) for s in range(8) for t in range(nt)]; n = len(seq)
        def kread(i):
            t,s = seq[i]; A(f"ds_read_b128 {Q4(vF + 4*(i % NF))}, v{vAD[s&3]} offset:{(s>>2)*256 + t*8192}")
        for i in range(NF): kread(i)
        for i in range(n):
            t,s = seq[i]
            A(f"s_waitcnt lgkmcnt({min(NF-1, n-1-i)})")
            d = Q4(vS+4*t)
            A(f"v_mfma_f32_16x16x32_bf16 {d}, {Q4(vF + 4*(i % NF))}, {Q4(vQ+4*s)}, {'0' if s==0 else d}")
            if i + NF < n: kread(i+NF)
    def softmax(nt, tag):
        n = 4*nt
        for i in range(n//2): A(f"v_cvt_pk_bf16_f32 v{vP+i}, v{vS+2*i}, v{vS+2*i+1}")
        for i in range(n//2): unpack(vS+2*i, vS+2*i+1, vP+i)
        if nt == 2:
            A(f"v_max3_f32 v{vMX}, v{vS}, v{vS+1}, v{vS+2}"); A(f"v_max3_f32 v{vTM}, v{vS+3}, v{vS+4}, v{vS+5}")
            A(f"v_max3_f32 v{vMX}, v{vMX}, v{vS+6}, v{vS+7}"); A(f"v_max_f32 v{vMX}, v{vMX}, v{vTM}")
        else:
            A(f"v_max3_f32 v{vMX}, v{vS}, v{vS+1}, v{vS+2}"); A(f"v_max_f32 v{vMX}, v{vMX}, v{vS+3}")
        xrow("v_max_f32", [vMX], [vTM])
        A(f"v_cmp_gt_f32 vcc, v{vMX}, v{vM}")
        A("s_cmp_lg_u64 vcc, 0"); A(f"s_cbranch_scc1 L_rescale{tag}")
        E.label(f"L_rescaled{tag}")
        for i in range(n): A(f"v_fma_f32 v{vS+i}, v{vS+i}, {sC}, -v{vMC}")
        for i in range(n): A(f"v_exp_f32 v{vS+i}, v{vS+i}")
        for i in range(n//2): A(f"v_cvt_pk_bf16_f32 v{vP+i}, v{vS+2*i}, v{vS+2*i+1}")
        if hilo:
            for i in range(n//2):
                t = vF+16+2*(i&1)
                unpack(t, t+1, vP+i)
                A(f"v_pk_add_f32 {P(t)}, {P(vS+2*i)}, {P(t)} neg_lo:[0,1] neg_hi:[0,1]")
                A(f"v_cvt_pk_bf16_f32 v{t}, v{t}, v{t+1}")
                A(f"v_cndmask_b32 v{vP+i}, v{vP+i}, v{t}, s[64:65]")
    def add_l(nt):
        A(f"v_add_f32 v{vTM}, v{vS}, v{vS+1}"); A(f"v_add_f32 v{vMX}, v{vS+2}, v{vS+3}")
        if nt == 2:
            A(f"v_add_f32 v{vS+4}, v{vS+4}, v{vS+5}"); A(f"v_add_f32 v{vS+6}, v{vS+6}, v{vS+7}")
            A(f"v_add_f32 v{vTM}, v{vTM}, v{vS+4}"); A(f"v_add_f32 v{vMX}, v{vMX}, v{vS+6}")
        A(f"v_add_f32 v{vL}, v{vL}, v{vTM}"); A(f"v_add_f32 v{vL}, v{vL}, v{vMX}")
    def rescale(tag):
        E.label(f"L_rescale{tag}")
        A(f"v_max_f32 v{vM}, v{vM}, v{vMX}")
        A(f"v_mul_f32 v{vTM}, {sC}, v{vM}")
        A(f"v_sub_f32 v{vTM2}, v{vMC}, v{vTM}")
        A(f"v_mov_b32 v{vMC}, v{vTM}")
        A(f"v_exp_f32 v{vTM2}, v{vTM2}")
        A(f"v_mul_f32 v{vL}, v{vL}, v{vTM2}")
        A(f"v_mov_b32_dpp v{vTM}, v{vTM2} quad_perm:[0,0,2,2] row_mask:0xf bank_mask:0xf")
        A(f"v_mov_b32_dpp v{vTM3}, v{vTM2} quad_perm:[1,1,3,3] row_mask:0xf bank_mask:0xf")
        for i in range(16): A(f"v_mul_f32 v{vO+i}, v{vO+i}, v{vTM if i%2==0 else vTM3}")
        A(f"s_branch L_rescaled{tag}")
    E.label("L_loop")
    wait_tile()
    qk(2)
    pub_cons()
    softmax(2, "a"); add_l(2)
    A(f"s_cmp_lt_u32 {sCI}, {sPK}"); A("s_cbranch_scc1 L_pv_park")
    wait_tile()
    vtile_read(vF)
    for e in range(4):
        A(f"s_waitcnt lgkmcnt({6-2*e})")
        A(f"v_mfma_f32_16x16x32_bf16 {Q4(vO+4*e)}, {Q4(vP)}, {Q4(vF+4*e)}, {Q4(vO+4*e)}")
    pub_cons()
    E.label("L_pv_done")
    A(f"s_add_u32 {sCI}, {sCI}, 1"); A(f"s_cmp_lt_u32 {sCI}, {sNS}"); A("s_cbranch_scc1 L_loop")
    if touch:
        for nm in ("fin","red","ffn","ffn2"): touch_pad(nm)
    if forcepar is None:
        A(f"v_mov_b32 v{vTM}, {WS_PAR}")
        poll([f"global_load_dwordx4 {Q4(vF)}, v{vTM}, {pWS} {ldf}"], [[vF+1, vF+3]])
        A(f"v_readfirstlane_b32 {sP0}, v{vF}"); A(f"v_readfirstlane_b32 {sP1}, v{vF+2}")
    else:
        A(f"s_mov_b32 {sP0}, {forcepar[0]*8192}"); A(f"s_mov_b32 {sP1}, {forcepar[1]*8192}")
    A(f"s_lshl_b32 {sT0}, {sG}, 2"); A(f"s_and_b32 {sT1}, {sW}, 1"); A(f"s_add_u32 {sT0}, {sT0}, {sT1}"); A(f"s_lshl_b32 {sT0}, {sT0}, 14")
    A(f"s_lshr_b32 {sT1}, {sW}, 1"); A(f"s_lshl_b32 {sT1}, {sT1}, 13"); A(f"s_xor_b32 {sT1}, {sT1}, {sP0}"); A(f"s_add_u32 {sT0}, {sT0}, {sT1}")
    A(f"s_lshl_b32 {sT1}, {sJ}, 8"); A(f"s_add_u32 {sT0}, {sT0}, {sT1}"); A(f"s_add_u32 {sT0}, {sT0}, {WS_A}")
    A(f"v_lshrrev_b32 v{vAA}, 1, v{vG4}"); A(f"v_lshlrev_b32 v{vAA}, 15, v{vAA}")
    A(f"v_and_b32 v{vTM}, 1, v{vG4}"); A(f"v_lshl_or_b32 v{vAA}, v{vTM}, 12, v{vAA}"); A(f"v_lshl_or_b32 v{vAA}, v{vN}, 4, v{vAA}")
    A(f"v_add_u32 v{vAA}, {sT0}, v{vAA}")
    A(f"s_lshr_b32 {sT0}, {sWG}, 3"); A(f"s_lshl_b32 {sT0}, {sT0}, 1"); A(f"s_bfe_u32 {sT1}, {sWG}, 0x10001"); A(f"s_add_u32 {sT0}, {sT0}, {sT1}"); A(f"s_lshl_b32 {sT0}, {sT0}, 14")
    A(f"s_bfe_u32 {sT1}, {sWG}, 0x10002"); A(f"s_lshl_b32 {sT1}, {sT1}, 13"); A(f"s_xor_b32 {sT1}, {sT1}, {sP0}"); A(f"s_add_u32 {sT0}, {sT0}, {sT1}")
    A(f"s_and_b32 {sT1}, {sWG}, 1"); A(f"s_lshl_b32 {sT1}, {sT1}, 12"); A(f"s_add_u32 {sT0}, {sT0}, {sT1}"); A(f"s_add_u32 {sT0}, {sT0}, {WS_A}")
    A(f"v_lshlrev_b32 v{vAI}, 4, v{vN}"); A(f"v_lshl_or_b32 v{vAI}, v{vG4}, 10, v{vAI}"); A(f"v_add_u32 v{vAI}, {sT0}, v{vAI}")
    A(f"v_lshl_add_u32 v{vX+3}, v{vLANE}, 6, {sT0}")
    A(f"s_cmp_eq_u32 {sW}, 0"); A(f"s_cselect_b32 {sWRM}, {0x7fffffff if awarm else 0}, 0")
    A(f"s_cmp_ge_u32 {sRR}, 64"); A(f"s_cbranch_scc1 L_nored"); A(f"s_sub_u32 {sT0}, {sW}, 1"); A(f"s_cmp_ge_u32 {sT0}, 2"); A(f"s_cbranch_scc1 L_nored")
    A(f"s_lshl_b32 {sT0}, {sT0}, 14"); A(f"s_lshl_b32 {sT1}, {sRR}, 15"); A(f"s_add_u32 {sT0}, {sT0}, {sT1}"); A(f"s_add_u32 {sT0}, {sT0}, {sP1}"); A(f"s_add_u32 {sT0}, {sT0}, {WS_B}")
    A(f"v_lshl_add_u32 v{vX+3}, v{vLANE}, 7, {sT0}"); A(f"s_mov_b32 {sWRM}, {[0,0x7fffffff,1,2][bwarm]}")
    if bwarm == 3: A(f"global_load_dword v{vX+2}, v{vX+3}, {pWS} {ldf}")
    E.label("L_nored")
    A(f"s_lshl_b32 {sT0}, {sB}, 2"); A(f"s_add_u32 {sT0}, {sT0}, {sW}"); A(f"s_lshl_b32 {sT0}, {sT0}, 18")
    A(f"s_bfe_u32 {sT1}, {sWG}, 0x10006"); A(f"s_lshl_b32 {sT1}, {sT1}, 14"); A(f"s_add_u32 {sT0}, {sT0}, {sT1}"); A(f"s_add_u32 {sT0}, {sT0}, {sP1}")
    A(f"s_and_b32 {sT1}, {sWG}, 63"); A(f"s_lshl_b32 {sT1}, {sT1}, 7"); A(f"s_add_u32 {sT0}, {sT0}, {sT1}"); A(f"s_add_u32 {sT0}, {sT0}, {WS_B}")
    A(f"v_lshrrev_b32 v{vTM}, 3, v{vLANE}"); A(f"v_lshlrev_b32 v{vTM}, 15, v{vTM}")
    A(f"v_and_b32 v{vTM2}, 7, v{vLANE}"); A(f"v_lshl_or_b32 v{vBA}, v{vTM2}, 4, v{vTM}"); A(f"v_add_u32 v{vBA}, {sT0}, v{vBA}")
    E.label("L_mini")
    wait_tile("L_fin")
    qk(1)
    for e in range(4): A(f"v_add_u32 v{vAD[e]}, {sSLOT}, v{vVB[e]}")
    for e in range(4): A(f"ds_read_b64_tr_b16 {P(vF + 2*e)}, v{vAD[e]} offset:8192")
    softmax(1, "b")
    A("s_waitcnt lgkmcnt(0)")
    for e in range(4): A(f"v_mfma_f32_16x16x16_bf16 {Q4(vO+4*e)}, {P(vP)}, {P(vF+2*e)}, {Q4(vO+4*e)}")
    add_l(1)
    slot_advance()
    A(f"s_cmp_eq_u32 {sN}, {sTOT}"); A("s_cbranch_scc1 L_fin")
    A(f"v_mov_b32 v{vTM}, {sN}"); one_lane(f"ds_write_b32 v{vCONS}, v{vTM}")
    A("s_branch L_mini")
    rescale("b"); rescale("a")
    E.label("L_pv_park")
    for p in range(park):
        if p < park-1: nx = lab("pk"); A(f"s_cmp_lg_u32 {sCI}, {p}"); A(f"s_cbranch_scc1 {nx}")
        for e in range(4): A(f"v_mfma_f32_16x16x32_bf16 {Q4(vO+4*e)}, {Q4(vP)}, {Q4(vW1+16*p+4*e)}, {Q4(vO+4*e)}")
        A("s_branch L_pv_done")
        if p < park-1: E.label(nx)

    vG=vF; vI=vF+4; sa=vS; sb=vS+1; sw=vS+2
    vA=vQ; vOPR=vQ+4; vOPW=vQ+5; vR0=vQ+6; vR1=vQ+7; vR2=vQ+8; vR3=vQ+9; vR4=vQ+10; vR5=vQ+11; vZ=vQ+12
    E.label("L_ffn_addr")
    A(f"v_lshrrev_b32 v{vTM}, 3, v{vLANE}"); A(f"v_and_b32 v{vTM2}, 7, v{vLANE}")
    A(f"v_lshlrev_b32 v{vR0}, 9, v{vTM}"); A(f"v_lshl_or_b32 v{vR0}, v{vTM2}, 4, v{vR0}"); A(f"s_add_u32 {sT0}, {sP0}, {WS_H}"); A(f"v_add_u32 v{vR0}, {sT0}, v{vR0}")
    A(f"v_mul_u32_u24 v{vR1}, 224, v{vTM}"); A(f"v_lshl_add_u32 v{vR1}, v{vTM2}, 2, v{vR1}"); A(f"v_add_u32 v{vR1}, {L_LN}, v{vR1}")
    ln_read_addr(vR2, L_LN)
    A(f"s_lshl_b32 {sT0}, {sW}, 5"); A(f"s_add_u32 {sT0}, {sT0}, {L_ACT}")
    A(f"v_lshlrev_b32 v{vR3}, 7, v{vG4}"); A(f"v_lshl_add_u32 v{vR3}, v{vN}, 1, v{vR3}"); A(f"v_add_u32 v{vR3}, {sT0}, v{vR3}")
    A(f"v_and_b32 v{vR4}, 1, v{vLANE}"); A(f"v_lshlrev_b32 v{vR4}, 7, v{vR4}"); A(f"v_lshl_add_u32 v{vR4}, v{vG4}, 3, v{vR4}"); A(f"v_add_u32 v{vR4}, {L_ACT}, v{vR4}")
    A(f"s_lshl_b32 {sT0}, {sW}, 16"); A(f"s_lshl_b32 {sT1}, {sIDX}, 7"); A(f"s_add_u32 {sT0}, {sT0}, {sT1}"); A(f"s_add_u32 {sT0}, {sT0}, {sP0}"); A(f"s_add_u32 {sT0}, {sT0}, {WS_D}")
    A(f"v_lshrrev_b32 v{vTM}, 3, v{vN}"); A(f"v_lshlrev_b32 v{vTM}, 12, v{vTM}"); A(f"v_lshl_or_b32 v{vTM}, v{vG4}, 14, v{vTM}")
    A(f"v_lshl_or_b32 v{vTM}, v{vTM2}, 4, v{vTM}"); A(f"v_add_u32 v{vR5}, {sT0}, v{vTM}")
    A("s_branch L_addr_done")
    if align: A(".p2align 12")
    if touch: E.label("L_pad_fin"); A("s_branch L_ret_fin")
    E.label("L_fin")
    stamp(3)
    yreg = [vO, vO+4, vO+8, vO+12, vQ+16, vQ+20, vQ+24]
    xrow("v_add_f32", [vL], [vTM])
    if hilo:
        for e in range(4): A(f"v_pk_add_f32 {P(vO+4*e)}, {P(vO+4*e)}, {P(vO+4*e+2)}")
    A(f"v_log_f32 v{vTM2}, v{vL}"); A(f"v_rcp_f32 v{vTM3}, v{vL}")
    A(f"v_mov_b32 v{vG+3}, {sTAG}")
    A(f"v_add_f32 v{vTM2}, v{vMC}, v{vTM2}")
    SEL4(vG, vO+0, vO+8, vO+1, vO+9, vMX)
    A(f"v_mov_b32_dpp v{vTM}, v{vTM3} quad_perm:[0,0,2,2] row_mask:0x3 bank_mask:0xf")
    A(f"v_mov_b32_dpp v{vG+2}, v{vTM2} quad_perm:[0,0,2,2] row_mask:0x3 bank_mask:0xf")
    SEL4(vG+1, vO+4, vO+12, vO+5, vO+13, vMX)
    A(f"v_mov_b32_dpp v{vTM}, v{vTM3} quad_perm:[1,1,3,3] row_mask:0xc bank_mask:0xf")
    A(f"v_mov_b32_dpp v{vG+2}, v{vTM2} quad_perm:[1,1,3,3] row_mask:0xc bank_mask:0xf")
    A(f"v_mul_f32 v{vG}, v{vG}, v{vTM}"); A(f"v_mul_f32 v{vG+1}, v{vG+1}, v{vTM}")
    A(f"global_store_dwordx4 v{vAA}, {Q4(vG)}, {pWS} {stf}")
    stamp(4)
    if bwarm == 2:
        A(f"s_cmp_lg_u32 {sWRM}, 1"); A("s_cbranch_scc1 L_nobw")
        A(f"global_load_dword v{vX+2}, v{vX+3}, {pWS} {ldf}")
        E.label("L_nobw")
    A(f"v_lshlrev_b32 v{vOPR}, 3, v{vG4}"); A(f"v_add_u32 v{vOPR}, {L_OP}, v{vOPR}")
    A(f"v_lshlrev_b32 v{vOPW}, 1, v{vN}"); A(f"v_add_u32 v{vOPW}, {L_OP}, v{vOPW}")
    A(f"v_mov_b32 v{vZ}, 0")
    A(f"s_cmp_lt_u32 {sIDX}, 28"); A("s_cbranch_scc1 L_ffn_addr")
    A(f"s_cmp_ge_u32 {sRR}, 64"); A("s_cbranch_scc1 L_addr_done")
    A(f"s_lshl_b32 {sT0}, {sRR}, 15"); A(f"s_lshr_b32 {sT1}, {sW}, 1"); A(f"s_lshl_b32 {sT1}, {sT1}, 14"); A(f"s_add_u32 {sT0}, {sT0}, {sT1}")
    A(f"s_and_b32 {sT1}, {sW}, 1"); A(f"s_lshl_b32 {sT1}, {sT1}, 12"); A(f"s_add_u32 {sT0}, {sT0}, {sT1}"); A(f"s_add_u32 {sT0}, {sT0}, {sP1}"); A(f"s_add_u32 {sT0}, {sT0}, {WS_B}")
    A(f"v_lshl_add_u32 v{vR0}, v{vLANE}, 4, {sT0}")
    A(f"s_lshl_b32 {sT0}, {sW}, 6"); A(f"s_add_u32 {sT0}, {sT0}, {L_RED}")
    A(f"v_and_b32 v{vTM}, 7, v{vLANE}"); A(f"v_lshl_add_u32 v{vR1}, v{vTM}, 2, {sT0}")
    A(f"v_and_b32 v{vTM}, 6, v{vLANE}"); A(f"v_lshlrev_b32 v{vR2}, 2, v{vTM}"); A(f"v_add_u32 v{vR2}, {L_RED}, v{vR2}")
    A(f"s_lshl_b32 {sT0}, {sRR}, 6"); A(f"s_add_u32 {sT0}, {sT0}, {sP0}"); A(f"s_add_u32 {sT0}, {sT0}, {WS_H}"); A(f"v_lshl_add_u32 v{vR3}, v{vTM}, 3, {sT0}")
    A(f"s_lshr_b32 {sT0}, {sRR}, 1"); A(f"s_lshl_b32 {sT0}, {sT0}, 14"); A(f"s_and_b32 {sT1}, {sRR}, 1"); A(f"s_lshl_b32 {sT1}, {sT1}, 12"); A(f"s_add_u32 {sT0}, {sT0}, {sT1}")
    A(f"s_add_u32 {sT0}, {sT0}, {sP0}"); A(f"s_add_u32 {sT0}, {sT0}, {WS_D}"); A(f"v_lshl_add_u32 v{vR4}, v{vLANE}, 4, {sT0}")
    A(f"v_lshl_add_u32 v{vR5}, v{vTM}, 1, {sCOL}")
    E.label("L_addr_done")
    aloads = [f"global_load_dwordx4 {Q4(vI+4*i)}, v{vAI}, {pWS} offset:{i*256} {ldf}" for i in range(4)]
    A(f"s_cmp_lg_u32 {sW}, 0"); A("s_cbranch_scc1 L_a_nopoll")
    for l in aloads: A(l)
    E.label("L_a_nopoll")
    wide_addr(vX)
    for h in range(2): read_wide_tile(vX, vWO, h)
    A(f"s_cmp_lg_u32 {sW}, 0"); A("s_cbranch_scc1 L_a_join")
    poll(aloads, [[vI+4*i+3] for i in range(4)], issued=True)
    stamp(5)
    A(f"v_max3_f32 v{vMX}, v{vI+2}, v{vI+6}, v{vI+10}"); A(f"v_max_f32 v{vMX}, v{vMX}, v{vI+14}")
    xrow("v_max_f32", [vMX], [vTM])
    for i in range(4): A(f"v_sub_f32 v{vI+4*i+2}, v{vI+4*i+2}, v{vMX}")
    for i in range(4): A(f"v_exp_f32 v{vI+4*i+2}, v{vI+4*i+2}")
    A(f"v_mul_f32 v{sa}, v{vI}, v{vI+2}"); A(f"v_mul_f32 v{sb}, v{vI+1}, v{vI+2}"); A(f"v_add_f32 v{sw}, v{vI+2}, v{vI+6}")
    for i in range(1,4):
        A(f"v_fmac_f32 v{sa}, v{vI+4*i}, v{vI+4*i+2}"); A(f"v_fmac_f32 v{sb}, v{vI+4*i+1}, v{vI+4*i+2}")
        if i > 1: A(f"v_add_f32 v{sw}, v{sw}, v{vI+4*i+2}")
    xrow("v_add_f32", [sw, sa, sb], [vS+3, vS+4, vS+5])
    A(f"v_rcp_f32 v{sw}, v{sw}")
    A(f"v_mul_f32 v{sa}, v{sa}, v{sw}"); A(f"v_mul_f32 v{sb}, v{sb}, v{sw}")
    A(f"v_mov_b32_dpp v{vS+3}, v{sa} quad_perm:[1,0,3,2] row_mask:0xf bank_mask:0xf")
    A(f"v_mov_b32_dpp v{vS+4}, v{sb} quad_perm:[1,0,3,2] row_mask:0xf bank_mask:0xf")
    A(f"v_cvt_pk_bf16_f32 v{sa}, v{sa}, v{vS+3}"); A(f"v_cvt_pk_bf16_f32 v{sb}, v{sb}, v{vS+4}")
    A("s_mov_b64 exec, 0x5555"); A(f"ds_write2_b32 v{vOPW}, v{sa}, v{sb} offset0:0 offset1:8"); A("s_mov_b64 exec, -1")
    A("s_waitcnt lgkmcnt(0)")
    E.label("L_a_join")
    A("s_barrier")
    A(f"ds_read2_b64 {Q4(vA)}, v{vOPR} offset0:0 offset1:4")
    A(f"v_mov_b32 v{vG+1}, {sTAG}")
    A("s_waitcnt lgkmcnt(0)")
    for t in (0,2,4,6,1,3,5):
        A(f"v_mfma_f32_16x16x32_bf16 {Q4(yreg[t])}, {Q4(vA)}, {Q4(vWO+4*t)}, 0")
    SEL4(vG, yreg[0], yreg[2], yreg[4], yreg[6], vMX)
    SEL4(vG+2, yreg[1], yreg[3], yreg[5], vZ, vTM)
    A(f"global_store_dwordx4 v{vBA}, {Q4(vG)}, {pWS} {stf}")
    stamp(6)
    A(f"s_cmp_lt_u32 {sIDX}, 28"); A("s_cbranch_scc1 L_ffn")
    A(f"s_cmp_ge_u32 {sRR}, 64"); A("s_cbranch_scc1 L_done")
    def inbox(addr): return [f"global_load_dwordx4 {Q4(vI+4*i)}, v{addr}, {pWS} offset:{i*1024} {ldf}" for i in range(4)]
    tags2 = [[vI+4*i+3] if onetag else [vI+4*i+1, vI+4*i+3] for i in range(4)]
    def sum_inbox():
        A(f"v_add_f32 v{sa}, v{vI}, v{vI+4}"); A(f"v_add_f32 v{sb}, v{vI+2}, v{vI+6}")
        A(f"v_add_f32 v{vS+2}, v{vI+8}, v{vI+12}"); A(f"v_add_f32 v{vS+3}, v{vI+10}, v{vI+14}")
        A(f"v_add_f32 v{sa}, v{sa}, v{vS+2}"); A(f"v_add_f32 v{sb}, v{sb}, v{vS+3}")
        A(f"v_add_f32_dpp v{sa}, v{sa}, v{sa} row_ror:8 row_mask:0xf bank_mask:0xf")
        A(f"v_add_f32_dpp v{sb}, v{sb}, v{sb} row_ror:8 row_mask:0xf bank_mask:0xf")
        xrow("v_add_f32", [sa, sb], [vS+2, vS+3])
    vXF = vO
    unpack(vXF, vXF+1, vXH); unpack(vXF+2, vXF+3, vXH+1)
    if touch: pad("red")
    poll(inbox(vR0), tags2)
    stamp(7)
    sum_inbox()
    A("s_mov_b64 exec, 0xff"); A(f"ds_write2_b32 v{vR1}, v{sa}, v{sb} offset0:0 offset1:8"); A("s_mov_b64 exec, -1")
    A("s_waitcnt lgkmcnt(0)"); A("s_barrier")
    A(f"s_cmp_lg_u32 {sW}, 0"); A("s_cbranch_scc1 L_done")
    for i in range(4): A(f"ds_read2_b64 {Q4(vI+4*i)}, v{vR2} offset0:{i*8} offset1:{i*8+4}")
    def add_resid(y, dst):
        A(f"v_cvt_pk_bf16_f32 v{dst}, v{y}, v{y+1}"); A(f"v_cvt_pk_bf16_f32 v{dst+2}, v{y+2}, v{y+3}")
        unpack(y, y+1, dst); unpack(y+2, y+3, dst+2)
        A(f"v_pk_add_f32 {P(y)}, {P(y)}, {P(vXF)}"); A(f"v_pk_add_f32 {P(y+2)}, {P(y+2)}, {P(vXF+2)}")
        A(f"v_cvt_pk_bf16_f32 v{dst}, v{y}, v{y+1}"); A(f"v_cvt_pk_bf16_f32 v{dst+2}, v{y+2}, v{y+3}")
    A("s_waitcnt lgkmcnt(2)")
    A(f"v_pk_add_f32 {P(vI)}, {P(vI)}, {P(vI+4)}"); A(f"v_pk_add_f32 {P(vI+2)}, {P(vI+2)}, {P(vI+6)}")
    A("s_waitcnt lgkmcnt(0)")
    A(f"v_pk_add_f32 {P(vI+8)}, {P(vI+8)}, {P(vI+12)}"); A(f"v_pk_add_f32 {P(vI+10)}, {P(vI+10)}, {P(vI+14)}")
    A(f"v_pk_add_f32 {P(vI)}, {P(vI)}, {P(vI+8)}"); A(f"v_pk_add_f32 {P(vI+2)}, {P(vI+2)}, {P(vI+10)}")
    add_resid(vI, vG)
    A("s_mov_b64 exec, 0x55"); A(f"global_store_dwordx4 v{vR3}, {Q4(vG)}, {pWS} {stf}"); A("s_mov_b64 exec, -1")
    stamp(8)
    unpack(vXF, vXF+1, vG); unpack(vXF+2, vXF+3, vG+2)
    A(f"v_mov_b32 v{vI+12}, 0"); A(f"v_mov_b32 v{vI+13}, {sTAG}"); A(f"v_mov_b32 v{vI+14}, 0"); A(f"v_mov_b32 v{vI+15}, {sTAG}")
    poll(inbox(vR4), tags2, first_mask=[-1,-1,-1,"s[66:67]"])
    stamp(9)
    sum_inbox()
    A(f"v_mov_b32_dpp v{vI}, v{sa} quad_perm:[0,0,2,2] row_mask:0xf bank_mask:0xf"); A(f"v_mov_b32_dpp v{vI+1}, v{sa} quad_perm:[1,1,3,3] row_mask:0xf bank_mask:0xf")
    A(f"v_mov_b32_dpp v{vI+2}, v{sb} quad_perm:[0,0,2,2] row_mask:0xf bank_mask:0xf"); A(f"v_mov_b32_dpp v{vI+3}, v{sb} quad_perm:[1,1,3,3] row_mask:0xf bank_mask:0xf")
    add_resid(vI, vI+4)
    A("s_mov_b64 exec, 0x55"); A(f"global_store_dword v{vR5}, v{vI+4}, {pOUT} {outf}")
    A(f"s_cmp_eq_u32 {sGP}, 3"); A("s_cbranch_scc1 L_done")
    A(f"global_store_dword v{vR5}, v{vI+6}, {pOUT} offset:32 {outf}")
    A(f"s_cmp_lg_u32 {sRR}, 0"); A("s_cbranch_scc1 L_done")
    A(f"s_add_u32 {sT0}, {sE}, 1"); A(f"v_mov_b32 v{vTM2}, {sT0}"); A(f"v_mov_b32 v{vTM3}, {WS_E}")
    A("s_mov_b64 exec, 1"); A(f"global_store_dword v{vTM3}, v{vTM2}, {pWS} {stf}")
    if enc:
        A("s_memrealtime s[90:91]"); A("s_waitcnt lgkmcnt(0)")
        A(f"s_sub_u32 {sT0}, s{70+2*enc[1]}, s{70+2*enc[0]}"); A(f"s_lshl_b32 {sT0}, {sT0}, 2"); A(f"s_min_u32 {sT0}, {sT0}, 100000")
        E.label("L_enc")
        A("s_memrealtime s[94:95]"); A("s_waitcnt lgkmcnt(0)")
        A(f"s_sub_u32 {sT1}, s94, s90"); A(f"s_cmp_lt_u32 {sT1}, {sT0}"); A("s_cbranch_scc1 L_enc")
    A("s_branch L_done")
    if touch: E.label("L_pad_ffn"); A("s_branch L_ret_ffn")
    E.label("L_ffn")
    A(f"s_cmp_lg_u32 {sW}, 0"); A("s_cbranch_scc1 L_c_join")
    poll([f"global_load_dwordx4 {Q4(vI+4*u)}, v{vR0}, {pWS} offset:{u*128} {ldf}" for u in range(4)], tags2)
    stamp(7)
    layernorm([vI+2*u for u in range(7)], vO, vR1, 32, mid=(lambda: pad("ffn2")) if touch else None)
    A("s_waitcnt lgkmcnt(0)")
    E.label("L_c_join")
    A("s_barrier")
    def aread(i): A(f"ds_read_b128 {Q4(vF + 4*(i % NF))}, v{vR2} offset:{i*64}")
    for i in range(NF): aread(i)
    for i in range(14):
        A(f"s_waitcnt lgkmcnt({min(NF-1, 13-i)})")
        A(f"v_mfma_f32_16x16x32_bf16 {Q4(vS)}, {Q4(vF + 4*(i % NF))}, {Q4(vW1+4*i)}, {'0' if i==0 else Q4(vS)}")
        if i + NF < 14: aread(i+NF)
    for b in range(2): A(f"v_mov_b32 v{vO+4*b+1}, {sTAG}"); A(f"v_mov_b32 v{vO+4*b+3}, {sTAG}")
    A(f"v_add_u32 v{vR0}, {16*16384}, v{vR5}")
    A(f"v_cndmask_b32 v{vTM}, v{vS}, v{vS+1}, {sM1}")
    round_bf(vTM, vTM)
    A(f"v_mul_f32 v{vTM2}, {(LOG2E | 0x80000000):#x}, v{vTM}")
    A(f"v_exp_f32 v{vTM2}, v{vTM2}")
    A(f"v_add_f32 v{vTM2}, 1.0, v{vTM2}")
    A(f"v_rcp_f32 v{vTM2}, v{vTM2}")
    A(f"v_mul_f32 v{vTM}, v{vTM}, v{vTM2}")
    A(f"v_cvt_pk_bf16_f32 v{vTM}, v{vTM}, v{vTM}")
    A("s_mov_b32 exec_hi, 0"); A(f"ds_write_b16 v{vR3}, v{vTM}"); A("s_mov_b32 exec_hi, -1")
    A("s_waitcnt lgkmcnt(0)"); A("s_barrier")
    for ks in range(2): A(f"ds_read2_b64 {Q4(vF+4*ks)}, v{vR4} offset0:{ks*8} offset1:{ks*8+4}")
    zreg = [vW1+4*t for t in range(7)]
    for ks in range(2):
        A(f"s_waitcnt lgkmcnt({1-ks})")
        for t in (0,2,4,6,1,3,5):
            A(f"v_mfma_f32_16x16x32_bf16 {Q4(zreg[t])}, {Q4(vF+4*ks)}, {Q4(vW2+28*ks+4*t)}, {'0' if ks==0 else Q4(zreg[t])}")
    for b in range(2): SEL4(vO+4*b, zreg[0]+b, zreg[2]+b, zreg[4]+b, zreg[6]+b, vMX)
    for b in range(2):
        SEL4(vO+4*b+2, zreg[1]+b, zreg[3]+b, zreg[5]+b, vZ, vMX)
        A(f"global_store_dwordx4 v{vR5 if b == 0 else vR0}, {Q4(vO+4*b)}, {pWS} {stf}")
    stamp(8)
    E.label("L_done")
    if diag:
        stamp(10)
        A("s_mov_b64 exec, -1")
        A(f"s_lshl_b32 {sT0}, {sWG}, 2"); A(f"s_add_u32 {sT0}, {sT0}, {sW}"); A(f"s_lshl_b32 {sT0}, {sT0}, 7"); A(f"s_add_u32 {sT0}, {sT0}, {WS_ST}")
        A("s_getreg_b32 s100, hwreg(HW_REG_XCC_ID)")
        A("s_waitcnt lgkmcnt(0)")
        A(f"v_mov_b32 v{vTM}, {sT0}")
        A("s_mov_b64 exec, 1")
        for k in range(11): A(f"v_mov_b32 v{vW1+k}, s{70+2*k}")
        A(f"v_mov_b32 v{vW1+11}, s100"); A(f"v_mov_b32 v{vW1+12}, {sN}"); A(f"v_mov_b32 v{vW1+13}, {sROLE}"); A(f"v_mov_b32 v{vW1+14}, {sWG}"); A(f"v_mov_b32 v{vW1+15}, {sIDX}")
        for k in range(4): A(f"v_mov_b32 v{vW1+16+k}, s{92+2*k}")
        for q in range(5): A(f"global_store_dwordx4 v{vTM}, {Q4(vW1+4*q)}, {pWS} offset:{q*16}")
    E.label("L_end")
    A("s_endpgm")

    E.label("L_ffn_w")
    wide_addr(vX); tall_addr(vX+1)
    for t in range(4): read_tall_tile(vX+1, vW1, t)
    for t in range(4): read_wide_tile(vX, vW2 + 28*(t>>1), t & 1)
    A("s_branch L_ffn_w_done")
    E.label("L_ld_ffn")
    tall_voffs(3584)
    A(f"s_mov_b64 s[48:49], s[{pW1[0]}:{pW1[1]}]"); A(f"s_mov_b32 s50, {448*1792*2}")
    A(f"s_lshl_b32 {sBASE}, {sIDX}, 7")
    for t in range(4):
        if t % 2 == 0: freecheck(2)
        tile_tall(3584, t, 16 if t < 3 else 8)
    A(f"s_mov_b64 s[48:49], s[{pW2[0]}:{pW2[1]}]")
    A(f"s_mul_i32 {sBASE}, {sIDX}, {64*896}"); A(f"s_add_u32 {sT2}, {sN}, 4")
    E.label("L_ld_w2")
    freecheck(1)
    tile_wide()
    A(f"s_cmp_lt_u32 {sN}, {sT2}"); A("s_cbranch_scc1 L_ld_w2")
    A("s_branch L_ld_head_done")
    if forcepar is None:
        E.label("L_probe")
        A(f"s_load_dword s69, {pWS}, {WS_E}")
        A("s_mov_b64 exec, 1")
        for k,off in enumerate((WS_PRB, WS_PRB+8192, WS_B, WS_B+8192)):
            A(f"v_mov_b32 v{32+k}, {off}"); A(f"s_mov_b32 s{92+k}, 0")
        A("v_mov_b32 v36, 0"); A(f"s_mov_b32 {sCI}, {nprobe}")
        for k in range(4): A(f"global_atomic_add v37, v{32+k}, v36, {pWS} sc0")
        A("s_waitcnt vmcnt(0)")
        E.label("L_probe_loop")
        for k in range(4):
            A("s_memtime s[64:65]"); A("s_waitcnt lgkmcnt(0)")
            A(f"global_atomic_add v37, v{32+k}, v36, {pWS} sc0"); A("s_waitcnt vmcnt(0)")
            A("s_memtime s[66:67]"); A("s_waitcnt lgkmcnt(0)")
            A("s_sub_u32 s66, s66, s64"); A(f"s_min_u32 s66, s66, {clip}"); A(f"s_add_u32 s{92+k}, s{92+k}, s66")
        A(f"s_sub_u32 {sCI}, {sCI}, 1"); A(f"s_cmp_lg_u32 {sCI}, 0"); A("s_cbranch_scc1 L_probe_loop")
        A("s_cmp_gt_u32 s92, s93"); A(f"s_cselect_b32 {sT0}, 8192, 0")
        A("s_cmp_gt_u32 s94, s95"); A(f"s_cselect_b32 {sT1}, 8192, 0")
        make_tag(sT2, "s69")
        A(f"v_mov_b32 v32, {sT0}"); A(f"v_mov_b32 v33, {sT2}"); A(f"v_mov_b32 v34, {sT1}"); A(f"v_mov_b32 v35, {sT2}"); A(f"v_mov_b32 v36, {WS_PAR}")
        A(f"global_store_dwordx4 v36, v[32:35], {pWS} {stf}")
        A("s_mov_b64 exec, -1")
        A("s_branch L_ld_wo")

    body = E.finish()
    head = open("sequential_preLN__gqa_block_cached__dense_activation_silu__decode.s.ref").read().split("; Override launch")[0]
    src = head + f"""; One persistent launch: 256 workgroups (one per CU); wave 0 streams K/V into an LDS ring, waves 1-4 compute.
; @launch grid=(256,1,1) block=(320,1,1) lds={LDS}
.amdgcn_target "amdgcn-amd-amdhsa--gfx950"
.text
.globl {NAME}
{'.p2align 12' if align else ''}
.p2align 8
.type {NAME},@function
{NAME}:
{body}.section .rodata,"a"
.p2align 6
.amdhsa_kernel {NAME}
  .amdhsa_next_free_vgpr 256
  .amdhsa_next_free_sgpr 102
  .amdhsa_accum_offset 256
  .amdhsa_group_segment_fixed_size 0
  .amdhsa_kernarg_size 88
  .amdhsa_user_sgpr_count 2
  .amdhsa_user_sgpr_kernarg_segment_ptr 1
  .amdhsa_system_sgpr_workgroup_id_x 1
.end_amdhsa_kernel
"""
    return src, E.npad

if __name__ == "__main__":
    out = sys.argv[1]
    kw = json.loads(sys.argv[2]) if len(sys.argv) > 2 else {}
    src, npad = gen(**kw)
    open(out, "w").write(src)
    print("wrote", out, "lines", src.count("\n"), "pad states", npad)
```

```python
import sys, json, struct
from emit import Emitter

NAME = "sequential_preLN__gqa_block_cached__dense_activation_silu__decode_kernel"
def f2u(x): return struct.unpack("<I", struct.pack("<f", x))[0]

def gen(W=19, NS=60, diag=False, hilo=True, spin=1<<20, enc=None, NF=5, ldst=None, qwait=2, forcepar=None, nprobe=3, clip=2000,
        touch=0, qtouch=1, lastfast=1, outf='sc1', onetag=1, nap=0, grp=4, align=1, park=4, ltouch=0, wpre=(2,4), awarm=1, bwarm=3, fakedyn=0, WD=None):
    E = Emitter(); A = E
    pol = "nt"; stf = ldf = "sc1"
    NSLOT = 9; SLOT = 16384; RING = NSLOT*SLOT; LDS = 163840
    L_FLAG = RING; L_CONS = RING+16; L_RED = RING+256; L_OP = RING+512; L_ACT = RING+768; L_QW = RING+1024; L_LN = RING+5120
    WS_E = 0; WS_PAR = 0x800; WS_CNT = 0x1000; WS_H = 0x4000; WS_Q = 0x8000; WS_PRB = 0x10000; WS_D = 0x80000; WS_A = 0x100000; WS_B = 0x200000; WS_ST = 0x400000
    C_SCALE = f2u(1.4426950408889634/16.0); LOG2E = f2u(1.4426950408889634); INV448 = f2u(1.0/448.0); EPS = f2u(1e-5)
    EXTRA = 32; POOL = 2048-32*NS+EXTRA; TL = 128-2*NS
    assert 12 <= W <= 32 and NF <= 5
    sWG="s2"; sWAVE="s3"
    pX="s[4:5]"; pK=(6,7); pV=(8,9); pWQ=(10,11); pWO=(12,13); pW1=(16,17); pW2=(18,19); pOUT="s[20:21]"; pWS="s[24:25]"
    sG="s26"; sJ="s27"; sROLE="s28"; sN="s31"; sSLOT="s32"; sKNOWN="s33"; sT0="s34"; sT1="s35"; sT2="s36"
    sCI="s37"; sSPIN="s38"; sIDX="s39"; sNS="s63"; sPK="s68"
    vK=[4+i for i in range(8)]; vV=[12+i for i in range(4)]; vLIN=16; vT=[17,18]; vFL=21; vTMP=22; vC=24; vCA=28; vONE=29; vCL=[30,31]
    srdK="s[40:43]"; srdV="s[44:47]"; srdW="s[48:51]"; srdZ="s[52:55]"
    sCUR="s56"; sGB="s57"; sOFF="s58"; sCLM="s59"; sBASE="s61"; sFLOOR="s62"
    sB="s29"; sHKV="s30"; sW="s40"; sTAG="s41"; sM1="s[42:43]"; sM2="s[44:45]"; sC="s46"; sE="s47"; sRR="s48"; sTOT="s49"
    sCK=["s[50:51]","s[52:53]","s[54:55]","s[56:57]"]; sCOL="s58"; sGP="s59"; sP0="s60"; sP1="s61"; sWRM="s62"
    vLANE=0; vN=1; vG4=2; vFLG=3; vCONS=4; vTM=5; vTM2=6; vTM3=7
    vM=8; vMC=9; vL=10; vMX=11
    vKB=[12,13,14,15]; vVB=[16,17,18,19]; vAD=[20,21,22,23]
    vS=24; vP=32; vO=36; vQ=52; vF=84; vAA=104; vAI=105; vBA=106
    vWO=108; vW1=136; vW2=192; vX=248; vXH=254
    xr1 = [vWO+u for u in range(7)]; vLW1 = vWO+24

    uid=[0]
    def lab(p): uid[0]+=1; return f"L_{p}_{uid[0]}"
    def P(r): return f"v[{r}:{r+1}]"
    def Q4(r): return f"v[{r}:{r+3}]"
    def stamp(k):
        if not diag and not (enc and k in (0, enc[0], enc[1])): return
        A(f"s_memrealtime s[{70+2*k}:{71+2*k}]")
    def slot_advance():
        A(f"s_add_u32 {sN}, {sN}, 1"); A(f"s_add_u32 {sSLOT}, {sSLOT}, {SLOT}")
        A(f"s_cmp_eq_u32 {sSLOT}, {RING}"); A(f"s_cselect_b32 {sSLOT}, 0, {sSLOT}")
    def spin_guard(): A(f"s_sub_u32 {sSPIN}, {sSPIN}, 1"); A("s_cbranch_scc1 L_end")
    def one_lane(ins): A("s_mov_b64 exec, 1"); A(ins); A("s_mov_b64 exec, -1")
    def share_consts():
        A(f"s_sub_u32 {sT0}, {sROLE}, 8"); A(f"s_lshl_b32 {sIDX}, {sG}, 1"); A(f"s_add_u32 {sIDX}, {sIDX}, {sT0}")
        A(f"s_cmp_lt_u32 {sT0}, 2"); A(f"s_cselect_b32 {sIDX}, {sIDX}, 99")
        A(f"s_cselect_b32 {sNS}, {NS-4}, {NS}"); A(f"s_cmp_lt_u32 {sROLE}, 4"); A(f"s_cselect_b32 {sNS}, {NS-2}, {sNS}")
        A(f"s_cmp_lt_u32 {sIDX}, 28"); A(f"s_cselect_b32 {sPK}, 0, {park}")
    def make_tag(dst, e): A(f"s_mul_i32 {dst}, {e}, 0x9e3779b1"); A(f"s_add_u32 {dst}, {dst}, 0x7f4a7c15")
    pads = []
    def pad(name):
        sk = lab("padskip"); A(f"s_branch {sk}"); E.label(f"L_pad_{name}"); A(f"s_branch L_ret_{name}"); E.label(sk)
    def touch_pad(name): A(f"s_branch L_pad_{name}"); E.label(f"L_ret_{name}")

    A(f"s_cmp_ge_u32 {sWG}, 256"); A("s_cbranch_scc1 L_end")
    stamp(0)
    A("s_load_dwordx16 s[4:19], s[0:1], 0"); A("s_load_dwordx4 s[20:23], s[0:1], 64"); A("s_load_dwordx2 s[24:25], s[0:1], 80")
    A("v_lshrrev_b32 v1, 6, v0"); A("v_and_b32 v0, 63, v0"); A(f"v_readfirstlane_b32 {sWAVE}, v1")
    A(f"s_lshr_b32 {sG}, {sWG}, 4"); A(f"s_and_b32 {sJ}, {sWG}, 15")
    A(f"s_lshr_b32 {sT0}, {sJ}, 1"); A(f"s_and_b32 {sT0}, {sT0}, 4"); A(f"s_and_b32 {sROLE}, {sJ}, 3"); A(f"s_add_u32 {sROLE}, {sROLE}, {sT0}")
    A(f"s_sub_u32 {sROLE}, {sROLE}, {sG}"); A(f"s_and_b32 {sROLE}, {sROLE}, 7")
    A(f"s_add_u32 {sT0}, {sROLE}, 4"); A(f"s_add_u32 {sT1}, {sROLE}, 8"); A(f"s_cmp_lt_u32 {sROLE}, 4"); A(f"s_cselect_b32 {sROLE}, {sROLE}, {sT1}")
    A(f"s_bitcmp1_b32 {sJ}, 2"); A(f"s_cselect_b32 {sROLE}, {sROLE}, {sT0}")
    A(f"s_mov_b32 {sN}, 0"); A(f"s_mov_b64 s[32:33], 0"); A(f"s_mov_b32 {sCI}, 0"); A(f"s_mov_b32 {sSPIN}, {spin}")
    A(f"v_mov_b32 v3, {L_FLAG}"); A(f"v_lshl_add_u32 v1, v0, 2, v3"); A("v_mov_b32 v2, 0")
    A("s_mov_b64 exec, 2"); A("v_bfrev_b32 v2, -2"); A("s_mov_b64 exec, 0x1ff"); A("ds_write_b32 v1, v2"); A("s_mov_b64 exec, -1")
    A(f"v_lshrrev_b32 v1, 5, v0"); A(f"v_mul_u32_u24 v1, 896, v1"); A(f"v_and_b32 v2, 31, v0"); A(f"v_lshl_add_u32 v{vLW1}, v2, 2, v1")
    A("s_waitcnt lgkmcnt(0)")
    A("s_barrier")
    A(f"s_cmp_eq_u32 {sWAVE}, 0"); A("s_cbranch_scc1 L_loader")
    A(f"s_load_dword {sE}, {pWS}, {WS_E}")
    A(f"s_cmp_ge_u32 {sROLE}, 4"); A("s_cbranch_scc1 L_consumer")
    for u in range(7): A(f"global_load_dword v{xr1[u]}, v{vLW1}, {pX} offset:{u*128}")
    A("s_branch L_qprod")

    def publish(back):
        A(f"s_sub_u32 {sT0}, {sN}, {back}"); A(f"s_max_i32 {sT0}, {sT0}, {sFLOOR}")
        A(f"v_mov_b32 v{vTMP}, {sT0}"); one_lane(f"ds_write_b32 v{vFL}, v{vTMP}")
    def throttle(i, W=W):
        if i % grp == grp-1:
            A(f"s_waitcnt vmcnt({W})")
            if i+1+16 >= W and (i+1-grp+16 < W or i < grp): publish(1)
    def tile_rows(specs, pol=pol, W=W):
        for i,(srd,vo,so) in enumerate(specs):
            if i % 4 == 0:
                A(f"s_add_u32 m0, {sSLOT}, {i*1024}" if i else f"s_mov_b32 m0, {sSLOT}")
                A(f"s_add_u32 {sOFF}, {sBASE}, {so}" if so else f"s_mov_b32 {sOFF}, {sBASE}")
            A(f"buffer_load_dwordx4 v{vo}, {srd}, {sOFF} offen offset:{(i%4)*1024} {pol} lds")
            throttle(i, W)
        slot_advance()
    def tile_tall(rowstride, t, nvalid):
        for i in range(16):
            A(f"s_add_u32 m0, {sSLOT}, {i*1024}" if i else f"s_mov_b32 m0, {sSLOT}")
            A(f"s_add_u32 {sOFF}, {sBASE}, {(t*128+i*8)*rowstride}")
            A(f"buffer_load_dwordx4 v{vT[i&1]}, {srdW if i < nvalid else srdZ}, {sOFF} offen {pol} lds")
            throttle(i)
        slot_advance()
    def tile_wide(pol=pol):
        tile_rows([(srdW if i < 14 else srdZ, vLIN, i*1024) for i in range(16)], pol)
        A(f"s_add_u32 {sBASE}, {sBASE}, 14336")
    def tall_voffs(stride):
        A("v_lshrrev_b32 v1, 3, v0"); A("v_and_b32 v2, 7, v0"); A("v_and_b32 v3, 2, v1"); A("v_xor_b32 v2, v2, v3"); A("v_lshlrev_b32 v2, 4, v2")
        A(f"v_mul_u32_u24 v3, {stride}, v1"); A(f"v_add_u32 v{vT[0]}, v3, v2"); A("v_xor_b32 v2, 64, v2"); A(f"v_add_u32 v{vT[1]}, v3, v2")
    def freecheck(k):
        ok = lab("free"); lp = lab("freepoll")
        A(f"s_add_u32 {sT0}, {sKNOWN}, {NSLOT-k}"); A(f"s_cmp_ge_u32 {sT0}, {sN}"); A(f"s_cbranch_scc1 {ok}")
        E.label(lp)
        A(f"ds_read_b128 {Q4(vC)}, v{vFL} offset:16")
        spin_guard()
        A("s_waitcnt lgkmcnt(0)")
        A(f"v_min3_u32 v{vC}, v{vC}, v{vC+1}, v{vC+2}"); A(f"v_min_u32 v{vC}, v{vC}, v{vC+3}")
        A(f"v_readfirstlane_b32 {sKNOWN}, v{vC}")
        A(f"s_add_u32 {sT0}, {sKNOWN}, {NSLOT-k}"); A(f"s_cmp_ge_u32 {sT0}, {sN}"); A(f"s_cbranch_scc1 {ok}")
        A("s_sleep 1"); A(f"s_branch {lp}")
        E.label(ok)
    def claim(p):
        if fakedyn:
            A(f"v_mov_b32 v{vCL[p]}, s69"); A("s_add_u32 s69, s69, 16")
            if fakedyn == 2: one_lane(f"global_atomic_add v47, v{vCA}, v{vONE}, {pWS} sc0")
        else: one_lane(f"global_atomic_add v{vCL[p]}, v{vCA}, v{vONE}, {pWS} sc0")

    E.label("L_loader")
    A("s_setprio 3")
    A(f"v_mov_b32 v{vFL}, v3"); A(f"v_lshlrev_b32 v{vLIN}, 4, v0"); A(f"s_mov_b32 {sFLOOR}, 0")
    A("s_mov_b32 s50, 3670016"); A("s_mov_b32 s51, 0x20000")
    A(f"s_mov_b64 s[52:53], s[{pK[0]}:{pK[1]}]"); A("s_mov_b32 s54, 0"); A("s_mov_b32 s55, 0x20000")
    A(f"s_cmp_ge_u32 {sROLE}, 4"); A("s_cbranch_scc1 L_ld_noq")
    tall_voffs(8192)
    A(f"s_mov_b64 s[48:49], s[{pWQ[0]}:{pWQ[1]}]")
    A(f"s_and_b32 {sOFF}, {sG}, 7"); A(f"s_lshl_b32 {sOFF}, {sOFF}, 3"); A(f"s_lshr_b32 {sT0}, {sG}, 3"); A(f"s_lshl_b32 {sT0}, {sT0}, 2")
    A(f"s_add_u32 {sOFF}, {sOFF}, {sT0}"); A(f"s_add_u32 {sOFF}, {sOFF}, {sROLE}"); A(f"s_lshl_b32 {sOFF}, {sOFF}, 7")
    A("s_mov_b32 m0, 0")
    E.label("L_ld_q")
    for i in range(2):
        A(f"buffer_load_dwordx4 v{vT[i]}, {srdW}, {sOFF} offen {pol} lds")
        A(f"s_add_u32 {sOFF}, {sOFF}, {8*8192}"); A("s_add_u32 m0, m0, 1024")
    A(f"s_cmp_lt_u32 m0, {56*1024}"); A("s_cbranch_scc1 L_ld_q")
    A(f"s_mov_b32 {sN}, 4"); A(f"s_mov_b32 {sSLOT}, {4*SLOT}"); A(f"s_mov_b32 {sFLOOR}, 4")
    A(f"v_mov_b32 v{vTMP}, 4"); A("s_waitcnt vmcnt(0)"); one_lane(f"ds_write_b32 v{vFL}, v{vTMP}")
    E.label("L_ld_noq")
    if forcepar is None:
        A(f"s_cmp_eq_u32 {sWG}, {15*16 + 3}"); A("s_cbranch_scc1 L_probe")
    E.label("L_ld_wo")
    A("v_lshrrev_b32 v1, 5, v0"); A("v_and_b32 v2, 31, v0")
    A("v_lshlrev_b32 v3, 1, v1"); A("v_xor_b32 v3, v2, v3"); A("v_lshlrev_b32 v3, 4, v3"); A("v_lshl_or_b32 v3, v1, 9, v3")
    for i in range(4): A(f"v_xor_b32 v{vV[i]}, {i*64}, v3")
    A(f"s_mov_b64 s[44:45], s[{pV[0]}:{pV[1]}]"); A("s_mov_b32 s46, 0x10000000"); A("s_mov_b32 s47, 0x20000")
    A(f"s_lshl_b32 {sGB}, {sWG}, 20")
    share_consts()
    A(f"s_cmp_lt_u32 {sIDX}, 28"); A(f"s_cbranch_scc1 L_ld_ffn")
    A(f"s_mov_b32 {sBASE}, {sGB}"); A(f"s_add_u32 {sT2}, {sN}, {park}")
    E.label("L_ld_pv")
    tile_rows([(srdV, vV[i%4], i*1024) for i in range(16)])
    A(f"s_add_u32 {sBASE}, {sBASE}, 16384")
    if ltouch: touch_pad("ld")
    A(f"s_cmp_lt_u32 {sN}, {sT2}"); A("s_cbranch_scc1 L_ld_pv")
    E.label("L_ld_head_done")
    if fakedyn: A(f"s_mov_b32 s69, {sJ}")
    A("v_lshrrev_b32 v1, 5, v0"); A("v_and_b32 v2, 31, v0")
    A("v_xor_b32 v3, v2, v1"); A("v_lshlrev_b32 v3, 4, v3"); A("v_lshl_or_b32 v3, v1, 9, v3")
    for i in range(8): A(f"v_xor_b32 v{vK[i]}, {i*32}, v3")
    A(f"s_lshl_b32 {sGB}, {sG}, 24"); A(f"s_lshl_b32 {sCUR}, {sJ}, 7")
    A(f"s_lshl_b32 {sT0}, {sG}, 8"); A(f"s_add_u32 {sT0}, {sT0}, {WS_CNT}"); A(f"v_mov_b32 v{vCA}, {sT0}"); A(f"v_mov_b32 v{vONE}, 1")
    A(f"s_mov_b64 s[40:41], s[{pK[0]}:{pK[1]}]"); A("s_mov_b32 s42, 0x10000000"); A("s_mov_b32 s43, 0x20000")
    if ltouch: pad("ld")
    E.label("L_ld_loop")
    if diag:
        for k,c in enumerate(ldst or (0,2,3,4,6,8,16,32,NS-5)):
            sk=lab("ls"); A(f"s_cmp_lg_u32 {sCI}, {c}"); A(f"s_cbranch_scc1 {sk}"); A(f"s_memrealtime s[{72+2*k}:{73+2*k}]"); A("s_waitcnt lgkmcnt(0)"); E.label(sk)
    A(f"s_add_u32 {sCI}, {sCI}, 1")
    A(f"s_lshl_b32 {sBASE}, {sCUR}, 13"); A(f"s_add_u32 {sBASE}, {sBASE}, {sGB}")
    for p,(srd,vo) in enumerate(((srdK,vK),(srdV,vV))):
        if p: A(f"s_cmp_le_u32 {sCI}, {sPK}"); A("s_cbranch_scc1 L_ld_nov")
        freecheck(1)
        sk = lab("nocl"); A(f"s_cmp_lt_u32 {sCI}, {sNS}"); A(f"s_cbranch_scc1 {sk}")
        claim(p)
        E.label(sk)
        tile_rows([(srd, vo[i%len(vo)], i*1024) for i in range(16)])
    E.label("L_ld_nov")
    A(f"s_add_u32 {sCUR}, {sCUR}, 2")
    A(f"s_cmp_lt_u32 {sCI}, {sNS}"); A("s_cbranch_scc1 L_ld_loop")
    E.label("L_ld_dyn")
    for p in range(2):
        A(f"v_readfirstlane_b32 {sCLM}, v{vCL[p]}")
        A(f"s_cmp_ge_u32 {sCLM}, {POOL}"); A("s_cbranch_scc1 L_ld_dyn_done")
        A(f"s_cmp_lt_u32 {sCLM}, {EXTRA}"); A(f"s_cbranch_scc1 L_ld_shed{p}")
        A(f"s_sub_u32 {sCLM}, {sCLM}, {EXTRA}")
        A(f"s_mul_hi_u32 {sT0}, {sCLM}, {-(-(1<<32)//TL)}"); A(f"s_mul_i32 {sT0}, {sT0}, {2*NS}"); A(f"s_add_u32 {sCUR}, {sCLM}, {sT0}"); A(f"s_add_u32 {sCUR}, {sCUR}, {2*NS}")
        E.label(f"L_ld_unit{p}")
        freecheck(1)
        claim(p)
        A(f"s_lshr_b32 {sBASE}, {sCUR}, 1"); A(f"s_lshl_b32 {sBASE}, {sBASE}, 14"); A(f"s_and_b32 {sT0}, {sCUR}, 1"); A(f"s_lshl_b32 {sT0}, {sT0}, 12")
        A(f"s_add_u32 {sBASE}, {sBASE}, {sT0}"); A(f"s_add_u32 {sBASE}, {sBASE}, {sGB}")
        tile_rows([(srdK, vK[i], i*2048) for i in range(8)] + [(srdV, vV[i%4], i*2048) for i in range(8)], W=WD or W)
    A("s_branch L_ld_dyn")
    E.label("L_ld_dyn_done")
    A(f"v_mov_b32 v{vTMP}, {sN}"); one_lane(f"ds_write_b32 v{vFL}, v{vTMP} offset:4")
    A(f"s_mov_b64 s[48:49], s[{pWO[0]}:{pWO[1]}]"); A("s_mov_b32 s50, 3670016")
    A(f"s_and_b32 {sBASE}, {sWG}, 127"); A(f"s_mul_i32 {sBASE}, {sBASE}, {32*896}")
    freecheck(2)
    k = 0
    for t in range(2):
        for i in range(14):
            if i % 4 == 0:
                A(f"s_add_u32 m0, {sSLOT}, {i*1024}" if i else f"s_mov_b32 m0, {sSLOT}")
                A(f"s_add_u32 {sOFF}, {sBASE}, {t*14336+i*1024}")
            if k == wpre[0]: A(f"s_waitcnt vmcnt({16+k})"); publish(1+t)
            if k == wpre[1]: A(f"s_waitcnt vmcnt({k})"); publish(t)
            A(f"buffer_load_dwordx4 v{vLIN}, {srdW}, {sOFF} offen offset:{(i%4)*1024} lds")
            k += 1
        slot_advance()
    for c,back in ((14,1),(0,0)):
        A(f"s_waitcnt vmcnt({c})"); publish(back)
    if diag:
        A("s_mov_b64 exec, 1"); A("s_memrealtime s[90:91]")
        A(f"s_lshl_b32 {sT0}, {sWG}, 6"); A(f"s_add_u32 {sT0}, {sT0}, {WS_ST+0x40000}"); A(f"v_mov_b32 v46, {sT0}")
        A("s_waitcnt lgkmcnt(0)")
        for k in range(11): A(f"v_mov_b32 v{32+k}, s{70+2*k}")
        A(f"v_mov_b32 v43, {sSPIN}")
        for q in range(3): A(f"global_store_dwordx4 v46, v[{32+4*q}:{35+4*q}], {pWS} offset:{q*16}")
    A("s_waitcnt lgkmcnt(0)")
    A("s_endpgm")
    for p in range(2):
        E.label(f"L_ld_shed{p}")
        A(f"s_lshr_b32 {sT0}, {sCLM}, 3"); A(f"s_add_u32 {sT0}, {sT0}, 4"); A(f"s_and_b32 {sT1}, {sCLM}, 7"); A(f"s_add_u32 {sT1}, {sT1}, {2*(NS-4)}")
        A(f"s_bfe_u32 {sT2}, {sCLM}, 0x20002"); A(f"s_and_b32 {sCUR}, {sCLM}, 3"); A(f"s_add_u32 {sCUR}, {sCUR}, {2*(NS-2)+4*128}")
        A(f"s_cmp_lt_u32 {sCLM}, 16"); A(f"s_cselect_b32 {sT0}, {sT0}, {sT2}"); A(f"s_cselect_b32 {sCUR}, {sT1}, {sCUR}")
        A(f"s_add_u32 {sT0}, {sT0}, {sG}"); A(f"s_and_b32 {sT1}, {sT0}, 3"); A(f"s_bfe_u32 {sT0}, {sT0}, 0x10002"); A(f"s_lshl_b32 {sT0}, {sT0}, 3"); A(f"s_add_u32 {sT0}, {sT0}, {sT1}")
        A(f"s_lshl_b32 {sT0}, {sT0}, 7"); A(f"s_add_u32 {sCUR}, {sCUR}, {sT0}")
        A(f"s_branch L_ld_unit{p}")

    def SEL4(dst, a, b, c, d, t):
        A(f"v_cndmask_b32 v{dst}, v{a}, v{b}, {sM1}"); A(f"v_cndmask_b32 v{t}, v{c}, v{d}, {sM1}"); A(f"v_cndmask_b32 v{dst}, v{dst}, v{t}, {sM2}")
    def xrow(op, regs, tmps):
        for sw in ("v_permlane16_swap_b32","v_permlane32_swap_b32"):
            for r,t in zip(regs,tmps): A(f"v_mov_b32 v{t}, v{r}")
            for r,t in zip(regs,tmps): A(f"{sw} v{r}, v{t}")
            for r,t in zip(regs,tmps): A(f"{op} v{r}, v{r}, v{t}")
    def round_bf(dst, src): A(f"v_cvt_pk_bf16_f32 v{dst}, v{src}, v{src}"); A(f"v_and_b32 v{dst}, 0xffff0000, v{dst}")
    def unpack(lo, hi, src): A(f"v_lshlrev_b32 v{lo}, 16, v{src}"); A(f"v_and_b32 v{hi}, 0xffff0000, v{src}")
    def pub_cons():
        slot_advance()
        A(f"v_mov_b32 v{vTM}, {sN}"); one_lane(f"ds_write_b32 v{vCONS}, v{vTM}")
    def wait_tile(fin=None):
        ok = lab("have"); lp = lab("poll")
        if fin: A(f"s_cmp_eq_u32 {sTOT}, {sN}"); A(f"s_cbranch_scc1 {fin}")
        A(f"s_cmp_gt_u32 {sKNOWN}, {sN}"); A(f"s_cbranch_scc1 {ok}")
        E.label(lp)
        A(f"ds_read_b64 {P(vAD[0])}, v{vFLG}")
        spin_guard()
        A("s_waitcnt lgkmcnt(0)")
        A(f"v_readfirstlane_b32 {sKNOWN}, v{vAD[0]}"); A(f"v_readfirstlane_b32 {sTOT}, v{vAD[1]}")
        if fin:
            nw = lab("nw")
            A(f"s_cmp_ge_u32 {sTOT}, {sWRM}"); A(f"s_cbranch_scc1 {nw}")
            A(f"s_mov_b32 {sWRM}, 0"); A(f"global_load_dword v{vX+2}, v{vX+3}, {pWS} {ldf}")
            E.label(nw)
            A(f"s_cmp_eq_u32 {sTOT}, {sN}"); A(f"s_cbranch_scc1 {fin}")
        A(f"s_cmp_gt_u32 {sKNOWN}, {sN}"); A(f"s_cbranch_scc1 {ok}")
        if nap or not fin: A("s_sleep 1")
        A(f"s_branch {lp}")
        E.label(ok)
    def poll(loads, tags, first_mask=None, issued=False):
        lp = lab("gpoll"); n = len(loads)
        chk = lab("gchk")
        if issued: A(f"s_branch {chk}")
        else:
            for i in range(n): A(f"s_mov_b64 {sCK[i]}, {first_mask[i] if first_mask else -1}")
        E.label(lp)
        for i,l in enumerate(loads):
            sk = lab("sk")
            A(f"s_mov_b64 exec, {sCK[i]}"); A(f"s_cbranch_execz {sk}"); A(l); E.label(sk)
        A("s_mov_b64 exec, -1")
        spin_guard()
        if issued: E.label(chk)
        A("s_waitcnt vmcnt(0)")
        for i in range(n):
            A(f"v_cmp_ne_u32 {sCK[i]}, {sTAG}, v{tags[i][0]}")
            for t in tags[i][1:]:
                A(f"v_cmp_ne_u32 vcc, {sTAG}, v{t}"); A(f"s_or_b64 {sCK[i]}, {sCK[i]}, vcc")
        A(f"s_or_b64 vcc, {sCK[0]}, {sCK[min(1,n-1)]}")
        for i in range(2, n): A(f"s_or_b64 vcc, vcc, {sCK[i]}")
        A(f"s_cbranch_scc1 {lp}")
    def layernorm(xr, f, lnbase, stride, mid=None):
        s1=vTM; t=vTM2; mu=vX; a=vX+2; b=vX+4
        for u in range(7): unpack(f+2*u, f+2*u+1, xr[u])
        A(f"v_pk_add_f32 {P(a)}, {P(f)}, {P(f+2)}"); A(f"v_pk_add_f32 {P(b)}, {P(f+4)}, {P(f+6)}")
        A(f"v_pk_add_f32 {P(a)}, {P(a)}, {P(f+8)}"); A(f"v_pk_add_f32 {P(b)}, {P(b)}, {P(f+10)}")
        A(f"v_pk_add_f32 {P(a)}, {P(a)}, {P(f+12)}"); A(f"v_pk_add_f32 {P(a)}, {P(a)}, {P(b)}")
        A(f"v_add_f32 v{s1}, v{a}, v{a+1}")
        red32 = [f"v_add_f32_dpp v{s1}, v{s1}, v{s1} row_ror:{k} row_mask:0xf bank_mask:0xf" for k in (8,4,2,1)]
        red32 += [f"v_mov_b32 v{t}, v{s1}", f"v_permlane16_swap_b32 v{s1}, v{t}", f"v_add_f32 v{s1}, v{s1}, v{t}"]
        for l in red32: A(l)
        A(f"v_mul_f32 v{mu}, {INV448:#x}, v{s1}")
        NEG = "op_sel_hi:[1,0] neg_lo:[0,1] neg_hi:[0,1]"
        A(f"v_pk_add_f32 {P(b)}, {P(f)}, {P(mu)} {NEG}")
        A(f"v_pk_mul_f32 {P(a)}, {P(b)}, {P(b)}")
        for u in range(1,7):
            A(f"v_pk_add_f32 {P(b)}, {P(f+2*u)}, {P(mu)} {NEG}")
            A(f"v_pk_fma_f32 {P(a)}, {P(b)}, {P(b)}, {P(a)}")
        A(f"v_add_f32 v{s1}, v{a}, v{a+1}")
        round_bf(mu, mu)
        fill = [f"v_pk_add_f32 {P(f+2*u)}, {P(f+2*u)}, {P(mu)} {NEG}" for u in range(7)] + [f"v_cvt_pk_bf16_f32 v{xr[u]}, v{f+2*u}, v{f+2*u+1}" for u in range(7)]
        for u in range(7): fill += [f"v_lshlrev_b32 v{f+2*u}, 16, v{xr[u]}", f"v_and_b32 v{f+2*u+1}, 0xffff0000, v{xr[u]}"]
        rb = [f"v_cvt_pk_bf16_f32 v{s1}, v{s1}, v{s1}", f"v_and_b32 v{s1}, 0xffff0000, v{s1}"]
        chain = red32 + [f"v_mul_f32 v{s1}, {INV448:#x}, v{s1}"] + rb + [f"v_add_f32 v{s1}, {EPS:#x}, v{s1}"] + rb + [f"v_sqrt_f32 v{s1}, v{s1}"] + rb + [f"v_rcp_f32 v{a}, v{s1}"]
        while chain or fill:
            for _ in range(2):
                if fill: A(fill.pop(0))
            if chain: A(chain.pop(0))
        if mid: mid()
        for u in range(7): A(f"v_pk_mul_f32 {P(f+2*u)}, {P(f+2*u)}, {P(a)} op_sel_hi:[1,0]")
        for u in range(7):
            A(f"v_cvt_pk_bf16_f32 v{xr[u]}, v{f+2*u}, v{f+2*u+1}")
            A(f"ds_write_b32 v{lnbase}, v{xr[u]} offset:{u*stride}")
    def ln_read_addr(rd, base):
        A(f"v_and_b32 v{rd}, 1, v{vLANE}"); A(f"v_mul_u32_u24 v{rd}, 896, v{rd}")
        A(f"v_lshl_add_u32 v{rd}, v{vG4}, 4, v{rd}"); A(f"v_add_u32 v{rd}, {base}, v{rd}")
    def tall_addr(dst):
        A(f"v_lshrrev_b32 v{vTM}, 3, v{vN}")
        A(f"v_and_b32 v{vTM2}, 1, v{vG4}"); A(f"v_lshl_or_b32 v{vTM}, v{vTM2}, 1, v{vTM}")
        A(f"v_xor_b32 v{vTM}, {sW}, v{vTM}"); A(f"v_lshlrev_b32 v{vTM}, 5, v{vTM}")
        A(f"v_and_b32 v{vTM2}, 3, v{vN}"); A(f"v_lshl_or_b32 v{vTM}, v{vTM2}, 3, v{vTM}")
        A(f"v_lshrrev_b32 v{vTM2}, 2, v{vN}"); A(f"v_lshl_or_b32 v{vTM}, v{vTM2}, 7, v{vTM}")
        A(f"v_lshl_or_b32 v{dst}, v{vG4}, 10, v{vTM}")
    def wide_addr(dst):
        A(f"v_lshrrev_b32 v{vTM}, 2, v{vN}"); A(f"v_lshl_add_u32 v{vTM}, v{vG4}, 2, v{vTM}"); A(f"v_mul_u32_u24 v{vTM}, 896, v{vTM}")
        A(f"v_and_b32 v{vTM2}, 3, v{vN}"); A(f"v_lshl_add_u32 v{vTM}, v{vTM2}, 3, v{vTM}")
        A(f"s_mul_i32 {sT0}, {sW}, 224"); A(f"v_add_u32 v{dst}, {sT0}, v{vTM}")
    def read_tall_tile(base, dstreg, t):
        wait_tile()
        A(f"v_add_u32 v{vAD[0]}, {sSLOT}, v{base}")
        for s in range(4 if t < 3 else 2):
            for h2 in range(2):
                A(f"ds_read_b64_tr_b16 {P(dstreg + 4*(4*t+s) + 2*h2)}, v{vAD[0]} offset:{s*4096+h2*512}")
        A("s_waitcnt lgkmcnt(0)")
        pub_cons()
    def read_wide_tile(base, dstreg, half):
        wait_tile()
        A(f"v_add_u32 v{vAD[0]}, {sSLOT}, v{base}")
        for tt in range(7): A(f"ds_read_b64_tr_b16 {P(dstreg + 4*tt + 2*half)}, v{vAD[0]} offset:{tt*32}")
        A("s_waitcnt lgkmcnt(0)")
        pub_cons()
    def basic_setup():
        A(f"s_sub_u32 {sW}, {sWAVE}, 1"); A(f"s_lshr_b32 {sB}, {sG}, 3"); A(f"s_and_b32 {sHKV}, {sG}, 7")
        A(f"v_and_b32 v{vN}, 15, v{vLANE}"); A(f"v_lshrrev_b32 v{vG4}, 4, v{vLANE}")
        A(f"s_lshl_b32 {sT0}, {sW}, 2"); A(f"s_add_u32 {sT0}, {sT0}, {L_CONS}"); A(f"v_mov_b32 v{vCONS}, {sT0}")
        A("s_mov_b32 s42, 0xffff0000"); A("s_mov_b32 s43, s42")

    if align: A(".p2align 12")
    E.label("L_qprod")
    f14 = vWO+8; vLR = vWO+25; vTA = vWO+26; vQA = vWO+27
    basic_setup()
    A(f"s_or_b32 {sT0}, {sROLE}, {sW}"); A(f"s_cmp_lg_u32 {sT0}, 0"); A("s_cbranch_scc1 L_noinit")
    A(f"s_lshl_b32 {sT0}, {sG}, 8"); A(f"s_add_u32 {sT0}, {sT0}, {WS_CNT}")
    A(f"v_mov_b32 v{vTM2}, {sT0}"); A(f"v_mov_b32 v{vTM3}, 0")
    one_lane(f"global_store_dword v{vTM2}, v{vTM3}, {pWS} {stf}")
    E.label("L_noinit")
    A(f"s_lshl_b32 {sT2}, {sW}, 11"); A(f"s_add_u32 {sT2}, {sT2}, {L_LN}")
    A(f"v_add_u32 v{vLW1}, {sT2}, v{vLW1}")
    ln_read_addr(vLR, sT2)
    tall_addr(vTA)
    A(f"s_lshl_b32 {sT0}, {sB}, 2"); A(f"s_add_u32 {sT0}, {sT0}, {sROLE}"); A(f"s_lshl_b32 {sT0}, {sT0}, 2"); A(f"s_add_u32 {sT0}, {sT0}, {sW}")
    A(f"s_lshl_b32 {sT0}, {sT0}, 6"); A(f"s_lshl_b32 {sT1}, {sHKV}, 11"); A(f"s_add_u32 {sT0}, {sT0}, {sT1}"); A(f"s_add_u32 {sT0}, {sT0}, {WS_Q}")
    A(f"v_lshlrev_b32 v{vQA}, 2, v{vN}"); A(f"v_lshl_add_u32 v{vQA}, v{vG4}, 14, v{vQA}"); A(f"v_add_u32 v{vQA}, {sT0}, v{vQA}")
    if qtouch: touch_pad("q")
    A("s_waitcnt vmcnt(0) lgkmcnt(0)")
    stamp(12)
    layernorm(xr1, f14, vLW1, 128, mid=(lambda: pad("q")) if qtouch else None)
    make_tag(sTAG, sE); A(f"v_mov_b32 v{vX+1}, {sTAG}")
    A("s_waitcnt lgkmcnt(0)")
    stamp(13)
    for s in range(14): A(f"ds_read_b128 {Q4(vW2+4*s)}, v{vLR} offset:{s*64}")
    A(f"s_mov_b32 {sN}, 3"); wait_tile()
    stamp(14)
    for s in range(14):
        for h2 in range(2): A(f"ds_read_b64_tr_b16 {P(vW1 + 4*s + 2*h2)}, v{vTA} offset:{s*4096+h2*512}")
        if s % 4 == 3 or s == 13:
            A(f"s_waitcnt lgkmcnt(0)")
            for k in range(s - s % 4, s+1):
                A(f"v_mfma_f32_16x16x32_bf16 {Q4(vS)}, {Q4(vW2+4*k)}, {Q4(vW1+4*k)}, {'0' if k==0 else Q4(vS)}")
    A(f"s_mov_b32 {sSLOT}, {3*SLOT}"); pub_cons()
    A(f"v_cndmask_b32 v{vTM}, v{vS}, v{vS+1}, {sM1}")
    A(f"v_mov_b32_dpp v{vTM2}, v{vTM} quad_perm:[1,0,3,2] row_mask:0xf bank_mask:0xf")
    A(f"v_cvt_pk_bf16_f32 v{vX}, v{vTM}, v{vTM2}")
    A("s_mov_b64 exec, 0x55555555")
    A(f"global_store_dwordx2 v{vQA}, {P(vX)}, {pWS} {stf}")
    A("s_mov_b64 exec, -1")
    stamp(1)

    E.label("L_consumer")
    basic_setup()
    share_consts()
    A("s_mov_b32 s44, 0"); A("s_mov_b32 s45, -1"); A(f"s_mov_b32 {sC}, {C_SCALE:#x}"); A("s_mov_b32 s66, -1"); A("s_mov_b32 s67, 0"); A(f"s_mov_b32 {sTOT}, 0x7fffffff"); A(f"s_mov_b32 {sKNOWN}, 0")
    if hilo: A("s_mov_b32 s64, 0xcccccccc"); A("s_mov_b32 s65, 0xcccccccc")
    stamp(11)
    A(f"s_sub_u32 {sT0}, {sROLE}, 4"); A(f"s_lshl_b32 {sRR}, {sG}, 2"); A(f"s_add_u32 {sRR}, {sRR}, {sT0}")
    A(f"s_cmp_lt_u32 {sT0}, 4"); A(f"s_cselect_b32 {sRR}, {sRR}, 99"); A("s_cbranch_scc0 L_nox")
    A(f"s_bfe_u32 {sT0}, {sRR}, 0x20003"); A(f"s_mul_i32 {sCOL}, {sT0}, 224")
    A(f"s_bfe_u32 {sGP}, {sRR}, 0x20001"); A(f"s_lshl_b32 {sT0}, {sGP}, 6"); A(f"s_add_u32 {sCOL}, {sCOL}, {sT0}")
    A(f"s_and_b32 {sT0}, {sRR}, 1"); A(f"s_lshl_b32 {sT0}, {sT0}, 4"); A(f"s_add_u32 {sCOL}, {sCOL}, {sT0}")
    A(f"s_bfe_u32 {sT0}, {sRR}, 0x10005"); A(f"s_mul_i32 {sT0}, {sT0}, 896"); A(f"s_add_u32 {sCOL}, {sCOL}, {sT0}")
    A(f"v_and_b32 v{vTM}, 6, v{vLANE}"); A(f"v_lshl_add_u32 v{vTM}, v{vTM}, 1, {sCOL}")
    A(f"global_load_dword v{vXH}, v{vTM}, {pX}")
    A(f"v_mov_b32 v{vXH+1}, 0")
    A(f"s_cmp_eq_u32 {sGP}, 3"); A("s_cbranch_scc1 L_nox")
    A(f"global_load_dword v{vXH+1}, v{vTM}, {pX} offset:32")
    E.label("L_nox")
    A(f"v_xor_b32 v{vTM}, v{vG4}, v{vN}"); A(f"v_lshlrev_b32 v{vTM}, 4, v{vTM}"); A(f"v_lshl_or_b32 v{vTM}, v{vN}, 9, v{vTM}")
    for s in range(4): A(f"v_xor_b32 v{vKB[s]}, {s*64}, v{vTM}")
    A(f"v_lshrrev_b32 v{vTM}, 2, v{vN}"); A(f"v_lshl_add_u32 v{vTM}, v{vG4}, 2, v{vTM}")
    A(f"v_and_b32 v{vTM2}, 7, v{vTM}")
    A(f"s_lshl_b32 {sT0}, {sW}, 2"); A(f"v_xor_b32 v{vTM2}, {sT0}, v{vTM2}"); A(f"v_lshlrev_b32 v{vTM2}, 5, v{vTM2}")
    A(f"v_lshl_or_b32 v{vTM}, v{vTM}, 9, v{vTM2}")
    A(f"v_and_b32 v{vTM2}, 3, v{vN}"); A(f"v_lshl_or_b32 v{vTM}, v{vTM2}, 3, v{vTM}")
    for e in range(4): A(f"v_xor_b32 v{vVB[e]}, {e*32}, v{vTM}")
    A(f"v_mov_b32 v{vM}, 0xff800000"); A(f"v_mov_b32 v{vMC}, v{vM}"); A(f"v_mov_b32 v{vL}, 0")
    for i in range(16): A(f"v_mov_b32 v{vO+i}, 0")
    A(f"s_cmp_lt_u32 {sIDX}, 28"); A("s_cbranch_scc1 L_ffn_w")
    def vtile_read(dst):
        for e in range(4): A(f"v_add_u32 v{vAD[e]}, {sSLOT}, v{vVB[e]}")
        for e in range(4):
            for h2 in range(2): A(f"ds_read_b64_tr_b16 {P(dst + 4*e + 2*h2)}, v{vAD[e]} offset:{h2*8192}")
    for p in range(park):
        wait_tile(); vtile_read(vW1+16*p); A("s_waitcnt lgkmcnt(0)"); pub_cons()
    E.label("L_ffn_w_done")
    make_tag(sTAG, sE)
    A(f"s_cmp_lg_u32 {sW}, 0"); A("s_cbranch_scc1 L_q_flag")
    if qwait:
        A(f"s_add_u32 {sN}, {sN}, {qwait-1}"); wait_tile(); A(f"s_sub_u32 {sN}, {sN}, {qwait-1}")
    A(f"s_lshl_b32 {sT0}, {sG}, 11"); A(f"s_add_u32 {sT0}, {sT0}, {WS_Q}")
    A(f"v_lshl_add_u32 v{vTM3}, v{vLANE}, 4, {sT0}")
    poll([f"global_load_dwordx4 {Q4(vF)}, v{vTM3}, {pWS} {ldf}", f"global_load_dwordx4 {Q4(vF+4)}, v{vTM3}, {pWS} offset:1024 {ldf}"],
         [[vF+1, vF+3], [vF+5, vF+7]])
    A(f"v_lshlrev_b32 v{vTM}, 3, v{vLANE}"); A(f"v_add_u32 v{vTM}, {L_QW}, v{vTM}"); A(f"v_mov_b32 v{vTM2}, 1")
    A(f"ds_write2_b32 v{vTM}, v{vF}, v{vF+2} offset0:0 offset1:1"); A(f"ds_write2_b32 v{vTM}, v{vF+4}, v{vF+6} offset0:128 offset1:129")
    one_lane(f"ds_write_b32 v{vFLG}, v{vTM2} offset:32")
    E.label("L_q_flag")
    A(f"ds_read_b32 v{vTM}, v{vFLG} offset:32")
    spin_guard()
    A("s_waitcnt lgkmcnt(0)")
    A(f"v_readfirstlane_b32 {sT0}, v{vTM}")
    A(f"s_cmp_eq_u32 {sT0}, 1"); A("s_cbranch_scc1 L_q_have")
    A("s_sleep 1"); A("s_branch L_q_flag")
    E.label("L_q_have")
    A(f"v_and_b32 v{vTM2}, 1, v{vLANE}"); A(f"v_lshlrev_b32 v{vTM2}, 9, v{vTM2}"); A(f"v_lshl_add_u32 v{vTM2}, v{vG4}, 4, v{vTM2}"); A(f"v_add_u32 v{vTM2}, {L_QW}, v{vTM2}")
    for s in range(8): A(f"ds_read_b128 {Q4(vQ+4*s)}, v{vTM2} offset:{s*64}")
    stamp(2)
    A("s_waitcnt lgkmcnt(0)")

    def qk(nt):
        for s in range(4): A(f"v_add_u32 v{vAD[s]}, {sSLOT}, v{vKB[s]}")
        seq = [(t,s) for s in range(8) for t in range(nt)]; n = len(seq)
        def kread(i):
            t,s = seq[i]; A(f"ds_read_b128 {Q4(vF + 4*(i % NF))}, v{vAD[s&3]} offset:{(s>>2)*256 + t*8192}")
        for i in range(NF): kread(i)
        for i in range(n):
            t,s = seq[i]
            A(f"s_waitcnt lgkmcnt({min(NF-1, n-1-i)})")
            d = Q4(vS+4*t)
            A(f"v_mfma_f32_16x16x32_bf16 {d}, {Q4(vF + 4*(i % NF))}, {Q4(vQ+4*s)}, {'0' if s==0 else d}")
            if i + NF < n: kread(i+NF)
    def softmax(nt, tag):
        n = 4*nt
        for i in range(n//2): A(f"v_cvt_pk_bf16_f32 v{vP+i}, v{vS+2*i}, v{vS+2*i+1}")
        for i in range(n//2): unpack(vS+2*i, vS+2*i+1, vP+i)
        if nt == 2:
            A(f"v_max3_f32 v{vMX}, v{vS}, v{vS+1}, v{vS+2}"); A(f"v_max3_f32 v{vTM}, v{vS+3}, v{vS+4}, v{vS+5}")
            A(f"v_max3_f32 v{vMX}, v{vMX}, v{vS+6}, v{vS+7}"); A(f"v_max_f32 v{vMX}, v{vMX}, v{vTM}")
        else:
            A(f"v_max3_f32 v{vMX}, v{vS}, v{vS+1}, v{vS+2}"); A(f"v_max_f32 v{vMX}, v{vMX}, v{vS+3}")
        xrow("v_max_f32", [vMX], [vTM])
        A(f"v_cmp_gt_f32 vcc, v{vMX}, v{vM}")
        A("s_cmp_lg_u64 vcc, 0"); A(f"s_cbranch_scc1 L_rescale{tag}")
        E.label(f"L_rescaled{tag}")
        for i in range(n): A(f"v_fma_f32 v{vS+i}, v{vS+i}, {sC}, -v{vMC}")
        for i in range(n): A(f"v_exp_f32 v{vS+i}, v{vS+i}")
        for i in range(n//2): A(f"v_cvt_pk_bf16_f32 v{vP+i}, v{vS+2*i}, v{vS+2*i+1}")
        if hilo:
            for i in range(n//2):
                t = vF+16+2*(i&1)
                unpack(t, t+1, vP+i)
                A(f"v_pk_add_f32 {P(t)}, {P(vS+2*i)}, {P(t)} neg_lo:[0,1] neg_hi:[0,1]")
                A(f"v_cvt_pk_bf16_f32 v{t}, v{t}, v{t+1}")
                A(f"v_cndmask_b32 v{vP+i}, v{vP+i}, v{t}, s[64:65]")
    def add_l(nt):
        A(f"v_add_f32 v{vTM}, v{vS}, v{vS+1}"); A(f"v_add_f32 v{vMX}, v{vS+2}, v{vS+3}")
        if nt == 2:
            A(f"v_add_f32 v{vS+4}, v{vS+4}, v{vS+5}"); A(f"v_add_f32 v{vS+6}, v{vS+6}, v{vS+7}")
            A(f"v_add_f32 v{vTM}, v{vTM}, v{vS+4}"); A(f"v_add_f32 v{vMX}, v{vMX}, v{vS+6}")
        A(f"v_add_f32 v{vL}, v{vL}, v{vTM}"); A(f"v_add_f32 v{vL}, v{vL}, v{vMX}")
    def rescale(tag):
        E.label(f"L_rescale{tag}")
        A(f"v_max_f32 v{vM}, v{vM}, v{vMX}")
        A(f"v_mul_f32 v{vTM}, {sC}, v{vM}")
        A(f"v_sub_f32 v{vTM2}, v{vMC}, v{vTM}")
        A(f"v_mov_b32 v{vMC}, v{vTM}")
        A(f"v_exp_f32 v{vTM2}, v{vTM2}")
        A(f"v_mul_f32 v{vL}, v{vL}, v{vTM2}")
        A(f"v_mov_b32_dpp v{vTM}, v{vTM2} quad_perm:[0,0,2,2] row_mask:0xf bank_mask:0xf")
        A(f"v_mov_b32_dpp v{vTM3}, v{vTM2} quad_perm:[1,1,3,3] row_mask:0xf bank_mask:0xf")
        for i in range(16): A(f"v_mul_f32 v{vO+i}, v{vO+i}, v{vTM if i%2==0 else vTM3}")
        A(f"s_branch L_rescaled{tag}")
    E.label("L_loop")
    wait_tile()
    qk(2)
    pub_cons()
    softmax(2, "a"); add_l(2)
    A(f"s_cmp_lt_u32 {sCI}, {sPK}"); A("s_cbranch_scc1 L_pv_park")
    wait_tile()
    vtile_read(vF)
    for e in range(4):
        A(f"s_waitcnt lgkmcnt({6-2*e})")
        A(f"v_mfma_f32_16x16x32_bf16 {Q4(vO+4*e)}, {Q4(vP)}, {Q4(vF+4*e)}, {Q4(vO+4*e)}")
    pub_cons()
    E.label("L_pv_done")
    A(f"s_add_u32 {sCI}, {sCI}, 1"); A(f"s_cmp_lt_u32 {sCI}, {sNS}"); A("s_cbranch_scc1 L_loop")
    if touch:
        for nm in ("fin","red","ffn","ffn2"): touch_pad(nm)
    if forcepar is None:
        A(f"v_mov_b32 v{vTM}, {WS_PAR}")
        poll([f"global_load_dwordx4 {Q4(vF)}, v{vTM}, {pWS} {ldf}"], [[vF+1, vF+3]])
        A(f"v_readfirstlane_b32 {sP0}, v{vF}"); A(f"v_readfirstlane_b32 {sP1}, v{vF+2}")
    else:
        A(f"s_mov_b32 {sP0}, {forcepar[0]*8192}"); A(f"s_mov_b32 {sP1}, {forcepar[1]*8192}")
    A(f"s_lshl_b32 {sT0}, {sG}, 2"); A(f"s_and_b32 {sT1}, {sW}, 1"); A(f"s_add_u32 {sT0}, {sT0}, {sT1}"); A(f"s_lshl_b32 {sT0}, {sT0}, 14")
    A(f"s_lshr_b32 {sT1}, {sW}, 1"); A(f"s_lshl_b32 {sT1}, {sT1}, 13"); A(f"s_xor_b32 {sT1}, {sT1}, {sP0}"); A(f"s_add_u32 {sT0}, {sT0}, {sT1}")
    A(f"s_lshl_b32 {sT1}, {sJ}, 8"); A(f"s_add_u32 {sT0}, {sT0}, {sT1}"); A(f"s_add_u32 {sT0}, {sT0}, {WS_A}")
    A(f"v_lshrrev_b32 v{vAA}, 1, v{vG4}"); A(f"v_lshlrev_b32 v{vAA}, 15, v{vAA}")
    A(f"v_and_b32 v{vTM}, 1, v{vG4}"); A(f"v_lshl_or_b32 v{vAA}, v{vTM}, 12, v{vAA}"); A(f"v_lshl_or_b32 v{vAA}, v{vN}, 4, v{vAA}")
    A(f"v_add_u32 v{vAA}, {sT0}, v{vAA}")
    A(f"s_lshr_b32 {sT0}, {sWG}, 3"); A(f"s_lshl_b32 {sT0}, {sT0}, 1"); A(f"s_bfe_u32 {sT1}, {sWG}, 0x10001"); A(f"s_add_u32 {sT0}, {sT0}, {sT1}"); A(f"s_lshl_b32 {sT0}, {sT0}, 14")
    A(f"s_bfe_u32 {sT1}, {sWG}, 0x10002"); A(f"s_lshl_b32 {sT1}, {sT1}, 13"); A(f"s_xor_b32 {sT1}, {sT1}, {sP0}"); A(f"s_add_u32 {sT0}, {sT0}, {sT1}")
    A(f"s_and_b32 {sT1}, {sWG}, 1"); A(f"s_lshl_b32 {sT1}, {sT1}, 12"); A(f"s_add_u32 {sT0}, {sT0}, {sT1}"); A(f"s_add_u32 {sT0}, {sT0}, {WS_A}")
    A(f"v_lshlrev_b32 v{vAI}, 4, v{vN}"); A(f"v_lshl_or_b32 v{vAI}, v{vG4}, 10, v{vAI}"); A(f"v_add_u32 v{vAI}, {sT0}, v{vAI}")
    A(f"v_lshl_add_u32 v{vX+3}, v{vLANE}, 6, {sT0}")
    A(f"s_cmp_eq_u32 {sW}, 0"); A(f"s_cselect_b32 {sWRM}, {0x7fffffff if awarm else 0}, 0")
    A(f"s_cmp_ge_u32 {sRR}, 64"); A(f"s_cbranch_scc1 L_nored"); A(f"s_sub_u32 {sT0}, {sW}, 1"); A(f"s_cmp_ge_u32 {sT0}, 2"); A(f"s_cbranch_scc1 L_nored")
    A(f"s_lshl_b32 {sT0}, {sT0}, 14"); A(f"s_lshl_b32 {sT1}, {sRR}, 15"); A(f"s_add_u32 {sT0}, {sT0}, {sT1}"); A(f"s_add_u32 {sT0}, {sT0}, {sP1}"); A(f"s_add_u32 {sT0}, {sT0}, {WS_B}")
    A(f"v_lshl_add_u32 v{vX+3}, v{vLANE}, 7, {sT0}"); A(f"s_mov_b32 {sWRM}, {[0,0x7fffffff,1,2][bwarm]}")
    if bwarm == 3: A(f"global_load_dword v{vX+2}, v{vX+3}, {pWS} {ldf}")
    E.label("L_nored")
    A(f"s_lshl_b32 {sT0}, {sB}, 2"); A(f"s_add_u32 {sT0}, {sT0}, {sW}"); A(f"s_lshl_b32 {sT0}, {sT0}, 18")
    A(f"s_bfe_u32 {sT1}, {sWG}, 0x10006"); A(f"s_lshl_b32 {sT1}, {sT1}, 14"); A(f"s_add_u32 {sT0}, {sT0}, {sT1}"); A(f"s_add_u32 {sT0}, {sT0}, {sP1}")
    A(f"s_and_b32 {sT1}, {sWG}, 63"); A(f"s_lshl_b32 {sT1}, {sT1}, 7"); A(f"s_add_u32 {sT0}, {sT0}, {sT1}"); A(f"s_add_u32 {sT0}, {sT0}, {WS_B}")
    A(f"v_lshrrev_b32 v{vTM}, 3, v{vLANE}"); A(f"v_lshlrev_b32 v{vTM}, 15, v{vTM}")
    A(f"v_and_b32 v{vTM2}, 7, v{vLANE}"); A(f"v_lshl_or_b32 v{vBA}, v{vTM2}, 4, v{vTM}"); A(f"v_add_u32 v{vBA}, {sT0}, v{vBA}")
    E.label("L_mini")
    wait_tile("L_fin")
    qk(1)
    for e in range(4): A(f"v_add_u32 v{vAD[e]}, {sSLOT}, v{vVB[e]}")
    for e in range(4): A(f"ds_read_b64_tr_b16 {P(vF + 2*e)}, v{vAD[e]} offset:8192")
    softmax(1, "b")
    A("s_waitcnt lgkmcnt(0)")
    for e in range(4): A(f"v_mfma_f32_16x16x16_bf16 {Q4(vO+4*e)}, {P(vP)}, {P(vF+2*e)}, {Q4(vO+4*e)}")
    add_l(1)
    slot_advance()
    A(f"s_cmp_eq_u32 {sN}, {sTOT}"); A("s_cbranch_scc1 L_fin")
    A(f"v_mov_b32 v{vTM}, {sN}"); one_lane(f"ds_write_b32 v{vCONS}, v{vTM}")
    A("s_branch L_mini")
    rescale("b"); rescale("a")
    E.label("L_pv_park")
    for p in range(park):
        if p < park-1: nx = lab("pk"); A(f"s_cmp_lg_u32 {sCI}, {p}"); A(f"s_cbranch_scc1 {nx}")
        for e in range(4): A(f"v_mfma_f32_16x16x32_bf16 {Q4(vO+4*e)}, {Q4(vP)}, {Q4(vW1+16*p+4*e)}, {Q4(vO+4*e)}")
        A("s_branch L_pv_done")
        if p < park-1: E.label(nx)

    vG=vF; vI=vF+4; sa=vS; sb=vS+1; sw=vS+2
    vA=vQ; vOPR=vQ+4; vOPW=vQ+5; vR0=vQ+6; vR1=vQ+7; vR2=vQ+8; vR3=vQ+9; vR4=vQ+10; vR5=vQ+11; vZ=vQ+12
    E.label("L_ffn_addr")
    A(f"v_lshrrev_b32 v{vTM}, 3, v{vLANE}"); A(f"v_and_b32 v{vTM2}, 7, v{vLANE}")
    A(f"v_lshlrev_b32 v{vR0}, 9, v{vTM}"); A(f"v_lshl_or_b32 v{vR0}, v{vTM2}, 4, v{vR0}"); A(f"s_add_u32 {sT0}, {sP0}, {WS_H}"); A(f"v_add_u32 v{vR0}, {sT0}, v{vR0}")
    A(f"v_mul_u32_u24 v{vR1}, 224, v{vTM}"); A(f"v_lshl_add_u32 v{vR1}, v{vTM2}, 2, v{vR1}"); A(f"v_add_u32 v{vR1}, {L_LN}, v{vR1}")
    ln_read_addr(vR2, L_LN)
    A(f"s_lshl_b32 {sT0}, {sW}, 5"); A(f"s_add_u32 {sT0}, {sT0}, {L_ACT}")
    A(f"v_lshlrev_b32 v{vR3}, 7, v{vG4}"); A(f"v_lshl_add_u32 v{vR3}, v{vN}, 1, v{vR3}"); A(f"v_add_u32 v{vR3}, {sT0}, v{vR3}")
    A(f"v_and_b32 v{vR4}, 1, v{vLANE}"); A(f"v_lshlrev_b32 v{vR4}, 7, v{vR4}"); A(f"v_lshl_add_u32 v{vR4}, v{vG4}, 3, v{vR4}"); A(f"v_add_u32 v{vR4}, {L_ACT}, v{vR4}")
    A(f"s_lshl_b32 {sT0}, {sW}, 16"); A(f"s_lshl_b32 {sT1}, {sIDX}, 7"); A(f"s_add_u32 {sT0}, {sT0}, {sT1}"); A(f"s_add_u32 {sT0}, {sT0}, {sP0}"); A(f"s_add_u32 {sT0}, {sT0}, {WS_D}")
    A(f"v_lshrrev_b32 v{vTM}, 3, v{vN}"); A(f"v_lshlrev_b32 v{vTM}, 12, v{vTM}"); A(f"v_lshl_or_b32 v{vTM}, v{vG4}, 14, v{vTM}")
    A(f"v_lshl_or_b32 v{vTM}, v{vTM2}, 4, v{vTM}"); A(f"v_add_u32 v{vR5}, {sT0}, v{vTM}")
    A("s_branch L_addr_done")
    if align: A(".p2align 12")
    if touch: E.label("L_pad_fin"); A("s_branch L_ret_fin")
    E.label("L_fin")
    stamp(3)
    yreg = [vO, vO+4, vO+8, vO+12, vQ+16, vQ+20, vQ+24]
    xrow("v_add_f32", [vL], [vTM])
    if hilo:
        for e in range(4): A(f"v_pk_add_f32 {P(vO+4*e)}, {P(vO+4*e)}, {P(vO+4*e+2)}")
    A(f"v_log_f32 v{vTM2}, v{vL}"); A(f"v_rcp_f32 v{vTM3}, v{vL}")
    A(f"v_mov_b32 v{vG+3}, {sTAG}")
    A(f"v_add_f32 v{vTM2}, v{vMC}, v{vTM2}")
    SEL4(vG, vO+0, vO+8, vO+1, vO+9, vMX)
    A(f"v_mov_b32_dpp v{vTM}, v{vTM3} quad_perm:[0,0,2,2] row_mask:0x3 bank_mask:0xf")
    A(f"v_mov_b32_dpp v{vG+2}, v{vTM2} quad_perm:[0,0,2,2] row_mask:0x3 bank_mask:0xf")
    SEL4(vG+1, vO+4, vO+12, vO+5, vO+13, vMX)
    A(f"v_mov_b32_dpp v{vTM}, v{vTM3} quad_perm:[1,1,3,3] row_mask:0xc bank_mask:0xf")
    A(f"v_mov_b32_dpp v{vG+2}, v{vTM2} quad_perm:[1,1,3,3] row_mask:0xc bank_mask:0xf")
    A(f"v_mul_f32 v{vG}, v{vG}, v{vTM}"); A(f"v_mul_f32 v{vG+1}, v{vG+1}, v{vTM}")
    A(f"global_store_dwordx4 v{vAA}, {Q4(vG)}, {pWS} {stf}")
    stamp(4)
    if bwarm == 2:
        A(f"s_cmp_lg_u32 {sWRM}, 1"); A("s_cbranch_scc1 L_nobw")
        A(f"global_load_dword v{vX+2}, v{vX+3}, {pWS} {ldf}")
        E.label("L_nobw")
    A(f"v_lshlrev_b32 v{vOPR}, 3, v{vG4}"); A(f"v_add_u32 v{vOPR}, {L_OP}, v{vOPR}")
    A(f"v_lshlrev_b32 v{vOPW}, 1, v{vN}"); A(f"v_add_u32 v{vOPW}, {L_OP}, v{vOPW}")
    A(f"v_mov_b32 v{vZ}, 0")
    A(f"s_cmp_lt_u32 {sIDX}, 28"); A("s_cbranch_scc1 L_ffn_addr")
    A(f"s_cmp_ge_u32 {sRR}, 64"); A("s_cbranch_scc1 L_addr_done")
    A(f"s_lshl_b32 {sT0}, {sRR}, 15"); A(f"s_lshr_b32 {sT1}, {sW}, 1"); A(f"s_lshl_b32 {sT1}, {sT1}, 14"); A(f"s_add_u32 {sT0}, {sT0}, {sT1}")
    A(f"s_and_b32 {sT1}, {sW}, 1"); A(f"s_lshl_b32 {sT1}, {sT1}, 12"); A(f"s_add_u32 {sT0}, {sT0}, {sT1}"); A(f"s_add_u32 {sT0}, {sT0}, {sP1}"); A(f"s_add_u32 {sT0}, {sT0}, {WS_B}")
    A(f"v_lshl_add_u32 v{vR0}, v{vLANE}, 4, {sT0}")
    A(f"s_lshl_b32 {sT0}, {sW}, 6"); A(f"s_add_u32 {sT0}, {sT0}, {L_RED}")
    A(f"v_and_b32 v{vTM}, 7, v{vLANE}"); A(f"v_lshl_add_u32 v{vR1}, v{vTM}, 2, {sT0}")
    A(f"v_and_b32 v{vTM}, 6, v{vLANE}"); A(f"v_lshlrev_b32 v{vR2}, 2, v{vTM}"); A(f"v_add_u32 v{vR2}, {L_RED}, v{vR2}")
    A(f"s_lshl_b32 {sT0}, {sRR}, 6"); A(f"s_add_u32 {sT0}, {sT0}, {sP0}"); A(f"s_add_u32 {sT0}, {sT0}, {WS_H}"); A(f"v_lshl_add_u32 v{vR3}, v{vTM}, 3, {sT0}")
    A(f"s_lshr_b32 {sT0}, {sRR}, 1"); A(f"s_lshl_b32 {sT0}, {sT0}, 14"); A(f"s_and_b32 {sT1}, {sRR}, 1"); A(f"s_lshl_b32 {sT1}, {sT1}, 12"); A(f"s_add_u32 {sT0}, {sT0}, {sT1}")
    A(f"s_add_u32 {sT0}, {sT0}, {sP0}"); A(f"s_add_u32 {sT0}, {sT0}, {WS_D}"); A(f"v_lshl_add_u32 v{vR4}, v{vLANE}, 4, {sT0}")
    A(f"v_lshl_add_u32 v{vR5}, v{vTM}, 1, {sCOL}")
    E.label("L_addr_done")
    aloads = [f"global_load_dwordx4 {Q4(vI+4*i)}, v{vAI}, {pWS} offset:{i*256} {ldf}" for i in range(4)]
    A(f"s_cmp_lg_u32 {sW}, 0"); A("s_cbranch_scc1 L_a_nopoll")
    for l in aloads: A(l)
    E.label("L_a_nopoll")
    wide_addr(vX)
    for h in range(2): read_wide_tile(vX, vWO, h)
    A(f"s_cmp_lg_u32 {sW}, 0"); A("s_cbranch_scc1 L_a_join")
    poll(aloads, [[vI+4*i+3] for i in range(4)], issued=True)
    stamp(5)
    A(f"v_max3_f32 v{vMX}, v{vI+2}, v{vI+6}, v{vI+10}"); A(f"v_max_f32 v{vMX}, v{vMX}, v{vI+14}")
    xrow("v_max_f32", [vMX], [vTM])
    for i in range(4): A(f"v_sub_f32 v{vI+4*i+2}, v{vI+4*i+2}, v{vMX}")
    for i in range(4): A(f"v_exp_f32 v{vI+4*i+2}, v{vI+4*i+2}")
    A(f"v_mul_f32 v{sa}, v{vI}, v{vI+2}"); A(f"v_mul_f32 v{sb}, v{vI+1}, v{vI+2}"); A(f"v_add_f32 v{sw}, v{vI+2}, v{vI+6}")
    for i in range(1,4):
        A(f"v_fmac_f32 v{sa}, v{vI+4*i}, v{vI+4*i+2}"); A(f"v_fmac_f32 v{sb}, v{vI+4*i+1}, v{vI+4*i+2}")
        if i > 1: A(f"v_add_f32 v{sw}, v{sw}, v{vI+4*i+2}")
    xrow("v_add_f32", [sw, sa, sb], [vS+3, vS+4, vS+5])
    A(f"v_rcp_f32 v{sw}, v{sw}")
    A(f"v_mul_f32 v{sa}, v{sa}, v{sw}"); A(f"v_mul_f32 v{sb}, v{sb}, v{sw}")
    A(f"v_mov_b32_dpp v{vS+3}, v{sa} quad_perm:[1,0,3,2] row_mask:0xf bank_mask:0xf")
    A(f"v_mov_b32_dpp v{vS+4}, v{sb} quad_perm:[1,0,3,2] row_mask:0xf bank_mask:0xf")
    A(f"v_cvt_pk_bf16_f32 v{sa}, v{sa}, v{vS+3}"); A(f"v_cvt_pk_bf16_f32 v{sb}, v{sb}, v{vS+4}")
    A("s_mov_b64 exec, 0x5555"); A(f"ds_write2_b32 v{vOPW}, v{sa}, v{sb} offset0:0 offset1:8"); A("s_mov_b64 exec, -1")
    A("s_waitcnt lgkmcnt(0)")
    E.label("L_a_join")
    A("s_barrier")
    A(f"ds_read2_b64 {Q4(vA)}, v{vOPR} offset0:0 offset1:4")
    A(f"v_mov_b32 v{vG+1}, {sTAG}")
    A("s_waitcnt lgkmcnt(0)")
    for t in (0,2,4,6,1,3,5):
        A(f"v_mfma_f32_16x16x32_bf16 {Q4(yreg[t])}, {Q4(vA)}, {Q4(vWO+4*t)}, 0")
    SEL4(vG, yreg[0], yreg[2], yreg[4], yreg[6], vMX)
    SEL4(vG+2, yreg[1], yreg[3], yreg[5], vZ, vTM)
    A(f"global_store_dwordx4 v{vBA}, {Q4(vG)}, {pWS} {stf}")
    stamp(6)
    A(f"s_cmp_lt_u32 {sIDX}, 28"); A("s_cbranch_scc1 L_ffn")
    A(f"s_cmp_ge_u32 {sRR}, 64"); A("s_cbranch_scc1 L_done")
    def inbox(addr): return [f"global_load_dwordx4 {Q4(vI+4*i)}, v{addr}, {pWS} offset:{i*1024} {ldf}" for i in range(4)]
    tags2 = [[vI+4*i+3] if onetag else [vI+4*i+1, vI+4*i+3] for i in range(4)]
    def sum_inbox():
        A(f"v_add_f32 v{sa}, v{vI}, v{vI+4}"); A(f"v_add_f32 v{sb}, v{vI+2}, v{vI+6}")
        A(f"v_add_f32 v{vS+2}, v{vI+8}, v{vI+12}"); A(f"v_add_f32 v{vS+3}, v{vI+10}, v{vI+14}")
        A(f"v_add_f32 v{sa}, v{sa}, v{vS+2}"); A(f"v_add_f32 v{sb}, v{sb}, v{vS+3}")
        A(f"v_add_f32_dpp v{sa}, v{sa}, v{sa} row_ror:8 row_mask:0xf bank_mask:0xf")
        A(f"v_add_f32_dpp v{sb}, v{sb}, v{sb} row_ror:8 row_mask:0xf bank_mask:0xf")
        xrow("v_add_f32", [sa, sb], [vS+2, vS+3])
    vXF = vO
    unpack(vXF, vXF+1, vXH); unpack(vXF+2, vXF+3, vXH+1)
    if touch: pad("red")
    poll(inbox(vR0), tags2)
    stamp(7)
    sum_inbox()
    A("s_mov_b64 exec, 0xff"); A(f"ds_write2_b32 v{vR1}, v{sa}, v{sb} offset0:0 offset1:8"); A("s_mov_b64 exec, -1")
    A("s_waitcnt lgkmcnt(0)"); A("s_barrier")
    A(f"s_cmp_lg_u32 {sW}, 0"); A("s_cbranch_scc1 L_done")
    for i in range(4): A(f"ds_read2_b64 {Q4(vI+4*i)}, v{vR2} offset0:{i*8} offset1:{i*8+4}")
    def add_resid(y, dst):
        A(f"v_cvt_pk_bf16_f32 v{dst}, v{y}, v{y+1}"); A(f"v_cvt_pk_bf16_f32 v{dst+2}, v{y+2}, v{y+3}")
        unpack(y, y+1, dst); unpack(y+2, y+3, dst+2)
        A(f"v_pk_add_f32 {P(y)}, {P(y)}, {P(vXF)}"); A(f"v_pk_add_f32 {P(y+2)}, {P(y+2)}, {P(vXF+2)}")
        A(f"v_cvt_pk_bf16_f32 v{dst}, v{y}, v{y+1}"); A(f"v_cvt_pk_bf16_f32 v{dst+2}, v{y+2}, v{y+3}")
    A("s_waitcnt lgkmcnt(2)")
    A(f"v_pk_add_f32 {P(vI)}, {P(vI)}, {P(vI+4)}"); A(f"v_pk_add_f32 {P(vI+2)}, {P(vI+2)}, {P(vI+6)}")
    A("s_waitcnt lgkmcnt(0)")
    A(f"v_pk_add_f32 {P(vI+8)}, {P(vI+8)}, {P(vI+12)}"); A(f"v_pk_add_f32 {P(vI+10)}, {P(vI+10)}, {P(vI+14)}")
    A(f"v_pk_add_f32 {P(vI)}, {P(vI)}, {P(vI+8)}"); A(f"v_pk_add_f32 {P(vI+2)}, {P(vI+2)}, {P(vI+10)}")
    add_resid(vI, vG)
    A("s_mov_b64 exec, 0x55"); A(f"global_store_dwordx4 v{vR3}, {Q4(vG)}, {pWS} {stf}"); A("s_mov_b64 exec, -1")
    stamp(8)
    unpack(vXF, vXF+1, vG); unpack(vXF+2, vXF+3, vG+2)
    A(f"v_mov_b32 v{vI+12}, 0"); A(f"v_mov_b32 v{vI+13}, {sTAG}"); A(f"v_mov_b32 v{vI+14}, 0"); A(f"v_mov_b32 v{vI+15}, {sTAG}")
    poll(inbox(vR4), tags2, first_mask=[-1,-1,-1,"s[66:67]"])
    stamp(9)
    sum_inbox()
    A(f"v_mov_b32_dpp v{vI}, v{sa} quad_perm:[0,0,2,2] row_mask:0xf bank_mask:0xf"); A(f"v_mov_b32_dpp v{vI+1}, v{sa} quad_perm:[1,1,3,3] row_mask:0xf bank_mask:0xf")
    A(f"v_mov_b32_dpp v{vI+2}, v{sb} quad_perm:[0,0,2,2] row_mask:0xf bank_mask:0xf"); A(f"v_mov_b32_dpp v{vI+3}, v{sb} quad_perm:[1,1,3,3] row_mask:0xf bank_mask:0xf")
    add_resid(vI, vI+4)
    A("s_mov_b64 exec, 0x55"); A(f"global_store_dword v{vR5}, v{vI+4}, {pOUT} {outf}")
    A(f"s_cmp_eq_u32 {sGP}, 3"); A("s_cbranch_scc1 L_done")
    A(f"global_store_dword v{vR5}, v{vI+6}, {pOUT} offset:32 {outf}")
    A(f"s_cmp_lg_u32 {sRR}, 0"); A("s_cbranch_scc1 L_done")
    A(f"s_add_u32 {sT0}, {sE}, 1"); A(f"v_mov_b32 v{vTM2}, {sT0}"); A(f"v_mov_b32 v{vTM3}, {WS_E}")
    A("s_mov_b64 exec, 1"); A(f"global_store_dword v{vTM3}, v{vTM2}, {pWS} {stf}")
    if enc:
        A("s_memrealtime s[90:91]"); A("s_waitcnt lgkmcnt(0)")
        A(f"s_sub_u32 {sT0}, s{70+2*enc[1]}, s{70+2*enc[0]}"); A(f"s_lshl_b32 {sT0}, {sT0}, 2"); A(f"s_min_u32 {sT0}, {sT0}, 100000")
        E.label("L_enc")
        A("s_memrealtime s[94:95]"); A("s_waitcnt lgkmcnt(0)")
        A(f"s_sub_u32 {sT1}, s94, s90"); A(f"s_cmp_lt_u32 {sT1}, {sT0}"); A("s_cbranch_scc1 L_enc")
    A("s_branch L_done")
    if touch: E.label("L_pad_ffn"); A("s_branch L_ret_ffn")
    E.label("L_ffn")
    A(f"s_cmp_lg_u32 {sW}, 0"); A("s_cbranch_scc1 L_c_join")
    poll([f"global_load_dwordx4 {Q4(vI+4*u)}, v{vR0}, {pWS} offset:{u*128} {ldf}" for u in range(4)], tags2)
    stamp(7)
    layernorm([vI+2*u for u in range(7)], vO, vR1, 32, mid=(lambda: pad("ffn2")) if touch else None)
    A("s_waitcnt lgkmcnt(0)")
    E.label("L_c_join")
    A("s_barrier")
    def aread(i): A(f"ds_read_b128 {Q4(vF + 4*(i % NF))}, v{vR2} offset:{i*64}")
    for i in range(NF): aread(i)
    for i in range(14):
        A(f"s_waitcnt lgkmcnt({min(NF-1, 13-i)})")
        A(f"v_mfma_f32_16x16x32_bf16 {Q4(vS)}, {Q4(vF + 4*(i % NF))}, {Q4(vW1+4*i)}, {'0' if i==0 else Q4(vS)}")
        if i + NF < 14: aread(i+NF)
    for b in range(2): A(f"v_mov_b32 v{vO+4*b+1}, {sTAG}"); A(f"v_mov_b32 v{vO+4*b+3}, {sTAG}")
    A(f"v_add_u32 v{vR0}, {16*16384}, v{vR5}")
    A(f"v_cndmask_b32 v{vTM}, v{vS}, v{vS+1}, {sM1}")
    round_bf(vTM, vTM)
    A(f"v_mul_f32 v{vTM2}, {(LOG2E | 0x80000000):#x}, v{vTM}")
    A(f"v_exp_f32 v{vTM2}, v{vTM2}")
    A(f"v_add_f32 v{vTM2}, 1.0, v{vTM2}")
    A(f"v_rcp_f32 v{vTM2}, v{vTM2}")
    A(f"v_mul_f32 v{vTM}, v{vTM}, v{vTM2}")
    A(f"v_cvt_pk_bf16_f32 v{vTM}, v{vTM}, v{vTM}")
    A("s_mov_b32 exec_hi, 0"); A(f"ds_write_b16 v{vR3}, v{vTM}"); A("s_mov_b32 exec_hi, -1")
    A("s_waitcnt lgkmcnt(0)"); A("s_barrier")
    for ks in range(2): A(f"ds_read2_b64 {Q4(vF+4*ks)}, v{vR4} offset0:{ks*8} offset1:{ks*8+4}")
    zreg = [vW1+4*t for t in range(7)]
    for ks in range(2):
        A(f"s_waitcnt lgkmcnt({1-ks})")
        for t in (0,2,4,6,1,3,5):
            A(f"v_mfma_f32_16x16x32_bf16 {Q4(zreg[t])}, {Q4(vF+4*ks)}, {Q4(vW2+28*ks+4*t)}, {'0' if ks==0 else Q4(zreg[t])}")
    for b in range(2): SEL4(vO+4*b, zreg[0]+b, zreg[2]+b, zreg[4]+b, zreg[6]+b, vMX)
    for b in range(2):
        SEL4(vO+4*b+2, zreg[1]+b, zreg[3]+b, zreg[5]+b, vZ, vMX)
        A(f"global_store_dwordx4 v{vR5 if b == 0 else vR0}, {Q4(vO+4*b)}, {pWS} {stf}")
    stamp(8)
    E.label("L_done")
    if diag:
        stamp(10)
        A("s_mov_b64 exec, -1")
        A(f"s_lshl_b32 {sT0}, {sWG}, 2"); A(f"s_add_u32 {sT0}, {sT0}, {sW}"); A(f"s_lshl_b32 {sT0}, {sT0}, 7"); A(f"s_add_u32 {sT0}, {sT0}, {WS_ST}")
        A("s_getreg_b32 s100, hwreg(HW_REG_XCC_ID)")
        A("s_waitcnt lgkmcnt(0)")
        A(f"v_mov_b32 v{vTM}, {sT0}")
        A("s_mov_b64 exec, 1")
        for k in range(11): A(f"v_mov_b32 v{vW1+k}, s{70+2*k}")
        A(f"v_mov_b32 v{vW1+11}, s100"); A(f"v_mov_b32 v{vW1+12}, {sN}"); A(f"v_mov_b32 v{vW1+13}, {sROLE}"); A(f"v_mov_b32 v{vW1+14}, {sWG}"); A(f"v_mov_b32 v{vW1+15}, {sIDX}")
        for k in range(4): A(f"v_mov_b32 v{vW1+16+k}, s{92+2*k}")
        for q in range(5): A(f"global_store_dwordx4 v{vTM}, {Q4(vW1+4*q)}, {pWS} offset:{q*16}")
    E.label("L_end")
    A("s_endpgm")

    E.label("L_ffn_w")
    wide_addr(vX); tall_addr(vX+1)
    for t in range(4): read_tall_tile(vX+1, vW1, t)
    for t in range(4): read_wide_tile(vX, vW2 + 28*(t>>1), t & 1)
    A("s_branch L_ffn_w_done")
    E.label("L_ld_ffn")
    tall_voffs(3584)
    A(f"s_mov_b64 s[48:49], s[{pW1[0]}:{pW1[1]}]"); A(f"s_mov_b32 s50, {448*1792*2}")
    A(f"s_lshl_b32 {sBASE}, {sIDX}, 7")
    for t in range(4):
        if t % 2 == 0: freecheck(2)
        tile_tall(3584, t, 16 if t < 3 else 8)
    A(f"s_mov_b64 s[48:49], s[{pW2[0]}:{pW2[1]}]")
    A(f"s_mul_i32 {sBASE}, {sIDX}, {64*896}"); A(f"s_add_u32 {sT2}, {sN}, 4")
    E.label("L_ld_w2")
    freecheck(1)
    tile_wide()
    A(f"s_cmp_lt_u32 {sN}, {sT2}"); A("s_cbranch_scc1 L_ld_w2")
    A("s_branch L_ld_head_done")
    if forcepar is None:
        E.label("L_probe")
        A(f"s_load_dword s69, {pWS}, {WS_E}")
        A("s_mov_b64 exec, 1")
        for k,off in enumerate((WS_PRB, WS_PRB+8192, WS_B, WS_B+8192)):
            A(f"v_mov_b32 v{32+k}, {off}"); A(f"s_mov_b32 s{92+k}, 0")
        A("v_mov_b32 v36, 0"); A(f"s_mov_b32 {sCI}, {nprobe}")
        for k in range(4): A(f"global_atomic_add v37, v{32+k}, v36, {pWS} sc0")
        A("s_waitcnt vmcnt(0)")
        E.label("L_probe_loop")
        for k in range(4):
            A("s_memtime s[64:65]"); A("s_waitcnt lgkmcnt(0)")
            A(f"global_atomic_add v37, v{32+k}, v36, {pWS} sc0"); A("s_waitcnt vmcnt(0)")
            A("s_memtime s[66:67]"); A("s_waitcnt lgkmcnt(0)")
            A("s_sub_u32 s66, s66, s64"); A(f"s_min_u32 s66, s66, {clip}"); A(f"s_add_u32 s{92+k}, s{92+k}, s66")
        A(f"s_sub_u32 {sCI}, {sCI}, 1"); A(f"s_cmp_lg_u32 {sCI}, 0"); A("s_cbranch_scc1 L_probe_loop")
        A("s_cmp_gt_u32 s92, s93"); A(f"s_cselect_b32 {sT0}, 8192, 0")
        A("s_cmp_gt_u32 s94, s95"); A(f"s_cselect_b32 {sT1}, 8192, 0")
        make_tag(sT2, "s69")
        A(f"v_mov_b32 v32, {sT0}"); A(f"v_mov_b32 v33, {sT2}"); A(f"v_mov_b32 v34, {sT1}"); A(f"v_mov_b32 v35, {sT2}"); A(f"v_mov_b32 v36, {WS_PAR}")
        A(f"global_store_dwordx4 v36, v[32:35], {pWS} {stf}")
        A("s_mov_b64 exec, -1")
        A("s_branch L_ld_wo")

    body = E.finish()
    head = open("sequential_preLN__gqa_block_cached__dense_activation_silu__decode.s.ref").read().split("; Override launch")[0]
    src = head + f"""; Design (one persistent launch, 256 workgroups = one per CU, written by my own generator script):
;  * workgroup = (batch, kv head) group g = id>>4, split j = id&15.  Wave 0 streams K/V with LDS-DMA into a 9 x 16 KiB
;    LDS ring; waves 1-4 do QK^T (MFMA), online softmax with the true running maximum, PV (each wave 64 of the 256 dims).
;  * every split owns a 1 MiB block of K and V; the block tails form a per-group pool handed out with an atomic counter.
;  * q = LN(x) @ wq is computed by 64 workgroups and handed over in tagged granules; V tiles are parked in registers meanwhile.
;  * tail, four tagged hand-offs through d_ws: split combine + wo rows -> column sums + residual -> LN, w1, silu, w2 rows
;    -> column sums + residual.  bf16 roundings sit where the reference materialises bf16 tensors.
;  * tag = hash of an epoch word found in d_ws (advanced at the end): it only tells this launch's granules from older ones.
;  * one workgroup times a few zero-adds to learn which 8 KiB parity of the hand-off pages is close to the readers;
;    the answer and the role/id mapping only pick addresses (speed), never values.  All spins are bounded.
; @launch grid=(256,1,1) block=(320,1,1) lds={LDS}
.amdgcn_target "amdgcn-amd-amdhsa--gfx950"
.text
.globl {NAME}
{'.p2align 12' if align else ''}
.p2align 8
.type {NAME},@function
{NAME}:
{body}.section .rodata,"a"
.p2align 6
.amdhsa_kernel {NAME}
  .amdhsa_next_free_vgpr 256
  .amdhsa_next_free_sgpr 102
  .amdhsa_accum_offset 256
  .amdhsa_group_segment_fixed_size 0
  .amdhsa_kernarg_size 88
  .amdhsa_user_sgpr_count 2
  .amdhsa_user_sgpr_kernarg_segment_ptr 1
  .amdhsa_system_sgpr_workgroup_id_x 1
.end_amdhsa_kernel
"""
    return src, E.npad

if __name__ == "__main__":
    out = sys.argv[1]
    kw = json.loads(sys.argv[2]) if len(sys.argv) > 2 else {}
    src, npad = gen(**kw)
    open(out, "w").write(src)
    print("wrote", out, "lines", src.count("\n"), "pad states", npad)
```

```python
import sys, json, struct
from emit import Emitter

NAME = "sequential_preLN__gqa_block_cached__dense_activation_silu__decode_kernel"
def f2u(x): return struct.unpack("<I", struct.pack("<f", x))[0]

def gen(W=19, NS=60, diag=False, hilo=True, spin=1<<20, enc=None, NF=5, ldst=None, qwait=2, forcepar=None, nprobe=3, clip=2000,
        touch=0, qtouch=1, lastfast=1, outf='sc1', onetag=1, nap=0, grp=4, align=1, park=4, ltouch=0, wpre=(2,4), awarm=1, bwarm=3, WD=None):
    E = Emitter(); A = E
    pol = "nt"; stf = ldf = "sc1"
    NSLOT = 9; SLOT = 16384; RING = NSLOT*SLOT; LDS = 163840
    L_FLAG = RING; L_CONS = RING+16; L_RED = RING+256; L_OP = RING+512; L_ACT = RING+768; L_QW = RING+1024; L_LN = RING+2048; L_SC = RING+4096; L_MX = RING+64
    WS_E = 0; WS_PAR = 0x800; WS_CNT = 0x1000; WS_H = 0x4000; WS_Q = 0x8000; WS_PRB = 0x10000; WS_D = 0x80000; WS_A = 0x100000; WS_B = 0x200000; WS_ST = 0x400000
    C_SCALE = f2u(1.4426950408889634/16.0); LOG2E = f2u(1.4426950408889634); INV448 = f2u(1.0/448.0); EPS = f2u(1e-5)
    EXTRA = 32; POOL = 2048-32*NS+EXTRA; TL = 128-2*NS
    assert 12 <= W <= 32 and NF <= 5
    sWG="s2"; sWAVE="s3"
    pX="s[4:5]"; pK=(6,7); pV=(8,9); pWQ=(10,11); pWO=(12,13); pW1=(16,17); pW2=(18,19); pOUT="s[20:21]"; pWS="s[24:25]"
    sG="s26"; sJ="s27"; sROLE="s28"; sN="s31"; sSLOT="s32"; sKNOWN="s33"; sT0="s34"; sT1="s35"; sT2="s36"
    sCI="s37"; sSPIN="s38"; sIDX="s39"; sNS="s63"; sPK="s68"
    vK=[4+i for i in range(8)]; vV=[12+i for i in range(4)]; vLIN=16; vT=[17,18]; vFL=21; vTMP=22; vC=24; vCA=28; vONE=29; vCL=[30,31]
    srdK="s[40:43]"; srdV="s[44:47]"; srdW="s[48:51]"; srdZ="s[52:55]"
    sCUR="s56"; sGB="s57"; sOFF="s58"; sCLM="s59"; sBASE="s61"; sFLOOR="s62"
    sB="s29"; sHKV="s30"; sW="s40"; sTAG="s41"; sM1="s[42:43]"; sM2="s[44:45]"; sC="s46"; sE="s47"; sRR="s48"; sTOT="s49"
    sCK=["s[50:51]","s[52:53]","s[54:55]","s[56:57]"]; sCOL="s58"; sGP="s59"; sP0="s60"; sP1="s61"; sWRM="s62"
    vLANE=0; vN=1; vG4=2; vFLG=3; vCONS=4; vTM=5; vTM2=6; vTM3=7
    vM=8; vMC=9; vL=10; vMX=11
    vKB=[12,13,14,15]; vVB=[16,17,18,19]; vAD=[20,21,22,23]
    vS=24; vP=32; vO=36; vQ=52; vF=84; vAA=104; vAI=105; vBA=106
    vWO=108; vW1=136; vW2=192; vX=248; vXH=254
    xr1 = [vWO+u for u in range(7)]; vLW1 = vWO+24

    uid=[0]
    def lab(p): uid[0]+=1; return f"L_{p}_{uid[0]}"
    def P(r): return f"v[{r}:{r+1}]"
    def Q4(r): return f"v[{r}:{r+3}]"
    def stamp(k):
        if not diag and not (enc and k in (0, enc[0], enc[1])): return
        A(f"s_memrealtime s[{70+2*k}:{71+2*k}]")
    def slot_advance():
        A(f"s_add_u32 {sN}, {sN}, 1"); A(f"s_add_u32 {sSLOT}, {sSLOT}, {SLOT}")
        A(f"s_cmp_eq_u32 {sSLOT}, {RING}"); A(f"s_cselect_b32 {sSLOT}, 0, {sSLOT}")
    def spin_guard(): A(f"s_sub_u32 {sSPIN}, {sSPIN}, 1"); A("s_cbranch_scc1 L_end")
    def one_lane(ins): A("s_mov_b64 exec, 1"); A(ins); A("s_mov_b64 exec, -1")
    def share_consts():
        A(f"s_sub_u32 {sT0}, {sROLE}, 8"); A(f"s_lshl_b32 {sIDX}, {sG}, 1"); A(f"s_add_u32 {sIDX}, {sIDX}, {sT0}")
        A(f"s_cmp_lt_u32 {sT0}, 2"); A(f"s_cselect_b32 {sIDX}, {sIDX}, 99")
        A(f"s_cselect_b32 {sNS}, {NS-4}, {NS}"); A(f"s_cmp_lt_u32 {sROLE}, 4"); A(f"s_cselect_b32 {sNS}, {NS-2}, {sNS}")
        A(f"s_cmp_lt_u32 {sIDX}, 28"); A(f"s_cselect_b32 {sPK}, 0, {park}")
    def make_tag(dst, e): A(f"s_mul_i32 {dst}, {e}, 0x9e3779b1"); A(f"s_add_u32 {dst}, {dst}, 0x7f4a7c15")
    pads = []
    def pad(name):
        sk = lab("padskip"); A(f"s_branch {sk}"); E.label(f"L_pad_{name}"); A(f"s_branch L_ret_{name}"); E.label(sk)
    def touch_pad(name): A(f"s_branch L_pad_{name}"); E.label(f"L_ret_{name}")

    A(f"s_cmp_ge_u32 {sWG}, 256"); A("s_cbranch_scc1 L_end")
    stamp(0)
    A("s_load_dwordx16 s[4:19], s[0:1], 0"); A("s_load_dwordx4 s[20:23], s[0:1], 64"); A("s_load_dwordx2 s[24:25], s[0:1], 80")
    A("v_lshrrev_b32 v1, 6, v0"); A("v_and_b32 v0, 63, v0"); A(f"v_readfirstlane_b32 {sWAVE}, v1")
    A(f"s_lshr_b32 {sG}, {sWG}, 4"); A(f"s_and_b32 {sJ}, {sWG}, 15")
    A(f"s_lshr_b32 {sT0}, {sJ}, 1"); A(f"s_and_b32 {sT0}, {sT0}, 4"); A(f"s_and_b32 {sROLE}, {sJ}, 3"); A(f"s_add_u32 {sROLE}, {sROLE}, {sT0}")
    A(f"s_sub_u32 {sROLE}, {sROLE}, {sG}"); A(f"s_and_b32 {sROLE}, {sROLE}, 7")
    A(f"s_add_u32 {sT0}, {sROLE}, 4"); A(f"s_add_u32 {sT1}, {sROLE}, 8"); A(f"s_cmp_lt_u32 {sROLE}, 4"); A(f"s_cselect_b32 {sROLE}, {sROLE}, {sT1}")
    A(f"s_bitcmp1_b32 {sJ}, 2"); A(f"s_cselect_b32 {sROLE}, {sROLE}, {sT0}")
    A(f"s_mov_b32 {sN}, 0"); A(f"s_mov_b64 s[32:33], 0"); A(f"s_mov_b32 {sCI}, 0"); A(f"s_mov_b32 {sSPIN}, {spin}")
    A(f"v_mov_b32 v3, {L_FLAG}"); A(f"v_lshl_add_u32 v1, v0, 2, v3"); A("v_mov_b32 v2, 0")
    A("s_mov_b64 exec, 2"); A("v_bfrev_b32 v2, -2"); A("s_mov_b64 exec, 0x1ff"); A("ds_write_b32 v1, v2"); A("s_mov_b64 exec, -1")
    A(f"v_lshrrev_b32 v1, 5, v0"); A(f"v_mul_u32_u24 v1, 896, v1"); A(f"v_and_b32 v2, 31, v0"); A(f"v_lshl_add_u32 v{vLW1}, v2, 2, v1")
    A("s_waitcnt lgkmcnt(0)")
    A("s_barrier")
    A(f"s_cmp_eq_u32 {sWAVE}, 0"); A("s_cbranch_scc1 L_loader")
    A(f"s_load_dword {sE}, {pWS}, {WS_E}")
    A(f"s_cmp_ge_u32 {sROLE}, 4"); A("s_cbranch_scc1 L_consumer")
    for u in range(7): A(f"global_load_dword v{xr1[u]}, v{vLW1}, {pX} offset:{u*128}")
    A("s_branch L_qprod")

    def publish(back):
        A(f"s_sub_u32 {sT0}, {sN}, {back}"); A(f"s_max_i32 {sT0}, {sT0}, {sFLOOR}")
        A(f"v_mov_b32 v{vTMP}, {sT0}"); one_lane(f"ds_write_b32 v{vFL}, v{vTMP}")
    def throttle(i, W=W):
        if i % grp == grp-1:
            A(f"s_waitcnt vmcnt({W})")
            if i+1+16 >= W and (i+1-grp+16 < W or i < grp): publish(1)
    def tile_rows(specs, pol=pol, W=W):
        for i,(srd,vo,so) in enumerate(specs):
            if i % 4 == 0:
                A(f"s_add_u32 m0, {sSLOT}, {i*1024}" if i else f"s_mov_b32 m0, {sSLOT}")
                A(f"s_add_u32 {sOFF}, {sBASE}, {so}" if so else f"s_mov_b32 {sOFF}, {sBASE}")
            A(f"buffer_load_dwordx4 v{vo}, {srd}, {sOFF} offen offset:{(i%4)*1024} {pol} lds")
            throttle(i, W)
        slot_advance()
    def tile_tall(rowstride, t, nvalid):
        for i in range(16):
            A(f"s_add_u32 m0, {sSLOT}, {i*1024}" if i else f"s_mov_b32 m0, {sSLOT}")
            A(f"s_add_u32 {sOFF}, {sBASE}, {(t*128+i*8)*rowstride}")
            A(f"buffer_load_dwordx4 v{vT[i&1]}, {srdW if i < nvalid else srdZ}, {sOFF} offen {pol} lds")
            throttle(i)
        slot_advance()
    def tile_wide(pol=pol):
        tile_rows([(srdW if i < 14 else srdZ, vLIN, i*1024) for i in range(16)], pol)
        A(f"s_add_u32 {sBASE}, {sBASE}, 14336")
    def tall_voffs(stride):
        A("v_lshrrev_b32 v1, 3, v0"); A("v_and_b32 v2, 7, v0"); A("v_and_b32 v3, 2, v1"); A("v_xor_b32 v2, v2, v3"); A("v_lshlrev_b32 v2, 4, v2")
        A(f"v_mul_u32_u24 v3, {stride}, v1"); A(f"v_add_u32 v{vT[0]}, v3, v2"); A("v_xor_b32 v2, 64, v2"); A(f"v_add_u32 v{vT[1]}, v3, v2")
    def freecheck(k):
        ok = lab("free"); lp = lab("freepoll")
        A(f"s_add_u32 {sT0}, {sKNOWN}, {NSLOT-k}"); A(f"s_cmp_ge_u32 {sT0}, {sN}"); A(f"s_cbranch_scc1 {ok}")
        E.label(lp)
        A(f"ds_read_b128 {Q4(vC)}, v{vFL} offset:16")
        spin_guard()
        A("s_waitcnt lgkmcnt(0)")
        A(f"v_min3_u32 v{vC}, v{vC}, v{vC+1}, v{vC+2}"); A(f"v_min_u32 v{vC}, v{vC}, v{vC+3}")
        A(f"v_readfirstlane_b32 {sKNOWN}, v{vC}")
        A(f"s_add_u32 {sT0}, {sKNOWN}, {NSLOT-k}"); A(f"s_cmp_ge_u32 {sT0}, {sN}"); A(f"s_cbranch_scc1 {ok}")
        A("s_sleep 1"); A(f"s_branch {lp}")
        E.label(ok)
    def claim(p):
        one_lane(f"global_atomic_add v{vCL[p]}, v{vCA}, v{vONE}, {pWS} sc0")

    E.label("L_loader")
    A("s_setprio 3")
    A(f"v_mov_b32 v{vFL}, v3"); A(f"v_lshlrev_b32 v{vLIN}, 4, v0"); A(f"s_mov_b32 {sFLOOR}, 0")
    A("s_mov_b32 s50, 3670016"); A("s_mov_b32 s51, 0x20000")
    A(f"s_mov_b64 s[52:53], s[{pK[0]}:{pK[1]}]"); A("s_mov_b32 s54, 0"); A("s_mov_b32 s55, 0x20000")
    A(f"s_cmp_ge_u32 {sROLE}, 4"); A("s_cbranch_scc1 L_ld_noq")
    tall_voffs(8192)
    A(f"s_mov_b64 s[48:49], s[{pWQ[0]}:{pWQ[1]}]")
    A(f"s_and_b32 {sOFF}, {sG}, 7"); A(f"s_lshl_b32 {sOFF}, {sOFF}, 3"); A(f"s_lshr_b32 {sT0}, {sG}, 3"); A(f"s_lshl_b32 {sT0}, {sT0}, 2")
    A(f"s_add_u32 {sOFF}, {sOFF}, {sT0}"); A(f"s_add_u32 {sOFF}, {sOFF}, {sROLE}"); A(f"s_lshl_b32 {sOFF}, {sOFF}, 7")
    A("s_mov_b32 m0, 0")
    E.label("L_ld_q")
    for i in range(2):
        A(f"buffer_load_dwordx4 v{vT[i]}, {srdW}, {sOFF} offen {pol} lds")
        A(f"s_add_u32 {sOFF}, {sOFF}, {8*8192}"); A("s_add_u32 m0, m0, 1024")
    A(f"s_cmp_lt_u32 m0, {56*1024}"); A("s_cbranch_scc1 L_ld_q")
    A(f"s_mov_b32 {sN}, 4"); A(f"s_mov_b32 {sSLOT}, {4*SLOT}"); A(f"s_mov_b32 {sFLOOR}, 4")
    A(f"v_mov_b32 v{vTMP}, 4"); A("s_waitcnt vmcnt(0)"); one_lane(f"ds_write_b32 v{vFL}, v{vTMP}")
    E.label("L_ld_noq")
    if forcepar is None:
        A(f"s_cmp_eq_u32 {sWG}, {15*16 + 3}"); A("s_cbranch_scc1 L_probe")
    E.label("L_ld_wo")
    A("v_lshrrev_b32 v1, 5, v0"); A("v_and_b32 v2, 31, v0")
    A("v_lshlrev_b32 v3, 1, v1"); A("v_xor_b32 v3, v2, v3"); A("v_lshlrev_b32 v3, 4, v3"); A("v_lshl_or_b32 v3, v1, 9, v3")
    for i in range(4): A(f"v_xor_b32 v{vV[i]}, {i*64}, v3")
    A(f"s_mov_b64 s[44:45], s[{pV[0]}:{pV[1]}]"); A("s_mov_b32 s46, 0x10000000"); A("s_mov_b32 s47, 0x20000")
    A(f"s_lshl_b32 {sGB}, {sWG}, 20")
    share_consts()
    A(f"s_cmp_lt_u32 {sIDX}, 28"); A(f"s_cbranch_scc1 L_ld_ffn")
    A(f"s_mov_b32 {sBASE}, {sGB}"); A(f"s_add_u32 {sT2}, {sN}, {park}")
    E.label("L_ld_pv")
    tile_rows([(srdV, vV[i%4], i*1024) for i in range(16)])
    A(f"s_add_u32 {sBASE}, {sBASE}, 16384")
    A(f"s_cmp_lt_u32 {sN}, {sT2}"); A("s_cbranch_scc1 L_ld_pv")
    E.label("L_ld_head_done")
    A("v_lshrrev_b32 v1, 5, v0"); A("v_and_b32 v2, 31, v0")
    A("v_xor_b32 v3, v2, v1"); A("v_lshlrev_b32 v3, 4, v3"); A("v_lshl_or_b32 v3, v1, 9, v3")
    for i in range(8): A(f"v_xor_b32 v{vK[i]}, {i*32}, v3")
    A(f"s_lshl_b32 {sGB}, {sG}, 24")
    A(f"s_lshl_b32 {sT0}, {sG}, 8"); A(f"s_add_u32 {sT0}, {sT0}, {WS_CNT}"); A(f"v_mov_b32 v{vCA}, {sT0}"); A(f"v_mov_b32 v{vONE}, 1")
    A(f"s_mov_b64 s[40:41], s[{pK[0]}:{pK[1]}]"); A("s_mov_b32 s42, 0x10000000"); A("s_mov_b32 s43, 0x20000")
    def ldstamps(list_, k0):
        if not diag: return
        for k,c in enumerate(list_):
            sk=lab("ls"); A(f"s_cmp_lg_u32 {sCI}, {c}"); A(f"s_cbranch_scc1 {sk}"); A(f"s_memrealtime s[{72+2*(k0+k)}:{73+2*(k0+k)}]"); A("s_waitcnt lgkmcnt(0)"); E.label(sk)
    A(f"s_lshl_b32 {sBASE}, {sWG}, 20")
    E.label("L_ld_loop")
    ldstamps((0,4,8,16,32,NS-5), 0)
    freecheck(1)
    tile_rows([(srdK, vK[i%8], i*1024) for i in range(16)])
    A(f"s_add_u32 {sBASE}, {sBASE}, 16384")
    A(f"s_add_u32 {sCI}, {sCI}, 1"); A(f"s_cmp_lt_u32 {sCI}, {sNS}"); A("s_cbranch_scc1 L_ld_loop")
    A(f"s_mov_b32 {sCI}, {sPK}"); A(f"s_lshl_b32 {sBASE}, {sWG}, 6"); A(f"s_add_u32 {sBASE}, {sBASE}, {sPK}"); A(f"s_lshl_b32 {sBASE}, {sBASE}, 14")
    E.label("L_ld_vloop")
    ldstamps((8,40,NS-5), 6)
    freecheck(1)
    A(f"s_add_u32 {sCI}, {sCI}, 1"); A(f"s_add_u32 {sT0}, {sCI}, 1"); A(f"s_cmp_lt_u32 {sT0}, {sNS}"); A("s_cbranch_scc1 L_ld_nocl")
    A(f"s_cmp_eq_u32 {sCI}, {sNS}"); A("s_cbranch_scc1 L_ld_cl1")
    claim(0); A("s_branch L_ld_nocl")
    E.label("L_ld_cl1")
    claim(1)
    E.label("L_ld_nocl")
    tile_rows([(srdV, vV[i%4], i*1024) for i in range(16)])
    A(f"s_add_u32 {sBASE}, {sBASE}, 16384")
    A(f"s_cmp_lt_u32 {sCI}, {sNS}"); A("s_cbranch_scc1 L_ld_vloop")
    E.label("L_ld_dyn")
    for p in range(2):
        A(f"v_readfirstlane_b32 {sCLM}, v{vCL[p]}")
        A(f"s_cmp_ge_u32 {sCLM}, {POOL}"); A("s_cbranch_scc1 L_ld_dyn_done")
        A(f"s_cmp_lt_u32 {sCLM}, {EXTRA}"); A(f"s_cbranch_scc1 L_ld_shed{p}")
        A(f"s_sub_u32 {sCLM}, {sCLM}, {EXTRA}")
        A(f"s_mul_hi_u32 {sT0}, {sCLM}, {-(-(1<<32)//TL)}"); A(f"s_mul_i32 {sT0}, {sT0}, {2*NS}"); A(f"s_add_u32 {sCUR}, {sCLM}, {sT0}"); A(f"s_add_u32 {sCUR}, {sCUR}, {2*NS}")
        E.label(f"L_ld_unit{p}")
        freecheck(1)
        claim(p)
        A(f"s_lshr_b32 {sBASE}, {sCUR}, 1"); A(f"s_lshl_b32 {sBASE}, {sBASE}, 14"); A(f"s_and_b32 {sT0}, {sCUR}, 1"); A(f"s_lshl_b32 {sT0}, {sT0}, 12")
        A(f"s_add_u32 {sBASE}, {sBASE}, {sT0}"); A(f"s_add_u32 {sBASE}, {sBASE}, {sGB}")
        tile_rows([(srdK, vK[i], i*2048) for i in range(8)] + [(srdV, vV[i%4], i*2048) for i in range(8)], W=WD or W)
    A("s_branch L_ld_dyn")
    E.label("L_ld_dyn_done")
    A(f"v_mov_b32 v{vTMP}, {sN}"); one_lane(f"ds_write_b32 v{vFL}, v{vTMP} offset:4")
    A(f"s_mov_b64 s[48:49], s[{pWO[0]}:{pWO[1]}]"); A("s_mov_b32 s50, 3670016")
    A(f"s_and_b32 {sBASE}, {sWG}, 127"); A(f"s_mul_i32 {sBASE}, {sBASE}, {32*896}")
    freecheck(2)
    k = 0
    for t in range(2):
        for i in range(14):
            if i % 4 == 0:
                A(f"s_add_u32 m0, {sSLOT}, {i*1024}" if i else f"s_mov_b32 m0, {sSLOT}")
                A(f"s_add_u32 {sOFF}, {sBASE}, {t*14336+i*1024}")
            if k == wpre[0]: A(f"s_waitcnt vmcnt({16+k})"); publish(1+t)
            if k == wpre[1]: A(f"s_waitcnt vmcnt({k})"); publish(t)
            A(f"buffer_load_dwordx4 v{vLIN}, {srdW}, {sOFF} offen offset:{(i%4)*1024} lds")
            k += 1
        slot_advance()
    for c,back in ((14,1),(0,0)):
        A(f"s_waitcnt vmcnt({c})"); publish(back)
    if diag:
        A("s_mov_b64 exec, 1"); A("s_memrealtime s[90:91]")
        A(f"s_lshl_b32 {sT0}, {sWG}, 6"); A(f"s_add_u32 {sT0}, {sT0}, {WS_ST+0x40000}"); A(f"v_mov_b32 v46, {sT0}")
        A("s_waitcnt lgkmcnt(0)")
        for k in range(11): A(f"v_mov_b32 v{32+k}, s{70+2*k}")
        A(f"v_mov_b32 v43, {sSPIN}")
        for q in range(3): A(f"global_store_dwordx4 v46, v[{32+4*q}:{35+4*q}], {pWS} offset:{q*16}")
    A("s_waitcnt lgkmcnt(0)")
    A("s_endpgm")
    for p in range(2):
        E.label(f"L_ld_shed{p}")
        A(f"s_lshr_b32 {sT0}, {sCLM}, 3"); A(f"s_add_u32 {sT0}, {sT0}, 4"); A(f"s_and_b32 {sT1}, {sCLM}, 7"); A(f"s_add_u32 {sT1}, {sT1}, {2*(NS-4)}")
        A(f"s_bfe_u32 {sT2}, {sCLM}, 0x20002"); A(f"s_and_b32 {sCUR}, {sCLM}, 3"); A(f"s_add_u32 {sCUR}, {sCUR}, {2*(NS-2)+4*128}")
        A(f"s_cmp_lt_u32 {sCLM}, 16"); A(f"s_cselect_b32 {sT0}, {sT0}, {sT2}"); A(f"s_cselect_b32 {sCUR}, {sT1}, {sCUR}")
        A(f"s_add_u32 {sT0}, {sT0}, {sG}"); A(f"s_and_b32 {sT1}, {sT0}, 3"); A(f"s_bfe_u32 {sT0}, {sT0}, 0x10002"); A(f"s_lshl_b32 {sT0}, {sT0}, 3"); A(f"s_add_u32 {sT0}, {sT0}, {sT1}")
        A(f"s_lshl_b32 {sT0}, {sT0}, 7"); A(f"s_add_u32 {sCUR}, {sCUR}, {sT0}")
        A(f"s_branch L_ld_unit{p}")

    def SEL4(dst, a, b, c, d, t):
        A(f"v_cndmask_b32 v{dst}, v{a}, v{b}, {sM1}"); A(f"v_cndmask_b32 v{t}, v{c}, v{d}, {sM1}"); A(f"v_cndmask_b32 v{dst}, v{dst}, v{t}, {sM2}")
    def xrow(op, regs, tmps):
        for sw in ("v_permlane16_swap_b32","v_permlane32_swap_b32"):
            for r,t in zip(regs,tmps): A(f"v_mov_b32 v{t}, v{r}")
            for r,t in zip(regs,tmps): A(f"{sw} v{r}, v{t}")
            for r,t in zip(regs,tmps): A(f"{op} v{r}, v{r}, v{t}")
    def round_bf(dst, src): A(f"v_cvt_pk_bf16_f32 v{dst}, v{src}, v{src}"); A(f"v_and_b32 v{dst}, 0xffff0000, v{dst}")
    def unpack(lo, hi, src): A(f"v_lshlrev_b32 v{lo}, 16, v{src}"); A(f"v_and_b32 v{hi}, 0xffff0000, v{src}")
    def pub_cons():
        slot_advance()
        A(f"v_mov_b32 v{vTM}, {sN}"); one_lane(f"ds_write_b32 v{vCONS}, v{vTM}")
    def wait_tile(fin=None):
        ok = lab("have"); lp = lab("poll")
        if fin: A(f"s_cmp_eq_u32 {sTOT}, {sN}"); A(f"s_cbranch_scc1 {fin}")
        A(f"s_cmp_gt_u32 {sKNOWN}, {sN}"); A(f"s_cbranch_scc1 {ok}")
        E.label(lp)
        A(f"ds_read_b64 {P(vAD[0])}, v{vFLG}")
        spin_guard()
        A("s_waitcnt lgkmcnt(0)")
        A(f"v_readfirstlane_b32 {sKNOWN}, v{vAD[0]}"); A(f"v_readfirstlane_b32 {sTOT}, v{vAD[1]}")
        if fin:
            nw = lab("nw")
            A(f"s_cmp_ge_u32 {sTOT}, {sWRM}"); A(f"s_cbranch_scc1 {nw}")
            A(f"s_mov_b32 {sWRM}, 0"); A(f"global_load_dword v{vX+2}, v{vX+3}, {pWS} {ldf}")
            E.label(nw)
            A(f"s_cmp_eq_u32 {sTOT}, {sN}"); A(f"s_cbranch_scc1 {fin}")
        A(f"s_cmp_gt_u32 {sKNOWN}, {sN}"); A(f"s_cbranch_scc1 {ok}")
        if nap or not fin: A("s_sleep 1")
        A(f"s_branch {lp}")
        E.label(ok)
    def poll(loads, tags, first_mask=None, issued=False):
        lp = lab("gpoll"); n = len(loads)
        chk = lab("gchk")
        if issued: A(f"s_branch {chk}")
        else:
            for i in range(n): A(f"s_mov_b64 {sCK[i]}, {first_mask[i] if first_mask else -1}")
        E.label(lp)
        for i,l in enumerate(loads):
            sk = lab("sk")
            A(f"s_mov_b64 exec, {sCK[i]}"); A(f"s_cbranch_execz {sk}"); A(l); E.label(sk)
        A("s_mov_b64 exec, -1")
        spin_guard()
        if issued: E.label(chk)
        A("s_waitcnt vmcnt(0)")
        for i in range(n):
            A(f"v_cmp_ne_u32 {sCK[i]}, {sTAG}, v{tags[i][0]}")
            for t in tags[i][1:]:
                A(f"v_cmp_ne_u32 vcc, {sTAG}, v{t}"); A(f"s_or_b64 {sCK[i]}, {sCK[i]}, vcc")
        A(f"s_or_b64 vcc, {sCK[0]}, {sCK[min(1,n-1)]}")
        for i in range(2, n): A(f"s_or_b64 vcc, vcc, {sCK[i]}")
        A(f"s_cbranch_scc1 {lp}")
    def layernorm(xr, f, lnbase, stride, mid=None):
        s1=vTM; t=vTM2; mu=vX; a=vX+2; b=vX+4
        for u in range(7): unpack(f+2*u, f+2*u+1, xr[u])
        A(f"v_pk_add_f32 {P(a)}, {P(f)}, {P(f+2)}"); A(f"v_pk_add_f32 {P(b)}, {P(f+4)}, {P(f+6)}")
        A(f"v_pk_add_f32 {P(a)}, {P(a)}, {P(f+8)}"); A(f"v_pk_add_f32 {P(b)}, {P(b)}, {P(f+10)}")
        A(f"v_pk_add_f32 {P(a)}, {P(a)}, {P(f+12)}"); A(f"v_pk_add_f32 {P(a)}, {P(a)}, {P(b)}")
        A(f"v_add_f32 v{s1}, v{a}, v{a+1}")
        red32 = [f"v_add_f32_dpp v{s1}, v{s1}, v{s1} row_ror:{k} row_mask:0xf bank_mask:0xf" for k in (8,4,2,1)]
        red32 += [f"v_mov_b32 v{t}, v{s1}", f"v_permlane16_swap_b32 v{s1}, v{t}", f"v_add_f32 v{s1}, v{s1}, v{t}"]
        for l in red32: A(l)
        A(f"v_mul_f32 v{mu}, {INV448:#x}, v{s1}")
        NEG = "op_sel_hi:[1,0] neg_lo:[0,1] neg_hi:[0,1]"
        A(f"v_pk_add_f32 {P(b)}, {P(f)}, {P(mu)} {NEG}")
        A(f"v_pk_mul_f32 {P(a)}, {P(b)}, {P(b)}")
        for u in range(1,7):
            A(f"v_pk_add_f32 {P(b)}, {P(f+2*u)}, {P(mu)} {NEG}")
            A(f"v_pk_fma_f32 {P(a)}, {P(b)}, {P(b)}, {P(a)}")
        A(f"v_add_f32 v{s1}, v{a}, v{a+1}")
        round_bf(mu, mu)
        fill = [f"v_pk_add_f32 {P(f+2*u)}, {P(f+2*u)}, {P(mu)} {NEG}" for u in range(7)] + [f"v_cvt_pk_bf16_f32 v{xr[u]}, v{f+2*u}, v{f+2*u+1}" for u in range(7)]
        for u in range(7): fill += [f"v_lshlrev_b32 v{f+2*u}, 16, v{xr[u]}", f"v_and_b32 v{f+2*u+1}, 0xffff0000, v{xr[u]}"]
        rb = [f"v_cvt_pk_bf16_f32 v{s1}, v{s1}, v{s1}", f"v_and_b32 v{s1}, 0xffff0000, v{s1}"]
        chain = red32 + [f"v_mul_f32 v{s1}, {INV448:#x}, v{s1}"] + rb + [f"v_add_f32 v{s1}, {EPS:#x}, v{s1}"] + rb + [f"v_sqrt_f32 v{s1}, v{s1}"] + rb + [f"v_rcp_f32 v{a}, v{s1}"]
        while chain or fill:
            for _ in range(2):
                if fill: A(fill.pop(0))
            if chain: A(chain.pop(0))
        if mid: mid()
        for u in range(7): A(f"v_pk_mul_f32 {P(f+2*u)}, {P(f+2*u)}, {P(a)} op_sel_hi:[1,0]")
        for u in range(7):
            A(f"v_cvt_pk_bf16_f32 v{xr[u]}, v{f+2*u}, v{f+2*u+1}")
            A(f"ds_write_b32 v{lnbase}, v{xr[u]} offset:{u*stride}")
    def ln_read_addr(rd, base):
        A(f"v_and_b32 v{rd}, 1, v{vLANE}"); A(f"v_mul_u32_u24 v{rd}, 896, v{rd}")
        A(f"v_lshl_add_u32 v{rd}, v{vG4}, 4, v{rd}"); A(f"v_add_u32 v{rd}, {base}, v{rd}")
    def tall_addr(dst):
        A(f"v_lshrrev_b32 v{vTM}, 3, v{vN}")
        A(f"v_and_b32 v{vTM2}, 1, v{vG4}"); A(f"v_lshl_or_b32 v{vTM}, v{vTM2}, 1, v{vTM}")
        A(f"v_xor_b32 v{vTM}, {sW}, v{vTM}"); A(f"v_lshlrev_b32 v{vTM}, 5, v{vTM}")
        A(f"v_and_b32 v{vTM2}, 3, v{vN}"); A(f"v_lshl_or_b32 v{vTM}, v{vTM2}, 3, v{vTM}")
        A(f"v_lshrrev_b32 v{vTM2}, 2, v{vN}"); A(f"v_lshl_or_b32 v{vTM}, v{vTM2}, 7, v{vTM}")
        A(f"v_lshl_or_b32 v{dst}, v{vG4}, 10, v{vTM}")
    def wide_addr(dst):
        A(f"v_lshrrev_b32 v{vTM}, 2, v{vN}"); A(f"v_lshl_add_u32 v{vTM}, v{vG4}, 2, v{vTM}"); A(f"v_mul_u32_u24 v{vTM}, 896, v{vTM}")
        A(f"v_and_b32 v{vTM2}, 3, v{vN}"); A(f"v_lshl_add_u32 v{vTM}, v{vTM2}, 3, v{vTM}")
        A(f"s_mul_i32 {sT0}, {sW}, 224"); A(f"v_add_u32 v{dst}, {sT0}, v{vTM}")
    def read_tall_tile(base, dstreg, t):
        wait_tile()
        A(f"v_add_u32 v{vAD[0]}, {sSLOT}, v{base}")
        for s in range(4 if t < 3 else 2):
            for h2 in range(2):
                A(f"ds_read_b64_tr_b16 {P(dstreg + 4*(4*t+s) + 2*h2)}, v{vAD[0]} offset:{s*4096+h2*512}")
        A("s_waitcnt lgkmcnt(0)")
        pub_cons()
    def read_wide_tile(base, dstreg, half):
        wait_tile()
        A(f"v_add_u32 v{vAD[0]}, {sSLOT}, v{base}")
        for tt in range(7): A(f"ds_read_b64_tr_b16 {P(dstreg + 4*tt + 2*half)}, v{vAD[0]} offset:{tt*32}")
        A("s_waitcnt lgkmcnt(0)")
        pub_cons()
    def basic_setup():
        A(f"s_sub_u32 {sW}, {sWAVE}, 1"); A(f"s_lshr_b32 {sB}, {sG}, 3"); A(f"s_and_b32 {sHKV}, {sG}, 7")
        A(f"v_and_b32 v{vN}, 15, v{vLANE}"); A(f"v_lshrrev_b32 v{vG4}, 4, v{vLANE}")
        A(f"s_lshl_b32 {sT0}, {sW}, 2"); A(f"s_add_u32 {sT0}, {sT0}, {L_CONS}"); A(f"v_mov_b32 v{vCONS}, {sT0}")
        A("s_mov_b32 s42, 0xffff0000"); A("s_mov_b32 s43, s42")

    if align: A(".p2align 12")
    E.label("L_qprod")
    f14 = vWO+8; vLR = vWO+25; vTA = vWO+26; vQA = vWO+27
    basic_setup()
    A(f"s_or_b32 {sT0}, {sROLE}, {sW}"); A(f"s_cmp_lg_u32 {sT0}, 0"); A("s_cbranch_scc1 L_noinit")
    A(f"s_lshl_b32 {sT0}, {sG}, 8"); A(f"s_add_u32 {sT0}, {sT0}, {WS_CNT}")
    A(f"v_mov_b32 v{vTM2}, {sT0}"); A(f"v_mov_b32 v{vTM3}, 0")
    one_lane(f"global_store_dword v{vTM2}, v{vTM3}, {pWS} {stf}")
    E.label("L_noinit")
    A(f"v_add_u32 v{vLW1}, {L_LN}, v{vLW1}")
    ln_read_addr(vLR, L_LN)
    tall_addr(vTA)
    A(f"s_lshl_b32 {sT0}, {sB}, 2"); A(f"s_add_u32 {sT0}, {sT0}, {sROLE}"); A(f"s_lshl_b32 {sT0}, {sT0}, 2"); A(f"s_add_u32 {sT0}, {sT0}, {sW}")
    A(f"s_lshl_b32 {sT0}, {sT0}, 6"); A(f"s_lshl_b32 {sT1}, {sHKV}, 11"); A(f"s_add_u32 {sT0}, {sT0}, {sT1}"); A(f"s_add_u32 {sT0}, {sT0}, {WS_Q}")
    A(f"v_lshlrev_b32 v{vQA}, 2, v{vN}"); A(f"v_lshl_add_u32 v{vQA}, v{vG4}, 14, v{vQA}"); A(f"v_add_u32 v{vQA}, {sT0}, v{vQA}")
    if qtouch: touch_pad("q")
    A("s_waitcnt vmcnt(0) lgkmcnt(0)")
    stamp(12)
    layernorm(xr1, f14, vLW1, 128, mid=(lambda: pad("q")) if qtouch else None)
    make_tag(sTAG, sE); A(f"v_mov_b32 v{vX+1}, {sTAG}")
    A("s_waitcnt lgkmcnt(0)")
    stamp(13)
    for s in range(14): A(f"ds_read_b128 {Q4(vW2+4*s)}, v{vLR} offset:{s*64}")
    A(f"s_mov_b32 {sN}, 3"); wait_tile()
    stamp(14)
    for s in range(14):
        for h2 in range(2): A(f"ds_read_b64_tr_b16 {P(vW1 + 4*s + 2*h2)}, v{vTA} offset:{s*4096+h2*512}")
        if s % 4 == 3 or s == 13:
            A(f"s_waitcnt lgkmcnt(0)")
            for k in range(s - s % 4, s+1):
                A(f"v_mfma_f32_16x16x32_bf16 {Q4(vS)}, {Q4(vW2+4*k)}, {Q4(vW1+4*k)}, {'0' if k==0 else Q4(vS)}")
    A(f"s_mov_b32 {sSLOT}, {3*SLOT}"); pub_cons()
    A(f"v_cndmask_b32 v{vTM}, v{vS}, v{vS+1}, {sM1}")
    A(f"v_mov_b32_dpp v{vTM2}, v{vTM} quad_perm:[1,0,3,2] row_mask:0xf bank_mask:0xf")
    A(f"v_cvt_pk_bf16_f32 v{vX}, v{vTM}, v{vTM2}")
    A("s_mov_b64 exec, 0x55555555")
    A(f"global_store_dwordx2 v{vQA}, {P(vX)}, {pWS} {stf}")
    A("s_mov_b64 exec, -1")
    stamp(1)

    E.label("L_consumer")
    basic_setup()
    share_consts()
    A("s_mov_b32 s44, 0"); A("s_mov_b32 s45, -1"); A(f"s_mov_b32 {sC}, {C_SCALE:#x}"); A("s_mov_b32 s66, -1"); A("s_mov_b32 s67, 0"); A(f"s_mov_b32 {sTOT}, 0x7fffffff"); A(f"s_mov_b32 {sKNOWN}, 0")
    if hilo: A("s_mov_b32 s64, 0xcccccccc"); A("s_mov_b32 s65, 0xcccccccc")
    stamp(11)
    A(f"s_sub_u32 {sT0}, {sROLE}, 4"); A(f"s_lshl_b32 {sRR}, {sG}, 2"); A(f"s_add_u32 {sRR}, {sRR}, {sT0}")
    A(f"s_cmp_lt_u32 {sT0}, 4"); A(f"s_cselect_b32 {sRR}, {sRR}, 99"); A("s_cbranch_scc0 L_nox")
    A(f"s_bfe_u32 {sT0}, {sRR}, 0x20003"); A(f"s_mul_i32 {sCOL}, {sT0}, 224")
    A(f"s_bfe_u32 {sGP}, {sRR}, 0x20001"); A(f"s_lshl_b32 {sT0}, {sGP}, 6"); A(f"s_add_u32 {sCOL}, {sCOL}, {sT0}")
    A(f"s_and_b32 {sT0}, {sRR}, 1"); A(f"s_lshl_b32 {sT0}, {sT0}, 4"); A(f"s_add_u32 {sCOL}, {sCOL}, {sT0}")
    A(f"s_bfe_u32 {sT0}, {sRR}, 0x10005"); A(f"s_mul_i32 {sT0}, {sT0}, 896"); A(f"s_add_u32 {sCOL}, {sCOL}, {sT0}")
    A(f"v_and_b32 v{vTM}, 6, v{vLANE}"); A(f"v_lshl_add_u32 v{vTM}, v{vTM}, 1, {sCOL}")
    A(f"global_load_dword v{vXH}, v{vTM}, {pX}")
    A(f"v_mov_b32 v{vXH+1}, 0")
    A(f"s_cmp_eq_u32 {sGP}, 3"); A("s_cbranch_scc1 L_nox")
    A(f"global_load_dword v{vXH+1}, v{vTM}, {pX} offset:32")
    E.label("L_nox")
    A(f"v_xor_b32 v{vTM}, v{vG4}, v{vN}"); A(f"v_lshlrev_b32 v{vTM}, 4, v{vTM}"); A(f"v_lshl_or_b32 v{vTM}, v{vN}, 9, v{vTM}")
    for s in range(4): A(f"v_xor_b32 v{vKB[s]}, {s*64}, v{vTM}")
    A(f"v_lshrrev_b32 v{vTM}, 2, v{vN}"); A(f"v_lshl_add_u32 v{vTM}, v{vG4}, 2, v{vTM}")
    A(f"v_and_b32 v{vTM2}, 7, v{vTM}")
    A(f"s_lshl_b32 {sT0}, {sW}, 2"); A(f"v_xor_b32 v{vTM2}, {sT0}, v{vTM2}"); A(f"v_lshlrev_b32 v{vTM2}, 5, v{vTM2}")
    A(f"v_lshl_or_b32 v{vTM}, v{vTM}, 9, v{vTM2}")
    A(f"v_and_b32 v{vTM2}, 3, v{vN}"); A(f"v_lshl_or_b32 v{vTM}, v{vTM2}, 3, v{vTM}")
    for e in range(4): A(f"v_xor_b32 v{vVB[e]}, {e*32}, v{vTM}")
    A(f"v_mov_b32 v{vM}, 0xff800000"); A(f"v_mov_b32 v{vMC}, v{vM}"); A(f"v_mov_b32 v{vL}, 0")
    for i in range(16): A(f"v_mov_b32 v{vO+i}, 0")
    A(f"s_cmp_lt_u32 {sIDX}, 28"); A("s_cbranch_scc1 L_ffn_w")
    def vtile_read(dst):
        for e in range(4): A(f"v_add_u32 v{vAD[e]}, {sSLOT}, v{vVB[e]}")
        for e in range(4):
            for h2 in range(2): A(f"ds_read_b64_tr_b16 {P(dst + 4*e + 2*h2)}, v{vAD[e]} offset:{h2*8192}")
    for p in range(park):
        wait_tile(); vtile_read(vW1+16*p); A("s_waitcnt lgkmcnt(0)"); pub_cons()
    E.label("L_ffn_w_done")
    make_tag(sTAG, sE)
    A(f"s_cmp_lg_u32 {sW}, 0"); A("s_cbranch_scc1 L_q_flag")
    if qwait:
        A(f"s_add_u32 {sN}, {sN}, {qwait-1}"); wait_tile(); A(f"s_sub_u32 {sN}, {sN}, {qwait-1}")
    A(f"s_lshl_b32 {sT0}, {sG}, 11"); A(f"s_add_u32 {sT0}, {sT0}, {WS_Q}")
    A(f"v_lshl_add_u32 v{vTM3}, v{vLANE}, 4, {sT0}")
    poll([f"global_load_dwordx4 {Q4(vF)}, v{vTM3}, {pWS} {ldf}", f"global_load_dwordx4 {Q4(vF+4)}, v{vTM3}, {pWS} offset:1024 {ldf}"],
         [[vF+1, vF+3], [vF+5, vF+7]])
    A(f"v_lshlrev_b32 v{vTM}, 3, v{vLANE}"); A(f"v_add_u32 v{vTM}, {L_QW}, v{vTM}"); A(f"v_mov_b32 v{vTM2}, 1")
    A(f"ds_write2_b32 v{vTM}, v{vF}, v{vF+2} offset0:0 offset1:1"); A(f"ds_write2_b32 v{vTM}, v{vF+4}, v{vF+6} offset0:128 offset1:129")
    one_lane(f"ds_write_b32 v{vFLG}, v{vTM2} offset:32")
    E.label("L_q_flag")
    A(f"ds_read_b32 v{vTM}, v{vFLG} offset:32")
    spin_guard()
    A("s_waitcnt lgkmcnt(0)")
    A(f"v_readfirstlane_b32 {sT0}, v{vTM}")
    A(f"s_cmp_eq_u32 {sT0}, 1"); A("s_cbranch_scc1 L_q_have")
    A("s_sleep 1"); A("s_branch L_q_flag")
    E.label("L_q_have")
    A(f"v_and_b32 v{vTM2}, 1, v{vLANE}"); A(f"v_lshlrev_b32 v{vTM2}, 9, v{vTM2}"); A(f"v_lshl_add_u32 v{vTM2}, v{vG4}, 4, v{vTM2}"); A(f"v_add_u32 v{vTM2}, {L_QW}, v{vTM2}")
    for s in range(8): A(f"ds_read_b128 {Q4(vQ+4*s)}, v{vTM2} offset:{s*64}")
    stamp(2)
    A("s_waitcnt lgkmcnt(0)")

    def qk(nt):
        for s in range(4): A(f"v_add_u32 v{vAD[s]}, {sSLOT}, v{vKB[s]}")
        seq = [(t,s) for s in range(8) for t in range(nt)]; n = len(seq)
        def kread(i):
            t,s = seq[i]; A(f"ds_read_b128 {Q4(vF + 4*(i % NF))}, v{vAD[s&3]} offset:{(s>>2)*256 + t*8192}")
        for i in range(NF): kread(i)
        for i in range(n):
            t,s = seq[i]
            A(f"s_waitcnt lgkmcnt({min(NF-1, n-1-i)})")
            d = Q4(vS+4*t)
            A(f"v_mfma_f32_16x16x32_bf16 {d}, {Q4(vF + 4*(i % NF))}, {Q4(vQ+4*s)}, {'0' if s==0 else d}")
            if i + NF < n: kread(i+NF)
    def probs(nt):
        n = 4*nt
        for i in range(n): A(f"v_fma_f32 v{vS+i}, v{vS+i}, {sC}, -v{vMC}")
        for i in range(n): A(f"v_exp_f32 v{vS+i}, v{vS+i}")
        for i in range(n//2): A(f"v_cvt_pk_bf16_f32 v{vP+i}, v{vS+2*i}, v{vS+2*i+1}")
        if hilo:
            for i in range(n//2):
                t = vF+16+2*(i&1)
                unpack(t, t+1, vP+i)
                A(f"v_pk_add_f32 {P(t)}, {P(vS+2*i)}, {P(t)} neg_lo:[0,1] neg_hi:[0,1]")
                A(f"v_cvt_pk_bf16_f32 v{t}, v{t}, v{t+1}")
                A(f"v_cndmask_b32 v{vP+i}, v{vP+i}, v{t}, s[64:65]")
    def softmax(nt, tag):
        n = 4*nt
        for i in range(n//2): A(f"v_cvt_pk_bf16_f32 v{vP+i}, v{vS+2*i}, v{vS+2*i+1}")
        for i in range(n//2): unpack(vS+2*i, vS+2*i+1, vP+i)
        if nt == 2:
            A(f"v_max3_f32 v{vMX}, v{vS}, v{vS+1}, v{vS+2}"); A(f"v_max3_f32 v{vTM}, v{vS+3}, v{vS+4}, v{vS+5}")
            A(f"v_max3_f32 v{vMX}, v{vMX}, v{vS+6}, v{vS+7}"); A(f"v_max_f32 v{vMX}, v{vMX}, v{vTM}")
        else:
            A(f"v_max3_f32 v{vMX}, v{vS}, v{vS+1}, v{vS+2}"); A(f"v_max_f32 v{vMX}, v{vMX}, v{vS+3}")
        xrow("v_max_f32", [vMX], [vTM])
        A(f"v_cmp_gt_f32 vcc, v{vMX}, v{vM}")
        A("s_cmp_lg_u64 vcc, 0"); A(f"s_cbranch_scc1 L_rescale{tag}")
        E.label(f"L_rescaled{tag}")
        probs(nt)
    def add_l(nt):
        A(f"v_add_f32 v{vTM}, v{vS}, v{vS+1}"); A(f"v_add_f32 v{vMX}, v{vS+2}, v{vS+3}")
        if nt == 2:
            A(f"v_add_f32 v{vS+4}, v{vS+4}, v{vS+5}"); A(f"v_add_f32 v{vS+6}, v{vS+6}, v{vS+7}")
            A(f"v_add_f32 v{vTM}, v{vTM}, v{vS+4}"); A(f"v_add_f32 v{vMX}, v{vMX}, v{vS+6}")
        A(f"v_add_f32 v{vL}, v{vL}, v{vTM}"); A(f"v_add_f32 v{vL}, v{vL}, v{vMX}")
    def rescale(tag):
        E.label(f"L_rescale{tag}")
        A(f"v_max_f32 v{vM}, v{vM}, v{vMX}")
        A(f"v_mul_f32 v{vTM}, {sC}, v{vM}")
        A(f"v_sub_f32 v{vTM2}, v{vMC}, v{vTM}")
        A(f"v_mov_b32 v{vMC}, v{vTM}")
        A(f"v_exp_f32 v{vTM2}, v{vTM2}")
        A(f"v_mul_f32 v{vL}, v{vL}, v{vTM2}")
        A(f"v_mov_b32_dpp v{vTM}, v{vTM2} quad_perm:[0,0,2,2] row_mask:0xf bank_mask:0xf")
        A(f"v_mov_b32_dpp v{vTM3}, v{vTM2} quad_perm:[1,1,3,3] row_mask:0xf bank_mask:0xf")
        for i in range(16): A(f"v_mul_f32 v{vO+i}, v{vO+i}, v{vTM if i%2==0 else vTM3}")
        A(f"s_branch L_rescaled{tag}")
    sKE="s69"; vSA=107
    A(f"s_add_u32 {sKE}, {sN}, {sNS}")
    A(f"s_add_u32 {sN}, {sN}, {sW}"); A(f"s_lshl_b32 {sT0}, {sW}, 14"); A(f"s_add_u32 {sSLOT}, {sSLOT}, {sT0}")
    A(f"s_sub_u32 {sT0}, {sSLOT}, {RING}"); A(f"s_cselect_b32 {sSLOT}, {sSLOT}, {sT0}")
    A(f"v_and_b32 v{vSA}, 1, v{vLANE}"); A(f"v_lshlrev_b32 v{vSA}, 6, v{vSA}"); A(f"v_lshl_add_u32 v{vSA}, v{vG4}, 4, v{vSA}"); A(f"v_add_u32 v{vSA}, {L_SC}, v{vSA}")
    A(f"s_lshl_b32 {sT0}, {sW}, 7"); A(f"v_add_u32 v{vX}, {sT0}, v{vSA}")
    E.label("L_kloop")
    wait_tile()
    qk(2)
    A(f"s_add_u32 {sN}, {sN}, 4"); A(f"s_min_u32 {sN}, {sN}, {sKE}")
    A(f"s_add_u32 {sSLOT}, {sSLOT}, {4*SLOT}"); A(f"s_sub_u32 {sT0}, {sSLOT}, {RING}"); A(f"s_cselect_b32 {sSLOT}, {sSLOT}, {sT0}")
    for i in range(4): A(f"v_cvt_pk_bf16_f32 v{vP+i}, v{vS+2*i}, v{vS+2*i+1}")
    for i in range(4): A(f"v_max3_f32 v{vM}, v{vM}, v{vS+2*i}, v{vS+2*i+1}")
    A("s_mov_b32 exec_lo, 0x30003"); A("s_mov_b32 exec_hi, 0x30003"); A(f"ds_write_b128 v{vX}, {Q4(vP)}"); A("s_mov_b64 exec, -1")
    A(f"v_add_u32 v{vX}, 512, v{vX}")
    A(f"s_cmp_eq_u32 {sN}, {sKE}"); A("s_cbranch_scc1 L_kdone")
    A(f"v_mov_b32 v{vTM}, {sN}"); one_lane(f"ds_write_b32 v{vCONS}, v{vTM}")
    A("s_branch L_kloop")
    E.label("L_kdone")
    xrow("v_max_f32", [vM], [vTM])
    A(f"s_lshl_b32 {sT0}, {sW}, 3"); A(f"s_add_u32 {sT0}, {sT0}, {L_MX}"); A(f"v_lshl_add_u32 v{vTM2}, v{vLANE}, 2, {sT0}")
    A("s_mov_b64 exec, 3"); A(f"ds_write_b32 v{vTM2}, v{vM}"); A("s_mov_b64 exec, -1")
    A(f"v_mov_b32 v{vTM}, {sN}"); one_lane(f"ds_write_b32 v{vCONS}, v{vTM}")
    A(f"s_mul_hi_u32 {sT0}, {sN}, {-(-(1<<32)//NSLOT)}"); A(f"s_mul_i32 {sT0}, {sT0}, {NSLOT}"); A(f"s_sub_u32 {sSLOT}, {sN}, {sT0}"); A(f"s_lshl_b32 {sSLOT}, {sSLOT}, 14")
    A(f"v_and_b32 v{vTM2}, 1, v{vLANE}"); A(f"v_lshlrev_b32 v{vTM2}, 2, v{vTM2}"); A(f"v_add_u32 v{vTM2}, {L_MX}, v{vTM2}")
    E.label("L_ksync")
    A(f"ds_read_b128 {Q4(vAD[0])}, v{vFLG} offset:16")
    A(f"ds_read2_b32 {P(vS)}, v{vTM2} offset0:0 offset1:2"); A(f"ds_read2_b32 {P(vS+2)}, v{vTM2} offset0:4 offset1:6")
    spin_guard()
    A("s_waitcnt lgkmcnt(0)")
    A(f"v_min3_u32 v{vAD[0]}, v{vAD[0]}, v{vAD[1]}, v{vAD[2]}"); A(f"v_min_u32 v{vAD[0]}, v{vAD[0]}, v{vAD[3]}")
    A(f"v_readfirstlane_b32 {sT0}, v{vAD[0]}")
    A(f"s_cmp_lt_u32 {sT0}, {sKE}"); A("s_cbranch_scc1 L_ksync")
    A(f"v_max3_f32 v{vM}, v{vS}, v{vS+1}, v{vS+2}"); A(f"v_max_f32 v{vM}, v{vM}, v{vS+3}")
    round_bf(vM, vM)
    A(f"v_mul_f32 v{vMC}, {sC}, v{vM}")
    E.label("L_loop")
    A(f"ds_read_b128 {Q4(vP)}, v{vSA}")
    A(f"v_add_u32 v{vSA}, 128, v{vSA}")
    A("s_waitcnt lgkmcnt(0)")
    for i in range(4): unpack(vS+2*i, vS+2*i+1, vP+i)
    probs(2); add_l(2)
    A(f"s_cmp_lt_u32 {sCI}, {sPK}"); A("s_cbranch_scc1 L_pv_park")
    wait_tile()
    vtile_read(vF)
    for e in range(4):
        A(f"s_waitcnt lgkmcnt({6-2*e})")
        A(f"v_mfma_f32_16x16x32_bf16 {Q4(vO+4*e)}, {Q4(vP)}, {Q4(vF+4*e)}, {Q4(vO+4*e)}")
    pub_cons()
    E.label("L_pv_done")
    A(f"s_add_u32 {sCI}, {sCI}, 1"); A(f"s_cmp_lt_u32 {sCI}, {sNS}"); A("s_cbranch_scc1 L_loop")
    if touch:
        for nm in ("fin","red","ffn","ffn2"): touch_pad(nm)
    if forcepar is None:
        A(f"v_mov_b32 v{vTM}, {WS_PAR}")
        poll([f"global_load_dwordx4 {Q4(vF)}, v{vTM}, {pWS} {ldf}"], [[vF+1, vF+3]])
        A(f"v_readfirstlane_b32 {sP0}, v{vF}"); A(f"v_readfirstlane_b32 {sP1}, v{vF+2}")
    else:
        A(f"s_mov_b32 {sP0}, {forcepar[0]*8192}"); A(f"s_mov_b32 {sP1}, {forcepar[1]*8192}")
    A(f"s_lshl_b32 {sT0}, {sG}, 2"); A(f"s_and_b32 {sT1}, {sW}, 1"); A(f"s_add_u32 {sT0}, {sT0}, {sT1}"); A(f"s_lshl_b32 {sT0}, {sT0}, 14")
    A(f"s_lshr_b32 {sT1}, {sW}, 1"); A(f"s_lshl_b32 {sT1}, {sT1}, 13"); A(f"s_xor_b32 {sT1}, {sT1}, {sP0}"); A(f"s_add_u32 {sT0}, {sT0}, {sT1}")
    A(f"s_lshl_b32 {sT1}, {sJ}, 8"); A(f"s_add_u32 {sT0}, {sT0}, {sT1}"); A(f"s_add_u32 {sT0}, {sT0}, {WS_A}")
    A(f"v_lshrrev_b32 v{vAA}, 1, v{vG4}"); A(f"v_lshlrev_b32 v{vAA}, 15, v{vAA}")
    A(f"v_and_b32 v{vTM}, 1, v{vG4}"); A(f"v_lshl_or_b32 v{vAA}, v{vTM}, 12, v{vAA}"); A(f"v_lshl_or_b32 v{vAA}, v{vN}, 4, v{vAA}")
    A(f"v_add_u32 v{vAA}, {sT0}, v{vAA}")
    A(f"s_lshr_b32 {sT0}, {sWG}, 3"); A(f"s_lshl_b32 {sT0}, {sT0}, 1"); A(f"s_bfe_u32 {sT1}, {sWG}, 0x10001"); A(f"s_add_u32 {sT0}, {sT0}, {sT1}"); A(f"s_lshl_b32 {sT0}, {sT0}, 14")
    A(f"s_bfe_u32 {sT1}, {sWG}, 0x10002"); A(f"s_lshl_b32 {sT1}, {sT1}, 13"); A(f"s_xor_b32 {sT1}, {sT1}, {sP0}"); A(f"s_add_u32 {sT0}, {sT0}, {sT1}")
    A(f"s_and_b32 {sT1}, {sWG}, 1"); A(f"s_lshl_b32 {sT1}, {sT1}, 12"); A(f"s_add_u32 {sT0}, {sT0}, {sT1}"); A(f"s_add_u32 {sT0}, {sT0}, {WS_A}")
    A(f"v_lshlrev_b32 v{vAI}, 4, v{vN}"); A(f"v_lshl_or_b32 v{vAI}, v{vG4}, 10, v{vAI}"); A(f"v_add_u32 v{vAI}, {sT0}, v{vAI}")
    A(f"v_lshl_add_u32 v{vX+3}, v{vLANE}, 6, {sT0}")
    A(f"s_cmp_eq_u32 {sW}, 0"); A(f"s_cselect_b32 {sWRM}, {0x7fffffff if awarm else 0}, 0")
    A(f"s_cmp_ge_u32 {sRR}, 64"); A(f"s_cbranch_scc1 L_nored"); A(f"s_sub_u32 {sT0}, {sW}, 1"); A(f"s_cmp_ge_u32 {sT0}, 2"); A(f"s_cbranch_scc1 L_nored")
    A(f"s_lshl_b32 {sT0}, {sT0}, 14"); A(f"s_lshl_b32 {sT1}, {sRR}, 15"); A(f"s_add_u32 {sT0}, {sT0}, {sT1}"); A(f"s_add_u32 {sT0}, {sT0}, {sP1}"); A(f"s_add_u32 {sT0}, {sT0}, {WS_B}")
    A(f"v_lshl_add_u32 v{vX+3}, v{vLANE}, 7, {sT0}"); A(f"s_mov_b32 {sWRM}, {[0,0x7fffffff,1,2][bwarm]}")
    if bwarm == 3: A(f"global_load_dword v{vX+2}, v{vX+3}, {pWS} {ldf}")
    E.label("L_nored")
    A(f"s_lshl_b32 {sT0}, {sB}, 2"); A(f"s_add_u32 {sT0}, {sT0}, {sW}"); A(f"s_lshl_b32 {sT0}, {sT0}, 18")
    A(f"s_bfe_u32 {sT1}, {sWG}, 0x10006"); A(f"s_lshl_b32 {sT1}, {sT1}, 14"); A(f"s_add_u32 {sT0}, {sT0}, {sT1}"); A(f"s_add_u32 {sT0}, {sT0}, {sP1}")
    A(f"s_and_b32 {sT1}, {sWG}, 63"); A(f"s_lshl_b32 {sT1}, {sT1}, 7"); A(f"s_add_u32 {sT0}, {sT0}, {sT1}"); A(f"s_add_u32 {sT0}, {sT0}, {WS_B}")
    A(f"v_lshrrev_b32 v{vTM}, 3, v{vLANE}"); A(f"v_lshlrev_b32 v{vTM}, 15, v{vTM}")
    A(f"v_and_b32 v{vTM2}, 7, v{vLANE}"); A(f"v_lshl_or_b32 v{vBA}, v{vTM2}, 4, v{vTM}"); A(f"v_add_u32 v{vBA}, {sT0}, v{vBA}")
    E.label("L_mini")
    wait_tile("L_fin")
    qk(1)
    for e in range(4): A(f"v_add_u32 v{vAD[e]}, {sSLOT}, v{vVB[e]}")
    for e in range(4): A(f"ds_read_b64_tr_b16 {P(vF + 2*e)}, v{vAD[e]} offset:8192")
    softmax(1, "b")
    A("s_waitcnt lgkmcnt(0)")
    for e in range(4): A(f"v_mfma_f32_16x16x16_bf16 {Q4(vO+4*e)}, {P(vP)}, {P(vF+2*e)}, {Q4(vO+4*e)}")
    add_l(1)
    slot_advance()
    A(f"s_cmp_eq_u32 {sN}, {sTOT}"); A("s_cbranch_scc1 L_fin")
    A(f"v_mov_b32 v{vTM}, {sN}"); one_lane(f"ds_write_b32 v{vCONS}, v{vTM}")
    A("s_branch L_mini")
    rescale("b")
    E.label("L_pv_park")
    for p in range(park):
        if p < park-1: nx = lab("pk"); A(f"s_cmp_lg_u32 {sCI}, {p}"); A(f"s_cbranch_scc1 {nx}")
        for e in range(4): A(f"v_mfma_f32_16x16x32_bf16 {Q4(vO+4*e)}, {Q4(vP)}, {Q4(vW1+16*p+4*e)}, {Q4(vO+4*e)}")
        A("s_branch L_pv_done")
        if p < park-1: E.label(nx)

    vG=vF; vI=vF+4; sa=vS; sb=vS+1; sw=vS+2
    vA=vQ; vOPR=vQ+4; vOPW=vQ+5; vR0=vQ+6; vR1=vQ+7; vR2=vQ+8; vR3=vQ+9; vR4=vQ+10; vR5=vQ+11; vZ=vQ+12
    E.label("L_ffn_addr")
    A(f"v_lshrrev_b32 v{vTM}, 3, v{vLANE}"); A(f"v_and_b32 v{vTM2}, 7, v{vLANE}")
    A(f"v_lshlrev_b32 v{vR0}, 9, v{vTM}"); A(f"v_lshl_or_b32 v{vR0}, v{vTM2}, 4, v{vR0}"); A(f"s_add_u32 {sT0}, {sP0}, {WS_H}"); A(f"v_add_u32 v{vR0}, {sT0}, v{vR0}")
    A(f"v_mul_u32_u24 v{vR1}, 224, v{vTM}"); A(f"v_lshl_add_u32 v{vR1}, v{vTM2}, 2, v{vR1}"); A(f"v_add_u32 v{vR1}, {L_LN}, v{vR1}")
    ln_read_addr(vR2, L_LN)
    A(f"s_lshl_b32 {sT0}, {sW}, 5"); A(f"s_add_u32 {sT0}, {sT0}, {L_ACT}")
    A(f"v_lshlrev_b32 v{vR3}, 7, v{vG4}"); A(f"v_lshl_add_u32 v{vR3}, v{vN}, 1, v{vR3}"); A(f"v_add_u32 v{vR3}, {sT0}, v{vR3}")
    A(f"v_and_b32 v{vR4}, 1, v{vLANE}"); A(f"v_lshlrev_b32 v{vR4}, 7, v{vR4}"); A(f"v_lshl_add_u32 v{vR4}, v{vG4}, 3, v{vR4}"); A(f"v_add_u32 v{vR4}, {L_ACT}, v{vR4}")
    A(f"s_lshl_b32 {sT0}, {sW}, 16"); A(f"s_lshl_b32 {sT1}, {sIDX}, 7"); A(f"s_add_u32 {sT0}, {sT0}, {sT1}"); A(f"s_add_u32 {sT0}, {sT0}, {sP0}"); A(f"s_add_u32 {sT0}, {sT0}, {WS_D}")
    A(f"v_lshrrev_b32 v{vTM}, 3, v{vN}"); A(f"v_lshlrev_b32 v{vTM}, 12, v{vTM}"); A(f"v_lshl_or_b32 v{vTM}, v{vG4}, 14, v{vTM}")
    A(f"v_lshl_or_b32 v{vTM}, v{vTM2}, 4, v{vTM}"); A(f"v_add_u32 v{vR5}, {sT0}, v{vTM}")
    A("s_branch L_addr_done")
    if align: A(".p2align 12")
    if touch: E.label("L_pad_fin"); A("s_branch L_ret_fin")
    E.label("L_fin")
    stamp(3)
    yreg = [vO, vO+4, vO+8, vO+12, vQ+16, vQ+20, vQ+24]
    xrow("v_add_f32", [vL], [vTM])
    if hilo:
        for e in range(4): A(f"v_pk_add_f32 {P(vO+4*e)}, {P(vO+4*e)}, {P(vO+4*e+2)}")
    A(f"v_log_f32 v{vTM2}, v{vL}"); A(f"v_rcp_f32 v{vTM3}, v{vL}")
    A(f"v_mov_b32 v{vG+3}, {sTAG}")
    A(f"v_add_f32 v{vTM2}, v{vMC}, v{vTM2}")
    SEL4(vG, vO+0, vO+8, vO+1, vO+9, vMX)
    A(f"v_mov_b32_dpp v{vTM}, v{vTM3} quad_perm:[0,0,2,2] row_mask:0x3 bank_mask:0xf")
    A(f"v_mov_b32_dpp v{vG+2}, v{vTM2} quad_perm:[0,0,2,2] row_mask:0x3 bank_mask:0xf")
    SEL4(vG+1, vO+4, vO+12, vO+5, vO+13, vMX)
    A(f"v_mov_b32_dpp v{vTM}, v{vTM3} quad_perm:[1,1,3,3] row_mask:0xc bank_mask:0xf")
    A(f"v_mov_b32_dpp v{vG+2}, v{vTM2} quad_perm:[1,1,3,3] row_mask:0xc bank_mask:0xf")
    A(f"v_mul_f32 v{vG}, v{vG}, v{vTM}"); A(f"v_mul_f32 v{vG+1}, v{vG+1}, v{vTM}")
    A(f"global_store_dwordx4 v{vAA}, {Q4(vG)}, {pWS} {stf}")
    stamp(4)
    if bwarm == 2:
        A(f"s_cmp_lg_u32 {sWRM}, 1"); A("s_cbranch_scc1 L_nobw")
        A(f"global_load_dword v{vX+2}, v{vX+3}, {pWS} {ldf}")
        E.label("L_nobw")
    A(f"v_lshlrev_b32 v{vOPR}, 3, v{vG4}"); A(f"v_add_u32 v{vOPR}, {L_OP}, v{vOPR}")
    A(f"v_lshlrev_b32 v{vOPW}, 1, v{vN}"); A(f"v_add_u32 v{vOPW}, {L_OP}, v{vOPW}")
    A(f"v_mov_b32 v{vZ}, 0")
    A(f"s_cmp_lt_u32 {sIDX}, 28"); A("s_cbranch_scc1 L_ffn_addr")
    A(f"s_cmp_ge_u32 {sRR}, 64"); A("s_cbranch_scc1 L_addr_done")
    A(f"s_lshl_b32 {sT0}, {sRR}, 15"); A(f"s_lshr_b32 {sT1}, {sW}, 1"); A(f"s_lshl_b32 {sT1}, {sT1}, 14"); A(f"s_add_u32 {sT0}, {sT0}, {sT1}")
    A(f"s_and_b32 {sT1}, {sW}, 1"); A(f"s_lshl_b32 {sT1}, {sT1}, 12"); A(f"s_add_u32 {sT0}, {sT0}, {sT1}"); A(f"s_add_u32 {sT0}, {sT0}, {sP1}"); A(f"s_add_u32 {sT0}, {sT0}, {WS_B}")
    A(f"v_lshl_add_u32 v{vR0}, v{vLANE}, 4, {sT0}")
    A(f"s_lshl_b32 {sT0}, {sW}, 6"); A(f"s_add_u32 {sT0}, {sT0}, {L_RED}")
    A(f"v_and_b32 v{vTM}, 7, v{vLANE}"); A(f"v_lshl_add_u32 v{vR1}, v{vTM}, 2, {sT0}")
    A(f"v_and_b32 v{vTM}, 6, v{vLANE}"); A(f"v_lshlrev_b32 v{vR2}, 2, v{vTM}"); A(f"v_add_u32 v{vR2}, {L_RED}, v{vR2}")
    A(f"s_lshl_b32 {sT0}, {sRR}, 6"); A(f"s_add_u32 {sT0}, {sT0}, {sP0}"); A(f"s_add_u32 {sT0}, {sT0}, {WS_H}"); A(f"v_lshl_add_u32 v{vR3}, v{vTM}, 3, {sT0}")
    A(f"s_lshr_b32 {sT0}, {sRR}, 1"); A(f"s_lshl_b32 {sT0}, {sT0}, 14"); A(f"s_and_b32 {sT1}, {sRR}, 1"); A(f"s_lshl_b32 {sT1}, {sT1}, 12"); A(f"s_add_u32 {sT0}, {sT0}, {sT1}")
    A(f"s_add_u32 {sT0}, {sT0}, {sP0}"); A(f"s_add_u32 {sT0}, {sT0}, {WS_D}"); A(f"v_lshl_add_u32 v{vR4}, v{vLANE}, 4, {sT0}")
    A(f"v_lshl_add_u32 v{vR5}, v{vTM}, 1, {sCOL}")
    E.label("L_addr_done")
    aloads = [f"global_load_dwordx4 {Q4(vI+4*i)}, v{vAI}, {pWS} offset:{i*256} {ldf}" for i in range(4)]
    A(f"s_cmp_lg_u32 {sW}, 0"); A("s_cbranch_scc1 L_a_nopoll")
    for l in aloads: A(l)
    E.label("L_a_nopoll")
    wide_addr(vX)
    for h in range(2): read_wide_tile(vX, vWO, h)
    A(f"s_cmp_lg_u32 {sW}, 0"); A("s_cbranch_scc1 L_a_join")
    poll(aloads, [[vI+4*i+3] for i in range(4)], issued=True)
    stamp(5)
    A(f"v_max3_f32 v{vMX}, v{vI+2}, v{vI+6}, v{vI+10}"); A(f"v_max_f32 v{vMX}, v{vMX}, v{vI+14}")
    xrow("v_max_f32", [vMX], [vTM])
    for i in range(4): A(f"v_sub_f32 v{vI+4*i+2}, v{vI+4*i+2}, v{vMX}")
    for i in range(4): A(f"v_exp_f32 v{vI+4*i+2}, v{vI+4*i+2}")
    A(f"v_mul_f32 v{sa}, v{vI}, v{vI+2}"); A(f"v_mul_f32 v{sb}, v{vI+1}, v{vI+2}"); A(f"v_add_f32 v{sw}, v{vI+2}, v{vI+6}")
    for i in range(1,4):
        A(f"v_fmac_f32 v{sa}, v{vI+4*i}, v{vI+4*i+2}"); A(f"v_fmac_f32 v{sb}, v{vI+4*i+1}, v{vI+4*i+2}")
        if i > 1: A(f"v_add_f32 v{sw}, v{sw}, v{vI+4*i+2}")
    xrow("v_add_f32", [sw, sa, sb], [vS+3, vS+4, vS+5])
    A(f"v_rcp_f32 v{sw}, v{sw}")
    A(f"v_mul_f32 v{sa}, v{sa}, v{sw}"); A(f"v_mul_f32 v{sb}, v{sb}, v{sw}")
    A(f"v_mov_b32_dpp v{vS+3}, v{sa} quad_perm:[1,0,3,2] row_mask:0xf bank_mask:0xf")
    A(f"v_mov_b32_dpp v{vS+4}, v{sb} quad_perm:[1,0,3,2] row_mask:0xf bank_mask:0xf")
    A(f"v_cvt_pk_bf16_f32 v{sa}, v{sa}, v{vS+3}"); A(f"v_cvt_pk_bf16_f32 v{sb}, v{sb}, v{vS+4}")
    A("s_mov_b64 exec, 0x5555"); A(f"ds_write2_b32 v{vOPW}, v{sa}, v{sb} offset0:0 offset1:8"); A("s_mov_b64 exec, -1")
    A("s_waitcnt lgkmcnt(0)")
    E.label("L_a_join")
    A("s_barrier")
    A(f"ds_read2_b64 {Q4(vA)}, v{vOPR} offset0:0 offset1:4")
    A(f"v_mov_b32 v{vG+1}, {sTAG}")
    A("s_waitcnt lgkmcnt(0)")
    for t in (0,2,4,6,1,3,5):
        A(f"v_mfma_f32_16x16x32_bf16 {Q4(yreg[t])}, {Q4(vA)}, {Q4(vWO+4*t)}, 0")
    SEL4(vG, yreg[0], yreg[2], yreg[4], yreg[6], vMX)
    SEL4(vG+2, yreg[1], yreg[3], yreg[5], vZ, vTM)
    A(f"global_store_dwordx4 v{vBA}, {Q4(vG)}, {pWS} {stf}")
    stamp(6)
    A(f"s_cmp_lt_u32 {sIDX}, 28"); A("s_cbranch_scc1 L_ffn")
    A(f"s_cmp_ge_u32 {sRR}, 64"); A("s_cbranch_scc1 L_done")
    def inbox(addr): return [f"global_load_dwordx4 {Q4(vI+4*i)}, v{addr}, {pWS} offset:{i*1024} {ldf}" for i in range(4)]
    tags2 = [[vI+4*i+3] if onetag else [vI+4*i+1, vI+4*i+3] for i in range(4)]
    def sum_inbox():
        A(f"v_add_f32 v{sa}, v{vI}, v{vI+4}"); A(f"v_add_f32 v{sb}, v{vI+2}, v{vI+6}")
        A(f"v_add_f32 v{vS+2}, v{vI+8}, v{vI+12}"); A(f"v_add_f32 v{vS+3}, v{vI+10}, v{vI+14}")
        A(f"v_add_f32 v{sa}, v{sa}, v{vS+2}"); A(f"v_add_f32 v{sb}, v{sb}, v{vS+3}")
        A(f"v_add_f32_dpp v{sa}, v{sa}, v{sa} row_ror:8 row_mask:0xf bank_mask:0xf")
        A(f"v_add_f32_dpp v{sb}, v{sb}, v{sb} row_ror:8 row_mask:0xf bank_mask:0xf")
        xrow("v_add_f32", [sa, sb], [vS+2, vS+3])
    vXF = vO
    unpack(vXF, vXF+1, vXH); unpack(vXF+2, vXF+3, vXH+1)
    if touch: pad("red")
    poll(inbox(vR0), tags2)
    stamp(7)
    sum_inbox()
    A("s_mov_b64 exec, 0xff"); A(f"ds_write2_b32 v{vR1}, v{sa}, v{sb} offset0:0 offset1:8"); A("s_mov_b64 exec, -1")
    A("s_waitcnt lgkmcnt(0)"); A("s_barrier")
    A(f"s_cmp_lg_u32 {sW}, 0"); A("s_cbranch_scc1 L_done")
    for i in range(4): A(f"ds_read2_b64 {Q4(vI+4*i)}, v{vR2} offset0:{i*8} offset1:{i*8+4}")
    def add_resid(y, dst):
        A(f"v_cvt_pk_bf16_f32 v{dst}, v{y}, v{y+1}"); A(f"v_cvt_pk_bf16_f32 v{dst+2}, v{y+2}, v{y+3}")
        unpack(y, y+1, dst); unpack(y+2, y+3, dst+2)
        A(f"v_pk_add_f32 {P(y)}, {P(y)}, {P(vXF)}"); A(f"v_pk_add_f32 {P(y+2)}, {P(y+2)}, {P(vXF+2)}")
        A(f"v_cvt_pk_bf16_f32 v{dst}, v{y}, v{y+1}"); A(f"v_cvt_pk_bf16_f32 v{dst+2}, v{y+2}, v{y+3}")
    A("s_waitcnt lgkmcnt(2)")
    A(f"v_pk_add_f32 {P(vI)}, {P(vI)}, {P(vI+4)}"); A(f"v_pk_add_f32 {P(vI+2)}, {P(vI+2)}, {P(vI+6)}")
    A("s_waitcnt lgkmcnt(0)")
    A(f"v_pk_add_f32 {P(vI+8)}, {P(vI+8)}, {P(vI+12)}"); A(f"v_pk_add_f32 {P(vI+10)}, {P(vI+10)}, {P(vI+14)}")
    A(f"v_pk_add_f32 {P(vI)}, {P(vI)}, {P(vI+8)}"); A(f"v_pk_add_f32 {P(vI+2)}, {P(vI+2)}, {P(vI+10)}")
    add_resid(vI, vG)
    A("s_mov_b64 exec, 0x55"); A(f"global_store_dwordx4 v{vR3}, {Q4(vG)}, {pWS} {stf}"); A("s_mov_b64 exec, -1")
    stamp(8)
    unpack(vXF, vXF+1, vG); unpack(vXF+2, vXF+3, vG+2)
    A(f"v_mov_b32 v{vI+12}, 0"); A(f"v_mov_b32 v{vI+13}, {sTAG}"); A(f"v_mov_b32 v{vI+14}, 0"); A(f"v_mov_b32 v{vI+15}, {sTAG}")
    poll(inbox(vR4), tags2, first_mask=[-1,-1,-1,"s[66:67]"])
    stamp(9)
    sum_inbox()
    A(f"v_mov_b32_dpp v{vI}, v{sa} quad_perm:[0,0,2,2] row_mask:0xf bank_mask:0xf"); A(f"v_mov_b32_dpp v{vI+1}, v{sa} quad_perm:[1,1,3,3] row_mask:0xf bank_mask:0xf")
    A(f"v_mov_b32_dpp v{vI+2}, v{sb} quad_perm:[0,0,2,2] row_mask:0xf bank_mask:0xf"); A(f"v_mov_b32_dpp v{vI+3}, v{sb} quad_perm:[1,1,3,3] row_mask:0xf bank_mask:0xf")
    add_resid(vI, vI+4)
    A("s_mov_b64 exec, 0x55"); A(f"global_store_dword v{vR5}, v{vI+4}, {pOUT} {outf}")
    A(f"s_cmp_eq_u32 {sGP}, 3"); A("s_cbranch_scc1 L_done")
    A(f"global_store_dword v{vR5}, v{vI+6}, {pOUT} offset:32 {outf}")
    A(f"s_cmp_lg_u32 {sRR}, 0"); A("s_cbranch_scc1 L_done")
    A(f"s_add_u32 {sT0}, {sE}, 1"); A(f"v_mov_b32 v{vTM2}, {sT0}"); A(f"v_mov_b32 v{vTM3}, {WS_E}")
    A("s_mov_b64 exec, 1"); A(f"global_store_dword v{vTM3}, v{vTM2}, {pWS} {stf}")
    if enc:
        A("s_memrealtime s[90:91]"); A("s_waitcnt lgkmcnt(0)")
        A(f"s_sub_u32 {sT0}, s{70+2*enc[1]}, s{70+2*enc[0]}"); A(f"s_lshl_b32 {sT0}, {sT0}, 2"); A(f"s_min_u32 {sT0}, {sT0}, 100000")
        E.label("L_enc")
        A("s_memrealtime s[94:95]"); A("s_waitcnt lgkmcnt(0)")
        A(f"s_sub_u32 {sT1}, s94, s90"); A(f"s_cmp_lt_u32 {sT1}, {sT0}"); A("s_cbranch_scc1 L_enc")
    A("s_branch L_done")
    if touch: E.label("L_pad_ffn"); A("s_branch L_ret_ffn")
    E.label("L_ffn")
    A(f"s_cmp_lg_u32 {sW}, 0"); A("s_cbranch_scc1 L_c_join")
    poll([f"global_load_dwordx4 {Q4(vI+4*u)}, v{vR0}, {pWS} offset:{u*128} {ldf}" for u in range(4)], tags2)
    stamp(7)
    layernorm([vI+2*u for u in range(7)], vO, vR1, 32, mid=(lambda: pad("ffn2")) if touch else None)
    A("s_waitcnt lgkmcnt(0)")
    E.label("L_c_join")
    A("s_barrier")
    def aread(i): A(f"ds_read_b128 {Q4(vF + 4*(i % NF))}, v{vR2} offset:{i*64}")
    for i in range(NF): aread(i)
    for i in range(14):
        A(f"s_waitcnt lgkmcnt({min(NF-1, 13-i)})")
        A(f"v_mfma_f32_16x16x32_bf16 {Q4(vS)}, {Q4(vF + 4*(i % NF))}, {Q4(vW1+4*i)}, {'0' if i==0 else Q4(vS)}")
        if i + NF < 14: aread(i+NF)
    for b in range(2): A(f"v_mov_b32 v{vO+4*b+1}, {sTAG}"); A(f"v_mov_b32 v{vO+4*b+3}, {sTAG}")
    A(f"v_add_u32 v{vR0}, {16*16384}, v{vR5}")
    A(f"v_cndmask_b32 v{vTM}, v{vS}, v{vS+1}, {sM1}")
    round_bf(vTM, vTM)
    A(f"v_mul_f32 v{vTM2}, {(LOG2E | 0x80000000):#x}, v{vTM}")
    A(f"v_exp_f32 v{vTM2}, v{vTM2}")
    A(f"v_add_f32 v{vTM2}, 1.0, v{vTM2}")
    A(f"v_rcp_f32 v{vTM2}, v{vTM2}")
    A(f"v_mul_f32 v{vTM}, v{vTM}, v{vTM2}")
    A(f"v_cvt_pk_bf16_f32 v{vTM}, v{vTM}, v{vTM}")
    A("s_mov_b32 exec_hi, 0"); A(f"ds_write_b16 v{vR3}, v{vTM}"); A("s_mov_b32 exec_hi, -1")
    A("s_waitcnt lgkmcnt(0)"); A("s_barrier")
    for ks in range(2): A(f"ds_read2_b64 {Q4(vF+4*ks)}, v{vR4} offset0:{ks*8} offset1:{ks*8+4}")
    zreg = [vW1+4*t for t in range(7)]
    for ks in range(2):
        A(f"s_waitcnt lgkmcnt({1-ks})")
        for t in (0,2,4,6,1,3,5):
            A(f"v_mfma_f32_16x16x32_bf16 {Q4(zreg[t])}, {Q4(vF+4*ks)}, {Q4(vW2+28*ks+4*t)}, {'0' if ks==0 else Q4(zreg[t])}")
    for b in range(2): SEL4(vO+4*b, zreg[0]+b, zreg[2]+b, zreg[4]+b, zreg[6]+b, vMX)
    for b in range(2):
        SEL4(vO+4*b+2, zreg[1]+b, zreg[3]+b, zreg[5]+b, vZ, vMX)
        A(f"global_store_dwordx4 v{vR5 if b == 0 else vR0}, {Q4(vO+4*b)}, {pWS} {stf}")
    stamp(8)
    E.label("L_done")
    if diag:
        stamp(10)
        A("s_mov_b64 exec, -1")
        A(f"s_lshl_b32 {sT0}, {sWG}, 2"); A(f"s_add_u32 {sT0}, {sT0}, {sW}"); A(f"s_lshl_b32 {sT0}, {sT0}, 7"); A(f"s_add_u32 {sT0}, {sT0}, {WS_ST}")
        A("s_getreg_b32 s100, hwreg(HW_REG_XCC_ID)")
        A("s_waitcnt lgkmcnt(0)")
        A(f"v_mov_b32 v{vTM}, {sT0}")
        A("s_mov_b64 exec, 1")
        for k in range(11): A(f"v_mov_b32 v{vW1+k}, s{70+2*k}")
        A(f"v_mov_b32 v{vW1+11}, s100"); A(f"v_mov_b32 v{vW1+12}, {sN}"); A(f"v_mov_b32 v{vW1+13}, {sROLE}"); A(f"v_mov_b32 v{vW1+14}, {sWG}"); A(f"v_mov_b32 v{vW1+15}, {sIDX}")
        for k in range(4): A(f"v_mov_b32 v{vW1+16+k}, s{92+2*k}")
        for q in range(5): A(f"global_store_dwordx4 v{vTM}, {Q4(vW1+4*q)}, {pWS} offset:{q*16}")
    E.label("L_end")
    A("s_endpgm")

    E.label("L_ffn_w")
    wide_addr(vX); tall_addr(vX+1)
    for t in range(4): read_tall_tile(vX+1, vW1, t)
    for t in range(4): read_wide_tile(vX, vW2 + 28*(t>>1), t & 1)
    A("s_branch L_ffn_w_done")
    E.label("L_ld_ffn")
    tall_voffs(3584)
    A(f"s_mov_b64 s[48:49], s[{pW1[0]}:{pW1[1]}]"); A(f"s_mov_b32 s50, {448*1792*2}")
    A(f"s_lshl_b32 {sBASE}, {sIDX}, 7")
    for t in range(4):
        if t % 2 == 0: freecheck(2)
        tile_tall(3584, t, 16 if t < 3 else 8)
    A(f"s_mov_b64 s[48:49], s[{pW2[0]}:{pW2[1]}]")
    A(f"s_mul_i32 {sBASE}, {sIDX}, {64*896}"); A(f"s_add_u32 {sT2}, {sN}, 4")
    E.label("L_ld_w2")
    freecheck(1)
    tile_wide()
    A(f"s_cmp_lt_u32 {sN}, {sT2}"); A("s_cbranch_scc1 L_ld_w2")
    A("s_branch L_ld_head_done")
    if forcepar is None:
        E.label("L_probe")
        A(f"s_load_dword s69, {pWS}, {WS_E}")
        A("s_mov_b64 exec, 1")
        for k,off in enumerate((WS_PRB, WS_PRB+8192, WS_B, WS_B+8192)):
            A(f"v_mov_b32 v{32+k}, {off}"); A(f"s_mov_b32 s{92+k}, 0")
        A("v_mov_b32 v36, 0"); A(f"s_mov_b32 {sCI}, {nprobe}")
        for k in range(4): A(f"global_atomic_add v37, v{32+k}, v36, {pWS} sc0")
        A("s_waitcnt vmcnt(0)")
        E.label("L_probe_loop")
        for k in range(4):
            A("s_memtime s[64:65]"); A("s_waitcnt lgkmcnt(0)")
            A(f"global_atomic_add v37, v{32+k}, v36, {pWS} sc0"); A("s_waitcnt vmcnt(0)")
            A("s_memtime s[66:67]"); A("s_waitcnt lgkmcnt(0)")
            A("s_sub_u32 s66, s66, s64"); A(f"s_min_u32 s66, s66, {clip}"); A(f"s_add_u32 s{92+k}, s{92+k}, s66")
        A(f"s_sub_u32 {sCI}, {sCI}, 1"); A(f"s_cmp_lg_u32 {sCI}, 0"); A("s_cbranch_scc1 L_probe_loop")
        A("s_cmp_gt_u32 s92, s93"); A(f"s_cselect_b32 {sT0}, 8192, 0")
        A("s_cmp_gt_u32 s94, s95"); A(f"s_cselect_b32 {sT1}, 8192, 0")
        make_tag(sT2, "s69")
        A(f"v_mov_b32 v32, {sT0}"); A(f"v_mov_b32 v33, {sT2}"); A(f"v_mov_b32 v34, {sT1}"); A(f"v_mov_b32 v35, {sT2}"); A(f"v_mov_b32 v36, {WS_PAR}")
        A(f"global_store_dwordx4 v36, v[32:35], {pWS} {stf}")
        A("s_mov_b64 exec, -1")
        A("s_branch L_ld_wo")

    body = E.finish()
    head = open("sequential_preLN__gqa_block_cached__dense_activation_silu__decode.s.ref").read().split("; Override launch")[0]
    src = head + f"""; Design (one persistent launch, 256 workgroups = one per CU, written by my own generator script):
;  * workgroup = (batch, kv head) group g = id>>4, split j = id&15.  Wave 0 streams K/V with LDS-DMA into a 9 x 16 KiB
;    LDS ring; waves 1-4 compute with MFMA.  Every split owns a 1 MiB block of K and V: first its K (scores to LDS, true
;    maximum), then its V (each wave 64 of the 256 dims); the block tails form a per-group pool handed out with an atomic
;    counter as 16-key tiles with online softmax (true running maximum).
;  * q = LN(x) @ wq is computed by 64 workgroups and handed over in tagged granules; V tiles are parked in registers meanwhile.
;  * tail, four tagged hand-offs through d_ws: split combine + wo rows -> column sums + residual -> LN, w1, silu, w2 rows
;    -> column sums + residual.  bf16 roundings sit where the reference materialises bf16 tensors.
;  * tag = hash of an epoch word found in d_ws (advanced at the end): it only tells this launch's granules from older ones.
;  * one workgroup times a few zero-adds to learn which 8 KiB parity of the hand-off pages is close to the readers;
;    the answer and the role/id mapping only pick addresses (speed), never values.  All spins are bounded.
; @launch grid=(256,1,1) block=(320,1,1) lds={LDS}
.amdgcn_target "amdgcn-amd-amdhsa--gfx950"
.text
.globl {NAME}
{'.p2align 12' if align else ''}
.p2align 8
.type {NAME},@function
{NAME}:
{body}.section .rodata,"a"
.p2align 6
.amdhsa_kernel {NAME}
  .amdhsa_next_free_vgpr 256
  .amdhsa_next_free_sgpr 102
  .amdhsa_accum_offset 256
  .amdhsa_group_segment_fixed_size 0
  .amdhsa_kernarg_size 88
  .amdhsa_user_sgpr_count 2
  .amdhsa_user_sgpr_kernarg_segment_ptr 1
  .amdhsa_system_sgpr_workgroup_id_x 1
.end_amdhsa_kernel
"""
    return src, E.npad

if __name__ == "__main__":
    out = sys.argv[1]
    kw = json.loads(sys.argv[2]) if len(sys.argv) > 2 else {}
    src, npad = gen(**kw)
    open(out, "w").write(src)
    print("wrote", out, "lines", src.count("\n"), "pad states", npad)
```

```python
import sys, json, struct
from emit import Emitter

NAME = "sequential_preLN__gqa_block_cached__dense_activation_silu__decode_kernel"
def f2u(x): return struct.unpack("<I", struct.pack("<f", x))[0]

def gen(W=19, NS=60, diag=False, hilo=True, spin=1<<20, enc=None, NF=5, ldst=None, qwait=2, forcepar=None, nprobe=3, clip=2000,
        touch=0, qtouch=1, lastfast=1, outf='sc1', onetag=1, nap=0, grp=4, align=1, park=4, ltouch=0, wpre=(2,4), awarm=1, bwarm=3, WD=None, jpos=(14,15,20,21), porder=0):
    E = Emitter(); A = E
    pol = "nt"; stf = ldf = "sc1"
    NSLOT = 9; SLOT = 16384; RING = NSLOT*SLOT; LDS = 163840
    L_FLAG = RING; L_CONS = RING+16; L_RED = RING+256; L_OP = RING+512; L_ACT = RING+768; L_QW = RING+1024; L_LN = RING+2048; L_SC = RING+4096; L_MX = RING+64
    WS_E = 0; WS_PAR = 0x800; WS_CNT = 0x1000; WS_H = 0x4000; WS_Q = 0x8000; WS_PRB = 0x10000; WS_D = 0x80000; WS_A = 0x100000; WS_B = 0x200000; WS_ST = 0x400000
    C_SCALE = f2u(1.4426950408889634/16.0); LOG2E = f2u(1.4426950408889634); INV448 = f2u(1.0/448.0); EPS = f2u(1e-5)
    EXTRA = 32; POOL = 2048-32*NS+EXTRA; TL = 128-2*NS
    assert 12 <= W <= 32 and NF <= 5
    sWG="s2"; sWAVE="s3"
    pX="s[4:5]"; pK=(6,7); pV=(8,9); pWQ=(10,11); pWO=(12,13); pW1=(16,17); pW2=(18,19); pOUT="s[20:21]"; pWS="s[24:25]"
    sG="s26"; sJ="s27"; sROLE="s28"; sN="s31"; sSLOT="s32"; sKNOWN="s33"; sT0="s34"; sT1="s35"; sT2="s36"
    sCI="s37"; sSPIN="s38"; sIDX="s39"; sNS="s63"; sPK="s68"
    vK=[4+i for i in range(8)]; vV=[12+i for i in range(4)]; vLIN=16; vT=[17,18]; vFL=21; vTMP=22; vC=24; vCA=28; vONE=29; vCL=[30,31]
    srdK="s[40:43]"; srdV="s[44:47]"; srdW="s[48:51]"; srdZ="s[52:55]"
    sCUR="s56"; sGB="s57"; sOFF="s58"; sCLM="s59"; sBASE="s61"; sFLOOR="s62"; sOWN="s60"; sVC="s64"
    sB="s29"; sHKV="s30"; sW="s40"; sTAG="s41"; sM1="s[42:43]"; sM2="s[44:45]"; sC="s46"; sE="s47"; sRR="s48"; sTOT="s49"
    sCK=["s[50:51]","s[52:53]","s[54:55]","s[56:57]"]; sCOL="s58"; sGP="s59"; sP0="s60"; sP1="s61"; sWRM="s62"
    vLANE=0; vN=1; vG4=2; vFLG=3; vCONS=4; vTM=5; vTM2=6; vTM3=7
    vM=8; vMC=9; vL=10; vMX=11
    vKB=[12,13,14,15]; vVB=[16,17,18,19]; vAD=[20,21,22,23]
    vS=24; vP=32; vO=36; vQ=52; vF=84; vAA=104; vAI=105; vBA=106
    vWO=108; vW1=136; vW2=192; vX=248; vXH=254
    xr1 = [vWO+u for u in range(7)]; vLW1 = vWO+24

    uid=[0]
    def lab(p): uid[0]+=1; return f"L_{p}_{uid[0]}"
    def P(r): return f"v[{r}:{r+1}]"
    def Q4(r): return f"v[{r}:{r+3}]"
    def stamp(k):
        if not diag and not (enc and k in (0, enc[0], enc[1])): return
        A(f"s_memrealtime s[{70+2*k}:{71+2*k}]")
    def slot_advance():
        A(f"s_add_u32 {sN}, {sN}, 1"); A(f"s_add_u32 {sSLOT}, {sSLOT}, {SLOT}")
        A(f"s_cmp_eq_u32 {sSLOT}, {RING}"); A(f"s_cselect_b32 {sSLOT}, 0, {sSLOT}")
    def spin_guard(): A(f"s_sub_u32 {sSPIN}, {sSPIN}, 1"); A("s_cbranch_scc1 L_end")
    def one_lane(ins): A("s_mov_b64 exec, 1"); A(ins); A("s_mov_b64 exec, -1")
    def share_consts():
        A(f"s_sub_u32 {sT0}, {sROLE}, 8"); A(f"s_lshl_b32 {sIDX}, {sG}, 1"); A(f"s_add_u32 {sIDX}, {sIDX}, {sT0}")
        A(f"s_cmp_lt_u32 {sT0}, 2"); A(f"s_cselect_b32 {sIDX}, {sIDX}, 99")
        A(f"s_cselect_b32 {sNS}, {NS-4}, {NS}"); A(f"s_cmp_lt_u32 {sROLE}, 4"); A(f"s_cselect_b32 {sNS}, {NS-2}, {sNS}")
        A(f"s_cmp_lt_u32 {sIDX}, 28"); A(f"s_cselect_b32 {sPK}, 0, {park}")
    def make_tag(dst, e): A(f"s_mul_i32 {dst}, {e}, 0x9e3779b1"); A(f"s_add_u32 {dst}, {dst}, 0x7f4a7c15")
    pads = []
    def pad(name):
        sk = lab("padskip"); A(f"s_branch {sk}"); E.label(f"L_pad_{name}"); A(f"s_branch L_ret_{name}"); E.label(sk)
    def touch_pad(name): A(f"s_branch L_pad_{name}"); E.label(f"L_ret_{name}")

    A(f"s_cmp_ge_u32 {sWG}, 256"); A("s_cbranch_scc1 L_end")
    stamp(0)
    A("s_load_dwordx16 s[4:19], s[0:1], 0"); A("s_load_dwordx4 s[20:23], s[0:1], 64"); A("s_load_dwordx2 s[24:25], s[0:1], 80")
    A("v_lshrrev_b32 v1, 6, v0"); A("v_and_b32 v0, 63, v0"); A(f"v_readfirstlane_b32 {sWAVE}, v1")
    A(f"s_lshr_b32 {sG}, {sWG}, 4"); A(f"s_and_b32 {sJ}, {sWG}, 15")
    A(f"s_lshr_b32 {sT0}, {sJ}, 1"); A(f"s_and_b32 {sT0}, {sT0}, 4"); A(f"s_and_b32 {sROLE}, {sJ}, 3"); A(f"s_add_u32 {sROLE}, {sROLE}, {sT0}")
    A(f"s_sub_u32 {sROLE}, {sROLE}, {sG}"); A(f"s_and_b32 {sROLE}, {sROLE}, 7")
    A(f"s_add_u32 {sT0}, {sROLE}, 4"); A(f"s_add_u32 {sT1}, {sROLE}, 8"); A(f"s_cmp_lt_u32 {sROLE}, 4"); A(f"s_cselect_b32 {sROLE}, {sROLE}, {sT1}")
    A(f"s_bitcmp1_b32 {sJ}, 2"); A(f"s_cselect_b32 {sROLE}, {sROLE}, {sT0}")
    A(f"s_mov_b32 {sN}, 0"); A(f"s_mov_b64 s[32:33], 0"); A(f"s_mov_b32 {sCI}, 0"); A(f"s_mov_b32 {sSPIN}, {spin}")
    A(f"v_mov_b32 v3, {L_FLAG}"); A(f"v_lshl_add_u32 v1, v0, 2, v3"); A("v_mov_b32 v2, 0")
    A("s_mov_b64 exec, 2"); A("v_bfrev_b32 v2, -2"); A("s_mov_b64 exec, 0x1ff"); A("ds_write_b32 v1, v2"); A("s_mov_b64 exec, -1")
    A(f"v_lshrrev_b32 v1, 5, v0"); A(f"v_mul_u32_u24 v1, 896, v1"); A(f"v_and_b32 v2, 31, v0"); A(f"v_lshl_add_u32 v{vLW1}, v2, 2, v1")
    A("s_waitcnt lgkmcnt(0)")
    A("s_barrier")
    A(f"s_cmp_eq_u32 {sWAVE}, 0"); A("s_cbranch_scc1 L_loader")
    A(f"s_load_dword {sE}, {pWS}, {WS_E}")
    A(f"s_cmp_ge_u32 {sROLE}, 4"); A("s_cbranch_scc1 L_consumer")
    for u in range(7): A(f"global_load_dword v{xr1[u]}, v{vLW1}, {pX} offset:{u*128}")
    A("s_branch L_qprod")

    def publish(back):
        A(f"s_sub_u32 {sT0}, {sN}, {back}"); A(f"s_max_i32 {sT0}, {sT0}, {sFLOOR}")
        A(f"v_mov_b32 v{vTMP}, {sT0}"); one_lane(f"ds_write_b32 v{vFL}, v{vTMP}")
    def throttle(i, W=W):
        if i % grp == grp-1:
            A(f"s_waitcnt vmcnt({W})")
            if i+1+16 >= W and (i+1-grp+16 < W or i < grp): publish(1)
    def tile_rows(specs, pol=pol, W=W):
        for i,(srd,vo,so) in enumerate(specs):
            if i % 4 == 0:
                A(f"s_add_u32 m0, {sSLOT}, {i*1024}" if i else f"s_mov_b32 m0, {sSLOT}")
                A(f"s_add_u32 {sOFF}, {sBASE}, {so}" if so else f"s_mov_b32 {sOFF}, {sBASE}")
            A(f"buffer_load_dwordx4 v{vo}, {srd}, {sOFF} offen offset:{(i%4)*1024} {pol} lds")
            throttle(i, W)
        slot_advance()
    def tile_tall(rowstride, t, nvalid):
        for i in range(16):
            A(f"s_add_u32 m0, {sSLOT}, {i*1024}" if i else f"s_mov_b32 m0, {sSLOT}")
            A(f"s_add_u32 {sOFF}, {sBASE}, {(t*128+i*8)*rowstride}")
            A(f"buffer_load_dwordx4 v{vT[i&1]}, {srdW if i < nvalid else srdZ}, {sOFF} offen {pol} lds")
            throttle(i)
        slot_advance()
    def tile_wide(pol=pol):
        tile_rows([(srdW if i < 14 else srdZ, vLIN, i*1024) for i in range(16)], pol)
        A(f"s_add_u32 {sBASE}, {sBASE}, 14336")
    def tall_voffs(stride):
        A("v_lshrrev_b32 v1, 3, v0"); A("v_and_b32 v2, 7, v0"); A("v_and_b32 v3, 2, v1"); A("v_xor_b32 v2, v2, v3"); A("v_lshlrev_b32 v2, 4, v2")
        A(f"v_mul_u32_u24 v3, {stride}, v1"); A(f"v_add_u32 v{vT[0]}, v3, v2"); A("v_xor_b32 v2, 64, v2"); A(f"v_add_u32 v{vT[1]}, v3, v2")
    def freecheck(k):
        ok = lab("free"); lp = lab("freepoll")
        A(f"s_add_u32 {sT0}, {sKNOWN}, {NSLOT-k}"); A(f"s_cmp_ge_u32 {sT0}, {sN}"); A(f"s_cbranch_scc1 {ok}")
        E.label(lp)
        A(f"ds_read_b128 {Q4(vC)}, v{vFL} offset:16")
        spin_guard()
        A("s_waitcnt lgkmcnt(0)")
        A(f"v_min3_u32 v{vC}, v{vC}, v{vC+1}, v{vC+2}"); A(f"v_min_u32 v{vC}, v{vC}, v{vC+3}")
        A(f"v_readfirstlane_b32 {sKNOWN}, v{vC}")
        A(f"s_add_u32 {sT0}, {sKNOWN}, {NSLOT-k}"); A(f"s_cmp_ge_u32 {sT0}, {sN}"); A(f"s_cbranch_scc1 {ok}")
        A("s_sleep 1"); A(f"s_branch {lp}")
        E.label(ok)
    def claim(p):
        one_lane(f"global_atomic_add v{vCL[p]}, v{vCA}, v{vONE}, {pWS} sc0")

    rpos = [b for b in range(14,24) if b not in jpos]; RMASK = sum(1<<b for b in rpos)
    def scatter(dst, src, pos, tmp):
        k = 0
        while k < len(pos):
            n = 1
            while k+n < len(pos) and pos[k+n] == pos[k]+n: n += 1
            A(f"s_bfe_u32 {tmp}, {src}, {(n<<16)|k:#x}"); A(f"s_lshl_b32 {tmp}, {tmp}, {pos[k]}"); A(f"s_or_b32 {dst}, {dst}, {tmp}")
            k += n
    def next_tile():
        A(f"s_or_b32 {sCUR}, {sCUR}, {(~RMASK)&0xffffffff:#x}"); A(f"s_add_u32 {sCUR}, {sCUR}, 1"); A(f"s_and_b32 {sCUR}, {sCUR}, {RMASK:#x}")
        A(f"s_or_b32 {sBASE}, {sOWN}, {sCUR}")
    E.label("L_loader")
    A("s_setprio 3")
    A(f"v_mov_b32 v{vFL}, v3"); A(f"v_lshlrev_b32 v{vLIN}, 4, v0"); A(f"s_mov_b32 {sFLOOR}, 0")
    A("s_mov_b32 s50, 3670016"); A("s_mov_b32 s51, 0x20000")
    A(f"s_mov_b64 s[52:53], s[{pK[0]}:{pK[1]}]"); A("s_mov_b32 s54, 0"); A("s_mov_b32 s55, 0x20000")
    A(f"s_cmp_ge_u32 {sROLE}, 4"); A("s_cbranch_scc1 L_ld_noq")
    tall_voffs(8192)
    A(f"s_mov_b64 s[48:49], s[{pWQ[0]}:{pWQ[1]}]")
    A(f"s_and_b32 {sOFF}, {sG}, 7"); A(f"s_lshl_b32 {sOFF}, {sOFF}, 3"); A(f"s_lshr_b32 {sT0}, {sG}, 3"); A(f"s_lshl_b32 {sT0}, {sT0}, 2")
    A(f"s_add_u32 {sOFF}, {sOFF}, {sT0}"); A(f"s_add_u32 {sOFF}, {sOFF}, {sROLE}"); A(f"s_lshl_b32 {sOFF}, {sOFF}, 7")
    A("s_mov_b32 m0, 0")
    E.label("L_ld_q")
    for i in range(2):
        A(f"buffer_load_dwordx4 v{vT[i]}, {srdW}, {sOFF} offen {pol} lds")
        A(f"s_add_u32 {sOFF}, {sOFF}, {8*8192}"); A("s_add_u32 m0, m0, 1024")
    A(f"s_cmp_lt_u32 m0, {56*1024}"); A("s_cbranch_scc1 L_ld_q")
    A(f"s_mov_b32 {sN}, 4"); A(f"s_mov_b32 {sSLOT}, {4*SLOT}"); A(f"s_mov_b32 {sFLOOR}, 4")
    A(f"v_mov_b32 v{vTMP}, 4"); A("s_waitcnt vmcnt(0)"); one_lane(f"ds_write_b32 v{vFL}, v{vTMP}")
    E.label("L_ld_noq")
    if forcepar is None:
        A(f"s_cmp_eq_u32 {sWG}, {15*16 + 3}"); A("s_cbranch_scc1 L_probe")
    E.label("L_ld_wo")
    A("v_lshrrev_b32 v1, 5, v0"); A("v_and_b32 v2, 31, v0")
    A("v_lshlrev_b32 v3, 1, v1"); A("v_xor_b32 v3, v2, v3"); A("v_lshlrev_b32 v3, 4, v3"); A("v_lshl_or_b32 v3, v1, 9, v3")
    for i in range(4): A(f"v_xor_b32 v{vV[i]}, {i*64}, v3")
    A(f"s_mov_b64 s[44:45], s[{pV[0]}:{pV[1]}]"); A("s_mov_b32 s46, 0x10000000"); A("s_mov_b32 s47, 0x20000")
    A(f"s_lshl_b32 {sGB}, {sG}, 24"); A(f"s_mov_b32 {sOWN}, {sGB}"); scatter(sOWN, sJ, jpos, sT0); A(f"s_mov_b32 {sCUR}, 0")
    share_consts()
    A(f"s_cmp_lt_u32 {sIDX}, 28"); A(f"s_cbranch_scc1 L_ld_ffn")
    A(f"s_mov_b32 {sBASE}, {sOWN}"); A(f"s_add_u32 {sT2}, {sN}, {park}")
    E.label("L_ld_pv")
    tile_rows([(srdV, vV[i%4], i*1024) for i in range(16)])
    next_tile()
    A(f"s_cmp_lt_u32 {sN}, {sT2}"); A("s_cbranch_scc1 L_ld_pv")
    E.label("L_ld_head_done")
    A(f"s_mov_b32 {sVC}, {sCUR}"); A(f"s_mov_b32 {sCUR}, 0")
    A("v_lshrrev_b32 v1, 5, v0"); A("v_and_b32 v2, 31, v0")
    A("v_xor_b32 v3, v2, v1"); A("v_lshlrev_b32 v3, 4, v3"); A("v_lshl_or_b32 v3, v1, 9, v3")
    for i in range(8): A(f"v_xor_b32 v{vK[i]}, {i*32}, v3")
    A(f"s_lshl_b32 {sT0}, {sG}, 8"); A(f"s_add_u32 {sT0}, {sT0}, {WS_CNT}"); A(f"v_mov_b32 v{vCA}, {sT0}"); A(f"v_mov_b32 v{vONE}, 1")
    A(f"s_mov_b64 s[40:41], s[{pK[0]}:{pK[1]}]"); A("s_mov_b32 s42, 0x10000000"); A("s_mov_b32 s43, 0x20000")
    def ldstamps(list_, k0):
        if not diag: return
        for k,c in enumerate(list_):
            sk=lab("ls"); A(f"s_cmp_lg_u32 {sCI}, {c}"); A(f"s_cbranch_scc1 {sk}"); A(f"s_memrealtime s[{72+2*(k0+k)}:{73+2*(k0+k)}]"); A("s_waitcnt lgkmcnt(0)"); E.label(sk)
    A(f"s_mov_b32 {sBASE}, {sOWN}")
    E.label("L_ld_loop")
    ldstamps((0,4,8,16,32,NS-5), 0)
    freecheck(1)
    tile_rows([(srdK, vK[i%8], i*1024) for i in range(16)])
    next_tile()
    A(f"s_add_u32 {sCI}, {sCI}, 1"); A(f"s_cmp_lt_u32 {sCI}, {sNS}"); A("s_cbranch_scc1 L_ld_loop")
    A(f"s_mov_b32 {sCI}, {sPK}"); A(f"s_mov_b32 {sCUR}, {sVC}"); A(f"s_or_b32 {sBASE}, {sOWN}, {sCUR}")
    E.label("L_ld_vloop")
    ldstamps((8,40,NS-5), 6)
    freecheck(1)
    A(f"s_add_u32 {sCI}, {sCI}, 1"); A(f"s_add_u32 {sT0}, {sCI}, 1"); A(f"s_cmp_lt_u32 {sT0}, {sNS}"); A("s_cbranch_scc1 L_ld_nocl")
    A(f"s_cmp_eq_u32 {sCI}, {sNS}"); A("s_cbranch_scc1 L_ld_cl1")
    claim(0); A("s_branch L_ld_nocl")
    E.label("L_ld_cl1")
    claim(1)
    E.label("L_ld_nocl")
    tile_rows([(srdV, vV[i%4], i*1024) for i in range(16)])
    next_tile()
    A(f"s_cmp_lt_u32 {sCI}, {sNS}"); A("s_cbranch_scc1 L_ld_vloop")
    E.label("L_ld_dyn")
    for p in range(2):
        A(f"v_readfirstlane_b32 {sCLM}, v{vCL[p]}")
        A(f"s_cmp_ge_u32 {sCLM}, {POOL}"); A("s_cbranch_scc1 L_ld_dyn_done")
        A(f"s_cmp_lt_u32 {sCLM}, {EXTRA}"); A(f"s_cbranch_scc1 L_ld_shed{p}")
        A(f"s_sub_u32 {sT0}, {sCLM}, {EXTRA}"); A(f"s_lshr_b32 {sT0}, {sT0}, 1")
        if porder == 0: A(f"s_and_b32 {sT1}, {sT0}, 15"); A(f"s_lshr_b32 {sCUR}, {sT0}, 4")
        else: A(f"s_mul_hi_u32 {sT1}, {sT0}, {-(-(1<<32)//(64-NS))}"); A(f"s_mul_i32 {sCUR}, {sT1}, {64-NS}"); A(f"s_sub_u32 {sCUR}, {sT0}, {sCUR}")
        A(f"s_add_u32 {sCUR}, {sCUR}, {NS}")
        E.label(f"L_ld_unit{p}")
        A(f"s_and_b32 {sBASE}, {sCLM}, 1"); A(f"s_lshl_b32 {sBASE}, {sBASE}, 12"); A(f"s_or_b32 {sBASE}, {sBASE}, {sGB}")
        scatter(sBASE, sT1, jpos, sT0); scatter(sBASE, sCUR, rpos, sT0)
        freecheck(1)
        claim(p)
        tile_rows([(srdK, vK[i], i*2048) for i in range(8)] + [(srdV, vV[i%4], i*2048) for i in range(8)], W=WD or W)
    A("s_branch L_ld_dyn")
    E.label("L_ld_dyn_done")
    A(f"v_mov_b32 v{vTMP}, {sN}"); one_lane(f"ds_write_b32 v{vFL}, v{vTMP} offset:4")
    A(f"s_mov_b64 s[48:49], s[{pWO[0]}:{pWO[1]}]"); A("s_mov_b32 s50, 3670016")
    A(f"s_and_b32 {sBASE}, {sWG}, 127"); A(f"s_mul_i32 {sBASE}, {sBASE}, {32*896}")
    freecheck(2)
    k = 0
    for t in range(2):
        for i in range(14):
            if i % 4 == 0:
                A(f"s_add_u32 m0, {sSLOT}, {i*1024}" if i else f"s_mov_b32 m0, {sSLOT}")
                A(f"s_add_u32 {sOFF}, {sBASE}, {t*14336+i*1024}")
            if k == wpre[0]: A(f"s_waitcnt vmcnt({16+k})"); publish(1+t)
            if k == wpre[1]: A(f"s_waitcnt vmcnt({k})"); publish(t)
            A(f"buffer_load_dwordx4 v{vLIN}, {srdW}, {sOFF} offen offset:{(i%4)*1024} lds")
            k += 1
        slot_advance()
    for c,back in ((14,1),(0,0)):
        A(f"s_waitcnt vmcnt({c})"); publish(back)
    if diag:
        A("s_mov_b64 exec, 1"); A("s_memrealtime s[90:91]")
        A(f"s_lshl_b32 {sT0}, {sWG}, 6"); A(f"s_add_u32 {sT0}, {sT0}, {WS_ST+0x40000}"); A(f"v_mov_b32 v46, {sT0}")
        A("s_waitcnt lgkmcnt(0)")
        for k in range(11): A(f"v_mov_b32 v{32+k}, s{70+2*k}")
        A(f"v_mov_b32 v43, {sSPIN}")
        for q in range(3): A(f"global_store_dwordx4 v46, v[{32+4*q}:{35+4*q}], {pWS} offset:{q*16}")
    A("s_waitcnt lgkmcnt(0)")
    A("s_endpgm")
    for p in range(2):
        E.label(f"L_ld_shed{p}")
        A(f"s_lshr_b32 {sT0}, {sCLM}, 3"); A(f"s_add_u32 {sT0}, {sT0}, 4"); A(f"s_bfe_u32 {sT1}, {sCLM}, 0x20001"); A(f"s_add_u32 {sT1}, {sT1}, {NS-4}")
        A(f"s_bfe_u32 {sT2}, {sCLM}, 0x20002"); A(f"s_bfe_u32 {sCUR}, {sCLM}, 0x10001"); A(f"s_add_u32 {sCUR}, {sCUR}, {NS-2}")
        A(f"s_cmp_lt_u32 {sCLM}, 16"); A(f"s_cselect_b32 {sT0}, {sT0}, {sT2}"); A(f"s_cselect_b32 {sCUR}, {sT1}, {sCUR}"); A(f"s_cselect_b32 {sT2}, 0, 4")
        A(f"s_add_u32 {sT0}, {sT0}, {sG}"); A(f"s_and_b32 {sT1}, {sT0}, 3"); A(f"s_or_b32 {sT1}, {sT1}, {sT2}")
        A(f"s_bfe_u32 {sT0}, {sT0}, 0x10002"); A(f"s_lshl_b32 {sT0}, {sT0}, 3"); A(f"s_or_b32 {sT1}, {sT1}, {sT0}")
        A(f"s_branch L_ld_unit{p}")

    def SEL4(dst, a, b, c, d, t):
        A(f"v_cndmask_b32 v{dst}, v{a}, v{b}, {sM1}"); A(f"v_cndmask_b32 v{t}, v{c}, v{d}, {sM1}"); A(f"v_cndmask_b32 v{dst}, v{dst}, v{t}, {sM2}")
    def xrow(op, regs, tmps):
        for sw in ("v_permlane16_swap_b32","v_permlane32_swap_b32"):
            for r,t in zip(regs,tmps): A(f"v_mov_b32 v{t}, v{r}")
            for r,t in zip(regs,tmps): A(f"{sw} v{r}, v{t}")
            for r,t in zip(regs,tmps): A(f"{op} v{r}, v{r}, v{t}")
    def round_bf(dst, src): A(f"v_cvt_pk_bf16_f32 v{dst}, v{src}, v{src}"); A(f"v_and_b32 v{dst}, 0xffff0000, v{dst}")
    def unpack(lo, hi, src): A(f"v_lshlrev_b32 v{lo}, 16, v{src}"); A(f"v_and_b32 v{hi}, 0xffff0000, v{src}")
    def pub_cons():
        slot_advance()
        A(f"v_mov_b32 v{vTM}, {sN}"); one_lane(f"ds_write_b32 v{vCONS}, v{vTM}")
    def wait_tile(fin=None):
        ok = lab("have"); lp = lab("poll")
        if fin: A(f"s_cmp_eq_u32 {sTOT}, {sN}"); A(f"s_cbranch_scc1 {fin}")
        A(f"s_cmp_gt_u32 {sKNOWN}, {sN}"); A(f"s_cbranch_scc1 {ok}")
        E.label(lp)
        A(f"ds_read_b64 {P(vAD[0])}, v{vFLG}")
        spin_guard()
        A("s_waitcnt lgkmcnt(0)")
        A(f"v_readfirstlane_b32 {sKNOWN}, v{vAD[0]}"); A(f"v_readfirstlane_b32 {sTOT}, v{vAD[1]}")
        if fin:
            nw = lab("nw")
            A(f"s_cmp_ge_u32 {sTOT}, {sWRM}"); A(f"s_cbranch_scc1 {nw}")
            A(f"s_mov_b32 {sWRM}, 0"); A(f"global_load_dword v{vX+2}, v{vX+3}, {pWS} {ldf}")
            E.label(nw)
            A(f"s_cmp_eq_u32 {sTOT}, {sN}"); A(f"s_cbranch_scc1 {fin}")
        A(f"s_cmp_gt_u32 {sKNOWN}, {sN}"); A(f"s_cbranch_scc1 {ok}")
        if nap or not fin: A("s_sleep 1")
        A(f"s_branch {lp}")
        E.label(ok)
    def poll(loads, tags, first_mask=None, issued=False):
        lp = lab("gpoll"); n = len(loads)
        chk = lab("gchk")
        if issued: A(f"s_branch {chk}")
        else:
            for i in range(n): A(f"s_mov_b64 {sCK[i]}, {first_mask[i] if first_mask else -1}")
        E.label(lp)
        for i,l in enumerate(loads):
            sk = lab("sk")
            A(f"s_mov_b64 exec, {sCK[i]}"); A(f"s_cbranch_execz {sk}"); A(l); E.label(sk)
        A("s_mov_b64 exec, -1")
        spin_guard()
        if issued: E.label(chk)
        A("s_waitcnt vmcnt(0)")
        for i in range(n):
            A(f"v_cmp_ne_u32 {sCK[i]}, {sTAG}, v{tags[i][0]}")
            for t in tags[i][1:]:
                A(f"v_cmp_ne_u32 vcc, {sTAG}, v{t}"); A(f"s_or_b64 {sCK[i]}, {sCK[i]}, vcc")
        A(f"s_or_b64 vcc, {sCK[0]}, {sCK[min(1,n-1)]}")
        for i in range(2, n): A(f"s_or_b64 vcc, vcc, {sCK[i]}")
        A(f"s_cbranch_scc1 {lp}")
    def layernorm(xr, f, lnbase, stride, mid=None):
        s1=vTM; t=vTM2; mu=vX; a=vX+2; b=vX+4
        for u in range(7): unpack(f+2*u, f+2*u+1, xr[u])
        A(f"v_pk_add_f32 {P(a)}, {P(f)}, {P(f+2)}"); A(f"v_pk_add_f32 {P(b)}, {P(f+4)}, {P(f+6)}")
        A(f"v_pk_add_f32 {P(a)}, {P(a)}, {P(f+8)}"); A(f"v_pk_add_f32 {P(b)}, {P(b)}, {P(f+10)}")
        A(f"v_pk_add_f32 {P(a)}, {P(a)}, {P(f+12)}"); A(f"v_pk_add_f32 {P(a)}, {P(a)}, {P(b)}")
        A(f"v_add_f32 v{s1}, v{a}, v{a+1}")
        red32 = [f"v_add_f32_dpp v{s1}, v{s1}, v{s1} row_ror:{k} row_mask:0xf bank_mask:0xf" for k in (8,4,2,1)]
        red32 += [f"v_mov_b32 v{t}, v{s1}", f"v_permlane16_swap_b32 v{s1}, v{t}", f"v_add_f32 v{s1}, v{s1}, v{t}"]
        for l in red32: A(l)
        A(f"v_mul_f32 v{mu}, {INV448:#x}, v{s1}")
        NEG = "op_sel_hi:[1,0] neg_lo:[0,1] neg_hi:[0,1]"
        A(f"v_pk_add_f32 {P(b)}, {P(f)}, {P(mu)} {NEG}")
        A(f"v_pk_mul_f32 {P(a)}, {P(b)}, {P(b)}")
        for u in range(1,7):
            A(f"v_pk_add_f32 {P(b)}, {P(f+2*u)}, {P(mu)} {NEG}")
            A(f"v_pk_fma_f32 {P(a)}, {P(b)}, {P(b)}, {P(a)}")
        A(f"v_add_f32 v{s1}, v{a}, v{a+1}")
        round_bf(mu, mu)
        fill = [f"v_pk_add_f32 {P(f+2*u)}, {P(f+2*u)}, {P(mu)} {NEG}" for u in range(7)] + [f"v_cvt_pk_bf16_f32 v{xr[u]}, v{f+2*u}, v{f+2*u+1}" for u in range(7)]
        for u in range(7): fill += [f"v_lshlrev_b32 v{f+2*u}, 16, v{xr[u]}", f"v_and_b32 v{f+2*u+1}, 0xffff0000, v{xr[u]}"]
        rb = [f"v_cvt_pk_bf16_f32 v{s1}, v{s1}, v{s1}", f"v_and_b32 v{s1}, 0xffff0000, v{s1}"]
        chain = red32 + [f"v_mul_f32 v{s1}, {INV448:#x}, v{s1}"] + rb + [f"v_add_f32 v{s1}, {EPS:#x}, v{s1}"] + rb + [f"v_sqrt_f32 v{s1}, v{s1}"] + rb + [f"v_rcp_f32 v{a}, v{s1}"]
        while chain or fill:
            for _ in range(2):
                if fill: A(fill.pop(0))
            if chain: A(chain.pop(0))
        if mid: mid()
        for u in range(7): A(f"v_pk_mul_f32 {P(f+2*u)}, {P(f+2*u)}, {P(a)} op_sel_hi:[1,0]")
        for u in range(7):
            A(f"v_cvt_pk_bf16_f32 v{xr[u]}, v{f+2*u}, v{f+2*u+1}")
            A(f"ds_write_b32 v{lnbase}, v{xr[u]} offset:{u*stride}")
    def ln_read_addr(rd, base):
        A(f"v_and_b32 v{rd}, 1, v{vLANE}"); A(f"v_mul_u32_u24 v{rd}, 896, v{rd}")
        A(f"v_lshl_add_u32 v{rd}, v{vG4}, 4, v{rd}"); A(f"v_add_u32 v{rd}, {base}, v{rd}")
    def tall_addr(dst):
        A(f"v_lshrrev_b32 v{vTM}, 3, v{vN}")
        A(f"v_and_b32 v{vTM2}, 1, v{vG4}"); A(f"v_lshl_or_b32 v{vTM}, v{vTM2}, 1, v{vTM}")
        A(f"v_xor_b32 v{vTM}, {sW}, v{vTM}"); A(f"v_lshlrev_b32 v{vTM}, 5, v{vTM}")
        A(f"v_and_b32 v{vTM2}, 3, v{vN}"); A(f"v_lshl_or_b32 v{vTM}, v{vTM2}, 3, v{vTM}")
        A(f"v_lshrrev_b32 v{vTM2}, 2, v{vN}"); A(f"v_lshl_or_b32 v{vTM}, v{vTM2}, 7, v{vTM}")
        A(f"v_lshl_or_b32 v{dst}, v{vG4}, 10, v{vTM}")
    def wide_addr(dst):
        A(f"v_lshrrev_b32 v{vTM}, 2, v{vN}"); A(f"v_lshl_add_u32 v{vTM}, v{vG4}, 2, v{vTM}"); A(f"v_mul_u32_u24 v{vTM}, 896, v{vTM}")
        A(f"v_and_b32 v{vTM2}, 3, v{vN}"); A(f"v_lshl_add_u32 v{vTM}, v{vTM2}, 3, v{vTM}")
        A(f"s_mul_i32 {sT0}, {sW}, 224"); A(f"v_add_u32 v{dst}, {sT0}, v{vTM}")
    def read_tall_tile(base, dstreg, t):
        wait_tile()
        A(f"v_add_u32 v{vAD[0]}, {sSLOT}, v{base}")
        for s in range(4 if t < 3 else 2):
            for h2 in range(2):
                A(f"ds_read_b64_tr_b16 {P(dstreg + 4*(4*t+s) + 2*h2)}, v{vAD[0]} offset:{s*4096+h2*512}")
        A("s_waitcnt lgkmcnt(0)")
        pub_cons()
    def read_wide_tile(base, dstreg, half):
        wait_tile()
        A(f"v_add_u32 v{vAD[0]}, {sSLOT}, v{base}")
        for tt in range(7): A(f"ds_read_b64_tr_b16 {P(dstreg + 4*tt + 2*half)}, v{vAD[0]} offset:{tt*32}")
        A("s_waitcnt lgkmcnt(0)")
        pub_cons()
    def basic_setup():
        A(f"s_sub_u32 {sW}, {sWAVE}, 1"); A(f"s_lshr_b32 {sB}, {sG}, 3"); A(f"s_and_b32 {sHKV}, {sG}, 7")
        A(f"v_and_b32 v{vN}, 15, v{vLANE}"); A(f"v_lshrrev_b32 v{vG4}, 4, v{vLANE}")
        A(f"s_lshl_b32 {sT0}, {sW}, 2"); A(f"s_add_u32 {sT0}, {sT0}, {L_CONS}"); A(f"v_mov_b32 v{vCONS}, {sT0}")
        A("s_mov_b32 s42, 0xffff0000"); A("s_mov_b32 s43, s42")

    if align: A(".p2align 12")
    E.label("L_qprod")
    f14 = vWO+8; vLR = vWO+25; vTA = vWO+26; vQA = vWO+27
    basic_setup()
    A(f"s_or_b32 {sT0}, {sROLE}, {sW}"); A(f"s_cmp_lg_u32 {sT0}, 0"); A("s_cbranch_scc1 L_noinit")
    A(f"s_lshl_b32 {sT0}, {sG}, 8"); A(f"s_add_u32 {sT0}, {sT0}, {WS_CNT}")
    A(f"v_mov_b32 v{vTM2}, {sT0}"); A(f"v_mov_b32 v{vTM3}, 0")
    one_lane(f"global_store_dword v{vTM2}, v{vTM3}, {pWS} {stf}")
    E.label("L_noinit")
    A(f"v_add_u32 v{vLW1}, {L_LN}, v{vLW1}")
    ln_read_addr(vLR, L_LN)
    tall_addr(vTA)
    A(f"s_lshl_b32 {sT0}, {sB}, 2"); A(f"s_add_u32 {sT0}, {sT0}, {sROLE}"); A(f"s_lshl_b32 {sT0}, {sT0}, 2"); A(f"s_add_u32 {sT0}, {sT0}, {sW}")
    A(f"s_lshl_b32 {sT0}, {sT0}, 6"); A(f"s_lshl_b32 {sT1}, {sHKV}, 11"); A(f"s_add_u32 {sT0}, {sT0}, {sT1}"); A(f"s_add_u32 {sT0}, {sT0}, {WS_Q}")
    A(f"v_lshlrev_b32 v{vQA}, 2, v{vN}"); A(f"v_lshl_add_u32 v{vQA}, v{vG4}, 14, v{vQA}"); A(f"v_add_u32 v{vQA}, {sT0}, v{vQA}")
    if qtouch: touch_pad("q")
    A("s_waitcnt vmcnt(0) lgkmcnt(0)")
    stamp(12)
    layernorm(xr1, f14, vLW1, 128, mid=(lambda: pad("q")) if qtouch else None)
    make_tag(sTAG, sE); A(f"v_mov_b32 v{vX+1}, {sTAG}")
    A("s_waitcnt lgkmcnt(0)")
    stamp(13)
    for s in range(14): A(f"ds_read_b128 {Q4(vW2+4*s)}, v{vLR} offset:{s*64}")
    A(f"s_mov_b32 {sN}, 3"); wait_tile()
    stamp(14)
    for s in range(14):
        for h2 in range(2): A(f"ds_read_b64_tr_b16 {P(vW1 + 4*s + 2*h2)}, v{vTA} offset:{s*4096+h2*512}")
        if s % 4 == 3 or s == 13:
            A(f"s_waitcnt lgkmcnt(0)")
            for k in range(s - s % 4, s+1):
                A(f"v_mfma_f32_16x16x32_bf16 {Q4(vS)}, {Q4(vW2+4*k)}, {Q4(vW1+4*k)}, {'0' if k==0 else Q4(vS)}")
    A(f"s_mov_b32 {sSLOT}, {3*SLOT}"); pub_cons()
    A(f"v_cndmask_b32 v{vTM}, v{vS}, v{vS+1}, {sM1}")
    A(f"v_mov_b32_dpp v{vTM2}, v{vTM} quad_perm:[1,0,3,2] row_mask:0xf bank_mask:0xf")
    A(f"v_cvt_pk_bf16_f32 v{vX}, v{vTM}, v{vTM2}")
    A("s_mov_b64 exec, 0x55555555")
    A(f"global_store_dwordx2 v{vQA}, {P(vX)}, {pWS} {stf}")
    A("s_mov_b64 exec, -1")
    stamp(1)

    E.label("L_consumer")
    basic_setup()
    share_consts()
    A("s_mov_b32 s44, 0"); A("s_mov_b32 s45, -1"); A(f"s_mov_b32 {sC}, {C_SCALE:#x}"); A("s_mov_b32 s66, -1"); A("s_mov_b32 s67, 0"); A(f"s_mov_b32 {sTOT}, 0x7fffffff"); A(f"s_mov_b32 {sKNOWN}, 0")
    if hilo: A("s_mov_b32 s64, 0xcccccccc"); A("s_mov_b32 s65, 0xcccccccc")
    stamp(11)
    A(f"s_sub_u32 {sT0}, {sROLE}, 4"); A(f"s_lshl_b32 {sRR}, {sG}, 2"); A(f"s_add_u32 {sRR}, {sRR}, {sT0}")
    A(f"s_cmp_lt_u32 {sT0}, 4"); A(f"s_cselect_b32 {sRR}, {sRR}, 99"); A("s_cbranch_scc0 L_nox")
    A(f"s_bfe_u32 {sT0}, {sRR}, 0x20003"); A(f"s_mul_i32 {sCOL}, {sT0}, 224")
    A(f"s_bfe_u32 {sGP}, {sRR}, 0x20001"); A(f"s_lshl_b32 {sT0}, {sGP}, 6"); A(f"s_add_u32 {sCOL}, {sCOL}, {sT0}")
    A(f"s_and_b32 {sT0}, {sRR}, 1"); A(f"s_lshl_b32 {sT0}, {sT0}, 4"); A(f"s_add_u32 {sCOL}, {sCOL}, {sT0}")
    A(f"s_bfe_u32 {sT0}, {sRR}, 0x10005"); A(f"s_mul_i32 {sT0}, {sT0}, 896"); A(f"s_add_u32 {sCOL}, {sCOL}, {sT0}")
    A(f"v_and_b32 v{vTM}, 6, v{vLANE}"); A(f"v_lshl_add_u32 v{vTM}, v{vTM}, 1, {sCOL}")
    A(f"global_load_dword v{vXH}, v{vTM}, {pX}")
    A(f"v_mov_b32 v{vXH+1}, 0")
    A(f"s_cmp_eq_u32 {sGP}, 3"); A("s_cbranch_scc1 L_nox")
    A(f"global_load_dword v{vXH+1}, v{vTM}, {pX} offset:32")
    E.label("L_nox")
    A(f"v_xor_b32 v{vTM}, v{vG4}, v{vN}"); A(f"v_lshlrev_b32 v{vTM}, 4, v{vTM}"); A(f"v_lshl_or_b32 v{vTM}, v{vN}, 9, v{vTM}")
    for s in range(4): A(f"v_xor_b32 v{vKB[s]}, {s*64}, v{vTM}")
    A(f"v_lshrrev_b32 v{vTM}, 2, v{vN}"); A(f"v_lshl_add_u32 v{vTM}, v{vG4}, 2, v{vTM}")
    A(f"v_and_b32 v{vTM2}, 7, v{vTM}")
    A(f"s_lshl_b32 {sT0}, {sW}, 2"); A(f"v_xor_b32 v{vTM2}, {sT0}, v{vTM2}"); A(f"v_lshlrev_b32 v{vTM2}, 5, v{vTM2}")
    A(f"v_lshl_or_b32 v{vTM}, v{vTM}, 9, v{vTM2}")
    A(f"v_and_b32 v{vTM2}, 3, v{vN}"); A(f"v_lshl_or_b32 v{vTM}, v{vTM2}, 3, v{vTM}")
    for e in range(4): A(f"v_xor_b32 v{vVB[e]}, {e*32}, v{vTM}")
    A(f"v_mov_b32 v{vM}, 0xff800000"); A(f"v_mov_b32 v{vMC}, v{vM}"); A(f"v_mov_b32 v{vL}, 0")
    for i in range(16): A(f"v_mov_b32 v{vO+i}, 0")
    A(f"s_cmp_lt_u32 {sIDX}, 28"); A("s_cbranch_scc1 L_ffn_w")
    def vtile_read(dst):
        for e in range(4): A(f"v_add_u32 v{vAD[e]}, {sSLOT}, v{vVB[e]}")
        for e in range(4):
            for h2 in range(2): A(f"ds_read_b64_tr_b16 {P(dst + 4*e + 2*h2)}, v{vAD[e]} offset:{h2*8192}")
    for p in range(park):
        wait_tile(); vtile_read(vW1+16*p); A("s_waitcnt lgkmcnt(0)"); pub_cons()
    E.label("L_ffn_w_done")
    make_tag(sTAG, sE)
    A(f"s_cmp_lg_u32 {sW}, 0"); A("s_cbranch_scc1 L_q_flag")
    if qwait:
        A(f"s_add_u32 {sN}, {sN}, {qwait-1}"); wait_tile(); A(f"s_sub_u32 {sN}, {sN}, {qwait-1}")
    A(f"s_lshl_b32 {sT0}, {sG}, 11"); A(f"s_add_u32 {sT0}, {sT0}, {WS_Q}")
    A(f"v_lshl_add_u32 v{vTM3}, v{vLANE}, 4, {sT0}")
    poll([f"global_load_dwordx4 {Q4(vF)}, v{vTM3}, {pWS} {ldf}", f"global_load_dwordx4 {Q4(vF+4)}, v{vTM3}, {pWS} offset:1024 {ldf}"],
         [[vF+1, vF+3], [vF+5, vF+7]])
    A(f"v_lshlrev_b32 v{vTM}, 3, v{vLANE}"); A(f"v_add_u32 v{vTM}, {L_QW}, v{vTM}"); A(f"v_mov_b32 v{vTM2}, 1")
    A(f"ds_write2_b32 v{vTM}, v{vF}, v{vF+2} offset0:0 offset1:1"); A(f"ds_write2_b32 v{vTM}, v{vF+4}, v{vF+6} offset0:128 offset1:129")
    one_lane(f"ds_write_b32 v{vFLG}, v{vTM2} offset:32")
    E.label("L_q_flag")
    A(f"ds_read_b32 v{vTM}, v{vFLG} offset:32")
    spin_guard()
    A("s_waitcnt lgkmcnt(0)")
    A(f"v_readfirstlane_b32 {sT0}, v{vTM}")
    A(f"s_cmp_eq_u32 {sT0}, 1"); A("s_cbranch_scc1 L_q_have")
    A("s_sleep 1"); A("s_branch L_q_flag")
    E.label("L_q_have")
    A(f"v_and_b32 v{vTM2}, 1, v{vLANE}"); A(f"v_lshlrev_b32 v{vTM2}, 9, v{vTM2}"); A(f"v_lshl_add_u32 v{vTM2}, v{vG4}, 4, v{vTM2}"); A(f"v_add_u32 v{vTM2}, {L_QW}, v{vTM2}")
    for s in range(8): A(f"ds_read_b128 {Q4(vQ+4*s)}, v{vTM2} offset:{s*64}")
    stamp(2)
    A("s_waitcnt lgkmcnt(0)")

    def qk(nt):
        for s in range(4): A(f"v_add_u32 v{vAD[s]}, {sSLOT}, v{vKB[s]}")
        seq = [(t,s) for s in range(8) for t in range(nt)]; n = len(seq)
        def kread(i):
            t,s = seq[i]; A(f"ds_read_b128 {Q4(vF + 4*(i % NF))}, v{vAD[s&3]} offset:{(s>>2)*256 + t*8192}")
        for i in range(NF): kread(i)
        for i in range(n):
            t,s = seq[i]
            A(f"s_waitcnt lgkmcnt({min(NF-1, n-1-i)})")
            d = Q4(vS+4*t)
            A(f"v_mfma_f32_16x16x32_bf16 {d}, {Q4(vF + 4*(i % NF))}, {Q4(vQ+4*s)}, {'0' if s==0 else d}")
            if i + NF < n: kread(i+NF)
    def probs(nt):
        n = 4*nt
        for i in range(n): A(f"v_fma_f32 v{vS+i}, v{vS+i}, {sC}, -v{vMC}")
        for i in range(n): A(f"v_exp_f32 v{vS+i}, v{vS+i}")
        for i in range(n//2): A(f"v_cvt_pk_bf16_f32 v{vP+i}, v{vS+2*i}, v{vS+2*i+1}")
        if hilo:
            for i in range(n//2):
                t = vF+16+2*(i&1)
                unpack(t, t+1, vP+i)
                A(f"v_pk_add_f32 {P(t)}, {P(vS+2*i)}, {P(t)} neg_lo:[0,1] neg_hi:[0,1]")
                A(f"v_cvt_pk_bf16_f32 v{t}, v{t}, v{t+1}")
                A(f"v_cndmask_b32 v{vP+i}, v{vP+i}, v{t}, s[64:65]")
    def softmax(nt, tag):
        n = 4*nt
        for i in range(n//2): A(f"v_cvt_pk_bf16_f32 v{vP+i}, v{vS+2*i}, v{vS+2*i+1}")
        for i in range(n//2): unpack(vS+2*i, vS+2*i+1, vP+i)
        if nt == 2:
            A(f"v_max3_f32 v{vMX}, v{vS}, v{vS+1}, v{vS+2}"); A(f"v_max3_f32 v{vTM}, v{vS+3}, v{vS+4}, v{vS+5}")
            A(f"v_max3_f32 v{vMX}, v{vMX}, v{vS+6}, v{vS+7}"); A(f"v_max_f32 v{vMX}, v{vMX}, v{vTM}")
        else:
            A(f"v_max3_f32 v{vMX}, v{vS}, v{vS+1}, v{vS+2}"); A(f"v_max_f32 v{vMX}, v{vMX}, v{vS+3}")
        xrow("v_max_f32", [vMX], [vTM])
        A(f"v_cmp_gt_f32 vcc, v{vMX}, v{vM}")
        A("s_cmp_lg_u64 vcc, 0"); A(f"s_cbranch_scc1 L_rescale{tag}")
        E.label(f"L_rescaled{tag}")
        probs(nt)
    def add_l(nt):
        A(f"v_add_f32 v{vTM}, v{vS}, v{vS+1}"); A(f"v_add_f32 v{vMX}, v{vS+2}, v{vS+3}")
        if nt == 2:
            A(f"v_add_f32 v{vS+4}, v{vS+4}, v{vS+5}"); A(f"v_add_f32 v{vS+6}, v{vS+6}, v{vS+7}")
            A(f"v_add_f32 v{vTM}, v{vTM}, v{vS+4}"); A(f"v_add_f32 v{vMX}, v{vMX}, v{vS+6}")
        A(f"v_add_f32 v{vL}, v{vL}, v{vTM}"); A(f"v_add_f32 v{vL}, v{vL}, v{vMX}")
    def rescale(tag):
        E.label(f"L_rescale{tag}")
        A(f"v_max_f32 v{vM}, v{vM}, v{vMX}")
        A(f"v_mul_f32 v{vTM}, {sC}, v{vM}")
        A(f"v_sub_f32 v{vTM2}, v{vMC}, v{vTM}")
        A(f"v_mov_b32 v{vMC}, v{vTM}")
        A(f"v_exp_f32 v{vTM2}, v{vTM2}")
        A(f"v_mul_f32 v{vL}, v{vL}, v{vTM2}")
        A(f"v_mov_b32_dpp v{vTM}, v{vTM2} quad_perm:[0,0,2,2] row_mask:0xf bank_mask:0xf")
        A(f"v_mov_b32_dpp v{vTM3}, v{vTM2} quad_perm:[1,1,3,3] row_mask:0xf bank_mask:0xf")
        for i in range(16): A(f"v_mul_f32 v{vO+i}, v{vO+i}, v{vTM if i%2==0 else vTM3}")
        A(f"s_branch L_rescaled{tag}")
    sKE="s69"; vSA=107
    A(f"s_add_u32 {sKE}, {sN}, {sNS}")
    A(f"s_add_u32 {sN}, {sN}, {sW}"); A(f"s_lshl_b32 {sT0}, {sW}, 14"); A(f"s_add_u32 {sSLOT}, {sSLOT}, {sT0}")
    A(f"s_sub_u32 {sT0}, {sSLOT}, {RING}"); A(f"s_cselect_b32 {sSLOT}, {sSLOT}, {sT0}")
    A(f"v_and_b32 v{vSA}, 1, v{vLANE}"); A(f"v_lshlrev_b32 v{vSA}, 6, v{vSA}"); A(f"v_lshl_add_u32 v{vSA}, v{vG4}, 4, v{vSA}"); A(f"v_add_u32 v{vSA}, {L_SC}, v{vSA}")
    A(f"s_lshl_b32 {sT0}, {sW}, 7"); A(f"v_add_u32 v{vX}, {sT0}, v{vSA}")
    E.label("L_kloop")
    wait_tile()
    qk(2)
    A(f"s_add_u32 {sN}, {sN}, 4"); A(f"s_min_u32 {sN}, {sN}, {sKE}")
    A(f"s_add_u32 {sSLOT}, {sSLOT}, {4*SLOT}"); A(f"s_sub_u32 {sT0}, {sSLOT}, {RING}"); A(f"s_cselect_b32 {sSLOT}, {sSLOT}, {sT0}")
    for i in range(4): A(f"v_cvt_pk_bf16_f32 v{vP+i}, v{vS+2*i}, v{vS+2*i+1}")
    for i in range(4): A(f"v_max3_f32 v{vM}, v{vM}, v{vS+2*i}, v{vS+2*i+1}")
    A("s_mov_b32 exec_lo, 0x30003"); A("s_mov_b32 exec_hi, 0x30003"); A(f"ds_write_b128 v{vX}, {Q4(vP)}"); A("s_mov_b64 exec, -1")
    A(f"v_add_u32 v{vX}, 512, v{vX}")
    A(f"s_cmp_eq_u32 {sN}, {sKE}"); A("s_cbranch_scc1 L_kdone")
    A(f"v_mov_b32 v{vTM}, {sN}"); one_lane(f"ds_write_b32 v{vCONS}, v{vTM}")
    A("s_branch L_kloop")
    E.label("L_kdone")
    xrow("v_max_f32", [vM], [vTM])
    A(f"s_lshl_b32 {sT0}, {sW}, 3"); A(f"s_add_u32 {sT0}, {sT0}, {L_MX}"); A(f"v_lshl_add_u32 v{vTM2}, v{vLANE}, 2, {sT0}")
    A("s_mov_b64 exec, 3"); A(f"ds_write_b32 v{vTM2}, v{vM}"); A("s_mov_b64 exec, -1")
    A(f"v_mov_b32 v{vTM}, {sN}"); one_lane(f"ds_write_b32 v{vCONS}, v{vTM}")
    A(f"s_mul_hi_u32 {sT0}, {sN}, {-(-(1<<32)//NSLOT)}"); A(f"s_mul_i32 {sT0}, {sT0}, {NSLOT}"); A(f"s_sub_u32 {sSLOT}, {sN}, {sT0}"); A(f"s_lshl_b32 {sSLOT}, {sSLOT}, 14")
    A(f"v_and_b32 v{vTM2}, 1, v{vLANE}"); A(f"v_lshlrev_b32 v{vTM2}, 2, v{vTM2}"); A(f"v_add_u32 v{vTM2}, {L_MX}, v{vTM2}")
    E.label("L_ksync")
    A(f"ds_read_b128 {Q4(vAD[0])}, v{vFLG} offset:16")
    A(f"ds_read2_b32 {P(vS)}, v{vTM2} offset0:0 offset1:2"); A(f"ds_read2_b32 {P(vS+2)}, v{vTM2} offset0:4 offset1:6")
    spin_guard()
    A("s_waitcnt lgkmcnt(0)")
    A(f"v_min3_u32 v{vAD[0]}, v{vAD[0]}, v{vAD[1]}, v{vAD[2]}"); A(f"v_min_u32 v{vAD[0]}, v{vAD[0]}, v{vAD[3]}")
    A(f"v_readfirstlane_b32 {sT0}, v{vAD[0]}")
    A(f"s_cmp_lt_u32 {sT0}, {sKE}"); A("s_cbranch_scc1 L_ksync")
    A(f"v_max3_f32 v{vM}, v{vS}, v{vS+1}, v{vS+2}"); A(f"v_max_f32 v{vM}, v{vM}, v{vS+3}")
    round_bf(vM, vM)
    A(f"v_mul_f32 v{vMC}, {sC}, v{vM}")
    E.label("L_loop")
    A(f"ds_read_b128 {Q4(vP)}, v{vSA}")
    A(f"v_add_u32 v{vSA}, 128, v{vSA}")
    A("s_waitcnt lgkmcnt(0)")
    for i in range(4): unpack(vS+2*i, vS+2*i+1, vP+i)
    probs(2); add_l(2)
    A(f"s_cmp_lt_u32 {sCI}, {sPK}"); A("s_cbranch_scc1 L_pv_park")
    wait_tile()
    vtile_read(vF)
    for e in range(4):
        A(f"s_waitcnt lgkmcnt({6-2*e})")
        A(f"v_mfma_f32_16x16x32_bf16 {Q4(vO+4*e)}, {Q4(vP)}, {Q4(vF+4*e)}, {Q4(vO+4*e)}")
    pub_cons()
    E.label("L_pv_done")
    A(f"s_add_u32 {sCI}, {sCI}, 1"); A(f"s_cmp_lt_u32 {sCI}, {sNS}"); A("s_cbranch_scc1 L_loop")
    if touch:
        for nm in ("fin","red","ffn","ffn2"): touch_pad(nm)
    if forcepar is None:
        A(f"v_mov_b32 v{vTM}, {WS_PAR}")
        poll([f"global_load_dwordx4 {Q4(vF)}, v{vTM}, {pWS} {ldf}"], [[vF+1, vF+3]])
        A(f"v_readfirstlane_b32 {sP0}, v{vF}"); A(f"v_readfirstlane_b32 {sP1}, v{vF+2}")
    else:
        A(f"s_mov_b32 {sP0}, {forcepar[0]*8192}"); A(f"s_mov_b32 {sP1}, {forcepar[1]*8192}")
    A(f"s_lshl_b32 {sT0}, {sG}, 2"); A(f"s_and_b32 {sT1}, {sW}, 1"); A(f"s_add_u32 {sT0}, {sT0}, {sT1}"); A(f"s_lshl_b32 {sT0}, {sT0}, 14")
    A(f"s_lshr_b32 {sT1}, {sW}, 1"); A(f"s_lshl_b32 {sT1}, {sT1}, 13"); A(f"s_xor_b32 {sT1}, {sT1}, {sP0}"); A(f"s_add_u32 {sT0}, {sT0}, {sT1}")
    A(f"s_lshl_b32 {sT1}, {sJ}, 8"); A(f"s_add_u32 {sT0}, {sT0}, {sT1}"); A(f"s_add_u32 {sT0}, {sT0}, {WS_A}")
    A(f"v_lshrrev_b32 v{vAA}, 1, v{vG4}"); A(f"v_lshlrev_b32 v{vAA}, 15, v{vAA}")
    A(f"v_and_b32 v{vTM}, 1, v{vG4}"); A(f"v_lshl_or_b32 v{vAA}, v{vTM}, 12, v{vAA}"); A(f"v_lshl_or_b32 v{vAA}, v{vN}, 4, v{vAA}")
    A(f"v_add_u32 v{vAA}, {sT0}, v{vAA}")
    A(f"s_lshr_b32 {sT0}, {sWG}, 3"); A(f"s_lshl_b32 {sT0}, {sT0}, 1"); A(f"s_bfe_u32 {sT1}, {sWG}, 0x10001"); A(f"s_add_u32 {sT0}, {sT0}, {sT1}"); A(f"s_lshl_b32 {sT0}, {sT0}, 14")
    A(f"s_bfe_u32 {sT1}, {sWG}, 0x10002"); A(f"s_lshl_b32 {sT1}, {sT1}, 13"); A(f"s_xor_b32 {sT1}, {sT1}, {sP0}"); A(f"s_add_u32 {sT0}, {sT0}, {sT1}")
    A(f"s_and_b32 {sT1}, {sWG}, 1"); A(f"s_lshl_b32 {sT1}, {sT1}, 12"); A(f"s_add_u32 {sT0}, {sT0}, {sT1}"); A(f"s_add_u32 {sT0}, {sT0}, {WS_A}")
    A(f"v_lshlrev_b32 v{vAI}, 4, v{vN}"); A(f"v_lshl_or_b32 v{vAI}, v{vG4}, 10, v{vAI}"); A(f"v_add_u32 v{vAI}, {sT0}, v{vAI}")
    A(f"v_lshl_add_u32 v{vX+3}, v{vLANE}, 6, {sT0}")
    A(f"s_cmp_eq_u32 {sW}, 0"); A(f"s_cselect_b32 {sWRM}, {0x7fffffff if awarm else 0}, 0")
    A(f"s_cmp_ge_u32 {sRR}, 64"); A(f"s_cbranch_scc1 L_nored"); A(f"s_sub_u32 {sT0}, {sW}, 1"); A(f"s_cmp_ge_u32 {sT0}, 2"); A(f"s_cbranch_scc1 L_nored")
    A(f"s_lshl_b32 {sT0}, {sT0}, 14"); A(f"s_lshl_b32 {sT1}, {sRR}, 15"); A(f"s_add_u32 {sT0}, {sT0}, {sT1}"); A(f"s_add_u32 {sT0}, {sT0}, {sP1}"); A(f"s_add_u32 {sT0}, {sT0}, {WS_B}")
    A(f"v_lshl_add_u32 v{vX+3}, v{vLANE}, 7, {sT0}"); A(f"s_mov_b32 {sWRM}, {[0,0x7fffffff,1,2][bwarm]}")
    if bwarm == 3: A(f"global_load_dword v{vX+2}, v{vX+3}, {pWS} {ldf}")
    E.label("L_nored")
    A(f"s_lshl_b32 {sT0}, {sB}, 2"); A(f"s_add_u32 {sT0}, {sT0}, {sW}"); A(f"s_lshl_b32 {sT0}, {sT0}, 18")
    A(f"s_bfe_u32 {sT1}, {sWG}, 0x10006"); A(f"s_lshl_b32 {sT1}, {sT1}, 14"); A(f"s_add_u32 {sT0}, {sT0}, {sT1}"); A(f"s_add_u32 {sT0}, {sT0}, {sP1}")
    A(f"s_and_b32 {sT1}, {sWG}, 63"); A(f"s_lshl_b32 {sT1}, {sT1}, 7"); A(f"s_add_u32 {sT0}, {sT0}, {sT1}"); A(f"s_add_u32 {sT0}, {sT0}, {WS_B}")
    A(f"v_lshrrev_b32 v{vTM}, 3, v{vLANE}"); A(f"v_lshlrev_b32 v{vTM}, 15, v{vTM}")
    A(f"v_and_b32 v{vTM2}, 7, v{vLANE}"); A(f"v_lshl_or_b32 v{vBA}, v{vTM2}, 4, v{vTM}"); A(f"v_add_u32 v{vBA}, {sT0}, v{vBA}")
    E.label("L_mini")
    wait_tile("L_fin")
    qk(1)
    for e in range(4): A(f"v_add_u32 v{vAD[e]}, {sSLOT}, v{vVB[e]}")
    for e in range(4): A(f"ds_read_b64_tr_b16 {P(vF + 2*e)}, v{vAD[e]} offset:8192")
    softmax(1, "b")
    A("s_waitcnt lgkmcnt(0)")
    for e in range(4): A(f"v_mfma_f32_16x16x16_bf16 {Q4(vO+4*e)}, {P(vP)}, {P(vF+2*e)}, {Q4(vO+4*e)}")
    add_l(1)
    slot_advance()
    A(f"s_cmp_eq_u32 {sN}, {sTOT}"); A("s_cbranch_scc1 L_fin")
    A(f"v_mov_b32 v{vTM}, {sN}"); one_lane(f"ds_write_b32 v{vCONS}, v{vTM}")
    A("s_branch L_mini")
    rescale("b")
    E.label("L_pv_park")
    for p in range(park):
        if p < park-1: nx = lab("pk"); A(f"s_cmp_lg_u32 {sCI}, {p}"); A(f"s_cbranch_scc1 {nx}")
        for e in range(4): A(f"v_mfma_f32_16x16x32_bf16 {Q4(vO+4*e)}, {Q4(vP)}, {Q4(vW1+16*p+4*e)}, {Q4(vO+4*e)}")
        A("s_branch L_pv_done")
        if p < park-1: E.label(nx)

    vG=vF; vI=vF+4; sa=vS; sb=vS+1; sw=vS+2
    vA=vQ; vOPR=vQ+4; vOPW=vQ+5; vR0=vQ+6; vR1=vQ+7; vR2=vQ+8; vR3=vQ+9; vR4=vQ+10; vR5=vQ+11; vZ=vQ+12
    E.label("L_ffn_addr")
    A(f"v_lshrrev_b32 v{vTM}, 3, v{vLANE}"); A(f"v_and_b32 v{vTM2}, 7, v{vLANE}")
    A(f"v_lshlrev_b32 v{vR0}, 9, v{vTM}"); A(f"v_lshl_or_b32 v{vR0}, v{vTM2}, 4, v{vR0}"); A(f"s_add_u32 {sT0}, {sP0}, {WS_H}"); A(f"v_add_u32 v{vR0}, {sT0}, v{vR0}")
    A(f"v_mul_u32_u24 v{vR1}, 224, v{vTM}"); A(f"v_lshl_add_u32 v{vR1}, v{vTM2}, 2, v{vR1}"); A(f"v_add_u32 v{vR1}, {L_LN}, v{vR1}")
    ln_read_addr(vR2, L_LN)
    A(f"s_lshl_b32 {sT0}, {sW}, 5"); A(f"s_add_u32 {sT0}, {sT0}, {L_ACT}")
    A(f"v_lshlrev_b32 v{vR3}, 7, v{vG4}"); A(f"v_lshl_add_u32 v{vR3}, v{vN}, 1, v{vR3}"); A(f"v_add_u32 v{vR3}, {sT0}, v{vR3}")
    A(f"v_and_b32 v{vR4}, 1, v{vLANE}"); A(f"v_lshlrev_b32 v{vR4}, 7, v{vR4}"); A(f"v_lshl_add_u32 v{vR4}, v{vG4}, 3, v{vR4}"); A(f"v_add_u32 v{vR4}, {L_ACT}, v{vR4}")
    A(f"s_lshl_b32 {sT0}, {sW}, 16"); A(f"s_lshl_b32 {sT1}, {sIDX}, 7"); A(f"s_add_u32 {sT0}, {sT0}, {sT1}"); A(f"s_add_u32 {sT0}, {sT0}, {sP0}"); A(f"s_add_u32 {sT0}, {sT0}, {WS_D}")
    A(f"v_lshrrev_b32 v{vTM}, 3, v{vN}"); A(f"v_lshlrev_b32 v{vTM}, 12, v{vTM}"); A(f"v_lshl_or_b32 v{vTM}, v{vG4}, 14, v{vTM}")
    A(f"v_lshl_or_b32 v{vTM}, v{vTM2}, 4, v{vTM}"); A(f"v_add_u32 v{vR5}, {sT0}, v{vTM}")
    A("s_branch L_addr_done")
    if align: A(".p2align 12")
    if touch: E.label("L_pad_fin"); A("s_branch L_ret_fin")
    E.label("L_fin")
    stamp(3)
    yreg = [vO, vO+4, vO+8, vO+12, vQ+16, vQ+20, vQ+24]
    xrow("v_add_f32", [vL], [vTM])
    if hilo:
        for e in range(4): A(f"v_pk_add_f32 {P(vO+4*e)}, {P(vO+4*e)}, {P(vO+4*e+2)}")
    A(f"v_log_f32 v{vTM2}, v{vL}"); A(f"v_rcp_f32 v{vTM3}, v{vL}")
    A(f"v_mov_b32 v{vG+3}, {sTAG}")
    A(f"v_add_f32 v{vTM2}, v{vMC}, v{vTM2}")
    SEL4(vG, vO+0, vO+8, vO+1, vO+9, vMX)
    A(f"v_mov_b32_dpp v{vTM}, v{vTM3} quad_perm:[0,0,2,2] row_mask:0x3 bank_mask:0xf")
    A(f"v_mov_b32_dpp v{vG+2}, v{vTM2} quad_perm:[0,0,2,2] row_mask:0x3 bank_mask:0xf")
    SEL4(vG+1, vO+4, vO+12, vO+5, vO+13, vMX)
    A(f"v_mov_b32_dpp v{vTM}, v{vTM3} quad_perm:[1,1,3,3] row_mask:0xc bank_mask:0xf")
    A(f"v_mov_b32_dpp v{vG+2}, v{vTM2} quad_perm:[1,1,3,3] row_mask:0xc bank_mask:0xf")
    A(f"v_mul_f32 v{vG}, v{vG}, v{vTM}"); A(f"v_mul_f32 v{vG+1}, v{vG+1}, v{vTM}")
    A(f"global_store_dwordx4 v{vAA}, {Q4(vG)}, {pWS} {stf}")
    stamp(4)
    if bwarm == 2:
        A(f"s_cmp_lg_u32 {sWRM}, 1"); A("s_cbranch_scc1 L_nobw")
        A(f"global_load_dword v{vX+2}, v{vX+3}, {pWS} {ldf}")
        E.label("L_nobw")
    A(f"v_lshlrev_b32 v{vOPR}, 3, v{vG4}"); A(f"v_add_u32 v{vOPR}, {L_OP}, v{vOPR}")
    A(f"v_lshlrev_b32 v{vOPW}, 1, v{vN}"); A(f"v_add_u32 v{vOPW}, {L_OP}, v{vOPW}")
    A(f"v_mov_b32 v{vZ}, 0")
    A(f"s_cmp_lt_u32 {sIDX}, 28"); A("s_cbranch_scc1 L_ffn_addr")
    A(f"s_cmp_ge_u32 {sRR}, 64"); A("s_cbranch_scc1 L_addr_done")
    A(f"s_lshl_b32 {sT0}, {sRR}, 15"); A(f"s_lshr_b32 {sT1}, {sW}, 1"); A(f"s_lshl_b32 {sT1}, {sT1}, 14"); A(f"s_add_u32 {sT0}, {sT0}, {sT1}")
    A(f"s_and_b32 {sT1}, {sW}, 1"); A(f"s_lshl_b32 {sT1}, {sT1}, 12"); A(f"s_add_u32 {sT0}, {sT0}, {sT1}"); A(f"s_add_u32 {sT0}, {sT0}, {sP1}"); A(f"s_add_u32 {sT0}, {sT0}, {WS_B}")
    A(f"v_lshl_add_u32 v{vR0}, v{vLANE}, 4, {sT0}")
    A(f"s_lshl_b32 {sT0}, {sW}, 6"); A(f"s_add_u32 {sT0}, {sT0}, {L_RED}")
    A(f"v_and_b32 v{vTM}, 7, v{vLANE}"); A(f"v_lshl_add_u32 v{vR1}, v{vTM}, 2, {sT0}")
    A(f"v_and_b32 v{vTM}, 6, v{vLANE}"); A(f"v_lshlrev_b32 v{vR2}, 2, v{vTM}"); A(f"v_add_u32 v{vR2}, {L_RED}, v{vR2}")
    A(f"s_lshl_b32 {sT0}, {sRR}, 6"); A(f"s_add_u32 {sT0}, {sT0}, {sP0}"); A(f"s_add_u32 {sT0}, {sT0}, {WS_H}"); A(f"v_lshl_add_u32 v{vR3}, v{vTM}, 3, {sT0}")
    A(f"s_lshr_b32 {sT0}, {sRR}, 1"); A(f"s_lshl_b32 {sT0}, {sT0}, 14"); A(f"s_and_b32 {sT1}, {sRR}, 1"); A(f"s_lshl_b32 {sT1}, {sT1}, 12"); A(f"s_add_u32 {sT0}, {sT0}, {sT1}")
    A(f"s_add_u32 {sT0}, {sT0}, {sP0}"); A(f"s_add_u32 {sT0}, {sT0}, {WS_D}"); A(f"v_lshl_add_u32 v{vR4}, v{vLANE}, 4, {sT0}")
    A(f"v_lshl_add_u32 v{vR5}, v{vTM}, 1, {sCOL}")
    E.label("L_addr_done")
    aloads = [f"global_load_dwordx4 {Q4(vI+4*i)}, v{vAI}, {pWS} offset:{i*256} {ldf}" for i in range(4)]
    A(f"s_cmp_lg_u32 {sW}, 0"); A("s_cbranch_scc1 L_a_nopoll")
    for l in aloads: A(l)
    E.label("L_a_nopoll")
    wide_addr(vX)
    for h in range(2): read_wide_tile(vX, vWO, h)
    A(f"s_cmp_lg_u32 {sW}, 0"); A("s_cbranch_scc1 L_a_join")
    poll(aloads, [[vI+4*i+3] for i in range(4)], issued=True)
    stamp(5)
    A(f"v_max3_f32 v{vMX}, v{vI+2}, v{vI+6}, v{vI+10}"); A(f"v_max_f32 v{vMX}, v{vMX}, v{vI+14}")
    xrow("v_max_f32", [vMX], [vTM])
    for i in range(4): A(f"v_sub_f32 v{vI+4*i+2}, v{vI+4*i+2}, v{vMX}")
    for i in range(4): A(f"v_exp_f32 v{vI+4*i+2}, v{vI+4*i+2}")
    A(f"v_mul_f32 v{sa}, v{vI}, v{vI+2}"); A(f"v_mul_f32 v{sb}, v{vI+1}, v{vI+2}"); A(f"v_add_f32 v{sw}, v{vI+2}, v{vI+6}")
    for i in range(1,4):
        A(f"v_fmac_f32 v{sa}, v{vI+4*i}, v{vI+4*i+2}"); A(f"v_fmac_f32 v{sb}, v{vI+4*i+1}, v{vI+4*i+2}")
        if i > 1: A(f"v_add_f32 v{sw}, v{sw}, v{vI+4*i+2}")
    xrow("v_add_f32", [sw, sa, sb], [vS+3, vS+4, vS+5])
    A(f"v_rcp_f32 v{sw}, v{sw}")
    A(f"v_mul_f32 v{sa}, v{sa}, v{sw}"); A(f"v_mul_f32 v{sb}, v{sb}, v{sw}")
    A(f"v_mov_b32_dpp v{vS+3}, v{sa} quad_perm:[1,0,3,2] row_mask:0xf bank_mask:0xf")
    A(f"v_mov_b32_dpp v{vS+4}, v{sb} quad_perm:[1,0,3,2] row_mask:0xf bank_mask:0xf")
    A(f"v_cvt_pk_bf16_f32 v{sa}, v{sa}, v{vS+3}"); A(f"v_cvt_pk_bf16_f32 v{sb}, v{sb}, v{vS+4}")
    A("s_mov_b64 exec, 0x5555"); A(f"ds_write2_b32 v{vOPW}, v{sa}, v{sb} offset0:0 offset1:8"); A("s_mov_b64 exec, -1")
    A("s_waitcnt lgkmcnt(0)")
    E.label("L_a_join")
    A("s_barrier")
    A(f"ds_read2_b64 {Q4(vA)}, v{vOPR} offset0:0 offset1:4")
    A(f"v_mov_b32 v{vG+1}, {sTAG}")
    A("s_waitcnt lgkmcnt(0)")
    for t in (0,2,4,6,1,3,5):
        A(f"v_mfma_f32_16x16x32_bf16 {Q4(yreg[t])}, {Q4(vA)}, {Q4(vWO+4*t)}, 0")
    SEL4(vG, yreg[0], yreg[2], yreg[4], yreg[6], vMX)
    SEL4(vG+2, yreg[1], yreg[3], yreg[5], vZ, vTM)
    A(f"global_store_dwordx4 v{vBA}, {Q4(vG)}, {pWS} {stf}")
    stamp(6)
    A(f"s_cmp_lt_u32 {sIDX}, 28"); A("s_cbranch_scc1 L_ffn")
    A(f"s_cmp_ge_u32 {sRR}, 64"); A("s_cbranch_scc1 L_done")
    def inbox(addr): return [f"global_load_dwordx4 {Q4(vI+4*i)}, v{addr}, {pWS} offset:{i*1024} {ldf}" for i in range(4)]
    tags2 = [[vI+4*i+3] if onetag else [vI+4*i+1, vI+4*i+3] for i in range(4)]
    def sum_inbox():
        A(f"v_add_f32 v{sa}, v{vI}, v{vI+4}"); A(f"v_add_f32 v{sb}, v{vI+2}, v{vI+6}")
        A(f"v_add_f32 v{vS+2}, v{vI+8}, v{vI+12}"); A(f"v_add_f32 v{vS+3}, v{vI+10}, v{vI+14}")
        A(f"v_add_f32 v{sa}, v{sa}, v{vS+2}"); A(f"v_add_f32 v{sb}, v{sb}, v{vS+3}")
        A(f"v_add_f32_dpp v{sa}, v{sa}, v{sa} row_ror:8 row_mask:0xf bank_mask:0xf")
        A(f"v_add_f32_dpp v{sb}, v{sb}, v{sb} row_ror:8 row_mask:0xf bank_mask:0xf")
        xrow("v_add_f32", [sa, sb], [vS+2, vS+3])
    vXF = vO
    unpack(vXF, vXF+1, vXH); unpack(vXF+2, vXF+3, vXH+1)
    if touch: pad("red")
    poll(inbox(vR0), tags2)
    stamp(7)
    sum_inbox()
    A("s_mov_b64 exec, 0xff"); A(f"ds_write2_b32 v{vR1}, v{sa}, v{sb} offset0:0 offset1:8"); A("s_mov_b64 exec, -1")
    A("s_waitcnt lgkmcnt(0)"); A("s_barrier")
    A(f"s_cmp_lg_u32 {sW}, 0"); A("s_cbranch_scc1 L_done")
    for i in range(4): A(f"ds_read2_b64 {Q4(vI+4*i)}, v{vR2} offset0:{i*8} offset1:{i*8+4}")
    def add_resid(y, dst):
        A(f"v_cvt_pk_bf16_f32 v{dst}, v{y}, v{y+1}"); A(f"v_cvt_pk_bf16_f32 v{dst+2}, v{y+2}, v{y+3}")
        unpack(y, y+1, dst); unpack(y+2, y+3, dst+2)
        A(f"v_pk_add_f32 {P(y)}, {P(y)}, {P(vXF)}"); A(f"v_pk_add_f32 {P(y+2)}, {P(y+2)}, {P(vXF+2)}")
        A(f"v_cvt_pk_bf16_f32 v{dst}, v{y}, v{y+1}"); A(f"v_cvt_pk_bf16_f32 v{dst+2}, v{y+2}, v{y+3}")
    A("s_waitcnt lgkmcnt(2)")
    A(f"v_pk_add_f32 {P(vI)}, {P(vI)}, {P(vI+4)}"); A(f"v_pk_add_f32 {P(vI+2)}, {P(vI+2)}, {P(vI+6)}")
    A("s_waitcnt lgkmcnt(0)")
    A(f"v_pk_add_f32 {P(vI+8)}, {P(vI+8)}, {P(vI+12)}"); A(f"v_pk_add_f32 {P(vI+10)}, {P(vI+10)}, {P(vI+14)}")
    A(f"v_pk_add_f32 {P(vI)}, {P(vI)}, {P(vI+8)}"); A(f"v_pk_add_f32 {P(vI+2)}, {P(vI+2)}, {P(vI+10)}")
    add_resid(vI, vG)
    A("s_mov_b64 exec, 0x55"); A(f"global_store_dwordx4 v{vR3}, {Q4(vG)}, {pWS} {stf}"); A("s_mov_b64 exec, -1")
    stamp(8)
    unpack(vXF, vXF+1, vG); unpack(vXF+2, vXF+3, vG+2)
    A(f"v_mov_b32 v{vI+12}, 0"); A(f"v_mov_b32 v{vI+13}, {sTAG}"); A(f"v_mov_b32 v{vI+14}, 0"); A(f"v_mov_b32 v{vI+15}, {sTAG}")
    poll(inbox(vR4), tags2, first_mask=[-1,-1,-1,"s[66:67]"])
    stamp(9)
    sum_inbox()
    A(f"v_mov_b32_dpp v{vI}, v{sa} quad_perm:[0,0,2,2] row_mask:0xf bank_mask:0xf"); A(f"v_mov_b32_dpp v{vI+1}, v{sa} quad_perm:[1,1,3,3] row_mask:0xf bank_mask:0xf")
    A(f"v_mov_b32_dpp v{vI+2}, v{sb} quad_perm:[0,0,2,2] row_mask:0xf bank_mask:0xf"); A(f"v_mov_b32_dpp v{vI+3}, v{sb} quad_perm:[1,1,3,3] row_mask:0xf bank_mask:0xf")
    add_resid(vI, vI+4)
    A("s_mov_b64 exec, 0x55"); A(f"global_store_dword v{vR5}, v{vI+4}, {pOUT} {outf}")
    A(f"s_cmp_eq_u32 {sGP}, 3"); A("s_cbranch_scc1 L_done")
    A(f"global_store_dword v{vR5}, v{vI+6}, {pOUT} offset:32 {outf}")
    A(f"s_cmp_lg_u32 {sRR}, 0"); A("s_cbranch_scc1 L_done")
    A(f"s_add_u32 {sT0}, {sE}, 1"); A(f"v_mov_b32 v{vTM2}, {sT0}"); A(f"v_mov_b32 v{vTM3}, {WS_E}")
    A("s_mov_b64 exec, 1"); A(f"global_store_dword v{vTM3}, v{vTM2}, {pWS} {stf}")
    if enc:
        A("s_memrealtime s[90:91]"); A("s_waitcnt lgkmcnt(0)")
        A(f"s_sub_u32 {sT0}, s{70+2*enc[1]}, s{70+2*enc[0]}"); A(f"s_lshl_b32 {sT0}, {sT0}, 2"); A(f"s_min_u32 {sT0}, {sT0}, 100000")
        E.label("L_enc")
        A("s_memrealtime s[94:95]"); A("s_waitcnt lgkmcnt(0)")
        A(f"s_sub_u32 {sT1}, s94, s90"); A(f"s_cmp_lt_u32 {sT1}, {sT0}"); A("s_cbranch_scc1 L_enc")
    A("s_branch L_done")
    if touch: E.label("L_pad_ffn"); A("s_branch L_ret_ffn")
    E.label("L_ffn")
    A(f"s_cmp_lg_u32 {sW}, 0"); A("s_cbranch_scc1 L_c_join")
    poll([f"global_load_dwordx4 {Q4(vI+4*u)}, v{vR0}, {pWS} offset:{u*128} {ldf}" for u in range(4)], tags2)
    stamp(7)
    layernorm([vI+2*u for u in range(7)], vO, vR1, 32, mid=(lambda: pad("ffn2")) if touch else None)
    A("s_waitcnt lgkmcnt(0)")
    E.label("L_c_join")
    A("s_barrier")
    def aread(i): A(f"ds_read_b128 {Q4(vF + 4*(i % NF))}, v{vR2} offset:{i*64}")
    for i in range(NF): aread(i)
    for i in range(14):
        A(f"s_waitcnt lgkmcnt({min(NF-1, 13-i)})")
        A(f"v_mfma_f32_16x16x32_bf16 {Q4(vS)}, {Q4(vF + 4*(i % NF))}, {Q4(vW1+4*i)}, {'0' if i==0 else Q4(vS)}")
        if i + NF < 14: aread(i+NF)
    for b in range(2): A(f"v_mov_b32 v{vO+4*b+1}, {sTAG}"); A(f"v_mov_b32 v{vO+4*b+3}, {sTAG}")
    A(f"v_add_u32 v{vR0}, {16*16384}, v{vR5}")
    A(f"v_cndmask_b32 v{vTM}, v{vS}, v{vS+1}, {sM1}")
    round_bf(vTM, vTM)
    A(f"v_mul_f32 v{vTM2}, {(LOG2E | 0x80000000):#x}, v{vTM}")
    A(f"v_exp_f32 v{vTM2}, v{vTM2}")
    A(f"v_add_f32 v{vTM2}, 1.0, v{vTM2}")
    A(f"v_rcp_f32 v{vTM2}, v{vTM2}")
    A(f"v_mul_f32 v{vTM}, v{vTM}, v{vTM2}")
    A(f"v_cvt_pk_bf16_f32 v{vTM}, v{vTM}, v{vTM}")
    A("s_mov_b32 exec_hi, 0"); A(f"ds_write_b16 v{vR3}, v{vTM}"); A("s_mov_b32 exec_hi, -1")
    A("s_waitcnt lgkmcnt(0)"); A("s_barrier")
    for ks in range(2): A(f"ds_read2_b64 {Q4(vF+4*ks)}, v{vR4} offset0:{ks*8} offset1:{ks*8+4}")
    zreg = [vW1+4*t for t in range(7)]
    for ks in range(2):
        A(f"s_waitcnt lgkmcnt({1-ks})")
        for t in (0,2,4,6,1,3,5):
            A(f"v_mfma_f32_16x16x32_bf16 {Q4(zreg[t])}, {Q4(vF+4*ks)}, {Q4(vW2+28*ks+4*t)}, {'0' if ks==0 else Q4(zreg[t])}")
    for b in range(2): SEL4(vO+4*b, zreg[0]+b, zreg[2]+b, zreg[4]+b, zreg[6]+b, vMX)
    for b in range(2):
        SEL4(vO+4*b+2, zreg[1]+b, zreg[3]+b, zreg[5]+b, vZ, vMX)
        A(f"global_store_dwordx4 v{vR5 if b == 0 else vR0}, {Q4(vO+4*b)}, {pWS} {stf}")
    stamp(8)
    E.label("L_done")
    if diag:
        stamp(10)
        A("s_mov_b64 exec, -1")
        A(f"s_lshl_b32 {sT0}, {sWG}, 2"); A(f"s_add_u32 {sT0}, {sT0}, {sW}"); A(f"s_lshl_b32 {sT0}, {sT0}, 7"); A(f"s_add_u32 {sT0}, {sT0}, {WS_ST}")
        A("s_getreg_b32 s100, hwreg(HW_REG_XCC_ID)")
        A("s_waitcnt lgkmcnt(0)")
        A(f"v_mov_b32 v{vTM}, {sT0}")
        A("s_mov_b64 exec, 1")
        for k in range(11): A(f"v_mov_b32 v{vW1+k}, s{70+2*k}")
        A(f"v_mov_b32 v{vW1+11}, s100"); A(f"v_mov_b32 v{vW1+12}, {sN}"); A(f"v_mov_b32 v{vW1+13}, {sROLE}"); A(f"v_mov_b32 v{vW1+14}, {sWG}"); A(f"v_mov_b32 v{vW1+15}, {sIDX}")
        for k in range(4): A(f"v_mov_b32 v{vW1+16+k}, s{92+2*k}")
        for q in range(5): A(f"global_store_dwordx4 v{vTM}, {Q4(vW1+4*q)}, {pWS} offset:{q*16}")
    E.label("L_end")
    A("s_endpgm")

    E.label("L_ffn_w")
    wide_addr(vX); tall_addr(vX+1)
    for t in range(4): read_tall_tile(vX+1, vW1, t)
    for t in range(4): read_wide_tile(vX, vW2 + 28*(t>>1), t & 1)
    A("s_branch L_ffn_w_done")
    E.label("L_ld_ffn")
    tall_voffs(3584)
    A(f"s_mov_b64 s[48:49], s[{pW1[0]}:{pW1[1]}]"); A(f"s_mov_b32 s50, {448*1792*2}")
    A(f"s_lshl_b32 {sBASE}, {sIDX}, 7")
    for t in range(4):
        if t % 2 == 0: freecheck(2)
        tile_tall(3584, t, 16 if t < 3 else 8)
    A(f"s_mov_b64 s[48:49], s[{pW2[0]}:{pW2[1]}]")
    A(f"s_mul_i32 {sBASE}, {sIDX}, {64*896}"); A(f"s_add_u32 {sT2}, {sN}, 4")
    E.label("L_ld_w2")
    freecheck(1)
    tile_wide()
    A(f"s_cmp_lt_u32 {sN}, {sT2}"); A("s_cbranch_scc1 L_ld_w2")
    A("s_branch L_ld_head_done")
    if forcepar is None:
        E.label("L_probe")
        A(f"s_load_dword s69, {pWS}, {WS_E}")
        A("s_mov_b64 exec, 1")
        for k,off in enumerate((WS_PRB, WS_PRB+8192, WS_B, WS_B+8192)):
            A(f"v_mov_b32 v{32+k}, {off}"); A(f"s_mov_b32 s{92+k}, 0")
        A("v_mov_b32 v36, 0"); A(f"s_mov_b32 {sCI}, {nprobe}")
        for k in range(4): A(f"global_atomic_add v37, v{32+k}, v36, {pWS} sc0")
        A("s_waitcnt vmcnt(0)")
        E.label("L_probe_loop")
        for k in range(4):
            A("s_memtime s[64:65]"); A("s_waitcnt lgkmcnt(0)")
            A(f"global_atomic_add v37, v{32+k}, v36, {pWS} sc0"); A("s_waitcnt vmcnt(0)")
            A("s_memtime s[66:67]"); A("s_waitcnt lgkmcnt(0)")
            A("s_sub_u32 s66, s66, s64"); A(f"s_min_u32 s66, s66, {clip}"); A(f"s_add_u32 s{92+k}, s{92+k}, s66")
        A(f"s_sub_u32 {sCI}, {sCI}, 1"); A(f"s_cmp_lg_u32 {sCI}, 0"); A("s_cbranch_scc1 L_probe_loop")
        A("s_cmp_gt_u32 s92, s93"); A(f"s_cselect_b32 {sT0}, 8192, 0")
        A("s_cmp_gt_u32 s94, s95"); A(f"s_cselect_b32 {sT1}, 8192, 0")
        make_tag(sT2, "s69")
        A(f"v_mov_b32 v32, {sT0}"); A(f"v_mov_b32 v33, {sT2}"); A(f"v_mov_b32 v34, {sT1}"); A(f"v_mov_b32 v35, {sT2}"); A(f"v_mov_b32 v36, {WS_PAR}")
        A(f"global_store_dwordx4 v36, v[32:35], {pWS} {stf}")
        A("s_mov_b64 exec, -1")
        A("s_branch L_ld_wo")

    body = E.finish()
    head = open("sequential_preLN__gqa_block_cached__dense_activation_silu__decode.s.ref").read().split("; Override launch")[0]
    src = head + f"""; Design (one persistent launch, 256 workgroups = one per CU, written by my own generator script):
;  * workgroup = (batch, kv head) group g = id>>4, split j = id&15.  Wave 0 streams K/V with LDS-DMA into a 9 x 16 KiB
;    LDS ring; waves 1-4 compute with MFMA.  Every split owns 64 tiles of 32 keys: first its K (scores to LDS, true
;    maximum), then its V (each wave 64 of the 256 dims); the last tiles form a per-group pool handed out with an atomic
;    counter as 16-key tiles with online softmax (true running maximum).
;  * q = LN(x) @ wq is computed by 64 workgroups and handed over in tagged granules; V tiles are parked in registers meanwhile.
;  * tail, four tagged hand-offs through d_ws: split combine + wo rows -> column sums + residual -> LN, w1, silu, w2 rows
;    -> column sums + residual.  bf16 roundings sit where the reference materialises bf16 tensors.
;  * tag = hash of an epoch word found in d_ws (advanced at the end): it only tells this launch's granules from older ones.
;  * one workgroup times a few zero-adds to learn which 8 KiB parity of the hand-off pages is close to the readers;
;    the answer and the role/id mapping only pick addresses (speed), never values.  All spins are bounded.
; @launch grid=(256,1,1) block=(320,1,1) lds={LDS}
.amdgcn_target "amdgcn-amd-amdhsa--gfx950"
.text
.globl {NAME}
{'.p2align 12' if align else ''}
.p2align 8
.type {NAME},@function
{NAME}:
{body}.section .rodata,"a"
.p2align 6
.amdhsa_kernel {NAME}
  .amdhsa_next_free_vgpr 256
  .amdhsa_next_free_sgpr 102
  .amdhsa_accum_offset 256
  .amdhsa_group_segment_fixed_size 0
  .amdhsa_kernarg_size 88
  .amdhsa_user_sgpr_count 2
  .amdhsa_user_sgpr_kernarg_segment_ptr 1
  .amdhsa_system_sgpr_workgroup_id_x 1
.end_amdhsa_kernel
"""
    return src, E.npad

if __name__ == "__main__":
    out = sys.argv[1]
    kw = json.loads(sys.argv[2]) if len(sys.argv) > 2 else {}
    src, npad = gen(**kw)
    open(out, "w").write(src)
    print("wrote", out, "lines", src.count("\n"), "pad states", npad)
```

```python
import sys, json, struct
from emit import Emitter

NAME = "sequential_preLN__gqa_block_cached__dense_activation_silu__decode_kernel"
def f2u(x): return struct.unpack("<I", struct.pack("<f", x))[0]

def gen(W=19, NS=57, NA=60, diag=False, hilo=True, spin=1<<20, enc=None, NF=5, ldst=None, qwait=2, forcepar=None, nprobe=3, clip=2000,
        touch=0, qtouch=1, lastfast=1, outf='sc1', onetag=1, nap=0, grp=4, align=1, park=4, ltouch=0, wpre=(2,4), awarm=1, bwarm=3, WD=None, jpos=(15,16,20,21), MAXA=24, front=1):
    E = Emitter(); A = E
    pol = "nt"; stf = ldf = "sc1"
    NSLOT = 9; SLOT = 16384; RING = NSLOT*SLOT; LDS = 163840
    L_FLAG = RING; L_CONS = RING+16; L_RED = RING+256; L_OP = RING+512; L_ACT = RING+768; L_QW = RING+1024; L_LN = RING+2048; L_SC = RING+4096; L_MX = RING+64; L_KD = 36
    WS_E = 0; WS_PAR = 0x800; WS_CNT = 0x1000; WS_H = 0x4000; WS_Q = 0x8000; WS_PRB = 0x10000; WS_D = 0x80000; WS_A = 0x100000; WS_B = 0x200000; WS_ST = 0x400000
    C_SCALE = f2u(1.4426950408889634/16.0); LOG2E = f2u(1.4426950408889634); INV448 = f2u(1.0/448.0); EPS = f2u(1e-5)
    PA = 16+16*(NA-NS); POOL = 32*(64-NA); PROBE = 15*16+3; assert (NS+MAXA)*128 <= 12288 and 16*MAXA >= PA
    assert 12 <= W <= 32 and NF <= 5
    sWG="s2"; sWAVE="s3"
    pX="s[4:5]"; pK=(6,7); pV=(8,9); pWQ=(10,11); pWO=(12,13); pW1=(16,17); pW2=(18,19); pOUT="s[20:21]"; pWS="s[24:25]"
    sG="s26"; sJ="s27"; sROLE="s28"; sN="s31"; sSLOT="s32"; sKNOWN="s33"; sT0="s34"; sT1="s35"; sT2="s36"
    sCI="s37"; sSPIN="s38"; sIDX="s39"; sNS="s63"; sPK="s68"
    vK=[4+i for i in range(8)]; vV=[12+i for i in range(4)]; vLIN=16; vT=[17,18]; vFL=21; vTMP=22; vC=24; vCA=28; vONE=29; vCL=[30,31]
    srdK="s[40:43]"; srdV="s[44:47]"; srdW="s[48:51]"; srdZ="s[52:55]"
    sCUR="s56"; sGB="s57"; sOFF="s58"; sCLM="s59"; sBASE="s61"; sFLOOR="s62"; sOWN="s60"; sVC="s64"; sK0="s66"
    sB="s29"; sHKV="s30"; sW="s40"; sTAG="s41"; sM1="s[42:43]"; sM2="s[44:45]"; sC="s46"; sE="s47"; sRR="s48"; sTOT="s49"
    sCK=["s[50:51]","s[52:53]","s[54:55]","s[56:57]"]; sCOL="s58"; sGP="s59"; sP0="s60"; sP1="s61"; sWRM="s62"; sKE="s69"; sN0="s101"
    vLANE=0; vN=1; vG4=2; vFLG=3; vCONS=4; vTM=5; vTM2=6; vTM3=7
    vM=8; vMC=9; vL=10; vMX=11
    vKB=[12,13,14,15]; vVB=[16,17,18,19]; vAD=[20,21,22,23]
    vS=24; vP=32; vO=36; vQ=52; vF=84; vAA=104; vAI=105; vBA=106
    vWO=108; vW1=136; vW2=192; vX=248; vXH=254
    xr1 = [vWO+u for u in range(7)]; vLW1 = vWO+24

    uid=[0]
    def lab(p): uid[0]+=1; return f"L_{p}_{uid[0]}"
    def P(r): return f"v[{r}:{r+1}]"
    def Q4(r): return f"v[{r}:{r+3}]"
    def stamp(k):
        if not diag and not (enc and k in (0, enc[0], enc[1])): return
        A(f"s_memrealtime s[{70+2*k}:{71+2*k}]")
    def slot_advance():
        A(f"s_add_u32 {sN}, {sN}, 1"); A(f"s_add_u32 {sSLOT}, {sSLOT}, {SLOT}")
        A(f"s_cmp_eq_u32 {sSLOT}, {RING}"); A(f"s_cselect_b32 {sSLOT}, 0, {sSLOT}")
    def spin_guard(): A(f"s_sub_u32 {sSPIN}, {sSPIN}, 1"); A("s_cbranch_scc1 L_end")
    def one_lane(ins): A("s_mov_b64 exec, 1"); A(ins); A("s_mov_b64 exec, -1")
    def share_consts(part=3):
        if part & 1:
            A(f"s_sub_u32 {sT0}, {sROLE}, 8"); A(f"s_lshl_b32 {sIDX}, {sG}, 1"); A(f"s_add_u32 {sIDX}, {sIDX}, {sT0}")
            A(f"s_cmp_lt_u32 {sT0}, 2"); A(f"s_cselect_b32 {sIDX}, {sIDX}, 99")
            A(f"s_cmp_lt_u32 {sROLE}, 4"); A(f"s_cselect_b32 {sPK}, {park//2}, {park}")
            A(f"s_cmp_lt_u32 {sIDX}, 28"); A(f"s_cselect_b32 {sPK}, 0, {sPK}"); A(f"s_cmp_eq_u32 {sIDX}, 30"); A(f"s_cselect_b32 {sPK}, 0, {sPK}")
        if part & 2:
            A(f"s_cmp_lt_u32 {sROLE}, 4"); A(f"s_cselect_b32 {sNS}, {NS-2}, {NS}")
            A(f"s_cmp_lt_u32 {sIDX}, 30"); A(f"s_cselect_b32 {sNS}, {NS-4}, {sNS}"); A(f"s_cmp_eq_u32 {sIDX}, 30"); A(f"s_cselect_b32 {sNS}, {NS-8}, {sNS}")
    def make_tag(dst, e): A(f"s_mul_i32 {dst}, {e}, 0x9e3779b1"); A(f"s_add_u32 {dst}, {dst}, 0x7f4a7c15")
    pads = []
    def pad(name):
        sk = lab("padskip"); A(f"s_branch {sk}"); E.label(f"L_pad_{name}"); A(f"s_branch L_ret_{name}"); E.label(sk)
    def touch_pad(name): A(f"s_branch L_pad_{name}"); E.label(f"L_ret_{name}")

    A(f"s_cmp_ge_u32 {sWG}, 256"); A("s_cbranch_scc1 L_end")
    stamp(0)
    A("s_load_dwordx16 s[4:19], s[0:1], 0"); A("s_load_dwordx4 s[20:23], s[0:1], 64"); A("s_load_dwordx2 s[24:25], s[0:1], 80")
    A("v_lshrrev_b32 v1, 6, v0"); A("v_and_b32 v0, 63, v0"); A(f"v_readfirstlane_b32 {sWAVE}, v1")
    A(f"s_lshr_b32 {sG}, {sWG}, 4"); A(f"s_and_b32 {sJ}, {sWG}, 15")
    A(f"s_lshr_b32 {sT0}, {sJ}, 1"); A(f"s_and_b32 {sT0}, {sT0}, 4"); A(f"s_and_b32 {sROLE}, {sJ}, 3"); A(f"s_add_u32 {sROLE}, {sROLE}, {sT0}")
    A(f"s_sub_u32 {sROLE}, {sROLE}, {sG}"); A(f"s_and_b32 {sROLE}, {sROLE}, 7")
    A(f"s_add_u32 {sT0}, {sROLE}, 4"); A(f"s_add_u32 {sT1}, {sROLE}, 8"); A(f"s_cmp_lt_u32 {sROLE}, 4"); A(f"s_cselect_b32 {sROLE}, {sROLE}, {sT1}")
    A(f"s_bitcmp1_b32 {sJ}, 2"); A(f"s_cselect_b32 {sROLE}, {sROLE}, {sT0}")
    A(f"s_mov_b32 {sN}, 0"); A(f"s_mov_b64 s[32:33], 0"); A(f"s_mov_b32 {sCI}, 0"); A(f"s_mov_b32 {sSPIN}, {spin}")
    A(f"v_mov_b32 v3, {L_FLAG}"); A(f"v_lshl_add_u32 v1, v0, 2, v3"); A("v_mov_b32 v2, 0")
    A("s_mov_b64 exec, 6"); A("v_bfrev_b32 v2, -2"); A("s_mov_b64 exec, 0x1fff"); A("ds_write_b32 v1, v2"); A("s_mov_b64 exec, -1")
    A(f"v_lshrrev_b32 v1, 5, v0"); A(f"v_mul_u32_u24 v1, 896, v1"); A(f"v_and_b32 v2, 31, v0"); A(f"v_lshl_add_u32 v{vLW1}, v2, 2, v1")
    A("s_waitcnt lgkmcnt(0)")
    A("s_barrier")
    A(f"s_cmp_eq_u32 {sWAVE}, 0"); A("s_cbranch_scc1 L_loader")
    A(f"s_load_dword {sE}, {pWS}, {WS_E}")
    A(f"s_cmp_ge_u32 {sROLE}, 4"); A("s_cbranch_scc1 L_consumer")
    for u in range(7): A(f"global_load_dword v{xr1[u]}, v{vLW1}, {pX} offset:{u*128}")
    A("s_branch L_qprod")

    def publish(back):
        A(f"s_sub_u32 {sT0}, {sN}, {back}"); A(f"s_max_i32 {sT0}, {sT0}, {sFLOOR}")
        A(f"v_mov_b32 v{vTMP}, {sT0}"); one_lane(f"ds_write_b32 v{vFL}, v{vTMP}")
    def throttle(i, W=W):
        if i % grp == grp-1:
            A(f"s_waitcnt vmcnt({W})")
            if i+1+16 >= W and (i+1-grp+16 < W or i < grp): publish(1)
    def tile_rows(specs, pol=pol, W=W):
        for i,(srd,vo,so) in enumerate(specs):
            if i % 4 == 0:
                A(f"s_add_u32 m0, {sSLOT}, {i*1024}" if i else f"s_mov_b32 m0, {sSLOT}")
                A(f"s_add_u32 {sOFF}, {sBASE}, {so}" if so else f"s_mov_b32 {sOFF}, {sBASE}")
            A(f"buffer_load_dwordx4 v{vo}, {srd}, {sOFF} offen offset:{(i%4)*1024} {pol} lds")
            throttle(i, W)
        slot_advance()
    def tile_tall(rowstride, t, nvalid):
        for i in range(16):
            A(f"s_add_u32 m0, {sSLOT}, {i*1024}" if i else f"s_mov_b32 m0, {sSLOT}")
            A(f"s_add_u32 {sOFF}, {sBASE}, {(t*128+i*8)*rowstride}")
            A(f"buffer_load_dwordx4 v{vT[i&1]}, {srdW if i < nvalid else srdZ}, {sOFF} offen {pol} lds")
            throttle(i)
        slot_advance()
    def tile_wide(pol=pol):
        tile_rows([(srdW if i < 14 else srdZ, vLIN, i*1024) for i in range(16)], pol)
        A(f"s_add_u32 {sBASE}, {sBASE}, 14336")
    def tall_voffs(stride):
        A("v_lshrrev_b32 v1, 3, v0"); A("v_and_b32 v2, 7, v0"); A("v_and_b32 v3, 2, v1"); A("v_xor_b32 v2, v2, v3"); A("v_lshlrev_b32 v2, 4, v2")
        A(f"v_mul_u32_u24 v3, {stride}, v1"); A(f"v_add_u32 v{vT[0]}, v3, v2"); A("v_xor_b32 v2, 64, v2"); A(f"v_add_u32 v{vT[1]}, v3, v2")
    def freecheck(k):
        ok = lab("free"); lp = lab("freepoll")
        A(f"s_add_u32 {sT0}, {sKNOWN}, {NSLOT-k}"); A(f"s_cmp_ge_u32 {sT0}, {sN}"); A(f"s_cbranch_scc1 {ok}")
        E.label(lp)
        A(f"ds_read_b128 {Q4(vC)}, v{vFL} offset:16")
        spin_guard()
        A("s_waitcnt lgkmcnt(0)")
        A(f"v_min3_u32 v{vC}, v{vC}, v{vC+1}, v{vC+2}"); A(f"v_min_u32 v{vC}, v{vC}, v{vC+3}")
        A(f"v_readfirstlane_b32 {sKNOWN}, v{vC}")
        A(f"s_add_u32 {sT0}, {sKNOWN}, {NSLOT-k}"); A(f"s_cmp_ge_u32 {sT0}, {sN}"); A(f"s_cbranch_scc1 {ok}")
        A("s_sleep 1"); A(f"s_branch {lp}")
        E.label(ok)
    def claim(p, off=0):
        one_lane(f"global_atomic_add v{vCL[p]}, v{vCA}, v{vONE}, {pWS} offset:{off} sc0")
    def claim_last_two(cnt, lim, off):
        nc = lab("nocl"); c1 = lab("cl1")
        A(f"s_add_u32 {sT0}, {cnt}, 1"); A(f"s_cmp_lt_u32 {sT0}, {lim}"); A(f"s_cbranch_scc1 {nc}")
        A(f"s_cmp_eq_u32 {cnt}, {lim}"); A(f"s_cbranch_scc1 {c1}")
        claim(0, off); A(f"s_branch {nc}")
        E.label(c1); claim(1, off)
        E.label(nc)

    rpos = [b for b in range(14,24) if b not in jpos]; RMASK = sum(1<<b for b in rpos)
    def scatter(dst, src, pos, tmp):
        k = 0
        while k < len(pos):
            n = 1
            while k+n < len(pos) and pos[k+n] == pos[k]+n: n += 1
            A(f"s_bfe_u32 {tmp}, {src}, {(n<<16)|k:#x}"); A(f"s_lshl_b32 {tmp}, {tmp}, {pos[k]}"); A(f"s_or_b32 {dst}, {dst}, {tmp}")
            k += n
    def next_tile():
        A(f"s_or_b32 {sCUR}, {sCUR}, {(~RMASK)&0xffffffff:#x}"); A(f"s_add_u32 {sCUR}, {sCUR}, 1"); A(f"s_and_b32 {sCUR}, {sCUR}, {RMASK:#x}")
        A(f"s_or_b32 {sBASE}, {sOWN}, {sCUR}")
    E.label("L_loader")
    A("s_setprio 3")
    A(f"v_mov_b32 v{vFL}, v3"); A(f"s_mov_b32 {sFLOOR}, 0")
    A("s_mov_b32 s50, 3670016"); A("s_mov_b32 s51, 0x20000")
    A(f"s_cmp_ge_u32 {sROLE}, 4"); A("s_cbranch_scc1 L_ld_noq")
    tall_voffs(8192)
    A(f"s_mov_b64 s[48:49], s[{pWQ[0]}:{pWQ[1]}]")
    A(f"s_and_b32 {sOFF}, {sG}, 7"); A(f"s_lshl_b32 {sOFF}, {sOFF}, 3"); A(f"s_lshr_b32 {sT0}, {sG}, 3"); A(f"s_lshl_b32 {sT0}, {sT0}, 2")
    A(f"s_add_u32 {sOFF}, {sOFF}, {sT0}"); A(f"s_add_u32 {sOFF}, {sOFF}, {sROLE}"); A(f"s_lshl_b32 {sOFF}, {sOFF}, 7")
    A("s_mov_b32 m0, 0")
    E.label("L_ld_q")
    for i in range(2):
        A(f"buffer_load_dwordx4 v{vT[i]}, {srdW}, {sOFF} offen {pol} lds")
        A(f"s_add_u32 {sOFF}, {sOFF}, {8*8192}"); A("s_add_u32 m0, m0, 1024")
    A(f"s_cmp_lt_u32 m0, {56*1024}"); A("s_cbranch_scc1 L_ld_q")
    A(f"s_mov_b32 {sN}, 4"); A(f"s_mov_b32 {sSLOT}, {4*SLOT}"); A(f"s_mov_b32 {sFLOOR}, 4")
    A(f"v_mov_b32 v{vTMP}, 4"); A("s_waitcnt vmcnt(0)"); one_lane(f"ds_write_b32 v{vFL}, v{vTMP}")
    E.label("L_ld_noq")
    if forcepar is None:
        A(f"s_cmp_eq_u32 {sWG}, {PROBE}"); A("s_cbranch_scc1 L_probe")
    E.label("L_ld_wo")
    A("v_lshrrev_b32 v1, 5, v0"); A("v_and_b32 v2, 31, v0")
    A("v_lshlrev_b32 v3, 1, v1"); A("v_xor_b32 v3, v2, v3"); A("v_lshlrev_b32 v3, 4, v3"); A("v_lshl_or_b32 v3, v1, 9, v3")
    for i in range(4): A(f"v_xor_b32 v{vV[i]}, {i*64}, v3")
    A(f"s_mov_b64 s[44:45], s[{pV[0]}:{pV[1]}]"); A("s_brev_b32 s46, 8"); A("s_mov_b32 s47, s51")
    A(f"s_lshl_b32 {sGB}, {sG}, 24"); A(f"s_mov_b32 {sOWN}, {sGB}"); scatter(sOWN, sJ, jpos, sT0)
    share_consts(1)
    sc = lambda r: sum(((r >> k) & 1) << b for k,b in enumerate(rpos)) if front else 0
    A(f"s_cmp_lt_u32 {sROLE}, 4"); A(f"s_cselect_b32 {sK0}, {sc(2)}, 0")
    A(f"s_cmp_lt_u32 {sIDX}, 30"); A(f"s_cselect_b32 {sK0}, {sc(4)}, {sK0}"); A(f"s_cmp_eq_u32 {sIDX}, 30"); A(f"s_cselect_b32 {sK0}, {sc(8)}, {sK0}")
    A(f"s_mov_b32 {sCUR}, {sK0}")
    A(f"s_cmp_lt_u32 {sIDX}, 28"); A(f"s_cbranch_scc1 L_ld_ffn")
    A(f"s_or_b32 {sBASE}, {sOWN}, {sCUR}"); A(f"s_add_u32 {sT2}, {sN}, {sPK}")
    A(f"s_cmp_eq_u32 {sPK}, 0"); A("s_cbranch_scc1 L_ld_head_done")
    E.label("L_ld_pv")
    tile_rows([(srdV, vV[i%4], i*1024) for i in range(16)])
    next_tile()
    A(f"s_cmp_lt_u32 {sN}, {sT2}"); A("s_cbranch_scc1 L_ld_pv")
    E.label("L_ld_head_done")
    A(f"s_mov_b32 {sVC}, {sCUR}"); A(f"s_mov_b32 {sCUR}, {sK0}")
    share_consts(2)
    A("v_lshrrev_b32 v1, 5, v0"); A("v_and_b32 v2, 31, v0")
    A("v_xor_b32 v3, v2, v1"); A("v_lshlrev_b32 v3, 4, v3"); A("v_lshl_or_b32 v3, v1, 9, v3")
    for i in range(8): A(f"v_xor_b32 v{vK[i]}, {i*32}, v3")
    A(f"s_lshl_b32 {sT0}, {sG}, 8"); A(f"s_add_u32 {sT0}, {sT0}, {WS_CNT}"); A(f"v_mov_b32 v{vCA}, {sT0}"); A(f"v_mov_b32 v{vONE}, 1")
    A(f"s_mov_b64 s[40:41], s[{pK[0]}:{pK[1]}]"); A("s_mov_b32 s42, 0x10000000"); A("s_mov_b32 s43, 0x20000")
    def ldstamps(list_, k0):
        if not diag: return
        for k,c in enumerate(list_):
            sk=lab("ls"); A(f"s_cmp_lg_u32 {sCI}, {c}"); A(f"s_cbranch_scc1 {sk}"); A(f"s_memrealtime s[{72+2*(k0+k)}:{73+2*(k0+k)}]"); A("s_waitcnt lgkmcnt(0)"); E.label(sk)
    A(f"s_or_b32 {sBASE}, {sOWN}, {sCUR}")
    E.label("L_ld_loop")
    ldstamps((0,4,8,16,32,NS-9), 0)
    freecheck(1)
    A(f"s_add_u32 {sCI}, {sCI}, 1")
    claim_last_two(sCI, sNS, 0)
    tile_rows([(srdK, vK[i%8], i*1024) for i in range(16)])
    next_tile()
    A(f"s_cmp_lt_u32 {sCI}, {sNS}"); A("s_cbranch_scc1 L_ld_loop")
    vLIST = 19; sNX = "s65"
    A(f"s_mov_b32 {sNX}, 0")
    E.label("L_ld_kdyn")
    for p in range(2):
        A(f"v_readfirstlane_b32 {sCLM}, v{vCL[p]}")
        A(f"s_cmp_ge_u32 {sCLM}, {PA}"); A("s_cbranch_scc1 L_ld_kdone")
        A(f"s_cmp_lt_u32 {sCLM}, 16"); A(f"s_cbranch_scc1 L_ld_shed{p}")
        A(f"s_and_b32 {sT1}, {sCLM}, 15"); A(f"s_lshr_b32 {sCUR}, {sCLM}, 4"); A(f"s_add_u32 {sCUR}, {sCUR}, {NS-1}")
        E.label(f"L_ld_unit{p}")
        A(f"s_mov_b32 {sBASE}, {sGB}"); scatter(sBASE, sT1, jpos, sT0); scatter(sBASE, sCUR, rpos, sT0)
        A(f"s_mov_b32 m0, {sNX}"); A(f"v_writelane_b32 v{vLIST}, {sBASE}, m0"); A(f"s_add_u32 {sNX}, {sNX}, 1")
        freecheck(1)
        full = lab("full"); go = lab("go")
        A(f"s_cmp_ge_u32 {sNX}, {MAXA-1}"); A(f"s_cbranch_scc1 {full}")
        claim(p); A(f"s_branch {go}")
        E.label(full); A(f"v_mov_b32 v{vCL[p]}, {PA}")
        E.label(go)
        tile_rows([(srdK, vK[i%8], i*1024) for i in range(16)])
    A("s_branch L_ld_kdyn")
    E.label("L_ld_kdone")
    A(f"v_mov_b32 v{vTMP}, {sN}"); one_lane(f"ds_write_b32 v{vFL}, v{vTMP} offset:8")
    A(f"s_add_u32 {sNX}, {sNX}, {sNS}")
    A(f"s_mov_b32 {sCI}, {sPK}"); A(f"s_mov_b32 {sCUR}, {sVC}"); A(f"s_or_b32 {sBASE}, {sOWN}, {sCUR}")
    E.label("L_ld_vloop")
    ldstamps((8,40,NS-9), 6)
    freecheck(1)
    A(f"s_sub_u32 {sT0}, {sCI}, {sNS}"); A("s_cbranch_scc1 L_ld_vown")
    A(f"v_readlane_b32 {sBASE}, v{vLIST}, {sT0}")
    E.label("L_ld_vown")
    A(f"s_add_u32 {sCI}, {sCI}, 1")
    claim_last_two(sCI, sNX, 128)
    tile_rows([(srdV, vV[i%4], i*1024) for i in range(16)])
    next_tile()
    A(f"s_cmp_lt_u32 {sCI}, {sNX}"); A("s_cbranch_scc1 L_ld_vloop")
    E.label("L_ld_dyn")
    for p in range(2):
        A(f"v_readfirstlane_b32 {sCLM}, v{vCL[p]}")
        A(f"s_cmp_ge_u32 {sCLM}, {POOL}"); A("s_cbranch_scc1 L_ld_dyn_done")
        A(f"s_bfe_u32 {sT1}, {sCLM}, 0x40001"); A(f"s_lshr_b32 {sCUR}, {sCLM}, 5"); A(f"s_add_u32 {sCUR}, {sCUR}, {NA}")
        A(f"s_and_b32 {sBASE}, {sCLM}, 1"); A(f"s_lshl_b32 {sBASE}, {sBASE}, 12"); A(f"s_or_b32 {sBASE}, {sBASE}, {sGB}")
        scatter(sBASE, sT1, jpos, sT0); scatter(sBASE, sCUR, rpos, sT0)
        freecheck(1)
        claim(p, 128)
        tile_rows([(srdK, vK[i], i*2048) for i in range(8)] + [(srdV, vV[i%4], i*2048) for i in range(8)], W=WD or W)
    A("s_branch L_ld_dyn")
    E.label("L_ld_dyn_done")
    A(f"v_mov_b32 v{vTMP}, {sN}"); one_lane(f"ds_write_b32 v{vFL}, v{vTMP} offset:4")
    A(f"s_mov_b64 s[48:49], s[{pWO[0]}:{pWO[1]}]"); A("s_mov_b32 s50, 3670016")
    A(f"s_and_b32 {sBASE}, {sWG}, 127"); A(f"s_mul_i32 {sBASE}, {sBASE}, {32*896}"); A(f"v_lshlrev_b32 v{vLIN}, 4, v0")
    freecheck(2)
    k = 0
    for t in range(2):
        for i in range(14):
            if i % 4 == 0:
                A(f"s_add_u32 m0, {sSLOT}, {i*1024}" if i else f"s_mov_b32 m0, {sSLOT}")
                A(f"s_add_u32 {sOFF}, {sBASE}, {t*14336+i*1024}")
            if k == wpre[0]: A(f"s_waitcnt vmcnt({16+k})"); publish(1+t)
            if k == wpre[1]: A(f"s_waitcnt vmcnt({k})"); publish(t)
            A(f"buffer_load_dwordx4 v{vLIN}, {srdW}, {sOFF} offen offset:{(i%4)*1024} lds")
            k += 1
        slot_advance()
    for c,back in ((14,1),(0,0)):
        A(f"s_waitcnt vmcnt({c})"); publish(back)
    if diag:
        A("s_mov_b64 exec, 1"); A("s_memrealtime s[90:91]")
        A(f"s_lshl_b32 {sT0}, {sWG}, 6"); A(f"s_add_u32 {sT0}, {sT0}, {WS_ST+0x40000}"); A(f"v_mov_b32 v46, {sT0}")
        A("s_waitcnt lgkmcnt(0)")
        for k in range(11): A(f"v_mov_b32 v{32+k}, s{70+2*k}")
        A(f"v_mov_b32 v43, {sSPIN}")
        for q in range(3): A(f"global_store_dwordx4 v46, v[{32+4*q}:{35+4*q}], {pWS} offset:{q*16}")
    A("s_waitcnt lgkmcnt(0)")
    A("s_endpgm")
    for p in range(2):
        E.label(f"L_ld_shed{p}")
        A(f"s_lshr_b32 {sT0}, {sCLM}, 2"); A(f"s_and_b32 {sT1}, {sCLM}, 3"); A(f"s_add_u32 {sT1}, {sT1}, {0 if front else NS-4}"); A(f"s_add_u32 {sT2}, {sCLM}, {0 if front else NS-8}")
        A(f"s_cmp_eq_u32 {sG}, 15"); A(f"s_cselect_b32 {sT0}, 0, {sT0}"); A(f"s_cselect_b32 {sT1}, {sT2}, {sT1}"); A(f"s_add_u32 {sT0}, {sT0}, 4")
        A(f"s_bfe_u32 {sT2}, {sCLM}, 0x20001"); A(f"s_and_b32 {sCUR}, {sCLM}, 1"); A(f"s_add_u32 {sCUR}, {sCUR}, {0 if front else NS-2}")
        A(f"s_cmp_lt_u32 {sCLM}, 8"); A(f"s_cselect_b32 {sT0}, {sT0}, {sT2}"); A(f"s_cselect_b32 {sCUR}, {sT1}, {sCUR}"); A(f"s_cselect_b32 {sT2}, 0, 4")
        A(f"s_add_u32 {sT0}, {sT0}, {sG}"); A(f"s_and_b32 {sT1}, {sT0}, 3"); A(f"s_or_b32 {sT1}, {sT1}, {sT2}")
        A(f"s_bfe_u32 {sT0}, {sT0}, 0x10002"); A(f"s_lshl_b32 {sT0}, {sT0}, 3"); A(f"s_or_b32 {sT1}, {sT1}, {sT0}")
        A(f"s_branch L_ld_unit{p}")

    def SEL4(dst, a, b, c, d, t):
        A(f"v_cndmask_b32 v{dst}, v{a}, v{b}, {sM1}"); A(f"v_cndmask_b32 v{t}, v{c}, v{d}, {sM1}"); A(f"v_cndmask_b32 v{dst}, v{dst}, v{t}, {sM2}")
    def xrow(op, regs, tmps):
        for sw in ("v_permlane16_swap_b32","v_permlane32_swap_b32"):
            for r,t in zip(regs,tmps): A(f"v_mov_b32 v{t}, v{r}")
            for r,t in zip(regs,tmps): A(f"{sw} v{r}, v{t}")
            for r,t in zip(regs,tmps): A(f"{op} v{r}, v{r}, v{t}")
    def round_bf(dst, src): A(f"v_cvt_pk_bf16_f32 v{dst}, v{src}, v{src}"); A(f"v_and_b32 v{dst}, 0xffff0000, v{dst}")
    def unpack(lo, hi, src): A(f"v_lshlrev_b32 v{lo}, 16, v{src}"); A(f"v_and_b32 v{hi}, 0xffff0000, v{src}")
    def pub_cons():
        slot_advance()
        A(f"v_mov_b32 v{vTM}, {sN}"); one_lane(f"ds_write_b32 v{vCONS}, v{vTM}")
    def wait_tile(fin=None, kend=None):
        ok = lab("have"); lp = lab("poll")
        if fin: A(f"s_cmp_eq_u32 {sTOT}, {sN}"); A(f"s_cbranch_scc1 {fin}")
        if kend: A(f"s_cmp_ge_u32 {sN}, {sKE}"); A(f"s_cbranch_scc1 {kend}")
        A(f"s_cmp_gt_u32 {sKNOWN}, {sN}"); A(f"s_cbranch_scc1 {ok}")
        E.label(lp)
        A(f"ds_read_b128 {Q4(vAD[0])}, v{vFLG}")
        spin_guard()
        A("s_waitcnt lgkmcnt(0)")
        A(f"v_readfirstlane_b32 {sKNOWN}, v{vAD[0]}"); A(f"v_readfirstlane_b32 {sTOT}, v{vAD[1]}")
        A(f"v_readfirstlane_b32 {sKE}, v{vAD[2]}")
        if kend: A(f"s_cmp_ge_u32 {sN}, {sKE}"); A(f"s_cbranch_scc1 {kend}")
        if fin:
            nw = lab("nw")
            A(f"s_cmp_ge_u32 {sTOT}, {sWRM}"); A(f"s_cbranch_scc1 {nw}")
            A(f"s_mov_b32 {sWRM}, 0"); A(f"global_load_dword v{vX+2}, v{vX+3}, {pWS} {ldf}")
            E.label(nw)
            A(f"s_cmp_eq_u32 {sTOT}, {sN}"); A(f"s_cbranch_scc1 {fin}")
        A(f"s_cmp_gt_u32 {sKNOWN}, {sN}"); A(f"s_cbranch_scc1 {ok}")
        if nap or not fin: A("s_sleep 1")
        A(f"s_branch {lp}")
        E.label(ok)
    def poll(loads, tags, first_mask=None, issued=False):
        lp = lab("gpoll"); n = len(loads)
        chk = lab("gchk")
        if issued: A(f"s_branch {chk}")
        else:
            for i in range(n): A(f"s_mov_b64 {sCK[i]}, {first_mask[i] if first_mask else -1}")
        E.label(lp)
        for i,l in enumerate(loads):
            sk = lab("sk")
            A(f"s_mov_b64 exec, {sCK[i]}"); A(f"s_cbranch_execz {sk}"); A(l); E.label(sk)
        A("s_mov_b64 exec, -1")
        spin_guard()
        if issued: E.label(chk)
        A("s_waitcnt vmcnt(0)")
        for i in range(n):
            A(f"v_cmp_ne_u32 {sCK[i]}, {sTAG}, v{tags[i][0]}")
            for t in tags[i][1:]:
                A(f"v_cmp_ne_u32 vcc, {sTAG}, v{t}"); A(f"s_or_b64 {sCK[i]}, {sCK[i]}, vcc")
        A(f"s_or_b64 vcc, {sCK[0]}, {sCK[min(1,n-1)]}")
        for i in range(2, n): A(f"s_or_b64 vcc, vcc, {sCK[i]}")
        A(f"s_cbranch_scc1 {lp}")
    def layernorm(xr, f, lnbase, stride, mid=None):
        s1=vTM; t=vTM2; mu=vX; a=vX+2; b=vX+4
        for u in range(7): unpack(f+2*u, f+2*u+1, xr[u])
        A(f"v_pk_add_f32 {P(a)}, {P(f)}, {P(f+2)}"); A(f"v_pk_add_f32 {P(b)}, {P(f+4)}, {P(f+6)}")
        A(f"v_pk_add_f32 {P(a)}, {P(a)}, {P(f+8)}"); A(f"v_pk_add_f32 {P(b)}, {P(b)}, {P(f+10)}")
        A(f"v_pk_add_f32 {P(a)}, {P(a)}, {P(f+12)}"); A(f"v_pk_add_f32 {P(a)}, {P(a)}, {P(b)}")
        A(f"v_add_f32 v{s1}, v{a}, v{a+1}")
        red32 = [f"v_add_f32_dpp v{s1}, v{s1}, v{s1} row_ror:{k} row_mask:0xf bank_mask:0xf" for k in (8,4,2,1)]
        red32 += [f"v_mov_b32 v{t}, v{s1}", f"v_permlane16_swap_b32 v{s1}, v{t}", f"v_add_f32 v{s1}, v{s1}, v{t}"]
        for l in red32: A(l)
        A(f"v_mul_f32 v{mu}, {INV448:#x}, v{s1}")
        NEG = "op_sel_hi:[1,0] neg_lo:[0,1] neg_hi:[0,1]"
        A(f"v_pk_add_f32 {P(b)}, {P(f)}, {P(mu)} {NEG}")
        A(f"v_pk_mul_f32 {P(a)}, {P(b)}, {P(b)}")
        for u in range(1,7):
            A(f"v_pk_add_f32 {P(b)}, {P(f+2*u)}, {P(mu)} {NEG}")
            A(f"v_pk_fma_f32 {P(a)}, {P(b)}, {P(b)}, {P(a)}")
        A(f"v_add_f32 v{s1}, v{a}, v{a+1}")
        round_bf(mu, mu)
        fill = [f"v_pk_add_f32 {P(f+2*u)}, {P(f+2*u)}, {P(mu)} {NEG}" for u in range(7)] + [f"v_cvt_pk_bf16_f32 v{xr[u]}, v{f+2*u}, v{f+2*u+1}" for u in range(7)]
        for u in range(7): fill += [f"v_lshlrev_b32 v{f+2*u}, 16, v{xr[u]}", f"v_and_b32 v{f+2*u+1}, 0xffff0000, v{xr[u]}"]
        rb = [f"v_cvt_pk_bf16_f32 v{s1}, v{s1}, v{s1}", f"v_and_b32 v{s1}, 0xffff0000, v{s1}"]
        chain = red32 + [f"v_mul_f32 v{s1}, {INV448:#x}, v{s1}"] + rb + [f"v_add_f32 v{s1}, {EPS:#x}, v{s1}"] + rb + [f"v_sqrt_f32 v{s1}, v{s1}"] + rb + [f"v_rcp_f32 v{a}, v{s1}"]
        while chain or fill:
            for _ in range(2):
                if fill: A(fill.pop(0))
            if chain: A(chain.pop(0))
        if mid: mid()
        for u in range(7): A(f"v_pk_mul_f32 {P(f+2*u)}, {P(f+2*u)}, {P(a)} op_sel_hi:[1,0]")
        for u in range(7):
            A(f"v_cvt_pk_bf16_f32 v{xr[u]}, v{f+2*u}, v{f+2*u+1}")
            A(f"ds_write_b32 v{lnbase}, v{xr[u]} offset:{u*stride}")
    def ln_read_addr(rd, base):
        A(f"v_and_b32 v{rd}, 1, v{vLANE}"); A(f"v_mul_u32_u24 v{rd}, 896, v{rd}")
        A(f"v_lshl_add_u32 v{rd}, v{vG4}, 4, v{rd}"); A(f"v_add_u32 v{rd}, {base}, v{rd}")
    def tall_addr(dst):
        A(f"v_lshrrev_b32 v{vTM}, 3, v{vN}")
        A(f"v_and_b32 v{vTM2}, 1, v{vG4}"); A(f"v_lshl_or_b32 v{vTM}, v{vTM2}, 1, v{vTM}")
        A(f"v_xor_b32 v{vTM}, {sW}, v{vTM}"); A(f"v_lshlrev_b32 v{vTM}, 5, v{vTM}")
        A(f"v_and_b32 v{vTM2}, 3, v{vN}"); A(f"v_lshl_or_b32 v{vTM}, v{vTM2}, 3, v{vTM}")
        A(f"v_lshrrev_b32 v{vTM2}, 2, v{vN}"); A(f"v_lshl_or_b32 v{vTM}, v{vTM2}, 7, v{vTM}")
        A(f"v_lshl_or_b32 v{dst}, v{vG4}, 10, v{vTM}")
    def wide_addr(dst):
        A(f"v_lshrrev_b32 v{vTM}, 2, v{vN}"); A(f"v_lshl_add_u32 v{vTM}, v{vG4}, 2, v{vTM}"); A(f"v_mul_u32_u24 v{vTM}, 896, v{vTM}")
        A(f"v_and_b32 v{vTM2}, 3, v{vN}"); A(f"v_lshl_add_u32 v{vTM}, v{vTM2}, 3, v{vTM}")
        A(f"s_mul_i32 {sT0}, {sW}, 224"); A(f"v_add_u32 v{dst}, {sT0}, v{vTM}")
    def read_tall_tile(base, dstreg, t):
        wait_tile()
        A(f"v_add_u32 v{vAD[0]}, {sSLOT}, v{base}")
        for s in range(4 if t < 3 else 2):
            for h2 in range(2):
                A(f"ds_read_b64_tr_b16 {P(dstreg + 4*(4*t+s) + 2*h2)}, v{vAD[0]} offset:{s*4096+h2*512}")
        A("s_waitcnt lgkmcnt(0)")
        pub_cons()
    def read_wide_tile(base, dstreg, half):
        wait_tile()
        A(f"v_add_u32 v{vAD[0]}, {sSLOT}, v{base}")
        for tt in range(7): A(f"ds_read_b64_tr_b16 {P(dstreg + 4*tt + 2*half)}, v{vAD[0]} offset:{tt*32}")
        A("s_waitcnt lgkmcnt(0)")
        pub_cons()
    def basic_setup():
        A(f"s_sub_u32 {sW}, {sWAVE}, 1"); A(f"s_lshr_b32 {sB}, {sG}, 3"); A(f"s_and_b32 {sHKV}, {sG}, 7")
        A(f"v_and_b32 v{vN}, 15, v{vLANE}"); A(f"v_lshrrev_b32 v{vG4}, 4, v{vLANE}")
        A(f"s_lshl_b32 {sT0}, {sW}, 2"); A(f"s_add_u32 {sT0}, {sT0}, {L_CONS}"); A(f"v_mov_b32 v{vCONS}, {sT0}")
        A("s_mov_b32 s42, 0xffff0000"); A("s_mov_b32 s43, s42")

    if align: A(".p2align 12")
    E.label("L_qprod")
    f14 = vWO+8; vLR = vWO+25; vTA = vWO+26; vQA = vWO+27
    basic_setup()
    A(f"s_or_b32 {sT0}, {sROLE}, {sW}"); A(f"s_cmp_lg_u32 {sT0}, 0"); A("s_cbranch_scc1 L_noinit")
    A(f"s_lshl_b32 {sT0}, {sG}, 8"); A(f"s_add_u32 {sT0}, {sT0}, {WS_CNT}")
    A(f"v_mov_b32 v{vTM2}, {sT0}"); A(f"v_mov_b32 v{vTM3}, 0")
    A("s_mov_b64 exec, 1"); A(f"global_store_dword v{vTM2}, v{vTM3}, {pWS} {stf}"); A(f"global_store_dword v{vTM2}, v{vTM3}, {pWS} offset:128 {stf}"); A("s_mov_b64 exec, -1")
    E.label("L_noinit")
    A(f"v_add_u32 v{vLW1}, {L_LN}, v{vLW1}")
    ln_read_addr(vLR, L_LN)
    tall_addr(vTA)
    A(f"s_lshl_b32 {sT0}, {sB}, 2"); A(f"s_add_u32 {sT0}, {sT0}, {sROLE}"); A(f"s_lshl_b32 {sT0}, {sT0}, 2"); A(f"s_add_u32 {sT0}, {sT0}, {sW}")
    A(f"s_lshl_b32 {sT0}, {sT0}, 6"); A(f"s_lshl_b32 {sT1}, {sHKV}, 11"); A(f"s_add_u32 {sT0}, {sT0}, {sT1}"); A(f"s_add_u32 {sT0}, {sT0}, {WS_Q}")
    A(f"v_lshlrev_b32 v{vQA}, 2, v{vN}"); A(f"v_lshl_add_u32 v{vQA}, v{vG4}, 14, v{vQA}"); A(f"v_add_u32 v{vQA}, {sT0}, v{vQA}")
    if qtouch: touch_pad("q")
    A("s_waitcnt vmcnt(0) lgkmcnt(0)")
    stamp(12)
    layernorm(xr1, f14, vLW1, 128, mid=(lambda: pad("q")) if qtouch else None)
    make_tag(sTAG, sE); A(f"v_mov_b32 v{vX+1}, {sTAG}")
    A("s_waitcnt lgkmcnt(0)")
    stamp(13)
    for s in range(14): A(f"ds_read_b128 {Q4(vW2+4*s)}, v{vLR} offset:{s*64}")
    A(f"s_mov_b32 {sN}, 3"); wait_tile()
    stamp(14)
    for s in range(14):
        for h2 in range(2): A(f"ds_read_b64_tr_b16 {P(vW1 + 4*s + 2*h2)}, v{vTA} offset:{s*4096+h2*512}")
        if s % 4 == 3 or s == 13:
            A(f"s_waitcnt lgkmcnt(0)")
            for k in range(s - s % 4, s+1):
                A(f"v_mfma_f32_16x16x32_bf16 {Q4(vS)}, {Q4(vW2+4*k)}, {Q4(vW1+4*k)}, {'0' if k==0 else Q4(vS)}")
    A(f"s_mov_b32 {sSLOT}, {3*SLOT}"); pub_cons()
    A(f"v_cndmask_b32 v{vTM}, v{vS}, v{vS+1}, {sM1}")
    A(f"v_mov_b32_dpp v{vTM2}, v{vTM} quad_perm:[1,0,3,2] row_mask:0xf bank_mask:0xf")
    A(f"v_cvt_pk_bf16_f32 v{vX}, v{vTM}, v{vTM2}")
    A("s_mov_b64 exec, 0x55555555")
    A(f"global_store_dwordx2 v{vQA}, {P(vX)}, {pWS} {stf}")
    A("s_mov_b64 exec, -1")
    stamp(1)

    E.label("L_consumer")
    basic_setup()
    share_consts(1)
    A("s_mov_b32 s44, 0"); A("s_mov_b32 s45, -1"); A(f"s_mov_b32 {sC}, {C_SCALE:#x}"); A("s_mov_b32 s66, -1"); A("s_mov_b32 s67, 0"); A(f"s_mov_b32 {sTOT}, 0x7fffffff"); A(f"s_mov_b32 {sKE}, 0x7fffffff"); A(f"s_mov_b32 {sKNOWN}, 0")
    if hilo: A("s_mov_b32 s64, 0xcccccccc"); A("s_mov_b32 s65, 0xcccccccc")
    stamp(11)
    A(f"s_sub_u32 {sT0}, {sROLE}, 4"); A(f"s_lshl_b32 {sRR}, {sG}, 2"); A(f"s_add_u32 {sRR}, {sRR}, {sT0}")
    A(f"s_cmp_lt_u32 {sT0}, 4"); A(f"s_cselect_b32 {sRR}, {sRR}, 99"); A("s_cbranch_scc0 L_nox")
    A(f"s_bfe_u32 {sT0}, {sRR}, 0x20003"); A(f"s_mul_i32 {sCOL}, {sT0}, 224")
    A(f"s_bfe_u32 {sGP}, {sRR}, 0x20001"); A(f"s_lshl_b32 {sT0}, {sGP}, 6"); A(f"s_add_u32 {sCOL}, {sCOL}, {sT0}")
    A(f"s_and_b32 {sT0}, {sRR}, 1"); A(f"s_lshl_b32 {sT0}, {sT0}, 4"); A(f"s_add_u32 {sCOL}, {sCOL}, {sT0}")
    A(f"s_bfe_u32 {sT0}, {sRR}, 0x10005"); A(f"s_mul_i32 {sT0}, {sT0}, 896"); A(f"s_add_u32 {sCOL}, {sCOL}, {sT0}")
    A(f"v_and_b32 v{vTM}, 6, v{vLANE}"); A(f"v_lshl_add_u32 v{vTM}, v{vTM}, 1, {sCOL}")
    A(f"global_load_dword v{vXH}, v{vTM}, {pX}")
    A(f"v_mov_b32 v{vXH+1}, 0")
    A(f"s_cmp_eq_u32 {sGP}, 3"); A("s_cbranch_scc1 L_nox")
    A(f"global_load_dword v{vXH+1}, v{vTM}, {pX} offset:32")
    E.label("L_nox")
    A(f"v_xor_b32 v{vTM}, v{vG4}, v{vN}"); A(f"v_lshlrev_b32 v{vTM}, 4, v{vTM}"); A(f"v_lshl_or_b32 v{vTM}, v{vN}, 9, v{vTM}")
    for s in range(4): A(f"v_xor_b32 v{vKB[s]}, {s*64}, v{vTM}")
    A(f"v_lshrrev_b32 v{vTM}, 2, v{vN}"); A(f"v_lshl_add_u32 v{vTM}, v{vG4}, 2, v{vTM}")
    A(f"v_and_b32 v{vTM2}, 7, v{vTM}")
    A(f"s_lshl_b32 {sT0}, {sW}, 2"); A(f"v_xor_b32 v{vTM2}, {sT0}, v{vTM2}"); A(f"v_lshlrev_b32 v{vTM2}, 5, v{vTM2}")
    A(f"v_lshl_or_b32 v{vTM}, v{vTM}, 9, v{vTM2}")
    A(f"v_and_b32 v{vTM2}, 3, v{vN}"); A(f"v_lshl_or_b32 v{vTM}, v{vTM2}, 3, v{vTM}")
    for e in range(4): A(f"v_xor_b32 v{vVB[e]}, {e*32}, v{vTM}")
    A(f"v_mov_b32 v{vM}, 0xff800000"); A(f"v_mov_b32 v{vMC}, v{vM}"); A(f"v_mov_b32 v{vL}, 0")
    for i in range(16): A(f"v_mov_b32 v{vO+i}, 0")
    A(f"s_cmp_lt_u32 {sIDX}, 28"); A("s_cbranch_scc1 L_ffn_w")
    def vtile_read(dst):
        for e in range(4): A(f"v_add_u32 v{vAD[e]}, {sSLOT}, v{vVB[e]}")
        for e in range(4):
            for h2 in range(2): A(f"ds_read_b64_tr_b16 {P(dst + 4*e + 2*h2)}, v{vAD[e]} offset:{h2*8192}")
    for p in range(park):
        A(f"s_cmp_le_u32 {sPK}, {p}"); A("s_cbranch_scc1 L_ffn_w_done")
        wait_tile(); vtile_read(vW1+16*p); A("s_waitcnt lgkmcnt(0)"); pub_cons()
    E.label("L_ffn_w_done")
    A("s_waitcnt lgkmcnt(0)")
    make_tag(sTAG, sE)
    A(f"s_cmp_lg_u32 {sW}, 0"); A("s_cbranch_scc1 L_q_flag")
    if qwait:
        A(f"s_add_u32 {sN}, {sN}, {qwait-1}"); wait_tile(); A(f"s_sub_u32 {sN}, {sN}, {qwait-1}")
    A(f"s_lshl_b32 {sT0}, {sG}, 11"); A(f"s_add_u32 {sT0}, {sT0}, {WS_Q}")
    A(f"v_lshl_add_u32 v{vTM3}, v{vLANE}, 4, {sT0}")
    poll([f"global_load_dwordx4 {Q4(vF)}, v{vTM3}, {pWS} {ldf}", f"global_load_dwordx4 {Q4(vF+4)}, v{vTM3}, {pWS} offset:1024 {ldf}"],
         [[vF+1, vF+3], [vF+5, vF+7]])
    A(f"v_lshlrev_b32 v{vTM}, 3, v{vLANE}"); A(f"v_add_u32 v{vTM}, {L_QW}, v{vTM}"); A(f"v_mov_b32 v{vTM2}, 1")
    A(f"ds_write2_b32 v{vTM}, v{vF}, v{vF+2} offset0:0 offset1:1"); A(f"ds_write2_b32 v{vTM}, v{vF+4}, v{vF+6} offset0:128 offset1:129")
    one_lane(f"ds_write_b32 v{vFLG}, v{vTM2} offset:32")
    E.label("L_q_flag")
    A(f"ds_read_b32 v{vTM}, v{vFLG} offset:32")
    spin_guard()
    A("s_waitcnt lgkmcnt(0)")
    A(f"v_readfirstlane_b32 {sT0}, v{vTM}")
    A(f"s_cmp_eq_u32 {sT0}, 1"); A("s_cbranch_scc1 L_q_have")
    A("s_sleep 1"); A("s_branch L_q_flag")
    E.label("L_q_have")
    A(f"v_and_b32 v{vTM2}, 1, v{vLANE}"); A(f"v_lshlrev_b32 v{vTM2}, 9, v{vTM2}"); A(f"v_lshl_add_u32 v{vTM2}, v{vG4}, 4, v{vTM2}"); A(f"v_add_u32 v{vTM2}, {L_QW}, v{vTM2}")
    for s in range(8): A(f"ds_read_b128 {Q4(vQ+4*s)}, v{vTM2} offset:{s*64}")
    stamp(2)
    A("s_waitcnt lgkmcnt(0)")

    def qk(nt):
        for s in range(4): A(f"v_add_u32 v{vAD[s]}, {sSLOT}, v{vKB[s]}")
        seq = [(t,s) for s in range(8) for t in range(nt)]; n = len(seq)
        def kread(i):
            t,s = seq[i]; A(f"ds_read_b128 {Q4(vF + 4*(i % NF))}, v{vAD[s&3]} offset:{(s>>2)*256 + t*8192}")
        for i in range(NF): kread(i)
        for i in range(n):
            t,s = seq[i]
            A(f"s_waitcnt lgkmcnt({min(NF-1, n-1-i)})")
            d = Q4(vS+4*t)
            A(f"v_mfma_f32_16x16x32_bf16 {d}, {Q4(vF + 4*(i % NF))}, {Q4(vQ+4*s)}, {'0' if s==0 else d}")
            if i + NF < n: kread(i+NF)
    def probs(nt):
        n = 4*nt
        for i in range(n): A(f"v_fma_f32 v{vS+i}, v{vS+i}, {sC}, -v{vMC}")
        for i in range(n): A(f"v_exp_f32 v{vS+i}, v{vS+i}")
        for i in range(n//2): A(f"v_cvt_pk_bf16_f32 v{vP+i}, v{vS+2*i}, v{vS+2*i+1}")
        if hilo:
            for i in range(n//2):
                t = vF+16+2*(i&1)
                unpack(t, t+1, vP+i)
                A(f"v_pk_add_f32 {P(t)}, {P(vS+2*i)}, {P(t)} neg_lo:[0,1] neg_hi:[0,1]")
                A(f"v_cvt_pk_bf16_f32 v{t}, v{t}, v{t+1}")
                A(f"v_cndmask_b32 v{vP+i}, v{vP+i}, v{t}, s[64:65]")
    def softmax(nt, tag):
        n = 4*nt
        for i in range(n//2): A(f"v_cvt_pk_bf16_f32 v{vP+i}, v{vS+2*i}, v{vS+2*i+1}")
        for i in range(n//2): unpack(vS+2*i, vS+2*i+1, vP+i)
        if nt == 2:
            A(f"v_max3_f32 v{vMX}, v{vS}, v{vS+1}, v{vS+2}"); A(f"v_max3_f32 v{vTM}, v{vS+3}, v{vS+4}, v{vS+5}")
            A(f"v_max3_f32 v{vMX}, v{vMX}, v{vS+6}, v{vS+7}"); A(f"v_max_f32 v{vMX}, v{vMX}, v{vTM}")
        else:
            A(f"v_max3_f32 v{vMX}, v{vS}, v{vS+1}, v{vS+2}"); A(f"v_max_f32 v{vMX}, v{vMX}, v{vS+3}")
        xrow("v_max_f32", [vMX], [vTM])
        A(f"v_cmp_gt_f32 vcc, v{vMX}, v{vM}")
        A("s_cmp_lg_u64 vcc, 0"); A(f"s_cbranch_scc1 L_rescale{tag}")
        E.label(f"L_rescaled{tag}")
        probs(nt)
    def add_l(nt):
        A(f"v_add_f32 v{vTM}, v{vS}, v{vS+1}"); A(f"v_add_f32 v{vMX}, v{vS+2}, v{vS+3}")
        if nt == 2:
            A(f"v_add_f32 v{vS+4}, v{vS+4}, v{vS+5}"); A(f"v_add_f32 v{vS+6}, v{vS+6}, v{vS+7}")
            A(f"v_add_f32 v{vTM}, v{vTM}, v{vS+4}"); A(f"v_add_f32 v{vMX}, v{vMX}, v{vS+6}")
        A(f"v_add_f32 v{vL}, v{vL}, v{vTM}"); A(f"v_add_f32 v{vL}, v{vL}, v{vMX}")
    def rescale(tag):
        E.label(f"L_rescale{tag}")
        A(f"v_max_f32 v{vM}, v{vM}, v{vMX}")
        A(f"v_mul_f32 v{vTM}, {sC}, v{vM}")
        A(f"v_sub_f32 v{vTM2}, v{vMC}, v{vTM}")
        A(f"v_mov_b32 v{vMC}, v{vTM}")
        A(f"v_exp_f32 v{vTM2}, v{vTM2}")
        A(f"v_mul_f32 v{vL}, v{vL}, v{vTM2}")
        A(f"v_mov_b32_dpp v{vTM}, v{vTM2} quad_perm:[0,0,2,2] row_mask:0xf bank_mask:0xf")
        A(f"v_mov_b32_dpp v{vTM3}, v{vTM2} quad_perm:[1,1,3,3] row_mask:0xf bank_mask:0xf")
        for i in range(16): A(f"v_mul_f32 v{vO+i}, v{vO+i}, v{vTM if i%2==0 else vTM3}")
        A(f"s_branch L_rescaled{tag}")
    vSA=107
    A(f"s_mov_b32 {sN0}, {sN}")
    A(f"s_add_u32 {sN}, {sN}, {sW}"); A(f"s_lshl_b32 {sT0}, {sW}, 14"); A(f"s_add_u32 {sSLOT}, {sSLOT}, {sT0}")
    A(f"s_sub_u32 {sT0}, {sSLOT}, {RING}"); A(f"s_cselect_b32 {sSLOT}, {sSLOT}, {sT0}")
    A(f"v_and_b32 v{vSA}, 1, v{vLANE}"); A(f"v_lshlrev_b32 v{vSA}, 6, v{vSA}"); A(f"v_lshl_add_u32 v{vSA}, v{vG4}, 4, v{vSA}"); A(f"v_add_u32 v{vSA}, {L_SC}, v{vSA}")
    A(f"s_lshl_b32 {sT0}, {sW}, 7"); A(f"v_add_u32 v{vX}, {sT0}, v{vSA}")
    E.label("L_kloop")
    wait_tile(kend="L_kdone")
    qk(2)
    A(f"s_add_u32 {sN}, {sN}, 4")
    A(f"s_add_u32 {sSLOT}, {sSLOT}, {4*SLOT}"); A(f"s_sub_u32 {sT0}, {sSLOT}, {RING}"); A(f"s_cselect_b32 {sSLOT}, {sSLOT}, {sT0}")
    for i in range(4): A(f"v_cvt_pk_bf16_f32 v{vP+i}, v{vS+2*i}, v{vS+2*i+1}")
    for i in range(4): A(f"v_max3_f32 v{vM}, v{vM}, v{vS+2*i}, v{vS+2*i+1}")
    A("s_mov_b32 exec_lo, 0x30003"); A("s_mov_b32 exec_hi, 0x30003"); A(f"ds_write_b128 v{vX}, {Q4(vP)}"); A("s_mov_b64 exec, -1")
    A(f"v_add_u32 v{vX}, 512, v{vX}")
    A(f"v_mov_b32 v{vTM}, {sN}"); one_lane(f"ds_write_b32 v{vCONS}, v{vTM}")
    A("s_branch L_kloop")
    E.label("L_kdone")
    A(f"s_mov_b32 {sN}, {sKE}"); A(f"s_sub_u32 {sNS}, {sKE}, {sN0}")
    xrow("v_max_f32", [vM], [vTM])
    A(f"s_lshl_b32 {sT0}, {sW}, 3"); A(f"s_add_u32 {sT0}, {sT0}, {L_MX}"); A(f"v_lshl_add_u32 v{vTM2}, v{vLANE}, 2, {sT0}")
    A("s_mov_b64 exec, 3"); A(f"ds_write_b32 v{vTM2}, v{vM}"); A("s_mov_b64 exec, -1")
    A(f"v_mov_b32 v{vTM}, {sN}"); A("s_mov_b64 exec, 1"); A(f"ds_write_b32 v{vCONS}, v{vTM}"); A(f"ds_write_b32 v{vCONS}, v{vTM} offset:{L_KD-16}"); A("s_mov_b64 exec, -1")
    A(f"s_mul_hi_u32 {sT0}, {sN}, {-(-(1<<32)//NSLOT)}"); A(f"s_mul_i32 {sT0}, {sT0}, {NSLOT}"); A(f"s_sub_u32 {sSLOT}, {sN}, {sT0}"); A(f"s_lshl_b32 {sSLOT}, {sSLOT}, 14")
    A(f"v_and_b32 v{vTM2}, 1, v{vLANE}"); A(f"v_lshlrev_b32 v{vTM2}, 2, v{vTM2}"); A(f"v_add_u32 v{vTM2}, {L_MX}, v{vTM2}")
    E.label("L_ksync")
    A(f"ds_read2_b32 {P(vAD[0])}, v{vFLG} offset0:{L_KD//4} offset1:{L_KD//4+1}"); A(f"ds_read2_b32 {P(vAD[2])}, v{vFLG} offset0:{L_KD//4+2} offset1:{L_KD//4+3}")
    A(f"ds_read2_b32 {P(vS)}, v{vTM2} offset0:0 offset1:2"); A(f"ds_read2_b32 {P(vS+2)}, v{vTM2} offset0:4 offset1:6")
    spin_guard()
    A("s_waitcnt lgkmcnt(0)")
    A(f"v_min3_u32 v{vAD[0]}, v{vAD[0]}, v{vAD[1]}, v{vAD[2]}"); A(f"v_min_u32 v{vAD[0]}, v{vAD[0]}, v{vAD[3]}")
    A(f"v_readfirstlane_b32 {sT0}, v{vAD[0]}")
    A(f"s_cmp_lt_u32 {sT0}, {sKE}"); A("s_cbranch_scc1 L_ksync")
    A(f"v_max3_f32 v{vM}, v{vS}, v{vS+1}, v{vS+2}"); A(f"v_max_f32 v{vM}, v{vM}, v{vS+3}")
    round_bf(vM, vM)
    A(f"v_mul_f32 v{vMC}, {sC}, v{vM}")
    E.label("L_loop")
    A(f"ds_read_b128 {Q4(vP)}, v{vSA}")
    A(f"v_add_u32 v{vSA}, 128, v{vSA}")
    A("s_waitcnt lgkmcnt(0)")
    for i in range(4): unpack(vS+2*i, vS+2*i+1, vP+i)
    probs(2); add_l(2)
    A(f"s_cmp_lt_u32 {sCI}, {sPK}"); A("s_cbranch_scc1 L_pv_park")
    wait_tile()
    vtile_read(vF)
    for e in range(4):
        A(f"s_waitcnt lgkmcnt({6-2*e})")
        A(f"v_mfma_f32_16x16x32_bf16 {Q4(vO+4*e)}, {Q4(vP)}, {Q4(vF+4*e)}, {Q4(vO+4*e)}")
    pub_cons()
    E.label("L_pv_done")
    A(f"s_add_u32 {sCI}, {sCI}, 1"); A(f"s_cmp_lt_u32 {sCI}, {sNS}"); A("s_cbranch_scc1 L_loop")
    if touch:
        for nm in ("fin","red","ffn","ffn2"): touch_pad(nm)
    if forcepar is None:
        A(f"v_mov_b32 v{vTM}, {WS_PAR}")
        poll([f"global_load_dwordx4 {Q4(vF)}, v{vTM}, {pWS} {ldf}"], [[vF+1, vF+3]])
        A(f"v_readfirstlane_b32 {sP0}, v{vF}"); A(f"v_readfirstlane_b32 {sP1}, v{vF+2}")
    else:
        A(f"s_mov_b32 {sP0}, {forcepar[0]*8192}"); A(f"s_mov_b32 {sP1}, {forcepar[1]*8192}")
    A(f"s_lshl_b32 {sT0}, {sG}, 2"); A(f"s_and_b32 {sT1}, {sW}, 1"); A(f"s_add_u32 {sT0}, {sT0}, {sT1}"); A(f"s_lshl_b32 {sT0}, {sT0}, 14")
    A(f"s_lshr_b32 {sT1}, {sW}, 1"); A(f"s_lshl_b32 {sT1}, {sT1}, 13"); A(f"s_xor_b32 {sT1}, {sT1}, {sP0}"); A(f"s_add_u32 {sT0}, {sT0}, {sT1}")
    A(f"s_lshl_b32 {sT1}, {sJ}, 8"); A(f"s_add_u32 {sT0}, {sT0}, {sT1}"); A(f"s_add_u32 {sT0}, {sT0}, {WS_A}")
    A(f"v_lshrrev_b32 v{vAA}, 1, v{vG4}"); A(f"v_lshlrev_b32 v{vAA}, 15, v{vAA}")
    A(f"v_and_b32 v{vTM}, 1, v{vG4}"); A(f"v_lshl_or_b32 v{vAA}, v{vTM}, 12, v{vAA}"); A(f"v_lshl_or_b32 v{vAA}, v{vN}, 4, v{vAA}")
    A(f"v_add_u32 v{vAA}, {sT0}, v{vAA}")
    A(f"s_lshr_b32 {sT0}, {sWG}, 3"); A(f"s_lshl_b32 {sT0}, {sT0}, 1"); A(f"s_bfe_u32 {sT1}, {sWG}, 0x10001"); A(f"s_add_u32 {sT0}, {sT0}, {sT1}"); A(f"s_lshl_b32 {sT0}, {sT0}, 14")
    A(f"s_bfe_u32 {sT1}, {sWG}, 0x10002"); A(f"s_lshl_b32 {sT1}, {sT1}, 13"); A(f"s_xor_b32 {sT1}, {sT1}, {sP0}"); A(f"s_add_u32 {sT0}, {sT0}, {sT1}")
    A(f"s_and_b32 {sT1}, {sWG}, 1"); A(f"s_lshl_b32 {sT1}, {sT1}, 12"); A(f"s_add_u32 {sT0}, {sT0}, {sT1}"); A(f"s_add_u32 {sT0}, {sT0}, {WS_A}")
    A(f"v_lshlrev_b32 v{vAI}, 4, v{vN}"); A(f"v_lshl_or_b32 v{vAI}, v{vG4}, 10, v{vAI}"); A(f"v_add_u32 v{vAI}, {sT0}, v{vAI}")
    A(f"v_lshl_add_u32 v{vX+3}, v{vLANE}, 6, {sT0}")
    A(f"s_cmp_eq_u32 {sW}, 0"); A(f"s_cselect_b32 {sWRM}, {0x7fffffff if awarm else 0}, 0")
    A(f"s_cmp_ge_u32 {sRR}, 64"); A(f"s_cbranch_scc1 L_nored"); A(f"s_sub_u32 {sT0}, {sW}, 1"); A(f"s_cmp_ge_u32 {sT0}, 2"); A(f"s_cbranch_scc1 L_nored")
    A(f"s_lshl_b32 {sT0}, {sT0}, 14"); A(f"s_lshl_b32 {sT1}, {sRR}, 15"); A(f"s_add_u32 {sT0}, {sT0}, {sT1}"); A(f"s_add_u32 {sT0}, {sT0}, {sP1}"); A(f"s_add_u32 {sT0}, {sT0}, {WS_B}")
    A(f"v_lshl_add_u32 v{vX+3}, v{vLANE}, 7, {sT0}"); A(f"s_mov_b32 {sWRM}, {[0,0x7fffffff,1,2][bwarm]}")
    if bwarm == 3: A(f"global_load_dword v{vX+2}, v{vX+3}, {pWS} {ldf}")
    E.label("L_nored")
    A(f"s_lshl_b32 {sT0}, {sB}, 2"); A(f"s_add_u32 {sT0}, {sT0}, {sW}"); A(f"s_lshl_b32 {sT0}, {sT0}, 18")
    A(f"s_bfe_u32 {sT1}, {sWG}, 0x10006"); A(f"s_lshl_b32 {sT1}, {sT1}, 14"); A(f"s_add_u32 {sT0}, {sT0}, {sT1}"); A(f"s_add_u32 {sT0}, {sT0}, {sP1}")
    A(f"s_and_b32 {sT1}, {sWG}, 63"); A(f"s_lshl_b32 {sT1}, {sT1}, 7"); A(f"s_add_u32 {sT0}, {sT0}, {sT1}"); A(f"s_add_u32 {sT0}, {sT0}, {WS_B}")
    A(f"v_lshrrev_b32 v{vTM}, 3, v{vLANE}"); A(f"v_lshlrev_b32 v{vTM}, 15, v{vTM}")
    A(f"v_and_b32 v{vTM2}, 7, v{vLANE}"); A(f"v_lshl_or_b32 v{vBA}, v{vTM2}, 4, v{vTM}"); A(f"v_add_u32 v{vBA}, {sT0}, v{vBA}")
    E.label("L_mini")
    wait_tile("L_fin")
    qk(1)
    for e in range(4): A(f"v_add_u32 v{vAD[e]}, {sSLOT}, v{vVB[e]}")
    for e in range(4): A(f"ds_read_b64_tr_b16 {P(vF + 2*e)}, v{vAD[e]} offset:8192")
    softmax(1, "b")
    A("s_waitcnt lgkmcnt(0)")
    for e in range(4): A(f"v_mfma_f32_16x16x16_bf16 {Q4(vO+4*e)}, {P(vP)}, {P(vF+2*e)}, {Q4(vO+4*e)}")
    add_l(1)
    slot_advance()
    A(f"s_cmp_eq_u32 {sN}, {sTOT}"); A("s_cbranch_scc1 L_fin")
    A(f"v_mov_b32 v{vTM}, {sN}"); one_lane(f"ds_write_b32 v{vCONS}, v{vTM}")
    A("s_branch L_mini")
    rescale("b")
    E.label("L_pv_park")
    for p in range(park):
        if p < park-1: nx = lab("pk"); A(f"s_cmp_lg_u32 {sCI}, {p}"); A(f"s_cbranch_scc1 {nx}")
        for e in range(4): A(f"v_mfma_f32_16x16x32_bf16 {Q4(vO+4*e)}, {Q4(vP)}, {Q4(vW1+16*p+4*e)}, {Q4(vO+4*e)}")
        A("s_branch L_pv_done")
        if p < park-1: E.label(nx)

    vG=vF; vI=vF+4; sa=vS; sb=vS+1; sw=vS+2
    vA=vQ; vOPR=vQ+4; vOPW=vQ+5; vR0=vQ+6; vR1=vQ+7; vR2=vQ+8; vR3=vQ+9; vR4=vQ+10; vR5=vQ+11; vZ=vQ+12
    E.label("L_ffn_addr")
    A(f"v_lshrrev_b32 v{vTM}, 3, v{vLANE}"); A(f"v_and_b32 v{vTM2}, 7, v{vLANE}")
    A(f"v_lshlrev_b32 v{vR0}, 9, v{vTM}"); A(f"v_lshl_or_b32 v{vR0}, v{vTM2}, 4, v{vR0}"); A(f"s_add_u32 {sT0}, {sP0}, {WS_H}"); A(f"v_add_u32 v{vR0}, {sT0}, v{vR0}")
    A(f"v_mul_u32_u24 v{vR1}, 224, v{vTM}"); A(f"v_lshl_add_u32 v{vR1}, v{vTM2}, 2, v{vR1}"); A(f"v_add_u32 v{vR1}, {L_LN}, v{vR1}")
    ln_read_addr(vR2, L_LN)
    A(f"s_lshl_b32 {sT0}, {sW}, 5"); A(f"s_add_u32 {sT0}, {sT0}, {L_ACT}")
    A(f"v_lshlrev_b32 v{vR3}, 7, v{vG4}"); A(f"v_lshl_add_u32 v{vR3}, v{vN}, 1, v{vR3}"); A(f"v_add_u32 v{vR3}, {sT0}, v{vR3}")
    A(f"v_and_b32 v{vR4}, 1, v{vLANE}"); A(f"v_lshlrev_b32 v{vR4}, 7, v{vR4}"); A(f"v_lshl_add_u32 v{vR4}, v{vG4}, 3, v{vR4}"); A(f"v_add_u32 v{vR4}, {L_ACT}, v{vR4}")
    A(f"s_lshl_b32 {sT0}, {sW}, 16"); A(f"s_lshl_b32 {sT1}, {sIDX}, 7"); A(f"s_add_u32 {sT0}, {sT0}, {sT1}"); A(f"s_add_u32 {sT0}, {sT0}, {sP0}"); A(f"s_add_u32 {sT0}, {sT0}, {WS_D}")
    A(f"v_lshrrev_b32 v{vTM}, 3, v{vN}"); A(f"v_lshlrev_b32 v{vTM}, 12, v{vTM}"); A(f"v_lshl_or_b32 v{vTM}, v{vG4}, 14, v{vTM}")
    A(f"v_lshl_or_b32 v{vTM}, v{vTM2}, 4, v{vTM}"); A(f"v_add_u32 v{vR5}, {sT0}, v{vTM}")
    A("s_branch L_addr_done")
    if align: A(".p2align 12")
    if touch: E.label("L_pad_fin"); A("s_branch L_ret_fin")
    E.label("L_fin")
    stamp(3)
    yreg = [vO, vO+4, vO+8, vO+12, vQ+16, vQ+20, vQ+24]
    xrow("v_add_f32", [vL], [vTM])
    if hilo:
        for e in range(4): A(f"v_pk_add_f32 {P(vO+4*e)}, {P(vO+4*e)}, {P(vO+4*e+2)}")
    A(f"v_log_f32 v{vTM2}, v{vL}"); A(f"v_rcp_f32 v{vTM3}, v{vL}")
    A(f"v_mov_b32 v{vG+3}, {sTAG}")
    A(f"v_add_f32 v{vTM2}, v{vMC}, v{vTM2}")
    SEL4(vG, vO+0, vO+8, vO+1, vO+9, vMX)
    A(f"v_mov_b32_dpp v{vTM}, v{vTM3} quad_perm:[0,0,2,2] row_mask:0x3 bank_mask:0xf")
    A(f"v_mov_b32_dpp v{vG+2}, v{vTM2} quad_perm:[0,0,2,2] row_mask:0x3 bank_mask:0xf")
    SEL4(vG+1, vO+4, vO+12, vO+5, vO+13, vMX)
    A(f"v_mov_b32_dpp v{vTM}, v{vTM3} quad_perm:[1,1,3,3] row_mask:0xc bank_mask:0xf")
    A(f"v_mov_b32_dpp v{vG+2}, v{vTM2} quad_perm:[1,1,3,3] row_mask:0xc bank_mask:0xf")
    A(f"v_mul_f32 v{vG}, v{vG}, v{vTM}"); A(f"v_mul_f32 v{vG+1}, v{vG+1}, v{vTM}")
    A(f"global_store_dwordx4 v{vAA}, {Q4(vG)}, {pWS} {stf}")
    stamp(4)
    if bwarm == 2:
        A(f"s_cmp_lg_u32 {sWRM}, 1"); A("s_cbranch_scc1 L_nobw")
        A(f"global_load_dword v{vX+2}, v{vX+3}, {pWS} {ldf}")
        E.label("L_nobw")
    A(f"v_lshlrev_b32 v{vOPR}, 3, v{vG4}"); A(f"v_add_u32 v{vOPR}, {L_OP}, v{vOPR}")
    A(f"v_lshlrev_b32 v{vOPW}, 1, v{vN}"); A(f"v_add_u32 v{vOPW}, {L_OP}, v{vOPW}")
    A(f"v_mov_b32 v{vZ}, 0")
    A(f"s_cmp_lt_u32 {sIDX}, 28"); A("s_cbranch_scc1 L_ffn_addr")
    A(f"s_cmp_ge_u32 {sRR}, 64"); A("s_cbranch_scc1 L_addr_done")
    A(f"s_lshl_b32 {sT0}, {sRR}, 15"); A(f"s_lshr_b32 {sT1}, {sW}, 1"); A(f"s_lshl_b32 {sT1}, {sT1}, 14"); A(f"s_add_u32 {sT0}, {sT0}, {sT1}")
    A(f"s_and_b32 {sT1}, {sW}, 1"); A(f"s_lshl_b32 {sT1}, {sT1}, 12"); A(f"s_add_u32 {sT0}, {sT0}, {sT1}"); A(f"s_add_u32 {sT0}, {sT0}, {sP1}"); A(f"s_add_u32 {sT0}, {sT0}, {WS_B}")
    A(f"v_lshl_add_u32 v{vR0}, v{vLANE}, 4, {sT0}")
    A(f"s_lshl_b32 {sT0}, {sW}, 6"); A(f"s_add_u32 {sT0}, {sT0}, {L_RED}")
    A(f"v_and_b32 v{vTM}, 7, v{vLANE}"); A(f"v_lshl_add_u32 v{vR1}, v{vTM}, 2, {sT0}")
    A(f"v_and_b32 v{vTM}, 6, v{vLANE}"); A(f"v_lshlrev_b32 v{vR2}, 2, v{vTM}"); A(f"v_add_u32 v{vR2}, {L_RED}, v{vR2}")
    A(f"s_lshl_b32 {sT0}, {sRR}, 6"); A(f"s_add_u32 {sT0}, {sT0}, {sP0}"); A(f"s_add_u32 {sT0}, {sT0}, {WS_H}"); A(f"v_lshl_add_u32 v{vR3}, v{vTM}, 3, {sT0}")
    A(f"s_lshr_b32 {sT0}, {sRR}, 1"); A(f"s_lshl_b32 {sT0}, {sT0}, 14"); A(f"s_and_b32 {sT1}, {sRR}, 1"); A(f"s_lshl_b32 {sT1}, {sT1}, 12"); A(f"s_add_u32 {sT0}, {sT0}, {sT1}")
    A(f"s_add_u32 {sT0}, {sT0}, {sP0}"); A(f"s_add_u32 {sT0}, {sT0}, {WS_D}"); A(f"v_lshl_add_u32 v{vR4}, v{vLANE}, 4, {sT0}")
    A(f"v_lshl_add_u32 v{vR5}, v{vTM}, 1, {sCOL}")
    E.label("L_addr_done")
    aloads = [f"global_load_dwordx4 {Q4(vI+4*i)}, v{vAI}, {pWS} offset:{i*256} {ldf}" for i in range(4)]
    A(f"s_cmp_lg_u32 {sW}, 0"); A("s_cbranch_scc1 L_a_nopoll")
    for l in aloads: A(l)
    E.label("L_a_nopoll")
    wide_addr(vX)
    for h in range(2): read_wide_tile(vX, vWO, h)
    A(f"s_cmp_lg_u32 {sW}, 0"); A("s_cbranch_scc1 L_a_join")
    poll(aloads, [[vI+4*i+3] for i in range(4)], issued=True)
    stamp(5)
    A(f"v_max3_f32 v{vMX}, v{vI+2}, v{vI+6}, v{vI+10}"); A(f"v_max_f32 v{vMX}, v{vMX}, v{vI+14}")
    xrow("v_max_f32", [vMX], [vTM])
    for i in range(4): A(f"v_sub_f32 v{vI+4*i+2}, v{vI+4*i+2}, v{vMX}")
    for i in range(4): A(f"v_exp_f32 v{vI+4*i+2}, v{vI+4*i+2}")
    A(f"v_mul_f32 v{sa}, v{vI}, v{vI+2}"); A(f"v_mul_f32 v{sb}, v{vI+1}, v{vI+2}"); A(f"v_add_f32 v{sw}, v{vI+2}, v{vI+6}")
    for i in range(1,4):
        A(f"v_fmac_f32 v{sa}, v{vI+4*i}, v{vI+4*i+2}"); A(f"v_fmac_f32 v{sb}, v{vI+4*i+1}, v{vI+4*i+2}")
        if i > 1: A(f"v_add_f32 v{sw}, v{sw}, v{vI+4*i+2}")
    xrow("v_add_f32", [sw, sa, sb], [vS+3, vS+4, vS+5])
    A(f"v_rcp_f32 v{sw}, v{sw}")
    A(f"v_mul_f32 v{sa}, v{sa}, v{sw}"); A(f"v_mul_f32 v{sb}, v{sb}, v{sw}")
    A(f"v_mov_b32_dpp v{vS+3}, v{sa} quad_perm:[1,0,3,2] row_mask:0xf bank_mask:0xf")
    A(f"v_mov_b32_dpp v{vS+4}, v{sb} quad_perm:[1,0,3,2] row_mask:0xf bank_mask:0xf")
    A(f"v_cvt_pk_bf16_f32 v{sa}, v{sa}, v{vS+3}"); A(f"v_cvt_pk_bf16_f32 v{sb}, v{sb}, v{vS+4}")
    A("s_mov_b64 exec, 0x5555"); A(f"ds_write2_b32 v{vOPW}, v{sa}, v{sb} offset0:0 offset1:8"); A("s_mov_b64 exec, -1")
    A("s_waitcnt lgkmcnt(0)")
    E.label("L_a_join")
    A("s_barrier")
    A(f"ds_read2_b64 {Q4(vA)}, v{vOPR} offset0:0 offset1:4")
    A(f"v_mov_b32 v{vG+1}, {sTAG}")
    A("s_waitcnt lgkmcnt(0)")
    for t in (0,2,4,6,1,3,5):
        A(f"v_mfma_f32_16x16x32_bf16 {Q4(yreg[t])}, {Q4(vA)}, {Q4(vWO+4*t)}, 0")
    SEL4(vG, yreg[0], yreg[2], yreg[4], yreg[6], vMX)
    SEL4(vG+2, yreg[1], yreg[3], yreg[5], vZ, vTM)
    A(f"global_store_dwordx4 v{vBA}, {Q4(vG)}, {pWS} {stf}")
    stamp(6)
    A(f"s_cmp_lt_u32 {sIDX}, 28"); A("s_cbranch_scc1 L_ffn")
    A(f"s_cmp_ge_u32 {sRR}, 64"); A("s_cbranch_scc1 L_done")
    def inbox(addr): return [f"global_load_dwordx4 {Q4(vI+4*i)}, v{addr}, {pWS} offset:{i*1024} {ldf}" for i in range(4)]
    tags2 = [[vI+4*i+3] if onetag else [vI+4*i+1, vI+4*i+3] for i in range(4)]
    def sum_inbox():
        A(f"v_add_f32 v{sa}, v{vI}, v{vI+4}"); A(f"v_add_f32 v{sb}, v{vI+2}, v{vI+6}")
        A(f"v_add_f32 v{vS+2}, v{vI+8}, v{vI+12}"); A(f"v_add_f32 v{vS+3}, v{vI+10}, v{vI+14}")
        A(f"v_add_f32 v{sa}, v{sa}, v{vS+2}"); A(f"v_add_f32 v{sb}, v{sb}, v{vS+3}")
        A(f"v_add_f32_dpp v{sa}, v{sa}, v{sa} row_ror:8 row_mask:0xf bank_mask:0xf")
        A(f"v_add_f32_dpp v{sb}, v{sb}, v{sb} row_ror:8 row_mask:0xf bank_mask:0xf")
        xrow("v_add_f32", [sa, sb], [vS+2, vS+3])
    vXF = vO
    unpack(vXF, vXF+1, vXH); unpack(vXF+2, vXF+3, vXH+1)
    if touch: pad("red")
    poll(inbox(vR0), tags2)
    stamp(7)
    sum_inbox()
    A("s_mov_b64 exec, 0xff"); A(f"ds_write2_b32 v{vR1}, v{sa}, v{sb} offset0:0 offset1:8"); A("s_mov_b64 exec, -1")
    A("s_waitcnt lgkmcnt(0)"); A("s_barrier")
    A(f"s_cmp_lg_u32 {sW}, 0"); A("s_cbranch_scc1 L_done")
    for i in range(4): A(f"ds_read2_b64 {Q4(vI+4*i)}, v{vR2} offset0:{i*8} offset1:{i*8+4}")
    def add_resid(y, dst):
        A(f"v_cvt_pk_bf16_f32 v{dst}, v{y}, v{y+1}"); A(f"v_cvt_pk_bf16_f32 v{dst+2}, v{y+2}, v{y+3}")
        unpack(y, y+1, dst); unpack(y+2, y+3, dst+2)
        A(f"v_pk_add_f32 {P(y)}, {P(y)}, {P(vXF)}"); A(f"v_pk_add_f32 {P(y+2)}, {P(y+2)}, {P(vXF+2)}")
        A(f"v_cvt_pk_bf16_f32 v{dst}, v{y}, v{y+1}"); A(f"v_cvt_pk_bf16_f32 v{dst+2}, v{y+2}, v{y+3}")
    A("s_waitcnt lgkmcnt(2)")
    A(f"v_pk_add_f32 {P(vI)}, {P(vI)}, {P(vI+4)}"); A(f"v_pk_add_f32 {P(vI+2)}, {P(vI+2)}, {P(vI+6)}")
    A("s_waitcnt lgkmcnt(0)")
    A(f"v_pk_add_f32 {P(vI+8)}, {P(vI+8)}, {P(vI+12)}"); A(f"v_pk_add_f32 {P(vI+10)}, {P(vI+10)}, {P(vI+14)}")
    A(f"v_pk_add_f32 {P(vI)}, {P(vI)}, {P(vI+8)}"); A(f"v_pk_add_f32 {P(vI+2)}, {P(vI+2)}, {P(vI+10)}")
    add_resid(vI, vG)
    A("s_mov_b64 exec, 0x55"); A(f"global_store_dwordx4 v{vR3}, {Q4(vG)}, {pWS} {stf}"); A("s_mov_b64 exec, -1")
    stamp(8)
    unpack(vXF, vXF+1, vG); unpack(vXF+2, vXF+3, vG+2)
    A(f"v_mov_b32 v{vI+12}, 0"); A(f"v_mov_b32 v{vI+13}, {sTAG}"); A(f"v_mov_b32 v{vI+14}, 0"); A(f"v_mov_b32 v{vI+15}, {sTAG}")
    poll(inbox(vR4), tags2, first_mask=[-1,-1,-1,"s[66:67]"])
    stamp(9)
    sum_inbox()
    A(f"v_mov_b32_dpp v{vI}, v{sa} quad_perm:[0,0,2,2] row_mask:0xf bank_mask:0xf"); A(f"v_mov_b32_dpp v{vI+1}, v{sa} quad_perm:[1,1,3,3] row_mask:0xf bank_mask:0xf")
    A(f"v_mov_b32_dpp v{vI+2}, v{sb} quad_perm:[0,0,2,2] row_mask:0xf bank_mask:0xf"); A(f"v_mov_b32_dpp v{vI+3}, v{sb} quad_perm:[1,1,3,3] row_mask:0xf bank_mask:0xf")
    add_resid(vI, vI+4)
    A("s_mov_b64 exec, 0x55"); A(f"global_store_dword v{vR5}, v{vI+4}, {pOUT} {outf}")
    A(f"s_cmp_eq_u32 {sGP}, 3"); A("s_cbranch_scc1 L_done")
    A(f"global_store_dword v{vR5}, v{vI+6}, {pOUT} offset:32 {outf}")
    A(f"s_cmp_lg_u32 {sRR}, 0"); A("s_cbranch_scc1 L_done")
    A(f"s_add_u32 {sT0}, {sE}, 1"); A(f"v_mov_b32 v{vTM2}, {sT0}"); A(f"v_mov_b32 v{vTM3}, {WS_E}")
    A("s_mov_b64 exec, 1"); A(f"global_store_dword v{vTM3}, v{vTM2}, {pWS} {stf}")
    if enc:
        A("s_memrealtime s[90:91]"); A("s_waitcnt lgkmcnt(0)")
        A(f"s_sub_u32 {sT0}, s{70+2*enc[1]}, s{70+2*enc[0]}"); A(f"s_lshl_b32 {sT0}, {sT0}, 2"); A(f"s_min_u32 {sT0}, {sT0}, 100000")
        E.label("L_enc")
        A("s_memrealtime s[94:95]"); A("s_waitcnt lgkmcnt(0)")
        A(f"s_sub_u32 {sT1}, s94, s90"); A(f"s_cmp_lt_u32 {sT1}, {sT0}"); A("s_cbranch_scc1 L_enc")
    A("s_branch L_done")
    if touch: E.label("L_pad_ffn"); A("s_branch L_ret_ffn")
    E.label("L_ffn")
    A(f"s_cmp_lg_u32 {sW}, 0"); A("s_cbranch_scc1 L_c_join")
    poll([f"global_load_dwordx4 {Q4(vI+4*u)}, v{vR0}, {pWS} offset:{u*128} {ldf}" for u in range(4)], tags2)
    stamp(7)
    layernorm([vI+2*u for u in range(7)], vO, vR1, 32, mid=(lambda: pad("ffn2")) if touch else None)
    A("s_waitcnt lgkmcnt(0)")
    E.label("L_c_join")
    A("s_barrier")
    def aread(i): A(f"ds_read_b128 {Q4(vF + 4*(i % NF))}, v{vR2} offset:{i*64}")
    for i in range(NF): aread(i)
    for i in range(14):
        A(f"s_waitcnt lgkmcnt({min(NF-1, 13-i)})")
        A(f"v_mfma_f32_16x16x32_bf16 {Q4(vS)}, {Q4(vF + 4*(i % NF))}, {Q4(vW1+4*i)}, {'0' if i==0 else Q4(vS)}")
        if i + NF < 14: aread(i+NF)
    for b in range(2): A(f"v_mov_b32 v{vO+4*b+1}, {sTAG}"); A(f"v_mov_b32 v{vO+4*b+3}, {sTAG}")
    A(f"v_add_u32 v{vR0}, {16*16384}, v{vR5}")
    A(f"v_cndmask_b32 v{vTM}, v{vS}, v{vS+1}, {sM1}")
    round_bf(vTM, vTM)
    A(f"v_mul_f32 v{vTM2}, {(LOG2E | 0x80000000):#x}, v{vTM}")
    A(f"v_exp_f32 v{vTM2}, v{vTM2}")
    A(f"v_add_f32 v{vTM2}, 1.0, v{vTM2}")
    A(f"v_rcp_f32 v{vTM2}, v{vTM2}")
    A(f"v_mul_f32 v{vTM}, v{vTM}, v{vTM2}")
    A(f"v_cvt_pk_bf16_f32 v{vTM}, v{vTM}, v{vTM}")
    A("s_mov_b32 exec_hi, 0"); A(f"ds_write_b16 v{vR3}, v{vTM}"); A("s_mov_b32 exec_hi, -1")
    A("s_waitcnt lgkmcnt(0)"); A("s_barrier")
    for ks in range(2): A(f"ds_read2_b64 {Q4(vF+4*ks)}, v{vR4} offset0:{ks*8} offset1:{ks*8+4}")
    zreg = [vW1+4*t for t in range(7)]
    for ks in range(2):
        A(f"s_waitcnt lgkmcnt({1-ks})")
        for t in (0,2,4,6,1,3,5):
            A(f"v_mfma_f32_16x16x32_bf16 {Q4(zreg[t])}, {Q4(vF+4*ks)}, {Q4(vW2+28*ks+4*t)}, {'0' if ks==0 else Q4(zreg[t])}")
    for b in range(2): SEL4(vO+4*b, zreg[0]+b, zreg[2]+b, zreg[4]+b, zreg[6]+b, vMX)
    for b in range(2):
        SEL4(vO+4*b+2, zreg[1]+b, zreg[3]+b, zreg[5]+b, vZ, vMX)
        A(f"global_store_dwordx4 v{vR5 if b == 0 else vR0}, {Q4(vO+4*b)}, {pWS} {stf}")
    stamp(8)
    E.label("L_done")
    if diag:
        stamp(10)
        A("s_mov_b64 exec, -1")
        A(f"s_lshl_b32 {sT0}, {sWG}, 2"); A(f"s_add_u32 {sT0}, {sT0}, {sW}"); A(f"s_lshl_b32 {sT0}, {sT0}, 7"); A(f"s_add_u32 {sT0}, {sT0}, {WS_ST}")
        A("s_getreg_b32 s100, hwreg(HW_REG_XCC_ID)")
        A("s_waitcnt lgkmcnt(0)")
        A(f"v_mov_b32 v{vTM}, {sT0}")
        A("s_mov_b64 exec, 1")
        for k in range(11): A(f"v_mov_b32 v{vW1+k}, s{70+2*k}")
        A(f"v_mov_b32 v{vW1+11}, s100"); A(f"v_mov_b32 v{vW1+12}, {sN}"); A(f"v_mov_b32 v{vW1+13}, {sROLE}"); A(f"v_mov_b32 v{vW1+14}, {sWG}"); A(f"v_mov_b32 v{vW1+15}, {sIDX}")
        for k in range(4): A(f"v_mov_b32 v{vW1+16+k}, s{92+2*k}")
        for q in range(5): A(f"global_store_dwordx4 v{vTM}, {Q4(vW1+4*q)}, {pWS} offset:{q*16}")
    E.label("L_end")
    A("s_endpgm")

    E.label("L_ffn_w")
    wide_addr(vX); tall_addr(vX+1)
    for t in range(4): read_tall_tile(vX+1, vW1, t)
    for t in range(4): read_wide_tile(vX, vW2 + 28*(t>>1), t & 1)
    A("s_branch L_ffn_w_done")
    E.label("L_ld_ffn")
    A(f"s_mov_b64 s[52:53], s[{pK[0]}:{pK[1]}]"); A("s_mov_b32 s54, 0"); A("s_mov_b32 s55, 0x20000")
    tall_voffs(3584); A(f"v_lshlrev_b32 v{vLIN}, 4, v0")
    A(f"s_mov_b64 s[48:49], s[{pW1[0]}:{pW1[1]}]"); A(f"s_mov_b32 s50, {448*1792*2}")
    A(f"s_lshl_b32 {sBASE}, {sIDX}, 7")
    for t in range(4):
        if t % 2 == 0: freecheck(2)
        tile_tall(3584, t, 16 if t < 3 else 8)
    A(f"s_mov_b64 s[48:49], s[{pW2[0]}:{pW2[1]}]")
    A(f"s_mul_i32 {sBASE}, {sIDX}, {64*896}"); A(f"s_add_u32 {sT2}, {sN}, 4")
    E.label("L_ld_w2")
    freecheck(1)
    tile_wide()
    A(f"s_cmp_lt_u32 {sN}, {sT2}"); A("s_cbranch_scc1 L_ld_w2")
    A("s_branch L_ld_head_done")
    if forcepar is None:
        E.label("L_probe")
        A(f"s_load_dword s69, {pWS}, {WS_E}")
        A("s_mov_b64 exec, 1")
        for k,off in enumerate((WS_PRB, WS_PRB+8192, WS_B, WS_B+8192)):
            A(f"v_mov_b32 v{32+k}, {off}"); A(f"s_mov_b32 s{92+k}, 0")
        A("v_mov_b32 v36, 0"); A(f"s_mov_b32 {sCI}, {nprobe}")
        for k in range(4): A(f"global_atomic_add v37, v{32+k}, v36, {pWS} sc0")
        A("s_waitcnt vmcnt(0)")
        E.label("L_probe_loop")
        for k in range(4):
            A("s_memtime s[64:65]"); A("s_waitcnt lgkmcnt(0)")
            A(f"global_atomic_add v37, v{32+k}, v36, {pWS} sc0"); A("s_waitcnt vmcnt(0)")
            A("s_memtime s[66:67]"); A("s_waitcnt lgkmcnt(0)")
            A("s_sub_u32 s66, s66, s64"); A(f"s_min_u32 s66, s66, {clip}"); A(f"s_add_u32 s{92+k}, s{92+k}, s66")
        A(f"s_sub_u32 {sCI}, {sCI}, 1"); A(f"s_cmp_lg_u32 {sCI}, 0"); A("s_cbranch_scc1 L_probe_loop")
        A("s_cmp_gt_u32 s92, s93"); A(f"s_cselect_b32 {sT0}, 8192, 0")
        A("s_cmp_gt_u32 s94, s95"); A(f"s_cselect_b32 {sT1}, 8192, 0")
        make_tag(sT2, "s69")
        A(f"v_mov_b32 v32, {sT0}"); A(f"v_mov_b32 v33, {sT2}"); A(f"v_mov_b32 v34, {sT1}"); A(f"v_mov_b32 v35, {sT2}"); A(f"v_mov_b32 v36, {WS_PAR}")
        A(f"global_store_dwordx4 v36, v[32:35], {pWS} {stf}")
        A("s_mov_b64 exec, -1")
        A("s_branch L_ld_wo")

    body = E.finish()
    head = open("sequential_preLN__gqa_block_cached__dense_activation_silu__decode.s.ref").read().split("; Override launch")[0]
    src = head + f"""; Design (one persistent launch, 256 workgroups = one per CU, written by my own generator script):
;  * workgroup = (batch, kv head) group g = id>>4, split j = id&15.  Wave 0 streams K/V with LDS-DMA into a 9 x 16 KiB
;    LDS ring; waves 1-4 compute with MFMA.  Every split owns 64 tiles of 32 keys: first its K (scores to LDS, true
;    maximum), then its V (each wave 64 of the 256 dims).  The last tiles form per-group pools handed out with atomic counters:
;    whole K tiles at the end of the K pass, 16-key K+V tiles with online softmax (true running maximum) at the very end.
;  * q = LN(x) @ wq is computed by 64 workgroups and handed over in tagged granules; V tiles are parked in registers meanwhile.
;  * tail, four tagged hand-offs through d_ws: split combine + wo rows -> column sums + residual -> LN, w1, silu, w2 rows
;    -> column sums + residual.  bf16 roundings sit where the reference materialises bf16 tensors.
;  * tag = hash of an epoch word found in d_ws (advanced at the end): it only tells this launch's granules from older ones.
;  * one workgroup times a few zero-adds to learn which 8 KiB parity of the hand-off pages is close to the readers;
;    the answer and the role/id mapping only pick addresses (speed), never values.  All spins are bounded.
; @launch grid=(256,1,1) block=(320,1,1) lds={LDS}
.amdgcn_target "amdgcn-amd-amdhsa--gfx950"
.text
.globl {NAME}
{'.p2align 12' if align else ''}
.p2align 8
.type {NAME},@function
{NAME}:
{body}.section .rodata,"a"
.p2align 6
.amdhsa_kernel {NAME}
  .amdhsa_next_free_vgpr 256
  .amdhsa_next_free_sgpr 102
  .amdhsa_accum_offset 256
  .amdhsa_group_segment_fixed_size 0
  .amdhsa_kernarg_size 88
  .amdhsa_user_sgpr_count 2
  .amdhsa_user_sgpr_kernarg_segment_ptr 1
  .amdhsa_system_sgpr_workgroup_id_x 1
.end_amdhsa_kernel
"""
    return src, E.npad

if __name__ == "__main__":
    out = sys.argv[1]
    kw = json.loads(sys.argv[2]) if len(sys.argv) > 2 else {}
    src, npad = gen(**kw)
    open(out, "w").write(src)
    print("wrote", out, "lines", src.count("\n"), "pad states", npad)
```

```python
import sys, json, struct
from emit import Emitter

NAME = "sequential_preLN__gqa_block_cached__dense_activation_silu__decode_kernel"
def f2u(x): return struct.unpack("<I", struct.pack("<f", x))[0]

def gen(W=19, NS=58, NA=60, diag=False, hilo=True, spin=1<<20, enc=None, NF=5, ldst=None, qwait=2, forcepar=None, nprobe=3, clip=2000,
        touch=0, qtouch=1, lastfast=1, outf='sc1', onetag=1, nap=0, grp=4, align=1, park=4, ltouch=0, wpre=(2,4), awarm=1, bwarm=2, WD=None, jpos=(15,16,20,21), MAXA=24, front=1, pmin=1):
    E = Emitter(); A = E
    pol = "nt"; stf = ldf = "sc1"
    NSLOT = 9; SLOT = 16384; RING = NSLOT*SLOT; LDS = 163840
    L_FLAG = RING; L_CONS = RING+16; L_RED = RING+256; L_OP = RING+512; L_ACT = RING+768; L_QW = RING+1024; L_LN = RING+2048; L_SC = RING+4096; L_MX = RING+64; L_KD = 36
    WS_E = 0; WS_PAR = 0x800; WS_CNT = 0x1000; WS_H = 0x4000; WS_Q = 0x8000; WS_PRB = 0x10000; WS_D = 0x80000; WS_A = 0x100000; WS_B = 0x200000; WS_ST = 0x400000
    C_SCALE = f2u(1.4426950408889634/16.0); LOG2E = f2u(1.4426950408889634); INV448 = f2u(1.0/448.0); EPS = f2u(1e-5)
    PA = 16+16*(NA-NS); POOL = 32*(64-NA); PROBE = 15*16+3; assert (NS+MAXA)*128 <= 12288 and 16*MAXA >= PA
    assert 12 <= W <= 32 and NF <= 5
    sWG="s2"; sWAVE="s3"
    pX="s[4:5]"; pK=(6,7); pV=(8,9); pWQ=(10,11); pWO=(12,13); pW1=(16,17); pW2=(18,19); pOUT="s[20:21]"; pWS="s[24:25]"
    sG="s26"; sJ="s27"; sROLE="s28"; sN="s31"; sSLOT="s32"; sKNOWN="s33"; sT0="s34"; sT1="s35"; sT2="s36"
    sCI="s37"; sSPIN="s38"; sIDX="s39"; sNS="s63"; sPK="s68"
    vK=[4+i for i in range(8)]; vV=[12+i for i in range(4)]; vLIN=16; vT=[17,18]; vFL=21; vTMP=22; vC=24; vCA=28; vONE=29; vCL=[30,31]
    srdK="s[40:43]"; srdV="s[44:47]"; srdW="s[48:51]"; srdZ="s[52:55]"
    sCUR="s56"; sGB="s57"; sOFF="s58"; sCLM="s59"; sBASE="s61"; sFLOOR="s62"; sOWN="s60"; sVC="s64"; sK0="s66"
    sB="s29"; sHKV="s30"; sW="s40"; sTAG="s41"; sM1="s[42:43]"; sM2="s[44:45]"; sC="s46"; sE="s47"; sRR="s48"; sTOT="s49"
    sCK=["s[50:51]","s[52:53]","s[54:55]","s[56:57]"]; sCOL="s58"; sGP="s59"; sP0="s60"; sP1="s61"; sWRM="s62"; sKE="s69"; sN0="s101"
    vLANE=0; vN=1; vG4=2; vFLG=3; vCONS=4; vTM=5; vTM2=6; vTM3=7
    vM=8; vMC=9; vL=10; vMX=11
    vKB=[12,13,14,15]; vVB=[16,17,18,19]; vAD=[20,21,22,23]
    vS=24; vP=32; vO=36; vQ=52; vF=84; vAA=104; vAI=105; vBA=106
    vWO=108; vW1=136; vW2=192; vX=248; vXH=254
    xr1 = [vWO+u for u in range(7)]; vLW1 = vWO+24

    uid=[0]
    def lab(p): uid[0]+=1; return f"L_{p}_{uid[0]}"
    def P(r): return f"v[{r}:{r+1}]"
    def Q4(r): return f"v[{r}:{r+3}]"
    def stamp(k):
        if not diag and not (enc and k in (0, enc[0], enc[1])): return
        A(f"s_memrealtime s[{70+2*k}:{71+2*k}]")
    def slot_advance():
        A(f"s_add_u32 {sN}, {sN}, 1"); A(f"s_add_u32 {sSLOT}, {sSLOT}, {SLOT}")
        A(f"s_cmp_eq_u32 {sSLOT}, {RING}"); A(f"s_cselect_b32 {sSLOT}, 0, {sSLOT}")
    def spin_guard(): A(f"s_sub_u32 {sSPIN}, {sSPIN}, 1"); A("s_cbranch_scc1 L_end")
    def one_lane(ins): A("s_mov_b64 exec, 1"); A(ins); A("s_mov_b64 exec, -1")
    def share_consts(part=3):
        if part & 1:
            A(f"s_sub_u32 {sT0}, {sROLE}, 8"); A(f"s_lshl_b32 {sIDX}, {sG}, 1"); A(f"s_add_u32 {sIDX}, {sIDX}, {sT0}")
            A(f"s_cmp_lt_u32 {sT0}, 2"); A(f"s_cselect_b32 {sIDX}, {sIDX}, 99")
            A(f"s_cmp_lt_u32 {sROLE}, 4"); A(f"s_cselect_b32 {sPK}, {park//2}, {park}")
            A(f"s_cmp_lt_u32 {sIDX}, 28"); A(f"s_cselect_b32 {sPK}, 0, {sPK}"); A(f"s_cmp_eq_u32 {sIDX}, 30"); A(f"s_cselect_b32 {sPK}, 0, {sPK}")
        if part & 2:
            A(f"s_cmp_lt_u32 {sROLE}, 4"); A(f"s_cselect_b32 {sNS}, {NS-2}, {NS}")
            A(f"s_cmp_lt_u32 {sIDX}, 30"); A(f"s_cselect_b32 {sNS}, {NS-4}, {sNS}"); A(f"s_cmp_eq_u32 {sIDX}, 30"); A(f"s_cselect_b32 {sNS}, {NS-8}, {sNS}")
    def make_tag(dst, e): A(f"s_mul_i32 {dst}, {e}, 0x9e3779b1"); A(f"s_add_u32 {dst}, {dst}, 0x7f4a7c15")
    pads = []
    def pad(name):
        sk = lab("padskip"); A(f"s_branch {sk}"); E.label(f"L_pad_{name}"); A(f"s_branch L_ret_{name}"); E.label(sk)
    def touch_pad(name): A(f"s_branch L_pad_{name}"); E.label(f"L_ret_{name}")

    A(f"s_cmp_ge_u32 {sWG}, 256"); A("s_cbranch_scc1 L_end")
    stamp(0)
    A("s_load_dwordx16 s[4:19], s[0:1], 0"); A("s_load_dwordx4 s[20:23], s[0:1], 64"); A("s_load_dwordx2 s[24:25], s[0:1], 80")
    A("v_lshrrev_b32 v1, 6, v0"); A("v_and_b32 v0, 63, v0"); A(f"v_readfirstlane_b32 {sWAVE}, v1")
    A(f"s_lshr_b32 {sG}, {sWG}, 4"); A(f"s_and_b32 {sJ}, {sWG}, 15")
    A(f"s_lshr_b32 {sT0}, {sJ}, 1"); A(f"s_and_b32 {sT0}, {sT0}, 4"); A(f"s_and_b32 {sROLE}, {sJ}, 3"); A(f"s_add_u32 {sROLE}, {sROLE}, {sT0}")
    A(f"s_sub_u32 {sROLE}, {sROLE}, {sG}"); A(f"s_and_b32 {sROLE}, {sROLE}, 7")
    A(f"s_add_u32 {sT0}, {sROLE}, 4"); A(f"s_add_u32 {sT1}, {sROLE}, 8"); A(f"s_cmp_lt_u32 {sROLE}, 4"); A(f"s_cselect_b32 {sROLE}, {sROLE}, {sT1}")
    A(f"s_bitcmp1_b32 {sJ}, 2"); A(f"s_cselect_b32 {sROLE}, {sROLE}, {sT0}")
    A(f"s_mov_b32 {sN}, 0"); A(f"s_mov_b64 s[32:33], 0"); A(f"s_mov_b32 {sCI}, 0"); A(f"s_mov_b32 {sSPIN}, {spin}")
    A(f"v_mov_b32 v3, {L_FLAG}"); A(f"v_lshl_add_u32 v1, v0, 2, v3"); A("v_mov_b32 v2, 0")
    A("s_mov_b64 exec, 6"); A("v_bfrev_b32 v2, -2"); A("s_mov_b64 exec, 0x1fff"); A("ds_write_b32 v1, v2"); A("s_mov_b64 exec, -1")
    A(f"v_lshrrev_b32 v1, 5, v0"); A(f"v_mul_u32_u24 v1, 896, v1"); A(f"v_and_b32 v2, 31, v0"); A(f"v_lshl_add_u32 v{vLW1}, v2, 2, v1")
    A("s_waitcnt lgkmcnt(0)")
    A("s_barrier")
    A(f"s_cmp_eq_u32 {sWAVE}, 0"); A("s_cbranch_scc1 L_loader")
    A(f"s_load_dword {sE}, {pWS}, {WS_E}")
    A(f"s_cmp_ge_u32 {sROLE}, 4"); A("s_cbranch_scc1 L_consumer")
    for u in range(7): A(f"global_load_dword v{xr1[u]}, v{vLW1}, {pX} offset:{u*128}")
    A("s_branch L_qprod")

    def publish(back):
        A(f"s_sub_u32 {sT0}, {sN}, {back}"); A(f"s_max_i32 {sT0}, {sT0}, {sFLOOR}")
        A(f"v_mov_b32 v{vTMP}, {sT0}"); one_lane(f"ds_write_b32 v{vFL}, v{vTMP}")
    def throttle(i, W=W):
        if i % grp == grp-1:
            A(f"s_waitcnt vmcnt({W})")
            if i+1+16 >= W and (i+1-grp+16 < W or i < grp): publish(1)
    def tile_rows(specs, pol=pol, W=W):
        for i,(srd,vo,so) in enumerate(specs):
            if i % 4 == 0:
                A(f"s_add_u32 m0, {sSLOT}, {i*1024}" if i else f"s_mov_b32 m0, {sSLOT}")
                A(f"s_add_u32 {sOFF}, {sBASE}, {so}" if so else f"s_mov_b32 {sOFF}, {sBASE}")
            A(f"buffer_load_dwordx4 v{vo}, {srd}, {sOFF} offen offset:{(i%4)*1024} {pol} lds")
            throttle(i, W)
        slot_advance()
    def tile_tall(rowstride, t, nvalid):
        for i in range(16):
            A(f"s_add_u32 m0, {sSLOT}, {i*1024}" if i else f"s_mov_b32 m0, {sSLOT}")
            A(f"s_add_u32 {sOFF}, {sBASE}, {(t*128+i*8)*rowstride}")
            A(f"buffer_load_dwordx4 v{vT[i&1]}, {srdW if i < nvalid else srdZ}, {sOFF} offen {pol} lds")
            throttle(i)
        slot_advance()
    def tile_wide(pol=pol):
        tile_rows([(srdW if i < 14 else srdZ, vLIN, i*1024) for i in range(16)], pol)
        A(f"s_add_u32 {sBASE}, {sBASE}, 14336")
    def tall_voffs(stride):
        A("v_lshrrev_b32 v1, 3, v0"); A("v_and_b32 v2, 7, v0"); A("v_and_b32 v3, 2, v1"); A("v_xor_b32 v2, v2, v3"); A("v_lshlrev_b32 v2, 4, v2")
        A(f"v_mul_u32_u24 v3, {stride}, v1"); A(f"v_add_u32 v{vT[0]}, v3, v2"); A("v_xor_b32 v2, 64, v2"); A(f"v_add_u32 v{vT[1]}, v3, v2")
    def freecheck(k):
        ok = lab("free"); lp = lab("freepoll")
        A(f"s_add_u32 {sT0}, {sKNOWN}, {NSLOT-k}"); A(f"s_cmp_ge_u32 {sT0}, {sN}"); A(f"s_cbranch_scc1 {ok}")
        E.label(lp)
        A(f"ds_read_b128 {Q4(vC)}, v{vFL} offset:16")
        spin_guard()
        A("s_waitcnt lgkmcnt(0)")
        A(f"v_min3_u32 v{vC}, v{vC}, v{vC+1}, v{vC+2}"); A(f"v_min_u32 v{vC}, v{vC}, v{vC+3}")
        A(f"v_readfirstlane_b32 {sKNOWN}, v{vC}")
        A(f"s_add_u32 {sT0}, {sKNOWN}, {NSLOT-k}"); A(f"s_cmp_ge_u32 {sT0}, {sN}"); A(f"s_cbranch_scc1 {ok}")
        A("s_sleep 1"); A(f"s_branch {lp}")
        E.label(ok)
    def claim(p, off=0):
        one_lane(f"global_atomic_add v{vCL[p]}, v{vCA}, v{vONE}, {pWS} offset:{off} sc0")
    def claim_last_two(cnt, lim, off):
        nc = lab("nocl"); c1 = lab("cl1")
        A(f"s_add_u32 {sT0}, {cnt}, 1"); A(f"s_cmp_lt_u32 {sT0}, {lim}"); A(f"s_cbranch_scc1 {nc}")
        A(f"s_cmp_eq_u32 {cnt}, {lim}"); A(f"s_cbranch_scc1 {c1}")
        claim(0, off); A(f"s_branch {nc}")
        E.label(c1); claim(1, off)
        E.label(nc)

    rpos = [b for b in range(14,24) if b not in jpos]; RMASK = sum(1<<b for b in rpos)
    def scatter(dst, src, pos, tmp):
        k = 0
        while k < len(pos):
            n = 1
            while k+n < len(pos) and pos[k+n] == pos[k]+n: n += 1
            A(f"s_bfe_u32 {tmp}, {src}, {(n<<16)|k:#x}"); A(f"s_lshl_b32 {tmp}, {tmp}, {pos[k]}"); A(f"s_or_b32 {dst}, {dst}, {tmp}")
            k += n
    def next_tile():
        A(f"s_or_b32 {sCUR}, {sCUR}, {(~RMASK)&0xffffffff:#x}"); A(f"s_add_u32 {sCUR}, {sCUR}, 1"); A(f"s_and_b32 {sCUR}, {sCUR}, {RMASK:#x}")
        A(f"s_or_b32 {sBASE}, {sOWN}, {sCUR}")
    E.label("L_loader")
    A("s_setprio 3")
    A(f"v_mov_b32 v{vFL}, v3"); A(f"s_mov_b32 {sFLOOR}, 0")
    A("s_mov_b32 s50, 3670016"); A("s_mov_b32 s51, 0x20000")
    A(f"s_cmp_ge_u32 {sROLE}, 4"); A("s_cbranch_scc1 L_ld_noq")
    tall_voffs(8192)
    A(f"s_mov_b64 s[48:49], s[{pWQ[0]}:{pWQ[1]}]")
    A(f"s_and_b32 {sOFF}, {sG}, 7"); A(f"s_lshl_b32 {sOFF}, {sOFF}, 3"); A(f"s_lshr_b32 {sT0}, {sG}, 3"); A(f"s_lshl_b32 {sT0}, {sT0}, 2")
    A(f"s_add_u32 {sOFF}, {sOFF}, {sT0}"); A(f"s_add_u32 {sOFF}, {sOFF}, {sROLE}"); A(f"s_lshl_b32 {sOFF}, {sOFF}, 7")
    A("s_mov_b32 m0, 0")
    E.label("L_ld_q")
    for i in range(2):
        A(f"buffer_load_dwordx4 v{vT[i]}, {srdW}, {sOFF} offen {pol} lds")
        A(f"s_add_u32 {sOFF}, {sOFF}, {8*8192}"); A("s_add_u32 m0, m0, 1024")
    A(f"s_cmp_lt_u32 m0, {56*1024}"); A("s_cbranch_scc1 L_ld_q")
    A(f"s_mov_b32 {sN}, 4"); A(f"s_mov_b32 {sSLOT}, {4*SLOT}"); A(f"s_mov_b32 {sFLOOR}, 4")
    A(f"v_mov_b32 v{vTMP}, 4"); A("s_waitcnt vmcnt(0)"); one_lane(f"ds_write_b32 v{vFL}, v{vTMP}")
    E.label("L_ld_noq")
    if forcepar is None:
        A(f"s_cmp_eq_u32 {sWG}, {PROBE}"); A("s_cbranch_scc1 L_probe")
    E.label("L_ld_wo")
    A("v_lshrrev_b32 v1, 5, v0"); A("v_and_b32 v2, 31, v0")
    A("v_lshlrev_b32 v3, 1, v1"); A("v_xor_b32 v3, v2, v3"); A("v_lshlrev_b32 v3, 4, v3"); A("v_lshl_or_b32 v3, v1, 9, v3")
    for i in range(4): A(f"v_xor_b32 v{vV[i]}, {i*64}, v3")
    A(f"s_mov_b64 s[44:45], s[{pV[0]}:{pV[1]}]"); A("s_brev_b32 s46, 8"); A("s_mov_b32 s47, s51")
    A(f"s_lshl_b32 {sGB}, {sG}, 24"); A(f"s_mov_b32 {sOWN}, {sGB}"); scatter(sOWN, sJ, jpos, sT0)
    share_consts(1)
    sc = lambda r: sum(((r >> k) & 1) << b for k,b in enumerate(rpos)) if front else 0
    A(f"s_cmp_lt_u32 {sROLE}, 4"); A(f"s_cselect_b32 {sK0}, {sc(2)}, 0")
    A(f"s_cmp_lt_u32 {sIDX}, 30"); A(f"s_cselect_b32 {sK0}, {sc(4)}, {sK0}"); A(f"s_cmp_eq_u32 {sIDX}, 30"); A(f"s_cselect_b32 {sK0}, {sc(8)}, {sK0}")
    A(f"s_mov_b32 {sCUR}, {sK0}")
    A(f"s_cmp_lt_u32 {sIDX}, 28"); A(f"s_cbranch_scc1 L_ld_ffn")
    A(f"s_or_b32 {sBASE}, {sOWN}, {sCUR}"); A(f"s_add_u32 {sT2}, {sN}, {sPK}")
    A(f"s_cmp_eq_u32 {sPK}, 0"); A("s_cbranch_scc1 L_ld_head_done")
    E.label("L_ld_pv")
    tile_rows([(srdV, vV[i%4], i*1024) for i in range(16)])
    next_tile()
    A(f"s_cmp_lt_u32 {sN}, {sT2}"); A("s_cbranch_scc1 L_ld_pv")
    E.label("L_ld_head_done")
    A(f"s_mov_b32 {sVC}, {sCUR}"); A(f"s_mov_b32 {sCUR}, {sK0}")
    share_consts(2)
    A("v_lshrrev_b32 v1, 5, v0"); A("v_and_b32 v2, 31, v0")
    A("v_xor_b32 v3, v2, v1"); A("v_lshlrev_b32 v3, 4, v3"); A("v_lshl_or_b32 v3, v1, 9, v3")
    for i in range(8): A(f"v_xor_b32 v{vK[i]}, {i*32}, v3")
    A(f"s_lshl_b32 {sT0}, {sG}, 8"); A(f"s_add_u32 {sT0}, {sT0}, {WS_CNT}"); A(f"v_mov_b32 v{vCA}, {sT0}"); A(f"v_mov_b32 v{vONE}, 1")
    A(f"s_mov_b64 s[40:41], s[{pK[0]}:{pK[1]}]"); A("s_mov_b32 s42, 0x10000000"); A("s_mov_b32 s43, 0x20000")
    def ldstamps(list_, k0):
        if not diag: return
        for k,c in enumerate(list_):
            sk=lab("ls"); A(f"s_cmp_lg_u32 {sCI}, {c}"); A(f"s_cbranch_scc1 {sk}"); A(f"s_memrealtime s[{72+2*(k0+k)}:{73+2*(k0+k)}]"); A("s_waitcnt lgkmcnt(0)"); E.label(sk)
    A(f"s_or_b32 {sBASE}, {sOWN}, {sCUR}")
    E.label("L_ld_loop")
    ldstamps((0,4,8,16,32,NS-9), 0)
    freecheck(1)
    A(f"s_add_u32 {sCI}, {sCI}, 1")
    claim_last_two(sCI, sNS, 0)
    tile_rows([(srdK, vK[i%8], i*1024) for i in range(16)])
    next_tile()
    A(f"s_cmp_lt_u32 {sCI}, {sNS}"); A("s_cbranch_scc1 L_ld_loop")
    vLIST = 19; sNX = "s65"
    A(f"s_mov_b32 {sNX}, 0")
    E.label("L_ld_kdyn")
    for p in range(2):
        A(f"v_readfirstlane_b32 {sCLM}, v{vCL[p]}")
        A(f"s_cmp_ge_u32 {sCLM}, {PA}"); A("s_cbranch_scc1 L_ld_kdone")
        A(f"s_cmp_lt_u32 {sCLM}, 16"); A(f"s_cbranch_scc1 L_ld_shed{p}")
        A(f"s_and_b32 {sT1}, {sCLM}, 15"); A(f"s_lshr_b32 {sCUR}, {sCLM}, 4"); A(f"s_add_u32 {sCUR}, {sCUR}, {NS-1}")
        E.label(f"L_ld_unit{p}")
        A(f"s_mov_b32 {sBASE}, {sGB}"); scatter(sBASE, sT1, jpos, sT0); scatter(sBASE, sCUR, rpos, sT0)
        A(f"s_mov_b32 m0, {sNX}"); A(f"v_writelane_b32 v{vLIST}, {sBASE}, m0"); A(f"s_add_u32 {sNX}, {sNX}, 1")
        freecheck(1)
        full = lab("full"); go = lab("go")
        A(f"s_cmp_ge_u32 {sNX}, {MAXA-1}"); A(f"s_cbranch_scc1 {full}")
        claim(p); A(f"s_branch {go}")
        E.label(full); A(f"v_mov_b32 v{vCL[p]}, {PA}")
        E.label(go)
        tile_rows([(srdK, vK[i%8], i*1024) for i in range(16)])
    A("s_branch L_ld_kdyn")
    E.label("L_ld_kdone")
    if diag == 4: A("s_memrealtime s[84:85]"); A("s_waitcnt lgkmcnt(0)")
    A(f"v_mov_b32 v{vTMP}, {sN}"); one_lane(f"ds_write_b32 v{vFL}, v{vTMP} offset:8")
    A(f"s_add_u32 {sNX}, {sNX}, {sNS}")
    A(f"s_mov_b32 {sCI}, {sPK}"); A(f"s_mov_b32 {sCUR}, {sVC}"); A(f"s_or_b32 {sBASE}, {sOWN}, {sCUR}")
    E.label("L_ld_vloop")
    if diag != 4: ldstamps((8,40,NS-9), 6)
    freecheck(1)
    A(f"s_sub_u32 {sT0}, {sCI}, {sNS}"); A("s_cbranch_scc1 L_ld_vown")
    A(f"v_readlane_b32 {sBASE}, v{vLIST}, {sT0}")
    E.label("L_ld_vown")
    A(f"s_add_u32 {sCI}, {sCI}, 1")
    claim_last_two(sCI, sNX, 128)
    tile_rows([(srdV, vV[i%4], i*1024) for i in range(16)])
    next_tile()
    A(f"s_cmp_lt_u32 {sCI}, {sNX}"); A("s_cbranch_scc1 L_ld_vloop")
    if diag == 4: A("s_memrealtime s[86:87]"); A("s_waitcnt lgkmcnt(0)"); A(f"s_mov_b32 s88, {sNX}")
    E.label("L_ld_dyn")
    for p in range(2):
        A(f"v_readfirstlane_b32 {sCLM}, v{vCL[p]}")
        A(f"s_cmp_ge_u32 {sCLM}, {POOL}"); A("s_cbranch_scc1 L_ld_dyn_done")
        A(f"s_bfe_u32 {sT1}, {sCLM}, 0x40001"); A(f"s_lshr_b32 {sCUR}, {sCLM}, 5"); A(f"s_add_u32 {sCUR}, {sCUR}, {NA}")
        A(f"s_and_b32 {sBASE}, {sCLM}, 1"); A(f"s_lshl_b32 {sBASE}, {sBASE}, 12"); A(f"s_or_b32 {sBASE}, {sBASE}, {sGB}")
        scatter(sBASE, sT1, jpos, sT0); scatter(sBASE, sCUR, rpos, sT0)
        freecheck(1)
        claim(p, 128)
        tile_rows([(srdK, vK[i], i*2048) for i in range(8)] + [(srdV, vV[i%4], i*2048) for i in range(8)], W=WD or W)
    A("s_branch L_ld_dyn")
    E.label("L_ld_dyn_done")
    A(f"v_mov_b32 v{vTMP}, {sN}"); one_lane(f"ds_write_b32 v{vFL}, v{vTMP} offset:4")
    A(f"s_mov_b64 s[48:49], s[{pWO[0]}:{pWO[1]}]"); A("s_mov_b32 s50, 3670016")
    A(f"s_and_b32 {sBASE}, {sWG}, 127"); A(f"s_mul_i32 {sBASE}, {sBASE}, {32*896}"); A(f"v_lshlrev_b32 v{vLIN}, 4, v0")
    freecheck(2)
    k = 0
    for t in range(2):
        for i in range(14):
            if i % 4 == 0:
                A(f"s_add_u32 m0, {sSLOT}, {i*1024}" if i else f"s_mov_b32 m0, {sSLOT}")
                A(f"s_add_u32 {sOFF}, {sBASE}, {t*14336+i*1024}")
            if k == wpre[0]: A(f"s_waitcnt vmcnt({16+k})"); publish(1+t)
            if k == wpre[1]: A(f"s_waitcnt vmcnt({k})"); publish(t)
            A(f"buffer_load_dwordx4 v{vLIN}, {srdW}, {sOFF} offen offset:{(i%4)*1024} lds")
            k += 1
        slot_advance()
    for c,back in ((14,1),(0,0)):
        A(f"s_waitcnt vmcnt({c})"); publish(back)
    if diag:
        A("s_mov_b64 exec, 1"); A("s_memrealtime s[90:91]")
        A(f"s_lshl_b32 {sT0}, {sWG}, 6"); A(f"s_add_u32 {sT0}, {sT0}, {WS_ST+0x40000}"); A(f"v_mov_b32 v46, {sT0}")
        A("s_waitcnt lgkmcnt(0)")
        for k in range(11): A(f"v_mov_b32 v{32+k}, s{70+2*k}")
        A(f"v_mov_b32 v43, {sSPIN}")
        for q in range(3): A(f"global_store_dwordx4 v46, v[{32+4*q}:{35+4*q}], {pWS} offset:{q*16}")
    A("s_waitcnt lgkmcnt(0)")
    A("s_endpgm")
    for p in range(2):
        E.label(f"L_ld_shed{p}")
        A(f"s_lshr_b32 {sT0}, {sCLM}, 2"); A(f"s_and_b32 {sT1}, {sCLM}, 3"); A(f"s_add_u32 {sT1}, {sT1}, {0 if front else NS-4}"); A(f"s_add_u32 {sT2}, {sCLM}, {0 if front else NS-8}")
        A(f"s_cmp_eq_u32 {sG}, 15"); A(f"s_cselect_b32 {sT0}, 0, {sT0}"); A(f"s_cselect_b32 {sT1}, {sT2}, {sT1}"); A(f"s_add_u32 {sT0}, {sT0}, 4")
        A(f"s_bfe_u32 {sT2}, {sCLM}, 0x20001"); A(f"s_and_b32 {sCUR}, {sCLM}, 1"); A(f"s_add_u32 {sCUR}, {sCUR}, {0 if front else NS-2}")
        A(f"s_cmp_lt_u32 {sCLM}, 8"); A(f"s_cselect_b32 {sT0}, {sT0}, {sT2}"); A(f"s_cselect_b32 {sCUR}, {sT1}, {sCUR}"); A(f"s_cselect_b32 {sT2}, 0, 4")
        A(f"s_add_u32 {sT0}, {sT0}, {sG}"); A(f"s_and_b32 {sT1}, {sT0}, 3"); A(f"s_or_b32 {sT1}, {sT1}, {sT2}")
        A(f"s_bfe_u32 {sT0}, {sT0}, 0x10002"); A(f"s_lshl_b32 {sT0}, {sT0}, 3"); A(f"s_or_b32 {sT1}, {sT1}, {sT0}")
        A(f"s_branch L_ld_unit{p}")

    def SEL4(dst, a, b, c, d, t):
        A(f"v_cndmask_b32 v{dst}, v{a}, v{b}, {sM1}"); A(f"v_cndmask_b32 v{t}, v{c}, v{d}, {sM1}"); A(f"v_cndmask_b32 v{dst}, v{dst}, v{t}, {sM2}")
    def xrow(op, regs, tmps):
        for sw in ("v_permlane16_swap_b32","v_permlane32_swap_b32"):
            for r,t in zip(regs,tmps): A(f"v_mov_b32 v{t}, v{r}")
            for r,t in zip(regs,tmps): A(f"{sw} v{r}, v{t}")
            for r,t in zip(regs,tmps): A(f"{op} v{r}, v{r}, v{t}")
    def round_bf(dst, src): A(f"v_cvt_pk_bf16_f32 v{dst}, v{src}, v{src}"); A(f"v_and_b32 v{dst}, 0xffff0000, v{dst}")
    def unpack(lo, hi, src): A(f"v_lshlrev_b32 v{lo}, 16, v{src}"); A(f"v_and_b32 v{hi}, 0xffff0000, v{src}")
    def pub_cons():
        slot_advance()
        A(f"v_mov_b32 v{vTM}, {sN}"); one_lane(f"ds_write_b32 v{vCONS}, v{vTM}")
    def wait_tile(fin=None, kend=None):
        ok = lab("have"); lp = lab("poll")
        if fin: A(f"s_cmp_eq_u32 {sTOT}, {sN}"); A(f"s_cbranch_scc1 {fin}")
        if kend: A(f"s_cmp_ge_u32 {sN}, {sKE}"); A(f"s_cbranch_scc1 {kend}")
        A(f"s_cmp_gt_u32 {sKNOWN}, {sN}"); A(f"s_cbranch_scc1 {ok}")
        E.label(lp)
        A(f"ds_read_b128 {Q4(vAD[0])}, v{vFLG}")
        spin_guard()
        A("s_waitcnt lgkmcnt(0)")
        A(f"v_readfirstlane_b32 {sKNOWN}, v{vAD[0]}"); A(f"v_readfirstlane_b32 {sTOT}, v{vAD[1]}")
        A(f"v_readfirstlane_b32 {sKE}, v{vAD[2]}")
        if kend: A(f"s_cmp_ge_u32 {sN}, {sKE}"); A(f"s_cbranch_scc1 {kend}")
        if fin:
            nw = lab("nw")
            A(f"s_cmp_ge_u32 {sTOT}, {sWRM}"); A(f"s_cbranch_scc1 {nw}")
            A(f"s_mov_b32 {sWRM}, 0"); A(f"global_load_dword v{vX+2}, v{vX+3}, {pWS} {ldf}")
            E.label(nw)
            A(f"s_cmp_eq_u32 {sTOT}, {sN}"); A(f"s_cbranch_scc1 {fin}")
        A(f"s_cmp_gt_u32 {sKNOWN}, {sN}"); A(f"s_cbranch_scc1 {ok}")
        if nap or not fin: A("s_sleep 1")
        A(f"s_branch {lp}")
        E.label(ok)
    def poll(loads, tags, first_mask=None, issued=False):
        lp = lab("gpoll"); n = len(loads)
        chk = lab("gchk")
        if issued: A(f"s_branch {chk}")
        else:
            for i in range(n): A(f"s_mov_b64 {sCK[i]}, {first_mask[i] if first_mask else -1}")
        E.label(lp)
        for i,l in enumerate(loads):
            sk = lab("sk")
            A(f"s_mov_b64 exec, {sCK[i]}"); A(f"s_cbranch_execz {sk}"); A(l); E.label(sk)
        A("s_mov_b64 exec, -1")
        spin_guard()
        if issued: E.label(chk)
        A("s_waitcnt vmcnt(0)")
        for i in range(n):
            A(f"v_cmp_ne_u32 {sCK[i]}, {sTAG}, v{tags[i][0]}")
            for t in tags[i][1:]:
                A(f"v_cmp_ne_u32 vcc, {sTAG}, v{t}"); A(f"s_or_b64 {sCK[i]}, {sCK[i]}, vcc")
        A(f"s_or_b64 vcc, {sCK[0]}, {sCK[min(1,n-1)]}")
        for i in range(2, n): A(f"s_or_b64 vcc, vcc, {sCK[i]}")
        A(f"s_cbranch_scc1 {lp}")
    def layernorm(xr, f, lnbase, stride, mid=None):
        s1=vTM; t=vTM2; mu=vX; a=vX+2; b=vX+4
        for u in range(7): unpack(f+2*u, f+2*u+1, xr[u])
        A(f"v_pk_add_f32 {P(a)}, {P(f)}, {P(f+2)}"); A(f"v_pk_add_f32 {P(b)}, {P(f+4)}, {P(f+6)}")
        A(f"v_pk_add_f32 {P(a)}, {P(a)}, {P(f+8)}"); A(f"v_pk_add_f32 {P(b)}, {P(b)}, {P(f+10)}")
        A(f"v_pk_add_f32 {P(a)}, {P(a)}, {P(f+12)}"); A(f"v_pk_add_f32 {P(a)}, {P(a)}, {P(b)}")
        A(f"v_add_f32 v{s1}, v{a}, v{a+1}")
        red32 = [f"v_add_f32_dpp v{s1}, v{s1}, v{s1} row_ror:{k} row_mask:0xf bank_mask:0xf" for k in (8,4,2,1)]
        red32 += [f"v_mov_b32 v{t}, v{s1}", f"v_permlane16_swap_b32 v{s1}, v{t}", f"v_add_f32 v{s1}, v{s1}, v{t}"]
        for l in red32: A(l)
        A(f"v_mul_f32 v{mu}, {INV448:#x}, v{s1}")
        NEG = "op_sel_hi:[1,0] neg_lo:[0,1] neg_hi:[0,1]"
        A(f"v_pk_add_f32 {P(b)}, {P(f)}, {P(mu)} {NEG}")
        A(f"v_pk_mul_f32 {P(a)}, {P(b)}, {P(b)}")
        for u in range(1,7):
            A(f"v_pk_add_f32 {P(b)}, {P(f+2*u)}, {P(mu)} {NEG}")
            A(f"v_pk_fma_f32 {P(a)}, {P(b)}, {P(b)}, {P(a)}")
        A(f"v_add_f32 v{s1}, v{a}, v{a+1}")
        round_bf(mu, mu)
        fill = [f"v_pk_add_f32 {P(f+2*u)}, {P(f+2*u)}, {P(mu)} {NEG}" for u in range(7)] + [f"v_cvt_pk_bf16_f32 v{xr[u]}, v{f+2*u}, v{f+2*u+1}" for u in range(7)]
        for u in range(7): fill += [f"v_lshlrev_b32 v{f+2*u}, 16, v{xr[u]}", f"v_and_b32 v{f+2*u+1}, 0xffff0000, v{xr[u]}"]
        rb = [f"v_cvt_pk_bf16_f32 v{s1}, v{s1}, v{s1}", f"v_and_b32 v{s1}, 0xffff0000, v{s1}"]
        chain = red32 + [f"v_mul_f32 v{s1}, {INV448:#x}, v{s1}"] + rb + [f"v_add_f32 v{s1}, {EPS:#x}, v{s1}"] + rb + [f"v_sqrt_f32 v{s1}, v{s1}"] + rb + [f"v_rcp_f32 v{a}, v{s1}"]
        while chain or fill:
            for _ in range(2):
                if fill: A(fill.pop(0))
            if chain: A(chain.pop(0))
        if mid: mid()
        for u in range(7): A(f"v_pk_mul_f32 {P(f+2*u)}, {P(f+2*u)}, {P(a)} op_sel_hi:[1,0]")
        for u in range(7):
            A(f"v_cvt_pk_bf16_f32 v{xr[u]}, v{f+2*u}, v{f+2*u+1}")
            A(f"ds_write_b32 v{lnbase}, v{xr[u]} offset:{u*stride}")
    def ln_read_addr(rd, base):
        A(f"v_and_b32 v{rd}, 1, v{vLANE}"); A(f"v_mul_u32_u24 v{rd}, 896, v{rd}")
        A(f"v_lshl_add_u32 v{rd}, v{vG4}, 4, v{rd}"); A(f"v_add_u32 v{rd}, {base}, v{rd}")
    def tall_addr(dst):
        A(f"v_lshrrev_b32 v{vTM}, 3, v{vN}")
        A(f"v_and_b32 v{vTM2}, 1, v{vG4}"); A(f"v_lshl_or_b32 v{vTM}, v{vTM2}, 1, v{vTM}")
        A(f"v_xor_b32 v{vTM}, {sW}, v{vTM}"); A(f"v_lshlrev_b32 v{vTM}, 5, v{vTM}")
        A(f"v_and_b32 v{vTM2}, 3, v{vN}"); A(f"v_lshl_or_b32 v{vTM}, v{vTM2}, 3, v{vTM}")
        A(f"v_lshrrev_b32 v{vTM2}, 2, v{vN}"); A(f"v_lshl_or_b32 v{vTM}, v{vTM2}, 7, v{vTM}")
        A(f"v_lshl_or_b32 v{dst}, v{vG4}, 10, v{vTM}")
    def wide_addr(dst):
        A(f"v_lshrrev_b32 v{vTM}, 2, v{vN}"); A(f"v_lshl_add_u32 v{vTM}, v{vG4}, 2, v{vTM}"); A(f"v_mul_u32_u24 v{vTM}, 896, v{vTM}")
        A(f"v_and_b32 v{vTM2}, 3, v{vN}"); A(f"v_lshl_add_u32 v{vTM}, v{vTM2}, 3, v{vTM}")
        A(f"s_mul_i32 {sT0}, {sW}, 224"); A(f"v_add_u32 v{dst}, {sT0}, v{vTM}")
    def read_tall_tile(base, dstreg, t):
        wait_tile()
        A(f"v_add_u32 v{vAD[0]}, {sSLOT}, v{base}")
        for s in range(4 if t < 3 else 2):
            for h2 in range(2):
                A(f"ds_read_b64_tr_b16 {P(dstreg + 4*(4*t+s) + 2*h2)}, v{vAD[0]} offset:{s*4096+h2*512}")
        A("s_waitcnt lgkmcnt(0)")
        pub_cons()
    def read_wide_tile(base, dstreg, half):
        wait_tile()
        A(f"v_add_u32 v{vAD[0]}, {sSLOT}, v{base}")
        for tt in range(7): A(f"ds_read_b64_tr_b16 {P(dstreg + 4*tt + 2*half)}, v{vAD[0]} offset:{tt*32}")
        A("s_waitcnt lgkmcnt(0)")
        pub_cons()
    def basic_setup():
        A(f"s_sub_u32 {sW}, {sWAVE}, 1"); A(f"s_lshr_b32 {sB}, {sG}, 3"); A(f"s_and_b32 {sHKV}, {sG}, 7")
        A(f"v_and_b32 v{vN}, 15, v{vLANE}"); A(f"v_lshrrev_b32 v{vG4}, 4, v{vLANE}")
        A(f"s_lshl_b32 {sT0}, {sW}, 2"); A(f"s_add_u32 {sT0}, {sT0}, {L_CONS}"); A(f"v_mov_b32 v{vCONS}, {sT0}")
        A("s_mov_b32 s42, 0xffff0000"); A("s_mov_b32 s43, s42")

    if align: A(".p2align 12")
    E.label("L_qprod")
    f14 = vWO+8; vLR = vWO+25; vTA = vWO+26; vQA = vWO+27
    basic_setup()
    A(f"s_or_b32 {sT0}, {sROLE}, {sW}"); A(f"s_cmp_lg_u32 {sT0}, 0"); A("s_cbranch_scc1 L_noinit")
    A(f"s_lshl_b32 {sT0}, {sG}, 8"); A(f"s_add_u32 {sT0}, {sT0}, {WS_CNT}")
    A(f"v_mov_b32 v{vTM2}, {sT0}"); A(f"v_mov_b32 v{vTM3}, 0")
    A("s_mov_b64 exec, 1"); A(f"global_store_dword v{vTM2}, v{vTM3}, {pWS} {stf}"); A(f"global_store_dword v{vTM2}, v{vTM3}, {pWS} offset:128 {stf}"); A("s_mov_b64 exec, -1")
    E.label("L_noinit")
    A(f"v_add_u32 v{vLW1}, {L_LN}, v{vLW1}")
    ln_read_addr(vLR, L_LN)
    tall_addr(vTA)
    A(f"s_lshl_b32 {sT0}, {sB}, 2"); A(f"s_add_u32 {sT0}, {sT0}, {sROLE}"); A(f"s_lshl_b32 {sT0}, {sT0}, 2"); A(f"s_add_u32 {sT0}, {sT0}, {sW}")
    A(f"s_lshl_b32 {sT0}, {sT0}, 6"); A(f"s_lshl_b32 {sT1}, {sHKV}, 11"); A(f"s_add_u32 {sT0}, {sT0}, {sT1}"); A(f"s_add_u32 {sT0}, {sT0}, {WS_Q}")
    A(f"v_lshlrev_b32 v{vQA}, 2, v{vN}"); A(f"v_lshl_add_u32 v{vQA}, v{vG4}, 14, v{vQA}"); A(f"v_add_u32 v{vQA}, {sT0}, v{vQA}")
    if qtouch: touch_pad("q")
    A("s_waitcnt vmcnt(0) lgkmcnt(0)")
    stamp(12)
    layernorm(xr1, f14, vLW1, 128, mid=(lambda: pad("q")) if qtouch else None)
    make_tag(sTAG, sE); A(f"v_mov_b32 v{vX+1}, {sTAG}")
    A("s_waitcnt lgkmcnt(0)")
    stamp(13)
    for s in range(14): A(f"ds_read_b128 {Q4(vW2+4*s)}, v{vLR} offset:{s*64}")
    A(f"s_mov_b32 {sN}, 3"); wait_tile()
    stamp(14)
    for s in range(14):
        for h2 in range(2): A(f"ds_read_b64_tr_b16 {P(vW1 + 4*s + 2*h2)}, v{vTA} offset:{s*4096+h2*512}")
        if s % 4 == 3 or s == 13:
            A(f"s_waitcnt lgkmcnt(0)")
            for k in range(s - s % 4, s+1):
                A(f"v_mfma_f32_16x16x32_bf16 {Q4(vS)}, {Q4(vW2+4*k)}, {Q4(vW1+4*k)}, {'0' if k==0 else Q4(vS)}")
    A(f"s_mov_b32 {sSLOT}, {3*SLOT}"); pub_cons()
    A(f"v_cndmask_b32 v{vTM}, v{vS}, v{vS+1}, {sM1}")
    A(f"v_mov_b32_dpp v{vTM2}, v{vTM} quad_perm:[1,0,3,2] row_mask:0xf bank_mask:0xf")
    A(f"v_cvt_pk_bf16_f32 v{vX}, v{vTM}, v{vTM2}")
    A("s_mov_b64 exec, 0x55555555")
    A(f"global_store_dwordx2 v{vQA}, {P(vX)}, {pWS} {stf}")
    A("s_mov_b64 exec, -1")
    stamp(1)

    E.label("L_consumer")
    basic_setup()
    share_consts(1)
    A("s_mov_b32 s44, 0"); A("s_mov_b32 s45, -1"); A(f"s_mov_b32 {sC}, {C_SCALE:#x}"); A("s_mov_b32 s66, -1"); A("s_mov_b32 s67, 0"); A(f"s_mov_b32 {sTOT}, 0x7fffffff"); A(f"s_mov_b32 {sKE}, 0x7fffffff"); A(f"s_mov_b32 {sKNOWN}, 0")
    if hilo: A("s_mov_b32 s64, 0xcccccccc"); A("s_mov_b32 s65, 0xcccccccc")
    stamp(11)
    A(f"s_sub_u32 {sT0}, {sROLE}, 4"); A(f"s_lshl_b32 {sRR}, {sG}, 2"); A(f"s_add_u32 {sRR}, {sRR}, {sT0}")
    A(f"s_cmp_lt_u32 {sT0}, 4"); A(f"s_cselect_b32 {sRR}, {sRR}, 99"); A("s_cbranch_scc0 L_nox")
    A(f"s_bfe_u32 {sT0}, {sRR}, 0x20003"); A(f"s_mul_i32 {sCOL}, {sT0}, 224")
    A(f"s_bfe_u32 {sGP}, {sRR}, 0x20001"); A(f"s_lshl_b32 {sT0}, {sGP}, 6"); A(f"s_add_u32 {sCOL}, {sCOL}, {sT0}")
    A(f"s_and_b32 {sT0}, {sRR}, 1"); A(f"s_lshl_b32 {sT0}, {sT0}, 4"); A(f"s_add_u32 {sCOL}, {sCOL}, {sT0}")
    A(f"s_bfe_u32 {sT0}, {sRR}, 0x10005"); A(f"s_mul_i32 {sT0}, {sT0}, 896"); A(f"s_add_u32 {sCOL}, {sCOL}, {sT0}")
    A(f"v_and_b32 v{vTM}, 6, v{vLANE}"); A(f"v_lshl_add_u32 v{vTM}, v{vTM}, 1, {sCOL}")
    A(f"global_load_dword v{vXH}, v{vTM}, {pX}")
    A(f"v_mov_b32 v{vXH+1}, 0")
    A(f"s_cmp_eq_u32 {sGP}, 3"); A("s_cbranch_scc1 L_nox")
    A(f"global_load_dword v{vXH+1}, v{vTM}, {pX} offset:32")
    E.label("L_nox")
    A(f"v_xor_b32 v{vTM}, v{vG4}, v{vN}"); A(f"v_lshlrev_b32 v{vTM}, 4, v{vTM}"); A(f"v_lshl_or_b32 v{vTM}, v{vN}, 9, v{vTM}")
    for s in range(4): A(f"v_xor_b32 v{vKB[s]}, {s*64}, v{vTM}")
    A(f"v_lshrrev_b32 v{vTM}, 2, v{vN}"); A(f"v_lshl_add_u32 v{vTM}, v{vG4}, 2, v{vTM}")
    A(f"v_and_b32 v{vTM2}, 7, v{vTM}")
    A(f"s_lshl_b32 {sT0}, {sW}, 2"); A(f"v_xor_b32 v{vTM2}, {sT0}, v{vTM2}"); A(f"v_lshlrev_b32 v{vTM2}, 5, v{vTM2}")
    A(f"v_lshl_or_b32 v{vTM}, v{vTM}, 9, v{vTM2}")
    A(f"v_and_b32 v{vTM2}, 3, v{vN}"); A(f"v_lshl_or_b32 v{vTM}, v{vTM2}, 3, v{vTM}")
    for e in range(4): A(f"v_xor_b32 v{vVB[e]}, {e*32}, v{vTM}")
    A(f"v_mov_b32 v{vM}, 0xff800000"); A(f"v_mov_b32 v{vMC}, v{vM}"); A(f"v_mov_b32 v{vL}, 0")
    for i in range(16): A(f"v_mov_b32 v{vO+i}, 0")
    A(f"s_cmp_lt_u32 {sIDX}, 28"); A("s_cbranch_scc1 L_ffn_w")
    def vtile_read(dst):
        for e in range(4): A(f"v_add_u32 v{vAD[e]}, {sSLOT}, v{vVB[e]}")
        for e in range(4):
            for h2 in range(2): A(f"ds_read_b64_tr_b16 {P(dst + 4*e + 2*h2)}, v{vAD[e]} offset:{h2*8192}")
    for p in range(park):
        A(f"s_cmp_le_u32 {sPK}, {p}"); A("s_cbranch_scc1 L_ffn_w_done")
        wait_tile(); vtile_read(vW1+16*p); A("s_waitcnt lgkmcnt(0)"); pub_cons()
    E.label("L_ffn_w_done")
    A("s_waitcnt lgkmcnt(0)")
    make_tag(sTAG, sE)
    A(f"s_cmp_lg_u32 {sW}, 0"); A("s_cbranch_scc1 L_q_flag")
    if qwait:
        A(f"s_add_u32 {sN}, {sN}, {qwait-1}"); wait_tile(); A(f"s_sub_u32 {sN}, {sN}, {qwait-1}")
    A(f"s_lshl_b32 {sT0}, {sG}, 11"); A(f"s_add_u32 {sT0}, {sT0}, {WS_Q}")
    A(f"v_lshl_add_u32 v{vTM3}, v{vLANE}, 4, {sT0}")
    poll([f"global_load_dwordx4 {Q4(vF)}, v{vTM3}, {pWS} {ldf}", f"global_load_dwordx4 {Q4(vF+4)}, v{vTM3}, {pWS} offset:1024 {ldf}"],
         [[vF+1, vF+3], [vF+5, vF+7]])
    A(f"v_lshlrev_b32 v{vTM}, 3, v{vLANE}"); A(f"v_add_u32 v{vTM}, {L_QW}, v{vTM}"); A(f"v_mov_b32 v{vTM2}, 1")
    A(f"ds_write2_b32 v{vTM}, v{vF}, v{vF+2} offset0:0 offset1:1"); A(f"ds_write2_b32 v{vTM}, v{vF+4}, v{vF+6} offset0:128 offset1:129")
    one_lane(f"ds_write_b32 v{vFLG}, v{vTM2} offset:32")
    E.label("L_q_flag")
    A(f"ds_read_b32 v{vTM}, v{vFLG} offset:32")
    spin_guard()
    A("s_waitcnt lgkmcnt(0)")
    A(f"v_readfirstlane_b32 {sT0}, v{vTM}")
    A(f"s_cmp_eq_u32 {sT0}, 1"); A("s_cbranch_scc1 L_q_have")
    A("s_sleep 1"); A("s_branch L_q_flag")
    E.label("L_q_have")
    A(f"v_and_b32 v{vTM2}, 1, v{vLANE}"); A(f"v_lshlrev_b32 v{vTM2}, 9, v{vTM2}"); A(f"v_lshl_add_u32 v{vTM2}, v{vG4}, 4, v{vTM2}"); A(f"v_add_u32 v{vTM2}, {L_QW}, v{vTM2}")
    for s in range(8): A(f"ds_read_b128 {Q4(vQ+4*s)}, v{vTM2} offset:{s*64}")
    stamp(2)
    A("s_waitcnt lgkmcnt(0)")

    def qk(nt):
        for s in range(4): A(f"v_add_u32 v{vAD[s]}, {sSLOT}, v{vKB[s]}")
        seq = [(t,s) for s in range(8) for t in range(nt)]; n = len(seq)
        def kread(i):
            t,s = seq[i]; A(f"ds_read_b128 {Q4(vF + 4*(i % NF))}, v{vAD[s&3]} offset:{(s>>2)*256 + t*8192}")
        for i in range(NF): kread(i)
        for i in range(n):
            t,s = seq[i]
            A(f"s_waitcnt lgkmcnt({min(NF-1, n-1-i)})")
            d = Q4(vS+4*t)
            A(f"v_mfma_f32_16x16x32_bf16 {d}, {Q4(vF + 4*(i % NF))}, {Q4(vQ+4*s)}, {'0' if s==0 else d}")
            if i + NF < n: kread(i+NF)
    def probs(nt):
        n = 4*nt
        for i in range(n): A(f"v_fma_f32 v{vS+i}, v{vS+i}, {sC}, -v{vMC}")
        for i in range(n): A(f"v_exp_f32 v{vS+i}, v{vS+i}")
        for i in range(n//2): A(f"v_cvt_pk_bf16_f32 v{vP+i}, v{vS+2*i}, v{vS+2*i+1}")
        if hilo:
            for i in range(n//2):
                t = vF+16+2*(i&1)
                unpack(t, t+1, vP+i)
                A(f"v_pk_add_f32 {P(t)}, {P(vS+2*i)}, {P(t)} neg_lo:[0,1] neg_hi:[0,1]")
                A(f"v_cvt_pk_bf16_f32 v{t}, v{t}, v{t+1}")
                A(f"v_cndmask_b32 v{vP+i}, v{vP+i}, v{t}, s[64:65]")
    def softmax(nt, tag):
        n = 4*nt
        for i in range(n//2): A(f"v_cvt_pk_bf16_f32 v{vP+i}, v{vS+2*i}, v{vS+2*i+1}")
        for i in range(n//2): unpack(vS+2*i, vS+2*i+1, vP+i)
        if nt == 2:
            A(f"v_max3_f32 v{vMX}, v{vS}, v{vS+1}, v{vS+2}"); A(f"v_max3_f32 v{vTM}, v{vS+3}, v{vS+4}, v{vS+5}")
            A(f"v_max3_f32 v{vMX}, v{vMX}, v{vS+6}, v{vS+7}"); A(f"v_max_f32 v{vMX}, v{vMX}, v{vTM}")
        else:
            A(f"v_max3_f32 v{vMX}, v{vS}, v{vS+1}, v{vS+2}"); A(f"v_max_f32 v{vMX}, v{vMX}, v{vS+3}")
        xrow("v_max_f32", [vMX], [vTM])
        A(f"v_cmp_gt_f32 vcc, v{vMX}, v{vM}")
        A("s_cmp_lg_u64 vcc, 0"); A(f"s_cbranch_scc1 L_rescale{tag}")
        E.label(f"L_rescaled{tag}")
        probs(nt)
    def add_l(nt):
        A(f"v_add_f32 v{vTM}, v{vS}, v{vS+1}"); A(f"v_add_f32 v{vMX}, v{vS+2}, v{vS+3}")
        if nt == 2:
            A(f"v_add_f32 v{vS+4}, v{vS+4}, v{vS+5}"); A(f"v_add_f32 v{vS+6}, v{vS+6}, v{vS+7}")
            A(f"v_add_f32 v{vTM}, v{vTM}, v{vS+4}"); A(f"v_add_f32 v{vMX}, v{vMX}, v{vS+6}")
        A(f"v_add_f32 v{vL}, v{vL}, v{vTM}"); A(f"v_add_f32 v{vL}, v{vL}, v{vMX}")
    def rescale(tag):
        E.label(f"L_rescale{tag}")
        A(f"v_max_f32 v{vM}, v{vM}, v{vMX}")
        A(f"v_mul_f32 v{vTM}, {sC}, v{vM}")
        A(f"v_sub_f32 v{vTM2}, v{vMC}, v{vTM}")
        A(f"v_mov_b32 v{vMC}, v{vTM}")
        A(f"v_exp_f32 v{vTM2}, v{vTM2}")
        A(f"v_mul_f32 v{vL}, v{vL}, v{vTM2}")
        A(f"v_mov_b32_dpp v{vTM}, v{vTM2} quad_perm:[0,0,2,2] row_mask:0xf bank_mask:0xf")
        A(f"v_mov_b32_dpp v{vTM3}, v{vTM2} quad_perm:[1,1,3,3] row_mask:0xf bank_mask:0xf")
        for i in range(16): A(f"v_mul_f32 v{vO+i}, v{vO+i}, v{vTM if i%2==0 else vTM3}")
        A(f"s_branch L_rescaled{tag}")
    vSA=107
    A(f"s_mov_b32 {sN0}, {sN}")
    A(f"s_add_u32 {sN}, {sN}, {sW}"); A(f"s_lshl_b32 {sT0}, {sW}, 14"); A(f"s_add_u32 {sSLOT}, {sSLOT}, {sT0}")
    A(f"s_sub_u32 {sT0}, {sSLOT}, {RING}"); A(f"s_cselect_b32 {sSLOT}, {sSLOT}, {sT0}")
    A(f"v_and_b32 v{vSA}, 1, v{vLANE}"); A(f"v_lshlrev_b32 v{vSA}, 6, v{vSA}"); A(f"v_lshl_add_u32 v{vSA}, v{vG4}, 4, v{vSA}"); A(f"v_add_u32 v{vSA}, {L_SC}, v{vSA}")
    A(f"s_lshl_b32 {sT0}, {sW}, 7"); A(f"v_add_u32 v{vX}, {sT0}, v{vSA}")
    E.label("L_kloop")
    wait_tile(kend="L_kdone")
    qk(2)
    A(f"s_add_u32 {sN}, {sN}, 4")
    A(f"s_add_u32 {sSLOT}, {sSLOT}, {4*SLOT}"); A(f"s_sub_u32 {sT0}, {sSLOT}, {RING}"); A(f"s_cselect_b32 {sSLOT}, {sSLOT}, {sT0}")
    for i in range(4): A(f"v_cvt_pk_bf16_f32 v{vP+i}, v{vS+2*i}, v{vS+2*i+1}")
    for i in range(4): A(f"v_max3_f32 v{vM}, v{vM}, v{vS+2*i}, v{vS+2*i+1}")
    A("s_mov_b32 exec_lo, 0x30003"); A("s_mov_b32 exec_hi, 0x30003"); A(f"ds_write_b128 v{vX}, {Q4(vP)}"); A("s_mov_b64 exec, -1")
    A(f"v_add_u32 v{vX}, 512, v{vX}")
    A(f"v_mov_b32 v{vTM}, {sN}"); one_lane(f"ds_write_b32 v{vCONS}, v{vTM}")
    A("s_branch L_kloop")
    E.label("L_kdone")
    A(f"s_mov_b32 {sN}, {sKE}"); A(f"s_sub_u32 {sNS}, {sKE}, {sN0}")
    xrow("v_max_f32", [vM], [vTM])
    A(f"s_lshl_b32 {sT0}, {sW}, 3"); A(f"s_add_u32 {sT0}, {sT0}, {L_MX}"); A(f"v_lshl_add_u32 v{vTM2}, v{vLANE}, 2, {sT0}")
    A("s_mov_b64 exec, 3"); A(f"ds_write_b32 v{vTM2}, v{vM}"); A("s_mov_b64 exec, -1")
    A(f"v_mov_b32 v{vTM}, {sN}"); A("s_mov_b64 exec, 1"); A(f"ds_write_b32 v{vCONS}, v{vTM}"); A(f"ds_write_b32 v{vCONS}, v{vTM} offset:{L_KD-16}"); A("s_mov_b64 exec, -1")
    A(f"s_mul_hi_u32 {sT0}, {sN}, {-(-(1<<32)//NSLOT)}"); A(f"s_mul_i32 {sT0}, {sT0}, {NSLOT}"); A(f"s_sub_u32 {sSLOT}, {sN}, {sT0}"); A(f"s_lshl_b32 {sSLOT}, {sSLOT}, 14")
    A(f"v_and_b32 v{vTM2}, 1, v{vLANE}"); A(f"v_lshlrev_b32 v{vTM2}, 2, v{vTM2}"); A(f"v_add_u32 v{vTM2}, {L_MX}, v{vTM2}")
    E.label("L_ksync")
    A(f"ds_read2_b32 {P(vAD[0])}, v{vFLG} offset0:{L_KD//4} offset1:{L_KD//4+1}"); A(f"ds_read2_b32 {P(vAD[2])}, v{vFLG} offset0:{L_KD//4+2} offset1:{L_KD//4+3}")
    A(f"ds_read2_b32 {P(vS)}, v{vTM2} offset0:0 offset1:2"); A(f"ds_read2_b32 {P(vS+2)}, v{vTM2} offset0:4 offset1:6")
    spin_guard()
    A("s_waitcnt lgkmcnt(0)")
    A(f"v_min3_u32 v{vAD[0]}, v{vAD[0]}, v{vAD[1]}, v{vAD[2]}"); A(f"v_min_u32 v{vAD[0]}, v{vAD[0]}, v{vAD[3]}")
    A(f"v_readfirstlane_b32 {sT0}, v{vAD[0]}")
    A(f"s_cmp_lt_u32 {sT0}, {sKE}"); A("s_cbranch_scc1 L_ksync")
    A(f"v_max3_f32 v{vM}, v{vS}, v{vS+1}, v{vS+2}"); A(f"v_max_f32 v{vM}, v{vM}, v{vS+3}")
    round_bf(vM, vM)
    A(f"v_mul_f32 v{vMC}, {sC}, v{vM}")
    E.label("L_loop")
    A(f"ds_read_b128 {Q4(vP)}, v{vSA}")
    A(f"v_add_u32 v{vSA}, 128, v{vSA}")
    A("s_waitcnt lgkmcnt(0)")
    for i in range(4): unpack(vS+2*i, vS+2*i+1, vP+i)
    probs(2); add_l(2)
    A(f"s_cmp_lt_u32 {sCI}, {sPK}"); A("s_cbranch_scc1 L_pv_park")
    wait_tile()
    vtile_read(vF)
    for e in range(4):
        A(f"s_waitcnt lgkmcnt({6-2*e})")
        A(f"v_mfma_f32_16x16x32_bf16 {Q4(vO+4*e)}, {Q4(vP)}, {Q4(vF+4*e)}, {Q4(vO+4*e)}")
    pub_cons()
    E.label("L_pv_done")
    A(f"s_add_u32 {sCI}, {sCI}, 1"); A(f"s_cmp_lt_u32 {sCI}, {sNS}"); A("s_cbranch_scc1 L_loop")
    if touch:
        for nm in ("fin","red","ffn","ffn2"): touch_pad(nm)
    if forcepar is None:
        A(f"v_mov_b32 v{vTM}, {WS_PAR}")
        poll([f"global_load_dwordx4 {Q4(vF)}, v{vTM}, {pWS} {ldf}"], [[vF+1, vF+3]])
        A(f"v_readfirstlane_b32 {sP0}, v{vF}"); A(f"v_readfirstlane_b32 {sP1}, v{vF+2}")
    else:
        A(f"s_mov_b32 {sP0}, {forcepar[0]*8192}"); A(f"s_mov_b32 {sP1}, {forcepar[1]*8192}")
    A(f"s_lshl_b32 {sT0}, {sG}, 2"); A(f"s_and_b32 {sT1}, {sW}, 1"); A(f"s_add_u32 {sT0}, {sT0}, {sT1}"); A(f"s_lshl_b32 {sT0}, {sT0}, 14")
    A(f"s_lshr_b32 {sT1}, {sW}, 1"); A(f"s_lshl_b32 {sT1}, {sT1}, 13"); A(f"s_xor_b32 {sT1}, {sT1}, {sP0}"); A(f"s_add_u32 {sT0}, {sT0}, {sT1}")
    A(f"s_lshl_b32 {sT1}, {sJ}, 8"); A(f"s_add_u32 {sT0}, {sT0}, {sT1}"); A(f"s_add_u32 {sT0}, {sT0}, {WS_A}")
    A(f"v_lshrrev_b32 v{vAA}, 1, v{vG4}"); A(f"v_lshlrev_b32 v{vAA}, 15, v{vAA}")
    A(f"v_and_b32 v{vTM}, 1, v{vG4}"); A(f"v_lshl_or_b32 v{vAA}, v{vTM}, 12, v{vAA}"); A(f"v_lshl_or_b32 v{vAA}, v{vN}, 4, v{vAA}")
    A(f"v_add_u32 v{vAA}, {sT0}, v{vAA}")
    A(f"s_lshr_b32 {sT0}, {sWG}, 3"); A(f"s_lshl_b32 {sT0}, {sT0}, 1"); A(f"s_bfe_u32 {sT1}, {sWG}, 0x10001"); A(f"s_add_u32 {sT0}, {sT0}, {sT1}"); A(f"s_lshl_b32 {sT0}, {sT0}, 14")
    A(f"s_bfe_u32 {sT1}, {sWG}, 0x10002"); A(f"s_lshl_b32 {sT1}, {sT1}, 13"); A(f"s_xor_b32 {sT1}, {sT1}, {sP0}"); A(f"s_add_u32 {sT0}, {sT0}, {sT1}")
    A(f"s_and_b32 {sT1}, {sWG}, 1"); A(f"s_lshl_b32 {sT1}, {sT1}, 12"); A(f"s_add_u32 {sT0}, {sT0}, {sT1}"); A(f"s_add_u32 {sT0}, {sT0}, {WS_A}")
    A(f"v_lshlrev_b32 v{vAI}, 4, v{vN}"); A(f"v_lshl_or_b32 v{vAI}, v{vG4}, 10, v{vAI}"); A(f"v_add_u32 v{vAI}, {sT0}, v{vAI}")
    A(f"v_lshl_add_u32 v{vX+3}, v{vLANE}, 6, {sT0}")
    A(f"s_cmp_eq_u32 {sW}, 0"); A(f"s_cselect_b32 {sWRM}, {0x7fffffff if awarm else 0}, 0")
    A(f"s_cmp_ge_u32 {sRR}, 64"); A(f"s_cbranch_scc1 L_nored"); A(f"s_sub_u32 {sT0}, {sW}, 1"); A(f"s_cmp_ge_u32 {sT0}, 2"); A(f"s_cbranch_scc1 L_nored")
    A(f"s_lshl_b32 {sT0}, {sT0}, 14"); A(f"s_lshl_b32 {sT1}, {sRR}, 15"); A(f"s_add_u32 {sT0}, {sT0}, {sT1}"); A(f"s_add_u32 {sT0}, {sT0}, {sP1}"); A(f"s_add_u32 {sT0}, {sT0}, {WS_B}")
    A(f"v_lshl_add_u32 v{vX+3}, v{vLANE}, 7, {sT0}"); A(f"s_mov_b32 {sWRM}, {[0,0x7fffffff,1,2][bwarm]}")
    if bwarm == 3: A(f"global_load_dword v{vX+2}, v{vX+3}, {pWS} {ldf}")
    E.label("L_nored")
    A(f"s_lshl_b32 {sT0}, {sB}, 2"); A(f"s_add_u32 {sT0}, {sT0}, {sW}"); A(f"s_lshl_b32 {sT0}, {sT0}, 18")
    A(f"s_bfe_u32 {sT1}, {sWG}, 0x10006"); A(f"s_lshl_b32 {sT1}, {sT1}, 14"); A(f"s_add_u32 {sT0}, {sT0}, {sT1}"); A(f"s_add_u32 {sT0}, {sT0}, {sP1}")
    A(f"s_and_b32 {sT1}, {sWG}, 63"); A(f"s_lshl_b32 {sT1}, {sT1}, 7"); A(f"s_add_u32 {sT0}, {sT0}, {sT1}"); A(f"s_add_u32 {sT0}, {sT0}, {WS_B}")
    A(f"v_lshrrev_b32 v{vTM}, 3, v{vLANE}"); A(f"v_lshlrev_b32 v{vTM}, 15, v{vTM}")
    A(f"v_and_b32 v{vTM2}, 7, v{vLANE}"); A(f"v_lshl_or_b32 v{vBA}, v{vTM2}, 4, v{vTM}"); A(f"v_add_u32 v{vBA}, {sT0}, v{vBA}")
    E.label("L_mini")
    wait_tile("L_fin")
    qk(1)
    for e in range(4): A(f"v_add_u32 v{vAD[e]}, {sSLOT}, v{vVB[e]}")
    for e in range(4): A(f"ds_read_b64_tr_b16 {P(vF + 2*e)}, v{vAD[e]} offset:8192")
    softmax(1, "b")
    A("s_waitcnt lgkmcnt(0)")
    for e in range(4): A(f"v_mfma_f32_16x16x16_bf16 {Q4(vO+4*e)}, {P(vP)}, {P(vF+2*e)}, {Q4(vO+4*e)}")
    add_l(1)
    slot_advance()
    A(f"s_cmp_eq_u32 {sN}, {sTOT}"); A("s_cbranch_scc1 L_fin")
    A(f"v_mov_b32 v{vTM}, {sN}"); one_lane(f"ds_write_b32 v{vCONS}, v{vTM}")
    A("s_branch L_mini")
    rescale("b")
    E.label("L_pv_park")
    for p in range(park):
        if p < park-1: nx = lab("pk"); A(f"s_cmp_lg_u32 {sCI}, {p}"); A(f"s_cbranch_scc1 {nx}")
        for e in range(4): A(f"v_mfma_f32_16x16x32_bf16 {Q4(vO+4*e)}, {Q4(vP)}, {Q4(vW1+16*p+4*e)}, {Q4(vO+4*e)}")
        A("s_branch L_pv_done")
        if p < park-1: E.label(nx)

    vG=vF; vI=vF+4; sa=vS; sb=vS+1; sw=vS+2
    vA=vQ; vOPR=vQ+4; vOPW=vQ+5; vR0=vQ+6; vR1=vQ+7; vR2=vQ+8; vR3=vQ+9; vR4=vQ+10; vR5=vQ+11; vZ=vQ+12
    E.label("L_ffn_addr")
    A(f"v_lshrrev_b32 v{vTM}, 3, v{vLANE}"); A(f"v_and_b32 v{vTM2}, 7, v{vLANE}")
    A(f"v_lshlrev_b32 v{vR0}, 9, v{vTM}"); A(f"v_lshl_or_b32 v{vR0}, v{vTM2}, 4, v{vR0}"); A(f"s_add_u32 {sT0}, {sP0}, {WS_H}"); A(f"v_add_u32 v{vR0}, {sT0}, v{vR0}")
    A(f"v_mul_u32_u24 v{vR1}, 224, v{vTM}"); A(f"v_lshl_add_u32 v{vR1}, v{vTM2}, 2, v{vR1}"); A(f"v_add_u32 v{vR1}, {L_LN}, v{vR1}")
    ln_read_addr(vR2, L_LN)
    A(f"s_lshl_b32 {sT0}, {sW}, 5"); A(f"s_add_u32 {sT0}, {sT0}, {L_ACT}")
    A(f"v_lshlrev_b32 v{vR3}, 7, v{vG4}"); A(f"v_lshl_add_u32 v{vR3}, v{vN}, 1, v{vR3}"); A(f"v_add_u32 v{vR3}, {sT0}, v{vR3}")
    A(f"v_and_b32 v{vR4}, 1, v{vLANE}"); A(f"v_lshlrev_b32 v{vR4}, 7, v{vR4}"); A(f"v_lshl_add_u32 v{vR4}, v{vG4}, 3, v{vR4}"); A(f"v_add_u32 v{vR4}, {L_ACT}, v{vR4}")
    A(f"s_lshl_b32 {sT0}, {sW}, 16"); A(f"s_lshl_b32 {sT1}, {sIDX}, 7"); A(f"s_add_u32 {sT0}, {sT0}, {sT1}"); A(f"s_add_u32 {sT0}, {sT0}, {sP0}"); A(f"s_add_u32 {sT0}, {sT0}, {WS_D}")
    A(f"v_lshrrev_b32 v{vTM}, 3, v{vN}"); A(f"v_lshlrev_b32 v{vTM}, 12, v{vTM}"); A(f"v_lshl_or_b32 v{vTM}, v{vG4}, 14, v{vTM}")
    A(f"v_lshl_or_b32 v{vTM}, v{vTM2}, 4, v{vTM}"); A(f"v_add_u32 v{vR5}, {sT0}, v{vTM}")
    A("s_branch L_addr_done")
    if align: A(".p2align 12")
    if touch: E.label("L_pad_fin"); A("s_branch L_ret_fin")
    E.label("L_fin")
    stamp(3)
    yreg = [vO, vO+4, vO+8, vO+12, vQ+16, vQ+20, vQ+24]
    xrow("v_add_f32", [vL], [vTM])
    if hilo:
        for e in range(4): A(f"v_pk_add_f32 {P(vO+4*e)}, {P(vO+4*e)}, {P(vO+4*e+2)}")
    A(f"v_log_f32 v{vTM2}, v{vL}"); A(f"v_rcp_f32 v{vTM3}, v{vL}")
    A(f"v_mov_b32 v{vG+3}, {sTAG}")
    A(f"v_add_f32 v{vTM2}, v{vMC}, v{vTM2}")
    SEL4(vG, vO+0, vO+8, vO+1, vO+9, vMX)
    A(f"v_mov_b32_dpp v{vTM}, v{vTM3} quad_perm:[0,0,2,2] row_mask:0x3 bank_mask:0xf")
    A(f"v_mov_b32_dpp v{vG+2}, v{vTM2} quad_perm:[0,0,2,2] row_mask:0x3 bank_mask:0xf")
    SEL4(vG+1, vO+4, vO+12, vO+5, vO+13, vMX)
    A(f"v_mov_b32_dpp v{vTM}, v{vTM3} quad_perm:[1,1,3,3] row_mask:0xc bank_mask:0xf")
    A(f"v_mov_b32_dpp v{vG+2}, v{vTM2} quad_perm:[1,1,3,3] row_mask:0xc bank_mask:0xf")
    A(f"v_mul_f32 v{vG}, v{vG}, v{vTM}"); A(f"v_mul_f32 v{vG+1}, v{vG+1}, v{vTM}")
    A(f"global_store_dwordx4 v{vAA}, {Q4(vG)}, {pWS} {stf}")
    stamp(4)
    if bwarm == 2:
        A(f"s_cmp_lg_u32 {sWRM}, 1"); A("s_cbranch_scc1 L_nobw")
        A(f"global_load_dword v{vX+2}, v{vX+3}, {pWS} {ldf}")
        E.label("L_nobw")
    A(f"v_lshlrev_b32 v{vOPR}, 3, v{vG4}"); A(f"v_add_u32 v{vOPR}, {L_OP}, v{vOPR}")
    A(f"v_lshlrev_b32 v{vOPW}, 1, v{vN}"); A(f"v_add_u32 v{vOPW}, {L_OP}, v{vOPW}")
    A(f"v_mov_b32 v{vZ}, 0")
    A(f"s_cmp_lt_u32 {sIDX}, 28"); A("s_cbranch_scc1 L_ffn_addr")
    A(f"s_cmp_ge_u32 {sRR}, 64"); A("s_cbranch_scc1 L_addr_done")
    A(f"s_lshl_b32 {sT0}, {sRR}, 15"); A(f"s_lshr_b32 {sT1}, {sW}, 1"); A(f"s_lshl_b32 {sT1}, {sT1}, 14"); A(f"s_add_u32 {sT0}, {sT0}, {sT1}")
    A(f"s_and_b32 {sT1}, {sW}, 1"); A(f"s_lshl_b32 {sT1}, {sT1}, 12"); A(f"s_add_u32 {sT0}, {sT0}, {sT1}"); A(f"s_add_u32 {sT0}, {sT0}, {sP1}"); A(f"s_add_u32 {sT0}, {sT0}, {WS_B}")
    A(f"v_lshl_add_u32 v{vR0}, v{vLANE}, 4, {sT0}")
    A(f"s_lshl_b32 {sT0}, {sW}, 6"); A(f"s_add_u32 {sT0}, {sT0}, {L_RED}")
    A(f"v_and_b32 v{vTM}, 7, v{vLANE}"); A(f"v_lshl_add_u32 v{vR1}, v{vTM}, 2, {sT0}")
    A(f"v_and_b32 v{vTM}, 6, v{vLANE}"); A(f"v_lshlrev_b32 v{vR2}, 2, v{vTM}"); A(f"v_add_u32 v{vR2}, {L_RED}, v{vR2}")
    A(f"s_lshl_b32 {sT0}, {sRR}, 6"); A(f"s_add_u32 {sT0}, {sT0}, {sP0}"); A(f"s_add_u32 {sT0}, {sT0}, {WS_H}"); A(f"v_lshl_add_u32 v{vR3}, v{vTM}, 3, {sT0}")
    A(f"s_lshr_b32 {sT0}, {sRR}, 1"); A(f"s_lshl_b32 {sT0}, {sT0}, 14"); A(f"s_and_b32 {sT1}, {sRR}, 1"); A(f"s_lshl_b32 {sT1}, {sT1}, 12"); A(f"s_add_u32 {sT0}, {sT0}, {sT1}")
    A(f"s_add_u32 {sT0}, {sT0}, {sP0}"); A(f"s_add_u32 {sT0}, {sT0}, {WS_D}"); A(f"v_lshl_add_u32 v{vR4}, v{vLANE}, 4, {sT0}")
    A(f"v_lshl_add_u32 v{vR5}, v{vTM}, 1, {sCOL}")
    E.label("L_addr_done")
    aloads = [f"global_load_dwordx4 {Q4(vI+4*i)}, v{vAI}, {pWS} offset:{i*256} {ldf}" for i in range(4)]
    A(f"s_cmp_lg_u32 {sW}, 0"); A("s_cbranch_scc1 L_a_nopoll")
    for l in aloads: A(l)
    E.label("L_a_nopoll")
    wide_addr(vX)
    for h in range(2): read_wide_tile(vX, vWO, h)
    A(f"s_cmp_lg_u32 {sW}, 0"); A("s_cbranch_scc1 L_a_join")
    poll(aloads, [[vI+4*i+3] for i in range(4)], issued=True)
    stamp(5)
    A(f"v_max3_f32 v{vMX}, v{vI+2}, v{vI+6}, v{vI+10}"); A(f"v_max_f32 v{vMX}, v{vMX}, v{vI+14}")
    xrow("v_max_f32", [vMX], [vTM])
    for i in range(4): A(f"v_sub_f32 v{vI+4*i+2}, v{vI+4*i+2}, v{vMX}")
    for i in range(4): A(f"v_exp_f32 v{vI+4*i+2}, v{vI+4*i+2}")
    A(f"v_mul_f32 v{sa}, v{vI}, v{vI+2}"); A(f"v_mul_f32 v{sb}, v{vI+1}, v{vI+2}"); A(f"v_add_f32 v{sw}, v{vI+2}, v{vI+6}")
    for i in range(1,4):
        A(f"v_fmac_f32 v{sa}, v{vI+4*i}, v{vI+4*i+2}"); A(f"v_fmac_f32 v{sb}, v{vI+4*i+1}, v{vI+4*i+2}")
        if i > 1: A(f"v_add_f32 v{sw}, v{sw}, v{vI+4*i+2}")
    xrow("v_add_f32", [sw, sa, sb], [vS+3, vS+4, vS+5])
    A(f"v_rcp_f32 v{sw}, v{sw}")
    A(f"v_mul_f32 v{sa}, v{sa}, v{sw}"); A(f"v_mul_f32 v{sb}, v{sb}, v{sw}")
    A(f"v_mov_b32_dpp v{vS+3}, v{sa} quad_perm:[1,0,3,2] row_mask:0xf bank_mask:0xf")
    A(f"v_mov_b32_dpp v{vS+4}, v{sb} quad_perm:[1,0,3,2] row_mask:0xf bank_mask:0xf")
    A(f"v_cvt_pk_bf16_f32 v{sa}, v{sa}, v{vS+3}"); A(f"v_cvt_pk_bf16_f32 v{sb}, v{sb}, v{vS+4}")
    A("s_mov_b64 exec, 0x5555"); A(f"ds_write2_b32 v{vOPW}, v{sa}, v{sb} offset0:0 offset1:8"); A("s_mov_b64 exec, -1")
    A("s_waitcnt lgkmcnt(0)")
    E.label("L_a_join")
    A("s_barrier")
    A(f"ds_read2_b64 {Q4(vA)}, v{vOPR} offset0:0 offset1:4")
    A(f"v_mov_b32 v{vG+1}, {sTAG}")
    A("s_waitcnt lgkmcnt(0)")
    for t in (0,2,4,6,1,3,5):
        A(f"v_mfma_f32_16x16x32_bf16 {Q4(yreg[t])}, {Q4(vA)}, {Q4(vWO+4*t)}, 0")
    SEL4(vG, yreg[0], yreg[2], yreg[4], yreg[6], vMX)
    SEL4(vG+2, yreg[1], yreg[3], yreg[5], vZ, vTM)
    A(f"global_store_dwordx4 v{vBA}, {Q4(vG)}, {pWS} {stf}")
    stamp(6)
    A(f"s_cmp_lt_u32 {sIDX}, 28"); A("s_cbranch_scc1 L_ffn")
    A(f"s_cmp_ge_u32 {sRR}, 64"); A("s_cbranch_scc1 L_done")
    def inbox(addr): return [f"global_load_dwordx4 {Q4(vI+4*i)}, v{addr}, {pWS} offset:{i*1024} {ldf}" for i in range(4)]
    tags2 = [[vI+4*i+3] if onetag else [vI+4*i+1, vI+4*i+3] for i in range(4)]
    def sum_inbox():
        A(f"v_add_f32 v{sa}, v{vI}, v{vI+4}"); A(f"v_add_f32 v{sb}, v{vI+2}, v{vI+6}")
        A(f"v_add_f32 v{vS+2}, v{vI+8}, v{vI+12}"); A(f"v_add_f32 v{vS+3}, v{vI+10}, v{vI+14}")
        A(f"v_add_f32 v{sa}, v{sa}, v{vS+2}"); A(f"v_add_f32 v{sb}, v{sb}, v{vS+3}")
        A(f"v_add_f32_dpp v{sa}, v{sa}, v{sa} row_ror:8 row_mask:0xf bank_mask:0xf")
        A(f"v_add_f32_dpp v{sb}, v{sb}, v{sb} row_ror:8 row_mask:0xf bank_mask:0xf")
        xrow("v_add_f32", [sa, sb], [vS+2, vS+3])
    vXF = vO
    unpack(vXF, vXF+1, vXH); unpack(vXF+2, vXF+3, vXH+1)
    if touch: pad("red")
    poll(inbox(vR0), tags2)
    stamp(7)
    sum_inbox()
    A("s_mov_b64 exec, 0xff"); A(f"ds_write2_b32 v{vR1}, v{sa}, v{sb} offset0:0 offset1:8"); A("s_mov_b64 exec, -1")
    A("s_waitcnt lgkmcnt(0)"); A("s_barrier")
    A(f"s_cmp_lg_u32 {sW}, 0"); A("s_cbranch_scc1 L_done")
    for i in range(4): A(f"ds_read2_b64 {Q4(vI+4*i)}, v{vR2} offset0:{i*8} offset1:{i*8+4}")
    def add_resid(y, dst):
        A(f"v_cvt_pk_bf16_f32 v{dst}, v{y}, v{y+1}"); A(f"v_cvt_pk_bf16_f32 v{dst+2}, v{y+2}, v{y+3}")
        unpack(y, y+1, dst); unpack(y+2, y+3, dst+2)
        A(f"v_pk_add_f32 {P(y)}, {P(y)}, {P(vXF)}"); A(f"v_pk_add_f32 {P(y+2)}, {P(y+2)}, {P(vXF+2)}")
        A(f"v_cvt_pk_bf16_f32 v{dst}, v{y}, v{y+1}"); A(f"v_cvt_pk_bf16_f32 v{dst+2}, v{y+2}, v{y+3}")
    A("s_waitcnt lgkmcnt(2)")
    A(f"v_pk_add_f32 {P(vI)}, {P(vI)}, {P(vI+4)}"); A(f"v_pk_add_f32 {P(vI+2)}, {P(vI+2)}, {P(vI+6)}")
    A("s_waitcnt lgkmcnt(0)")
    A(f"v_pk_add_f32 {P(vI+8)}, {P(vI+8)}, {P(vI+12)}"); A(f"v_pk_add_f32 {P(vI+10)}, {P(vI+10)}, {P(vI+14)}")
    A(f"v_pk_add_f32 {P(vI)}, {P(vI)}, {P(vI+8)}"); A(f"v_pk_add_f32 {P(vI+2)}, {P(vI+2)}, {P(vI+10)}")
    add_resid(vI, vG)
    A("s_mov_b64 exec, 0x55"); A(f"global_store_dwordx4 v{vR3}, {Q4(vG)}, {pWS} {stf}"); A("s_mov_b64 exec, -1")
    stamp(8)
    unpack(vXF, vXF+1, vG); unpack(vXF+2, vXF+3, vG+2)
    A(f"v_mov_b32 v{vI+12}, 0"); A(f"v_mov_b32 v{vI+13}, {sTAG}"); A(f"v_mov_b32 v{vI+14}, 0"); A(f"v_mov_b32 v{vI+15}, {sTAG}")
    poll(inbox(vR4), tags2, first_mask=[-1,-1,-1,"s[66:67]"])
    stamp(9)
    sum_inbox()
    A(f"v_mov_b32_dpp v{vI}, v{sa} quad_perm:[0,0,2,2] row_mask:0xf bank_mask:0xf"); A(f"v_mov_b32_dpp v{vI+1}, v{sa} quad_perm:[1,1,3,3] row_mask:0xf bank_mask:0xf")
    A(f"v_mov_b32_dpp v{vI+2}, v{sb} quad_perm:[0,0,2,2] row_mask:0xf bank_mask:0xf"); A(f"v_mov_b32_dpp v{vI+3}, v{sb} quad_perm:[1,1,3,3] row_mask:0xf bank_mask:0xf")
    add_resid(vI, vI+4)
    A("s_mov_b64 exec, 0x55"); A(f"global_store_dword v{vR5}, v{vI+4}, {pOUT} {outf}")
    A(f"s_cmp_eq_u32 {sGP}, 3"); A("s_cbranch_scc1 L_done")
    A(f"global_store_dword v{vR5}, v{vI+6}, {pOUT} offset:32 {outf}")
    A(f"s_cmp_lg_u32 {sRR}, 0"); A("s_cbranch_scc1 L_done")
    A(f"s_add_u32 {sT0}, {sE}, 1"); A(f"v_mov_b32 v{vTM2}, {sT0}"); A(f"v_mov_b32 v{vTM3}, {WS_E}")
    A("s_mov_b64 exec, 1"); A(f"global_store_dword v{vTM3}, v{vTM2}, {pWS} {stf}")
    if enc:
        A("s_memrealtime s[90:91]"); A("s_waitcnt lgkmcnt(0)")
        A(f"s_sub_u32 {sT0}, s{70+2*enc[1]}, s{70+2*enc[0]}"); A(f"s_lshl_b32 {sT0}, {sT0}, 2"); A(f"s_min_u32 {sT0}, {sT0}, 100000")
        E.label("L_enc")
        A("s_memrealtime s[94:95]"); A("s_waitcnt lgkmcnt(0)")
        A(f"s_sub_u32 {sT1}, s94, s90"); A(f"s_cmp_lt_u32 {sT1}, {sT0}"); A("s_cbranch_scc1 L_enc")
    A("s_branch L_done")
    if touch: E.label("L_pad_ffn"); A("s_branch L_ret_ffn")
    E.label("L_ffn")
    A(f"s_cmp_lg_u32 {sW}, 0"); A("s_cbranch_scc1 L_c_join")
    poll([f"global_load_dwordx4 {Q4(vI+4*u)}, v{vR0}, {pWS} offset:{u*128} {ldf}" for u in range(4)], tags2)
    stamp(7)
    layernorm([vI+2*u for u in range(7)], vO, vR1, 32, mid=(lambda: pad("ffn2")) if touch else None)
    A("s_waitcnt lgkmcnt(0)")
    E.label("L_c_join")
    A("s_barrier")
    def aread(i): A(f"ds_read_b128 {Q4(vF + 4*(i % NF))}, v{vR2} offset:{i*64}")
    for i in range(NF): aread(i)
    for i in range(14):
        A(f"s_waitcnt lgkmcnt({min(NF-1, 13-i)})")
        A(f"v_mfma_f32_16x16x32_bf16 {Q4(vS)}, {Q4(vF + 4*(i % NF))}, {Q4(vW1+4*i)}, {'0' if i==0 else Q4(vS)}")
        if i + NF < 14: aread(i+NF)
    for b in range(2): A(f"v_mov_b32 v{vO+4*b+1}, {sTAG}"); A(f"v_mov_b32 v{vO+4*b+3}, {sTAG}")
    A(f"v_add_u32 v{vR0}, {16*16384}, v{vR5}")
    A(f"v_cndmask_b32 v{vTM}, v{vS}, v{vS+1}, {sM1}")
    round_bf(vTM, vTM)
    A(f"v_mul_f32 v{vTM2}, {(LOG2E | 0x80000000):#x}, v{vTM}")
    A(f"v_exp_f32 v{vTM2}, v{vTM2}")
    A(f"v_add_f32 v{vTM2}, 1.0, v{vTM2}")
    A(f"v_rcp_f32 v{vTM2}, v{vTM2}")
    A(f"v_mul_f32 v{vTM}, v{vTM}, v{vTM2}")
    A(f"v_cvt_pk_bf16_f32 v{vTM}, v{vTM}, v{vTM}")
    A("s_mov_b32 exec_hi, 0"); A(f"ds_write_b16 v{vR3}, v{vTM}"); A("s_mov_b32 exec_hi, -1")
    A("s_waitcnt lgkmcnt(0)"); A("s_barrier")
    for ks in range(2): A(f"ds_read2_b64 {Q4(vF+4*ks)}, v{vR4} offset0:{ks*8} offset1:{ks*8+4}")
    zreg = [vW1+4*t for t in range(7)]
    for ks in range(2):
        A(f"s_waitcnt lgkmcnt({1-ks})")
        for t in (0,2,4,6,1,3,5):
            A(f"v_mfma_f32_16x16x32_bf16 {Q4(zreg[t])}, {Q4(vF+4*ks)}, {Q4(vW2+28*ks+4*t)}, {'0' if ks==0 else Q4(zreg[t])}")
    for b in range(2): SEL4(vO+4*b, zreg[0]+b, zreg[2]+b, zreg[4]+b, zreg[6]+b, vMX)
    for b in range(2):
        SEL4(vO+4*b+2, zreg[1]+b, zreg[3]+b, zreg[5]+b, vZ, vMX)
        A(f"global_store_dwordx4 v{vR5 if b == 0 else vR0}, {Q4(vO+4*b)}, {pWS} {stf}")
    stamp(8)
    E.label("L_done")
    if diag:
        stamp(10)
        A("s_mov_b64 exec, -1")
        A(f"s_lshl_b32 {sT0}, {sWG}, 2"); A(f"s_add_u32 {sT0}, {sT0}, {sW}"); A(f"s_lshl_b32 {sT0}, {sT0}, 7"); A(f"s_add_u32 {sT0}, {sT0}, {WS_ST}")
        A("s_getreg_b32 s100, hwreg(HW_REG_XCC_ID)")
        A("s_waitcnt lgkmcnt(0)")
        A(f"v_mov_b32 v{vTM}, {sT0}")
        A("s_mov_b64 exec, 1")
        for k in range(11): A(f"v_mov_b32 v{vW1+k}, s{70+2*k}")
        A(f"v_mov_b32 v{vW1+11}, s100"); A(f"v_mov_b32 v{vW1+12}, {sN}"); A(f"v_mov_b32 v{vW1+13}, {sROLE}"); A(f"v_mov_b32 v{vW1+14}, {sWG}"); A(f"v_mov_b32 v{vW1+15}, {sIDX}")
        for k in range(4): A(f"v_mov_b32 v{vW1+16+k}, s{92+2*k}")
        for q in range(5): A(f"global_store_dwordx4 v{vTM}, {Q4(vW1+4*q)}, {pWS} offset:{q*16}")
    E.label("L_end")
    A("s_endpgm")

    E.label("L_ffn_w")
    wide_addr(vX); tall_addr(vX+1)
    for t in range(4): read_tall_tile(vX+1, vW1, t)
    for t in range(4): read_wide_tile(vX, vW2 + 28*(t>>1), t & 1)
    A("s_branch L_ffn_w_done")
    E.label("L_ld_ffn")
    A(f"s_mov_b64 s[52:53], s[{pK[0]}:{pK[1]}]"); A("s_mov_b32 s54, 0"); A("s_mov_b32 s55, 0x20000")
    tall_voffs(3584); A(f"v_lshlrev_b32 v{vLIN}, 4, v0")
    A(f"s_mov_b64 s[48:49], s[{pW1[0]}:{pW1[1]}]"); A(f"s_mov_b32 s50, {448*1792*2}")
    A(f"s_lshl_b32 {sBASE}, {sIDX}, 7")
    for t in range(4):
        if t % 2 == 0: freecheck(2)
        tile_tall(3584, t, 16 if t < 3 else 8)
    A(f"s_mov_b64 s[48:49], s[{pW2[0]}:{pW2[1]}]")
    A(f"s_mul_i32 {sBASE}, {sIDX}, {64*896}"); A(f"s_add_u32 {sT2}, {sN}, 4")
    E.label("L_ld_w2")
    freecheck(1)
    tile_wide()
    A(f"s_cmp_lt_u32 {sN}, {sT2}"); A("s_cbranch_scc1 L_ld_w2")
    A("s_branch L_ld_head_done")
    if forcepar is None:
        E.label("L_probe")
        A(f"s_load_dword s69, {pWS}, {WS_E}")
        A("v_and_b32 v32, 1, v0"); A("v_lshlrev_b32 v32, 13, v32"); A("v_lshrrev_b32 v33, 2, v0"); A("v_lshl_add_u32 v32, v33, 8, v32")
        A("v_bfe_u32 v33, v0, 1, 1"); A(f"v_mul_u32_u24 v33, {WS_B-WS_PRB}, v33"); A(f"v_add_u32 v32, v32, v33"); A(f"v_add_u32 v32, {WS_PRB}, v32")
        A("v_mov_b32 v36, 0"); A(f"s_mov_b32 {sCI}, {nprobe}")
        A(f"s_mov_b64 exec, {(1<<(4*nprobe))-1:#x}"); A(f"global_atomic_add v37, v32, v36, {pWS} sc0")
        A("s_mov_b64 exec, 1")
        for k,off in enumerate((WS_PRB, WS_PRB+8192, WS_B, WS_B+8192)):
            A(f"v_mov_b32 v{32+k}, {off}"); A(f"s_mov_b32 s{92+k}, {-1 if pmin else 0}")
        A("s_waitcnt vmcnt(0)")
        E.label("L_probe_loop")
        for k in range(4):
            A("s_memtime s[64:65]"); A("s_waitcnt lgkmcnt(0)")
            A(f"global_atomic_add v37, v{32+k}, v36, {pWS} sc0"); A("s_waitcnt vmcnt(0)")
            A("s_memtime s[66:67]"); A(f"v_add_u32 v{32+k}, 256, v{32+k}"); A("s_waitcnt lgkmcnt(0)")
            A("s_sub_u32 s66, s66, s64")
            if diag == 3:
                A(f"s_lshl_b32 {sT0}, {sCI}, 4"); A(f"s_add_u32 {sT0}, {sT0}, {WS_ST+0x50000+4*k}"); A(f"v_mov_b32 v38, {sT0}"); A("v_mov_b32 v39, s66")
                A(f"global_store_dword v38, v39, {pWS}")
            if pmin: A(f"s_min_u32 s{92+k}, s{92+k}, s66")
            else: A(f"s_min_u32 s66, s66, {clip}"); A(f"s_add_u32 s{92+k}, s{92+k}, s66")
        A(f"s_sub_u32 {sCI}, {sCI}, 1"); A(f"s_cmp_lg_u32 {sCI}, 0"); A("s_cbranch_scc1 L_probe_loop")
        A("s_cmp_gt_u32 s92, s93"); A(f"s_cselect_b32 {sT0}, 8192, 0")
        A("s_cmp_gt_u32 s94, s95"); A(f"s_cselect_b32 {sT1}, 8192, 0")
        make_tag(sT2, "s69")
        A(f"v_mov_b32 v32, {sT0}"); A(f"v_mov_b32 v33, {sT2}"); A(f"v_mov_b32 v34, {sT1}"); A(f"v_mov_b32 v35, {sT2}"); A(f"v_mov_b32 v36, {WS_PAR}")
        A(f"global_store_dwordx4 v36, v[32:35], {pWS} {stf}")
        A("s_mov_b64 exec, -1")
        A("s_branch L_ld_wo")

    body = E.finish()
    head = open("sequential_preLN__gqa_block_cached__dense_activation_silu__decode.s.ref").read().split("; Override launch")[0]
    src = head + f"""; Design (one persistent launch, 256 workgroups = one per CU, written by my own generator script):
;  * workgroup = (batch, kv head) group g = id>>4, split j = id&15.  Wave 0 streams K/V with LDS-DMA into a 9 x 16 KiB
;    LDS ring; waves 1-4 compute with MFMA.  Every split owns 64 tiles of 32 keys: first its K (scores to LDS, true
;    maximum), then its V (each wave 64 of the 256 dims).  The last tiles form per-group pools handed out with atomic counters:
;    whole K tiles at the end of the K pass, 16-key K+V tiles with online softmax (true running maximum) at the very end.
;  * q = LN(x) @ wq is computed by 64 workgroups and handed over in tagged granules; V tiles are parked in registers meanwhile.
;  * tail, four tagged hand-offs through d_ws: split combine + wo rows -> column sums + residual -> LN, w1, silu, w2 rows
;    -> column sums + residual.  bf16 roundings sit where the reference materialises bf16 tensors.
;  * tag = hash of an epoch word found in d_ws (advanced at the end): it only tells this launch's granules from older ones.
;  * one workgroup times a few zero-adds to learn which 8 KiB parity of the hand-off pages is close to the readers;
;    the answer and the role/id mapping only pick addresses (speed), never values.  All spins are bounded.
; @launch grid=(256,1,1) block=(320,1,1) lds={LDS}
.amdgcn_target "amdgcn-amd-amdhsa--gfx950"
.text
.globl {NAME}
{'.p2align 12' if align else ''}
.p2align 8
.type {NAME},@function
{NAME}:
{body}.section .rodata,"a"
.p2align 6
.amdhsa_kernel {NAME}
  .amdhsa_next_free_vgpr 256
  .amdhsa_next_free_sgpr 102
  .amdhsa_accum_offset 256
  .amdhsa_group_segment_fixed_size 0
  .amdhsa_kernarg_size 88
  .amdhsa_user_sgpr_count 2
  .amdhsa_user_sgpr_kernarg_segment_ptr 1
  .amdhsa_system_sgpr_workgroup_id_x 1
.end_amdhsa_kernel
"""
    return src, E.npad

if __name__ == "__main__":
    out = sys.argv[1]
    kw = json.loads(sys.argv[2]) if len(sys.argv) > 2 else {}
    src, npad = gen(**kw)
    open(out, "w").write(src)
    print("wrote", out, "lines", src.count("\n"), "pad states", npad)
```

```python
import sys, json, struct
from emit import Emitter

NAME = "sequential_preLN__gqa_block_cached__dense_activation_silu__decode_kernel"
def f2u(x): return struct.unpack("<I", struct.pack("<f", x))[0]

def gen(W=19, NS=57, diag=False, hilo=True, spin=1<<20, enc=None, NF=5, ldst=None, qwait=2, forcepar=None, nprobe=3, clip=2000,
        touch=0, qtouch=1, lastfast=1, outf='sc1', onetag=1, nap=0, grp=4, align=1, park=4, ltouch=0, wpre=(2,4), awarm=1, bwarm=2, WD=None, jpos=(15,16,20,21), front=1, pmin=1, okat=24):
    E = Emitter(); A = E
    pol = "nt"; stf = ldf = "sc1"
    NSLOT = 9; SLOT = 16384; RING = NSLOT*SLOT; LDS = 163840
    L_FLAG = RING; L_CONS = RING+16; L_RED = RING+256; L_OP = RING+512; L_ACT = RING+768; L_QW = RING+1024; L_LN = RING+2048; L_SC = RING+4096; L_MX = RING+64; L_KD = 36; L_OK = 52; L_IDX = 128; L_SV = RING+12288
    WS_E = 0; WS_PAR = 0x800; WS_CNT = 0x1000; WS_H = 0x4000; WS_Q = 0x8000; WS_KF = 0x2000; WS_PRB = 0x10000; WS_SC = 0x600000; WS_D = 0x80000; WS_A = 0x100000; WS_B = 0x200000; WS_ST = 0x400000
    C_SCALE = f2u(1.4426950408889634/16.0); LOG2E = f2u(1.4426950408889634); INV448 = f2u(1.0/448.0); EPS = f2u(1e-5)
    POOL = 16+16*(64-NS); PROBE = 15*16+3; assert NS*128 <= 8192 and POOL <= 512
    assert 12 <= W <= 32 and NF <= 5
    sWG="s2"; sWAVE="s3"
    pX="s[4:5]"; pK=(6,7); pV=(8,9); pWQ=(10,11); pWO=(12,13); pW1=(16,17); pW2=(18,19); pOUT="s[20:21]"; pWS="s[24:25]"
    sG="s26"; sJ="s27"; sROLE="s28"; sN="s31"; sSLOT="s32"; sKNOWN="s33"; sT0="s34"; sT1="s35"; sT2="s36"
    sCI="s37"; sSPIN="s38"; sIDX="s39"; sNS="s63"; sPK="s68"
    vK=[4+i for i in range(8)]; vV=[12+i for i in range(4)]; vLIN=16; vT=[17,18]; vFL=21; vTMP=22; vC=24; vCA=28; vONE=29; vCL=[30,31]
    srdK="s[40:43]"; srdV="s[44:47]"; srdW="s[48:51]"; srdZ="s[52:55]"
    sCUR="s56"; sGB="s57"; sOFF="s58"; sCLM="s59"; sBASE="s61"; sFLOOR="s62"; sOWN="s60"; sVC="s64"; sK0="s66"
    sB="s29"; sHKV="s30"; sW="s40"; sTAG="s41"; sM1="s[42:43]"; sM2="s[44:45]"; sC="s46"; sE="s47"; sRR="s48"; sTOT="s49"
    sCK=["s[50:51]","s[52:53]","s[54:55]","s[56:57]"]; sCOL="s58"; sGP="s59"; sP0="s60"; sP1="s61"; sWRM="s62"; sKE="s69"
    vLANE=0; vN=1; vG4=2; vFLG=3; vCONS=4; vTM=5; vTM2=6; vTM3=7
    vM=8; vMC=9; vL=10; vMX=11
    vKB=[12,13,14,15]; vVB=[16,17,18,19]; vAD=[20,21,22,23]
    vS=24; vP=32; vO=36; vQ=52; vF=84; vAA=104; vAI=105; vBA=106
    vWO=108; vW1=136; vW2=192; vX=248; vXH=254
    xr1 = [vWO+u for u in range(7)]; vLW1 = vWO+24

    uid=[0]
    def lab(p): uid[0]+=1; return f"L_{p}_{uid[0]}"
    def P(r): return f"v[{r}:{r+1}]"
    def Q4(r): return f"v[{r}:{r+3}]"
    def stamp(k):
        if not diag and not (enc and k in (0, enc[0], enc[1])): return
        A(f"s_memrealtime s[{70+2*k}:{71+2*k}]")
    def slot_advance():
        A(f"s_add_u32 {sN}, {sN}, 1"); A(f"s_add_u32 {sSLOT}, {sSLOT}, {SLOT}")
        A(f"s_cmp_eq_u32 {sSLOT}, {RING}"); A(f"s_cselect_b32 {sSLOT}, 0, {sSLOT}")
    def spin_guard(): A(f"s_sub_u32 {sSPIN}, {sSPIN}, 1"); A("s_cbranch_scc1 L_end")
    def one_lane(ins): A("s_mov_b64 exec, 1"); A(ins); A("s_mov_b64 exec, -1")
    def share_consts(part=3):
        if part & 1:
            A(f"s_sub_u32 {sT0}, {sROLE}, 8"); A(f"s_lshl_b32 {sIDX}, {sG}, 1"); A(f"s_add_u32 {sIDX}, {sIDX}, {sT0}")
            A(f"s_cmp_lt_u32 {sT0}, 2"); A(f"s_cselect_b32 {sIDX}, {sIDX}, 99")
            A(f"s_cmp_lt_u32 {sROLE}, 4"); A(f"s_cselect_b32 {sPK}, {park//2}, {park}")
            A(f"s_cmp_lt_u32 {sIDX}, 28"); A(f"s_cselect_b32 {sPK}, 0, {sPK}"); A(f"s_cmp_eq_u32 {sIDX}, 30"); A(f"s_cselect_b32 {sPK}, 0, {sPK}")
        if part & 2:
            A(f"s_cmp_lt_u32 {sROLE}, 4"); A(f"s_cselect_b32 {sNS}, {NS-2}, {NS}")
            A(f"s_cmp_lt_u32 {sIDX}, 30"); A(f"s_cselect_b32 {sNS}, {NS-4}, {sNS}"); A(f"s_cmp_eq_u32 {sIDX}, 30"); A(f"s_cselect_b32 {sNS}, {NS-8}, {sNS}")
    def make_tag(dst, e): A(f"s_mul_i32 {dst}, {e}, 0x9e3779b1"); A(f"s_add_u32 {dst}, {dst}, 0x7f4a7c15")
    pads = []
    def pad(name):
        sk = lab("padskip"); A(f"s_branch {sk}"); E.label(f"L_pad_{name}"); A(f"s_branch L_ret_{name}"); E.label(sk)
    def touch_pad(name): A(f"s_branch L_pad_{name}"); E.label(f"L_ret_{name}")

    A(f"s_cmp_ge_u32 {sWG}, 256"); A("s_cbranch_scc1 L_end")
    stamp(0)
    A("s_load_dwordx16 s[4:19], s[0:1], 0"); A("s_load_dwordx4 s[20:23], s[0:1], 64"); A("s_load_dwordx2 s[24:25], s[0:1], 80")
    A("v_lshrrev_b32 v1, 6, v0"); A("v_and_b32 v0, 63, v0"); A(f"v_readfirstlane_b32 {sWAVE}, v1")
    A(f"s_lshr_b32 {sG}, {sWG}, 4"); A(f"s_and_b32 {sJ}, {sWG}, 15")
    A(f"s_lshr_b32 {sT0}, {sJ}, 1"); A(f"s_and_b32 {sT0}, {sT0}, 4"); A(f"s_and_b32 {sROLE}, {sJ}, 3"); A(f"s_add_u32 {sROLE}, {sROLE}, {sT0}")
    A(f"s_sub_u32 {sROLE}, {sROLE}, {sG}"); A(f"s_and_b32 {sROLE}, {sROLE}, 7")
    A(f"s_add_u32 {sT0}, {sROLE}, 4"); A(f"s_add_u32 {sT1}, {sROLE}, 8"); A(f"s_cmp_lt_u32 {sROLE}, 4"); A(f"s_cselect_b32 {sROLE}, {sROLE}, {sT1}")
    A(f"s_bitcmp1_b32 {sJ}, 2"); A(f"s_cselect_b32 {sROLE}, {sROLE}, {sT0}")
    A(f"s_mov_b32 {sN}, 0"); A(f"s_mov_b64 s[32:33], 0"); A(f"s_mov_b32 {sCI}, 0"); A(f"s_mov_b32 {sSPIN}, {spin}")
    A(f"v_mov_b32 v3, {L_FLAG}"); A(f"v_lshl_add_u32 v1, v0, 2, v3"); A("v_mov_b32 v2, 0")
    A("s_mov_b64 exec, 6"); A("v_bfrev_b32 v2, -2"); A("s_mov_b64 exec, 0x3fff"); A("ds_write_b32 v1, v2"); A("s_mov_b64 exec, -1")
    A(f"v_lshrrev_b32 v1, 5, v0"); A(f"v_mul_u32_u24 v1, 896, v1"); A(f"v_and_b32 v2, 31, v0"); A(f"v_lshl_add_u32 v{vLW1}, v2, 2, v1")
    A("s_waitcnt lgkmcnt(0)")
    A("s_barrier")
    A(f"s_cmp_eq_u32 {sWAVE}, 0"); A("s_cbranch_scc1 L_loader")
    A(f"s_load_dword {sE}, {pWS}, {WS_E}")
    A(f"s_cmp_ge_u32 {sROLE}, 4"); A("s_cbranch_scc1 L_consumer")
    for u in range(7): A(f"global_load_dword v{xr1[u]}, v{vLW1}, {pX} offset:{u*128}")
    A("s_branch L_qprod")

    def publish(back):
        A(f"s_sub_u32 {sT0}, {sN}, {back}"); A(f"s_max_i32 {sT0}, {sT0}, {sFLOOR}")
        A(f"v_mov_b32 v{vTMP}, {sT0}"); one_lane(f"ds_write_b32 v{vFL}, v{vTMP}")
    def throttle(i, W=W):
        if i % grp == grp-1:
            A(f"s_waitcnt vmcnt({W})")
            if i+1+16 >= W and (i+1-grp+16 < W or i < grp): publish(1)
    def tile_rows(specs, pol=pol, W=W):
        for i,(srd,vo,so) in enumerate(specs):
            if i % 4 == 0:
                A(f"s_add_u32 m0, {sSLOT}, {i*1024}" if i else f"s_mov_b32 m0, {sSLOT}")
                A(f"s_add_u32 {sOFF}, {sBASE}, {so}" if so else f"s_mov_b32 {sOFF}, {sBASE}")
            A(f"buffer_load_dwordx4 v{vo}, {srd}, {sOFF} offen offset:{(i%4)*1024} {pol} lds")
            throttle(i, W)
        slot_advance()
    def tile_tall(rowstride, t, nvalid):
        for i in range(16):
            A(f"s_add_u32 m0, {sSLOT}, {i*1024}" if i else f"s_mov_b32 m0, {sSLOT}")
            A(f"s_add_u32 {sOFF}, {sBASE}, {(t*128+i*8)*rowstride}")
            A(f"buffer_load_dwordx4 v{vT[i&1]}, {srdW if i < nvalid else srdZ}, {sOFF} offen {pol} lds")
            throttle(i)
        slot_advance()
    def tile_wide(pol=pol):
        tile_rows([(srdW if i < 14 else srdZ, vLIN, i*1024) for i in range(16)], pol)
        A(f"s_add_u32 {sBASE}, {sBASE}, 14336")
    def tall_voffs(stride):
        A("v_lshrrev_b32 v1, 3, v0"); A("v_and_b32 v2, 7, v0"); A("v_and_b32 v3, 2, v1"); A("v_xor_b32 v2, v2, v3"); A("v_lshlrev_b32 v2, 4, v2")
        A(f"v_mul_u32_u24 v3, {stride}, v1"); A(f"v_add_u32 v{vT[0]}, v3, v2"); A("v_xor_b32 v2, 64, v2"); A(f"v_add_u32 v{vT[1]}, v3, v2")
    def freecheck(k):
        ok = lab("free"); lp = lab("freepoll")
        A(f"s_add_u32 {sT0}, {sKNOWN}, {NSLOT-k}"); A(f"s_cmp_ge_u32 {sT0}, {sN}"); A(f"s_cbranch_scc1 {ok}")
        E.label(lp)
        A(f"ds_read_b128 {Q4(vC)}, v{vFL} offset:16")
        spin_guard()
        A("s_waitcnt lgkmcnt(0)")
        A(f"v_min3_u32 v{vC}, v{vC}, v{vC+1}, v{vC+2}"); A(f"v_min_u32 v{vC}, v{vC}, v{vC+3}")
        A(f"v_readfirstlane_b32 {sKNOWN}, v{vC}")
        A(f"s_add_u32 {sT0}, {sKNOWN}, {NSLOT-k}"); A(f"s_cmp_ge_u32 {sT0}, {sN}"); A(f"s_cbranch_scc1 {ok}")
        A("s_sleep 1"); A(f"s_branch {lp}")
        E.label(ok)
    def claim(p, off=0):
        one_lane(f"global_atomic_add v{vCL[p]}, v{vCA}, v{vONE}, {pWS} offset:{off} sc0")
    def claim_last_two(cnt, lim, off):
        nc = lab("nocl"); c1 = lab("cl1")
        A(f"s_add_u32 {sT0}, {cnt}, 1"); A(f"s_cmp_lt_u32 {sT0}, {lim}"); A(f"s_cbranch_scc1 {nc}")
        A(f"s_cmp_eq_u32 {cnt}, {lim}"); A(f"s_cbranch_scc1 {c1}")
        claim(0, off); A(f"s_branch {nc}")
        E.label(c1); claim(1, off)
        E.label(nc)

    rpos = [b for b in range(14,24) if b not in jpos]; RMASK = sum(1<<b for b in rpos)
    def scatter(dst, src, pos, tmp):
        k = 0
        while k < len(pos):
            n = 1
            while k+n < len(pos) and pos[k+n] == pos[k]+n: n += 1
            A(f"s_bfe_u32 {tmp}, {src}, {(n<<16)|k:#x}"); A(f"s_lshl_b32 {tmp}, {tmp}, {pos[k]}"); A(f"s_or_b32 {dst}, {dst}, {tmp}")
            k += n
    def next_tile():
        A(f"s_or_b32 {sCUR}, {sCUR}, {(~RMASK)&0xffffffff:#x}"); A(f"s_add_u32 {sCUR}, {sCUR}, 1"); A(f"s_and_b32 {sCUR}, {sCUR}, {RMASK:#x}")
        A(f"s_or_b32 {sBASE}, {sOWN}, {sCUR}")
    E.label("L_loader")
    A("s_setprio 3")
    A(f"v_mov_b32 v{vFL}, v3"); A(f"s_mov_b32 {sFLOOR}, 0")
    A("s_mov_b32 s50, 3670016"); A("s_mov_b32 s51, 0x20000")
    A(f"s_cmp_ge_u32 {sROLE}, 4"); A("s_cbranch_scc1 L_ld_noq")
    tall_voffs(8192)
    A(f"s_mov_b64 s[48:49], s[{pWQ[0]}:{pWQ[1]}]")
    A(f"s_and_b32 {sOFF}, {sG}, 7"); A(f"s_lshl_b32 {sOFF}, {sOFF}, 3"); A(f"s_lshr_b32 {sT0}, {sG}, 3"); A(f"s_lshl_b32 {sT0}, {sT0}, 2")
    A(f"s_add_u32 {sOFF}, {sOFF}, {sT0}"); A(f"s_add_u32 {sOFF}, {sOFF}, {sROLE}"); A(f"s_lshl_b32 {sOFF}, {sOFF}, 7")
    A("s_mov_b32 m0, 0")
    E.label("L_ld_q")
    for i in range(2):
        A(f"buffer_load_dwordx4 v{vT[i]}, {srdW}, {sOFF} offen {pol} lds")
        A(f"s_add_u32 {sOFF}, {sOFF}, {8*8192}"); A("s_add_u32 m0, m0, 1024")
    A(f"s_cmp_lt_u32 m0, {56*1024}"); A("s_cbranch_scc1 L_ld_q")
    A(f"s_mov_b32 {sN}, 4"); A(f"s_mov_b32 {sSLOT}, {4*SLOT}"); A(f"s_mov_b32 {sFLOOR}, 4")
    A(f"v_mov_b32 v{vTMP}, 4"); A("s_waitcnt vmcnt(0)"); one_lane(f"ds_write_b32 v{vFL}, v{vTMP}")
    E.label("L_ld_noq")
    if forcepar is None:
        A(f"s_cmp_eq_u32 {sWG}, {PROBE}"); A("s_cbranch_scc1 L_probe")
    E.label("L_ld_wo")
    A("v_lshrrev_b32 v1, 5, v0"); A("v_and_b32 v2, 31, v0")
    A("v_lshlrev_b32 v3, 1, v1"); A("v_xor_b32 v3, v2, v3"); A("v_lshlrev_b32 v3, 4, v3"); A("v_lshl_or_b32 v3, v1, 9, v3")
    for i in range(4): A(f"v_xor_b32 v{vV[i]}, {i*64}, v3")
    A(f"s_mov_b64 s[44:45], s[{pV[0]}:{pV[1]}]"); A("s_brev_b32 s46, 8"); A("s_mov_b32 s47, s51")
    A(f"s_lshl_b32 {sGB}, {sG}, 24"); A(f"s_mov_b32 {sOWN}, {sGB}"); scatter(sOWN, sJ, jpos, sT0)
    share_consts(1)
    sc = lambda r: sum(((r >> k) & 1) << b for k,b in enumerate(rpos)) if front else 0
    A(f"s_cmp_lt_u32 {sROLE}, 4"); A(f"s_cselect_b32 {sK0}, {sc(2)}, 0")
    A(f"s_cmp_lt_u32 {sIDX}, 30"); A(f"s_cselect_b32 {sK0}, {sc(4)}, {sK0}"); A(f"s_cmp_eq_u32 {sIDX}, 30"); A(f"s_cselect_b32 {sK0}, {sc(8)}, {sK0}")
    A(f"s_mov_b32 {sCUR}, {sK0}")
    A(f"s_cmp_lt_u32 {sIDX}, 28"); A(f"s_cbranch_scc1 L_ld_ffn")
    A(f"s_or_b32 {sBASE}, {sOWN}, {sCUR}"); A(f"s_add_u32 {sT2}, {sN}, {sPK}")
    A(f"s_cmp_eq_u32 {sPK}, 0"); A("s_cbranch_scc1 L_ld_head_done")
    E.label("L_ld_pv")
    tile_rows([(srdV, vV[i%4], i*1024) for i in range(16)])
    next_tile()
    A(f"s_cmp_lt_u32 {sN}, {sT2}"); A("s_cbranch_scc1 L_ld_pv")
    E.label("L_ld_head_done")
    A(f"s_mov_b32 {sVC}, {sCUR}"); A(f"s_mov_b32 {sCUR}, {sK0}")
    share_consts(2)
    A("v_lshrrev_b32 v1, 5, v0"); A("v_and_b32 v2, 31, v0")
    A("v_xor_b32 v3, v2, v1"); A("v_lshlrev_b32 v3, 4, v3"); A("v_lshl_or_b32 v3, v1, 9, v3")
    for i in range(8): A(f"v_xor_b32 v{vK[i]}, {i*32}, v3")
    A(f"s_lshl_b32 {sT0}, {sG}, 8"); A(f"s_add_u32 {sT0}, {sT0}, {WS_CNT}"); A(f"v_mov_b32 v{vCA}, {sT0}"); A(f"v_mov_b32 v{vONE}, 1")
    A(f"s_mov_b64 s[40:41], s[{pK[0]}:{pK[1]}]"); A("s_mov_b32 s42, 0x10000000"); A("s_mov_b32 s43, 0x20000")
    def ldstamps(list_, k0):
        if not diag: return
        for k,c in enumerate(list_):
            sk=lab("ls"); A(f"s_cmp_lg_u32 {sCI}, {c}"); A(f"s_cbranch_scc1 {sk}"); A(f"s_memrealtime s[{72+2*(k0+k)}:{73+2*(k0+k)}]"); A("s_waitcnt lgkmcnt(0)"); E.label(sk)
    A(f"s_or_b32 {sBASE}, {sOWN}, {sCUR}")
    E.label("L_ld_loop")
    ldstamps((0,4,8,16,32,NS-9), 0)
    freecheck(1)
    A(f"s_add_u32 {sCI}, {sCI}, 1")
    claim_last_two(sCI, sNS, 0)
    tile_rows([(srdK, vK[i%8], i*1024) for i in range(16)])
    next_tile()
    A(f"s_cmp_lt_u32 {sCI}, {sNS}"); A("s_cbranch_scc1 L_ld_loop")
    def pool_tile(p, tag, done):
        A(f"v_readfirstlane_b32 {sCLM}, v{vCL[p]}")
        A(f"s_cmp_ge_u32 {sCLM}, {POOL}"); A(f"s_cbranch_scc1 {done}")
        A(f"s_cmp_lt_u32 {sCLM}, 16"); A(f"s_cbranch_scc1 L_ld_shed{tag}{p}")
        A(f"s_and_b32 {sT1}, {sCLM}, 15"); A(f"s_lshr_b32 {sCUR}, {sCLM}, 4"); A(f"s_add_u32 {sCUR}, {sCUR}, {NS-1}")
        E.label(f"L_ld_unit{tag}{p}")
        A(f"s_mov_b32 {sBASE}, {sGB}"); scatter(sBASE, sT1, jpos, sT0); scatter(sBASE, sCUR, rpos, sT0)
        freecheck(1)
    E.label("L_ld_kdyn")
    for p in range(2):
        pool_tile(p, "k", "L_ld_kdone")
        A(f"s_lshr_b32 {sT0}, {sSLOT}, 12"); A(f"v_mov_b32 v{vTMP}, {sCLM}"); A(f"v_add_u32 v19, {sT0}, v{vFL}")
        one_lane(f"ds_write_b32 v19, v{vTMP} offset:{L_IDX}")
        claim(p)
        tile_rows([(srdK, vK[i%8], i*1024) for i in range(16)])
    A("s_branch L_ld_kdyn")
    E.label("L_ld_kdone")
    if diag == 4: A("s_memrealtime s[84:85]"); A("s_waitcnt lgkmcnt(0)")
    A(f"v_mov_b32 v{vTMP}, {sN}"); one_lane(f"ds_write_b32 v{vFL}, v{vTMP} offset:8")
    A(f"s_mov_b32 {sCI}, {sPK}"); A(f"s_mov_b32 {sCUR}, {sVC}"); A(f"s_or_b32 {sBASE}, {sOWN}, {sCUR}")
    E.label("L_ld_vloop")
    if diag != 4: ldstamps((8,40,NS-9), 6)
    freecheck(1)
    A(f"s_add_u32 {sCI}, {sCI}, 1")
    claim_last_two(sCI, sNS, 128)
    tile_rows([(srdV, vV[i%4], i*1024) for i in range(16)])
    next_tile()
    A(f"s_cmp_lt_u32 {sCI}, {sNS}"); A("s_cbranch_scc1 L_ld_vloop")
    if diag == 4: A("s_memrealtime s[86:87]"); A("s_waitcnt lgkmcnt(0)"); A(f"s_mov_b32 s88, {sNS}")
    A(f"s_mov_b64 s[48:49], {pWS}"); A(f"s_mov_b32 s50, {WS_SC+0x100000}")
    A(f"s_lshl_b32 {sOWN}, {sG}, 16"); A(f"s_add_u32 {sOWN}, {sOWN}, {WS_SC}"); A("v_lshlrev_b32 v19, 2, v0")
    E.label("L_ld_okwait")
    A(f"ds_read_b32 v{vC}, v{vFL} offset:{L_OK}")
    spin_guard()
    A("s_waitcnt lgkmcnt(0)")
    A(f"v_readfirstlane_b32 {sT0}, v{vC}"); A(f"s_cmp_eq_u32 {sT0}, 0"); A("s_cbranch_scc1 L_ld_okwait")
    E.label("L_ld_dyn")
    for p in range(2):
        pool_tile(p, "v", "L_ld_dyn_done")
        claim(p, 128)
        A(f"s_lshr_b32 {sT0}, {sSLOT}, 7"); A(f"s_add_u32 m0, {sT0}, {L_SV}")
        A(f"s_lshl_b32 {sOFF}, {sCLM}, 7"); A(f"s_add_u32 {sOFF}, {sOFF}, {sOWN}")
        A("s_mov_b32 exec_hi, 0"); A(f"buffer_load_dword v19, {srdW}, {sOFF} offen {ldf} lds"); A("s_mov_b32 exec_hi, -1")
        tile_rows([(srdV, vV[i%4], i*1024) for i in range(16)], W=WD or W)
    A("s_branch L_ld_dyn")
    E.label("L_ld_dyn_done")
    A(f"v_mov_b32 v{vTMP}, {sN}"); one_lane(f"ds_write_b32 v{vFL}, v{vTMP} offset:4")
    A(f"s_mov_b64 s[48:49], s[{pWO[0]}:{pWO[1]}]"); A("s_mov_b32 s50, 3670016")
    A(f"s_and_b32 {sBASE}, {sWG}, 127"); A(f"s_mul_i32 {sBASE}, {sBASE}, {32*896}"); A(f"v_lshlrev_b32 v{vLIN}, 4, v0")
    freecheck(2)
    k = 0
    for t in range(2):
        for i in range(14):
            if i % 4 == 0:
                A(f"s_add_u32 m0, {sSLOT}, {i*1024}" if i else f"s_mov_b32 m0, {sSLOT}")
                A(f"s_add_u32 {sOFF}, {sBASE}, {t*14336+i*1024}")
            if k == wpre[0]: A(f"s_waitcnt vmcnt({16+k})"); publish(1+t)
            if k == wpre[1]: A(f"s_waitcnt vmcnt({k})"); publish(t)
            A(f"buffer_load_dwordx4 v{vLIN}, {srdW}, {sOFF} offen offset:{(i%4)*1024} lds")
            k += 1
        slot_advance()
    for c,back in ((14,1),(0,0)):
        A(f"s_waitcnt vmcnt({c})"); publish(back)
    if diag:
        A("s_mov_b64 exec, 1"); A("s_memrealtime s[90:91]")
        A(f"s_lshl_b32 {sT0}, {sWG}, 6"); A(f"s_add_u32 {sT0}, {sT0}, {WS_ST+0x40000}"); A(f"v_mov_b32 v46, {sT0}")
        A("s_waitcnt lgkmcnt(0)")
        for k in range(11): A(f"v_mov_b32 v{32+k}, s{70+2*k}")
        A(f"v_mov_b32 v43, {sSPIN}")
        for q in range(3): A(f"global_store_dwordx4 v46, v[{32+4*q}:{35+4*q}], {pWS} offset:{q*16}")
    A("s_waitcnt lgkmcnt(0)")
    A("s_endpgm")
    for p in ("k0","k1","v0","v1"):
        E.label(f"L_ld_shed{p}")
        A(f"s_lshr_b32 {sT0}, {sCLM}, 2"); A(f"s_and_b32 {sT1}, {sCLM}, 3"); A(f"s_add_u32 {sT1}, {sT1}, {0 if front else NS-4}"); A(f"s_add_u32 {sT2}, {sCLM}, {0 if front else NS-8}")
        A(f"s_cmp_eq_u32 {sG}, 15"); A(f"s_cselect_b32 {sT0}, 0, {sT0}"); A(f"s_cselect_b32 {sT1}, {sT2}, {sT1}"); A(f"s_add_u32 {sT0}, {sT0}, 4")
        A(f"s_bfe_u32 {sT2}, {sCLM}, 0x20001"); A(f"s_and_b32 {sCUR}, {sCLM}, 1"); A(f"s_add_u32 {sCUR}, {sCUR}, {0 if front else NS-2}")
        A(f"s_cmp_lt_u32 {sCLM}, 8"); A(f"s_cselect_b32 {sT0}, {sT0}, {sT2}"); A(f"s_cselect_b32 {sCUR}, {sT1}, {sCUR}"); A(f"s_cselect_b32 {sT2}, 0, 4")
        A(f"s_add_u32 {sT0}, {sT0}, {sG}"); A(f"s_and_b32 {sT1}, {sT0}, 3"); A(f"s_or_b32 {sT1}, {sT1}, {sT2}")
        A(f"s_bfe_u32 {sT0}, {sT0}, 0x10002"); A(f"s_lshl_b32 {sT0}, {sT0}, 3"); A(f"s_or_b32 {sT1}, {sT1}, {sT0}")
        A(f"s_branch L_ld_unit{p}")

    def SEL4(dst, a, b, c, d, t):
        A(f"v_cndmask_b32 v{dst}, v{a}, v{b}, {sM1}"); A(f"v_cndmask_b32 v{t}, v{c}, v{d}, {sM1}"); A(f"v_cndmask_b32 v{dst}, v{dst}, v{t}, {sM2}")
    def xrow(op, regs, tmps):
        for sw in ("v_permlane16_swap_b32","v_permlane32_swap_b32"):
            for r,t in zip(regs,tmps): A(f"v_mov_b32 v{t}, v{r}")
            for r,t in zip(regs,tmps): A(f"{sw} v{r}, v{t}")
            for r,t in zip(regs,tmps): A(f"{op} v{r}, v{r}, v{t}")
    def round_bf(dst, src): A(f"v_cvt_pk_bf16_f32 v{dst}, v{src}, v{src}"); A(f"v_and_b32 v{dst}, 0xffff0000, v{dst}")
    def unpack(lo, hi, src): A(f"v_lshlrev_b32 v{lo}, 16, v{src}"); A(f"v_and_b32 v{hi}, 0xffff0000, v{src}")
    def pub_cons():
        slot_advance()
        A(f"v_mov_b32 v{vTM}, {sN}"); one_lane(f"ds_write_b32 v{vCONS}, v{vTM}")
    def wait_tile(fin=None, kend=None):
        ok = lab("have"); lp = lab("poll")
        if fin: A(f"s_cmp_eq_u32 {sTOT}, {sN}"); A(f"s_cbranch_scc1 {fin}")
        if kend: A(f"s_cmp_ge_u32 {sN}, {sKE}"); A(f"s_cbranch_scc1 {kend}")
        A(f"s_cmp_gt_u32 {sKNOWN}, {sN}"); A(f"s_cbranch_scc1 {ok}")
        E.label(lp)
        A(f"ds_read_b128 {Q4(vAD[0])}, v{vFLG}")
        spin_guard()
        A("s_waitcnt lgkmcnt(0)")
        A(f"v_readfirstlane_b32 {sKNOWN}, v{vAD[0]}"); A(f"v_readfirstlane_b32 {sTOT}, v{vAD[1]}")
        A(f"v_readfirstlane_b32 {sKE}, v{vAD[2]}")
        if kend: A(f"s_cmp_ge_u32 {sN}, {sKE}"); A(f"s_cbranch_scc1 {kend}")
        if fin:
            nw = lab("nw")
            A(f"s_cmp_ge_u32 {sTOT}, {sWRM}"); A(f"s_cbranch_scc1 {nw}")
            A(f"s_mov_b32 {sWRM}, 0"); A(f"global_load_dword v{vX+2}, v{vX+3}, {pWS} {ldf}")
            E.label(nw)
            A(f"s_cmp_eq_u32 {sTOT}, {sN}"); A(f"s_cbranch_scc1 {fin}")
        A(f"s_cmp_gt_u32 {sKNOWN}, {sN}"); A(f"s_cbranch_scc1 {ok}")
        if nap or not fin: A("s_sleep 1")
        A(f"s_branch {lp}")
        E.label(ok)
    def poll(loads, tags, first_mask=None, issued=False):
        lp = lab("gpoll"); n = len(loads)
        chk = lab("gchk")
        if issued: A(f"s_branch {chk}")
        else:
            for i in range(n): A(f"s_mov_b64 {sCK[i]}, {first_mask[i] if first_mask else -1}")
        E.label(lp)
        for i,l in enumerate(loads):
            sk = lab("sk")
            A(f"s_mov_b64 exec, {sCK[i]}"); A(f"s_cbranch_execz {sk}"); A(l); E.label(sk)
        A("s_mov_b64 exec, -1")
        spin_guard()
        if issued: E.label(chk)
        A("s_waitcnt vmcnt(0)")
        for i in range(n):
            A(f"v_cmp_ne_u32 {sCK[i]}, {sTAG}, v{tags[i][0]}")
            for t in tags[i][1:]:
                A(f"v_cmp_ne_u32 vcc, {sTAG}, v{t}"); A(f"s_or_b64 {sCK[i]}, {sCK[i]}, vcc")
        A(f"s_or_b64 vcc, {sCK[0]}, {sCK[min(1,n-1)]}")
        for i in range(2, n): A(f"s_or_b64 vcc, vcc, {sCK[i]}")
        A(f"s_cbranch_scc1 {lp}")
    def layernorm(xr, f, lnbase, stride, mid=None):
        s1=vTM; t=vTM2; mu=vX; a=vX+2; b=vX+4
        for u in range(7): unpack(f+2*u, f+2*u+1, xr[u])
        A(f"v_pk_add_f32 {P(a)}, {P(f)}, {P(f+2)}"); A(f"v_pk_add_f32 {P(b)}, {P(f+4)}, {P(f+6)}")
        A(f"v_pk_add_f32 {P(a)}, {P(a)}, {P(f+8)}"); A(f"v_pk_add_f32 {P(b)}, {P(b)}, {P(f+10)}")
        A(f"v_pk_add_f32 {P(a)}, {P(a)}, {P(f+12)}"); A(f"v_pk_add_f32 {P(a)}, {P(a)}, {P(b)}")
        A(f"v_add_f32 v{s1}, v{a}, v{a+1}")
        red32 = [f"v_add_f32_dpp v{s1}, v{s1}, v{s1} row_ror:{k} row_mask:0xf bank_mask:0xf" for k in (8,4,2,1)]
        red32 += [f"v_mov_b32 v{t}, v{s1}", f"v_permlane16_swap_b32 v{s1}, v{t}", f"v_add_f32 v{s1}, v{s1}, v{t}"]
        for l in red32: A(l)
        A(f"v_mul_f32 v{mu}, {INV448:#x}, v{s1}")
        NEG = "op_sel_hi:[1,0] neg_lo:[0,1] neg_hi:[0,1]"
        A(f"v_pk_add_f32 {P(b)}, {P(f)}, {P(mu)} {NEG}")
        A(f"v_pk_mul_f32 {P(a)}, {P(b)}, {P(b)}")
        for u in range(1,7):
            A(f"v_pk_add_f32 {P(b)}, {P(f+2*u)}, {P(mu)} {NEG}")
            A(f"v_pk_fma_f32 {P(a)}, {P(b)}, {P(b)}, {P(a)}")
        A(f"v_add_f32 v{s1}, v{a}, v{a+1}")
        round_bf(mu, mu)
        fill = [f"v_pk_add_f32 {P(f+2*u)}, {P(f+2*u)}, {P(mu)} {NEG}" for u in range(7)] + [f"v_cvt_pk_bf16_f32 v{xr[u]}, v{f+2*u}, v{f+2*u+1}" for u in range(7)]
        for u in range(7): fill += [f"v_lshlrev_b32 v{f+2*u}, 16, v{xr[u]}", f"v_and_b32 v{f+2*u+1}, 0xffff0000, v{xr[u]}"]
        rb = [f"v_cvt_pk_bf16_f32 v{s1}, v{s1}, v{s1}", f"v_and_b32 v{s1}, 0xffff0000, v{s1}"]
        chain = red32 + [f"v_mul_f32 v{s1}, {INV448:#x}, v{s1}"] + rb + [f"v_add_f32 v{s1}, {EPS:#x}, v{s1}"] + rb + [f"v_sqrt_f32 v{s1}, v{s1}"] + rb + [f"v_rcp_f32 v{a}, v{s1}"]
        while chain or fill:
            for _ in range(2):
                if fill: A(fill.pop(0))
            if chain: A(chain.pop(0))
        if mid: mid()
        for u in range(7): A(f"v_pk_mul_f32 {P(f+2*u)}, {P(f+2*u)}, {P(a)} op_sel_hi:[1,0]")
        for u in range(7):
            A(f"v_cvt_pk_bf16_f32 v{xr[u]}, v{f+2*u}, v{f+2*u+1}")
            A(f"ds_write_b32 v{lnbase}, v{xr[u]} offset:{u*stride}")
    def ln_read_addr(rd, base):
        A(f"v_and_b32 v{rd}, 1, v{vLANE}"); A(f"v_mul_u32_u24 v{rd}, 896, v{rd}")
        A(f"v_lshl_add_u32 v{rd}, v{vG4}, 4, v{rd}"); A(f"v_add_u32 v{rd}, {base}, v{rd}")
    def tall_addr(dst):
        A(f"v_lshrrev_b32 v{vTM}, 3, v{vN}")
        A(f"v_and_b32 v{vTM2}, 1, v{vG4}"); A(f"v_lshl_or_b32 v{vTM}, v{vTM2}, 1, v{vTM}")
        A(f"v_xor_b32 v{vTM}, {sW}, v{vTM}"); A(f"v_lshlrev_b32 v{vTM}, 5, v{vTM}")
        A(f"v_and_b32 v{vTM2}, 3, v{vN}"); A(f"v_lshl_or_b32 v{vTM}, v{vTM2}, 3, v{vTM}")
        A(f"v_lshrrev_b32 v{vTM2}, 2, v{vN}"); A(f"v_lshl_or_b32 v{vTM}, v{vTM2}, 7, v{vTM}")
        A(f"v_lshl_or_b32 v{dst}, v{vG4}, 10, v{vTM}")
    def wide_addr(dst):
        A(f"v_lshrrev_b32 v{vTM}, 2, v{vN}"); A(f"v_lshl_add_u32 v{vTM}, v{vG4}, 2, v{vTM}"); A(f"v_mul_u32_u24 v{vTM}, 896, v{vTM}")
        A(f"v_and_b32 v{vTM2}, 3, v{vN}"); A(f"v_lshl_add_u32 v{vTM}, v{vTM2}, 3, v{vTM}")
        A(f"s_mul_i32 {sT0}, {sW}, 224"); A(f"v_add_u32 v{dst}, {sT0}, v{vTM}")
    def read_tall_tile(base, dstreg, t):
        wait_tile()
        A(f"v_add_u32 v{vAD[0]}, {sSLOT}, v{base}")
        for s in range(4 if t < 3 else 2):
            for h2 in range(2):
                A(f"ds_read_b64_tr_b16 {P(dstreg + 4*(4*t+s) + 2*h2)}, v{vAD[0]} offset:{s*4096+h2*512}")
        A("s_waitcnt lgkmcnt(0)")
        pub_cons()
    def read_wide_tile(base, dstreg, half):
        wait_tile()
        A(f"v_add_u32 v{vAD[0]}, {sSLOT}, v{base}")
        for tt in range(7): A(f"ds_read_b64_tr_b16 {P(dstreg + 4*tt + 2*half)}, v{vAD[0]} offset:{tt*32}")
        A("s_waitcnt lgkmcnt(0)")
        pub_cons()
    def basic_setup():
        A(f"s_sub_u32 {sW}, {sWAVE}, 1"); A(f"s_lshr_b32 {sB}, {sG}, 3"); A(f"s_and_b32 {sHKV}, {sG}, 7")
        A(f"v_and_b32 v{vN}, 15, v{vLANE}"); A(f"v_lshrrev_b32 v{vG4}, 4, v{vLANE}")
        A(f"s_lshl_b32 {sT0}, {sW}, 2"); A(f"s_add_u32 {sT0}, {sT0}, {L_CONS}"); A(f"v_mov_b32 v{vCONS}, {sT0}")
        A("s_mov_b32 s42, 0xffff0000"); A("s_mov_b32 s43, s42")

    if align: A(".p2align 12")
    E.label("L_qprod")
    f14 = vWO+8; vLR = vWO+25; vTA = vWO+26; vQA = vWO+27
    basic_setup()
    A(f"s_or_b32 {sT0}, {sROLE}, {sW}"); A(f"s_cmp_lg_u32 {sT0}, 0"); A("s_cbranch_scc1 L_noinit")
    A(f"s_lshl_b32 {sT0}, {sG}, 8"); A(f"s_add_u32 {sT0}, {sT0}, {WS_CNT}")
    A(f"v_mov_b32 v{vTM2}, {sT0}"); A(f"v_mov_b32 v{vTM3}, 0")
    A("s_mov_b64 exec, 1"); A(f"global_store_dword v{vTM2}, v{vTM3}, {pWS} {stf}"); A(f"global_store_dword v{vTM2}, v{vTM3}, {pWS} offset:128 {stf}"); A("s_mov_b64 exec, -1")
    E.label("L_noinit")
    A(f"v_add_u32 v{vLW1}, {L_LN}, v{vLW1}")
    ln_read_addr(vLR, L_LN)
    tall_addr(vTA)
    A(f"s_lshl_b32 {sT0}, {sB}, 2"); A(f"s_add_u32 {sT0}, {sT0}, {sROLE}"); A(f"s_lshl_b32 {sT0}, {sT0}, 2"); A(f"s_add_u32 {sT0}, {sT0}, {sW}")
    A(f"s_lshl_b32 {sT0}, {sT0}, 6"); A(f"s_lshl_b32 {sT1}, {sHKV}, 11"); A(f"s_add_u32 {sT0}, {sT0}, {sT1}"); A(f"s_add_u32 {sT0}, {sT0}, {WS_Q}")
    A(f"v_lshlrev_b32 v{vQA}, 2, v{vN}"); A(f"v_lshl_add_u32 v{vQA}, v{vG4}, 14, v{vQA}"); A(f"v_add_u32 v{vQA}, {sT0}, v{vQA}")
    if qtouch: touch_pad("q")
    A("s_waitcnt vmcnt(0) lgkmcnt(0)")
    stamp(12)
    layernorm(xr1, f14, vLW1, 128, mid=(lambda: pad("q")) if qtouch else None)
    make_tag(sTAG, sE); A(f"v_mov_b32 v{vX+1}, {sTAG}")
    A("s_waitcnt lgkmcnt(0)")
    stamp(13)
    for s in range(14): A(f"ds_read_b128 {Q4(vW2+4*s)}, v{vLR} offset:{s*64}")
    A(f"s_mov_b32 {sN}, 3"); wait_tile()
    stamp(14)
    for s in range(14):
        for h2 in range(2): A(f"ds_read_b64_tr_b16 {P(vW1 + 4*s + 2*h2)}, v{vTA} offset:{s*4096+h2*512}")
        if s % 4 == 3 or s == 13:
            A(f"s_waitcnt lgkmcnt(0)")
            for k in range(s - s % 4, s+1):
                A(f"v_mfma_f32_16x16x32_bf16 {Q4(vS)}, {Q4(vW2+4*k)}, {Q4(vW1+4*k)}, {'0' if k==0 else Q4(vS)}")
    A(f"s_mov_b32 {sSLOT}, {3*SLOT}"); pub_cons()
    A(f"v_cndmask_b32 v{vTM}, v{vS}, v{vS+1}, {sM1}")
    A(f"v_mov_b32_dpp v{vTM2}, v{vTM} quad_perm:[1,0,3,2] row_mask:0xf bank_mask:0xf")
    A(f"v_cvt_pk_bf16_f32 v{vX}, v{vTM}, v{vTM2}")
    A("s_mov_b64 exec, 0x55555555")
    A(f"global_store_dwordx2 v{vQA}, {P(vX)}, {pWS} {stf}")
    A("s_mov_b64 exec, -1")
    stamp(1)

    E.label("L_consumer")
    basic_setup()
    share_consts(3)
    A("s_mov_b32 s44, 0"); A("s_mov_b32 s45, -1"); A(f"s_mov_b32 {sC}, {C_SCALE:#x}"); A("s_mov_b32 s66, -1"); A("s_mov_b32 s67, 0"); A(f"s_mov_b32 {sTOT}, 0x7fffffff"); A(f"s_mov_b32 {sKE}, 0x7fffffff"); A(f"s_mov_b32 {sKNOWN}, 0")
    if hilo: A("s_mov_b32 s64, 0xcccccccc"); A("s_mov_b32 s65, 0xcccccccc")
    stamp(11)
    A(f"s_sub_u32 {sT0}, {sROLE}, 4"); A(f"s_lshl_b32 {sRR}, {sG}, 2"); A(f"s_add_u32 {sRR}, {sRR}, {sT0}")
    A(f"s_cmp_lt_u32 {sT0}, 4"); A(f"s_cselect_b32 {sRR}, {sRR}, 99"); A("s_cbranch_scc0 L_nox")
    A(f"s_bfe_u32 {sT0}, {sRR}, 0x20003"); A(f"s_mul_i32 {sCOL}, {sT0}, 224")
    A(f"s_bfe_u32 {sGP}, {sRR}, 0x20001"); A(f"s_lshl_b32 {sT0}, {sGP}, 6"); A(f"s_add_u32 {sCOL}, {sCOL}, {sT0}")
    A(f"s_and_b32 {sT0}, {sRR}, 1"); A(f"s_lshl_b32 {sT0}, {sT0}, 4"); A(f"s_add_u32 {sCOL}, {sCOL}, {sT0}")
    A(f"s_bfe_u32 {sT0}, {sRR}, 0x10005"); A(f"s_mul_i32 {sT0}, {sT0}, 896"); A(f"s_add_u32 {sCOL}, {sCOL}, {sT0}")
    A(f"v_and_b32 v{vTM}, 6, v{vLANE}"); A(f"v_lshl_add_u32 v{vTM}, v{vTM}, 1, {sCOL}")
    A(f"global_load_dword v{vXH}, v{vTM}, {pX}")
    A(f"v_mov_b32 v{vXH+1}, 0")
    A(f"s_cmp_eq_u32 {sGP}, 3"); A("s_cbranch_scc1 L_nox")
    A(f"global_load_dword v{vXH+1}, v{vTM}, {pX} offset:32")
    E.label("L_nox")
    A(f"v_xor_b32 v{vTM}, v{vG4}, v{vN}"); A(f"v_lshlrev_b32 v{vTM}, 4, v{vTM}"); A(f"v_lshl_or_b32 v{vTM}, v{vN}, 9, v{vTM}")
    for s in range(4): A(f"v_xor_b32 v{vKB[s]}, {s*64}, v{vTM}")
    A(f"v_lshrrev_b32 v{vTM}, 2, v{vN}"); A(f"v_lshl_add_u32 v{vTM}, v{vG4}, 2, v{vTM}")
    A(f"v_and_b32 v{vTM2}, 7, v{vTM}")
    A(f"s_lshl_b32 {sT0}, {sW}, 2"); A(f"v_xor_b32 v{vTM2}, {sT0}, v{vTM2}"); A(f"v_lshlrev_b32 v{vTM2}, 5, v{vTM2}")
    A(f"v_lshl_or_b32 v{vTM}, v{vTM}, 9, v{vTM2}")
    A(f"v_and_b32 v{vTM2}, 3, v{vN}"); A(f"v_lshl_or_b32 v{vTM}, v{vTM2}, 3, v{vTM}")
    for e in range(4): A(f"v_xor_b32 v{vVB[e]}, {e*32}, v{vTM}")
    A(f"v_mov_b32 v{vM}, 0xff800000"); A(f"v_mov_b32 v{vMC}, v{vM}"); A(f"v_mov_b32 v{vL}, 0")
    for i in range(16): A(f"v_mov_b32 v{vO+i}, 0")
    A(f"s_cmp_lt_u32 {sIDX}, 28"); A("s_cbranch_scc1 L_ffn_w")
    def vtile_read(dst):
        for e in range(4): A(f"v_add_u32 v{vAD[e]}, {sSLOT}, v{vVB[e]}")
        for e in range(4):
            for h2 in range(2): A(f"ds_read_b64_tr_b16 {P(dst + 4*e + 2*h2)}, v{vAD[e]} offset:{h2*8192}")
    for p in range(park):
        A(f"s_cmp_le_u32 {sPK}, {p}"); A("s_cbranch_scc1 L_ffn_w_done")
        wait_tile(); vtile_read(vW1+16*p); A("s_waitcnt lgkmcnt(0)"); pub_cons()
    E.label("L_ffn_w_done")
    A("s_waitcnt lgkmcnt(0)")
    make_tag(sTAG, sE)
    A(f"s_cmp_lg_u32 {sW}, 0"); A("s_cbranch_scc1 L_q_flag")
    if qwait:
        A(f"s_add_u32 {sN}, {sN}, {qwait-1}"); wait_tile(); A(f"s_sub_u32 {sN}, {sN}, {qwait-1}")
    A(f"s_lshl_b32 {sT0}, {sG}, 11"); A(f"s_add_u32 {sT0}, {sT0}, {WS_Q}")
    A(f"v_lshl_add_u32 v{vTM3}, v{vLANE}, 4, {sT0}")
    poll([f"global_load_dwordx4 {Q4(vF)}, v{vTM3}, {pWS} {ldf}", f"global_load_dwordx4 {Q4(vF+4)}, v{vTM3}, {pWS} offset:1024 {ldf}"],
         [[vF+1, vF+3], [vF+5, vF+7]])
    A(f"v_lshlrev_b32 v{vTM}, 3, v{vLANE}"); A(f"v_add_u32 v{vTM}, {L_QW}, v{vTM}"); A(f"v_mov_b32 v{vTM2}, 1")
    A(f"ds_write2_b32 v{vTM}, v{vF}, v{vF+2} offset0:0 offset1:1"); A(f"ds_write2_b32 v{vTM}, v{vF+4}, v{vF+6} offset0:128 offset1:129")
    one_lane(f"ds_write_b32 v{vFLG}, v{vTM2} offset:32")
    E.label("L_q_flag")
    A(f"ds_read_b32 v{vTM}, v{vFLG} offset:32")
    spin_guard()
    A("s_waitcnt lgkmcnt(0)")
    A(f"v_readfirstlane_b32 {sT0}, v{vTM}")
    A(f"s_cmp_eq_u32 {sT0}, 1"); A("s_cbranch_scc1 L_q_have")
    A("s_sleep 1"); A("s_branch L_q_flag")
    E.label("L_q_have")
    A(f"v_and_b32 v{vTM2}, 1, v{vLANE}"); A(f"v_lshlrev_b32 v{vTM2}, 9, v{vTM2}"); A(f"v_lshl_add_u32 v{vTM2}, v{vG4}, 4, v{vTM2}"); A(f"v_add_u32 v{vTM2}, {L_QW}, v{vTM2}")
    for s in range(8): A(f"ds_read_b128 {Q4(vQ+4*s)}, v{vTM2} offset:{s*64}")
    stamp(2)
    A("s_waitcnt lgkmcnt(0)")

    def qk(nt):
        for s in range(4): A(f"v_add_u32 v{vAD[s]}, {sSLOT}, v{vKB[s]}")
        seq = [(t,s) for s in range(8) for t in range(nt)]; n = len(seq)
        def kread(i):
            t,s = seq[i]; A(f"ds_read_b128 {Q4(vF + 4*(i % NF))}, v{vAD[s&3]} offset:{(s>>2)*256 + t*8192}")
        for i in range(NF): kread(i)
        for i in range(n):
            t,s = seq[i]
            A(f"s_waitcnt lgkmcnt({min(NF-1, n-1-i)})")
            d = Q4(vS+4*t)
            A(f"v_mfma_f32_16x16x32_bf16 {d}, {Q4(vF + 4*(i % NF))}, {Q4(vQ+4*s)}, {'0' if s==0 else d}")
            if i + NF < n: kread(i+NF)
    def probs(nt):
        n = 4*nt
        for i in range(n): A(f"v_fma_f32 v{vS+i}, v{vS+i}, {sC}, -v{vMC}")
        for i in range(n): A(f"v_exp_f32 v{vS+i}, v{vS+i}")
        for i in range(n//2): A(f"v_cvt_pk_bf16_f32 v{vP+i}, v{vS+2*i}, v{vS+2*i+1}")
        if hilo:
            for i in range(n//2):
                t = vF+16+2*(i&1)
                unpack(t, t+1, vP+i)
                A(f"v_pk_add_f32 {P(t)}, {P(vS+2*i)}, {P(t)} neg_lo:[0,1] neg_hi:[0,1]")
                A(f"v_cvt_pk_bf16_f32 v{t}, v{t}, v{t+1}")
                A(f"v_cndmask_b32 v{vP+i}, v{vP+i}, v{t}, s[64:65]")
    def softmax(nt, tag):
        n = 4*nt
        for i in range(n//2): unpack(vS+2*i, vS+2*i+1, vP+i)
        if nt == 2:
            A(f"v_max3_f32 v{vMX}, v{vS}, v{vS+1}, v{vS+2}"); A(f"v_max3_f32 v{vTM}, v{vS+3}, v{vS+4}, v{vS+5}")
            A(f"v_max3_f32 v{vMX}, v{vMX}, v{vS+6}, v{vS+7}"); A(f"v_max_f32 v{vMX}, v{vMX}, v{vTM}")
        else:
            A(f"v_max3_f32 v{vMX}, v{vS}, v{vS+1}, v{vS+2}"); A(f"v_max_f32 v{vMX}, v{vMX}, v{vS+3}")
        xrow("v_max_f32", [vMX], [vTM])
        A(f"v_cmp_gt_f32 vcc, v{vMX}, v{vM}")
        A("s_cmp_lg_u64 vcc, 0"); A(f"s_cbranch_scc1 L_rescale{tag}")
        E.label(f"L_rescaled{tag}")
        probs(nt)
    def add_l(nt):
        A(f"v_add_f32 v{vTM}, v{vS}, v{vS+1}"); A(f"v_add_f32 v{vMX}, v{vS+2}, v{vS+3}")
        if nt == 2:
            A(f"v_add_f32 v{vS+4}, v{vS+4}, v{vS+5}"); A(f"v_add_f32 v{vS+6}, v{vS+6}, v{vS+7}")
            A(f"v_add_f32 v{vTM}, v{vTM}, v{vS+4}"); A(f"v_add_f32 v{vMX}, v{vMX}, v{vS+6}")
        A(f"v_add_f32 v{vL}, v{vL}, v{vTM}"); A(f"v_add_f32 v{vL}, v{vL}, v{vMX}")
    def rescale(tag):
        E.label(f"L_rescale{tag}")
        A(f"v_max_f32 v{vM}, v{vM}, v{vMX}")
        A(f"v_mul_f32 v{vTM}, {sC}, v{vM}")
        A(f"v_sub_f32 v{vTM2}, v{vMC}, v{vTM}")
        A(f"v_mov_b32 v{vMC}, v{vTM}")
        A(f"v_exp_f32 v{vTM2}, v{vTM2}")
        A(f"v_mul_f32 v{vL}, v{vL}, v{vTM2}")
        A(f"v_mov_b32_dpp v{vTM}, v{vTM2} quad_perm:[0,0,2,2] row_mask:0xf bank_mask:0xf")
        A(f"v_mov_b32_dpp v{vTM3}, v{vTM2} quad_perm:[1,1,3,3] row_mask:0xf bank_mask:0xf")
        for i in range(16): A(f"v_mul_f32 v{vO+i}, v{vO+i}, v{vTM if i%2==0 else vTM3}")
        A(f"s_branch L_rescaled{tag}")
    vSA=107
    A(f"s_add_u32 {sN}, {sN}, {sW}"); A(f"s_lshl_b32 {sT0}, {sW}, 14"); A(f"s_add_u32 {sSLOT}, {sSLOT}, {sT0}")
    A(f"s_sub_u32 {sT0}, {sSLOT}, {RING}"); A(f"s_cselect_b32 {sSLOT}, {sSLOT}, {sT0}")
    A(f"v_and_b32 v{vSA}, 1, v{vLANE}"); A(f"v_lshlrev_b32 v{vSA}, 6, v{vSA}"); A(f"v_lshl_add_u32 v{vSA}, v{vG4}, 4, v{vSA}"); A(f"v_add_u32 v{vSA}, {L_SC}, v{vSA}")
    A(f"s_lshl_b32 {sT0}, {sW}, 7"); A(f"v_add_u32 v{vX}, {sT0}, v{vSA}")
    A(f"s_mov_b32 {sCI}, {sW}")
    A(f"s_lshl_b32 {sT0}, {sG}, 16"); A(f"s_add_u32 {sT0}, {sT0}, {WS_SC-L_SC}"); A(f"v_add_u32 v{vX+1}, {sT0}, v{vSA}")
    E.label("L_kloop")
    wait_tile(kend="L_kdone")
    A(f"s_lshr_b32 {sT0}, {sSLOT}, 12"); A(f"v_add_u32 v{vTM2}, {sT0}, v{vFLG}"); A(f"ds_read_b32 v{vTM3}, v{vTM2} offset:{L_IDX}")
    qk(2)
    A(f"s_add_u32 {sN}, {sN}, 4")
    A(f"s_add_u32 {sSLOT}, {sSLOT}, {4*SLOT}"); A(f"s_sub_u32 {sT0}, {sSLOT}, {RING}"); A(f"s_cselect_b32 {sSLOT}, {sSLOT}, {sT0}")
    for i in range(4): A(f"v_cvt_pk_bf16_f32 v{vP+i}, v{vS+2*i}, v{vS+2*i+1}")
    A(f"s_cmp_ge_u32 {sCI}, {sNS}"); A("s_cbranch_scc1 L_kpool")
    for i in range(4): A(f"v_max3_f32 v{vM}, v{vM}, v{vS+2*i}, v{vS+2*i+1}")
    A("s_mov_b32 exec_lo, 0x30003"); A("s_mov_b32 exec_hi, 0x30003"); A(f"ds_write_b128 v{vX}, {Q4(vP)}"); A("s_mov_b64 exec, -1")
    A(f"v_add_u32 v{vX}, 512, v{vX}")
    E.label("L_knext")
    A(f"s_add_u32 {sCI}, {sCI}, 4")
    A(f"v_mov_b32 v{vTM}, {sN}"); one_lane(f"ds_write_b32 v{vCONS}, v{vTM}")
    A("s_branch L_kloop")
    E.label("L_kpool")
    A(f"v_lshl_add_u32 v{vTM3}, v{vTM3}, 7, v{vX+1}")
    A("s_mov_b32 exec_lo, 0x30003"); A("s_mov_b32 exec_hi, 0x30003"); A(f"global_store_dwordx4 v{vTM3}, {Q4(vP)}, {pWS} {stf}"); A("s_mov_b64 exec, -1")
    A("s_branch L_knext")
    E.label("L_kdone")
    A(f"s_mov_b32 {sN}, {sKE}"); A(f"s_mov_b32 {sCI}, 0")
    A("s_waitcnt vmcnt(0)")
    xrow("v_max_f32", [vM], [vTM])
    A(f"s_lshl_b32 {sT0}, {sW}, 3"); A(f"s_add_u32 {sT0}, {sT0}, {L_MX}"); A(f"v_lshl_add_u32 v{vTM2}, v{vLANE}, 2, {sT0}")
    A("s_mov_b64 exec, 3"); A(f"ds_write_b32 v{vTM2}, v{vM}"); A("s_mov_b64 exec, -1")
    A(f"v_mov_b32 v{vTM}, {sN}"); A("s_mov_b64 exec, 1"); A(f"ds_write_b32 v{vCONS}, v{vTM}"); A(f"ds_write_b32 v{vCONS}, v{vTM} offset:{L_KD-16}"); A("s_mov_b64 exec, -1")
    A(f"s_mul_hi_u32 {sT0}, {sN}, {-(-(1<<32)//NSLOT)}"); A(f"s_mul_i32 {sT0}, {sT0}, {NSLOT}"); A(f"s_sub_u32 {sSLOT}, {sN}, {sT0}"); A(f"s_lshl_b32 {sSLOT}, {sSLOT}, 14")
    A(f"v_and_b32 v{vTM2}, 1, v{vLANE}"); A(f"v_lshlrev_b32 v{vTM2}, 2, v{vTM2}"); A(f"v_add_u32 v{vTM2}, {L_MX}, v{vTM2}")
    E.label("L_ksync")
    A(f"ds_read2_b32 {P(vAD[0])}, v{vFLG} offset0:{L_KD//4} offset1:{L_KD//4+1}"); A(f"ds_read2_b32 {P(vAD[2])}, v{vFLG} offset0:{L_KD//4+2} offset1:{L_KD//4+3}")
    A(f"ds_read2_b32 {P(vS)}, v{vTM2} offset0:0 offset1:2"); A(f"ds_read2_b32 {P(vS+2)}, v{vTM2} offset0:4 offset1:6")
    spin_guard()
    A("s_waitcnt lgkmcnt(0)")
    A(f"v_min3_u32 v{vAD[0]}, v{vAD[0]}, v{vAD[1]}, v{vAD[2]}"); A(f"v_min_u32 v{vAD[0]}, v{vAD[0]}, v{vAD[3]}")
    A(f"v_readfirstlane_b32 {sT0}, v{vAD[0]}")
    A(f"s_cmp_lt_u32 {sT0}, {sKE}"); A("s_cbranch_scc1 L_ksync")
    A(f"v_max3_f32 v{vM}, v{vS}, v{vS+1}, v{vS+2}"); A(f"v_max_f32 v{vM}, v{vM}, v{vS+3}")
    round_bf(vM, vM)
    A(f"v_mul_f32 v{vMC}, {sC}, v{vM}")
    A(f"s_cmp_lg_u32 {sW}, 0"); A("s_cbranch_scc1 L_loop")
    A(f"s_lshl_b32 {sT0}, {sWG}, 2"); A(f"s_add_u32 {sT0}, {sT0}, {WS_KF}"); A(f"v_mov_b32 v{vTM}, {sT0}"); A(f"v_mov_b32 v{vTM2}, {sTAG}")
    one_lane(f"global_store_dword v{vTM}, v{vTM2}, {pWS} {stf}")
    E.label("L_loop")
    A(f"ds_read_b128 {Q4(vP)}, v{vSA}")
    A(f"v_add_u32 v{vSA}, 128, v{vSA}")
    A("s_waitcnt lgkmcnt(0)")
    for i in range(4): unpack(vS+2*i, vS+2*i+1, vP+i)
    probs(2); add_l(2)
    A(f"s_cmp_lt_u32 {sCI}, {sPK}"); A("s_cbranch_scc1 L_pv_park")
    wait_tile()
    vtile_read(vF)
    for e in range(4):
        A(f"s_waitcnt lgkmcnt({6-2*e})")
        A(f"v_mfma_f32_16x16x32_bf16 {Q4(vO+4*e)}, {Q4(vP)}, {Q4(vF+4*e)}, {Q4(vO+4*e)}")
    pub_cons()
    E.label("L_pv_done")
    A(f"s_add_u32 {sCI}, {sCI}, 1")
    A(f"s_cmp_eq_u32 {sCI}, {okat}"); A("s_cbranch_scc1 L_okcheck")
    E.label("L_okdone")
    A(f"s_cmp_lt_u32 {sCI}, {sNS}"); A("s_cbranch_scc1 L_loop")
    if touch:
        for nm in ("fin","red","ffn","ffn2"): touch_pad(nm)
    if forcepar is None:
        A(f"v_mov_b32 v{vTM}, {WS_PAR}")
        poll([f"global_load_dwordx4 {Q4(vF)}, v{vTM}, {pWS} {ldf}"], [[vF+1, vF+3]])
        A(f"v_readfirstlane_b32 {sP0}, v{vF}"); A(f"v_readfirstlane_b32 {sP1}, v{vF+2}")
    else:
        A(f"s_mov_b32 {sP0}, {forcepar[0]*8192}"); A(f"s_mov_b32 {sP1}, {forcepar[1]*8192}")
    A(f"s_lshl_b32 {sT0}, {sG}, 2"); A(f"s_and_b32 {sT1}, {sW}, 1"); A(f"s_add_u32 {sT0}, {sT0}, {sT1}"); A(f"s_lshl_b32 {sT0}, {sT0}, 14")
    A(f"s_lshr_b32 {sT1}, {sW}, 1"); A(f"s_lshl_b32 {sT1}, {sT1}, 13"); A(f"s_xor_b32 {sT1}, {sT1}, {sP0}"); A(f"s_add_u32 {sT0}, {sT0}, {sT1}")
    A(f"s_lshl_b32 {sT1}, {sJ}, 8"); A(f"s_add_u32 {sT0}, {sT0}, {sT1}"); A(f"s_add_u32 {sT0}, {sT0}, {WS_A}")
    A(f"v_lshrrev_b32 v{vAA}, 1, v{vG4}"); A(f"v_lshlrev_b32 v{vAA}, 15, v{vAA}")
    A(f"v_and_b32 v{vTM}, 1, v{vG4}"); A(f"v_lshl_or_b32 v{vAA}, v{vTM}, 12, v{vAA}"); A(f"v_lshl_or_b32 v{vAA}, v{vN}, 4, v{vAA}")
    A(f"v_add_u32 v{vAA}, {sT0}, v{vAA}")
    A(f"s_lshr_b32 {sT0}, {sWG}, 3"); A(f"s_lshl_b32 {sT0}, {sT0}, 1"); A(f"s_bfe_u32 {sT1}, {sWG}, 0x10001"); A(f"s_add_u32 {sT0}, {sT0}, {sT1}"); A(f"s_lshl_b32 {sT0}, {sT0}, 14")
    A(f"s_bfe_u32 {sT1}, {sWG}, 0x10002"); A(f"s_lshl_b32 {sT1}, {sT1}, 13"); A(f"s_xor_b32 {sT1}, {sT1}, {sP0}"); A(f"s_add_u32 {sT0}, {sT0}, {sT1}")
    A(f"s_and_b32 {sT1}, {sWG}, 1"); A(f"s_lshl_b32 {sT1}, {sT1}, 12"); A(f"s_add_u32 {sT0}, {sT0}, {sT1}"); A(f"s_add_u32 {sT0}, {sT0}, {WS_A}")
    A(f"v_lshlrev_b32 v{vAI}, 4, v{vN}"); A(f"v_lshl_or_b32 v{vAI}, v{vG4}, 10, v{vAI}"); A(f"v_add_u32 v{vAI}, {sT0}, v{vAI}")
    A(f"v_lshl_add_u32 v{vX+3}, v{vLANE}, 6, {sT0}")
    A(f"s_cmp_eq_u32 {sW}, 0"); A(f"s_cselect_b32 {sWRM}, {0x7fffffff if awarm else 0}, 0")
    A(f"s_cmp_ge_u32 {sRR}, 64"); A(f"s_cbranch_scc1 L_nored"); A(f"s_sub_u32 {sT0}, {sW}, 1"); A(f"s_cmp_ge_u32 {sT0}, 2"); A(f"s_cbranch_scc1 L_nored")
    A(f"s_lshl_b32 {sT0}, {sT0}, 14"); A(f"s_lshl_b32 {sT1}, {sRR}, 15"); A(f"s_add_u32 {sT0}, {sT0}, {sT1}"); A(f"s_add_u32 {sT0}, {sT0}, {sP1}"); A(f"s_add_u32 {sT0}, {sT0}, {WS_B}")
    A(f"v_lshl_add_u32 v{vX+3}, v{vLANE}, 7, {sT0}"); A(f"s_mov_b32 {sWRM}, {[0,0x7fffffff,1,2][bwarm]}")
    if bwarm == 3: A(f"global_load_dword v{vX+2}, v{vX+3}, {pWS} {ldf}")
    E.label("L_nored")
    A(f"s_lshl_b32 {sT0}, {sB}, 2"); A(f"s_add_u32 {sT0}, {sT0}, {sW}"); A(f"s_lshl_b32 {sT0}, {sT0}, 18")
    A(f"s_bfe_u32 {sT1}, {sWG}, 0x10006"); A(f"s_lshl_b32 {sT1}, {sT1}, 14"); A(f"s_add_u32 {sT0}, {sT0}, {sT1}"); A(f"s_add_u32 {sT0}, {sT0}, {sP1}")
    A(f"s_and_b32 {sT1}, {sWG}, 63"); A(f"s_lshl_b32 {sT1}, {sT1}, 7"); A(f"s_add_u32 {sT0}, {sT0}, {sT1}"); A(f"s_add_u32 {sT0}, {sT0}, {WS_B}")
    A(f"v_lshrrev_b32 v{vTM}, 3, v{vLANE}"); A(f"v_lshlrev_b32 v{vTM}, 15, v{vTM}")
    A(f"v_and_b32 v{vTM2}, 7, v{vLANE}"); A(f"v_lshl_or_b32 v{vBA}, v{vTM2}, 4, v{vTM}"); A(f"v_add_u32 v{vBA}, {sT0}, v{vBA}")
    A(f"v_and_b32 v{vSA}, 1, v{vLANE}"); A(f"v_lshlrev_b32 v{vSA}, 6, v{vSA}"); A(f"v_lshl_add_u32 v{vSA}, v{vG4}, 4, v{vSA}"); A(f"v_add_u32 v{vSA}, {L_SV}, v{vSA}")
    E.label("L_mini")
    wait_tile("L_fin")
    A(f"s_lshr_b32 {sT0}, {sSLOT}, 7"); A(f"v_add_u32 v{vTM}, {sT0}, v{vSA}"); A(f"ds_read_b128 {Q4(vP)}, v{vTM}")
    vtile_read(vF)
    A("s_waitcnt lgkmcnt(8)")
    softmax(2, "b")
    for e in range(4):
        A(f"s_waitcnt lgkmcnt(0)" if e == 0 else "")
        A(f"v_mfma_f32_16x16x32_bf16 {Q4(vO+4*e)}, {Q4(vP)}, {Q4(vF+4*e)}, {Q4(vO+4*e)}")
    add_l(2)
    slot_advance()
    A(f"s_cmp_eq_u32 {sN}, {sTOT}"); A("s_cbranch_scc1 L_fin")
    A(f"v_mov_b32 v{vTM}, {sN}"); one_lane(f"ds_write_b32 v{vCONS}, v{vTM}")
    A("s_branch L_mini")
    rescale("b")
    E.label("L_okcheck")
    A(f"s_cmp_lg_u32 {sW}, 0"); A("s_cbranch_scc1 L_okdone")
    A(f"s_lshl_b32 {sT0}, {sG}, 6"); A(f"s_add_u32 {sT0}, {sT0}, {WS_KF}"); A(f"v_lshl_add_u32 v{vTM3}, v{vN}, 2, {sT0}")
    poll([f"global_load_dword v{vTM2}, v{vTM3}, {pWS} {ldf}"], [[vTM2]])
    A(f"v_mov_b32 v{vTM}, 1"); one_lane(f"ds_write_b32 v{vFLG}, v{vTM} offset:{L_OK}")
    A("s_branch L_okdone")
    E.label("L_pv_park")
    for p in range(park):
        if p < park-1: nx = lab("pk"); A(f"s_cmp_lg_u32 {sCI}, {p}"); A(f"s_cbranch_scc1 {nx}")
        for e in range(4): A(f"v_mfma_f32_16x16x32_bf16 {Q4(vO+4*e)}, {Q4(vP)}, {Q4(vW1+16*p+4*e)}, {Q4(vO+4*e)}")
        A("s_branch L_pv_done")
        if p < park-1: E.label(nx)

    vG=vF; vI=vF+4; sa=vS; sb=vS+1; sw=vS+2
    vA=vQ; vOPR=vQ+4; vOPW=vQ+5; vR0=vQ+6; vR1=vQ+7; vR2=vQ+8; vR3=vQ+9; vR4=vQ+10; vR5=vQ+11; vZ=vQ+12
    E.label("L_ffn_addr")
    A(f"v_lshrrev_b32 v{vTM}, 3, v{vLANE}"); A(f"v_and_b32 v{vTM2}, 7, v{vLANE}")
    A(f"v_lshlrev_b32 v{vR0}, 9, v{vTM}"); A(f"v_lshl_or_b32 v{vR0}, v{vTM2}, 4, v{vR0}"); A(f"s_add_u32 {sT0}, {sP0}, {WS_H}"); A(f"v_add_u32 v{vR0}, {sT0}, v{vR0}")
    A(f"v_mul_u32_u24 v{vR1}, 224, v{vTM}"); A(f"v_lshl_add_u32 v{vR1}, v{vTM2}, 2, v{vR1}"); A(f"v_add_u32 v{vR1}, {L_LN}, v{vR1}")
    ln_read_addr(vR2, L_LN)
    A(f"s_lshl_b32 {sT0}, {sW}, 5"); A(f"s_add_u32 {sT0}, {sT0}, {L_ACT}")
    A(f"v_lshlrev_b32 v{vR3}, 7, v{vG4}"); A(f"v_lshl_add_u32 v{vR3}, v{vN}, 1, v{vR3}"); A(f"v_add_u32 v{vR3}, {sT0}, v{vR3}")
    A(f"v_and_b32 v{vR4}, 1, v{vLANE}"); A(f"v_lshlrev_b32 v{vR4}, 7, v{vR4}"); A(f"v_lshl_add_u32 v{vR4}, v{vG4}, 3, v{vR4}"); A(f"v_add_u32 v{vR4}, {L_ACT}, v{vR4}")
    A(f"s_lshl_b32 {sT0}, {sW}, 16"); A(f"s_lshl_b32 {sT1}, {sIDX}, 7"); A(f"s_add_u32 {sT0}, {sT0}, {sT1}"); A(f"s_add_u32 {sT0}, {sT0}, {sP0}"); A(f"s_add_u32 {sT0}, {sT0}, {WS_D}")
    A(f"v_lshrrev_b32 v{vTM}, 3, v{vN}"); A(f"v_lshlrev_b32 v{vTM}, 12, v{vTM}"); A(f"v_lshl_or_b32 v{vTM}, v{vG4}, 14, v{vTM}")
    A(f"v_lshl_or_b32 v{vTM}, v{vTM2}, 4, v{vTM}"); A(f"v_add_u32 v{vR5}, {sT0}, v{vTM}")
    A("s_branch L_addr_done")
    if align: A(".p2align 12")
    if touch: E.label("L_pad_fin"); A("s_branch L_ret_fin")
    E.label("L_fin")
    stamp(3)
    yreg = [vO, vO+4, vO+8, vO+12, vQ+16, vQ+20, vQ+24]
    xrow("v_add_f32", [vL], [vTM])
    if hilo:
        for e in range(4): A(f"v_pk_add_f32 {P(vO+4*e)}, {P(vO+4*e)}, {P(vO+4*e+2)}")
    A(f"v_log_f32 v{vTM2}, v{vL}"); A(f"v_rcp_f32 v{vTM3}, v{vL}")
    A(f"v_mov_b32 v{vG+3}, {sTAG}")
    A(f"v_add_f32 v{vTM2}, v{vMC}, v{vTM2}")
    SEL4(vG, vO+0, vO+8, vO+1, vO+9, vMX)
    A(f"v_mov_b32_dpp v{vTM}, v{vTM3} quad_perm:[0,0,2,2] row_mask:0x3 bank_mask:0xf")
    A(f"v_mov_b32_dpp v{vG+2}, v{vTM2} quad_perm:[0,0,2,2] row_mask:0x3 bank_mask:0xf")
    SEL4(vG+1, vO+4, vO+12, vO+5, vO+13, vMX)
    A(f"v_mov_b32_dpp v{vTM}, v{vTM3} quad_perm:[1,1,3,3] row_mask:0xc bank_mask:0xf")
    A(f"v_mov_b32_dpp v{vG+2}, v{vTM2} quad_perm:[1,1,3,3] row_mask:0xc bank_mask:0xf")
    A(f"v_mul_f32 v{vG}, v{vG}, v{vTM}"); A(f"v_mul_f32 v{vG+1}, v{vG+1}, v{vTM}")
    A(f"global_store_dwordx4 v{vAA}, {Q4(vG)}, {pWS} {stf}")
    stamp(4)
    if bwarm == 2:
        A(f"s_cmp_lg_u32 {sWRM}, 1"); A("s_cbranch_scc1 L_nobw")
        A(f"global_load_dword v{vX+2}, v{vX+3}, {pWS} {ldf}")
        E.label("L_nobw")
    A(f"v_lshlrev_b32 v{vOPR}, 3, v{vG4}"); A(f"v_add_u32 v{vOPR}, {L_OP}, v{vOPR}")
    A(f"v_lshlrev_b32 v{vOPW}, 1, v{vN}"); A(f"v_add_u32 v{vOPW}, {L_OP}, v{vOPW}")
    A(f"v_mov_b32 v{vZ}, 0")
    A(f"s_cmp_lt_u32 {sIDX}, 28"); A("s_cbranch_scc1 L_ffn_addr")
    A(f"s_cmp_ge_u32 {sRR}, 64"); A("s_cbranch_scc1 L_addr_done")
    A(f"s_lshl_b32 {sT0}, {sRR}, 15"); A(f"s_lshr_b32 {sT1}, {sW}, 1"); A(f"s_lshl_b32 {sT1}, {sT1}, 14"); A(f"s_add_u32 {sT0}, {sT0}, {sT1}")
    A(f"s_and_b32 {sT1}, {sW}, 1"); A(f"s_lshl_b32 {sT1}, {sT1}, 12"); A(f"s_add_u32 {sT0}, {sT0}, {sT1}"); A(f"s_add_u32 {sT0}, {sT0}, {sP1}"); A(f"s_add_u32 {sT0}, {sT0}, {WS_B}")
    A(f"v_lshl_add_u32 v{vR0}, v{vLANE}, 4, {sT0}")
    A(f"s_lshl_b32 {sT0}, {sW}, 6"); A(f"s_add_u32 {sT0}, {sT0}, {L_RED}")
    A(f"v_and_b32 v{vTM}, 7, v{vLANE}"); A(f"v_lshl_add_u32 v{vR1}, v{vTM}, 2, {sT0}")
    A(f"v_and_b32 v{vTM}, 6, v{vLANE}"); A(f"v_lshlrev_b32 v{vR2}, 2, v{vTM}"); A(f"v_add_u32 v{vR2}, {L_RED}, v{vR2}")
    A(f"s_lshl_b32 {sT0}, {sRR}, 6"); A(f"s_add_u32 {sT0}, {sT0}, {sP0}"); A(f"s_add_u32 {sT0}, {sT0}, {WS_H}"); A(f"v_lshl_add_u32 v{vR3}, v{vTM}, 3, {sT0}")
    A(f"s_lshr_b32 {sT0}, {sRR}, 1"); A(f"s_lshl_b32 {sT0}, {sT0}, 14"); A(f"s_and_b32 {sT1}, {sRR}, 1"); A(f"s_lshl_b32 {sT1}, {sT1}, 12"); A(f"s_add_u32 {sT0}, {sT0}, {sT1}")
    A(f"s_add_u32 {sT0}, {sT0}, {sP0}"); A(f"s_add_u32 {sT0}, {sT0}, {WS_D}"); A(f"v_lshl_add_u32 v{vR4}, v{vLANE}, 4, {sT0}")
    A(f"v_lshl_add_u32 v{vR5}, v{vTM}, 1, {sCOL}")
    E.label("L_addr_done")
    aloads = [f"global_load_dwordx4 {Q4(vI+4*i)}, v{vAI}, {pWS} offset:{i*256} {ldf}" for i in range(4)]
    A(f"s_cmp_lg_u32 {sW}, 0"); A("s_cbranch_scc1 L_a_nopoll")
    for l in aloads: A(l)
    E.label("L_a_nopoll")
    wide_addr(vX)
    for h in range(2): read_wide_tile(vX, vWO, h)
    A(f"s_cmp_lg_u32 {sW}, 0"); A("s_cbranch_scc1 L_a_join")
    poll(aloads, [[vI+4*i+3] for i in range(4)], issued=True)
    stamp(5)
    A(f"v_max3_f32 v{vMX}, v{vI+2}, v{vI+6}, v{vI+10}"); A(f"v_max_f32 v{vMX}, v{vMX}, v{vI+14}")
    xrow("v_max_f32", [vMX], [vTM])
    for i in range(4): A(f"v_sub_f32 v{vI+4*i+2}, v{vI+4*i+2}, v{vMX}")
    for i in range(4): A(f"v_exp_f32 v{vI+4*i+2}, v{vI+4*i+2}")
    A(f"v_mul_f32 v{sa}, v{vI}, v{vI+2}"); A(f"v_mul_f32 v{sb}, v{vI+1}, v{vI+2}"); A(f"v_add_f32 v{sw}, v{vI+2}, v{vI+6}")
    for i in range(1,4):
        A(f"v_fmac_f32 v{sa}, v{vI+4*i}, v{vI+4*i+2}"); A(f"v_fmac_f32 v{sb}, v{vI+4*i+1}, v{vI+4*i+2}")
        if i > 1: A(f"v_add_f32 v{sw}, v{sw}, v{vI+4*i+2}")
    xrow("v_add_f32", [sw, sa, sb], [vS+3, vS+4, vS+5])
    A(f"v_rcp_f32 v{sw}, v{sw}")
    A(f"v_mul_f32 v{sa}, v{sa}, v{sw}"); A(f"v_mul_f32 v{sb}, v{sb}, v{sw}")
    A(f"v_mov_b32_dpp v{vS+3}, v{sa} quad_perm:[1,0,3,2] row_mask:0xf bank_mask:0xf")
    A(f"v_mov_b32_dpp v{vS+4}, v{sb} quad_perm:[1,0,3,2] row_mask:0xf bank_mask:0xf")
    A(f"v_cvt_pk_bf16_f32 v{sa}, v{sa}, v{vS+3}"); A(f"v_cvt_pk_bf16_f32 v{sb}, v{sb}, v{vS+4}")
    A("s_mov_b64 exec, 0x5555"); A(f"ds_write2_b32 v{vOPW}, v{sa}, v{sb} offset0:0 offset1:8"); A("s_mov_b64 exec, -1")
    A("s_waitcnt lgkmcnt(0)")
    E.label("L_a_join")
    A("s_barrier")
    A(f"ds_read2_b64 {Q4(vA)}, v{vOPR} offset0:0 offset1:4")
    A(f"v_mov_b32 v{vG+1}, {sTAG}")
    A("s_waitcnt lgkmcnt(0)")
    for t in (0,2,4,6,1,3,5):
        A(f"v_mfma_f32_16x16x32_bf16 {Q4(yreg[t])}, {Q4(vA)}, {Q4(vWO+4*t)}, 0")
    SEL4(vG, yreg[0], yreg[2], yreg[4], yreg[6], vMX)
    SEL4(vG+2, yreg[1], yreg[3], yreg[5], vZ, vTM)
    A(f"global_store_dwordx4 v{vBA}, {Q4(vG)}, {pWS} {stf}")
    stamp(6)
    A(f"s_cmp_lt_u32 {sIDX}, 28"); A("s_cbranch_scc1 L_ffn")
    A(f"s_cmp_ge_u32 {sRR}, 64"); A("s_cbranch_scc1 L_done")
    def inbox(addr): return [f"global_load_dwordx4 {Q4(vI+4*i)}, v{addr}, {pWS} offset:{i*1024} {ldf}" for i in range(4)]
    tags2 = [[vI+4*i+3] if onetag else [vI+4*i+1, vI+4*i+3] for i in range(4)]
    def sum_inbox():
        A(f"v_add_f32 v{sa}, v{vI}, v{vI+4}"); A(f"v_add_f32 v{sb}, v{vI+2}, v{vI+6}")
        A(f"v_add_f32 v{vS+2}, v{vI+8}, v{vI+12}"); A(f"v_add_f32 v{vS+3}, v{vI+10}, v{vI+14}")
        A(f"v_add_f32 v{sa}, v{sa}, v{vS+2}"); A(f"v_add_f32 v{sb}, v{sb}, v{vS+3}")
        A(f"v_add_f32_dpp v{sa}, v{sa}, v{sa} row_ror:8 row_mask:0xf bank_mask:0xf")
        A(f"v_add_f32_dpp v{sb}, v{sb}, v{sb} row_ror:8 row_mask:0xf bank_mask:0xf")
        xrow("v_add_f32", [sa, sb], [vS+2, vS+3])
    vXF = vO
    unpack(vXF, vXF+1, vXH); unpack(vXF+2, vXF+3, vXH+1)
    if touch: pad("red")
    poll(inbox(vR0), tags2)
    stamp(7)
    sum_inbox()
    A("s_mov_b64 exec, 0xff"); A(f"ds_write2_b32 v{vR1}, v{sa}, v{sb} offset0:0 offset1:8"); A("s_mov_b64 exec, -1")
    A("s_waitcnt lgkmcnt(0)"); A("s_barrier")
    A(f"s_cmp_lg_u32 {sW}, 0"); A("s_cbranch_scc1 L_done")
    for i in range(4): A(f"ds_read2_b64 {Q4(vI+4*i)}, v{vR2} offset0:{i*8} offset1:{i*8+4}")
    def add_resid(y, dst):
        A(f"v_cvt_pk_bf16_f32 v{dst}, v{y}, v{y+1}"); A(f"v_cvt_pk_bf16_f32 v{dst+2}, v{y+2}, v{y+3}")
        unpack(y, y+1, dst); unpack(y+2, y+3, dst+2)
        A(f"v_pk_add_f32 {P(y)}, {P(y)}, {P(vXF)}"); A(f"v_pk_add_f32 {P(y+2)}, {P(y+2)}, {P(vXF+2)}")
        A(f"v_cvt_pk_bf16_f32 v{dst}, v{y}, v{y+1}"); A(f"v_cvt_pk_bf16_f32 v{dst+2}, v{y+2}, v{y+3}")
    A("s_waitcnt lgkmcnt(2)")
    A(f"v_pk_add_f32 {P(vI)}, {P(vI)}, {P(vI+4)}"); A(f"v_pk_add_f32 {P(vI+2)}, {P(vI+2)}, {P(vI+6)}")
    A("s_waitcnt lgkmcnt(0)")
    A(f"v_pk_add_f32 {P(vI+8)}, {P(vI+8)}, {P(vI+12)}"); A(f"v_pk_add_f32 {P(vI+10)}, {P(vI+10)}, {P(vI+14)}")
    A(f"v_pk_add_f32 {P(vI)}, {P(vI)}, {P(vI+8)}"); A(f"v_pk_add_f32 {P(vI+2)}, {P(vI+2)}, {P(vI+10)}")
    add_resid(vI, vG)
    A("s_mov_b64 exec, 0x55"); A(f"global_store_dwordx4 v{vR3}, {Q4(vG)}, {pWS} {stf}"); A("s_mov_b64 exec, -1")
    stamp(8)
    unpack(vXF, vXF+1, vG); unpack(vXF+2, vXF+3, vG+2)
    A(f"v_mov_b32 v{vI+12}, 0"); A(f"v_mov_b32 v{vI+13}, {sTAG}"); A(f"v_mov_b32 v{vI+14}, 0"); A(f"v_mov_b32 v{vI+15}, {sTAG}")
    poll(inbox(vR4), tags2, first_mask=[-1,-1,-1,"s[66:67]"])
    stamp(9)
    sum_inbox()
    A(f"v_mov_b32_dpp v{vI}, v{sa} quad_perm:[0,0,2,2] row_mask:0xf bank_mask:0xf"); A(f"v_mov_b32_dpp v{vI+1}, v{sa} quad_perm:[1,1,3,3] row_mask:0xf bank_mask:0xf")
    A(f"v_mov_b32_dpp v{vI+2}, v{sb} quad_perm:[0,0,2,2] row_mask:0xf bank_mask:0xf"); A(f"v_mov_b32_dpp v{vI+3}, v{sb} quad_perm:[1,1,3,3] row_mask:0xf bank_mask:0xf")
    add_resid(vI, vI+4)
    A("s_mov_b64 exec, 0x55"); A(f"global_store_dword v{vR5}, v{vI+4}, {pOUT} {outf}")
    A(f"s_cmp_eq_u32 {sGP}, 3"); A("s_cbranch_scc1 L_done")
    A(f"global_store_dword v{vR5}, v{vI+6}, {pOUT} offset:32 {outf}")
    A(f"s_cmp_lg_u32 {sRR}, 0"); A("s_cbranch_scc1 L_done")
    A(f"s_add_u32 {sT0}, {sE}, 1"); A(f"v_mov_b32 v{vTM2}, {sT0}"); A(f"v_mov_b32 v{vTM3}, {WS_E}")
    A("s_mov_b64 exec, 1"); A(f"global_store_dword v{vTM3}, v{vTM2}, {pWS} {stf}")
    if enc:
        A("s_memrealtime s[90:91]"); A("s_waitcnt lgkmcnt(0)")
        A(f"s_sub_u32 {sT0}, s{70+2*enc[1]}, s{70+2*enc[0]}"); A(f"s_lshl_b32 {sT0}, {sT0}, 2"); A(f"s_min_u32 {sT0}, {sT0}, 100000")
        E.label("L_enc")
        A("s_memrealtime s[94:95]"); A("s_waitcnt lgkmcnt(0)")
        A(f"s_sub_u32 {sT1}, s94, s90"); A(f"s_cmp_lt_u32 {sT1}, {sT0}"); A("s_cbranch_scc1 L_enc")
    A("s_branch L_done")
    if touch: E.label("L_pad_ffn"); A("s_branch L_ret_ffn")
    E.label("L_ffn")
    A(f"s_cmp_lg_u32 {sW}, 0"); A("s_cbranch_scc1 L_c_join")
    poll([f"global_load_dwordx4 {Q4(vI+4*u)}, v{vR0}, {pWS} offset:{u*128} {ldf}" for u in range(4)], tags2)
    stamp(7)
    layernorm([vI+2*u for u in range(7)], vO, vR1, 32, mid=(lambda: pad("ffn2")) if touch else None)
    A("s_waitcnt lgkmcnt(0)")
    E.label("L_c_join")
    A("s_barrier")
    def aread(i): A(f"ds_read_b128 {Q4(vF + 4*(i % NF))}, v{vR2} offset:{i*64}")
    for i in range(NF): aread(i)
    for i in range(14):
        A(f"s_waitcnt lgkmcnt({min(NF-1, 13-i)})")
        A(f"v_mfma_f32_16x16x32_bf16 {Q4(vS)}, {Q4(vF + 4*(i % NF))}, {Q4(vW1+4*i)}, {'0' if i==0 else Q4(vS)}")
        if i + NF < 14: aread(i+NF)
    for b in range(2): A(f"v_mov_b32 v{vO+4*b+1}, {sTAG}"); A(f"v_mov_b32 v{vO+4*b+3}, {sTAG}")
    A(f"v_add_u32 v{vR0}, {16*16384}, v{vR5}")
    A(f"v_cndmask_b32 v{vTM}, v{vS}, v{vS+1}, {sM1}")
    round_bf(vTM, vTM)
    A(f"v_mul_f32 v{vTM2}, {(LOG2E | 0x80000000):#x}, v{vTM}")
    A(f"v_exp_f32 v{vTM2}, v{vTM2}")
    A(f"v_add_f32 v{vTM2}, 1.0, v{vTM2}")
    A(f"v_rcp_f32 v{vTM2}, v{vTM2}")
    A(f"v_mul_f32 v{vTM}, v{vTM}, v{vTM2}")
    A(f"v_cvt_pk_bf16_f32 v{vTM}, v{vTM}, v{vTM}")
    A("s_mov_b32 exec_hi, 0"); A(f"ds_write_b16 v{vR3}, v{vTM}"); A("s_mov_b32 exec_hi, -1")
    A("s_waitcnt lgkmcnt(0)"); A("s_barrier")
    for ks in range(2): A(f"ds_read2_b64 {Q4(vF+4*ks)}, v{vR4} offset0:{ks*8} offset1:{ks*8+4}")
    zreg = [vW1+4*t for t in range(7)]
    for ks in range(2):
        A(f"s_waitcnt lgkmcnt({1-ks})")
        for t in (0,2,4,6,1,3,5):
            A(f"v_mfma_f32_16x16x32_bf16 {Q4(zreg[t])}, {Q4(vF+4*ks)}, {Q4(vW2+28*ks+4*t)}, {'0' if ks==0 else Q4(zreg[t])}")
    for b in range(2): SEL4(vO+4*b, zreg[0]+b, zreg[2]+b, zreg[4]+b, zreg[6]+b, vMX)
    for b in range(2):
        SEL4(vO+4*b+2, zreg[1]+b, zreg[3]+b, zreg[5]+b, vZ, vMX)
        A(f"global_store_dwordx4 v{vR5 if b == 0 else vR0}, {Q4(vO+4*b)}, {pWS} {stf}")
    stamp(8)
    E.label("L_done")
    if diag:
        stamp(10)
        A("s_mov_b64 exec, -1")
        A(f"s_lshl_b32 {sT0}, {sWG}, 2"); A(f"s_add_u32 {sT0}, {sT0}, {sW}"); A(f"s_lshl_b32 {sT0}, {sT0}, 7"); A(f"s_add_u32 {sT0}, {sT0}, {WS_ST}")
        A("s_getreg_b32 s100, hwreg(HW_REG_XCC_ID)")
        A("s_waitcnt lgkmcnt(0)")
        A(f"v_mov_b32 v{vTM}, {sT0}")
        A("s_mov_b64 exec, 1")
        for k in range(11): A(f"v_mov_b32 v{vW1+k}, s{70+2*k}")
        A(f"v_mov_b32 v{vW1+11}, s100"); A(f"v_mov_b32 v{vW1+12}, {sN}"); A(f"v_mov_b32 v{vW1+13}, {sROLE}"); A(f"v_mov_b32 v{vW1+14}, {sWG}"); A(f"v_mov_b32 v{vW1+15}, {sIDX}")
        for k in range(4): A(f"v_mov_b32 v{vW1+16+k}, s{92+2*k}")
        for q in range(5): A(f"global_store_dwordx4 v{vTM}, {Q4(vW1+4*q)}, {pWS} offset:{q*16}")
    E.label("L_end")
    A("s_endpgm")

    E.label("L_ffn_w")
    wide_addr(vX); tall_addr(vX+1)
    for t in range(4): read_tall_tile(vX+1, vW1, t)
    for t in range(4): read_wide_tile(vX, vW2 + 28*(t>>1), t & 1)
    A("s_branch L_ffn_w_done")
    E.label("L_ld_ffn")
    A(f"s_mov_b64 s[52:53], s[{pK[0]}:{pK[1]}]"); A("s_mov_b32 s54, 0"); A("s_mov_b32 s55, 0x20000")
    tall_voffs(3584); A(f"v_lshlrev_b32 v{vLIN}, 4, v0")
    A(f"s_mov_b64 s[48:49], s[{pW1[0]}:{pW1[1]}]"); A(f"s_mov_b32 s50, {448*1792*2}")
    A(f"s_lshl_b32 {sBASE}, {sIDX}, 7")
    for t in range(4):
        if t % 2 == 0: freecheck(2)
        tile_tall(3584, t, 16 if t < 3 else 8)
    A(f"s_mov_b64 s[48:49], s[{pW2[0]}:{pW2[1]}]")
    A(f"s_mul_i32 {sBASE}, {sIDX}, {64*896}"); A(f"s_add_u32 {sT2}, {sN}, 4")
    E.label("L_ld_w2")
    freecheck(1)
    tile_wide()
    A(f"s_cmp_lt_u32 {sN}, {sT2}"); A("s_cbranch_scc1 L_ld_w2")
    A("s_branch L_ld_head_done")
    if forcepar is None:
        E.label("L_probe")
        A(f"s_load_dword s69, {pWS}, {WS_E}")
        A("v_and_b32 v32, 1, v0"); A("v_lshlrev_b32 v32, 13, v32"); A("v_lshrrev_b32 v33, 2, v0"); A("v_lshl_add_u32 v32, v33, 8, v32")
        A("v_bfe_u32 v33, v0, 1, 1"); A(f"v_mul_u32_u24 v33, {WS_B-WS_PRB}, v33"); A(f"v_add_u32 v32, v32, v33"); A(f"v_add_u32 v32, {WS_PRB}, v32")
        A("v_mov_b32 v36, 0"); A(f"s_mov_b32 {sCI}, {nprobe}")
        A(f"s_mov_b64 exec, {(1<<(4*nprobe))-1:#x}"); A(f"global_atomic_add v37, v32, v36, {pWS} sc0")
        A("s_mov_b64 exec, 1")
        for k,off in enumerate((WS_PRB, WS_PRB+8192, WS_B, WS_B+8192)):
            A(f"v_mov_b32 v{32+k}, {off}"); A(f"s_mov_b32 s{92+k}, {-1 if pmin else 0}")
        A("s_waitcnt vmcnt(0)")
        E.label("L_probe_loop")
        for k in range(4):
            A("s_memtime s[64:65]"); A("s_waitcnt lgkmcnt(0)")
            A(f"global_atomic_add v37, v{32+k}, v36, {pWS} sc0"); A("s_waitcnt vmcnt(0)")
            A("s_memtime s[66:67]"); A(f"v_add_u32 v{32+k}, 256, v{32+k}"); A("s_waitcnt lgkmcnt(0)")
            A("s_sub_u32 s66, s66, s64")
            if diag == 3:
                A(f"s_lshl_b32 {sT0}, {sCI}, 4"); A(f"s_add_u32 {sT0}, {sT0}, {WS_ST+0x50000+4*k}"); A(f"v_mov_b32 v38, {sT0}"); A("v_mov_b32 v39, s66")
                A(f"global_store_dword v38, v39, {pWS}")
            if pmin: A(f"s_min_u32 s{92+k}, s{92+k}, s66")
            else: A(f"s_min_u32 s66, s66, {clip}"); A(f"s_add_u32 s{92+k}, s{92+k}, s66")
        A(f"s_sub_u32 {sCI}, {sCI}, 1"); A(f"s_cmp_lg_u32 {sCI}, 0"); A("s_cbranch_scc1 L_probe_loop")
        A("s_cmp_gt_u32 s92, s93"); A(f"s_cselect_b32 {sT0}, 8192, 0")
        A("s_cmp_gt_u32 s94, s95"); A(f"s_cselect_b32 {sT1}, 8192, 0")
        make_tag(sT2, "s69")
        A(f"v_mov_b32 v32, {sT0}"); A(f"v_mov_b32 v33, {sT2}"); A(f"v_mov_b32 v34, {sT1}"); A(f"v_mov_b32 v35, {sT2}"); A(f"v_mov_b32 v36, {WS_PAR}")
        A(f"global_store_dwordx4 v36, v[32:35], {pWS} {stf}")
        A("s_mov_b64 exec, -1")
        A("s_branch L_ld_wo")

    body = E.finish()
    head = open("sequential_preLN__gqa_block_cached__dense_activation_silu__decode.s.ref").read().split("; Override launch")[0]
    src = head + f"""; Design (one persistent launch, 256 workgroups = one per CU, written by my own generator script):
;  * workgroup = (batch, kv head) group g = id>>4, split j = id&15.  Wave 0 streams K/V with LDS-DMA into a 9 x 16 KiB
;    LDS ring; waves 1-4 compute with MFMA.  Every split owns 64 tiles of 32 keys: first its K (scores to LDS, true
;    maximum), then its V (each wave 64 of the 256 dims).  The last tiles form a per-group pool handed out with atomic counters:
;    its K side at the end of the K pass (scores through d_ws), its V side at the very end (online softmax, true running maximum).
;  * q = LN(x) @ wq is computed by 64 workgroups and handed over in tagged granules; V tiles are parked in registers meanwhile.
;  * tail, four tagged hand-offs through d_ws: split combine + wo rows -> column sums + residual -> LN, w1, silu, w2 rows
;    -> column sums + residual.  bf16 roundings sit where the reference materialises bf16 tensors.
;  * tag = hash of an epoch word found in d_ws (advanced at the end): it only tells this launch's granules from older ones.
;  * one workgroup times a few zero-adds to learn which 8 KiB parity of the hand-off pages is close to the readers;
;    the answer and the role/id mapping only pick addresses (speed), never values.  All spins are bounded.
; @launch grid=(256,1,1) block=(320,1,1) lds={LDS}
.amdgcn_target "amdgcn-amd-amdhsa--gfx950"
.text
.globl {NAME}
{'.p2align 12' if align else ''}
.p2align 8
.type {NAME},@function
{NAME}:
{body}.section .rodata,"a"
.p2align 6
.amdhsa_kernel {NAME}
  .amdhsa_next_free_vgpr 256
  .amdhsa_next_free_sgpr 102
  .amdhsa_accum_offset 256
  .amdhsa_group_segment_fixed_size 0
  .amdhsa_kernarg_size 88
  .amdhsa_user_sgpr_count 2
  .amdhsa_user_sgpr_kernarg_segment_ptr 1
  .amdhsa_system_sgpr_workgroup_id_x 1
.end_amdhsa_kernel
"""
    return src, E.npad

if __name__ == "__main__":
    out = sys.argv[1]
    kw = json.loads(sys.argv[2]) if len(sys.argv) > 2 else {}
    src, npad = gen(**kw)
    open(out, "w").write(src)
    print("wrote", out, "lines", src.count("\n"), "pad states", npad)
```

```python
import sys, json, struct
from emit import Emitter

NAME = "sequential_preLN__gqa_block_cached__dense_activation_silu__decode_kernel"
def f2u(x): return struct.unpack("<I", struct.pack("<f", x))[0]

def gen(W=19, NS=58, NA=60, diag=False, hilo=True, spin=1<<20, enc=None, NF=5, ldst=None, qwait=2, forcepar=None, nprobe=3, clip=2000,
        touch=0, qtouch=1, lastfast=1, outf='sc1', onetag=1, nap=0, grp=4, align=1, park=4, ltouch=0, wpre=(2,4), awarm=1, bwarm=2, WD=None, jpos=(15,16,20,21), MAXA=24, front=1, pmin=1, enc5=0):
    E = Emitter(); A = E
    pol = "nt"; stf = ldf = "sc1"
    NSLOT = 9; SLOT = 16384; RING = NSLOT*SLOT; LDS = 163840
    L_FLAG = RING; L_CONS = RING+16; L_RED = RING+256; L_OP = RING+512; L_ACT = RING+768; L_QW = RING+1024; L_LN = RING+2048; L_SC = RING+4096; L_MX = RING+64; L_KD = 36
    WS_E = 0; WS_PAR = 0x800; WS_CNT = 0x1000; WS_H = 0x4000; WS_Q = 0x8000; WS_PRB = 0x10000; WS_D = 0x80000; WS_A = 0x100000; WS_B = 0x200000; WS_ST = 0x400000
    C_SCALE = f2u(1.4426950408889634/16.0); LOG2E = f2u(1.4426950408889634); INV448 = f2u(1.0/448.0); EPS = f2u(1e-5)
    PA = 16+16*(NA-NS); POOL = 32*(64-NA); PROBE = 15*16+3; assert (NS+MAXA)*128 <= 12288 and 16*MAXA >= PA
    assert 12 <= W <= 32 and NF <= 5
    sWG="s2"; sWAVE="s3"
    pX="s[4:5]"; pK=(6,7); pV=(8,9); pWQ=(10,11); pWO=(12,13); pW1=(16,17); pW2=(18,19); pOUT="s[20:21]"; pWS="s[24:25]"
    sG="s26"; sJ="s27"; sROLE="s28"; sN="s31"; sSLOT="s32"; sKNOWN="s33"; sT0="s34"; sT1="s35"; sT2="s36"
    sCI="s37"; sSPIN="s38"; sIDX="s39"; sNS="s63"; sPK="s68"
    vK=[4+i for i in range(8)]; vV=[12+i for i in range(4)]; vLIN=16; vT=[17,18]; vFL=21; vTMP=22; vC=24; vCA=28; vONE=29; vCL=[30,31]
    srdK="s[40:43]"; srdV="s[44:47]"; srdW="s[48:51]"; srdZ="s[52:55]"
    sCUR="s56"; sGB="s57"; sOFF="s58"; sCLM="s59"; sBASE="s61"; sFLOOR="s62"; sOWN="s60"; sVC="s64"; sK0="s66"
    sB="s29"; sHKV="s30"; sW="s40"; sTAG="s41"; sM1="s[42:43]"; sM2="s[44:45]"; sC="s46"; sE="s47"; sRR="s48"; sTOT="s49"
    sCK=["s[50:51]","s[52:53]","s[54:55]","s[56:57]"]; sCOL="s58"; sGP="s59"; sP0="s60"; sP1="s61"; sWRM="s62"; sKE="s69"; sN0="s101"
    vLANE=0; vN=1; vG4=2; vFLG=3; vCONS=4; vTM=5; vTM2=6; vTM3=7
    vM=8; vMC=9; vL=10; vMX=11
    vKB=[12,13,14,15]; vVB=[16,17,18,19]; vAD=[20,21,22,23]
    vS=24; vP=32; vO=36; vQ=52; vF=84; vAA=104; vAI=105; vBA=106
    vWO=108; vW1=136; vW2=192; vX=248; vXH=254
    xr1 = [vWO+u for u in range(7)]; vLW1 = vWO+24

    uid=[0]
    def lab(p): uid[0]+=1; return f"L_{p}_{uid[0]}"
    def P(r): return f"v[{r}:{r+1}]"
    def Q4(r): return f"v[{r}:{r+3}]"
    def stamp(k):
        if not diag and not (enc and k in (0, enc[0], enc[1])): return
        A(f"s_memrealtime s[{70+2*k}:{71+2*k}]")
    def slot_advance():
        A(f"s_add_u32 {sN}, {sN}, 1"); A(f"s_add_u32 {sSLOT}, {sSLOT}, {SLOT}")
        A(f"s_cmp_eq_u32 {sSLOT}, {RING}"); A(f"s_cselect_b32 {sSLOT}, 0, {sSLOT}")
    def spin_guard(): A(f"s_sub_u32 {sSPIN}, {sSPIN}, 1"); A("s_cbranch_scc1 L_end")
    def one_lane(ins): A("s_mov_b64 exec, 1"); A(ins); A("s_mov_b64 exec, -1")
    def share_consts(part=3):
        if part & 1:
            A(f"s_sub_u32 {sT0}, {sROLE}, 8"); A(f"s_lshl_b32 {sIDX}, {sG}, 1"); A(f"s_add_u32 {sIDX}, {sIDX}, {sT0}")
            A(f"s_cmp_lt_u32 {sT0}, 2"); A(f"s_cselect_b32 {sIDX}, {sIDX}, 99")
            A(f"s_cmp_lt_u32 {sROLE}, 4"); A(f"s_cselect_b32 {sPK}, {park//2}, {park}")
            A(f"s_cmp_lt_u32 {sIDX}, 28"); A(f"s_cselect_b32 {sPK}, 0, {sPK}"); A(f"s_cmp_eq_u32 {sIDX}, 30"); A(f"s_cselect_b32 {sPK}, 0, {sPK}")
        if part & 2:
            A(f"s_cmp_lt_u32 {sROLE}, 4"); A(f"s_cselect_b32 {sNS}, {NS-2}, {NS}")
            A(f"s_cmp_lt_u32 {sIDX}, 30"); A(f"s_cselect_b32 {sNS}, {NS-4}, {sNS}"); A(f"s_cmp_eq_u32 {sIDX}, 30"); A(f"s_cselect_b32 {sNS}, {NS-8}, {sNS}")
    def make_tag(dst, e): A(f"s_mul_i32 {dst}, {e}, 0x9e3779b1"); A(f"s_add_u32 {dst}, {dst}, 0x7f4a7c15")
    pads = []
    def pad(name):
        sk = lab("padskip"); A(f"s_branch {sk}"); E.label(f"L_pad_{name}"); A(f"s_branch L_ret_{name}"); E.label(sk)
    def touch_pad(name): A(f"s_branch L_pad_{name}"); E.label(f"L_ret_{name}")

    A(f"s_cmp_ge_u32 {sWG}, 256"); A("s_cbranch_scc1 L_end")
    stamp(0)
    A("s_load_dwordx16 s[4:19], s[0:1], 0"); A("s_load_dwordx4 s[20:23], s[0:1], 64"); A("s_load_dwordx2 s[24:25], s[0:1], 80")
    A("v_lshrrev_b32 v1, 6, v0"); A("v_and_b32 v0, 63, v0"); A(f"v_readfirstlane_b32 {sWAVE}, v1")
    A(f"s_lshr_b32 {sG}, {sWG}, 4"); A(f"s_and_b32 {sJ}, {sWG}, 15")
    A(f"s_lshr_b32 {sT0}, {sJ}, 1"); A(f"s_and_b32 {sT0}, {sT0}, 4"); A(f"s_and_b32 {sROLE}, {sJ}, 3"); A(f"s_add_u32 {sROLE}, {sROLE}, {sT0}")
    A(f"s_sub_u32 {sROLE}, {sROLE}, {sG}"); A(f"s_and_b32 {sROLE}, {sROLE}, 7")
    A(f"s_add_u32 {sT0}, {sROLE}, 4"); A(f"s_add_u32 {sT1}, {sROLE}, 8"); A(f"s_cmp_lt_u32 {sROLE}, 4"); A(f"s_cselect_b32 {sROLE}, {sROLE}, {sT1}")
    A(f"s_bitcmp1_b32 {sJ}, 2"); A(f"s_cselect_b32 {sROLE}, {sROLE}, {sT0}")
    A(f"s_mov_b32 {sN}, 0"); A(f"s_mov_b64 s[32:33], 0"); A(f"s_mov_b32 {sCI}, 0"); A(f"s_mov_b32 {sSPIN}, {spin}")
    A(f"v_mov_b32 v3, {L_FLAG}"); A(f"v_lshl_add_u32 v1, v0, 2, v3"); A("v_mov_b32 v2, 0")
    A("s_mov_b64 exec, 6"); A("v_bfrev_b32 v2, -2"); A("s_mov_b64 exec, 0x1fff"); A("ds_write_b32 v1, v2"); A("s_mov_b64 exec, -1")
    A(f"v_lshrrev_b32 v1, 5, v0"); A(f"v_mul_u32_u24 v1, 896, v1"); A(f"v_and_b32 v2, 31, v0"); A(f"v_lshl_add_u32 v{vLW1}, v2, 2, v1")
    A("s_waitcnt lgkmcnt(0)")
    A("s_barrier")
    A(f"s_cmp_eq_u32 {sWAVE}, 0"); A("s_cbranch_scc1 L_loader")
    A(f"s_load_dword {sE}, {pWS}, {WS_E}")
    A(f"s_cmp_ge_u32 {sROLE}, 4"); A("s_cbranch_scc1 L_consumer")
    for u in range(7): A(f"global_load_dword v{xr1[u]}, v{vLW1}, {pX} offset:{u*128}")
    A("s_branch L_qprod")

    def publish(back):
        A(f"s_sub_u32 {sT0}, {sN}, {back}"); A(f"s_max_i32 {sT0}, {sT0}, {sFLOOR}")
        A(f"v_mov_b32 v{vTMP}, {sT0}"); one_lane(f"ds_write_b32 v{vFL}, v{vTMP}")
    def throttle(i, W=W):
        if i % grp == grp-1:
            A(f"s_waitcnt vmcnt({W})")
            if i+1+16 >= W and (i+1-grp+16 < W or i < grp): publish(1)
    def tile_rows(specs, pol=pol, W=W):
        for i,(srd,vo,so) in enumerate(specs):
            if i % 4 == 0:
                A(f"s_add_u32 m0, {sSLOT}, {i*1024}" if i else f"s_mov_b32 m0, {sSLOT}")
                A(f"s_add_u32 {sOFF}, {sBASE}, {so}" if so else f"s_mov_b32 {sOFF}, {sBASE}")
            A(f"buffer_load_dwordx4 v{vo}, {srd}, {sOFF} offen offset:{(i%4)*1024} {pol} lds")
            throttle(i, W)
        slot_advance()
    def tile_tall(rowstride, t, nvalid):
        for i in range(16):
            A(f"s_add_u32 m0, {sSLOT}, {i*1024}" if i else f"s_mov_b32 m0, {sSLOT}")
            A(f"s_add_u32 {sOFF}, {sBASE}, {(t*128+i*8)*rowstride}")
            A(f"buffer_load_dwordx4 v{vT[i&1]}, {srdW if i < nvalid else srdZ}, {sOFF} offen {pol} lds")
            throttle(i)
        slot_advance()
    def tile_wide(pol=pol):
        tile_rows([(srdW if i < 14 else srdZ, vLIN, i*1024) for i in range(16)], pol)
        A(f"s_add_u32 {sBASE}, {sBASE}, 14336")
    def tall_voffs(stride):
        A("v_lshrrev_b32 v1, 3, v0"); A("v_and_b32 v2, 7, v0"); A("v_and_b32 v3, 2, v1"); A("v_xor_b32 v2, v2, v3"); A("v_lshlrev_b32 v2, 4, v2")
        A(f"v_mul_u32_u24 v3, {stride}, v1"); A(f"v_add_u32 v{vT[0]}, v3, v2"); A("v_xor_b32 v2, 64, v2"); A(f"v_add_u32 v{vT[1]}, v3, v2")
    def freecheck(k):
        ok = lab("free"); lp = lab("freepoll")
        A(f"s_add_u32 {sT0}, {sKNOWN}, {NSLOT-k}"); A(f"s_cmp_ge_u32 {sT0}, {sN}"); A(f"s_cbranch_scc1 {ok}")
        E.label(lp)
        A(f"ds_read_b128 {Q4(vC)}, v{vFL} offset:16")
        spin_guard()
        A("s_waitcnt lgkmcnt(0)")
        A(f"v_min3_u32 v{vC}, v{vC}, v{vC+1}, v{vC+2}"); A(f"v_min_u32 v{vC}, v{vC}, v{vC+3}")
        A(f"v_readfirstlane_b32 {sKNOWN}, v{vC}")
        A(f"s_add_u32 {sT0}, {sKNOWN}, {NSLOT-k}"); A(f"s_cmp_ge_u32 {sT0}, {sN}"); A(f"s_cbranch_scc1 {ok}")
        A("s_sleep 1"); A(f"s_branch {lp}")
        E.label(ok)
    def claim(p, off=0):
        one_lane(f"global_atomic_add v{vCL[p]}, v{vCA}, v{vONE}, {pWS} offset:{off} sc0")
    def claim_last_two(cnt, lim, off):
        nc = lab("nocl"); c1 = lab("cl1")
        A(f"s_add_u32 {sT0}, {cnt}, 1"); A(f"s_cmp_lt_u32 {sT0}, {lim}"); A(f"s_cbranch_scc1 {nc}")
        A(f"s_cmp_eq_u32 {cnt}, {lim}"); A(f"s_cbranch_scc1 {c1}")
        claim(0, off); A(f"s_branch {nc}")
        E.label(c1); claim(1, off)
        E.label(nc)

    rpos = [b for b in range(14,24) if b not in jpos]; RMASK = sum(1<<b for b in rpos)
    def scatter(dst, src, pos, tmp):
        k = 0
        while k < len(pos):
            n = 1
            while k+n < len(pos) and pos[k+n] == pos[k]+n: n += 1
            A(f"s_bfe_u32 {tmp}, {src}, {(n<<16)|k:#x}"); A(f"s_lshl_b32 {tmp}, {tmp}, {pos[k]}"); A(f"s_or_b32 {dst}, {dst}, {tmp}")
            k += n
    def next_tile():
        A(f"s_or_b32 {sCUR}, {sCUR}, {(~RMASK)&0xffffffff:#x}"); A(f"s_add_u32 {sCUR}, {sCUR}, 1"); A(f"s_and_b32 {sCUR}, {sCUR}, {RMASK:#x}")
        A(f"s_or_b32 {sBASE}, {sOWN}, {sCUR}")
    E.label("L_loader")
    A("s_setprio 3")
    A(f"v_mov_b32 v{vFL}, v3"); A(f"s_mov_b32 {sFLOOR}, 0")
    A("s_mov_b32 s50, 3670016"); A("s_mov_b32 s51, 0x20000")
    A(f"s_cmp_ge_u32 {sROLE}, 4"); A("s_cbranch_scc1 L_ld_noq")
    tall_voffs(8192)
    A(f"s_mov_b64 s[48:49], s[{pWQ[0]}:{pWQ[1]}]")
    A(f"s_and_b32 {sOFF}, {sG}, 7"); A(f"s_lshl_b32 {sOFF}, {sOFF}, 3"); A(f"s_lshr_b32 {sT0}, {sG}, 3"); A(f"s_lshl_b32 {sT0}, {sT0}, 2")
    A(f"s_add_u32 {sOFF}, {sOFF}, {sT0}"); A(f"s_add_u32 {sOFF}, {sOFF}, {sROLE}"); A(f"s_lshl_b32 {sOFF}, {sOFF}, 7")
    A("s_mov_b32 m0, 0")
    E.label("L_ld_q")
    for i in range(2):
        A(f"buffer_load_dwordx4 v{vT[i]}, {srdW}, {sOFF} offen {pol} lds")
        A(f"s_add_u32 {sOFF}, {sOFF}, {8*8192}"); A("s_add_u32 m0, m0, 1024")
    A(f"s_cmp_lt_u32 m0, {56*1024}"); A("s_cbranch_scc1 L_ld_q")
    A(f"s_mov_b32 {sN}, 4"); A(f"s_mov_b32 {sSLOT}, {4*SLOT}"); A(f"s_mov_b32 {sFLOOR}, 4")
    A(f"v_mov_b32 v{vTMP}, 4"); A("s_waitcnt vmcnt(0)"); one_lane(f"ds_write_b32 v{vFL}, v{vTMP}")
    E.label("L_ld_noq")
    if forcepar is None:
        A(f"s_cmp_eq_u32 {sWG}, {PROBE}"); A("s_cbranch_scc1 L_probe")
    E.label("L_ld_wo")
    A("v_lshrrev_b32 v1, 5, v0"); A("v_and_b32 v2, 31, v0")
    A("v_lshlrev_b32 v3, 1, v1"); A("v_xor_b32 v3, v2, v3"); A("v_lshlrev_b32 v3, 4, v3"); A("v_lshl_or_b32 v3, v1, 9, v3")
    for i in range(4): A(f"v_xor_b32 v{vV[i]}, {i*64}, v3")
    A(f"s_mov_b64 s[44:45], s[{pV[0]}:{pV[1]}]"); A("s_brev_b32 s46, 8"); A("s_mov_b32 s47, s51")
    A(f"s_lshl_b32 {sGB}, {sG}, 24"); A(f"s_mov_b32 {sOWN}, {sGB}"); scatter(sOWN, sJ, jpos, sT0)
    share_consts(1)
    sc = lambda r: sum(((r >> k) & 1) << b for k,b in enumerate(rpos)) if front else 0
    A(f"s_cmp_lt_u32 {sROLE}, 4"); A(f"s_cselect_b32 {sK0}, {sc(2)}, 0")
    A(f"s_cmp_lt_u32 {sIDX}, 30"); A(f"s_cselect_b32 {sK0}, {sc(4)}, {sK0}"); A(f"s_cmp_eq_u32 {sIDX}, 30"); A(f"s_cselect_b32 {sK0}, {sc(8)}, {sK0}")
    A(f"s_mov_b32 {sCUR}, {sK0}")
    A(f"s_cmp_lt_u32 {sIDX}, 28"); A(f"s_cbranch_scc1 L_ld_ffn")
    A(f"s_or_b32 {sBASE}, {sOWN}, {sCUR}"); A(f"s_add_u32 {sT2}, {sN}, {sPK}")
    A(f"s_cmp_eq_u32 {sPK}, 0"); A("s_cbranch_scc1 L_ld_head_done")
    E.label("L_ld_pv")
    tile_rows([(srdV, vV[i%4], i*1024) for i in range(16)])
    next_tile()
    A(f"s_cmp_lt_u32 {sN}, {sT2}"); A("s_cbranch_scc1 L_ld_pv")
    E.label("L_ld_head_done")
    A(f"s_mov_b32 {sVC}, {sCUR}"); A(f"s_mov_b32 {sCUR}, {sK0}")
    share_consts(2)
    A("v_lshrrev_b32 v1, 5, v0"); A("v_and_b32 v2, 31, v0")
    A("v_xor_b32 v3, v2, v1"); A("v_lshlrev_b32 v3, 4, v3"); A("v_lshl_or_b32 v3, v1, 9, v3")
    for i in range(8): A(f"v_xor_b32 v{vK[i]}, {i*32}, v3")
    A(f"s_lshl_b32 {sT0}, {sG}, 8"); A(f"s_add_u32 {sT0}, {sT0}, {WS_CNT}"); A(f"v_mov_b32 v{vCA}, {sT0}"); A(f"v_mov_b32 v{vONE}, 1")
    A(f"s_mov_b64 s[40:41], s[{pK[0]}:{pK[1]}]"); A("s_mov_b32 s42, 0x10000000"); A("s_mov_b32 s43, 0x20000")
    def ldstamps(list_, k0):
        if not diag: return
        for k,c in enumerate(list_):
            sk=lab("ls"); A(f"s_cmp_lg_u32 {sCI}, {c}"); A(f"s_cbranch_scc1 {sk}"); A(f"s_memrealtime s[{72+2*(k0+k)}:{73+2*(k0+k)}]"); A("s_waitcnt lgkmcnt(0)"); E.label(sk)
    A(f"s_or_b32 {sBASE}, {sOWN}, {sCUR}")
    E.label("L_ld_loop")
    ldstamps((0,4,8,16,32,NS-9), 0)
    freecheck(1)
    A(f"s_add_u32 {sCI}, {sCI}, 1")
    claim_last_two(sCI, sNS, 0)
    tile_rows([(srdK, vK[i%8], i*1024) for i in range(16)])
    next_tile()
    A(f"s_cmp_lt_u32 {sCI}, {sNS}"); A("s_cbranch_scc1 L_ld_loop")
    vLIST = 19; sNX = "s65"
    A(f"s_mov_b32 {sNX}, 0")
    E.label("L_ld_kdyn")
    for p in range(2):
        A(f"v_readfirstlane_b32 {sCLM}, v{vCL[p]}")
        A(f"s_cmp_ge_u32 {sCLM}, {PA}"); A("s_cbranch_scc1 L_ld_kdone")
        A(f"s_cmp_lt_u32 {sCLM}, 16"); A(f"s_cbranch_scc1 L_ld_shed{p}")
        A(f"s_and_b32 {sT1}, {sCLM}, 15"); A(f"s_lshr_b32 {sCUR}, {sCLM}, 4"); A(f"s_add_u32 {sCUR}, {sCUR}, {NS-1}")
        E.label(f"L_ld_unit{p}")
        A(f"s_mov_b32 {sBASE}, {sGB}"); scatter(sBASE, sT1, jpos, sT0); scatter(sBASE, sCUR, rpos, sT0)
        A(f"s_mov_b32 m0, {sNX}"); A(f"v_writelane_b32 v{vLIST}, {sBASE}, m0"); A(f"s_add_u32 {sNX}, {sNX}, 1")
        freecheck(1)
        full = lab("full"); go = lab("go")
        A(f"s_cmp_ge_u32 {sNX}, {MAXA-1}"); A(f"s_cbranch_scc1 {full}")
        claim(p); A(f"s_branch {go}")
        E.label(full); A(f"v_mov_b32 v{vCL[p]}, {PA}")
        E.label(go)
        tile_rows([(srdK, vK[i%8], i*1024) for i in range(16)])
    A("s_branch L_ld_kdyn")
    E.label("L_ld_kdone")
    if diag == 4: A("s_memrealtime s[84:85]"); A("s_waitcnt lgkmcnt(0)")
    A(f"v_mov_b32 v{vTMP}, {sN}"); one_lane(f"ds_write_b32 v{vFL}, v{vTMP} offset:8")
    A(f"s_add_u32 {sNX}, {sNX}, {sNS}")
    A(f"s_mov_b32 {sCI}, {sPK}"); A(f"s_mov_b32 {sCUR}, {sVC}"); A(f"s_or_b32 {sBASE}, {sOWN}, {sCUR}")
    E.label("L_ld_vloop")
    if diag != 4: ldstamps((8,40,NS-9), 6)
    freecheck(1)
    A(f"s_sub_u32 {sT0}, {sCI}, {sNS}"); A("s_cbranch_scc1 L_ld_vown")
    A(f"v_readlane_b32 {sBASE}, v{vLIST}, {sT0}")
    E.label("L_ld_vown")
    A(f"s_add_u32 {sCI}, {sCI}, 1")
    claim_last_two(sCI, sNX, 128)
    tile_rows([(srdV, vV[i%4], i*1024) for i in range(16)])
    next_tile()
    A(f"s_cmp_lt_u32 {sCI}, {sNX}"); A("s_cbranch_scc1 L_ld_vloop")
    if diag == 4: A("s_memrealtime s[86:87]"); A("s_waitcnt lgkmcnt(0)"); A(f"s_mov_b32 s88, {sNX}")
    E.label("L_ld_dyn")
    for p in range(2):
        A(f"v_readfirstlane_b32 {sCLM}, v{vCL[p]}")
        A(f"s_cmp_ge_u32 {sCLM}, {POOL}"); A("s_cbranch_scc1 L_ld_dyn_done")
        A(f"s_bfe_u32 {sT1}, {sCLM}, 0x40001"); A(f"s_lshr_b32 {sCUR}, {sCLM}, 5"); A(f"s_add_u32 {sCUR}, {sCUR}, {NA}")
        A(f"s_and_b32 {sBASE}, {sCLM}, 1"); A(f"s_lshl_b32 {sBASE}, {sBASE}, 12"); A(f"s_or_b32 {sBASE}, {sBASE}, {sGB}")
        scatter(sBASE, sT1, jpos, sT0); scatter(sBASE, sCUR, rpos, sT0)
        freecheck(1)
        claim(p, 128)
        tile_rows([(srdK, vK[i], i*2048) for i in range(8)] + [(srdV, vV[i%4], i*2048) for i in range(8)], W=WD or W)
    A("s_branch L_ld_dyn")
    E.label("L_ld_dyn_done")
    A(f"v_mov_b32 v{vTMP}, {sN}"); one_lane(f"ds_write_b32 v{vFL}, v{vTMP} offset:4")
    A(f"s_mov_b64 s[48:49], s[{pWO[0]}:{pWO[1]}]"); A("s_mov_b32 s50, 3670016")
    A(f"s_and_b32 {sBASE}, {sWG}, 127"); A(f"s_mul_i32 {sBASE}, {sBASE}, {32*896}"); A(f"v_lshlrev_b32 v{vLIN}, 4, v0")
    freecheck(2)
    k = 0
    for t in range(2):
        for i in range(14):
            if i % 4 == 0:
                A(f"s_add_u32 m0, {sSLOT}, {i*1024}" if i else f"s_mov_b32 m0, {sSLOT}")
                A(f"s_add_u32 {sOFF}, {sBASE}, {t*14336+i*1024}")
            if k == wpre[0]: A(f"s_waitcnt vmcnt({16+k})"); publish(1+t)
            if k == wpre[1]: A(f"s_waitcnt vmcnt({k})"); publish(t)
            A(f"buffer_load_dwordx4 v{vLIN}, {srdW}, {sOFF} offen offset:{(i%4)*1024} lds")
            k += 1
        slot_advance()
    for c,back in ((14,1),(0,0)):
        A(f"s_waitcnt vmcnt({c})"); publish(back)
    if diag:
        A("s_mov_b64 exec, 1"); A("s_memrealtime s[90:91]")
        A(f"s_lshl_b32 {sT0}, {sWG}, 6"); A(f"s_add_u32 {sT0}, {sT0}, {WS_ST+0x40000}"); A(f"v_mov_b32 v46, {sT0}")
        A("s_waitcnt lgkmcnt(0)")
        for k in range(11): A(f"v_mov_b32 v{32+k}, s{70+2*k}")
        A(f"v_mov_b32 v43, {sSPIN}")
        for q in range(3): A(f"global_store_dwordx4 v46, v[{32+4*q}:{35+4*q}], {pWS} offset:{q*16}")
    A("s_waitcnt lgkmcnt(0)")
    A("s_endpgm")
    for p in range(2):
        E.label(f"L_ld_shed{p}")
        A(f"s_lshr_b32 {sT0}, {sCLM}, 2"); A(f"s_and_b32 {sT1}, {sCLM}, 3"); A(f"s_add_u32 {sT1}, {sT1}, {0 if front else NS-4}"); A(f"s_add_u32 {sT2}, {sCLM}, {0 if front else NS-8}")
        A(f"s_cmp_eq_u32 {sG}, 15"); A(f"s_cselect_b32 {sT0}, 0, {sT0}"); A(f"s_cselect_b32 {sT1}, {sT2}, {sT1}"); A(f"s_add_u32 {sT0}, {sT0}, 4")
        A(f"s_bfe_u32 {sT2}, {sCLM}, 0x20001"); A(f"s_and_b32 {sCUR}, {sCLM}, 1"); A(f"s_add_u32 {sCUR}, {sCUR}, {0 if front else NS-2}")
        A(f"s_cmp_lt_u32 {sCLM}, 8"); A(f"s_cselect_b32 {sT0}, {sT0}, {sT2}"); A(f"s_cselect_b32 {sCUR}, {sT1}, {sCUR}"); A(f"s_cselect_b32 {sT2}, 0, 4")
        A(f"s_add_u32 {sT0}, {sT0}, {sG}"); A(f"s_and_b32 {sT1}, {sT0}, 3"); A(f"s_or_b32 {sT1}, {sT1}, {sT2}")
        A(f"s_bfe_u32 {sT0}, {sT0}, 0x10002"); A(f"s_lshl_b32 {sT0}, {sT0}, 3"); A(f"s_or_b32 {sT1}, {sT1}, {sT0}")
        A(f"s_branch L_ld_unit{p}")

    def SEL4(dst, a, b, c, d, t):
        A(f"v_cndmask_b32 v{dst}, v{a}, v{b}, {sM1}"); A(f"v_cndmask_b32 v{t}, v{c}, v{d}, {sM1}"); A(f"v_cndmask_b32 v{dst}, v{dst}, v{t}, {sM2}")
    def xrow(op, regs, tmps):
        for sw in ("v_permlane16_swap_b32","v_permlane32_swap_b32"):
            for r,t in zip(regs,tmps): A(f"v_mov_b32 v{t}, v{r}")
            for r,t in zip(regs,tmps): A(f"{sw} v{r}, v{t}")
            for r,t in zip(regs,tmps): A(f"{op} v{r}, v{r}, v{t}")
    def round_bf(dst, src): A(f"v_cvt_pk_bf16_f32 v{dst}, v{src}, v{src}"); A(f"v_and_b32 v{dst}, 0xffff0000, v{dst}")
    def unpack(lo, hi, src): A(f"v_lshlrev_b32 v{lo}, 16, v{src}"); A(f"v_and_b32 v{hi}, 0xffff0000, v{src}")
    def pub_cons():
        slot_advance()
        A(f"v_mov_b32 v{vTM}, {sN}"); one_lane(f"ds_write_b32 v{vCONS}, v{vTM}")
    def wait_tile(fin=None, kend=None):
        ok = lab("have"); lp = lab("poll")
        if fin: A(f"s_cmp_eq_u32 {sTOT}, {sN}"); A(f"s_cbranch_scc1 {fin}")
        if kend: A(f"s_cmp_ge_u32 {sN}, {sKE}"); A(f"s_cbranch_scc1 {kend}")
        A(f"s_cmp_gt_u32 {sKNOWN}, {sN}"); A(f"s_cbranch_scc1 {ok}")
        E.label(lp)
        A(f"ds_read_b128 {Q4(vAD[0])}, v{vFLG}")
        spin_guard()
        A("s_waitcnt lgkmcnt(0)")
        A(f"v_readfirstlane_b32 {sKNOWN}, v{vAD[0]}"); A(f"v_readfirstlane_b32 {sTOT}, v{vAD[1]}")
        A(f"v_readfirstlane_b32 {sKE}, v{vAD[2]}")
        if kend: A(f"s_cmp_ge_u32 {sN}, {sKE}"); A(f"s_cbranch_scc1 {kend}")
        if fin:
            nw = lab("nw")
            A(f"s_cmp_ge_u32 {sTOT}, {sWRM}"); A(f"s_cbranch_scc1 {nw}")
            A(f"s_mov_b32 {sWRM}, 0"); A(f"global_load_dword v{vX+2}, v{vX+3}, {pWS} {ldf}")
            E.label(nw)
            A(f"s_cmp_eq_u32 {sTOT}, {sN}"); A(f"s_cbranch_scc1 {fin}")
        A(f"s_cmp_gt_u32 {sKNOWN}, {sN}"); A(f"s_cbranch_scc1 {ok}")
        if nap or not fin: A("s_sleep 1")
        A(f"s_branch {lp}")
        E.label(ok)
    def poll(loads, tags, first_mask=None, issued=False):
        lp = lab("gpoll"); n = len(loads)
        chk = lab("gchk")
        if issued: A(f"s_branch {chk}")
        else:
            for i in range(n): A(f"s_mov_b64 {sCK[i]}, {first_mask[i] if first_mask else -1}")
        E.label(lp)
        for i,l in enumerate(loads):
            sk = lab("sk")
            A(f"s_mov_b64 exec, {sCK[i]}"); A(f"s_cbranch_execz {sk}"); A(l); E.label(sk)
        A("s_mov_b64 exec, -1")
        spin_guard()
        if issued: E.label(chk)
        A("s_waitcnt vmcnt(0)")
        for i in range(n):
            A(f"v_cmp_ne_u32 {sCK[i]}, {sTAG}, v{tags[i][0]}")
            for t in tags[i][1:]:
                A(f"v_cmp_ne_u32 vcc, {sTAG}, v{t}"); A(f"s_or_b64 {sCK[i]}, {sCK[i]}, vcc")
        A(f"s_or_b64 vcc, {sCK[0]}, {sCK[min(1,n-1)]}")
        for i in range(2, n): A(f"s_or_b64 vcc, vcc, {sCK[i]}")
        A(f"s_cbranch_scc1 {lp}")
    def layernorm(xr, f, lnbase, stride, mid=None):
        s1=vTM; t=vTM2; mu=vX; a=vX+2; b=vX+4
        for u in range(7): unpack(f+2*u, f+2*u+1, xr[u])
        A(f"v_pk_add_f32 {P(a)}, {P(f)}, {P(f+2)}"); A(f"v_pk_add_f32 {P(b)}, {P(f+4)}, {P(f+6)}")
        A(f"v_pk_add_f32 {P(a)}, {P(a)}, {P(f+8)}"); A(f"v_pk_add_f32 {P(b)}, {P(b)}, {P(f+10)}")
        A(f"v_pk_add_f32 {P(a)}, {P(a)}, {P(f+12)}"); A(f"v_pk_add_f32 {P(a)}, {P(a)}, {P(b)}")
        A(f"v_add_f32 v{s1}, v{a}, v{a+1}")
        red32 = [f"v_add_f32_dpp v{s1}, v{s1}, v{s1} row_ror:{k} row_mask:0xf bank_mask:0xf" for k in (8,4,2,1)]
        red32 += [f"v_mov_b32 v{t}, v{s1}", f"v_permlane16_swap_b32 v{s1}, v{t}", f"v_add_f32 v{s1}, v{s1}, v{t}"]
        for l in red32: A(l)
        A(f"v_mul_f32 v{mu}, {INV448:#x}, v{s1}")
        NEG = "op_sel_hi:[1,0] neg_lo:[0,1] neg_hi:[0,1]"
        A(f"v_pk_add_f32 {P(b)}, {P(f)}, {P(mu)} {NEG}")
        A(f"v_pk_mul_f32 {P(a)}, {P(b)}, {P(b)}")
        for u in range(1,7):
            A(f"v_pk_add_f32 {P(b)}, {P(f+2*u)}, {P(mu)} {NEG}")
            A(f"v_pk_fma_f32 {P(a)}, {P(b)}, {P(b)}, {P(a)}")
        A(f"v_add_f32 v{s1}, v{a}, v{a+1}")
        round_bf(mu, mu)
        fill = [f"v_pk_add_f32 {P(f+2*u)}, {P(f+2*u)}, {P(mu)} {NEG}" for u in range(7)] + [f"v_cvt_pk_bf16_f32 v{xr[u]}, v{f+2*u}, v{f+2*u+1}" for u in range(7)]
        for u in range(7): fill += [f"v_lshlrev_b32 v{f+2*u}, 16, v{xr[u]}", f"v_and_b32 v{f+2*u+1}, 0xffff0000, v{xr[u]}"]
        rb = [f"v_cvt_pk_bf16_f32 v{s1}, v{s1}, v{s1}", f"v_and_b32 v{s1}, 0xffff0000, v{s1}"]
        chain = red32 + [f"v_mul_f32 v{s1}, {INV448:#x}, v{s1}"] + rb + [f"v_add_f32 v{s1}, {EPS:#x}, v{s1}"] + rb + [f"v_sqrt_f32 v{s1}, v{s1}"] + rb + [f"v_rcp_f32 v{a}, v{s1}"]
        while chain or fill:
            for _ in range(2):
                if fill: A(fill.pop(0))
            if chain: A(chain.pop(0))
        if mid: mid()
        for u in range(7): A(f"v_pk_mul_f32 {P(f+2*u)}, {P(f+2*u)}, {P(a)} op_sel_hi:[1,0]")
        for u in range(7):
            A(f"v_cvt_pk_bf16_f32 v{xr[u]}, v{f+2*u}, v{f+2*u+1}")
            A(f"ds_write_b32 v{lnbase}, v{xr[u]} offset:{u*stride}")
    def ln_read_addr(rd, base):
        A(f"v_and_b32 v{rd}, 1, v{vLANE}"); A(f"v_mul_u32_u24 v{rd}, 896, v{rd}")
        A(f"v_lshl_add_u32 v{rd}, v{vG4}, 4, v{rd}"); A(f"v_add_u32 v{rd}, {base}, v{rd}")
    def tall_addr(dst):
        A(f"v_lshrrev_b32 v{vTM}, 3, v{vN}")
        A(f"v_and_b32 v{vTM2}, 1, v{vG4}"); A(f"v_lshl_or_b32 v{vTM}, v{vTM2}, 1, v{vTM}")
        A(f"v_xor_b32 v{vTM}, {sW}, v{vTM}"); A(f"v_lshlrev_b32 v{vTM}, 5, v{vTM}")
        A(f"v_and_b32 v{vTM2}, 3, v{vN}"); A(f"v_lshl_or_b32 v{vTM}, v{vTM2}, 3, v{vTM}")
        A(f"v_lshrrev_b32 v{vTM2}, 2, v{vN}"); A(f"v_lshl_or_b32 v{vTM}, v{vTM2}, 7, v{vTM}")
        A(f"v_lshl_or_b32 v{dst}, v{vG4}, 10, v{vTM}")
    def wide_addr(dst):
        A(f"v_lshrrev_b32 v{vTM}, 2, v{vN}"); A(f"v_lshl_add_u32 v{vTM}, v{vG4}, 2, v{vTM}"); A(f"v_mul_u32_u24 v{vTM}, 896, v{vTM}")
        A(f"v_and_b32 v{vTM2}, 3, v{vN}"); A(f"v_lshl_add_u32 v{vTM}, v{vTM2}, 3, v{vTM}")
        A(f"s_mul_i32 {sT0}, {sW}, 224"); A(f"v_add_u32 v{dst}, {sT0}, v{vTM}")
    def read_tall_tile(base, dstreg, t):
        wait_tile()
        A(f"v_add_u32 v{vAD[0]}, {sSLOT}, v{base}")
        for s in range(4 if t < 3 else 2):
            for h2 in range(2):
                A(f"ds_read_b64_tr_b16 {P(dstreg + 4*(4*t+s) + 2*h2)}, v{vAD[0]} offset:{s*4096+h2*512}")
        A("s_waitcnt lgkmcnt(0)")
        pub_cons()
    def read_wide_tile(base, dstreg, half):
        wait_tile()
        A(f"v_add_u32 v{vAD[0]}, {sSLOT}, v{base}")
        for tt in range(7): A(f"ds_read_b64_tr_b16 {P(dstreg + 4*tt + 2*half)}, v{vAD[0]} offset:{tt*32}")
        A("s_waitcnt lgkmcnt(0)")
        pub_cons()
    def basic_setup():
        A(f"s_sub_u32 {sW}, {sWAVE}, 1"); A(f"s_lshr_b32 {sB}, {sG}, 3"); A(f"s_and_b32 {sHKV}, {sG}, 7")
        A(f"v_and_b32 v{vN}, 15, v{vLANE}"); A(f"v_lshrrev_b32 v{vG4}, 4, v{vLANE}")
        A(f"s_lshl_b32 {sT0}, {sW}, 2"); A(f"s_add_u32 {sT0}, {sT0}, {L_CONS}"); A(f"v_mov_b32 v{vCONS}, {sT0}")
        A("s_mov_b32 s42, 0xffff0000"); A("s_mov_b32 s43, s42")

    if align: A(".p2align 12")
    E.label("L_qprod")
    f14 = vWO+8; vLR = vWO+25; vTA = vWO+26; vQA = vWO+27
    basic_setup()
    A(f"s_or_b32 {sT0}, {sROLE}, {sW}"); A(f"s_cmp_lg_u32 {sT0}, 0"); A("s_cbranch_scc1 L_noinit")
    A(f"s_lshl_b32 {sT0}, {sG}, 8"); A(f"s_add_u32 {sT0}, {sT0}, {WS_CNT}")
    A(f"v_mov_b32 v{vTM2}, {sT0}"); A(f"v_mov_b32 v{vTM3}, 0")
    A("s_mov_b64 exec, 1"); A(f"global_store_dword v{vTM2}, v{vTM3}, {pWS} {stf}"); A(f"global_store_dword v{vTM2}, v{vTM3}, {pWS} offset:128 {stf}"); A("s_mov_b64 exec, -1")
    E.label("L_noinit")
    A(f"v_add_u32 v{vLW1}, {L_LN}, v{vLW1}")
    ln_read_addr(vLR, L_LN)
    tall_addr(vTA)
    A(f"s_lshl_b32 {sT0}, {sB}, 2"); A(f"s_add_u32 {sT0}, {sT0}, {sROLE}"); A(f"s_lshl_b32 {sT0}, {sT0}, 2"); A(f"s_add_u32 {sT0}, {sT0}, {sW}")
    A(f"s_lshl_b32 {sT0}, {sT0}, 6"); A(f"s_lshl_b32 {sT1}, {sHKV}, 11"); A(f"s_add_u32 {sT0}, {sT0}, {sT1}"); A(f"s_add_u32 {sT0}, {sT0}, {WS_Q}")
    A(f"v_lshlrev_b32 v{vQA}, 2, v{vN}"); A(f"v_lshl_add_u32 v{vQA}, v{vG4}, 14, v{vQA}"); A(f"v_add_u32 v{vQA}, {sT0}, v{vQA}")
    if qtouch: touch_pad("q")
    A("s_waitcnt vmcnt(0) lgkmcnt(0)")
    stamp(12)
    layernorm(xr1, f14, vLW1, 128, mid=(lambda: pad("q")) if qtouch else None)
    make_tag(sTAG, sE); A(f"v_mov_b32 v{vX+1}, {sTAG}")
    A("s_waitcnt lgkmcnt(0)")
    stamp(13)
    for s in range(14): A(f"ds_read_b128 {Q4(vW2+4*s)}, v{vLR} offset:{s*64}")
    A(f"s_mov_b32 {sN}, 3"); wait_tile()
    stamp(14)
    for s in range(14):
        for h2 in range(2): A(f"ds_read_b64_tr_b16 {P(vW1 + 4*s + 2*h2)}, v{vTA} offset:{s*4096+h2*512}")
        if s % 4 == 3 or s == 13:
            A(f"s_waitcnt lgkmcnt(0)")
            for k in range(s - s % 4, s+1):
                A(f"v_mfma_f32_16x16x32_bf16 {Q4(vS)}, {Q4(vW2+4*k)}, {Q4(vW1+4*k)}, {'0' if k==0 else Q4(vS)}")
    A(f"s_mov_b32 {sSLOT}, {3*SLOT}"); pub_cons()
    A(f"v_cndmask_b32 v{vTM}, v{vS}, v{vS+1}, {sM1}")
    A(f"v_mov_b32_dpp v{vTM2}, v{vTM} quad_perm:[1,0,3,2] row_mask:0xf bank_mask:0xf")
    A(f"v_cvt_pk_bf16_f32 v{vX}, v{vTM}, v{vTM2}")
    A("s_mov_b64 exec, 0x55555555")
    A(f"global_store_dwordx2 v{vQA}, {P(vX)}, {pWS} {stf}")
    A("s_mov_b64 exec, -1")
    stamp(1)

    E.label("L_consumer")
    basic_setup()
    share_consts(1)
    A("s_mov_b32 s44, 0"); A("s_mov_b32 s45, -1"); A(f"s_mov_b32 {sC}, {C_SCALE:#x}"); A("s_mov_b32 s66, -1"); A("s_mov_b32 s67, 0"); A(f"s_mov_b32 {sTOT}, 0x7fffffff"); A(f"s_mov_b32 {sKE}, 0x7fffffff"); A(f"s_mov_b32 {sKNOWN}, 0")
    if hilo: A("s_mov_b32 s64, 0xcccccccc"); A("s_mov_b32 s65, 0xcccccccc")
    stamp(11)
    A(f"s_sub_u32 {sT0}, {sROLE}, 4"); A(f"s_lshl_b32 {sRR}, {sG}, 2"); A(f"s_add_u32 {sRR}, {sRR}, {sT0}")
    A(f"s_cmp_lt_u32 {sT0}, 4"); A(f"s_cselect_b32 {sRR}, {sRR}, 99"); A("s_cbranch_scc0 L_nox")
    A(f"s_bfe_u32 {sT0}, {sRR}, 0x20003"); A(f"s_mul_i32 {sCOL}, {sT0}, 224")
    A(f"s_bfe_u32 {sGP}, {sRR}, 0x20001"); A(f"s_lshl_b32 {sT0}, {sGP}, 6"); A(f"s_add_u32 {sCOL}, {sCOL}, {sT0}")
    A(f"s_and_b32 {sT0}, {sRR}, 1"); A(f"s_lshl_b32 {sT0}, {sT0}, 4"); A(f"s_add_u32 {sCOL}, {sCOL}, {sT0}")
    A(f"s_bfe_u32 {sT0}, {sRR}, 0x10005"); A(f"s_mul_i32 {sT0}, {sT0}, 896"); A(f"s_add_u32 {sCOL}, {sCOL}, {sT0}")
    A(f"v_and_b32 v{vTM}, 6, v{vLANE}"); A(f"v_lshl_add_u32 v{vTM}, v{vTM}, 1, {sCOL}")
    A(f"global_load_dword v{vXH}, v{vTM}, {pX}")
    A(f"v_mov_b32 v{vXH+1}, 0")
    A(f"s_cmp_eq_u32 {sGP}, 3"); A("s_cbranch_scc1 L_nox")
    A(f"global_load_dword v{vXH+1}, v{vTM}, {pX} offset:32")
    E.label("L_nox")
    A(f"v_xor_b32 v{vTM}, v{vG4}, v{vN}"); A(f"v_lshlrev_b32 v{vTM}, 4, v{vTM}"); A(f"v_lshl_or_b32 v{vTM}, v{vN}, 9, v{vTM}")
    for s in range(4): A(f"v_xor_b32 v{vKB[s]}, {s*64}, v{vTM}")
    A(f"v_lshrrev_b32 v{vTM}, 2, v{vN}"); A(f"v_lshl_add_u32 v{vTM}, v{vG4}, 2, v{vTM}")
    A(f"v_and_b32 v{vTM2}, 7, v{vTM}")
    A(f"s_lshl_b32 {sT0}, {sW}, 2"); A(f"v_xor_b32 v{vTM2}, {sT0}, v{vTM2}"); A(f"v_lshlrev_b32 v{vTM2}, 5, v{vTM2}")
    A(f"v_lshl_or_b32 v{vTM}, v{vTM}, 9, v{vTM2}")
    A(f"v_and_b32 v{vTM2}, 3, v{vN}"); A(f"v_lshl_or_b32 v{vTM}, v{vTM2}, 3, v{vTM}")
    for e in range(4): A(f"v_xor_b32 v{vVB[e]}, {e*32}, v{vTM}")
    A(f"v_mov_b32 v{vM}, 0xff800000"); A(f"v_mov_b32 v{vMC}, v{vM}"); A(f"v_mov_b32 v{vL}, 0")
    for i in range(16): A(f"v_mov_b32 v{vO+i}, 0")
    A(f"s_cmp_lt_u32 {sIDX}, 28"); A("s_cbranch_scc1 L_ffn_w")
    def vtile_read(dst):
        for e in range(4): A(f"v_add_u32 v{vAD[e]}, {sSLOT}, v{vVB[e]}")
        for e in range(4):
            for h2 in range(2): A(f"ds_read_b64_tr_b16 {P(dst + 4*e + 2*h2)}, v{vAD[e]} offset:{h2*8192}")
    for p in range(park):
        A(f"s_cmp_le_u32 {sPK}, {p}"); A("s_cbranch_scc1 L_ffn_w_done")
        wait_tile(); vtile_read(vW1+16*p); A("s_waitcnt lgkmcnt(0)"); pub_cons()
    E.label("L_ffn_w_done")
    A("s_waitcnt lgkmcnt(0)")
    make_tag(sTAG, sE)
    A(f"s_cmp_lg_u32 {sW}, 0"); A("s_cbranch_scc1 L_q_flag")
    if qwait:
        A(f"s_add_u32 {sN}, {sN}, {qwait-1}"); wait_tile(); A(f"s_sub_u32 {sN}, {sN}, {qwait-1}")
    A(f"s_lshl_b32 {sT0}, {sG}, 11"); A(f"s_add_u32 {sT0}, {sT0}, {WS_Q}")
    A(f"v_lshl_add_u32 v{vTM3}, v{vLANE}, 4, {sT0}")
    poll([f"global_load_dwordx4 {Q4(vF)}, v{vTM3}, {pWS} {ldf}", f"global_load_dwordx4 {Q4(vF+4)}, v{vTM3}, {pWS} offset:1024 {ldf}"],
         [[vF+1, vF+3], [vF+5, vF+7]])
    A(f"v_lshlrev_b32 v{vTM}, 3, v{vLANE}"); A(f"v_add_u32 v{vTM}, {L_QW}, v{vTM}"); A(f"v_mov_b32 v{vTM2}, 1")
    A(f"ds_write2_b32 v{vTM}, v{vF}, v{vF+2} offset0:0 offset1:1"); A(f"ds_write2_b32 v{vTM}, v{vF+4}, v{vF+6} offset0:128 offset1:129")
    one_lane(f"ds_write_b32 v{vFLG}, v{vTM2} offset:32")
    E.label("L_q_flag")
    A(f"ds_read_b32 v{vTM}, v{vFLG} offset:32")
    spin_guard()
    A("s_waitcnt lgkmcnt(0)")
    A(f"v_readfirstlane_b32 {sT0}, v{vTM}")
    A(f"s_cmp_eq_u32 {sT0}, 1"); A("s_cbranch_scc1 L_q_have")
    A("s_sleep 1"); A("s_branch L_q_flag")
    E.label("L_q_have")
    A(f"v_and_b32 v{vTM2}, 1, v{vLANE}"); A(f"v_lshlrev_b32 v{vTM2}, 9, v{vTM2}"); A(f"v_lshl_add_u32 v{vTM2}, v{vG4}, 4, v{vTM2}"); A(f"v_add_u32 v{vTM2}, {L_QW}, v{vTM2}")
    for s in range(8): A(f"ds_read_b128 {Q4(vQ+4*s)}, v{vTM2} offset:{s*64}")
    stamp(2)
    A("s_waitcnt lgkmcnt(0)")

    def qk(nt):
        for s in range(4): A(f"v_add_u32 v{vAD[s]}, {sSLOT}, v{vKB[s]}")
        seq = [(t,s) for s in range(8) for t in range(nt)]; n = len(seq)
        def kread(i):
            t,s = seq[i]; A(f"ds_read_b128 {Q4(vF + 4*(i % NF))}, v{vAD[s&3]} offset:{(s>>2)*256 + t*8192}")
        for i in range(NF): kread(i)
        for i in range(n):
            t,s = seq[i]
            A(f"s_waitcnt lgkmcnt({min(NF-1, n-1-i)})")
            d = Q4(vS+4*t)
            A(f"v_mfma_f32_16x16x32_bf16 {d}, {Q4(vF + 4*(i % NF))}, {Q4(vQ+4*s)}, {'0' if s==0 else d}")
            if i + NF < n: kread(i+NF)
    def probs(nt):
        n = 4*nt
        for i in range(n): A(f"v_fma_f32 v{vS+i}, v{vS+i}, {sC}, -v{vMC}")
        for i in range(n): A(f"v_exp_f32 v{vS+i}, v{vS+i}")
        for i in range(n//2): A(f"v_cvt_pk_bf16_f32 v{vP+i}, v{vS+2*i}, v{vS+2*i+1}")
        if hilo:
            for i in range(n//2):
                t = vF+16+2*(i&1)
                unpack(t, t+1, vP+i)
                A(f"v_pk_add_f32 {P(t)}, {P(vS+2*i)}, {P(t)} neg_lo:[0,1] neg_hi:[0,1]")
                A(f"v_cvt_pk_bf16_f32 v{t}, v{t}, v{t+1}")
                A(f"v_cndmask_b32 v{vP+i}, v{vP+i}, v{t}, s[64:65]")
    def softmax(nt, tag):
        n = 4*nt
        for i in range(n//2): A(f"v_cvt_pk_bf16_f32 v{vP+i}, v{vS+2*i}, v{vS+2*i+1}")
        for i in range(n//2): unpack(vS+2*i, vS+2*i+1, vP+i)
        if nt == 2:
            A(f"v_max3_f32 v{vMX}, v{vS}, v{vS+1}, v{vS+2}"); A(f"v_max3_f32 v{vTM}, v{vS+3}, v{vS+4}, v{vS+5}")
            A(f"v_max3_f32 v{vMX}, v{vMX}, v{vS+6}, v{vS+7}"); A(f"v_max_f32 v{vMX}, v{vMX}, v{vTM}")
        else:
            A(f"v_max3_f32 v{vMX}, v{vS}, v{vS+1}, v{vS+2}"); A(f"v_max_f32 v{vMX}, v{vMX}, v{vS+3}")
        xrow("v_max_f32", [vMX], [vTM])
        A(f"v_cmp_gt_f32 vcc, v{vMX}, v{vM}")
        A("s_cmp_lg_u64 vcc, 0"); A(f"s_cbranch_scc1 L_rescale{tag}")
        E.label(f"L_rescaled{tag}")
        probs(nt)
    def add_l(nt):
        A(f"v_add_f32 v{vTM}, v{vS}, v{vS+1}"); A(f"v_add_f32 v{vMX}, v{vS+2}, v{vS+3}")
        if nt == 2:
            A(f"v_add_f32 v{vS+4}, v{vS+4}, v{vS+5}"); A(f"v_add_f32 v{vS+6}, v{vS+6}, v{vS+7}")
            A(f"v_add_f32 v{vTM}, v{vTM}, v{vS+4}"); A(f"v_add_f32 v{vMX}, v{vMX}, v{vS+6}")
        A(f"v_add_f32 v{vL}, v{vL}, v{vTM}"); A(f"v_add_f32 v{vL}, v{vL}, v{vMX}")
    def rescale(tag):
        E.label(f"L_rescale{tag}")
        A(f"v_max_f32 v{vM}, v{vM}, v{vMX}")
        A(f"v_mul_f32 v{vTM}, {sC}, v{vM}")
        A(f"v_sub_f32 v{vTM2}, v{vMC}, v{vTM}")
        A(f"v_mov_b32 v{vMC}, v{vTM}")
        A(f"v_exp_f32 v{vTM2}, v{vTM2}")
        A(f"v_mul_f32 v{vL}, v{vL}, v{vTM2}")
        A(f"v_mov_b32_dpp v{vTM}, v{vTM2} quad_perm:[0,0,2,2] row_mask:0xf bank_mask:0xf")
        A(f"v_mov_b32_dpp v{vTM3}, v{vTM2} quad_perm:[1,1,3,3] row_mask:0xf bank_mask:0xf")
        for i in range(16): A(f"v_mul_f32 v{vO+i}, v{vO+i}, v{vTM if i%2==0 else vTM3}")
        A(f"s_branch L_rescaled{tag}")
    vSA=107
    A(f"s_mov_b32 {sN0}, {sN}")
    A(f"s_add_u32 {sN}, {sN}, {sW}"); A(f"s_lshl_b32 {sT0}, {sW}, 14"); A(f"s_add_u32 {sSLOT}, {sSLOT}, {sT0}")
    A(f"s_sub_u32 {sT0}, {sSLOT}, {RING}"); A(f"s_cselect_b32 {sSLOT}, {sSLOT}, {sT0}")
    A(f"v_and_b32 v{vSA}, 1, v{vLANE}"); A(f"v_lshlrev_b32 v{vSA}, 6, v{vSA}"); A(f"v_lshl_add_u32 v{vSA}, v{vG4}, 4, v{vSA}"); A(f"v_add_u32 v{vSA}, {L_SC}, v{vSA}")
    A(f"s_lshl_b32 {sT0}, {sW}, 7"); A(f"v_add_u32 v{vX}, {sT0}, v{vSA}")
    E.label("L_kloop")
    wait_tile(kend="L_kdone")
    qk(2)
    A(f"s_add_u32 {sN}, {sN}, 4")
    A(f"s_add_u32 {sSLOT}, {sSLOT}, {4*SLOT}"); A(f"s_sub_u32 {sT0}, {sSLOT}, {RING}"); A(f"s_cselect_b32 {sSLOT}, {sSLOT}, {sT0}")
    for i in range(4): A(f"v_cvt_pk_bf16_f32 v{vP+i}, v{vS+2*i}, v{vS+2*i+1}")
    for i in range(4): A(f"v_max3_f32 v{vM}, v{vM}, v{vS+2*i}, v{vS+2*i+1}")
    A("s_mov_b32 exec_lo, 0x30003"); A("s_mov_b32 exec_hi, 0x30003"); A(f"ds_write_b128 v{vX}, {Q4(vP)}"); A("s_mov_b64 exec, -1")
    A(f"v_add_u32 v{vX}, 512, v{vX}")
    A(f"v_mov_b32 v{vTM}, {sN}"); one_lane(f"ds_write_b32 v{vCONS}, v{vTM}")
    A("s_branch L_kloop")
    E.label("L_kdone")
    A(f"s_mov_b32 {sN}, {sKE}"); A(f"s_sub_u32 {sNS}, {sKE}, {sN0}")
    xrow("v_max_f32", [vM], [vTM])
    A(f"s_lshl_b32 {sT0}, {sW}, 3"); A(f"s_add_u32 {sT0}, {sT0}, {L_MX}"); A(f"v_lshl_add_u32 v{vTM2}, v{vLANE}, 2, {sT0}")
    A("s_mov_b64 exec, 3"); A(f"ds_write_b32 v{vTM2}, v{vM}"); A("s_mov_b64 exec, -1")
    A(f"v_mov_b32 v{vTM}, {sN}"); A("s_mov_b64 exec, 1"); A(f"ds_write_b32 v{vCONS}, v{vTM}"); A(f"ds_write_b32 v{vCONS}, v{vTM} offset:{L_KD-16}"); A("s_mov_b64 exec, -1")
    A(f"s_mul_hi_u32 {sT0}, {sN}, {-(-(1<<32)//NSLOT)}"); A(f"s_mul_i32 {sT0}, {sT0}, {NSLOT}"); A(f"s_sub_u32 {sSLOT}, {sN}, {sT0}"); A(f"s_lshl_b32 {sSLOT}, {sSLOT}, 14")
    A(f"v_and_b32 v{vTM2}, 1, v{vLANE}"); A(f"v_lshlrev_b32 v{vTM2}, 2, v{vTM2}"); A(f"v_add_u32 v{vTM2}, {L_MX}, v{vTM2}")
    E.label("L_ksync")
    A(f"ds_read2_b32 {P(vAD[0])}, v{vFLG} offset0:{L_KD//4} offset1:{L_KD//4+1}"); A(f"ds_read2_b32 {P(vAD[2])}, v{vFLG} offset0:{L_KD//4+2} offset1:{L_KD//4+3}")
    A(f"ds_read2_b32 {P(vS)}, v{vTM2} offset0:0 offset1:2"); A(f"ds_read2_b32 {P(vS+2)}, v{vTM2} offset0:4 offset1:6")
    spin_guard()
    A("s_waitcnt lgkmcnt(0)")
    A(f"v_min3_u32 v{vAD[0]}, v{vAD[0]}, v{vAD[1]}, v{vAD[2]}"); A(f"v_min_u32 v{vAD[0]}, v{vAD[0]}, v{vAD[3]}")
    A(f"v_readfirstlane_b32 {sT0}, v{vAD[0]}")
    A(f"s_cmp_lt_u32 {sT0}, {sKE}"); A("s_cbranch_scc1 L_ksync")
    A(f"v_max3_f32 v{vM}, v{vS}, v{vS+1}, v{vS+2}"); A(f"v_max_f32 v{vM}, v{vM}, v{vS+3}")
    round_bf(vM, vM)
    A(f"v_mul_f32 v{vMC}, {sC}, v{vM}")
    E.label("L_loop")
    A(f"ds_read_b128 {Q4(vP)}, v{vSA}")
    A(f"v_add_u32 v{vSA}, 128, v{vSA}")
    A("s_waitcnt lgkmcnt(0)")
    for i in range(4): unpack(vS+2*i, vS+2*i+1, vP+i)
    probs(2); add_l(2)
    A(f"s_cmp_lt_u32 {sCI}, {sPK}"); A("s_cbranch_scc1 L_pv_park")
    wait_tile()
    vtile_read(vF)
    for e in range(4):
        A(f"s_waitcnt lgkmcnt({6-2*e})")
        A(f"v_mfma_f32_16x16x32_bf16 {Q4(vO+4*e)}, {Q4(vP)}, {Q4(vF+4*e)}, {Q4(vO+4*e)}")
    pub_cons()
    E.label("L_pv_done")
    A(f"s_add_u32 {sCI}, {sCI}, 1"); A(f"s_cmp_lt_u32 {sCI}, {sNS}"); A("s_cbranch_scc1 L_loop")
    if touch:
        for nm in ("fin","red","ffn","ffn2"): touch_pad(nm)
    if forcepar is None:
        A(f"v_mov_b32 v{vTM}, {WS_PAR}")
        poll([f"global_load_dwordx4 {Q4(vF)}, v{vTM}, {pWS} {ldf}"], [[vF+1, vF+3]])
        A(f"v_readfirstlane_b32 {sP0}, v{vF}"); A(f"v_readfirstlane_b32 {sP1}, v{vF+2}")
    else:
        A(f"s_mov_b32 {sP0}, {forcepar[0]*8192}"); A(f"s_mov_b32 {sP1}, {forcepar[1]*8192}")
    A(f"s_lshl_b32 {sT0}, {sG}, 2"); A(f"s_and_b32 {sT1}, {sW}, 1"); A(f"s_add_u32 {sT0}, {sT0}, {sT1}"); A(f"s_lshl_b32 {sT0}, {sT0}, 14")
    A(f"s_lshr_b32 {sT1}, {sW}, 1"); A(f"s_lshl_b32 {sT1}, {sT1}, 13"); A(f"s_xor_b32 {sT1}, {sT1}, {sP0}"); A(f"s_add_u32 {sT0}, {sT0}, {sT1}")
    A(f"s_lshl_b32 {sT1}, {sJ}, 8"); A(f"s_add_u32 {sT0}, {sT0}, {sT1}"); A(f"s_add_u32 {sT0}, {sT0}, {WS_A}")
    A(f"v_lshrrev_b32 v{vAA}, 1, v{vG4}"); A(f"v_lshlrev_b32 v{vAA}, 15, v{vAA}")
    A(f"v_and_b32 v{vTM}, 1, v{vG4}"); A(f"v_lshl_or_b32 v{vAA}, v{vTM}, 12, v{vAA}"); A(f"v_lshl_or_b32 v{vAA}, v{vN}, 4, v{vAA}")
    A(f"v_add_u32 v{vAA}, {sT0}, v{vAA}")
    A(f"s_lshr_b32 {sT0}, {sWG}, 3"); A(f"s_lshl_b32 {sT0}, {sT0}, 1"); A(f"s_bfe_u32 {sT1}, {sWG}, 0x10001"); A(f"s_add_u32 {sT0}, {sT0}, {sT1}"); A(f"s_lshl_b32 {sT0}, {sT0}, 14")
    A(f"s_bfe_u32 {sT1}, {sWG}, 0x10002"); A(f"s_lshl_b32 {sT1}, {sT1}, 13"); A(f"s_xor_b32 {sT1}, {sT1}, {sP0}"); A(f"s_add_u32 {sT0}, {sT0}, {sT1}")
    A(f"s_and_b32 {sT1}, {sWG}, 1"); A(f"s_lshl_b32 {sT1}, {sT1}, 12"); A(f"s_add_u32 {sT0}, {sT0}, {sT1}"); A(f"s_add_u32 {sT0}, {sT0}, {WS_A}")
    A(f"v_lshlrev_b32 v{vAI}, 4, v{vN}"); A(f"v_lshl_or_b32 v{vAI}, v{vG4}, 10, v{vAI}"); A(f"v_add_u32 v{vAI}, {sT0}, v{vAI}")
    A(f"v_lshl_add_u32 v{vX+3}, v{vLANE}, 6, {sT0}")
    A(f"s_cmp_eq_u32 {sW}, 0"); A(f"s_cselect_b32 {sWRM}, {0x7fffffff if awarm else 0}, 0")
    A(f"s_cmp_ge_u32 {sRR}, 64"); A(f"s_cbranch_scc1 L_nored"); A(f"s_sub_u32 {sT0}, {sW}, 1"); A(f"s_cmp_ge_u32 {sT0}, 2"); A(f"s_cbranch_scc1 L_nored")
    A(f"s_lshl_b32 {sT0}, {sT0}, 14"); A(f"s_lshl_b32 {sT1}, {sRR}, 15"); A(f"s_add_u32 {sT0}, {sT0}, {sT1}"); A(f"s_add_u32 {sT0}, {sT0}, {sP1}"); A(f"s_add_u32 {sT0}, {sT0}, {WS_B}")
    A(f"v_lshl_add_u32 v{vX+3}, v{vLANE}, 7, {sT0}"); A(f"s_mov_b32 {sWRM}, {[0,0x7fffffff,1,2][bwarm]}")
    if bwarm == 3: A(f"global_load_dword v{vX+2}, v{vX+3}, {pWS} {ldf}")
    E.label("L_nored")
    A(f"s_lshl_b32 {sT0}, {sB}, 2"); A(f"s_add_u32 {sT0}, {sT0}, {sW}"); A(f"s_lshl_b32 {sT0}, {sT0}, 18")
    A(f"s_bfe_u32 {sT1}, {sWG}, 0x10006"); A(f"s_lshl_b32 {sT1}, {sT1}, 14"); A(f"s_add_u32 {sT0}, {sT0}, {sT1}"); A(f"s_add_u32 {sT0}, {sT0}, {sP1}")
    A(f"s_and_b32 {sT1}, {sWG}, 63"); A(f"s_lshl_b32 {sT1}, {sT1}, 7"); A(f"s_add_u32 {sT0}, {sT0}, {sT1}"); A(f"s_add_u32 {sT0}, {sT0}, {WS_B}")
    A(f"v_lshrrev_b32 v{vTM}, 3, v{vLANE}"); A(f"v_lshlrev_b32 v{vTM}, 15, v{vTM}")
    A(f"v_and_b32 v{vTM2}, 7, v{vLANE}"); A(f"v_lshl_or_b32 v{vBA}, v{vTM2}, 4, v{vTM}"); A(f"v_add_u32 v{vBA}, {sT0}, v{vBA}")
    E.label("L_mini")
    wait_tile("L_fin")
    qk(1)
    for e in range(4): A(f"v_add_u32 v{vAD[e]}, {sSLOT}, v{vVB[e]}")
    for e in range(4): A(f"ds_read_b64_tr_b16 {P(vF + 2*e)}, v{vAD[e]} offset:8192")
    softmax(1, "b")
    A("s_waitcnt lgkmcnt(0)")
    for e in range(4): A(f"v_mfma_f32_16x16x16_bf16 {Q4(vO+4*e)}, {P(vP)}, {P(vF+2*e)}, {Q4(vO+4*e)}")
    add_l(1)
    slot_advance()
    A(f"s_cmp_eq_u32 {sN}, {sTOT}"); A("s_cbranch_scc1 L_fin")
    A(f"v_mov_b32 v{vTM}, {sN}"); one_lane(f"ds_write_b32 v{vCONS}, v{vTM}")
    A("s_branch L_mini")
    rescale("b")
    E.label("L_pv_park")
    for p in range(park):
        if p < park-1: nx = lab("pk"); A(f"s_cmp_lg_u32 {sCI}, {p}"); A(f"s_cbranch_scc1 {nx}")
        for e in range(4): A(f"v_mfma_f32_16x16x32_bf16 {Q4(vO+4*e)}, {Q4(vP)}, {Q4(vW1+16*p+4*e)}, {Q4(vO+4*e)}")
        A("s_branch L_pv_done")
        if p < park-1: E.label(nx)

    vG=vF; vI=vF+4; sa=vS; sb=vS+1; sw=vS+2
    vA=vQ; vOPR=vQ+4; vOPW=vQ+5; vR0=vQ+6; vR1=vQ+7; vR2=vQ+8; vR3=vQ+9; vR4=vQ+10; vR5=vQ+11; vZ=vQ+12
    E.label("L_ffn_addr")
    A(f"v_lshrrev_b32 v{vTM}, 3, v{vLANE}"); A(f"v_and_b32 v{vTM2}, 7, v{vLANE}")
    A(f"v_lshlrev_b32 v{vR0}, 9, v{vTM}"); A(f"v_lshl_or_b32 v{vR0}, v{vTM2}, 4, v{vR0}"); A(f"s_add_u32 {sT0}, {sP0}, {WS_H}"); A(f"v_add_u32 v{vR0}, {sT0}, v{vR0}")
    A(f"v_mul_u32_u24 v{vR1}, 224, v{vTM}"); A(f"v_lshl_add_u32 v{vR1}, v{vTM2}, 2, v{vR1}"); A(f"v_add_u32 v{vR1}, {L_LN}, v{vR1}")
    ln_read_addr(vR2, L_LN)
    A(f"s_lshl_b32 {sT0}, {sW}, 5"); A(f"s_add_u32 {sT0}, {sT0}, {L_ACT}")
    A(f"v_lshlrev_b32 v{vR3}, 7, v{vG4}"); A(f"v_lshl_add_u32 v{vR3}, v{vN}, 1, v{vR3}"); A(f"v_add_u32 v{vR3}, {sT0}, v{vR3}")
    A(f"v_and_b32 v{vR4}, 1, v{vLANE}"); A(f"v_lshlrev_b32 v{vR4}, 7, v{vR4}"); A(f"v_lshl_add_u32 v{vR4}, v{vG4}, 3, v{vR4}"); A(f"v_add_u32 v{vR4}, {L_ACT}, v{vR4}")
    A(f"s_lshl_b32 {sT0}, {sW}, 16"); A(f"s_lshl_b32 {sT1}, {sIDX}, 7"); A(f"s_add_u32 {sT0}, {sT0}, {sT1}"); A(f"s_add_u32 {sT0}, {sT0}, {sP0}"); A(f"s_add_u32 {sT0}, {sT0}, {WS_D}")
    A(f"v_lshrrev_b32 v{vTM}, 3, v{vN}"); A(f"v_lshlrev_b32 v{vTM}, 12, v{vTM}"); A(f"v_lshl_or_b32 v{vTM}, v{vG4}, 14, v{vTM}")
    A(f"v_lshl_or_b32 v{vTM}, v{vTM2}, 4, v{vTM}"); A(f"v_add_u32 v{vR5}, {sT0}, v{vTM}")
    A("s_branch L_addr_done")
    if align: A(".p2align 12")
    if touch: E.label("L_pad_fin"); A("s_branch L_ret_fin")
    E.label("L_fin")
    stamp(3)
    yreg = [vO, vO+4, vO+8, vO+12, vQ+16, vQ+20, vQ+24]
    xrow("v_add_f32", [vL], [vTM])
    if hilo:
        for e in range(4): A(f"v_pk_add_f32 {P(vO+4*e)}, {P(vO+4*e)}, {P(vO+4*e+2)}")
    A(f"v_log_f32 v{vTM2}, v{vL}"); A(f"v_rcp_f32 v{vTM3}, v{vL}")
    A(f"v_mov_b32 v{vG+3}, {sTAG}")
    A(f"v_add_f32 v{vTM2}, v{vMC}, v{vTM2}")
    SEL4(vG, vO+0, vO+8, vO+1, vO+9, vMX)
    A(f"v_mov_b32_dpp v{vTM}, v{vTM3} quad_perm:[0,0,2,2] row_mask:0x3 bank_mask:0xf")
    A(f"v_mov_b32_dpp v{vG+2}, v{vTM2} quad_perm:[0,0,2,2] row_mask:0x3 bank_mask:0xf")
    SEL4(vG+1, vO+4, vO+12, vO+5, vO+13, vMX)
    A(f"v_mov_b32_dpp v{vTM}, v{vTM3} quad_perm:[1,1,3,3] row_mask:0xc bank_mask:0xf")
    A(f"v_mov_b32_dpp v{vG+2}, v{vTM2} quad_perm:[1,1,3,3] row_mask:0xc bank_mask:0xf")
    A(f"v_mul_f32 v{vG}, v{vG}, v{vTM}"); A(f"v_mul_f32 v{vG+1}, v{vG+1}, v{vTM}")
    A(f"global_store_dwordx4 v{vAA}, {Q4(vG)}, {pWS} {stf}")
    stamp(4)
    if bwarm == 2:
        A(f"s_cmp_lg_u32 {sWRM}, 1"); A("s_cbranch_scc1 L_nobw")
        A(f"global_load_dword v{vX+2}, v{vX+3}, {pWS} {ldf}")
        E.label("L_nobw")
    A(f"v_lshlrev_b32 v{vOPR}, 3, v{vG4}"); A(f"v_add_u32 v{vOPR}, {L_OP}, v{vOPR}")
    A(f"v_lshlrev_b32 v{vOPW}, 1, v{vN}"); A(f"v_add_u32 v{vOPW}, {L_OP}, v{vOPW}")
    A(f"v_mov_b32 v{vZ}, 0")
    A(f"s_cmp_lt_u32 {sIDX}, 28"); A("s_cbranch_scc1 L_ffn_addr")
    A(f"s_cmp_ge_u32 {sRR}, 64"); A("s_cbranch_scc1 L_addr_done")
    A(f"s_lshl_b32 {sT0}, {sRR}, 15"); A(f"s_lshr_b32 {sT1}, {sW}, 1"); A(f"s_lshl_b32 {sT1}, {sT1}, 14"); A(f"s_add_u32 {sT0}, {sT0}, {sT1}")
    A(f"s_and_b32 {sT1}, {sW}, 1"); A(f"s_lshl_b32 {sT1}, {sT1}, 12"); A(f"s_add_u32 {sT0}, {sT0}, {sT1}"); A(f"s_add_u32 {sT0}, {sT0}, {sP1}"); A(f"s_add_u32 {sT0}, {sT0}, {WS_B}")
    A(f"v_lshl_add_u32 v{vR0}, v{vLANE}, 4, {sT0}")
    A(f"s_lshl_b32 {sT0}, {sW}, 6"); A(f"s_add_u32 {sT0}, {sT0}, {L_RED}")
    A(f"v_and_b32 v{vTM}, 7, v{vLANE}"); A(f"v_lshl_add_u32 v{vR1}, v{vTM}, 2, {sT0}")
    A(f"v_and_b32 v{vTM}, 6, v{vLANE}"); A(f"v_lshlrev_b32 v{vR2}, 2, v{vTM}"); A(f"v_add_u32 v{vR2}, {L_RED}, v{vR2}")
    A(f"s_lshl_b32 {sT0}, {sRR}, 6"); A(f"s_add_u32 {sT0}, {sT0}, {sP0}"); A(f"s_add_u32 {sT0}, {sT0}, {WS_H}"); A(f"v_lshl_add_u32 v{vR3}, v{vTM}, 3, {sT0}")
    A(f"s_lshr_b32 {sT0}, {sRR}, 1"); A(f"s_lshl_b32 {sT0}, {sT0}, 14"); A(f"s_and_b32 {sT1}, {sRR}, 1"); A(f"s_lshl_b32 {sT1}, {sT1}, 12"); A(f"s_add_u32 {sT0}, {sT0}, {sT1}")
    A(f"s_add_u32 {sT0}, {sT0}, {sP0}"); A(f"s_add_u32 {sT0}, {sT0}, {WS_D}"); A(f"v_lshl_add_u32 v{vR4}, v{vLANE}, 4, {sT0}")
    A(f"v_lshl_add_u32 v{vR5}, v{vTM}, 1, {sCOL}")
    E.label("L_addr_done")
    aloads = [f"global_load_dwordx4 {Q4(vI+4*i)}, v{vAI}, {pWS} offset:{i*256} {ldf}" for i in range(4)]
    A(f"s_cmp_lg_u32 {sW}, 0"); A("s_cbranch_scc1 L_a_nopoll")
    for l in aloads: A(l)
    E.label("L_a_nopoll")
    wide_addr(vX)
    for h in range(2): read_wide_tile(vX, vWO, h)
    A(f"s_cmp_lg_u32 {sW}, 0"); A("s_cbranch_scc1 L_a_join")
    poll(aloads, [[vI+4*i+3] for i in range(4)], issued=True)
    stamp(5)
    A(f"v_max3_f32 v{vMX}, v{vI+2}, v{vI+6}, v{vI+10}"); A(f"v_max_f32 v{vMX}, v{vMX}, v{vI+14}")
    xrow("v_max_f32", [vMX], [vTM])
    for i in range(4): A(f"v_sub_f32 v{vI+4*i+2}, v{vI+4*i+2}, v{vMX}")
    for i in range(4): A(f"v_exp_f32 v{vI+4*i+2}, v{vI+4*i+2}")
    A(f"v_mul_f32 v{sa}, v{vI}, v{vI+2}"); A(f"v_mul_f32 v{sb}, v{vI+1}, v{vI+2}"); A(f"v_add_f32 v{sw}, v{vI+2}, v{vI+6}")
    for i in range(1,4):
        A(f"v_fmac_f32 v{sa}, v{vI+4*i}, v{vI+4*i+2}"); A(f"v_fmac_f32 v{sb}, v{vI+4*i+1}, v{vI+4*i+2}")
        if i > 1: A(f"v_add_f32 v{sw}, v{sw}, v{vI+4*i+2}")
    xrow("v_add_f32", [sw, sa, sb], [vS+3, vS+4, vS+5])
    A(f"v_rcp_f32 v{sw}, v{sw}")
    A(f"v_mul_f32 v{sa}, v{sa}, v{sw}"); A(f"v_mul_f32 v{sb}, v{sb}, v{sw}")
    A(f"v_mov_b32_dpp v{vS+3}, v{sa} quad_perm:[1,0,3,2] row_mask:0xf bank_mask:0xf")
    A(f"v_mov_b32_dpp v{vS+4}, v{sb} quad_perm:[1,0,3,2] row_mask:0xf bank_mask:0xf")
    A(f"v_cvt_pk_bf16_f32 v{sa}, v{sa}, v{vS+3}"); A(f"v_cvt_pk_bf16_f32 v{sb}, v{sb}, v{vS+4}")
    A("s_mov_b64 exec, 0x5555"); A(f"ds_write2_b32 v{vOPW}, v{sa}, v{sb} offset0:0 offset1:8"); A("s_mov_b64 exec, -1")
    A("s_waitcnt lgkmcnt(0)")
    E.label("L_a_join")
    A("s_barrier")
    A(f"ds_read2_b64 {Q4(vA)}, v{vOPR} offset0:0 offset1:4")
    A(f"v_mov_b32 v{vG+1}, {sTAG}")
    A("s_waitcnt lgkmcnt(0)")
    for t in (0,2,4,6,1,3,5):
        A(f"v_mfma_f32_16x16x32_bf16 {Q4(yreg[t])}, {Q4(vA)}, {Q4(vWO+4*t)}, 0")
    SEL4(vG, yreg[0], yreg[2], yreg[4], yreg[6], vMX)
    SEL4(vG+2, yreg[1], yreg[3], yreg[5], vZ, vTM)
    A(f"global_store_dwordx4 v{vBA}, {Q4(vG)}, {pWS} {stf}")
    stamp(6)
    A(f"s_cmp_lt_u32 {sIDX}, 28"); A("s_cbranch_scc1 L_ffn")
    A(f"s_cmp_ge_u32 {sRR}, 64"); A("s_cbranch_scc1 L_done")
    def inbox(addr): return [f"global_load_dwordx4 {Q4(vI+4*i)}, v{addr}, {pWS} offset:{i*1024} {ldf}" for i in range(4)]
    tags2 = [[vI+4*i+3] if onetag else [vI+4*i+1, vI+4*i+3] for i in range(4)]
    def sum_inbox():
        A(f"v_add_f32 v{sa}, v{vI}, v{vI+4}"); A(f"v_add_f32 v{sb}, v{vI+2}, v{vI+6}")
        A(f"v_add_f32 v{vS+2}, v{vI+8}, v{vI+12}"); A(f"v_add_f32 v{vS+3}, v{vI+10}, v{vI+14}")
        A(f"v_add_f32 v{sa}, v{sa}, v{vS+2}"); A(f"v_add_f32 v{sb}, v{sb}, v{vS+3}")
        A(f"v_add_f32_dpp v{sa}, v{sa}, v{sa} row_ror:8 row_mask:0xf bank_mask:0xf")
        A(f"v_add_f32_dpp v{sb}, v{sb}, v{sb} row_ror:8 row_mask:0xf bank_mask:0xf")
        xrow("v_add_f32", [sa, sb], [vS+2, vS+3])
    vXF = vO
    unpack(vXF, vXF+1, vXH); unpack(vXF+2, vXF+3, vXH+1)
    if touch: pad("red")
    poll(inbox(vR0), tags2)
    stamp(7)
    sum_inbox()
    A("s_mov_b64 exec, 0xff"); A(f"ds_write2_b32 v{vR1}, v{sa}, v{sb} offset0:0 offset1:8"); A("s_mov_b64 exec, -1")
    A("s_waitcnt lgkmcnt(0)"); A("s_barrier")
    A(f"s_cmp_lg_u32 {sW}, 0"); A("s_cbranch_scc1 L_done")
    for i in range(4): A(f"ds_read2_b64 {Q4(vI+4*i)}, v{vR2} offset0:{i*8} offset1:{i*8+4}")
    def add_resid(y, dst):
        A(f"v_cvt_pk_bf16_f32 v{dst}, v{y}, v{y+1}"); A(f"v_cvt_pk_bf16_f32 v{dst+2}, v{y+2}, v{y+3}")
        unpack(y, y+1, dst); unpack(y+2, y+3, dst+2)
        A(f"v_pk_add_f32 {P(y)}, {P(y)}, {P(vXF)}"); A(f"v_pk_add_f32 {P(y+2)}, {P(y+2)}, {P(vXF+2)}")
        A(f"v_cvt_pk_bf16_f32 v{dst}, v{y}, v{y+1}"); A(f"v_cvt_pk_bf16_f32 v{dst+2}, v{y+2}, v{y+3}")
    A("s_waitcnt lgkmcnt(2)")
    A(f"v_pk_add_f32 {P(vI)}, {P(vI)}, {P(vI+4)}"); A(f"v_pk_add_f32 {P(vI+2)}, {P(vI+2)}, {P(vI+6)}")
    A("s_waitcnt lgkmcnt(0)")
    A(f"v_pk_add_f32 {P(vI+8)}, {P(vI+8)}, {P(vI+12)}"); A(f"v_pk_add_f32 {P(vI+10)}, {P(vI+10)}, {P(vI+14)}")
    A(f"v_pk_add_f32 {P(vI)}, {P(vI)}, {P(vI+8)}"); A(f"v_pk_add_f32 {P(vI+2)}, {P(vI+2)}, {P(vI+10)}")
    add_resid(vI, vG)
    A("s_mov_b64 exec, 0x55"); A(f"global_store_dwordx4 v{vR3}, {Q4(vG)}, {pWS} {stf}"); A("s_mov_b64 exec, -1")
    stamp(8)
    unpack(vXF, vXF+1, vG); unpack(vXF+2, vXF+3, vG+2)
    A(f"v_mov_b32 v{vI+12}, 0"); A(f"v_mov_b32 v{vI+13}, {sTAG}"); A(f"v_mov_b32 v{vI+14}, 0"); A(f"v_mov_b32 v{vI+15}, {sTAG}")
    poll(inbox(vR4), tags2, first_mask=[-1,-1,-1,"s[66:67]"])
    stamp(9)
    sum_inbox()
    A(f"v_mov_b32_dpp v{vI}, v{sa} quad_perm:[0,0,2,2] row_mask:0xf bank_mask:0xf"); A(f"v_mov_b32_dpp v{vI+1}, v{sa} quad_perm:[1,1,3,3] row_mask:0xf bank_mask:0xf")
    A(f"v_mov_b32_dpp v{vI+2}, v{sb} quad_perm:[0,0,2,2] row_mask:0xf bank_mask:0xf"); A(f"v_mov_b32_dpp v{vI+3}, v{sb} quad_perm:[1,1,3,3] row_mask:0xf bank_mask:0xf")
    add_resid(vI, vI+4)
    A("s_mov_b64 exec, 0x55"); A(f"global_store_dword v{vR5}, v{vI+4}, {pOUT} {outf}")
    A(f"s_cmp_eq_u32 {sGP}, 3"); A("s_cbranch_scc1 L_done")
    A(f"global_store_dword v{vR5}, v{vI+6}, {pOUT} offset:32 {outf}")
    A(f"s_cmp_lg_u32 {sRR}, 0"); A("s_cbranch_scc1 L_done")
    A(f"s_add_u32 {sT0}, {sE}, 1"); A(f"v_mov_b32 v{vTM2}, {sT0}"); A(f"v_mov_b32 v{vTM3}, {WS_E}")
    A("s_mov_b64 exec, 1"); A(f"global_store_dword v{vTM3}, v{vTM2}, {pWS} {stf}")
    if enc5:
        A(f"v_mov_b32 v{vTM}, {WS_PAR+32}"); A(f"global_load_dword v{vTM2}, v{vTM}, {pWS} {ldf}"); A("s_waitcnt vmcnt(0)")
        A(f"v_readfirstlane_b32 {sT0}, v{vTM2}"); A(f"s_and_b32 {sT0}, {sT0}, 63"); A(f"s_mul_i32 {sT0}, {sT0}, 5000")
        A("s_memrealtime s[90:91]"); A("s_waitcnt lgkmcnt(0)")
        E.label("L_enc5")
        A("s_memrealtime s[94:95]"); A("s_waitcnt lgkmcnt(0)")
        A(f"s_sub_u32 {sT1}, s94, s90"); A(f"s_cmp_lt_u32 {sT1}, {sT0}"); A("s_cbranch_scc1 L_enc5")
    if enc:
        A("s_memrealtime s[90:91]"); A("s_waitcnt lgkmcnt(0)")
        A(f"s_sub_u32 {sT0}, s{70+2*enc[1]}, s{70+2*enc[0]}"); A(f"s_lshl_b32 {sT0}, {sT0}, 2"); A(f"s_min_u32 {sT0}, {sT0}, 100000")
        E.label("L_enc")
        A("s_memrealtime s[94:95]"); A("s_waitcnt lgkmcnt(0)")
        A(f"s_sub_u32 {sT1}, s94, s90"); A(f"s_cmp_lt_u32 {sT1}, {sT0}"); A("s_cbranch_scc1 L_enc")
    A("s_branch L_done")
    if touch: E.label("L_pad_ffn"); A("s_branch L_ret_ffn")
    E.label("L_ffn")
    A(f"s_cmp_lg_u32 {sW}, 0"); A("s_cbranch_scc1 L_c_join")
    poll([f"global_load_dwordx4 {Q4(vI+4*u)}, v{vR0}, {pWS} offset:{u*128} {ldf}" for u in range(4)], tags2)
    stamp(7)
    layernorm([vI+2*u for u in range(7)], vO, vR1, 32, mid=(lambda: pad("ffn2")) if touch else None)
    A("s_waitcnt lgkmcnt(0)")
    E.label("L_c_join")
    A("s_barrier")
    def aread(i): A(f"ds_read_b128 {Q4(vF + 4*(i % NF))}, v{vR2} offset:{i*64}")
    for i in range(NF): aread(i)
    for i in range(14):
        A(f"s_waitcnt lgkmcnt({min(NF-1, 13-i)})")
        A(f"v_mfma_f32_16x16x32_bf16 {Q4(vS)}, {Q4(vF + 4*(i % NF))}, {Q4(vW1+4*i)}, {'0' if i==0 else Q4(vS)}")
        if i + NF < 14: aread(i+NF)
    for b in range(2): A(f"v_mov_b32 v{vO+4*b+1}, {sTAG}"); A(f"v_mov_b32 v{vO+4*b+3}, {sTAG}")
    A(f"v_add_u32 v{vR0}, {16*16384}, v{vR5}")
    A(f"v_cndmask_b32 v{vTM}, v{vS}, v{vS+1}, {sM1}")
    round_bf(vTM, vTM)
    A(f"v_mul_f32 v{vTM2}, {(LOG2E | 0x80000000):#x}, v{vTM}")
    A(f"v_exp_f32 v{vTM2}, v{vTM2}")
    A(f"v_add_f32 v{vTM2}, 1.0, v{vTM2}")
    A(f"v_rcp_f32 v{vTM2}, v{vTM2}")
    A(f"v_mul_f32 v{vTM}, v{vTM}, v{vTM2}")
    A(f"v_cvt_pk_bf16_f32 v{vTM}, v{vTM}, v{vTM}")
    A("s_mov_b32 exec_hi, 0"); A(f"ds_write_b16 v{vR3}, v{vTM}"); A("s_mov_b32 exec_hi, -1")
    A("s_waitcnt lgkmcnt(0)"); A("s_barrier")
    for ks in range(2): A(f"ds_read2_b64 {Q4(vF+4*ks)}, v{vR4} offset0:{ks*8} offset1:{ks*8+4}")
    zreg = [vW1+4*t for t in range(7)]
    for ks in range(2):
        A(f"s_waitcnt lgkmcnt({1-ks})")
        for t in (0,2,4,6,1,3,5):
            A(f"v_mfma_f32_16x16x32_bf16 {Q4(zreg[t])}, {Q4(vF+4*ks)}, {Q4(vW2+28*ks+4*t)}, {'0' if ks==0 else Q4(zreg[t])}")
    for b in range(2): SEL4(vO+4*b, zreg[0]+b, zreg[2]+b, zreg[4]+b, zreg[6]+b, vMX)
    for b in range(2):
        SEL4(vO+4*b+2, zreg[1]+b, zreg[3]+b, zreg[5]+b, vZ, vMX)
        A(f"global_store_dwordx4 v{vR5 if b == 0 else vR0}, {Q4(vO+4*b)}, {pWS} {stf}")
    stamp(8)
    E.label("L_done")
    if diag:
        stamp(10)
        A("s_mov_b64 exec, -1")
        A(f"s_lshl_b32 {sT0}, {sWG}, 2"); A(f"s_add_u32 {sT0}, {sT0}, {sW}"); A(f"s_lshl_b32 {sT0}, {sT0}, 7"); A(f"s_add_u32 {sT0}, {sT0}, {WS_ST}")
        A("s_getreg_b32 s100, hwreg(HW_REG_XCC_ID)")
        A("s_waitcnt lgkmcnt(0)")
        A(f"v_mov_b32 v{vTM}, {sT0}")
        A("s_mov_b64 exec, 1")
        for k in range(11): A(f"v_mov_b32 v{vW1+k}, s{70+2*k}")
        A(f"v_mov_b32 v{vW1+11}, s100"); A(f"v_mov_b32 v{vW1+12}, {sN}"); A(f"v_mov_b32 v{vW1+13}, {sROLE}"); A(f"v_mov_b32 v{vW1+14}, {sWG}"); A(f"v_mov_b32 v{vW1+15}, {sIDX}")
        for k in range(4): A(f"v_mov_b32 v{vW1+16+k}, s{92+2*k}")
        for q in range(5): A(f"global_store_dwordx4 v{vTM}, {Q4(vW1+4*q)}, {pWS} offset:{q*16}")
    E.label("L_end")
    A("s_endpgm")

    E.label("L_ffn_w")
    wide_addr(vX); tall_addr(vX+1)
    for t in range(4): read_tall_tile(vX+1, vW1, t)
    for t in range(4): read_wide_tile(vX, vW2 + 28*(t>>1), t & 1)
    A("s_branch L_ffn_w_done")
    E.label("L_ld_ffn")
    A(f"s_mov_b64 s[52:53], s[{pK[0]}:{pK[1]}]"); A("s_mov_b32 s54, 0"); A("s_mov_b32 s55, 0x20000")
    tall_voffs(3584); A(f"v_lshlrev_b32 v{vLIN}, 4, v0")
    A(f"s_mov_b64 s[48:49], s[{pW1[0]}:{pW1[1]}]"); A(f"s_mov_b32 s50, {448*1792*2}")
    A(f"s_lshl_b32 {sBASE}, {sIDX}, 7")
    for t in range(4):
        if t % 2 == 0: freecheck(2)
        tile_tall(3584, t, 16 if t < 3 else 8)
    A(f"s_mov_b64 s[48:49], s[{pW2[0]}:{pW2[1]}]")
    A(f"s_mul_i32 {sBASE}, {sIDX}, {64*896}"); A(f"s_add_u32 {sT2}, {sN}, 4")
    E.label("L_ld_w2")
    freecheck(1)
    tile_wide()
    A(f"s_cmp_lt_u32 {sN}, {sT2}"); A("s_cbranch_scc1 L_ld_w2")
    A("s_branch L_ld_head_done")
    if forcepar is None:
        E.label("L_probe")
        A(f"s_load_dword s69, {pWS}, {WS_E}")
        A("v_and_b32 v32, 1, v0"); A("v_lshlrev_b32 v32, 13, v32"); A("v_lshrrev_b32 v33, 2, v0"); A("v_lshl_add_u32 v32, v33, 8, v32")
        A("v_bfe_u32 v33, v0, 1, 1"); A(f"v_mul_u32_u24 v33, {WS_B-WS_PRB}, v33"); A(f"v_add_u32 v32, v32, v33"); A(f"v_add_u32 v32, {WS_PRB}, v32")
        A("v_mov_b32 v36, 0"); A(f"s_mov_b32 {sCI}, {nprobe}")
        A(f"s_mov_b64 exec, {(1<<(4*nprobe))-1:#x}"); A(f"global_atomic_add v37, v32, v36, {pWS} sc0")
        A("s_mov_b64 exec, 1")
        for k,off in enumerate((WS_PRB, WS_PRB+8192, WS_B, WS_B+8192)):
            A(f"v_mov_b32 v{32+k}, {off}"); A(f"s_mov_b32 s{92+k}, {-1 if pmin else 0}")
        A("s_waitcnt vmcnt(0)")
        E.label("L_probe_loop")
        for k in range(4):
            A("s_memtime s[64:65]"); A("s_waitcnt lgkmcnt(0)")
            A(f"global_atomic_add v37, v{32+k}, v36, {pWS} sc0"); A("s_waitcnt vmcnt(0)")
            A("s_memtime s[66:67]"); A(f"v_add_u32 v{32+k}, 256, v{32+k}"); A("s_waitcnt lgkmcnt(0)")
            A("s_sub_u32 s66, s66, s64")
            if diag == 3:
                A(f"s_lshl_b32 {sT0}, {sCI}, 4"); A(f"s_add_u32 {sT0}, {sT0}, {WS_ST+0x50000+4*k}"); A(f"v_mov_b32 v38, {sT0}"); A("v_mov_b32 v39, s66")
                A(f"global_store_dword v38, v39, {pWS}")
            if pmin: A(f"s_min_u32 s{92+k}, s{92+k}, s66")
            else: A(f"s_min_u32 s66, s66, {clip}"); A(f"s_add_u32 s{92+k}, s{92+k}, s66")
        A(f"s_sub_u32 {sCI}, {sCI}, 1"); A(f"s_cmp_lg_u32 {sCI}, 0"); A("s_cbranch_scc1 L_probe_loop")
        A("s_cmp_gt_u32 s92, s93"); A(f"s_cselect_b32 {sT0}, 8192, 0")
        A("s_cmp_gt_u32 s94, s95"); A(f"s_cselect_b32 {sT1}, 8192, 0")
        if enc5:
            A("s_mov_b32 s96, 0")
            for ti,ptr in enumerate(("s[6:7]","s[8:9]")):
                for pi,pos in enumerate((0, 100<<20, 200<<20)):
                    A(f"v_mov_b32 v40, {pos+4096}"); A(f"global_load_dword v41, v40, {ptr} nt"); A("s_waitcnt vmcnt(0)")
                    A("s_mov_b32 s92, -1"); A("s_mov_b32 s93, -1")
                    for smp in range(5):
                        for par in range(2):
                            A(f"v_mov_b32 v40, {pos+par*8192+smp*256}")
                            A("s_memtime s[64:65]"); A("s_waitcnt lgkmcnt(0)")
                            A(f"global_load_dword v41, v40, {ptr} nt"); A("s_waitcnt vmcnt(0)")
                            A("s_memtime s[66:67]"); A("s_waitcnt lgkmcnt(0)")
                            A("s_sub_u32 s66, s66, s64"); A(f"s_min_u32 s{92+par}, s{92+par}, s66")
                    A("s_cmp_gt_u32 s92, s93"); A(f"s_cselect_b32 s97, {1<<(ti*3+pi)}, 0"); A("s_or_b32 s96, s96, s97")
            A(f"v_mov_b32 v40, {WS_PAR+32}"); A("v_mov_b32 v41, s96"); A(f"global_store_dword v40, v41, {pWS} {stf}"); A("s_waitcnt vmcnt(0)")
        make_tag(sT2, "s69")
        A(f"v_mov_b32 v32, {sT0}"); A(f"v_mov_b32 v33, {sT2}"); A(f"v_mov_b32 v34, {sT1}"); A(f"v_mov_b32 v35, {sT2}"); A(f"v_mov_b32 v36, {WS_PAR}")
        A(f"global_store_dwordx4 v36, v[32:35], {pWS} {stf}")
        A("s_mov_b64 exec, -1")
        A("s_branch L_ld_wo")

    body = E.finish()
    head = open("sequential_preLN__gqa_block_cached__dense_activation_silu__decode.s.ref").read().split("; Override launch")[0]
    src = head + f"""; Design (one persistent launch, 256 workgroups = one per CU, written by my own generator script):
;  * workgroup = (batch, kv head) group g = id>>4, split j = id&15.  Wave 0 streams K/V with LDS-DMA into a 9 x 16 KiB
;    LDS ring; waves 1-4 compute with MFMA.  Every split owns 64 tiles of 32 keys: first its K (scores to LDS, true
;    maximum), then its V (each wave 64 of the 256 dims).  The last tiles form per-group pools handed out with atomic counters:
;    whole K tiles at the end of the K pass, 16-key K+V tiles with online softmax (true running maximum) at the very end.
;  * q = LN(x) @ wq is computed by 64 workgroups and handed over in tagged granules; V tiles are parked in registers meanwhile.
;  * tail, four tagged hand-offs through d_ws: split combine + wo rows -> column sums + residual -> LN, w1, silu, w2 rows
;    -> column sums + residual.  bf16 roundings sit where the reference materialises bf16 tensors.
;  * tag = hash of an epoch word found in d_ws (advanced at the end): it only tells this launch's granules from older ones.
;  * one workgroup times a few zero-adds to learn which 8 KiB parity of the hand-off pages is close to the readers;
;    the answer and the role/id mapping only pick addresses (speed), never values.  All spins are bounded.
; @launch grid=(256,1,1) block=(320,1,1) lds={LDS}
.amdgcn_target "amdgcn-amd-amdhsa--gfx950"
.text
.globl {NAME}
{'.p2align 12' if align else ''}
.p2align 8
.type {NAME},@function
{NAME}:
{body}.section .rodata,"a"
.p2align 6
.amdhsa_kernel {NAME}
  .amdhsa_next_free_vgpr 256
  .amdhsa_next_free_sgpr 102
  .amdhsa_accum_offset 256
  .amdhsa_group_segment_fixed_size 0
  .amdhsa_kernarg_size 88
  .amdhsa_user_sgpr_count 2
  .amdhsa_user_sgpr_kernarg_segment_ptr 1
  .amdhsa_system_sgpr_workgroup_id_x 1
.end_amdhsa_kernel
"""
    return src, E.npad

if __name__ == "__main__":
    out = sys.argv[1]
    kw = json.loads(sys.argv[2]) if len(sys.argv) > 2 else {}
    src, npad = gen(**kw)
    open(out, "w").write(src)
    print("wrote", out, "lines", src.count("\n"), "pad states", npad)
```

```python
import sys, json, struct
from emit import Emitter

NAME = "sequential_preLN__gqa_block_cached__dense_activation_silu__decode_kernel"
def f2u(x): return struct.unpack("<I", struct.pack("<f", x))[0]

def gen(W=19, NS=58, NA=60, diag=False, hilo=True, spin=1<<20, enc=None, NF=5, ldst=None, qwait=2, forcepar=None, nprobe=3, clip=2000,
        touch=0, qtouch=1, lastfast=1, outf='sc1', onetag=1, nap=0, grp=4, align=1, park=4, ltouch=0, wpre=(2,4), awarm=1, bwarm=2, WD=None, jpos=(15,16,20,21), MAXA=24, front=1, pmin=1, enc5=0, gpos=(12,13)):
    E = Emitter(); A = E
    pol = "nt"; stf = ldf = "sc1"
    NSLOT = 9; SLOT = 16384; RING = NSLOT*SLOT; LDS = 163840
    L_FLAG = RING; L_CONS = RING+16; L_RED = RING+256; L_OP = RING+512; L_ACT = RING+768; L_QW = RING+1024; L_LN = RING+2048; L_SC = RING+4096; L_MX = RING+64; L_KD = 36
    WS_E = 0; WS_PAR = 0x800; WS_CNT = 0x1000; WS_H = 0x4000; WS_Q = 0x8000; WS_PRB = 0x10000; WS_D = 0x80000; WS_A = 0x100000; WS_B = 0x200000; WS_ST = 0x400000
    C_SCALE = f2u(1.4426950408889634/16.0); LOG2E = f2u(1.4426950408889634); INV448 = f2u(1.0/448.0); EPS = f2u(1e-5)
    PA = 16+16*(NA-NS); POOL = 32*(64-NA); PROBE = 15*16+3; assert (NS+MAXA)*128 <= 12288 and 16*MAXA >= PA
    assert 12 <= W <= 32 and NF <= 5
    sWG="s2"; sWAVE="s3"
    pX="s[4:5]"; pK=(6,7); pV=(8,9); pWQ=(10,11); pWO=(12,13); pW1=(16,17); pW2=(18,19); pOUT="s[20:21]"; pWS="s[24:25]"
    sG="s26"; sJ="s27"; sROLE="s28"; sN="s31"; sSLOT="s32"; sKNOWN="s33"; sT0="s34"; sT1="s35"; sT2="s36"
    sCI="s37"; sSPIN="s38"; sIDX="s39"; sNS="s63"; sPK="s68"
    vK=[4+i for i in range(8)]; vV=[12+i for i in range(4)]; vLIN=16; vT=[17,18]; vFL=21; vTMP=22; vC=24; vCA=28; vONE=29; vCL=[30,31]
    srdK="s[40:43]"; srdV="s[44:47]"; srdW="s[48:51]"; srdZ="s[52:55]"
    sCUR="s56"; sGB="s57"; sOFF="s58"; sCLM="s59"; sBASE="s61"; sFLOOR="s62"; sOWN="s60"; sVC="s64"; sK0="s66"
    sB="s29"; sHKV="s30"; sW="s40"; sTAG="s41"; sM1="s[42:43]"; sM2="s[44:45]"; sC="s46"; sE="s47"; sRR="s48"; sTOT="s49"
    sCK=["s[50:51]","s[52:53]","s[54:55]","s[56:57]"]; sCOL="s58"; sGP="s59"; sP0="s60"; sP1="s61"; sWRM="s62"; sKE="s69"; sN0="s101"
    vLANE=0; vN=1; vG4=2; vFLG=3; vCONS=4; vTM=5; vTM2=6; vTM3=7
    vM=8; vMC=9; vL=10; vMX=11
    vKB=[12,13,14,15]; vVB=[16,17,18,19]; vAD=[20,21,22,23]
    vS=24; vP=32; vO=36; vQ=52; vF=84; vAA=104; vAI=105; vBA=106
    vWO=108; vW1=136; vW2=192; vX=248; vXH=254
    xr1 = [vWO+u for u in range(7)]; vLW1 = vWO+24

    uid=[0]
    def lab(p): uid[0]+=1; return f"L_{p}_{uid[0]}"
    def P(r): return f"v[{r}:{r+1}]"
    def Q4(r): return f"v[{r}:{r+3}]"
    def stamp(k):
        if not diag and not (enc and k in (0, enc[0], enc[1])): return
        A(f"s_memrealtime s[{70+2*k}:{71+2*k}]")
    def slot_advance():
        A(f"s_add_u32 {sN}, {sN}, 1"); A(f"s_add_u32 {sSLOT}, {sSLOT}, {SLOT}")
        A(f"s_cmp_eq_u32 {sSLOT}, {RING}"); A(f"s_cselect_b32 {sSLOT}, 0, {sSLOT}")
    def spin_guard(): A(f"s_sub_u32 {sSPIN}, {sSPIN}, 1"); A("s_cbranch_scc1 L_end")
    def one_lane(ins): A("s_mov_b64 exec, 1"); A(ins); A("s_mov_b64 exec, -1")
    def share_consts(part=3):
        if part & 1:
            A(f"s_sub_u32 {sT0}, {sROLE}, 8"); A(f"s_lshl_b32 {sIDX}, {sG}, 1"); A(f"s_add_u32 {sIDX}, {sIDX}, {sT0}")
            A(f"s_cmp_lt_u32 {sT0}, 2"); A(f"s_cselect_b32 {sIDX}, {sIDX}, 99")
            A(f"s_cmp_lt_u32 {sROLE}, 4"); A(f"s_cselect_b32 {sPK}, {park//2}, {park}")
            A(f"s_cmp_lt_u32 {sIDX}, 28"); A(f"s_cselect_b32 {sPK}, 0, {sPK}"); A(f"s_cmp_eq_u32 {sIDX}, 30"); A(f"s_cselect_b32 {sPK}, 0, {sPK}")
        if part & 2:
            A(f"s_cmp_lt_u32 {sROLE}, 4"); A(f"s_cselect_b32 {sNS}, {NS-2}, {NS}")
            A(f"s_cmp_lt_u32 {sIDX}, 30"); A(f"s_cselect_b32 {sNS}, {NS-4}, {sNS}"); A(f"s_cmp_eq_u32 {sIDX}, 30"); A(f"s_cselect_b32 {sNS}, {NS-8}, {sNS}")
    def make_tag(dst, e): A(f"s_mul_i32 {dst}, {e}, 0x9e3779b1"); A(f"s_add_u32 {dst}, {dst}, 0x7f4a7c15")
    pads = []
    def pad(name):
        sk = lab("padskip"); A(f"s_branch {sk}"); E.label(f"L_pad_{name}"); A(f"s_branch L_ret_{name}"); E.label(sk)
    def touch_pad(name): A(f"s_branch L_pad_{name}"); E.label(f"L_ret_{name}")

    A(f"s_cmp_ge_u32 {sWG}, 256"); A("s_cbranch_scc1 L_end")
    stamp(0)
    A("s_load_dwordx16 s[4:19], s[0:1], 0"); A("s_load_dwordx4 s[20:23], s[0:1], 64"); A("s_load_dwordx2 s[24:25], s[0:1], 80")
    A("v_lshrrev_b32 v1, 6, v0"); A("v_and_b32 v0, 63, v0"); A(f"v_readfirstlane_b32 {sWAVE}, v1")
    A(f"s_lshr_b32 {sG}, {sWG}, 4"); A(f"s_and_b32 {sJ}, {sWG}, 15")
    A(f"s_lshr_b32 {sT0}, {sJ}, 1"); A(f"s_and_b32 {sT0}, {sT0}, 4"); A(f"s_and_b32 {sROLE}, {sJ}, 3"); A(f"s_add_u32 {sROLE}, {sROLE}, {sT0}")
    A(f"s_sub_u32 {sROLE}, {sROLE}, {sG}"); A(f"s_and_b32 {sROLE}, {sROLE}, 7")
    A(f"s_add_u32 {sT0}, {sROLE}, 4"); A(f"s_add_u32 {sT1}, {sROLE}, 8"); A(f"s_cmp_lt_u32 {sROLE}, 4"); A(f"s_cselect_b32 {sROLE}, {sROLE}, {sT1}")
    A(f"s_bitcmp1_b32 {sJ}, 2"); A(f"s_cselect_b32 {sROLE}, {sROLE}, {sT0}")
    A(f"s_mov_b32 {sN}, 0"); A(f"s_mov_b64 s[32:33], 0"); A(f"s_mov_b32 {sCI}, 0"); A(f"s_mov_b32 {sSPIN}, {spin}")
    A(f"v_mov_b32 v3, {L_FLAG}"); A(f"v_lshl_add_u32 v1, v0, 2, v3"); A("v_mov_b32 v2, 0")
    A("s_mov_b64 exec, 6"); A("v_bfrev_b32 v2, -2"); A("s_mov_b64 exec, 0x1fff"); A("ds_write_b32 v1, v2"); A("s_mov_b64 exec, -1")
    A(f"v_lshrrev_b32 v1, 5, v0"); A(f"v_mul_u32_u24 v1, 896, v1"); A(f"v_and_b32 v2, 31, v0"); A(f"v_lshl_add_u32 v{vLW1}, v2, 2, v1")
    A("s_waitcnt lgkmcnt(0)")
    A("s_barrier")
    A(f"s_cmp_eq_u32 {sWAVE}, 0"); A("s_cbranch_scc1 L_loader")
    A(f"s_load_dword {sE}, {pWS}, {WS_E}")
    A(f"s_cmp_ge_u32 {sROLE}, 4"); A("s_cbranch_scc1 L_consumer")
    for u in range(7): A(f"global_load_dword v{xr1[u]}, v{vLW1}, {pX} offset:{u*128}")
    A("s_branch L_qprod")

    def publish(back):
        A(f"s_sub_u32 {sT0}, {sN}, {back}"); A(f"s_max_i32 {sT0}, {sT0}, {sFLOOR}")
        A(f"v_mov_b32 v{vTMP}, {sT0}"); one_lane(f"ds_write_b32 v{vFL}, v{vTMP}")
    def throttle(i, W=W):
        if i % grp == grp-1:
            A(f"s_waitcnt vmcnt({W})")
            if i+1+16 >= W and (i+1-grp+16 < W or i < grp): publish(1)
    def tile_rows(specs, pol=pol, W=W):
        for i,(srd,vo,so) in enumerate(specs):
            if i % 4 == 0:
                A(f"s_add_u32 m0, {sSLOT}, {i*1024}" if i else f"s_mov_b32 m0, {sSLOT}")
                A(f"s_add_u32 {sOFF}, {sBASE}, {so}" if so else f"s_mov_b32 {sOFF}, {sBASE}")
            A(f"buffer_load_dwordx4 v{vo}, {srd}, {sOFF} offen offset:{(i%4)*1024} {pol} lds")
            throttle(i, W)
        slot_advance()
    def tile_tall(rowstride, t, nvalid):
        for i in range(16):
            A(f"s_add_u32 m0, {sSLOT}, {i*1024}" if i else f"s_mov_b32 m0, {sSLOT}")
            A(f"s_add_u32 {sOFF}, {sBASE}, {(t*128+i*8)*rowstride}")
            A(f"buffer_load_dwordx4 v{vT[i&1]}, {srdW if i < nvalid else srdZ}, {sOFF} offen {pol} lds")
            throttle(i)
        slot_advance()
    def tile_wide(pol=pol):
        tile_rows([(srdW if i < 14 else srdZ, vLIN, i*1024) for i in range(16)], pol)
        A(f"s_add_u32 {sBASE}, {sBASE}, 14336")
    def tall_voffs(stride):
        A("v_lshrrev_b32 v1, 3, v0"); A("v_and_b32 v2, 7, v0"); A("v_and_b32 v3, 2, v1"); A("v_xor_b32 v2, v2, v3"); A("v_lshlrev_b32 v2, 4, v2")
        A(f"v_mul_u32_u24 v3, {stride}, v1"); A(f"v_add_u32 v{vT[0]}, v3, v2"); A("v_xor_b32 v2, 64, v2"); A(f"v_add_u32 v{vT[1]}, v3, v2")
    def freecheck(k):
        ok = lab("free"); lp = lab("freepoll")
        A(f"s_add_u32 {sT0}, {sKNOWN}, {NSLOT-k}"); A(f"s_cmp_ge_u32 {sT0}, {sN}"); A(f"s_cbranch_scc1 {ok}")
        E.label(lp)
        A(f"ds_read_b128 {Q4(vC)}, v{vFL} offset:16")
        spin_guard()
        A("s_waitcnt lgkmcnt(0)")
        A(f"v_min3_u32 v{vC}, v{vC}, v{vC+1}, v{vC+2}"); A(f"v_min_u32 v{vC}, v{vC}, v{vC+3}")
        A(f"v_readfirstlane_b32 {sKNOWN}, v{vC}")
        A(f"s_add_u32 {sT0}, {sKNOWN}, {NSLOT-k}"); A(f"s_cmp_ge_u32 {sT0}, {sN}"); A(f"s_cbranch_scc1 {ok}")
        A("s_sleep 1"); A(f"s_branch {lp}")
        E.label(ok)
    def claim(p, off=0):
        one_lane(f"global_atomic_add v{vCL[p]}, v{vCA}, v{vONE}, {pWS} offset:{off} sc0")
    def claim_last_two(cnt, lim, off):
        nc = lab("nocl"); c1 = lab("cl1")
        A(f"s_add_u32 {sT0}, {cnt}, 1"); A(f"s_cmp_lt_u32 {sT0}, {lim}"); A(f"s_cbranch_scc1 {nc}")
        A(f"s_cmp_eq_u32 {cnt}, {lim}"); A(f"s_cbranch_scc1 {c1}")
        claim(0, off); A(f"s_branch {nc}")
        E.label(c1); claim(1, off)
        E.label(nc)

    rpos = [b for b in range(12,24) if b not in jpos and b not in gpos]; assert len(rpos) == 6
    goff = lambda i: (((i>>2)&1) << gpos[0]) | (((i>>3)&1) << gpos[1])
    mpos = (gpos[1], gpos[0]) if gpos[0] == 13 else gpos
    RMASK = sum(1<<b for b in rpos)
    def scatter(dst, src, pos, tmp):
        k = 0
        while k < len(pos):
            n = 1
            while k+n < len(pos) and pos[k+n] == pos[k]+n: n += 1
            A(f"s_bfe_u32 {tmp}, {src}, {(n<<16)|k:#x}"); A(f"s_lshl_b32 {tmp}, {tmp}, {pos[k]}"); A(f"s_or_b32 {dst}, {dst}, {tmp}")
            k += n
    def next_tile():
        A(f"s_or_b32 {sCUR}, {sCUR}, {(~RMASK)&0xffffffff:#x}"); A(f"s_add_u32 {sCUR}, {sCUR}, 1"); A(f"s_and_b32 {sCUR}, {sCUR}, {RMASK:#x}")
        A(f"s_or_b32 {sBASE}, {sOWN}, {sCUR}")
    E.label("L_loader")
    A("s_setprio 3")
    A(f"v_mov_b32 v{vFL}, v3"); A(f"s_mov_b32 {sFLOOR}, 0")
    A("s_mov_b32 s50, 3670016"); A("s_mov_b32 s51, 0x20000")
    A(f"s_cmp_ge_u32 {sROLE}, 4"); A("s_cbranch_scc1 L_ld_noq")
    tall_voffs(8192)
    A(f"s_mov_b64 s[48:49], s[{pWQ[0]}:{pWQ[1]}]")
    A(f"s_and_b32 {sOFF}, {sG}, 7"); A(f"s_lshl_b32 {sOFF}, {sOFF}, 3"); A(f"s_lshr_b32 {sT0}, {sG}, 3"); A(f"s_lshl_b32 {sT0}, {sT0}, 2")
    A(f"s_add_u32 {sOFF}, {sOFF}, {sT0}"); A(f"s_add_u32 {sOFF}, {sOFF}, {sROLE}"); A(f"s_lshl_b32 {sOFF}, {sOFF}, 7")
    A("s_mov_b32 m0, 0")
    E.label("L_ld_q")
    for i in range(2):
        A(f"buffer_load_dwordx4 v{vT[i]}, {srdW}, {sOFF} offen {pol} lds")
        A(f"s_add_u32 {sOFF}, {sOFF}, {8*8192}"); A("s_add_u32 m0, m0, 1024")
    A(f"s_cmp_lt_u32 m0, {56*1024}"); A("s_cbranch_scc1 L_ld_q")
    A(f"s_mov_b32 {sN}, 4"); A(f"s_mov_b32 {sSLOT}, {4*SLOT}"); A(f"s_mov_b32 {sFLOOR}, 4")
    A(f"v_mov_b32 v{vTMP}, 4"); A("s_waitcnt vmcnt(0)"); one_lane(f"ds_write_b32 v{vFL}, v{vTMP}")
    E.label("L_ld_noq")
    if forcepar is None:
        A(f"s_cmp_eq_u32 {sWG}, {PROBE}"); A("s_cbranch_scc1 L_probe")
    E.label("L_ld_wo")
    A("v_lshrrev_b32 v1, 5, v0"); A("v_and_b32 v2, 31, v0")
    A("v_lshlrev_b32 v3, 1, v1"); A("v_xor_b32 v3, v2, v3"); A("v_lshlrev_b32 v3, 4, v3"); A("v_lshl_or_b32 v3, v1, 9, v3")
    for i in range(4): A(f"v_xor_b32 v{vV[i]}, {i*64}, v3")
    A(f"s_mov_b64 s[44:45], s[{pV[0]}:{pV[1]}]"); A("s_brev_b32 s46, 8"); A("s_mov_b32 s47, s51")
    A(f"s_lshl_b32 {sGB}, {sG}, 24"); A(f"s_mov_b32 {sOWN}, {sGB}"); scatter(sOWN, sJ, jpos, sT0)
    share_consts(1)
    sc = lambda r: sum(((r >> k) & 1) << b for k,b in enumerate(rpos)) if front else 0
    A(f"s_cmp_lt_u32 {sROLE}, 4"); A(f"s_cselect_b32 {sK0}, {sc(2)}, 0")
    A(f"s_cmp_lt_u32 {sIDX}, 30"); A(f"s_cselect_b32 {sK0}, {sc(4)}, {sK0}"); A(f"s_cmp_eq_u32 {sIDX}, 30"); A(f"s_cselect_b32 {sK0}, {sc(8)}, {sK0}")
    A(f"s_mov_b32 {sCUR}, {sK0}")
    A(f"s_cmp_lt_u32 {sIDX}, 28"); A(f"s_cbranch_scc1 L_ld_ffn")
    A(f"s_or_b32 {sBASE}, {sOWN}, {sCUR}"); A(f"s_add_u32 {sT2}, {sN}, {sPK}")
    A(f"s_cmp_eq_u32 {sPK}, 0"); A("s_cbranch_scc1 L_ld_head_done")
    E.label("L_ld_pv")
    tile_rows([(srdV, vV[i%4], goff(i)) for i in range(16)])
    next_tile()
    A(f"s_cmp_lt_u32 {sN}, {sT2}"); A("s_cbranch_scc1 L_ld_pv")
    E.label("L_ld_head_done")
    A(f"s_mov_b32 {sVC}, {sCUR}"); A(f"s_mov_b32 {sCUR}, {sK0}")
    share_consts(2)
    A("v_lshrrev_b32 v1, 5, v0"); A("v_and_b32 v2, 31, v0")
    A("v_xor_b32 v3, v2, v1"); A("v_lshlrev_b32 v3, 4, v3"); A("v_lshl_or_b32 v3, v1, 9, v3")
    for i in range(8): A(f"v_xor_b32 v{vK[i]}, {i*32}, v3")
    A(f"s_lshl_b32 {sT0}, {sG}, 8"); A(f"s_add_u32 {sT0}, {sT0}, {WS_CNT}"); A(f"v_mov_b32 v{vCA}, {sT0}"); A(f"v_mov_b32 v{vONE}, 1")
    A(f"s_mov_b64 s[40:41], s[{pK[0]}:{pK[1]}]"); A("s_mov_b32 s42, 0x10000000"); A("s_mov_b32 s43, 0x20000")
    def ldstamps(list_, k0):
        if not diag: return
        for k,c in enumerate(list_):
            sk=lab("ls"); A(f"s_cmp_lg_u32 {sCI}, {c}"); A(f"s_cbranch_scc1 {sk}"); A(f"s_memrealtime s[{72+2*(k0+k)}:{73+2*(k0+k)}]"); A("s_waitcnt lgkmcnt(0)"); E.label(sk)
    A(f"s_or_b32 {sBASE}, {sOWN}, {sCUR}")
    E.label("L_ld_loop")
    ldstamps((0,4,8,16,32,NS-9), 0)
    freecheck(1)
    A(f"s_add_u32 {sCI}, {sCI}, 1")
    claim_last_two(sCI, sNS, 0)
    tile_rows([(srdK, vK[i%8], goff(i)) for i in range(16)])
    next_tile()
    A(f"s_cmp_lt_u32 {sCI}, {sNS}"); A("s_cbranch_scc1 L_ld_loop")
    vLIST = 19; sNX = "s65"
    A(f"s_mov_b32 {sNX}, 0")
    E.label("L_ld_kdyn")
    for p in range(2):
        A(f"v_readfirstlane_b32 {sCLM}, v{vCL[p]}")
        A(f"s_cmp_ge_u32 {sCLM}, {PA}"); A("s_cbranch_scc1 L_ld_kdone")
        A(f"s_cmp_lt_u32 {sCLM}, 16"); A(f"s_cbranch_scc1 L_ld_shed{p}")
        A(f"s_and_b32 {sT1}, {sCLM}, 15"); A(f"s_lshr_b32 {sCUR}, {sCLM}, 4"); A(f"s_add_u32 {sCUR}, {sCUR}, {NS-1}")
        E.label(f"L_ld_unit{p}")
        A(f"s_mov_b32 {sBASE}, {sGB}"); scatter(sBASE, sT1, jpos, sT0); scatter(sBASE, sCUR, rpos, sT0)
        A(f"s_mov_b32 m0, {sNX}"); A(f"v_writelane_b32 v{vLIST}, {sBASE}, m0"); A(f"s_add_u32 {sNX}, {sNX}, 1")
        freecheck(1)
        full = lab("full"); go = lab("go")
        A(f"s_cmp_ge_u32 {sNX}, {MAXA-1}"); A(f"s_cbranch_scc1 {full}")
        claim(p); A(f"s_branch {go}")
        E.label(full); A(f"v_mov_b32 v{vCL[p]}, {PA}")
        E.label(go)
        tile_rows([(srdK, vK[i%8], goff(i)) for i in range(16)])
    A("s_branch L_ld_kdyn")
    E.label("L_ld_kdone")
    if diag == 4: A("s_memrealtime s[84:85]"); A("s_waitcnt lgkmcnt(0)")
    A(f"v_mov_b32 v{vTMP}, {sN}"); one_lane(f"ds_write_b32 v{vFL}, v{vTMP} offset:8")
    A(f"s_add_u32 {sNX}, {sNX}, {sNS}")
    A(f"s_mov_b32 {sCI}, {sPK}"); A(f"s_mov_b32 {sCUR}, {sVC}"); A(f"s_or_b32 {sBASE}, {sOWN}, {sCUR}")
    E.label("L_ld_vloop")
    if diag != 4: ldstamps((8,40,NS-9), 6)
    freecheck(1)
    A(f"s_sub_u32 {sT0}, {sCI}, {sNS}"); A("s_cbranch_scc1 L_ld_vown")
    A(f"v_readlane_b32 {sBASE}, v{vLIST}, {sT0}")
    E.label("L_ld_vown")
    A(f"s_add_u32 {sCI}, {sCI}, 1")
    claim_last_two(sCI, sNX, 128)
    tile_rows([(srdV, vV[i%4], goff(i)) for i in range(16)])
    next_tile()
    A(f"s_cmp_lt_u32 {sCI}, {sNX}"); A("s_cbranch_scc1 L_ld_vloop")
    if diag == 4: A("s_memrealtime s[86:87]"); A("s_waitcnt lgkmcnt(0)"); A(f"s_mov_b32 s88, {sNX}")
    E.label("L_ld_dyn")
    for p in range(2):
        A(f"v_readfirstlane_b32 {sCLM}, v{vCL[p]}")
        A(f"s_cmp_ge_u32 {sCLM}, {POOL}"); A("s_cbranch_scc1 L_ld_dyn_done")
        A(f"s_bfe_u32 {sT1}, {sCLM}, 0x40001"); A(f"s_lshr_b32 {sCUR}, {sCLM}, 5"); A(f"s_add_u32 {sCUR}, {sCUR}, {NA}")
        A(f"s_and_b32 {sBASE}, {sCLM}, 1"); A(f"s_lshl_b32 {sBASE}, {sBASE}, {mpos[0]}"); A(f"s_or_b32 {sBASE}, {sBASE}, {sGB}")
        scatter(sBASE, sT1, jpos, sT0); scatter(sBASE, sCUR, rpos, sT0)
        freecheck(1)
        claim(p, 128)
        tile_rows([(srdK, vK[i], (i>>2) << mpos[1]) for i in range(8)] + [(srdV, vV[i%4], (i>>2) << mpos[1]) for i in range(8)], W=WD or W)
    A("s_branch L_ld_dyn")
    E.label("L_ld_dyn_done")
    A(f"v_mov_b32 v{vTMP}, {sN}"); one_lane(f"ds_write_b32 v{vFL}, v{vTMP} offset:4")
    A(f"s_mov_b64 s[48:49], s[{pWO[0]}:{pWO[1]}]"); A("s_mov_b32 s50, 3670016")
    A(f"s_and_b32 {sBASE}, {sWG}, 127"); A(f"s_mul_i32 {sBASE}, {sBASE}, {32*896}"); A(f"v_lshlrev_b32 v{vLIN}, 4, v0")
    freecheck(2)
    k = 0
    for t in range(2):
        for i in range(14):
            if i % 4 == 0:
                A(f"s_add_u32 m0, {sSLOT}, {i*1024}" if i else f"s_mov_b32 m0, {sSLOT}")
                A(f"s_add_u32 {sOFF}, {sBASE}, {t*14336+i*1024}")
            if k == wpre[0]: A(f"s_waitcnt vmcnt({16+k})"); publish(1+t)
            if k == wpre[1]: A(f"s_waitcnt vmcnt({k})"); publish(t)
            A(f"buffer_load_dwordx4 v{vLIN}, {srdW}, {sOFF} offen offset:{(i%4)*1024} lds")
            k += 1
        slot_advance()
    for c,back in ((14,1),(0,0)):
        A(f"s_waitcnt vmcnt({c})"); publish(back)
    if diag:
        A("s_mov_b64 exec, 1"); A("s_memrealtime s[90:91]")
        A(f"s_lshl_b32 {sT0}, {sWG}, 6"); A(f"s_add_u32 {sT0}, {sT0}, {WS_ST+0x40000}"); A(f"v_mov_b32 v46, {sT0}")
        A("s_waitcnt lgkmcnt(0)")
        for k in range(11): A(f"v_mov_b32 v{32+k}, s{70+2*k}")
        A(f"v_mov_b32 v43, {sSPIN}")
        for q in range(3): A(f"global_store_dwordx4 v46, v[{32+4*q}:{35+4*q}], {pWS} offset:{q*16}")
    A("s_waitcnt lgkmcnt(0)")
    A("s_endpgm")
    for p in range(2):
        E.label(f"L_ld_shed{p}")
        A(f"s_lshr_b32 {sT0}, {sCLM}, 2"); A(f"s_and_b32 {sT1}, {sCLM}, 3"); A(f"s_add_u32 {sT1}, {sT1}, {0 if front else NS-4}"); A(f"s_add_u32 {sT2}, {sCLM}, {0 if front else NS-8}")
        A(f"s_cmp_eq_u32 {sG}, 15"); A(f"s_cselect_b32 {sT0}, 0, {sT0}"); A(f"s_cselect_b32 {sT1}, {sT2}, {sT1}"); A(f"s_add_u32 {sT0}, {sT0}, 4")
        A(f"s_bfe_u32 {sT2}, {sCLM}, 0x20001"); A(f"s_and_b32 {sCUR}, {sCLM}, 1"); A(f"s_add_u32 {sCUR}, {sCUR}, {0 if front else NS-2}")
        A(f"s_cmp_lt_u32 {sCLM}, 8"); A(f"s_cselect_b32 {sT0}, {sT0}, {sT2}"); A(f"s_cselect_b32 {sCUR}, {sT1}, {sCUR}"); A(f"s_cselect_b32 {sT2}, 0, 4")
        A(f"s_add_u32 {sT0}, {sT0}, {sG}"); A(f"s_and_b32 {sT1}, {sT0}, 3"); A(f"s_or_b32 {sT1}, {sT1}, {sT2}")
        A(f"s_bfe_u32 {sT0}, {sT0}, 0x10002"); A(f"s_lshl_b32 {sT0}, {sT0}, 3"); A(f"s_or_b32 {sT1}, {sT1}, {sT0}")
        A(f"s_branch L_ld_unit{p}")

    def SEL4(dst, a, b, c, d, t):
        A(f"v_cndmask_b32 v{dst}, v{a}, v{b}, {sM1}"); A(f"v_cndmask_b32 v{t}, v{c}, v{d}, {sM1}"); A(f"v_cndmask_b32 v{dst}, v{dst}, v{t}, {sM2}")
    def xrow(op, regs, tmps):
        for sw in ("v_permlane16_swap_b32","v_permlane32_swap_b32"):
            for r,t in zip(regs,tmps): A(f"v_mov_b32 v{t}, v{r}")
            for r,t in zip(regs,tmps): A(f"{sw} v{r}, v{t}")
            for r,t in zip(regs,tmps): A(f"{op} v{r}, v{r}, v{t}")
    def round_bf(dst, src): A(f"v_cvt_pk_bf16_f32 v{dst}, v{src}, v{src}"); A(f"v_and_b32 v{dst}, 0xffff0000, v{dst}")
    def unpack(lo, hi, src): A(f"v_lshlrev_b32 v{lo}, 16, v{src}"); A(f"v_and_b32 v{hi}, 0xffff0000, v{src}")
    def pub_cons():
        slot_advance()
        A(f"v_mov_b32 v{vTM}, {sN}"); one_lane(f"ds_write_b32 v{vCONS}, v{vTM}")
    def wait_tile(fin=None, kend=None):
        ok = lab("have"); lp = lab("poll")
        if fin: A(f"s_cmp_eq_u32 {sTOT}, {sN}"); A(f"s_cbranch_scc1 {fin}")
        if kend: A(f"s_cmp_ge_u32 {sN}, {sKE}"); A(f"s_cbranch_scc1 {kend}")
        A(f"s_cmp_gt_u32 {sKNOWN}, {sN}"); A(f"s_cbranch_scc1 {ok}")
        E.label(lp)
        A(f"ds_read_b128 {Q4(vAD[0])}, v{vFLG}")
        spin_guard()
        A("s_waitcnt lgkmcnt(0)")
        A(f"v_readfirstlane_b32 {sKNOWN}, v{vAD[0]}"); A(f"v_readfirstlane_b32 {sTOT}, v{vAD[1]}")
        A(f"v_readfirstlane_b32 {sKE}, v{vAD[2]}")
        if kend: A(f"s_cmp_ge_u32 {sN}, {sKE}"); A(f"s_cbranch_scc1 {kend}")
        if fin:
            nw = lab("nw")
            A(f"s_cmp_ge_u32 {sTOT}, {sWRM}"); A(f"s_cbranch_scc1 {nw}")
            A(f"s_mov_b32 {sWRM}, 0"); A(f"global_load_dword v{vX+2}, v{vX+3}, {pWS} {ldf}")
            E.label(nw)
            A(f"s_cmp_eq_u32 {sTOT}, {sN}"); A(f"s_cbranch_scc1 {fin}")
        A(f"s_cmp_gt_u32 {sKNOWN}, {sN}"); A(f"s_cbranch_scc1 {ok}")
        if nap or not fin: A("s_sleep 1")
        A(f"s_branch {lp}")
        E.label(ok)
    def poll(loads, tags, first_mask=None, issued=False):
        lp = lab("gpoll"); n = len(loads)
        chk = lab("gchk")
        if issued: A(f"s_branch {chk}")
        else:
            for i in range(n): A(f"s_mov_b64 {sCK[i]}, {first_mask[i] if first_mask else -1}")
        E.label(lp)
        for i,l in enumerate(loads):
            sk = lab("sk")
            A(f"s_mov_b64 exec, {sCK[i]}"); A(f"s_cbranch_execz {sk}"); A(l); E.label(sk)
        A("s_mov_b64 exec, -1")
        spin_guard()
        if issued: E.label(chk)
        A("s_waitcnt vmcnt(0)")
        for i in range(n):
            A(f"v_cmp_ne_u32 {sCK[i]}, {sTAG}, v{tags[i][0]}")
            for t in tags[i][1:]:
                A(f"v_cmp_ne_u32 vcc, {sTAG}, v{t}"); A(f"s_or_b64 {sCK[i]}, {sCK[i]}, vcc")
        A(f"s_or_b64 vcc, {sCK[0]}, {sCK[min(1,n-1)]}")
        for i in range(2, n): A(f"s_or_b64 vcc, vcc, {sCK[i]}")
        A(f"s_cbranch_scc1 {lp}")
    def layernorm(xr, f, lnbase, stride, mid=None):
        s1=vTM; t=vTM2; mu=vX; a=vX+2; b=vX+4
        for u in range(7): unpack(f+2*u, f+2*u+1, xr[u])
        A(f"v_pk_add_f32 {P(a)}, {P(f)}, {P(f+2)}"); A(f"v_pk_add_f32 {P(b)}, {P(f+4)}, {P(f+6)}")
        A(f"v_pk_add_f32 {P(a)}, {P(a)}, {P(f+8)}"); A(f"v_pk_add_f32 {P(b)}, {P(b)}, {P(f+10)}")
        A(f"v_pk_add_f32 {P(a)}, {P(a)}, {P(f+12)}"); A(f"v_pk_add_f32 {P(a)}, {P(a)}, {P(b)}")
        A(f"v_add_f32 v{s1}, v{a}, v{a+1}")
        red32 = [f"v_add_f32_dpp v{s1}, v{s1}, v{s1} row_ror:{k} row_mask:0xf bank_mask:0xf" for k in (8,4,2,1)]
        red32 += [f"v_mov_b32 v{t}, v{s1}", f"v_permlane16_swap_b32 v{s1}, v{t}", f"v_add_f32 v{s1}, v{s1}, v{t}"]
        for l in red32: A(l)
        A(f"v_mul_f32 v{mu}, {INV448:#x}, v{s1}")
        NEG = "op_sel_hi:[1,0] neg_lo:[0,1] neg_hi:[0,1]"
        A(f"v_pk_add_f32 {P(b)}, {P(f)}, {P(mu)} {NEG}")
        A(f"v_pk_mul_f32 {P(a)}, {P(b)}, {P(b)}")
        for u in range(1,7):
            A(f"v_pk_add_f32 {P(b)}, {P(f+2*u)}, {P(mu)} {NEG}")
            A(f"v_pk_fma_f32 {P(a)}, {P(b)}, {P(b)}, {P(a)}")
        A(f"v_add_f32 v{s1}, v{a}, v{a+1}")
        round_bf(mu, mu)
        fill = [f"v_pk_add_f32 {P(f+2*u)}, {P(f+2*u)}, {P(mu)} {NEG}" for u in range(7)] + [f"v_cvt_pk_bf16_f32 v{xr[u]}, v{f+2*u}, v{f+2*u+1}" for u in range(7)]
        for u in range(7): fill += [f"v_lshlrev_b32 v{f+2*u}, 16, v{xr[u]}", f"v_and_b32 v{f+2*u+1}, 0xffff0000, v{xr[u]}"]
        rb = [f"v_cvt_pk_bf16_f32 v{s1}, v{s1}, v{s1}", f"v_and_b32 v{s1}, 0xffff0000, v{s1}"]
        chain = red32 + [f"v_mul_f32 v{s1}, {INV448:#x}, v{s1}"] + rb + [f"v_add_f32 v{s1}, {EPS:#x}, v{s1}"] + rb + [f"v_sqrt_f32 v{s1}, v{s1}"] + rb + [f"v_rcp_f32 v{a}, v{s1}"]
        while chain or fill:
            for _ in range(2):
                if fill: A(fill.pop(0))
            if chain: A(chain.pop(0))
        if mid: mid()
        for u in range(7): A(f"v_pk_mul_f32 {P(f+2*u)}, {P(f+2*u)}, {P(a)} op_sel_hi:[1,0]")
        for u in range(7):
            A(f"v_cvt_pk_bf16_f32 v{xr[u]}, v{f+2*u}, v{f+2*u+1}")
            A(f"ds_write_b32 v{lnbase}, v{xr[u]} offset:{u*stride}")
    def ln_read_addr(rd, base):
        A(f"v_and_b32 v{rd}, 1, v{vLANE}"); A(f"v_mul_u32_u24 v{rd}, 896, v{rd}")
        A(f"v_lshl_add_u32 v{rd}, v{vG4}, 4, v{rd}"); A(f"v_add_u32 v{rd}, {base}, v{rd}")
    def tall_addr(dst):
        A(f"v_lshrrev_b32 v{vTM}, 3, v{vN}")
        A(f"v_and_b32 v{vTM2}, 1, v{vG4}"); A(f"v_lshl_or_b32 v{vTM}, v{vTM2}, 1, v{vTM}")
        A(f"v_xor_b32 v{vTM}, {sW}, v{vTM}"); A(f"v_lshlrev_b32 v{vTM}, 5, v{vTM}")
        A(f"v_and_b32 v{vTM2}, 3, v{vN}"); A(f"v_lshl_or_b32 v{vTM}, v{vTM2}, 3, v{vTM}")
        A(f"v_lshrrev_b32 v{vTM2}, 2, v{vN}"); A(f"v_lshl_or_b32 v{vTM}, v{vTM2}, 7, v{vTM}")
        A(f"v_lshl_or_b32 v{dst}, v{vG4}, 10, v{vTM}")
    def wide_addr(dst):
        A(f"v_lshrrev_b32 v{vTM}, 2, v{vN}"); A(f"v_lshl_add_u32 v{vTM}, v{vG4}, 2, v{vTM}"); A(f"v_mul_u32_u24 v{vTM}, 896, v{vTM}")
        A(f"v_and_b32 v{vTM2}, 3, v{vN}"); A(f"v_lshl_add_u32 v{vTM}, v{vTM2}, 3, v{vTM}")
        A(f"s_mul_i32 {sT0}, {sW}, 224"); A(f"v_add_u32 v{dst}, {sT0}, v{vTM}")
    def read_tall_tile(base, dstreg, t):
        wait_tile()
        A(f"v_add_u32 v{vAD[0]}, {sSLOT}, v{base}")
        for s in range(4 if t < 3 else 2):
            for h2 in range(2):
                A(f"ds_read_b64_tr_b16 {P(dstreg + 4*(4*t+s) + 2*h2)}, v{vAD[0]} offset:{s*4096+h2*512}")
        A("s_waitcnt lgkmcnt(0)")
        pub_cons()
    def read_wide_tile(base, dstreg, half):
        wait_tile()
        A(f"v_add_u32 v{vAD[0]}, {sSLOT}, v{base}")
        for tt in range(7): A(f"ds_read_b64_tr_b16 {P(dstreg + 4*tt + 2*half)}, v{vAD[0]} offset:{tt*32}")
        A("s_waitcnt lgkmcnt(0)")
        pub_cons()
    def basic_setup():
        A(f"s_sub_u32 {sW}, {sWAVE}, 1"); A(f"s_lshr_b32 {sB}, {sG}, 3"); A(f"s_and_b32 {sHKV}, {sG}, 7")
        A(f"v_and_b32 v{vN}, 15, v{vLANE}"); A(f"v_lshrrev_b32 v{vG4}, 4, v{vLANE}")
        A(f"s_lshl_b32 {sT0}, {sW}, 2"); A(f"s_add_u32 {sT0}, {sT0}, {L_CONS}"); A(f"v_mov_b32 v{vCONS}, {sT0}")
        A("s_mov_b32 s42, 0xffff0000"); A("s_mov_b32 s43, s42")

    if align: A(".p2align 12")
    E.label("L_qprod")
    f14 = vWO+8; vLR = vWO+25; vTA = vWO+26; vQA = vWO+27
    basic_setup()
    A(f"s_or_b32 {sT0}, {sROLE}, {sW}"); A(f"s_cmp_lg_u32 {sT0}, 0"); A("s_cbranch_scc1 L_noinit")
    A(f"s_lshl_b32 {sT0}, {sG}, 8"); A(f"s_add_u32 {sT0}, {sT0}, {WS_CNT}")
    A(f"v_mov_b32 v{vTM2}, {sT0}"); A(f"v_mov_b32 v{vTM3}, 0")
    A("s_mov_b64 exec, 1"); A(f"global_store_dword v{vTM2}, v{vTM3}, {pWS} {stf}"); A(f"global_store_dword v{vTM2}, v{vTM3}, {pWS} offset:128 {stf}"); A("s_mov_b64 exec, -1")
    E.label("L_noinit")
    A(f"v_add_u32 v{vLW1}, {L_LN}, v{vLW1}")
    ln_read_addr(vLR, L_LN)
    tall_addr(vTA)
    A(f"s_lshl_b32 {sT0}, {sB}, 2"); A(f"s_add_u32 {sT0}, {sT0}, {sROLE}"); A(f"s_lshl_b32 {sT0}, {sT0}, 2"); A(f"s_add_u32 {sT0}, {sT0}, {sW}")
    A(f"s_lshl_b32 {sT0}, {sT0}, 6"); A(f"s_lshl_b32 {sT1}, {sHKV}, 11"); A(f"s_add_u32 {sT0}, {sT0}, {sT1}"); A(f"s_add_u32 {sT0}, {sT0}, {WS_Q}")
    A(f"v_lshlrev_b32 v{vQA}, 2, v{vN}"); A(f"v_lshl_add_u32 v{vQA}, v{vG4}, 14, v{vQA}"); A(f"v_add_u32 v{vQA}, {sT0}, v{vQA}")
    if qtouch: touch_pad("q")
    A("s_waitcnt vmcnt(0) lgkmcnt(0)")
    stamp(12)
    layernorm(xr1, f14, vLW1, 128, mid=(lambda: pad("q")) if qtouch else None)
    make_tag(sTAG, sE); A(f"v_mov_b32 v{vX+1}, {sTAG}")
    A("s_waitcnt lgkmcnt(0)")
    stamp(13)
    for s in range(14): A(f"ds_read_b128 {Q4(vW2+4*s)}, v{vLR} offset:{s*64}")
    A(f"s_mov_b32 {sN}, 3"); wait_tile()
    stamp(14)
    for s in range(14):
        for h2 in range(2): A(f"ds_read_b64_tr_b16 {P(vW1 + 4*s + 2*h2)}, v{vTA} offset:{s*4096+h2*512}")
        if s % 4 == 3 or s == 13:
            A(f"s_waitcnt lgkmcnt(0)")
            for k in range(s - s % 4, s+1):
                A(f"v_mfma_f32_16x16x32_bf16 {Q4(vS)}, {Q4(vW2+4*k)}, {Q4(vW1+4*k)}, {'0' if k==0 else Q4(vS)}")
    A(f"s_mov_b32 {sSLOT}, {3*SLOT}"); pub_cons()
    A(f"v_cndmask_b32 v{vTM}, v{vS}, v{vS+1}, {sM1}")
    A(f"v_mov_b32_dpp v{vTM2}, v{vTM} quad_perm:[1,0,3,2] row_mask:0xf bank_mask:0xf")
    A(f"v_cvt_pk_bf16_f32 v{vX}, v{vTM}, v{vTM2}")
    A("s_mov_b64 exec, 0x55555555")
    A(f"global_store_dwordx2 v{vQA}, {P(vX)}, {pWS} {stf}")
    A("s_mov_b64 exec, -1")
    stamp(1)

    E.label("L_consumer")
    basic_setup()
    share_consts(1)
    A("s_mov_b32 s44, 0"); A("s_mov_b32 s45, -1"); A(f"s_mov_b32 {sC}, {C_SCALE:#x}"); A("s_mov_b32 s66, -1"); A("s_mov_b32 s67, 0"); A(f"s_mov_b32 {sTOT}, 0x7fffffff"); A(f"s_mov_b32 {sKE}, 0x7fffffff"); A(f"s_mov_b32 {sKNOWN}, 0")
    if hilo: A("s_mov_b32 s64, 0xcccccccc"); A("s_mov_b32 s65, 0xcccccccc")
    stamp(11)
    A(f"s_sub_u32 {sT0}, {sROLE}, 4"); A(f"s_lshl_b32 {sRR}, {sG}, 2"); A(f"s_add_u32 {sRR}, {sRR}, {sT0}")
    A(f"s_cmp_lt_u32 {sT0}, 4"); A(f"s_cselect_b32 {sRR}, {sRR}, 99"); A("s_cbranch_scc0 L_nox")
    A(f"s_bfe_u32 {sT0}, {sRR}, 0x20003"); A(f"s_mul_i32 {sCOL}, {sT0}, 224")
    A(f"s_bfe_u32 {sGP}, {sRR}, 0x20001"); A(f"s_lshl_b32 {sT0}, {sGP}, 6"); A(f"s_add_u32 {sCOL}, {sCOL}, {sT0}")
    A(f"s_and_b32 {sT0}, {sRR}, 1"); A(f"s_lshl_b32 {sT0}, {sT0}, 4"); A(f"s_add_u32 {sCOL}, {sCOL}, {sT0}")
    A(f"s_bfe_u32 {sT0}, {sRR}, 0x10005"); A(f"s_mul_i32 {sT0}, {sT0}, 896"); A(f"s_add_u32 {sCOL}, {sCOL}, {sT0}")
    A(f"v_and_b32 v{vTM}, 6, v{vLANE}"); A(f"v_lshl_add_u32 v{vTM}, v{vTM}, 1, {sCOL}")
    A(f"global_load_dword v{vXH}, v{vTM}, {pX}")
    A(f"v_mov_b32 v{vXH+1}, 0")
    A(f"s_cmp_eq_u32 {sGP}, 3"); A("s_cbranch_scc1 L_nox")
    A(f"global_load_dword v{vXH+1}, v{vTM}, {pX} offset:32")
    E.label("L_nox")
    A(f"v_xor_b32 v{vTM}, v{vG4}, v{vN}"); A(f"v_lshlrev_b32 v{vTM}, 4, v{vTM}"); A(f"v_lshl_or_b32 v{vTM}, v{vN}, 9, v{vTM}")
    for s in range(4): A(f"v_xor_b32 v{vKB[s]}, {s*64}, v{vTM}")
    A(f"v_lshrrev_b32 v{vTM}, 2, v{vN}"); A(f"v_lshl_add_u32 v{vTM}, v{vG4}, 2, v{vTM}")
    A(f"v_and_b32 v{vTM2}, 7, v{vTM}")
    A(f"s_lshl_b32 {sT0}, {sW}, 2"); A(f"v_xor_b32 v{vTM2}, {sT0}, v{vTM2}"); A(f"v_lshlrev_b32 v{vTM2}, 5, v{vTM2}")
    A(f"v_lshl_or_b32 v{vTM}, v{vTM}, 9, v{vTM2}")
    A(f"v_and_b32 v{vTM2}, 3, v{vN}"); A(f"v_lshl_or_b32 v{vTM}, v{vTM2}, 3, v{vTM}")
    for e in range(4): A(f"v_xor_b32 v{vVB[e]}, {e*32}, v{vTM}")
    A(f"v_mov_b32 v{vM}, 0xff800000"); A(f"v_mov_b32 v{vMC}, v{vM}"); A(f"v_mov_b32 v{vL}, 0")
    for i in range(16): A(f"v_mov_b32 v{vO+i}, 0")
    A(f"s_cmp_lt_u32 {sIDX}, 28"); A("s_cbranch_scc1 L_ffn_w")
    def vtile_read(dst):
        for e in range(4): A(f"v_add_u32 v{vAD[e]}, {sSLOT}, v{vVB[e]}")
        for e in range(4):
            for h2 in range(2): A(f"ds_read_b64_tr_b16 {P(dst + 4*e + 2*h2)}, v{vAD[e]} offset:{h2*8192}")
    for p in range(park):
        A(f"s_cmp_le_u32 {sPK}, {p}"); A("s_cbranch_scc1 L_ffn_w_done")
        wait_tile(); vtile_read(vW1+16*p); A("s_waitcnt lgkmcnt(0)"); pub_cons()
    E.label("L_ffn_w_done")
    A("s_waitcnt lgkmcnt(0)")
    make_tag(sTAG, sE)
    A(f"s_cmp_lg_u32 {sW}, 0"); A("s_cbranch_scc1 L_q_flag")
    if qwait:
        A(f"s_add_u32 {sN}, {sN}, {qwait-1}"); wait_tile(); A(f"s_sub_u32 {sN}, {sN}, {qwait-1}")
    A(f"s_lshl_b32 {sT0}, {sG}, 11"); A(f"s_add_u32 {sT0}, {sT0}, {WS_Q}")
    A(f"v_lshl_add_u32 v{vTM3}, v{vLANE}, 4, {sT0}")
    poll([f"global_load_dwordx4 {Q4(vF)}, v{vTM3}, {pWS} {ldf}", f"global_load_dwordx4 {Q4(vF+4)}, v{vTM3}, {pWS} offset:1024 {ldf}"],
         [[vF+1, vF+3], [vF+5, vF+7]])
    A(f"v_lshlrev_b32 v{vTM}, 3, v{vLANE}"); A(f"v_add_u32 v{vTM}, {L_QW}, v{vTM}"); A(f"v_mov_b32 v{vTM2}, 1")
    A(f"ds_write2_b32 v{vTM}, v{vF}, v{vF+2} offset0:0 offset1:1"); A(f"ds_write2_b32 v{vTM}, v{vF+4}, v{vF+6} offset0:128 offset1:129")
    one_lane(f"ds_write_b32 v{vFLG}, v{vTM2} offset:32")
    E.label("L_q_flag")
    A(f"ds_read_b32 v{vTM}, v{vFLG} offset:32")
    spin_guard()
    A("s_waitcnt lgkmcnt(0)")
    A(f"v_readfirstlane_b32 {sT0}, v{vTM}")
    A(f"s_cmp_eq_u32 {sT0}, 1"); A("s_cbranch_scc1 L_q_have")
    A("s_sleep 1"); A("s_branch L_q_flag")
    E.label("L_q_have")
    A(f"v_and_b32 v{vTM2}, 1, v{vLANE}"); A(f"v_lshlrev_b32 v{vTM2}, 9, v{vTM2}"); A(f"v_lshl_add_u32 v{vTM2}, v{vG4}, 4, v{vTM2}"); A(f"v_add_u32 v{vTM2}, {L_QW}, v{vTM2}")
    for s in range(8): A(f"ds_read_b128 {Q4(vQ+4*s)}, v{vTM2} offset:{s*64}")
    stamp(2)
    A("s_waitcnt lgkmcnt(0)")

    def qk(nt):
        for s in range(4): A(f"v_add_u32 v{vAD[s]}, {sSLOT}, v{vKB[s]}")
        seq = [(t,s) for s in range(8) for t in range(nt)]; n = len(seq)
        def kread(i):
            t,s = seq[i]; A(f"ds_read_b128 {Q4(vF + 4*(i % NF))}, v{vAD[s&3]} offset:{(s>>2)*256 + t*8192}")
        for i in range(NF): kread(i)
        for i in range(n):
            t,s = seq[i]
            A(f"s_waitcnt lgkmcnt({min(NF-1, n-1-i)})")
            d = Q4(vS+4*t)
            A(f"v_mfma_f32_16x16x32_bf16 {d}, {Q4(vF + 4*(i % NF))}, {Q4(vQ+4*s)}, {'0' if s==0 else d}")
            if i + NF < n: kread(i+NF)
    def probs(nt):
        n = 4*nt
        for i in range(n): A(f"v_fma_f32 v{vS+i}, v{vS+i}, {sC}, -v{vMC}")
        for i in range(n): A(f"v_exp_f32 v{vS+i}, v{vS+i}")
        for i in range(n//2): A(f"v_cvt_pk_bf16_f32 v{vP+i}, v{vS+2*i}, v{vS+2*i+1}")
        if hilo:
            for i in range(n//2):
                t = vF+16+2*(i&1)
                unpack(t, t+1, vP+i)
                A(f"v_pk_add_f32 {P(t)}, {P(vS+2*i)}, {P(t)} neg_lo:[0,1] neg_hi:[0,1]")
                A(f"v_cvt_pk_bf16_f32 v{t}, v{t}, v{t+1}")
                A(f"v_cndmask_b32 v{vP+i}, v{vP+i}, v{t}, s[64:65]")
    def softmax(nt, tag):
        n = 4*nt
        for i in range(n//2): A(f"v_cvt_pk_bf16_f32 v{vP+i}, v{vS+2*i}, v{vS+2*i+1}")
        for i in range(n//2): unpack(vS+2*i, vS+2*i+1, vP+i)
        if nt == 2:
            A(f"v_max3_f32 v{vMX}, v{vS}, v{vS+1}, v{vS+2}"); A(f"v_max3_f32 v{vTM}, v{vS+3}, v{vS+4}, v{vS+5}")
            A(f"v_max3_f32 v{vMX}, v{vMX}, v{vS+6}, v{vS+7}"); A(f"v_max_f32 v{vMX}, v{vMX}, v{vTM}")
        else:
            A(f"v_max3_f32 v{vMX}, v{vS}, v{vS+1}, v{vS+2}"); A(f"v_max_f32 v{vMX}, v{vMX}, v{vS+3}")
        xrow("v_max_f32", [vMX], [vTM])
        A(f"v_cmp_gt_f32 vcc, v{vMX}, v{vM}")
        A("s_cmp_lg_u64 vcc, 0"); A(f"s_cbranch_scc1 L_rescale{tag}")
        E.label(f"L_rescaled{tag}")
        probs(nt)
    def add_l(nt):
        A(f"v_add_f32 v{vTM}, v{vS}, v{vS+1}"); A(f"v_add_f32 v{vMX}, v{vS+2}, v{vS+3}")
        if nt == 2:
            A(f"v_add_f32 v{vS+4}, v{vS+4}, v{vS+5}"); A(f"v_add_f32 v{vS+6}, v{vS+6}, v{vS+7}")
            A(f"v_add_f32 v{vTM}, v{vTM}, v{vS+4}"); A(f"v_add_f32 v{vMX}, v{vMX}, v{vS+6}")
        A(f"v_add_f32 v{vL}, v{vL}, v{vTM}"); A(f"v_add_f32 v{vL}, v{vL}, v{vMX}")
    def rescale(tag):
        E.label(f"L_rescale{tag}")
        A(f"v_max_f32 v{vM}, v{vM}, v{vMX}")
        A(f"v_mul_f32 v{vTM}, {sC}, v{vM}")
        A(f"v_sub_f32 v{vTM2}, v{vMC}, v{vTM}")
        A(f"v_mov_b32 v{vMC}, v{vTM}")
        A(f"v_exp_f32 v{vTM2}, v{vTM2}")
        A(f"v_mul_f32 v{vL}, v{vL}, v{vTM2}")
        A(f"v_mov_b32_dpp v{vTM}, v{vTM2} quad_perm:[0,0,2,2] row_mask:0xf bank_mask:0xf")
        A(f"v_mov_b32_dpp v{vTM3}, v{vTM2} quad_perm:[1,1,3,3] row_mask:0xf bank_mask:0xf")
        for i in range(16): A(f"v_mul_f32 v{vO+i}, v{vO+i}, v{vTM if i%2==0 else vTM3}")
        A(f"s_branch L_rescaled{tag}")
    vSA=107
    A(f"s_mov_b32 {sN0}, {sN}")
    A(f"s_add_u32 {sN}, {sN}, {sW}"); A(f"s_lshl_b32 {sT0}, {sW}, 14"); A(f"s_add_u32 {sSLOT}, {sSLOT}, {sT0}")
    A(f"s_sub_u32 {sT0}, {sSLOT}, {RING}"); A(f"s_cselect_b32 {sSLOT}, {sSLOT}, {sT0}")
    A(f"v_and_b32 v{vSA}, 1, v{vLANE}"); A(f"v_lshlrev_b32 v{vSA}, 6, v{vSA}"); A(f"v_lshl_add_u32 v{vSA}, v{vG4}, 4, v{vSA}"); A(f"v_add_u32 v{vSA}, {L_SC}, v{vSA}")
    A(f"s_lshl_b32 {sT0}, {sW}, 7"); A(f"v_add_u32 v{vX}, {sT0}, v{vSA}")
    E.label("L_kloop")
    wait_tile(kend="L_kdone")
    qk(2)
    A(f"s_add_u32 {sN}, {sN}, 4")
    A(f"s_add_u32 {sSLOT}, {sSLOT}, {4*SLOT}"); A(f"s_sub_u32 {sT0}, {sSLOT}, {RING}"); A(f"s_cselect_b32 {sSLOT}, {sSLOT}, {sT0}")
    for i in range(4): A(f"v_cvt_pk_bf16_f32 v{vP+i}, v{vS+2*i}, v{vS+2*i+1}")
    for i in range(4): A(f"v_max3_f32 v{vM}, v{vM}, v{vS+2*i}, v{vS+2*i+1}")
    A("s_mov_b32 exec_lo, 0x30003"); A("s_mov_b32 exec_hi, 0x30003"); A(f"ds_write_b128 v{vX}, {Q4(vP)}"); A("s_mov_b64 exec, -1")
    A(f"v_add_u32 v{vX}, 512, v{vX}")
    A(f"v_mov_b32 v{vTM}, {sN}"); one_lane(f"ds_write_b32 v{vCONS}, v{vTM}")
    A("s_branch L_kloop")
    E.label("L_kdone")
    A(f"s_mov_b32 {sN}, {sKE}"); A(f"s_sub_u32 {sNS}, {sKE}, {sN0}")
    xrow("v_max_f32", [vM], [vTM])
    A(f"s_lshl_b32 {sT0}, {sW}, 3"); A(f"s_add_u32 {sT0}, {sT0}, {L_MX}"); A(f"v_lshl_add_u32 v{vTM2}, v{vLANE}, 2, {sT0}")
    A("s_mov_b64 exec, 3"); A(f"ds_write_b32 v{vTM2}, v{vM}"); A("s_mov_b64 exec, -1")
    A(f"v_mov_b32 v{vTM}, {sN}"); A("s_mov_b64 exec, 1"); A(f"ds_write_b32 v{vCONS}, v{vTM}"); A(f"ds_write_b32 v{vCONS}, v{vTM} offset:{L_KD-16}"); A("s_mov_b64 exec, -1")
    A(f"s_mul_hi_u32 {sT0}, {sN}, {-(-(1<<32)//NSLOT)}"); A(f"s_mul_i32 {sT0}, {sT0}, {NSLOT}"); A(f"s_sub_u32 {sSLOT}, {sN}, {sT0}"); A(f"s_lshl_b32 {sSLOT}, {sSLOT}, 14")
    A(f"v_and_b32 v{vTM2}, 1, v{vLANE}"); A(f"v_lshlrev_b32 v{vTM2}, 2, v{vTM2}"); A(f"v_add_u32 v{vTM2}, {L_MX}, v{vTM2}")
    E.label("L_ksync")
    A(f"ds_read2_b32 {P(vAD[0])}, v{vFLG} offset0:{L_KD//4} offset1:{L_KD//4+1}"); A(f"ds_read2_b32 {P(vAD[2])}, v{vFLG} offset0:{L_KD//4+2} offset1:{L_KD//4+3}")
    A(f"ds_read2_b32 {P(vS)}, v{vTM2} offset0:0 offset1:2"); A(f"ds_read2_b32 {P(vS+2)}, v{vTM2} offset0:4 offset1:6")
    spin_guard()
    A("s_waitcnt lgkmcnt(0)")
    A(f"v_min3_u32 v{vAD[0]}, v{vAD[0]}, v{vAD[1]}, v{vAD[2]}"); A(f"v_min_u32 v{vAD[0]}, v{vAD[0]}, v{vAD[3]}")
    A(f"v_readfirstlane_b32 {sT0}, v{vAD[0]}")
    A(f"s_cmp_lt_u32 {sT0}, {sKE}"); A("s_cbranch_scc1 L_ksync")
    A(f"v_max3_f32 v{vM}, v{vS}, v{vS+1}, v{vS+2}"); A(f"v_max_f32 v{vM}, v{vM}, v{vS+3}")
    round_bf(vM, vM)
    A(f"v_mul_f32 v{vMC}, {sC}, v{vM}")
    E.label("L_loop")
    A(f"ds_read_b128 {Q4(vP)}, v{vSA}")
    A(f"v_add_u32 v{vSA}, 128, v{vSA}")
    A("s_waitcnt lgkmcnt(0)")
    for i in range(4): unpack(vS+2*i, vS+2*i+1, vP+i)
    probs(2); add_l(2)
    A(f"s_cmp_lt_u32 {sCI}, {sPK}"); A("s_cbranch_scc1 L_pv_park")
    wait_tile()
    vtile_read(vF)
    for e in range(4):
        A(f"s_waitcnt lgkmcnt({6-2*e})")
        A(f"v_mfma_f32_16x16x32_bf16 {Q4(vO+4*e)}, {Q4(vP)}, {Q4(vF+4*e)}, {Q4(vO+4*e)}")
    pub_cons()
    E.label("L_pv_done")
    A(f"s_add_u32 {sCI}, {sCI}, 1"); A(f"s_cmp_lt_u32 {sCI}, {sNS}"); A("s_cbranch_scc1 L_loop")
    if touch:
        for nm in ("fin","red","ffn","ffn2"): touch_pad(nm)
    if forcepar is None:
        A(f"v_mov_b32 v{vTM}, {WS_PAR}")
        poll([f"global_load_dwordx4 {Q4(vF)}, v{vTM}, {pWS} {ldf}"], [[vF+1, vF+3]])
        A(f"v_readfirstlane_b32 {sP0}, v{vF}"); A(f"v_readfirstlane_b32 {sP1}, v{vF+2}")
    else:
        A(f"s_mov_b32 {sP0}, {forcepar[0]*8192}"); A(f"s_mov_b32 {sP1}, {forcepar[1]*8192}")
    A(f"s_lshl_b32 {sT0}, {sG}, 2"); A(f"s_and_b32 {sT1}, {sW}, 1"); A(f"s_add_u32 {sT0}, {sT0}, {sT1}"); A(f"s_lshl_b32 {sT0}, {sT0}, 14")
    A(f"s_lshr_b32 {sT1}, {sW}, 1"); A(f"s_lshl_b32 {sT1}, {sT1}, 13"); A(f"s_xor_b32 {sT1}, {sT1}, {sP0}"); A(f"s_add_u32 {sT0}, {sT0}, {sT1}")
    A(f"s_lshl_b32 {sT1}, {sJ}, 8"); A(f"s_add_u32 {sT0}, {sT0}, {sT1}"); A(f"s_add_u32 {sT0}, {sT0}, {WS_A}")
    A(f"v_lshrrev_b32 v{vAA}, 1, v{vG4}"); A(f"v_lshlrev_b32 v{vAA}, 15, v{vAA}")
    A(f"v_and_b32 v{vTM}, 1, v{vG4}"); A(f"v_lshl_or_b32 v{vAA}, v{vTM}, 12, v{vAA}"); A(f"v_lshl_or_b32 v{vAA}, v{vN}, 4, v{vAA}")
    A(f"v_add_u32 v{vAA}, {sT0}, v{vAA}")
    A(f"s_lshr_b32 {sT0}, {sWG}, 3"); A(f"s_lshl_b32 {sT0}, {sT0}, 1"); A(f"s_bfe_u32 {sT1}, {sWG}, 0x10001"); A(f"s_add_u32 {sT0}, {sT0}, {sT1}"); A(f"s_lshl_b32 {sT0}, {sT0}, 14")
    A(f"s_bfe_u32 {sT1}, {sWG}, 0x10002"); A(f"s_lshl_b32 {sT1}, {sT1}, 13"); A(f"s_xor_b32 {sT1}, {sT1}, {sP0}"); A(f"s_add_u32 {sT0}, {sT0}, {sT1}")
    A(f"s_and_b32 {sT1}, {sWG}, 1"); A(f"s_lshl_b32 {sT1}, {sT1}, 12"); A(f"s_add_u32 {sT0}, {sT0}, {sT1}"); A(f"s_add_u32 {sT0}, {sT0}, {WS_A}")
    A(f"v_lshlrev_b32 v{vAI}, 4, v{vN}"); A(f"v_lshl_or_b32 v{vAI}, v{vG4}, 10, v{vAI}"); A(f"v_add_u32 v{vAI}, {sT0}, v{vAI}")
    A(f"v_lshl_add_u32 v{vX+3}, v{vLANE}, 6, {sT0}")
    A(f"s_cmp_eq_u32 {sW}, 0"); A(f"s_cselect_b32 {sWRM}, {0x7fffffff if awarm else 0}, 0")
    A(f"s_cmp_ge_u32 {sRR}, 64"); A(f"s_cbranch_scc1 L_nored"); A(f"s_sub_u32 {sT0}, {sW}, 1"); A(f"s_cmp_ge_u32 {sT0}, 2"); A(f"s_cbranch_scc1 L_nored")
    A(f"s_lshl_b32 {sT0}, {sT0}, 14"); A(f"s_lshl_b32 {sT1}, {sRR}, 15"); A(f"s_add_u32 {sT0}, {sT0}, {sT1}"); A(f"s_add_u32 {sT0}, {sT0}, {sP1}"); A(f"s_add_u32 {sT0}, {sT0}, {WS_B}")
    A(f"v_lshl_add_u32 v{vX+3}, v{vLANE}, 7, {sT0}"); A(f"s_mov_b32 {sWRM}, {[0,0x7fffffff,1,2][bwarm]}")
    if bwarm == 3: A(f"global_load_dword v{vX+2}, v{vX+3}, {pWS} {ldf}")
    E.label("L_nored")
    A(f"s_lshl_b32 {sT0}, {sB}, 2"); A(f"s_add_u32 {sT0}, {sT0}, {sW}"); A(f"s_lshl_b32 {sT0}, {sT0}, 18")
    A(f"s_bfe_u32 {sT1}, {sWG}, 0x10006"); A(f"s_lshl_b32 {sT1}, {sT1}, 14"); A(f"s_add_u32 {sT0}, {sT0}, {sT1}"); A(f"s_add_u32 {sT0}, {sT0}, {sP1}")
    A(f"s_and_b32 {sT1}, {sWG}, 63"); A(f"s_lshl_b32 {sT1}, {sT1}, 7"); A(f"s_add_u32 {sT0}, {sT0}, {sT1}"); A(f"s_add_u32 {sT0}, {sT0}, {WS_B}")
    A(f"v_lshrrev_b32 v{vTM}, 3, v{vLANE}"); A(f"v_lshlrev_b32 v{vTM}, 15, v{vTM}")
    A(f"v_and_b32 v{vTM2}, 7, v{vLANE}"); A(f"v_lshl_or_b32 v{vBA}, v{vTM2}, 4, v{vTM}"); A(f"v_add_u32 v{vBA}, {sT0}, v{vBA}")
    E.label("L_mini")
    wait_tile("L_fin")
    qk(1)
    for e in range(4): A(f"v_add_u32 v{vAD[e]}, {sSLOT}, v{vVB[e]}")
    for e in range(4): A(f"ds_read_b64_tr_b16 {P(vF + 2*e)}, v{vAD[e]} offset:8192")
    softmax(1, "b")
    A("s_waitcnt lgkmcnt(0)")
    for e in range(4): A(f"v_mfma_f32_16x16x16_bf16 {Q4(vO+4*e)}, {P(vP)}, {P(vF+2*e)}, {Q4(vO+4*e)}")
    add_l(1)
    slot_advance()
    A(f"s_cmp_eq_u32 {sN}, {sTOT}"); A("s_cbranch_scc1 L_fin")
    A(f"v_mov_b32 v{vTM}, {sN}"); one_lane(f"ds_write_b32 v{vCONS}, v{vTM}")
    A("s_branch L_mini")
    rescale("b")
    E.label("L_pv_park")
    for p in range(park):
        if p < park-1: nx = lab("pk"); A(f"s_cmp_lg_u32 {sCI}, {p}"); A(f"s_cbranch_scc1 {nx}")
        for e in range(4): A(f"v_mfma_f32_16x16x32_bf16 {Q4(vO+4*e)}, {Q4(vP)}, {Q4(vW1+16*p+4*e)}, {Q4(vO+4*e)}")
        A("s_branch L_pv_done")
        if p < park-1: E.label(nx)

    vG=vF; vI=vF+4; sa=vS; sb=vS+1; sw=vS+2
    vA=vQ; vOPR=vQ+4; vOPW=vQ+5; vR0=vQ+6; vR1=vQ+7; vR2=vQ+8; vR3=vQ+9; vR4=vQ+10; vR5=vQ+11; vZ=vQ+12
    E.label("L_ffn_addr")
    A(f"v_lshrrev_b32 v{vTM}, 3, v{vLANE}"); A(f"v_and_b32 v{vTM2}, 7, v{vLANE}")
    A(f"v_lshlrev_b32 v{vR0}, 9, v{vTM}"); A(f"v_lshl_or_b32 v{vR0}, v{vTM2}, 4, v{vR0}"); A(f"s_add_u32 {sT0}, {sP0}, {WS_H}"); A(f"v_add_u32 v{vR0}, {sT0}, v{vR0}")
    A(f"v_mul_u32_u24 v{vR1}, 224, v{vTM}"); A(f"v_lshl_add_u32 v{vR1}, v{vTM2}, 2, v{vR1}"); A(f"v_add_u32 v{vR1}, {L_LN}, v{vR1}")
    ln_read_addr(vR2, L_LN)
    A(f"s_lshl_b32 {sT0}, {sW}, 5"); A(f"s_add_u32 {sT0}, {sT0}, {L_ACT}")
    A(f"v_lshlrev_b32 v{vR3}, 7, v{vG4}"); A(f"v_lshl_add_u32 v{vR3}, v{vN}, 1, v{vR3}"); A(f"v_add_u32 v{vR3}, {sT0}, v{vR3}")
    A(f"v_and_b32 v{vR4}, 1, v{vLANE}"); A(f"v_lshlrev_b32 v{vR4}, 7, v{vR4}"); A(f"v_lshl_add_u32 v{vR4}, v{vG4}, 3, v{vR4}"); A(f"v_add_u32 v{vR4}, {L_ACT}, v{vR4}")
    A(f"s_lshl_b32 {sT0}, {sW}, 16"); A(f"s_lshl_b32 {sT1}, {sIDX}, 7"); A(f"s_add_u32 {sT0}, {sT0}, {sT1}"); A(f"s_add_u32 {sT0}, {sT0}, {sP0}"); A(f"s_add_u32 {sT0}, {sT0}, {WS_D}")
    A(f"v_lshrrev_b32 v{vTM}, 3, v{vN}"); A(f"v_lshlrev_b32 v{vTM}, 12, v{vTM}"); A(f"v_lshl_or_b32 v{vTM}, v{vG4}, 14, v{vTM}")
    A(f"v_lshl_or_b32 v{vTM}, v{vTM2}, 4, v{vTM}"); A(f"v_add_u32 v{vR5}, {sT0}, v{vTM}")
    A("s_branch L_addr_done")
    if align: A(".p2align 12")
    if touch: E.label("L_pad_fin"); A("s_branch L_ret_fin")
    E.label("L_fin")
    stamp(3)
    yreg = [vO, vO+4, vO+8, vO+12, vQ+16, vQ+20, vQ+24]
    xrow("v_add_f32", [vL], [vTM])
    if hilo:
        for e in range(4): A(f"v_pk_add_f32 {P(vO+4*e)}, {P(vO+4*e)}, {P(vO+4*e+2)}")
    A(f"v_log_f32 v{vTM2}, v{vL}"); A(f"v_rcp_f32 v{vTM3}, v{vL}")
    A(f"v_mov_b32 v{vG+3}, {sTAG}")
    A(f"v_add_f32 v{vTM2}, v{vMC}, v{vTM2}")
    SEL4(vG, vO+0, vO+8, vO+1, vO+9, vMX)
    A(f"v_mov_b32_dpp v{vTM}, v{vTM3} quad_perm:[0,0,2,2] row_mask:0x3 bank_mask:0xf")
    A(f"v_mov_b32_dpp v{vG+2}, v{vTM2} quad_perm:[0,0,2,2] row_mask:0x3 bank_mask:0xf")
    SEL4(vG+1, vO+4, vO+12, vO+5, vO+13, vMX)
    A(f"v_mov_b32_dpp v{vTM}, v{vTM3} quad_perm:[1,1,3,3] row_mask:0xc bank_mask:0xf")
    A(f"v_mov_b32_dpp v{vG+2}, v{vTM2} quad_perm:[1,1,3,3] row_mask:0xc bank_mask:0xf")
    A(f"v_mul_f32 v{vG}, v{vG}, v{vTM}"); A(f"v_mul_f32 v{vG+1}, v{vG+1}, v{vTM}")
    A(f"global_store_dwordx4 v{vAA}, {Q4(vG)}, {pWS} {stf}")
    stamp(4)
    if bwarm == 2:
        A(f"s_cmp_lg_u32 {sWRM}, 1"); A("s_cbranch_scc1 L_nobw")
        A(f"global_load_dword v{vX+2}, v{vX+3}, {pWS} {ldf}")
        E.label("L_nobw")
    A(f"v_lshlrev_b32 v{vOPR}, 3, v{vG4}"); A(f"v_add_u32 v{vOPR}, {L_OP}, v{vOPR}")
    A(f"v_lshlrev_b32 v{vOPW}, 1, v{vN}"); A(f"v_add_u32 v{vOPW}, {L_OP}, v{vOPW}")
    A(f"v_mov_b32 v{vZ}, 0")
    A(f"s_cmp_lt_u32 {sIDX}, 28"); A("s_cbranch_scc1 L_ffn_addr")
    A(f"s_cmp_ge_u32 {sRR}, 64"); A("s_cbranch_scc1 L_addr_done")
    A(f"s_lshl_b32 {sT0}, {sRR}, 15"); A(f"s_lshr_b32 {sT1}, {sW}, 1"); A(f"s_lshl_b32 {sT1}, {sT1}, 14"); A(f"s_add_u32 {sT0}, {sT0}, {sT1}")
    A(f"s_and_b32 {sT1}, {sW}, 1"); A(f"s_lshl_b32 {sT1}, {sT1}, 12"); A(f"s_add_u32 {sT0}, {sT0}, {sT1}"); A(f"s_add_u32 {sT0}, {sT0}, {sP1}"); A(f"s_add_u32 {sT0}, {sT0}, {WS_B}")
    A(f"v_lshl_add_u32 v{vR0}, v{vLANE}, 4, {sT0}")
    A(f"s_lshl_b32 {sT0}, {sW}, 6"); A(f"s_add_u32 {sT0}, {sT0}, {L_RED}")
    A(f"v_and_b32 v{vTM}, 7, v{vLANE}"); A(f"v_lshl_add_u32 v{vR1}, v{vTM}, 2, {sT0}")
    A(f"v_and_b32 v{vTM}, 6, v{vLANE}"); A(f"v_lshlrev_b32 v{vR2}, 2, v{vTM}"); A(f"v_add_u32 v{vR2}, {L_RED}, v{vR2}")
    A(f"s_lshl_b32 {sT0}, {sRR}, 6"); A(f"s_add_u32 {sT0}, {sT0}, {sP0}"); A(f"s_add_u32 {sT0}, {sT0}, {WS_H}"); A(f"v_lshl_add_u32 v{vR3}, v{vTM}, 3, {sT0}")
    A(f"s_lshr_b32 {sT0}, {sRR}, 1"); A(f"s_lshl_b32 {sT0}, {sT0}, 14"); A(f"s_and_b32 {sT1}, {sRR}, 1"); A(f"s_lshl_b32 {sT1}, {sT1}, 12"); A(f"s_add_u32 {sT0}, {sT0}, {sT1}")
    A(f"s_add_u32 {sT0}, {sT0}, {sP0}"); A(f"s_add_u32 {sT0}, {sT0}, {WS_D}"); A(f"v_lshl_add_u32 v{vR4}, v{vLANE}, 4, {sT0}")
    A(f"v_lshl_add_u32 v{vR5}, v{vTM}, 1, {sCOL}")
    E.label("L_addr_done")
    aloads = [f"global_load_dwordx4 {Q4(vI+4*i)}, v{vAI}, {pWS} offset:{i*256} {ldf}" for i in range(4)]
    A(f"s_cmp_lg_u32 {sW}, 0"); A("s_cbranch_scc1 L_a_nopoll")
    for l in aloads: A(l)
    E.label("L_a_nopoll")
    wide_addr(vX)
    for h in range(2): read_wide_tile(vX, vWO, h)
    A(f"s_cmp_lg_u32 {sW}, 0"); A("s_cbranch_scc1 L_a_join")
    poll(aloads, [[vI+4*i+3] for i in range(4)], issued=True)
    stamp(5)
    A(f"v_max3_f32 v{vMX}, v{vI+2}, v{vI+6}, v{vI+10}"); A(f"v_max_f32 v{vMX}, v{vMX}, v{vI+14}")
    xrow("v_max_f32", [vMX], [vTM])
    for i in range(4): A(f"v_sub_f32 v{vI+4*i+2}, v{vI+4*i+2}, v{vMX}")
    for i in range(4): A(f"v_exp_f32 v{vI+4*i+2}, v{vI+4*i+2}")
    A(f"v_mul_f32 v{sa}, v{vI}, v{vI+2}"); A(f"v_mul_f32 v{sb}, v{vI+1}, v{vI+2}"); A(f"v_add_f32 v{sw}, v{vI+2}, v{vI+6}")
    for i in range(1,4):
        A(f"v_fmac_f32 v{sa}, v{vI+4*i}, v{vI+4*i+2}"); A(f"v_fmac_f32 v{sb}, v{vI+4*i+1}, v{vI+4*i+2}")
        if i > 1: A(f"v_add_f32 v{sw}, v{sw}, v{vI+4*i+2}")
    xrow("v_add_f32", [sw, sa, sb], [vS+3, vS+4, vS+5])
    A(f"v_rcp_f32 v{sw}, v{sw}")
    A(f"v_mul_f32 v{sa}, v{sa}, v{sw}"); A(f"v_mul_f32 v{sb}, v{sb}, v{sw}")
    A(f"v_mov_b32_dpp v{vS+3}, v{sa} quad_perm:[1,0,3,2] row_mask:0xf bank_mask:0xf")
    A(f"v_mov_b32_dpp v{vS+4}, v{sb} quad_perm:[1,0,3,2] row_mask:0xf bank_mask:0xf")
    A(f"v_cvt_pk_bf16_f32 v{sa}, v{sa}, v{vS+3}"); A(f"v_cvt_pk_bf16_f32 v{sb}, v{sb}, v{vS+4}")
    A("s_mov_b64 exec, 0x5555"); A(f"ds_write2_b32 v{vOPW}, v{sa}, v{sb} offset0:0 offset1:8"); A("s_mov_b64 exec, -1")
    A("s_waitcnt lgkmcnt(0)")
    E.label("L_a_join")
    A("s_barrier")
    A(f"ds_read2_b64 {Q4(vA)}, v{vOPR} offset0:0 offset1:4")
    A(f"v_mov_b32 v{vG+1}, {sTAG}")
    A("s_waitcnt lgkmcnt(0)")
    for t in (0,2,4,6,1,3,5):
        A(f"v_mfma_f32_16x16x32_bf16 {Q4(yreg[t])}, {Q4(vA)}, {Q4(vWO+4*t)}, 0")
    SEL4(vG, yreg[0], yreg[2], yreg[4], yreg[6], vMX)
    SEL4(vG+2, yreg[1], yreg[3], yreg[5], vZ, vTM)
    A(f"global_store_dwordx4 v{vBA}, {Q4(vG)}, {pWS} {stf}")
    stamp(6)
    A(f"s_cmp_lt_u32 {sIDX}, 28"); A("s_cbranch_scc1 L_ffn")
    A(f"s_cmp_ge_u32 {sRR}, 64"); A("s_cbranch_scc1 L_done")
    def inbox(addr): return [f"global_load_dwordx4 {Q4(vI+4*i)}, v{addr}, {pWS} offset:{i*1024} {ldf}" for i in range(4)]
    tags2 = [[vI+4*i+3] if onetag else [vI+4*i+1, vI+4*i+3] for i in range(4)]
    def sum_inbox():
        A(f"v_add_f32 v{sa}, v{vI}, v{vI+4}"); A(f"v_add_f32 v{sb}, v{vI+2}, v{vI+6}")
        A(f"v_add_f32 v{vS+2}, v{vI+8}, v{vI+12}"); A(f"v_add_f32 v{vS+3}, v{vI+10}, v{vI+14}")
        A(f"v_add_f32 v{sa}, v{sa}, v{vS+2}"); A(f"v_add_f32 v{sb}, v{sb}, v{vS+3}")
        A(f"v_add_f32_dpp v{sa}, v{sa}, v{sa} row_ror:8 row_mask:0xf bank_mask:0xf")
        A(f"v_add_f32_dpp v{sb}, v{sb}, v{sb} row_ror:8 row_mask:0xf bank_mask:0xf")
        xrow("v_add_f32", [sa, sb], [vS+2, vS+3])
    vXF = vO
    unpack(vXF, vXF+1, vXH); unpack(vXF+2, vXF+3, vXH+1)
    if touch: pad("red")
    poll(inbox(vR0), tags2)
    stamp(7)
    sum_inbox()
    A("s_mov_b64 exec, 0xff"); A(f"ds_write2_b32 v{vR1}, v{sa}, v{sb} offset0:0 offset1:8"); A("s_mov_b64 exec, -1")
    A("s_waitcnt lgkmcnt(0)"); A("s_barrier")
    A(f"s_cmp_lg_u32 {sW}, 0"); A("s_cbranch_scc1 L_done")
    for i in range(4): A(f"ds_read2_b64 {Q4(vI+4*i)}, v{vR2} offset0:{i*8} offset1:{i*8+4}")
    def add_resid(y, dst):
        A(f"v_cvt_pk_bf16_f32 v{dst}, v{y}, v{y+1}"); A(f"v_cvt_pk_bf16_f32 v{dst+2}, v{y+2}, v{y+3}")
        unpack(y, y+1, dst); unpack(y+2, y+3, dst+2)
        A(f"v_pk_add_f32 {P(y)}, {P(y)}, {P(vXF)}"); A(f"v_pk_add_f32 {P(y+2)}, {P(y+2)}, {P(vXF+2)}")
        A(f"v_cvt_pk_bf16_f32 v{dst}, v{y}, v{y+1}"); A(f"v_cvt_pk_bf16_f32 v{dst+2}, v{y+2}, v{y+3}")
    A("s_waitcnt lgkmcnt(2)")
    A(f"v_pk_add_f32 {P(vI)}, {P(vI)}, {P(vI+4)}"); A(f"v_pk_add_f32 {P(vI+2)}, {P(vI+2)}, {P(vI+6)}")
    A("s_waitcnt lgkmcnt(0)")
    A(f"v_pk_add_f32 {P(vI+8)}, {P(vI+8)}, {P(vI+12)}"); A(f"v_pk_add_f32 {P(vI+10)}, {P(vI+10)}, {P(vI+14)}")
    A(f"v_pk_add_f32 {P(vI)}, {P(vI)}, {P(vI+8)}"); A(f"v_pk_add_f32 {P(vI+2)}, {P(vI+2)}, {P(vI+10)}")
    add_resid(vI, vG)
    A("s_mov_b64 exec, 0x55"); A(f"global_store_dwordx4 v{vR3}, {Q4(vG)}, {pWS} {stf}"); A("s_mov_b64 exec, -1")
    stamp(8)
    unpack(vXF, vXF+1, vG); unpack(vXF+2, vXF+3, vG+2)
    A(f"v_mov_b32 v{vI+12}, 0"); A(f"v_mov_b32 v{vI+13}, {sTAG}"); A(f"v_mov_b32 v{vI+14}, 0"); A(f"v_mov_b32 v{vI+15}, {sTAG}")
    poll(inbox(vR4), tags2, first_mask=[-1,-1,-1,"s[66:67]"])
    stamp(9)
    sum_inbox()
    A(f"v_mov_b32_dpp v{vI}, v{sa} quad_perm:[0,0,2,2] row_mask:0xf bank_mask:0xf"); A(f"v_mov_b32_dpp v{vI+1}, v{sa} quad_perm:[1,1,3,3] row_mask:0xf bank_mask:0xf")
    A(f"v_mov_b32_dpp v{vI+2}, v{sb} quad_perm:[0,0,2,2] row_mask:0xf bank_mask:0xf"); A(f"v_mov_b32_dpp v{vI+3}, v{sb} quad_perm:[1,1,3,3] row_mask:0xf bank_mask:0xf")
    add_resid(vI, vI+4)
    A("s_mov_b64 exec, 0x55"); A(f"global_store_dword v{vR5}, v{vI+4}, {pOUT} {outf}")
    A(f"s_cmp_eq_u32 {sGP}, 3"); A("s_cbranch_scc1 L_done")
    A(f"global_store_dword v{vR5}, v{vI+6}, {pOUT} offset:32 {outf}")
    A(f"s_cmp_lg_u32 {sRR}, 0"); A("s_cbranch_scc1 L_done")
    A(f"s_add_u32 {sT0}, {sE}, 1"); A(f"v_mov_b32 v{vTM2}, {sT0}"); A(f"v_mov_b32 v{vTM3}, {WS_E}")
    A("s_mov_b64 exec, 1"); A(f"global_store_dword v{vTM3}, v{vTM2}, {pWS} {stf}")
    if enc5:
        A(f"v_mov_b32 v{vTM}, {WS_PAR+32}"); A(f"global_load_dword v{vTM2}, v{vTM}, {pWS} {ldf}"); A("s_waitcnt vmcnt(0)")
        A(f"v_readfirstlane_b32 {sT0}, v{vTM2}"); A(f"s_and_b32 {sT0}, {sT0}, 63"); A(f"s_mul_i32 {sT0}, {sT0}, 5000")
        A("s_memrealtime s[90:91]"); A("s_waitcnt lgkmcnt(0)")
        E.label("L_enc5")
        A("s_memrealtime s[94:95]"); A("s_waitcnt lgkmcnt(0)")
        A(f"s_sub_u32 {sT1}, s94, s90"); A(f"s_cmp_lt_u32 {sT1}, {sT0}"); A("s_cbranch_scc1 L_enc5")
    if enc:
        A("s_memrealtime s[90:91]"); A("s_waitcnt lgkmcnt(0)")
        A(f"s_sub_u32 {sT0}, s{70+2*enc[1]}, s{70+2*enc[0]}"); A(f"s_lshl_b32 {sT0}, {sT0}, 2"); A(f"s_min_u32 {sT0}, {sT0}, 100000")
        E.label("L_enc")
        A("s_memrealtime s[94:95]"); A("s_waitcnt lgkmcnt(0)")
        A(f"s_sub_u32 {sT1}, s94, s90"); A(f"s_cmp_lt_u32 {sT1}, {sT0}"); A("s_cbranch_scc1 L_enc")
    A("s_branch L_done")
    if touch: E.label("L_pad_ffn"); A("s_branch L_ret_ffn")
    E.label("L_ffn")
    A(f"s_cmp_lg_u32 {sW}, 0"); A("s_cbranch_scc1 L_c_join")
    poll([f"global_load_dwordx4 {Q4(vI+4*u)}, v{vR0}, {pWS} offset:{u*128} {ldf}" for u in range(4)], tags2)
    stamp(7)
    layernorm([vI+2*u for u in range(7)], vO, vR1, 32, mid=(lambda: pad("ffn2")) if touch else None)
    A("s_waitcnt lgkmcnt(0)")
    E.label("L_c_join")
    A("s_barrier")
    def aread(i): A(f"ds_read_b128 {Q4(vF + 4*(i % NF))}, v{vR2} offset:{i*64}")
    for i in range(NF): aread(i)
    for i in range(14):
        A(f"s_waitcnt lgkmcnt({min(NF-1, 13-i)})")
        A(f"v_mfma_f32_16x16x32_bf16 {Q4(vS)}, {Q4(vF + 4*(i % NF))}, {Q4(vW1+4*i)}, {'0' if i==0 else Q4(vS)}")
        if i + NF < 14: aread(i+NF)
    for b in range(2): A(f"v_mov_b32 v{vO+4*b+1}, {sTAG}"); A(f"v_mov_b32 v{vO+4*b+3}, {sTAG}")
    A(f"v_add_u32 v{vR0}, {16*16384}, v{vR5}")
    A(f"v_cndmask_b32 v{vTM}, v{vS}, v{vS+1}, {sM1}")
    round_bf(vTM, vTM)
    A(f"v_mul_f32 v{vTM2}, {(LOG2E | 0x80000000):#x}, v{vTM}")
    A(f"v_exp_f32 v{vTM2}, v{vTM2}")
    A(f"v_add_f32 v{vTM2}, 1.0, v{vTM2}")
    A(f"v_rcp_f32 v{vTM2}, v{vTM2}")
    A(f"v_mul_f32 v{vTM}, v{vTM}, v{vTM2}")
    A(f"v_cvt_pk_bf16_f32 v{vTM}, v{vTM}, v{vTM}")
    A("s_mov_b32 exec_hi, 0"); A(f"ds_write_b16 v{vR3}, v{vTM}"); A("s_mov_b32 exec_hi, -1")
    A("s_waitcnt lgkmcnt(0)"); A("s_barrier")
    for ks in range(2): A(f"ds_read2_b64 {Q4(vF+4*ks)}, v{vR4} offset0:{ks*8} offset1:{ks*8+4}")
    zreg = [vW1+4*t for t in range(7)]
    for ks in range(2):
        A(f"s_waitcnt lgkmcnt({1-ks})")
        for t in (0,2,4,6,1,3,5):
            A(f"v_mfma_f32_16x16x32_bf16 {Q4(zreg[t])}, {Q4(vF+4*ks)}, {Q4(vW2+28*ks+4*t)}, {'0' if ks==0 else Q4(zreg[t])}")
    for b in range(2): SEL4(vO+4*b, zreg[0]+b, zreg[2]+b, zreg[4]+b, zreg[6]+b, vMX)
    for b in range(2):
        SEL4(vO+4*b+2, zreg[1]+b, zreg[3]+b, zreg[5]+b, vZ, vMX)
        A(f"global_store_dwordx4 v{vR5 if b == 0 else vR0}, {Q4(vO+4*b)}, {pWS} {stf}")
    stamp(8)
    E.label("L_done")
    if diag:
        stamp(10)
        A("s_mov_b64 exec, -1")
        A(f"s_lshl_b32 {sT0}, {sWG}, 2"); A(f"s_add_u32 {sT0}, {sT0}, {sW}"); A(f"s_lshl_b32 {sT0}, {sT0}, 7"); A(f"s_add_u32 {sT0}, {sT0}, {WS_ST}")
        A("s_getreg_b32 s100, hwreg(HW_REG_XCC_ID)")
        A("s_waitcnt lgkmcnt(0)")
        A(f"v_mov_b32 v{vTM}, {sT0}")
        A("s_mov_b64 exec, 1")
        for k in range(11): A(f"v_mov_b32 v{vW1+k}, s{70+2*k}")
        A(f"v_mov_b32 v{vW1+11}, s100"); A(f"v_mov_b32 v{vW1+12}, {sN}"); A(f"v_mov_b32 v{vW1+13}, {sROLE}"); A(f"v_mov_b32 v{vW1+14}, {sWG}"); A(f"v_mov_b32 v{vW1+15}, {sIDX}")
        for k in range(4): A(f"v_mov_b32 v{vW1+16+k}, s{92+2*k}")
        for q in range(5): A(f"global_store_dwordx4 v{vTM}, {Q4(vW1+4*q)}, {pWS} offset:{q*16}")
    E.label("L_end")
    A("s_endpgm")

    E.label("L_ffn_w")
    wide_addr(vX); tall_addr(vX+1)
    for t in range(4): read_tall_tile(vX+1, vW1, t)
    for t in range(4): read_wide_tile(vX, vW2 + 28*(t>>1), t & 1)
    A("s_branch L_ffn_w_done")
    E.label("L_ld_ffn")
    A(f"s_mov_b64 s[52:53], s[{pK[0]}:{pK[1]}]"); A("s_mov_b32 s54, 0"); A("s_mov_b32 s55, 0x20000")
    tall_voffs(3584); A(f"v_lshlrev_b32 v{vLIN}, 4, v0")
    A(f"s_mov_b64 s[48:49], s[{pW1[0]}:{pW1[1]}]"); A(f"s_mov_b32 s50, {448*1792*2}")
    A(f"s_lshl_b32 {sBASE}, {sIDX}, 7")
    for t in range(4):
        if t % 2 == 0: freecheck(2)
        tile_tall(3584, t, 16 if t < 3 else 8)
    A(f"s_mov_b64 s[48:49], s[{pW2[0]}:{pW2[1]}]")
    A(f"s_mul_i32 {sBASE}, {sIDX}, {64*896}"); A(f"s_add_u32 {sT2}, {sN}, 4")
    E.label("L_ld_w2")
    freecheck(1)
    tile_wide()
    A(f"s_cmp_lt_u32 {sN}, {sT2}"); A("s_cbranch_scc1 L_ld_w2")
    A("s_branch L_ld_head_done")
    if forcepar is None:
        E.label("L_probe")
        A(f"s_load_dword s69, {pWS}, {WS_E}")
        A("v_and_b32 v32, 1, v0"); A("v_lshlrev_b32 v32, 13, v32"); A("v_lshrrev_b32 v33, 2, v0"); A("v_lshl_add_u32 v32, v33, 8, v32")
        A("v_bfe_u32 v33, v0, 1, 1"); A(f"v_mul_u32_u24 v33, {WS_B-WS_PRB}, v33"); A(f"v_add_u32 v32, v32, v33"); A(f"v_add_u32 v32, {WS_PRB}, v32")
        A("v_mov_b32 v36, 0"); A(f"s_mov_b32 {sCI}, {nprobe}")
        A(f"s_mov_b64 exec, {(1<<(4*nprobe))-1:#x}"); A(f"global_atomic_add v37, v32, v36, {pWS} sc0")
        A("s_mov_b64 exec, 1")
        for k,off in enumerate((WS_PRB, WS_PRB+8192, WS_B, WS_B+8192)):
            A(f"v_mov_b32 v{32+k}, {off}"); A(f"s_mov_b32 s{92+k}, {-1 if pmin else 0}")
        A("s_waitcnt vmcnt(0)")
        E.label("L_probe_loop")
        for k in range(4):
            A("s_memtime s[64:65]"); A("s_waitcnt lgkmcnt(0)")
            A(f"global_atomic_add v37, v{32+k}, v36, {pWS} sc0"); A("s_waitcnt vmcnt(0)")
            A("s_memtime s[66:67]"); A(f"v_add_u32 v{32+k}, 256, v{32+k}"); A("s_waitcnt lgkmcnt(0)")
            A("s_sub_u32 s66, s66, s64")
            if diag == 3:
                A(f"s_lshl_b32 {sT0}, {sCI}, 4"); A(f"s_add_u32 {sT0}, {sT0}, {WS_ST+0x50000+4*k}"); A(f"v_mov_b32 v38, {sT0}"); A("v_mov_b32 v39, s66")
                A(f"global_store_dword v38, v39, {pWS}")
            if pmin: A(f"s_min_u32 s{92+k}, s{92+k}, s66")
            else: A(f"s_min_u32 s66, s66, {clip}"); A(f"s_add_u32 s{92+k}, s{92+k}, s66")
        A(f"s_sub_u32 {sCI}, {sCI}, 1"); A(f"s_cmp_lg_u32 {sCI}, 0"); A("s_cbranch_scc1 L_probe_loop")
        A("s_cmp_gt_u32 s92, s93"); A(f"s_cselect_b32 {sT0}, 8192, 0")
        A("s_cmp_gt_u32 s94, s95"); A(f"s_cselect_b32 {sT1}, 8192, 0")
        if enc5:
            A("s_mov_b32 s96, 0")
            for ti,ptr in enumerate(("s[6:7]","s[8:9]")):
                for pi,pos in enumerate((0, 100<<20, 200<<20)):
                    A(f"v_mov_b32 v40, {pos+4096}"); A(f"global_load_dword v41, v40, {ptr} nt"); A("s_waitcnt vmcnt(0)")
                    A("s_mov_b32 s92, -1"); A("s_mov_b32 s93, -1")
                    for smp in range(5):
                        for par in range(2):
                            A(f"v_mov_b32 v40, {pos+par*8192+smp*256}")
                            A("s_memtime s[64:65]"); A("s_waitcnt lgkmcnt(0)")
                            A(f"global_load_dword v41, v40, {ptr} nt"); A("s_waitcnt vmcnt(0)")
                            A("s_memtime s[66:67]"); A("s_waitcnt lgkmcnt(0)")
                            A("s_sub_u32 s66, s66, s64"); A(f"s_min_u32 s{92+par}, s{92+par}, s66")
                    A("s_cmp_gt_u32 s92, s93"); A(f"s_cselect_b32 s97, {1<<(ti*3+pi)}, 0"); A("s_or_b32 s96, s96, s97")
            A(f"v_mov_b32 v40, {WS_PAR+32}"); A("v_mov_b32 v41, s96"); A(f"global_store_dword v40, v41, {pWS} {stf}"); A("s_waitcnt vmcnt(0)")
        make_tag(sT2, "s69")
        A(f"v_mov_b32 v32, {sT0}"); A(f"v_mov_b32 v33, {sT2}"); A(f"v_mov_b32 v34, {sT1}"); A(f"v_mov_b32 v35, {sT2}"); A(f"v_mov_b32 v36, {WS_PAR}")
        A(f"global_store_dwordx4 v36, v[32:35], {pWS} {stf}")
        A("s_mov_b64 exec, -1")
        A("s_branch L_ld_wo")

    body = E.finish()
    head = open("sequential_preLN__gqa_block_cached__dense_activation_silu__decode.s.ref").read().split("; Override launch")[0]
    src = head + f"""; Design (one persistent launch, 256 workgroups = one per CU, written by my own generator script):
;  * workgroup = (batch, kv head) group g = id>>4, split j = id&15.  Wave 0 streams K/V with LDS-DMA into a 9 x 16 KiB
;    LDS ring; waves 1-4 compute with MFMA.  Every split owns 64 tiles of 32 keys: first its K (scores to LDS, true
;    maximum), then its V (each wave 64 of the 256 dims).  The last tiles form per-group pools handed out with atomic counters:
;    whole K tiles at the end of the K pass, 16-key K+V tiles with online softmax (true running maximum) at the very end.
;  * q = LN(x) @ wq is computed by 64 workgroups and handed over in tagged granules; V tiles are parked in registers meanwhile.
;  * tail, four tagged hand-offs through d_ws: split combine + wo rows -> column sums + residual -> LN, w1, silu, w2 rows
;    -> column sums + residual.  bf16 roundings sit where the reference materialises bf16 tensors.
;  * tag = hash of an epoch word found in d_ws (advanced at the end): it only tells this launch's granules from older ones.
;  * one workgroup times a few zero-adds to learn which 8 KiB parity of the hand-off pages is close to the readers;
;    the answer and the role/id mapping only pick addresses (speed), never values.  All spins are bounded.
; @launch grid=(256,1,1) block=(320,1,1) lds={LDS}
.amdgcn_target "amdgcn-amd-amdhsa--gfx950"
.text
.globl {NAME}
{'.p2align 12' if align else ''}
.p2align 8
.type {NAME},@function
{NAME}:
{body}.section .rodata,"a"
.p2align 6
.amdhsa_kernel {NAME}
  .amdhsa_next_free_vgpr 256
  .amdhsa_next_free_sgpr 102
  .amdhsa_accum_offset 256
  .amdhsa_group_segment_fixed_size 0
  .amdhsa_kernarg_size 88
  .amdhsa_user_sgpr_count 2
  .amdhsa_user_sgpr_kernarg_segment_ptr 1
  .amdhsa_system_sgpr_workgroup_id_x 1
.end_amdhsa_kernel
"""
    return src, E.npad

if __name__ == "__main__":
    out = sys.argv[1]
    kw = json.loads(sys.argv[2]) if len(sys.argv) > 2 else {}
    src, npad = gen(**kw)
    open(out, "w").write(src)
    print("wrote", out, "lines", src.count("\n"), "pad states", npad)
```

```python
import sys, json, struct
from emit import Emitter

NAME = "sequential_preLN__gqa_block_cached__dense_activation_silu__decode_kernel"
def f2u(x): return struct.unpack("<I", struct.pack("<f", x))[0]

def gen(W=19, NS=57, diag=False, hilo=True, spin=1<<20, enc=None, NF=5, ldst=None, qwait=2, forcepar=None, nprobe=3, clip=2000,
        touch=0, qtouch=1, lastfast=1, outf='sc1', onetag=1, nap=0, grp=4, align=1, park=4, ltouch=0, wpre=(2,4), awarm=1, bwarm=2, WD=None, jpos=(15,16,20,21), front=1, pmin=1, okat=24, lin=1):
    E = Emitter(); A = E
    pol = "nt"; stf = ldf = "sc1"
    NSLOT = 9; SLOT = 16384; RING = NSLOT*SLOT; LDS = 163840
    L_FLAG = RING; L_CONS = RING+16; L_RED = RING+256; L_OP = RING+512; L_ACT = RING+768; L_QW = RING+1024; L_LN = RING+2048; L_SC = RING+4096; L_MX = RING+64; L_KD = 36; L_OK = 52; L_IDX = 128; L_SV = RING+12288
    WS_E = 0; WS_PAR = 0x800; WS_CNT = 0x1000; WS_H = 0x4000; WS_Q = 0x8000; WS_KF = 0x2000; WS_PRB = 0x10000; WS_SC = 0x600000; WS_D = 0x80000; WS_A = 0x100000; WS_B = 0x200000; WS_ST = 0x400000
    C_SCALE = f2u(1.4426950408889634/16.0); LOG2E = f2u(1.4426950408889634); INV448 = f2u(1.0/448.0); EPS = f2u(1e-5)
    POOL = 16+16*(64-NS); PROBE = 15*16+3; assert NS*128 <= 8192 and POOL <= 512
    assert 12 <= W <= 32 and NF <= 5
    sWG="s2"; sWAVE="s3"
    pX="s[4:5]"; pK=(6,7); pV=(8,9); pWQ=(10,11); pWO=(12,13); pW1=(16,17); pW2=(18,19); pOUT="s[20:21]"; pWS="s[24:25]"
    sG="s26"; sJ="s27"; sROLE="s28"; sN="s31"; sSLOT="s32"; sKNOWN="s33"; sT0="s34"; sT1="s35"; sT2="s36"
    sCI="s37"; sSPIN="s38"; sIDX="s39"; sNS="s63"; sPK="s68"
    vK=[4+i for i in range(8)]; vV=[12+i for i in range(4)]; vLIN=16; vT=[17,18]; vFL=21; vTMP=22; vC=24; vCA=28; vONE=29; vCL=[30,31]
    srdK="s[40:43]"; srdV="s[44:47]"; srdW="s[48:51]"; srdZ="s[52:55]"
    sCUR="s56"; sGB="s57"; sOFF="s58"; sCLM="s59"; sBASE="s61"; sFLOOR="s62"; sOWN="s60"; sVC="s64"; sK0="s66"
    sB="s29"; sHKV="s30"; sW="s40"; sTAG="s41"; sM1="s[42:43]"; sM2="s[44:45]"; sC="s46"; sE="s47"; sRR="s48"; sTOT="s49"
    sCK=["s[50:51]","s[52:53]","s[54:55]","s[56:57]"]; sCOL="s58"; sGP="s59"; sP0="s60"; sP1="s61"; sWRM="s62"; sKE="s69"
    vLANE=0; vN=1; vG4=2; vFLG=3; vCONS=4; vTM=5; vTM2=6; vTM3=7
    vM=8; vMC=9; vL=10; vMX=11
    vKB=[12,13,14,15]; vVB=[16,17,18,19]; vAD=[20,21,22,23]
    vS=24; vP=32; vO=36; vQ=52; vF=84; vAA=104; vAI=105; vBA=106
    vWO=108; vW1=136; vW2=192; vX=248; vXH=254
    xr1 = [vWO+u for u in range(7)]; vLW1 = vWO+24

    uid=[0]
    def lab(p): uid[0]+=1; return f"L_{p}_{uid[0]}"
    def P(r): return f"v[{r}:{r+1}]"
    def Q4(r): return f"v[{r}:{r+3}]"
    def stamp(k):
        if not diag and not (enc and k in (0, enc[0], enc[1])): return
        A(f"s_memrealtime s[{70+2*k}:{71+2*k}]")
    def slot_advance():
        A(f"s_add_u32 {sN}, {sN}, 1"); A(f"s_add_u32 {sSLOT}, {sSLOT}, {SLOT}")
        A(f"s_cmp_eq_u32 {sSLOT}, {RING}"); A(f"s_cselect_b32 {sSLOT}, 0, {sSLOT}")
    def spin_guard(): A(f"s_sub_u32 {sSPIN}, {sSPIN}, 1"); A("s_cbranch_scc1 L_end")
    def one_lane(ins): A("s_mov_b64 exec, 1"); A(ins); A("s_mov_b64 exec, -1")
    def share_consts(part=3):
        if part & 1:
            A(f"s_sub_u32 {sT0}, {sROLE}, 8"); A(f"s_lshl_b32 {sIDX}, {sG}, 1"); A(f"s_add_u32 {sIDX}, {sIDX}, {sT0}")
            A(f"s_cmp_lt_u32 {sT0}, 2"); A(f"s_cselect_b32 {sIDX}, {sIDX}, 99")
            A(f"s_cmp_lt_u32 {sROLE}, 4"); A(f"s_cselect_b32 {sPK}, {park//2}, {park}")
            A(f"s_cmp_lt_u32 {sIDX}, 28"); A(f"s_cselect_b32 {sPK}, 0, {sPK}"); A(f"s_cmp_eq_u32 {sIDX}, 30"); A(f"s_cselect_b32 {sPK}, 0, {sPK}")
        if part & 2:
            A(f"s_cmp_lt_u32 {sROLE}, 4"); A(f"s_cselect_b32 {sNS}, {NS-2}, {NS}")
            A(f"s_cmp_lt_u32 {sIDX}, 30"); A(f"s_cselect_b32 {sNS}, {NS-4}, {sNS}"); A(f"s_cmp_eq_u32 {sIDX}, 30"); A(f"s_cselect_b32 {sNS}, {NS-8}, {sNS}")
    def make_tag(dst, e): A(f"s_mul_i32 {dst}, {e}, 0x9e3779b1"); A(f"s_add_u32 {dst}, {dst}, 0x7f4a7c15")
    pads = []
    def pad(name):
        sk = lab("padskip"); A(f"s_branch {sk}"); E.label(f"L_pad_{name}"); A(f"s_branch L_ret_{name}"); E.label(sk)
    def touch_pad(name): A(f"s_branch L_pad_{name}"); E.label(f"L_ret_{name}")

    A(f"s_cmp_ge_u32 {sWG}, 256"); A("s_cbranch_scc1 L_end")
    stamp(0)
    A("s_load_dwordx16 s[4:19], s[0:1], 0"); A("s_load_dwordx4 s[20:23], s[0:1], 64"); A("s_load_dwordx2 s[24:25], s[0:1], 80")
    A("v_lshrrev_b32 v1, 6, v0"); A("v_and_b32 v0, 63, v0"); A(f"v_readfirstlane_b32 {sWAVE}, v1")
    A(f"s_lshr_b32 {sG}, {sWG}, 4"); A(f"s_and_b32 {sJ}, {sWG}, 15")
    A(f"s_lshr_b32 {sT0}, {sJ}, 1"); A(f"s_and_b32 {sT0}, {sT0}, 4"); A(f"s_and_b32 {sROLE}, {sJ}, 3"); A(f"s_add_u32 {sROLE}, {sROLE}, {sT0}")
    A(f"s_sub_u32 {sROLE}, {sROLE}, {sG}"); A(f"s_and_b32 {sROLE}, {sROLE}, 7")
    A(f"s_add_u32 {sT0}, {sROLE}, 4"); A(f"s_add_u32 {sT1}, {sROLE}, 8"); A(f"s_cmp_lt_u32 {sROLE}, 4"); A(f"s_cselect_b32 {sROLE}, {sROLE}, {sT1}")
    A(f"s_bitcmp1_b32 {sJ}, 2"); A(f"s_cselect_b32 {sROLE}, {sROLE}, {sT0}")
    A(f"s_mov_b32 {sN}, 0"); A(f"s_mov_b64 s[32:33], 0"); A(f"s_mov_b32 {sCI}, 0"); A(f"s_mov_b32 {sSPIN}, {spin}")
    A(f"v_mov_b32 v3, {L_FLAG}"); A(f"v_lshl_add_u32 v1, v0, 2, v3"); A("v_mov_b32 v2, 0")
    A("s_mov_b64 exec, 6"); A("v_bfrev_b32 v2, -2"); A("s_mov_b64 exec, 0x3fff"); A("ds_write_b32 v1, v2"); A("s_mov_b64 exec, -1")
    A(f"v_lshrrev_b32 v1, 5, v0"); A(f"v_mul_u32_u24 v1, 896, v1"); A(f"v_and_b32 v2, 31, v0"); A(f"v_lshl_add_u32 v{vLW1}, v2, 2, v1")
    A("s_waitcnt lgkmcnt(0)")
    A("s_barrier")
    A(f"s_cmp_eq_u32 {sWAVE}, 0"); A("s_cbranch_scc1 L_loader")
    A(f"s_load_dword {sE}, {pWS}, {WS_E}")
    A(f"s_cmp_ge_u32 {sROLE}, 4"); A("s_cbranch_scc1 L_consumer")
    for u in range(7): A(f"global_load_dword v{xr1[u]}, v{vLW1}, {pX} offset:{u*128}")
    A("s_branch L_qprod")

    def publish(back):
        A(f"s_sub_u32 {sT0}, {sN}, {back}"); A(f"s_max_i32 {sT0}, {sT0}, {sFLOOR}")
        A(f"v_mov_b32 v{vTMP}, {sT0}"); one_lane(f"ds_write_b32 v{vFL}, v{vTMP}")
    def throttle(i, W=W):
        if i % grp == grp-1:
            A(f"s_waitcnt vmcnt({W})")
            if i+1+16 >= W and (i+1-grp+16 < W or i < grp): publish(1)
    def tile_rows(specs, pol=pol, W=W):
        for i,(srd,vo,so) in enumerate(specs):
            if i % 4 == 0:
                A(f"s_add_u32 m0, {sSLOT}, {i*1024}" if i else f"s_mov_b32 m0, {sSLOT}")
                A(f"s_add_u32 {sOFF}, {sBASE}, {so}" if so else f"s_mov_b32 {sOFF}, {sBASE}")
            A(f"buffer_load_dwordx4 v{vo}, {srd}, {sOFF} offen offset:{(i%4)*1024} {pol} lds")
            throttle(i, W)
        slot_advance()
    def tile_tall(rowstride, t, nvalid):
        for i in range(16):
            A(f"s_add_u32 m0, {sSLOT}, {i*1024}" if i else f"s_mov_b32 m0, {sSLOT}")
            A(f"s_add_u32 {sOFF}, {sBASE}, {(t*128+i*8)*rowstride}")
            A(f"buffer_load_dwordx4 v{vT[i&1]}, {srdW if i < nvalid else srdZ}, {sOFF} offen {pol} lds")
            throttle(i)
        slot_advance()
    def tile_wide(pol=pol):
        tile_rows([(srdW if i < 14 else srdZ, vLIN, i*1024) for i in range(16)], pol)
        A(f"s_add_u32 {sBASE}, {sBASE}, 14336")
    def tall_voffs(stride):
        A("v_lshrrev_b32 v1, 3, v0"); A("v_and_b32 v2, 7, v0"); A("v_and_b32 v3, 2, v1"); A("v_xor_b32 v2, v2, v3"); A("v_lshlrev_b32 v2, 4, v2")
        A(f"v_mul_u32_u24 v3, {stride}, v1"); A(f"v_add_u32 v{vT[0]}, v3, v2"); A("v_xor_b32 v2, 64, v2"); A(f"v_add_u32 v{vT[1]}, v3, v2")
    def freecheck(k):
        ok = lab("free"); lp = lab("freepoll")
        A(f"s_add_u32 {sT0}, {sKNOWN}, {NSLOT-k}"); A(f"s_cmp_ge_u32 {sT0}, {sN}"); A(f"s_cbranch_scc1 {ok}")
        E.label(lp)
        A(f"ds_read_b128 {Q4(vC)}, v{vFL} offset:16")
        spin_guard()
        A("s_waitcnt lgkmcnt(0)")
        A(f"v_min3_u32 v{vC}, v{vC}, v{vC+1}, v{vC+2}"); A(f"v_min_u32 v{vC}, v{vC}, v{vC+3}")
        A(f"v_readfirstlane_b32 {sKNOWN}, v{vC}")
        A(f"s_add_u32 {sT0}, {sKNOWN}, {NSLOT-k}"); A(f"s_cmp_ge_u32 {sT0}, {sN}"); A(f"s_cbranch_scc1 {ok}")
        A("s_sleep 1"); A(f"s_branch {lp}")
        E.label(ok)
    def claim(p, off=0):
        one_lane(f"global_atomic_add v{vCL[p]}, v{vCA}, v{vONE}, {pWS} offset:{off} sc0")
    def claim_last_two(cnt, lim, off):
        nc = lab("nocl"); c1 = lab("cl1")
        A(f"s_add_u32 {sT0}, {cnt}, 1"); A(f"s_cmp_lt_u32 {sT0}, {lim}"); A(f"s_cbranch_scc1 {nc}")
        A(f"s_cmp_eq_u32 {cnt}, {lim}"); A(f"s_cbranch_scc1 {c1}")
        claim(0, off); A(f"s_branch {nc}")
        E.label(c1); claim(1, off)
        E.label(nc)

    rpos = [b for b in range(14,24) if b not in jpos]; RMASK = sum(1<<b for b in rpos)
    def scatter(dst, src, pos, tmp):
        k = 0
        while k < len(pos):
            n = 1
            while k+n < len(pos) and pos[k+n] == pos[k]+n: n += 1
            A(f"s_bfe_u32 {tmp}, {src}, {(n<<16)|k:#x}"); A(f"s_lshl_b32 {tmp}, {tmp}, {pos[k]}"); A(f"s_or_b32 {dst}, {dst}, {tmp}")
            k += n
    def next_tile():
        A(f"s_or_b32 {sCUR}, {sCUR}, {(~RMASK)&0xffffffff:#x}"); A(f"s_add_u32 {sCUR}, {sCUR}, 1"); A(f"s_and_b32 {sCUR}, {sCUR}, {RMASK:#x}")
        A(f"s_or_b32 {sBASE}, {sOWN}, {sCUR}")
    E.label("L_loader")
    A("s_setprio 3")
    A(f"v_mov_b32 v{vFL}, v3"); A(f"s_mov_b32 {sFLOOR}, 0")
    A("s_mov_b32 s50, 3670016"); A("s_mov_b32 s51, 0x20000")
    A(f"s_cmp_ge_u32 {sROLE}, 4"); A("s_cbranch_scc1 L_ld_noq")
    tall_voffs(8192)
    A(f"s_mov_b64 s[48:49], s[{pWQ[0]}:{pWQ[1]}]")
    A(f"s_and_b32 {sOFF}, {sG}, 7"); A(f"s_lshl_b32 {sOFF}, {sOFF}, 3"); A(f"s_lshr_b32 {sT0}, {sG}, 3"); A(f"s_lshl_b32 {sT0}, {sT0}, 2")
    A(f"s_add_u32 {sOFF}, {sOFF}, {sT0}"); A(f"s_add_u32 {sOFF}, {sOFF}, {sROLE}"); A(f"s_lshl_b32 {sOFF}, {sOFF}, 7")
    A("s_mov_b32 m0, 0")
    E.label("L_ld_q")
    for i in range(2):
        A(f"buffer_load_dwordx4 v{vT[i]}, {srdW}, {sOFF} offen {pol} lds")
        A(f"s_add_u32 {sOFF}, {sOFF}, {8*8192}"); A("s_add_u32 m0, m0, 1024")
    A(f"s_cmp_lt_u32 m0, {56*1024}"); A("s_cbranch_scc1 L_ld_q")
    A(f"s_mov_b32 {sN}, 4"); A(f"s_mov_b32 {sSLOT}, {4*SLOT}"); A(f"s_mov_b32 {sFLOOR}, 4")
    A(f"v_mov_b32 v{vTMP}, 4"); A("s_waitcnt vmcnt(0)"); one_lane(f"ds_write_b32 v{vFL}, v{vTMP}")
    E.label("L_ld_noq")
    if forcepar is None:
        A(f"s_cmp_eq_u32 {sWG}, {PROBE}"); A("s_cbranch_scc1 L_probe")
    E.label("L_ld_wo")
    A("v_lshrrev_b32 v1, 5, v0"); A("v_and_b32 v2, 31, v0")
    A("v_lshlrev_b32 v3, 1, v1"); A("v_xor_b32 v3, v2, v3"); A("v_lshlrev_b32 v3, 4, v3"); A("v_lshl_or_b32 v3, v1, 9, v3")
    for i in range(4): A(f"v_xor_b32 v{vV[i]}, {i*64}, v3")
    A(f"s_mov_b64 s[44:45], s[{pV[0]}:{pV[1]}]"); A("s_brev_b32 s46, 8"); A("s_mov_b32 s47, s51")
    A(f"s_lshl_b32 {sGB}, {sG}, 24"); A(f"s_mov_b32 {sOWN}, {sGB}"); scatter(sOWN, sJ, jpos, sT0)
    share_consts(1)
    sc = lambda r: sum(((r >> k) & 1) << b for k,b in enumerate(rpos)) if front else 0
    A(f"s_cmp_lt_u32 {sROLE}, 4"); A(f"s_cselect_b32 {sK0}, {sc(2)}, 0")
    A(f"s_cmp_lt_u32 {sIDX}, 30"); A(f"s_cselect_b32 {sK0}, {sc(4)}, {sK0}"); A(f"s_cmp_eq_u32 {sIDX}, 30"); A(f"s_cselect_b32 {sK0}, {sc(8)}, {sK0}")
    A(f"s_mov_b32 {sCUR}, {sK0}")
    A(f"s_cmp_lt_u32 {sIDX}, 28"); A(f"s_cbranch_scc1 L_ld_ffn")
    A(f"s_or_b32 {sBASE}, {sOWN}, {sCUR}"); A(f"s_add_u32 {sT2}, {sN}, {sPK}")
    A(f"s_cmp_eq_u32 {sPK}, 0"); A("s_cbranch_scc1 L_ld_head_done")
    E.label("L_ld_pv")
    tile_rows([(srdV, vV[i%4], i*1024) for i in range(16)])
    next_tile()
    A(f"s_cmp_lt_u32 {sN}, {sT2}"); A("s_cbranch_scc1 L_ld_pv")
    E.label("L_ld_head_done")
    A(f"s_mov_b32 {sVC}, {sCUR}"); A(f"s_mov_b32 {sCUR}, {sK0}")
    share_consts(2)
    A("v_lshrrev_b32 v1, 5, v0"); A("v_and_b32 v2, 31, v0")
    A("v_xor_b32 v3, v2, v1"); A("v_lshlrev_b32 v3, 4, v3"); A("v_lshl_or_b32 v3, v1, 9, v3")
    for i in range(8): A(f"v_xor_b32 v{vK[i]}, {i*32}, v3")
    A(f"s_lshl_b32 {sT0}, {sG}, 8"); A(f"s_add_u32 {sT0}, {sT0}, {WS_CNT}"); A(f"v_mov_b32 v{vCA}, {sT0}"); A(f"v_mov_b32 v{vONE}, 1")
    A(f"s_mov_b64 s[40:41], s[{pK[0]}:{pK[1]}]"); A("s_mov_b32 s42, 0x10000000"); A("s_mov_b32 s43, 0x20000")
    def ldstamps(list_, k0):
        if not diag: return
        for k,c in enumerate(list_):
            sk=lab("ls"); A(f"s_cmp_lg_u32 {sCI}, {c}"); A(f"s_cbranch_scc1 {sk}"); A(f"s_memrealtime s[{72+2*(k0+k)}:{73+2*(k0+k)}]"); A("s_waitcnt lgkmcnt(0)"); E.label(sk)
    A(f"s_or_b32 {sBASE}, {sOWN}, {sCUR}")
    E.label("L_ld_loop")
    ldstamps((0,4,8,16,32,NS-9), 0)
    freecheck(1)
    A(f"s_add_u32 {sCI}, {sCI}, 1")
    claim_last_two(sCI, sNS, 0)
    tile_rows([(srdK, vK[i%8], i*1024) for i in range(16)])
    next_tile()
    A(f"s_cmp_lt_u32 {sCI}, {sNS}"); A("s_cbranch_scc1 L_ld_loop")
    def pool_tile(p, tag, done):
        A(f"v_readfirstlane_b32 {sCLM}, v{vCL[p]}")
        A(f"s_cmp_ge_u32 {sCLM}, {POOL}"); A(f"s_cbranch_scc1 {done}")
        A(f"s_cmp_lt_u32 {sCLM}, 16"); A(f"s_cbranch_scc1 L_ld_shed{tag}{p}")
        A(f"s_and_b32 {sT1}, {sCLM}, 15"); A(f"s_lshr_b32 {sCUR}, {sCLM}, 4"); A(f"s_add_u32 {sCUR}, {sCUR}, {NS-1}")
        E.label(f"L_ld_unit{tag}{p}")
        A(f"s_mov_b32 {sBASE}, {sGB}"); scatter(sBASE, sT1, jpos, sT0); scatter(sBASE, sCUR, rpos, sT0)
        freecheck(1)
    E.label("L_ld_kdyn")
    for p in range(2):
        pool_tile(p, "k", "L_ld_kdone")
        A(f"s_lshr_b32 {sT0}, {sSLOT}, 12"); A(f"v_mov_b32 v{vTMP}, {sCLM}"); A(f"v_add_u32 v19, {sT0}, v{vFL}")
        one_lane(f"ds_write_b32 v19, v{vTMP} offset:{L_IDX}")
        claim(p)
        tile_rows([(srdK, vK[i%8], i*1024) for i in range(16)])
    A("s_branch L_ld_kdyn")
    E.label("L_ld_kdone")
    if diag == 4: A("s_memrealtime s[84:85]"); A("s_waitcnt lgkmcnt(0)")
    A(f"v_mov_b32 v{vTMP}, {sN}"); one_lane(f"ds_write_b32 v{vFL}, v{vTMP} offset:8")
    A(f"s_mov_b32 {sCI}, {sPK}"); A(f"s_mov_b32 {sCUR}, {sVC}"); A(f"s_or_b32 {sBASE}, {sOWN}, {sCUR}")
    E.label("L_ld_vloop")
    if diag != 4: ldstamps((8,40,NS-9), 6)
    freecheck(1)
    A(f"s_add_u32 {sCI}, {sCI}, 1")
    claim_last_two(sCI, sNS, 128)
    tile_rows([(srdV, vV[i%4], i*1024) for i in range(16)])
    next_tile()
    A(f"s_cmp_lt_u32 {sCI}, {sNS}"); A("s_cbranch_scc1 L_ld_vloop")
    if diag == 4: A("s_memrealtime s[86:87]"); A("s_waitcnt lgkmcnt(0)"); A(f"s_mov_b32 s88, {sNS}")
    A(f"s_mov_b64 s[48:49], {pWS}"); A(f"s_mov_b32 s50, {WS_SC+0x100000}")
    A(f"s_lshl_b32 {sOWN}, {sG}, 16"); A(f"s_add_u32 {sOWN}, {sOWN}, {WS_SC}"); A("v_lshlrev_b32 v19, 2, v0")
    E.label("L_ld_okwait")
    A(f"ds_read_b32 v{vC}, v{vFL} offset:{L_OK}")
    spin_guard()
    A("s_waitcnt lgkmcnt(0)")
    A(f"v_readfirstlane_b32 {sT0}, v{vC}"); A(f"s_cmp_eq_u32 {sT0}, 0"); A("s_cbranch_scc1 L_ld_okwait")
    E.label("L_ld_dyn")
    for p in range(2):
        pool_tile(p, "v", "L_ld_dyn_done")
        claim(p, 128)
        A(f"s_lshr_b32 {sT0}, {sSLOT}, 7"); A(f"s_add_u32 m0, {sT0}, {L_SV}")
        A(f"s_lshl_b32 {sOFF}, {sCLM}, 7"); A(f"s_add_u32 {sOFF}, {sOFF}, {sOWN}")
        A("s_mov_b32 exec_hi, 0"); A(f"buffer_load_dword v19, {srdW}, {sOFF} offen {ldf} lds"); A("s_mov_b32 exec_hi, -1")
        tile_rows([(srdV, vV[i%4], i*1024) for i in range(16)], W=WD or W)
    A("s_branch L_ld_dyn")
    E.label("L_ld_dyn_done")
    A(f"v_mov_b32 v{vTMP}, {sN}"); one_lane(f"ds_write_b32 v{vFL}, v{vTMP} offset:4")
    A(f"s_mov_b64 s[48:49], s[{pWO[0]}:{pWO[1]}]"); A("s_mov_b32 s50, 3670016")
    A(f"s_and_b32 {sBASE}, {sWG}, 127"); A(f"s_mul_i32 {sBASE}, {sBASE}, {32*896}"); A(f"v_lshlrev_b32 v{vLIN}, 4, v0")
    freecheck(2)
    k = 0
    for t in range(2):
        for i in range(14):
            if i % 4 == 0:
                A(f"s_add_u32 m0, {sSLOT}, {i*1024}" if i else f"s_mov_b32 m0, {sSLOT}")
                A(f"s_add_u32 {sOFF}, {sBASE}, {t*14336+i*1024}")
            if k == wpre[0]: A(f"s_waitcnt vmcnt({16+k})"); publish(1+t)
            if k == wpre[1]: A(f"s_waitcnt vmcnt({k})"); publish(t)
            A(f"buffer_load_dwordx4 v{vLIN}, {srdW}, {sOFF} offen offset:{(i%4)*1024} lds")
            k += 1
        slot_advance()
    for c,back in ((14,1),(0,0)):
        A(f"s_waitcnt vmcnt({c})"); publish(back)
    if diag:
        A("s_mov_b64 exec, 1"); A("s_memrealtime s[90:91]")
        A(f"s_lshl_b32 {sT0}, {sWG}, 6"); A(f"s_add_u32 {sT0}, {sT0}, {WS_ST+0x40000}"); A(f"v_mov_b32 v46, {sT0}")
        A("s_waitcnt lgkmcnt(0)")
        for k in range(11): A(f"v_mov_b32 v{32+k}, s{70+2*k}")
        A(f"v_mov_b32 v43, {sSPIN}")
        for q in range(3): A(f"global_store_dwordx4 v46, v[{32+4*q}:{35+4*q}], {pWS} offset:{q*16}")
    A("s_waitcnt lgkmcnt(0)")
    A("s_endpgm")
    for p in ("k0","k1","v0","v1"):
        E.label(f"L_ld_shed{p}")
        A(f"s_lshr_b32 {sT0}, {sCLM}, 2"); A(f"s_and_b32 {sT1}, {sCLM}, 3"); A(f"s_add_u32 {sT1}, {sT1}, {0 if front else NS-4}"); A(f"s_add_u32 {sT2}, {sCLM}, {0 if front else NS-8}")
        A(f"s_cmp_eq_u32 {sG}, 15"); A(f"s_cselect_b32 {sT0}, 0, {sT0}"); A(f"s_cselect_b32 {sT1}, {sT2}, {sT1}"); A(f"s_add_u32 {sT0}, {sT0}, 4")
        A(f"s_bfe_u32 {sT2}, {sCLM}, 0x20001"); A(f"s_and_b32 {sCUR}, {sCLM}, 1"); A(f"s_add_u32 {sCUR}, {sCUR}, {0 if front else NS-2}")
        A(f"s_cmp_lt_u32 {sCLM}, 8"); A(f"s_cselect_b32 {sT0}, {sT0}, {sT2}"); A(f"s_cselect_b32 {sCUR}, {sT1}, {sCUR}"); A(f"s_cselect_b32 {sT2}, 0, 4")
        A(f"s_add_u32 {sT0}, {sT0}, {sG}"); A(f"s_and_b32 {sT1}, {sT0}, 3"); A(f"s_or_b32 {sT1}, {sT1}, {sT2}")
        A(f"s_bfe_u32 {sT0}, {sT0}, 0x10002"); A(f"s_lshl_b32 {sT0}, {sT0}, 3"); A(f"s_or_b32 {sT1}, {sT1}, {sT0}")
        A(f"s_branch L_ld_unit{p}")

    def SEL4(dst, a, b, c, d, t):
        A(f"v_cndmask_b32 v{dst}, v{a}, v{b}, {sM1}"); A(f"v_cndmask_b32 v{t}, v{c}, v{d}, {sM1}"); A(f"v_cndmask_b32 v{dst}, v{dst}, v{t}, {sM2}")
    def xrow(op, regs, tmps):
        for sw in ("v_permlane16_swap_b32","v_permlane32_swap_b32"):
            for r,t in zip(regs,tmps): A(f"v_mov_b32 v{t}, v{r}")
            for r,t in zip(regs,tmps): A(f"{sw} v{r}, v{t}")
            for r,t in zip(regs,tmps): A(f"{op} v{r}, v{r}, v{t}")
    def round_bf(dst, src): A(f"v_cvt_pk_bf16_f32 v{dst}, v{src}, v{src}"); A(f"v_and_b32 v{dst}, 0xffff0000, v{dst}")
    def unpack(lo, hi, src): A(f"v_lshlrev_b32 v{lo}, 16, v{src}"); A(f"v_and_b32 v{hi}, 0xffff0000, v{src}")
    def pub_cons():
        slot_advance()
        A(f"v_mov_b32 v{vTM}, {sN}"); one_lane(f"ds_write_b32 v{vCONS}, v{vTM}")
    def wait_tile(fin=None, kend=None):
        ok = lab("have"); lp = lab("poll")
        if fin: A(f"s_cmp_eq_u32 {sTOT}, {sN}"); A(f"s_cbranch_scc1 {fin}")
        if kend: A(f"s_cmp_ge_u32 {sN}, {sKE}"); A(f"s_cbranch_scc1 {kend}")
        A(f"s_cmp_gt_u32 {sKNOWN}, {sN}"); A(f"s_cbranch_scc1 {ok}")
        E.label(lp)
        A(f"ds_read_b128 {Q4(vAD[0])}, v{vFLG}")
        spin_guard()
        A("s_waitcnt lgkmcnt(0)")
        A(f"v_readfirstlane_b32 {sKNOWN}, v{vAD[0]}"); A(f"v_readfirstlane_b32 {sTOT}, v{vAD[1]}")
        A(f"v_readfirstlane_b32 {sKE}, v{vAD[2]}")
        if kend: A(f"s_cmp_ge_u32 {sN}, {sKE}"); A(f"s_cbranch_scc1 {kend}")
        if fin:
            nw = lab("nw")
            A(f"s_cmp_ge_u32 {sTOT}, {sWRM}"); A(f"s_cbranch_scc1 {nw}")
            A(f"s_mov_b32 {sWRM}, 0"); A(f"global_load_dword v{vX+2}, v{vX+3}, {pWS} {ldf}")
            E.label(nw)
            A(f"s_cmp_eq_u32 {sTOT}, {sN}"); A(f"s_cbranch_scc1 {fin}")
        A(f"s_cmp_gt_u32 {sKNOWN}, {sN}"); A(f"s_cbranch_scc1 {ok}")
        if nap or not fin: A("s_sleep 1")
        A(f"s_branch {lp}")
        E.label(ok)
    def poll(loads, tags, first_mask=None, issued=False):
        lp = lab("gpoll"); n = len(loads)
        chk = lab("gchk")
        if issued: A(f"s_branch {chk}")
        else:
            for i in range(n): A(f"s_mov_b64 {sCK[i]}, {first_mask[i] if first_mask else -1}")
        E.label(lp)
        for i,l in enumerate(loads):
            sk = lab("sk")
            A(f"s_mov_b64 exec, {sCK[i]}"); A(f"s_cbranch_execz {sk}"); A(l); E.label(sk)
        A("s_mov_b64 exec, -1")
        spin_guard()
        if issued: E.label(chk)
        A("s_waitcnt vmcnt(0)")
        for i in range(n):
            A(f"v_cmp_ne_u32 {sCK[i]}, {sTAG}, v{tags[i][0]}")
            for t in tags[i][1:]:
                A(f"v_cmp_ne_u32 vcc, {sTAG}, v{t}"); A(f"s_or_b64 {sCK[i]}, {sCK[i]}, vcc")
        A(f"s_or_b64 vcc, {sCK[0]}, {sCK[min(1,n-1)]}")
        for i in range(2, n): A(f"s_or_b64 vcc, vcc, {sCK[i]}")
        A(f"s_cbranch_scc1 {lp}")
    def layernorm(xr, f, lnbase, stride, mid=None):
        s1=vTM; t=vTM2; mu=vX; a=vX+2; b=vX+4
        for u in range(7): unpack(f+2*u, f+2*u+1, xr[u])
        A(f"v_pk_add_f32 {P(a)}, {P(f)}, {P(f+2)}"); A(f"v_pk_add_f32 {P(b)}, {P(f+4)}, {P(f+6)}")
        A(f"v_pk_add_f32 {P(a)}, {P(a)}, {P(f+8)}"); A(f"v_pk_add_f32 {P(b)}, {P(b)}, {P(f+10)}")
        A(f"v_pk_add_f32 {P(a)}, {P(a)}, {P(f+12)}"); A(f"v_pk_add_f32 {P(a)}, {P(a)}, {P(b)}")
        A(f"v_add_f32 v{s1}, v{a}, v{a+1}")
        red32 = [f"v_add_f32_dpp v{s1}, v{s1}, v{s1} row_ror:{k} row_mask:0xf bank_mask:0xf" for k in (8,4,2,1)]
        red32 += [f"v_mov_b32 v{t}, v{s1}", f"v_permlane16_swap_b32 v{s1}, v{t}", f"v_add_f32 v{s1}, v{s1}, v{t}"]
        for l in red32: A(l)
        A(f"v_mul_f32 v{mu}, {INV448:#x}, v{s1}")
        NEG = "op_sel_hi:[1,0] neg_lo:[0,1] neg_hi:[0,1]"
        A(f"v_pk_add_f32 {P(b)}, {P(f)}, {P(mu)} {NEG}")
        A(f"v_pk_mul_f32 {P(a)}, {P(b)}, {P(b)}")
        for u in range(1,7):
            A(f"v_pk_add_f32 {P(b)}, {P(f+2*u)}, {P(mu)} {NEG}")
            A(f"v_pk_fma_f32 {P(a)}, {P(b)}, {P(b)}, {P(a)}")
        A(f"v_add_f32 v{s1}, v{a}, v{a+1}")
        round_bf(mu, mu)
        fill = [f"v_pk_add_f32 {P(f+2*u)}, {P(f+2*u)}, {P(mu)} {NEG}" for u in range(7)] + [f"v_cvt_pk_bf16_f32 v{xr[u]}, v{f+2*u}, v{f+2*u+1}" for u in range(7)]
        for u in range(7): fill += [f"v_lshlrev_b32 v{f+2*u}, 16, v{xr[u]}", f"v_and_b32 v{f+2*u+1}, 0xffff0000, v{xr[u]}"]
        rb = [f"v_cvt_pk_bf16_f32 v{s1}, v{s1}, v{s1}", f"v_and_b32 v{s1}, 0xffff0000, v{s1}"]
        chain = red32 + [f"v_mul_f32 v{s1}, {INV448:#x}, v{s1}"] + rb + [f"v_add_f32 v{s1}, {EPS:#x}, v{s1}"] + rb + [f"v_sqrt_f32 v{s1}, v{s1}"] + rb + [f"v_rcp_f32 v{a}, v{s1}"]
        while chain or fill:
            for _ in range(2):
                if fill: A(fill.pop(0))
            if chain: A(chain.pop(0))
        if mid: mid()
        for u in range(7): A(f"v_pk_mul_f32 {P(f+2*u)}, {P(f+2*u)}, {P(a)} op_sel_hi:[1,0]")
        for u in range(7):
            A(f"v_cvt_pk_bf16_f32 v{xr[u]}, v{f+2*u}, v{f+2*u+1}")
            A(f"ds_write_b32 v{lnbase}, v{xr[u]} offset:{u*stride}")
    def ln_read_addr(rd, base):
        A(f"v_and_b32 v{rd}, 1, v{vLANE}"); A(f"v_mul_u32_u24 v{rd}, 896, v{rd}")
        A(f"v_lshl_add_u32 v{rd}, v{vG4}, 4, v{rd}"); A(f"v_add_u32 v{rd}, {base}, v{rd}")
    def tall_addr(dst):
        A(f"v_lshrrev_b32 v{vTM}, 3, v{vN}")
        A(f"v_and_b32 v{vTM2}, 1, v{vG4}"); A(f"v_lshl_or_b32 v{vTM}, v{vTM2}, 1, v{vTM}")
        A(f"v_xor_b32 v{vTM}, {sW}, v{vTM}"); A(f"v_lshlrev_b32 v{vTM}, 5, v{vTM}")
        A(f"v_and_b32 v{vTM2}, 3, v{vN}"); A(f"v_lshl_or_b32 v{vTM}, v{vTM2}, 3, v{vTM}")
        A(f"v_lshrrev_b32 v{vTM2}, 2, v{vN}"); A(f"v_lshl_or_b32 v{vTM}, v{vTM2}, 7, v{vTM}")
        A(f"v_lshl_or_b32 v{dst}, v{vG4}, 10, v{vTM}")
    def wide_addr(dst):
        A(f"v_lshrrev_b32 v{vTM}, 2, v{vN}"); A(f"v_lshl_add_u32 v{vTM}, v{vG4}, 2, v{vTM}"); A(f"v_mul_u32_u24 v{vTM}, 896, v{vTM}")
        A(f"v_and_b32 v{vTM2}, 3, v{vN}"); A(f"v_lshl_add_u32 v{vTM}, v{vTM2}, 3, v{vTM}")
        A(f"s_mul_i32 {sT0}, {sW}, 224"); A(f"v_add_u32 v{dst}, {sT0}, v{vTM}")
    def read_tall_tile(base, dstreg, t):
        wait_tile()
        A(f"v_add_u32 v{vAD[0]}, {sSLOT}, v{base}")
        for s in range(4 if t < 3 else 2):
            for h2 in range(2):
                A(f"ds_read_b64_tr_b16 {P(dstreg + 4*(4*t+s) + 2*h2)}, v{vAD[0]} offset:{s*4096+h2*512}")
        A("s_waitcnt lgkmcnt(0)")
        pub_cons()
    def read_wide_tile(base, dstreg, half):
        wait_tile()
        A(f"v_add_u32 v{vAD[0]}, {sSLOT}, v{base}")
        for tt in range(7): A(f"ds_read_b64_tr_b16 {P(dstreg + 4*tt + 2*half)}, v{vAD[0]} offset:{tt*32}")
        A("s_waitcnt lgkmcnt(0)")
        pub_cons()
    def basic_setup():
        A(f"s_sub_u32 {sW}, {sWAVE}, 1"); A(f"s_lshr_b32 {sB}, {sG}, 3"); A(f"s_and_b32 {sHKV}, {sG}, 7")
        A(f"v_and_b32 v{vN}, 15, v{vLANE}"); A(f"v_lshrrev_b32 v{vG4}, 4, v{vLANE}")
        A(f"s_lshl_b32 {sT0}, {sW}, 2"); A(f"s_add_u32 {sT0}, {sT0}, {L_CONS}"); A(f"v_mov_b32 v{vCONS}, {sT0}")
        A("s_mov_b32 s42, 0xffff0000"); A("s_mov_b32 s43, s42")

    if align: A(".p2align 12")
    E.label("L_qprod")
    f14 = vWO+8; vLR = vWO+25; vTA = vWO+26; vQA = vWO+27
    basic_setup()
    A(f"s_or_b32 {sT0}, {sROLE}, {sW}"); A(f"s_cmp_lg_u32 {sT0}, 0"); A("s_cbranch_scc1 L_noinit")
    A(f"s_lshl_b32 {sT0}, {sG}, 8"); A(f"s_add_u32 {sT0}, {sT0}, {WS_CNT}")
    A(f"v_mov_b32 v{vTM2}, {sT0}"); A(f"v_mov_b32 v{vTM3}, 0")
    A("s_mov_b64 exec, 1"); A(f"global_store_dword v{vTM2}, v{vTM3}, {pWS} {stf}"); A(f"global_store_dword v{vTM2}, v{vTM3}, {pWS} offset:128 {stf}"); A("s_mov_b64 exec, -1")
    E.label("L_noinit")
    A(f"v_add_u32 v{vLW1}, {L_LN}, v{vLW1}")
    ln_read_addr(vLR, L_LN)
    tall_addr(vTA)
    A(f"s_lshl_b32 {sT0}, {sB}, 2"); A(f"s_add_u32 {sT0}, {sT0}, {sROLE}"); A(f"s_lshl_b32 {sT0}, {sT0}, 2"); A(f"s_add_u32 {sT0}, {sT0}, {sW}")
    A(f"s_lshl_b32 {sT0}, {sT0}, 6"); A(f"s_lshl_b32 {sT1}, {sHKV}, 11"); A(f"s_add_u32 {sT0}, {sT0}, {sT1}"); A(f"s_add_u32 {sT0}, {sT0}, {WS_Q}")
    A(f"v_lshlrev_b32 v{vQA}, 2, v{vN}"); A(f"v_lshl_add_u32 v{vQA}, v{vG4}, 14, v{vQA}"); A(f"v_add_u32 v{vQA}, {sT0}, v{vQA}")
    if qtouch: touch_pad("q")
    A("s_waitcnt vmcnt(0) lgkmcnt(0)")
    stamp(12)
    layernorm(xr1, f14, vLW1, 128, mid=(lambda: pad("q")) if qtouch else None)
    make_tag(sTAG, sE); A(f"v_mov_b32 v{vX+1}, {sTAG}")
    A("s_waitcnt lgkmcnt(0)")
    stamp(13)
    for s in range(14): A(f"ds_read_b128 {Q4(vW2+4*s)}, v{vLR} offset:{s*64}")
    A(f"s_mov_b32 {sN}, 3"); wait_tile()
    stamp(14)
    for s in range(14):
        for h2 in range(2): A(f"ds_read_b64_tr_b16 {P(vW1 + 4*s + 2*h2)}, v{vTA} offset:{s*4096+h2*512}")
        if s % 4 == 3 or s == 13:
            A(f"s_waitcnt lgkmcnt(0)")
            for k in range(s - s % 4, s+1):
                A(f"v_mfma_f32_16x16x32_bf16 {Q4(vS)}, {Q4(vW2+4*k)}, {Q4(vW1+4*k)}, {'0' if k==0 else Q4(vS)}")
    A(f"s_mov_b32 {sSLOT}, {3*SLOT}"); pub_cons()
    A(f"v_cndmask_b32 v{vTM}, v{vS}, v{vS+1}, {sM1}")
    A(f"v_mov_b32_dpp v{vTM2}, v{vTM} quad_perm:[1,0,3,2] row_mask:0xf bank_mask:0xf")
    A(f"v_cvt_pk_bf16_f32 v{vX}, v{vTM}, v{vTM2}")
    A("s_mov_b64 exec, 0x55555555")
    A(f"global_store_dwordx2 v{vQA}, {P(vX)}, {pWS} {stf}")
    A("s_mov_b64 exec, -1")
    stamp(1)

    E.label("L_consumer")
    basic_setup()
    share_consts(3)
    A("s_mov_b32 s44, 0"); A("s_mov_b32 s45, -1"); A(f"s_mov_b32 {sC}, {C_SCALE:#x}"); A("s_mov_b32 s66, -1"); A("s_mov_b32 s67, 0"); A(f"s_mov_b32 {sTOT}, 0x7fffffff"); A(f"s_mov_b32 {sKE}, 0x7fffffff"); A(f"s_mov_b32 {sKNOWN}, 0")
    if hilo: A("s_mov_b32 s64, 0xcccccccc"); A("s_mov_b32 s65, 0xcccccccc")
    stamp(11)
    A(f"s_sub_u32 {sT0}, {sROLE}, 4"); A(f"s_lshl_b32 {sRR}, {sG}, 2"); A(f"s_add_u32 {sRR}, {sRR}, {sT0}")
    A(f"s_cmp_lt_u32 {sT0}, 4"); A(f"s_cselect_b32 {sRR}, {sRR}, 99"); A("s_cbranch_scc0 L_nox")
    A(f"s_bfe_u32 {sT0}, {sRR}, 0x20003"); A(f"s_mul_i32 {sCOL}, {sT0}, 224")
    A(f"s_bfe_u32 {sGP}, {sRR}, 0x20001"); A(f"s_lshl_b32 {sT0}, {sGP}, 6"); A(f"s_add_u32 {sCOL}, {sCOL}, {sT0}")
    A(f"s_and_b32 {sT0}, {sRR}, 1"); A(f"s_lshl_b32 {sT0}, {sT0}, 4"); A(f"s_add_u32 {sCOL}, {sCOL}, {sT0}")
    A(f"s_bfe_u32 {sT0}, {sRR}, 0x10005"); A(f"s_mul_i32 {sT0}, {sT0}, 896"); A(f"s_add_u32 {sCOL}, {sCOL}, {sT0}")
    A(f"v_and_b32 v{vTM}, 6, v{vLANE}"); A(f"v_lshl_add_u32 v{vTM}, v{vTM}, 1, {sCOL}")
    A(f"global_load_dword v{vXH}, v{vTM}, {pX}")
    A(f"v_mov_b32 v{vXH+1}, 0")
    A(f"s_cmp_eq_u32 {sGP}, 3"); A("s_cbranch_scc1 L_nox")
    A(f"global_load_dword v{vXH+1}, v{vTM}, {pX} offset:32")
    E.label("L_nox")
    A(f"v_xor_b32 v{vTM}, v{vG4}, v{vN}"); A(f"v_lshlrev_b32 v{vTM}, 4, v{vTM}"); A(f"v_lshl_or_b32 v{vTM}, v{vN}, 9, v{vTM}")
    for s in range(4): A(f"v_xor_b32 v{vKB[s]}, {s*64}, v{vTM}")
    A(f"v_lshrrev_b32 v{vTM}, 2, v{vN}"); A(f"v_lshl_add_u32 v{vTM}, v{vG4}, 2, v{vTM}")
    A(f"v_and_b32 v{vTM2}, 7, v{vTM}")
    A(f"s_lshl_b32 {sT0}, {sW}, 2"); A(f"v_xor_b32 v{vTM2}, {sT0}, v{vTM2}"); A(f"v_lshlrev_b32 v{vTM2}, 5, v{vTM2}")
    A(f"v_lshl_or_b32 v{vTM}, v{vTM}, 9, v{vTM2}")
    A(f"v_and_b32 v{vTM2}, 3, v{vN}"); A(f"v_lshl_or_b32 v{vTM}, v{vTM2}, 3, v{vTM}")
    for e in range(4): A(f"v_xor_b32 v{vVB[e]}, {e*32}, v{vTM}")
    A(f"v_mov_b32 v{vM}, 0xff800000"); A(f"v_mov_b32 v{vMC}, v{vM}"); A(f"v_mov_b32 v{vL}, 0")
    for i in range(16): A(f"v_mov_b32 v{vO+i}, 0")
    A(f"s_cmp_lt_u32 {sIDX}, 28"); A("s_cbranch_scc1 L_ffn_w")
    def vtile_read(dst):
        for e in range(4): A(f"v_add_u32 v{vAD[e]}, {sSLOT}, v{vVB[e]}")
        for e in range(4):
            for h2 in range(2): A(f"ds_read_b64_tr_b16 {P(dst + 4*e + 2*h2)}, v{vAD[e]} offset:{h2*8192}")
    for p in range(park):
        A(f"s_cmp_le_u32 {sPK}, {p}"); A("s_cbranch_scc1 L_ffn_w_done")
        wait_tile(); vtile_read(vW1+16*p); A("s_waitcnt lgkmcnt(0)"); pub_cons()
    E.label("L_ffn_w_done")
    A("s_waitcnt lgkmcnt(0)")
    make_tag(sTAG, sE)
    A(f"s_cmp_lg_u32 {sW}, 0"); A("s_cbranch_scc1 L_q_flag")
    if qwait:
        A(f"s_add_u32 {sN}, {sN}, {qwait-1}"); wait_tile(); A(f"s_sub_u32 {sN}, {sN}, {qwait-1}")
    A(f"s_lshl_b32 {sT0}, {sG}, 11"); A(f"s_add_u32 {sT0}, {sT0}, {WS_Q}")
    A(f"v_lshl_add_u32 v{vTM3}, v{vLANE}, 4, {sT0}")
    poll([f"global_load_dwordx4 {Q4(vF)}, v{vTM3}, {pWS} {ldf}", f"global_load_dwordx4 {Q4(vF+4)}, v{vTM3}, {pWS} offset:1024 {ldf}"],
         [[vF+1, vF+3], [vF+5, vF+7]])
    A(f"v_lshlrev_b32 v{vTM}, 3, v{vLANE}"); A(f"v_add_u32 v{vTM}, {L_QW}, v{vTM}"); A(f"v_mov_b32 v{vTM2}, 1")
    A(f"ds_write2_b32 v{vTM}, v{vF}, v{vF+2} offset0:0 offset1:1"); A(f"ds_write2_b32 v{vTM}, v{vF+4}, v{vF+6} offset0:128 offset1:129")
    one_lane(f"ds_write_b32 v{vFLG}, v{vTM2} offset:32")
    E.label("L_q_flag")
    A(f"ds_read_b32 v{vTM}, v{vFLG} offset:32")
    spin_guard()
    A("s_waitcnt lgkmcnt(0)")
    A(f"v_readfirstlane_b32 {sT0}, v{vTM}")
    A(f"s_cmp_eq_u32 {sT0}, 1"); A("s_cbranch_scc1 L_q_have")
    A("s_sleep 1"); A("s_branch L_q_flag")
    E.label("L_q_have")
    A(f"v_and_b32 v{vTM2}, 1, v{vLANE}"); A(f"v_lshlrev_b32 v{vTM2}, 9, v{vTM2}"); A(f"v_lshl_add_u32 v{vTM2}, v{vG4}, 4, v{vTM2}"); A(f"v_add_u32 v{vTM2}, {L_QW}, v{vTM2}")
    for s in range(8): A(f"ds_read_b128 {Q4(vQ+4*s)}, v{vTM2} offset:{s*64}")
    stamp(2)
    A("s_waitcnt lgkmcnt(0)")

    def qk(nt):
        for s in range(4): A(f"v_add_u32 v{vAD[s]}, {sSLOT}, v{vKB[s]}")
        seq = [(t,s) for s in range(8) for t in range(nt)]; n = len(seq)
        def kread(i):
            t,s = seq[i]; A(f"ds_read_b128 {Q4(vF + 4*(i % NF))}, v{vAD[s&3]} offset:{(s>>2)*256 + t*8192}")
        for i in range(NF): kread(i)
        for i in range(n):
            t,s = seq[i]
            A(f"s_waitcnt lgkmcnt({min(NF-1, n-1-i)})")
            d = Q4(vS+4*t)
            A(f"v_mfma_f32_16x16x32_bf16 {d}, {Q4(vF + 4*(i % NF))}, {Q4(vQ+4*s)}, {'0' if s==0 else d}")
            if i + NF < n: kread(i+NF)
    def probs(nt):
        n = 4*nt
        for i in range(n): A(f"v_fma_f32 v{vS+i}, v{vS+i}, {sC}, -v{vMC}")
        for i in range(n): A(f"v_exp_f32 v{vS+i}, v{vS+i}")
        for i in range(n//2): A(f"v_cvt_pk_bf16_f32 v{vP+i}, v{vS+2*i}, v{vS+2*i+1}")
        if hilo:
            for i in range(n//2):
                t = vF+16+2*(i&1)
                unpack(t, t+1, vP+i)
                A(f"v_pk_add_f32 {P(t)}, {P(vS+2*i)}, {P(t)} neg_lo:[0,1] neg_hi:[0,1]")
                A(f"v_cvt_pk_bf16_f32 v{t}, v{t}, v{t+1}")
                A(f"v_cndmask_b32 v{vP+i}, v{vP+i}, v{t}, s[64:65]")
    def softmax(nt, tag):
        n = 4*nt
        for i in range(n//2): unpack(vS+2*i, vS+2*i+1, vP+i)
        if nt == 2:
            A(f"v_max3_f32 v{vMX}, v{vS}, v{vS+1}, v{vS+2}"); A(f"v_max3_f32 v{vTM}, v{vS+3}, v{vS+4}, v{vS+5}")
            A(f"v_max3_f32 v{vMX}, v{vMX}, v{vS+6}, v{vS+7}"); A(f"v_max_f32 v{vMX}, v{vMX}, v{vTM}")
        else:
            A(f"v_max3_f32 v{vMX}, v{vS}, v{vS+1}, v{vS+2}"); A(f"v_max_f32 v{vMX}, v{vMX}, v{vS+3}")
        xrow("v_max_f32", [vMX], [vTM])
        A(f"v_cmp_gt_f32 vcc, v{vMX}, v{vM}")
        A("s_cmp_lg_u64 vcc, 0"); A(f"s_cbranch_scc1 L_rescale{tag}")
        E.label(f"L_rescaled{tag}")
        probs(nt)
    def add_l(nt):
        A(f"v_add_f32 v{vTM}, v{vS}, v{vS+1}"); A(f"v_add_f32 v{vMX}, v{vS+2}, v{vS+3}")
        if nt == 2:
            A(f"v_add_f32 v{vS+4}, v{vS+4}, v{vS+5}"); A(f"v_add_f32 v{vS+6}, v{vS+6}, v{vS+7}")
            A(f"v_add_f32 v{vTM}, v{vTM}, v{vS+4}"); A(f"v_add_f32 v{vMX}, v{vMX}, v{vS+6}")
        A(f"v_add_f32 v{vL}, v{vL}, v{vTM}"); A(f"v_add_f32 v{vL}, v{vL}, v{vMX}")
    def rescale(tag):
        E.label(f"L_rescale{tag}")
        A(f"v_max_f32 v{vM}, v{vM}, v{vMX}")
        A(f"v_mul_f32 v{vTM}, {sC}, v{vM}")
        A(f"v_sub_f32 v{vTM2}, v{vMC}, v{vTM}")
        A(f"v_mov_b32 v{vMC}, v{vTM}")
        A(f"v_exp_f32 v{vTM2}, v{vTM2}")
        A(f"v_mul_f32 v{vL}, v{vL}, v{vTM2}")
        A(f"v_mov_b32_dpp v{vTM}, v{vTM2} quad_perm:[0,0,2,2] row_mask:0xf bank_mask:0xf")
        A(f"v_mov_b32_dpp v{vTM3}, v{vTM2} quad_perm:[1,1,3,3] row_mask:0xf bank_mask:0xf")
        for i in range(16): A(f"v_mul_f32 v{vO+i}, v{vO+i}, v{vTM if i%2==0 else vTM3}")
        A(f"s_branch L_rescaled{tag}")
    vSA=107
    A(f"s_add_u32 {sN}, {sN}, {sW}"); A(f"s_lshl_b32 {sT0}, {sW}, 14"); A(f"s_add_u32 {sSLOT}, {sSLOT}, {sT0}")
    A(f"s_sub_u32 {sT0}, {sSLOT}, {RING}"); A(f"s_cselect_b32 {sSLOT}, {sSLOT}, {sT0}")
    A(f"v_and_b32 v{vSA}, 1, v{vLANE}"); A(f"v_lshlrev_b32 v{vSA}, 6, v{vSA}"); A(f"v_lshl_add_u32 v{vSA}, v{vG4}, 4, v{vSA}"); A(f"v_add_u32 v{vSA}, {L_SC}, v{vSA}")
    A(f"s_lshl_b32 {sT0}, {sW}, 7"); A(f"v_add_u32 v{vX}, {sT0}, v{vSA}")
    A(f"s_mov_b32 {sCI}, {sW}")
    A(f"s_lshl_b32 {sT0}, {sG}, 16"); A(f"s_add_u32 {sT0}, {sT0}, {WS_SC-L_SC}"); A(f"v_add_u32 v{vX+1}, {sT0}, v{vSA}")
    if lin:
        A(f"s_lshl_b32 {sT1}, {sW}, 7"); A(f"s_add_u32 {sT1}, {sT1}, {L_OP}"); A(f"v_lshl_add_u32 v{vX+5}, v{vLANE}, 4, {sT1}")
        A(f"s_sub_u32 {sT1}, {sT1}, {L_SC}"); A(f"v_add_u32 v{vX+4}, {sT1}, v{vSA}")
        A(f"s_add_u32 {sT0}, {sT0}, {L_SC}"); A(f"v_lshl_add_u32 v{vX+1}, v{vLANE}, 4, {sT0}")
    E.label("L_kloop")
    wait_tile(kend="L_kdone")
    A(f"s_lshr_b32 {sT0}, {sSLOT}, 12"); A(f"v_add_u32 v{vTM2}, {sT0}, v{vFLG}"); A(f"ds_read_b32 v{vTM3}, v{vTM2} offset:{L_IDX}")
    qk(2)
    A(f"s_add_u32 {sN}, {sN}, 4")
    A(f"s_add_u32 {sSLOT}, {sSLOT}, {4*SLOT}"); A(f"s_sub_u32 {sT0}, {sSLOT}, {RING}"); A(f"s_cselect_b32 {sSLOT}, {sSLOT}, {sT0}")
    for i in range(4): A(f"v_cvt_pk_bf16_f32 v{vP+i}, v{vS+2*i}, v{vS+2*i+1}")
    A(f"s_cmp_ge_u32 {sCI}, {sNS}"); A("s_cbranch_scc1 L_kpool")
    for i in range(4): A(f"v_max3_f32 v{vM}, v{vM}, v{vS+2*i}, v{vS+2*i+1}")
    A("s_mov_b32 exec_lo, 0x30003"); A("s_mov_b32 exec_hi, 0x30003"); A(f"ds_write_b128 v{vX}, {Q4(vP)}"); A("s_mov_b64 exec, -1")
    A(f"v_add_u32 v{vX}, 512, v{vX}")
    E.label("L_knext")
    A(f"s_add_u32 {sCI}, {sCI}, 4")
    A(f"v_mov_b32 v{vTM}, {sN}"); one_lane(f"ds_write_b32 v{vCONS}, v{vTM}")
    A("s_branch L_kloop")
    E.label("L_kpool")
    A(f"v_lshl_add_u32 v{vTM3}, v{vTM3}, 7, v{vX+1}")
    if lin:
        A("s_mov_b32 exec_lo, 0x30003"); A("s_mov_b32 exec_hi, 0x30003"); A(f"ds_write_b128 v{vX+4}, {Q4(vP)}"); A("s_mov_b64 exec, 0xff")
        A(f"ds_read_b128 {Q4(vP)}, v{vX+5}"); A("s_waitcnt lgkmcnt(0)")
    else: A("s_mov_b32 exec_lo, 0x30003"); A("s_mov_b32 exec_hi, 0x30003")
    A(f"global_store_dwordx4 v{vTM3}, {Q4(vP)}, {pWS} {stf}"); A("s_mov_b64 exec, -1")
    A("s_branch L_knext")
    E.label("L_kdone")
    A(f"s_mov_b32 {sN}, {sKE}"); A(f"s_mov_b32 {sCI}, 0")
    A("s_waitcnt vmcnt(0)")
    xrow("v_max_f32", [vM], [vTM])
    A(f"s_lshl_b32 {sT0}, {sW}, 3"); A(f"s_add_u32 {sT0}, {sT0}, {L_MX}"); A(f"v_lshl_add_u32 v{vTM2}, v{vLANE}, 2, {sT0}")
    A("s_mov_b64 exec, 3"); A(f"ds_write_b32 v{vTM2}, v{vM}"); A("s_mov_b64 exec, -1")
    A(f"v_mov_b32 v{vTM}, {sN}"); A("s_mov_b64 exec, 1"); A(f"ds_write_b32 v{vCONS}, v{vTM}"); A(f"ds_write_b32 v{vCONS}, v{vTM} offset:{L_KD-16}"); A("s_mov_b64 exec, -1")
    A(f"s_mul_hi_u32 {sT0}, {sN}, {-(-(1<<32)//NSLOT)}"); A(f"s_mul_i32 {sT0}, {sT0}, {NSLOT}"); A(f"s_sub_u32 {sSLOT}, {sN}, {sT0}"); A(f"s_lshl_b32 {sSLOT}, {sSLOT}, 14")
    A(f"v_and_b32 v{vTM2}, 1, v{vLANE}"); A(f"v_lshlrev_b32 v{vTM2}, 2, v{vTM2}"); A(f"v_add_u32 v{vTM2}, {L_MX}, v{vTM2}")
    E.label("L_ksync")
    A(f"ds_read2_b32 {P(vAD[0])}, v{vFLG} offset0:{L_KD//4} offset1:{L_KD//4+1}"); A(f"ds_read2_b32 {P(vAD[2])}, v{vFLG} offset0:{L_KD//4+2} offset1:{L_KD//4+3}")
    A(f"ds_read2_b32 {P(vS)}, v{vTM2} offset0:0 offset1:2"); A(f"ds_read2_b32 {P(vS+2)}, v{vTM2} offset0:4 offset1:6")
    spin_guard()
    A("s_waitcnt lgkmcnt(0)")
    A(f"v_min3_u32 v{vAD[0]}, v{vAD[0]}, v{vAD[1]}, v{vAD[2]}"); A(f"v_min_u32 v{vAD[0]}, v{vAD[0]}, v{vAD[3]}")
    A(f"v_readfirstlane_b32 {sT0}, v{vAD[0]}")
    A(f"s_cmp_lt_u32 {sT0}, {sKE}"); A("s_cbranch_scc1 L_ksync")
    A(f"v_max3_f32 v{vM}, v{vS}, v{vS+1}, v{vS+2}"); A(f"v_max_f32 v{vM}, v{vM}, v{vS+3}")
    round_bf(vM, vM)
    A(f"v_mul_f32 v{vMC}, {sC}, v{vM}")
    A(f"s_cmp_lg_u32 {sW}, 0"); A("s_cbranch_scc1 L_loop")
    A(f"s_lshl_b32 {sT0}, {sWG}, 2"); A(f"s_add_u32 {sT0}, {sT0}, {WS_KF}"); A(f"v_mov_b32 v{vTM}, {sT0}"); A(f"v_mov_b32 v{vTM2}, {sTAG}")
    one_lane(f"global_store_dword v{vTM}, v{vTM2}, {pWS} {stf}")
    E.label("L_loop")
    A(f"ds_read_b128 {Q4(vP)}, v{vSA}")
    A(f"v_add_u32 v{vSA}, 128, v{vSA}")
    A("s_waitcnt lgkmcnt(0)")
    for i in range(4): unpack(vS+2*i, vS+2*i+1, vP+i)
    probs(2); add_l(2)
    A(f"s_cmp_lt_u32 {sCI}, {sPK}"); A("s_cbranch_scc1 L_pv_park")
    wait_tile()
    vtile_read(vF)
    for e in range(4):
        A(f"s_waitcnt lgkmcnt({6-2*e})")
        A(f"v_mfma_f32_16x16x32_bf16 {Q4(vO+4*e)}, {Q4(vP)}, {Q4(vF+4*e)}, {Q4(vO+4*e)}")
    pub_cons()
    E.label("L_pv_done")
    A(f"s_add_u32 {sCI}, {sCI}, 1")
    A(f"s_cmp_eq_u32 {sCI}, {okat}"); A("s_cbranch_scc1 L_okcheck")
    E.label("L_okdone")
    A(f"s_cmp_lt_u32 {sCI}, {sNS}"); A("s_cbranch_scc1 L_loop")
    if touch:
        for nm in ("fin","red","ffn","ffn2"): touch_pad(nm)
    if forcepar is None:
        A(f"v_mov_b32 v{vTM}, {WS_PAR}")
        poll([f"global_load_dwordx4 {Q4(vF)}, v{vTM}, {pWS} {ldf}"], [[vF+1, vF+3]])
        A(f"v_readfirstlane_b32 {sP0}, v{vF}"); A(f"v_readfirstlane_b32 {sP1}, v{vF+2}")
    else:
        A(f"s_mov_b32 {sP0}, {forcepar[0]*8192}"); A(f"s_mov_b32 {sP1}, {forcepar[1]*8192}")
    A(f"s_lshl_b32 {sT0}, {sG}, 2"); A(f"s_and_b32 {sT1}, {sW}, 1"); A(f"s_add_u32 {sT0}, {sT0}, {sT1}"); A(f"s_lshl_b32 {sT0}, {sT0}, 14")
    A(f"s_lshr_b32 {sT1}, {sW}, 1"); A(f"s_lshl_b32 {sT1}, {sT1}, 13"); A(f"s_xor_b32 {sT1}, {sT1}, {sP0}"); A(f"s_add_u32 {sT0}, {sT0}, {sT1}")
    A(f"s_lshl_b32 {sT1}, {sJ}, 8"); A(f"s_add_u32 {sT0}, {sT0}, {sT1}"); A(f"s_add_u32 {sT0}, {sT0}, {WS_A}")
    A(f"v_lshrrev_b32 v{vAA}, 1, v{vG4}"); A(f"v_lshlrev_b32 v{vAA}, 15, v{vAA}")
    A(f"v_and_b32 v{vTM}, 1, v{vG4}"); A(f"v_lshl_or_b32 v{vAA}, v{vTM}, 12, v{vAA}"); A(f"v_lshl_or_b32 v{vAA}, v{vN}, 4, v{vAA}")
    A(f"v_add_u32 v{vAA}, {sT0}, v{vAA}")
    A(f"s_lshr_b32 {sT0}, {sWG}, 3"); A(f"s_lshl_b32 {sT0}, {sT0}, 1"); A(f"s_bfe_u32 {sT1}, {sWG}, 0x10001"); A(f"s_add_u32 {sT0}, {sT0}, {sT1}"); A(f"s_lshl_b32 {sT0}, {sT0}, 14")
    A(f"s_bfe_u32 {sT1}, {sWG}, 0x10002"); A(f"s_lshl_b32 {sT1}, {sT1}, 13"); A(f"s_xor_b32 {sT1}, {sT1}, {sP0}"); A(f"s_add_u32 {sT0}, {sT0}, {sT1}")
    A(f"s_and_b32 {sT1}, {sWG}, 1"); A(f"s_lshl_b32 {sT1}, {sT1}, 12"); A(f"s_add_u32 {sT0}, {sT0}, {sT1}"); A(f"s_add_u32 {sT0}, {sT0}, {WS_A}")
    A(f"v_lshlrev_b32 v{vAI}, 4, v{vN}"); A(f"v_lshl_or_b32 v{vAI}, v{vG4}, 10, v{vAI}"); A(f"v_add_u32 v{vAI}, {sT0}, v{vAI}")
    A(f"v_lshl_add_u32 v{vX+3}, v{vLANE}, 6, {sT0}")
    A(f"s_cmp_eq_u32 {sW}, 0"); A(f"s_cselect_b32 {sWRM}, {0x7fffffff if awarm else 0}, 0")
    A(f"s_cmp_ge_u32 {sRR}, 64"); A(f"s_cbranch_scc1 L_nored"); A(f"s_sub_u32 {sT0}, {sW}, 1"); A(f"s_cmp_ge_u32 {sT0}, 2"); A(f"s_cbranch_scc1 L_nored")
    A(f"s_lshl_b32 {sT0}, {sT0}, 14"); A(f"s_lshl_b32 {sT1}, {sRR}, 15"); A(f"s_add_u32 {sT0}, {sT0}, {sT1}"); A(f"s_add_u32 {sT0}, {sT0}, {sP1}"); A(f"s_add_u32 {sT0}, {sT0}, {WS_B}")
    A(f"v_lshl_add_u32 v{vX+3}, v{vLANE}, 7, {sT0}"); A(f"s_mov_b32 {sWRM}, {[0,0x7fffffff,1,2][bwarm]}")
    if bwarm == 3: A(f"global_load_dword v{vX+2}, v{vX+3}, {pWS} {ldf}")
    E.label("L_nored")
    A(f"s_lshl_b32 {sT0}, {sB}, 2"); A(f"s_add_u32 {sT0}, {sT0}, {sW}"); A(f"s_lshl_b32 {sT0}, {sT0}, 18")
    A(f"s_bfe_u32 {sT1}, {sWG}, 0x10006"); A(f"s_lshl_b32 {sT1}, {sT1}, 14"); A(f"s_add_u32 {sT0}, {sT0}, {sT1}"); A(f"s_add_u32 {sT0}, {sT0}, {sP1}")
    A(f"s_and_b32 {sT1}, {sWG}, 63"); A(f"s_lshl_b32 {sT1}, {sT1}, 7"); A(f"s_add_u32 {sT0}, {sT0}, {sT1}"); A(f"s_add_u32 {sT0}, {sT0}, {WS_B}")
    A(f"v_lshrrev_b32 v{vTM}, 3, v{vLANE}"); A(f"v_lshlrev_b32 v{vTM}, 15, v{vTM}")
    A(f"v_and_b32 v{vTM2}, 7, v{vLANE}"); A(f"v_lshl_or_b32 v{vBA}, v{vTM2}, 4, v{vTM}"); A(f"v_add_u32 v{vBA}, {sT0}, v{vBA}")
    A(f"v_and_b32 v{vSA}, 1, v{vLANE}"); A(f"v_lshlrev_b32 v{vSA}, 6, v{vSA}"); A(f"v_lshl_add_u32 v{vSA}, v{vG4}, 4, v{vSA}"); A(f"v_add_u32 v{vSA}, {L_SV}, v{vSA}")
    E.label("L_mini")
    wait_tile("L_fin")
    A(f"s_lshr_b32 {sT0}, {sSLOT}, 7"); A(f"v_add_u32 v{vTM}, {sT0}, v{vSA}"); A(f"ds_read_b128 {Q4(vP)}, v{vTM}")
    vtile_read(vF)
    A("s_waitcnt lgkmcnt(8)")
    softmax(2, "b")
    for e in range(4):
        A(f"s_waitcnt lgkmcnt(0)" if e == 0 else "")
        A(f"v_mfma_f32_16x16x32_bf16 {Q4(vO+4*e)}, {Q4(vP)}, {Q4(vF+4*e)}, {Q4(vO+4*e)}")
    add_l(2)
    slot_advance()
    A(f"s_cmp_eq_u32 {sN}, {sTOT}"); A("s_cbranch_scc1 L_fin")
    A(f"v_mov_b32 v{vTM}, {sN}"); one_lane(f"ds_write_b32 v{vCONS}, v{vTM}")
    A("s_branch L_mini")
    rescale("b")
    E.label("L_okcheck")
    A(f"s_cmp_lg_u32 {sW}, 0"); A("s_cbranch_scc1 L_okdone")
    A(f"s_lshl_b32 {sT0}, {sG}, 6"); A(f"s_add_u32 {sT0}, {sT0}, {WS_KF}"); A(f"v_lshl_add_u32 v{vTM3}, v{vN}, 2, {sT0}")
    poll([f"global_load_dword v{vTM2}, v{vTM3}, {pWS} {ldf}"], [[vTM2]])
    A(f"v_mov_b32 v{vTM}, 1"); one_lane(f"ds_write_b32 v{vFLG}, v{vTM} offset:{L_OK}")
    A("s_branch L_okdone")
    E.label("L_pv_park")
    for p in range(park):
        if p < park-1: nx = lab("pk"); A(f"s_cmp_lg_u32 {sCI}, {p}"); A(f"s_cbranch_scc1 {nx}")
        for e in range(4): A(f"v_mfma_f32_16x16x32_bf16 {Q4(vO+4*e)}, {Q4(vP)}, {Q4(vW1+16*p+4*e)}, {Q4(vO+4*e)}")
        A("s_branch L_pv_done")
        if p < park-1: E.label(nx)

    vG=vF; vI=vF+4; sa=vS; sb=vS+1; sw=vS+2
    vA=vQ; vOPR=vQ+4; vOPW=vQ+5; vR0=vQ+6; vR1=vQ+7; vR2=vQ+8; vR3=vQ+9; vR4=vQ+10; vR5=vQ+11; vZ=vQ+12
    E.label("L_ffn_addr")
    A(f"v_lshrrev_b32 v{vTM}, 3, v{vLANE}"); A(f"v_and_b32 v{vTM2}, 7, v{vLANE}")
    A(f"v_lshlrev_b32 v{vR0}, 9, v{vTM}"); A(f"v_lshl_or_b32 v{vR0}, v{vTM2}, 4, v{vR0}"); A(f"s_add_u32 {sT0}, {sP0}, {WS_H}"); A(f"v_add_u32 v{vR0}, {sT0}, v{vR0}")
    A(f"v_mul_u32_u24 v{vR1}, 224, v{vTM}"); A(f"v_lshl_add_u32 v{vR1}, v{vTM2}, 2, v{vR1}"); A(f"v_add_u32 v{vR1}, {L_LN}, v{vR1}")
    ln_read_addr(vR2, L_LN)
    A(f"s_lshl_b32 {sT0}, {sW}, 5"); A(f"s_add_u32 {sT0}, {sT0}, {L_ACT}")
    A(f"v_lshlrev_b32 v{vR3}, 7, v{vG4}"); A(f"v_lshl_add_u32 v{vR3}, v{vN}, 1, v{vR3}"); A(f"v_add_u32 v{vR3}, {sT0}, v{vR3}")
    A(f"v_and_b32 v{vR4}, 1, v{vLANE}"); A(f"v_lshlrev_b32 v{vR4}, 7, v{vR4}"); A(f"v_lshl_add_u32 v{vR4}, v{vG4}, 3, v{vR4}"); A(f"v_add_u32 v{vR4}, {L_ACT}, v{vR4}")
    A(f"s_lshl_b32 {sT0}, {sW}, 16"); A(f"s_lshl_b32 {sT1}, {sIDX}, 7"); A(f"s_add_u32 {sT0}, {sT0}, {sT1}"); A(f"s_add_u32 {sT0}, {sT0}, {sP0}"); A(f"s_add_u32 {sT0}, {sT0}, {WS_D}")
    A(f"v_lshrrev_b32 v{vTM}, 3, v{vN}"); A(f"v_lshlrev_b32 v{vTM}, 12, v{vTM}"); A(f"v_lshl_or_b32 v{vTM}, v{vG4}, 14, v{vTM}")
    A(f"v_lshl_or_b32 v{vTM}, v{vTM2}, 4, v{vTM}"); A(f"v_add_u32 v{vR5}, {sT0}, v{vTM}")
    A("s_branch L_addr_done")
    if align: A(".p2align 12")
    if touch: E.label("L_pad_fin"); A("s_branch L_ret_fin")
    E.label("L_fin")
    stamp(3)
    yreg = [vO, vO+4, vO+8, vO+12, vQ+16, vQ+20, vQ+24]
    xrow("v_add_f32", [vL], [vTM])
    if hilo:
        for e in range(4): A(f"v_pk_add_f32 {P(vO+4*e)}, {P(vO+4*e)}, {P(vO+4*e+2)}")
    A(f"v_log_f32 v{vTM2}, v{vL}"); A(f"v_rcp_f32 v{vTM3}, v{vL}")
    A(f"v_mov_b32 v{vG+3}, {sTAG}")
    A(f"v_add_f32 v{vTM2}, v{vMC}, v{vTM2}")
    SEL4(vG, vO+0, vO+8, vO+1, vO+9, vMX)
    A(f"v_mov_b32_dpp v{vTM}, v{vTM3} quad_perm:[0,0,2,2] row_mask:0x3 bank_mask:0xf")
    A(f"v_mov_b32_dpp v{vG+2}, v{vTM2} quad_perm:[0,0,2,2] row_mask:0x3 bank_mask:0xf")
    SEL4(vG+1, vO+4, vO+12, vO+5, vO+13, vMX)
    A(f"v_mov_b32_dpp v{vTM}, v{vTM3} quad_perm:[1,1,3,3] row_mask:0xc bank_mask:0xf")
    A(f"v_mov_b32_dpp v{vG+2}, v{vTM2} quad_perm:[1,1,3,3] row_mask:0xc bank_mask:0xf")
    A(f"v_mul_f32 v{vG}, v{vG}, v{vTM}"); A(f"v_mul_f32 v{vG+1}, v{vG+1}, v{vTM}")
    A(f"global_store_dwordx4 v{vAA}, {Q4(vG)}, {pWS} {stf}")
    stamp(4)
    if bwarm == 2:
        A(f"s_cmp_lg_u32 {sWRM}, 1"); A("s_cbranch_scc1 L_nobw")
        A(f"global_load_dword v{vX+2}, v{vX+3}, {pWS} {ldf}")
        E.label("L_nobw")
    A(f"v_lshlrev_b32 v{vOPR}, 3, v{vG4}"); A(f"v_add_u32 v{vOPR}, {L_OP}, v{vOPR}")
    A(f"v_lshlrev_b32 v{vOPW}, 1, v{vN}"); A(f"v_add_u32 v{vOPW}, {L_OP}, v{vOPW}")
    A(f"v_mov_b32 v{vZ}, 0")
    A(f"s_cmp_lt_u32 {sIDX}, 28"); A("s_cbranch_scc1 L_ffn_addr")
    A(f"s_cmp_ge_u32 {sRR}, 64"); A("s_cbranch_scc1 L_addr_done")
    A(f"s_lshl_b32 {sT0}, {sRR}, 15"); A(f"s_lshr_b32 {sT1}, {sW}, 1"); A(f"s_lshl_b32 {sT1}, {sT1}, 14"); A(f"s_add_u32 {sT0}, {sT0}, {sT1}")
    A(f"s_and_b32 {sT1}, {sW}, 1"); A(f"s_lshl_b32 {sT1}, {sT1}, 12"); A(f"s_add_u32 {sT0}, {sT0}, {sT1}"); A(f"s_add_u32 {sT0}, {sT0}, {sP1}"); A(f"s_add_u32 {sT0}, {sT0}, {WS_B}")
    A(f"v_lshl_add_u32 v{vR0}, v{vLANE}, 4, {sT0}")
    A(f"s_lshl_b32 {sT0}, {sW}, 6"); A(f"s_add_u32 {sT0}, {sT0}, {L_RED}")
    A(f"v_and_b32 v{vTM}, 7, v{vLANE}"); A(f"v_lshl_add_u32 v{vR1}, v{vTM}, 2, {sT0}")
    A(f"v_and_b32 v{vTM}, 6, v{vLANE}"); A(f"v_lshlrev_b32 v{vR2}, 2, v{vTM}"); A(f"v_add_u32 v{vR2}, {L_RED}, v{vR2}")
    A(f"s_lshl_b32 {sT0}, {sRR}, 6"); A(f"s_add_u32 {sT0}, {sT0}, {sP0}"); A(f"s_add_u32 {sT0}, {sT0}, {WS_H}"); A(f"v_lshl_add_u32 v{vR3}, v{vTM}, 3, {sT0}")
    A(f"s_lshr_b32 {sT0}, {sRR}, 1"); A(f"s_lshl_b32 {sT0}, {sT0}, 14"); A(f"s_and_b32 {sT1}, {sRR}, 1"); A(f"s_lshl_b32 {sT1}, {sT1}, 12"); A(f"s_add_u32 {sT0}, {sT0}, {sT1}")
    A(f"s_add_u32 {sT0}, {sT0}, {sP0}"); A(f"s_add_u32 {sT0}, {sT0}, {WS_D}"); A(f"v_lshl_add_u32 v{vR4}, v{vLANE}, 4, {sT0}")
    A(f"v_lshl_add_u32 v{vR5}, v{vTM}, 1, {sCOL}")
    E.label("L_addr_done")
    aloads = [f"global_load_dwordx4 {Q4(vI+4*i)}, v{vAI}, {pWS} offset:{i*256} {ldf}" for i in range(4)]
    A(f"s_cmp_lg_u32 {sW}, 0"); A("s_cbranch_scc1 L_a_nopoll")
    for l in aloads: A(l)
    E.label("L_a_nopoll")
    wide_addr(vX)
    for h in range(2): read_wide_tile(vX, vWO, h)
    A(f"s_cmp_lg_u32 {sW}, 0"); A("s_cbranch_scc1 L_a_join")
    poll(aloads, [[vI+4*i+3] for i in range(4)], issued=True)
    stamp(5)
    A(f"v_max3_f32 v{vMX}, v{vI+2}, v{vI+6}, v{vI+10}"); A(f"v_max_f32 v{vMX}, v{vMX}, v{vI+14}")
    xrow("v_max_f32", [vMX], [vTM])
    for i in range(4): A(f"v_sub_f32 v{vI+4*i+2}, v{vI+4*i+2}, v{vMX}")
    for i in range(4): A(f"v_exp_f32 v{vI+4*i+2}, v{vI+4*i+2}")
    A(f"v_mul_f32 v{sa}, v{vI}, v{vI+2}"); A(f"v_mul_f32 v{sb}, v{vI+1}, v{vI+2}"); A(f"v_add_f32 v{sw}, v{vI+2}, v{vI+6}")
    for i in range(1,4):
        A(f"v_fmac_f32 v{sa}, v{vI+4*i}, v{vI+4*i+2}"); A(f"v_fmac_f32 v{sb}, v{vI+4*i+1}, v{vI+4*i+2}")
        if i > 1: A(f"v_add_f32 v{sw}, v{sw}, v{vI+4*i+2}")
    xrow("v_add_f32", [sw, sa, sb], [vS+3, vS+4, vS+5])
    A(f"v_rcp_f32 v{sw}, v{sw}")
    A(f"v_mul_f32 v{sa}, v{sa}, v{sw}"); A(f"v_mul_f32 v{sb}, v{sb}, v{sw}")
    A(f"v_mov_b32_dpp v{vS+3}, v{sa} quad_perm:[1,0,3,2] row_mask:0xf bank_mask:0xf")
    A(f"v_mov_b32_dpp v{vS+4}, v{sb} quad_perm:[1,0,3,2] row_mask:0xf bank_mask:0xf")
    A(f"v_cvt_pk_bf16_f32 v{sa}, v{sa}, v{vS+3}"); A(f"v_cvt_pk_bf16_f32 v{sb}, v{sb}, v{vS+4}")
    A("s_mov_b64 exec, 0x5555"); A(f"ds_write2_b32 v{vOPW}, v{sa}, v{sb} offset0:0 offset1:8"); A("s_mov_b64 exec, -1")
    A("s_waitcnt lgkmcnt(0)")
    E.label("L_a_join")
    A("s_barrier")
    A(f"ds_read2_b64 {Q4(vA)}, v{vOPR} offset0:0 offset1:4")
    A(f"v_mov_b32 v{vG+1}, {sTAG}")
    A("s_waitcnt lgkmcnt(0)")
    for t in (0,2,4,6,1,3,5):
        A(f"v_mfma_f32_16x16x32_bf16 {Q4(yreg[t])}, {Q4(vA)}, {Q4(vWO+4*t)}, 0")
    SEL4(vG, yreg[0], yreg[2], yreg[4], yreg[6], vMX)
    SEL4(vG+2, yreg[1], yreg[3], yreg[5], vZ, vTM)
    A(f"global_store_dwordx4 v{vBA}, {Q4(vG)}, {pWS} {stf}")
    stamp(6)
    A(f"s_cmp_lt_u32 {sIDX}, 28"); A("s_cbranch_scc1 L_ffn")
    A(f"s_cmp_ge_u32 {sRR}, 64"); A("s_cbranch_scc1 L_done")
    def inbox(addr): return [f"global_load_dwordx4 {Q4(vI+4*i)}, v{addr}, {pWS} offset:{i*1024} {ldf}" for i in range(4)]
    tags2 = [[vI+4*i+3] if onetag else [vI+4*i+1, vI+4*i+3] for i in range(4)]
    def sum_inbox():
        A(f"v_add_f32 v{sa}, v{vI}, v{vI+4}"); A(f"v_add_f32 v{sb}, v{vI+2}, v{vI+6}")
        A(f"v_add_f32 v{vS+2}, v{vI+8}, v{vI+12}"); A(f"v_add_f32 v{vS+3}, v{vI+10}, v{vI+14}")
        A(f"v_add_f32 v{sa}, v{sa}, v{vS+2}"); A(f"v_add_f32 v{sb}, v{sb}, v{vS+3}")
        A(f"v_add_f32_dpp v{sa}, v{sa}, v{sa} row_ror:8 row_mask:0xf bank_mask:0xf")
        A(f"v_add_f32_dpp v{sb}, v{sb}, v{sb} row_ror:8 row_mask:0xf bank_mask:0xf")
        xrow("v_add_f32", [sa, sb], [vS+2, vS+3])
    vXF = vO
    unpack(vXF, vXF+1, vXH); unpack(vXF+2, vXF+3, vXH+1)
    if touch: pad("red")
    poll(inbox(vR0), tags2)
    stamp(7)
    sum_inbox()
    A("s_mov_b64 exec, 0xff"); A(f"ds_write2_b32 v{vR1}, v{sa}, v{sb} offset0:0 offset1:8"); A("s_mov_b64 exec, -1")
    A("s_waitcnt lgkmcnt(0)"); A("s_barrier")
    A(f"s_cmp_lg_u32 {sW}, 0"); A("s_cbranch_scc1 L_done")
    for i in range(4): A(f"ds_read2_b64 {Q4(vI+4*i)}, v{vR2} offset0:{i*8} offset1:{i*8+4}")
    def add_resid(y, dst):
        A(f"v_cvt_pk_bf16_f32 v{dst}, v{y}, v{y+1}"); A(f"v_cvt_pk_bf16_f32 v{dst+2}, v{y+2}, v{y+3}")
        unpack(y, y+1, dst); unpack(y+2, y+3, dst+2)
        A(f"v_pk_add_f32 {P(y)}, {P(y)}, {P(vXF)}"); A(f"v_pk_add_f32 {P(y+2)}, {P(y+2)}, {P(vXF+2)}")
        A(f"v_cvt_pk_bf16_f32 v{dst}, v{y}, v{y+1}"); A(f"v_cvt_pk_bf16_f32 v{dst+2}, v{y+2}, v{y+3}")
    A("s_waitcnt lgkmcnt(2)")
    A(f"v_pk_add_f32 {P(vI)}, {P(vI)}, {P(vI+4)}"); A(f"v_pk_add_f32 {P(vI+2)}, {P(vI+2)}, {P(vI+6)}")
    A("s_waitcnt lgkmcnt(0)")
    A(f"v_pk_add_f32 {P(vI+8)}, {P(vI+8)}, {P(vI+12)}"); A(f"v_pk_add_f32 {P(vI+10)}, {P(vI+10)}, {P(vI+14)}")
    A(f"v_pk_add_f32 {P(vI)}, {P(vI)}, {P(vI+8)}"); A(f"v_pk_add_f32 {P(vI+2)}, {P(vI+2)}, {P(vI+10)}")
    add_resid(vI, vG)
    A("s_mov_b64 exec, 0x55"); A(f"global_store_dwordx4 v{vR3}, {Q4(vG)}, {pWS} {stf}"); A("s_mov_b64 exec, -1")
    stamp(8)
    unpack(vXF, vXF+1, vG); unpack(vXF+2, vXF+3, vG+2)
    A(f"v_mov_b32 v{vI+12}, 0"); A(f"v_mov_b32 v{vI+13}, {sTAG}"); A(f"v_mov_b32 v{vI+14}, 0"); A(f"v_mov_b32 v{vI+15}, {sTAG}")
    poll(inbox(vR4), tags2, first_mask=[-1,-1,-1,"s[66:67]"])
    stamp(9)
    sum_inbox()
    A(f"v_mov_b32_dpp v{vI}, v{sa} quad_perm:[0,0,2,2] row_mask:0xf bank_mask:0xf"); A(f"v_mov_b32_dpp v{vI+1}, v{sa} quad_perm:[1,1,3,3] row_mask:0xf bank_mask:0xf")
    A(f"v_mov_b32_dpp v{vI+2}, v{sb} quad_perm:[0,0,2,2] row_mask:0xf bank_mask:0xf"); A(f"v_mov_b32_dpp v{vI+3}, v{sb} quad_perm:[1,1,3,3] row_mask:0xf bank_mask:0xf")
    add_resid(vI, vI+4)
    A("s_mov_b64 exec, 0x55"); A(f"global_store_dword v{vR5}, v{vI+4}, {pOUT} {outf}")
    A(f"s_cmp_eq_u32 {sGP}, 3"); A("s_cbranch_scc1 L_done")
    A(f"global_store_dword v{vR5}, v{vI+6}, {pOUT} offset:32 {outf}")
    A(f"s_cmp_lg_u32 {sRR}, 0"); A("s_cbranch_scc1 L_done")
    A(f"s_add_u32 {sT0}, {sE}, 1"); A(f"v_mov_b32 v{vTM2}, {sT0}"); A(f"v_mov_b32 v{vTM3}, {WS_E}")
    A("s_mov_b64 exec, 1"); A(f"global_store_dword v{vTM3}, v{vTM2}, {pWS} {stf}")
    if enc:
        A("s_memrealtime s[90:91]"); A("s_waitcnt lgkmcnt(0)")
        A(f"s_sub_u32 {sT0}, s{70+2*enc[1]}, s{70+2*enc[0]}"); A(f"s_lshl_b32 {sT0}, {sT0}, 2"); A(f"s_min_u32 {sT0}, {sT0}, 100000")
        E.label("L_enc")
        A("s_memrealtime s[94:95]"); A("s_waitcnt lgkmcnt(0)")
        A(f"s_sub_u32 {sT1}, s94, s90"); A(f"s_cmp_lt_u32 {sT1}, {sT0}"); A("s_cbranch_scc1 L_enc")
    A("s_branch L_done")
    if touch: E.label("L_pad_ffn"); A("s_branch L_ret_ffn")
    E.label("L_ffn")
    A(f"s_cmp_lg_u32 {sW}, 0"); A("s_cbranch_scc1 L_c_join")
    poll([f"global_load_dwordx4 {Q4(vI+4*u)}, v{vR0}, {pWS} offset:{u*128} {ldf}" for u in range(4)], tags2)
    stamp(7)
    layernorm([vI+2*u for u in range(7)], vO, vR1, 32, mid=(lambda: pad("ffn2")) if touch else None)
    A("s_waitcnt lgkmcnt(0)")
    E.label("L_c_join")
    A("s_barrier")
    def aread(i): A(f"ds_read_b128 {Q4(vF + 4*(i % NF))}, v{vR2} offset:{i*64}")
    for i in range(NF): aread(i)
    for i in range(14):
        A(f"s_waitcnt lgkmcnt({min(NF-1, 13-i)})")
        A(f"v_mfma_f32_16x16x32_bf16 {Q4(vS)}, {Q4(vF + 4*(i % NF))}, {Q4(vW1+4*i)}, {'0' if i==0 else Q4(vS)}")
        if i + NF < 14: aread(i+NF)
    for b in range(2): A(f"v_mov_b32 v{vO+4*b+1}, {sTAG}"); A(f"v_mov_b32 v{vO+4*b+3}, {sTAG}")
    A(f"v_add_u32 v{vR0}, {16*16384}, v{vR5}")
    A(f"v_cndmask_b32 v{vTM}, v{vS}, v{vS+1}, {sM1}")
    round_bf(vTM, vTM)
    A(f"v_mul_f32 v{vTM2}, {(LOG2E | 0x80000000):#x}, v{vTM}")
    A(f"v_exp_f32 v{vTM2}, v{vTM2}")
    A(f"v_add_f32 v{vTM2}, 1.0, v{vTM2}")
    A(f"v_rcp_f32 v{vTM2}, v{vTM2}")
    A(f"v_mul_f32 v{vTM}, v{vTM}, v{vTM2}")
    A(f"v_cvt_pk_bf16_f32 v{vTM}, v{vTM}, v{vTM}")
    A("s_mov_b32 exec_hi, 0"); A(f"ds_write_b16 v{vR3}, v{vTM}"); A("s_mov_b32 exec_hi, -1")
    A("s_waitcnt lgkmcnt(0)"); A("s_barrier")
    for ks in range(2): A(f"ds_read2_b64 {Q4(vF+4*ks)}, v{vR4} offset0:{ks*8} offset1:{ks*8+4}")
    zreg = [vW1+4*t for t in range(7)]
    for ks in range(2):
        A(f"s_waitcnt lgkmcnt({1-ks})")
        for t in (0,2,4,6,1,3,5):
            A(f"v_mfma_f32_16x16x32_bf16 {Q4(zreg[t])}, {Q4(vF+4*ks)}, {Q4(vW2+28*ks+4*t)}, {'0' if ks==0 else Q4(zreg[t])}")
    for b in range(2): SEL4(vO+4*b, zreg[0]+b, zreg[2]+b, zreg[4]+b, zreg[6]+b, vMX)
    for b in range(2):
        SEL4(vO+4*b+2, zreg[1]+b, zreg[3]+b, zreg[5]+b, vZ, vMX)
        A(f"global_store_dwordx4 v{vR5 if b == 0 else vR0}, {Q4(vO+4*b)}, {pWS} {stf}")
    stamp(8)
    E.label("L_done")
    if diag:
        stamp(10)
        A("s_mov_b64 exec, -1")
        A(f"s_lshl_b32 {sT0}, {sWG}, 2"); A(f"s_add_u32 {sT0}, {sT0}, {sW}"); A(f"s_lshl_b32 {sT0}, {sT0}, 7"); A(f"s_add_u32 {sT0}, {sT0}, {WS_ST}")
        A("s_getreg_b32 s100, hwreg(HW_REG_XCC_ID)")
        A("s_waitcnt lgkmcnt(0)")
        A(f"v_mov_b32 v{vTM}, {sT0}")
        A("s_mov_b64 exec, 1")
        for k in range(11): A(f"v_mov_b32 v{vW1+k}, s{70+2*k}")
        A(f"v_mov_b32 v{vW1+11}, s100"); A(f"v_mov_b32 v{vW1+12}, {sN}"); A(f"v_mov_b32 v{vW1+13}, {sROLE}"); A(f"v_mov_b32 v{vW1+14}, {sWG}"); A(f"v_mov_b32 v{vW1+15}, {sIDX}")
        for k in range(4): A(f"v_mov_b32 v{vW1+16+k}, s{92+2*k}")
        for q in range(5): A(f"global_store_dwordx4 v{vTM}, {Q4(vW1+4*q)}, {pWS} offset:{q*16}")
    E.label("L_end")
    A("s_endpgm")

    E.label("L_ffn_w")
    wide_addr(vX); tall_addr(vX+1)
    for t in range(4): read_tall_tile(vX+1, vW1, t)
    for t in range(4): read_wide_tile(vX, vW2 + 28*(t>>1), t & 1)
    A("s_branch L_ffn_w_done")
    E.label("L_ld_ffn")
    A(f"s_mov_b64 s[52:53], s[{pK[0]}:{pK[1]}]"); A("s_mov_b32 s54, 0"); A("s_mov_b32 s55, 0x20000")
    tall_voffs(3584); A(f"v_lshlrev_b32 v{vLIN}, 4, v0")
    A(f"s_mov_b64 s[48:49], s[{pW1[0]}:{pW1[1]}]"); A(f"s_mov_b32 s50, {448*1792*2}")
    A(f"s_lshl_b32 {sBASE}, {sIDX}, 7")
    for t in range(4):
        if t % 2 == 0: freecheck(2)
        tile_tall(3584, t, 16 if t < 3 else 8)
    A(f"s_mov_b64 s[48:49], s[{pW2[0]}:{pW2[1]}]")
    A(f"s_mul_i32 {sBASE}, {sIDX}, {64*896}"); A(f"s_add_u32 {sT2}, {sN}, 4")
    E.label("L_ld_w2")
    freecheck(1)
    tile_wide()
    A(f"s_cmp_lt_u32 {sN}, {sT2}"); A("s_cbranch_scc1 L_ld_w2")
    A("s_branch L_ld_head_done")
    if forcepar is None:
        E.label("L_probe")
        A(f"s_load_dword s69, {pWS}, {WS_E}")
        A("v_and_b32 v32, 1, v0"); A("v_lshlrev_b32 v32, 13, v32"); A("v_lshrrev_b32 v33, 2, v0"); A("v_lshl_add_u32 v32, v33, 8, v32")
        A("v_bfe_u32 v33, v0, 1, 1"); A(f"v_mul_u32_u24 v33, {WS_B-WS_PRB}, v33"); A(f"v_add_u32 v32, v32, v33"); A(f"v_add_u32 v32, {WS_PRB}, v32")
        A("v_mov_b32 v36, 0"); A(f"s_mov_b32 {sCI}, {nprobe}")
        A(f"s_mov_b64 exec, {(1<<(4*nprobe))-1:#x}"); A(f"global_atomic_add v37, v32, v36, {pWS} sc0")
        A("s_mov_b64 exec, 1")
        for k,off in enumerate((WS_PRB, WS_PRB+8192, WS_B, WS_B+8192)):
            A(f"v_mov_b32 v{32+k}, {off}"); A(f"s_mov_b32 s{92+k}, {-1 if pmin else 0}")
        A("s_waitcnt vmcnt(0)")
        E.label("L_probe_loop")
        for k in range(4):
            A("s_memtime s[64:65]"); A("s_waitcnt lgkmcnt(0)")
            A(f"global_atomic_add v37, v{32+k}, v36, {pWS} sc0"); A("s_waitcnt vmcnt(0)")
            A("s_memtime s[66:67]"); A(f"v_add_u32 v{32+k}, 256, v{32+k}"); A("s_waitcnt lgkmcnt(0)")
            A("s_sub_u32 s66, s66, s64")
            if diag == 3:
                A(f"s_lshl_b32 {sT0}, {sCI}, 4"); A(f"s_add_u32 {sT0}, {sT0}, {WS_ST+0x50000+4*k}"); A(f"v_mov_b32 v38, {sT0}"); A("v_mov_b32 v39, s66")
                A(f"global_store_dword v38, v39, {pWS}")
            if pmin: A(f"s_min_u32 s{92+k}, s{92+k}, s66")
            else: A(f"s_min_u32 s66, s66, {clip}"); A(f"s_add_u32 s{92+k}, s{92+k}, s66")
        A(f"s_sub_u32 {sCI}, {sCI}, 1"); A(f"s_cmp_lg_u32 {sCI}, 0"); A("s_cbranch_scc1 L_probe_loop")
        A("s_cmp_gt_u32 s92, s93"); A(f"s_cselect_b32 {sT0}, 8192, 0")
        A("s_cmp_gt_u32 s94, s95"); A(f"s_cselect_b32 {sT1}, 8192, 0")
        make_tag(sT2, "s69")
        A(f"v_mov_b32 v32, {sT0}"); A(f"v_mov_b32 v33, {sT2}"); A(f"v_mov_b32 v34, {sT1}"); A(f"v_mov_b32 v35, {sT2}"); A(f"v_mov_b32 v36, {WS_PAR}")
        A(f"global_store_dwordx4 v36, v[32:35], {pWS} {stf}")
        A("s_mov_b64 exec, -1")
        A("s_branch L_ld_wo")

    body = E.finish()
    head = open("sequential_preLN__gqa_block_cached__dense_activation_silu__decode.s.ref").read().split("; Override launch")[0]
    src = head + f"""; Design (one persistent launch, 256 workgroups = one per CU, written by my own generator script):
;  * workgroup = (batch, kv head) group g = id>>4, split j = id&15.  Wave 0 streams K/V with LDS-DMA into a 9 x 16 KiB
;    LDS ring; waves 1-4 compute with MFMA.  Every split owns 64 tiles of 32 keys: first its K (scores to LDS, true
;    maximum), then its V (each wave 64 of the 256 dims).  The last tiles form a per-group pool handed out with atomic counters:
;    its K side at the end of the K pass (scores through d_ws), its V side at the very end (online softmax, true running maximum).
;  * q = LN(x) @ wq is computed by 64 workgroups and handed over in tagged granules; V tiles are parked in registers meanwhile.
;  * tail, four tagged hand-offs through d_ws: split combine + wo rows -> column sums + residual -> LN, w1, silu, w2 rows
;    -> column sums + residual.  bf16 roundings sit where the reference materialises bf16 tensors.
;  * tag = hash of an epoch word found in d_ws (advanced at the end): it only tells this launch's granules from older ones.
;  * one workgroup times a few zero-adds to learn which 8 KiB parity of the hand-off pages is close to the readers;
;    the answer and the role/id mapping only pick addresses (speed), never values.  All spins are bounded.
; @launch grid=(256,1,1) block=(320,1,1) lds={LDS}
.amdgcn_target "amdgcn-amd-amdhsa--gfx950"
.text
.globl {NAME}
{'.p2align 12' if align else ''}
.p2align 8
.type {NAME},@function
{NAME}:
{body}.section .rodata,"a"
.p2align 6
.amdhsa_kernel {NAME}
  .amdhsa_next_free_vgpr 256
  .amdhsa_next_free_sgpr 102
  .amdhsa_accum_offset 256
  .amdhsa_group_segment_fixed_size 0
  .amdhsa_kernarg_size 88
  .amdhsa_user_sgpr_count 2
  .amdhsa_user_sgpr_kernarg_segment_ptr 1
  .amdhsa_system_sgpr_workgroup_id_x 1
.end_amdhsa_kernel
"""
    return src, E.npad

if __name__ == "__main__":
    out = sys.argv[1]
    kw = json.loads(sys.argv[2]) if len(sys.argv) > 2 else {}
    src, npad = gen(**kw)
    open(out, "w").write(src)
    print("wrote", out, "lines", src.count("\n"), "pad states", npad)
```
